```python
import torch

def _softmax(x, axis=-1):
    return torch.softmax(x, dim=axis)
def _gelu(x):
    return torch.nn.functional.gelu(x, approximate="tanh")
def _silu(x):
    return torch.nn.functional.silu(x)
def _sigmoid(x):
    return torch.sigmoid(x)
def _layernorm(x, axis=-1, eps=1e-5):
    m = x.mean(dim=axis, keepdim=True)
    v = x.var(dim=axis, keepdim=True, unbiased=False)
    return (x - m) / torch.sqrt(v + eps)
def _scatter_add(tgt, idx, src, axis=0):
    return tgt.clone().index_add_(axis, idx, src)
def _segment_sum(src, seg, n):
    out = torch.zeros((n,) + src.shape[1:], dtype=src.dtype)
    return out.index_add_(0, seg, src)
def _pad(x, pw):
    flat = tuple(v for pair in reversed(pw) for v in pair)
    return torch.nn.functional.pad(x, flat)

kernel_name = 'standalone__edge_featured_mpnn_gatedgcn__graph'

def setup_inputs():

    _w = (lambda a: (lambda t: t.to(torch.bfloat16) if t.is_floating_point() else t)(torch.as_tensor(a)))
    N, deg, D, De = 50000, 16, 64, max(16, 1)
    E = N * deg
    return {
        "x": _w((lambda *s: torch.randn(*s, dtype=torch.bfloat16) * 0.4)(N, D)),
        "e_attr": _w((lambda *s: torch.randn(*s, dtype=torch.bfloat16) * 0.8)(E, De)),
        "src": _w((lambda lo, hi, *s: torch.randint(lo, hi, s))(0, N, E).to(torch.int64)),
        "dst": _w((lambda lo, hi, *s: torch.randint(lo, hi, s))(0, N, E).to(torch.int64)),
        "w_a": _w((lambda *s: torch.randn(*s, dtype=torch.bfloat16) * 0.8)(D, D)),
        "w_b": _w((lambda *s: torch.randn(*s, dtype=torch.bfloat16) * 0.4)(D, D)),
        "w_c": _w((lambda *s: torch.randn(*s, dtype=torch.bfloat16) * 0.8)(De, D)),
        "w_u": _w((lambda *s: torch.randn(*s, dtype=torch.bfloat16) * 0.05)(D, D)),
        "w_v": _w((lambda *s: torch.randn(*s, dtype=torch.bfloat16) * 0.05)(D, D)),
    }

def reference(x, e_attr, src, dst, w_a, w_b, w_c, w_u, w_v):
    N, D = x.shape
    hv = x @ w_v
    g = x[dst] @ w_a + x[src] @ w_b + e_attr @ w_c
    eta = _sigmoid(g)
    denom = _segment_sum(eta, dst, N) + 1e-6
    eta_n = eta / denom[dst]
    agg = _segment_sum(eta_n * hv[src], dst, N)
    z = x @ w_u + agg
    relu_z = torch.where(z > 0, z, 0 * z)
    return x + relu_z
```

```python
import sys, re, struct

NAME = "standalone__edge_featured_mpnn_gatedgcn__graph"
OPT = dict(kv.split("=") for kv in sys.argv[2:])
def opt(k, d):
    v = OPT.get(k)
    if v is None: return d
    return type(d)(v)

N, E = 50000, 800000
CH = 3128
BN = 196
RS = opt('rs', 257) * 128
WS_CELL = 0x10000
WS_RECS = 0x1000000
WS_LEID = 0x1400000
WS_USED = 0x1600000
WS_TS = 0x3000000
KINC = 0xB5C179B9
RTAG = 0x801F0000
ITAG = 0xF000F000
HTAG = 0xF000FFFF
LOG2E = 1.4426950408889634
def f2u(f): return struct.unpack("<I", struct.pack("<f", f))[0]

out = []
def emit(s=""):
    for l in s.strip("\n").split("\n"):
        out.append(l.rstrip())
def I(s): out.append("    " + s)
def L(s): out.append(s + ":")
def C(s): out.append("    ; " + s)
def put(seq):
    for s in seq:
        if s.endswith(":"): L(s[:-1])
        else: I(s)
def rr(a, n): return f"v[{a}:{a+n-1}]"
def sp(a): return f"s[{a}:{a+1}]"
def sq(a): return f"s[{a}:{a+3}]"
def pol(p): return (" " + p.replace("_", " ")) if p else ""

def srd(d, lo, size, add=None, stride=0):
    if add is None:
        I(f"s_mov_b32 s{d}, s{lo}")
        I(f"s_mov_b32 s{d+1}, s{lo+1}" if not stride else f"s_or_b32 s{d+1}, s{lo+1}, {stride << 16:#x}")
    else:
        I(f"s_add_u32 s{d}, s{lo}, {add}")
        I(f"s_addc_u32 s{d+1}, s{lo+1}, 0")
    I(f"s_mov_b32 s{d+2}, {size}")
    I(f"s_mov_b32 s{d+3}, 0x20000")

def wave_scan(v, fill=None, half=False):
    def gap():
        if fill and len(fill) >= 2:
            I(fill.pop(0)); I(fill.pop(0))
        else: I("s_nop 1")
    for sh in (1, 2, 4, 8):
        gap()
        I(f"v_add_u32_dpp v{v}, v{v}, v{v} row_shr:{sh} row_mask:0xf bank_mask:0xf bound_ctrl:0")
    gap()
    I(f"v_add_u32_dpp v{v}, v{v}, v{v} row_bcast:15 row_mask:0xa bank_mask:0xf")
    if half: return
    gap()
    I(f"v_add_u32_dpp v{v}, v{v}, v{v} row_bcast:31 row_mask:0xc bank_mask:0xf")

TAB, ZROW, CNT, FLAG = 0, 512, 576, 640
HIST = 1024
ESTG = HIST + 4096
HIST1 = ESTG
EARLY = ESTG + 8192
LWB = 288 * 4
R0 = EARLY + 32768
R1 = R0 + 16 * LWB
XSTG = R1 + 16 * LWB
XI = 1056
SLOT = 4 * XI
OWN = XSTG + 8 * SLOT
PL = 52 * 128 + 32
WR = 160
WUI = OWN + 4 * PL
WCI = WUI + 64 * WR
MAP = WCI + 16 * WR
HDR = MAP + 1024
PRG = HDR + 1024
LDS = PRG + 1024
WBI, WVI, WAI = EARLY, EARLY + 64 * WR, EARLY + 128 * WR
ATAB = XSTG
LROW = 160
CIMG = R0
IIMG = CIMG + 256 * LROW
assert IIMG + 128 * LROW <= OWN and 208 * WR <= 8 * SLOT and LDS <= 163840, LDS
assert R1 < 65536 and R0 % 128 == 0

vWB, vWV, vCA, vACC = 0, 32, 64, 96
vX, vEO, vS = 160, 176, 184
vP, vQ, vR = 188, 204, 220
vQD = 236
vEI, vCH, vIDX, vCP, vAX, vcEO, vcS, vARX, vARE, vARO, vARS, vEA = 240, 241, 242, 243, 244, 245, 246, 247, 248, 249, 250, 251
lane, vTS, tid = 253, 254, 255
vPM, vPA = lane, tid
DEN = lambda w, n: vACC + 32 * w + 4 * n
NUM = lambda w, n: vACC + 32 * w + 16 + 4 * n
def m16(d, a, b, c=None):
    return f"v_mfma_f32_16x16x32_bf16 {rr(d,4)}, {rr(a,4)}, {rr(b,4)}, " + ("0" if c is None else rr(c, 4))
def s16(d, b): return f"v_smfmac_f32_16x16x64_bf16 {rr(d,4)}, {rr(vS,4)}, {rr(b,8)}, v{vIDX}"

sWP, sW, sB, sK = 3, 4, 5, 6
sWIN, sF0, sF1, sL = 7, 8, 9, 12
sA, sBt = 10, 11
sSTG, sES, s128 = 13, 14, 15
pX, pE, pSRC, pDST, pWA, pWB, pWC, pWU, pWV, pOUT, pDBG, pWS = 16, 18, 20, 22, 24, 26, 28, 30, 32, 34, 36, 38
sT, sN, sFM, sMORE, sSKIP, sXT, sWS0, sWS1, sB0E, sSH = 16, 17, 18, 19, 20, 21, 22, 23, 24, 25
sCI, sCUR, sR0, sCNT, sST, sEND = 26, 27, 28, 29, 30, 31
sMSK = 32
sTM = 34
sX, sEP, sOUT, sWS, sCEL, sD2 = 40, 44, 48, 52, 56, 60
sM = 64
sJ3, sEM = 96, 98
sSP = 100
sSG, sRM = 101, 96

TS = opt("ts", 0)
STN = []
def stamp(i):
    if not TS: return
    if isinstance(i, str) and i[0] not in opt("tsx", ""): return
    STN.append(str(i)); i = len(STN) - 1
    I("s_memrealtime vcc" if TS == 1 else "s_memtime vcc")
    I("s_waitcnt lgkmcnt(0)")
    I(f"v_writelane_b32 v{vTS}, vcc_lo, {i}")
def stamp_out():
    if not TS: return
    I("s_waitcnt vmcnt(0)")
    stamp(15)
    I("s_memtime vcc")
    I("s_waitcnt lgkmcnt(0)")
    I(f"v_writelane_b32 v{vTS}, vcc_lo, 58")
    I(f"v_writelane_b32 v{vTS}, s{sN}, 59")
    I(f"v_writelane_b32 v{vTS}, s{sSP}, 60")
    I("s_lshl_b32 s10, s2, 3")
    I(f"s_add_u32 s10, s10, s{sWP}")
    I("s_lshl_b32 s10, s10, 8")
    I(f"s_add_u32 s10, s10, {WS_TS}")
    I(f"v_lshl_add_u32 v{vP}, v{lane}, 2, s10")
    I(f"global_store_dword v{vP}, v{vTS}, {sp(pWS)}")
def cstamp(i):
    if not TS: return
    I("s_memtime vcc")
    I("s_waitcnt lgkmcnt(0)")
    I(f"v_writelane_b32 v{vTS}, vcc_lo, {i}")

LD_P = opt("ldp", "nt")
XP, EP, OP = opt("xp", ""), opt("ep", ""), opt("op", "sc1")
STP = opt("stp", "sc1")
JE = opt("je", 2)
EMASK = sum(1 << (2 * j + 1) for j in range(JE)) * 0x01010101
SDW = "dst_sel:DWORD dst_unused:UNUSED_PAD"

def dma_tile():
    r = []
    for i in range(4):
        r.append(f"s_add_u32 m0, s{sSTG}, {i*XI}")
        r.append(f"v_mad_u32_u16 v{vQD+i}, v{vQD+i}, s{s128}, v{vCP}")
        r.append(f"buffer_load_dwordx4 v{vQD+i}, {sq(sX)}, 0 offen{pol(XP)} lds")
    r.append(f"s_mov_b32 m0, s{sES}")
    r.append(f"v_and_b32 v{vEI}, 0xfffff, v{vEI}")
    r.append(f"buffer_load_dwordx4 {rr(vEI,2)}, {sq(sEP)}, 0 idxen offen{pol(EP)} lds")
    return r

ORD = [(0, 0), (1, 0), (0, 1), (1, 1)]
def xread(m, s): return f"ds_read_b128 {rr(vX+8*m+4*s,4)}, v{vAX} offset:{512*m + 64*s}"
def g_mfmas(D, ft, w):
    g = [m16(D+8*n+4*m, vEO+4*m, vCA+16*w+8*ft+4*n) for m in range(2) for n in range(2)]
    g += [m16(D+8*n+4*m, vX+8*m+4*s, vWB+16*ft+8*n+4*s, D+8*n+4*m) for m, s in ORD for n in range(2)]
    return g
def h_mfmas(ft):
    return [m16(vQ+8*n+4*m, vX+8*m+4*s, vWV+16*ft+8*n+4*s, None if s == 0 else vQ+8*n+4*m) for m, s in ORD for n in range(2)]
def s_num(w, ft): return [s16(NUM(w, 2*ft+n), vQ+8*n) for n in range(2)]
def s_den(w, ft, G): return [s16(DEN(w, 2*ft+n), G+8*n) for n in range(2)]

LV = [int(c, 16) for c in opt("lv", "015a")]
PAT = opt("pat", "1" * 11 + "5")
FAIR = opt("fair", 1)
BST = opt("bst", 11)
def phase(par, ft, cp=0):
    G, Go = (vP, vR) if ft == 0 else (vR, vP)
    nf = 1 - ft
    wn = par if ft == 0 else par ^ 1
    wp = par ^ 1 if ft == 0 else par
    s1 = [[x] for x in s_num(wp, nf) + h_mfmas(ft) + s_den(wp, nf, Go)]
    s2 = [[x] for x in g_mfmas(Go, nf, wn)]
    if ft == 0:
        o = par * LWB
        s1[0] += [f"ds_read_u16 v{vQD+u}, v{vARS} offset:{o + 16*u}" for u in range(2)]
        s1[8] += ["s_waitcnt lgkmcnt(0)"] + [f"v_and_or_b32 v{vQD+u}, v{vQD+u}, s{sFM}, v{vcS}" for u in range(2)]
        if FAIR:
            s1[0] += [f"ds_add_rtn_u32 v{vQD+2}, v{vPA}, v{vPM}"]
            s1[8] += [f"v_readfirstlane_b32 s{sRM}, v{vQD+2}"]
            s2[1] += [f"s_mul_i32 s{sRM}, s{sRM}, s{sSG}"]
        o1 = 128 if par else LWB
        s2[0] += [f"ds_read_b64_tr_b16 {rr(vS+2*u,2)}, v{vQD+u}" for u in range(2)]
        s2[0] += [f"ds_read_u16 v{vEA+m}, v{vARO} offset:{o1 + 64*m}" for m in range(2)]
        s2[6] += ["s_waitcnt lgkmcnt(0)"] + [f"v_and_or_b32 v{vEA+m}, v{vEA+m}, s{sFM}, v{vcEO}" for m in range(2)]
        s2[6] += [f"ds_read_b128 {rr(vQD,4)}, v{vARX} offset:{o + 128}", f"ds_read_b32 v{vEI}, v{vARE} offset:{o + 128}",
                  f"s_add_u32 s{sT}, s{sT}, 1"]
        if par: s2[7] += [f"v_add_u32 v{r}, 0x80, v{r}" for r in (vARX, vARE, vARO, vARS)]
    else:
        s1[2] = ["s_waitcnt vmcnt(0)"] + [f"ds_read_b128 {rr(vEO+4*m,4)}, v{vEA+m}" for m in range(2)] + s1[2]
        for i, (m, s) in enumerate(ORD): s1[3+2*i].append(xread(m, s))
        s2[0] = ["s_waitcnt lgkmcnt(4)"] + s2[0]
        for i in range(4): s2[4+2*i] = [f"s_waitcnt lgkmcnt({3-i})"] + s2[4+2*i]
        s2[10] += [f"s_cmp_lt_u32 s{sT}, s{sN}", f"s_cbranch_scc0 L_ND{par}{cp}"] + dma_tile() + [f"L_ND{par}{cp}:"]
    def sec(mf, op):
        r = []; k = 0
        for i, m in enumerate(mf):
            if FAIR:
                if i == 0: r.append(f"s_setprio {cp}")
                if i == BST: r.append("s_setprio 3")
            elif i in LV: r.append(f"s_setprio {LV.index(i)}")
            r += m
            for _ in range(int(PAT[i])):
                r.append(f"{op} v{G+k}, v{G+k}"); k += 1
        assert k == 16
        return r
    r = sec(s1, "v_exp_f32")
    r += [f"v_pk_add_f32 {rr(G+2*i,2)}, {rr(G+2*i,2)}, 1.0 op_sel_hi:[1,0]" for i in range(8)]
    r += sec(s2, "v_rcp_f32")
    r += [f"v_pk_mul_f32 {rr(vQ+2*i,2)}, {rr(G+2*i,2)}, {rr(vQ+2*i,2)}" for i in range(8)]
    return r

def listaddr(t0):
    I(f"v_lshrrev_b32 v{t0}, 3, v{lane}")
    I(f"v_lshl_add_u32 v{vARX}, v{t0}, 4, s{sL}")
    I(f"s_add_u32 s10, s{sL}, {R1-R0}")
    I(f"v_lshrrev_b32 v{t0}, 1, v{lane}")
    I(f"v_lshl_add_u32 v{vARE}, v{t0}, 2, s10")
    I(f"s_add_u32 s10, s10, 2")
    I(f"v_and_b32 v{t0}, 48, v{lane}")
    I(f"v_lshl_add_u32 v{vARS}, v{t0}, 1, s10")
    I(f"v_and_b32 v{t0}, 12, v{lane}")
    I(f"v_add_u32 v{vARS}, v{vARS}, v{t0}")
    I(f"v_lshrrev_b32 v{t0}, 5, v{lane}")
    I(f"v_mul_u32_u24 v{vARO}, {R1-R0}, v{t0}")
    I(f"v_and_b32 v{t0}, 15, v{lane}")
    I(f"v_lshl_add_u32 v{vARO}, v{t0}, 2, v{vARO}")
    I(f"s_add_u32 s10, s{sL}, 2")
    I(f"v_add_u32 v{vARO}, s10, v{vARO}")

def prefill(t):
    I(f"v_and_b32 v{t+8}, 7, v{lane}")
    I(f"s_lshl_b32 s10, s{sES}, 16")
    I(f"v_lshl_add_u32 v{t}, v{t+8}, 23, s10")
    for d in range(1, 4): I(f"v_add_u32 v{t+d}, {(32 << 16) * d:#x}, v{t}")
    for d in range(4): I(f"v_mov_b32 v{t+4+d}, {(ZROW << 16) | 0xfffff:#x}")
    I(f"v_lshl_add_u32 v{t+8}, v{lane}, 4, s{sL}")
    for o in (0, 1024, 2*LWB - 1024):
        I(f"ds_write_b128 v{t+8}, {rr(t,4)} offset:{o}")
        I(f"ds_write_b128 v{t+8}, {rr(t+4,4)} offset:{o + R1 - R0}")

def kernel():
    emit(f"""
.globl {NAME}_kernel
.p2align 8
.type {NAME}_kernel,@function
{NAME}_kernel:""")
    I("s_cmp_ge_u32 s2, 256")
    I("s_cbranch_scc1 L_END")
    I("s_load_dwordx16 s[16:31], s[0:1], 0")
    I("s_load_dwordx8 s[32:39], s[0:1], 64")
    if TS: I(f"v_mov_b32 v{vTS}, 0")
    u = lambda i: vP + i
    if opt("cpf", 1):
        I(f"s_getpc_b64 {sp(sM)}")
        L("L_PC")
        I(f"v_lshlrev_b32 v{u(0)}, 7, v0")
        I(f"v_min_u32 v{u(0)}, L_LAST-L_PC, v{u(0)}")
        I("v_cmp_gt_u32 vcc, 0xc0, v0")
        I("s_cbranch_vccz L_NOCPF")
        I(f"global_load_dword v{vEA}, v{u(0)}, {sp(sM)}")
        L("L_NOCPF")
    stamp(0)
    vD, vSR, vBK, vHA, vRK1, vID = vACC, vACC + 8, vACC + 16, vACC + 24, vACC + 32, vACC + 40
    vRW = vX
    one, l16 = vS, vS + 1
    vOA, vT16, sOW = vR + 14, vR + 12, 101
    I(f"v_mov_b32 v{tid}, v0")
    I(f"v_lshrrev_b32 v{u(0)}, 6, v0")
    I(f"v_and_b32 v{lane}, 63, v0")
    I(f"v_readfirstlane_b32 s{sWP}, v{u(0)}")
    I(f"v_lshlrev_b32 v{vT16}, 4, v0")
    I(f"v_lshlrev_b32 v{u(2)}, 3, v0")
    I(f"v_lshlrev_b32 v{u(3)}, 2, v0")
    I(f"v_mov_b32 v{one}, 0x10000")
    I(f"v_and_b32 v{u(4)}, 0x3fc, v{u(3)}")
    I(f"ds_write_b32 v{u(4)}, v{one} offset:{HIST1}")
    I(f"s_mul_i32 s{sA}, s2, {CH*4}")
    I(f"s_sub_u32 s{sBt}, {E*4}, s{sA}")
    I(f"s_min_u32 s{sBt}, s{sBt}, {CH*4}")
    I(f"s_and_b32 s{sB}, s2, 7")
    I(f"s_lshr_b32 s{sW}, s2, 3")
    I(f"s_lshl_b32 s{sB}, s{sB}, 5")
    I(f"s_add_u32 s{sB}, s{sB}, s{sW}")
    I(f"s_and_b32 s{sWIN}, s{sWP}, 3")
    I(f"s_lshr_b32 s{sF0}, s{sWP}, 2")
    I(f"s_mul_i32 s{sF1}, s{sB}, {BN}")
    I(f"s_add_u32 s{sF1}, s{sF1}, s{sWIN}")
    I(f"s_lshl_b32 s{sL}, s{sF0}, 5")
    I(f"s_add_u32 s{sF1}, s{sF1}, s{sL}")
    I(f"v_lshrrev_b32 v{u(5)}, 3, v{lane}")
    I(f"v_lshl_add_u32 v{u(5)}, v{u(5)}, 2, s{sF1}")
    I(f"v_and_b32 v{vCP}, 7, v{lane}")
    I(f"v_lshlrev_b32 v{vCP}, 4, v{vCP}")
    I(f"v_lshl_add_u32 v{vOA}, v{u(5)}, 7, v{vCP}")
    I(f"s_mul_i32 s{sWIN}, s{sWIN}, {PL}")
    I(f"s_lshl_b32 s{sF0}, s{sF0}, 10")
    I(f"s_add_u32 s{sOW}, s{sWIN}, s{sF0}")
    I(f"s_movk_i32 s{sF0}, 0x2000")
    I(f"s_movk_i32 s{sF1}, 0x3000")
    I("s_waitcnt lgkmcnt(0)")
    I(f"s_load_dword s{sK}, {sp(pWS)}, 0")
    srd(sCEL, pDST, f"s{sBt}", f"s{sA}")
    srd(sD2, pSRC, f"s{sBt}", f"s{sA}")
    I(f"buffer_load_dwordx4 {rr(vD,4)}, v{vT16}, {sq(sCEL)}, 0 offen{pol(LD_P)}")
    I(f"buffer_load_dwordx4 {rr(vSR,4)}, v{vT16}, {sq(sD2)}, 0 offen{pol(LD_P)}")
    I(f"buffer_load_dwordx2 {rr(vD+4,2)}, v{u(2)}, {sq(sCEL)}, s{sF0} offen{pol(LD_P)}")
    I(f"buffer_load_dwordx2 {rr(vSR+4,2)}, v{u(2)}, {sq(sD2)}, s{sF0} offen{pol(LD_P)}")
    I(f"s_cmp_lg_u32 s{sWP}, 0")
    I("s_cbranch_scc1 L_NO7")
    I(f"buffer_load_dword v{vD+6}, v{u(3)}, {sq(sCEL)}, s{sF1} offen{pol(LD_P)}")
    I(f"buffer_load_dword v{vSR+6}, v{u(3)}, {sq(sD2)}, s{sF1} offen{pol(LD_P)}")
    L("L_NO7")
    NY = 0
    stamp("a0")
    I("s_barrier")
    stamp("a1")
    srd(sEP, pE, E, stride=32)
    srd(sOUT, pOUT, N*128)
    srd(sWS, pWS, WS_USED)
    I(f"s_lshl_b32 s{sL}, s2, 7")
    I(f"s_add_u32 s{sL}, s{sL}, {WS_CELL}")
    srd(sCEL, pWS, 383*RS + 128, f"s{sL}")
    cM, cN, cP, cPM, cR = sM, sM + 1, sM + 2, sM + 3, sM + 4
    m2, m1, mk0 = sM + 6, sM + 8, sM + 10
    I(f"s_mov_b32 s{cM}, 85599")
    I(f"s_mov_b32 s{cN}, {-BN & 0xffffffff}")
    I(f"s_mov_b32 s{cP}, 42944")
    I(f"s_mov_b32 s{cPM}, {opt('phm', 3) << 29:#x}")
    I(f"s_mov_b32 s{cR}, {RS}")
    for i in range(4): I(f"v_add_u32 v{vID+i}, {i}, v{u(3)}")
    I(f"v_lshrrev_b32 v{vID+4}, 1, v{u(3)}")
    I(f"v_add_u32 v{vID+4}, 0x800, v{vID+4}")
    I(f"v_add_u32 v{vID+5}, 1, v{vID+4}")
    I(f"v_add_u32 v{vID+6}, 0xc00, v{tid}")
    I(f"s_lshr_b32 s{sBt}, s{sBt}, 2")
    I(f"v_cmp_gt_u32 {sp(m2)}, s{sBt}, v{vID+4}")
    I(f"v_cmp_gt_u32 {sp(m1)}, s{sBt}, v{vID+6}")
    I(f"s_and_b32 s{sA}, s{sWP}, 3")
    I(f"s_lshr_b32 s{sW}, s{sWP}, 2")
    I(f"s_lshl1_add_u32 s{sW}, s{sA}, s{sW}")
    if opt("swp", 1): I(f"s_xor_b32 s{sW}, s{sW}, 1")
    I(f"s_mul_i32 s{sA}, s{sW}, 49")
    I(f"s_sub_i32 s{sA}, s{sA}, 7")
    I(f"s_ashr_i32 s{sA}, s{sA}, 1")
    I(f"s_max_i32 s{sWIN}, s{sA}, 0")
    I(f"s_mul_i32 s{sSTG}, s{sW}, {SLOT}")
    I(f"s_add_u32 s{sSTG}, s{sSTG}, {XSTG}")
    I(f"s_lshl_b32 s{sES}, s{sW}, 10")
    I(f"s_add_u32 s{sES}, s{sES}, {ESTG}")
    I(f"s_mul_i32 s{sL}, s{sW}, {2*LWB}")
    I(f"s_add_u32 s{sL}, s{sL}, {R0}")
    I(f"s_movk_i32 s{s128}, 128")
    I(f"v_bfe_u32 v{u(6)}, v{tid}, 4, 4")
    I(f"v_and_b32 v{u(7)}, 7, v{tid}")
    I(f"v_cmp_eq_u32 vcc, v{u(6)}, v{u(7)}")
    I(f"v_and_b32 v{u(6)}, 8, v{tid}")
    I(f"v_lshlrev_b32 v{u(6)}, 1, v{u(6)}")
    I(f"v_mov_b32 v{u(8)}, 0x3f80")
    I(f"v_lshlrev_b32 v{u(8)}, v{u(6)}, v{u(8)}")
    I(f"v_cndmask_b32 v{u(8)}, 0, v{u(8)}, vcc")
    I(f"ds_write_b32 v{u(4)}, v{u(8)} offset:{TAB}")
    I(f"v_mov_b64 {rr(u(8),2)}, 0")
    I(f"ds_write_b64 v{u(2)}, {rr(u(8),2)} offset:{HIST}")
    I(f"v_add_u32 v{u(6)}, {PRG}, v{u(4)}")
    I(f"ds_write_b32 v{u(6)}, v{u(8)}")
    I(f"v_cmp_eq_u32 {sp(mk0)}, 0, v{u(7)}")
    go, lo, lo2, ha = vR, vR + 1, vR + 2, vR + 3
    wl, wal = vR + 4, vR + 5
    I(f"v_lshrrev_b32 v{ha}, 3, v{tid}")
    I(f"v_mad_u32_u24 v{go}, v{ha}, s{cR}, v{vCP}")
    I(f"v_mul_u32_u24 v{wl}, {LROW}, v{ha}")
    I(f"v_add_u32 v{lo}, v{wl}, v{vCP}")
    I(f"v_add_u32 v{lo}, {CIMG}, v{lo}")
    I(f"v_and_b32 v{lo2}, 4, v{tid}")
    I(f"v_lshl_add_u32 v{lo2}, v{lo2}, 2, v{lo}")
    assert LROW == WR
    I(f"v_bfe_u32 v{u(6)}, v{tid}, 5, 1")
    I(f"v_bfe_u32 v{u(8)}, v{tid}, 6, 1")
    I(f"v_sub_u32 v{u(6)}, v{u(6)}, v{u(8)}")
    I(f"v_mul_i32_i24 v{u(6)}, {4*WR}, v{u(6)}")
    I(f"v_add_u32 v{wl}, v{wl}, v{u(6)}")
    I(f"v_lshl_add_u32 v{wl}, v{u(7)}, 2, v{wl}")
    I(f"v_add_u32 v{wl}, {WBI}, v{wl}")
    I(f"v_lshlrev_b32 v{ha}, 2, v{ha}")
    I(f"v_lshlrev_b32 v{l16}, 4, v{lane}")
    I(f"v_and_b32 v{vCH}, 1, v{lane}")
    I(f"v_lshlrev_b32 v{vCH}, 4, v{vCH}")
    I(f"v_mov_b32 v{vIDX}, 0xdddd")
    I(f"v_and_b32 v{vcEO}, 16, v{lane}")
    I(f"v_and_b32 v{u(6)}, 3, v{lane}")
    I(f"v_lshlrev_b32 v{vcS}, 3, v{u(6)}")
    I(f"v_bfe_u32 v{u(8)}, v{lane}, 2, 2")
    I(f"v_and_b32 v{u(9)}, 48, v{lane}")
    I(f"v_lshl_add_u32 v{u(10)}, v{u(8)}, 7, v{u(9)}")
    oa = vR + 6
    I(f"v_mul_u32_u24 v{oa}, {PL}, v{u(6)}")
    I(f"v_add_u32 v{oa}, v{oa}, v{u(10)}")
    I(f"v_mul_u32_u24 v{vAX}, {XI}, v{u(6)}")
    I(f"v_add3_u32 v{vAX}, v{vAX}, v{u(10)}, s{sSTG}")
    I(f"v_bfe_u32 v{u(9)}, v{lane}, 2, 3")
    I(f"v_lshrrev_b32 v{u(8)}, 5, v{lane}")
    I(f"v_lshl_add_u32 v{u(9)}, v{u(8)}, 4, v{u(9)}")
    I(f"v_mul_u32_u24 v{wal}, {WR}, v{u(9)}")
    I(f"v_add_u32 v{wal}, v{wal}, v{vcS}")
    listaddr(u(6))
    def rank_a(rs):
        for i in rs: I(f"v_mul_u32_u24 v{vBK+i}, s{cM}, v{vD+i}")
        for i in rs: I(f"v_lshrrev_b32 v{vBK+i}, 24, v{vBK+i}")
        for i in rs:
            I(f"v_lshlrev_b32 v{vHA+i}, 2, v{vBK+i}")
            I(f"ds_add_rtn_u32 v{vRK1+i}, v{vHA+i}, v{one} offset:{HIST1}")
    def rank_b(rs):
        for i in rs:
            I(f"v_mad_i32_i24 v{vD+i}, v{vBK+i}, s{cN}, v{vD+i}")
            I(f"v_mul_u32_u24 v{u(6)}, s{cP}, v{vSR+i}")
            I(f"v_lshl_or_b32 v{vSR+i}, v{vD+i}, 21, v{vSR+i}")
            I(f"v_and_or_b32 v{vSR+i}, v{u(6)}, s{cPM}, v{vSR+i}")
            I(f"v_mad_u32_u24 v{vBK+i}, v{vBK+i}, {LROW//4}, s{cN+4}")
    def place(i, wait, em):
        if wait is not None: I(f"s_waitcnt lgkmcnt({wait})")
        I(f"v_lshrrev_b32 v{vRK1+i}, 16, v{vRK1+i}")
        I(f"v_mul_u32_u24 v{vD+i}, 33, v{vRK1+i}")
        I(f"v_bfe_u32 v{vD+i}, v{vD+i}, 3, 5")
        I(f"v_add_lshl_u32 v{vD+i}, v{vD+i}, v{vBK+i}, 1")
        I(f"v_lshlrev_b32 v{u(6)}, 1, v{vD+i}")
        I(f"v_cmpx_gt_u32 vcc, 32, v{vRK1+i}")
        I(f"ds_write_b16 v{vD+i}, v{vID+i} offset:{IIMG - 2*QB}")
        I(f"ds_write_b32 v{u(6)}, v{vSR+i} offset:{CIMG - 4*QB}")
        I(f"s_mov_b64 exec, {em}")
    PF = opt("pf", 0)
    def late_loads():
        srd(sX, pX, N*128)
        for k in range(3):
            I(f"s_add_u32 m0, s{sOW}, {OWN + 2048*k}")
            I(f"s_movk_i32 s{sTM}, {8192*k}")
            I(f"buffer_load_dwordx4 v{vOA}, {sq(sX)}, s{sTM} offen lds")
        I(f"s_cmp_ge_u32 s{sWP}, 4")
        I("s_cbranch_scc1 L_NOO4")
        I(f"s_add_u32 m0, s{sOW}, {OWN + 2048*3}")
        I(f"s_movk_i32 s{sTM}, {8192*3}")
        I("s_mov_b32 exec_hi, 0")
        I(f"buffer_load_dwordx4 v{vOA}, {sq(sX)}, s{sTM} offen lds")
        I("s_mov_b32 exec_hi, -1")
        I(f"s_cmp_ge_u32 s{sWP}, 2")
        I("s_cbranch_scc1 L_NOO4")
        I(f"global_load_dwordx4 {rr(vEO,4)}, v{vT16}, {sp(pWC)}")
        L("L_NOO4")
        for k, p in enumerate((pWB, pWV, pWA, pWU)):
            I(f"global_load_dwordx4 {rr(vRW+4*k,4)}, v{vT16}, {sp(p)}")
        if PF:
            assert PF <= 512
            I(f"s_lshr_b32 s{sTM+1}, s2, 3")
            I(f"s_mul_i32 s{sTM}, s{sTM+1}, {PF*128}")
            I(f"v_min_u32 v{u(7)}, {PF-1}, v{tid}")
            I(f"v_lshlrev_b32 v{u(7)}, 7, v{u(7)}")
            I(f"buffer_load_dword v{vEA+1}, v{u(7)}, {sq(sX)}, s{sTM} offen")
    QB = CIMG // 4
    assert 0 <= IIMG - 2*QB < 65536
    I(f"s_movk_i32 s{cN+4}, {QB}")
    stamp("a2")
    I("s_waitcnt lgkmcnt(0)")
    I(f"s_waitcnt vmcnt({NY + 3})")
    stamp(1)
    rank_a(range(4))
    I(f"s_waitcnt vmcnt({NY + 1})")
    I(f"s_mov_b64 exec, {sp(m2)}")
    rank_a(range(4, 6))
    I("s_mov_b64 exec, -1")
    I(f"s_waitcnt vmcnt({NY})")
    LLP = opt("llp", 0)
    if LLP == 0: late_loads()
    rank_b(range(6))
    if LLP == 1: late_loads()
    for i in range(4): place(i, 5 + i, "-1" if i < 3 else sp(m2))
    place(4, 9, sp(m2))
    place(5, 10, "-1")
    I(f"s_cmp_lg_u32 s{sWP}, 0")
    I("s_cbranch_scc1 L_B1")
    I(f"s_mov_b64 exec, {sp(m1)}")
    rank_a([6]); rank_b([6]); place(6, 0, "-1")
    L("L_B1")
    if LLP == 2: late_loads()
    sTR, sTI, sTH = sM + 12, sM + 13, sM + 14
    I(f"s_add_u32 s{sK}, s{sK}, {KINC:#x}")
    I(f"s_and_b32 s{sTR}, s{sK}, {RTAG:#x}")
    I(f"s_bfe_u32 s{sTI}, s{sK}, 0x40010")
    I(f"s_mul_i32 s{sTI}, s{sTI}, 0x10001000")
    I(f"s_and_b32 s{sTH}, s{sK}, {HTAG:#x}")
    vTR, vTI, vM0, vT0 = vS + 2, vS + 3, vQD, vQD + 1
    I(f"v_mov_b32 v{vTR}, s{sTR}")
    I(f"v_mov_b32 v{vTI}, s{sTI}")
    I(f"v_mov_b32 v{vM0}, {RTAG:#x}")
    I(f"v_cndmask_b32 v{vM0}, v{vM0}, -1, {sp(mk0)}")
    I(f"s_mov_b32 s{cM}, {RTAG:#x}")
    I(f"s_mov_b32 s{cP}, {ITAG:#x}")
    I("s_waitcnt lgkmcnt(0)")
    I("s_barrier")
    stamp(2)
    vO, vHD = vQ, vR + 8
    vOI, vHS = u(8), u(4)
    I(f"ds_read_b128 {rr(vHS,4)}, v{l16} offset:{HIST1}")
    for i in range(4):
        I(f"ds_read_b32 v{vHD+i}, v{ha} offset:{HIST1 + 256*i}")
        I(f"ds_read_b128 {rr(vO+4*i,4)}, v{lo} offset:{64*LROW*i}")
    for i in range(2):
        I(f"ds_read_b128 {rr(vOI+4*i,4)}, v{lo2} offset:{IIMG - CIMG + 64*LROW*i}")
    for i in range(1, 6): I(f"s_mov_b32 s{sM+15+i}, {64*RS*i}")
    I("s_waitcnt lgkmcnt(10)")
    I(f"v_max3_u32 v{u(0)}, v{vHS}, v{vHS+1}, v{vHS+2}")
    I(f"v_max_u32 v{u(0)}, v{u(0)}, v{vHS+3}")
    I(f"v_cmp_lt_u32 vcc, {32 << 16}, v{u(0)}")
    I("s_cbranch_vccnz L_POVF")
    L("L_POUT")
    for i in range(4):
        I(f"s_waitcnt lgkmcnt({8 - 2*i})")
        I(f"v_or_b32 v{vHD+i}, s{sTH}, v{vHD+i}")
        I(f"v_cndmask_b32 v{vHD+i}, v{vTR}, v{vHD+i}, {sp(mk0)}")
        for d in range(1, 4): I(f"v_bfi_b32 v{vO+4*i+d}, s{cM}, v{vTR}, v{vO+4*i+d}")
        I(f"v_bfi_b32 v{vO+4*i}, v{vM0}, v{vHD+i}, v{vO+4*i}")
        I(f"buffer_store_dwordx4 {rr(vO+4*i,4)}, v{go}, {sq(sCEL)}, {f's{sM+15+i}' if i else '0'} offen{pol(STP)}")
    for i in range(2):
        I(f"s_waitcnt lgkmcnt({1 - i})")
        for d in range(4): I(f"v_bfi_b32 v{vOI+4*i+d}, s{cP}, v{vTI}, v{vOI+4*i+d}")
        I(f"buffer_store_dwordx4 {rr(vOI+4*i,4)}, v{go}, {sq(sCEL)}, s{sM+19+i} offen{pol(STP)}")
    stamp(3)
    if "c" in opt("tsx", ""): I("s_waitcnt vmcnt(0)")
    stamp("c0")
    t = vACC
    I(f"s_mov_b32 s{sA}, {f2u(-LOG2E):#x}")
    I(f"s_mov_b32 s{sBt}, s{sA}")
    I(f"s_mov_b32 s{cM}, 0x05040100")
    I(f"s_mov_b32 s{cP}, 0x07060302")
    def wscaled(src, off):
        for d in range(4):
            I(f"v_lshlrev_b32 v{t+2*d}, 16, v{src+d}")
            I(f"v_and_b32 v{t+2*d+1}, 0xffff0000, v{src+d}")
        for d in range(4): I(f"v_pk_mul_f32 {rr(t+2*d,2)}, {rr(t+2*d,2)}, {sp(sA)}")
        for n in range(4): I(f"v_cvt_pk_bf16_f32 v{t+8+n}, v{t+n}, v{t+4+n}")
        wput(t + 8, off)
    def wplain(src, off, tt):
        for n in range(4): I(f"v_perm_b32 v{tt+n}, v{src+2+(n>>1)}, v{src+(n>>1)}, s{cP if n & 1 else cM}")
        wput(tt, off)
    def wput(r, off):
        a = wl
        if off:
            a = t + 40
            I(f"v_add_u32 v{a}, {off}, v{wl}")
        I(f"ds_write2_b32 v{a}, v{r}, v{r+1} offset0:0 offset1:8")
        I(f"ds_write2_b32 v{a}, v{r+2}, v{r+3} offset0:16 offset1:24")
    I(f"s_waitcnt vmcnt({6 + (1 if PF else 0)})")
    stamp("b4")
    wplain(vRW + 8, WAI - WBI, t + 12)
    wscaled(vRW, 0)
    wplain(vRW + 4, WVI - WBI, t + 16)
    wplain(vRW + 12, WUI - WBI, t + 20)
    I(f"s_cmp_ge_u32 s{sWP}, 2")
    I("s_cbranch_scc1 L_NOWC")
    wscaled(vEO, WCI - WBI)
    L("L_NOWC")
    I(f"s_mul_i32 s{sTM}, s{sB}, {RS}")
    I(f"s_add_u32 s{sTM}, s{sTM}, {WS_CELL}")
    srd(sCEL, pWS, 256*128, f"s{sTM}")
    I(f"s_lshr_b32 s{sTM}, s{sB}, 1")
    I(f"s_mul_i32 s{sTM}, s{sTM}, {RS}")
    I(f"s_and_b32 s{sTM+1}, s{sB}, 1")
    I(f"s_lshl_b32 s{sTM+1}, s{sTM+1}, 6")
    I(f"s_add_u32 s{sTM}, s{sTM}, s{sTM+1}")
    I(f"s_add_u32 s{sTM}, s{sTM}, {WS_CELL + 256*RS}")
    srd(sD2, pWS, 256*128 - 64, f"s{sTM}")
    vC, vLE = vACC + 32, vACC + 48
    vH, vEB = vACC + 56, vACC + 60
    pa, pi = vR + 12, vR + 13
    I(f"v_lshrrev_b32 v{pi}, 1, v{vCP}")
    I(f"v_lshl_add_u32 v{pi}, v{ha}, 5, v{pi}")
    for k in (1, 2, 3): I(f"s_movk_i32 s{sCI+k-1}, {8192*k}")
    def poll_load(i):
        so = "0" if i == 0 else f"s{sCI+i-1}"
        I(f"buffer_load_dwordx4 {rr(vC+4*i,4)}, v{pa}, {sq(sCEL)}, {so} offen sc1")
        I(f"buffer_load_dwordx2 {rr(vLE+2*i,2)}, v{pi}, {sq(sD2)}, {so} offen sc1")
    I("s_waitcnt lgkmcnt(0)")
    I("s_barrier")
    stamp(4)
    PP = opt("pp", 1)
    if PP == 0:
        for i in range(4): poll_load(i)
    vWA = vACC
    I(f"v_add_u32 v{wal}, {WBI}, v{wal}")
    def trw(reg, img):
        return [f"ds_read_b64_tr_b16 {rr(reg+8*n+4*s+2*uu,2)}, v{wal} offset:{img + (32*s + 8*uu)*WR + 32*n}"
                for n in range(4) for s in range(2) for uu in range(2)]
    I(f"s_lshl_b32 s{sTM}, s{sWP}, 9")
    I(f"s_add_u32 s{sTM}, s{sTM}, {OWN}")
    I(f"v_add_u32 v{u(0)}, s{sTM}, v{oa}")
    for k in range(2):
        for s in range(2): I(f"ds_read_b128 {rr(vX+8*k+4*s,4)}, v{u(0)} offset:{4096*k + 64*s}")
    tw = trw(vWA, WAI - WBI) + trw(vWB, 0) + trw(vWV, WVI - WBI)
    for x_ in tw[:8]: I(x_)
    I(f"v_and_b32 v{u(1)}, 15, v{lane}")
    I(f"s_mul_i32 s{sTM}, s{sWP}, {16*WR}")
    I(f"s_add_u32 s{sTM}, s{sTM}, {ATAB}")
    I(f"v_mul_u32_u24 v{u(1)}, {WR}, v{u(1)}")
    I(f"v_lshrrev_b32 v{u(2)}, 4, v{lane}")
    I(f"v_lshl_add_u32 v{u(1)}, v{u(2)}, 3, v{u(1)}")
    I(f"v_add_u32 v{u(1)}, s{sTM}, v{u(1)}")
    I("s_waitcnt lgkmcnt(4)")
    for x_ in tw[8:16]: I(x_)
    nxt = 16
    DA = vQ
    for n in range(4):
        I(f"s_waitcnt lgkmcnt({min(11, nxt - 4*(n+1))})")
        for k in range(2):
            D = (vQ if k == 0 else vCA) + 4*n
            I(m16(D, vWA+8*n, vX+8*k))
            I(m16(D, vWA+8*n+4, vX+8*k+4, D))
        for x_ in tw[nxt:nxt+4]: I(x_)
        nxt += 4
    stamp("b0")
    if PP == 1:
        for i in range(4): poll_load(i)
    stamp("b1")
    prefill(vCA + 16)
    I(f"s_mov_b32 s{sA}, s{sBt}")
    for k in range(2):
        if k == 1:
            I(f"s_cmp_ge_u32 s{sWP}, 5")
            I("s_cbranch_scc1 L_NOA2")
        D = vQ if k == 0 else vCA
        for i in range(8): I(f"v_pk_mul_f32 {rr(D+2*i,2)}, {rr(D+2*i,2)}, {sp(sA)}")
        for i in range(8): I(f"v_cvt_pk_bf16_f32 v{D+i}, v{D+2*i}, v{D+2*i+1}")
        I("s_waitcnt lgkmcnt(8)")
        for n in range(4): I(f"ds_write_b64 v{u(1)}, {rr(D+2*n,2)} offset:{128*WR*k + 32*n}")
    L("L_NOA2")
    stamp("b2")
    I("s_waitcnt lgkmcnt(4)")
    for x_ in tw[nxt:nxt+8]: I(x_)
    nxt += 8
    k1, vEM, vET = vEO, vEO + 1, vEO + 2
    ownn, owna, mapa = vEO + 3, vEO + 4, vEO + 5
    vMA = vEO + 6
    I(f"v_lshrrev_b32 v{k1}, 4, v{vCP}")
    I(f"v_lshrrev_b32 v{u(2)}, 2, v{ha}")
    I(f"v_mul_u32_u24 v{vEB}, {CH}, v{u(2)}")
    for i in range(1, 4): I(f"v_add_u32 v{vEB+i}, {64*i*CH}, v{vEB}")
    I(f"s_mov_b32 s{sEM}, {EMASK:#x}")
    I(f"s_mov_b32 s{sEM+1}, {EMASK:#x}")
    I(f"v_mov_b32 v{u(3)}, 0xfffff")
    I(f"v_cndmask_b32 v{vEM}, 0, v{u(3)}, {sp(sEM)}")
    I(f"v_and_b32 v{vET}, -32, v{pa}")
    I(f"v_add_u32 v{vET}, {EARLY}, v{vET}")
    I(f"v_mov_b32 v{one}, 4")
    I(f"v_and_b32 v{ownn}, 31, v{lane}")
    I(f"v_add_u32 v{ownn}, s{sWIN}, v{ownn}")
    I(f"v_lshlrev_b32 v{mapa}, 2, v{ownn}")
    I(f"v_lshrrev_b32 v{u(3)}, 5, v{lane}")
    I(f"v_lshl_add_u32 v{owna}, v{u(3)}, 11, v{mapa}")
    I(f"v_add_u32 v{mapa}, {MAP}, v{mapa}")
    I(f"v_mov_b32 v{vT0}, s{sTH}")
    I(f"v_cndmask_b32 v{vT0}, v{vTR}, v{vT0}, {sp(mk0)}")
    I(f"v_mov_b32 v{u(3)}, {HTAG:#x}")
    I(f"v_cndmask_b32 v{vM0}, v{vM0}, v{u(3)}, {sp(mk0)}")
    I(f"s_not_b64 {sp(sMSK)}, {sp(mk0)}")
    I("s_waitcnt lgkmcnt(4)")
    for x_ in tw[nxt:]: I(x_)
    I(f"s_movk_i32 s{sFM}, 0xfff0")
    I(f"s_and_b32 s{sFM}, s{sFM}, 0xffff")
    I(f"s_movk_i32 s{sSKIP}, 39")
    I(f"s_mov_b32 s{sXT}, 0")
    I(f"s_mov_b32 s{sSP}, 0")
    I(f"s_mov_b32 s{sT}, {RTAG:#x}")
    I(f"s_mov_b32 s{sN}, {ITAG:#x}")
    lo0, hi0, lo1, hi1 = sWS0, sWS1, sB0E, sSH
    I(f"s_mul_i32 s10, s{sW}, 49")
    I(f"s_sub_i32 s{lo0}, s10, 7")
    I(f"s_ashr_i32 s{lo0}, s{lo0}, 1")
    I(f"s_add_i32 s{hi0}, s10, 8")
    I(f"s_ashr_i32 s{hi0}, s{hi0}, 1")
    I(f"s_add_i32 s{lo1}, s10, 42")
    I(f"s_ashr_i32 s{lo1}, s{lo1}, 1")
    I(f"s_add_i32 s{hi1}, s{lo0}, 32")
    I(f"s_cmp_eq_u32 s{sW}, 7")
    I(f"s_cselect_b32 s{lo1}, {BN}, s{lo1}")
    I(f"s_cselect_b32 s{hi1}, {BN}, s{hi1}")
    if PP == 2:
        for i in range(4): poll_load(i)
    I("s_waitcnt lgkmcnt(0)")
    stamp("b3")
    I("s_barrier")
    stamp(5)
    def check(i, fl):
        c = vC + 4*i
        I(f"v_xor_b32 v{c}, v{c}, v{vT0}")
        for d in range(1, 4): I(f"v_xor_b32 v{c+d}, v{c+d}, v{vTR}")
        for d in range(2): I(f"v_xor_b32 v{vLE+2*i+d}, v{vLE+2*i+d}, v{vTI}")
        I(f"v_or3_b32 v{u(0)}, v{c+1}, v{c+2}, v{c+3}")
        I(f"v_or_b32 v{u(1)}, v{vLE+2*i}, v{vLE+2*i+1}")
        I(f"v_and_b32 v{u(2)}, v{c}, v{vM0}")
        I(f"v_and_or_b32 v{u(2)}, v{u(0)}, s{sT}, v{u(2)}")
        I(f"v_and_or_b32 v{u(2)}, v{u(1)}, s{sN}, v{u(2)}")
        I(f"v_cmp_ne_u32 {sp(fl)}, 0, v{u(2)}")
    fl = lambda i: sM + 2*i
    for i in range(4):
        I(f"s_waitcnt vmcnt({6 - 2*i})")
        check(i, fl(i))
    L("L_POLL")
    I(f"s_or_b64 {sp(sA)}, {sp(fl(0))}, {sp(fl(1))}")
    I(f"s_or_b64 {sp(sA)}, {sp(sA)}, {sp(fl(2))}")
    I(f"s_or_b64 {sp(sA)}, {sp(sA)}, {sp(fl(3))}")
    I("s_cbranch_scc1 L_RETRY")
    stamp(6)
    vA, vRK, vR1 = vACC, vACC + 16, vQ
    mk = lambda i, j: sM + 2*(4*i + j)
    for i in range(4):
        I(f"v_mov_b32_dpp v{vH+i}, v{vC+4*i} row_newbcast:0 row_mask:0xf bank_mask:0x3")
        I(f"v_mov_b32_dpp v{vH+i}, v{vC+4*i} row_newbcast:8 row_mask:0xf bank_mask:0xc")
        if JE: I(f"v_mov_b32_dpp v{vEI}, v{vLE+2*i} quad_perm:[1,1,3,3] row_mask:0xf bank_mask:0xf")
        for j in range(3): I(f"v_lshrrev_b32 v{vA+4*i+j}, 19, v{vC+4*i+j}")
        I(f"v_sub_u32_sdwa v{u(0)}, v{vH+i}, v{k1} {SDW} src0_sel:WORD_1 src1_sel:DWORD")
        for j in range(4): I(f"v_cmp_lt_i32 {sp(mk(i,j))}, {8*j}, v{u(0)}")
        if JE:
            I(f"v_add_u32_sdwa v{vEI}, v{vEI}, v{vEB+i} {SDW} src0_sel:WORD_0 src1_sel:DWORD")
            I(f"s_lshl_b32 s{sTM}, s{sWP}, 10")
            I(f"s_add_u32 m0, s{sTM}, {EARLY + 8192*i}")
            I(f"s_and_b64 {sp(sA)}, {sp(mk(i,0))}, {sp(sEM)}")
            I(f"s_lshr_b64 exec, {sp(sA)}, 1")
            I(f"s_or_b64 exec, exec, {sp(sA)}")
            I(f"buffer_load_dwordx4 {rr(vEI,2)}, {sq(sEP)}, 0 idxen offen{pol(EP)} lds")
        I(f"s_and_b64 {sp(mk(i,0))}, {sp(mk(i,0))}, {sp(sMSK)}")
        for j in range(3):
            I(f"s_mov_b64 exec, {sp(mk(i,j))}")
            I(f"ds_add_rtn_u32 v{vRK+4*i+j}, v{vA+4*i+j}, v{one} offset:{HIST}")
        I("s_mov_b64 exec, -1")
    I(f"s_or_b64 {sp(sJ3)}, {sp(mk(0,3))}, {sp(mk(1,3))}")
    I(f"s_or_b64 {sp(sJ3)}, {sp(sJ3)}, {sp(mk(2,3))}")
    I(f"s_or_b64 {sp(sJ3)}, {sp(sJ3)}, {sp(mk(3,3))}")
    I("s_cbranch_scc1 L_J3A")
    L("L_J3AR")
    I(f"s_mov_b32 s{sT}, 0x1e00000")
    def r1calc(i, j):
        r = [f"v_add_u32_sdwa v{vR1+4*i+j}, v{vLE+2*i+(j>>1)}, v{vEB+i} {SDW} src0_sel:WORD_{j&1} src1_sel:DWORD",
             f"v_and_or_b32 v{vR1+4*i+j}, v{vC+4*i+j}, s{sT}, v{vR1+4*i+j}"]
        if j == 0 and JE: r.append(f"v_or_b32 v{vR1+4*i}, v{vR1+4*i}, v{vEM}")
        return r
    fill = []
    for i in range(4):
        a = [r1calc(i, j) for j in range(3)]
        fill += [a[0][0], a[1][0], a[2][0], a[0][1], a[1][1], a[2][1]] + a[0][2:]
    for _ in range(opt("f0", 6)): I(fill.pop(0))
    I("s_waitcnt lgkmcnt(0)")
    I("s_barrier")
    stamp(7)
    c, p, tot, sc = u(0), u(4), u(8), u(9)
    hh = vX
    own = u(10)
    SD = f"{SDW} src0_sel:WORD_0 src1_sel:WORD_0"
    for ph in range(4):
        I(f"ds_read_b128 {rr(hh+4*ph,4)}, v{l16} offset:{HIST + 1024*ph}")
    I(f"ds_read_u16 v{own}, v{owna} offset:{HIST}")
    I(f"ds_read_u16 v{u(13)}, v{owna} offset:{HIST + 1024}")
    I("s_cmp_lg_u32 s2, 0")
    I("s_cbranch_scc1 L_NOK")
    I(f"v_mov_b32 v{u(11)}, s{sK}")
    I(f"v_mov_b32 v{u(12)}, 0")
    I(f"buffer_store_dword v{u(11)}, v{u(12)}, {sq(sWS)}, 0 offen")
    L("L_NOK")
    I("s_waitcnt lgkmcnt(0)")
    for i in range(4):
        I(f"v_add_u32_sdwa v{c+i}, v{hh+i}, v{hh+4+i} {SD}")
        I(f"v_add_u32_sdwa v{p+i}, v{hh+8+i}, v{hh+12+i} {SD}")
    for i in range(4):
        I(f"v_add_u32 v{c+i}, v{c+i}, v{p+i}")
    I(f"v_lshl_or_b32 v{own}, v{u(13)}, 16, v{own}")
    I(f"v_add_u32 v{p+1}, v{c}, v{c+1}")
    I(f"v_add_u32 v{p+2}, v{p+1}, v{c+2}")
    I(f"v_add_u32 v{p+3}, v{p+2}, v{c+3}")
    I(f"v_mov_b32 v{tot}, v{p+3}")
    fill = [f"v_add_u32 v{c+1}, v{c}, v{p+1}", f"v_add_u32 v{c+2}, v{p+1}, v{p+2}", f"v_add_u32 v{c+3}, v{p+2}, v{p+3}"] + fill
    wave_scan(tot, fill)
    I(f"v_sub_u32 v{p}, v{tot}, v{p+3}")
    I(f"v_readlane_b32 s10, v{tot}, 63")
    for i in range(4):
        I(f"v_lshl_add_u32 v{c+i}, v{p}, 1, v{c+i}")
    ASYM = opt("asym", 16)
    I("s_lshr_b32 s11, s10, 5")
    I(f"s_add_u32 s11, s11, {ASYM}")
    I("s_and_b32 s11, s11, -32")
    I(f"s_sub_i32 s11, s11, {ASYM}")
    I("s_lshl_b32 s11, s11, 3")
    I("s_lshr_b32 s10, s10, 1")
    I(f"s_lshr_b32 s{sF0}, s{sW}, 1")
    I(f"s_mul_i32 s{sF0}, s{sF0}, s10")
    I(f"s_add_i32 s11, s11, s{sF0}")
    I(f"s_add_i32 s10, s10, s{sF0}")
    I(f"s_bitcmp1_b32 s{sW}, 0")
    I(f"s_cselect_b32 s{sEND}, s11, s{sF0}")
    I("s_cselect_b32 s10, s10, s11")
    I(f"s_mov_b32 s{sF0}, 0")
    I(f"s_mov_b32 s{sF1}, 0")
    for i in range(4):
        I(f"v_cmp_gt_i32 vcc, s{sEND}, v{c+i}")
        I(f"v_cmp_gt_i32 {sp(sTM)}, s10, v{c+i}")
        I("s_bcnt1_i32_b64 s11, vcc")
        I(f"s_add_u32 s{sF0}, s{sF0}, s11")
        I(f"s_bcnt1_i32_b64 s11, {sp(sTM)}")
        I(f"s_add_u32 s{sF1}, s{sF1}, s11")
    I(f"s_max_i32 s{sF0}, s{sF0}, s{lo0}")
    I(f"s_min_i32 s{sF0}, s{sF0}, s{hi0}")
    I(f"s_max_i32 s{sF1}, s{sF1}, s{lo1}")
    I(f"s_min_i32 s{sF1}, s{sF1}, s{hi1}")
    mo = sMSK
    I(f"v_cmp_le_u32 vcc, s{sF0}, v{ownn}")
    I(f"v_cmp_gt_u32 {sp(sA)}, s{sF1}, v{ownn}")
    I(f"s_mov_b32 s{sMORE}, 2")
    I(f"s_and_b64 {sp(mo)}, vcc, {sp(sA)}")
    I(f"v_cndmask_b32 v{own}, 0, v{own}, {sp(mo)}")
    I(f"v_mov_b32 v{tot}, v{own}")
    I(f"s_add_u32 s10, s{sF0}, 16")
    I(f"s_sub_i32 s11, s{sF1}, 16")
    alw, frc = sWS0, sB0E
    fill = [f"v_cmp_gt_i32 {sp(alw)}, s10, v{ownn}", f"v_cmp_gt_i32 {sp(frc)}, s11, v{ownn}"] + fill
    wave_scan(tot, fill, half=True)
    for x_ in fill: I(x_)
    ex, a_, i_, b_ = u(0), u(1), u(2), u(3)
    HL = f"{SDW} src0_sel:WORD_0 src1_sel:WORD_1"
    I(f"v_sub_u32 v{ex}, v{tot}, v{own}")
    I(f"v_add_u32_sdwa v{i_}, v{tot}, v{tot} {HL}")
    I(f"v_add_u32_sdwa v{a_}, v{ex}, v{ex} {HL}")
    I(f"v_add_u32_sdwa v{b_}, v{own}, v{own} {HL}")
    T01, T23 = sCUR, sR0
    I(f"v_readlane_b32 s{T01}, v{tot}, 31")
    I(f"v_readlane_b32 s{T23}, v{tot}, 63")
    I(f"v_permlane32_swap_b32 v{a_}, v{i_}")
    I("s_nop 0")
    I(f"v_add_u32 v{a_}, v{a_}, v{i_}")
    I("s_mov_b32 exec_hi, 0")
    I(f"v_readlane_b32 s{sEND}, v{a_}, 63")
    I(f"v_add_u32 v{a_}, v{a_}, v{b_}")
    I("s_mov_b32 exec_hi, -1")
    I(f"v_sub_u32_sdwa v{b_}, v{a_}, v{own} {SDW} src0_sel:DWORD src1_sel:WORD_1")
    I(f"s_add_u32 s10, s{sEND}, 255")
    I("s_lshr_b32 s10, s10, 8")
    I("s_lshl_b32 s10, s10, 7")
    inl, inh = sTM, sTM + 2
    I(f"v_cmp_ge_u32 {sp(inl)}, s10, v{b_}")
    I(f"v_cmp_ge_u32 {sp(inh)}, s10, v{a_}")
    I(f"s_and_b64 {sp(inl)}, {sp(inl)}, {sp(alw)}")
    I(f"s_and_b64 {sp(inh)}, {sp(inh)}, {sp(alw)}")
    I(f"s_or_b64 {sp(inl)}, {sp(inl)}, {sp(frc)}")
    I(f"s_or_b64 {sp(inh)}, {sp(inh)}, {sp(frc)}")
    W0 = [sWS0, sWS1, sCNT, sST]
    cn = [sB0E, sCI, sN, sSH]
    for ph, m in enumerate((inl, inh, inl + 1, inh + 1)):
        I(f"s_bcnt1_i32_b32 s{cn[ph]}, s{m}")
        I(f"s_add_u32 s10, s{cn[ph]}, {31 if ph >= 2 else 63}")
        I(f"v_readlane_b32 s{W0[ph]}, v{tot}, s10")
        I(f"s_cmp_eq_u32 s{cn[ph]}, 0")
        I(f"s_cselect_b32 s{W0[ph]}, 0, s{W0[ph]}")
        I(f"s_lshr_b32 s{W0[ph]}, s{W0[ph]}, 16" if ph & 1 else f"s_and_b32 s{W0[ph]}, s{W0[ph]}, 0xffff")
    I(f"s_add_u32 s{W0[1]}, s{W0[1]}, s{W0[0]}")
    I(f"s_add_u32 s{W0[2]}, s{W0[2]}, s{W0[1]}")
    I(f"s_add_u32 s{W0[3]}, s{W0[3]}, s{W0[2]}")
    I(f"s_sub_u32 s{sT}, s{sL}, {R0}")
    I(f"s_pack_ll_b32_b16 s{sT}, s{sT}, s{sT}")
    I(f"v_add_u32 v{ex}, s{sT}, v{ex}")
    I(f"s_and_b32 s10, s{T01}, 0xffff")
    I(f"s_lshr_b32 s11, s{T01}, 16")
    I("s_add_u32 s11, s11, s10")
    I(f"s_and_b32 s{T23}, s{T23}, 0xffff")
    I(f"s_add_u32 s{T23}, s{T23}, s11")
    I(f"s_sub_u32 s{T01}, {LWB}, s{W0[0]}")
    I(f"s_sub_u32 s10, s10, s{W0[1]}")
    I(f"s_sub_u32 s11, s11, s{W0[2]}")
    I(f"s_sub_u32 s{T23}, s{T23}, s{W0[3]}")
    I(f"s_add_u32 s10, s10, {LWB}")
    I(f"s_add_u32 s11, s11, {LWB}")
    I(f"s_add_u32 s{T23}, s{T23}, {LWB}")
    I("s_lshl_b32 s10, s10, 16")
    I(f"s_lshl_b32 s{T23}, s{T23}, 16")
    I(f"s_lshl_b32 s{W0[0]}, s{W0[0]}, 16")
    I(f"s_lshl_b32 s{W0[2]}, s{W0[2]}, 16")
    I("s_mov_b32 exec_hi, 0")
    for m, s0, s1_ in ((inl, None, T01), (inh, W0[0], 10)):
        if s0 is not None:
            I(f"s_mov_b32 exec_lo, s{m}")
            I(f"v_add_u32 v{ex}, s{s0}, v{ex}")
        I(f"s_not_b32 exec_lo, s{m}")
        I(f"v_add_u32 v{ex}, s{s1_}, v{ex}")
    I("s_mov_b32 exec_lo, 0")
    for m, s0, s1_ in ((inl + 1, W0[1], 11), (inh + 1, W0[2], T23)):
        I(f"s_mov_b32 exec_hi, s{m}")
        I(f"v_add_u32 v{ex}, s{s0}, v{ex}")
        I(f"s_not_b32 exec_hi, s{m}")
        I(f"v_add_u32 v{ex}, s{s1_}, v{ex}")
    I(f"s_mov_b64 exec, {sp(mo)}")
    I(f"ds_write_b16 v{owna}, v{ex} offset:{HIST + 2}")
    I(f"ds_write_b16_d16_hi v{owna}, v{ex} offset:{HIST + 1024 + 2}")
    I(f"s_lshl_b32 s10, s{sW}, 3")
    I(f"v_cndmask_b32 v{a_}, 4, 0, {sp(inl)}")
    I("s_mov_b32 exec_hi, 0")
    I(f"v_add_u32 v{a_}, s10, v{a_}")
    I(f"ds_write_b32 v{mapa}, v{a_}")
    I("s_mov_b64 exec, -1")
    I(f"s_sub_u32 s{sEND}, s{sEND}, s{W0[3]}")
    I(f"v_mov_b32 v{sc}, {FLAG}")
    I(f"s_max_u32 s10, s{sEND}, s{W0[3]}")
    I(f"s_cmp_le_u32 s10, {LWB}")
    I("s_cbranch_scc1 L_LFIT")
    I(f"ds_write_b32 v{sc}, v{one}")
    L("L_LFIT")
    def ntiles(l0, l1):
        I(f"s_add_u32 s10, s{l0}, 127")
        I("s_lshr_b32 s10, s10, 7")
        I("s_lshl1_add_u32 s10, s10, -1")
        I(f"s_add_u32 s11, s{l1}, 127")
        I("s_lshr_b32 s11, s11, 6")
        I("s_and_b32 s11, s11, -2")
        I(f"s_max_i32 s{sN}, s10, s11")
    ntiles(W0[3], sEND)
    I(f"s_add_u32 s{sB0E}, s{sB0E}, s{sWIN}")
    I(f"s_add_u32 s{sSH}, s{sSH}, s{sWIN}")
    I(f"s_min_u32 s{sB0E}, s{sB0E}, s{sF1}")
    I(f"s_min_u32 s{sSH}, s{sSH}, s{sF1}")
    I(f"s_min_u32 s{sWS0}, s{sF0}, 192")
    I(f"s_min_u32 s{sWS1}, s{sSH}, 192")
    I(f"s_cmp_lt_u32 s{sSH}, s{sB0E}")
    I(f"s_and_b32 s10, s{sSH}, 15")
    I(f"s_cmp_lt_u32 s{sSH}, s{sB0E}")
    I(f"s_cselect_b32 s{sSH}, s10, 16")
    I(f"v_and_b32 v{u(4)}, 16, v{lane}")
    I(f"v_lshrrev_b32 v{u(4)}, 1, v{u(4)}")
    I(f"v_bfe_u32 v{u(5)}, v{lane}, 2, 2")
    I(f"v_add_u32 v{u(4)}, v{u(4)}, v{u(5)}")
    I(f"s_movk_i32 s10, {WR}")
    I(f"v_add_u32 v{u(5)}, {ATAB}, v{vcS}")
    for w in range(2):
        ws = sWS0 + w
        for uu in range(2):
            d = u(11 + 2*w + uu) if not (w == 1 and uu == 1) else u(6)
            I(f"s_sub_u32 s11, {4*uu}, s{ws}")
            I(f"v_add_u32 v{d}, s11, v{u(4)}")
            I(f"v_and_b32 v{d}, 15, v{d}")
            I(f"v_add_u32 v{d}, s{ws}, v{d}")
            I(f"v_mad_u32_u24 v{d}, v{d}, s10, v{u(5)}")
    cad = [u(11), u(12), u(13), u(6)]
    I("s_mov_b32 exec_hi, 0")
    for k in range(4): I(f"v_add_u32 v{cad[k]}, {WCI - WBI + 8*(k&1)*WR}, v{wal}")
    I("s_mov_b32 exec_hi, -1")
    car = [f"ds_read_b64_tr_b16 {rr(vCA+16*w+4*n+2*uu,2)}, v{cad[2*w+uu]} offset:{32*n}" for w in range(2) for n in range(4) for uu in range(2)]
    I("s_waitcnt lgkmcnt(0)")
    stamp(8)
    I("s_barrier")
    stamp(9)
    I(f"ds_read_b64 {rr(u(14),2)}, v{sc}")
    for i in range(4):
        for j in range(3):
            I(f"s_mov_b64 exec, {sp(mk(i,j))}")
            I(f"ds_read_u16 v{vA+4*i+j}, v{vA+4*i+j} offset:{HIST + 2}")
    I("s_mov_b64 exec, -1")
    I("s_waitcnt lgkmcnt(12)")
    I(f"v_cmp_ne_u32 vcc, 0, v{u(14)}")
    I(f"v_readfirstlane_b32 s{sMORE}, v{u(15)}")
    I("s_cbranch_vccnz L_OVF")
    def lwrite(i, j):
        s_ = 4*i + j
        I(f"s_mov_b64 exec, {sp(mk(i,j))}")
        I(f"v_add_u32 v{vA+s_}, v{vA+s_}, v{vRK+s_}")
        I(f"ds_write_b16 v{vA+s_}, v{vC+s_} offset:{R0}")
        I(f"ds_write_b32 v{vA+s_}, v{vR1+s_} offset:{R1}")
    I("s_waitcnt lgkmcnt(0)")
    for i in range(4):
        for j in range(3):
            lwrite(i, j)
            if j == 0 and JE:
                I(f"s_and_b64 exec, exec, {sp(sEM)}")
                I(f"ds_write_b16 v{vA+4*i}, v{vET} offset:{R0 + 2}")
        I("s_mov_b64 exec, -1")
        if JE and i < 3: I(f"v_add_u32 v{vET}, 0x2000, v{vET}")
        for x_ in car[4*i:4*i+4]: I(x_)
    I(f"s_cmp_lg_u64 {sp(sJ3)}, 0")
    I("s_cbranch_scc1 L_J3B")
    L("L_J3BR")
    I("s_waitcnt vmcnt(0) lgkmcnt(0)")
    stamp(10)
    I("s_barrier")
    I(f"s_mov_b32 s10, {f2u(1e-6):#x}")
    I(f"ds_read_b128 {rr(vQD,4)}, v{vARX}")
    I(f"ds_read_b32 v{vEI}, v{vARE}")
    stamp(11)
    I(f"v_lshrrev_b32 v{u(0)}, 2, v{lane}")
    I(f"v_and_b32 v{u(0)}, 12, v{u(0)}")
    I(f"v_subrev_u32 v{u(0)}, s{sSH}, v{u(0)}")
    I("s_waitcnt lgkmcnt(0)")
    put(dma_tile())
    I("s_mov_b32 s11, s10")
    I(f"v_mov_b32 v{u(1)}, s10")
    for i in range(8): I(f"v_mov_b64 {rr(DEN(0,0)+2*i,2)}, {sp(10)}")
    for i in range(4):
        I(f"v_cmp_ne_u32 vcc, {-i}, v{u(0)}")
        I(f"v_mov_b64 {rr(NUM(0,0)+4*i,2)}, 0")
        I(f"v_mov_b64 {rr(NUM(0,0)+4*i+2,2)}, 0")
        I(f"v_cndmask_b32 v{DEN(1,0)+i}, 0, v{u(1)}, vcc")
    for i in range(8): I(f"v_mov_b64 {rr(NUM(1,0)+2*i,2)}, 0")
    for n in range(1, 4):
        for i in range(2): I(f"v_mov_b64 {rr(DEN(1,n)+2*i,2)}, {rr(DEN(1,0)+2*i,2)}")
    I(f"s_mov_b32 s{sCI}, -1")
    I(f"s_mov_b64 {sp(sMSK)}, 0")
    I(f"s_mov_b32 s{sR0}, 0")
    I(f"s_mov_b32 s{sCNT}, 0")
    L("L_GO")
    for m in range(2): I(f"ds_read_u16 v{vEA+m}, v{vARO} offset:{64*m}")
    I(f"ds_read_b128 {rr(vQD,4)}, v{vARX} offset:{LWB}")
    I(f"ds_read_b32 v{vEI}, v{vARE} offset:{LWB}")
    I(f"s_lshr_b32 s10, s{sW}, 1")
    I("s_lshl_b32 s10, s10, 8")
    I(f"s_add_u32 s10, s10, {PRG}")
    I(f"v_lshl_add_u32 v{vPA}, v{lane}, 2, s10")
    I(f"s_bitcmp1_b32 s{sW}, 0")
    I(f"s_cselect_b32 s{sSG}, -1, 1")
    I(f"s_mul_i32 s10, s{sSG}, s{sN}")
    I(f"v_mov_b32 v{vPM}, s10")
    I(f"ds_add_u32 v{vPA}, v{vPM}")
    I(f"s_sub_i32 s10, 0, s{sSG}")
    I(f"v_mov_b32 v{vPM}, s10")
    for i in range(16): I(f"v_mov_b64 {rr(vQ+2*i,2)}, 0")
    for i in range(2): I(f"v_mov_b64 {rr(vS+2*i,2)}, 0")
    I("s_waitcnt lgkmcnt(0)")
    for m in range(2): I(f"v_and_or_b32 v{vEA+m}, v{vEA+m}, s{sFM}, v{vcEO}")
    stamp(12)
    I("s_waitcnt vmcnt(0)")
    stamp(13)
    cstamp(56)
    for m in range(2): I(f"ds_read_b128 {rr(vEO+4*m,4)}, v{vEA+m}")
    for m, s in ORD: I(xread(m, s))
    I(f"s_cmp_lt_i32 s{sN}, 1")
    I("s_cbranch_scc1 L_DONE")
    g = g_mfmas(vP, 0, 0)
    I("s_waitcnt lgkmcnt(4)")
    for x_ in g[:4]: I(x_)
    I("s_waitcnt lgkmcnt(0)")
    for x_ in g[4:]: I(x_)
    put(dma_tile())
    I(f"s_mov_b32 s{sT}, 1")
    for cp in ((1, 0) if FAIR else (0,)):
        sw = lambda par: [f"s_cmp_ge_i32 s{sRM}, {opt('fth', 1)}", f"s_cbranch_scc{1-cp} L_PB{par}{1-cp}", f"L_PB{par}{cp}:"] if FAIR else []
        body = phase(0, 0, cp) + sw(0) + phase(0, 1, cp) + [f"s_cmp_gt_u32 s{sT}, s{sN}", "s_cbranch_scc1 L_TAIL0"]
        body += phase(1, 0, cp) + sw(1) + phase(1, 1, cp) + [f"s_cmp_le_u32 s{sT}, s{sN}", f"s_cbranch_scc1 L_LOOP{cp}"]
        check_body(body)
        if "nodma" in opt("dbg", ""): body = [b for b in body if not b.startswith("buffer_load")]
        emit(".p2align 6")
        L(f"L_LOOP{cp}")
        put(body)
        if cp: I("s_branch L_TAIL1")
    L("L_TAIL1")
    put(s_num(1, 1) + s_den(1, 1, vR))
    I("s_branch L_DONE")
    L("L_TAIL0")
    put(s_num(0, 1) + s_den(0, 1, vR))
    L("L_DONE")
    I(f"v_mbcnt_lo_u32_b32 v{lane}, -1, 0")
    I(f"v_mbcnt_hi_u32_b32 v{lane}, -1, v{lane}")
    I(f"s_cmp_lg_u32 s{sMORE}, 0")
    I("s_cbranch_scc1 L_SLOW")
    L("L_EPI")
    stamp(14)
    cstamp(57)
    I(f"s_setprio {opt('epr', 3)}")
    e = lambda i: vCA + i
    xd = vWV
    I(f"v_and_b32 v{e(0)}, 48, v{lane}")
    I(f"v_bfe_u32 v{e(1)}, v{lane}, 2, 3")
    I(f"v_lshrrev_b32 v{e(2)}, 5, v{lane}")
    I(f"v_lshl_add_u32 v{e(1)}, v{e(2)}, 4, v{e(1)}")
    I(f"v_mul_u32_u24 v{e(1)}, {WR}, v{e(1)}")
    I(f"s_mov_b32 s10, {WUI}")
    I(f"v_add3_u32 v{e(1)}, v{e(1)}, v{vcS}, s10")
    wu = [f"ds_read_b64_tr_b16 {rr(vWB+8*n+4*s+2*uu,2)}, v{e(1)} offset:{(32*s + 8*uu)*WR + 32*n}" for n in range(4) for s in range(2) for uu in range(2)]
    I("s_waitcnt lgkmcnt(0)")
    for x_ in wu[:8]: I(x_)
    I(f"s_movk_i32 s10, {PL}")
    I(f"v_add_u32 v{e(0)}, {OWN}, v{e(0)}")
    I(f"v_and_b32 v{e(3)}, 15, v{lane}")
    I(f"v_lshlrev_b32 v{e(4)}, 3, v{e(3)}")
    I(f"v_add_u32 v{e(5)}, {OWN}, v{e(4)}")
    I(f"v_lshrrev_b32 v{e(6)}, 2, v{lane}")
    I(f"v_and_b32 v{e(6)}, 12, v{e(6)}")
    def node_of(d, src, add, ws):
        I(f"s_sub_u32 s11, {add}, s{ws}")
        I(f"v_add_u32 v{d}, s11, v{src}")
        I(f"v_and_b32 v{d}, 15, v{d}")
        I(f"v_add_u32 v{d}, s{ws}, v{d}")
    def own_addr(d, nd, base):
        I(f"v_and_b32 v{e(7)}, 3, v{nd}")
        I(f"v_mad_u32_u24 v{e(7)}, v{e(7)}, s10, v{base}")
        I(f"v_lshrrev_b32 v{d}, 2, v{nd}")
        I(f"v_lshl_add_u32 v{d}, v{d}, 7, v{e(7)}")
    for w in range(2):
        node_of(e(8), e(3), 0, sWS0 + w)
        own_addr(e(8), e(8), e(0))
        for s in range(2): I(f"ds_read_b128 {rr(vX+8*w+4*s,4)}, v{e(8)} offset:{64*s}")
    I("s_waitcnt lgkmcnt(4)")
    for x_ in wu[8:]: I(x_)
    nd = lambda w, i: e(16 + 4*w + i)
    for w in range(2):
        for i in range(4):
            node_of(nd(w, i), e(6), i, sWS0 + w)
            own_addr(e(8), nd(w, i), e(5))
            if w == 0 and i == 2: I("s_waitcnt lgkmcnt(4)")
            I(f"ds_read_b64 {rr(xd+8*w+2*i,2)}, v{e(8)}")
    I(f"s_cmp_eq_u32 s{sSH}, 16")
    I("s_cbranch_scc1 L_NOSH")
    I(f"v_subrev_u32 v{e(6)}, s{sSH}, v{e(6)}")
    for i in range(4):
        I(f"v_cmpx_eq_u32 vcc, {-i}, v{e(6)}")
        for k in range(8): I(f"v_add_f32 v{vACC+4*k+i}, v{vACC+4*k+i}, v{vACC+32+4*k+i}")
        I("s_mov_b64 exec, -1")
    L("L_NOSH")
    I(f"s_mul_i32 s10, s{sB}, {BN*128}")
    I(f"v_add_u32 v{e(4)}, s10, v{e(4)}")
    I(f"v_mov_b32 v{e(9)}, 0x7ffffff0")
    for w in range(2):
        XF = vP if w == 0 else vQ
        for k in range(16): I(f"v_rcp_f32 v{DEN(w,0)+k}, v{DEN(w,0)+k}")
        I(f"s_waitcnt lgkmcnt({4 - 4*w})")
        for i in range(4):
            for h in range(2):
                I(f"v_lshlrev_b32 v{XF+8*h+i}, 16, v{xd+8*w+2*i+h}")
                I(f"v_and_b32 v{XF+8*h+4+i}, 0xffff0000, v{xd+8*w+2*i+h}")
        for k in range(16): I(f"v_fma_f32 v{NUM(w,0)+k}, v{NUM(w,0)+k}, v{DEN(w,0)+k}, v{XF+k}")
        I("s_nop 0")
        for s in range(2):
            for n in range(4): I(m16(NUM(w,n), vX+8*w+4*s, vWB+8*n+4*s, NUM(w,n)))
    for w in range(2):
        XF = vP if w == 0 else vQ
        lo_, hi_ = (sF0, sB0E) if w == 0 else (sB0E, sF1)
        for i in range(4):
            I(f"v_cmp_le_u32 vcc, s{lo_}, v{nd(w,i)}")
            I(f"v_cmp_gt_u32 {sp(sA)}, s{hi_}, v{nd(w,i)}")
            I(f"v_lshl_add_u32 v{nd(w,i)}, v{nd(w,i)}, 7, v{e(4)}")
            I(f"s_and_b64 vcc, vcc, {sp(sA)}")
            I(f"v_cndmask_b32 v{nd(w,i)}, v{e(9)}, v{nd(w,i)}, vcc")
        for i in range(4):
            for n in range(4): I(f"v_max_f32 v{NUM(w,n)+i}, v{NUM(w,n)+i}, v{XF+4*n+i}")
            for h in range(2): I(f"v_cvt_pk_bf16_f32 v{DEN(w,0)+2*i+h}, v{NUM(w,2*h)+i}, v{NUM(w,2*h+1)+i}")
            I(f"buffer_store_dwordx2 {rr(DEN(w,0)+2*i,2)}, v{nd(w,i)}, {sq(sOUT)}, 0 offen{pol(OP)}")
    stamp_out()
    L("L_END")
    I("s_endpgm")
    L("L_RETRY")
    I(f"s_add_u32 s{sSP}, s{sSP}, 1")
    I(f"s_cmp_gt_u32 s{sSP}, {opt('spin', 200000)}")
    I("s_cbranch_scc1 L_END")
    if opt("slp", 1): I(f"s_sleep {opt('slp', 1)}")
    for i in range(4):
        I(f"s_cmp_eq_u64 {sp(fl(i))}, 0")
        I(f"s_cbranch_scc1 L_RT{i}")
        poll_load(i)
        L(f"L_RT{i}")
    I("s_waitcnt vmcnt(0)")
    for i in range(4):
        I(f"s_cmp_eq_u64 {sp(fl(i))}, 0")
        I(f"s_cbranch_scc1 L_RC{i}")
        check(i, fl(i))
        L(f"L_RC{i}")
    I("s_branch L_POLL")
    xr, xe, xa, xk = vR + 8, vR + 12, vR, vEO + 6
    L("L_J3A")
    I(f"s_mov_b32 s{sT}, 0x1e00000")
    I("s_waitcnt lgkmcnt(0)")
    for i in range(4):
        I(f"v_lshrrev_b32 v{vA+4*i+3}, 19, v{vC+4*i+3}")
        put(r1calc(i, 3))
        I(f"s_mov_b64 exec, {sp(mk(i,3))}")
        I(f"ds_add_rtn_u32 v{vRK+4*i+3}, v{vA+4*i+3}, v{one} offset:{HIST}")
        I("s_mov_b64 exec, -1")
    I(f"v_max3_u32 v{u(0)}, v{vH}, v{vH+1}, v{vH+2}")
    I(f"v_max_u32 v{u(0)}, v{u(0)}, v{vH+3}")
    I(f"v_cmp_lt_u32 vcc, {32 << 16}, v{u(0)}")
    I("s_cbranch_vccz L_J3AR")
    xr, xe, xa, xk, xt = vR + 8, vR + 12, vR, vCA + 24, vCA + 28
    xk = vQD
    xt = vEO + 6
    xo = vEO + 7
    I(f"s_mov_b32 s{sXT}, 1")
    I(f"v_cmp_lt_u32 vcc, {40 << 16}, v{u(0)}")
    I("s_cbranch_vccz L_XT0")
    I(f"v_mov_b32 v{u(1)}, {FLAG}")
    I(f"ds_write_b32 v{u(1)}, v{one} offset:4")
    L("L_XT0")
    I(f"v_add_u32 v{xt}, 32, v{k1}")
    I(f"v_mov_b32 v{u(1)}, 0x1ffffff0")
    def xmask(i):
        I(f"v_lshrrev_b32 v{xo}, 16, v{vH+i}")
        I(f"v_cmp_lt_u32 vcc, v{xt}, v{xo}")
    for i in range(4):
        I(f"v_mov_b32_dpp v{xa+i}, v{vLE+2*i} row_newbcast:0 row_mask:0xf bank_mask:0x3")
        I(f"v_mov_b32_dpp v{xa+i}, v{vLE+2*i} row_newbcast:8 row_mask:0xf bank_mask:0xc")
        xmask(i)
        I(f"v_and_b32 v{xa+i}, 0xffff, v{xa+i}")
        I(f"v_add3_u32 v{xa+i}, v{xa+i}, v{vEB+i}, v{xt}")
        I(f"v_cndmask_b32 v{xa+i}, v{u(1)}, v{xa+i}, vcc")
        I(f"v_lshlrev_b32 v{xr+i}, 2, v{xa+i}")
        I(f"v_lshlrev_b32 v{xe+i}, 1, v{xa+i}")
        I(f"s_mov_b32 s10, {WS_RECS - 4}")
        I(f"s_mov_b32 s11, {WS_LEID - 2}")
        I(f"buffer_load_dword v{xr+i}, v{xr+i}, {sq(sWS)}, s10 offen sc1")
        I(f"buffer_load_ushort v{xe+i}, v{xe+i}, {sq(sWS)}, s11 offen sc1")
    I("s_waitcnt vmcnt(0)")
    for i in range(4):
        xmask(i)
        I(f"v_lshrrev_b32 v{xa+i}, 19, v{xr+i}")
        I(f"v_add_u32 v{xe+i}, v{xe+i}, v{vEB+i}")
        I(f"v_and_or_b32 v{xe+i}, v{xr+i}, s{sT}, v{xe+i}")
        I("s_mov_b64 exec, vcc")
        I(f"ds_add_rtn_u32 v{xk+i}, v{xa+i}, v{one} offset:{HIST}")
        I("s_mov_b64 exec, -1")
    I("s_branch L_J3AR")
    L("L_J3B")
    I("s_waitcnt lgkmcnt(0)")
    for i in range(4):
        I(f"s_mov_b64 exec, {sp(mk(i,3))}")
        I(f"ds_read_u16 v{vA+4*i+3}, v{vA+4*i+3} offset:{HIST + 2}")
    I("s_waitcnt lgkmcnt(0)")
    for i in range(4): lwrite(i, 3)
    I("s_mov_b64 exec, -1")
    I(f"s_cmp_eq_u32 s{sXT}, 0")
    I("s_cbranch_scc1 L_J3BR")
    for i in range(4):
        I(f"ds_read_u16 v{xa+i}, v{xa+i} offset:{HIST + 2}")
    I("s_waitcnt lgkmcnt(0)")
    for i in range(4):
        xmask(i)
        I(f"v_add_u32 v{xa+i}, v{xa+i}, v{xk+i}")
        I("s_mov_b64 exec, vcc")
        I(f"ds_write_b16 v{xa+i}, v{xr+i} offset:{R0}")
        I(f"ds_write_b32 v{xa+i}, v{xe+i} offset:{R1}")
        I("s_mov_b64 exec, -1")
    I("s_branch L_J3BR")
    L("L_OVF")
    I(f"s_mov_b32 s{sSKIP}, 0")
    I(f"s_mov_b32 s{sN}, 0")
    I(f"s_mov_b32 s{sMORE}, 4")
    I("s_waitcnt lgkmcnt(0)")
    for k in range(2):
        for x_ in car[8*k:8*k+8]: I(x_)
        I("s_waitcnt lgkmcnt(0)")
    I("s_branch L_J3BR")
    L("L_POVF")
    q = vCA
    for i in range(4):
        I(f"v_lshrrev_b32 v{q+i}, 16, v{vHS+i}")
        I(f"v_subrev_u32 v{q+i}, 1, v{q+i}")
    I(f"v_add_u32 v{q+5}, v{q}, v{q+1}")
    I(f"v_add_u32 v{q+6}, v{q+5}, v{q+2}")
    I(f"v_add_u32 v{q+7}, v{q+6}, v{q+3}")
    I(f"v_mov_b32 v{q+8}, v{q+7}")
    wave_scan(q + 8)
    I("s_nop 0")
    I(f"v_sub_u32 v{q+4}, v{q+8}, v{q+7}")
    I(f"v_add_u32 v{q+7}, v{q+4}, v{q+6}")
    I(f"v_add_u32 v{q+6}, v{q+4}, v{q+5}")
    I(f"v_add_u32 v{q+5}, v{q+4}, v{q}")
    I(f"v_mul_u32_u24 v{q+8}, {2*LROW}, v{lane}")
    I(f"v_add_u32 v{q+8}, {IIMG}, v{q+8}")
    I("s_waitcnt lgkmcnt(0)")
    for i in range(4): I(f"ds_write_b16 v{q+8}, v{q+4+i} offset:{LROW//2*i}")
    for i in range(2):
        I(f"ds_read_b128 {rr(vOI+4*i,4)}, v{lo2} offset:{IIMG - CIMG + 64*LROW*i}")
    I(f"s_mul_i32 s10, s2, {CH}")
    I(f"s_cmp_eq_u32 s{sWP}, 0")
    I(f"s_cselect_b64 {sp(m1)}, {sp(m1)}, 0")
    for i in range(7):
        I(f"v_lshlrev_b32 v{q+i}, 1, v{vBK+i}")
        I(f"v_and_b32 v{q+i}, 0x1fffe, v{q+i}")
        I(f"ds_read_u16 v{q+i}, v{q+i} offset:{IIMG - 2*QB}")
    I("s_waitcnt lgkmcnt(0)")
    I(f"s_mov_b32 s{sTM}, {WS_RECS - 4}")
    I(f"s_mov_b32 s{sTM+1}, {WS_LEID - 2}")
    for i in range(7):
        I(f"v_add3_u32 v{q+i}, v{q+i}, v{vRK1+i}, s10")
        I(f"v_cmp_le_u32 vcc, 32, v{vRK1+i}")
        I(f"v_lshlrev_b32 v{q+8+i}, 2, v{q+i}")
        I(f"v_lshlrev_b32 v{q+i}, 1, v{q+i}")
        I("s_and_b64 exec, vcc, " + ("-1" if i < 4 else sp(m2) if i < 6 else sp(m1)))
        I(f"s_cbranch_execz L_PO{i}")
        I(f"buffer_store_short v{vID+i}, v{q+i}, {sq(sWS)}, s{sTM+1} offen sc1")
        I(f"buffer_store_dword v{vSR+i}, v{q+8+i}, {sq(sWS)}, s{sTM} offen sc1")
        L(f"L_PO{i}")
        I("s_mov_b64 exec, -1")
    I("s_waitcnt vmcnt(0) lgkmcnt(0)")
    I("s_barrier")
    I("s_branch L_POUT")
    SB = 288
    t0, t1, t2, t3 = vP, vP+1, vP+2, vP+3
    L("L_SLOW")
    I("s_setprio 0")
    I(f"s_lshl_b32 s10, s{sWP}, 6")
    I(f"v_add_u32 v{tid}, s10, v{lane}")
    I(f"s_cmp_lg_u32 s{sMORE}, 4")
    I("s_cbranch_scc1 L_SL1")
    I(f"s_mov_b32 s{sMORE}, 1")
    I(f"v_and_b32 v{t0}, 0xff, v{tid}")
    I(f"v_lshlrev_b32 v{t1}, 7, v{t0}")
    I(f"buffer_load_dword v{t2}, v{t1}, {sq(sCEL)}, 0 offen sc1")
    I(f"buffer_load_ushort v{t3}, v{t1}, {sq(sD2)}, 0 offen sc1")
    I(f"v_lshlrev_b32 v{t0}, 2, v{t0}")
    I(f"v_add_u32 v{t0}, {HDR}, v{t0}")
    I("s_waitcnt vmcnt(0)")
    I(f"v_and_b32 v{t2}, 0xfff0000, v{t2}")
    I(f"v_and_b32 v{t3}, 0xfff, v{t3}")
    I(f"v_or_b32 v{t2}, v{t2}, v{t3}")
    I(f"v_subrev_u32 v{t2}, 0x10000, v{t2}")
    I(f"ds_write_b32 v{t0}, v{t2}")
    I("s_waitcnt lgkmcnt(0)")
    I("s_barrier")
    L("L_SL1")
    I(f"s_add_u32 s{sR0}, s{sR0}, {SB}")
    I(f"s_cmp_lt_u32 s{sR0}, s{sCNT}")
    I("s_cbranch_scc1 L_BATCH")
    L("L_FIND")
    I(f"s_cmp_lg_u64 {sp(sMSK)}, 0")
    I("s_cbranch_scc1 L_GOT")
    I(f"s_add_u32 s{sCI}, s{sCI}, 1")
    I(f"s_cmp_ge_u32 s{sCI}, 4")
    I("s_cbranch_scc1 L_EPI")
    I(f"s_lshl_b32 s10, s{sCI}, 8")
    I(f"s_add_u32 s10, s10, {HDR}")
    I(f"v_lshl_add_u32 v{t0}, v{lane}, 2, s10")
    I(f"ds_read_u16 v{t0}, v{t0} offset:2")
    I("s_waitcnt lgkmcnt(0)")
    I(f"v_cmp_lt_u32 {sp(sMSK)}, s{sSKIP}, v{t0}")
    I("s_nop 3")
    I("s_branch L_FIND")
    L("L_GOT")
    I(f"s_ff1_i32_b64 s10, {sp(sMSK)}")
    I(f"s_bitset0_b64 {sp(sMSK)}, s10")
    I(f"s_lshl_b32 s11, s{sCI}, 6")
    I(f"s_add_u32 s{sCUR}, s10, s11")
    I(f"s_lshl_b32 s10, s{sCUR}, 2")
    I(f"s_add_u32 s10, s10, {HDR}")
    I(f"v_mov_b32 v{t0}, s10")
    I(f"ds_read_b32 v{t0}, v{t0}")
    I("s_waitcnt lgkmcnt(0)")
    I(f"v_readfirstlane_b32 s10, v{t0}")
    I("s_nop 3")
    I(f"s_lshr_b32 s{sCNT}, s10, 16")
    I(f"s_and_b32 s{sST}, s10, 0xffff")
    I(f"s_mov_b32 s{sR0}, s{sSKIP}")
    L("L_BATCH")
    I("s_waitcnt vmcnt(0)")
    I("s_barrier")
    prefill(vP + 4)
    I(f"v_and_b32 v{t0}, 15, v{lane}")
    I(f"v_mul_u32_u24 v{t1}, {LWB}, v{t0}")
    I(f"v_lshlrev_b32 v{t0}, 2, v{t0}")
    I(f"ds_write_b32 v{t0}, v{t1} offset:{CNT}")
    I(f"v_add_u32 v{t0}, s{sR0}, v{tid}")
    I(f"v_add_u32 v{t2}, 1, v{t0}")
    I(f"v_mul_u32_u24 v{t2}, 33, v{t2}")
    I(f"v_bfe_u32 v{t2}, v{t2}, 3, 5")
    I(f"s_mul_i32 s{sTM+2}, s{sCUR}, {CH}")
    I(f"s_add_u32 s11, s{sTM+2}, s{sST}")
    I(f"v_cmp_gt_u32 vcc, 31, v{t0}")
    I(f"s_lshl_b32 s{sTM}, s11, 2")
    I(f"s_add_u32 s{sTM}, s{sTM}, {WS_RECS}")
    I(f"v_lshl_add_u32 v{t1}, v{t0}, 2, s{sTM}")
    I(f"s_mul_i32 s10, s{sB}, {RS}")
    I(f"s_lshl_b32 s{sTM+1}, s{sCUR}, 7")
    I(f"s_add_u32 s{sTM+1}, s{sTM+1}, {WS_CELL}")
    I(f"s_add_u32 s10, s10, s{sTM+1}")
    I(f"v_lshl_add_u32 v{t3}, v{t2}, 2, s10")
    I(f"v_cndmask_b32 v{t1}, v{t1}, v{t3}, vcc")
    I(f"s_lshr_b32 s10, s{sB}, 1")
    I(f"s_add_u32 s10, s10, 256")
    I(f"s_mul_i32 s10, s10, {RS}")
    I(f"s_add_u32 s10, s10, s{sTM+1}")
    I(f"s_and_b32 s{sTM}, s{sB}, 1")
    I(f"s_lshl_b32 s{sTM}, s{sTM}, 6")
    I(f"s_add_u32 s10, s10, s{sTM}")
    I(f"v_lshl_add_u32 v{t2}, v{t2}, 1, s10")
    I(f"s_lshl_b32 s{sTM}, s11, 1")
    I(f"s_add_u32 s{sTM}, s{sTM}, {WS_LEID}")
    I(f"v_lshl_add_u32 v{t3}, v{t0}, 1, s{sTM}")
    I(f"v_cndmask_b32 v{t3}, v{t3}, v{t2}, vcc")
    I(f"s_add_u32 s10, s{sR0}, {SB}")
    I(f"s_min_u32 s10, s10, s{sCNT}")
    I(f"v_cmp_gt_u32 vcc, s10, v{t0}")
    I(f"v_mov_b32 v{t2}, 0x7ffffff0")
    I(f"s_mov_b32 s{sT}, 0x1e00000")
    I(f"v_cndmask_b32 v{t1}, v{t2}, v{t1}, vcc")
    I(f"v_cndmask_b32 v{t3}, v{t2}, v{t3}, vcc")
    I(f"buffer_load_dword v{t1}, v{t1}, {sq(sWS)}, 0 offen sc1")
    I(f"buffer_load_ushort v{t3}, v{t3}, {sq(sWS)}, 0 offen sc1")
    I("s_waitcnt lgkmcnt(0)")
    I("s_barrier")
    I("s_mov_b64 exec, vcc")
    I("s_waitcnt vmcnt(0)")
    I(f"v_bfe_u32 v{t0}, v{t1}, 21, 8")
    I(f"v_lshlrev_b32 v{t0}, 2, v{t0}")
    I(f"v_add_u32 v{t0}, {MAP}, v{t0}")
    I(f"ds_read_b32 v{t0}, v{t0}")
    I(f"v_mov_b32 v{t2}, 4")
    I(f"v_and_b32 v{t3}, 0xfff, v{t3}")
    I(f"v_add_u32 v{t3}, s{sTM+2}, v{t3}")
    I(f"v_and_or_b32 v{t3}, v{t1}, s{sT}, v{t3}")
    I("s_waitcnt lgkmcnt(0)")
    I(f"ds_add_rtn_u32 v{t0}, v{t0}, v{t2} offset:{CNT}")
    I("s_waitcnt lgkmcnt(0)")
    I(f"ds_write_b16 v{t0}, v{t1} offset:{R0}")
    I(f"ds_write_b32 v{t0}, v{t3} offset:{R1}")
    I("s_mov_b64 exec, -1")
    I("s_waitcnt lgkmcnt(0)")
    I("s_barrier")
    I(f"s_lshl_b32 s10, s{sW}, 3")
    I(f"v_mov_b32 v{t0}, s10")
    I(f"ds_read_b64 {rr(t2,2)}, v{t0} offset:{CNT}")
    listaddr(t1)
    I(f"ds_read_b128 {rr(vQD,4)}, v{vARX}")
    I(f"ds_read_b32 v{vEI}, v{vARE}")
    I("s_waitcnt lgkmcnt(0)")
    I(f"v_readfirstlane_b32 s{sTM}, v{t2}")
    I(f"v_readfirstlane_b32 s{sTM+1}, v{t3}")
    put(dma_tile())
    I(f"s_sub_u32 s10, s{sL}, {R0}")
    I(f"s_sub_u32 s{sTM}, s{sTM}, s10")
    I(f"s_sub_u32 s{sTM+1}, s{sTM+1}, s10")
    I(f"s_sub_u32 s{sTM+1}, s{sTM+1}, {LWB}")
    ntiles(sTM, sTM + 1)
    L("L_LAST")
    I("s_branch L_GO")

def regs_of(tok):
    tok = tok.strip()
    m = re.fullmatch(r"v\[(\d+):(\d+)\]", tok)
    if m: return list(range(int(m.group(1)), int(m.group(2)) + 1))
    m = re.fullmatch(r"v(\d+)", tok)
    if m: return [int(m.group(1))]
    return []
def parse(ins):
    op, _, rest = ins.partition(" ")
    ops = [o.strip().split(" ")[0] for o in rest.split(",")] if rest else []
    if op.startswith("ds_read") or "rtn" in op: return "ds", regs_of(ops[0]), regs_of(ops[1])
    return "other", [], sum((regs_of(o) for o in ops), [])
def check_body(body):
    s2 = [b for b in body if not b.endswith(":")]
    pend = []
    for i, ins in enumerate(s2 * 3):
        k, d, s = parse(ins)
        m = re.search(r"lgkmcnt\((\d+)\)", ins)
        if m:
            while len(pend) > int(m.group(1)): pend.pop(0)
        pr = set(sum(pend, []))
        for r in d + s:
            assert r not in pr, f"pending LDS reg v{r} used by {ins} @{i}"
        if k == "ds":
            pend.append(d); assert len(pend) <= 15

hdr = open("/code/" + NAME + ".s.ref").read().split("\n")
for l in hdr:
    if l.startswith("; Override"): break
    out.append(l)
if opt("list", 0): out.append(f"; @launch kernel={NAME}_kernel grid=(256,1,1) block=(512,1,1) lds={LDS}")
else: out.append(f"; @launch grid=(256,1,1) block=(512,1,1) lds={LDS}")
emit('.amdgcn_target "amdgcn-amd-amdhsa--gfx950"\n.text')
kernel()
emit(f""".section .rodata,"a"
.p2align 6
.amdhsa_kernel {NAME}_kernel
  .amdhsa_next_free_vgpr 256
  .amdhsa_next_free_sgpr 102
  .amdhsa_accum_offset 256
  .amdhsa_group_segment_fixed_size 0
  .amdhsa_kernarg_size 96
  .amdhsa_user_sgpr_count 2
  .amdhsa_user_sgpr_kernarg_segment_ptr 1
  .amdhsa_system_sgpr_workgroup_id_x 1
.end_amdhsa_kernel""")
if TS: out.insert(0, "; stamps " + " ".join(STN))
path = sys.argv[1] if len(sys.argv) > 1 else "/code/" + NAME + ".s"
open(path, "w").write("\n".join(out) + "\n")
print("wrote", path, len(out), "lines; lds", LDS)
```

```python
import sys, re, struct

NAME = "standalone__edge_featured_mpnn_gatedgcn__graph"
OPT = dict(kv.split("=") for kv in sys.argv[2:])
def opt(k, d):
    v = OPT.get(k)
    if v is None: return d
    return type(d)(v)

N, E = 50000, 800000
CH = 3128
BN = 196
RS = opt('rs', 257) * 128
WS_CELL = 0x10000
WS_RECS = 0x1000000
WS_LEID = 0x1400000
WS_USED = 0x1600000
WS_TS = 0x3000000
KINC = 0xB5C179B9
RTAG = 0x801F0000
ITAG = 0xF000F000
HTAG = 0xF000FFFF
LOG2E = 1.4426950408889634
def f2u(f): return struct.unpack("<I", struct.pack("<f", f))[0]

out = []
def emit(s=""):
    for l in s.strip("\n").split("\n"):
        out.append(l.rstrip())
def I(s): out.append("    " + s)
def L(s): out.append(s + ":")
def C(s): out.append("    ; " + s)
def put(seq):
    for s in seq:
        if s.endswith(":"): L(s[:-1])
        else: I(s)
def rr(a, n): return f"v[{a}:{a+n-1}]"
def sp(a): return f"s[{a}:{a+1}]"
def sq(a): return f"s[{a}:{a+3}]"
def pol(p): return (" " + p.replace("_", " ")) if p else ""

def srd(d, lo, size, add=None, stride=0):
    if add is None:
        I(f"s_mov_b32 s{d}, s{lo}")
        I(f"s_mov_b32 s{d+1}, s{lo+1}" if not stride else f"s_or_b32 s{d+1}, s{lo+1}, {stride << 16:#x}")
    else:
        I(f"s_add_u32 s{d}, s{lo}, {add}")
        I(f"s_addc_u32 s{d+1}, s{lo+1}, 0")
    I(f"s_mov_b32 s{d+2}, {size}")
    I(f"s_mov_b32 s{d+3}, 0x20000")

def wave_scan(v, fill=None, half=False):
    def gap():
        if fill and len(fill) >= 2:
            I(fill.pop(0)); I(fill.pop(0))
        else: I("s_nop 1")
    for sh in (1, 2, 4, 8):
        gap()
        I(f"v_add_u32_dpp v{v}, v{v}, v{v} row_shr:{sh} row_mask:0xf bank_mask:0xf bound_ctrl:0")
    gap()
    I(f"v_add_u32_dpp v{v}, v{v}, v{v} row_bcast:15 row_mask:0xa bank_mask:0xf")
    if half: return
    gap()
    I(f"v_add_u32_dpp v{v}, v{v}, v{v} row_bcast:31 row_mask:0xc bank_mask:0xf")

TAB, ZROW, CNT, FLAG = 0, 512, 576, 640
HIST = 1024
ESTG = HIST + 4096
HIST1 = ESTG
EARLY = ESTG + 8192
LWB = 288 * 4
R0 = EARLY + 32768
R1 = R0 + 16 * LWB
XSTG = R1 + 16 * LWB
XI = 1056
SLOT = 4 * XI
OWN = XSTG + 8 * SLOT
PL = 52 * 128 + 32
WR = 160
AR = 152
WUI = OWN + 4 * PL
WCI = WUI + 64 * WR
MAP = WCI + 16 * WR
HDR = MAP + 1024
PRG = HDR + 1024
LDS = PRG + 1024
WBI, WVI, WAI = EARLY, EARLY + 64 * WR, EARLY + 128 * WR
ATAB = XSTG
LROW = 160
CIMG = R0
IIMG = CIMG + 256 * LROW
assert IIMG + 128 * LROW <= OWN and 208 * AR <= 8 * SLOT and LDS <= 163840, LDS
assert R1 < 65536 and R0 % 128 == 0

vWB, vWV, vCA, vACC = 0, 32, 64, 96
vX, vEO, vS = 160, 176, 184
vP, vQ, vR = 188, 204, 220
vQD = 236
vEI, vCH, vIDX, vCP, vAX, vcEO, vcS, vARX, vARE, vARO, vARS, vEA = 240, 241, 242, 243, 244, 245, 246, 247, 248, 249, 250, 251
lane, vTS, tid = 253, 254, 255
vPM, vPA = lane, tid
DEN = lambda w, n: vACC + 32 * w + 4 * n
NUM = lambda w, n: vACC + 32 * w + 16 + 4 * n
def m16(d, a, b, c=None):
    return f"v_mfma_f32_16x16x32_bf16 {rr(d,4)}, {rr(a,4)}, {rr(b,4)}, " + ("0" if c is None else rr(c, 4))
def s16(d, b): return f"v_smfmac_f32_16x16x64_bf16 {rr(d,4)}, {rr(vS,4)}, {rr(b,8)}, v{vIDX}"

sWP, sW, sB, sK = 3, 4, 5, 6
sWIN, sF0, sF1, sL = 7, 8, 9, 12
sA, sBt = 10, 11
sSTG, sES, s128 = 13, 14, 15
pX, pE, pSRC, pDST, pWA, pWB, pWC, pWU, pWV, pOUT, pDBG, pWS = 16, 18, 20, 22, 24, 26, 28, 30, 32, 34, 36, 38
sT, sN, sFM, sMORE, sSKIP, sXT, sWS0, sWS1, sB0E, sSH = 16, 17, 18, 19, 20, 21, 22, 23, 24, 25
sCI, sCUR, sR0, sCNT, sST, sEND = 26, 27, 28, 29, 30, 31
sMSK = 32
sTM = 34
sX, sEP, sOUT, sWS, sCEL, sD2 = 40, 44, 48, 52, 56, 60
sM = 64
sJ3, sEM = 96, 98
sSP = 100
sSG, sRM = 101, 96

TS = opt("ts", 0)
STN = []
def stamp(i):
    if not TS: return
    if isinstance(i, str) and i[0] not in opt("tsx", ""): return
    STN.append(str(i)); i = len(STN) - 1
    I("s_memrealtime vcc" if TS == 1 else "s_memtime vcc")
    I("s_waitcnt lgkmcnt(0)")
    I(f"v_writelane_b32 v{vTS}, vcc_lo, {i}")
def stamp_out():
    if not TS: return
    I("s_waitcnt vmcnt(0)")
    stamp(15)
    I("s_memtime vcc")
    I("s_waitcnt lgkmcnt(0)")
    I(f"v_writelane_b32 v{vTS}, vcc_lo, 58")
    I(f"v_writelane_b32 v{vTS}, s{sN}, 59")
    I(f"v_writelane_b32 v{vTS}, s{sSP}, 60")
    I("s_lshl_b32 s10, s2, 3")
    I(f"s_add_u32 s10, s10, s{sWP}")
    I("s_lshl_b32 s10, s10, 8")
    I(f"s_add_u32 s10, s10, {WS_TS}")
    I(f"v_lshl_add_u32 v{vP}, v{lane}, 2, s10")
    I(f"global_store_dword v{vP}, v{vTS}, {sp(pWS)}")
def cstamp(i):
    if not TS: return
    I("s_memtime vcc")
    I("s_waitcnt lgkmcnt(0)")
    I(f"v_writelane_b32 v{vTS}, vcc_lo, {i}")

LD_P = opt("ldp", "nt")
XP, EP, OP = opt("xp", ""), opt("ep", ""), opt("op", "sc1")
STP = opt("stp", "sc1")
JE = opt("je", 2)
EMASK = sum(1 << (2 * j + 1) for j in range(JE)) * 0x01010101
SDW = "dst_sel:DWORD dst_unused:UNUSED_PAD"

def dma_tile():
    r = []
    for i in range(4):
        r.append(f"s_add_u32 m0, s{sSTG}, {i*XI}")
        r.append(f"v_mad_u32_u16 v{vQD+i}, v{vQD+i}, s{s128}, v{vCP}")
        r.append(f"buffer_load_dwordx4 v{vQD+i}, {sq(sX)}, 0 offen{pol(XP)} lds")
    r.append(f"s_mov_b32 m0, s{sES}")
    r.append(f"v_and_b32 v{vEI}, 0xfffff, v{vEI}")
    r.append(f"buffer_load_dwordx4 {rr(vEI,2)}, {sq(sEP)}, 0 idxen offen{pol(EP)} lds")
    return r

ORD = [(0, 0), (1, 0), (0, 1), (1, 1)]
def xread(m, s): return f"ds_read_b128 {rr(vX+8*m+4*s,4)}, v{vAX} offset:{512*m + 64*s}"
def g_mfmas(D, ft, w):
    g = [m16(D+8*n+4*m, vEO+4*m, vCA+16*w+8*ft+4*n) for m in range(2) for n in range(2)]
    g += [m16(D+8*n+4*m, vX+8*m+4*s, vWB+16*ft+8*n+4*s, D+8*n+4*m) for m, s in ORD for n in range(2)]
    return g
def h_mfmas(ft):
    return [m16(vQ+8*n+4*m, vX+8*m+4*s, vWV+16*ft+8*n+4*s, None if s == 0 else vQ+8*n+4*m) for m, s in ORD for n in range(2)]
def s_num(w, ft): return [s16(NUM(w, 2*ft+n), vQ+8*n) for n in range(2)]
def s_den(w, ft, G): return [s16(DEN(w, 2*ft+n), G+8*n) for n in range(2)]

LV = [int(c, 16) for c in opt("lv", "015a")]
PAT = opt("pat", "1" * 11 + "5")
FAIR = opt("fair", 1)
BST = opt("bst", 11)
def phase(par, ft, cp=0):
    G, Go = (vP, vR) if ft == 0 else (vR, vP)
    nf = 1 - ft
    wn = par if ft == 0 else par ^ 1
    wp = par ^ 1 if ft == 0 else par
    s1 = [[x] for x in s_num(wp, nf) + h_mfmas(ft) + s_den(wp, nf, Go)]
    s2 = [[x] for x in g_mfmas(Go, nf, wn)]
    if ft == 0:
        o = par * LWB
        s1[0] += [f"ds_read_u16 v{vQD+u}, v{vARS} offset:{o + 16*u}" for u in range(2)]
        s1[8] += ["s_waitcnt lgkmcnt(0)"] + [f"v_and_or_b32 v{vQD+u}, v{vQD+u}, s{sFM}, v{vcS}" for u in range(2)]
        if FAIR:
            s1[0] += [f"ds_add_rtn_u32 v{vQD+2}, v{vPA}, v{vPM}"]
            s1[8] += [f"v_readfirstlane_b32 s{sRM}, v{vQD+2}"]
            s2[1] += [f"s_mul_i32 s{sRM}, s{sRM}, s{sSG}"]
        o1 = 128 if par else LWB
        s2[0] += [f"ds_read_b64_tr_b16 {rr(vS+2*u,2)}, v{vQD+u}" for u in range(2)]
        s2[0] += [f"ds_read_u16 v{vEA+m}, v{vARO} offset:{o1 + 64*m}" for m in range(2)]
        s2[6] += ["s_waitcnt lgkmcnt(0)"] + [f"v_and_or_b32 v{vEA+m}, v{vEA+m}, s{sFM}, v{vcEO}" for m in range(2)]
        s2[6] += [f"ds_read_b128 {rr(vQD,4)}, v{vARX} offset:{o + 128}", f"ds_read_b32 v{vEI}, v{vARE} offset:{o + 128}",
                  f"s_add_u32 s{sT}, s{sT}, 1"]
        if par: s2[7] += [f"v_add_u32 v{r}, 0x80, v{r}" for r in (vARX, vARE, vARO, vARS)]
    else:
        s1[2] = ["s_waitcnt vmcnt(0)"] + [f"ds_read_b128 {rr(vEO+4*m,4)}, v{vEA+m}" for m in range(2)] + s1[2]
        for i, (m, s) in enumerate(ORD): s1[3+2*i].append(xread(m, s))
        s2[0] = ["s_waitcnt lgkmcnt(4)"] + s2[0]
        for i in range(4): s2[4+2*i] = [f"s_waitcnt lgkmcnt({3-i})"] + s2[4+2*i]
        s2[10] += [f"s_cmp_lt_u32 s{sT}, s{sN}", f"s_cbranch_scc0 L_ND{par}{cp}"] + dma_tile() + [f"L_ND{par}{cp}:"]
    def sec(mf, op):
        r = []; k = 0
        for i, m in enumerate(mf):
            if FAIR:
                if i == 0: r.append(f"s_setprio {cp}")
                if i == BST: r.append("s_setprio 3")
            elif i in LV: r.append(f"s_setprio {LV.index(i)}")
            r += m
            for _ in range(int(PAT[i])):
                r.append(f"{op} v{G+k}, v{G+k}"); k += 1
        assert k == 16
        return r
    r = sec(s1, "v_exp_f32")
    r += [f"v_pk_add_f32 {rr(G+2*i,2)}, {rr(G+2*i,2)}, 1.0 op_sel_hi:[1,0]" for i in range(8)]
    r += sec(s2, "v_rcp_f32")
    r += [f"v_pk_mul_f32 {rr(vQ+2*i,2)}, {rr(G+2*i,2)}, {rr(vQ+2*i,2)}" for i in range(8)]
    return r

def listaddr(t0):
    I(f"v_lshrrev_b32 v{t0}, 3, v{lane}")
    I(f"v_lshl_add_u32 v{vARX}, v{t0}, 4, s{sL}")
    I(f"s_add_u32 s10, s{sL}, {R1-R0}")
    I(f"v_lshrrev_b32 v{t0}, 1, v{lane}")
    I(f"v_lshl_add_u32 v{vARE}, v{t0}, 2, s10")
    I(f"s_add_u32 s10, s10, 2")
    I(f"v_and_b32 v{t0}, 48, v{lane}")
    I(f"v_lshl_add_u32 v{vARS}, v{t0}, 1, s10")
    I(f"v_and_b32 v{t0}, 12, v{lane}")
    I(f"v_add_u32 v{vARS}, v{vARS}, v{t0}")
    I(f"v_lshrrev_b32 v{t0}, 5, v{lane}")
    I(f"v_mul_u32_u24 v{vARO}, {R1-R0}, v{t0}")
    I(f"v_and_b32 v{t0}, 15, v{lane}")
    I(f"v_lshl_add_u32 v{vARO}, v{t0}, 2, v{vARO}")
    I(f"s_add_u32 s10, s{sL}, 2")
    I(f"v_add_u32 v{vARO}, s10, v{vARO}")

def prefill(t):
    I(f"v_and_b32 v{t+8}, 7, v{lane}")
    I(f"s_lshl_b32 s10, s{sES}, 16")
    I(f"v_lshl_add_u32 v{t}, v{t+8}, 23, s10")
    for d in range(1, 4): I(f"v_add_u32 v{t+d}, {(32 << 16) * d:#x}, v{t}")
    for d in range(4): I(f"v_mov_b32 v{t+4+d}, {(ZROW << 16) | 0xfffff:#x}")
    I(f"v_lshl_add_u32 v{t+8}, v{lane}, 4, s{sL}")
    for o in (0, 1024, 2*LWB - 1024):
        I(f"ds_write_b128 v{t+8}, {rr(t,4)} offset:{o}")
        I(f"ds_write_b128 v{t+8}, {rr(t+4,4)} offset:{o + R1 - R0}")

def kernel():
    emit(f"""
.globl {NAME}_kernel
.p2align 8
.type {NAME}_kernel,@function
{NAME}_kernel:""")
    I("s_cmp_ge_u32 s2, 256")
    I("s_cbranch_scc1 L_END")
    I("s_load_dwordx16 s[16:31], s[0:1], 0")
    I("s_load_dwordx8 s[32:39], s[0:1], 64")
    if TS: I(f"v_mov_b32 v{vTS}, 0")
    u = lambda i: vP + i
    if opt("cpf", 1):
        I(f"s_getpc_b64 {sp(sM)}")
        L("L_PC")
        I(f"v_lshlrev_b32 v{u(0)}, 7, v0")
        I(f"v_min_u32 v{u(0)}, L_LAST-L_PC, v{u(0)}")
        I("v_cmp_gt_u32 vcc, 0xc0, v0")
        I("s_cbranch_vccz L_NOCPF")
        I(f"global_load_dword v{vEA}, v{u(0)}, {sp(sM)}")
        L("L_NOCPF")
    stamp(0)
    vD, vSR, vBK, vHA, vRK1, vID = vACC, vACC + 8, vACC + 16, vACC + 24, vACC + 32, vACC + 40
    vRW = vX
    one, l16 = vS, vS + 1
    vOA, vT16, sOW = vR + 14, vR + 12, 101
    I(f"v_mov_b32 v{tid}, v0")
    I(f"v_lshrrev_b32 v{u(0)}, 6, v0")
    I(f"v_and_b32 v{lane}, 63, v0")
    I(f"v_readfirstlane_b32 s{sWP}, v{u(0)}")
    I(f"v_lshlrev_b32 v{vT16}, 4, v0")
    I(f"v_lshlrev_b32 v{u(2)}, 3, v0")
    I(f"v_lshlrev_b32 v{u(3)}, 2, v0")
    I(f"v_mov_b32 v{one}, 0x10000")
    I(f"v_and_b32 v{u(4)}, 0x3fc, v{u(3)}")
    I(f"ds_write_b32 v{u(4)}, v{one} offset:{HIST1}")
    I(f"s_mul_i32 s{sA}, s2, {CH*4}")
    I(f"s_sub_u32 s{sBt}, {E*4}, s{sA}")
    I(f"s_min_u32 s{sBt}, s{sBt}, {CH*4}")
    I(f"s_and_b32 s{sB}, s2, 7")
    I(f"s_lshr_b32 s{sW}, s2, 3")
    I(f"s_lshl_b32 s{sB}, s{sB}, 5")
    I(f"s_add_u32 s{sB}, s{sB}, s{sW}")
    I(f"s_mul_i32 s{sF1}, s{sB}, {BN}")
    I(f"s_lshl_b32 s{sL}, s{sWP}, 5")
    I(f"s_add_u32 s{sF1}, s{sF1}, s{sL}")
    I(f"v_lshrrev_b32 v{u(5)}, 3, v{lane}")
    I(f"v_lshl_add_u32 v{u(5)}, v{u(5)}, 2, s{sF1}")
    I(f"v_and_b32 v{vCP}, 7, v{lane}")
    I(f"v_lshlrev_b32 v{vCP}, 4, v{vCP}")
    I(f"v_lshl_add_u32 v{vOA}, v{u(5)}, 7, v{vCP}")
    I(f"s_lshl_b32 s{sOW}, s{sWP}, 10")
    I(f"s_add_u32 s{sOW}, s{sOW}, {OWN}")
    I(f"s_movk_i32 s{sF0}, 0x2000")
    I(f"s_movk_i32 s{sF1}, 0x3000")
    I("s_waitcnt lgkmcnt(0)")
    I(f"s_load_dword s{sK}, {sp(pWS)}, 0")
    srd(sCEL, pDST, f"s{sBt}", f"s{sA}")
    srd(sD2, pSRC, f"s{sBt}", f"s{sA}")
    I(f"buffer_load_dwordx4 {rr(vD,4)}, v{vT16}, {sq(sCEL)}, 0 offen{pol(LD_P)}")
    I(f"buffer_load_dwordx4 {rr(vSR,4)}, v{vT16}, {sq(sD2)}, 0 offen{pol(LD_P)}")
    I(f"buffer_load_dwordx2 {rr(vD+4,2)}, v{u(2)}, {sq(sCEL)}, s{sF0} offen{pol(LD_P)}")
    I(f"buffer_load_dwordx2 {rr(vSR+4,2)}, v{u(2)}, {sq(sD2)}, s{sF0} offen{pol(LD_P)}")
    I(f"s_cmp_lg_u32 s{sWP}, 0")
    I("s_cbranch_scc1 L_NO7")
    I(f"buffer_load_dword v{vD+6}, v{u(3)}, {sq(sCEL)}, s{sF1} offen{pol(LD_P)}")
    I(f"buffer_load_dword v{vSR+6}, v{u(3)}, {sq(sD2)}, s{sF1} offen{pol(LD_P)}")
    L("L_NO7")
    PF = opt("pf", 0)
    vRU = vCA + 28
    def w_loads():
        I(f"s_cmp_ge_u32 s{sWP}, 2")
        I("s_cbranch_scc1 L_NOC")
        I(f"global_load_dwordx4 {rr(vEO,4)}, v{vT16}, {sp(pWC)}")
        L("L_NOC")
        for k, p in enumerate((pWB, pWV, pWA)):
            I(f"global_load_dwordx4 {rr(vRW+4*k,4)}, v{vT16}, {sp(p)}")
    def own_early():
        I(f"s_cmp_ge_u32 s{sWP}, 4")
        I("s_cbranch_scc1 L_NOO5")
        I(f"s_movk_i32 s{sTM}, 0x4000")
        for h in range(2):
            if h:
                I(f"s_cmp_eq_u32 s{sWP}, 3")
                I("s_cbranch_scc1 L_NOO5")
                I(f"s_cmp_eq_u32 s{sWP}, 2")
                I("s_cselect_b32 exec_hi, 0, -1")
            for k in range(4):
                I(f"s_add_u32 m0, s{sOW}, {(PL-128)*k + 4096*h}")
                I("s_nop 0")
                I(f"buffer_load_dwordx4 v{vOA}, {sq(sX)}, {f's{sTM}' if h else '0'} offen offset:{128*k} lds")
        I("s_mov_b32 exec_hi, -1")
        L("L_NOO5")
    def own_loads():
        I(f"global_load_dwordx4 {rr(vRU,4)}, v{vT16}, {sp(pWU)}")
        if OLP >= 3: return
        I(f"s_cmp_eq_u32 s{sWP}, 7")
        I("s_cbranch_scc1 L_NOO4")
        I(f"s_cmp_eq_u32 s{sWP}, 6")
        I("s_cselect_b32 exec_hi, 0, -1")
        for k in range(4):
            I(f"s_add_u32 m0, s{sOW}, {(PL-128)*k}")
            I("s_nop 0")
            I(f"buffer_load_dwordx4 v{vOA}, {sq(sX)}, 0 offen offset:{128*k} lds")
        I("s_mov_b32 exec_hi, -1")
        L("L_NOO4")
        if PF:
            assert PF <= 512
            I(f"s_lshr_b32 s{sTM+1}, s2, 3")
            I(f"s_mul_i32 s{sTM}, s{sTM+1}, {PF*128}")
            I(f"v_min_u32 v{vEA+1}, {PF-1}, v{tid}")
            I(f"v_lshlrev_b32 v{vEA+1}, 7, v{vEA+1}")
            I(f"buffer_load_dword v{vEA+1}, v{vEA+1}, {sq(sX)}, s{sTM} offen")
    LLP = opt("llp", 2)
    OLP = opt("olp", 2)
    NY = 0
    stamp("a0")
    I("s_barrier")
    stamp("a1")
    srd(sEP, pE, E, stride=32)
    srd(sOUT, pOUT, N*128)
    srd(sX, pX, N*128)
    srd(sWS, pWS, WS_USED)
    I(f"s_lshl_b32 s{sL}, s2, 7")
    I(f"s_add_u32 s{sL}, s{sL}, {WS_CELL}")
    srd(sCEL, pWS, 383*RS + 128, f"s{sL}")
    cM, cN, cP, cPM, cR = sM, sM + 1, sM + 2, sM + 3, sM + 4
    m2, m1, mk0 = sM + 6, sM + 8, sM + 10
    I(f"s_mov_b32 s{cM}, 85599")
    I(f"s_mov_b32 s{cN}, {-BN & 0xffffffff}")
    I(f"s_mov_b32 s{cP}, 42944")
    I(f"s_mov_b32 s{cPM}, {opt('phm', 3) << 29:#x}")
    I(f"s_mov_b32 s{cR}, {RS}")
    for i in range(4): I(f"v_add_u32 v{vID+i}, {i}, v{u(3)}")
    I(f"v_lshrrev_b32 v{vID+4}, 1, v{u(3)}")
    I(f"v_add_u32 v{vID+4}, 0x800, v{vID+4}")
    I(f"v_add_u32 v{vID+5}, 1, v{vID+4}")
    I(f"v_add_u32 v{vID+6}, 0xc00, v{tid}")
    I(f"s_lshr_b32 s{sBt}, s{sBt}, 2")
    I(f"v_cmp_gt_u32 {sp(m2)}, s{sBt}, v{vID+4}")
    I(f"v_cmp_gt_u32 {sp(m1)}, s{sBt}, v{vID+6}")
    I(f"s_and_b32 s{sA}, s{sWP}, 3")
    I(f"s_lshr_b32 s{sW}, s{sWP}, 2")
    I(f"s_lshl1_add_u32 s{sW}, s{sA}, s{sW}")
    if opt("swp", 1): I(f"s_xor_b32 s{sW}, s{sW}, 1")
    I(f"s_mul_i32 s{sA}, s{sW}, 49")
    I(f"s_sub_i32 s{sA}, s{sA}, 7")
    I(f"s_ashr_i32 s{sA}, s{sA}, 1")
    I(f"s_max_i32 s{sWIN}, s{sA}, 0")
    I(f"s_mul_i32 s{sSTG}, s{sW}, {SLOT}")
    I(f"s_add_u32 s{sSTG}, s{sSTG}, {XSTG}")
    I(f"s_lshl_b32 s{sES}, s{sW}, 10")
    I(f"s_add_u32 s{sES}, s{sES}, {ESTG}")
    I(f"s_mul_i32 s{sL}, s{sW}, {2*LWB}")
    I(f"s_add_u32 s{sL}, s{sL}, {R0}")
    I(f"s_movk_i32 s{s128}, 128")
    I(f"v_bfe_u32 v{u(6)}, v{tid}, 4, 4")
    I(f"v_and_b32 v{u(7)}, 7, v{tid}")
    I(f"v_cmp_eq_u32 vcc, v{u(6)}, v{u(7)}")
    I(f"v_and_b32 v{u(6)}, 8, v{tid}")
    I(f"v_lshlrev_b32 v{u(6)}, 1, v{u(6)}")
    I(f"v_mov_b32 v{u(8)}, 0x3f80")
    I(f"v_lshlrev_b32 v{u(8)}, v{u(6)}, v{u(8)}")
    I(f"v_cndmask_b32 v{u(8)}, 0, v{u(8)}, vcc")
    I(f"ds_write_b32 v{u(4)}, v{u(8)} offset:{TAB}")
    I(f"v_mov_b64 {rr(u(8),2)}, 0")
    I(f"ds_write_b64 v{u(2)}, {rr(u(8),2)} offset:{HIST}")
    I(f"v_add_u32 v{u(6)}, {PRG}, v{u(4)}")
    I(f"ds_write_b32 v{u(6)}, v{u(8)}")
    I(f"v_cmp_eq_u32 {sp(mk0)}, 0, v{u(7)}")
    go, lo, lo2, ha = vR, vR + 1, vR + 2, vR + 3
    wl, wal = vR + 4, vR + 5
    I(f"v_lshrrev_b32 v{ha}, 3, v{tid}")
    I(f"v_mad_u32_u24 v{go}, v{ha}, s{cR}, v{vCP}")
    I(f"v_mul_u32_u24 v{wl}, {LROW}, v{ha}")
    I(f"v_add_u32 v{lo}, v{wl}, v{vCP}")
    I(f"v_add_u32 v{lo}, {CIMG}, v{lo}")
    I(f"v_and_b32 v{lo2}, 4, v{tid}")
    I(f"v_lshl_add_u32 v{lo2}, v{lo2}, 2, v{lo}")
    assert LROW == WR
    I(f"v_bfe_u32 v{u(6)}, v{tid}, 5, 1")
    I(f"v_bfe_u32 v{u(8)}, v{tid}, 6, 1")
    I(f"v_sub_u32 v{u(6)}, v{u(6)}, v{u(8)}")
    I(f"v_mul_i32_i24 v{u(6)}, {4*WR}, v{u(6)}")
    I(f"v_add_u32 v{wl}, v{wl}, v{u(6)}")
    I(f"v_lshl_add_u32 v{wl}, v{u(7)}, 2, v{wl}")
    I(f"v_add_u32 v{wl}, {WBI}, v{wl}")
    I(f"v_lshlrev_b32 v{ha}, 2, v{ha}")
    I(f"v_lshlrev_b32 v{l16}, 4, v{lane}")
    I(f"v_and_b32 v{vCH}, 1, v{lane}")
    I(f"v_lshlrev_b32 v{vCH}, 4, v{vCH}")
    I(f"v_mov_b32 v{vIDX}, 0xdddd")
    I(f"v_and_b32 v{vcEO}, 16, v{lane}")
    I(f"v_and_b32 v{u(6)}, 3, v{lane}")
    I(f"v_lshlrev_b32 v{vcS}, 3, v{u(6)}")
    I(f"v_bfe_u32 v{u(8)}, v{lane}, 2, 2")
    I(f"v_and_b32 v{u(9)}, 48, v{lane}")
    I(f"v_lshl_add_u32 v{u(10)}, v{u(8)}, 7, v{u(9)}")
    I(f"v_mul_u32_u24 v{vAX}, {XI}, v{u(6)}")
    I(f"v_add3_u32 v{vAX}, v{vAX}, v{u(10)}, s{sSTG}")
    I(f"v_bfe_u32 v{u(9)}, v{lane}, 2, 3")
    I(f"v_lshrrev_b32 v{u(8)}, 5, v{lane}")
    I(f"v_lshl_add_u32 v{u(9)}, v{u(8)}, 4, v{u(9)}")
    I(f"v_mul_u32_u24 v{wal}, {WR}, v{u(9)}")
    I(f"v_add_u32 v{wal}, v{wal}, v{vcS}")
    listaddr(u(6))
    def rank_a(rs):
        for i in rs: I(f"v_mul_u32_u24 v{vBK+i}, s{cM}, v{vD+i}")
        for i in rs: I(f"v_lshrrev_b32 v{vBK+i}, 24, v{vBK+i}")
        for i in rs:
            I(f"v_lshlrev_b32 v{vHA+i}, 2, v{vBK+i}")
            I(f"ds_add_rtn_u32 v{vRK1+i}, v{vHA+i}, v{one} offset:{HIST1}")
    def rank_b(rs):
        for i in rs:
            I(f"v_mad_i32_i24 v{vD+i}, v{vBK+i}, s{cN}, v{vD+i}")
            I(f"v_mul_u32_u24 v{u(6)}, s{cP}, v{vSR+i}")
            I(f"v_lshl_or_b32 v{vSR+i}, v{vD+i}, 21, v{vSR+i}")
            I(f"v_and_or_b32 v{vSR+i}, v{u(6)}, s{cPM}, v{vSR+i}")
            I(f"v_mad_u32_u24 v{vBK+i}, v{vBK+i}, {LROW//4}, s{cN+4}")
    def place(i, wait, em):
        if wait is not None: I(f"s_waitcnt lgkmcnt({wait})")
        I(f"v_lshrrev_b32 v{vRK1+i}, 16, v{vRK1+i}")
        I(f"v_mul_u32_u24 v{vD+i}, 33, v{vRK1+i}")
        I(f"v_bfe_u32 v{vD+i}, v{vD+i}, 3, 5")
        I(f"v_add_lshl_u32 v{vD+i}, v{vD+i}, v{vBK+i}, 1")
        I(f"v_lshlrev_b32 v{u(6)}, 1, v{vD+i}")
        I(f"v_cmpx_gt_u32 vcc, 32, v{vRK1+i}")
        I(f"ds_write_b16 v{vD+i}, v{vID+i} offset:{IIMG - 2*QB}")
        I(f"ds_write_b32 v{u(6)}, v{vSR+i} offset:{CIMG - 4*QB}")
        I(f"s_mov_b64 exec, {em}")
    QB = CIMG // 4
    assert 0 <= IIMG - 2*QB < 65536
    I(f"s_movk_i32 s{cN+4}, {QB}")
    stamp("a2")
    I("s_waitcnt lgkmcnt(0)")
    I(f"s_waitcnt vmcnt({NY + 3})")
    stamp(1)
    rank_a(range(4))
    I(f"s_waitcnt vmcnt({NY + 1})")
    I(f"s_mov_b64 exec, {sp(m2)}")
    rank_a(range(4, 6))
    I("s_mov_b64 exec, -1")
    I(f"s_waitcnt vmcnt({NY})")
    if LLP == 0: w_loads()
    rank_b(range(6))
    if LLP == 1: w_loads()
    for i in range(4): place(i, 5 + i, "-1" if i < 3 else sp(m2))
    place(4, 9, sp(m2))
    place(5, 10, "-1")
    I(f"s_cmp_lg_u32 s{sWP}, 0")
    I("s_cbranch_scc1 L_B1")
    I(f"s_mov_b64 exec, {sp(m1)}")
    rank_a([6]); rank_b([6]); place(6, 0, "-1")
    L("L_B1")
    if OLP == 3: own_early()
    if LLP == 2: w_loads()
    if OLP == 4: own_early()
    sTR, sTI, sTH = sM + 12, sM + 13, sM + 14
    I(f"s_add_u32 s{sK}, s{sK}, {KINC:#x}")
    I(f"s_and_b32 s{sTR}, s{sK}, {RTAG:#x}")
    I(f"s_bfe_u32 s{sTI}, s{sK}, 0x40010")
    I(f"s_mul_i32 s{sTI}, s{sTI}, 0x10001000")
    I(f"s_and_b32 s{sTH}, s{sK}, {HTAG:#x}")
    vTR, vTI, vM0, vT0 = vS + 2, vS + 3, vQD, vQD + 1
    I(f"v_mov_b32 v{vTR}, s{sTR}")
    I(f"v_mov_b32 v{vTI}, s{sTI}")
    I(f"v_mov_b32 v{vM0}, {RTAG:#x}")
    I(f"v_cndmask_b32 v{vM0}, v{vM0}, -1, {sp(mk0)}")
    I(f"s_mov_b32 s{cM}, {RTAG:#x}")
    I(f"s_mov_b32 s{cP}, {ITAG:#x}")
    I("s_waitcnt lgkmcnt(0)")
    I("s_barrier")
    stamp(2)
    vO, vHD = vQ, vR + 8
    vOI, vHS = u(8), u(4)
    I(f"ds_read_b128 {rr(vHS,4)}, v{l16} offset:{HIST1}")
    for i in range(4):
        I(f"ds_read_b32 v{vHD+i}, v{ha} offset:{HIST1 + 256*i}")
        I(f"ds_read_b128 {rr(vO+4*i,4)}, v{lo} offset:{64*LROW*i}")
    for i in range(2):
        I(f"ds_read_b128 {rr(vOI+4*i,4)}, v{lo2} offset:{IIMG - CIMG + 64*LROW*i}")
    for i in range(1, 6): I(f"s_mov_b32 s{sM+15+i}, {64*RS*i}")
    I("s_waitcnt lgkmcnt(10)")
    I(f"v_max3_u32 v{u(0)}, v{vHS}, v{vHS+1}, v{vHS+2}")
    I(f"v_max_u32 v{u(0)}, v{u(0)}, v{vHS+3}")
    I(f"v_cmp_lt_u32 vcc, {32 << 16}, v{u(0)}")
    I("s_cbranch_vccnz L_POVF")
    L("L_POUT")
    for i in range(4):
        I(f"s_waitcnt lgkmcnt({8 - 2*i})")
        I(f"v_or_b32 v{vHD+i}, s{sTH}, v{vHD+i}")
        I(f"v_cndmask_b32 v{vHD+i}, v{vTR}, v{vHD+i}, {sp(mk0)}")
        for d in range(1, 4): I(f"v_bfi_b32 v{vO+4*i+d}, s{cM}, v{vTR}, v{vO+4*i+d}")
        I(f"v_bfi_b32 v{vO+4*i}, v{vM0}, v{vHD+i}, v{vO+4*i}")
        I(f"buffer_store_dwordx4 {rr(vO+4*i,4)}, v{go}, {sq(sCEL)}, {f's{sM+15+i}' if i else '0'} offen{pol(STP)}")
    for i in range(2):
        I(f"s_waitcnt lgkmcnt({1 - i})")
        for d in range(4): I(f"v_bfi_b32 v{vOI+4*i+d}, s{cP}, v{vTI}, v{vOI+4*i+d}")
        I(f"buffer_store_dwordx4 {rr(vOI+4*i,4)}, v{go}, {sq(sCEL)}, s{sM+19+i} offen{pol(STP)}")
    stamp(3)
    if "c" in opt("tsx", ""): I("s_waitcnt vmcnt(0)")
    stamp("c0")
    t = vACC
    I(f"s_mov_b32 s{sA}, {f2u(-LOG2E):#x}")
    I(f"s_mov_b32 s{sBt}, s{sA}")
    I(f"s_mov_b32 s{cM}, 0x05040100")
    I(f"s_mov_b32 s{cP}, 0x07060302")
    def wscaled(src, off):
        for d in range(4):
            I(f"v_lshlrev_b32 v{t+2*d}, 16, v{src+d}")
            I(f"v_and_b32 v{t+2*d+1}, 0xffff0000, v{src+d}")
        for d in range(4): I(f"v_pk_mul_f32 {rr(t+2*d,2)}, {rr(t+2*d,2)}, {sp(sA)}")
        for n in range(4): I(f"v_cvt_pk_bf16_f32 v{t+8+n}, v{t+n}, v{t+4+n}")
        wput(t + 8, off)
    def wplain(src, off, tt):
        for n in range(4): I(f"v_perm_b32 v{tt+n}, v{src+2+(n>>1)}, v{src+(n>>1)}, s{cP if n & 1 else cM}")
        wput(tt, off)
    def wput(r, off):
        a = wl
        if off:
            a = r + 4
            I(f"v_add_u32 v{a}, {off}, v{wl}")
        I(f"ds_write2_b32 v{a}, v{r}, v{r+1} offset0:0 offset1:8")
        I(f"ds_write2_b32 v{a}, v{r+2}, v{r+3} offset0:16 offset1:24")
    I("s_waitcnt vmcnt(6)")
    if OLP == 0: own_loads()
    stamp("b4")
    wplain(vRW + 8, WAI - WBI, t + 16)
    wscaled(vRW, 0)
    wplain(vRW + 4, WVI - WBI, t + 24)
    I(f"s_cmp_ge_u32 s{sWP}, 2")
    I("s_cbranch_scc1 L_NOWC")
    wscaled(vEO, WCI - WBI)
    L("L_NOWC")
    I(f"s_mul_i32 s{sTM}, s{sB}, {RS}")
    I(f"s_add_u32 s{sTM}, s{sTM}, {WS_CELL}")
    srd(sCEL, pWS, 256*128, f"s{sTM}")
    I(f"s_lshr_b32 s{sTM}, s{sB}, 1")
    I(f"s_mul_i32 s{sTM}, s{sTM}, {RS}")
    I(f"s_and_b32 s{sTM+1}, s{sB}, 1")
    I(f"s_lshl_b32 s{sTM+1}, s{sTM+1}, 6")
    I(f"s_add_u32 s{sTM}, s{sTM}, s{sTM+1}")
    I(f"s_add_u32 s{sTM}, s{sTM}, {WS_CELL + 256*RS}")
    srd(sD2, pWS, 256*128 - 64, f"s{sTM}")
    vC, vLE = vACC + 32, vACC + 48
    vH, vEB = vACC + 56, vACC + 60
    pa, pi = vR + 12, vR + 13
    I(f"v_lshrrev_b32 v{pi}, 1, v{vCP}")
    I(f"v_lshl_add_u32 v{pi}, v{ha}, 5, v{pi}")
    for k in (1, 2, 3): I(f"s_movk_i32 s{sCI+k-1}, {8192*k}")
    def poll_load(i):
        so = "0" if i == 0 else f"s{sCI+i-1}"
        I(f"buffer_load_dwordx4 {rr(vC+4*i,4)}, v{pa}, {sq(sCEL)}, {so} offen sc1")
        I(f"buffer_load_dwordx2 {rr(vLE+2*i,2)}, v{pi}, {sq(sD2)}, {so} offen sc1")
    I("s_waitcnt lgkmcnt(0)")
    if OLP == 1: own_loads()
    I("s_barrier")
    stamp(4)
    if OLP >= 2: own_loads()
    vWA = vACC
    I(f"v_add_u32 v{wal}, {WBI}, v{wal}")
    def trw(reg, img):
        return [f"ds_read_b64_tr_b16 {rr(reg+8*n+4*s+2*uu,2)}, v{wal} offset:{img + (32*s + 8*uu)*WR + 32*n}"
                for n in range(4) for s in range(2) for uu in range(2)]
    tw = trw(vWA, WAI - WBI) + trw(vWB, 0) + trw(vWV, WVI - WBI)
    for x_ in tw[:14]: I(x_)
    prefill(vCA + 16)
    for x_ in tw[14:32]: I(x_)
    nxt = 32
    I(f"v_subrev_u32 v{u(6)}, s{sSTG}, v{vAX}")
    I(f"s_movk_i32 s{sTM}, {(PL-XI)//8}")
    I(f"v_mad_u32_u24 v{u(6)}, v{vcS}, s{sTM}, v{u(6)}")
    I(f"v_add_u32 v{u(6)}, s{sOW}, v{u(6)}")
    I(f"v_and_b32 v{u(4)}, 15, v{lane}")
    I(f"v_mul_u32_u24 v{u(4)}, {AR}, v{u(4)}")
    I(f"v_lshrrev_b32 v{u(5)}, 4, v{lane}")
    I(f"v_lshl_add_u32 v{u(4)}, v{u(5)}, 3, v{u(4)}")
    I(f"s_mul_i32 s{sTM}, s{sWP}, {32*AR}")
    I(f"s_add_u32 s{sTM}, s{sTM}, {ATAB}")
    I(f"v_add_u32 v{u(4)}, s{sTM}, v{u(4)}")
    k1, vEM, vET = vEO, vEO + 1, vEO + 2
    ownn, owna, mapa = vEO + 3, vEO + 4, vEO + 5
    vMA = vEO + 6
    I(f"v_lshrrev_b32 v{k1}, 4, v{vCP}")
    I(f"v_lshrrev_b32 v{u(2)}, 2, v{ha}")
    I(f"v_mul_u32_u24 v{vEB}, {CH}, v{u(2)}")
    for i in range(1, 4): I(f"v_add_u32 v{vEB+i}, {64*i*CH}, v{vEB}")
    I(f"s_mov_b32 s{sEM}, {EMASK:#x}")
    I(f"s_mov_b32 s{sEM+1}, {EMASK:#x}")
    I(f"v_mov_b32 v{u(3)}, 0xfffff")
    I(f"v_cndmask_b32 v{vEM}, 0, v{u(3)}, {sp(sEM)}")
    I(f"v_and_b32 v{vET}, -32, v{pa}")
    I(f"v_add_u32 v{vET}, {EARLY}, v{vET}")
    I(f"v_mov_b32 v{one}, 4")
    I(f"v_and_b32 v{ownn}, 31, v{lane}")
    I(f"v_add_u32 v{ownn}, s{sWIN}, v{ownn}")
    I(f"v_lshlrev_b32 v{mapa}, 2, v{ownn}")
    I(f"v_lshrrev_b32 v{u(3)}, 5, v{lane}")
    I(f"v_lshl_add_u32 v{owna}, v{u(3)}, 11, v{mapa}")
    I(f"v_add_u32 v{mapa}, {MAP}, v{mapa}")
    I(f"v_mov_b32 v{vT0}, s{sTH}")
    I(f"v_cndmask_b32 v{vT0}, v{vTR}, v{vT0}, {sp(mk0)}")
    I(f"v_mov_b32 v{u(3)}, {HTAG:#x}")
    I(f"v_cndmask_b32 v{vM0}, v{vM0}, v{u(3)}, {sp(mk0)}")
    I(f"s_not_b64 {sp(sMSK)}, {sp(mk0)}")
    I("s_waitcnt lgkmcnt(4)")
    for x_ in tw[nxt:]: I(x_)
    I(f"s_movk_i32 s{sFM}, 0xfff0")
    I(f"s_and_b32 s{sFM}, s{sFM}, 0xffff")
    I(f"s_movk_i32 s{sSKIP}, 39")
    I(f"s_mov_b32 s{sXT}, 0")
    I(f"s_mov_b32 s{sSP}, 0")
    I(f"s_mov_b32 s{sT}, {RTAG:#x}")
    I(f"s_mov_b32 s{sN}, {ITAG:#x}")
    lo0, hi0, lo1, hi1 = sWS0, sWS1, sB0E, sSH
    I(f"s_mul_i32 s10, s{sW}, 49")
    I(f"s_sub_i32 s{lo0}, s10, 7")
    I(f"s_ashr_i32 s{lo0}, s{lo0}, 1")
    I(f"s_add_i32 s{hi0}, s10, 8")
    I(f"s_ashr_i32 s{hi0}, s{hi0}, 1")
    I(f"s_add_i32 s{lo1}, s10, 42")
    I(f"s_ashr_i32 s{lo1}, s{lo1}, 1")
    I(f"s_add_i32 s{hi1}, s{lo0}, 32")
    I(f"s_cmp_eq_u32 s{sW}, 7")
    I(f"s_cselect_b32 s{lo1}, {BN}, s{lo1}")
    I(f"s_cselect_b32 s{hi1}, {BN}, s{hi1}")
    stamp("b0")
    I(f"s_waitcnt vmcnt({1 if PF else 0})")
    stamp("b1")
    PP = opt("pp", 2)
    for k in range(2):
        for s in range(2): I(f"ds_read_b128 {rr(vX+8*k+4*s,4)}, v{u(6)} offset:{512*k + 64*s}")
    wplain(vRU, WUI - WBI, vCA + 16)
    if PP == 0:
        for i in range(4): poll_load(i)
    I(f"s_mov_b32 s{sA}, {f2u(-LOG2E):#x}")
    I(f"s_mov_b32 s{sBt}, s{sA}")
    I(f"s_cmp_eq_u32 s{sWP}, 7")
    I("s_cbranch_scc1 L_NOA")
    I("s_waitcnt lgkmcnt(2)")
    for k in range(2):
        for s in range(2):
            for n in range(4):
                D = (vQ if k == 0 else vCA) + 4*n
                I(m16(D, vWA+8*n+4*s, vX+8*k+4*s, D if s else None))
    for k in range(2):
        D = vQ if k == 0 else vCA
        if k:
            I(f"s_cmp_eq_u32 s{sWP}, 6")
            I("s_cbranch_scc1 L_NOA")
        for i in range(8): I(f"v_pk_mul_f32 {rr(D+2*i,2)}, {rr(D+2*i,2)}, {sp(sA)}")
        for i in range(8): I(f"v_cvt_pk_bf16_f32 v{D+i}, v{D+2*i}, v{D+2*i+1}")
        for n in range(4): I(f"ds_write_b64 v{u(4)}, {rr(D+2*n,2)} offset:{16*AR*k + 32*n}")
    L("L_NOA")
    if PP == 2:
        for i in range(4): poll_load(i)
    stamp(5)
    def check(i, fl):
        c = vC + 4*i
        I(f"v_xor_b32 v{c}, v{c}, v{vT0}")
        for d in range(1, 4): I(f"v_xor_b32 v{c+d}, v{c+d}, v{vTR}")
        for d in range(2): I(f"v_xor_b32 v{vLE+2*i+d}, v{vLE+2*i+d}, v{vTI}")
        I(f"v_or3_b32 v{u(0)}, v{c+1}, v{c+2}, v{c+3}")
        I(f"v_or_b32 v{u(1)}, v{vLE+2*i}, v{vLE+2*i+1}")
        I(f"v_and_b32 v{u(2)}, v{c}, v{vM0}")
        I(f"v_and_or_b32 v{u(2)}, v{u(0)}, s{sT}, v{u(2)}")
        I(f"v_and_or_b32 v{u(2)}, v{u(1)}, s{sN}, v{u(2)}")
        I(f"v_cmp_ne_u32 {sp(fl)}, 0, v{u(2)}")
    fl = lambda i: sM + 2*i
    for i in range(4):
        I(f"s_waitcnt vmcnt({6 - 2*i})")
        check(i, fl(i))
    L("L_POLL")
    I(f"s_or_b64 {sp(sA)}, {sp(fl(0))}, {sp(fl(1))}")
    I(f"s_or_b64 {sp(sA)}, {sp(sA)}, {sp(fl(2))}")
    I(f"s_or_b64 {sp(sA)}, {sp(sA)}, {sp(fl(3))}")
    I("s_cbranch_scc1 L_RETRY")
    stamp(6)
    vA, vRK, vR1 = vACC, vACC + 16, vQ
    mk = lambda i, j: sM + 2*(4*i + j)
    for i in range(4):
        I(f"v_mov_b32_dpp v{vH+i}, v{vC+4*i} row_newbcast:0 row_mask:0xf bank_mask:0x3")
        I(f"v_mov_b32_dpp v{vH+i}, v{vC+4*i} row_newbcast:8 row_mask:0xf bank_mask:0xc")
        for j in range(3): I(f"v_lshrrev_b32 v{vA+4*i+j}, 19, v{vC+4*i+j}")
        I(f"v_sub_u32_sdwa v{u(0)}, v{vH+i}, v{k1} {SDW} src0_sel:WORD_1 src1_sel:DWORD")
        for j in range(4): I(f"v_cmp_lt_i32 {sp(mk(i,j))}, {8*j}, v{u(0)}")
        I(f"s_and_b64 {sp(mk(i,0))}, {sp(mk(i,0))}, {sp(sMSK)}")
        for j in range(3):
            I(f"s_mov_b64 exec, {sp(mk(i,j))}")
            I(f"ds_add_rtn_u32 v{vRK+4*i+j}, v{vA+4*i+j}, v{one} offset:{HIST}")
        I("s_mov_b64 exec, -1")
    I(f"s_or_b64 {sp(sJ3)}, {sp(mk(0,3))}, {sp(mk(1,3))}")
    I(f"s_or_b64 {sp(sJ3)}, {sp(sJ3)}, {sp(mk(2,3))}")
    I(f"s_or_b64 {sp(sJ3)}, {sp(sJ3)}, {sp(mk(3,3))}")
    I("s_cbranch_scc1 L_J3A")
    L("L_J3AR")
    I(f"s_mov_b32 s{sT}, 0x1e00000")
    def r1calc(i, j):
        r = [f"v_add_u32_sdwa v{vR1+4*i+j}, v{vLE+2*i+(j>>1)}, v{vEB+i} {SDW} src0_sel:WORD_{j&1} src1_sel:DWORD",
             f"v_and_or_b32 v{vR1+4*i+j}, v{vC+4*i+j}, s{sT}, v{vR1+4*i+j}"]
        if j == 0 and JE: r.append(f"v_or_b32 v{vR1+4*i}, v{vR1+4*i}, v{vEM}")
        return r
    fill = []
    for i in range(4):
        a = [r1calc(i, j) for j in range(3)]
        fill += [a[0][0], a[1][0], a[2][0], a[0][1], a[1][1], a[2][1]] + a[0][2:]
    for _ in range(opt("f0", 6)): I(fill.pop(0))
    I("s_waitcnt lgkmcnt(0)")
    I("s_barrier")
    stamp(7)
    def early(i):
        if not JE: return
        I(f"v_mov_b32_dpp v{vEI}, v{vLE+2*i} quad_perm:[1,1,3,3] row_mask:0xf bank_mask:0xf")
        I(f"s_lshl_b32 m0, s{sWP}, 10")
        I(f"s_and_b64 vcc, {sp(mk(i,0))}, {sp(sEM)}")
        I(f"v_add_u32_sdwa v{vEI}, v{vEI}, v{vEB+i} {SDW} src0_sel:WORD_0 src1_sel:DWORD")
        I(f"s_add_u32 m0, m0, {EARLY + 8192*i}")
        I("s_lshr_b64 exec, vcc, 1")
        I("s_or_b64 exec, exec, vcc")
        I(f"buffer_load_dwordx4 {rr(vEI,2)}, {sq(sEP)}, 0 idxen offen{pol(EP)} lds")
        I("s_mov_b64 exec, -1")
    EPOS = opt("epos", "0123")
    def epoint(k):
        for i in range(4):
            if int(EPOS[i]) == k: early(i)
    c, p, tot, sc = u(0), u(4), u(8), u(9)
    hh = vX
    own = u(10)
    SD = f"{SDW} src0_sel:WORD_0 src1_sel:WORD_0"
    for ph in range(4):
        I(f"ds_read_b128 {rr(hh+4*ph,4)}, v{l16} offset:{HIST + 1024*ph}")
    I(f"ds_read_u16 v{own}, v{owna} offset:{HIST}")
    I(f"ds_read_u16 v{u(13)}, v{owna} offset:{HIST + 1024}")
    epoint(0)
    I("s_cmp_lg_u32 s2, 0")
    I("s_cbranch_scc1 L_NOK")
    I(f"v_mov_b32 v{u(11)}, s{sK}")
    I(f"v_mov_b32 v{u(12)}, 0")
    I(f"buffer_store_dword v{u(11)}, v{u(12)}, {sq(sWS)}, 0 offen sc1")
    L("L_NOK")
    I("s_waitcnt lgkmcnt(0)")
    for i in range(4):
        I(f"v_add_u32_sdwa v{c+i}, v{hh+i}, v{hh+4+i} {SD}")
        I(f"v_add_u32_sdwa v{p+i}, v{hh+8+i}, v{hh+12+i} {SD}")
    for i in range(4):
        I(f"v_add_u32 v{c+i}, v{c+i}, v{p+i}")
    I(f"v_lshl_or_b32 v{own}, v{u(13)}, 16, v{own}")
    I(f"v_add_u32 v{p+1}, v{c}, v{c+1}")
    I(f"v_add_u32 v{p+2}, v{p+1}, v{c+2}")
    I(f"v_add_u32 v{p+3}, v{p+2}, v{c+3}")
    I(f"v_mov_b32 v{tot}, v{p+3}")
    fill = [f"v_add_u32 v{c+1}, v{c}, v{p+1}", f"v_add_u32 v{c+2}, v{p+1}, v{p+2}", f"v_add_u32 v{c+3}, v{p+2}, v{p+3}"] + fill
    wave_scan(tot, fill)
    epoint(1)
    I(f"v_sub_u32 v{p}, v{tot}, v{p+3}")
    I(f"v_readlane_b32 s10, v{tot}, 63")
    for i in range(4):
        I(f"v_lshl_add_u32 v{c+i}, v{p}, 1, v{c+i}")
    ASYM = opt("asym", 16)
    I("s_lshr_b32 s11, s10, 5")
    I(f"s_add_u32 s11, s11, {ASYM}")
    I("s_and_b32 s11, s11, -32")
    I(f"s_sub_i32 s11, s11, {ASYM}")
    I("s_lshl_b32 s11, s11, 3")
    I("s_lshr_b32 s10, s10, 1")
    I(f"s_lshr_b32 s{sF0}, s{sW}, 1")
    I(f"s_mul_i32 s{sF0}, s{sF0}, s10")
    I(f"s_add_i32 s11, s11, s{sF0}")
    I(f"s_add_i32 s10, s10, s{sF0}")
    I(f"s_bitcmp1_b32 s{sW}, 0")
    I(f"s_cselect_b32 s{sEND}, s11, s{sF0}")
    I("s_cselect_b32 s10, s10, s11")
    I(f"s_mov_b32 s{sF0}, 0")
    I(f"s_mov_b32 s{sF1}, 0")
    for i in range(4):
        I(f"v_cmp_gt_i32 vcc, s{sEND}, v{c+i}")
        I(f"v_cmp_gt_i32 {sp(sTM)}, s10, v{c+i}")
        I("s_bcnt1_i32_b64 s11, vcc")
        I(f"s_add_u32 s{sF0}, s{sF0}, s11")
        I(f"s_bcnt1_i32_b64 s11, {sp(sTM)}")
        I(f"s_add_u32 s{sF1}, s{sF1}, s11")
    I(f"s_max_i32 s{sF0}, s{sF0}, s{lo0}")
    I(f"s_min_i32 s{sF0}, s{sF0}, s{hi0}")
    I(f"s_max_i32 s{sF1}, s{sF1}, s{lo1}")
    I(f"s_min_i32 s{sF1}, s{sF1}, s{hi1}")
    mo = sMSK
    I(f"v_cmp_le_u32 vcc, s{sF0}, v{ownn}")
    I(f"v_cmp_gt_u32 {sp(sA)}, s{sF1}, v{ownn}")
    I(f"s_mov_b32 s{sMORE}, 2")
    I(f"s_and_b64 {sp(mo)}, vcc, {sp(sA)}")
    I(f"v_cndmask_b32 v{own}, 0, v{own}, {sp(mo)}")
    I(f"v_mov_b32 v{tot}, v{own}")
    I(f"s_add_u32 s10, s{sF0}, 16")
    I(f"s_sub_i32 s11, s{sF1}, 16")
    alw, frc = sWS0, sB0E
    fill = [f"v_cmp_gt_i32 {sp(alw)}, s10, v{ownn}", f"v_cmp_gt_i32 {sp(frc)}, s11, v{ownn}"] + fill
    wave_scan(tot, fill, half=True)
    for x_ in fill: I(x_)
    epoint(2)
    ex, a_, i_, b_ = u(0), u(1), u(2), u(3)
    HL = f"{SDW} src0_sel:WORD_0 src1_sel:WORD_1"
    I(f"v_sub_u32 v{ex}, v{tot}, v{own}")
    I(f"v_add_u32_sdwa v{i_}, v{tot}, v{tot} {HL}")
    I(f"v_add_u32_sdwa v{a_}, v{ex}, v{ex} {HL}")
    I(f"v_add_u32_sdwa v{b_}, v{own}, v{own} {HL}")
    T01, T23 = sCUR, sR0
    I(f"v_readlane_b32 s{T01}, v{tot}, 31")
    I(f"v_readlane_b32 s{T23}, v{tot}, 63")
    I(f"v_permlane32_swap_b32 v{a_}, v{i_}")
    I("s_nop 0")
    I(f"v_add_u32 v{a_}, v{a_}, v{i_}")
    I("s_mov_b32 exec_hi, 0")
    I(f"v_readlane_b32 s{sEND}, v{a_}, 63")
    I(f"v_add_u32 v{a_}, v{a_}, v{b_}")
    I("s_mov_b32 exec_hi, -1")
    I(f"v_sub_u32_sdwa v{b_}, v{a_}, v{own} {SDW} src0_sel:DWORD src1_sel:WORD_1")
    I(f"s_add_u32 s10, s{sEND}, 255")
    I("s_lshr_b32 s10, s10, 8")
    I("s_lshl_b32 s10, s10, 7")
    inl, inh = sTM, sTM + 2
    I(f"v_cmp_ge_u32 {sp(inl)}, s10, v{b_}")
    I(f"v_cmp_ge_u32 {sp(inh)}, s10, v{a_}")
    I(f"s_and_b64 {sp(inl)}, {sp(inl)}, {sp(alw)}")
    I(f"s_and_b64 {sp(inh)}, {sp(inh)}, {sp(alw)}")
    I(f"s_or_b64 {sp(inl)}, {sp(inl)}, {sp(frc)}")
    I(f"s_or_b64 {sp(inh)}, {sp(inh)}, {sp(frc)}")
    W0 = [sWS0, sWS1, sCNT, sST]
    cn = [sB0E, sCI, sN, sSH]
    for ph, m in enumerate((inl, inh, inl + 1, inh + 1)):
        I(f"s_bcnt1_i32_b32 s{cn[ph]}, s{m}")
        I(f"s_add_u32 s10, s{cn[ph]}, {31 if ph >= 2 else 63}")
        I(f"v_readlane_b32 s{W0[ph]}, v{tot}, s10")
        I(f"s_cmp_eq_u32 s{cn[ph]}, 0")
        I(f"s_cselect_b32 s{W0[ph]}, 0, s{W0[ph]}")
        I(f"s_lshr_b32 s{W0[ph]}, s{W0[ph]}, 16" if ph & 1 else f"s_and_b32 s{W0[ph]}, s{W0[ph]}, 0xffff")
    I(f"s_add_u32 s{W0[1]}, s{W0[1]}, s{W0[0]}")
    I(f"s_add_u32 s{W0[2]}, s{W0[2]}, s{W0[1]}")
    I(f"s_add_u32 s{W0[3]}, s{W0[3]}, s{W0[2]}")
    I(f"s_sub_u32 s{sT}, s{sL}, {R0}")
    I(f"s_pack_ll_b32_b16 s{sT}, s{sT}, s{sT}")
    I(f"v_add_u32 v{ex}, s{sT}, v{ex}")
    I(f"s_and_b32 s10, s{T01}, 0xffff")
    I(f"s_lshr_b32 s11, s{T01}, 16")
    I("s_add_u32 s11, s11, s10")
    I(f"s_and_b32 s{T23}, s{T23}, 0xffff")
    I(f"s_add_u32 s{T23}, s{T23}, s11")
    I(f"s_sub_u32 s{T01}, {LWB}, s{W0[0]}")
    I(f"s_sub_u32 s10, s10, s{W0[1]}")
    I(f"s_sub_u32 s11, s11, s{W0[2]}")
    I(f"s_sub_u32 s{T23}, s{T23}, s{W0[3]}")
    I(f"s_add_u32 s10, s10, {LWB}")
    I(f"s_add_u32 s11, s11, {LWB}")
    I(f"s_add_u32 s{T23}, s{T23}, {LWB}")
    I("s_lshl_b32 s10, s10, 16")
    I(f"s_lshl_b32 s{T23}, s{T23}, 16")
    I(f"s_lshl_b32 s{W0[0]}, s{W0[0]}, 16")
    I(f"s_lshl_b32 s{W0[2]}, s{W0[2]}, 16")
    I("s_mov_b32 exec_hi, 0")
    for m, s0, s1_ in ((inl, None, T01), (inh, W0[0], 10)):
        if s0 is not None:
            I(f"s_mov_b32 exec_lo, s{m}")
            I(f"v_add_u32 v{ex}, s{s0}, v{ex}")
        I(f"s_not_b32 exec_lo, s{m}")
        I(f"v_add_u32 v{ex}, s{s1_}, v{ex}")
    I("s_mov_b32 exec_lo, 0")
    for m, s0, s1_ in ((inl + 1, W0[1], 11), (inh + 1, W0[2], T23)):
        I(f"s_mov_b32 exec_hi, s{m}")
        I(f"v_add_u32 v{ex}, s{s0}, v{ex}")
        I(f"s_not_b32 exec_hi, s{m}")
        I(f"v_add_u32 v{ex}, s{s1_}, v{ex}")
    I(f"s_mov_b64 exec, {sp(mo)}")
    I(f"ds_write_b16 v{owna}, v{ex} offset:{HIST + 2}")
    I(f"ds_write_b16_d16_hi v{owna}, v{ex} offset:{HIST + 1024 + 2}")
    I(f"s_lshl_b32 s10, s{sW}, 3")
    I(f"v_cndmask_b32 v{a_}, 4, 0, {sp(inl)}")
    I("s_mov_b32 exec_hi, 0")
    I(f"v_add_u32 v{a_}, s10, v{a_}")
    I(f"ds_write_b32 v{mapa}, v{a_}")
    I("s_mov_b64 exec, -1")
    epoint(3)
    I(f"s_sub_u32 s{sEND}, s{sEND}, s{W0[3]}")
    I(f"v_mov_b32 v{sc}, {FLAG}")
    I(f"s_max_u32 s10, s{sEND}, s{W0[3]}")
    I(f"s_cmp_le_u32 s10, {LWB}")
    I("s_cbranch_scc1 L_LFIT")
    I(f"ds_write_b32 v{sc}, v{one}")
    L("L_LFIT")
    def ntiles(l0, l1):
        I(f"s_add_u32 s10, s{l0}, 127")
        I("s_lshr_b32 s10, s10, 7")
        I("s_lshl1_add_u32 s10, s10, -1")
        I(f"s_add_u32 s11, s{l1}, 127")
        I("s_lshr_b32 s11, s11, 6")
        I("s_and_b32 s11, s11, -2")
        I(f"s_max_i32 s{sN}, s10, s11")
    ntiles(W0[3], sEND)
    I(f"s_add_u32 s{sB0E}, s{sB0E}, s{sWIN}")
    I(f"s_add_u32 s{sSH}, s{sSH}, s{sWIN}")
    I(f"s_min_u32 s{sB0E}, s{sB0E}, s{sF1}")
    I(f"s_min_u32 s{sSH}, s{sSH}, s{sF1}")
    I(f"s_min_u32 s{sWS0}, s{sF0}, 192")
    I(f"s_min_u32 s{sWS1}, s{sSH}, 192")
    I(f"s_cmp_lt_u32 s{sSH}, s{sB0E}")
    I(f"s_and_b32 s10, s{sSH}, 15")
    I(f"s_cmp_lt_u32 s{sSH}, s{sB0E}")
    I(f"s_cselect_b32 s{sSH}, s10, 16")
    I(f"v_and_b32 v{u(4)}, 16, v{lane}")
    I(f"v_lshrrev_b32 v{u(4)}, 1, v{u(4)}")
    I(f"v_bfe_u32 v{u(5)}, v{lane}, 2, 2")
    I(f"v_add_u32 v{u(4)}, v{u(4)}, v{u(5)}")
    I(f"s_movk_i32 s10, {AR}")
    I(f"v_add_u32 v{u(5)}, {ATAB}, v{vcS}")
    for w in range(2):
        ws = sWS0 + w
        for uu in range(2):
            d = u(11 + 2*w + uu) if not (w == 1 and uu == 1) else u(6)
            I(f"s_sub_u32 s11, {4*uu}, s{ws}")
            I(f"v_add_u32 v{d}, s11, v{u(4)}")
            I(f"v_and_b32 v{d}, 15, v{d}")
            I(f"v_add_u32 v{d}, s{ws}, v{d}")
            I(f"v_mad_u32_u24 v{d}, v{d}, s10, v{u(5)}")
    cad = [u(11), u(12), u(13), u(6)]
    I("s_mov_b32 exec_hi, 0")
    for k in range(4): I(f"v_add_u32 v{cad[k]}, {WCI - WBI + 8*(k&1)*WR}, v{wal}")
    I("s_mov_b32 exec_hi, -1")
    car = [f"ds_read_b64_tr_b16 {rr(vCA+16*w+4*n+2*uu,2)}, v{cad[2*w+uu]} offset:{32*n}" for w in range(2) for n in range(4) for uu in range(2)]
    epoint(4)
    I("s_waitcnt lgkmcnt(0)")
    stamp(8)
    I("s_barrier")
    stamp(9)
    I(f"ds_read_b64 {rr(u(14),2)}, v{sc}")
    for i in range(4):
        for j in range(3):
            I(f"s_mov_b64 exec, {sp(mk(i,j))}")
            I(f"ds_read_u16 v{vA+4*i+j}, v{vA+4*i+j} offset:{HIST + 2}")
    I("s_mov_b64 exec, -1")
    I("s_waitcnt lgkmcnt(12)")
    I(f"v_cmp_ne_u32 vcc, 0, v{u(14)}")
    I(f"v_readfirstlane_b32 s{sMORE}, v{u(15)}")
    I("s_cbranch_vccnz L_OVF")
    def lwrite(i, j):
        s_ = 4*i + j
        I(f"s_mov_b64 exec, {sp(mk(i,j))}")
        I(f"v_add_u32 v{vA+s_}, v{vA+s_}, v{vRK+s_}")
        I(f"ds_write_b16 v{vA+s_}, v{vC+s_} offset:{R0}")
        I(f"ds_write_b32 v{vA+s_}, v{vR1+s_} offset:{R1}")
    I("s_waitcnt lgkmcnt(0)")
    for i in range(4):
        for j in range(3):
            lwrite(i, j)
            if j == 0 and JE:
                I(f"s_and_b64 exec, exec, {sp(sEM)}")
                I(f"ds_write_b16 v{vA+4*i}, v{vET} offset:{R0 + 2}")
        I("s_mov_b64 exec, -1")
        if JE and i < 3: I(f"v_add_u32 v{vET}, 0x2000, v{vET}")
        for x_ in car[4*i:4*i+4]: I(x_)
    I(f"s_cmp_lg_u64 {sp(sJ3)}, 0")
    I("s_cbranch_scc1 L_J3B")
    L("L_J3BR")
    I("s_waitcnt vmcnt(0) lgkmcnt(0)")
    stamp(10)
    I("s_barrier")
    I(f"s_mov_b32 s10, {f2u(1e-6):#x}")
    I(f"ds_read_b128 {rr(vQD,4)}, v{vARX}")
    I(f"ds_read_b32 v{vEI}, v{vARE}")
    stamp(11)
    I(f"v_lshrrev_b32 v{u(0)}, 2, v{lane}")
    I(f"v_and_b32 v{u(0)}, 12, v{u(0)}")
    I(f"v_subrev_u32 v{u(0)}, s{sSH}, v{u(0)}")
    I("s_waitcnt lgkmcnt(0)")
    put(dma_tile())
    I("s_mov_b32 s11, s10")
    I(f"v_mov_b32 v{u(1)}, s10")
    for i in range(8): I(f"v_mov_b64 {rr(DEN(0,0)+2*i,2)}, {sp(10)}")
    for i in range(4):
        I(f"v_cmp_ne_u32 vcc, {-i}, v{u(0)}")
        I(f"v_mov_b64 {rr(NUM(0,0)+4*i,2)}, 0")
        I(f"v_mov_b64 {rr(NUM(0,0)+4*i+2,2)}, 0")
        I(f"v_cndmask_b32 v{DEN(1,0)+i}, 0, v{u(1)}, vcc")
    for i in range(8): I(f"v_mov_b64 {rr(NUM(1,0)+2*i,2)}, 0")
    for n in range(1, 4):
        for i in range(2): I(f"v_mov_b64 {rr(DEN(1,n)+2*i,2)}, {rr(DEN(1,0)+2*i,2)}")
    I(f"s_mov_b32 s{sCI}, -1")
    I(f"s_mov_b64 {sp(sMSK)}, 0")
    I(f"s_mov_b32 s{sR0}, 0")
    I(f"s_mov_b32 s{sCNT}, 0")
    L("L_GO")
    for m in range(2): I(f"ds_read_u16 v{vEA+m}, v{vARO} offset:{64*m}")
    I(f"ds_read_b128 {rr(vQD,4)}, v{vARX} offset:{LWB}")
    I(f"ds_read_b32 v{vEI}, v{vARE} offset:{LWB}")
    I(f"s_lshr_b32 s10, s{sW}, 1")
    I("s_lshl_b32 s10, s10, 8")
    I(f"s_add_u32 s10, s10, {PRG}")
    I(f"v_lshl_add_u32 v{vPA}, v{lane}, 2, s10")
    I(f"s_bitcmp1_b32 s{sW}, 0")
    I(f"s_cselect_b32 s{sSG}, -1, 1")
    I(f"s_mul_i32 s10, s{sSG}, s{sN}")
    I(f"v_mov_b32 v{vPM}, s10")
    I(f"ds_add_u32 v{vPA}, v{vPM}")
    I(f"s_sub_i32 s10, 0, s{sSG}")
    I(f"v_mov_b32 v{vPM}, s10")
    for i in range(16): I(f"v_mov_b64 {rr(vQ+2*i,2)}, 0")
    for i in range(2): I(f"v_mov_b64 {rr(vS+2*i,2)}, 0")
    I("s_waitcnt lgkmcnt(0)")
    for m in range(2): I(f"v_and_or_b32 v{vEA+m}, v{vEA+m}, s{sFM}, v{vcEO}")
    stamp(12)
    I("s_waitcnt vmcnt(0)")
    stamp(13)
    cstamp(56)
    for m in range(2): I(f"ds_read_b128 {rr(vEO+4*m,4)}, v{vEA+m}")
    for m, s in ORD: I(xread(m, s))
    I(f"s_cmp_lt_i32 s{sN}, 1")
    I("s_cbranch_scc1 L_DONE")
    g = g_mfmas(vP, 0, 0)
    I("s_waitcnt lgkmcnt(4)")
    for x_ in g[:4]: I(x_)
    I("s_waitcnt lgkmcnt(0)")
    for x_ in g[4:]: I(x_)
    put(dma_tile())
    I(f"s_mov_b32 s{sT}, 1")
    for cp in ((1, 0) if FAIR else (0,)):
        sw = lambda par: [f"s_cmp_ge_i32 s{sRM}, {opt('fth', 1)}", f"s_cbranch_scc{1-cp} L_PB{par}{1-cp}", f"L_PB{par}{cp}:"] if FAIR else []
        body = phase(0, 0, cp) + sw(0) + phase(0, 1, cp) + [f"s_cmp_gt_u32 s{sT}, s{sN}", "s_cbranch_scc1 L_TAIL0"]
        body += phase(1, 0, cp) + sw(1) + phase(1, 1, cp) + [f"s_cmp_le_u32 s{sT}, s{sN}", f"s_cbranch_scc1 L_LOOP{cp}"]
        check_body(body)
        if "nodma" in opt("dbg", ""): body = [b for b in body if not b.startswith("buffer_load")]
        emit(".p2align 6")
        L(f"L_LOOP{cp}")
        put(body)
        if cp: I("s_branch L_TAIL1")
    L("L_TAIL1")
    put(s_num(1, 1) + s_den(1, 1, vR))
    I("s_branch L_DONE")
    L("L_TAIL0")
    put(s_num(0, 1) + s_den(0, 1, vR))
    L("L_DONE")
    I(f"v_mbcnt_lo_u32_b32 v{lane}, -1, 0")
    I(f"v_mbcnt_hi_u32_b32 v{lane}, -1, v{lane}")
    I(f"s_cmp_lg_u32 s{sMORE}, 0")
    I("s_cbranch_scc1 L_SLOW")
    L("L_EPI")
    stamp(14)
    cstamp(57)
    I(f"s_setprio {opt('epr', 3)}")
    e = lambda i: vCA + i
    xd = vWV
    I(f"v_bfe_u32 v{e(1)}, v{lane}, 2, 3")
    I(f"v_lshrrev_b32 v{e(2)}, 5, v{lane}")
    I(f"v_lshl_add_u32 v{e(1)}, v{e(2)}, 4, v{e(1)}")
    I(f"v_mul_u32_u24 v{e(1)}, {WR}, v{e(1)}")
    I(f"s_mov_b32 s10, {WUI}")
    I(f"v_add3_u32 v{e(1)}, v{e(1)}, v{vcS}, s10")
    wu = [f"ds_read_b64_tr_b16 {rr(vWB+8*n+4*s+2*uu,2)}, v{e(1)} offset:{(32*s + 8*uu)*WR + 32*n}" for s in range(2) for n in range(4) for uu in range(2)]
    I(f"v_and_b32 v{e(0)}, 48, v{lane}")
    I(f"v_and_b32 v{e(3)}, 15, v{lane}")
    I(f"v_lshlrev_b32 v{e(4)}, 3, v{e(3)}")
    I(f"v_lshlrev_b32 v{e(6)}, 3, v{e(0)}")
    I(f"s_movk_i32 s10, {(PL-32)//8}")
    I(f"v_mad_u32_u24 v{e(0)}, v{vcS}, s10, v{e(0)}")
    I("s_waitcnt lgkmcnt(0)")
    nd = lambda w, i: e(16 + 4*w + i)
    sO = [sOUT, sCEL]
    for w in range(2):
        ws = sWS0 + w
        I(f"s_lshl_b32 s{ws}, s{ws}, 5")
        I(f"s_add_u32 s10, s{ws}, {OWN}")
        I(f"v_add_u32 v{e(5)}, s10, v{e(4)}")
        for i in range(4):
            I(f"s_sub_u32 s11, {32*i}, s{ws}")
            I(f"v_add_u32 v{nd(w,i)}, s11, v{e(6)}")
            I(f"v_and_b32 v{nd(w,i)}, 0x1ff, v{nd(w,i)}")
            I(f"v_add_u32 v{e(8)}, v{nd(w,i)}, v{e(5)}")
            I(f"ds_read_b64 {rr(xd+8*w+2*i,2)}, v{e(8)} offset:{i*(PL-32)}")
        I(f"s_sub_u32 s11, 0, s{ws}")
        I(f"v_lshl_add_u32 v{e(8)}, v{e(4)}, 2, s11")
        I(f"v_and_b32 v{e(8)}, 0x1ff, v{e(8)}")
        I(f"v_add3_u32 v{e(8)}, v{e(8)}, v{e(0)}, s10")
        for s in range(2): I(f"ds_read_b128 {rr(vX+8*w+4*s,4)}, v{e(8)} offset:{64*s}")
        if w == 0:
            for x_ in wu[:8]: I(x_)
    for x_ in wu[8:]: I(x_)
    I(f"s_lshl_b32 s10, s{sSH}, 5")
    I(f"v_subrev_u32 v{e(6)}, s10, v{e(6)}")
    for i in range(4):
        I(f"v_cmpx_eq_u32 vcc, {-32*i & 0xffffffff:#x}, v{e(6)}")
        I(f"s_cbranch_execz L_NS{i}")
        for k in range(8): I(f"v_add_f32 v{vACC+4*k+i}, v{vACC+4*k+i}, v{vACC+32+4*k+i}")
        L(f"L_NS{i}")
        I("s_mov_b64 exec, -1")
    I(f"s_mul_i32 s10, s{sB}, {BN}")
    for k, r_ in enumerate((sF0, sB0E, sF1)):
        I(f"s_add_u32 s{sTM+k}, s10, s{r_}")
        I(f"s_min_u32 s{sTM+k}, s{sTM+k}, {N}")
        I(f"s_lshl_b32 s{sTM+k}, s{sTM+k}, 7")
    I(f"s_add_u32 s{sCEL}, s{sOUT}, s{sTM+1}")
    I(f"s_addc_u32 s{sCEL+1}, s{sOUT+1}, 0")
    I(f"s_sub_u32 s{sCEL+2}, s{sTM+2}, s{sTM+1}")
    I(f"s_add_u32 s{sOUT}, s{sOUT}, s{sTM}")
    I(f"s_addc_u32 s{sOUT+1}, s{sOUT+1}, 0")
    I(f"s_sub_u32 s{sOUT+2}, s{sTM+1}, s{sTM}")
    for w, r_ in enumerate((sF0, sB0E)):
        I(f"s_lshl_b32 s10, s{r_}, 5")
        I(f"s_sub_u32 s10, s{sWS0+w}, s10")
        I("s_lshl_b32 s10, s10, 2")
        I(f"v_add_u32 v{e(10+w)}, s10, v{e(4)}")
    for w in (1, 0):
        for k in range(16): I(f"v_rcp_f32 v{DEN(w,0)+k}, v{DEN(w,0)+k}")
    I("s_waitcnt lgkmcnt(8)")
    for w in range(2):
        XF = vP if w == 0 else vQ
        for i in range(4):
            for h in range(2):
                I(f"v_lshlrev_b32 v{XF+8*h+i}, 16, v{xd+8*w+2*i+h}")
                I(f"v_and_b32 v{XF+8*h+4+i}, 0xffff0000, v{xd+8*w+2*i+h}")
    for w in range(2):
        XF = vP if w == 0 else vQ
        for k in range(0, 16, 2): I(f"v_pk_fma_f32 {rr(NUM(w,0)+k,2)}, {rr(NUM(w,0)+k,2)}, {rr(DEN(w,0)+k,2)}, {rr(XF+k,2)}")
    I("s_waitcnt lgkmcnt(0)")
    k = 0
    for w in range(2):
        for s in range(2):
            for n in range(4):
                I(m16(NUM(w,n), vX+8*w+4*s, vWB+8*n+4*s, NUM(w,n)))
                if k < 8: I(f"v_lshl_add_u32 v{nd(k>>2,k&3)}, v{nd(k>>2,k&3)}, 2, v{e(10+(k>>2))}")
                k += 1
    for w in range(2):
        XF = vP if w == 0 else vQ
        for i in range(4):
            for n in range(4): I(f"v_max_f32 v{NUM(w,n)+i}, v{NUM(w,n)+i}, v{XF+4*n+i}")
            for h in range(2): I(f"v_cvt_pk_bf16_f32 v{DEN(w,0)+2*i+h}, v{NUM(w,2*h)+i}, v{NUM(w,2*h+1)+i}")
            I(f"buffer_store_dwordx2 {rr(DEN(w,0)+2*i,2)}, v{nd(w,i)}, {sq(sO[w])}, 0 offen{pol(OP)}")
    stamp_out()
    L("L_END")
    I("s_endpgm")
    L("L_RETRY")
    I(f"s_add_u32 s{sSP}, s{sSP}, 1")
    I(f"s_cmp_gt_u32 s{sSP}, {opt('spin', 200000)}")
    I("s_cbranch_scc1 L_END")
    if opt("slp", 1): I(f"s_sleep {opt('slp', 1)}")
    for i in range(4):
        I(f"s_cmp_eq_u64 {sp(fl(i))}, 0")
        I(f"s_cbranch_scc1 L_RT{i}")
        poll_load(i)
        L(f"L_RT{i}")
    I("s_waitcnt vmcnt(0)")
    for i in range(4):
        I(f"s_cmp_eq_u64 {sp(fl(i))}, 0")
        I(f"s_cbranch_scc1 L_RC{i}")
        check(i, fl(i))
        L(f"L_RC{i}")
    I("s_branch L_POLL")
    xr, xe, xa, xk = vR + 8, vR + 12, vR, vEO + 6
    L("L_J3A")
    I(f"s_mov_b32 s{sT}, 0x1e00000")
    I("s_waitcnt lgkmcnt(0)")
    for i in range(4):
        I(f"v_lshrrev_b32 v{vA+4*i+3}, 19, v{vC+4*i+3}")
        put(r1calc(i, 3))
        I(f"s_mov_b64 exec, {sp(mk(i,3))}")
        I(f"ds_add_rtn_u32 v{vRK+4*i+3}, v{vA+4*i+3}, v{one} offset:{HIST}")
        I("s_mov_b64 exec, -1")
    I(f"v_max3_u32 v{u(0)}, v{vH}, v{vH+1}, v{vH+2}")
    I(f"v_max_u32 v{u(0)}, v{u(0)}, v{vH+3}")
    I(f"v_cmp_lt_u32 vcc, {32 << 16}, v{u(0)}")
    I("s_cbranch_vccz L_J3AR")
    xr, xe, xa, xk, xt = vR + 8, vR + 12, vR, vCA + 24, vCA + 28
    xk = vQD
    xt = vEO + 6
    xo = vEO + 7
    I(f"s_mov_b32 s{sXT}, 1")
    I(f"v_cmp_lt_u32 vcc, {40 << 16}, v{u(0)}")
    I("s_cbranch_vccz L_XT0")
    I(f"v_mov_b32 v{u(1)}, {FLAG}")
    I(f"ds_write_b32 v{u(1)}, v{one} offset:4")
    L("L_XT0")
    I(f"v_add_u32 v{xt}, 32, v{k1}")
    I(f"v_mov_b32 v{u(1)}, 0x1ffffff0")
    def xmask(i):
        I(f"v_lshrrev_b32 v{xo}, 16, v{vH+i}")
        I(f"v_cmp_lt_u32 vcc, v{xt}, v{xo}")
    for i in range(4):
        I(f"v_mov_b32_dpp v{xa+i}, v{vLE+2*i} row_newbcast:0 row_mask:0xf bank_mask:0x3")
        I(f"v_mov_b32_dpp v{xa+i}, v{vLE+2*i} row_newbcast:8 row_mask:0xf bank_mask:0xc")
        xmask(i)
        I(f"v_and_b32 v{xa+i}, 0xffff, v{xa+i}")
        I(f"v_add3_u32 v{xa+i}, v{xa+i}, v{vEB+i}, v{xt}")
        I(f"v_cndmask_b32 v{xa+i}, v{u(1)}, v{xa+i}, vcc")
        I(f"v_lshlrev_b32 v{xr+i}, 2, v{xa+i}")
        I(f"v_lshlrev_b32 v{xe+i}, 1, v{xa+i}")
        I(f"s_mov_b32 s10, {WS_RECS - 4}")
        I(f"s_mov_b32 s11, {WS_LEID - 2}")
        I(f"buffer_load_dword v{xr+i}, v{xr+i}, {sq(sWS)}, s10 offen sc1")
        I(f"buffer_load_ushort v{xe+i}, v{xe+i}, {sq(sWS)}, s11 offen sc1")
    I("s_waitcnt vmcnt(0)")
    for i in range(4):
        xmask(i)
        I(f"v_lshrrev_b32 v{xa+i}, 19, v{xr+i}")
        I(f"v_add_u32 v{xe+i}, v{xe+i}, v{vEB+i}")
        I(f"v_and_or_b32 v{xe+i}, v{xr+i}, s{sT}, v{xe+i}")
        I("s_mov_b64 exec, vcc")
        I(f"ds_add_rtn_u32 v{xk+i}, v{xa+i}, v{one} offset:{HIST}")
        I("s_mov_b64 exec, -1")
    I("s_branch L_J3AR")
    L("L_J3B")
    I("s_waitcnt lgkmcnt(0)")
    for i in range(4):
        I(f"s_mov_b64 exec, {sp(mk(i,3))}")
        I(f"ds_read_u16 v{vA+4*i+3}, v{vA+4*i+3} offset:{HIST + 2}")
    I("s_waitcnt lgkmcnt(0)")
    for i in range(4): lwrite(i, 3)
    I("s_mov_b64 exec, -1")
    I(f"s_cmp_eq_u32 s{sXT}, 0")
    I("s_cbranch_scc1 L_J3BR")
    for i in range(4):
        I(f"ds_read_u16 v{xa+i}, v{xa+i} offset:{HIST + 2}")
    I("s_waitcnt lgkmcnt(0)")
    for i in range(4):
        xmask(i)
        I(f"v_add_u32 v{xa+i}, v{xa+i}, v{xk+i}")
        I("s_mov_b64 exec, vcc")
        I(f"ds_write_b16 v{xa+i}, v{xr+i} offset:{R0}")
        I(f"ds_write_b32 v{xa+i}, v{xe+i} offset:{R1}")
        I("s_mov_b64 exec, -1")
    I("s_branch L_J3BR")
    L("L_OVF")
    I(f"s_mov_b32 s{sSKIP}, 0")
    I(f"s_mov_b32 s{sN}, 0")
    I(f"s_mov_b32 s{sMORE}, 4")
    I("s_waitcnt lgkmcnt(0)")
    for k in range(2):
        for x_ in car[8*k:8*k+8]: I(x_)
        I("s_waitcnt lgkmcnt(0)")
    I("s_branch L_J3BR")
    L("L_POVF")
    q = vCA
    for i in range(4):
        I(f"v_lshrrev_b32 v{q+i}, 16, v{vHS+i}")
        I(f"v_subrev_u32 v{q+i}, 1, v{q+i}")
    I(f"v_add_u32 v{q+5}, v{q}, v{q+1}")
    I(f"v_add_u32 v{q+6}, v{q+5}, v{q+2}")
    I(f"v_add_u32 v{q+7}, v{q+6}, v{q+3}")
    I(f"v_mov_b32 v{q+8}, v{q+7}")
    wave_scan(q + 8)
    I("s_nop 0")
    I(f"v_sub_u32 v{q+4}, v{q+8}, v{q+7}")
    I(f"v_add_u32 v{q+7}, v{q+4}, v{q+6}")
    I(f"v_add_u32 v{q+6}, v{q+4}, v{q+5}")
    I(f"v_add_u32 v{q+5}, v{q+4}, v{q}")
    I(f"v_mul_u32_u24 v{q+8}, {2*LROW}, v{lane}")
    I(f"v_add_u32 v{q+8}, {IIMG}, v{q+8}")
    I("s_waitcnt lgkmcnt(0)")
    for i in range(4): I(f"ds_write_b16 v{q+8}, v{q+4+i} offset:{LROW//2*i}")
    for i in range(2):
        I(f"ds_read_b128 {rr(vOI+4*i,4)}, v{lo2} offset:{IIMG - CIMG + 64*LROW*i}")
    I(f"s_mul_i32 s10, s2, {CH}")
    I(f"s_cmp_eq_u32 s{sWP}, 0")
    I(f"s_cselect_b64 {sp(m1)}, {sp(m1)}, 0")
    for i in range(7):
        I(f"v_lshlrev_b32 v{q+i}, 1, v{vBK+i}")
        I(f"v_and_b32 v{q+i}, 0x1fffe, v{q+i}")
        I(f"ds_read_u16 v{q+i}, v{q+i} offset:{IIMG - 2*QB}")
    I("s_waitcnt lgkmcnt(0)")
    I(f"s_mov_b32 s{sTM}, {WS_RECS - 4}")
    I(f"s_mov_b32 s{sTM+1}, {WS_LEID - 2}")
    for i in range(7):
        I(f"v_add3_u32 v{q+i}, v{q+i}, v{vRK1+i}, s10")
        I(f"v_cmp_le_u32 vcc, 32, v{vRK1+i}")
        I(f"v_lshlrev_b32 v{q+8+i}, 2, v{q+i}")
        I(f"v_lshlrev_b32 v{q+i}, 1, v{q+i}")
        I("s_and_b64 exec, vcc, " + ("-1" if i < 4 else sp(m2) if i < 6 else sp(m1)))
        I(f"s_cbranch_execz L_PO{i}")
        I(f"buffer_store_short v{vID+i}, v{q+i}, {sq(sWS)}, s{sTM+1} offen sc1")
        I(f"buffer_store_dword v{vSR+i}, v{q+8+i}, {sq(sWS)}, s{sTM} offen sc1")
        L(f"L_PO{i}")
        I("s_mov_b64 exec, -1")
    I("s_waitcnt vmcnt(0) lgkmcnt(0)")
    I("s_barrier")
    I("s_branch L_POUT")
    SB = 288
    t0, t1, t2, t3 = vP, vP+1, vP+2, vP+3
    L("L_SLOW")
    I("s_setprio 0")
    I(f"s_lshl_b32 s10, s{sWP}, 6")
    I(f"v_add_u32 v{tid}, s10, v{lane}")
    I(f"s_cmp_lg_u32 s{sMORE}, 4")
    I("s_cbranch_scc1 L_SL1")
    I(f"s_mov_b32 s{sMORE}, 1")
    I(f"v_and_b32 v{t0}, 0xff, v{tid}")
    I(f"v_lshlrev_b32 v{t1}, 7, v{t0}")
    I(f"buffer_load_dword v{t2}, v{t1}, {sq(sCEL)}, 0 offen sc1")
    I(f"buffer_load_ushort v{t3}, v{t1}, {sq(sD2)}, 0 offen sc1")
    I(f"v_lshlrev_b32 v{t0}, 2, v{t0}")
    I(f"v_add_u32 v{t0}, {HDR}, v{t0}")
    I("s_waitcnt vmcnt(0)")
    I(f"v_and_b32 v{t2}, 0xfff0000, v{t2}")
    I(f"v_and_b32 v{t3}, 0xfff, v{t3}")
    I(f"v_or_b32 v{t2}, v{t2}, v{t3}")
    I(f"v_subrev_u32 v{t2}, 0x10000, v{t2}")
    I(f"ds_write_b32 v{t0}, v{t2}")
    I("s_waitcnt lgkmcnt(0)")
    I("s_barrier")
    L("L_SL1")
    I(f"s_add_u32 s{sR0}, s{sR0}, {SB}")
    I(f"s_cmp_lt_u32 s{sR0}, s{sCNT}")
    I("s_cbranch_scc1 L_BATCH")
    L("L_FIND")
    I(f"s_cmp_lg_u64 {sp(sMSK)}, 0")
    I("s_cbranch_scc1 L_GOT")
    I(f"s_add_u32 s{sCI}, s{sCI}, 1")
    I(f"s_cmp_ge_u32 s{sCI}, 4")
    I("s_cbranch_scc1 L_EPI")
    I(f"s_lshl_b32 s10, s{sCI}, 8")
    I(f"s_add_u32 s10, s10, {HDR}")
    I(f"v_lshl_add_u32 v{t0}, v{lane}, 2, s10")
    I(f"ds_read_u16 v{t0}, v{t0} offset:2")
    I("s_waitcnt lgkmcnt(0)")
    I(f"v_cmp_lt_u32 {sp(sMSK)}, s{sSKIP}, v{t0}")
    I("s_nop 3")
    I("s_branch L_FIND")
    L("L_GOT")
    I(f"s_ff1_i32_b64 s10, {sp(sMSK)}")
    I(f"s_bitset0_b64 {sp(sMSK)}, s10")
    I(f"s_lshl_b32 s11, s{sCI}, 6")
    I(f"s_add_u32 s{sCUR}, s10, s11")
    I(f"s_lshl_b32 s10, s{sCUR}, 2")
    I(f"s_add_u32 s10, s10, {HDR}")
    I(f"v_mov_b32 v{t0}, s10")
    I(f"ds_read_b32 v{t0}, v{t0}")
    I("s_waitcnt lgkmcnt(0)")
    I(f"v_readfirstlane_b32 s10, v{t0}")
    I("s_nop 3")
    I(f"s_lshr_b32 s{sCNT}, s10, 16")
    I(f"s_and_b32 s{sST}, s10, 0xffff")
    I(f"s_mov_b32 s{sR0}, s{sSKIP}")
    L("L_BATCH")
    I("s_waitcnt vmcnt(0)")
    I("s_barrier")
    prefill(vP + 4)
    I(f"v_and_b32 v{t0}, 15, v{lane}")
    I(f"v_mul_u32_u24 v{t1}, {LWB}, v{t0}")
    I(f"v_lshlrev_b32 v{t0}, 2, v{t0}")
    I(f"ds_write_b32 v{t0}, v{t1} offset:{CNT}")
    I(f"v_add_u32 v{t0}, s{sR0}, v{tid}")
    I(f"v_add_u32 v{t2}, 1, v{t0}")
    I(f"v_mul_u32_u24 v{t2}, 33, v{t2}")
    I(f"v_bfe_u32 v{t2}, v{t2}, 3, 5")
    I(f"s_mul_i32 s{sTM+2}, s{sCUR}, {CH}")
    I(f"s_add_u32 s11, s{sTM+2}, s{sST}")
    I(f"v_cmp_gt_u32 vcc, 31, v{t0}")
    I(f"s_lshl_b32 s{sTM}, s11, 2")
    I(f"s_add_u32 s{sTM}, s{sTM}, {WS_RECS}")
    I(f"v_lshl_add_u32 v{t1}, v{t0}, 2, s{sTM}")
    I(f"s_mul_i32 s10, s{sB}, {RS}")
    I(f"s_lshl_b32 s{sTM+1}, s{sCUR}, 7")
    I(f"s_add_u32 s{sTM+1}, s{sTM+1}, {WS_CELL}")
    I(f"s_add_u32 s10, s10, s{sTM+1}")
    I(f"v_lshl_add_u32 v{t3}, v{t2}, 2, s10")
    I(f"v_cndmask_b32 v{t1}, v{t1}, v{t3}, vcc")
    I(f"s_lshr_b32 s10, s{sB}, 1")
    I(f"s_add_u32 s10, s10, 256")
    I(f"s_mul_i32 s10, s10, {RS}")
    I(f"s_add_u32 s10, s10, s{sTM+1}")
    I(f"s_and_b32 s{sTM}, s{sB}, 1")
    I(f"s_lshl_b32 s{sTM}, s{sTM}, 6")
    I(f"s_add_u32 s10, s10, s{sTM}")
    I(f"v_lshl_add_u32 v{t2}, v{t2}, 1, s10")
    I(f"s_lshl_b32 s{sTM}, s11, 1")
    I(f"s_add_u32 s{sTM}, s{sTM}, {WS_LEID}")
    I(f"v_lshl_add_u32 v{t3}, v{t0}, 1, s{sTM}")
    I(f"v_cndmask_b32 v{t3}, v{t3}, v{t2}, vcc")
    I(f"s_add_u32 s10, s{sR0}, {SB}")
    I(f"s_min_u32 s10, s10, s{sCNT}")
    I(f"v_cmp_gt_u32 vcc, s10, v{t0}")
    I(f"v_mov_b32 v{t2}, 0x7ffffff0")
    I(f"s_mov_b32 s{sT}, 0x1e00000")
    I(f"v_cndmask_b32 v{t1}, v{t2}, v{t1}, vcc")
    I(f"v_cndmask_b32 v{t3}, v{t2}, v{t3}, vcc")
    I(f"buffer_load_dword v{t1}, v{t1}, {sq(sWS)}, 0 offen sc1")
    I(f"buffer_load_ushort v{t3}, v{t3}, {sq(sWS)}, 0 offen sc1")
    I("s_waitcnt lgkmcnt(0)")
    I("s_barrier")
    I("s_mov_b64 exec, vcc")
    I("s_waitcnt vmcnt(0)")
    I(f"v_bfe_u32 v{t0}, v{t1}, 21, 8")
    I(f"v_lshlrev_b32 v{t0}, 2, v{t0}")
    I(f"v_add_u32 v{t0}, {MAP}, v{t0}")
    I(f"ds_read_b32 v{t0}, v{t0}")
    I(f"v_mov_b32 v{t2}, 4")
    I(f"v_and_b32 v{t3}, 0xfff, v{t3}")
    I(f"v_add_u32 v{t3}, s{sTM+2}, v{t3}")
    I(f"v_and_or_b32 v{t3}, v{t1}, s{sT}, v{t3}")
    I("s_waitcnt lgkmcnt(0)")
    I(f"ds_add_rtn_u32 v{t0}, v{t0}, v{t2} offset:{CNT}")
    I("s_waitcnt lgkmcnt(0)")
    I(f"ds_write_b16 v{t0}, v{t1} offset:{R0}")
    I(f"ds_write_b32 v{t0}, v{t3} offset:{R1}")
    I("s_mov_b64 exec, -1")
    I("s_waitcnt lgkmcnt(0)")
    I("s_barrier")
    I(f"s_lshl_b32 s10, s{sW}, 3")
    I(f"v_mov_b32 v{t0}, s10")
    I(f"ds_read_b64 {rr(t2,2)}, v{t0} offset:{CNT}")
    listaddr(t1)
    I(f"ds_read_b128 {rr(vQD,4)}, v{vARX}")
    I(f"ds_read_b32 v{vEI}, v{vARE}")
    I("s_waitcnt lgkmcnt(0)")
    I(f"v_readfirstlane_b32 s{sTM}, v{t2}")
    I(f"v_readfirstlane_b32 s{sTM+1}, v{t3}")
    put(dma_tile())
    I(f"s_sub_u32 s10, s{sL}, {R0}")
    I(f"s_sub_u32 s{sTM}, s{sTM}, s10")
    I(f"s_sub_u32 s{sTM+1}, s{sTM+1}, s10")
    I(f"s_sub_u32 s{sTM+1}, s{sTM+1}, {LWB}")
    ntiles(sTM, sTM + 1)
    L("L_LAST")
    I("s_branch L_GO")

def regs_of(tok):
    tok = tok.strip()
    m = re.fullmatch(r"v\[(\d+):(\d+)\]", tok)
    if m: return list(range(int(m.group(1)), int(m.group(2)) + 1))
    m = re.fullmatch(r"v(\d+)", tok)
    if m: return [int(m.group(1))]
    return []
def parse(ins):
    op, _, rest = ins.partition(" ")
    ops = [o.strip().split(" ")[0] for o in rest.split(",")] if rest else []
    if op.startswith("ds_read") or "rtn" in op: return "ds", regs_of(ops[0]), regs_of(ops[1])
    return "other", [], sum((regs_of(o) for o in ops), [])
def check_body(body):
    s2 = [b for b in body if not b.endswith(":")]
    pend = []
    for i, ins in enumerate(s2 * 3):
        k, d, s = parse(ins)
        m = re.search(r"lgkmcnt\((\d+)\)", ins)
        if m:
            while len(pend) > int(m.group(1)): pend.pop(0)
        pr = set(sum(pend, []))
        for r in d + s:
            assert r not in pr, f"pending LDS reg v{r} used by {ins} @{i}"
        if k == "ds":
            pend.append(d); assert len(pend) <= 15

hdr = open("/code/" + NAME + ".s.ref").read().split("\n")
for l in hdr:
    if l.startswith("; Override"): break
    out.append(l)
if opt("list", 0): out.append(f"; @launch kernel={NAME}_kernel grid=(256,1,1) block=(512,1,1) lds={LDS}")
else: out.append(f"; @launch grid=(256,1,1) block=(512,1,1) lds={LDS}")
emit('.amdgcn_target "amdgcn-amd-amdhsa--gfx950"\n.text')
kernel()
emit(f""".section .rodata,"a"
.p2align 6
.amdhsa_kernel {NAME}_kernel
  .amdhsa_next_free_vgpr 256
  .amdhsa_next_free_sgpr 102
  .amdhsa_accum_offset 256
  .amdhsa_group_segment_fixed_size 0
  .amdhsa_kernarg_size 96
  .amdhsa_user_sgpr_count 2
  .amdhsa_user_sgpr_kernarg_segment_ptr 1
  .amdhsa_system_sgpr_workgroup_id_x 1
.end_amdhsa_kernel""")
if TS: out.insert(0, "; stamps " + " ".join(STN))
path = sys.argv[1] if len(sys.argv) > 1 else "/code/" + NAME + ".s"
open(path, "w").write("\n".join(out) + "\n")
print("wrote", path, len(out), "lines; lds", LDS)
```

```python
import sys, re, struct

NAME = "standalone__edge_featured_mpnn_gatedgcn__graph"
OPT = dict(kv.split("=") for kv in sys.argv[2:])
def opt(k, d):
    v = OPT.get(k)
    if v is None: return d
    return type(d)(v)

N, E = 50000, 800000
CH = 3128
BN = 196
RS = opt('rs', 257) * 128
WS_CELL = 0x10000
WS_RECS = 0x1200000
WS_LEID = 0x1600000
WS_HD = 0x1700000
WS_USED = 0x1800000
WS_TS = 0x3000000
KINC = 0x02020202
CAP = 24
LOG2E = 1.4426950408889634
def f2u(f): return struct.unpack("<I", struct.pack("<f", f))[0]

out = []
def emit(s=""):
    for l in s.strip("\n").split("\n"):
        out.append(l.rstrip())
def I(s): out.append("    " + s)
def L(s): out.append(s + ":")
def C(s): out.append("    ; " + s)
def put(seq):
    for s in seq:
        if s.endswith(":"): L(s[:-1])
        else: I(s)
def rr(a, n): return f"v[{a}:{a+n-1}]"
def sp(a): return f"s[{a}:{a+1}]"
def sq(a): return f"s[{a}:{a+3}]"
def pol(p): return (" " + p.replace("_", " ")) if p else ""

def srd(d, lo, size, add=None, stride=0):
    if add is None:
        I(f"s_mov_b32 s{d}, s{lo}")
        I(f"s_mov_b32 s{d+1}, s{lo+1}" if not stride else f"s_or_b32 s{d+1}, s{lo+1}, {stride << 16:#x}")
    else:
        I(f"s_add_u32 s{d}, s{lo}, {add}")
        I(f"s_addc_u32 s{d+1}, s{lo+1}, 0")
    I(f"s_mov_b32 s{d+2}, {size}")
    I(f"s_mov_b32 s{d+3}, 0x20000")

def wave_scan(v, fill=None, half=False):
    def gap():
        if fill and len(fill) >= 2:
            I(fill.pop(0)); I(fill.pop(0))
        else: I("s_nop 1")
    for sh in (1, 2, 4, 8):
        gap()
        I(f"v_add_u32_dpp v{v}, v{v}, v{v} row_shr:{sh} row_mask:0xf bank_mask:0xf bound_ctrl:0")
    gap()
    I(f"v_add_u32_dpp v{v}, v{v}, v{v} row_bcast:15 row_mask:0xa bank_mask:0xf")
    if half: return
    gap()
    I(f"v_add_u32_dpp v{v}, v{v}, v{v} row_bcast:31 row_mask:0xc bank_mask:0xf")

TAB, ZROW, CNT, FLAG = 0, 512, 576, 640
HIST = 1024
ESTG = HIST + 4096
HIST1 = ESTG
EARLY = ESTG + 8192
LWB = 288 * 4
R0 = EARLY + 32768
R1 = R0 + 16 * LWB
XSTG = R1 + 16 * LWB
XI = 1056
SLOT = 4 * XI
OWN = XSTG + 8 * SLOT
PL = 52 * 128 + 32
WR = 160
AR = 152
WUI = OWN + 4 * PL
WCI = WUI + 64 * WR
MAP = WCI + 16 * WR
HDR = MAP + 1024
PRG = HDR + 1024
LDS = PRG + 1024
WBI, WVI, WAI = EARLY, EARLY + 64 * WR, EARLY + 128 * WR
ATAB = XSTG
LROW = 160
CIMG = R0
assert CIMG + 256 * LROW <= OWN and 208 * AR <= 8 * SLOT and LDS <= 163840, LDS
BIAS = 8192
assert R1 < 65536 and R0 % 256 == 0 and R1 % 256 == 0
W2 = f"offset0:{(R0-BIAS)//256} offset1:{(R1-BIAS)//256}"

vWB, vWV, vCA, vACC = 0, 32, 64, 96
vX, vEO, vS = 160, 176, 184
vP, vQ, vR = 188, 204, 220
vQD = 236
vEI, vCH, vIDX, vCP, vAX, vcEO, vcS, vARX, vARE, vARO, vARS, vEA = 240, 241, 242, 243, 244, 245, 246, 247, 248, 249, 250, 251
lane, vTS, tid = 253, 254, 255
vC1, vPA = lane, tid
DEN = lambda w, n: vACC + 32 * w + 4 * n
NUM = lambda w, n: vACC + 32 * w + 16 + 4 * n
def m16(d, a, b, c=None):
    return f"v_mfma_f32_16x16x32_bf16 {rr(d,4)}, {rr(a,4)}, {rr(b,4)}, " + ("0" if c is None else rr(c, 4))
def s16(d, b): return f"v_smfmac_f32_16x16x64_bf16 {rr(d,4)}, {rr(vS,4)}, {rr(b,8)}, v{vIDX}"

sWP, sW, sB, sK = 3, 4, 5, 6
sWIN, sF0, sF1, sL = 7, 8, 9, 12
sA, sBt = 10, 11
sSTG, sES, s128 = 13, 14, 15
pX, pE, pSRC, pDST, pWA, pWB, pWC, pWU, pWV, pOUT, pDBG, pWS = 16, 18, 20, 22, 24, 26, 28, 30, 32, 34, 36, 38
sT, sN, sFM, sMORE, sSKIP, sXT, sWS0, sWS1, sB0E, sSH = 16, 17, 18, 19, 20, 21, 22, 23, 24, 25
sCI, sCUR, sR0, sCNT, sST, sEND = 26, 27, 28, 29, 30, 31
sMSK = 32
sTM = 34
sX, sEP, sOUT, sWS, sCEL, sD2 = 40, 44, 48, 52, 56, 60
sM = 64
sJ3, sEM = 96, 98
sSP = 100
sSG, sRM = 101, 96

TS = opt("ts", 0)
STN = []
def stamp(i):
    if not TS: return
    if isinstance(i, str) and i[0] not in opt("tsx", ""): return
    STN.append(str(i)); i = len(STN) - 1
    I("s_memrealtime vcc" if TS == 1 else "s_memtime vcc")
    I("s_waitcnt lgkmcnt(0)")
    I(f"v_writelane_b32 v{vTS}, vcc_lo, {i}")
def stamp_out():
    if not TS: return
    I("s_waitcnt vmcnt(0)")
    stamp(15)
    I("s_memtime vcc")
    I("s_waitcnt lgkmcnt(0)")
    I(f"v_writelane_b32 v{vTS}, vcc_lo, 58")
    I(f"v_writelane_b32 v{vTS}, s{sN}, 59")
    I(f"v_writelane_b32 v{vTS}, s{sSP}, 60")
    I("s_lshl_b32 s10, s2, 3")
    I(f"s_add_u32 s10, s10, s{sWP}")
    I("s_lshl_b32 s10, s10, 8")
    I(f"s_add_u32 s10, s10, {WS_TS}")
    I(f"v_lshl_add_u32 v{vP}, v{lane}, 2, s10")
    I(f"global_store_dword v{vP}, v{vTS}, {sp(pWS)}")
def cstamp(i):
    if not TS: return
    I("s_memtime vcc")
    I("s_waitcnt lgkmcnt(0)")
    I(f"v_writelane_b32 v{vTS}, vcc_lo, {i}")

LD_P = opt("ldp", "nt")
XP, EP, OP = opt("xp", ""), opt("ep", ""), opt("op", "sc1")
STP = opt("stp", "sc1")
JE = opt("je", 2)
EMASK = sum(1 << (2 * j + 1) for j in range(JE)) * 0x01010101
SDW = "dst_sel:DWORD dst_unused:UNUSED_PAD"

def dma_tile():
    r = []
    for i in range(4):
        r.append(f"s_add_u32 m0, s{sSTG}, {i*XI}")
        r.append(f"v_mad_u32_u16 v{vQD+i}, v{vQD+i}, s{s128}, v{vCP}")
        r.append(f"buffer_load_dwordx4 v{vQD+i}, {sq(sX)}, 0 offen{pol(XP)} lds")
    r.append(f"s_mov_b32 m0, s{sES}")
    r.append(f"v_and_b32 v{vEI}, 0xfffff, v{vEI}")
    r.append(f"buffer_load_dwordx4 {rr(vEI,2)}, {sq(sEP)}, 0 idxen offen{pol(EP)} lds")
    return r

ORD = [(0, 0), (1, 0), (0, 1), (1, 1)]
def xread(m, s): return f"ds_read_b128 {rr(vX+8*m+4*s,4)}, v{vAX} offset:{512*m + 64*s}"
def g_mfmas(D, ft, w):
    g = [m16(D+8*n+4*m, vEO+4*m, vCA+16*w+8*ft+4*n) for m in range(2) for n in range(2)]
    g += [m16(D+8*n+4*m, vX+8*m+4*s, vWB+16*ft+8*n+4*s, D+8*n+4*m) for m, s in ORD for n in range(2)]
    return g
def h_mfmas(ft):
    return [m16(vQ+8*n+4*m, vX+8*m+4*s, vWV+16*ft+8*n+4*s, None if s == 0 else vQ+8*n+4*m) for m, s in ORD for n in range(2)]
def s_num(w, ft): return [s16(NUM(w, 2*ft+n), vQ+8*n) for n in range(2)]
def s_den(w, ft, G): return [s16(DEN(w, 2*ft+n), G+8*n) for n in range(2)]

def eafix():
    return [f"v_bfi_b32 v{vEA+m}, 31, v{vcEO}, v{vEA+m}" for m in range(2)] + [f"v_max_u32 v{vEA}, v{vEA}, v{vcEO}", f"v_max_u32 v{vEA+1}, v{vEA+1}, v{vC1}"]
LV = [int(c, 16) for c in opt("lv", "015a")]
PAT = opt("pat", "1" * 11 + "5")
FAIR = opt("fair", 1)
BST = opt("bst", 11)
def phase(par, ft, cp=0):
    G, Go = (vP, vR) if ft == 0 else (vR, vP)
    nf = 1 - ft
    wn = par if ft == 0 else par ^ 1
    wp = par ^ 1 if ft == 0 else par
    s1 = [[x] for x in s_num(wp, nf) + h_mfmas(ft) + s_den(wp, nf, Go)]
    s2 = [[x] for x in g_mfmas(Go, nf, wn)]
    if ft == 0:
        o = par * LWB
        s1[0] += [f"ds_read_u16 v{vQD+u}, v{vARS} offset:{o + 16*u}" for u in range(2)]
        s1[8] += ["s_waitcnt lgkmcnt(0)"] + [f"v_bfi_b32 v{vQD+u}, 31, v{vcS}, v{vQD+u}" for u in range(2)]
        if FAIR:
            s1[0] += [f"ds_add_rtn_u32 v{vQD+2}, v{vPA}, v{vIDX}"]
            s1[8] += [f"v_readfirstlane_b32 s{sRM}, v{vQD+2}"]
            s2[1] += [f"s_ashr_i32 s{sRM}, s{sRM}, 24", f"s_mul_i32 s{sRM}, s{sRM}, s{sSG}"]
        o1 = 128 if par else LWB
        s2[0] += [f"ds_read_b64_tr_b16 {rr(vS+2*u,2)}, v{vQD+u}" for u in range(2)]
        s2[0] += [f"ds_read_u16 v{vEA+m}, v{vARO} offset:{o1 + 64*m}" for m in range(2)]
        s2[6] += ["s_waitcnt lgkmcnt(0)"] + eafix()
        s2[6] += [f"ds_read_b128 {rr(vQD,4)}, v{vARX} offset:{o + 128}", f"ds_read_b32 v{vEI}, v{vARE} offset:{o + 128}",
                  f"s_add_u32 s{sT}, s{sT}, 1"]
        if par: s2[7] += [f"v_add_u32 v{r}, 0x80, v{r}" for r in (vARX, vARE, vARO, vARS)]
    else:
        s1[2] = ["s_waitcnt vmcnt(0)"] + [f"ds_read_b128 {rr(vEO+4*m,4)}, v{vEA+m}" for m in range(2)] + s1[2]
        for i, (m, s) in enumerate(ORD): s1[3+2*i].append(xread(m, s))
        s2[0] = ["s_waitcnt lgkmcnt(4)"] + s2[0]
        for i in range(4): s2[4+2*i] = [f"s_waitcnt lgkmcnt({3-i})"] + s2[4+2*i]
        s2[10] += [f"s_cmp_lt_u32 s{sT}, s{sN}", f"s_cbranch_scc0 L_ND{par}{cp}"] + dma_tile() + [f"L_ND{par}{cp}:"]
    def sec(mf, op):
        r = []; k = 0
        for i, m in enumerate(mf):
            if FAIR:
                if i == 0: r.append(f"s_setprio {cp}")
                if i == BST: r.append("s_setprio 3")
            elif i in LV: r.append(f"s_setprio {LV.index(i)}")
            r += m
            for _ in range(int(PAT[i])):
                r.append(f"{op} v{G+k}, v{G+k}"); k += 1
        assert k == 16
        return r
    r = sec(s1, "v_exp_f32")
    r += [f"v_pk_add_f32 {rr(G+2*i,2)}, {rr(G+2*i,2)}, 1.0 op_sel_hi:[1,0]" for i in range(8)]
    r += sec(s2, "v_rcp_f32")
    r += [f"v_pk_mul_f32 {rr(vQ+2*i,2)}, {rr(G+2*i,2)}, {rr(vQ+2*i,2)}" for i in range(8)]
    return r

def listaddr(t0):
    I(f"v_lshrrev_b32 v{t0}, 3, v{lane}")
    I(f"v_lshl_add_u32 v{vARX}, v{t0}, 4, s{sL}")
    I(f"s_add_u32 s10, s{sL}, {R1-R0}")
    I(f"v_lshrrev_b32 v{t0}, 1, v{lane}")
    I(f"v_lshl_add_u32 v{vARE}, v{t0}, 2, s10")
    I(f"s_add_u32 s10, s10, 2")
    I(f"v_and_b32 v{t0}, 48, v{lane}")
    I(f"v_lshl_add_u32 v{vARS}, v{t0}, 1, s10")
    I(f"v_and_b32 v{t0}, 12, v{lane}")
    I(f"v_add_u32 v{vARS}, v{vARS}, v{t0}")
    I(f"v_lshrrev_b32 v{t0}, 5, v{lane}")
    I(f"v_mul_u32_u24 v{vARO}, {R1-R0}, v{t0}")
    I(f"v_and_b32 v{t0}, 15, v{lane}")
    I(f"v_lshl_add_u32 v{vARO}, v{t0}, 2, v{vARO}")
    I(f"s_add_u32 s10, s{sL}, 2")
    I(f"v_add_u32 v{vARO}, s10, v{vARO}")

def prefill(t):
    for d in range(2): I(f"v_mov_b64 {rr(t+2*d,2)}, 0")
    for d in range(4): I(f"v_mov_b32 v{t+4+d}, {(ZROW << 16) | 0xfffff:#x}")
    I(f"v_lshl_add_u32 v{t+8}, v{lane}, 4, s{sL}")
    for o in (0, 1024, 2*LWB - 1024):
        I(f"ds_write_b128 v{t+8}, {rr(t,4)} offset:{o}")
        I(f"ds_write_b128 v{t+8}, {rr(t+4,4)} offset:{o + R1 - R0}")

def kernel():
    emit(f"""
.globl {NAME}_kernel
.p2align 8
.type {NAME}_kernel,@function
{NAME}_kernel:""")
    I("s_cmp_ge_u32 s2, 256")
    I("s_cbranch_scc1 L_END")
    I("s_load_dwordx16 s[16:31], s[0:1], 0")
    I("s_load_dwordx8 s[32:39], s[0:1], 64")
    if TS: I(f"v_mov_b32 v{vTS}, 0")
    u = lambda i: vP + i
    if opt("cpf", 1):
        I(f"s_getpc_b64 {sp(sM)}")
        L("L_PC")
        I("s_and_b32 s3, s2, -8")
        I(f"v_add_lshl_u32 v{u(0)}, v0, s3, 7")
        I(f"v_min_u32 v{u(0)}, L_LAST-L_PC, v{u(0)}")
        I("v_cmpx_gt_u32 vcc, 8, v0")
        I("s_cbranch_execz L_NOCPF")
        I(f"global_load_dword v{vEA}, v{u(0)}, {sp(sM)}")
        L("L_NOCPF")
        I("s_mov_b64 exec, -1")
    stamp(0)
    vD, vSR, vBK, vHA, vRK1, vID, vIC = vACC, vACC + 8, vACC + 16, vACC + 24, vACC + 32, vACC + 40, vACC + 44
    vRW = vX
    one, l16 = vS, vS + 1
    vOA, vT16, sOW = vR + 14, vR + 12, 101
    I(f"v_mov_b32 v{tid}, v0")
    I(f"v_lshrrev_b32 v{u(0)}, 6, v0")
    I(f"v_and_b32 v{lane}, 63, v0")
    I(f"v_readfirstlane_b32 s{sWP}, v{u(0)}")
    I(f"v_lshlrev_b32 v{vT16}, 4, v0")
    I(f"v_lshlrev_b32 v{u(2)}, 3, v0")
    I(f"v_lshlrev_b32 v{u(3)}, 2, v0")
    I(f"v_and_b32 v{u(4)}, 0x3fc, v{u(3)}")
    I(f"s_mul_i32 s{sA}, s2, {CH*4}")
    I(f"s_sub_u32 s{sBt}, {E*4}, s{sA}")
    I(f"s_min_u32 s{sBt}, s{sBt}, {CH*4}")
    I(f"s_and_b32 s{sB}, s2, 7")
    I(f"s_lshr_b32 s{sW}, s2, 3")
    I(f"s_lshl_b32 s{sB}, s{sB}, 5")
    I(f"s_add_u32 s{sB}, s{sB}, s{sW}")
    I(f"s_mul_i32 s{sF1}, s{sB}, {BN}")
    I(f"s_lshl_b32 s{sL}, s{sWP}, 5")
    I(f"s_add_u32 s{sF1}, s{sF1}, s{sL}")
    I(f"v_lshrrev_b32 v{u(5)}, 3, v{lane}")
    I(f"v_lshl_add_u32 v{u(5)}, v{u(5)}, 2, s{sF1}")
    I(f"v_and_b32 v{vCP}, 7, v{lane}")
    I(f"v_lshlrev_b32 v{vCP}, 4, v{vCP}")
    I(f"v_lshl_add_u32 v{vOA}, v{u(5)}, 7, v{vCP}")
    I(f"s_lshl_b32 s{sOW}, s{sWP}, 10")
    I(f"s_add_u32 s{sOW}, s{sOW}, {OWN}")
    I(f"s_movk_i32 s{sF0}, 0x2000")
    I("s_waitcnt lgkmcnt(0)")
    I(f"s_load_dword s{sK}, {sp(pWS)}, 0")
    srd(sCEL, pDST, f"s{sBt}", f"s{sA}")
    srd(sD2, pSRC, f"s{sBt}", f"s{sA}")
    I(f"buffer_load_dwordx4 {rr(vD,4)}, v{vT16}, {sq(sCEL)}, 0 offen{pol(LD_P)}")
    I(f"buffer_load_dwordx4 {rr(vSR,4)}, v{vT16}, {sq(sD2)}, 0 offen{pol(LD_P)}")
    I(f"s_cmp_ge_u32 s{sWP}, 5")
    I("s_cbranch_scc1 L_NO7")
    I(f"buffer_load_dwordx4 {rr(vD+4,4)}, v{vT16}, {sq(sCEL)}, s{sF0} offen{pol(LD_P)}")
    I(f"buffer_load_dwordx4 {rr(vSR+4,4)}, v{vT16}, {sq(sD2)}, s{sF0} offen{pol(LD_P)}")
    L("L_NO7")
    for d in range(2): I(f"v_mov_b64 {rr(u(8)+2*d,2)}, 0")
    I(f"ds_write_b32 v{u(4)}, v{u(8)} offset:{HIST1}")
    I(f"v_add_u32 v{u(5)}, {CIMG}, v{vT16}")
    for k in range(5): I(f"ds_write_b128 v{u(5)}, {rr(u(8),4)} offset:{8192*k}")
    PF = opt("pf", 0)
    vRU = vCA + 28
    def w_loads():
        I(f"s_cmp_ge_u32 s{sWP}, 2")
        I("s_cbranch_scc1 L_NOC")
        I(f"global_load_dwordx4 {rr(vEO,4)}, v{vT16}, {sp(pWC)}")
        L("L_NOC")
        for k, p in enumerate((pWB, pWV, pWA)):
            I(f"global_load_dwordx4 {rr(vRW+4*k,4)}, v{vT16}, {sp(p)}")
    def own_loads():
        I(f"global_load_dwordx4 {rr(vRU,4)}, v{vT16}, {sp(pWU)}")
        I(f"s_cmp_eq_u32 s{sWP}, 7")
        I("s_cbranch_scc1 L_NOO4")
        I(f"s_cmp_eq_u32 s{sWP}, 6")
        I("s_cselect_b32 exec_hi, 0, -1")
        for k in range(4):
            I(f"s_add_u32 m0, s{sOW}, {(PL-128)*k}")
            I("s_nop 0")
            I(f"buffer_load_dwordx4 v{vOA}, {sq(sX)}, 0 offen offset:{128*k} lds")
        I("s_mov_b32 exec_hi, -1")
        L("L_NOO4")
        if PF:
            assert PF <= 512
            I(f"s_lshr_b32 s{sTM+1}, s2, 3")
            I(f"s_mul_i32 s{sTM}, s{sTM+1}, {PF*128}")
            I(f"v_min_u32 v{vEA+1}, {PF-1}, v{tid}")
            I(f"v_lshlrev_b32 v{vEA+1}, 7, v{vEA+1}")
            I(f"buffer_load_dword v{vEA+1}, v{vEA+1}, {sq(sX)}, s{sTM} offen")
    LLP = opt("llp", 2)
    OLP = opt("olp", 2)
    NY = 0
    srd(sEP, pE, E, stride=32)
    srd(sOUT, pOUT, N*128)
    srd(sX, pX, N*128)
    srd(sWS, pWS, WS_USED)
    I(f"s_lshl_b32 s{sL}, s2, 7")
    I(f"s_add_u32 s{sL}, s{sL}, {WS_CELL}")
    srd(sCEL, pWS, 511*RS + 128, f"s{sL}")
    cM, cN, cP, cPM, cR = sM, sM + 1, sM + 2, sM + 3, sM + 4
    m2 = sM + 6
    I(f"s_mov_b32 s{cM}, 85599")
    I(f"s_mov_b32 s{cN}, {-BN & 0xffffffff}")
    I(f"s_movk_i32 s{cP}, 5368")
    I(f"s_mov_b32 s{cPM}, {opt('phm', 3) << 26:#x}")
    I(f"s_mov_b32 s{cR}, {RS}")
    for i in range(4): I(f"v_add_u32 v{vID+i}, {i}, v{u(3)}")
    I(f"s_lshl_b32 s{sA}, s{sWP}, 28")
    I(f"s_or_b32 s{sA}, s{sA}, 0x20000")
    I(f"v_mov_b32 v{vIC}, s{sA}")
    I(f"v_or_b32 v{vIC+1}, 0x80000000, v{vIC}")
    I(f"v_mov_b32 v{one}, 33")
    I(f"s_sub_u32 s{sBt}, s{sBt}, 0x2000")
    I(f"v_cmp_gt_u32 {sp(m2)}, s{sBt}, v{vT16}")
    I(f"s_and_b32 s{sA}, s{sWP}, 3")
    I(f"s_lshr_b32 s{sW}, s{sWP}, 2")
    I(f"s_lshl1_add_u32 s{sW}, s{sA}, s{sW}")
    if opt("swp", 1): I(f"s_xor_b32 s{sW}, s{sW}, 1")
    I(f"s_mul_i32 s{sA}, s{sW}, 49")
    I(f"s_sub_i32 s{sA}, s{sA}, 6")
    I(f"s_ashr_i32 s{sA}, s{sA}, 1")
    I(f"s_max_i32 s{sWIN}, s{sA}, 0")
    I(f"s_mul_i32 s{sSTG}, s{sW}, {SLOT}")
    I(f"s_add_u32 s{sSTG}, s{sSTG}, {XSTG}")
    I(f"s_lshl_b32 s{sES}, s{sW}, 10")
    I(f"s_add_u32 s{sES}, s{sES}, {ESTG}")
    I(f"s_mul_i32 s{sL}, s{sW}, {2*LWB}")
    I(f"s_add_u32 s{sL}, s{sL}, {R0}")
    I(f"s_movk_i32 s{s128}, 128")
    I(f"v_bfe_u32 v{u(6)}, v{tid}, 4, 4")
    I(f"v_and_b32 v{u(7)}, 7, v{tid}")
    I(f"v_cmp_eq_u32 vcc, v{u(6)}, v{u(7)}")
    I(f"v_and_b32 v{u(6)}, 8, v{tid}")
    I(f"v_lshlrev_b32 v{u(6)}, 1, v{u(6)}")
    I(f"v_mov_b32 v{u(8)}, 0x3f80")
    I(f"v_lshlrev_b32 v{u(8)}, v{u(6)}, v{u(8)}")
    I(f"v_cndmask_b32 v{u(8)}, 0, v{u(8)}, vcc")
    I(f"ds_write_b32 v{u(4)}, v{u(8)} offset:{TAB}")
    I(f"v_mov_b64 {rr(u(8),2)}, 0")
    I(f"ds_write_b64 v{u(2)}, {rr(u(8),2)} offset:{HIST}")
    I(f"v_add_u32 v{u(6)}, {PRG}, v{u(4)}")
    I(f"ds_write_b32 v{u(6)}, v{u(8)}")
    go, lo, lo2, ha = vR, vR + 1, vR + 2, vR + 3
    wl, wal = vR + 4, vR + 5
    I(f"v_lshrrev_b32 v{ha}, 3, v{tid}")
    I(f"v_mad_u32_u24 v{go}, v{ha}, s{cR}, v{vCP}")
    I(f"v_mul_u32_u24 v{wl}, {LROW}, v{ha}")
    I(f"v_add_u32 v{lo}, v{wl}, v{vCP}")
    I(f"v_add_u32 v{lo}, {CIMG}, v{lo}")
    assert LROW == WR
    I(f"v_bfe_u32 v{u(6)}, v{tid}, 5, 1")
    I(f"v_bfe_u32 v{u(8)}, v{tid}, 6, 1")
    I(f"v_sub_u32 v{u(6)}, v{u(6)}, v{u(8)}")
    I(f"v_mul_i32_i24 v{u(6)}, {4*WR}, v{u(6)}")
    I(f"v_add_u32 v{wl}, v{wl}, v{u(6)}")
    I(f"v_lshl_add_u32 v{wl}, v{u(7)}, 2, v{wl}")
    I(f"v_add_u32 v{wl}, {WBI}, v{wl}")
    I(f"v_lshlrev_b32 v{l16}, 4, v{lane}")
    I(f"v_and_b32 v{vCH}, 1, v{lane}")
    I(f"v_lshlrev_b32 v{vCH}, 4, v{vCH}")
    I(f"s_bitcmp1_b32 s{sW}, 0")
    I(f"s_cselect_b32 s{sA}, 1, -1")
    I(f"s_lshl_b32 s{sA}, s{sA}, 24")
    I(f"s_or_b32 s{sA}, s{sA}, 0xdddd")
    I(f"v_mov_b32 v{vIDX}, s{sA}")
    I(f"v_and_b32 v{vcEO}, 16, v{lane}")
    I(f"v_and_b32 v{u(6)}, 15, v{lane}")
    I(f"v_lshl_add_u32 v{u(6)}, v{u(6)}, 5, s{sES}")
    I("s_mov_b32 exec_hi, 0")
    I(f"v_add_u32 v{vcEO}, v{vcEO}, v{u(6)}")
    I("s_mov_b32 exec_hi, -1")
    I(f"v_and_b32 v{u(6)}, 3, v{lane}")
    I(f"v_lshlrev_b32 v{vcS}, 3, v{u(6)}")
    I(f"v_bfe_u32 v{u(8)}, v{lane}, 2, 2")
    I(f"v_and_b32 v{u(9)}, 48, v{lane}")
    I(f"v_lshl_add_u32 v{u(10)}, v{u(8)}, 7, v{u(9)}")
    I(f"v_mul_u32_u24 v{vAX}, {XI}, v{u(6)}")
    I(f"v_add3_u32 v{vAX}, v{vAX}, v{u(10)}, s{sSTG}")
    I(f"v_bfe_u32 v{u(9)}, v{lane}, 2, 3")
    I(f"v_lshrrev_b32 v{u(8)}, 5, v{lane}")
    I(f"v_lshl_add_u32 v{u(9)}, v{u(8)}, 4, v{u(9)}")
    I(f"v_mul_u32_u24 v{wal}, {WR}, v{u(9)}")
    I(f"v_add_u32 v{wal}, v{wal}, v{vcS}")
    listaddr(u(6))
    def rank_a(rs):
        for i in rs: I(f"v_mul_u32_u24 v{vBK+i}, s{cM}, v{vD+i}")
        for i in rs: I(f"v_lshrrev_b32 v{vBK+i}, 24, v{vBK+i}")
        for i in rs:
            I(f"v_lshlrev_b32 v{vHA+i}, 2, v{vBK+i}")
            I(f"ds_add_rtn_u32 v{vRK1+i}, v{vHA+i}, v{one} offset:{HIST1}")
    def rank_b(rs):
        for i in rs:
            I(f"v_mad_i32_i24 v{vD+i}, v{vBK+i}, s{cN}, v{vD+i}")
            I(f"v_mul_u32_u24 v{u(6)}, s{cP}, v{vSR+i}")
            I(f"v_lshl_or_b32 v{vSR+i}, v{vD+i}, 18, v{vSR+i}")
            I(f"v_and_or_b32 v{u(6)}, v{u(6)}, s{cPM}, v{vIC+(i>>2)}")
            I(f"v_mad_u32_u24 v{vD+i}, v{vBK+i}, {LROW//4}, s{cN+4}")
            I(f"v_or_b32 v{vSR+i}, v{vSR+i}, v{u(6)}")
    def place(i, wait, em):
        I(f"s_waitcnt lgkmcnt({wait})")
        I(f"v_bfe_u32 v{u(6)}, v{vRK1+i}, 3, 5")
        I(f"v_add_lshl_u32 v{vD+i}, v{u(6)}, v{vD+i}, 2")
        I(f"v_and_b32 v{u(6)}, 3, v{u(6)}")
        I(f"v_mad_i32_i24 v{u(6)}, v{u(6)}, -3, v{vD+i}")
        I(f"v_cmpx_gt_u32 vcc, {33*CAP}, v{vRK1+i}")
        I(f"ds_write_b32 v{vD+i}, v{vSR+i}")
        I(f"ds_write_b8 v{u(6)}, v{vID+(i&3)} offset:12")
        I(f"s_mov_b64 exec, {em}")
    I(f"s_movk_i32 s{cN+4}, {CIMG//4}")
    for d in range(2): I(f"v_mov_b64 {rr(vRK1+4+2*d,2)}, 0")
    I("s_waitcnt lgkmcnt(0)")
    I("s_barrier")
    vTG = vS + 2
    I(f"s_add_u32 s{sK}, s{sK}, {KINC:#x}")
    I(f"v_lshlrev_b32 v{vTG}, v{vcS}, s{sK}")
    I(f"v_and_b32 v{u(6)}, 4, v{lane}")
    I(f"v_mul_u32_u24 v{u(6)}, {37 << 15}, v{u(6)}")
    I(f"v_lshl_add_u32 v{vTG}, v{u(6)}, 8, v{vTG}")
    I(f"v_and_b32 v{vTG}, 0xfe000000, v{vTG}")
    I(f"s_cmp_ge_u32 s{sWP}, 5")
    I("s_cbranch_scc1 L_R4")
    I("s_waitcnt vmcnt(3)")
    stamp(1)
    rank_a(range(4))
    I("s_waitcnt vmcnt(1)")
    I(f"s_mov_b64 exec, {sp(m2)}")
    rank_a(range(4, 8))
    I("s_mov_b64 exec, -1")
    rank_b(range(4))
    for i in range(4): place(i, 7 + i, "-1" if i < 3 else sp(m2))
    I("s_waitcnt vmcnt(0)")
    rank_b(range(4, 8))
    for i in range(4, 8): place(i, 7 + i, sp(m2) if i < 7 else "-1")
    I("s_branch L_B1")
    L("L_R4")
    I("s_waitcnt vmcnt(1)")
    if TS: STN.pop()
    stamp(1)
    rank_a(range(4))
    I("s_waitcnt vmcnt(0)")
    rank_b(range(4))
    for i in range(4): place(i, 3 + i, "-1")
    L("L_B1")
    I(f"v_max3_u32 v{u(6)}, v{vRK1}, v{vRK1+1}, v{vRK1+2}")
    I(f"v_max3_u32 v{u(7)}, v{vRK1+3}, v{vRK1+4}, v{vRK1+5}")
    I(f"v_max3_u32 v{u(6)}, v{u(6)}, v{vRK1+6}, v{vRK1+7}")
    I(f"v_max_u32 v{u(6)}, v{u(6)}, v{u(7)}")
    I(f"v_cmp_le_u32 vcc, {33*CAP}, v{u(6)}")
    I("s_cbranch_vccnz L_PEXT")
    L("L_PEXTR")
    w_loads()
    I("s_waitcnt lgkmcnt(0)")
    I("s_barrier")
    stamp(2)
    vO, vHS = vQ, u(4)
    I(f"ds_read_b128 {rr(vHS,4)}, v{l16} offset:{HIST1}")
    for i in range(4):
        I(f"ds_read_b128 {rr(vO+4*i,4)}, v{lo} offset:{64*LROW*i}")
    for i in range(1, 4): I(f"s_mov_b32 s{sM+15+i}, {64*RS*i}")
    I("s_waitcnt lgkmcnt(4)")
    I(f"v_max3_u32 v{u(0)}, v{vHS}, v{vHS+1}, v{vHS+2}")
    I(f"v_max_u32 v{u(0)}, v{u(0)}, v{vHS+3}")
    I(f"v_cmp_lt_u32 vcc, {33*(CAP+8)}, v{u(0)}")
    I("s_cbranch_vccnz L_POVF")
    L("L_POUT")
    for i in range(4):
        I(f"s_waitcnt lgkmcnt({3 - i})")
        I(f"v_or_b32 v{vO+4*i+3}, v{vO+4*i+3}, v{vTG}")
        I(f"buffer_store_dwordx4 {rr(vO+4*i,4)}, v{go}, {sq(sCEL)}, {f's{sM+15+i}' if i else '0'} offen{pol(STP)}")
    stamp(3)
    if "c" in opt("tsx", ""): I("s_waitcnt vmcnt(0)")
    stamp("c0")
    t = vACC
    I(f"s_mov_b32 s{sA}, {f2u(-LOG2E):#x}")
    I(f"s_mov_b32 s{sBt}, s{sA}")
    I(f"s_mov_b32 s{cM}, 0x05040100")
    I(f"s_mov_b32 s{cP}, 0x07060302")
    def wscaled(src, off):
        for d in range(4):
            I(f"v_lshlrev_b32 v{t+2*d}, 16, v{src+d}")
            I(f"v_and_b32 v{t+2*d+1}, 0xffff0000, v{src+d}")
        for d in range(4): I(f"v_pk_mul_f32 {rr(t+2*d,2)}, {rr(t+2*d,2)}, {sp(sA)}")
        for n in range(4): I(f"v_cvt_pk_bf16_f32 v{t+8+n}, v{t+n}, v{t+4+n}")
        wput(t + 8, off)
    def wplain(src, off, tt):
        for n in range(4): I(f"v_perm_b32 v{tt+n}, v{src+2+(n>>1)}, v{src+(n>>1)}, s{cP if n & 1 else cM}")
        wput(tt, off)
    def wput(r, off):
        a = wl
        if off:
            a = r + 4
            I(f"v_add_u32 v{a}, {off}, v{wl}")
        I(f"ds_write2_b32 v{a}, v{r}, v{r+1} offset0:0 offset1:8")
        I(f"ds_write2_b32 v{a}, v{r+2}, v{r+3} offset0:16 offset1:24")
    I("s_waitcnt vmcnt(4)")
    if OLP == 0: own_loads()
    stamp("b4")
    wplain(vRW + 8, WAI - WBI, t + 16)
    wscaled(vRW, 0)
    wplain(vRW + 4, WVI - WBI, t + 24)
    I(f"s_cmp_ge_u32 s{sWP}, 2")
    I("s_cbranch_scc1 L_NOWC")
    wscaled(vEO, WCI - WBI)
    L("L_NOWC")
    I(f"s_mul_i32 s{sTM}, s{sB}, {RS}")
    I(f"s_add_u32 s{sTM}, s{sTM}, {WS_CELL}")
    srd(sCEL, pWS, 256*128, f"s{sTM}")
    I(f"s_add_u32 s{sTM}, s{sTM}, {256*RS}")
    srd(sD2, pWS, 256*128, f"s{sTM}")
    vC, vEB = vACC + 32, vACC + 60
    pa = vT16
    for k in (1, 2, 3): I(f"s_movk_i32 s{sCI+k-1}, {8192*k}")
    def poll_load(i):
        so = "0" if i == 0 else f"s{sCI+i-1}"
        I(f"buffer_load_dwordx4 {rr(vC+4*i,4)}, v{pa}, {sq(sCEL)}, {so} offen sc1")
    I("s_waitcnt lgkmcnt(0)")
    if OLP == 1: own_loads()
    I("s_barrier")
    stamp(4)
    if OLP >= 2: own_loads()
    vWA = vACC
    I(f"v_add_u32 v{wal}, {WBI}, v{wal}")
    def trw(reg, img):
        return [f"ds_read_b64_tr_b16 {rr(reg+8*n+4*s+2*uu,2)}, v{wal} offset:{img + (32*s + 8*uu)*WR + 32*n}"
                for n in range(4) for s in range(2) for uu in range(2)]
    tw = trw(vWA, WAI - WBI) + trw(vWB, 0) + trw(vWV, WVI - WBI)
    for x_ in tw[:14]: I(x_)
    prefill(vCA + 16)
    for x_ in tw[14:32]: I(x_)
    nxt = 32
    I(f"v_subrev_u32 v{u(6)}, s{sSTG}, v{vAX}")
    I(f"s_movk_i32 s{sTM}, {(PL-XI)//8}")
    I(f"v_mad_u32_u24 v{u(6)}, v{vcS}, s{sTM}, v{u(6)}")
    I(f"v_add_u32 v{u(6)}, s{sOW}, v{u(6)}")
    I(f"v_and_b32 v{u(4)}, 15, v{lane}")
    I(f"v_mul_u32_u24 v{u(4)}, {AR}, v{u(4)}")
    I(f"v_lshrrev_b32 v{u(5)}, 4, v{lane}")
    I(f"v_lshl_add_u32 v{u(4)}, v{u(5)}, 3, v{u(4)}")
    I(f"s_mul_i32 s{sTM}, s{sWP}, {32*AR}")
    I(f"s_add_u32 s{sTM}, s{sTM}, {ATAB}")
    I(f"v_add_u32 v{u(4)}, s{sTM}, v{u(4)}")
    vEM, vET = vEO, vACC + 56
    ownn, owna, mapa = vEO + 1, vEO + 2, vEO + 3
    cab, cal = vEO + 4, vEO + 5
    I(f"v_mul_u32_u24 v{vEB}, {CH}, v{ha}")
    for i in range(1, 4): I(f"v_add_u32 v{vEB+i}, {64*i*CH}, v{vEB}")
    I(f"s_mov_b32 s{sEM}, {EMASK:#x}")
    I(f"s_mov_b32 s{sEM+1}, {EMASK:#x}")
    I(f"v_mov_b32 v{u(3)}, 0xfffff")
    I(f"v_cndmask_b32 v{vEM}, 0, v{u(3)}, {sp(sEM)}")
    I(f"v_and_b32 v{u(3)}, -32, v{pa}")
    I(f"v_lshlrev_b32 v{u(3)}, 16, v{u(3)}")
    for i in range(4):
        I(f"v_add_u32 v{vET+i}, {(EARLY + 8192*i) << 16:#x}, v{u(3)}")
        I(f"v_cndmask_b32 v{vET+i}, 0, v{vET+i}, {sp(sEM)}")
    I(f"v_mov_b32 v{one}, 4")
    I(f"v_and_b32 v{ownn}, 31, v{lane}")
    I(f"v_add_lshl_u32 v{mapa}, v{ownn}, s{sWIN}, 2")
    I(f"v_lshrrev_b32 v{u(3)}, 5, v{lane}")
    I(f"v_lshl_add_u32 v{owna}, v{u(3)}, 11, v{mapa}")
    I(f"v_add_u32 v{mapa}, {MAP}, v{mapa}")
    I(f"v_and_b32 v{cal}, 16, v{lane}")
    I(f"v_lshrrev_b32 v{cal}, 1, v{cal}")
    I(f"v_bfe_u32 v{u(3)}, v{lane}, 2, 2")
    I(f"v_add_u32 v{cal}, v{cal}, v{u(3)}")
    I(f"v_add_u32 v{cab}, {ATAB}, v{vcS}")
    I("s_waitcnt lgkmcnt(4)")
    for x_ in tw[nxt:]: I(x_)
    I(f"s_movk_i32 s{sFM}, 0xffc")
    I(f"s_movk_i32 s{sSKIP}, {CAP+8}")
    I(f"s_mov_b32 s{sXT}, 0")
    I(f"s_mov_b32 s{sSP}, 0")
    I(f"s_mov_b32 s{sT}, 0x1ffffff")
    I(f"s_mov_b32 s{sN}, 0xffff")
    lo0, hi0, lo1, hi1 = sWS0, sWS1, sB0E, sSH
    I(f"s_mul_i32 s10, s{sW}, 49")
    I(f"s_sub_i32 s{lo0}, s10, 6")
    I(f"s_ashr_i32 s{lo0}, s{lo0}, 1")
    I(f"s_add_i32 s{hi0}, s10, 7")
    I(f"s_ashr_i32 s{hi0}, s{hi0}, 1")
    I(f"s_add_i32 s{lo1}, s10, 43")
    I(f"s_ashr_i32 s{lo1}, s{lo1}, 1")
    I(f"s_add_i32 s{hi1}, s{lo0}, 31")
    I(f"s_cmp_eq_u32 s{sW}, 7")
    I(f"s_cselect_b32 s{lo1}, {BN}, s{lo1}")
    I(f"s_cselect_b32 s{hi1}, {BN}, s{hi1}")
    stamp("b0")
    I(f"s_waitcnt vmcnt({1 if PF else 0})")
    stamp("b1")
    PP = opt("pp", 2)
    for k in range(2):
        for s in range(2): I(f"ds_read_b128 {rr(vX+8*k+4*s,4)}, v{u(6)} offset:{512*k + 64*s}")
    wplain(vRU, WUI - WBI, vCA + 16)
    if PP == 0:
        for i in range(4): poll_load(i)
    I(f"s_mov_b32 s{sA}, {f2u(-LOG2E):#x}")
    I(f"s_mov_b32 s{sBt}, s{sA}")
    I(f"s_cmp_eq_u32 s{sWP}, 7")
    I("s_cbranch_scc1 L_NOA")
    I("s_waitcnt lgkmcnt(2)")
    for k in range(2):
        for s in range(2):
            for n in range(4):
                D = (vQ if k == 0 else vCA) + 4*n
                I(m16(D, vWA+8*n+4*s, vX+8*k+4*s, D if s else None))
    for k in range(2):
        D = vQ if k == 0 else vCA
        if k:
            I(f"s_cmp_eq_u32 s{sWP}, 6")
            I("s_cbranch_scc1 L_NOA")
        for i in range(8): I(f"v_pk_mul_f32 {rr(D+2*i,2)}, {rr(D+2*i,2)}, {sp(sA)}")
        for i in range(8): I(f"v_cvt_pk_bf16_f32 v{D+i}, v{D+2*i}, v{D+2*i+1}")
        for n in range(4): I(f"ds_write_b64 v{u(4)}, {rr(D+2*n,2)} offset:{16*AR*k + 32*n}")
    L("L_NOA")
    if PP == 2:
        for i in range(4): poll_load(i)
    stamp(5)
    vA, vRK, vR1 = vACC, vACC + 16, vQ
    mk = lambda i, j: sM + 2*(4*i + j)
    def rec_ops(d, x, byte, eb, a, r1, keep=None):
        e_ = r1 if keep is None else keep
        return [f"v_add_u32_sdwa v{e_}, v{x}, v{eb} {SDW} src0_sel:BYTE_{byte} src1_sel:DWORD",
                f"v_lshrrev_b32 v{u(1)}, 28, v{d}",
                f"v_lshl_add_u32 v{e_}, v{u(1)}, 8, v{e_}",
                f"v_and_b32 v{u(1)}, 60, v{a}",
                f"v_lshl_add_u32 v{r1}, v{u(1)}, 19, v{e_}"]
    for i in range(4):
        c_ = vC + 4*i
        L(f"L_PW{i}")
        I(f"s_waitcnt vmcnt({3 - i})")
        I(f"v_xor_b32 v{u(0)}, v{c_+3}, v{vTG}")
        for j in range(3): I(f"v_and_b32_sdwa v{vA+4*i+j}, v{c_+j}, s{sFM} {SDW} src0_sel:WORD_1 src1_sel:DWORD")
        I(f"v_cmp_lt_u32 vcc, s{sT}, v{u(0)}")
        for j in range(3): I(f"v_cmp_ne_u32 {sp(mk(i,j))}, 0, v{c_+j}")
        I(f"s_cbranch_vccnz L_RT{i}")
        if i == 3: stamp(6)
        for j in range(3):
            I(f"s_mov_b64 exec, {sp(mk(i,j))}")
            I(f"ds_add_rtn_u32 v{vRK+4*i+j}, v{vA+4*i+j}, v{one} offset:{HIST}")
        I("s_mov_b64 exec, -1")
        if i == 3:
            I(f"v_or3_b32 v{u(2)}, v{vC+3}, v{vC+7}, v{vC+11}")
            I(f"v_or_b32 v{u(2)}, v{u(2)}, v{vC+15}")
            I(f"v_and_b32 v{u(2)}, 0x1000000, v{u(2)}")
            I(f"v_cmp_ne_u32 vcc, 0, v{u(2)}")
            I("s_cbranch_vccnz L_XT1")
            L("L_XT1R")
        for j in range(3):
            put(rec_ops(c_+j, c_+3, j, vEB+i, vA+4*i+j, vR1+4*i+j, vR1+4*i+3 if j == 0 and JE else None))
    fill = []
    for i in range(4):
        fill += [f"v_and_or_b32 v{vC+4*i}, v{vC+4*i}, s{sN}, v{vET+i}", f"v_or_b32 v{vR1+4*i}, v{vR1+4*i}, v{vEM}"]
        fill += [f"v_and_b32 v{vC+4*i+j}, s{sN}, v{vC+4*i+j}" for j in (1, 2)]
    I(f"v_mov_b32 v{u(9)}, {FLAG}")
    I("s_waitcnt lgkmcnt(0)")
    stamp("d0")
    I("s_barrier")
    stamp(7)
    def early(i):
        if not JE: return
        I(f"v_mov_b32_dpp v{vEI}, v{vR1+4*i+3} quad_perm:[1,1,3,3] row_mask:0xf bank_mask:0xf")
        I(f"s_lshl_b32 m0, s{sWP}, 10")
        I(f"s_and_b64 vcc, {sp(mk(i,0))}, {sp(sEM)}")
        I(f"s_add_u32 m0, m0, {EARLY + 8192*i}")
        I("s_lshr_b64 exec, vcc, 1")
        I("s_or_b64 exec, exec, vcc")
        I(f"buffer_load_dwordx4 {rr(vEI,2)}, {sq(sEP)}, 0 idxen offen{pol(EP)} lds")
        I("s_mov_b64 exec, -1")
    EPOS = opt("epos", "0123")
    def epoint(k):
        for i in range(4):
            if int(EPOS[i]) == k: early(i)
    c, p, tot, sc = u(0), u(4), u(8), u(9)
    hh = vX
    own, to2, ex, z_, eh, el = u(10), u(11), u(12), u(13), u(14), u(15)
    SD = f"{SDW} src0_sel:WORD_0 src1_sel:WORD_0"
    HL = f"{SDW} src0_sel:WORD_0 src1_sel:WORD_1"
    I(f"ds_read_u16 v{own}, v{owna} offset:{HIST}")
    I(f"ds_read_u16 v{to2}, v{owna} offset:{HIST + 1024}")
    for ph in range(4):
        I(f"ds_read_b128 {rr(hh+4*ph,4)}, v{l16} offset:{HIST + 1024*ph}")
    I(f"ds_read_b32 v{vQD}, v{sc} offset:8")
    epoint(0)
    I("s_cmp_lg_u32 s2, 0")
    I("s_cbranch_scc1 L_NOK")
    I(f"v_mov_b32 v{vQD+1}, s{sK}")
    I(f"v_mov_b32 v{vQD+2}, 0")
    I(f"buffer_store_dword v{vQD+1}, v{vQD+2}, {sq(sWS)}, 0 offen sc1")
    L("L_NOK")
    I("s_waitcnt lgkmcnt(5)")
    I(f"v_lshl_or_b32 v{own}, v{to2}, 16, v{own}")
    I(f"v_mov_b32 v{to2}, v{own}")
    I("s_waitcnt lgkmcnt(0)")
    stamp("d1")
    f2 = []
    for i in range(4):
        f2 += [f"v_add_u32_sdwa v{c+i}, v{hh+i}, v{hh+4+i} {SD}", f"v_add_u32_sdwa v{p+i}, v{hh+8+i}, v{hh+12+i} {SD}"]
    f2 += [f"v_add_u32 v{c+i}, v{c+i}, v{p+i}" for i in range(4)]
    wave_scan(to2, f2, half=True)
    put(f2)
    I(f"v_add_u32 v{p+1}, v{c}, v{c+1}")
    I(f"v_add_u32 v{p+2}, v{p+1}, v{c+2}")
    I(f"v_add_u32 v{p+3}, v{p+2}, v{c+3}")
    I(f"v_mov_b32 v{tot}, v{p+3}")
    f2 = [f"v_sub_u32 v{ex}, v{to2}, v{own}", f"v_add_u32_sdwa v{eh}, v{to2}, v{to2} {HL}",
          f"v_add_u32_sdwa v{z_}, v{ex}, v{ex} {HL}", f"v_add_u32_sdwa v{el}, v{own}, v{own} {HL}",
          f"v_add_u32 v{c+1}, v{c}, v{p+1}", f"v_add_u32 v{c+2}, v{p+1}, v{p+2}",
          f"v_permlane32_swap_b32 v{z_}, v{eh}", f"v_add_u32 v{c+3}, v{p+2}, v{p+3}",
          f"v_add_u32 v{z_}, v{z_}, v{eh}",
          f"v_cndmask_b32 v{el}, 0, v{el}, {sp(sJ3)}",
          f"v_add_u32 v{eh}, v{z_}, v{el}",
          f"v_readfirstlane_b32 s{sMORE}, v{vQD}"]
    I(f"s_mov_b32 s{sJ3}, -1")
    I(f"s_mov_b32 s{sJ3+1}, 0")
    wave_scan(tot, f2)
    assert not f2
    stamp("d2")
    epoint(1)
    I(f"v_sub_u32 v{p}, v{tot}, v{p+3}")
    I(f"v_readlane_b32 s10, v{tot}, 63")
    I(f"v_sub_u32_sdwa v{el}, v{eh}, v{own} {SDW} src0_sel:DWORD src1_sel:WORD_1")
    for i in range(4):
        I(f"v_lshl_add_u32 v{c+i}, v{p}, 1, v{c+i}")
    ASYM = opt("asym", 16)
    I("s_lshr_b32 s11, s10, 5")
    I(f"s_add_u32 s11, s11, {ASYM}")
    I("s_and_b32 s11, s11, -32")
    I(f"s_sub_i32 s11, s11, {ASYM}")
    I("s_lshl_b32 s11, s11, 3")
    I("s_lshr_b32 s10, s10, 1")
    I(f"s_lshr_b32 s{sF0}, s{sW}, 1")
    I(f"s_mul_i32 s{sF0}, s{sF0}, s10")
    I(f"s_add_i32 s11, s11, s{sF0}")
    I(f"s_add_i32 s10, s10, s{sF0}")
    I(f"s_bitcmp1_b32 s{sW}, 0")
    I(f"s_cselect_b32 s{sEND}, s11, s{sF0}")
    I("s_cselect_b32 s10, s10, s11")
    I(f"s_mov_b32 s{sF0}, 0")
    I(f"s_mov_b32 s{sF1}, 0")
    for i in range(4):
        I(f"v_cmp_gt_i32 vcc, s{sEND}, v{c+i}")
        I(f"v_cmp_gt_i32 {sp(sTM)}, s10, v{c+i}")
        I("s_bcnt1_i32_b64 s11, vcc")
        I(f"s_add_u32 s{sF0}, s{sF0}, s11")
        I(f"s_bcnt1_i32_b64 s11, {sp(sTM)}")
        I(f"s_add_u32 s{sF1}, s{sF1}, s11")
    I(f"s_max_i32 s{sF0}, s{sF0}, s{lo0}")
    I(f"s_min_i32 s{sF0}, s{sF0}, s{hi0}")
    I(f"s_max_i32 s{sF1}, s{sF1}, s{lo1}")
    I(f"s_min_i32 s{sF1}, s{sF1}, s{hi1}")
    stamp("d3")
    epoint(2)
    f0, f1 = sWS0, sWS1
    A01, A23, E01, E23, Z1 = sCI, sCUR, sR0, sCNT, sST
    I(f"s_sub_u32 s{f0}, s{sF0}, s{sWIN}")
    I(f"s_sub_u32 s{f1}, s{sF1}, s{sWIN}")
    I(f"v_readlane_b32 s{sT}, v{z_}, s{f0}")
    I(f"v_readlane_b32 s{Z1}, v{z_}, s{f1}")
    I(f"s_add_u32 s10, s{f0}, 32")
    I(f"s_add_u32 s11, s{f1}, 32")
    I(f"v_readlane_b32 s{A01}, v{ex}, s{f0}")
    I(f"v_readlane_b32 s{E01}, v{ex}, s{f1}")
    I(f"v_readlane_b32 s{A23}, v{ex}, s10")
    I(f"v_readlane_b32 s{E23}, v{ex}, s11")
    I(f"s_sub_u32 s{sEND}, s{Z1}, s{sT}")
    I(f"s_add_u32 s10, s{sEND}, 255")
    I("s_lshr_b32 s10, s10, 8")
    I("s_lshl_b32 s10, s10, 7")
    I(f"s_sub_u32 s10, s10, s{sMORE}")
    I("s_max_i32 s10, s10, 0")
    I(f"s_add_u32 s{sT}, s{sT}, s10")
    I(f"s_add_u32 s10, s{f0}, 16")
    I(f"s_min_u32 s10, s10, s{f1}")
    I(f"s_sub_i32 s11, s{f1}, 16")
    inl, inh, mo = sTM, sTM + 2, sMSK
    I(f"v_cmp_ge_u32 {sp(inl)}, s{sT}, v{el}")
    I(f"v_cmp_ge_u32 {sp(inh)}, s{sT}, v{eh}")
    I(f"v_cmp_gt_i32 vcc, s10, v{ownn}")
    I(f"v_cmp_gt_i32 {sp(sA)}, s11, v{ownn}")
    I(f"v_cmp_le_u32 {sp(mo)}, s{f0}, v{ownn}")
    I(f"v_cmp_gt_u32 {sp(sJ3)}, s{f1}, v{ownn}")
    I(f"s_and_b64 {sp(inl)}, {sp(inl)}, vcc")
    I(f"s_and_b64 {sp(inh)}, {sp(inh)}, vcc")
    I(f"s_or_b64 {sp(inl)}, {sp(inl)}, {sp(sA)}")
    I(f"s_or_b64 {sp(inh)}, {sp(inh)}, {sp(sA)}")
    I(f"s_bcnt1_i32_b32 s{sB0E}, s{inl}")
    I(f"s_bcnt1_i32_b32 s10, s{inh}")
    I(f"s_bcnt1_i32_b32 s11, s{inl+1}")
    I(f"s_bcnt1_i32_b32 s{sSH}, s{inh+1}")
    I(f"v_readlane_b32 s{f0}, v{ex}, s{sB0E}")
    I(f"v_readlane_b32 s10, v{ex}, s10")
    I("s_add_u32 s11, s11, 32")
    I(f"s_add_u32 s{sT}, s{sSH}, 32")
    I(f"v_readlane_b32 s{f1}, v{ex}, s11")
    I(f"v_readlane_b32 s11, v{ex}, s{sT}")
    I(f"v_mov_b32 v{c}, s{sN}")
    I(f"v_cndmask_b32 v{c+1}, 0, v{c}, {sp(inl)}")
    I(f"v_cndmask_b32 v{c}, 0, v{c}, {sp(inh)}")
    I(f"s_and_b64 {sp(mo)}, {sp(mo)}, {sp(sJ3)}")
    Q01, Q23 = f0, f1
    I(f"s_pack_lh_b32_b16 s{Q01}, s{f0}, s10")
    I(f"s_pack_lh_b32_b16 s{Q23}, s{f1}, s11")
    I(f"v_lshl_or_b32 v{c}, v{c}, 16, v{c+1}")
    I(f"s_sub_u32 s{sT}, s{sL}, {R0 - BIAS}")
    I(f"s_pack_ll_b32_b16 s{sT}, s{sT}, s{sT}")
    def bases(lo01, lo23, hi01, hi23, d, keep=None):
        I(f"s_sub_u32 s10, s{hi01}, s{lo01}")
        I(f"s_sub_u32 s11, s{hi23}, s{lo23}")
        I(f"s_mul_i32 s10, s10, 0x10001")
        I(f"s_lshl_b32 vcc_lo, s10, 16")
        I(f"s_pack_hh_b32_b16 s10, s10, s10")
        I(f"s_lshl_b32 vcc_hi, s11, 16")
        I(f"s_add_u32 vcc_hi, vcc_hi, s10")
        if keep is not None:
            I(f"s_add_u32 s{keep}, vcc_hi, s11")
            I(f"s_lshr_b32 s{keep}, s{keep}, 16")
        I(f"s_sub_u32 s10, s{sT}, s{lo01}")
        I(f"s_sub_u32 s11, s{sT}, s{lo23}")
        I("s_add_u32 s10, s10, vcc_lo")
        I("s_add_u32 s11, s11, vcc_hi")
        I(f"v_mov_b32 v{d}, s10")
        I(f"v_mov_b32 v{d+1}, s11")
    LEN0 = sJ3
    bases(A01, A23, Q01, Q23, p, LEN0)
    I(f"s_add_u32 s{sT}, s{sT}, {LWB * 0x10001:#x}")
    bases(Q01, Q23, E01, E23, p + 2)
    I(f"v_bfi_b32 v{p}, v{c}, v{p}, v{p+2}")
    I(f"v_bfi_b32 v{p+1}, v{c}, v{p+1}, v{p+3}")
    I(f"s_mov_b32 exec_hi, 0")
    I(f"v_mov_b32 v{p+1}, v{p}")
    I(f"s_mov_b64 exec, {sp(mo)}")
    I(f"v_add_u32 v{ex}, v{ex}, v{p+1}")
    I(f"s_lshl_b32 s10, s{sW}, 3")
    I(f"v_cndmask_b32 v{c}, 4, 0, {sp(inl)}")
    I(f"ds_write_b16 v{owna}, v{ex} offset:{HIST + 2}")
    I(f"ds_write_b16_d16_hi v{owna}, v{ex} offset:{HIST + 1024 + 2}")
    I("s_mov_b32 exec_hi, 0")
    I(f"v_add_u32 v{c}, s10, v{c}")
    I(f"ds_write_b32 v{mapa}, v{c}")
    I("s_mov_b64 exec, -1")
    stamp("d5")
    I(f"s_sub_u32 s{sEND}, s{sEND}, s{LEN0}")
    I(f"s_max_u32 s10, s{sEND}, s{LEN0}")
    I(f"s_add_u32 s10, s10, s{sMORE}")
    I(f"s_mul_i32 s11, s{Z1}, {LWB * 65536 // BIAS}")
    I("s_lshr_b32 s11, s11, 16")
    I("s_max_u32 s10, s10, s11")
    I(f"s_cmp_lt_u32 s10, {LWB}")
    I("s_cbranch_scc1 L_LFIT")
    I(f"ds_write_b32 v{sc}, v{one}")
    L("L_LFIT")
    I(f"s_cmp_lg_u32 s{sMORE}, 0")
    I("s_cbranch_scc1 L_XCN")
    L("L_XCNR")
    epoint(3)
    put(fill)
    I("s_waitcnt lgkmcnt(0)")
    stamp(8)
    I("s_barrier")
    stamp(9)
    I(f"ds_read_b64 {rr(u(14),2)}, v{sc}")
    for i in range(4):
        for j in range(3):
            I(f"ds_read_u16 v{vA+4*i+j}, v{vA+4*i+j} offset:{HIST + 2}")
    epoint(4)
    def ntiles(l0, l1):
        I(f"s_add_u32 s10, s{l0}, 127")
        I("s_lshr_b32 s10, s10, 7")
        I("s_lshl1_add_u32 s10, s10, -1")
        I(f"s_add_u32 s11, s{l1}, 127")
        I("s_lshr_b32 s11, s11, 6")
        I("s_and_b32 s11, s11, -2")
        I(f"s_max_i32 s{sN}, s10, s11")
    I(f"s_add_u32 s{sB0E}, s{sB0E}, s{sWIN}")
    I(f"s_add_u32 s{sSH}, s{sSH}, s{sWIN}")
    I(f"s_min_u32 s{sWS0}, s{sF0}, 192")
    I(f"s_min_u32 s{sWS1}, s{sSH}, 192")
    I(f"s_and_b32 s10, s{sSH}, 15")
    I(f"s_cmp_lt_u32 s{sSH}, s{sB0E}")
    I(f"s_cselect_b32 s{sSH}, s10, 16")
    I(f"s_mov_b32 s{sST}, s{sMORE}")
    I("s_waitcnt lgkmcnt(12)")
    I(f"v_cmp_ne_u32 vcc, 0, v{u(14)}")
    I(f"v_readfirstlane_b32 s{sMORE}, v{u(15)}")
    I("s_cbranch_vccnz L_OVF")
    for i in range(4):
        for j in range(3):
            s_ = 4*i + j
            I("s_waitcnt lgkmcnt(11)")
            I(f"v_add_u32 v{vA+s_}, v{vA+s_}, v{vRK+s_}")
            I(f"s_mov_b64 exec, {sp(mk(i,j))}")
            I(f"ds_write2st64_b32 v{vA+s_}, v{vC+s_}, v{vR1+s_} {W2}")
            I("s_mov_b64 exec, -1")
    ntiles(LEN0, sEND)
    stamp("d6")
    L("L_CA")
    I(f"s_cmp_lg_u32 s{sXT}, 0")
    I("s_cbranch_scc1 L_XT2")
    L("L_XT2R")
    I(f"s_movk_i32 s10, {AR}")
    cad = [u(0), u(1), u(2), u(3)]
    for w in range(2):
        ws = sWS0 + w
        for uu in range(2):
            d = cad[2*w+uu]
            I(f"s_sub_u32 s11, {4*uu}, s{ws}")
            I(f"v_add_u32 v{d}, s11, v{cal}")
            I(f"v_and_b32 v{d}, 15, v{d}")
            I(f"v_add_u32 v{d}, s{ws}, v{d}")
            I(f"v_mad_u32_u24 v{d}, v{d}, s10, v{cab}")
    I("s_mov_b32 exec_hi, 0")
    for k in range(4): I(f"v_add_u32 v{cad[k]}, {WCI - WBI + 8*(k&1)*WR}, v{wal}")
    I("s_mov_b32 exec_hi, -1")
    for w in range(2):
        for n in range(4):
            for uu in range(2): I(f"ds_read_b64_tr_b16 {rr(vCA+16*w+4*n+2*uu,2)}, v{cad[2*w+uu]} offset:{32*n}")
    stamp("d7")
    I("s_waitcnt vmcnt(0) lgkmcnt(0)")
    stamp(10)
    I("s_barrier")
    I(f"s_cmp_lg_u32 s{sST}, 0")
    I("s_cbranch_scc1 L_XT3")
    L("L_XT3R")
    I(f"s_mov_b32 s10, {f2u(1e-6):#x}")
    I(f"ds_read_b128 {rr(vQD,4)}, v{vARX}")
    I(f"ds_read_b32 v{vEI}, v{vARE}")
    stamp(11)
    I(f"v_lshrrev_b32 v{u(0)}, 2, v{lane}")
    I(f"v_and_b32 v{u(0)}, 12, v{u(0)}")
    I(f"v_subrev_u32 v{u(0)}, s{sSH}, v{u(0)}")
    I("s_waitcnt lgkmcnt(0)")
    put(dma_tile())
    I("s_mov_b32 s11, s10")
    I(f"v_mov_b32 v{u(1)}, s10")
    for i in range(8): I(f"v_mov_b64 {rr(DEN(0,0)+2*i,2)}, {sp(10)}")
    for i in range(4):
        I(f"v_cmp_ne_u32 vcc, {-i}, v{u(0)}")
        I(f"v_mov_b64 {rr(NUM(0,0)+4*i,2)}, 0")
        I(f"v_mov_b64 {rr(NUM(0,0)+4*i+2,2)}, 0")
        I(f"v_cndmask_b32 v{DEN(1,0)+i}, 0, v{u(1)}, vcc")
    for i in range(8): I(f"v_mov_b64 {rr(NUM(1,0)+2*i,2)}, 0")
    for n in range(1, 4):
        for i in range(2): I(f"v_mov_b64 {rr(DEN(1,n)+2*i,2)}, {rr(DEN(1,0)+2*i,2)}")
    I(f"s_mov_b32 s{sCI}, -1")
    I(f"s_mov_b64 {sp(sMSK)}, 0")
    I(f"s_mov_b32 s{sR0}, 0")
    I(f"s_mov_b32 s{sCNT}, 0")
    L("L_GO")
    for m in range(2): I(f"ds_read_u16 v{vEA+m}, v{vARO} offset:{64*m}")
    I(f"ds_read_b128 {rr(vQD,4)}, v{vARX} offset:{LWB}")
    I(f"ds_read_b32 v{vEI}, v{vARE} offset:{LWB}")
    I(f"s_lshr_b32 s10, s{sW}, 1")
    I("s_lshl_b32 s10, s10, 8")
    I(f"s_add_u32 s10, s10, {PRG}")
    I(f"v_lshl_add_u32 v{vPA}, v{lane}, 2, s10")
    I(f"s_bitcmp1_b32 s{sW}, 0")
    I(f"s_cselect_b32 s{sSG}, -1, 1")
    I(f"s_mul_i32 s10, s{sSG}, s{sN}")
    I("s_lshl_b32 s10, s10, 24")
    I(f"v_mov_b32 v{vQ}, s10")
    I(f"ds_add_u32 v{vPA}, v{vQ}")
    I(f"v_mov_b32 v{vC1}, 0")
    I("s_mov_b32 exec_hi, 0")
    I(f"v_add_u32 v{vC1}, 0x200, v{vcEO}")
    I("s_mov_b32 exec_hi, -1")
    for i in range(16): I(f"v_mov_b64 {rr(vQ+2*i,2)}, 0")
    for i in range(2): I(f"v_mov_b64 {rr(vS+2*i,2)}, 0")
    I("s_waitcnt lgkmcnt(0)")
    put(eafix())
    stamp(12)
    I("s_waitcnt vmcnt(0)")
    stamp(13)
    cstamp(56)
    for m in range(2): I(f"ds_read_b128 {rr(vEO+4*m,4)}, v{vEA+m}")
    for m, s in ORD: I(xread(m, s))
    I(f"s_cmp_lt_i32 s{sN}, 1")
    I("s_cbranch_scc1 L_DONE")
    g = g_mfmas(vP, 0, 0)
    I("s_waitcnt lgkmcnt(4)")
    for x_ in g[:4]: I(x_)
    I("s_waitcnt lgkmcnt(0)")
    for x_ in g[4:]: I(x_)
    put(dma_tile())
    I(f"s_mov_b32 s{sT}, 1")
    for cp in ((1, 0) if FAIR else (0,)):
        sw = lambda par: [f"s_cmp_ge_i32 s{sRM}, {opt('fth', 1)}", f"s_cbranch_scc{1-cp} L_PB{par}{1-cp}", f"L_PB{par}{cp}:"] if FAIR else []
        body = phase(0, 0, cp) + sw(0) + phase(0, 1, cp) + [f"s_cmp_gt_u32 s{sT}, s{sN}", "s_cbranch_scc1 L_TAIL0"]
        body += phase(1, 0, cp) + sw(1) + phase(1, 1, cp) + [f"s_cmp_le_u32 s{sT}, s{sN}", f"s_cbranch_scc1 L_LOOP{cp}"]
        check_body(body)
        if "nodma" in opt("dbg", ""): body = [b for b in body if not b.startswith("buffer_load")]
        emit(".p2align 6")
        L(f"L_LOOP{cp}")
        put(body)
        if cp: I("s_branch L_TAIL1")
    L("L_TAIL1")
    put(s_num(1, 1) + s_den(1, 1, vR))
    I("s_branch L_DONE")
    L("L_TAIL0")
    put(s_num(0, 1) + s_den(0, 1, vR))
    L("L_DONE")
    I(f"v_mbcnt_lo_u32_b32 v{lane}, -1, 0")
    I(f"v_mbcnt_hi_u32_b32 v{lane}, -1, v{lane}")
    I(f"s_cmp_lg_u32 s{sMORE}, 0")
    I("s_cbranch_scc1 L_SLOW")
    L("L_EPI")
    stamp(14)
    cstamp(57)
    I(f"s_setprio {opt('epr', 3)}")
    e = lambda i: vCA + i
    xd = vWV
    I(f"v_bfe_u32 v{e(1)}, v{lane}, 2, 3")
    I(f"v_lshrrev_b32 v{e(2)}, 5, v{lane}")
    I(f"v_lshl_add_u32 v{e(1)}, v{e(2)}, 4, v{e(1)}")
    I(f"v_mul_u32_u24 v{e(1)}, {WR}, v{e(1)}")
    I(f"s_mov_b32 s10, {WUI}")
    I(f"v_add3_u32 v{e(1)}, v{e(1)}, v{vcS}, s10")
    wu = [f"ds_read_b64_tr_b16 {rr(vWB+8*n+4*s+2*uu,2)}, v{e(1)} offset:{(32*s + 8*uu)*WR + 32*n}" for s in range(2) for n in range(4) for uu in range(2)]
    I(f"v_and_b32 v{e(0)}, 48, v{lane}")
    I(f"v_and_b32 v{e(3)}, 15, v{lane}")
    I(f"v_lshlrev_b32 v{e(4)}, 3, v{e(3)}")
    I(f"v_lshlrev_b32 v{e(6)}, 3, v{e(0)}")
    I(f"s_movk_i32 s10, {(PL-32)//8}")
    I(f"v_mad_u32_u24 v{e(0)}, v{vcS}, s10, v{e(0)}")
    I("s_waitcnt lgkmcnt(0)")
    nd = lambda w, i: e(16 + 4*w + i)
    sO = [sOUT, sCEL]
    for w in range(2):
        ws = sWS0 + w
        I(f"s_lshl_b32 s{ws}, s{ws}, 5")
        I(f"s_add_u32 s10, s{ws}, {OWN}")
        I(f"v_add_u32 v{e(5)}, s10, v{e(4)}")
        for i in range(4):
            I(f"s_sub_u32 s11, {32*i}, s{ws}")
            I(f"v_add_u32 v{nd(w,i)}, s11, v{e(6)}")
            I(f"v_and_b32 v{nd(w,i)}, 0x1ff, v{nd(w,i)}")
            I(f"v_add_u32 v{e(8)}, v{nd(w,i)}, v{e(5)}")
            I(f"ds_read_b64 {rr(xd+8*w+2*i,2)}, v{e(8)} offset:{i*(PL-32)}")
        I(f"s_sub_u32 s11, 0, s{ws}")
        I(f"v_lshl_add_u32 v{e(8)}, v{e(4)}, 2, s11")
        I(f"v_and_b32 v{e(8)}, 0x1ff, v{e(8)}")
        I(f"v_add3_u32 v{e(8)}, v{e(8)}, v{e(0)}, s10")
        for s in range(2): I(f"ds_read_b128 {rr(vX+8*w+4*s,4)}, v{e(8)} offset:{64*s}")
        if w == 0:
            for x_ in wu[:8]: I(x_)
    for x_ in wu[8:]: I(x_)
    I(f"s_lshl_b32 s10, s{sSH}, 5")
    I(f"v_subrev_u32 v{e(6)}, s10, v{e(6)}")
    for i in range(4):
        I(f"v_cmpx_eq_u32 vcc, {-32*i & 0xffffffff:#x}, v{e(6)}")
        I(f"s_cbranch_execz L_NS{i}")
        for k in range(8): I(f"v_add_f32 v{vACC+4*k+i}, v{vACC+4*k+i}, v{vACC+32+4*k+i}")
        L(f"L_NS{i}")
        I("s_mov_b64 exec, -1")
    I(f"s_mul_i32 s10, s{sB}, {BN}")
    for k, r_ in enumerate((sF0, sB0E, sF1)):
        I(f"s_add_u32 s{sTM+k}, s10, s{r_}")
        I(f"s_min_u32 s{sTM+k}, s{sTM+k}, {N}")
        I(f"s_lshl_b32 s{sTM+k}, s{sTM+k}, 7")
    I(f"s_add_u32 s{sCEL}, s{sOUT}, s{sTM+1}")
    I(f"s_addc_u32 s{sCEL+1}, s{sOUT+1}, 0")
    I(f"s_sub_u32 s{sCEL+2}, s{sTM+2}, s{sTM+1}")
    I(f"s_add_u32 s{sOUT}, s{sOUT}, s{sTM}")
    I(f"s_addc_u32 s{sOUT+1}, s{sOUT+1}, 0")
    I(f"s_sub_u32 s{sOUT+2}, s{sTM+1}, s{sTM}")
    for w, r_ in enumerate((sF0, sB0E)):
        I(f"s_lshl_b32 s10, s{r_}, 5")
        I(f"s_sub_u32 s10, s{sWS0+w}, s10")
        I("s_lshl_b32 s10, s10, 2")
        I(f"v_add_u32 v{e(10+w)}, s10, v{e(4)}")
    for w in (1, 0):
        for k in range(16): I(f"v_rcp_f32 v{DEN(w,0)+k}, v{DEN(w,0)+k}")
    I("s_waitcnt lgkmcnt(8)")
    for w in range(2):
        XF = vP if w == 0 else vQ
        for i in range(4):
            for h in range(2):
                I(f"v_lshlrev_b32 v{XF+8*h+i}, 16, v{xd+8*w+2*i+h}")
                I(f"v_and_b32 v{XF+8*h+4+i}, 0xffff0000, v{xd+8*w+2*i+h}")
    for w in range(2):
        XF = vP if w == 0 else vQ
        for k in range(0, 16, 2): I(f"v_pk_fma_f32 {rr(NUM(w,0)+k,2)}, {rr(NUM(w,0)+k,2)}, {rr(DEN(w,0)+k,2)}, {rr(XF+k,2)}")
    I("s_waitcnt lgkmcnt(0)")
    k = 0
    for w in range(2):
        for s in range(2):
            for n in range(4):
                I(m16(NUM(w,n), vX+8*w+4*s, vWB+8*n+4*s, NUM(w,n)))
                if k < 8: I(f"v_lshl_add_u32 v{nd(k>>2,k&3)}, v{nd(k>>2,k&3)}, 2, v{e(10+(k>>2))}")
                k += 1
    for w in range(2):
        XF = vP if w == 0 else vQ
        for i in range(4):
            for n in range(4): I(f"v_max_f32 v{NUM(w,n)+i}, v{NUM(w,n)+i}, v{XF+4*n+i}")
            for h in range(2): I(f"v_cvt_pk_bf16_f32 v{DEN(w,0)+2*i+h}, v{NUM(w,2*h)+i}, v{NUM(w,2*h+1)+i}")
            I(f"buffer_store_dwordx2 {rr(DEN(w,0)+2*i,2)}, v{nd(w,i)}, {sq(sO[w])}, 0 offen{pol(OP)}")
    stamp_out()
    L("L_END")
    I("s_endpgm")
    def spin():
        I(f"s_add_u32 s{sSP}, s{sSP}, 1")
        I(f"s_cmp_gt_u32 s{sSP}, {opt('spin', 200000)}")
        I("s_cbranch_scc1 L_END")
        if opt("slp", 1): I(f"s_sleep {opt('slp', 1)}")
    for i in range(4):
        L(f"L_RT{i}")
        I("s_waitcnt vmcnt(0)")
        spin()
        for k in range(i, 4): poll_load(k)
        I(f"s_branch L_PW{i}")
    xg = vCA
    def xload(tag):
        for i in range(4):
            I(f"s_mov_b64 exec, {sp(mk(i,3))}")
            I(f"s_cbranch_execz L_XL{tag}{i}")
            I(f"s_movk_i32 s10, {8192*i}")
            I(f"buffer_load_dwordx4 {rr(xg+4*i,4)}, v{pa}, {sq(sD2)}, s10 offen sc1")
            L(f"L_XL{tag}{i}")
        I("s_mov_b64 exec, -1")
    L("L_XT1")
    for i in range(4):
        I(f"v_and_b32 v{u(2)}, 0x1000000, v{vC+4*i+3}")
        I(f"v_cmp_ne_u32 {sp(mk(i,3))}, 0, v{u(2)}")
        I(f"s_bcnt1_i32_b64 s10, {sp(mk(i,3))}")
        I(f"s_lshl2_add_u32 s{sXT}, s10, s{sXT}")
    xload("a")
    I(f"v_or3_b32 v{u(2)}, v{vC}, v{vC+4}, v{vC+8}")
    I(f"v_or_b32 v{u(2)}, v{u(2)}, v{vC+12}")
    I(f"v_and_b32 v{u(2)}, 0x10000, v{u(2)}")
    I(f"v_mov_b32 v{u(3)}, {FLAG}")
    I(f"v_cmpx_ne_u32 vcc, 0, v{u(2)}")
    I(f"ds_write_b32 v{u(3)}, v{one} offset:4")
    I("s_mov_b64 exec, 1")
    I(f"v_mov_b32 v{u(2)}, s{sXT}")
    I(f"ds_add_u32 v{u(3)}, v{u(2)} offset:8")
    I("s_mov_b64 exec, -1")
    I("s_branch L_XT1R")
    L("L_XCN")
    I(f"s_sub_u32 s10, s{sL}, {R0 - BIAS}")
    I(f"s_add_u32 s11, s10, s{LEN0}")
    I(f"v_mov_b32 v{u(0)}, s11")
    I(f"s_add_u32 s11, s10, s{sEND}")
    I(f"s_add_u32 s11, s11, {LWB}")
    I(f"v_mov_b32 v{u(1)}, s11")
    I(f"s_lshl_b32 s10, s{sW}, 3")
    I(f"v_mov_b32 v{u(2)}, s10")
    I(f"ds_write_b64 v{u(2)}, {rr(u(0),2)} offset:{CNT}")
    I("s_branch L_XCNR")
    L("L_XT2")
    I("s_waitcnt vmcnt(0)")
    I(f"s_mov_b64 {sp(sTM)}, 0")
    for i in range(4):
        I(f"v_cmp_ne_u32 vcc, s{sK}, v{xg+4*i+1}")
        I(f"s_and_b64 vcc, vcc, {sp(mk(i,3))}")
        I(f"s_or_b64 {sp(sTM)}, {sp(sTM)}, vcc")
    I("s_cbranch_scc0 L_XT2A")
    spin()
    xload("b")
    I("s_branch L_XT2")
    L("L_XT2A")
    I(f"s_cmp_eq_u32 s{sSKIP}, 0")
    I("s_cbranch_scc1 L_XT2R")
    for i in range(4):
        g_ = xg + 4*i
        I(f"s_mov_b64 exec, {sp(mk(i,3))}")
        I(f"v_bfe_u32 v{g_+1}, v{g_}, 18, 8")
        I(f"v_lshlrev_b32 v{g_+1}, 2, v{g_+1}")
        I(f"v_add_u32 v{g_+3}, {MAP}, v{g_+1}")
        I(f"ds_read_b32 v{g_+3}, v{g_+3}")
        put(rec_ops(g_, g_+2, 0, vEB+i, g_+1, g_+2))
        I(f"v_and_b32 v{g_}, 0xffff, v{g_}")
        I("s_waitcnt lgkmcnt(0)")
        I(f"ds_add_rtn_u32 v{g_+3}, v{g_+3}, v{one} offset:{CNT}")
        I("s_waitcnt lgkmcnt(0)")
        I(f"ds_write2st64_b32 v{g_+3}, v{g_}, v{g_+2} {W2}")
    I("s_mov_b64 exec, -1")
    I("s_waitcnt lgkmcnt(0)")
    I("s_branch L_XT2R")
    def lens_from_cnt(t):
        I(f"s_lshl_b32 s10, s{sW}, 3")
        I(f"v_mov_b32 v{t}, s10")
        I(f"ds_read_b64 {rr(t,2)}, v{t} offset:{CNT}")
        I("s_waitcnt lgkmcnt(0)")
        I(f"v_readfirstlane_b32 s{sTM}, v{t}")
        I(f"v_readfirstlane_b32 s{sTM+1}, v{t+1}")
        I(f"s_sub_u32 s10, s{sL}, {R0 - BIAS}")
        I(f"s_sub_u32 s{sTM}, s{sTM}, s10")
        I(f"s_sub_u32 s{sTM+1}, s{sTM+1}, s10")
        I(f"s_sub_u32 s{sTM+1}, s{sTM+1}, {LWB}")
        ntiles(sTM, sTM + 1)
    L("L_XT3")
    lens_from_cnt(u(0))
    I("s_branch L_XT3R")
    L("L_OVF")
    I(f"s_mov_b32 s{sSKIP}, 0")
    I(f"s_mov_b32 s{sN}, 0")
    I(f"s_mov_b32 s{sST}, 0")
    I(f"s_mov_b32 s{sMORE}, 4")
    I("s_waitcnt lgkmcnt(0)")
    I("s_branch L_CA")
    q = vCA
    L("L_PEXT")
    I(f"v_mov_b32 v{q+1}, s{sK}")
    I(f"v_mov_b32 v{q+3}, 0x1000000")
    I(f"s_mov_b32 s10, {256*RS}")
    for i in range(8):
        I(f"v_subrev_u32 v{q+4}, {33*CAP}, v{vRK1+i}")
        I(f"v_cmpx_gt_u32 vcc, {33*8}, v{q+4}")
        I(f"s_cbranch_execz L_PE{i}")
        I(f"ds_or_b32 v{vD+i}, v{q+3}")
        I(f"v_mov_b32 v{q}, v{vSR+i}")
        I(f"v_mov_b32 v{q+2}, v{vID+(i&3)}")
        I(f"v_bfe_u32 v{q+4}, v{vRK1+i}, 5, 3")
        I(f"v_lshlrev_b32 v{q+4}, 4, v{q+4}")
        I(f"v_mad_u32_u24 v{q+4}, v{vBK+i}, s{cR}, v{q+4}")
        I(f"buffer_store_dwordx4 {rr(q,4)}, v{q+4}, {sq(sCEL)}, s10 offen sc1")
        L(f"L_PE{i}")
        I("s_mov_b64 exec, -1")
    I("s_branch L_PEXTR")
    L("L_POVF")
    I("s_movk_i32 s11, 1986")
    for i in range(4):
        I(f"v_mul_u32_u24 v{q+i}, s11, v{vHS+i}")
        I(f"v_lshrrev_b32 v{q+i}, 16, v{q+i}")
    I(f"v_add_u32 v{q+5}, v{q}, v{q+1}")
    I(f"v_add_u32 v{q+6}, v{q+5}, v{q+2}")
    I(f"v_add_u32 v{q+7}, v{q+6}, v{q+3}")
    I(f"v_mov_b32 v{q+8}, v{q+7}")
    wave_scan(q + 8)
    I("s_nop 0")
    I(f"v_sub_u32 v{q+4}, v{q+8}, v{q+7}")
    I(f"v_add_u32 v{q+7}, v{q+4}, v{q+6}")
    I(f"v_add_u32 v{q+6}, v{q+4}, v{q+5}")
    I(f"v_add_u32 v{q+5}, v{q+4}, v{q}")
    for i in range(4): I(f"v_lshl_or_b32 v{q+4+i}, v{q+i}, 16, v{q+4+i}")
    I(f"v_add_u32 v{q+8}, {HDR}, v{l16}")
    I(f"ds_write_b128 v{q+8}, {rr(q+4,4)}")
    I("s_lshl_b32 s10, s2, 10")
    I(f"s_add_u32 s10, s10, {WS_HD}")
    I(f"buffer_store_dwordx4 {rr(q+4,4)}, v{l16}, {sq(sWS)}, s10 offen sc1")
    I(f"v_lshlrev_b32 v{q+9}, 2, v{ha}")
    for i in range(4): I(f"ds_read_b32 v{q+i}, v{q+9} offset:{HIST1 + 256*i}")
    for i in range(8):
        I(f"v_and_b32 v{q+10+i}, 0x3fc, v{vHA+i}")
        I(f"v_add_u32 v{q+10+i}, {HDR}, v{q+10+i}")
        I(f"ds_read_u16 v{q+10+i}, v{q+10+i}")
    I("s_waitcnt lgkmcnt(0)")
    for i in range(4):
        I(f"v_cmpx_lt_u32 vcc, {33*(CAP+8)}, v{q+i}")
        I(f"v_or_b32 v{vO+4*i}, 0x10000, v{vO+4*i}")
        I("s_mov_b64 exec, -1")
    I(f"s_mul_i32 s10, s2, {CH}")
    I(f"s_mov_b32 s{sTM}, {WS_RECS}")
    I(f"s_mov_b32 s{sTM+1}, {WS_LEID}")
    for i in range(8):
        I(f"v_mul_u32_u24 v{q}, s11, v{vRK1+i}")
        I(f"v_lshrrev_b32 v{q}, 16, v{q}")
        I(f"v_add3_u32 v{q}, v{q}, v{q+10+i}, s10")
        I(f"v_lshlrev_b32 v{q+1}, 2, v{q}")
        I(f"v_cmpx_le_u32 vcc, {33*(CAP+8)}, v{vRK1+i}")
        I(f"s_cbranch_execz L_PO{i}")
        I(f"buffer_store_byte v{vID+(i&3)}, v{q}, {sq(sWS)}, s{sTM+1} offen sc1")
        I(f"buffer_store_dword v{vSR+i}, v{q+1}, {sq(sWS)}, s{sTM} offen sc1")
        L(f"L_PO{i}")
        I("s_mov_b64 exec, -1")
    I("s_waitcnt vmcnt(0) lgkmcnt(0)")
    I("s_barrier")
    I("s_branch L_POUT")
    SB = 288
    t0, t1, t2, t3 = vP, vP+1, vP+2, vP+3
    L("L_SLOW")
    I("s_setprio 0")
    I(f"s_lshl_b32 s10, s{sWP}, 6")
    I(f"v_add_u32 v{tid}, s10, v{lane}")
    I(f"s_cmp_lg_u32 s{sMORE}, 4")
    I("s_cbranch_scc1 L_SL1")
    I(f"s_mov_b32 s{sMORE}, 1")
    I(f"v_and_b32 v{t0}, 0xff, v{tid}")
    I(f"v_lshlrev_b32 v{t1}, 7, v{t0}")
    I(f"buffer_load_dword v{t2}, v{t1}, {sq(sCEL)}, 0 offen sc1")
    I(f"v_lshlrev_b32 v{t1}, 10, v{t0}")
    I(f"s_lshl_b32 s10, s{sB}, 2")
    I(f"s_add_u32 s10, s10, {WS_HD}")
    I(f"buffer_load_dword v{t3}, v{t1}, {sq(sWS)}, s10 offen sc1")
    I(f"v_lshlrev_b32 v{t0}, 2, v{t0}")
    I(f"v_add_u32 v{t0}, {HDR}, v{t0}")
    I("s_waitcnt vmcnt(0)")
    I(f"v_and_b32 v{t2}, 0x10000, v{t2}")
    I(f"v_cmp_ne_u32 vcc, 0, v{t2}")
    I(f"v_mov_b32 v{t2}, {(CAP+8) << 16}")
    I("s_nop 0")
    I(f"v_cndmask_b32 v{t2}, v{t2}, v{t3}, vcc")
    I(f"ds_write_b32 v{t0}, v{t2}")
    I("s_waitcnt lgkmcnt(0)")
    I("s_barrier")
    L("L_SL1")
    I(f"s_add_u32 s{sR0}, s{sR0}, {SB}")
    I(f"s_cmp_lt_u32 s{sR0}, s{sCNT}")
    I("s_cbranch_scc1 L_BATCH")
    L("L_FIND")
    I(f"s_cmp_lg_u64 {sp(sMSK)}, 0")
    I("s_cbranch_scc1 L_GOT")
    I(f"s_add_u32 s{sCI}, s{sCI}, 1")
    I(f"s_cmp_ge_u32 s{sCI}, 4")
    I("s_cbranch_scc1 L_EPI")
    I(f"s_lshl_b32 s10, s{sCI}, 8")
    I(f"s_add_u32 s10, s10, {HDR}")
    I(f"v_lshl_add_u32 v{t0}, v{lane}, 2, s10")
    I(f"ds_read_u16 v{t0}, v{t0} offset:2")
    I("s_waitcnt lgkmcnt(0)")
    I(f"v_cmp_lt_u32 {sp(sMSK)}, s{sSKIP}, v{t0}")
    I("s_nop 3")
    I("s_branch L_FIND")
    L("L_GOT")
    I(f"s_ff1_i32_b64 s10, {sp(sMSK)}")
    I(f"s_bitset0_b64 {sp(sMSK)}, s10")
    I(f"s_lshl_b32 s11, s{sCI}, 6")
    I(f"s_add_u32 s{sCUR}, s10, s11")
    I(f"s_lshl_b32 s10, s{sCUR}, 2")
    I(f"s_add_u32 s10, s10, {HDR}")
    I(f"v_mov_b32 v{t0}, s10")
    I(f"ds_read_b32 v{t0}, v{t0}")
    I("s_waitcnt lgkmcnt(0)")
    I(f"v_readfirstlane_b32 s10, v{t0}")
    I("s_nop 3")
    I(f"s_lshr_b32 s{sCNT}, s10, 16")
    I(f"s_and_b32 s{sST}, s10, 0xffff")
    I(f"s_mov_b32 s{sR0}, s{sSKIP}")
    L("L_BATCH")
    I("s_waitcnt vmcnt(0)")
    I("s_barrier")
    prefill(vP + 4)
    I(f"v_and_b32 v{t0}, 15, v{lane}")
    I(f"v_mul_u32_u24 v{t1}, {LWB}, v{t0}")
    I(f"v_add_u32 v{t1}, {BIAS}, v{t1}")
    I(f"v_lshlrev_b32 v{t0}, 2, v{t0}")
    I(f"ds_write_b32 v{t0}, v{t1} offset:{CNT}")
    t1, t4, t5 = vQ, vQ + 2, vQ + 3
    I(f"v_add_u32 v{t0}, s{sR0}, v{tid}")
    I(f"s_mul_i32 s{sTM+2}, s{sCUR}, {CH}")
    I(f"s_add_u32 s11, s{sTM+2}, s{sST}")
    I(f"s_lshl_b32 s{sTM}, s11, 2")
    I(f"s_add_u32 s{sTM}, s{sTM}, {WS_RECS}")
    I(f"v_lshl_add_u32 v{t2}, v{t0}, 2, s{sTM}")
    I(f"s_add_u32 s{sTM}, s11, {WS_LEID}")
    I(f"v_add_u32 v{t3}, s{sTM}, v{t0}")
    I(f"s_mul_i32 s10, s{sB}, {RS}")
    I(f"s_lshl_b32 s{sTM}, s{sCUR}, 7")
    I(f"s_add_u32 s10, s10, s{sTM}")
    I(f"s_add_u32 s10, s10, {WS_CELL}")
    I(f"v_and_b32 v{t4}, 7, v{t0}")
    I(f"v_lshl_add_u32 v{t4}, v{t4}, 4, s10")
    I(f"v_lshrrev_b32 v{t5}, 3, v{t0}")
    I(f"v_cmpx_gt_u32 vcc, {CAP+8}, v{t0}")
    I(f"v_add_u32 v{t2}, {256*RS}, v{t4}")
    I(f"v_add_u32 v{t3}, 8, v{t2}")
    I(f"v_cmpx_gt_u32 vcc, {CAP}, v{t0}")
    I(f"v_lshl_add_u32 v{t2}, v{t5}, 2, v{t4}")
    I(f"v_add3_u32 v{t3}, v{t4}, v{t5}, 12")
    I("s_mov_b64 exec, -1")
    I(f"s_add_u32 s10, s{sR0}, {SB}")
    I(f"s_min_u32 s10, s10, s{sCNT}")
    I(f"v_cmp_gt_u32 vcc, s10, v{t0}")
    I(f"v_mov_b32 v{t4}, 0x7ffffff0")
    I("s_nop 0")
    I(f"v_cndmask_b32 v{t2}, v{t4}, v{t2}, vcc")
    I(f"v_cndmask_b32 v{t3}, v{t4}, v{t3}, vcc")
    I(f"buffer_load_dwordx2 {rr(t1,2)}, v{t2}, {sq(sWS)}, 0 offen sc1")
    I(f"buffer_load_ubyte v{t3}, v{t3}, {sq(sWS)}, 0 offen sc1")
    I("s_waitcnt lgkmcnt(0)")
    I("s_barrier")
    I("s_waitcnt vmcnt(0)")
    I(f"v_cmp_ne_u32 vcc, 3, v{t5}")
    I(f"v_cmp_eq_u32 {sp(sA)}, s{sK}, v{t1+1}")
    I(f"v_mov_b32 v{t4}, s{sTM+2}")
    I(f"s_or_b64 exec, vcc, {sp(sA)}")
    I(f"v_cmpx_ne_u32 vcc, 0, v{t1}")
    I(f"v_bfe_u32 v{t2}, v{t1}, 18, 8")
    I(f"v_lshlrev_b32 v{t2}, 2, v{t2}")
    I(f"v_add_u32 v{t0}, {MAP}, v{t2}")
    I(f"ds_read_b32 v{t0}, v{t0}")
    put(rec_ops(t1, t3, 0, t4, t2, t3))
    I(f"v_mov_b32 v{t2}, 4")
    I(f"v_and_b32 v{t1}, 0xffff, v{t1}")
    I("s_waitcnt lgkmcnt(0)")
    I(f"ds_add_rtn_u32 v{t0}, v{t0}, v{t2} offset:{CNT}")
    I("s_waitcnt lgkmcnt(0)")
    I(f"ds_write2st64_b32 v{t0}, v{t1}, v{t3} {W2}")
    I("s_mov_b64 exec, -1")
    I("s_waitcnt lgkmcnt(0)")
    I("s_barrier")
    listaddr(t2)
    I(f"ds_read_b128 {rr(vQD,4)}, v{vARX}")
    I(f"ds_read_b32 v{vEI}, v{vARE}")
    lens_from_cnt(t2)
    put(dma_tile())
    L("L_LAST")
    I("s_branch L_GO")

def regs_of(tok):
    tok = tok.strip()
    m = re.fullmatch(r"v\[(\d+):(\d+)\]", tok)
    if m: return list(range(int(m.group(1)), int(m.group(2)) + 1))
    m = re.fullmatch(r"v(\d+)", tok)
    if m: return [int(m.group(1))]
    return []
def parse(ins):
    op, _, rest = ins.partition(" ")
    ops = [o.strip().split(" ")[0] for o in rest.split(",")] if rest else []
    if op.startswith("ds_read") or "rtn" in op: return "ds", regs_of(ops[0]), regs_of(ops[1])
    return "other", [], sum((regs_of(o) for o in ops), [])
def check_body(body):
    s2 = [b for b in body if not b.endswith(":")]
    pend = []
    for i, ins in enumerate(s2 * 3):
        k, d, s = parse(ins)
        m = re.search(r"lgkmcnt\((\d+)\)", ins)
        if m:
            while len(pend) > int(m.group(1)): pend.pop(0)
        pr = set(sum(pend, []))
        for r in d + s:
            assert r not in pr, f"pending LDS reg v{r} used by {ins} @{i}"
        if k == "ds":
            pend.append(d); assert len(pend) <= 15

hdr = open("/code/" + NAME + ".s.ref").read().split("\n")
for l in hdr:
    if l.startswith("; Override"): break
    out.append(l)
if opt("list", 0): out.append(f"; @launch kernel={NAME}_kernel grid=(256,1,1) block=(512,1,1) lds={LDS}")
else: out.append(f"; @launch grid=(256,1,1) block=(512,1,1) lds={LDS}")
emit('.amdgcn_target "amdgcn-amd-amdhsa--gfx950"\n.text')
kernel()
emit(f""".section .rodata,"a"
.p2align 6
.amdhsa_kernel {NAME}_kernel
  .amdhsa_next_free_vgpr 256
  .amdhsa_next_free_sgpr 102
  .amdhsa_accum_offset 256
  .amdhsa_group_segment_fixed_size 0
  .amdhsa_kernarg_size 96
  .amdhsa_user_sgpr_count 2
  .amdhsa_user_sgpr_kernarg_segment_ptr 1
  .amdhsa_system_sgpr_workgroup_id_x 1
.end_amdhsa_kernel""")
if TS: out.insert(0, "; stamps " + " ".join(STN))
path = sys.argv[1] if len(sys.argv) > 1 else "/code/" + NAME + ".s"
open(path, "w").write("\n".join(out) + "\n")
print("wrote", path, len(out), "lines; lds", LDS)
```

```python
import sys, re, struct

NAME = "standalone__edge_featured_mpnn_gatedgcn__graph"
OPT = dict(kv.split("=") for kv in sys.argv[2:])
def opt(k, d):
    v = OPT.get(k)
    if v is None: return d
    return type(d)(v)

N, E = 50000, 800000
CH = 3128
BN = 196
RS = opt('rs', 257) * 128
WS_CELL = 0x10000
WS_RECS = 0x1200000
WS_LEID = 0x1600000
WS_HD = 0x1700000
WS_USED = 0x1800000
WS_TS = 0x3000000
KINC = 0x02020202
CAP = 24
LOG2E = 1.4426950408889634
def f2u(f): return struct.unpack("<I", struct.pack("<f", f))[0]

out = []
def emit(s=""):
    for l in s.strip("\n").split("\n"):
        out.append(l.rstrip())
def I(s): out.append("    " + s)
def L(s): out.append(s + ":")
def C(s): out.append("    ; " + s)
def put(seq):
    for s in seq:
        if s.endswith(":"): L(s[:-1])
        else: I(s)
def rr(a, n): return f"v[{a}:{a+n-1}]"
def sp(a): return f"s[{a}:{a+1}]"
def sq(a): return f"s[{a}:{a+3}]"
def pol(p): return (" " + p.replace("_", " ")) if p else ""

def srd(d, lo, size, add=None, stride=0):
    if add is None:
        I(f"s_mov_b32 s{d}, s{lo}")
        I(f"s_mov_b32 s{d+1}, s{lo+1}" if not stride else f"s_or_b32 s{d+1}, s{lo+1}, {stride << 16:#x}")
    else:
        I(f"s_add_u32 s{d}, s{lo}, {add}")
        I(f"s_addc_u32 s{d+1}, s{lo+1}, 0")
    I(f"s_mov_b32 s{d+2}, {size}")
    I(f"s_mov_b32 s{d+3}, 0x20000")

def wave_scan(v, fill=None, half=False):
    def gap():
        if fill and len(fill) >= 2:
            I(fill.pop(0)); I(fill.pop(0))
        else: I("s_nop 1")
    for sh in (1, 2, 4, 8):
        gap()
        I(f"v_add_u32_dpp v{v}, v{v}, v{v} row_shr:{sh} row_mask:0xf bank_mask:0xf bound_ctrl:0")
    gap()
    I(f"v_add_u32_dpp v{v}, v{v}, v{v} row_bcast:15 row_mask:0xa bank_mask:0xf")
    if half: return
    gap()
    I(f"v_add_u32_dpp v{v}, v{v}, v{v} row_bcast:31 row_mask:0xc bank_mask:0xf")

TAB, ZROW, CNT, FLAG = 0, 512, 576, 640
HIST = 1024
ESTG = HIST + 4096
HIST1 = ESTG
EARLY = ESTG + 8192
LWB = 288 * 4
R0 = EARLY + 32768
R1 = R0 + 16 * LWB
XSTG = R1 + 16 * LWB
XI = 1056
SLOT = 4 * XI
OWN = XSTG + 8 * SLOT
PL = 52 * 128 + 32
WR = 160
AR = 152
WUI = OWN + 4 * PL
WCI = WUI + 64 * WR
MAP = WCI + 16 * WR
HDR = MAP + 1024
PRG = HDR + 1024
LDS = PRG + 1024
WBI, WVI, WAI = EARLY, EARLY + 64 * WR, EARLY + 128 * WR
ATAB = XSTG
LROW = 160
CIMG = R0
assert CIMG + 256 * LROW <= OWN and 208 * AR <= 8 * SLOT and LDS <= 163840, LDS
BIAS = 8192
assert R1 < 65536 and R0 % 256 == 0 and R1 % 256 == 0
W2 = f"offset0:{(R0-BIAS)//256} offset1:{(R1-BIAS)//256}"

vWB, vWV, vCA, vACC = 0, 32, 64, 96
vX, vEO, vS = 160, 176, 184
vP, vQ, vR = 188, 204, 220
vQD = 236
vEI, vCH, vIDX, vCP, vAX, vcEO, vcS, vARX, vARE, vARO, vARS, vEA = 240, 241, 242, 243, 244, 245, 246, 247, 248, 249, 250, 251
lane, vTS, tid = 253, 254, 255
vC1, vPA = lane, tid
DEN = lambda w, n: vACC + 32 * w + 4 * n
NUM = lambda w, n: vACC + 32 * w + 16 + 4 * n
def m16(d, a, b, c=None):
    return f"v_mfma_f32_16x16x32_bf16 {rr(d,4)}, {rr(a,4)}, {rr(b,4)}, " + ("0" if c is None else rr(c, 4))
def s16(d, b): return f"v_smfmac_f32_16x16x64_bf16 {rr(d,4)}, {rr(vS,4)}, {rr(b,8)}, v{vIDX}"

sWP, sW, sB, sK = 3, 4, 5, 6
sWIN, sF0, sF1, sL = 7, 8, 9, 12
sA, sBt = 10, 11
sSTG, sES, s128 = 13, 14, 15
pX, pE, pSRC, pDST, pWA, pWB, pWC, pWU, pWV, pOUT, pDBG, pWS = 16, 18, 20, 22, 24, 26, 28, 30, 32, 34, 36, 38
sT, sN, sFM, sMORE, sSKIP, sXT, sWS0, sWS1, sB0E, sSH = 16, 17, 18, 19, 20, 21, 22, 23, 24, 25
sCI, sCUR, sR0, sCNT, sST, sEND = 26, 27, 28, 29, 30, 31
sMSK = 32
sTM = 34
sX, sEP, sOUT, sWS, sCEL, sD2 = 40, 44, 48, 52, 56, 60
sM = 64
sJ3, sEM = 96, 98
sSP = 100
sSG, sRM = 101, 96

TS = opt("ts", 0)
STN = []
def stamp(i):
    if not TS: return
    if isinstance(i, str) and i[0] not in opt("tsx", ""): return
    STN.append(str(i)); i = len(STN) - 1
    I("s_memrealtime vcc" if TS == 1 else "s_memtime vcc")
    I("s_waitcnt lgkmcnt(0)")
    I(f"v_writelane_b32 v{vTS}, vcc_lo, {i}")
def stamp_out():
    if not TS: return
    I("s_waitcnt vmcnt(0)")
    stamp(15)
    I("s_memtime vcc")
    I("s_waitcnt lgkmcnt(0)")
    I(f"v_writelane_b32 v{vTS}, vcc_lo, 58")
    I(f"v_writelane_b32 v{vTS}, s{sN}, 59")
    I(f"v_writelane_b32 v{vTS}, s{sSP}, 60")
    I("s_lshl_b32 s10, s2, 3")
    I(f"s_add_u32 s10, s10, s{sWP}")
    I("s_lshl_b32 s10, s10, 8")
    I(f"s_add_u32 s10, s10, {WS_TS}")
    I(f"v_lshl_add_u32 v{vP}, v{lane}, 2, s10")
    I(f"global_store_dword v{vP}, v{vTS}, {sp(pWS)}")
def cstamp(i):
    if not TS: return
    I("s_memtime vcc")
    I("s_waitcnt lgkmcnt(0)")
    I(f"v_writelane_b32 v{vTS}, vcc_lo, {i}")

LD_P = opt("ldp", "nt")
XP, EP, OP = opt("xp", ""), opt("ep", ""), opt("op", "sc1")
STP = opt("stp", "sc1")
JE = opt("je", 2)
EMASK = sum(1 << (2 * j + 1) for j in range(JE)) * 0x01010101
SDW = "dst_sel:DWORD dst_unused:UNUSED_PAD"

def dma_tile():
    r = []
    for i in range(4):
        r.append(f"s_add_u32 m0, s{sSTG}, {i*XI}")
        r.append(f"v_mad_u32_u16 v{vQD+i}, v{vQD+i}, s{s128}, v{vCP}")
        r.append(f"buffer_load_dwordx4 v{vQD+i}, {sq(sX)}, 0 offen{pol(XP)} lds")
    r.append(f"s_mov_b32 m0, s{sES}")
    r.append(f"v_and_b32 v{vEI}, 0xfffff, v{vEI}")
    r.append(f"buffer_load_dwordx4 {rr(vEI,2)}, {sq(sEP)}, 0 idxen offen{pol(EP)} lds")
    return r

ORD = [(0, 0), (1, 0), (0, 1), (1, 1)]
def xread(m, s): return f"ds_read_b128 {rr(vX+8*m+4*s,4)}, v{vAX} offset:{512*m + 64*s}"
def g_mfmas(D, ft, w):
    g = [m16(D+8*n+4*m, vEO+4*m, vCA+16*w+8*ft+4*n) for m in range(2) for n in range(2)]
    g += [m16(D+8*n+4*m, vX+8*m+4*s, vWB+16*ft+8*n+4*s, D+8*n+4*m) for m, s in ORD for n in range(2)]
    return g
def h_mfmas(ft):
    return [m16(vQ+8*n+4*m, vX+8*m+4*s, vWV+16*ft+8*n+4*s, None if s == 0 else vQ+8*n+4*m) for m, s in ORD for n in range(2)]
def s_num(w, ft): return [s16(NUM(w, 2*ft+n), vQ+8*n) for n in range(2)]
def s_den(w, ft, G): return [s16(DEN(w, 2*ft+n), G+8*n) for n in range(2)]

def eafix():
    return [f"v_bfi_b32 v{vEA+m}, 31, v{vcEO}, v{vEA+m}" for m in range(2)] + [f"v_max_u32 v{vEA}, v{vEA}, v{vcEO}", f"v_max_u32 v{vEA+1}, v{vEA+1}, v{vC1}"]
LV = [int(c, 16) for c in opt("lv", "015a")]
PAT = opt("pat", "1" * 11 + "5")
FAIR = opt("fair", 1)
BST = opt("bst", 11)
def phase(par, ft, cp=0):
    G, Go = (vP, vR) if ft == 0 else (vR, vP)
    nf = 1 - ft
    wn = par if ft == 0 else par ^ 1
    wp = par ^ 1 if ft == 0 else par
    s1 = [[x] for x in s_num(wp, nf) + h_mfmas(ft) + s_den(wp, nf, Go)]
    s2 = [[x] for x in g_mfmas(Go, nf, wn)]
    if ft == 0:
        o = par * LWB
        s1[0] += [f"ds_read_u16 v{vQD+u}, v{vARS} offset:{o + 16*u}" for u in range(2)]
        s1[8] += ["s_waitcnt lgkmcnt(0)"] + [f"v_bfi_b32 v{vQD+u}, 31, v{vcS}, v{vQD+u}" for u in range(2)]
        if FAIR:
            s1[0] += [f"ds_add_rtn_u32 v{vQD+2}, v{vPA}, v{vIDX}"]
            s1[8] += [f"v_readfirstlane_b32 s{sRM}, v{vQD+2}"]
            s2[1] += [f"s_ashr_i32 s{sRM}, s{sRM}, 24", f"s_mul_i32 s{sRM}, s{sRM}, s{sSG}"]
        o1 = 128 if par else LWB
        s2[0] += [f"ds_read_b64_tr_b16 {rr(vS+2*u,2)}, v{vQD+u}" for u in range(2)]
        s2[0] += [f"ds_read_u16 v{vEA+m}, v{vARO} offset:{o1 + 64*m}" for m in range(2)]
        s2[6] += ["s_waitcnt lgkmcnt(0)"] + eafix()
        s2[6] += [f"ds_read_b128 {rr(vQD,4)}, v{vARX} offset:{o + 128}", f"ds_read_b32 v{vEI}, v{vARE} offset:{o + 128}",
                  f"s_add_u32 s{sT}, s{sT}, 1"]
        if par: s2[7] += [f"v_add_u32 v{r}, 0x80, v{r}" for r in (vARX, vARE, vARO, vARS)]
    else:
        s1[2] = ["s_waitcnt vmcnt(0)"] + [f"ds_read_b128 {rr(vEO+4*m,4)}, v{vEA+m}" for m in range(2)] + s1[2]
        for i, (m, s) in enumerate(ORD): s1[3+2*i].append(xread(m, s))
        s2[0] = ["s_waitcnt lgkmcnt(4)"] + s2[0]
        for i in range(4): s2[4+2*i] = [f"s_waitcnt lgkmcnt({3-i})"] + s2[4+2*i]
        s2[10] += [f"s_cmp_lt_u32 s{sT}, s{sN}", f"s_cbranch_scc0 L_ND{par}{cp}"] + dma_tile() + [f"L_ND{par}{cp}:"]
    def sec(mf, op):
        r = []; k = 0
        for i, m in enumerate(mf):
            if FAIR:
                if i == 0: r.append(f"s_setprio {cp}")
                if i == BST: r.append("s_setprio 3")
            elif i in LV: r.append(f"s_setprio {LV.index(i)}")
            r += m
            for _ in range(int(PAT[i])):
                r.append(f"{op} v{G+k}, v{G+k}"); k += 1
        assert k == 16
        return r
    r = sec(s1, "v_exp_f32")
    r += [f"v_pk_add_f32 {rr(G+2*i,2)}, {rr(G+2*i,2)}, 1.0 op_sel_hi:[1,0]" for i in range(8)]
    r += sec(s2, "v_rcp_f32")
    r += [f"v_pk_mul_f32 {rr(vQ+2*i,2)}, {rr(G+2*i,2)}, {rr(vQ+2*i,2)}" for i in range(8)]
    return r

def listaddr(t0):
    I(f"v_lshrrev_b32 v{t0}, 3, v{lane}")
    I(f"v_lshl_add_u32 v{vARX}, v{t0}, 4, s{sL}")
    I(f"s_add_u32 s10, s{sL}, {R1-R0}")
    I(f"v_lshrrev_b32 v{t0}, 1, v{lane}")
    I(f"v_lshl_add_u32 v{vARE}, v{t0}, 2, s10")
    I(f"s_add_u32 s10, s10, 2")
    I(f"v_and_b32 v{t0}, 48, v{lane}")
    I(f"v_lshl_add_u32 v{vARS}, v{t0}, 1, s10")
    I(f"v_and_b32 v{t0}, 12, v{lane}")
    I(f"v_add_u32 v{vARS}, v{vARS}, v{t0}")
    I(f"v_lshrrev_b32 v{t0}, 5, v{lane}")
    I(f"v_mul_u32_u24 v{vARO}, {R1-R0}, v{t0}")
    I(f"v_and_b32 v{t0}, 15, v{lane}")
    I(f"v_lshl_add_u32 v{vARO}, v{t0}, 2, v{vARO}")
    I(f"s_add_u32 s10, s{sL}, 2")
    I(f"v_add_u32 v{vARO}, s10, v{vARO}")

def prefill(t):
    for d in range(2): I(f"v_mov_b64 {rr(t+2*d,2)}, 0")
    for d in range(4): I(f"v_mov_b32 v{t+4+d}, {(ZROW << 16) | 0xfffff:#x}")
    I(f"v_lshl_add_u32 v{t+8}, v{lane}, 4, s{sL}")
    for o in (0, 1024, 2*LWB - 1024):
        I(f"ds_write_b128 v{t+8}, {rr(t,4)} offset:{o}")
        I(f"ds_write_b128 v{t+8}, {rr(t+4,4)} offset:{o + R1 - R0}")

def kernel():
    emit(f"""
.globl {NAME}_kernel
.p2align 8
.type {NAME}_kernel,@function
{NAME}_kernel:""")
    I("s_cmp_ge_u32 s2, 256")
    I("s_cbranch_scc1 L_END")
    I("s_load_dwordx16 s[16:31], s[0:1], 0")
    I("s_load_dwordx8 s[32:39], s[0:1], 64")
    if TS: I(f"v_mov_b32 v{vTS}, 0")
    u = lambda i: vP + i
    if opt("cpf", 1):
        I(f"s_getpc_b64 {sp(sM)}")
        L("L_PC")
        I("s_and_b32 s3, s2, -8")
        I(f"v_add_lshl_u32 v{u(0)}, v0, s3, 7")
        I(f"v_min_u32 v{u(0)}, L_LAST-L_PC, v{u(0)}")
        I("v_cmpx_gt_u32 vcc, 8, v0")
        I("s_cbranch_execz L_NOCPF")
        I(f"global_load_dword v{vEA}, v{u(0)}, {sp(sM)}")
        L("L_NOCPF")
        I("s_mov_b64 exec, -1")
    stamp(0)
    vD, vSR, vBK, vHA, vRK1, vID, vIC = vACC, vACC + 8, vACC + 16, vACC + 24, vACC + 32, vACC + 40, vACC + 44
    vRW = vX
    one, l16 = vS, vS + 1
    vOA, vT16, sOW = vR + 14, vR + 12, 101
    I(f"v_mov_b32 v{tid}, v0")
    I(f"v_lshrrev_b32 v{u(0)}, 6, v0")
    I(f"v_and_b32 v{lane}, 63, v0")
    I(f"v_readfirstlane_b32 s{sWP}, v{u(0)}")
    I(f"v_lshlrev_b32 v{vT16}, 4, v0")
    I(f"v_lshlrev_b32 v{u(2)}, 3, v0")
    I(f"v_lshlrev_b32 v{u(3)}, 2, v0")
    I(f"v_and_b32 v{u(4)}, 0x3fc, v{u(3)}")
    I(f"s_mul_i32 s{sA}, s2, {CH*4}")
    I(f"s_sub_u32 s{sBt}, {E*4}, s{sA}")
    I(f"s_min_u32 s{sBt}, s{sBt}, {CH*4}")
    I(f"s_and_b32 s{sB}, s2, 7")
    I(f"s_lshr_b32 s{sW}, s2, 3")
    I(f"s_lshl_b32 s{sB}, s{sB}, 5")
    I(f"s_add_u32 s{sB}, s{sB}, s{sW}")
    I(f"s_mul_i32 s{sF1}, s{sB}, {BN}")
    I(f"s_lshl_b32 s{sL}, s{sWP}, 5")
    I(f"s_add_u32 s{sF1}, s{sF1}, s{sL}")
    I(f"v_lshrrev_b32 v{u(5)}, 3, v{lane}")
    I(f"v_lshl_add_u32 v{u(5)}, v{u(5)}, 2, s{sF1}")
    I(f"v_and_b32 v{vCP}, 7, v{lane}")
    I(f"v_lshlrev_b32 v{vCP}, 4, v{vCP}")
    I(f"v_lshl_add_u32 v{vOA}, v{u(5)}, 7, v{vCP}")
    I(f"s_lshl_b32 s{sOW}, s{sWP}, 10")
    I(f"s_add_u32 s{sOW}, s{sOW}, {OWN}")
    I(f"s_movk_i32 s{sF0}, 0x2000")
    I("s_waitcnt lgkmcnt(0)")
    I(f"s_load_dword s{sK}, {sp(pWS)}, 0")
    srd(sCEL, pDST, f"s{sBt}", f"s{sA}")
    srd(sD2, pSRC, f"s{sBt}", f"s{sA}")
    I(f"buffer_load_dwordx4 {rr(vD,4)}, v{vT16}, {sq(sCEL)}, 0 offen{pol(LD_P)}")
    I(f"buffer_load_dwordx4 {rr(vSR,4)}, v{vT16}, {sq(sD2)}, 0 offen{pol(LD_P)}")
    I(f"s_cmp_ge_u32 s{sWP}, 5")
    I("s_cbranch_scc1 L_NO7")
    I(f"buffer_load_dwordx4 {rr(vD+4,4)}, v{vT16}, {sq(sCEL)}, s{sF0} offen{pol(LD_P)}")
    I(f"buffer_load_dwordx4 {rr(vSR+4,4)}, v{vT16}, {sq(sD2)}, s{sF0} offen{pol(LD_P)}")
    L("L_NO7")
    for d in range(2): I(f"v_mov_b64 {rr(u(8)+2*d,2)}, 0")
    I(f"ds_write_b32 v{u(4)}, v{u(8)} offset:{HIST1}")
    I(f"v_add_u32 v{u(5)}, {CIMG}, v{vT16}")
    for k in range(5): I(f"ds_write_b128 v{u(5)}, {rr(u(8),4)} offset:{8192*k}")
    PF = opt("pf", 0)
    vRU = vCA + 28
    def w_loads():
        I(f"s_cmp_ge_u32 s{sWP}, 2")
        I("s_cbranch_scc1 L_NOC")
        I(f"global_load_dwordx4 {rr(vEO,4)}, v{vT16}, {sp(pWC)}")
        L("L_NOC")
        for k, p in enumerate((pWB, pWV, pWA)):
            I(f"global_load_dwordx4 {rr(vRW+4*k,4)}, v{vT16}, {sp(p)}")
    def own_loads():
        I(f"global_load_dwordx4 {rr(vRU,4)}, v{vT16}, {sp(pWU)}")
        I(f"s_cmp_eq_u32 s{sWP}, 7")
        I("s_cbranch_scc1 L_NOO4")
        I(f"s_cmp_eq_u32 s{sWP}, 6")
        I("s_cselect_b32 exec_hi, 0, -1")
        for k in range(4):
            I(f"s_add_u32 m0, s{sOW}, {(PL-128)*k}")
            I("s_nop 0")
            I(f"buffer_load_dwordx4 v{vOA}, {sq(sX)}, 0 offen offset:{128*k} lds")
        I("s_mov_b32 exec_hi, -1")
        L("L_NOO4")
        if PF:
            assert PF <= 512
            I(f"s_lshr_b32 s{sTM+1}, s2, 3")
            I(f"s_mul_i32 s{sTM}, s{sTM+1}, {PF*128}")
            I(f"v_min_u32 v{vEA+1}, {PF-1}, v{tid}")
            I(f"v_lshlrev_b32 v{vEA+1}, 7, v{vEA+1}")
            I(f"buffer_load_dword v{vEA+1}, v{vEA+1}, {sq(sX)}, s{sTM} offen")
    LLP = opt("llp", 2)
    OLP = opt("olp", 2)
    NY = 0
    srd(sEP, pE, E, stride=32)
    srd(sOUT, pOUT, N*128)
    srd(sX, pX, N*128)
    srd(sWS, pWS, WS_USED)
    I(f"s_lshl_b32 s{sL}, s2, 7")
    I(f"s_add_u32 s{sL}, s{sL}, {WS_CELL}")
    srd(sCEL, pWS, 511*RS + 128, f"s{sL}")
    cM, cN, cP, cPM, cR = sM, sM + 1, sM + 2, sM + 3, sM + 4
    m2 = sM + 6
    I(f"s_mov_b32 s{cM}, 85599")
    I(f"s_mov_b32 s{cN}, {-BN & 0xffffffff}")
    I(f"s_movk_i32 s{cP}, 5368")
    I(f"s_mov_b32 s{cPM}, {opt('phm', 3) << 26:#x}")
    I(f"s_mov_b32 s{cR}, {RS}")
    for i in range(4): I(f"v_add_u32 v{vID+i}, {i}, v{u(3)}")
    I(f"s_lshl_b32 s{sA}, s{sWP}, 28")
    I(f"s_or_b32 s{sA}, s{sA}, 0x20000")
    I(f"v_mov_b32 v{vIC}, s{sA}")
    I(f"v_or_b32 v{vIC+1}, 0x80000000, v{vIC}")
    I(f"v_mov_b32 v{one}, 33")
    I(f"s_sub_u32 s{sBt}, s{sBt}, 0x2000")
    I(f"v_cmp_gt_u32 {sp(m2)}, s{sBt}, v{vT16}")
    I(f"s_and_b32 s{sA}, s{sWP}, 3")
    I(f"s_lshr_b32 s{sW}, s{sWP}, 2")
    I(f"s_lshl1_add_u32 s{sW}, s{sA}, s{sW}")
    if opt("swp", 1): I(f"s_xor_b32 s{sW}, s{sW}, 1")
    I(f"s_mul_i32 s{sA}, s{sW}, 49")
    I(f"s_sub_i32 s{sA}, s{sA}, 6")
    I(f"s_ashr_i32 s{sA}, s{sA}, 1")
    I(f"s_max_i32 s{sWIN}, s{sA}, 0")
    I(f"s_mul_i32 s{sSTG}, s{sW}, {SLOT}")
    I(f"s_add_u32 s{sSTG}, s{sSTG}, {XSTG}")
    I(f"s_lshl_b32 s{sES}, s{sW}, 10")
    I(f"s_add_u32 s{sES}, s{sES}, {ESTG}")
    I(f"s_mul_i32 s{sL}, s{sW}, {2*LWB}")
    I(f"s_add_u32 s{sL}, s{sL}, {R0}")
    I(f"s_movk_i32 s{s128}, 128")
    I(f"v_bfe_u32 v{u(6)}, v{tid}, 4, 4")
    I(f"v_and_b32 v{u(7)}, 7, v{tid}")
    I(f"v_cmp_eq_u32 vcc, v{u(6)}, v{u(7)}")
    I(f"v_and_b32 v{u(6)}, 8, v{tid}")
    I(f"v_lshlrev_b32 v{u(6)}, 1, v{u(6)}")
    I(f"v_mov_b32 v{u(8)}, 0x3f80")
    I(f"v_lshlrev_b32 v{u(8)}, v{u(6)}, v{u(8)}")
    I(f"v_cndmask_b32 v{u(8)}, 0, v{u(8)}, vcc")
    I(f"ds_write_b32 v{u(4)}, v{u(8)} offset:{TAB}")
    I(f"v_mov_b64 {rr(u(8),2)}, 0")
    I(f"ds_write_b64 v{u(2)}, {rr(u(8),2)} offset:{HIST}")
    I(f"v_add_u32 v{u(6)}, {PRG}, v{u(4)}")
    I(f"ds_write_b32 v{u(6)}, v{u(8)}")
    go, lo, lo2, ha = vR, vR + 1, vR + 2, vR + 3
    wl, wal = vR + 4, vR + 5
    I(f"v_lshrrev_b32 v{ha}, 3, v{tid}")
    I(f"v_mad_u32_u24 v{go}, v{ha}, s{cR}, v{vCP}")
    I(f"v_mul_u32_u24 v{wl}, {LROW}, v{ha}")
    I(f"v_add_u32 v{lo}, v{wl}, v{vCP}")
    I(f"v_add_u32 v{lo}, {CIMG}, v{lo}")
    assert LROW == WR
    I(f"v_bfe_u32 v{u(6)}, v{tid}, 5, 1")
    I(f"v_bfe_u32 v{u(8)}, v{tid}, 6, 1")
    I(f"v_sub_u32 v{u(6)}, v{u(6)}, v{u(8)}")
    I(f"v_mul_i32_i24 v{u(6)}, {4*WR}, v{u(6)}")
    I(f"v_add_u32 v{wl}, v{wl}, v{u(6)}")
    I(f"v_lshl_add_u32 v{wl}, v{u(7)}, 2, v{wl}")
    I(f"v_add_u32 v{wl}, {WBI}, v{wl}")
    I(f"v_lshlrev_b32 v{l16}, 4, v{lane}")
    I(f"v_and_b32 v{vCH}, 1, v{lane}")
    I(f"v_lshlrev_b32 v{vCH}, 4, v{vCH}")
    I(f"s_bitcmp1_b32 s{sW}, 0")
    I(f"s_cselect_b32 s{sA}, 1, -1")
    I(f"s_lshl_b32 s{sA}, s{sA}, 24")
    I(f"s_or_b32 s{sA}, s{sA}, 0xdddd")
    I(f"v_mov_b32 v{vIDX}, s{sA}")
    I(f"v_and_b32 v{vcEO}, 16, v{lane}")
    I(f"v_and_b32 v{u(6)}, 15, v{lane}")
    I(f"v_lshl_add_u32 v{u(6)}, v{u(6)}, 5, s{sES}")
    I("s_mov_b32 exec_hi, 0")
    I(f"v_add_u32 v{vcEO}, v{vcEO}, v{u(6)}")
    I("s_mov_b32 exec_hi, -1")
    I(f"v_and_b32 v{u(6)}, 3, v{lane}")
    I(f"v_lshlrev_b32 v{vcS}, 3, v{u(6)}")
    I(f"v_bfe_u32 v{u(8)}, v{lane}, 2, 2")
    I(f"v_and_b32 v{u(9)}, 48, v{lane}")
    I(f"v_lshl_add_u32 v{u(10)}, v{u(8)}, 7, v{u(9)}")
    I(f"v_mul_u32_u24 v{vAX}, {XI}, v{u(6)}")
    I(f"v_add3_u32 v{vAX}, v{vAX}, v{u(10)}, s{sSTG}")
    I(f"v_bfe_u32 v{u(9)}, v{lane}, 2, 3")
    I(f"v_lshrrev_b32 v{u(8)}, 5, v{lane}")
    I(f"v_lshl_add_u32 v{u(9)}, v{u(8)}, 4, v{u(9)}")
    I(f"v_mul_u32_u24 v{wal}, {WR}, v{u(9)}")
    I(f"v_add_u32 v{wal}, v{wal}, v{vcS}")
    listaddr(u(6))
    def rank_a(rs):
        for i in rs: I(f"v_mul_u32_u24 v{vBK+i}, s{cM}, v{vD+i}")
        for i in rs: I(f"v_lshrrev_b32 v{vBK+i}, 24, v{vBK+i}")
        for i in rs:
            I(f"v_lshlrev_b32 v{vHA+i}, 2, v{vBK+i}")
            I(f"ds_add_rtn_u32 v{vRK1+i}, v{vHA+i}, v{one} offset:{HIST1}")
    def rank_b(rs):
        for i in rs:
            I(f"v_mad_i32_i24 v{vD+i}, v{vBK+i}, s{cN}, v{vD+i}")
            I(f"v_mul_u32_u24 v{u(6)}, s{cP}, v{vSR+i}")
            I(f"v_lshl_or_b32 v{vSR+i}, v{vD+i}, 18, v{vSR+i}")
            I(f"v_and_or_b32 v{u(6)}, v{u(6)}, s{cPM}, v{vIC+(i>>2)}")
            I(f"v_mad_u32_u24 v{vD+i}, v{vBK+i}, {LROW//4}, s{cN+4}")
            I(f"v_or_b32 v{vSR+i}, v{vSR+i}, v{u(6)}")
    def place(i, wait, em):
        I(f"s_waitcnt lgkmcnt({wait})")
        I(f"v_bfe_u32 v{u(6)}, v{vRK1+i}, 3, 5")
        I(f"v_add_lshl_u32 v{vD+i}, v{u(6)}, v{vD+i}, 2")
        I(f"v_and_b32 v{u(6)}, 3, v{u(6)}")
        I(f"v_mad_i32_i24 v{u(6)}, v{u(6)}, -3, v{vD+i}")
        I(f"v_cmpx_gt_u32 vcc, {33*CAP}, v{vRK1+i}")
        I(f"ds_write_b32 v{vD+i}, v{vSR+i}")
        I(f"ds_write_b8 v{u(6)}, v{vID+(i&3)} offset:12")
        I(f"s_mov_b64 exec, {em}")
    I(f"s_movk_i32 s{cN+4}, {CIMG//4}")
    for d in range(2): I(f"v_mov_b64 {rr(vRK1+4+2*d,2)}, 0")
    I("s_waitcnt lgkmcnt(0)")
    I("s_barrier")
    vTG = vS + 2
    I(f"s_add_u32 s{sK}, s{sK}, {KINC:#x}")
    I(f"v_lshlrev_b32 v{vTG}, v{vcS}, s{sK}")
    I(f"v_and_b32 v{u(6)}, 4, v{lane}")
    I(f"v_mul_u32_u24 v{u(6)}, {37 << 15}, v{u(6)}")
    I(f"v_lshl_add_u32 v{vTG}, v{u(6)}, 8, v{vTG}")
    I(f"v_and_b32 v{vTG}, 0xfe000000, v{vTG}")
    I(f"s_cmp_ge_u32 s{sWP}, 5")
    I("s_cbranch_scc1 L_R4")
    I("s_waitcnt vmcnt(3)")
    stamp(1)
    rank_a(range(4))
    I("s_waitcnt vmcnt(1)")
    I(f"s_mov_b64 exec, {sp(m2)}")
    rank_a(range(4, 8))
    I("s_mov_b64 exec, -1")
    rank_b(range(4))
    for i in range(4): place(i, 7 + i, "-1" if i < 3 else sp(m2))
    I("s_waitcnt vmcnt(0)")
    rank_b(range(4, 8))
    for i in range(4, 8): place(i, 7 + i, sp(m2) if i < 7 else "-1")
    I("s_branch L_B1")
    L("L_R4")
    I("s_waitcnt vmcnt(1)")
    if TS: STN.pop()
    stamp(1)
    rank_a(range(4))
    I("s_waitcnt vmcnt(0)")
    rank_b(range(4))
    for i in range(4): place(i, 3 + i, "-1")
    L("L_B1")
    I(f"v_max3_u32 v{u(6)}, v{vRK1}, v{vRK1+1}, v{vRK1+2}")
    I(f"v_max3_u32 v{u(7)}, v{vRK1+3}, v{vRK1+4}, v{vRK1+5}")
    I(f"v_max3_u32 v{u(6)}, v{u(6)}, v{vRK1+6}, v{vRK1+7}")
    I(f"v_max_u32 v{u(6)}, v{u(6)}, v{u(7)}")
    I(f"v_cmp_le_u32 vcc, {33*CAP}, v{u(6)}")
    I("s_cbranch_vccnz L_PEXT")
    L("L_PEXTR")
    w_loads()
    I("s_waitcnt lgkmcnt(0)")
    I("s_barrier")
    stamp(2)
    vO, vHS = vQ, u(4)
    I(f"ds_read_b128 {rr(vHS,4)}, v{l16} offset:{HIST1}")
    for i in range(4):
        I(f"ds_read_b128 {rr(vO+4*i,4)}, v{lo} offset:{64*LROW*i}")
    for i in range(1, 4): I(f"s_mov_b32 s{sM+15+i}, {64*RS*i}")
    I("s_waitcnt lgkmcnt(4)")
    I(f"v_max3_u32 v{u(0)}, v{vHS}, v{vHS+1}, v{vHS+2}")
    I(f"v_max_u32 v{u(0)}, v{u(0)}, v{vHS+3}")
    I(f"v_cmp_lt_u32 vcc, {33*(CAP+8)}, v{u(0)}")
    I("s_cbranch_vccnz L_POVF")
    L("L_POUT")
    for i in range(4):
        I(f"s_waitcnt lgkmcnt({3 - i})")
        I(f"v_or_b32 v{vO+4*i+3}, v{vO+4*i+3}, v{vTG}")
        I(f"buffer_store_dwordx4 {rr(vO+4*i,4)}, v{go}, {sq(sCEL)}, {f's{sM+15+i}' if i else '0'} offen{pol(STP)}")
    stamp(3)
    if "c" in opt("tsx", ""): I("s_waitcnt vmcnt(0)")
    stamp("c0")
    t = vACC
    I(f"s_mov_b32 s{sA}, {f2u(-LOG2E):#x}")
    I(f"s_mov_b32 s{sBt}, s{sA}")
    I(f"s_mov_b32 s{cM}, 0x05040100")
    I(f"s_mov_b32 s{cP}, 0x07060302")
    def wscaled(src, off):
        for d in range(4):
            I(f"v_lshlrev_b32 v{t+2*d}, 16, v{src+d}")
            I(f"v_and_b32 v{t+2*d+1}, 0xffff0000, v{src+d}")
        for d in range(4): I(f"v_pk_mul_f32 {rr(t+2*d,2)}, {rr(t+2*d,2)}, {sp(sA)}")
        for n in range(4): I(f"v_cvt_pk_bf16_f32 v{t+8+n}, v{t+n}, v{t+4+n}")
        wput(t + 8, off)
    def wplain(src, off, tt):
        for n in range(4): I(f"v_perm_b32 v{tt+n}, v{src+2+(n>>1)}, v{src+(n>>1)}, s{cP if n & 1 else cM}")
        wput(tt, off)
    def wput(r, off):
        a = wl
        if off:
            a = r + 4
            I(f"v_add_u32 v{a}, {off}, v{wl}")
        I(f"ds_write2_b32 v{a}, v{r}, v{r+1} offset0:0 offset1:8")
        I(f"ds_write2_b32 v{a}, v{r+2}, v{r+3} offset0:16 offset1:24")
    I("s_waitcnt vmcnt(4)")
    if OLP == 0: own_loads()
    stamp("b4")
    wplain(vRW + 8, WAI - WBI, t + 16)
    wscaled(vRW, 0)
    wplain(vRW + 4, WVI - WBI, t + 24)
    I(f"s_cmp_ge_u32 s{sWP}, 2")
    I("s_cbranch_scc1 L_NOWC")
    wscaled(vEO, WCI - WBI)
    L("L_NOWC")
    I(f"s_mul_i32 s{sTM}, s{sB}, {RS}")
    I(f"s_add_u32 s{sTM}, s{sTM}, {WS_CELL}")
    srd(sCEL, pWS, 256*128, f"s{sTM}")
    I(f"s_add_u32 s{sTM}, s{sTM}, {256*RS}")
    srd(sD2, pWS, 256*128, f"s{sTM}")
    vC, vEB = vACC + 32, vACC + 60
    pa = vT16
    for k in (1, 2, 3): I(f"s_movk_i32 s{sCI+k-1}, {8192*k}")
    def poll_load(i):
        so = "0" if i == 0 else f"s{sCI+i-1}"
        I(f"buffer_load_dwordx4 {rr(vC+4*i,4)}, v{pa}, {sq(sCEL)}, {so} offen sc1")
    I("s_waitcnt lgkmcnt(0)")
    if OLP == 1: own_loads()
    I("s_barrier")
    stamp(4)
    if OLP >= 2: own_loads()
    vWA = vACC
    I(f"v_add_u32 v{wal}, {WBI}, v{wal}")
    def trw(reg, img):
        return [f"ds_read_b64_tr_b16 {rr(reg+8*n+4*s+2*uu,2)}, v{wal} offset:{img + (32*s + 8*uu)*WR + 32*n}"
                for n in range(4) for s in range(2) for uu in range(2)]
    tw = trw(vWA, WAI - WBI) + trw(vWB, 0) + trw(vWV, WVI - WBI)
    for x_ in tw[:14]: I(x_)
    prefill(vCA + 16)
    for x_ in tw[14:32]: I(x_)
    nxt = 32
    I(f"v_subrev_u32 v{u(6)}, s{sSTG}, v{vAX}")
    I(f"s_movk_i32 s{sTM}, {(PL-XI)//8}")
    I(f"v_mad_u32_u24 v{u(6)}, v{vcS}, s{sTM}, v{u(6)}")
    I(f"v_add_u32 v{u(6)}, s{sOW}, v{u(6)}")
    I(f"v_and_b32 v{u(4)}, 15, v{lane}")
    I(f"v_mul_u32_u24 v{u(4)}, {AR}, v{u(4)}")
    I(f"v_lshrrev_b32 v{u(5)}, 4, v{lane}")
    I(f"v_lshl_add_u32 v{u(4)}, v{u(5)}, 3, v{u(4)}")
    I(f"s_mul_i32 s{sTM}, s{sWP}, {32*AR}")
    I(f"s_add_u32 s{sTM}, s{sTM}, {ATAB}")
    I(f"v_add_u32 v{u(4)}, s{sTM}, v{u(4)}")
    vEM, vET = vEO, vACC + 56
    ownn, owna, mapa = vEO + 1, vEO + 2, vEO + 3
    cab, cal = vEO + 4, vEO + 5
    I(f"v_mul_u32_u24 v{vEB}, {CH}, v{ha}")
    for i in range(1, 4): I(f"v_add_u32 v{vEB+i}, {64*i*CH}, v{vEB}")
    I(f"s_mov_b32 s{sEM}, {EMASK:#x}")
    I(f"s_mov_b32 s{sEM+1}, {EMASK:#x}")
    I(f"v_mov_b32 v{u(3)}, 0xfffff")
    I(f"v_cndmask_b32 v{vEM}, 0, v{u(3)}, {sp(sEM)}")
    I(f"v_and_b32 v{u(3)}, -32, v{pa}")
    I(f"v_lshlrev_b32 v{u(3)}, 16, v{u(3)}")
    for i in range(4):
        I(f"v_add_u32 v{vET+i}, {(EARLY + 8192*i) << 16:#x}, v{u(3)}")
        I(f"v_cndmask_b32 v{vET+i}, 0, v{vET+i}, {sp(sEM)}")
    I(f"v_mov_b32 v{one}, 4")
    I(f"v_and_b32 v{ownn}, 31, v{lane}")
    I(f"v_add_lshl_u32 v{mapa}, v{ownn}, s{sWIN}, 2")
    I(f"v_lshrrev_b32 v{u(3)}, 5, v{lane}")
    I(f"v_lshl_add_u32 v{owna}, v{u(3)}, 11, v{mapa}")
    I(f"v_add_u32 v{mapa}, {MAP}, v{mapa}")
    I(f"v_and_b32 v{cal}, 16, v{lane}")
    I(f"v_lshrrev_b32 v{cal}, 1, v{cal}")
    I(f"v_bfe_u32 v{u(3)}, v{lane}, 2, 2")
    I(f"v_add_u32 v{cal}, v{cal}, v{u(3)}")
    I(f"v_add_u32 v{cab}, {ATAB}, v{vcS}")
    I("s_waitcnt lgkmcnt(4)")
    for x_ in tw[nxt:]: I(x_)
    I(f"s_movk_i32 s{sFM}, 0xffc")
    I(f"s_movk_i32 s{sSKIP}, {CAP+8}")
    I(f"s_mov_b32 s{sXT}, 0")
    I(f"s_mov_b32 s{sSP}, 0")
    I(f"s_mov_b32 s{sT}, 0x1ffffff")
    I(f"s_mov_b32 s{sN}, 0xffff")
    lo0, hi0, lo1, hi1 = sWS0, sWS1, sB0E, sSH
    I(f"s_mul_i32 s10, s{sW}, 49")
    I(f"s_sub_i32 s{lo0}, s10, 6")
    I(f"s_ashr_i32 s{lo0}, s{lo0}, 1")
    I(f"s_add_i32 s{hi0}, s10, 7")
    I(f"s_ashr_i32 s{hi0}, s{hi0}, 1")
    I(f"s_add_i32 s{lo1}, s10, 43")
    I(f"s_ashr_i32 s{lo1}, s{lo1}, 1")
    I(f"s_add_i32 s{hi1}, s{lo0}, 31")
    I(f"s_cmp_eq_u32 s{sW}, 7")
    I(f"s_cselect_b32 s{lo1}, {BN}, s{lo1}")
    I(f"s_cselect_b32 s{hi1}, {BN}, s{hi1}")
    stamp("b0")
    I(f"s_waitcnt vmcnt({1 if PF else 0})")
    stamp("b1")
    PP = opt("pp", 2)
    for k in range(2):
        for s in range(2): I(f"ds_read_b128 {rr(vX+8*k+4*s,4)}, v{u(6)} offset:{512*k + 64*s}")
    wplain(vRU, WUI - WBI, vCA + 16)
    if PP == 0:
        for i in range(4): poll_load(i)
    I(f"s_mov_b32 s{sA}, {f2u(-LOG2E):#x}")
    I(f"s_mov_b32 s{sBt}, s{sA}")
    I(f"s_cmp_eq_u32 s{sWP}, 7")
    I("s_cbranch_scc1 L_NOA")
    I("s_waitcnt lgkmcnt(2)")
    for k in range(2):
        for s in range(2):
            for n in range(4):
                D = (vQ if k == 0 else vCA) + 4*n
                I(m16(D, vWA+8*n+4*s, vX+8*k+4*s, D if s else None))
    for k in range(2):
        D = vQ if k == 0 else vCA
        if k:
            I(f"s_cmp_eq_u32 s{sWP}, 6")
            I("s_cbranch_scc1 L_NOA")
        for i in range(8): I(f"v_pk_mul_f32 {rr(D+2*i,2)}, {rr(D+2*i,2)}, {sp(sA)}")
        for i in range(8): I(f"v_cvt_pk_bf16_f32 v{D+i}, v{D+2*i}, v{D+2*i+1}")
        for n in range(4): I(f"ds_write_b64 v{u(4)}, {rr(D+2*n,2)} offset:{16*AR*k + 32*n}")
    L("L_NOA")
    if PP == 2:
        for i in range(4): poll_load(i)
    stamp(5)
    vA, vRK, vR1 = vACC, vACC + 16, vQ
    mk = lambda i, j: sM + 2*(4*i + j)
    def rec_ops(d, x, byte, eb, a, r1, keep=None):
        e_ = r1 if keep is None else keep
        return [f"v_add_u32_sdwa v{e_}, v{x}, v{eb} {SDW} src0_sel:BYTE_{byte} src1_sel:DWORD",
                f"v_lshrrev_b32 v{u(1)}, 28, v{d}",
                f"v_lshl_add_u32 v{e_}, v{u(1)}, 8, v{e_}",
                f"v_and_b32 v{u(1)}, 60, v{a}",
                f"v_lshl_add_u32 v{r1}, v{u(1)}, 19, v{e_}"]
    for i in range(4):
        c_ = vC + 4*i
        L(f"L_PW{i}")
        I(f"s_waitcnt vmcnt({3 - i})")
        I(f"v_xor_b32 v{u(0)}, v{c_+3}, v{vTG}")
        for j in range(3): I(f"v_and_b32_sdwa v{vA+4*i+j}, v{c_+j}, s{sFM} {SDW} src0_sel:WORD_1 src1_sel:DWORD")
        I(f"v_cmp_lt_u32 vcc, s{sT}, v{u(0)}")
        for j in range(3): I(f"v_cmp_ne_u32 {sp(mk(i,j))}, 0, v{c_+j}")
        I(f"s_cbranch_vccnz L_RT{i}")
        if i == 3: stamp(6)
        for j in range(3):
            I(f"s_mov_b64 exec, {sp(mk(i,j))}")
            I(f"ds_add_rtn_u32 v{vRK+4*i+j}, v{vA+4*i+j}, v{one} offset:{HIST}")
        I("s_mov_b64 exec, -1")
        if i == 3:
            I(f"v_or3_b32 v{u(2)}, v{vC+3}, v{vC+7}, v{vC+11}")
            I(f"v_or_b32 v{u(2)}, v{u(2)}, v{vC+15}")
            I(f"v_and_b32 v{u(2)}, 0x1000000, v{u(2)}")
            I(f"v_cmp_ne_u32 vcc, 0, v{u(2)}")
            I("s_cbranch_vccnz L_XT1")
            L("L_XT1R")
        for j in range(3):
            put(rec_ops(c_+j, c_+3, j, vEB+i, vA+4*i+j, vR1+4*i+j, vR1+4*i+3 if j == 0 and JE else None))
    fill = []
    for i in range(4):
        fill += [f"v_and_or_b32 v{vC+4*i}, v{vC+4*i}, s{sN}, v{vET+i}", f"v_or_b32 v{vR1+4*i}, v{vR1+4*i}, v{vEM}"]
        fill += [f"v_and_b32 v{vC+4*i+j}, s{sN}, v{vC+4*i+j}" for j in (1, 2)]
    I(f"v_mov_b32 v{u(9)}, {FLAG}")
    I("s_waitcnt lgkmcnt(0)")
    stamp("d0")
    I("s_barrier")
    stamp(7)
    def early(i):
        if not JE: return
        I(f"v_mov_b32_dpp v{vEI}, v{vR1+4*i+3} quad_perm:[1,1,3,3] row_mask:0xf bank_mask:0xf")
        I(f"s_lshl_b32 m0, s{sWP}, 10")
        I(f"s_and_b64 vcc, {sp(mk(i,0))}, {sp(sEM)}")
        I(f"s_add_u32 m0, m0, {EARLY + 8192*i}")
        I("s_lshr_b64 exec, vcc, 1")
        I("s_or_b64 exec, exec, vcc")
        I(f"buffer_load_dwordx4 {rr(vEI,2)}, {sq(sEP)}, 0 idxen offen{pol(EP)} lds")
        I("s_mov_b64 exec, -1")
    EPOS = opt("epos", "0123")
    def epoint(k):
        for i in range(4):
            if int(EPOS[i]) == k: early(i)
    c, p, tot, sc = u(0), u(4), u(8), u(9)
    hh = vX
    own, to2, ex, z_, eh, el = u(10), u(11), u(12), u(13), u(14), u(15)
    SD = f"{SDW} src0_sel:WORD_0 src1_sel:WORD_0"
    HL = f"{SDW} src0_sel:WORD_0 src1_sel:WORD_1"
    I(f"ds_read_u16 v{own}, v{owna} offset:{HIST}")
    I(f"ds_read_u16 v{to2}, v{owna} offset:{HIST + 1024}")
    for ph in range(4):
        I(f"ds_read_b128 {rr(hh+4*ph,4)}, v{l16} offset:{HIST + 1024*ph}")
    I(f"ds_read_b32 v{vQD}, v{sc} offset:8")
    epoint(0)
    I("s_cmp_lg_u32 s2, 0")
    I("s_cbranch_scc1 L_NOK")
    I(f"v_mov_b32 v{vQD+1}, s{sK}")
    I(f"v_mov_b32 v{vQD+2}, 0")
    I(f"buffer_store_dword v{vQD+1}, v{vQD+2}, {sq(sWS)}, 0 offen sc1")
    L("L_NOK")
    I("s_waitcnt lgkmcnt(5)")
    I(f"v_lshl_or_b32 v{own}, v{to2}, 16, v{own}")
    I(f"v_mov_b32 v{to2}, v{own}")
    I("s_waitcnt lgkmcnt(0)")
    stamp("d1")
    f2 = []
    for i in range(4):
        f2 += [f"v_add_u32_sdwa v{c+i}, v{hh+i}, v{hh+4+i} {SD}", f"v_add_u32_sdwa v{p+i}, v{hh+8+i}, v{hh+12+i} {SD}"]
    f2 += [f"v_add_u32 v{c+i}, v{c+i}, v{p+i}" for i in range(4)]
    wave_scan(to2, f2, half=True)
    put(f2)
    I(f"v_add_u32 v{p+1}, v{c}, v{c+1}")
    I(f"v_add_u32 v{p+2}, v{p+1}, v{c+2}")
    I(f"v_add_u32 v{p+3}, v{p+2}, v{c+3}")
    I(f"v_mov_b32 v{tot}, v{p+3}")
    f2 = [f"v_sub_u32 v{ex}, v{to2}, v{own}", f"v_add_u32_sdwa v{eh}, v{to2}, v{to2} {HL}",
          f"v_add_u32_sdwa v{z_}, v{ex}, v{ex} {HL}", f"v_add_u32_sdwa v{el}, v{own}, v{own} {HL}",
          f"v_add_u32 v{c+1}, v{c}, v{p+1}", f"v_add_u32 v{c+2}, v{p+1}, v{p+2}",
          f"v_permlane32_swap_b32 v{z_}, v{eh}", f"v_add_u32 v{c+3}, v{p+2}, v{p+3}",
          f"v_add_u32 v{z_}, v{z_}, v{eh}",
          f"v_cndmask_b32 v{el}, 0, v{el}, {sp(sJ3)}",
          f"v_add_u32 v{eh}, v{z_}, v{el}",
          f"v_readfirstlane_b32 s{sMORE}, v{vQD}"]
    I(f"s_mov_b32 s{sJ3}, -1")
    I(f"s_mov_b32 s{sJ3+1}, 0")
    wave_scan(tot, f2)
    assert not f2
    stamp("d2")
    epoint(1)
    I(f"v_sub_u32 v{p}, v{tot}, v{p+3}")
    I(f"v_readlane_b32 s10, v{tot}, 63")
    I(f"v_sub_u32_sdwa v{el}, v{eh}, v{own} {SDW} src0_sel:DWORD src1_sel:WORD_1")
    for i in range(4):
        I(f"v_lshl_add_u32 v{c+i}, v{p}, 1, v{c+i}")
    ASYM = opt("asym", 16)
    I("s_lshr_b32 s11, s10, 5")
    I(f"s_add_u32 s11, s11, {ASYM}")
    I("s_and_b32 s11, s11, -32")
    I(f"s_sub_i32 s11, s11, {ASYM}")
    I("s_lshl_b32 s11, s11, 3")
    I("s_lshr_b32 s10, s10, 1")
    I(f"s_lshr_b32 s{sF0}, s{sW}, 1")
    I(f"s_mul_i32 s{sF0}, s{sF0}, s10")
    I(f"s_add_i32 s11, s11, s{sF0}")
    I(f"s_add_i32 s10, s10, s{sF0}")
    I(f"s_bitcmp1_b32 s{sW}, 0")
    I(f"s_cselect_b32 s{sEND}, s11, s{sF0}")
    I("s_cselect_b32 s10, s10, s11")
    I(f"s_mov_b32 s{sF0}, 0")
    I(f"s_mov_b32 s{sF1}, 0")
    for i in range(4):
        I(f"v_cmp_gt_i32 vcc, s{sEND}, v{c+i}")
        I(f"v_cmp_gt_i32 {sp(sTM)}, s10, v{c+i}")
        I("s_bcnt1_i32_b64 s11, vcc")
        I(f"s_add_u32 s{sF0}, s{sF0}, s11")
        I(f"s_bcnt1_i32_b64 s11, {sp(sTM)}")
        I(f"s_add_u32 s{sF1}, s{sF1}, s11")
    I(f"s_max_i32 s{sF0}, s{sF0}, s{lo0}")
    I(f"s_min_i32 s{sF0}, s{sF0}, s{hi0}")
    I(f"s_max_i32 s{sF1}, s{sF1}, s{lo1}")
    I(f"s_min_i32 s{sF1}, s{sF1}, s{hi1}")
    stamp("d3")
    epoint(2)
    f0, f1 = sWS0, sWS1
    A01, A23, E01, E23, Z1 = sCI, sCUR, sR0, sCNT, sST
    I(f"s_sub_u32 s{f0}, s{sF0}, s{sWIN}")
    I(f"s_sub_u32 s{f1}, s{sF1}, s{sWIN}")
    I(f"v_readlane_b32 s{sT}, v{z_}, s{f0}")
    I(f"v_readlane_b32 s{Z1}, v{z_}, s{f1}")
    I(f"s_add_u32 s10, s{f0}, 32")
    I(f"s_add_u32 s11, s{f1}, 32")
    I(f"v_readlane_b32 s{A01}, v{ex}, s{f0}")
    I(f"v_readlane_b32 s{E01}, v{ex}, s{f1}")
    I(f"v_readlane_b32 s{A23}, v{ex}, s10")
    I(f"v_readlane_b32 s{E23}, v{ex}, s11")
    I(f"s_sub_u32 s{sEND}, s{Z1}, s{sT}")
    I(f"s_add_u32 s10, s{sEND}, 255")
    I("s_lshr_b32 s10, s10, 8")
    I("s_lshl_b32 s10, s10, 7")
    I(f"s_sub_u32 s10, s10, s{sMORE}")
    I("s_max_i32 s10, s10, 0")
    I(f"s_add_u32 s{sT}, s{sT}, s10")
    I(f"s_add_u32 s10, s{f0}, 16")
    I(f"s_min_u32 s10, s10, s{f1}")
    I(f"s_sub_i32 s11, s{f1}, 16")
    inl, inh, mo = sTM, sTM + 2, sMSK
    I(f"v_cmp_ge_u32 {sp(inl)}, s{sT}, v{el}")
    I(f"v_cmp_ge_u32 {sp(inh)}, s{sT}, v{eh}")
    I(f"v_cmp_gt_i32 vcc, s10, v{ownn}")
    I(f"v_cmp_gt_i32 {sp(sA)}, s11, v{ownn}")
    I(f"v_cmp_le_u32 {sp(mo)}, s{f0}, v{ownn}")
    I(f"v_cmp_gt_u32 {sp(sJ3)}, s{f1}, v{ownn}")
    I(f"s_and_b64 {sp(inl)}, {sp(inl)}, vcc")
    I(f"s_and_b64 {sp(inh)}, {sp(inh)}, vcc")
    I(f"s_or_b64 {sp(inl)}, {sp(inl)}, {sp(sA)}")
    I(f"s_or_b64 {sp(inh)}, {sp(inh)}, {sp(sA)}")
    I(f"s_bcnt1_i32_b32 s{sB0E}, s{inl}")
    I(f"s_bcnt1_i32_b32 s10, s{inh}")
    I(f"s_bcnt1_i32_b32 s11, s{inl+1}")
    I(f"s_bcnt1_i32_b32 s{sSH}, s{inh+1}")
    I(f"v_readlane_b32 s{f0}, v{ex}, s{sB0E}")
    I(f"v_readlane_b32 s10, v{ex}, s10")
    I("s_add_u32 s11, s11, 32")
    I(f"s_add_u32 s{sT}, s{sSH}, 32")
    I(f"v_readlane_b32 s{f1}, v{ex}, s11")
    I(f"v_readlane_b32 s11, v{ex}, s{sT}")
    I(f"v_mov_b32 v{c}, s{sN}")
    I(f"v_cndmask_b32 v{c+1}, 0, v{c}, {sp(inl)}")
    I(f"v_cndmask_b32 v{c}, 0, v{c}, {sp(inh)}")
    I(f"s_and_b64 {sp(mo)}, {sp(mo)}, {sp(sJ3)}")
    Q01, Q23 = f0, f1
    I(f"s_pack_lh_b32_b16 s{Q01}, s{f0}, s10")
    I(f"s_pack_lh_b32_b16 s{Q23}, s{f1}, s11")
    I(f"v_lshl_or_b32 v{c}, v{c}, 16, v{c+1}")
    I(f"s_sub_u32 s{sT}, s{sL}, {R0 - BIAS}")
    I(f"s_pack_ll_b32_b16 s{sT}, s{sT}, s{sT}")
    def bases(lo01, lo23, hi01, hi23, d, keep=None):
        I(f"s_sub_u32 s10, s{hi01}, s{lo01}")
        I(f"s_sub_u32 s11, s{hi23}, s{lo23}")
        I(f"s_mul_i32 s10, s10, 0x10001")
        I(f"s_lshl_b32 vcc_lo, s10, 16")
        I(f"s_pack_hh_b32_b16 s10, s10, s10")
        I(f"s_lshl_b32 vcc_hi, s11, 16")
        I(f"s_add_u32 vcc_hi, vcc_hi, s10")
        if keep is not None:
            I(f"s_add_u32 s{keep}, vcc_hi, s11")
            I(f"s_lshr_b32 s{keep}, s{keep}, 16")
        I(f"s_sub_u32 s10, s{sT}, s{lo01}")
        I(f"s_sub_u32 s11, s{sT}, s{lo23}")
        I("s_add_u32 s10, s10, vcc_lo")
        I("s_add_u32 s11, s11, vcc_hi")
        I(f"v_mov_b32 v{d}, s10")
        I(f"v_mov_b32 v{d+1}, s11")
    LEN0 = sJ3
    bases(A01, A23, Q01, Q23, p, LEN0)
    I(f"s_add_u32 s{sT}, s{sT}, {LWB * 0x10001:#x}")
    bases(Q01, Q23, E01, E23, p + 2)
    I(f"v_bfi_b32 v{p}, v{c}, v{p}, v{p+2}")
    I(f"v_bfi_b32 v{p+1}, v{c}, v{p+1}, v{p+3}")
    I(f"s_mov_b32 exec_hi, 0")
    I(f"v_mov_b32 v{p+1}, v{p}")
    I(f"s_mov_b64 exec, {sp(mo)}")
    I(f"v_add_u32 v{ex}, v{ex}, v{p+1}")
    I(f"s_lshl_b32 s10, s{sW}, 3")
    I(f"v_cndmask_b32 v{c}, 4, 0, {sp(inl)}")
    I(f"ds_write_b16 v{owna}, v{ex} offset:{HIST + 2}")
    I(f"ds_write_b16_d16_hi v{owna}, v{ex} offset:{HIST + 1024 + 2}")
    I("s_mov_b32 exec_hi, 0")
    I(f"v_add_u32 v{c}, s10, v{c}")
    I(f"ds_write_b32 v{mapa}, v{c}")
    I("s_mov_b64 exec, -1")
    stamp("d5")
    I(f"s_sub_u32 s{sEND}, s{sEND}, s{LEN0}")
    I(f"s_max_u32 s10, s{sEND}, s{LEN0}")
    I(f"s_add_u32 s10, s10, s{sMORE}")
    I(f"s_mul_i32 s11, s{Z1}, {LWB * 65536 // BIAS}")
    I("s_lshr_b32 s11, s11, 16")
    I("s_max_u32 s10, s10, s11")
    I(f"s_cmp_lt_u32 s10, {LWB}")
    I("s_cbranch_scc1 L_LFIT")
    I(f"ds_write_b32 v{sc}, v{one}")
    L("L_LFIT")
    I(f"s_cmp_lg_u32 s{sMORE}, 0")
    I("s_cbranch_scc1 L_XCN")
    L("L_XCNR")
    epoint(3)
    put(fill)
    I("s_waitcnt lgkmcnt(0)")
    stamp(8)
    I("s_barrier")
    stamp(9)
    I(f"ds_read_b64 {rr(u(14),2)}, v{sc}")
    for i in range(4):
        for j in range(3):
            I(f"ds_read_u16 v{vA+4*i+j}, v{vA+4*i+j} offset:{HIST + 2}")
    epoint(4)
    def ntiles(l0, l1):
        I(f"s_add_u32 s10, s{l0}, 127")
        I("s_lshr_b32 s10, s10, 7")
        I("s_lshl1_add_u32 s10, s10, -1")
        I(f"s_add_u32 s11, s{l1}, 127")
        I("s_lshr_b32 s11, s11, 6")
        I("s_and_b32 s11, s11, -2")
        I(f"s_max_i32 s{sN}, s10, s11")
    I(f"s_add_u32 s{sB0E}, s{sB0E}, s{sWIN}")
    I(f"s_add_u32 s{sSH}, s{sSH}, s{sWIN}")
    I(f"s_min_u32 s{sWS0}, s{sF0}, 192")
    I(f"s_min_u32 s{sWS1}, s{sSH}, 192")
    I(f"s_and_b32 s10, s{sSH}, 15")
    I(f"s_cmp_lt_u32 s{sSH}, s{sB0E}")
    I(f"s_cselect_b32 s{sSH}, s10, 16")
    I(f"s_mov_b32 s{sST}, s{sMORE}")
    I("s_waitcnt lgkmcnt(12)")
    I(f"v_cmp_ne_u32 vcc, 0, v{u(14)}")
    I(f"v_readfirstlane_b32 s{sMORE}, v{u(15)}")
    I("s_cbranch_vccnz L_OVF")
    for i in range(4):
        for j in range(3):
            s_ = 4*i + j
            I("s_waitcnt lgkmcnt(11)")
            I(f"v_add_u32 v{vA+s_}, v{vA+s_}, v{vRK+s_}")
            I(f"s_mov_b64 exec, {sp(mk(i,j))}")
            I(f"ds_write2st64_b32 v{vA+s_}, v{vC+s_}, v{vR1+s_} {W2}")
            I("s_mov_b64 exec, -1")
    ntiles(LEN0, sEND)
    stamp("d6")
    L("L_CA")
    I(f"s_cmp_lg_u32 s{sXT}, 0")
    I("s_cbranch_scc1 L_XT2")
    L("L_XT2R")
    I(f"s_movk_i32 s10, {AR}")
    cad = [u(0), u(1), u(2), u(3)]
    for w in range(2):
        ws = sWS0 + w
        for uu in range(2):
            d = cad[2*w+uu]
            I(f"s_sub_u32 s11, {4*uu}, s{ws}")
            I(f"v_add_u32 v{d}, s11, v{cal}")
            I(f"v_and_b32 v{d}, 15, v{d}")
            I(f"v_add_u32 v{d}, s{ws}, v{d}")
            I(f"v_mad_u32_u24 v{d}, v{d}, s10, v{cab}")
    I("s_mov_b32 exec_hi, 0")
    for k in range(4): I(f"v_add_u32 v{cad[k]}, {WCI - WBI + 8*(k&1)*WR}, v{wal}")
    I("s_mov_b32 exec_hi, -1")
    for w in range(2):
        for n in range(4):
            for uu in range(2): I(f"ds_read_b64_tr_b16 {rr(vCA+16*w+4*n+2*uu,2)}, v{cad[2*w+uu]} offset:{32*n}")
    stamp("d7")
    I("s_waitcnt vmcnt(0) lgkmcnt(0)")
    stamp(10)
    I("s_barrier")
    I(f"s_cmp_lg_u32 s{sST}, 0")
    I("s_cbranch_scc1 L_XT3")
    L("L_XT3R")
    I(f"s_mov_b32 s10, {f2u(1e-6):#x}")
    I(f"ds_read_b128 {rr(vQD,4)}, v{vARX}")
    I(f"ds_read_b32 v{vEI}, v{vARE}")
    stamp(11)
    I(f"v_lshrrev_b32 v{u(0)}, 2, v{lane}")
    I(f"v_and_b32 v{u(0)}, 12, v{u(0)}")
    I(f"v_subrev_u32 v{u(0)}, s{sSH}, v{u(0)}")
    I("s_waitcnt lgkmcnt(0)")
    put(dma_tile())
    I("s_mov_b32 s11, s10")
    I(f"v_mov_b32 v{u(1)}, s10")
    for i in range(8): I(f"v_mov_b64 {rr(DEN(0,0)+2*i,2)}, {sp(10)}")
    for i in range(4):
        I(f"v_cmp_ne_u32 vcc, {-i}, v{u(0)}")
        I(f"v_mov_b64 {rr(NUM(0,0)+4*i,2)}, 0")
        I(f"v_mov_b64 {rr(NUM(0,0)+4*i+2,2)}, 0")
        I(f"v_cndmask_b32 v{DEN(1,0)+i}, 0, v{u(1)}, vcc")
    for i in range(8): I(f"v_mov_b64 {rr(NUM(1,0)+2*i,2)}, 0")
    for n in range(1, 4):
        for i in range(2): I(f"v_mov_b64 {rr(DEN(1,n)+2*i,2)}, {rr(DEN(1,0)+2*i,2)}")
    I(f"s_mov_b32 s{sCI}, -1")
    I(f"s_mov_b64 {sp(sMSK)}, 0")
    I(f"s_mov_b32 s{sR0}, 0")
    I(f"s_mov_b32 s{sCNT}, 0")
    L("L_GO")
    for m in range(2): I(f"ds_read_u16 v{vEA+m}, v{vARO} offset:{64*m}")
    I(f"ds_read_b128 {rr(vQD,4)}, v{vARX} offset:{LWB}")
    I(f"ds_read_b32 v{vEI}, v{vARE} offset:{LWB}")
    I(f"s_lshr_b32 s10, s{sW}, 1")
    I("s_lshl_b32 s10, s10, 8")
    I(f"s_add_u32 s10, s10, {PRG}")
    I(f"v_lshl_add_u32 v{vPA}, v{lane}, 2, s10")
    I(f"s_bitcmp1_b32 s{sW}, 0")
    I(f"s_cselect_b32 s{sSG}, -1, 1")
    I(f"s_mul_i32 s10, s{sSG}, s{sN}")
    I("s_lshl_b32 s10, s10, 24")
    I(f"v_mov_b32 v{vQ}, s10")
    I(f"ds_add_u32 v{vPA}, v{vQ}")
    I(f"v_mov_b32 v{vC1}, 0")
    I("s_mov_b32 exec_hi, 0")
    I(f"v_add_u32 v{vC1}, 0x200, v{vcEO}")
    I("s_mov_b32 exec_hi, -1")
    for i in range(16): I(f"v_mov_b64 {rr(vQ+2*i,2)}, 0")
    for i in range(2): I(f"v_mov_b64 {rr(vS+2*i,2)}, 0")
    I("s_waitcnt lgkmcnt(0)")
    put(eafix())
    stamp(12)
    I("s_waitcnt vmcnt(0)")
    stamp(13)
    cstamp(56)
    for m in range(2): I(f"ds_read_b128 {rr(vEO+4*m,4)}, v{vEA+m}")
    for m, s in ORD: I(xread(m, s))
    I(f"s_cmp_lt_i32 s{sN}, 1")
    I("s_cbranch_scc1 L_DONE")
    g = g_mfmas(vP, 0, 0)
    I("s_waitcnt lgkmcnt(4)")
    for x_ in g[:4]: I(x_)
    I("s_waitcnt lgkmcnt(0)")
    for x_ in g[4:]: I(x_)
    put(dma_tile())
    I(f"s_mov_b32 s{sT}, 1")
    for cp in ((1, 0) if FAIR else (0,)):
        sw = lambda par: [f"s_cmp_ge_i32 s{sRM}, {opt('fth', 1)}", f"s_cbranch_scc{1-cp} L_PB{par}{1-cp}", f"L_PB{par}{cp}:"] if FAIR else []
        body = phase(0, 0, cp) + sw(0) + phase(0, 1, cp) + [f"s_cmp_gt_u32 s{sT}, s{sN}", "s_cbranch_scc1 L_TAIL0"]
        body += phase(1, 0, cp) + sw(1) + phase(1, 1, cp) + [f"s_cmp_le_u32 s{sT}, s{sN}", f"s_cbranch_scc1 L_LOOP{cp}"]
        check_body(body)
        if "nodma" in opt("dbg", ""): body = [b for b in body if not b.startswith("buffer_load")]
        emit(".p2align 6")
        L(f"L_LOOP{cp}")
        put(body)
        if cp: I("s_branch L_TAIL1")
    L("L_TAIL1")
    put(s_num(1, 1) + s_den(1, 1, vR))
    I("s_branch L_DONE")
    L("L_TAIL0")
    put(s_num(0, 1) + s_den(0, 1, vR))
    L("L_DONE")
    I(f"v_mbcnt_lo_u32_b32 v{lane}, -1, 0")
    I(f"v_mbcnt_hi_u32_b32 v{lane}, -1, v{lane}")
    I(f"s_cmp_lg_u32 s{sMORE}, 0")
    I("s_cbranch_scc1 L_SLOW")
    L("L_EPI")
    stamp(14)
    cstamp(57)
    I(f"s_setprio {opt('epr', 3)}")
    e = lambda i: vCA + i
    xd = vWV
    I(f"v_bfe_u32 v{e(1)}, v{lane}, 2, 3")
    I(f"v_lshrrev_b32 v{e(2)}, 5, v{lane}")
    I(f"v_lshl_add_u32 v{e(1)}, v{e(2)}, 4, v{e(1)}")
    I(f"v_mul_u32_u24 v{e(1)}, {WR}, v{e(1)}")
    I(f"s_mov_b32 s10, {WUI}")
    I(f"v_add3_u32 v{e(1)}, v{e(1)}, v{vcS}, s10")
    wu = [f"ds_read_b64_tr_b16 {rr(vWB+8*n+4*s+2*uu,2)}, v{e(1)} offset:{(32*s + 8*uu)*WR + 32*n}" for s in range(2) for n in range(4) for uu in range(2)]
    I(f"v_and_b32 v{e(0)}, 48, v{lane}")
    I(f"v_and_b32 v{e(3)}, 15, v{lane}")
    I(f"v_lshlrev_b32 v{e(4)}, 3, v{e(3)}")
    I(f"v_lshlrev_b32 v{e(6)}, 3, v{e(0)}")
    I(f"s_movk_i32 s10, {(PL-32)//8}")
    I(f"v_mad_u32_u24 v{e(0)}, v{vcS}, s10, v{e(0)}")
    I("s_waitcnt lgkmcnt(0)")
    nd = lambda w, i: e(16 + 4*w + i)
    sO = [sOUT, sCEL]
    for w in range(2):
        ws = sWS0 + w
        I(f"s_lshl_b32 s{ws}, s{ws}, 5")
        I(f"s_add_u32 s10, s{ws}, {OWN}")
        I(f"v_add_u32 v{e(5)}, s10, v{e(4)}")
        for i in range(4):
            I(f"s_sub_u32 s11, {32*i}, s{ws}")
            I(f"v_add_u32 v{nd(w,i)}, s11, v{e(6)}")
            I(f"v_and_b32 v{nd(w,i)}, 0x1ff, v{nd(w,i)}")
            I(f"v_add_u32 v{e(8)}, v{nd(w,i)}, v{e(5)}")
            I(f"ds_read_b64 {rr(xd+8*w+2*i,2)}, v{e(8)} offset:{i*(PL-32)}")
        I(f"s_sub_u32 s11, 0, s{ws}")
        I(f"v_lshl_add_u32 v{e(8)}, v{e(4)}, 2, s11")
        I(f"v_and_b32 v{e(8)}, 0x1ff, v{e(8)}")
        I(f"v_add3_u32 v{e(8)}, v{e(8)}, v{e(0)}, s10")
        for s in range(2): I(f"ds_read_b128 {rr(vX+8*w+4*s,4)}, v{e(8)} offset:{64*s}")
        if w == 0:
            for x_ in wu[:8]: I(x_)
    for x_ in wu[8:]: I(x_)
    I(f"s_lshl_b32 s10, s{sSH}, 5")
    I(f"v_subrev_u32 v{e(6)}, s10, v{e(6)}")
    for i in range(4):
        I(f"v_cmpx_eq_u32 vcc, {-32*i & 0xffffffff:#x}, v{e(6)}")
        I(f"s_cbranch_execz L_NS{i}")
        for k in range(8): I(f"v_add_f32 v{vACC+4*k+i}, v{vACC+4*k+i}, v{vACC+32+4*k+i}")
        L(f"L_NS{i}")
        I("s_mov_b64 exec, -1")
    I(f"s_mul_i32 s10, s{sB}, {BN}")
    for k, r_ in enumerate((sF0, sB0E, sF1)):
        I(f"s_add_u32 s{sTM+k}, s10, s{r_}")
        I(f"s_min_u32 s{sTM+k}, s{sTM+k}, {N}")
        I(f"s_lshl_b32 s{sTM+k}, s{sTM+k}, 7")
    I(f"s_add_u32 s{sCEL}, s{sOUT}, s{sTM+1}")
    I(f"s_addc_u32 s{sCEL+1}, s{sOUT+1}, 0")
    I(f"s_sub_u32 s{sCEL+2}, s{sTM+2}, s{sTM+1}")
    I(f"s_add_u32 s{sOUT}, s{sOUT}, s{sTM}")
    I(f"s_addc_u32 s{sOUT+1}, s{sOUT+1}, 0")
    I(f"s_sub_u32 s{sOUT+2}, s{sTM+1}, s{sTM}")
    for w, r_ in enumerate((sF0, sB0E)):
        I(f"s_lshl_b32 s10, s{r_}, 5")
        I(f"s_sub_u32 s10, s{sWS0+w}, s10")
        I("s_lshl_b32 s10, s10, 2")
        I(f"v_add_u32 v{e(10+w)}, s10, v{e(4)}")
    for w in (1, 0):
        for k in range(16): I(f"v_rcp_f32 v{DEN(w,0)+k}, v{DEN(w,0)+k}")
    I("s_waitcnt lgkmcnt(8)")
    for w in range(2):
        XF = vP if w == 0 else vQ
        for i in range(4):
            for h in range(2):
                I(f"v_lshlrev_b32 v{XF+8*h+i}, 16, v{xd+8*w+2*i+h}")
                I(f"v_and_b32 v{XF+8*h+4+i}, 0xffff0000, v{xd+8*w+2*i+h}")
    for w in range(2):
        XF = vP if w == 0 else vQ
        for k in range(0, 16, 2): I(f"v_pk_fma_f32 {rr(NUM(w,0)+k,2)}, {rr(NUM(w,0)+k,2)}, {rr(DEN(w,0)+k,2)}, {rr(XF+k,2)}")
    I("s_waitcnt lgkmcnt(0)")
    k = 0
    for w in range(2):
        for s in range(2):
            for n in range(4):
                I(m16(NUM(w,n), vX+8*w+4*s, vWB+8*n+4*s, NUM(w,n)))
                if k < 8: I(f"v_lshl_add_u32 v{nd(k>>2,k&3)}, v{nd(k>>2,k&3)}, 2, v{e(10+(k>>2))}")
                k += 1
    for w in range(2):
        XF = vP if w == 0 else vQ
        for i in range(4):
            for n in range(4): I(f"v_max_f32 v{NUM(w,n)+i}, v{NUM(w,n)+i}, v{XF+4*n+i}")
            for h in range(2): I(f"v_cvt_pk_bf16_f32 v{DEN(w,0)+2*i+h}, v{NUM(w,2*h)+i}, v{NUM(w,2*h+1)+i}")
            I(f"buffer_store_dwordx2 {rr(DEN(w,0)+2*i,2)}, v{nd(w,i)}, {sq(sO[w])}, 0 offen{pol(OP)}")
    stamp_out()
    L("L_END")
    I("s_endpgm")
    def spin():
        I(f"s_add_u32 s{sSP}, s{sSP}, 1")
        I(f"s_cmp_gt_u32 s{sSP}, {opt('spin', 200000)}")
        I("s_cbranch_scc1 L_END")
        if opt("slp", 1): I(f"s_sleep {opt('slp', 1)}")
    for i in range(4):
        L(f"L_RT{i}")
        I("s_waitcnt vmcnt(0)")
        spin()
        for k in range(i, 4): poll_load(k)
        I(f"s_branch L_PW{i}")
    xg = vCA
    def xload(tag):
        for i in range(4):
            I(f"s_mov_b64 exec, {sp(mk(i,3))}")
            I(f"s_cbranch_execz L_XL{tag}{i}")
            I(f"s_movk_i32 s10, {8192*i}")
            I(f"buffer_load_dwordx4 {rr(xg+4*i,4)}, v{pa}, {sq(sD2)}, s10 offen sc1")
            L(f"L_XL{tag}{i}")
        I("s_mov_b64 exec, -1")
    L("L_XT1")
    for i in range(4):
        I(f"v_and_b32 v{u(2)}, 0x1000000, v{vC+4*i+3}")
        I(f"v_cmp_ne_u32 {sp(mk(i,3))}, 0, v{u(2)}")
        I(f"s_bcnt1_i32_b64 s10, {sp(mk(i,3))}")
        I(f"s_lshl2_add_u32 s{sXT}, s10, s{sXT}")
    xload("a")
    I(f"v_or3_b32 v{u(2)}, v{vC}, v{vC+4}, v{vC+8}")
    I(f"v_or_b32 v{u(2)}, v{u(2)}, v{vC+12}")
    I(f"v_and_b32 v{u(2)}, 0x10000, v{u(2)}")
    I(f"v_mov_b32 v{u(3)}, {FLAG}")
    I(f"v_cmpx_ne_u32 vcc, 0, v{u(2)}")
    I(f"ds_write_b32 v{u(3)}, v{one} offset:4")
    I("s_mov_b64 exec, 1")
    I(f"v_mov_b32 v{u(2)}, s{sXT}")
    I(f"ds_add_u32 v{u(3)}, v{u(2)} offset:8")
    I("s_mov_b64 exec, -1")
    I("s_branch L_XT1R")
    L("L_XCN")
    I(f"s_sub_u32 s10, s{sL}, {R0 - BIAS}")
    I(f"s_add_u32 s11, s10, s{LEN0}")
    I(f"v_mov_b32 v{u(0)}, s11")
    I(f"s_add_u32 s11, s10, s{sEND}")
    I(f"s_add_u32 s11, s11, {LWB}")
    I(f"v_mov_b32 v{u(1)}, s11")
    I(f"s_lshl_b32 s10, s{sW}, 3")
    I(f"v_mov_b32 v{u(2)}, s10")
    I(f"ds_write_b64 v{u(2)}, {rr(u(0),2)} offset:{CNT}")
    I("s_branch L_XCNR")
    L("L_XT2")
    I("s_waitcnt vmcnt(0)")
    I(f"s_mov_b64 {sp(sTM)}, 0")
    for i in range(4):
        I(f"v_cmp_ne_u32 vcc, s{sK}, v{xg+4*i+1}")
        I(f"s_and_b64 vcc, vcc, {sp(mk(i,3))}")
        I(f"s_or_b64 {sp(sTM)}, {sp(sTM)}, vcc")
    I("s_cbranch_scc0 L_XT2A")
    spin()
    xload("b")
    I("s_branch L_XT2")
    L("L_XT2A")
    I(f"s_cmp_eq_u32 s{sSKIP}, 0")
    I("s_cbranch_scc1 L_XT2R")
    for i in range(4):
        g_ = xg + 4*i
        I(f"s_mov_b64 exec, {sp(mk(i,3))}")
        I(f"v_bfe_u32 v{g_+1}, v{g_}, 18, 8")
        I(f"v_lshlrev_b32 v{g_+1}, 2, v{g_+1}")
        I(f"v_add_u32 v{g_+3}, {MAP}, v{g_+1}")
        I(f"ds_read_b32 v{g_+3}, v{g_+3}")
        put(rec_ops(g_, g_+2, 0, vEB+i, g_+1, g_+2))
        I(f"v_and_b32 v{g_}, 0xffff, v{g_}")
        I("s_waitcnt lgkmcnt(0)")
        I(f"ds_add_rtn_u32 v{g_+3}, v{g_+3}, v{one} offset:{CNT}")
        I("s_waitcnt lgkmcnt(0)")
        I(f"ds_write2st64_b32 v{g_+3}, v{g_}, v{g_+2} {W2}")
    I("s_mov_b64 exec, -1")
    I("s_waitcnt lgkmcnt(0)")
    I("s_branch L_XT2R")
    def lens_from_cnt(t):
        I(f"s_lshl_b32 s10, s{sW}, 3")
        I(f"v_mov_b32 v{t}, s10")
        I(f"ds_read_b64 {rr(t,2)}, v{t} offset:{CNT}")
        I("s_waitcnt lgkmcnt(0)")
        I(f"v_readfirstlane_b32 s{sTM}, v{t}")
        I(f"v_readfirstlane_b32 s{sTM+1}, v{t+1}")
        I(f"s_sub_u32 s10, s{sL}, {R0 - BIAS}")
        I(f"s_sub_u32 s{sTM}, s{sTM}, s10")
        I(f"s_sub_u32 s{sTM+1}, s{sTM+1}, s10")
        I(f"s_sub_u32 s{sTM+1}, s{sTM+1}, {LWB}")
        ntiles(sTM, sTM + 1)
    L("L_XT3")
    lens_from_cnt(u(0))
    I("s_branch L_XT3R")
    L("L_OVF")
    I(f"s_mov_b32 s{sSKIP}, 0")
    I(f"s_mov_b32 s{sN}, 0")
    I(f"s_mov_b32 s{sST}, 0")
    I(f"s_mov_b32 s{sMORE}, 4")
    I("s_waitcnt lgkmcnt(0)")
    I("s_branch L_CA")
    q = vCA
    L("L_PEXT")
    I(f"v_mov_b32 v{q+1}, s{sK}")
    I(f"v_mov_b32 v{q+3}, 0x1000000")
    I(f"s_mov_b32 s10, {256*RS}")
    for i in range(8):
        I(f"v_subrev_u32 v{q+4}, {33*CAP}, v{vRK1+i}")
        I(f"v_cmpx_gt_u32 vcc, {33*8}, v{q+4}")
        I(f"s_cbranch_execz L_PE{i}")
        I(f"ds_or_b32 v{vD+i}, v{q+3}")
        I(f"v_mov_b32 v{q}, v{vSR+i}")
        I(f"v_mov_b32 v{q+2}, v{vID+(i&3)}")
        I(f"v_bfe_u32 v{q+4}, v{vRK1+i}, 5, 3")
        I(f"v_lshlrev_b32 v{q+4}, 4, v{q+4}")
        I(f"v_mad_u32_u24 v{q+4}, v{vBK+i}, s{cR}, v{q+4}")
        I(f"buffer_store_dwordx4 {rr(q,4)}, v{q+4}, {sq(sCEL)}, s10 offen sc1")
        L(f"L_PE{i}")
        I("s_mov_b64 exec, -1")
    I("s_branch L_PEXTR")
    L("L_POVF")
    I("s_movk_i32 s11, 1986")
    for i in range(4):
        I(f"v_mul_u32_u24 v{q+i}, s11, v{vHS+i}")
        I(f"v_lshrrev_b32 v{q+i}, 16, v{q+i}")
    I(f"v_add_u32 v{q+5}, v{q}, v{q+1}")
    I(f"v_add_u32 v{q+6}, v{q+5}, v{q+2}")
    I(f"v_add_u32 v{q+7}, v{q+6}, v{q+3}")
    I(f"v_mov_b32 v{q+8}, v{q+7}")
    wave_scan(q + 8)
    I("s_nop 0")
    I(f"v_sub_u32 v{q+4}, v{q+8}, v{q+7}")
    I(f"v_add_u32 v{q+7}, v{q+4}, v{q+6}")
    I(f"v_add_u32 v{q+6}, v{q+4}, v{q+5}")
    I(f"v_add_u32 v{q+5}, v{q+4}, v{q}")
    for i in range(4): I(f"v_lshl_or_b32 v{q+4+i}, v{q+i}, 16, v{q+4+i}")
    I(f"v_add_u32 v{q+8}, {HDR}, v{l16}")
    I(f"ds_write_b128 v{q+8}, {rr(q+4,4)}")
    I("s_lshl_b32 s10, s2, 10")
    I(f"s_add_u32 s10, s10, {WS_HD}")
    I(f"buffer_store_dwordx4 {rr(q+4,4)}, v{l16}, {sq(sWS)}, s10 offen sc1")
    I(f"v_lshlrev_b32 v{q+9}, 2, v{ha}")
    for i in range(4): I(f"ds_read_b32 v{q+i}, v{q+9} offset:{HIST1 + 256*i}")
    for i in range(8):
        I(f"v_and_b32 v{q+10+i}, 0x3fc, v{vHA+i}")
        I(f"v_add_u32 v{q+10+i}, {HDR}, v{q+10+i}")
        I(f"ds_read_u16 v{q+10+i}, v{q+10+i}")
    I("s_waitcnt lgkmcnt(0)")
    for i in range(4):
        I(f"v_cmpx_lt_u32 vcc, {33*(CAP+8)}, v{q+i}")
        I(f"v_or_b32 v{vO+4*i}, 0x10000, v{vO+4*i}")
        I("s_mov_b64 exec, -1")
    I(f"s_mul_i32 s10, s2, {CH}")
    I(f"s_mov_b32 s{sTM}, {WS_RECS}")
    I(f"s_mov_b32 s{sTM+1}, {WS_LEID}")
    for i in range(8):
        I(f"v_mul_u32_u24 v{q}, s11, v{vRK1+i}")
        I(f"v_lshrrev_b32 v{q}, 16, v{q}")
        I(f"v_add3_u32 v{q}, v{q}, v{q+10+i}, s10")
        I(f"v_lshlrev_b32 v{q+1}, 2, v{q}")
        I(f"v_cmpx_le_u32 vcc, {33*(CAP+8)}, v{vRK1+i}")
        I(f"s_cbranch_execz L_PO{i}")
        I(f"buffer_store_byte v{vID+(i&3)}, v{q}, {sq(sWS)}, s{sTM+1} offen sc1")
        I(f"buffer_store_dword v{vSR+i}, v{q+1}, {sq(sWS)}, s{sTM} offen sc1")
        L(f"L_PO{i}")
        I("s_mov_b64 exec, -1")
    I("s_waitcnt vmcnt(0) lgkmcnt(0)")
    I("s_barrier")
    I("s_branch L_POUT")
    SB = 288
    t0, t1, t2, t3 = vP, vP+1, vP+2, vP+3
    L("L_SLOW")
    I("s_setprio 0")
    I(f"s_lshl_b32 s10, s{sWP}, 6")
    I(f"v_add_u32 v{tid}, s10, v{lane}")
    I(f"s_cmp_lg_u32 s{sMORE}, 4")
    I("s_cbranch_scc1 L_SL1")
    I(f"s_mov_b32 s{sMORE}, 1")
    I(f"v_and_b32 v{t0}, 0xff, v{tid}")
    I(f"v_lshlrev_b32 v{t1}, 7, v{t0}")
    I(f"buffer_load_dword v{t2}, v{t1}, {sq(sCEL)}, 0 offen sc1")
    I(f"v_lshlrev_b32 v{t1}, 10, v{t0}")
    I(f"s_lshl_b32 s10, s{sB}, 2")
    I(f"s_add_u32 s10, s10, {WS_HD}")
    I(f"buffer_load_dword v{t3}, v{t1}, {sq(sWS)}, s10 offen sc1")
    I(f"v_lshlrev_b32 v{t0}, 2, v{t0}")
    I(f"v_add_u32 v{t0}, {HDR}, v{t0}")
    I("s_waitcnt vmcnt(0)")
    I(f"v_and_b32 v{t2}, 0x10000, v{t2}")
    I(f"v_cmp_ne_u32 vcc, 0, v{t2}")
    I(f"v_mov_b32 v{t2}, {(CAP+8) << 16}")
    I("s_nop 0")
    I(f"v_cndmask_b32 v{t2}, v{t2}, v{t3}, vcc")
    I(f"ds_write_b32 v{t0}, v{t2}")
    I("s_waitcnt lgkmcnt(0)")
    I("s_barrier")
    L("L_SL1")
    I(f"s_add_u32 s{sR0}, s{sR0}, {SB}")
    I(f"s_cmp_lt_u32 s{sR0}, s{sCNT}")
    I("s_cbranch_scc1 L_BATCH")
    L("L_FIND")
    I(f"s_cmp_lg_u64 {sp(sMSK)}, 0")
    I("s_cbranch_scc1 L_GOT")
    I(f"s_add_u32 s{sCI}, s{sCI}, 1")
    I(f"s_cmp_ge_u32 s{sCI}, 4")
    I("s_cbranch_scc1 L_EPI")
    I(f"s_lshl_b32 s10, s{sCI}, 8")
    I(f"s_add_u32 s10, s10, {HDR}")
    I(f"v_lshl_add_u32 v{t0}, v{lane}, 2, s10")
    I(f"ds_read_u16 v{t0}, v{t0} offset:2")
    I("s_waitcnt lgkmcnt(0)")
    I(f"v_cmp_lt_u32 {sp(sMSK)}, s{sSKIP}, v{t0}")
    I("s_nop 3")
    I("s_branch L_FIND")
    L("L_GOT")
    I(f"s_ff1_i32_b64 s10, {sp(sMSK)}")
    I(f"s_bitset0_b64 {sp(sMSK)}, s10")
    I(f"s_lshl_b32 s11, s{sCI}, 6")
    I(f"s_add_u32 s{sCUR}, s10, s11")
    I(f"s_lshl_b32 s10, s{sCUR}, 2")
    I(f"s_add_u32 s10, s10, {HDR}")
    I(f"v_mov_b32 v{t0}, s10")
    I(f"ds_read_b32 v{t0}, v{t0}")
    I("s_waitcnt lgkmcnt(0)")
    I(f"v_readfirstlane_b32 s10, v{t0}")
    I("s_nop 3")
    I(f"s_lshr_b32 s{sCNT}, s10, 16")
    I(f"s_and_b32 s{sST}, s10, 0xffff")
    I(f"s_mov_b32 s{sR0}, s{sSKIP}")
    L("L_BATCH")
    I("s_waitcnt vmcnt(0)")
    I("s_barrier")
    prefill(vP + 4)
    I(f"v_and_b32 v{t0}, 15, v{lane}")
    I(f"v_mul_u32_u24 v{t1}, {LWB}, v{t0}")
    I(f"v_add_u32 v{t1}, {BIAS}, v{t1}")
    I(f"v_lshlrev_b32 v{t0}, 2, v{t0}")
    I(f"ds_write_b32 v{t0}, v{t1} offset:{CNT}")
    t1, t4, t5 = vQ, vQ + 2, vQ + 3
    I(f"v_add_u32 v{t0}, s{sR0}, v{tid}")
    I(f"s_mul_i32 s{sTM+2}, s{sCUR}, {CH}")
    I(f"s_add_u32 s11, s{sTM+2}, s{sST}")
    I(f"s_lshl_b32 s{sTM}, s11, 2")
    I(f"s_add_u32 s{sTM}, s{sTM}, {WS_RECS}")
    I(f"v_lshl_add_u32 v{t2}, v{t0}, 2, s{sTM}")
    I(f"s_add_u32 s{sTM}, s11, {WS_LEID}")
    I(f"v_add_u32 v{t3}, s{sTM}, v{t0}")
    I(f"s_mul_i32 s10, s{sB}, {RS}")
    I(f"s_lshl_b32 s{sTM}, s{sCUR}, 7")
    I(f"s_add_u32 s10, s10, s{sTM}")
    I(f"s_add_u32 s10, s10, {WS_CELL}")
    I(f"v_and_b32 v{t4}, 7, v{t0}")
    I(f"v_lshl_add_u32 v{t4}, v{t4}, 4, s10")
    I(f"v_lshrrev_b32 v{t5}, 3, v{t0}")
    I(f"v_cmpx_gt_u32 vcc, {CAP+8}, v{t0}")
    I(f"v_add_u32 v{t2}, {256*RS}, v{t4}")
    I(f"v_add_u32 v{t3}, 8, v{t2}")
    I(f"v_cmpx_gt_u32 vcc, {CAP}, v{t0}")
    I(f"v_lshl_add_u32 v{t2}, v{t5}, 2, v{t4}")
    I(f"v_add3_u32 v{t3}, v{t4}, v{t5}, 12")
    I("s_mov_b64 exec, -1")
    I(f"s_add_u32 s10, s{sR0}, {SB}")
    I(f"s_min_u32 s10, s10, s{sCNT}")
    I(f"v_cmp_gt_u32 vcc, s10, v{t0}")
    I(f"v_mov_b32 v{t4}, 0x7ffffff0")
    I("s_nop 0")
    I(f"v_cndmask_b32 v{t2}, v{t4}, v{t2}, vcc")
    I(f"v_cndmask_b32 v{t3}, v{t4}, v{t3}, vcc")
    I(f"buffer_load_dwordx2 {rr(t1,2)}, v{t2}, {sq(sWS)}, 0 offen sc1")
    I(f"buffer_load_ubyte v{t3}, v{t3}, {sq(sWS)}, 0 offen sc1")
    I("s_waitcnt lgkmcnt(0)")
    I("s_barrier")
    I("s_waitcnt vmcnt(0)")
    I(f"v_cmp_ne_u32 vcc, 3, v{t5}")
    I(f"v_cmp_eq_u32 {sp(sA)}, s{sK}, v{t1+1}")
    I(f"v_mov_b32 v{t4}, s{sTM+2}")
    I(f"s_or_b64 exec, vcc, {sp(sA)}")
    I(f"v_cmpx_ne_u32 vcc, 0, v{t1}")
    I(f"v_bfe_u32 v{t2}, v{t1}, 18, 8")
    I(f"v_lshlrev_b32 v{t2}, 2, v{t2}")
    I(f"v_add_u32 v{t0}, {MAP}, v{t2}")
    I(f"ds_read_b32 v{t0}, v{t0}")
    put(rec_ops(t1, t3, 0, t4, t2, t3))
    I(f"v_mov_b32 v{t2}, 4")
    I(f"v_and_b32 v{t1}, 0xffff, v{t1}")
    I("s_waitcnt lgkmcnt(0)")
    I(f"ds_add_rtn_u32 v{t0}, v{t0}, v{t2} offset:{CNT}")
    I("s_waitcnt lgkmcnt(0)")
    I(f"ds_write2st64_b32 v{t0}, v{t1}, v{t3} {W2}")
    I("s_mov_b64 exec, -1")
    I("s_waitcnt lgkmcnt(0)")
    I("s_barrier")
    listaddr(t2)
    I(f"ds_read_b128 {rr(vQD,4)}, v{vARX}")
    I(f"ds_read_b32 v{vEI}, v{vARE}")
    lens_from_cnt(t2)
    put(dma_tile())
    L("L_LAST")
    I("s_branch L_GO")

def regs_of(tok):
    tok = tok.strip()
    m = re.fullmatch(r"v\[(\d+):(\d+)\]", tok)
    if m: return list(range(int(m.group(1)), int(m.group(2)) + 1))
    m = re.fullmatch(r"v(\d+)", tok)
    if m: return [int(m.group(1))]
    return []
def parse(ins):
    op, _, rest = ins.partition(" ")
    ops = [o.strip().split(" ")[0] for o in rest.split(",")] if rest else []
    if op.startswith("ds_read") or "rtn" in op: return "ds", regs_of(ops[0]), regs_of(ops[1])
    return "other", [], sum((regs_of(o) for o in ops), [])
def check_body(body):
    s2 = [b for b in body if not b.endswith(":")]
    pend = []
    for i, ins in enumerate(s2 * 3):
        k, d, s = parse(ins)
        m = re.search(r"lgkmcnt\((\d+)\)", ins)
        if m:
            while len(pend) > int(m.group(1)): pend.pop(0)
        pr = set(sum(pend, []))
        for r in d + s:
            assert r not in pr, f"pending LDS reg v{r} used by {ins} @{i}"
        if k == "ds":
            pend.append(d); assert len(pend) <= 15

hdr = open("/code/" + NAME + ".s.ref").read().split("\n")
for l in hdr:
    if l.startswith("; Override"): break
    out.append(l)
if opt("list", 0): out.append(f"; @launch kernel={NAME}_kernel grid=(256,1,1) block=(512,1,1) lds={LDS}")
else: out.append(f"; @launch grid=(256,1,1) block=(512,1,1) lds={LDS}")
LEAK = opt("leak", "")
if LEAK: out.append("; @launch kernel=leak_kernel grid=(1,1,1) block=(256,1,1) lds=64")
emit('.amdgcn_target "amdgcn-amd-amdhsa--gfx950"\n.text')
kernel()
if LEAK:
    kind, nm = LEAK[0], LEAK[1:]
    si = STN.index(nm)
    emit(".globl leak_kernel\n.p2align 8\n.type leak_kernel,@function\nleak_kernel:")
    I("s_cmp_lg_u32 s2, 0")
    I("s_cbranch_scc1 LK_END")
    I("s_load_dwordx2 s[4:5], s[0:1], 88")
    I("v_min_u32 v1, 254, v0")
    I("v_lshlrev_b32 v1, 11, v1")
    I("v_mov_b32 v2, 0")
    I("v_mov_b32 v3, 0x7fffffff")
    I("v_mov_b32 v4, 0")
    I("ds_write2_b32 v2, v3, v4 offset0:0 offset1:1")
    I("s_waitcnt lgkmcnt(0)")
    I(f"s_add_u32 s4, s4, {WS_TS}")
    I("s_addc_u32 s5, s5, 0")
    I("global_load_dword v5, v2, s[4:5]")
    for w in range(8):
        I(f"global_load_dword v{8+w}, v1, s[4:5] offset:{256*w}")
        I(f"global_load_dword v{16+w}, v1, s[4:5] offset:{256*w + 4*si}")
    I("s_barrier")
    I("s_waitcnt vmcnt(0)")
    I("v_subrev_u32 v5, 1000, v5")
    for w in range(16): I(f"v_sub_u32 v{8+w}, v{8+w}, v5")
    for w in range(8):
        I(f"ds_min_u32 v2, v{8+w}")
        I(f"ds_{'max' if kind == 'm' else 'add'}_u32 v2, v{16+w} offset:4")
    I("s_waitcnt lgkmcnt(0)")
    I("s_barrier")
    I("ds_read_b64 v[6:7], v2")
    I("s_waitcnt lgkmcnt(0)")
    I("v_lshlrev_b32 v6, 2, v6")
    I("v_lshlrev_b32 v7, 2, v7" if kind == 'm' else "v_lshrrev_b32 v7, 9, v7")
    I("v_sub_u32 v6, v7, v6")
    I("v_min_u32 v6, 20000, v6")
    I("s_nop 0")
    I("v_readfirstlane_b32 s6, v6")
    I("s_memrealtime s[8:9]")
    I("s_waitcnt lgkmcnt(0)")
    L("LK_L")
    I("s_memrealtime s[10:11]")
    I("s_waitcnt lgkmcnt(0)")
    I("s_sub_u32 s7, s10, s8")
    I("s_cmp_lt_u32 s7, s6")
    I("s_cbranch_scc1 LK_L")
    L("LK_END")
    I("s_endpgm")
emit(f""".section .rodata,"a"
.p2align 6
.amdhsa_kernel {NAME}_kernel
  .amdhsa_next_free_vgpr 256
  .amdhsa_next_free_sgpr 102
  .amdhsa_accum_offset 256
  .amdhsa_group_segment_fixed_size 0
  .amdhsa_kernarg_size 96
  .amdhsa_user_sgpr_count 2
  .amdhsa_user_sgpr_kernarg_segment_ptr 1
  .amdhsa_system_sgpr_workgroup_id_x 1
.end_amdhsa_kernel""")
if LEAK:
    emit(""".p2align 6
.amdhsa_kernel leak_kernel
  .amdhsa_next_free_vgpr 32
  .amdhsa_next_free_sgpr 16
  .amdhsa_accum_offset 32
  .amdhsa_group_segment_fixed_size 0
  .amdhsa_kernarg_size 96
  .amdhsa_user_sgpr_count 2
  .amdhsa_user_sgpr_kernarg_segment_ptr 1
  .amdhsa_system_sgpr_workgroup_id_x 1
.end_amdhsa_kernel""")
if TS: out.insert(0, "; stamps " + " ".join(STN))
path = sys.argv[1] if len(sys.argv) > 1 else "/code/" + NAME + ".s"
open(path, "w").write("\n".join(out) + "\n")
print("wrote", path, len(out), "lines; lds", LDS)
```

```python
import sys, re, struct

NAME = "standalone__edge_featured_mpnn_gatedgcn__graph"
OPT = dict(kv.split("=") for kv in sys.argv[2:])
def opt(k, d):
    v = OPT.get(k)
    if v is None: return d
    return type(d)(v)

N, E = 50000, 800000
CH = 3128
BN = 196
RS = opt('rs', 257) * 128
WS_CELL = 0x10000
WS_RECS = 0x1200000
WS_LEID = 0x1680000
WS_HD = 0x17a0000
WS_USED = 0x1800000
WS_TS = 0x3000000
KINC = 0x02020202
CAP = 24
LOG2E = 1.4426950408889634
def f2u(f): return struct.unpack("<I", struct.pack("<f", f))[0]

out = []
def emit(s=""):
    for l in s.strip("\n").split("\n"):
        out.append(l.rstrip())
def I(s): out.append("    " + s)
def L(s): out.append(s + ":")
def C(s): out.append("    ; " + s)
def put(seq):
    for s in seq:
        if s.endswith(":"): L(s[:-1])
        else: I(s)
def rr(a, n): return f"v[{a}:{a+n-1}]"
def sp(a): return f"s[{a}:{a+1}]"
def sq(a): return f"s[{a}:{a+3}]"
def pol(p): return (" " + p.replace("_", " ")) if p else ""

def srd(d, lo, size, add=None, stride=0):
    if add is None:
        I(f"s_mov_b32 s{d}, s{lo}")
        I(f"s_mov_b32 s{d+1}, s{lo+1}" if not stride else f"s_or_b32 s{d+1}, s{lo+1}, {stride << 16:#x}")
    else:
        I(f"s_add_u32 s{d}, s{lo}, {add}")
        I(f"s_addc_u32 s{d+1}, s{lo+1}, 0")
    I(f"s_mov_b32 s{d+2}, {size}")
    I(f"s_mov_b32 s{d+3}, 0x20000")

def wave_scan(v, fill=None, half=False):
    def gap():
        if fill and len(fill) >= 2:
            I(fill.pop(0)); I(fill.pop(0))
        else: I("s_nop 1")
    for sh in (1, 2, 4, 8):
        gap()
        I(f"v_add_u32_dpp v{v}, v{v}, v{v} row_shr:{sh} row_mask:0xf bank_mask:0xf bound_ctrl:0")
    gap()
    I(f"v_add_u32_dpp v{v}, v{v}, v{v} row_bcast:15 row_mask:0xa bank_mask:0xf")
    if half: return
    gap()
    I(f"v_add_u32_dpp v{v}, v{v}, v{v} row_bcast:31 row_mask:0xc bank_mask:0xf")

TAB, ZROW, CNT, FLAG = 0, 512, 576, 640
HIST = 1024
ESTG = HIST + 4096
HIST1 = ESTG
EARLY = ESTG + 8192
LWB = 288 * 4
R0 = EARLY + 32768
R1 = R0 + 16 * LWB
XSTG = R1 + 16 * LWB
XI = 1056
SLOT = 4 * XI
OWN = XSTG + 8 * SLOT
PL = 52 * 128 + 32
WR = 160
WUI = OWN + 4 * PL
MAP = WUI + 64 * WR
HDR = MAP + 1024
PRG = HDR + 1024
LDS = PRG + 1024
WBI, WVI, WCI = EARLY, EARLY + 64 * WR, EARLY + 128 * WR
WAI = XSTG + 8192
LROW = 160
CIMG = R0
assert CIMG + 256 * LROW <= WAI and LDS <= 163840, LDS
BIAS = 8192
assert R1 < 65536 and R0 % 256 == 0 and R1 % 256 == 0
W2 = f"offset0:{(R0-BIAS)//256} offset1:{(R1-BIAS)//256}"

vWB, vWV, vCA, vACC = 0, 32, 64, 96
vX, vEO, vS = 160, 176, 184
vP, vQ, vR = 188, 204, 220
vQD = 236
vEI, vCH, vIDX, vCP, vAX, vcEO, vcS, vARX, vARE, vARO, vARS, vEA = 240, 241, 242, 243, 244, 245, 246, 247, 248, 249, 250, 251
lane, vTS, tid = 253, 254, 255
vC1, vPA = lane, tid
DEN = lambda w, n: vACC + 32 * w + 4 * n
NUM = lambda w, n: vACC + 32 * w + 16 + 4 * n
def m16(d, a, b, c=None):
    return f"v_mfma_f32_16x16x32_bf16 {rr(d,4)}, {rr(a,4)}, {rr(b,4)}, " + ("0" if c is None else rr(c, 4))
def s16(d, b): return f"v_smfmac_f32_16x16x64_bf16 {rr(d,4)}, {rr(vS,4)}, {rr(b,8)}, v{vIDX}"

sWP, sW, sB, sK = 3, 4, 5, 6
sWIN, sF0, sF1, sL = 7, 8, 9, 12
sA, sBt = 10, 11
sSTG, sES, s128 = 13, 14, 15
pX, pE, pSRC, pDST, pWA, pWB, pWC, pWU, pWV, pOUT, pDBG, pWS = 16, 18, 20, 22, 24, 26, 28, 30, 32, 34, 36, 38
sT, sN, sFM, sMORE, sSKIP, sXT, sWS0, sWS1, sB0E, sSH = 16, 17, 18, 19, 20, 21, 22, 23, 24, 25
sCI, sCUR, sR0, sCNT, sST, sEND = 26, 27, 28, 29, 30, 31
sMSK = 32
sTM = 34
sX, sEP, sOUT, sWS, sCEL, sD2 = 40, 44, 48, 52, 56, 60
sM = 64
sJ3, sEM = 96, 98
sSP = 100
sSG, sRM = 101, 96

TS = opt("ts", 0)
STN = []
def stamp(i):
    if not TS: return
    if isinstance(i, str) and i[0] not in opt("tsx", ""): return
    STN.append(str(i)); i = len(STN) - 1
    I("s_memrealtime vcc" if TS == 1 else "s_memtime vcc")
    I("s_waitcnt lgkmcnt(0)")
    I(f"v_writelane_b32 v{vTS}, vcc_lo, {i}")
def stamp_out():
    if not TS: return
    I("s_waitcnt vmcnt(0)")
    stamp(15)
    I("s_memtime vcc")
    I("s_waitcnt lgkmcnt(0)")
    I(f"v_writelane_b32 v{vTS}, vcc_lo, 58")
    I(f"v_writelane_b32 v{vTS}, s{sN}, 59")
    I(f"v_writelane_b32 v{vTS}, s{sSP}, 60")
    I("s_lshl_b32 s10, s2, 3")
    I(f"s_add_u32 s10, s10, s{sWP}")
    I("s_lshl_b32 s10, s10, 8")
    I(f"s_add_u32 s10, s10, {WS_TS}")
    I(f"v_lshl_add_u32 v{vP}, v{lane}, 2, s10")
    I(f"global_store_dword v{vP}, v{vTS}, {sp(pWS)}")
def cstamp(i):
    if not TS: return
    I("s_memtime vcc")
    I("s_waitcnt lgkmcnt(0)")
    I(f"v_writelane_b32 v{vTS}, vcc_lo, {i}")

LD_P = opt("ldp", "nt")
XP, EP, OP = opt("xp", ""), opt("ep", ""), opt("op", "sc1")
STP = opt("stp", "sc1")
MG = opt("mg", 1)
JE = opt("je", 4 if MG else 2)
EMASK = ((1 << JE) - 1) * 0x01010101
DCH = CH + 1024
SDW = "dst_sel:DWORD dst_unused:UNUSED_PAD"

def dma_tile():
    r = []
    for i in range(4):
        r.append(f"s_add_u32 m0, s{sSTG}, {i*XI}")
        r.append(f"v_mad_u32_u16 v{vQD+i}, v{vQD+i}, s{s128}, v{vCP}")
        r.append(f"buffer_load_dwordx4 v{vQD+i}, {sq(sX)}, 0 offen{pol(XP)} lds")
    r.append(f"s_mov_b32 m0, s{sES}")
    r.append(f"v_and_b32 v{vEI}, 0xfffff, v{vEI}")
    r.append(f"buffer_load_dwordx4 {rr(vEI,2)}, {sq(sEP)}, 0 idxen offen{pol(EP)} lds")
    return r

ORD = [(0, 0), (1, 0), (0, 1), (1, 1)]
def xread(m, s): return f"ds_read_b128 {rr(vX+8*m+4*s,4)}, v{vAX} offset:{512*m + 64*s}"
def g_mfmas(D, ft, w):
    g = [m16(D+8*n+4*m, vEO+4*m, vCA+16*w+8*ft+4*n) for m in range(2) for n in range(2)]
    g += [m16(D+8*n+4*m, vX+8*m+4*s, vWB+16*ft+8*n+4*s, D+8*n+4*m) for m, s in ORD for n in range(2)]
    return g
def h_mfmas(ft):
    return [m16(vQ+8*n+4*m, vX+8*m+4*s, vWV+16*ft+8*n+4*s, None if s == 0 else vQ+8*n+4*m) for m, s in ORD for n in range(2)]
def s_num(w, ft): return [s16(NUM(w, 2*ft+n), vQ+8*n) for n in range(2)]
def s_den(w, ft, G): return [s16(DEN(w, 2*ft+n), G+8*n) for n in range(2)]

def eafix():
    return [f"v_bfi_b32 v{vEA+m}, 31, v{vcEO}, v{vEA+m}" for m in range(2)] + [f"v_max_u32 v{vEA}, v{vEA}, v{vcEO}", f"v_max_u32 v{vEA+1}, v{vEA+1}, v{vC1}"]
LV = [int(c, 16) for c in opt("lv", "015a")]
PAT = opt("pat", "1" * 11 + "5")
FAIR = opt("fair", 1)
BST = opt("bst", 10)
def phase(par, ft, cp=0):
    G, Go = (vP, vR) if ft == 0 else (vR, vP)
    nf = 1 - ft
    wn = par if ft == 0 else par ^ 1
    wp = par ^ 1 if ft == 0 else par
    s1 = [[x] for x in s_num(wp, nf) + h_mfmas(ft) + s_den(wp, nf, Go)]
    s2 = [[x] for x in g_mfmas(Go, nf, wn)]
    if ft == 0:
        o = par * LWB
        s1[0] += [f"ds_read_u16 v{vQD+u}, v{vARS} offset:{o + 16*u}" for u in range(2)]
        s1[8] += ["s_waitcnt lgkmcnt(0)"] + [f"v_bfi_b32 v{vQD+u}, 31, v{vcS}, v{vQD+u}" for u in range(2)]
        if FAIR:
            s1[0] += [f"ds_add_rtn_u32 v{vQD+2}, v{vPA}, v{vIDX}"]
            s1[8] += [f"v_readfirstlane_b32 s{sRM}, v{vQD+2}"]
            s2[1] += [f"s_ashr_i32 s{sRM}, s{sRM}, 24", f"s_mul_i32 s{sRM}, s{sRM}, s{sSG}"]
        o1 = 128 if par else LWB
        s2[0] += [f"ds_read_b64_tr_b16 {rr(vS+2*u,2)}, v{vQD+u}" for u in range(2)]
        s2[0] += [f"ds_read_u16 v{vEA+m}, v{vARO} offset:{o1 + 64*m}" for m in range(2)]
        s2[6] += ["s_waitcnt lgkmcnt(0)"] + eafix()
        s2[6] += [f"ds_read_b128 {rr(vQD,4)}, v{vARX} offset:{o + 128}", f"ds_read_b32 v{vEI}, v{vARE} offset:{o + 128}",
                  f"s_add_u32 s{sT}, s{sT}, 1"]
        if par: s2[7] += [f"v_add_u32 v{r}, 0x80, v{r}" for r in (vARX, vARE, vARO, vARS)]
    else:
        s1[2] = ["s_waitcnt vmcnt(0)"] + [f"ds_read_b128 {rr(vEO+4*m,4)}, v{vEA+m}" for m in range(2)] + s1[2]
        for i, (m, s) in enumerate(ORD): s1[3+2*i].append(xread(m, s))
        s2[0] = ["s_waitcnt lgkmcnt(4)"] + s2[0]
        for i in range(4): s2[4+2*i] = [f"s_waitcnt lgkmcnt({3-i})"] + s2[4+2*i]
        s2[10] += [f"s_cmp_lt_u32 s{sT}, s{sN}", f"s_cbranch_scc0 L_ND{par}{cp}"] + dma_tile() + [f"L_ND{par}{cp}:"]
    def sec(mf, op):
        r = []; k = 0
        for i, m in enumerate(mf):
            if FAIR:
                if i == 0: r.append(f"s_setprio {cp}")
                if i == BST: r.append("s_setprio 3")
            elif i in LV: r.append(f"s_setprio {LV.index(i)}")
            r += m
            for _ in range(int(PAT[i])):
                r.append(f"{op} v{G+k}, v{G+k}"); k += 1
        assert k == 16
        return r
    r = sec(s1, "v_exp_f32")
    r += [f"v_pk_add_f32 {rr(G+2*i,2)}, {rr(G+2*i,2)}, 1.0 op_sel_hi:[1,0]" for i in range(8)]
    r += sec(s2, "v_rcp_f32")
    r += [f"v_pk_mul_f32 {rr(vQ+2*i,2)}, {rr(G+2*i,2)}, {rr(vQ+2*i,2)}" for i in range(8)]
    return r

def listaddr(t0):
    I(f"v_lshrrev_b32 v{t0}, 3, v{lane}")
    I(f"v_lshl_add_u32 v{vARX}, v{t0}, 4, s{sL}")
    I(f"s_add_u32 s10, s{sL}, {R1-R0}")
    I(f"v_lshrrev_b32 v{t0}, 1, v{lane}")
    I(f"v_lshl_add_u32 v{vARE}, v{t0}, 2, s10")
    I(f"s_add_u32 s10, s10, 2")
    I(f"v_and_b32 v{t0}, 48, v{lane}")
    I(f"v_lshl_add_u32 v{vARS}, v{t0}, 1, s10")
    I(f"v_and_b32 v{t0}, 12, v{lane}")
    I(f"v_add_u32 v{vARS}, v{vARS}, v{t0}")
    I(f"v_lshrrev_b32 v{t0}, 5, v{lane}")
    I(f"v_mul_u32_u24 v{vARO}, {R1-R0}, v{t0}")
    I(f"v_and_b32 v{t0}, 15, v{lane}")
    I(f"v_lshl_add_u32 v{vARO}, v{t0}, 2, v{vARO}")
    I(f"s_add_u32 s10, s{sL}, 2")
    I(f"v_add_u32 v{vARO}, s10, v{vARO}")

def prefill(t):
    for d in range(2): I(f"v_mov_b64 {rr(t+2*d,2)}, 0")
    for d in range(4): I(f"v_mov_b32 v{t+4+d}, {(ZROW << 16) | 0xfffff:#x}")
    I(f"v_lshl_add_u32 v{t+8}, v{lane}, 4, s{sL}")
    for o in (0, 1024, 2*LWB - 1024):
        I(f"ds_write_b128 v{t+8}, {rr(t,4)} offset:{o}")
        I(f"ds_write_b128 v{t+8}, {rr(t+4,4)} offset:{o + R1 - R0}")

def kernel():
    emit(f"""
.globl {NAME}_kernel
.p2align 8
.type {NAME}_kernel,@function
{NAME}_kernel:""")
    FH = opt("fh", 1)
    vD, vSR, vT16 = vACC, vACC + 8, vR + 12
    I("s_load_dwordx16 s[16:31], s[0:1], 0")
    I("s_load_dwordx8 s[32:39], s[0:1], 64")
    CPN = opt("cpn", 8)
    if opt("cpf", 1):
        I(f"s_getpc_b64 {sp(sM)}")
        L("L_PC")
        if CPN == 8: I("s_and_b32 s3, s2, -8")
        else:
            I("s_lshr_b32 s3, s2, 3")
            I(f"s_and_b32 s3, s3, {256//CPN - 1}")
            I(f"s_mul_i32 s3, s3, {CPN}")
        I("v_add_lshl_u32 v1, v0, s3, 7")
        I("v_min_u32 v1, L_LAST-L_PC, v1")
        I(f"v_cmpx_gt_u32 vcc, {CPN}, v0")
        I("s_cbranch_execz L_NOCPF")
        I(f"global_load_dword v{vEA}, v1, {sp(sM)}")
        L("L_NOCPF")
        I("s_mov_b64 exec, -1")
    I("s_cmp_ge_u32 s2, 256")
    I("s_cbranch_scc1 L_END")
    if FH:
        I(f"s_mul_i32 s{sA}, s2, {CH*4}")
        I(f"v_lshl_add_u32 v1, v0, 4, s{sA}")
        I(f"s_add_u32 s{sBt}, s{sA}, {CH*4}")
        I(f"s_min_u32 s{sBt}, s{sBt}, {E*4}")
        I("v_add_u32 v2, 0x2000, v1")
        I("s_waitcnt lgkmcnt(0)")
        I(f"global_load_dwordx4 {rr(vD,4)}, v1, {sp(pDST)}{pol(LD_P)}")
        I(f"global_load_dwordx4 {rr(vSR,4)}, v1, {sp(pSRC)}{pol(LD_P)}")
        I(f"v_cmpx_gt_u32 {sp(sM+6)}, s{sBt}, v2")
        I("s_cbranch_execz L_NO7")
        I(f"global_load_dwordx4 {rr(vD+4,4)}, v2, {sp(pDST)}{pol(LD_P)}")
        I(f"global_load_dwordx4 {rr(vSR+4,4)}, v2, {sp(pSRC)}{pol(LD_P)}")
        L("L_NO7")
        I("s_mov_b64 exec, -1")
        I(f"s_load_dword s{sK}, {sp(pWS)}, 0")
    if TS: I(f"v_mov_b32 v{vTS}, 0")
    u = lambda i: vP + i
    stamp(0)
    vD, vSR, vBK, vHA, vRK1, vID, vIC = vACC, vACC + 8, vACC + 16, vACC + 24, vACC + 32, vACC + 40, vACC + 44
    vRW = vX
    one, l16 = vS, vS + 1
    vOA, vT16, sOW = vR + 14, vR + 12, 101
    I(f"v_mov_b32 v{tid}, v0")
    I(f"v_lshrrev_b32 v{u(0)}, 6, v0")
    I(f"v_and_b32 v{lane}, 63, v0")
    I(f"v_readfirstlane_b32 s{sWP}, v{u(0)}")
    I(f"v_lshlrev_b32 v{vT16}, 4, v0")
    I(f"v_lshlrev_b32 v{u(2)}, 3, v0")
    I(f"v_lshlrev_b32 v{u(3)}, 2, v0")
    I(f"v_and_b32 v{u(4)}, 0x3fc, v{u(3)}")
    if not FH:
        I(f"s_mul_i32 s{sA}, s2, {CH*4}")
        I(f"s_sub_u32 s{sBt}, {E*4}, s{sA}")
        I(f"s_min_u32 s{sBt}, s{sBt}, {CH*4}")
    I(f"s_and_b32 s{sB}, s2, 7")
    I(f"s_lshr_b32 s{sW}, s2, 3")
    I(f"s_lshl_b32 s{sB}, s{sB}, 5")
    I(f"s_add_u32 s{sB}, s{sB}, s{sW}")
    I(f"s_mul_i32 s{sF1}, s{sB}, {BN}")
    I(f"s_cmp_eq_u32 s{sWP}, 7")
    I(f"s_cselect_b32 s{sOW}, 0, s{sWP}")
    I(f"s_lshl_b32 s{sL}, s{sOW}, 5")
    I(f"s_add_u32 s{sF1}, s{sF1}, s{sL}")
    I(f"v_lshrrev_b32 v{u(5)}, 3, v{lane}")
    I(f"v_lshl_add_u32 v{u(5)}, v{u(5)}, 2, s{sF1}")
    I(f"v_and_b32 v{vCP}, 7, v{lane}")
    I(f"v_lshlrev_b32 v{vCP}, 4, v{vCP}")
    I(f"v_lshl_add_u32 v{vOA}, v{u(5)}, 7, v{vCP}")
    I(f"s_lshl_b32 s{sOW}, s{sOW}, 10")
    I(f"s_add_u32 s{sOW}, s{sOW}, {OWN}")
    if not FH:
        I(f"s_movk_i32 s{sF0}, 0x2000")
        I("s_waitcnt lgkmcnt(0)")
        I(f"s_load_dword s{sK}, {sp(pWS)}, 0")
        srd(sCEL, pDST, f"s{sBt}", f"s{sA}")
        srd(sD2, pSRC, f"s{sBt}", f"s{sA}")
        I(f"buffer_load_dwordx4 {rr(vD,4)}, v{vT16}, {sq(sCEL)}, 0 offen{pol(LD_P)}")
        I(f"buffer_load_dwordx4 {rr(vSR,4)}, v{vT16}, {sq(sD2)}, 0 offen{pol(LD_P)}")
        I(f"s_cmp_ge_u32 s{sWP}, 5")
        I("s_cbranch_scc1 L_NO7")
        I(f"buffer_load_dwordx4 {rr(vD+4,4)}, v{vT16}, {sq(sCEL)}, s{sF0} offen{pol(LD_P)}")
        I(f"buffer_load_dwordx4 {rr(vSR+4,4)}, v{vT16}, {sq(sD2)}, s{sF0} offen{pol(LD_P)}")
        L("L_NO7")
    for d in range(2): I(f"v_mov_b64 {rr(u(8)+2*d,2)}, 0")
    I(f"v_mov_b32 v{u(6)}, {33*JE if MG else 0}")
    I(f"ds_write2st64_b32 v{u(4)}, v{u(6)}, v{u(8)} offset0:{HIST1//256} offset1:{HIST1//256+4}")
    I(f"v_add_u32 v{u(5)}, {CIMG}, v{vT16}")
    for k in range(5): I(f"ds_write_b128 v{u(5)}, {rr(u(8),4)} offset:{8192*k}")
    PF = opt("pf", 0)
    def w_loads():
        I(f"s_cmp_ge_u32 s{sWP}, 2")
        I("s_cbranch_scc1 L_NOC")
        I(f"global_load_dwordx4 {rr(vEO,4)}, v{vT16}, {sp(pWC)}")
        L("L_NOC")
        for k, p in enumerate((pWB, pWV, pWA, pWU)):
            I(f"global_load_dwordx4 {rr(vRW+4*k,4)}, v{vT16}, {sp(p)}")
    def own_loads():
        I(f"s_cmp_eq_u32 s{sWP}, 6")
        I("s_cselect_b32 exec_hi, 0, -1")
        I(f"s_cmp_eq_u32 s{sWP}, 7")
        I("s_cselect_b64 exec, 1, exec")
        for k in range(4):
            I(f"s_add_u32 m0, s{sOW}, {(PL-128)*k}")
            I("s_nop 0")
            I(f"buffer_load_dwordx4 v{vOA}, {sq(sX)}, 0 offen offset:{128*k} lds")
        I("s_mov_b64 exec, -1")
        if PF:
            assert PF <= 512
            I(f"s_lshr_b32 s{sTM+1}, s2, 3")
            I(f"s_mul_i32 s{sTM}, s{sTM+1}, {PF*128}")
            I(f"v_min_u32 v{vEA+1}, {PF-1}, v{tid}")
            I(f"v_lshlrev_b32 v{vEA+1}, 7, v{vEA+1}")
            I(f"buffer_load_dword v{vEA+1}, v{vEA+1}, {sq(sX)}, s{sTM} offen")
    LLP = opt("llp", 2)
    OLP = opt("olp", 2)
    NY = 0
    srd(sEP, pE, E, stride=32)
    srd(sOUT, pOUT, N*128)
    srd(sX, pX, N*128)
    srd(sWS, pWS, WS_USED)
    I(f"s_lshl_b32 s{sL}, s2, 7")
    I(f"s_add_u32 s{sL}, s{sL}, {WS_CELL}")
    srd(sCEL, pWS, 511*RS + 128, f"s{sL}")
    cM, cN, cP, cPM, cR = sM, sM + 1, sM + 2, sM + 3, sM + 4
    m2 = sM + 6
    I(f"s_mov_b32 s{cM}, 85599")
    I(f"s_mov_b32 s{cN}, {-BN & 0xffffffff}")
    I(f"s_movk_i32 s{cP}, 5368")
    I(f"s_mov_b32 s{cPM}, {opt('phm', 3) << 26:#x}")
    I(f"s_mov_b32 s{cR}, {RS}")
    for i in range(4): I(f"v_add_u32 v{vID+i}, {i}, v{u(3)}")
    I(f"s_lshl_b32 s{sA}, s{sWP}, 28")
    I(f"s_or_b32 s{sA}, s{sA}, 0x20000")
    I(f"v_mov_b32 v{vIC}, s{sA}")
    I(f"v_or_b32 v{vIC+1}, 0x80000000, v{vIC}")
    I(f"v_mov_b32 v{one}, 33")
    vK1 = vIC + 2
    I(f"v_mov_b32 v{vK1}, 0x400")
    if not FH:
        I(f"s_sub_u32 s{sBt}, s{sBt}, 0x2000")
        I(f"v_cmp_gt_u32 {sp(m2)}, s{sBt}, v{vT16}")
    I(f"s_and_b32 s{sA}, s{sWP}, 3")
    I(f"s_lshr_b32 s{sW}, s{sWP}, 2")
    I(f"s_lshl1_add_u32 s{sW}, s{sA}, s{sW}")
    if opt("swp", 1): I(f"s_xor_b32 s{sW}, s{sW}, 1")
    I(f"s_mul_i32 s{sA}, s{sW}, 49")
    I(f"s_sub_i32 s{sA}, s{sA}, 6")
    I(f"s_ashr_i32 s{sA}, s{sA}, 1")
    I(f"s_max_i32 s{sWIN}, s{sA}, 0")
    I(f"s_mul_i32 s{sSTG}, s{sW}, {SLOT}")
    I(f"s_add_u32 s{sSTG}, s{sSTG}, {XSTG}")
    I(f"s_lshl_b32 s{sES}, s{sW}, 10")
    I(f"s_add_u32 s{sES}, s{sES}, {ESTG}")
    I(f"s_mul_i32 s{sL}, s{sW}, {2*LWB}")
    I(f"s_add_u32 s{sL}, s{sL}, {R0}")
    I(f"s_movk_i32 s{s128}, 128")
    I(f"v_bfe_u32 v{u(6)}, v{tid}, 4, 4")
    I(f"v_and_b32 v{u(7)}, 7, v{tid}")
    I(f"v_cmp_eq_u32 vcc, v{u(6)}, v{u(7)}")
    I(f"v_and_b32 v{u(6)}, 8, v{tid}")
    I(f"v_lshlrev_b32 v{u(6)}, 1, v{u(6)}")
    I(f"v_mov_b32 v{u(8)}, 0x3f80")
    I(f"v_lshlrev_b32 v{u(8)}, v{u(6)}, v{u(8)}")
    I(f"v_cndmask_b32 v{u(8)}, 0, v{u(8)}, vcc")
    I(f"ds_write_b32 v{u(4)}, v{u(8)} offset:{TAB}")
    I(f"v_mov_b64 {rr(u(8),2)}, 0")
    I(f"ds_write_b64 v{u(2)}, {rr(u(8),2)} offset:{HIST}")
    I(f"v_add_u32 v{u(6)}, {PRG}, v{u(4)}")
    I(f"ds_write_b32 v{u(6)}, v{u(8)}")
    go, lo, lo2, ha = vR, vR + 1, vR + 2, vR + 3
    wl, wal = vR + 4, vR + 5
    I(f"v_lshrrev_b32 v{ha}, 3, v{tid}")
    I(f"v_mad_u32_u24 v{go}, v{ha}, s{cR}, v{vCP}")
    I(f"v_mul_u32_u24 v{wl}, {LROW}, v{ha}")
    I(f"v_add_u32 v{lo}, v{wl}, v{vCP}")
    I(f"v_add_u32 v{lo}, {CIMG}, v{lo}")
    assert LROW == WR
    I(f"v_bfe_u32 v{u(6)}, v{tid}, 5, 1")
    I(f"v_bfe_u32 v{u(8)}, v{tid}, 6, 1")
    I(f"v_sub_u32 v{u(6)}, v{u(6)}, v{u(8)}")
    I(f"v_mul_i32_i24 v{u(6)}, {4*WR}, v{u(6)}")
    I(f"v_add_u32 v{wl}, v{wl}, v{u(6)}")
    I(f"v_lshl_add_u32 v{wl}, v{u(7)}, 2, v{wl}")
    I(f"v_add_u32 v{wl}, {WBI}, v{wl}")
    I(f"v_lshlrev_b32 v{l16}, 4, v{lane}")
    I(f"v_and_b32 v{vCH}, 1, v{lane}")
    I(f"v_lshlrev_b32 v{vCH}, 4, v{vCH}")
    I(f"s_bitcmp1_b32 s{sW}, 0")
    I(f"s_cselect_b32 s{sA}, 1, -1")
    I(f"s_lshl_b32 s{sA}, s{sA}, 24")
    I(f"s_or_b32 s{sA}, s{sA}, 0xdddd")
    I(f"v_mov_b32 v{vIDX}, s{sA}")
    I(f"v_and_b32 v{vcEO}, 16, v{lane}")
    I(f"v_and_b32 v{u(6)}, 15, v{lane}")
    I(f"v_lshl_add_u32 v{u(6)}, v{u(6)}, 5, s{sES}")
    I("s_mov_b32 exec_hi, 0")
    I(f"v_add_u32 v{vcEO}, v{vcEO}, v{u(6)}")
    I("s_mov_b32 exec_hi, -1")
    I(f"v_and_b32 v{u(6)}, 3, v{lane}")
    I(f"v_lshlrev_b32 v{vcS}, 3, v{u(6)}")
    I(f"v_bfe_u32 v{u(8)}, v{lane}, 2, 2")
    I(f"v_and_b32 v{u(9)}, 48, v{lane}")
    I(f"v_lshl_add_u32 v{u(10)}, v{u(8)}, 7, v{u(9)}")
    I(f"v_mul_u32_u24 v{vAX}, {XI}, v{u(6)}")
    I(f"v_add3_u32 v{vAX}, v{vAX}, v{u(10)}, s{sSTG}")
    I(f"v_bfe_u32 v{u(9)}, v{lane}, 2, 3")
    I(f"v_lshrrev_b32 v{u(8)}, 5, v{lane}")
    I(f"v_lshl_add_u32 v{u(9)}, v{u(8)}, 4, v{u(9)}")
    I(f"v_mul_u32_u24 v{wal}, {WR}, v{u(9)}")
    I(f"v_add_u32 v{wal}, v{wal}, v{vcS}")
    listaddr(u(6))
    mm = lambda i: sM + 8 + 2*i
    def rank_a(rs):
        for i in rs: I(f"v_mul_u32_u24 v{vBK+i}, s{cM}, v{vD+i}")
        if rs[0] // 4 < MG:
            b = rs[0]
            for i in rs: I(f"v_lshrrev_b32 v{vHA+i}, 29, v{vBK+i}")
            t0, t1 = sM + 24, sM + 26
            I(f"v_cmp_eq_u32 {sp(mm(b))}, v{vHA+b}, v{vHA+b+1}")
            I(f"v_cmp_eq_u32 {sp(mm(b+2))}, v{vHA+b+2}, v{vHA+b+3}")
            I(f"v_cmp_eq_u32 vcc, v{vHA+b}, v{vHA+b+2}")
            I(f"v_cmp_eq_u32 {sp(t0)}, v{vHA+b+1}, v{vHA+b+3}")
            I(f"v_cmp_eq_u32 {sp(t1)}, v{vHA+b}, v{vHA+b+3}")
            I(f"v_cmp_eq_u32 {sp(sA)}, v{vHA+b+1}, v{vHA+b+2}")
            for i in rs: I(f"v_lshrrev_b32 v{vBK+i}, 24, v{vBK+i}")
            I(f"s_or_b64 {sp(mm(b+1))}, {sp(mm(b))}, {sp(t0)}")
            I(f"s_or_b64 {sp(mm(b+3))}, {sp(mm(b+2))}, {sp(t0)}")
            I(f"s_or_b64 {sp(mm(b))}, {sp(mm(b))}, vcc")
            I(f"s_or_b64 {sp(mm(b+2))}, {sp(mm(b+2))}, vcc")
            I(f"s_or_b64 {sp(mm(b))}, {sp(mm(b))}, {sp(t1)}")
            I(f"s_or_b64 {sp(mm(b+1))}, {sp(mm(b+1))}, {sp(sA)}")
            I(f"s_or_b64 {sp(mm(b+2))}, {sp(mm(b+2))}, {sp(sA)}")
            I(f"s_or_b64 {sp(mm(b+3))}, {sp(mm(b+3))}, {sp(t1)}")
            for i in rs:
                I(f"v_cndmask_b32 v{vHA+i}, 0, v{vK1}, {sp(mm(i))}")
                I(f"v_lshl_add_u32 v{vHA+i}, v{vBK+i}, 2, v{vHA+i}")
                I(f"ds_add_rtn_u32 v{vRK1+i}, v{vHA+i}, v{one} offset:{HIST1}")
            return
        for i in rs: I(f"v_lshrrev_b32 v{vBK+i}, 24, v{vBK+i}")
        for i in rs:
            I(f"v_lshlrev_b32 v{vHA+i}, 2, v{vBK+i}")
            I(f"ds_add_rtn_u32 v{vRK1+i}, v{vHA+i}, v{one} offset:{HIST1}")
    def again(rs, wait, em):
        for i in rs:
            I(f"s_waitcnt lgkmcnt({wait})")
            I(f"s_mov_b64 exec, {sp(mm(i))}")
            I(f"v_cmpx_le_u32 vcc, {33*JE}, v{vRK1+i}")
            I(f"ds_add_rtn_u32 v{vRK1+i}, v{vHA+i}, v{one} offset:{HIST1 - 1024}")
        I(f"s_mov_b64 exec, {em}")
    def rank_b(rs):
        for i in rs:
            I(f"v_mad_i32_i24 v{vD+i}, v{vBK+i}, s{cN}, v{vD+i}")
            I(f"v_mul_u32_u24 v{u(6)}, s{cP}, v{vSR+i}")
            I(f"v_lshl_or_b32 v{vSR+i}, v{vD+i}, 18, v{vSR+i}")
            I(f"v_and_or_b32 v{u(6)}, v{u(6)}, s{cPM}, v{vIC+(i>>2)}")
            I(f"v_mad_u32_u24 v{vD+i}, v{vBK+i}, {LROW//4}, s{cN+4}")
            I(f"v_or_b32 v{vSR+i}, v{vSR+i}, v{u(6)}")
    def place(i, wait, em):
        I(f"s_waitcnt lgkmcnt({wait})")
        I(f"v_bfe_u32 v{u(6)}, v{vRK1+i}, 3, 5")
        I(f"v_add_lshl_u32 v{vD+i}, v{u(6)}, v{vD+i}, 2")
        I(f"v_and_b32 v{u(6)}, 3, v{u(6)}")
        I(f"v_mad_i32_i24 v{u(6)}, v{u(6)}, -3, v{vD+i}")
        I(f"v_cmpx_gt_u32 vcc, {33*CAP}, v{vRK1+i}")
        I(f"ds_write_b32 v{vD+i}, v{vSR+i}")
        I(f"ds_write_b8 v{u(6)}, v{vID+(i&3)} offset:12")
        I(f"s_mov_b64 exec, {em}")
    I(f"s_movk_i32 s{cN+4}, {CIMG//4}")
    for d in range(2): I(f"v_mov_b64 {rr(vRK1+4+2*d,2)}, 0")
    I("s_waitcnt lgkmcnt(0)")
    I("s_barrier")
    vTG = vS + 2
    I(f"s_add_u32 s{sK}, s{sK}, {KINC:#x}")
    I(f"v_lshlrev_b32 v{vTG}, v{vcS}, s{sK}")
    I(f"v_and_b32 v{u(6)}, 4, v{lane}")
    I(f"v_mul_u32_u24 v{u(6)}, {37 << 15}, v{u(6)}")
    I(f"v_lshl_add_u32 v{vTG}, v{u(6)}, 8, v{vTG}")
    I(f"v_and_b32 v{vTG}, 0xfe000000, v{vTG}")
    vTH = vS + 3
    I(f"v_and_b32 v{vTH}, 7, v{lane}")
    I(f"v_mul_u32_u24 v{vTH}, 33, v{vTH}")
    I(f"v_add_u32 v{vTH}, {33*CAP}, v{vTH}")
    I(f"v_lshlrev_b32 v{lo2}, 2, v{ha}")
    I(f"s_cmp_eq_u64 {sp(m2)}, 0" if FH else f"s_cmp_ge_u32 s{sWP}, 5")
    I("s_cbranch_scc1 L_R4")
    I("s_waitcnt vmcnt(3)")
    stamp(1)
    rank_a(range(4))
    I("s_waitcnt vmcnt(1)")
    I(f"s_mov_b64 exec, {sp(m2)}")
    rank_a(range(4, 8))
    if MG == 0:
        I("s_mov_b64 exec, -1")
        rank_b(range(4))
        for i in range(4): place(i, 7 + i, "-1" if i < 3 else sp(m2))
        I("s_waitcnt vmcnt(0)")
        rank_b(range(4, 8))
        for i in range(4, 8): place(i, 7 + i, sp(m2) if i < 7 else "-1")
    elif MG == 1:
        again(range(4), 7, sp(m2))
        I("s_waitcnt vmcnt(0)")
        rank_b(range(4, 8))
        for i in range(4, 8): place(i, 3 + i, sp(m2) if i < 7 else "-1")
        rank_b(range(4))
        for i in range(4): place(i, 11 + i, "-1")
    else:
        again(range(8), 7, "-1")
        rank_b(range(4))
        for i in range(4): place(i, 7 + i, "-1" if i < 3 else sp(m2))
        I("s_waitcnt vmcnt(0)")
        rank_b(range(4, 8))
        for i in range(4, 8): place(i, 7 + i, sp(m2) if i < 7 else "-1")
    I("s_branch L_B1")
    L("L_R4")
    I("s_waitcnt vmcnt(1)")
    if TS: STN.pop()
    stamp(1)
    rank_a(range(4))
    I("s_waitcnt vmcnt(0)")
    if MG:
        rank_b(range(2))
        again(range(4), 3, "-1")
        rank_b(range(2, 4))
    else: rank_b(range(4))
    for i in range(4): place(i, 3 + i, "-1")
    L("L_B1")
    w_loads()
    I(f"s_mov_b32 s{cM}, 0x1000000")
    I("s_waitcnt lgkmcnt(0)")
    I("s_barrier")
    stamp(2)
    vO, vHS = vQ, u(4)
    I(f"ds_read_b128 {rr(vHS,4)}, v{l16} offset:{HIST1}")
    vHD = vR + 8
    for i in range(4):
        I(f"ds_read_b32 v{vHD+i}, v{lo2} offset:{HIST1 + 256*i}")
        I(f"ds_read_b128 {rr(vO+4*i,4)}, v{lo} offset:{64*LROW*i}")
    for i in range(1, 4): I(f"s_mov_b32 s{sM+15+i}, {64*RS*i}")
    I("s_waitcnt lgkmcnt(8)")
    I(f"v_max3_u32 v{u(0)}, v{vHS}, v{vHS+1}, v{vHS+2}")
    I(f"v_max_u32 v{u(0)}, v{u(0)}, v{vHS+3}")
    I(f"v_cmp_lt_u32 vcc, {33*(CAP+8)}, v{u(0)}")
    I("s_cbranch_vccnz L_POVF")
    L("L_POUT")
    for i in range(4):
        I(f"s_waitcnt lgkmcnt({7 - 2*i})")
        I(f"v_sub_u32 v{vHD+i}, v{vTH}, v{vHD+i}")
        I(f"v_and_or_b32 v{vHD+i}, v{vHD+i}, s{cM}, v{vTG}")
        I(f"s_waitcnt lgkmcnt({6 - 2*i})")
        I(f"v_or_b32 v{vO+4*i+3}, v{vO+4*i+3}, v{vHD+i}")
        I(f"buffer_store_dwordx4 {rr(vO+4*i,4)}, v{go}, {sq(sCEL)}, {f's{sM+15+i}' if i else '0'} offen{pol(STP)}")
    stamp(3)
    if "c" in opt("tsx", ""): I("s_waitcnt vmcnt(0)")
    stamp("c0")
    t = vACC
    I(f"s_mov_b32 s{sA}, {f2u(-LOG2E):#x}")
    I(f"s_mov_b32 s{sBt}, s{sA}")
    I(f"s_mov_b32 s{cM}, 0x05040100")
    I(f"s_mov_b32 s{cP}, 0x07060302")
    def wscaled(src, off):
        for d in range(4):
            I(f"v_lshlrev_b32 v{t+2*d}, 16, v{src+d}")
            I(f"v_and_b32 v{t+2*d+1}, 0xffff0000, v{src+d}")
        for d in range(4): I(f"v_pk_mul_f32 {rr(t+2*d,2)}, {rr(t+2*d,2)}, {sp(sA)}")
        for n in range(4): I(f"v_cvt_pk_bf16_f32 v{t+8+n}, v{t+n}, v{t+4+n}")
        wput(t + 8, off)
    def wplain(src, off, tt):
        for n in range(4): I(f"v_perm_b32 v{tt+n}, v{src+2+(n>>1)}, v{src+(n>>1)}, s{cP if n & 1 else cM}")
        wput(tt, off)
    def wput(r, off):
        a = wl
        if off:
            a = r + 4
            I(f"v_add_u32 v{a}, {off}, v{wl}")
        I(f"ds_write2_b32 v{a}, v{r}, v{r+1} offset0:0 offset1:8")
        I(f"ds_write2_b32 v{a}, v{r+2}, v{r+3} offset0:16 offset1:24")
    I("s_waitcnt vmcnt(4)")
    I(f"v_max3_u32 v{u(0)}, v{vRK1}, v{vRK1+1}, v{vRK1+2}")
    I(f"v_max3_u32 v{u(1)}, v{vRK1+3}, v{vRK1+4}, v{vRK1+5}")
    I(f"v_max3_u32 v{u(0)}, v{u(0)}, v{vRK1+6}, v{vRK1+7}")
    I(f"v_max_u32 v{u(0)}, v{u(0)}, v{u(1)}")
    I(f"v_cmp_le_u32 vcc, {33*CAP}, v{u(0)}")
    I("s_cbranch_vccnz L_PEXT")
    L("L_PEXTR")
    stamp("b4")
    wplain(vRW + 8, WAI - WBI, t + 16)
    wscaled(vRW, 0)
    wplain(vRW + 4, WVI - WBI, t + 24)
    wplain(vRW + 12, WUI - WBI, t + 16)
    I(f"s_cmp_ge_u32 s{sWP}, 2")
    I("s_cbranch_scc1 L_NOWC")
    wscaled(vEO, WCI - WBI)
    L("L_NOWC")
    I(f"s_mul_i32 s{sTM}, s{sB}, {RS}")
    I(f"s_add_u32 s{sTM}, s{sTM}, {WS_CELL}")
    srd(sCEL, pWS, 256*128, f"s{sTM}")
    I(f"s_add_u32 s{sTM}, s{sTM}, {256*RS}")
    srd(sD2, pWS, 256*128, f"s{sTM}")
    vC, vEB = vACC + 32, vACC + 60
    pa = vT16
    for k in (1, 2, 3): I(f"s_movk_i32 s{sCI+k-1}, {8192*k}")
    def poll_load(i):
        so = "0" if i == 0 else f"s{sCI+i-1}"
        I(f"buffer_load_dwordx4 {rr(vC+4*i,4)}, v{pa}, {sq(sCEL)}, {so} offen sc1")
    I("s_waitcnt lgkmcnt(0)")
    I("s_barrier")
    stamp(4)
    if OLP == 0: own_loads()
    vWA = vACC
    I(f"v_add_u32 v{wal}, {WBI}, v{wal}")
    def trw(reg, img):
        return [f"ds_read_b64_tr_b16 {rr(reg+8*n+4*s+2*uu,2)}, v{wal} offset:{img + (32*s + 8*uu)*WR + 32*n}"
                for n in range(4) for s in range(2) for uu in range(2)]
    tw = trw(vWB, 0) + trw(vWV, WVI - WBI)
    for x_ in tw[:14]: I(x_)
    prefill(vCA)
    for x_ in tw[14:24]: I(x_)
    nxt = 24
    I(f"v_mov_b32 v{u(4)}, v{wal}")
    I("s_mov_b32 exec_lo, 0")
    I(f"v_subrev_u32 v{u(4)}, {16*WR}, v{wal}")
    I("s_mov_b32 exec_lo, -1")
    tw += [f"ds_read_b64_tr_b16 {rr(vCA+16+4*n+2*uu,2)}, v{u(4)} offset:{WCI - WBI + 8*uu*WR + 32*n}" for n in range(4) for uu in range(2)]
    vEM, vET = vEO, vACC + 56
    ownn, owna, mapa = vEO + 1, vEO + 2, vEO + 3
    I(f"v_mul_u32_u24 v{vEB}, {CH}, v{ha}")
    for i in range(1, 4): I(f"v_add_u32 v{vEB+i}, {64*i*CH}, v{vEB}")
    I(f"s_mov_b32 s{sEM}, {EMASK:#x}")
    I(f"s_mov_b32 s{sEM+1}, {EMASK:#x}")
    vFF = vEO + 4
    I(f"v_mov_b32 v{vFF}, 0xfffff")
    I(f"v_cndmask_b32 v{vEM}, 0, v{vFF}, {sp(sEM)}")
    I(f"v_add_lshl_u32 v{u(3)}, v{pa}, v{vCP}, 16")
    for i in range(4):
        I(f"v_add_u32 v{vET+i}, {(EARLY + 8192*i) << 16:#x}, v{u(3)}")
        I(f"v_cndmask_b32 v{vET+i}, 0, v{vET+i}, {sp(sEM)}")
    I(f"v_mov_b32 v{one}, 4")
    I(f"v_and_b32 v{ownn}, 31, v{lane}")
    I(f"v_add_lshl_u32 v{mapa}, v{ownn}, s{sWIN}, 2")
    I(f"v_lshrrev_b32 v{u(3)}, 5, v{lane}")
    I(f"v_lshl_add_u32 v{owna}, v{u(3)}, 11, v{mapa}")
    I(f"v_add_u32 v{mapa}, {MAP}, v{mapa}")
    I("s_waitcnt lgkmcnt(4)")
    for x_ in tw[nxt:]: I(x_)
    I(f"v_add_u32 v{wal}, {WAI - WBI}, v{wal}")
    I(f"s_movk_i32 s{sFM}, 0xffc")
    I(f"s_movk_i32 s{sSKIP}, {CAP+8}")
    I(f"s_mov_b32 s{sXT}, 0")
    I(f"s_mov_b32 s{sSP}, 0")
    I(f"s_mov_b32 s{sT}, 0x1ffffff")
    I(f"s_mov_b32 s{sN}, 0xffff")
    lo0, hi0, lo1, hi1 = sWS0, sWS1, sB0E, sSH
    I(f"s_mul_i32 s10, s{sW}, 49")
    I(f"s_sub_i32 s{lo0}, s10, 6")
    I(f"s_ashr_i32 s{lo0}, s{lo0}, 1")
    I(f"s_add_i32 s{hi0}, s10, 7")
    I(f"s_ashr_i32 s{hi0}, s{hi0}, 1")
    I(f"s_add_i32 s{lo1}, s10, 43")
    I(f"s_ashr_i32 s{lo1}, s{lo1}, 1")
    I(f"s_add_i32 s{hi1}, s{lo0}, 31")
    I(f"s_cmp_eq_u32 s{sW}, 7")
    I(f"s_cselect_b32 s{lo1}, {BN}, s{lo1}")
    I(f"s_cselect_b32 s{hi1}, {BN}, s{hi1}")
    stamp("b0")
    if opt("pw", 1): I(f"s_waitcnt vmcnt({4 if OLP == 0 else 0})")
    stamp("b1")
    for i in range(4): poll_load(i)
    if OLP == 1: own_loads()
    PY = 4 if OLP == 1 else 0
    stamp(5)
    vA, vRK, vR1 = vACC, vACC + 16, vQ
    mk = lambda i, j: sM + 2*(4*i + j)
    def rec_ops(d, x, byte, eb, a, r1, keep=None):
        e_ = r1 if keep is None else keep
        return [f"v_add_u32_sdwa v{e_}, v{x}, v{eb} {SDW} src0_sel:BYTE_{byte} src1_sel:DWORD",
                f"v_lshrrev_b32 v{u(1)}, 28, v{d}",
                f"v_lshl_add_u32 v{e_}, v{u(1)}, 8, v{e_}",
                f"v_and_b32 v{u(1)}, 60, v{a}",
                f"v_lshl_add_u32 v{r1}, v{u(1)}, 19, v{e_}"]
    for i in range(4):
        c_ = vC + 4*i
        L(f"L_PW{i}")
        I(f"s_waitcnt vmcnt({3 - i + PY})")
        I(f"v_xor_b32 v{u(0)}, v{c_+3}, v{vTG}")
        for j in range(3): I(f"v_and_b32_sdwa v{vA+4*i+j}, v{c_+j}, s{sFM} {SDW} src0_sel:WORD_1 src1_sel:DWORD")
        I(f"v_cmp_lt_u32 vcc, s{sT}, v{u(0)}")
        for j in range(3): I(f"v_cmp_ne_u32 {sp(mk(i,j))}, 0, v{c_+j}")
        I(f"s_cbranch_vccnz L_RT{i}")
        if i == 3: stamp(6)
        for j in range(3):
            I(f"s_mov_b64 exec, {sp(mk(i,j))}")
            I(f"ds_add_rtn_u32 v{vRK+4*i+j}, v{vA+4*i+j}, v{one} offset:{HIST}")
        I("s_mov_b64 exec, -1")
        if i == 3:
            I(f"v_or3_b32 v{u(2)}, v{vC+3}, v{vC+7}, v{vC+11}")
            I(f"v_or_b32 v{u(2)}, v{u(2)}, v{vC+15}")
            I(f"v_and_b32 v{u(2)}, 0x1000000, v{u(2)}")
            I(f"v_cmp_ne_u32 vcc, 0, v{u(2)}")
            I("s_cbranch_vccnz L_XT1")
            L("L_XT1R")
        for j in range(3):
            put(rec_ops(c_+j, c_+3, j, vEB+i, vA+4*i+j, vR1+4*i+j, vR1+4*i+3 if j == 0 and JE else None))
        if JE:
            e_ = vR1 + 4*i + 3
            I(f"v_cndmask_b32 v{u(0)}, v{vFF}, v{e_}, {sp(mk(i,0))}")
            I("s_nop 1")
            I(f"v_mov_b32_dpp v{u(1)}, v{u(0)} quad_perm:[2,2,3,3] row_mask:0xf bank_mask:0xf")
            I(f"v_mov_b32_dpp v{e_}, v{u(0)} quad_perm:[0,0,1,1] row_mask:0xf bank_mask:0xf")
            I("s_nop 0")
            I(f"v_mov_b32_dpp v{e_}, v{u(1)} row_shr:4 row_mask:0xf bank_mask:0xa")
    fill = []
    for i in range(4):
        fill += [f"v_and_or_b32 v{vC+4*i}, v{vC+4*i}, s{sN}, v{vET+i}", f"v_or_b32 v{vR1+4*i}, v{vR1+4*i}, v{vEM}"]
        fill += [f"v_and_b32 v{vC+4*i+j}, s{sN}, v{vC+4*i+j}" for j in (1, 2)]
    I(f"v_mov_b32 v{u(9)}, {FLAG}")
    if OLP == 2: own_loads()
    I("s_waitcnt lgkmcnt(0)")
    stamp("d0")
    I("s_barrier")
    stamp(7)
    def early(i):
        if not JE: return
        I(f"s_lshl_b32 m0, s{sWP}, 10")
        I(f"v_mov_b32 v{vEI}, v{vR1+4*i+3}")
        I(f"s_add_u32 m0, m0, {EARLY + 8192*i}")
        if JE < 4:
            I(f"s_mov_b32 exec_lo, {((1 << 2*JE) - 1) * 0x01010101:#x}")
            I("s_mov_b32 exec_hi, exec_lo")
        else: I("s_nop 0")
        I(f"buffer_load_dwordx4 {rr(vEI,2)}, {sq(sEP)}, 0 idxen offen{pol(EP)} lds")
        if JE < 4: I("s_mov_b64 exec, -1")
    EPOS = opt("epos", "0123")
    def epoint(k):
        for i in range(4):
            if int(EPOS[i]) == k: early(i)
    c, p, tot, sc = u(0), u(4), u(8), u(9)
    hh = vX
    own, to2, ex, z_, eh, el = u(10), u(11), u(12), u(13), u(14), u(15)
    SD = f"{SDW} src0_sel:WORD_0 src1_sel:WORD_0"
    HL = f"{SDW} src0_sel:WORD_0 src1_sel:WORD_1"
    I(f"ds_read_u16 v{own}, v{owna} offset:{HIST}")
    I(f"ds_read_u16 v{to2}, v{owna} offset:{HIST + 1024}")
    for ph in range(4):
        I(f"ds_read_b128 {rr(hh+4*ph,4)}, v{l16} offset:{HIST + 1024*ph}")
    I(f"ds_read_b32 v{vQD}, v{sc} offset:8")
    epoint(0)
    I("s_cmp_lg_u32 s2, 0")
    I("s_cbranch_scc1 L_NOK")
    I(f"v_mov_b32 v{vQD+1}, s{sK}")
    I(f"v_mov_b32 v{vQD+2}, 0")
    I(f"buffer_store_dword v{vQD+1}, v{vQD+2}, {sq(sWS)}, 0 offen sc1")
    L("L_NOK")
    I("s_waitcnt lgkmcnt(5)")
    I(f"v_lshl_or_b32 v{own}, v{to2}, 16, v{own}")
    I(f"v_mov_b32 v{to2}, v{own}")
    I("s_waitcnt lgkmcnt(0)")
    stamp("d1")
    f2 = []
    for i in range(4):
        f2 += [f"v_add_u32_sdwa v{c+i}, v{hh+i}, v{hh+4+i} {SD}", f"v_add_u32_sdwa v{p+i}, v{hh+8+i}, v{hh+12+i} {SD}"]
    f2 += [f"v_add_u32 v{c+i}, v{c+i}, v{p+i}" for i in range(4)]
    wave_scan(to2, f2, half=True)
    put(f2)
    I(f"v_add_u32 v{p+1}, v{c}, v{c+1}")
    I(f"v_add_u32 v{p+2}, v{p+1}, v{c+2}")
    I(f"v_add_u32 v{p+3}, v{p+2}, v{c+3}")
    I(f"v_mov_b32 v{tot}, v{p+3}")
    f2 = [f"v_sub_u32 v{ex}, v{to2}, v{own}", f"v_add_u32_sdwa v{eh}, v{to2}, v{to2} {HL}",
          f"v_add_u32_sdwa v{z_}, v{ex}, v{ex} {HL}", f"v_add_u32_sdwa v{el}, v{own}, v{own} {HL}",
          f"v_add_u32 v{c+1}, v{c}, v{p+1}", f"v_add_u32 v{c+2}, v{p+1}, v{p+2}",
          f"v_permlane32_swap_b32 v{z_}, v{eh}", f"v_add_u32 v{c+3}, v{p+2}, v{p+3}",
          f"v_add_u32 v{z_}, v{z_}, v{eh}",
          f"v_cndmask_b32 v{el}, 0, v{el}, {sp(sJ3)}",
          f"v_add_u32 v{eh}, v{z_}, v{el}",
          f"v_readfirstlane_b32 s{sMORE}, v{vQD}"]
    I(f"s_mov_b32 s{sJ3}, -1")
    I(f"s_mov_b32 s{sJ3+1}, 0")
    wave_scan(tot, f2)
    assert not f2
    stamp("d2")
    epoint(1)
    I(f"v_sub_u32 v{p}, v{tot}, v{p+3}")
    I(f"v_readlane_b32 s10, v{tot}, 63")
    I(f"v_sub_u32_sdwa v{el}, v{eh}, v{own} {SDW} src0_sel:DWORD src1_sel:WORD_1")
    for i in range(4):
        I(f"v_lshl_add_u32 v{c+i}, v{p}, 1, v{c+i}")
    ASYM = opt("asym", 12)
    I("s_lshr_b32 s11, s10, 5")
    I(f"s_add_u32 s11, s11, {ASYM}")
    I("s_and_b32 s11, s11, -32")
    I(f"s_sub_i32 s11, s11, {ASYM}")
    I("s_lshl_b32 s11, s11, 3")
    I("s_lshr_b32 s10, s10, 1")
    I(f"s_lshr_b32 s{sF0}, s{sW}, 1")
    I(f"s_mul_i32 s{sF0}, s{sF0}, s10")
    I(f"s_add_i32 s11, s11, s{sF0}")
    I(f"s_add_i32 s10, s10, s{sF0}")
    I(f"s_bitcmp1_b32 s{sW}, 0")
    I(f"s_cselect_b32 s{sEND}, s11, s{sF0}")
    I("s_cselect_b32 s10, s10, s11")
    I(f"s_mov_b32 s{sF0}, 0")
    I(f"s_mov_b32 s{sF1}, 0")
    for i in range(4):
        I(f"v_cmp_gt_i32 vcc, s{sEND}, v{c+i}")
        I(f"v_cmp_gt_i32 {sp(sTM)}, s10, v{c+i}")
        I("s_bcnt1_i32_b64 s11, vcc")
        I(f"s_add_u32 s{sF0}, s{sF0}, s11")
        I(f"s_bcnt1_i32_b64 s11, {sp(sTM)}")
        I(f"s_add_u32 s{sF1}, s{sF1}, s11")
    I(f"s_max_i32 s{sF0}, s{sF0}, s{lo0}")
    I(f"s_min_i32 s{sF0}, s{sF0}, s{hi0}")
    I(f"s_max_i32 s{sF1}, s{sF1}, s{lo1}")
    I(f"s_min_i32 s{sF1}, s{sF1}, s{hi1}")
    stamp("d3")
    epoint(2)
    f0, f1 = sWS0, sWS1
    A01, A23, E01, E23, Z1 = sCI, sCUR, sR0, sCNT, sST
    I(f"s_sub_u32 s{f0}, s{sF0}, s{sWIN}")
    I(f"s_sub_u32 s{f1}, s{sF1}, s{sWIN}")
    I(f"v_readlane_b32 s{sT}, v{z_}, s{f0}")
    I(f"v_readlane_b32 s{Z1}, v{z_}, s{f1}")
    I(f"s_add_u32 s10, s{f0}, 32")
    I(f"s_add_u32 s11, s{f1}, 32")
    I(f"v_readlane_b32 s{A01}, v{ex}, s{f0}")
    I(f"v_readlane_b32 s{E01}, v{ex}, s{f1}")
    I(f"v_readlane_b32 s{A23}, v{ex}, s10")
    I(f"v_readlane_b32 s{E23}, v{ex}, s11")
    I(f"s_sub_u32 s{sEND}, s{Z1}, s{sT}")
    I(f"s_add_u32 s10, s{sEND}, 255")
    I("s_lshr_b32 s10, s10, 8")
    I("s_lshl_b32 s10, s10, 7")
    I(f"s_sub_u32 s10, s10, s{sMORE}")
    I("s_max_i32 s10, s10, 0")
    I(f"s_add_u32 s{sT}, s{sT}, s10")
    I(f"s_add_u32 s10, s{f0}, 16")
    I(f"s_min_u32 s10, s10, s{f1}")
    I(f"s_sub_i32 s11, s{f1}, 16")
    inl, inh, mo = sTM, sTM + 2, sMSK
    I(f"v_cmp_ge_u32 {sp(inl)}, s{sT}, v{el}")
    I(f"v_cmp_ge_u32 {sp(inh)}, s{sT}, v{eh}")
    I(f"v_cmp_gt_i32 vcc, s10, v{ownn}")
    I(f"v_cmp_gt_i32 {sp(sA)}, s11, v{ownn}")
    I(f"v_cmp_le_u32 {sp(mo)}, s{f0}, v{ownn}")
    I(f"v_cmp_gt_u32 {sp(sJ3)}, s{f1}, v{ownn}")
    I(f"s_and_b64 {sp(inl)}, {sp(inl)}, vcc")
    I(f"s_and_b64 {sp(inh)}, {sp(inh)}, vcc")
    I(f"s_or_b64 {sp(inl)}, {sp(inl)}, {sp(sA)}")
    I(f"s_or_b64 {sp(inh)}, {sp(inh)}, {sp(sA)}")
    I(f"s_bcnt1_i32_b32 s{sB0E}, s{inl}")
    I(f"s_bcnt1_i32_b32 s10, s{inh}")
    I(f"s_bcnt1_i32_b32 s11, s{inl+1}")
    I(f"s_bcnt1_i32_b32 s{sSH}, s{inh+1}")
    I(f"v_readlane_b32 s{f0}, v{ex}, s{sB0E}")
    I(f"v_readlane_b32 s10, v{ex}, s10")
    I("s_add_u32 s11, s11, 32")
    I(f"s_add_u32 s{sT}, s{sSH}, 32")
    I(f"v_readlane_b32 s{f1}, v{ex}, s11")
    I(f"v_readlane_b32 s11, v{ex}, s{sT}")
    I(f"v_mov_b32 v{c}, s{sN}")
    I(f"v_cndmask_b32 v{c+1}, 0, v{c}, {sp(inl)}")
    I(f"v_cndmask_b32 v{c}, 0, v{c}, {sp(inh)}")
    I(f"s_and_b64 {sp(mo)}, {sp(mo)}, {sp(sJ3)}")
    Q01, Q23 = f0, f1
    I(f"s_pack_lh_b32_b16 s{Q01}, s{f0}, s10")
    I(f"s_pack_lh_b32_b16 s{Q23}, s{f1}, s11")
    I(f"v_lshl_or_b32 v{c}, v{c}, 16, v{c+1}")
    I(f"s_sub_u32 s{sT}, s{sL}, {R0 - BIAS}")
    I(f"s_pack_ll_b32_b16 s{sT}, s{sT}, s{sT}")
    def bases(lo01, lo23, hi01, hi23, d, keep=None):
        I(f"s_sub_u32 s10, s{hi01}, s{lo01}")
        I(f"s_sub_u32 s11, s{hi23}, s{lo23}")
        I(f"s_mul_i32 s10, s10, 0x10001")
        I(f"s_lshl_b32 vcc_lo, s10, 16")
        I(f"s_pack_hh_b32_b16 s10, s10, s10")
        I(f"s_lshl_b32 vcc_hi, s11, 16")
        I(f"s_add_u32 vcc_hi, vcc_hi, s10")
        if keep is not None:
            I(f"s_add_u32 s{keep}, vcc_hi, s11")
            I(f"s_lshr_b32 s{keep}, s{keep}, 16")
            I(f"s_sub_u32 s{sEND}, s{sEND}, s{keep}")
            I(f"s_cmp_gt_u32 s{sEND}, s{keep}")
            I(f"s_cselect_b32 s{SWP}, {LWB * 0x10001:#x}, 0")
            I(f"s_add_u32 s{sT}, s{sT}, s{SWP}")
        I(f"s_sub_u32 s10, s{sT}, s{lo01}")
        I(f"s_sub_u32 s11, s{sT}, s{lo23}")
        I("s_add_u32 s10, s10, vcc_lo")
        I("s_add_u32 s11, s11, vcc_hi")
        I(f"v_mov_b32 v{d}, s10")
        I(f"v_mov_b32 v{d+1}, s11")
    LEN0, SWP = sJ3, sJ3 + 1
    bases(A01, A23, Q01, Q23, p, LEN0)
    I(f"s_add_u32 s{sT}, s{sT}, {LWB * 0x10001:#x}")
    I(f"s_sub_u32 s{sT}, s{sT}, s{SWP}")
    I(f"s_sub_u32 s{sT}, s{sT}, s{SWP}")
    bases(Q01, Q23, E01, E23, p + 2)
    I(f"v_bfi_b32 v{p}, v{c}, v{p}, v{p+2}")
    I(f"v_bfi_b32 v{p+1}, v{c}, v{p+1}, v{p+3}")
    I(f"s_mov_b32 exec_hi, 0")
    I(f"v_mov_b32 v{p+1}, v{p}")
    I(f"s_mov_b64 exec, {sp(mo)}")
    I(f"v_add_u32 v{ex}, v{ex}, v{p+1}")
    assert LWB & 0x80
    I(f"s_bfe_u32 s10, s{SWP}, 0x10007")
    I(f"s_lshl1_add_u32 s10, s{sW}, s10")
    I("s_lshl_b32 s10, s10, 2")
    I(f"v_cndmask_b32 v{c}, 4, 0, {sp(inl)}")
    I(f"ds_write_b16 v{owna}, v{ex} offset:{HIST + 2}")
    I(f"ds_write_b16_d16_hi v{owna}, v{ex} offset:{HIST + 1024 + 2}")
    I("s_mov_b32 exec_hi, 0")
    I(f"v_xor_b32 v{c}, s10, v{c}")
    I(f"ds_write_b32 v{mapa}, v{c}")
    I("s_mov_b64 exec, -1")
    stamp("d5")
    I(f"s_min_u32 s10, s{sEND}, s{LEN0}")
    I(f"s_max_u32 s{LEN0}, s{sEND}, s{LEN0}")
    I(f"s_mov_b32 s{sEND}, s10")
    I(f"s_add_u32 s10, s{LEN0}, s{sMORE}")
    I(f"s_mul_i32 s11, s{Z1}, {LWB * 65536 // BIAS}")
    I("s_lshr_b32 s11, s11, 16")
    I("s_max_u32 s10, s10, s11")
    I(f"s_cmp_lt_u32 s10, {LWB}")
    I("s_cbranch_scc1 L_LFIT")
    I(f"ds_write_b32 v{sc}, v{one}")
    L("L_LFIT")
    I(f"s_cmp_lg_u32 s{sMORE}, 0")
    I("s_cbranch_scc1 L_XCN")
    L("L_XCNR")
    epoint(3)
    put(fill)
    I("s_waitcnt lgkmcnt(0)")
    stamp(8)
    I("s_barrier")
    stamp(9)
    I(f"ds_read_b64 {rr(u(14),2)}, v{sc}")
    for i in range(4):
        for j in range(3):
            I(f"ds_read_u16 v{vA+4*i+j}, v{vA+4*i+j} offset:{HIST + 2}")
    epoint(4)
    def ntiles(l0, l1):
        I(f"s_add_u32 s10, s{l0}, 127")
        I("s_lshr_b32 s10, s10, 7")
        I("s_lshl1_add_u32 s10, s10, -1")
        I(f"s_add_u32 s11, s{l1}, 127")
        I("s_lshr_b32 s11, s11, 6")
        I("s_and_b32 s11, s11, -2")
        I(f"s_max_i32 s{sN}, s10, s11")
    I(f"s_add_u32 s{sB0E}, s{sB0E}, s{sWIN}")
    I(f"s_add_u32 s11, s{sSH}, s{sWIN}")
    I(f"s_and_b32 s10, s11, 15")
    I(f"s_cmp_lt_u32 s11, s{sB0E}")
    I(f"s_cselect_b32 s{sSH}, s10, 16")
    I(f"s_cmp_lg_u32 s{SWP}, 0")
    I(f"s_cselect_b32 s{sWS1}, s{sF0}, s11")
    I(f"s_cselect_b32 s{sWIN}, s{sF0}, s{sB0E}")
    I(f"s_cselect_b32 s{sF0}, s11, s{sF0}")
    I(f"s_cselect_b32 s{sB0E}, s{sF1}, s{sB0E}")
    I(f"s_cselect_b32 s{sF1}, s11, s{sF1}")
    I(f"s_min_u32 s{sWS0}, s{sF0}, 192")
    I(f"s_min_u32 s{sWS1}, s{sWS1}, 192")
    I(f"s_mov_b32 s{sST}, s{sMORE}")
    I("s_waitcnt lgkmcnt(12)")
    I(f"v_cmp_ne_u32 vcc, 0, v{u(14)}")
    I(f"v_readfirstlane_b32 s{sMORE}, v{u(15)}")
    I("s_cbranch_vccnz L_OVF")
    for i in range(4):
        for j in range(3):
            s_ = 4*i + j
            I("s_waitcnt lgkmcnt(11)")
            I(f"v_add_u32 v{vA+s_}, v{vA+s_}, v{vRK+s_}")
            I(f"s_mov_b64 exec, {sp(mk(i,j))}")
            I(f"ds_write2st64_b32 v{vA+s_}, v{vC+s_}, v{vR1+s_} {W2}")
            I("s_mov_b64 exec, -1")
    ntiles(LEN0, sEND)
    stamp("d6")
    L("L_CA")
    I(f"s_cmp_lg_u32 s{sXT}, 0")
    I("s_cbranch_scc1 L_XT2")
    L("L_XT2R")
    for x_ in trw(vWA, 0): I(x_)
    stamp("d7")
    I("s_waitcnt vmcnt(0) lgkmcnt(0)")
    stamp(10)
    I("s_barrier")
    I(f"s_cmp_lg_u32 s{sST}, 0")
    I("s_cbranch_scc1 L_XT3")
    L("L_XT3R")
    I(f"s_mov_b32 s10, {f2u(1e-6):#x}")
    I(f"ds_read_b128 {rr(vQD,4)}, v{vARX}")
    I(f"ds_read_b32 v{vEI}, v{vARE}")
    stamp(11)
    I(f"v_lshrrev_b32 v{u(0)}, 2, v{lane}")
    I(f"v_and_b32 v{u(0)}, 12, v{u(0)}")
    I(f"v_subrev_u32 v{u(0)}, s{sSH}, v{u(0)}")
    I("s_waitcnt lgkmcnt(0)")
    put(dma_tile())
    aw, al, ab = vEO, vEO + 1, vEO + 2
    I(f"s_lshl_b32 s{sTM}, s{sWS0}, 5")
    I(f"s_lshl_b32 s{sTM+1}, s{sWS1}, 5")
    I(f"s_mov_b32 vcc_lo, 0xff00ff00")
    I(f"s_mov_b32 vcc_hi, 0xff00ff00")
    I(f"v_mov_b32 v{aw}, s{sTM+1}")
    I(f"v_mov_b32 v{al}, s{sTM}")
    I(f"v_cndmask_b32 v{aw}, v{aw}, v{al}, vcc")
    I(f"v_and_b32 v{al}, 4, v{lane}")
    I(f"v_lshlrev_b32 v{al}, 6, v{al}")
    I(f"v_lshl_add_u32 v{al}, v{vcS}, 2, v{al}")
    I(f"v_sub_u32 v{al}, v{al}, v{aw}")
    I(f"v_and_b32 v{ab}, 48, v{lane}")
    I(f"s_movk_i32 s{sTM}, {(PL-32)//8}")
    I(f"v_mad_u32_u24 v{ab}, v{vcS}, s{sTM}, v{ab}")
    I(f"s_mov_b32 s{sTM}, {OWN}")
    I(f"v_add3_u32 v{ab}, v{ab}, v{aw}, s{sTM}")
    for t_ in range(2):
        if t_: I(f"v_add_u32 v{al}, 0x80, v{al}")
        I(f"v_and_b32 v{aw}, 0x1ff, v{al}")
        I(f"v_add_u32 v{aw}, v{aw}, v{ab}")
        for s in range(2): I(f"ds_read_b128 {rr(vX+8*t_+4*s,4)}, v{aw} offset:{64*s}")
    I(f"s_mov_b32 s{sTM}, {f2u(-LOG2E):#x}")
    I(f"s_mov_b32 s{sTM+1}, s{sTM}")
    for t_ in range(2):
        for s in range(2):
            I(f"s_waitcnt lgkmcnt({3 - 2*t_ - s})")
            for n in range(4):
                D = vQ + 8*n + 4*t_
                I(m16(D, vX+8*t_+4*s, vWA+8*n+4*s, D if s else None))
    I("s_mov_b32 s11, s10")
    I(f"v_mov_b32 v{u(1)}, s10")
    for i in range(8): I(f"v_mov_b64 {rr(DEN(0,0)+2*i,2)}, {sp(10)}")
    for i in range(4):
        I(f"v_cmp_ne_u32 vcc, {-i}, v{u(0)}")
        I(f"v_mov_b64 {rr(NUM(0,0)+4*i,2)}, 0")
        I(f"v_mov_b64 {rr(NUM(0,0)+4*i+2,2)}, 0")
        I(f"v_cndmask_b32 v{DEN(1,0)+i}, 0, v{u(1)}, vcc")
    for i in range(8): I(f"v_mov_b64 {rr(NUM(1,0)+2*i,2)}, 0")
    for n in range(1, 4):
        for i in range(2): I(f"v_mov_b64 {rr(DEN(1,n)+2*i,2)}, {rr(DEN(1,0)+2*i,2)}")
    for i in range(16): I(f"v_pk_mul_f32 {rr(vQ+2*i,2)}, {rr(vQ+2*i,2)}, {sp(sTM)}")
    for i in range(16): I(f"v_cvt_pk_bf16_f32 v{vCA+i}, v{vQ+2*i}, v{vQ+2*i+1}")
    for i in range(16): I(f"v_permlane32_swap_b32 v{vCA+16+i}, v{vCA+i}")
    I(f"s_mov_b32 s{sCI}, -1")
    I(f"s_mov_b64 {sp(sMSK)}, 0")
    I(f"s_mov_b32 s{sR0}, 0")
    I(f"s_mov_b32 s{sCNT}, 0")
    L("L_GO")
    for m in range(2): I(f"ds_read_u16 v{vEA+m}, v{vARO} offset:{64*m}")
    I(f"ds_read_b128 {rr(vQD,4)}, v{vARX} offset:{LWB}")
    I(f"ds_read_b32 v{vEI}, v{vARE} offset:{LWB}")
    I(f"s_lshr_b32 s10, s{sW}, 1")
    I("s_lshl_b32 s10, s10, 8")
    I(f"s_add_u32 s10, s10, {PRG}")
    I(f"v_lshl_add_u32 v{vPA}, v{lane}, 2, s10")
    I(f"s_bitcmp1_b32 s{sW}, 0")
    I(f"s_cselect_b32 s{sSG}, -1, 1")
    I(f"s_mul_i32 s10, s{sSG}, s{sN}")
    I("s_lshl_b32 s10, s10, 24")
    I(f"v_mov_b32 v{vQ}, s10")
    I(f"ds_add_u32 v{vPA}, v{vQ}")
    I(f"v_mov_b32 v{vC1}, 0")
    I("s_mov_b32 exec_hi, 0")
    I(f"v_add_u32 v{vC1}, 0x200, v{vcEO}")
    I("s_mov_b32 exec_hi, -1")
    for i in range(16): I(f"v_mov_b64 {rr(vQ+2*i,2)}, 0")
    for i in range(2): I(f"v_mov_b64 {rr(vS+2*i,2)}, 0")
    I("s_waitcnt lgkmcnt(0)")
    put(eafix())
    stamp(12)
    I("s_waitcnt vmcnt(0)")
    stamp(13)
    cstamp(56)
    for m in range(2): I(f"ds_read_b128 {rr(vEO+4*m,4)}, v{vEA+m}")
    for m, s in ORD: I(xread(m, s))
    I(f"s_cmp_lt_i32 s{sN}, 1")
    I("s_cbranch_scc1 L_DONE")
    g = g_mfmas(vP, 0, 0)
    I("s_waitcnt lgkmcnt(4)")
    for x_ in g[:4]: I(x_)
    I("s_waitcnt lgkmcnt(0)")
    for x_ in g[4:]: I(x_)
    put(dma_tile())
    I(f"s_mov_b32 s{sT}, 1")
    for cp in ((1, 0) if FAIR else (0,)):
        sw = lambda par: [f"s_cmp_ge_i32 s{sRM}, {opt('fth', 1)}", f"s_cbranch_scc{1-cp} L_PB{par}{1-cp}", f"L_PB{par}{cp}:"] if FAIR else []
        body = phase(0, 0, cp) + sw(0) + phase(0, 1, cp) + [f"s_cmp_gt_u32 s{sT}, s{sN}", "s_cbranch_scc1 L_TAIL0"]
        body += phase(1, 0, cp) + sw(1) + phase(1, 1, cp) + [f"s_cmp_le_u32 s{sT}, s{sN}", f"s_cbranch_scc1 L_LOOP{cp}"]
        check_body(body)
        DBG = opt("dbg", "")
        if "nodma" in DBG: body = [b for b in body if not b.startswith("buffer_load")]
        if "dropS" in DBG: body = [b for b in body if not b.startswith("v_smfmac")]
        if "halfrcp" in DBG: body = [b for b in body if not (b.startswith("v_rcp") and int(b.split("v")[-1]) & 1)]
        if "droppk" in DBG: body = [b for b in body if not b.startswith("v_pk_mul")]
        if "halfx" in DBG: body = [b for b in body if not (b.startswith("v_mfma") and (f"v[{vX+4}:" in b or f"v[{vX+12}:" in b))]
        if "nolds" in DBG: body = [b for b in body if not (b.startswith("ds_read_b128") and f"v{vAX}" in b)]
        emit(".p2align 6")
        L(f"L_LOOP{cp}")
        put(body)
        if cp: I("s_branch L_TAIL1")
    L("L_TAIL1")
    put(s_num(1, 1) + s_den(1, 1, vR))
    I("s_branch L_DONE")
    L("L_TAIL0")
    put(s_num(0, 1) + s_den(0, 1, vR))
    L("L_DONE")
    I(f"v_mbcnt_lo_u32_b32 v{lane}, -1, 0")
    I(f"v_mbcnt_hi_u32_b32 v{lane}, -1, v{lane}")
    I(f"s_cmp_lg_u32 s{sMORE}, 0")
    I("s_cbranch_scc1 L_SLOW")
    L("L_EPI")
    stamp(14)
    cstamp(57)
    I(f"s_setprio {opt('epr', 0)}")
    e = lambda i: vCA + i
    xd = vWV
    I(f"v_bfe_u32 v{e(1)}, v{lane}, 2, 3")
    I(f"v_lshrrev_b32 v{e(2)}, 5, v{lane}")
    I(f"v_lshl_add_u32 v{e(1)}, v{e(2)}, 4, v{e(1)}")
    I(f"v_mul_u32_u24 v{e(1)}, {WR}, v{e(1)}")
    I(f"s_mov_b32 s10, {WUI}")
    I(f"v_add3_u32 v{e(1)}, v{e(1)}, v{vcS}, s10")
    wu = [f"ds_read_b64_tr_b16 {rr(vWB+8*n+4*s+2*uu,2)}, v{e(1)} offset:{(32*s + 8*uu)*WR + 32*n}" for s in range(2) for n in range(4) for uu in range(2)]
    I(f"v_and_b32 v{e(0)}, 48, v{lane}")
    I(f"v_and_b32 v{e(3)}, 15, v{lane}")
    I(f"v_lshlrev_b32 v{e(4)}, 3, v{e(3)}")
    I(f"v_lshlrev_b32 v{e(6)}, 3, v{e(0)}")
    I(f"s_movk_i32 s10, {(PL-32)//8}")
    I(f"v_mad_u32_u24 v{e(0)}, v{vcS}, s10, v{e(0)}")
    I("s_waitcnt lgkmcnt(0)")
    nd = lambda w, i: e(16 + 4*w + i)
    sO = [sOUT, sCEL]
    for w in range(2):
        ws = sWS0 + w
        I(f"s_lshl_b32 s{ws}, s{ws}, 5")
        I(f"s_add_u32 s10, s{ws}, {OWN}")
        I(f"v_add_u32 v{e(5)}, s10, v{e(4)}")
        for i in range(4):
            I(f"s_sub_u32 s11, {32*i}, s{ws}")
            I(f"v_add_u32 v{nd(w,i)}, s11, v{e(6)}")
            I(f"v_and_b32 v{nd(w,i)}, 0x1ff, v{nd(w,i)}")
            I(f"v_add_u32 v{e(8)}, v{nd(w,i)}, v{e(5)}")
            I(f"ds_read_b64 {rr(xd+8*w+2*i,2)}, v{e(8)} offset:{i*(PL-32)}")
        I(f"s_sub_u32 s11, 0, s{ws}")
        I(f"v_lshl_add_u32 v{e(8)}, v{e(4)}, 2, s11")
        I(f"v_and_b32 v{e(8)}, 0x1ff, v{e(8)}")
        I(f"v_add3_u32 v{e(8)}, v{e(8)}, v{e(0)}, s10")
        for s in range(2): I(f"ds_read_b128 {rr(vX+8*w+4*s,4)}, v{e(8)} offset:{64*s}")
        if w == 0:
            for x_ in wu[:8]: I(x_)
    for x_ in wu[8:]: I(x_)
    I(f"s_lshl_b32 s10, s{sSH}, 5")
    I(f"v_subrev_u32 v{e(6)}, s10, v{e(6)}")
    for i in range(4):
        I(f"v_cmpx_eq_u32 vcc, {-32*i & 0xffffffff:#x}, v{e(6)}")
        I(f"s_cbranch_execz L_NS{i}")
        for k in range(8): I(f"v_add_f32 v{vACC+4*k+i}, v{vACC+4*k+i}, v{vACC+32+4*k+i}")
        L(f"L_NS{i}")
        I("s_mov_b64 exec, -1")
    I(f"s_mul_i32 s10, s{sB}, {BN}")
    for k, r_ in enumerate((sF0, sB0E, sWIN, sF1)):
        I(f"s_add_u32 s{sTM+k}, s10, s{r_}")
        I(f"s_min_u32 s{sTM+k}, s{sTM+k}, {N}")
        I(f"s_lshl_b32 s{sTM+k}, s{sTM+k}, 7")
    I(f"s_add_u32 s{sCEL}, s{sOUT}, s{sTM+2}")
    I(f"s_addc_u32 s{sCEL+1}, s{sOUT+1}, 0")
    I(f"s_sub_u32 s{sCEL+2}, s{sTM+3}, s{sTM+2}")
    I(f"s_add_u32 s{sOUT}, s{sOUT}, s{sTM}")
    I(f"s_addc_u32 s{sOUT+1}, s{sOUT+1}, 0")
    I(f"s_sub_u32 s{sOUT+2}, s{sTM+1}, s{sTM}")
    for w, r_ in enumerate((sF0, sWIN)):
        I(f"s_lshl_b32 s10, s{r_}, 5")
        I(f"s_sub_u32 s10, s{sWS0+w}, s10")
        I("s_lshl_b32 s10, s10, 2")
        I(f"v_add_u32 v{e(10+w)}, s10, v{e(4)}")
    for w in (1, 0):
        for k in range(16): I(f"v_rcp_f32 v{DEN(w,0)+k}, v{DEN(w,0)+k}")
    I("s_waitcnt lgkmcnt(8)")
    for w in range(2):
        XF = vP if w == 0 else vQ
        for i in range(4):
            for h in range(2):
                I(f"v_lshlrev_b32 v{XF+8*h+i}, 16, v{xd+8*w+2*i+h}")
                I(f"v_and_b32 v{XF+8*h+4+i}, 0xffff0000, v{xd+8*w+2*i+h}")
    for w in range(2):
        XF = vP if w == 0 else vQ
        for k in range(0, 16, 2): I(f"v_pk_fma_f32 {rr(NUM(w,0)+k,2)}, {rr(NUM(w,0)+k,2)}, {rr(DEN(w,0)+k,2)}, {rr(XF+k,2)}")
    I("s_waitcnt lgkmcnt(0)")
    k = 0
    for w in range(2):
        for s in range(2):
            for n in range(4):
                I(m16(NUM(w,n), vX+8*w+4*s, vWB+8*n+4*s, NUM(w,n)))
                if k < 8: I(f"v_lshl_add_u32 v{nd(k>>2,k&3)}, v{nd(k>>2,k&3)}, 2, v{e(10+(k>>2))}")
                k += 1
    for w in range(2):
        XF = vP if w == 0 else vQ
        for i in range(4):
            for n in range(4): I(f"v_max_f32 v{NUM(w,n)+i}, v{NUM(w,n)+i}, v{XF+4*n+i}")
            for h in range(2): I(f"v_cvt_pk_bf16_f32 v{DEN(w,0)+2*i+h}, v{NUM(w,2*h)+i}, v{NUM(w,2*h+1)+i}")
            I(f"buffer_store_dwordx2 {rr(DEN(w,0)+2*i,2)}, v{nd(w,i)}, {sq(sO[w])}, 0 offen{pol(OP)}")
    stamp_out()
    L("L_END")
    I("s_endpgm")
    def spin():
        I(f"s_add_u32 s{sSP}, s{sSP}, 1")
        I(f"s_cmp_gt_u32 s{sSP}, {opt('spin', 200000)}")
        I("s_cbranch_scc1 L_END")
        if opt("slp", 1): I(f"s_sleep {opt('slp', 1)}")
    for i in range(4):
        L(f"L_RT{i}")
        I("s_waitcnt vmcnt(0)")
        spin()
        for k in range(i, 4): poll_load(k)
        I("s_waitcnt vmcnt(0)")
        I(f"s_branch L_PW{i}")
    xg = vCA
    def xload(tag):
        for i in range(4):
            I(f"s_mov_b64 exec, {sp(mk(i,3))}")
            I(f"s_cbranch_execz L_XL{tag}{i}")
            I(f"s_movk_i32 s10, {8192*i}")
            I(f"buffer_load_dwordx4 {rr(xg+4*i,4)}, v{pa}, {sq(sD2)}, s10 offen sc1")
            L(f"L_XL{tag}{i}")
        I("s_mov_b64 exec, -1")
    L("L_XT1")
    for i in range(4):
        I(f"v_and_b32 v{u(2)}, 0x1000000, v{vC+4*i+3}")
        I(f"v_cmp_ne_u32 {sp(mk(i,3))}, 0, v{u(2)}")
        I(f"s_bcnt1_i32_b64 s10, {sp(mk(i,3))}")
        I(f"s_lshl2_add_u32 s{sXT}, s10, s{sXT}")
    xload("a")
    I(f"v_or3_b32 v{u(2)}, v{vC+1}, v{vC+5}, v{vC+9}")
    I(f"v_or_b32 v{u(2)}, v{u(2)}, v{vC+13}")
    I(f"v_and_b32 v{u(2)}, 0x10000, v{u(2)}")
    I(f"v_mov_b32 v{u(3)}, {FLAG}")
    I(f"v_cmpx_ne_u32 vcc, 0, v{u(2)}")
    I(f"ds_write_b32 v{u(3)}, v{one} offset:4")
    I("s_mov_b64 exec, 1")
    I(f"v_mov_b32 v{u(2)}, s{sXT}")
    I(f"ds_add_u32 v{u(3)}, v{u(2)} offset:8")
    I("s_mov_b64 exec, -1")
    I("s_branch L_XT1R")
    L("L_XCN")
    I(f"s_sub_u32 s10, s{sL}, {R0 - BIAS}")
    I(f"s_add_u32 s11, s10, s{LEN0}")
    I(f"v_mov_b32 v{u(0)}, s11")
    I(f"s_add_u32 s11, s10, s{sEND}")
    I(f"s_add_u32 s11, s11, {LWB}")
    I(f"v_mov_b32 v{u(1)}, s11")
    I(f"s_lshl_b32 s10, s{sW}, 3")
    I(f"v_mov_b32 v{u(2)}, s10")
    I(f"ds_write_b64 v{u(2)}, {rr(u(0),2)} offset:{CNT}")
    I("s_branch L_XCNR")
    L("L_XT2")
    I("s_waitcnt vmcnt(0)")
    I(f"s_mov_b64 {sp(sTM)}, 0")
    for i in range(4):
        I(f"v_cmp_ne_u32 vcc, s{sK}, v{xg+4*i+1}")
        I(f"s_and_b64 vcc, vcc, {sp(mk(i,3))}")
        I(f"s_or_b64 {sp(sTM)}, {sp(sTM)}, vcc")
    I("s_cbranch_scc0 L_XT2A")
    spin()
    xload("b")
    I("s_branch L_XT2")
    L("L_XT2A")
    I(f"s_cmp_eq_u32 s{sSKIP}, 0")
    I("s_cbranch_scc1 L_XT2R")
    for i in range(4):
        g_ = xg + 4*i
        I(f"s_mov_b64 exec, {sp(mk(i,3))}")
        I(f"v_bfe_u32 v{g_+1}, v{g_}, 18, 8")
        I(f"v_lshlrev_b32 v{g_+1}, 2, v{g_+1}")
        I(f"v_add_u32 v{g_+3}, {MAP}, v{g_+1}")
        I(f"ds_read_b32 v{g_+3}, v{g_+3}")
        put(rec_ops(g_, g_+2, 0, vEB+i, g_+1, g_+2))
        I(f"v_and_b32 v{g_}, 0xffff, v{g_}")
        I("s_waitcnt lgkmcnt(0)")
        I(f"ds_add_rtn_u32 v{g_+3}, v{g_+3}, v{one} offset:{CNT}")
        I("s_waitcnt lgkmcnt(0)")
        I(f"ds_write2st64_b32 v{g_+3}, v{g_}, v{g_+2} {W2}")
    I("s_mov_b64 exec, -1")
    I("s_waitcnt lgkmcnt(0)")
    I("s_branch L_XT2R")
    def lens_from_cnt(t):
        I(f"s_lshl_b32 s10, s{sW}, 3")
        I(f"v_mov_b32 v{t}, s10")
        I(f"ds_read_b64 {rr(t,2)}, v{t} offset:{CNT}")
        I("s_waitcnt lgkmcnt(0)")
        I(f"v_readfirstlane_b32 s{sTM}, v{t}")
        I(f"v_readfirstlane_b32 s{sTM+1}, v{t+1}")
        I(f"s_sub_u32 s10, s{sL}, {R0 - BIAS}")
        I(f"s_sub_u32 s{sTM}, s{sTM}, s10")
        I(f"s_sub_u32 s{sTM+1}, s{sTM+1}, s10")
        I(f"s_sub_u32 s{sTM+1}, s{sTM+1}, {LWB}")
        ntiles(sTM, sTM + 1)
    L("L_XT3")
    lens_from_cnt(u(0))
    I("s_branch L_XT3R")
    L("L_OVF")
    I(f"s_mov_b32 s{sSKIP}, 0")
    I(f"s_mov_b32 s{sN}, 0")
    I(f"s_mov_b32 s{sST}, 0")
    I(f"s_mov_b32 s{sMORE}, 4")
    I("s_waitcnt lgkmcnt(0)")
    I("s_branch L_CA")
    q = vCA
    L("L_PEXT")
    I(f"v_mov_b32 v{q+1}, s{sK}")
    I(f"s_mov_b32 s{sTM}, {256*RS}")
    for i in range(8):
        I(f"v_subrev_u32 v{q+4}, {33*CAP}, v{vRK1+i}")
        I(f"v_cmpx_gt_u32 vcc, {33*8}, v{q+4}")
        I(f"s_cbranch_execz L_PE{i}")
        I(f"v_mov_b32 v{q}, v{vSR+i}")
        I(f"v_mov_b32 v{q+2}, v{vID+(i&3)}")
        I(f"v_bfe_u32 v{q+4}, v{vRK1+i}, 5, 3")
        I(f"v_lshlrev_b32 v{q+4}, 4, v{q+4}")
        I(f"v_mad_u32_u24 v{q+4}, v{vBK+i}, s{cR}, v{q+4}")
        I(f"buffer_store_dwordx4 {rr(q,4)}, v{q+4}, {sq(sCEL)}, s{sTM} offen sc1")
        L(f"L_PE{i}")
        I("s_mov_b64 exec, -1")
    I("s_branch L_PEXTR")
    L("L_POVF")
    I("s_movk_i32 s11, 1986")
    for i in range(4):
        I(f"v_mul_u32_u24 v{q+i}, s11, v{vHS+i}")
        I(f"v_lshrrev_b32 v{q+i}, 16, v{q+i}")
    I(f"v_add_u32 v{q+5}, v{q}, v{q+1}")
    I(f"v_add_u32 v{q+6}, v{q+5}, v{q+2}")
    I(f"v_add_u32 v{q+7}, v{q+6}, v{q+3}")
    I(f"v_mov_b32 v{q+8}, v{q+7}")
    wave_scan(q + 8)
    I("s_nop 0")
    I(f"v_sub_u32 v{q+4}, v{q+8}, v{q+7}")
    I(f"v_add_u32 v{q+7}, v{q+4}, v{q+6}")
    I(f"v_add_u32 v{q+6}, v{q+4}, v{q+5}")
    I(f"v_add_u32 v{q+5}, v{q+4}, v{q}")
    for i in range(4): I(f"v_lshl_or_b32 v{q+4+i}, v{q+i}, 16, v{q+4+i}")
    I(f"v_add_u32 v{q+8}, {HDR}, v{l16}")
    I(f"ds_write_b128 v{q+8}, {rr(q+4,4)}")
    I("s_lshl_b32 s10, s2, 10")
    I(f"s_add_u32 s10, s10, {WS_HD}")
    I(f"buffer_store_dwordx4 {rr(q+4,4)}, v{l16}, {sq(sWS)}, s10 offen sc1")
    for i in range(8):
        I(f"v_and_b32 v{q+10+i}, 0x3fc, v{vHA+i}")
        I(f"v_add_u32 v{q+10+i}, {HDR}, v{q+10+i}")
        I(f"ds_read_u16 v{q+10+i}, v{q+10+i}")
    I("s_waitcnt lgkmcnt(0)")
    for i in range(4):
        I(f"v_cmpx_lt_u32 vcc, {33*(CAP+8)}, v{vHD+i}")
        I(f"v_or_b32 v{vO+4*i+1}, 0x10000, v{vO+4*i+1}")
        I("s_mov_b64 exec, -1")
    I(f"s_mul_i32 s10, s2, {DCH}")
    I(f"s_mov_b32 s{sTM}, {WS_RECS}")
    I(f"s_mov_b32 s{sTM+1}, {WS_LEID}")
    for i in range(8):
        I(f"v_mul_u32_u24 v{q}, s11, v{vRK1+i}")
        I(f"v_lshrrev_b32 v{q}, 16, v{q}")
        I(f"v_add3_u32 v{q}, v{q}, v{q+10+i}, s10")
        I(f"v_lshlrev_b32 v{q+1}, 2, v{q}")
        I(f"v_cmpx_le_u32 vcc, {33*(CAP+8)}, v{vRK1+i}")
        I(f"s_cbranch_execz L_PO{i}")
        I(f"buffer_store_byte v{vID+(i&3)}, v{q}, {sq(sWS)}, s{sTM+1} offen sc1")
        I(f"buffer_store_dword v{vSR+i}, v{q+1}, {sq(sWS)}, s{sTM} offen sc1")
        L(f"L_PO{i}")
        I("s_mov_b64 exec, -1")
    I("s_waitcnt vmcnt(0) lgkmcnt(0)")
    I("s_barrier")
    I("s_branch L_POUT")
    SB = 288
    t0, t1, t2, t3 = vP, vP+1, vP+2, vP+3
    L("L_SLOW")
    I("s_setprio 0")
    I(f"s_lshl_b32 s10, s{sWP}, 6")
    I(f"v_add_u32 v{tid}, s10, v{lane}")
    I(f"s_cmp_lg_u32 s{sMORE}, 4")
    I("s_cbranch_scc1 L_SL1")
    I(f"s_mov_b32 s{sMORE}, 1")
    I(f"v_and_b32 v{t0}, 0xff, v{tid}")
    I(f"v_lshlrev_b32 v{t1}, 7, v{t0}")
    I(f"buffer_load_dword v{t2}, v{t1}, {sq(sCEL)}, 0 offen offset:4 sc1")
    I(f"v_lshlrev_b32 v{t1}, 10, v{t0}")
    I(f"s_lshl_b32 s10, s{sB}, 2")
    I(f"s_add_u32 s10, s10, {WS_HD}")
    I(f"buffer_load_dword v{t3}, v{t1}, {sq(sWS)}, s10 offen sc1")
    I(f"v_lshlrev_b32 v{t0}, 2, v{t0}")
    I(f"v_add_u32 v{t0}, {HDR}, v{t0}")
    I("s_waitcnt vmcnt(0)")
    I(f"v_and_b32 v{t2}, 0x10000, v{t2}")
    I(f"v_cmp_ne_u32 vcc, 0, v{t2}")
    I(f"v_mov_b32 v{t2}, {(CAP+8) << 16}")
    I("s_nop 0")
    I(f"v_cndmask_b32 v{t2}, v{t2}, v{t3}, vcc")
    I(f"ds_write_b32 v{t0}, v{t2}")
    I("s_waitcnt lgkmcnt(0)")
    I("s_barrier")
    L("L_SL1")
    I(f"s_add_u32 s{sR0}, s{sR0}, {SB}")
    I(f"s_cmp_lt_u32 s{sR0}, s{sCNT}")
    I("s_cbranch_scc1 L_BATCH")
    L("L_FIND")
    I(f"s_cmp_lg_u64 {sp(sMSK)}, 0")
    I("s_cbranch_scc1 L_GOT")
    I(f"s_add_u32 s{sCI}, s{sCI}, 1")
    I(f"s_cmp_ge_u32 s{sCI}, 4")
    I("s_cbranch_scc1 L_EPI")
    I(f"s_lshl_b32 s10, s{sCI}, 8")
    I(f"s_add_u32 s10, s10, {HDR}")
    I(f"v_lshl_add_u32 v{t0}, v{lane}, 2, s10")
    I(f"ds_read_u16 v{t0}, v{t0} offset:2")
    I("s_waitcnt lgkmcnt(0)")
    I(f"v_cmp_lt_u32 {sp(sMSK)}, s{sSKIP}, v{t0}")
    I("s_nop 3")
    I("s_branch L_FIND")
    L("L_GOT")
    I(f"s_ff1_i32_b64 s10, {sp(sMSK)}")
    I(f"s_bitset0_b64 {sp(sMSK)}, s10")
    I(f"s_lshl_b32 s11, s{sCI}, 6")
    I(f"s_add_u32 s{sCUR}, s10, s11")
    I(f"s_lshl_b32 s10, s{sCUR}, 2")
    I(f"s_add_u32 s10, s10, {HDR}")
    I(f"v_mov_b32 v{t0}, s10")
    I(f"ds_read_b32 v{t0}, v{t0}")
    I("s_waitcnt lgkmcnt(0)")
    I(f"v_readfirstlane_b32 s10, v{t0}")
    I("s_nop 3")
    I(f"s_lshr_b32 s{sCNT}, s10, 16")
    I(f"s_and_b32 s{sST}, s10, 0xffff")
    I(f"s_mov_b32 s{sR0}, s{sSKIP}")
    L("L_BATCH")
    I("s_waitcnt vmcnt(0)")
    I("s_barrier")
    prefill(vP + 4)
    I(f"v_and_b32 v{t0}, 15, v{lane}")
    I(f"v_mul_u32_u24 v{t1}, {LWB}, v{t0}")
    I(f"v_add_u32 v{t1}, {BIAS}, v{t1}")
    I(f"v_lshlrev_b32 v{t0}, 2, v{t0}")
    I(f"ds_write_b32 v{t0}, v{t1} offset:{CNT}")
    t1, t4, t5 = vQ, vQ + 2, vQ + 3
    I(f"v_add_u32 v{t0}, s{sR0}, v{tid}")
    I(f"s_mul_i32 s{sTM+2}, s{sCUR}, {CH}")
    I(f"s_mul_i32 s11, s{sCUR}, {DCH}")
    I(f"s_add_u32 s11, s11, s{sST}")
    I(f"s_lshl_b32 s{sTM}, s11, 2")
    I(f"s_add_u32 s{sTM}, s{sTM}, {WS_RECS}")
    I(f"v_lshl_add_u32 v{t2}, v{t0}, 2, s{sTM}")
    I(f"s_add_u32 s{sTM}, s11, {WS_LEID}")
    I(f"v_add_u32 v{t3}, s{sTM}, v{t0}")
    I(f"s_mul_i32 s10, s{sB}, {RS}")
    I(f"s_lshl_b32 s{sTM}, s{sCUR}, 7")
    I(f"s_add_u32 s10, s10, s{sTM}")
    I(f"s_add_u32 s10, s10, {WS_CELL}")
    I(f"v_and_b32 v{t4}, 7, v{t0}")
    I(f"v_lshl_add_u32 v{t4}, v{t4}, 4, s10")
    I(f"v_lshrrev_b32 v{t5}, 3, v{t0}")
    I(f"v_cmpx_gt_u32 vcc, {CAP+8}, v{t0}")
    I(f"v_add_u32 v{t2}, {256*RS}, v{t4}")
    I(f"v_add_u32 v{t3}, 8, v{t2}")
    I(f"v_cmpx_gt_u32 vcc, {CAP}, v{t0}")
    I(f"v_lshl_add_u32 v{t2}, v{t5}, 2, v{t4}")
    I(f"v_add3_u32 v{t3}, v{t4}, v{t5}, 12")
    I("s_mov_b64 exec, -1")
    I(f"s_add_u32 s10, s{sR0}, {SB}")
    I(f"s_min_u32 s10, s10, s{sCNT}")
    I(f"v_cmp_gt_u32 vcc, s10, v{t0}")
    I(f"v_mov_b32 v{t4}, 0x7ffffff0")
    I("s_nop 0")
    I(f"v_cndmask_b32 v{t2}, v{t4}, v{t2}, vcc")
    I(f"v_cndmask_b32 v{t3}, v{t4}, v{t3}, vcc")
    I(f"buffer_load_dwordx2 {rr(t1,2)}, v{t2}, {sq(sWS)}, 0 offen sc1")
    I(f"buffer_load_ubyte v{t3}, v{t3}, {sq(sWS)}, 0 offen sc1")
    I("s_waitcnt lgkmcnt(0)")
    I("s_barrier")
    I("s_waitcnt vmcnt(0)")
    I(f"v_cmp_ne_u32 vcc, 3, v{t5}")
    I(f"v_cmp_eq_u32 {sp(sA)}, s{sK}, v{t1+1}")
    I(f"v_mov_b32 v{t4}, s{sTM+2}")
    I(f"s_or_b64 exec, vcc, {sp(sA)}")
    I(f"v_cmpx_ne_u32 vcc, 0, v{t1}")
    I(f"v_bfe_u32 v{t2}, v{t1}, 18, 8")
    I(f"v_lshlrev_b32 v{t2}, 2, v{t2}")
    I(f"v_add_u32 v{t0}, {MAP}, v{t2}")
    I(f"ds_read_b32 v{t0}, v{t0}")
    put(rec_ops(t1, t3, 0, t4, t2, t3))
    I(f"v_mov_b32 v{t2}, 4")
    I(f"v_and_b32 v{t1}, 0xffff, v{t1}")
    I("s_waitcnt lgkmcnt(0)")
    I(f"ds_add_rtn_u32 v{t0}, v{t0}, v{t2} offset:{CNT}")
    I("s_waitcnt lgkmcnt(0)")
    I(f"ds_write2st64_b32 v{t0}, v{t1}, v{t3} {W2}")
    I("s_mov_b64 exec, -1")
    I("s_waitcnt lgkmcnt(0)")
    I("s_barrier")
    listaddr(t2)
    I(f"ds_read_b128 {rr(vQD,4)}, v{vARX}")
    I(f"ds_read_b32 v{vEI}, v{vARE}")
    lens_from_cnt(t2)
    put(dma_tile())
    L("L_LAST")
    I("s_branch L_GO")

def regs_of(tok):
    tok = tok.strip()
    m = re.fullmatch(r"v\[(\d+):(\d+)\]", tok)
    if m: return list(range(int(m.group(1)), int(m.group(2)) + 1))
    m = re.fullmatch(r"v(\d+)", tok)
    if m: return [int(m.group(1))]
    return []
def parse(ins):
    op, _, rest = ins.partition(" ")
    ops = [o.strip().split(" ")[0] for o in rest.split(",")] if rest else []
    if op.startswith("ds_read") or "rtn" in op: return "ds", regs_of(ops[0]), regs_of(ops[1])
    return "other", [], sum((regs_of(o) for o in ops), [])
def check_body(body):
    s2 = [b for b in body if not b.endswith(":")]
    pend = []
    for i, ins in enumerate(s2 * 3):
        k, d, s = parse(ins)
        m = re.search(r"lgkmcnt\((\d+)\)", ins)
        if m:
            while len(pend) > int(m.group(1)): pend.pop(0)
        pr = set(sum(pend, []))
        for r in d + s:
            assert r not in pr, f"pending LDS reg v{r} used by {ins} @{i}"
        if k == "ds":
            pend.append(d); assert len(pend) <= 15

hdr = open("/code/" + NAME + ".s.ref").read().split("\n")
for l in hdr:
    if l.startswith("; Override"): break
    out.append(l)
if opt("list", 0): out.append(f"; @launch kernel={NAME}_kernel grid=(256,1,1) block=(512,1,1) lds={LDS}")
else: out.append(f"; @launch grid=(256,1,1) block=(512,1,1) lds={LDS}")
LEAK = opt("leak", "")
if LEAK: out.append("; @launch kernel=leak_kernel grid=(1,1,1) block=(256,1,1) lds=64")
emit('.amdgcn_target "amdgcn-amd-amdhsa--gfx950"\n.text')
kernel()
if LEAK:
    kind, nm = LEAK[0], LEAK[1:]
    si = STN.index(nm)
    emit(".globl leak_kernel\n.p2align 8\n.type leak_kernel,@function\nleak_kernel:")
    I("s_cmp_lg_u32 s2, 0")
    I("s_cbranch_scc1 LK_END")
    I("s_load_dwordx2 s[4:5], s[0:1], 88")
    I("v_min_u32 v1, 254, v0")
    I("v_lshlrev_b32 v1, 11, v1")
    I("v_mov_b32 v2, 0")
    I("v_mov_b32 v3, 0x7fffffff")
    I("v_mov_b32 v4, 0")
    I("ds_write2_b32 v2, v3, v4 offset0:0 offset1:1")
    I("s_waitcnt lgkmcnt(0)")
    I(f"s_add_u32 s4, s4, {WS_TS}")
    I("s_addc_u32 s5, s5, 0")
    I("global_load_dword v5, v2, s[4:5]")
    for w in range(8):
        I(f"global_load_dword v{8+w}, v1, s[4:5] offset:{256*w}")
        I(f"global_load_dword v{16+w}, v1, s[4:5] offset:{256*w + 4*si}")
    I("s_barrier")
    I("s_waitcnt vmcnt(0)")
    I("v_subrev_u32 v5, 1000, v5")
    for w in range(16): I(f"v_sub_u32 v{8+w}, v{8+w}, v5")
    for w in range(8):
        I(f"ds_min_u32 v2, v{8+w}")
        I(f"ds_{'max' if kind == 'm' else 'add'}_u32 v2, v{16+w} offset:4")
    I("s_waitcnt lgkmcnt(0)")
    I("s_barrier")
    I("ds_read_b64 v[6:7], v2")
    I("s_waitcnt lgkmcnt(0)")
    I("v_lshlrev_b32 v6, 2, v6")
    I("v_lshlrev_b32 v7, 2, v7" if kind == 'm' else "v_lshrrev_b32 v7, 9, v7")
    I("v_sub_u32 v6, v7, v6")
    I("v_min_u32 v6, 20000, v6")
    I("s_nop 0")
    I("v_readfirstlane_b32 s6, v6")
    I("s_memrealtime s[8:9]")
    I("s_waitcnt lgkmcnt(0)")
    L("LK_L")
    I("s_memrealtime s[10:11]")
    I("s_waitcnt lgkmcnt(0)")
    I("s_sub_u32 s7, s10, s8")
    I("s_cmp_lt_u32 s7, s6")
    I("s_cbranch_scc1 LK_L")
    L("LK_END")
    I("s_endpgm")
emit(f""".section .rodata,"a"
.p2align 6
.amdhsa_kernel {NAME}_kernel
  .amdhsa_next_free_vgpr 256
  .amdhsa_next_free_sgpr 102
  .amdhsa_accum_offset 256
  .amdhsa_group_segment_fixed_size 0
  .amdhsa_kernarg_size 96
  .amdhsa_user_sgpr_count 2
  .amdhsa_user_sgpr_kernarg_segment_ptr 1
  .amdhsa_system_sgpr_workgroup_id_x 1
.end_amdhsa_kernel""")
if LEAK:
    emit(""".p2align 6
.amdhsa_kernel leak_kernel
  .amdhsa_next_free_vgpr 32
  .amdhsa_next_free_sgpr 16
  .amdhsa_accum_offset 32
  .amdhsa_group_segment_fixed_size 0
  .amdhsa_kernarg_size 96
  .amdhsa_user_sgpr_count 2
  .amdhsa_user_sgpr_kernarg_segment_ptr 1
  .amdhsa_system_sgpr_workgroup_id_x 1
.end_amdhsa_kernel""")
if TS: out.insert(0, "; stamps " + " ".join(STN))
path = sys.argv[1] if len(sys.argv) > 1 else "/code/" + NAME + ".s"
open(path, "w").write("\n".join(out) + "\n")
print("wrote", path, len(out), "lines; lds", LDS)
```

```python
import sys, re, struct

NAME = "standalone__edge_featured_mpnn_gatedgcn__graph"
OPT = dict(kv.split("=") for kv in sys.argv[2:])
def opt(k, d):
    v = OPT.get(k)
    if v is None: return d
    return type(d)(v)

N, E = 50000, 800000
CH = 3128
BN = 196
RS = opt('rs', 257) * 128
WS_CELL = 0x10000
WS_RECS = 0x1200000
WS_LEID = 0x1680000
WS_HD = 0x17a0000
WS_USED = 0x1800000
WS_TS = 0x3000000
KINC = 0x02020202
CAP = 24
LOG2E = 1.4426950408889634
def f2u(f): return struct.unpack("<I", struct.pack("<f", f))[0]

out = []
def emit(s=""):
    for l in s.strip("\n").split("\n"):
        out.append(l.rstrip())
def I(s): out.append("    " + s)
def L(s): out.append(s + ":")
def C(s): out.append("    ; " + s)
def put(seq):
    for s in seq:
        if s.endswith(":"): L(s[:-1])
        else: I(s)
def rr(a, n): return f"v[{a}:{a+n-1}]"
def sp(a): return f"s[{a}:{a+1}]"
def sq(a): return f"s[{a}:{a+3}]"
def pol(p): return (" " + p.replace("_", " ")) if p else ""

def srd(d, lo, size, add=None, stride=0):
    if add is None:
        I(f"s_mov_b32 s{d}, s{lo}")
        I(f"s_mov_b32 s{d+1}, s{lo+1}" if not stride else f"s_or_b32 s{d+1}, s{lo+1}, {stride << 16:#x}")
    else:
        I(f"s_add_u32 s{d}, s{lo}, {add}")
        I(f"s_addc_u32 s{d+1}, s{lo+1}, 0")
    I(f"s_mov_b32 s{d+2}, {size}")
    I(f"s_mov_b32 s{d+3}, 0x20000")

def wave_scan(v, fill=None, half=False):
    def gap():
        if fill and len(fill) >= 2:
            I(fill.pop(0)); I(fill.pop(0))
        else: I("s_nop 1")
    for sh in (1, 2, 4, 8):
        gap()
        I(f"v_add_u32_dpp v{v}, v{v}, v{v} row_shr:{sh} row_mask:0xf bank_mask:0xf bound_ctrl:0")
    gap()
    I(f"v_add_u32_dpp v{v}, v{v}, v{v} row_bcast:15 row_mask:0xa bank_mask:0xf")
    if half: return
    gap()
    I(f"v_add_u32_dpp v{v}, v{v}, v{v} row_bcast:31 row_mask:0xc bank_mask:0xf")

TAB, ZROW, CNT, FLAG = 0, 512, 576, 640
HIST = 1024
ESTG = HIST + 4096
HIST1 = ESTG
EARLY = ESTG + 8192
LWB = 288 * 4
R0 = EARLY + 32768
R1 = R0 + 16 * LWB
XSTG = R1 + 16 * LWB
XI = 1056
SLOT = 4 * XI
OWN = XSTG + 8 * SLOT
PL = 52 * 128 + 32
WR = 160
WUI = OWN + 4 * PL
MAP = WUI + 64 * WR
HDR = MAP + 1024
PRG = HDR + 1024
LDS = PRG + 1024
WBI, WVI, WCI = EARLY, EARLY + 64 * WR, EARLY + 128 * WR
WAI = XSTG + 8192
LROW = 160
CIMG = R0
assert CIMG + 256 * LROW <= WAI and LDS <= 163840, LDS
BIAS = 8192
assert R1 < 65536 and R0 % 256 == 0 and R1 % 256 == 0
W2 = f"offset0:{(R0-BIAS)//256} offset1:{(R1-BIAS)//256}"

vWB, vWV, vCA, vACC = 0, 32, 64, 96
vX, vEO, vS = 160, 176, 184
vP, vQ, vR = 188, 204, 220
vQD = 236
vEI, vCH, vIDX, vCP, vAX, vcEO, vcS, vARX, vARE, vARO, vARS, vEA = 240, 241, 242, 243, 244, 245, 246, 247, 248, 249, 250, 251
lane, vTS, tid = 253, 254, 255
vC1, vPA = lane, tid
DEN = lambda w, n: vACC + 32 * w + 4 * n
NUM = lambda w, n: vACC + 32 * w + 16 + 4 * n
def m16(d, a, b, c=None):
    return f"v_mfma_f32_16x16x32_bf16 {rr(d,4)}, {rr(a,4)}, {rr(b,4)}, " + ("0" if c is None else rr(c, 4))
def s16(d, b): return f"v_smfmac_f32_16x16x64_bf16 {rr(d,4)}, {rr(vS,4)}, {rr(b,8)}, v{vIDX}"

sWP, sW, sB, sK = 3, 4, 5, 6
sWIN, sF0, sF1, sL = 7, 8, 9, 12
sA, sBt = 10, 11
sSTG, sES, s128 = 13, 14, 15
pX, pE, pSRC, pDST, pWA, pWB, pWC, pWU, pWV, pOUT, pDBG, pWS = 16, 18, 20, 22, 24, 26, 28, 30, 32, 34, 36, 38
sT, sN, sFM, sMORE, sSKIP, sXT, sWS0, sWS1, sB0E, sSH = 16, 17, 18, 19, 20, 21, 22, 23, 24, 25
sCI, sCUR, sR0, sCNT, sST, sEND = 26, 27, 28, 29, 30, 31
sMSK = 32
sTM = 34
sX, sEP, sOUT, sWS, sCEL, sD2 = 40, 44, 48, 52, 56, 60
sM = 64
sJ3, sEM = 96, 98
sSP = 100
sHF = 99
sSG, sRM = 101, 96

TS = opt("ts", 0)
STN = []
def stamp(i):
    if not TS: return
    if isinstance(i, str) and i[0] not in opt("tsx", ""): return
    STN.append(str(i)); i = len(STN) - 1
    I("s_memrealtime vcc" if TS == 1 else "s_memtime vcc")
    I("s_waitcnt lgkmcnt(0)")
    I(f"v_writelane_b32 v{vTS}, vcc_lo, {i}")
def stamp_out():
    if not TS: return
    I("s_waitcnt vmcnt(0)")
    stamp(15)
    I("s_memtime vcc")
    I("s_waitcnt lgkmcnt(0)")
    I(f"v_writelane_b32 v{vTS}, vcc_lo, 58")
    I(f"v_writelane_b32 v{vTS}, s{sN}, 59")
    I(f"v_writelane_b32 v{vTS}, s{sSP}, 60")
    I("s_lshl_b32 s10, s2, 3")
    I(f"s_add_u32 s10, s10, s{sWP}")
    I("s_lshl_b32 s10, s10, 8")
    I(f"s_add_u32 s10, s10, {WS_TS}")
    I(f"v_lshl_add_u32 v{vP}, v{lane}, 2, s10")
    I(f"global_store_dword v{vP}, v{vTS}, {sp(pWS)}")
def cstamp(i):
    if not TS: return
    I("s_memtime vcc")
    I("s_waitcnt lgkmcnt(0)")
    I(f"v_writelane_b32 v{vTS}, vcc_lo, {i}")

LD_P = opt("ldp", "nt")
XP, EP, OP = opt("xp", ""), opt("ep", ""), opt("op", "sc1")
STP = opt("stp", "sc1")
MG = opt("mg", 1)
JE = opt("je", 4 if MG else 2)
EMASK = ((1 << JE) - 1) * 0x01010101
DCH = CH + 1024
SDW = "dst_sel:DWORD dst_unused:UNUSED_PAD"

def dma_tile():
    r = []
    for i in range(4):
        r.append(f"s_add_u32 m0, s{sSTG}, {i*XI}")
        r.append(f"v_mad_u32_u16 v{vQD+i}, v{vQD+i}, s{s128}, v{vCP}")
        r.append(f"buffer_load_dwordx4 v{vQD+i}, {sq(sX)}, 0 offen{pol(XP)} lds")
    r.append(f"s_mov_b32 m0, s{sES}")
    r.append(f"v_and_b32 v{vEI}, 0xfffff, v{vEI}")
    r.append(f"buffer_load_dwordx4 {rr(vEI,2)}, {sq(sEP)}, 0 idxen offen{pol(EP)} lds")
    return r

ORD = [(0, 0), (1, 0), (0, 1), (1, 1)]
def xread(m, s): return f"ds_read_b128 {rr(vX+8*m+4*s,4)}, v{vAX} offset:{512*m + 64*s}"
def g_mfmas(D, ft, w):
    g = [m16(D+8*n+4*m, vEO+4*m, vCA+16*w+8*ft+4*n) for m in range(2) for n in range(2)]
    g += [m16(D+8*n+4*m, vX+8*m+4*s, vWB+16*ft+8*n+4*s, D+8*n+4*m) for m, s in ORD for n in range(2)]
    return g
def h_mfmas(ft):
    return [m16(vQ+8*n+4*m, vX+8*m+4*s, vWV+16*ft+8*n+4*s, None if s == 0 else vQ+8*n+4*m) for m, s in ORD for n in range(2)]
def s_num(w, ft): return [s16(NUM(w, 2*ft+n), vQ+8*n) for n in range(2)]
def s_den(w, ft, G): return [s16(DEN(w, 2*ft+n), G+8*n) for n in range(2)]

def eafix():
    return [f"v_bfi_b32 v{vEA+m}, 31, v{vcEO}, v{vEA+m}" for m in range(2)] + [f"v_max_u32 v{vEA}, v{vEA}, v{vcEO}", f"v_max_u32 v{vEA+1}, v{vEA+1}, v{vC1}"]
LV = [int(c, 16) for c in opt("lv", "015a")]
PAT = opt("pat", "1" * 11 + "5")
FAIR = opt("fair", 1)
BST = opt("bst", 10)
def phase(par, ft, cp=0):
    G, Go = (vP, vR) if ft == 0 else (vR, vP)
    nf = 1 - ft
    wn = par if ft == 0 else par ^ 1
    wp = par ^ 1 if ft == 0 else par
    s1 = [[x] for x in s_num(wp, nf) + h_mfmas(ft) + s_den(wp, nf, Go)]
    s2 = [[x] for x in g_mfmas(Go, nf, wn)]
    if ft == 0:
        o = par * LWB
        s1[0] += [f"ds_read_u16 v{vQD+u}, v{vARS} offset:{o + 16*u}" for u in range(2)]
        s1[8] += ["s_waitcnt lgkmcnt(0)"] + [f"v_bfi_b32 v{vQD+u}, 31, v{vcS}, v{vQD+u}" for u in range(2)]
        if FAIR:
            s1[0] += [f"ds_add_rtn_u32 v{vQD+2}, v{vPA}, v{vIDX}"]
            s1[8] += [f"v_readfirstlane_b32 s{sRM}, v{vQD+2}"]
            s2[1] += [f"s_ashr_i32 s{sRM}, s{sRM}, 24", f"s_mul_i32 s{sRM}, s{sRM}, s{sSG}"]
        o1 = 128 if par else LWB
        s2[0] += [f"ds_read_b64_tr_b16 {rr(vS+2*u,2)}, v{vQD+u}" for u in range(2)]
        s2[0] += [f"ds_read_u16 v{vEA+m}, v{vARO} offset:{o1 + 64*m}" for m in range(2)]
        s2[6] += ["s_waitcnt lgkmcnt(0)"] + eafix()
        s2[6] += [f"ds_read_b128 {rr(vQD,4)}, v{vARX} offset:{o + 128}", f"ds_read_b32 v{vEI}, v{vARE} offset:{o + 128}",
                  f"s_add_u32 s{sT}, s{sT}, 1"]
        if par: s2[7] += [f"v_add_u32 v{r}, 0x80, v{r}" for r in (vARX, vARE, vARO, vARS)]
    else:
        s1[2] = ["s_waitcnt vmcnt(0)"] + [f"ds_read_b128 {rr(vEO+4*m,4)}, v{vEA+m}" for m in range(2)] + s1[2]
        for i, (m, s) in enumerate(ORD): s1[3+2*i].append(xread(m, s))
        s2[0] = ["s_waitcnt lgkmcnt(4)"] + s2[0]
        for i in range(4): s2[4+2*i] = [f"s_waitcnt lgkmcnt({3-i})"] + s2[4+2*i]
        tgt = f"L_CE{par}{cp}" if opt("cpe", 0) else f"L_ND{par}{cp}"
        s2[10] += [f"s_cmp_lt_u32 s{sT}, s{sN}", f"s_cbranch_scc0 {tgt}"] + dma_tile() + [f"L_ND{par}{cp}:"]
    def sec(mf, op):
        r = []; k = 0
        for i, m in enumerate(mf):
            if FAIR:
                if i == 0: r.append(f"s_setprio {cp}")
                if i == BST: r.append("s_setprio 3")
            elif i in LV: r.append(f"s_setprio {LV.index(i)}")
            r += m
            for _ in range(int(PAT[i])):
                r.append(f"{op} v{G+k}, v{G+k}"); k += 1
        assert k == 16
        return r
    r = sec(s1, "v_exp_f32")
    r += [f"v_pk_add_f32 {rr(G+2*i,2)}, {rr(G+2*i,2)}, 1.0 op_sel_hi:[1,0]" for i in range(8)]
    r += sec(s2, "v_rcp_f32")
    r += [f"v_pk_mul_f32 {rr(vQ+2*i,2)}, {rr(G+2*i,2)}, {rr(vQ+2*i,2)}" for i in range(8)]
    return r

def last_tile(par, half):
    keep = (lambda x: int(re.match(r"\S+ v\[(\d+)", x).group(1)) % 8 == (vP % 8)) if half else (lambda x: True)
    regs = [k for k in range(16) if not (half and k & 4)]
    def sec(mf, op, G):
        r = [f"s_setprio {opt('lpr', 0)}"]; k = 0
        tail = min(len(regs), 4 if half else 5)
        for i, m in enumerate(mf):
            if i == len(mf) - 1: r.append("s_setprio 3")
            r += m
            e_ = (len(regs) - tail) * (i + 1) // (len(mf) - 1) if i < len(mf) - 1 else len(regs)
            while k < e_:
                r.append(f"{op} v{G+regs[k]}, v{G+regs[k]}"); k += 1
        while k < len(regs):
            r.append(f"{op} v{G+regs[k]}, v{G+regs[k]}"); k += 1
        return r
    r = []
    for ft in range(2):
        G, Go = (vP, vR) if ft == 0 else (vR, vP)
        wp = par ^ 1 if ft == 0 else par
        s1 = [[x] for x in s_num(wp, 1-ft) + [h for h in h_mfmas(ft) if keep(h)] + s_den(wp, 1-ft, Go)]
        s2 = [[x] for x in g_mfmas(Go, 1, par) if keep(x)] if ft == 0 else []
        if ft == 0:
            s1[0] += [f"ds_read_u16 v{vQD+u}, v{vARS} offset:{par*LWB + 16*u}" for u in range(2)]
            s1[-2] += ["s_waitcnt lgkmcnt(0)"] + [f"v_bfi_b32 v{vQD+u}, 31, v{vcS}, v{vQD+u}" for u in range(2)]
            s2[0] += [f"ds_read_b64_tr_b16 {rr(vS+2*u,2)}, v{vQD+u}" for u in range(2)]
        else:
            s1[0] = ["s_waitcnt lgkmcnt(0)"] + s1[0]
        r += sec(s1, "v_exp_f32", G)
        r += [f"v_pk_add_f32 {rr(G+k,2)}, {rr(G+k,2)}, 1.0 op_sel_hi:[1,0]" for k in regs[::2]]
        r += sec(s2, "v_rcp_f32", G)
        r += [f"v_pk_mul_f32 {rr(vQ+k,2)}, {rr(G+k,2)}, {rr(vQ+k,2)}" for k in regs[::2]]
    return r + s_den(par, 1, vR) + s_num(par, 1)

def listaddr(t0):
    I(f"v_lshrrev_b32 v{t0}, 3, v{lane}")
    I(f"v_lshl_add_u32 v{vARX}, v{t0}, 4, s{sL}")
    I(f"s_add_u32 s10, s{sL}, {R1-R0}")
    I(f"v_lshrrev_b32 v{t0}, 1, v{lane}")
    I(f"v_lshl_add_u32 v{vARE}, v{t0}, 2, s10")
    I(f"s_add_u32 s10, s10, 2")
    I(f"v_and_b32 v{t0}, 48, v{lane}")
    I(f"v_lshl_add_u32 v{vARS}, v{t0}, 1, s10")
    I(f"v_and_b32 v{t0}, 12, v{lane}")
    I(f"v_add_u32 v{vARS}, v{vARS}, v{t0}")
    I(f"v_lshrrev_b32 v{t0}, 5, v{lane}")
    I(f"v_mul_u32_u24 v{vARO}, {R1-R0}, v{t0}")
    I(f"v_and_b32 v{t0}, 15, v{lane}")
    I(f"v_lshl_add_u32 v{vARO}, v{t0}, 2, v{vARO}")
    I(f"s_add_u32 s10, s{sL}, 2")
    I(f"v_add_u32 v{vARO}, s10, v{vARO}")

def prefill(t):
    for d in range(2): I(f"v_mov_b64 {rr(t+2*d,2)}, 0")
    for d in range(4): I(f"v_mov_b32 v{t+4+d}, {(ZROW << 16) | 0xfffff:#x}")
    I(f"v_lshl_add_u32 v{t+8}, v{lane}, 4, s{sL}")
    for o in (0, 1024, 2*LWB - 1024):
        I(f"ds_write_b128 v{t+8}, {rr(t,4)} offset:{o}")
        I(f"ds_write_b128 v{t+8}, {rr(t+4,4)} offset:{o + R1 - R0}")

def kernel():
    emit(f"""
.globl {NAME}_kernel
.p2align 8
.type {NAME}_kernel,@function
{NAME}_kernel:""")
    FH = opt("fh", 1)
    vD, vSR, vT16 = vACC, vACC + 8, vR + 12
    I("s_load_dwordx16 s[16:31], s[0:1], 0")
    I("s_load_dwordx8 s[32:39], s[0:1], 64")
    CPN = opt("cpn", 8)
    if opt("cpf", 1):
        I(f"s_getpc_b64 {sp(sM)}")
        L("L_PC")
        if CPN == 8: I("s_and_b32 s3, s2, -8")
        else:
            I("s_lshr_b32 s3, s2, 3")
            I(f"s_and_b32 s3, s3, {256//CPN - 1}")
            I(f"s_mul_i32 s3, s3, {CPN}")
        I("v_add_lshl_u32 v1, v0, s3, 7")
        I("v_min_u32 v1, L_LAST-L_PC, v1")
        I(f"v_cmpx_gt_u32 vcc, {CPN}, v0")
        I("s_cbranch_execz L_NOCPF")
        I(f"global_load_dword v{vEA}, v1, {sp(sM)}")
        L("L_NOCPF")
        I("s_mov_b64 exec, -1")
    I("s_cmp_ge_u32 s2, 256")
    I("s_cbranch_scc1 L_END")
    if FH:
        I(f"s_mul_i32 s{sA}, s2, {CH*4}")
        I(f"v_lshl_add_u32 v1, v0, 4, s{sA}")
        I(f"s_add_u32 s{sBt}, s{sA}, {CH*4}")
        I(f"s_min_u32 s{sBt}, s{sBt}, {E*4}")
        I("v_add_u32 v2, 0x2000, v1")
        I("s_waitcnt lgkmcnt(0)")
        I(f"global_load_dwordx4 {rr(vD,4)}, v1, {sp(pDST)}{pol(LD_P)}")
        I(f"global_load_dwordx4 {rr(vSR,4)}, v1, {sp(pSRC)}{pol(LD_P)}")
        I(f"v_cmpx_gt_u32 {sp(sM+6)}, s{sBt}, v2")
        I("s_cbranch_execz L_NO7")
        I(f"global_load_dwordx4 {rr(vD+4,4)}, v2, {sp(pDST)}{pol(LD_P)}")
        I(f"global_load_dwordx4 {rr(vSR+4,4)}, v2, {sp(pSRC)}{pol(LD_P)}")
        L("L_NO7")
        I("s_mov_b64 exec, -1")
        I(f"s_load_dword s{sK}, {sp(pWS)}, 0")
    if TS: I(f"v_mov_b32 v{vTS}, 0")
    u = lambda i: vP + i
    stamp(0)
    vD, vSR, vBK, vHA, vRK1, vID, vIC = vACC, vACC + 8, vACC + 16, vACC + 24, vACC + 32, vACC + 40, vACC + 44
    vRW = vX
    one, l16 = vS, vS + 1
    vOA, vT16, sOW = vR + 14, vR + 12, 101
    I(f"v_mov_b32 v{tid}, v0")
    I(f"v_lshrrev_b32 v{u(0)}, 6, v0")
    I(f"v_and_b32 v{lane}, 63, v0")
    I(f"v_readfirstlane_b32 s{sWP}, v{u(0)}")
    I(f"v_lshlrev_b32 v{vT16}, 4, v0")
    I(f"v_lshlrev_b32 v{u(2)}, 3, v0")
    I(f"v_lshlrev_b32 v{u(3)}, 2, v0")
    I(f"v_and_b32 v{u(4)}, 0x3fc, v{u(3)}")
    if not FH:
        I(f"s_mul_i32 s{sA}, s2, {CH*4}")
        I(f"s_sub_u32 s{sBt}, {E*4}, s{sA}")
        I(f"s_min_u32 s{sBt}, s{sBt}, {CH*4}")
    I(f"s_and_b32 s{sB}, s2, 7")
    I(f"s_lshr_b32 s{sW}, s2, 3")
    I(f"s_lshl_b32 s{sB}, s{sB}, 5")
    I(f"s_add_u32 s{sB}, s{sB}, s{sW}")
    I(f"s_mul_i32 s{sF1}, s{sB}, {BN}")
    I(f"s_cmp_eq_u32 s{sWP}, 7")
    I(f"s_cselect_b32 s{sOW}, 0, s{sWP}")
    I(f"s_lshl_b32 s{sL}, s{sOW}, 5")
    I(f"s_add_u32 s{sF1}, s{sF1}, s{sL}")
    I(f"v_lshrrev_b32 v{u(5)}, 3, v{lane}")
    I(f"v_lshl_add_u32 v{u(5)}, v{u(5)}, 2, s{sF1}")
    I(f"v_and_b32 v{vCP}, 7, v{lane}")
    I(f"v_lshlrev_b32 v{vCP}, 4, v{vCP}")
    I(f"v_lshl_add_u32 v{vOA}, v{u(5)}, 7, v{vCP}")
    I(f"s_lshl_b32 s{sOW}, s{sOW}, 10")
    I(f"s_add_u32 s{sOW}, s{sOW}, {OWN}")
    if not FH:
        I(f"s_movk_i32 s{sF0}, 0x2000")
        I("s_waitcnt lgkmcnt(0)")
        I(f"s_load_dword s{sK}, {sp(pWS)}, 0")
        srd(sCEL, pDST, f"s{sBt}", f"s{sA}")
        srd(sD2, pSRC, f"s{sBt}", f"s{sA}")
        I(f"buffer_load_dwordx4 {rr(vD,4)}, v{vT16}, {sq(sCEL)}, 0 offen{pol(LD_P)}")
        I(f"buffer_load_dwordx4 {rr(vSR,4)}, v{vT16}, {sq(sD2)}, 0 offen{pol(LD_P)}")
        I(f"s_cmp_ge_u32 s{sWP}, 5")
        I("s_cbranch_scc1 L_NO7")
        I(f"buffer_load_dwordx4 {rr(vD+4,4)}, v{vT16}, {sq(sCEL)}, s{sF0} offen{pol(LD_P)}")
        I(f"buffer_load_dwordx4 {rr(vSR+4,4)}, v{vT16}, {sq(sD2)}, s{sF0} offen{pol(LD_P)}")
        L("L_NO7")
    for d in range(2): I(f"v_mov_b64 {rr(u(8)+2*d,2)}, 0")
    I(f"v_mov_b32 v{u(6)}, {33*JE if MG else 0}")
    I(f"ds_write2st64_b32 v{u(4)}, v{u(6)}, v{u(8)} offset0:{HIST1//256} offset1:{HIST1//256+4}")
    I(f"v_add_u32 v{u(5)}, {CIMG}, v{vT16}")
    for k in range(5): I(f"ds_write_b128 v{u(5)}, {rr(u(8),4)} offset:{8192*k}")
    PF = opt("pf", 0)
    def w_loads():
        I(f"s_cmp_ge_u32 s{sWP}, 2")
        I("s_cbranch_scc1 L_NOC")
        I(f"global_load_dwordx4 {rr(vEO,4)}, v{vT16}, {sp(pWC)}")
        L("L_NOC")
        for k, p in enumerate((pWB, pWV, pWA, pWU)):
            I(f"global_load_dwordx4 {rr(vRW+4*k,4)}, v{vT16}, {sp(p)}")
    def own_loads():
        I(f"s_cmp_eq_u32 s{sWP}, 6")
        I("s_cselect_b32 exec_hi, 0, -1")
        I(f"s_cmp_eq_u32 s{sWP}, 7")
        I("s_cselect_b64 exec, 1, exec")
        for k in range(4):
            I(f"s_add_u32 m0, s{sOW}, {(PL-128)*k}")
            I("s_nop 0")
            I(f"buffer_load_dwordx4 v{vOA}, {sq(sX)}, 0 offen offset:{128*k}{pol(opt('owp', ''))} lds")
        I("s_mov_b64 exec, -1")
        if PF:
            assert PF <= 512
            I(f"s_lshr_b32 s{sTM+1}, s2, 3")
            I(f"s_mul_i32 s{sTM}, s{sTM+1}, {PF*128}")
            I(f"v_min_u32 v{vEA+1}, {PF-1}, v{tid}")
            I(f"v_lshlrev_b32 v{vEA+1}, 7, v{vEA+1}")
            I(f"buffer_load_dword v{vEA+1}, v{vEA+1}, {sq(sX)}, s{sTM} offen")
    LLP = opt("llp", 2)
    OLP = opt("olp", 2)
    NY = 0
    srd(sEP, pE, E, stride=32)
    srd(sOUT, pOUT, N*128)
    srd(sX, pX, N*128)
    OY = 0
    if OLP == 3:
        OW0 = opt("ow0", 5); nw = 8 - OW0; per = -(-28 // nw); OY = per
        I(f"s_cmp_lt_u32 s{sWP}, {OW0}")
        I("s_cbranch_scc1 L_NOOWN")
        I(f"s_mul_i32 s{sF1}, s{sB}, {BN}")
        I(f"v_lshrrev_b32 v{vOA}, 3, v{lane}")
        I(f"v_lshl_add_u32 v{vOA}, v{vOA}, 2, s{sF1}")
        I(f"v_lshl_add_u32 v{vOA}, v{vOA}, 7, v{vCP}")
        I(f"s_sub_u32 s{sF0}, s{sWP}, {OW0}")
        for k in range(per):
            I(f"s_add_u32 s{sF1}, s{sF0}, {nw*k}")
            I(f"s_min_u32 s{sF1}, s{sF1}, 27")
            I(f"s_and_b32 s{sL}, s{sF1}, 3")
            I(f"s_lshr_b32 s{sF1}, s{sF1}, 2")
            I(f"s_mul_i32 s{sOW}, s{sL}, {PL}")
            I(f"s_lshl_b32 s{sL}, s{sL}, 7")
            I(f"s_cmp_eq_u32 s{sF1}, 6")
            I("s_cselect_b32 exec_hi, 0, -1")
            I(f"s_lshl_b32 s{sF1}, s{sF1}, 10")
            I(f"s_add_u32 s{sOW}, s{sOW}, s{sF1}")
            I(f"s_add_u32 m0, s{sOW}, {OWN}")
            I(f"s_lshl2_add_u32 s{sL}, s{sF1}, s{sL}")
            I(f"buffer_load_dwordx4 v{vOA}, {sq(sX)}, s{sL} offen lds")
        I("s_mov_b32 exec_hi, -1")
        L("L_NOOWN")
    srd(sWS, pWS, WS_USED)
    I(f"s_lshl_b32 s{sL}, s2, 7")
    I(f"s_add_u32 s{sL}, s{sL}, {WS_CELL}")
    srd(sCEL, pWS, 511*RS + 128, f"s{sL}")
    cM, cN, cP, cPM, cR = sM, sM + 1, sM + 2, sM + 3, sM + 4
    m2 = sM + 6
    I(f"s_mov_b32 s{cM}, 85599")
    I(f"s_mov_b32 s{cN}, {-BN & 0xffffffff}")
    I(f"s_movk_i32 s{cP}, 5368")
    I(f"s_mov_b32 s{cPM}, {opt('phm', 3) << 26:#x}")
    I(f"s_mov_b32 s{cR}, {RS}")
    for i in range(4): I(f"v_add_u32 v{vID+i}, {i}, v{u(3)}")
    I(f"s_lshl_b32 s{sA}, s{sWP}, 28")
    I(f"s_or_b32 s{sA}, s{sA}, 0x20000")
    I(f"v_mov_b32 v{vIC}, s{sA}")
    I(f"v_or_b32 v{vIC+1}, 0x80000000, v{vIC}")
    I(f"v_mov_b32 v{one}, 33")
    vK1 = vIC + 2
    I(f"v_mov_b32 v{vK1}, 0x400")
    if not FH:
        I(f"s_sub_u32 s{sBt}, s{sBt}, 0x2000")
        I(f"v_cmp_gt_u32 {sp(m2)}, s{sBt}, v{vT16}")
    I(f"s_and_b32 s{sA}, s{sWP}, 3")
    I(f"s_lshr_b32 s{sW}, s{sWP}, 2")
    I(f"s_lshl1_add_u32 s{sW}, s{sA}, s{sW}")
    if opt("swp", 1): I(f"s_xor_b32 s{sW}, s{sW}, 1")
    I(f"s_mul_i32 s{sA}, s{sW}, 49")
    I(f"s_sub_i32 s{sA}, s{sA}, 6")
    I(f"s_ashr_i32 s{sA}, s{sA}, 1")
    I(f"s_max_i32 s{sWIN}, s{sA}, 0")
    I(f"s_mul_i32 s{sSTG}, s{sW}, {SLOT}")
    I(f"s_add_u32 s{sSTG}, s{sSTG}, {XSTG}")
    I(f"s_lshl_b32 s{sES}, s{sW}, 10")
    I(f"s_add_u32 s{sES}, s{sES}, {ESTG}")
    I(f"s_mul_i32 s{sL}, s{sW}, {2*LWB}")
    I(f"s_add_u32 s{sL}, s{sL}, {R0}")
    I(f"s_movk_i32 s{s128}, 128")
    I(f"v_bfe_u32 v{u(6)}, v{tid}, 4, 4")
    I(f"v_and_b32 v{u(7)}, 7, v{tid}")
    I(f"v_cmp_eq_u32 vcc, v{u(6)}, v{u(7)}")
    I(f"v_and_b32 v{u(6)}, 8, v{tid}")
    I(f"v_lshlrev_b32 v{u(6)}, 1, v{u(6)}")
    I(f"v_mov_b32 v{u(8)}, 0x3f80")
    I(f"v_lshlrev_b32 v{u(8)}, v{u(6)}, v{u(8)}")
    I(f"v_cndmask_b32 v{u(8)}, 0, v{u(8)}, vcc")
    I(f"ds_write_b32 v{u(4)}, v{u(8)} offset:{TAB}")
    I(f"v_mov_b64 {rr(u(8),2)}, 0")
    I(f"ds_write_b64 v{u(2)}, {rr(u(8),2)} offset:{HIST}")
    I(f"v_add_u32 v{u(6)}, {PRG}, v{u(4)}")
    I(f"ds_write_b32 v{u(6)}, v{u(8)}")
    go, lo, lo2, ha = vR, vR + 1, vR + 2, vR + 3
    wl, wal = vR + 4, vR + 5
    I(f"v_lshrrev_b32 v{ha}, 3, v{tid}")
    I(f"v_mad_u32_u24 v{go}, v{ha}, s{cR}, v{vCP}")
    I(f"v_mul_u32_u24 v{wl}, {LROW}, v{ha}")
    I(f"v_add_u32 v{lo}, v{wl}, v{vCP}")
    I(f"v_add_u32 v{lo}, {CIMG}, v{lo}")
    assert LROW == WR
    I(f"v_bfe_u32 v{u(6)}, v{tid}, 5, 1")
    I(f"v_bfe_u32 v{u(8)}, v{tid}, 6, 1")
    I(f"v_sub_u32 v{u(6)}, v{u(6)}, v{u(8)}")
    I(f"v_mul_i32_i24 v{u(6)}, {4*WR}, v{u(6)}")
    I(f"v_add_u32 v{wl}, v{wl}, v{u(6)}")
    I(f"v_lshl_add_u32 v{wl}, v{u(7)}, 2, v{wl}")
    I(f"v_add_u32 v{wl}, {WBI}, v{wl}")
    I(f"v_lshlrev_b32 v{l16}, 4, v{lane}")
    I(f"v_and_b32 v{vCH}, 1, v{lane}")
    I(f"v_lshlrev_b32 v{vCH}, 4, v{vCH}")
    I(f"s_bitcmp1_b32 s{sW}, 0")
    I(f"s_cselect_b32 s{sA}, 1, -1")
    I(f"s_lshl_b32 s{sA}, s{sA}, 24")
    I(f"s_or_b32 s{sA}, s{sA}, 0xdddd")
    I(f"v_mov_b32 v{vIDX}, s{sA}")
    I(f"v_and_b32 v{vcEO}, 16, v{lane}")
    I(f"v_and_b32 v{u(6)}, 15, v{lane}")
    I(f"v_lshl_add_u32 v{u(6)}, v{u(6)}, 5, s{sES}")
    I("s_mov_b32 exec_hi, 0")
    I(f"v_add_u32 v{vcEO}, v{vcEO}, v{u(6)}")
    I("s_mov_b32 exec_hi, -1")
    I(f"v_and_b32 v{u(6)}, 3, v{lane}")
    I(f"v_lshlrev_b32 v{vcS}, 3, v{u(6)}")
    I(f"v_bfe_u32 v{u(8)}, v{lane}, 2, 2")
    I(f"v_and_b32 v{u(9)}, 48, v{lane}")
    I(f"v_lshl_add_u32 v{u(10)}, v{u(8)}, 7, v{u(9)}")
    I(f"v_mul_u32_u24 v{vAX}, {XI}, v{u(6)}")
    I(f"v_add3_u32 v{vAX}, v{vAX}, v{u(10)}, s{sSTG}")
    I(f"v_bfe_u32 v{u(9)}, v{lane}, 2, 3")
    I(f"v_lshrrev_b32 v{u(8)}, 5, v{lane}")
    I(f"v_lshl_add_u32 v{u(9)}, v{u(8)}, 4, v{u(9)}")
    I(f"v_mul_u32_u24 v{wal}, {WR}, v{u(9)}")
    I(f"v_add_u32 v{wal}, v{wal}, v{vcS}")
    listaddr(u(6))
    mm = lambda i: sM + 8 + 2*i
    def rank_a(rs):
        for i in rs: I(f"v_mul_u32_u24 v{vBK+i}, s{cM}, v{vD+i}")
        if rs[0] // 4 < MG:
            b = rs[0]
            for i in rs: I(f"v_lshrrev_b32 v{vHA+i}, 29, v{vBK+i}")
            t0, t1 = sM + 24, sM + 26
            I(f"v_cmp_eq_u32 {sp(mm(b))}, v{vHA+b}, v{vHA+b+1}")
            I(f"v_cmp_eq_u32 {sp(mm(b+2))}, v{vHA+b+2}, v{vHA+b+3}")
            I(f"v_cmp_eq_u32 vcc, v{vHA+b}, v{vHA+b+2}")
            I(f"v_cmp_eq_u32 {sp(t0)}, v{vHA+b+1}, v{vHA+b+3}")
            I(f"v_cmp_eq_u32 {sp(t1)}, v{vHA+b}, v{vHA+b+3}")
            I(f"v_cmp_eq_u32 {sp(sA)}, v{vHA+b+1}, v{vHA+b+2}")
            for i in rs: I(f"v_lshrrev_b32 v{vBK+i}, 24, v{vBK+i}")
            I(f"s_or_b64 {sp(mm(b+1))}, {sp(mm(b))}, {sp(t0)}")
            I(f"s_or_b64 {sp(mm(b+3))}, {sp(mm(b+2))}, {sp(t0)}")
            I(f"s_or_b64 {sp(mm(b))}, {sp(mm(b))}, vcc")
            I(f"s_or_b64 {sp(mm(b+2))}, {sp(mm(b+2))}, vcc")
            I(f"s_or_b64 {sp(mm(b))}, {sp(mm(b))}, {sp(t1)}")
            I(f"s_or_b64 {sp(mm(b+1))}, {sp(mm(b+1))}, {sp(sA)}")
            I(f"s_or_b64 {sp(mm(b+2))}, {sp(mm(b+2))}, {sp(sA)}")
            I(f"s_or_b64 {sp(mm(b+3))}, {sp(mm(b+3))}, {sp(t1)}")
            for i in rs:
                I(f"v_cndmask_b32 v{vHA+i}, 0, v{vK1}, {sp(mm(i))}")
                I(f"v_lshl_add_u32 v{vHA+i}, v{vBK+i}, 2, v{vHA+i}")
                I(f"ds_add_rtn_u32 v{vRK1+i}, v{vHA+i}, v{one} offset:{HIST1}")
            return
        for i in rs: I(f"v_lshrrev_b32 v{vBK+i}, 24, v{vBK+i}")
        for i in rs:
            I(f"v_lshlrev_b32 v{vHA+i}, 2, v{vBK+i}")
            I(f"ds_add_rtn_u32 v{vRK1+i}, v{vHA+i}, v{one} offset:{HIST1}")
    def again(rs, wait, em):
        for i in rs:
            I(f"s_waitcnt lgkmcnt({wait})")
            I(f"s_mov_b64 exec, {sp(mm(i))}")
            I(f"v_cmpx_le_u32 vcc, {33*JE}, v{vRK1+i}")
            I(f"ds_add_rtn_u32 v{vRK1+i}, v{vHA+i}, v{one} offset:{HIST1 - 1024}")
        I(f"s_mov_b64 exec, {em}")
    def rank_b(rs):
        for i in rs:
            I(f"v_mad_i32_i24 v{vD+i}, v{vBK+i}, s{cN}, v{vD+i}")
            I(f"v_mul_u32_u24 v{u(6)}, s{cP}, v{vSR+i}")
            I(f"v_lshl_or_b32 v{vSR+i}, v{vD+i}, 18, v{vSR+i}")
            I(f"v_and_or_b32 v{u(6)}, v{u(6)}, s{cPM}, v{vIC+(i>>2)}")
            I(f"v_mad_u32_u24 v{vD+i}, v{vBK+i}, {LROW//4}, s{cN+4}")
            I(f"v_or_b32 v{vSR+i}, v{vSR+i}, v{u(6)}")
    def place(i, wait, em):
        I(f"s_waitcnt lgkmcnt({wait})")
        I(f"v_bfe_u32 v{u(6)}, v{vRK1+i}, 3, 5")
        I(f"v_add_lshl_u32 v{vD+i}, v{u(6)}, v{vD+i}, 2")
        I(f"v_and_b32 v{u(6)}, 3, v{u(6)}")
        I(f"v_mad_i32_i24 v{u(6)}, v{u(6)}, -3, v{vD+i}")
        I(f"v_cmpx_gt_u32 vcc, {33*CAP}, v{vRK1+i}")
        I(f"ds_write_b32 v{vD+i}, v{vSR+i}")
        I(f"ds_write_b8 v{u(6)}, v{vID+(i&3)} offset:12")
        I(f"s_mov_b64 exec, {em}")
    I(f"s_movk_i32 s{cN+4}, {CIMG//4}")
    for d in range(2): I(f"v_mov_b64 {rr(vRK1+4+2*d,2)}, 0")
    I("s_waitcnt lgkmcnt(0)")
    I("s_barrier")
    vTG = vS + 2
    I(f"s_add_u32 s{sK}, s{sK}, {KINC:#x}")
    I(f"v_lshlrev_b32 v{vTG}, v{vcS}, s{sK}")
    I(f"v_and_b32 v{u(6)}, 4, v{lane}")
    I(f"v_mul_u32_u24 v{u(6)}, {37 << 15}, v{u(6)}")
    I(f"v_lshl_add_u32 v{vTG}, v{u(6)}, 8, v{vTG}")
    I(f"v_and_b32 v{vTG}, 0xfe000000, v{vTG}")
    vTH = vS + 3
    I(f"v_and_b32 v{vTH}, 7, v{lane}")
    I(f"v_mul_u32_u24 v{vTH}, 33, v{vTH}")
    I(f"v_add_u32 v{vTH}, {33*CAP}, v{vTH}")
    I(f"v_lshlrev_b32 v{lo2}, 2, v{ha}")
    I(f"s_cmp_eq_u64 {sp(m2)}, 0" if FH else f"s_cmp_ge_u32 s{sWP}, 5")
    I("s_cbranch_scc1 L_R4")
    I("s_waitcnt vmcnt(3)")
    stamp(1)
    rank_a(range(4))
    I("s_waitcnt vmcnt(1)")
    I(f"s_mov_b64 exec, {sp(m2)}")
    rank_a(range(4, 8))
    if MG == 0:
        I("s_mov_b64 exec, -1")
        rank_b(range(4))
        for i in range(4): place(i, 7 + i, "-1" if i < 3 else sp(m2))
        I("s_waitcnt vmcnt(0)")
        rank_b(range(4, 8))
        for i in range(4, 8): place(i, 7 + i, sp(m2) if i < 7 else "-1")
    elif MG == 1:
        again(range(4), 7, sp(m2))
        I("s_waitcnt vmcnt(0)")
        rank_b(range(4, 8))
        for i in range(4, 8): place(i, 3 + i, sp(m2) if i < 7 else "-1")
        rank_b(range(4))
        for i in range(4): place(i, 11 + i, "-1")
    else:
        again(range(8), 7, "-1")
        rank_b(range(4))
        for i in range(4): place(i, 7 + i, "-1" if i < 3 else sp(m2))
        I("s_waitcnt vmcnt(0)")
        rank_b(range(4, 8))
        for i in range(4, 8): place(i, 7 + i, sp(m2) if i < 7 else "-1")
    I("s_branch L_B1")
    L("L_R4")
    if OY:
        I(f"s_cmp_ge_u32 s{sWP}, {OW0}")
        I("s_cbranch_scc1 L_R4A")
        I("s_waitcnt vmcnt(0)")
        L("L_R4A")
    I(f"s_waitcnt vmcnt({1 + OY})")
    if TS: STN.pop()
    stamp(1)
    rank_a(range(4))
    I(f"s_waitcnt vmcnt({OY})")
    if MG:
        rank_b(range(2))
        again(range(4), 3, "-1")
        rank_b(range(2, 4))
    else: rank_b(range(4))
    for i in range(4): place(i, 3 + i, "-1")
    L("L_B1")
    w_loads()
    I(f"s_mov_b32 s{cM}, 0x1000000")
    I("s_waitcnt lgkmcnt(0)")
    I("s_barrier")
    stamp(2)
    vO, vHS = vQ, u(4)
    I(f"ds_read_b128 {rr(vHS,4)}, v{l16} offset:{HIST1}")
    vHD = vR + 8
    for i in range(4):
        I(f"ds_read_b32 v{vHD+i}, v{lo2} offset:{HIST1 + 256*i}")
        I(f"ds_read_b128 {rr(vO+4*i,4)}, v{lo} offset:{64*LROW*i}")
    for i in range(1, 4): I(f"s_mov_b32 s{sM+15+i}, {64*RS*i}")
    I("s_waitcnt lgkmcnt(8)")
    I(f"v_max3_u32 v{u(0)}, v{vHS}, v{vHS+1}, v{vHS+2}")
    I(f"v_max_u32 v{u(0)}, v{u(0)}, v{vHS+3}")
    I(f"v_cmp_lt_u32 vcc, {33*(CAP+8)}, v{u(0)}")
    I("s_cbranch_vccnz L_POVF")
    L("L_POUT")
    for i in range(4):
        I(f"s_waitcnt lgkmcnt({7 - 2*i})")
        I(f"v_sub_u32 v{vHD+i}, v{vTH}, v{vHD+i}")
        I(f"v_and_or_b32 v{vHD+i}, v{vHD+i}, s{cM}, v{vTG}")
        I(f"s_waitcnt lgkmcnt({6 - 2*i})")
        I(f"v_or_b32 v{vO+4*i+3}, v{vO+4*i+3}, v{vHD+i}")
        I(f"buffer_store_dwordx4 {rr(vO+4*i,4)}, v{go}, {sq(sCEL)}, {f's{sM+15+i}' if i else '0'} offen{pol(STP)}")
    stamp(3)
    if "c" in opt("tsx", ""): I("s_waitcnt vmcnt(0)")
    stamp("c0")
    t = vACC
    I(f"s_mov_b32 s{sA}, {f2u(-LOG2E):#x}")
    I(f"s_mov_b32 s{sBt}, s{sA}")
    I(f"s_mov_b32 s{cM}, 0x05040100")
    I(f"s_mov_b32 s{cP}, 0x07060302")
    def wscaled(src, off):
        for d in range(4):
            I(f"v_lshlrev_b32 v{t+2*d}, 16, v{src+d}")
            I(f"v_and_b32 v{t+2*d+1}, 0xffff0000, v{src+d}")
        for d in range(4): I(f"v_pk_mul_f32 {rr(t+2*d,2)}, {rr(t+2*d,2)}, {sp(sA)}")
        for n in range(4): I(f"v_cvt_pk_bf16_f32 v{t+8+n}, v{t+n}, v{t+4+n}")
        wput(t + 8, off)
    def wplain(src, off, tt):
        for n in range(4): I(f"v_perm_b32 v{tt+n}, v{src+2+(n>>1)}, v{src+(n>>1)}, s{cP if n & 1 else cM}")
        wput(tt, off)
    def wput(r, off):
        a = wl
        if off:
            a = r + 4
            I(f"v_add_u32 v{a}, {off}, v{wl}")
        I(f"ds_write2_b32 v{a}, v{r}, v{r+1} offset0:0 offset1:8")
        I(f"ds_write2_b32 v{a}, v{r+2}, v{r+3} offset0:16 offset1:24")
    I("s_waitcnt vmcnt(4)")
    I(f"v_max3_u32 v{u(0)}, v{vRK1}, v{vRK1+1}, v{vRK1+2}")
    I(f"v_max3_u32 v{u(1)}, v{vRK1+3}, v{vRK1+4}, v{vRK1+5}")
    I(f"v_max3_u32 v{u(0)}, v{u(0)}, v{vRK1+6}, v{vRK1+7}")
    I(f"v_max_u32 v{u(0)}, v{u(0)}, v{u(1)}")
    I(f"v_cmp_le_u32 vcc, {33*CAP}, v{u(0)}")
    I("s_cbranch_vccnz L_PEXT")
    L("L_PEXTR")
    stamp("b4")
    wplain(vRW + 8, WAI - WBI, t + 16)
    wscaled(vRW, 0)
    wplain(vRW + 4, WVI - WBI, t + 24)
    wplain(vRW + 12, WUI - WBI, t + 16)
    I(f"s_cmp_ge_u32 s{sWP}, 2")
    I("s_cbranch_scc1 L_NOWC")
    wscaled(vEO, WCI - WBI)
    L("L_NOWC")
    I(f"s_mul_i32 s{sTM}, s{sB}, {RS}")
    I(f"s_add_u32 s{sTM}, s{sTM}, {WS_CELL}")
    srd(sCEL, pWS, 256*128, f"s{sTM}")
    I(f"s_add_u32 s{sTM}, s{sTM}, {256*RS}")
    srd(sD2, pWS, 256*128, f"s{sTM}")
    vC, vEB = vACC + 32, vACC + 60
    pa = vT16
    for k in (1, 2, 3): I(f"s_movk_i32 s{sCI+k-1}, {8192*k}")
    def poll_load(i):
        so = "0" if i == 0 else f"s{sCI+i-1}"
        I(f"buffer_load_dwordx4 {rr(vC+4*i,4)}, v{pa}, {sq(sCEL)}, {so} offen sc1")
    I("s_waitcnt lgkmcnt(0)")
    I("s_barrier")
    stamp(4)
    if OLP == 0: own_loads()
    vWA = vACC
    I(f"v_add_u32 v{wal}, {WBI}, v{wal}")
    def trw(reg, img):
        return [f"ds_read_b64_tr_b16 {rr(reg+8*n+4*s+2*uu,2)}, v{wal} offset:{img + (32*s + 8*uu)*WR + 32*n}"
                for n in range(4) for s in range(2) for uu in range(2)]
    tw = trw(vWB, 0) + trw(vWV, WVI - WBI)
    for x_ in tw[:14]: I(x_)
    prefill(vCA)
    for x_ in tw[14:24]: I(x_)
    nxt = 24
    I(f"v_mov_b32 v{u(4)}, v{wal}")
    I("s_mov_b32 exec_lo, 0")
    I(f"v_subrev_u32 v{u(4)}, {16*WR}, v{wal}")
    I("s_mov_b32 exec_lo, -1")
    tw += [f"ds_read_b64_tr_b16 {rr(vCA+16+4*n+2*uu,2)}, v{u(4)} offset:{WCI - WBI + 8*uu*WR + 32*n}" for n in range(4) for uu in range(2)]
    vEM, vET = vEO, vACC + 56
    ownn, owna, mapa = vEO + 1, vEO + 2, vEO + 3
    I(f"v_mul_u32_u24 v{vEB}, {CH}, v{ha}")
    for i in range(1, 4): I(f"v_add_u32 v{vEB+i}, {64*i*CH}, v{vEB}")
    I(f"s_mov_b32 s{sEM}, {EMASK:#x}")
    I(f"s_mov_b32 s{sEM+1}, {EMASK:#x}")
    vFF = vEO + 4
    I(f"v_mov_b32 v{vFF}, 0xfffff")
    I(f"v_cndmask_b32 v{vEM}, 0, v{vFF}, {sp(sEM)}")
    I(f"v_add_lshl_u32 v{u(3)}, v{pa}, v{vCP}, 16")
    for i in range(4):
        I(f"v_add_u32 v{vET+i}, {(EARLY + 8192*i) << 16:#x}, v{u(3)}")
        I(f"v_cndmask_b32 v{vET+i}, 0, v{vET+i}, {sp(sEM)}")
    I(f"v_mov_b32 v{one}, 4")
    I(f"v_and_b32 v{ownn}, 31, v{lane}")
    I(f"v_add_lshl_u32 v{mapa}, v{ownn}, s{sWIN}, 2")
    I(f"v_lshrrev_b32 v{u(3)}, 5, v{lane}")
    I(f"v_lshl_add_u32 v{owna}, v{u(3)}, 11, v{mapa}")
    I(f"v_add_u32 v{mapa}, {MAP}, v{mapa}")
    I("s_waitcnt lgkmcnt(4)")
    for x_ in tw[nxt:]: I(x_)
    I(f"v_add_u32 v{wal}, {WAI - WBI}, v{wal}")
    I(f"s_movk_i32 s{sFM}, 0xffc")
    I(f"s_movk_i32 s{sSKIP}, {CAP+8}")
    I(f"s_mov_b32 s{sXT}, 0")
    I(f"s_mov_b32 s{sSP}, 0")
    I(f"s_mov_b32 s{sT}, 0x1ffffff")
    I(f"s_mov_b32 s{sN}, 0xffff")
    lo0, hi0, lo1, hi1 = sWS0, sWS1, sB0E, sSH
    I(f"s_mul_i32 s10, s{sW}, 49")
    I(f"s_sub_i32 s{lo0}, s10, 6")
    I(f"s_ashr_i32 s{lo0}, s{lo0}, 1")
    I(f"s_add_i32 s{hi0}, s10, 7")
    I(f"s_ashr_i32 s{hi0}, s{hi0}, 1")
    I(f"s_add_i32 s{lo1}, s10, 43")
    I(f"s_ashr_i32 s{lo1}, s{lo1}, 1")
    I(f"s_add_i32 s{hi1}, s{lo0}, 31")
    I(f"s_cmp_eq_u32 s{sW}, 7")
    I(f"s_cselect_b32 s{lo1}, {BN}, s{lo1}")
    I(f"s_cselect_b32 s{hi1}, {BN}, s{hi1}")
    stamp("b0")
    if opt("pw", 1): I(f"s_waitcnt vmcnt({4 if OLP == 0 else 0})")
    stamp("b1")
    for i in range(4): poll_load(i)
    if OLP == 1: own_loads()
    PY = 4 if OLP == 1 else 0
    stamp(5)
    vA, vRK, vR1 = vACC, vACC + 16, vQ
    mk = lambda i, j: sM + 2*(4*i + j)
    def rec_ops(d, x, byte, eb, a, r1, keep=None):
        e_ = r1 if keep is None else keep
        return [f"v_add_u32_sdwa v{e_}, v{x}, v{eb} {SDW} src0_sel:BYTE_{byte} src1_sel:DWORD",
                f"v_lshrrev_b32 v{u(1)}, 28, v{d}",
                f"v_lshl_add_u32 v{e_}, v{u(1)}, 8, v{e_}",
                f"v_and_b32 v{u(1)}, 60, v{a}",
                f"v_lshl_add_u32 v{r1}, v{u(1)}, 19, v{e_}"]
    for i in range(4):
        c_ = vC + 4*i
        L(f"L_PW{i}")
        I(f"s_waitcnt vmcnt({3 - i + PY})")
        I(f"v_xor_b32 v{u(0)}, v{c_+3}, v{vTG}")
        for j in range(3): I(f"v_and_b32_sdwa v{vA+4*i+j}, v{c_+j}, s{sFM} {SDW} src0_sel:WORD_1 src1_sel:DWORD")
        I(f"v_cmp_lt_u32 vcc, s{sT}, v{u(0)}")
        for j in range(3): I(f"v_cmp_ne_u32 {sp(mk(i,j))}, 0, v{c_+j}")
        I(f"s_cbranch_vccnz L_RT{i}")
        if i == 3: stamp(6)
        for j in range(3):
            I(f"s_mov_b64 exec, {sp(mk(i,j))}")
            I(f"ds_add_rtn_u32 v{vRK+4*i+j}, v{vA+4*i+j}, v{one} offset:{HIST}")
        I("s_mov_b64 exec, -1")
        if i == 3:
            I(f"v_or3_b32 v{u(2)}, v{vC+3}, v{vC+7}, v{vC+11}")
            I(f"v_or_b32 v{u(2)}, v{u(2)}, v{vC+15}")
            I(f"v_and_b32 v{u(2)}, 0x1000000, v{u(2)}")
            I(f"v_cmp_ne_u32 vcc, 0, v{u(2)}")
            I("s_cbranch_vccnz L_XT1")
            L("L_XT1R")
        for j in range(3):
            put(rec_ops(c_+j, c_+3, j, vEB+i, vA+4*i+j, vR1+4*i+j, vR1+4*i+3 if j == 0 and JE else None))
        if JE:
            e_ = vR1 + 4*i + 3
            I(f"v_cndmask_b32 v{u(0)}, v{vFF}, v{e_}, {sp(mk(i,0))}")
            I("s_nop 1")
            I(f"v_mov_b32_dpp v{u(1)}, v{u(0)} quad_perm:[2,2,3,3] row_mask:0xf bank_mask:0xf")
            I(f"v_mov_b32_dpp v{e_}, v{u(0)} quad_perm:[0,0,1,1] row_mask:0xf bank_mask:0xf")
            I("s_nop 0")
            I(f"v_mov_b32_dpp v{e_}, v{u(1)} row_shr:4 row_mask:0xf bank_mask:0xa")
    fill = []
    for i in range(4):
        fill += [f"v_and_or_b32 v{vC+4*i}, v{vC+4*i}, s{sN}, v{vET+i}", f"v_or_b32 v{vR1+4*i}, v{vR1+4*i}, v{vEM}"]
        fill += [f"v_and_b32 v{vC+4*i+j}, s{sN}, v{vC+4*i+j}" for j in (1, 2)]
    I(f"v_mov_b32 v{u(9)}, {FLAG}")
    if OLP == 2: own_loads()
    I("s_waitcnt lgkmcnt(0)")
    stamp("d0")
    I("s_barrier")
    stamp(7)
    def early(i):
        if not JE: return
        I(f"s_lshl_b32 m0, s{sWP}, 10")
        I(f"v_mov_b32 v{vEI}, v{vR1+4*i+3}")
        I(f"s_add_u32 m0, m0, {EARLY + 8192*i}")
        if JE < 4:
            I(f"s_mov_b32 exec_lo, {((1 << 2*JE) - 1) * 0x01010101:#x}")
            I("s_mov_b32 exec_hi, exec_lo")
        else: I("s_nop 0")
        I(f"buffer_load_dwordx4 {rr(vEI,2)}, {sq(sEP)}, 0 idxen offen{pol(opt('eep', ''))} lds")
        if JE < 4: I("s_mov_b64 exec, -1")
    EPOS = opt("epos", "0123")
    def epoint(k):
        for i in range(4):
            if int(EPOS[i]) == k: early(i)
    c, p, tot, sc = u(0), u(4), u(8), u(9)
    hh = vX
    own, to2, ex, z_, eh, el = u(10), u(11), u(12), u(13), u(14), u(15)
    SD = f"{SDW} src0_sel:WORD_0 src1_sel:WORD_0"
    HL = f"{SDW} src0_sel:WORD_0 src1_sel:WORD_1"
    I(f"ds_read_u16 v{own}, v{owna} offset:{HIST}")
    I(f"ds_read_u16 v{to2}, v{owna} offset:{HIST + 1024}")
    for ph in range(4):
        I(f"ds_read_b128 {rr(hh+4*ph,4)}, v{l16} offset:{HIST + 1024*ph}")
    I(f"ds_read_b32 v{vQD}, v{sc} offset:8")
    epoint(0)
    I("s_cmp_lg_u32 s2, 0")
    I("s_cbranch_scc1 L_NOK")
    I(f"v_mov_b32 v{vQD+1}, s{sK}")
    I(f"v_mov_b32 v{vQD+2}, 0")
    I(f"buffer_store_dword v{vQD+1}, v{vQD+2}, {sq(sWS)}, 0 offen sc1")
    L("L_NOK")
    I("s_waitcnt lgkmcnt(5)")
    I(f"v_lshl_or_b32 v{own}, v{to2}, 16, v{own}")
    I(f"v_mov_b32 v{to2}, v{own}")
    I("s_waitcnt lgkmcnt(0)")
    stamp("d1")
    f2 = []
    for i in range(4):
        f2 += [f"v_add_u32_sdwa v{c+i}, v{hh+i}, v{hh+4+i} {SD}", f"v_add_u32_sdwa v{p+i}, v{hh+8+i}, v{hh+12+i} {SD}"]
    f2 += [f"v_add_u32 v{c+i}, v{c+i}, v{p+i}" for i in range(4)]
    wave_scan(to2, f2, half=True)
    put(f2)
    I(f"v_add_u32 v{p+1}, v{c}, v{c+1}")
    I(f"v_add_u32 v{p+2}, v{p+1}, v{c+2}")
    I(f"v_add_u32 v{p+3}, v{p+2}, v{c+3}")
    I(f"v_mov_b32 v{tot}, v{p+3}")
    f2 = [f"v_sub_u32 v{ex}, v{to2}, v{own}", f"v_add_u32_sdwa v{eh}, v{to2}, v{to2} {HL}",
          f"v_add_u32_sdwa v{z_}, v{ex}, v{ex} {HL}", f"v_add_u32_sdwa v{el}, v{own}, v{own} {HL}",
          f"v_add_u32 v{c+1}, v{c}, v{p+1}", f"v_add_u32 v{c+2}, v{p+1}, v{p+2}",
          f"v_permlane32_swap_b32 v{z_}, v{eh}", f"v_add_u32 v{c+3}, v{p+2}, v{p+3}",
          f"v_add_u32 v{z_}, v{z_}, v{eh}",
          f"v_cndmask_b32 v{el}, 0, v{el}, {sp(sJ3)}",
          f"v_add_u32 v{eh}, v{z_}, v{el}",
          f"v_readfirstlane_b32 s{sMORE}, v{vQD}"]
    I(f"s_mov_b32 s{sJ3}, -1")
    I(f"s_mov_b32 s{sJ3+1}, 0")
    wave_scan(tot, f2)
    assert not f2
    stamp("d2")
    epoint(1)
    I(f"v_sub_u32 v{p}, v{tot}, v{p+3}")
    I(f"v_readlane_b32 s10, v{tot}, 63")
    I(f"v_sub_u32_sdwa v{el}, v{eh}, v{own} {SDW} src0_sel:DWORD src1_sel:WORD_1")
    for i in range(4):
        I(f"v_lshl_add_u32 v{c+i}, v{p}, 1, v{c+i}")
    ASYM = opt("asym", 12)
    I("s_lshr_b32 s11, s10, 5")
    I(f"s_add_u32 s11, s11, {ASYM}")
    I("s_and_b32 s11, s11, -32")
    I(f"s_sub_i32 s11, s11, {ASYM}")
    I("s_lshl_b32 s11, s11, 3")
    I("s_lshr_b32 s10, s10, 1")
    I(f"s_lshr_b32 s{sF0}, s{sW}, 1")
    I(f"s_mul_i32 s{sF0}, s{sF0}, s10")
    I(f"s_add_i32 s11, s11, s{sF0}")
    I(f"s_add_i32 s10, s10, s{sF0}")
    I(f"s_bitcmp1_b32 s{sW}, 0")
    I(f"s_cselect_b32 s{sEND}, s11, s{sF0}")
    I("s_cselect_b32 s10, s10, s11")
    I(f"s_mov_b32 s{sF0}, 0")
    I(f"s_mov_b32 s{sF1}, 0")
    for i in range(4):
        I(f"v_cmp_gt_i32 vcc, s{sEND}, v{c+i}")
        I(f"v_cmp_gt_i32 {sp(sTM)}, s10, v{c+i}")
        I("s_bcnt1_i32_b64 s11, vcc")
        I(f"s_add_u32 s{sF0}, s{sF0}, s11")
        I(f"s_bcnt1_i32_b64 s11, {sp(sTM)}")
        I(f"s_add_u32 s{sF1}, s{sF1}, s11")
    I(f"s_max_i32 s{sF0}, s{sF0}, s{lo0}")
    I(f"s_min_i32 s{sF0}, s{sF0}, s{hi0}")
    I(f"s_max_i32 s{sF1}, s{sF1}, s{lo1}")
    I(f"s_min_i32 s{sF1}, s{sF1}, s{hi1}")
    stamp("d3")
    epoint(2)
    f0, f1 = sWS0, sWS1
    A01, A23, E01, E23, Z1 = sCI, sCUR, sR0, sCNT, sST
    I(f"s_sub_u32 s{f0}, s{sF0}, s{sWIN}")
    I(f"s_sub_u32 s{f1}, s{sF1}, s{sWIN}")
    I(f"v_readlane_b32 s{sT}, v{z_}, s{f0}")
    I(f"v_readlane_b32 s{Z1}, v{z_}, s{f1}")
    I(f"s_add_u32 s10, s{f0}, 32")
    I(f"s_add_u32 s11, s{f1}, 32")
    I(f"v_readlane_b32 s{A01}, v{ex}, s{f0}")
    I(f"v_readlane_b32 s{E01}, v{ex}, s{f1}")
    I(f"v_readlane_b32 s{A23}, v{ex}, s10")
    I(f"v_readlane_b32 s{E23}, v{ex}, s11")
    I(f"s_sub_u32 s{sEND}, s{Z1}, s{sT}")
    I(f"s_add_u32 s10, s{sEND}, 255")
    I("s_lshr_b32 s10, s10, 8")
    I("s_lshl_b32 s10, s10, 7")
    I(f"s_sub_u32 s10, s10, s{sMORE}")
    I("s_max_i32 s10, s10, 0")
    I(f"s_add_u32 s{sT}, s{sT}, s10")
    I(f"s_add_u32 s10, s{f0}, 16")
    I(f"s_min_u32 s10, s10, s{f1}")
    I(f"s_sub_i32 s11, s{f1}, 16")
    inl, inh, mo = sTM, sTM + 2, sMSK
    I(f"v_cmp_ge_u32 {sp(inl)}, s{sT}, v{el}")
    I(f"v_cmp_ge_u32 {sp(inh)}, s{sT}, v{eh}")
    I(f"v_cmp_gt_i32 vcc, s10, v{ownn}")
    I(f"v_cmp_gt_i32 {sp(sA)}, s11, v{ownn}")
    I(f"v_cmp_le_u32 {sp(mo)}, s{f0}, v{ownn}")
    I(f"v_cmp_gt_u32 {sp(sJ3)}, s{f1}, v{ownn}")
    I(f"s_and_b64 {sp(inl)}, {sp(inl)}, vcc")
    I(f"s_and_b64 {sp(inh)}, {sp(inh)}, vcc")
    I(f"s_or_b64 {sp(inl)}, {sp(inl)}, {sp(sA)}")
    I(f"s_or_b64 {sp(inh)}, {sp(inh)}, {sp(sA)}")
    I(f"s_bcnt1_i32_b32 s{sB0E}, s{inl}")
    I(f"s_bcnt1_i32_b32 s10, s{inh}")
    I(f"s_bcnt1_i32_b32 s11, s{inl+1}")
    I(f"s_bcnt1_i32_b32 s{sSH}, s{inh+1}")
    I(f"v_readlane_b32 s{f0}, v{ex}, s{sB0E}")
    I(f"v_readlane_b32 s10, v{ex}, s10")
    I("s_add_u32 s11, s11, 32")
    I(f"s_add_u32 s{sT}, s{sSH}, 32")
    I(f"v_readlane_b32 s{f1}, v{ex}, s11")
    I(f"v_readlane_b32 s11, v{ex}, s{sT}")
    I(f"v_mov_b32 v{c}, s{sN}")
    I(f"v_cndmask_b32 v{c+1}, 0, v{c}, {sp(inl)}")
    I(f"v_cndmask_b32 v{c}, 0, v{c}, {sp(inh)}")
    I(f"s_and_b64 {sp(mo)}, {sp(mo)}, {sp(sJ3)}")
    Q01, Q23 = f0, f1
    I(f"s_pack_lh_b32_b16 s{Q01}, s{f0}, s10")
    I(f"s_pack_lh_b32_b16 s{Q23}, s{f1}, s11")
    I(f"v_lshl_or_b32 v{c}, v{c}, 16, v{c+1}")
    I(f"s_sub_u32 s{sT}, s{sL}, {R0 - BIAS}")
    I(f"s_pack_ll_b32_b16 s{sT}, s{sT}, s{sT}")
    def bases(lo01, lo23, hi01, hi23, d, keep=None):
        I(f"s_sub_u32 s10, s{hi01}, s{lo01}")
        I(f"s_sub_u32 s11, s{hi23}, s{lo23}")
        I(f"s_mul_i32 s10, s10, 0x10001")
        I(f"s_lshl_b32 vcc_lo, s10, 16")
        I(f"s_pack_hh_b32_b16 s10, s10, s10")
        I(f"s_lshl_b32 vcc_hi, s11, 16")
        I(f"s_add_u32 vcc_hi, vcc_hi, s10")
        if keep is not None:
            I(f"s_add_u32 s{keep}, vcc_hi, s11")
            I(f"s_lshr_b32 s{keep}, s{keep}, 16")
            I(f"s_sub_u32 s{sEND}, s{sEND}, s{keep}")
            I(f"s_cmp_gt_u32 s{sEND}, s{keep}")
            I(f"s_cselect_b32 s{SWP}, {LWB * 0x10001:#x}, 0")
            I(f"s_add_u32 s{sT}, s{sT}, s{SWP}")
        I(f"s_sub_u32 s10, s{sT}, s{lo01}")
        I(f"s_sub_u32 s11, s{sT}, s{lo23}")
        I("s_add_u32 s10, s10, vcc_lo")
        I("s_add_u32 s11, s11, vcc_hi")
        I(f"v_mov_b32 v{d}, s10")
        I(f"v_mov_b32 v{d+1}, s11")
    LEN0, SWP = sJ3, sJ3 + 1
    bases(A01, A23, Q01, Q23, p, LEN0)
    I(f"s_add_u32 s{sT}, s{sT}, {LWB * 0x10001:#x}")
    I(f"s_sub_u32 s{sT}, s{sT}, s{SWP}")
    I(f"s_sub_u32 s{sT}, s{sT}, s{SWP}")
    bases(Q01, Q23, E01, E23, p + 2)
    I(f"v_bfi_b32 v{p}, v{c}, v{p}, v{p+2}")
    I(f"v_bfi_b32 v{p+1}, v{c}, v{p+1}, v{p+3}")
    I(f"s_mov_b32 exec_hi, 0")
    I(f"v_mov_b32 v{p+1}, v{p}")
    I(f"s_mov_b64 exec, {sp(mo)}")
    I(f"v_add_u32 v{ex}, v{ex}, v{p+1}")
    assert LWB & 0x80
    I(f"s_bfe_u32 s10, s{SWP}, 0x10007")
    I(f"s_lshl1_add_u32 s10, s{sW}, s10")
    I("s_lshl_b32 s10, s10, 2")
    I(f"v_cndmask_b32 v{c}, 4, 0, {sp(inl)}")
    I(f"ds_write_b16 v{owna}, v{ex} offset:{HIST + 2}")
    I(f"ds_write_b16_d16_hi v{owna}, v{ex} offset:{HIST + 1024 + 2}")
    I("s_mov_b32 exec_hi, 0")
    I(f"v_xor_b32 v{c}, s10, v{c}")
    I(f"ds_write_b32 v{mapa}, v{c}")
    I("s_mov_b64 exec, -1")
    stamp("d5")
    I(f"s_min_u32 s10, s{sEND}, s{LEN0}")
    I(f"s_max_u32 s{LEN0}, s{sEND}, s{LEN0}")
    I(f"s_mov_b32 s{sEND}, s10")
    I(f"s_add_u32 s10, s{LEN0}, s{sMORE}")
    I(f"s_mul_i32 s11, s{Z1}, {LWB * 65536 // BIAS}")
    I("s_lshr_b32 s11, s11, 16")
    I("s_max_u32 s10, s10, s11")
    I(f"s_cmp_lt_u32 s10, {LWB}")
    I("s_cbranch_scc1 L_LFIT")
    I(f"ds_write_b32 v{sc}, v{one}")
    L("L_LFIT")
    I(f"s_cmp_lg_u32 s{sMORE}, 0")
    I("s_cbranch_scc1 L_XCN")
    L("L_XCNR")
    epoint(3)
    put(fill)
    I("s_waitcnt lgkmcnt(0)")
    stamp(8)
    I("s_barrier")
    stamp(9)
    I(f"ds_read_b64 {rr(u(14),2)}, v{sc}")
    for i in range(4):
        for j in range(3):
            I(f"ds_read_u16 v{vA+4*i+j}, v{vA+4*i+j} offset:{HIST + 2}")
    epoint(4)
    def ntiles(l0, l1):
        I(f"s_add_u32 s10, s{l0}, 127")
        I("s_lshr_b32 s10, s10, 7")
        I("s_lshl1_add_u32 s10, s10, -1")
        I(f"s_add_u32 s11, s{l1}, 127")
        I("s_lshr_b32 s11, s11, 6")
        I("s_and_b32 s11, s11, -2")
        I(f"s_max_i32 s{sN}, s10, s11")
        I(f"s_cselect_b32 s10, s{l0}, s{l1}")
        I("s_sub_u32 s10, s10, 1")
        I(f"s_andn2_b32 s{sHF}, 64, s10")
    I(f"s_add_u32 s{sB0E}, s{sB0E}, s{sWIN}")
    I(f"s_add_u32 s11, s{sSH}, s{sWIN}")
    I(f"s_and_b32 s10, s11, 15")
    I(f"s_cmp_lt_u32 s11, s{sB0E}")
    I(f"s_cselect_b32 s{sSH}, s10, 16")
    I(f"s_cmp_lg_u32 s{SWP}, 0")
    I(f"s_cselect_b32 s{sWS1}, s{sF0}, s11")
    I(f"s_cselect_b32 s{sWIN}, s{sF0}, s{sB0E}")
    I(f"s_cselect_b32 s{sF0}, s11, s{sF0}")
    I(f"s_cselect_b32 s{sB0E}, s{sF1}, s{sB0E}")
    I(f"s_cselect_b32 s{sF1}, s11, s{sF1}")
    I(f"s_min_u32 s{sWS0}, s{sF0}, 192")
    I(f"s_min_u32 s{sWS1}, s{sWS1}, 192")
    I(f"s_mov_b32 s{sST}, s{sMORE}")
    I("s_waitcnt lgkmcnt(12)")
    I(f"v_cmp_ne_u32 vcc, 0, v{u(14)}")
    I(f"v_readfirstlane_b32 s{sMORE}, v{u(15)}")
    I("s_cbranch_vccnz L_OVF")
    for i in range(4):
        for j in range(3):
            s_ = 4*i + j
            I("s_waitcnt lgkmcnt(11)")
            I(f"v_add_u32 v{vA+s_}, v{vA+s_}, v{vRK+s_}")
            I(f"s_mov_b64 exec, {sp(mk(i,j))}")
            I(f"ds_write2st64_b32 v{vA+s_}, v{vC+s_}, v{vR1+s_} {W2}")
            I("s_mov_b64 exec, -1")
    ntiles(LEN0, sEND)
    stamp("d6")
    L("L_CA")
    I(f"s_cmp_lg_u32 s{sXT}, 0")
    I("s_cbranch_scc1 L_XT2")
    L("L_XT2R")
    for x_ in trw(vWA, 0): I(x_)
    stamp("d7")
    I("s_waitcnt vmcnt(0) lgkmcnt(0)")
    stamp(10)
    I("s_barrier")
    I(f"s_cmp_lg_u32 s{sST}, 0")
    I("s_cbranch_scc1 L_XT3")
    L("L_XT3R")
    I(f"s_mov_b32 s10, {f2u(1e-6):#x}")
    I(f"ds_read_b128 {rr(vQD,4)}, v{vARX}")
    I(f"ds_read_b32 v{vEI}, v{vARE}")
    stamp(11)
    I(f"v_lshrrev_b32 v{u(0)}, 2, v{lane}")
    I(f"v_and_b32 v{u(0)}, 12, v{u(0)}")
    I(f"v_subrev_u32 v{u(0)}, s{sSH}, v{u(0)}")
    I("s_waitcnt lgkmcnt(0)")
    STAG = opt("stag", 0)
    if STAG:
        I(f"s_cmp_ge_u32 s{sWP}, 4")
        I("s_cbranch_scc1 L_LATE0")
    put(dma_tile())
    L("L_LATE0")
    aw, al, ab = vEO, vEO + 1, vEO + 2
    I(f"s_lshl_b32 s{sTM}, s{sWS0}, 5")
    I(f"s_lshl_b32 s{sTM+1}, s{sWS1}, 5")
    I(f"s_mov_b32 vcc_lo, 0xff00ff00")
    I(f"s_mov_b32 vcc_hi, 0xff00ff00")
    I(f"v_mov_b32 v{aw}, s{sTM+1}")
    I(f"v_mov_b32 v{al}, s{sTM}")
    I(f"v_cndmask_b32 v{aw}, v{aw}, v{al}, vcc")
    I(f"v_and_b32 v{al}, 4, v{lane}")
    I(f"v_lshlrev_b32 v{al}, 6, v{al}")
    I(f"v_lshl_add_u32 v{al}, v{vcS}, 2, v{al}")
    I(f"v_sub_u32 v{al}, v{al}, v{aw}")
    I(f"v_and_b32 v{ab}, 48, v{lane}")
    I(f"s_movk_i32 s{sTM}, {(PL-32)//8}")
    I(f"v_mad_u32_u24 v{ab}, v{vcS}, s{sTM}, v{ab}")
    I(f"s_mov_b32 s{sTM}, {OWN}")
    I(f"v_add3_u32 v{ab}, v{ab}, v{aw}, s{sTM}")
    for t_ in range(2):
        if t_: I(f"v_add_u32 v{al}, 0x80, v{al}")
        I(f"v_and_b32 v{aw}, 0x1ff, v{al}")
        I(f"v_add_u32 v{aw}, v{aw}, v{ab}")
        for s in range(2): I(f"ds_read_b128 {rr(vX+8*t_+4*s,4)}, v{aw} offset:{64*s}")
    I(f"s_mov_b32 s{sTM}, {f2u(-LOG2E):#x}")
    I(f"s_mov_b32 s{sTM+1}, s{sTM}")
    for t_ in range(2):
        for s in range(2):
            I(f"s_waitcnt lgkmcnt({3 - 2*t_ - s})")
            for n in range(4):
                D = vQ + 8*n + 4*t_
                I(m16(D, vX+8*t_+4*s, vWA+8*n+4*s, D if s else None))
    I("s_mov_b32 s11, s10")
    I(f"v_mov_b32 v{u(1)}, s10")
    for i in range(8): I(f"v_mov_b64 {rr(DEN(0,0)+2*i,2)}, {sp(10)}")
    for i in range(4):
        I(f"v_cmp_ne_u32 vcc, {-i}, v{u(0)}")
        I(f"v_mov_b64 {rr(NUM(0,0)+4*i,2)}, 0")
        I(f"v_mov_b64 {rr(NUM(0,0)+4*i+2,2)}, 0")
        I(f"v_cndmask_b32 v{DEN(1,0)+i}, 0, v{u(1)}, vcc")
    for i in range(8): I(f"v_mov_b64 {rr(NUM(1,0)+2*i,2)}, 0")
    for n in range(1, 4):
        for i in range(2): I(f"v_mov_b64 {rr(DEN(1,n)+2*i,2)}, {rr(DEN(1,0)+2*i,2)}")
    for i in range(16): I(f"v_pk_mul_f32 {rr(vQ+2*i,2)}, {rr(vQ+2*i,2)}, {sp(sTM)}")
    for i in range(16): I(f"v_cvt_pk_bf16_f32 v{vCA+i}, v{vQ+2*i}, v{vQ+2*i+1}")
    for i in range(16): I(f"v_permlane32_swap_b32 v{vCA+16+i}, v{vCA+i}")
    I(f"s_mov_b32 s{sCI}, -1")
    I(f"s_mov_b64 {sp(sMSK)}, 0")
    I(f"s_mov_b32 s{sR0}, 0")
    I(f"s_mov_b32 s{sCNT}, 0")
    if STAG:
        I(f"s_cmp_lt_u32 s{sWP}, 4")
        I("s_cbranch_scc1 L_GO")
        put(dma_tile())
    L("L_GO")
    for m in range(2): I(f"ds_read_u16 v{vEA+m}, v{vARO} offset:{64*m}")
    I(f"ds_read_b128 {rr(vQD,4)}, v{vARX} offset:{LWB}")
    I(f"ds_read_b32 v{vEI}, v{vARE} offset:{LWB}")
    I(f"s_lshr_b32 s10, s{sW}, 1")
    I("s_lshl_b32 s10, s10, 8")
    I(f"s_add_u32 s10, s10, {PRG}")
    I(f"v_lshl_add_u32 v{vPA}, v{lane}, 2, s10")
    I(f"s_bitcmp1_b32 s{sW}, 0")
    I(f"s_cselect_b32 s{sSG}, -1, 1")
    I(f"s_max_i32 s10, s{sN}, 1")
    I("s_sub_u32 s10, s10, 1")
    I(f"s_mul_i32 s10, s{sSG}, s10")
    I("s_lshl_b32 s10, s10, 24")
    I(f"v_mov_b32 v{vQ}, s10")
    I(f"ds_add_u32 v{vPA}, v{vQ}")
    I(f"v_mov_b32 v{vC1}, 0")
    I("s_mov_b32 exec_hi, 0")
    I(f"v_add_u32 v{vC1}, 0x200, v{vcEO}")
    I("s_mov_b32 exec_hi, -1")
    for i in range(16): I(f"v_mov_b64 {rr(vQ+2*i,2)}, 0")
    for i in range(2): I(f"v_mov_b64 {rr(vS+2*i,2)}, 0")
    I("s_waitcnt lgkmcnt(0)")
    put(eafix())
    stamp(12)
    I("s_waitcnt vmcnt(0)")
    stamp(13)
    cstamp(56)
    for m in range(2): I(f"ds_read_b128 {rr(vEO+4*m,4)}, v{vEA+m}")
    for m, s in ORD: I(xread(m, s))
    I(f"s_cmp_lt_i32 s{sN}, 1")
    I("s_cbranch_scc1 L_DONE")
    g = g_mfmas(vP, 0, 0)
    I("s_waitcnt lgkmcnt(4)")
    for x_ in g[:4]: I(x_)
    I("s_waitcnt lgkmcnt(0)")
    for x_ in g[4:]: I(x_)
    I(f"s_mov_b32 s{sT}, 1")
    I(f"s_cmp_eq_u32 s{sN}, 1")
    I("s_cbranch_scc1 L_LT0")
    put(dma_tile())
    for cp in ((1, 0) if FAIR else (0,)):
        sw = lambda par: [f"s_cmp_ge_i32 s{sRM}, {opt('fth', 1)}", f"s_cbranch_scc{1-cp} L_PB{par}{1-cp}", f"L_PB{par}{cp}:"] if FAIR else []
        body = phase(0, 0, cp) + sw(0) + phase(0, 1, cp) + [f"s_cmp_ge_u32 s{sT}, s{sN}", "s_cbranch_scc1 L_LT1"]
        body += phase(1, 0, cp) + sw(1) + phase(1, 1, cp) + [f"s_cmp_lt_u32 s{sT}, s{sN}", f"s_cbranch_scc1 L_LOOP{cp}"]
        check_body(body)
        DBG = opt("dbg", "")
        if "nodma" in DBG: body = [b for b in body if not b.startswith("buffer_load")]
        if "dropS" in DBG: body = [b for b in body if not b.startswith("v_smfmac")]
        if "halfrcp" in DBG: body = [b for b in body if not (b.startswith("v_rcp") and int(b.split("v")[-1]) & 1)]
        if "droppk" in DBG: body = [b for b in body if not b.startswith("v_pk_mul")]
        if "halfx" in DBG: body = [b for b in body if not (b.startswith("v_mfma") and (f"v[{vX+4}:" in b or f"v[{vX+12}:" in b))]
        if "nolds" in DBG: body = [b for b in body if not (b.startswith("ds_read_b128") and f"v{vAX}" in b)]
        emit(".p2align 6")
        L(f"L_LOOP{cp}")
        put(body)
        if cp: I("s_branch L_LT0")
    if opt("cpe", 0):
        I("s_branch L_LT0")
        for cp in ((1, 0) if FAIR else (0,)):
            for par in range(2):
                L(f"L_CE{par}{cp}")
                I(f"s_getpc_b64 {sp(sA)}")
                I(f"v_and_b32 v{vEI}, 0xfc, v{vPA}")
                I(f"v_lshlrev_b32 v{vEI}, 5, v{vEI}")
                I(f"global_load_dword v{vEI}, v{vEI}, {sp(sA)}")
                I(f"s_branch L_ND{par}{cp}")
    for par in range(2):
        L(f"L_LT{par}")
        I(f"s_cmp_lg_u32 s{sHF}, 0")
        I(f"s_cbranch_scc1 L_LH{par}")
        put(last_tile(par, 0))
        I("s_branch L_DONE")
        L(f"L_LH{par}")
        put(last_tile(par, 1))
        if par == 0: I("s_branch L_DONE")
    L("L_DONE")
    I(f"v_mbcnt_lo_u32_b32 v{lane}, -1, 0")
    I(f"v_mbcnt_hi_u32_b32 v{lane}, -1, v{lane}")
    I(f"s_cmp_lg_u32 s{sMORE}, 0")
    I("s_cbranch_scc1 L_SLOW")
    L("L_EPI")
    stamp(14)
    cstamp(57)
    I(f"s_setprio {opt('epr', 0)}")
    e = lambda i: vCA + i
    xd = vWV
    I(f"v_bfe_u32 v{e(1)}, v{lane}, 2, 3")
    I(f"v_lshrrev_b32 v{e(2)}, 5, v{lane}")
    I(f"v_lshl_add_u32 v{e(1)}, v{e(2)}, 4, v{e(1)}")
    I(f"v_mul_u32_u24 v{e(1)}, {WR}, v{e(1)}")
    I(f"s_mov_b32 s10, {WUI}")
    I(f"v_add3_u32 v{e(1)}, v{e(1)}, v{vcS}, s10")
    wu = [f"ds_read_b64_tr_b16 {rr(vWB+8*n+4*s+2*uu,2)}, v{e(1)} offset:{(32*s + 8*uu)*WR + 32*n}" for s in range(2) for n in range(4) for uu in range(2)]
    I(f"v_and_b32 v{e(0)}, 48, v{lane}")
    I(f"v_and_b32 v{e(3)}, 15, v{lane}")
    I(f"v_lshlrev_b32 v{e(4)}, 3, v{e(3)}")
    I(f"v_lshlrev_b32 v{e(6)}, 3, v{e(0)}")
    I(f"s_movk_i32 s10, {(PL-32)//8}")
    I(f"v_mad_u32_u24 v{e(0)}, v{vcS}, s10, v{e(0)}")
    I("s_waitcnt lgkmcnt(0)")
    nd = lambda w, i: e(16 + 4*w + i)
    sO = [sOUT, sCEL]
    for w in range(2):
        ws = sWS0 + w
        I(f"s_lshl_b32 s{ws}, s{ws}, 5")
        I(f"s_add_u32 s10, s{ws}, {OWN}")
        I(f"v_add_u32 v{e(5)}, s10, v{e(4)}")
        for i in range(4):
            I(f"s_sub_u32 s11, {32*i}, s{ws}")
            I(f"v_add_u32 v{nd(w,i)}, s11, v{e(6)}")
            I(f"v_and_b32 v{nd(w,i)}, 0x1ff, v{nd(w,i)}")
            I(f"v_add_u32 v{e(8)}, v{nd(w,i)}, v{e(5)}")
            I(f"ds_read_b64 {rr(xd+8*w+2*i,2)}, v{e(8)} offset:{i*(PL-32)}")
        I(f"s_sub_u32 s11, 0, s{ws}")
        I(f"v_lshl_add_u32 v{e(8)}, v{e(4)}, 2, s11")
        I(f"v_and_b32 v{e(8)}, 0x1ff, v{e(8)}")
        I(f"v_add3_u32 v{e(8)}, v{e(8)}, v{e(0)}, s10")
        for s in range(2): I(f"ds_read_b128 {rr(vX+8*w+4*s,4)}, v{e(8)} offset:{64*s}")
        if w == 0:
            for x_ in wu[:8]: I(x_)
    for x_ in wu[8:]: I(x_)
    I(f"s_lshl_b32 s10, s{sSH}, 5")
    I(f"v_subrev_u32 v{e(6)}, s10, v{e(6)}")
    for i in range(4):
        I(f"v_cmpx_eq_u32 vcc, {-32*i & 0xffffffff:#x}, v{e(6)}")
        I(f"s_cbranch_execz L_NS{i}")
        for k in range(8): I(f"v_add_f32 v{vACC+4*k+i}, v{vACC+4*k+i}, v{vACC+32+4*k+i}")
        L(f"L_NS{i}")
        I("s_mov_b64 exec, -1")
    I(f"s_mul_i32 s10, s{sB}, {BN}")
    for k, r_ in enumerate((sF0, sB0E, sWIN, sF1)):
        I(f"s_add_u32 s{sTM+k}, s10, s{r_}")
        I(f"s_min_u32 s{sTM+k}, s{sTM+k}, {N}")
        I(f"s_lshl_b32 s{sTM+k}, s{sTM+k}, 7")
    I(f"s_add_u32 s{sCEL}, s{sOUT}, s{sTM+2}")
    I(f"s_addc_u32 s{sCEL+1}, s{sOUT+1}, 0")
    I(f"s_sub_u32 s{sCEL+2}, s{sTM+3}, s{sTM+2}")
    I(f"s_add_u32 s{sOUT}, s{sOUT}, s{sTM}")
    I(f"s_addc_u32 s{sOUT+1}, s{sOUT+1}, 0")
    I(f"s_sub_u32 s{sOUT+2}, s{sTM+1}, s{sTM}")
    for w, r_ in enumerate((sF0, sWIN)):
        I(f"s_lshl_b32 s10, s{r_}, 5")
        I(f"s_sub_u32 s10, s{sWS0+w}, s10")
        I("s_lshl_b32 s10, s10, 2")
        I(f"v_add_u32 v{e(10+w)}, s10, v{e(4)}")
    for w in (1, 0):
        for k in range(16): I(f"v_rcp_f32 v{DEN(w,0)+k}, v{DEN(w,0)+k}")
    I("s_waitcnt lgkmcnt(8)")
    for w in range(2):
        XF = vP if w == 0 else vQ
        for i in range(4):
            for h in range(2):
                I(f"v_lshlrev_b32 v{XF+8*h+i}, 16, v{xd+8*w+2*i+h}")
                I(f"v_and_b32 v{XF+8*h+4+i}, 0xffff0000, v{xd+8*w+2*i+h}")
    for w in range(2):
        XF = vP if w == 0 else vQ
        for k in range(0, 16, 2): I(f"v_pk_fma_f32 {rr(NUM(w,0)+k,2)}, {rr(NUM(w,0)+k,2)}, {rr(DEN(w,0)+k,2)}, {rr(XF+k,2)}")
    I("s_waitcnt lgkmcnt(0)")
    k = 0
    for w in range(2):
        for s in range(2):
            for n in range(4):
                I(m16(NUM(w,n), vX+8*w+4*s, vWB+8*n+4*s, NUM(w,n)))
                if k < 8: I(f"v_lshl_add_u32 v{nd(k>>2,k&3)}, v{nd(k>>2,k&3)}, 2, v{e(10+(k>>2))}")
                k += 1
    for w in range(2):
        XF = vP if w == 0 else vQ
        for i in range(4):
            if not opt("pkm", 1):
                for n in range(4): I(f"v_max_f32 v{NUM(w,n)+i}, v{NUM(w,n)+i}, v{XF+4*n+i}")
            for h in range(2): I(f"v_cvt_pk_bf16_f32 v{DEN(w,0)+2*i+h}, v{NUM(w,2*h)+i}, v{NUM(w,2*h+1)+i}")
            if opt("pkm", 1):
                for h in range(2): I(f"v_pk_max_f16 v{DEN(w,0)+2*i+h}, v{DEN(w,0)+2*i+h}, v{xd+8*w+2*i+h}")
            I(f"buffer_store_dwordx2 {rr(DEN(w,0)+2*i,2)}, v{nd(w,i)}, {sq(sO[w])}, 0 offen{pol(OP)}")
    stamp_out()
    L("L_END")
    I("s_endpgm")
    def spin():
        I(f"s_add_u32 s{sSP}, s{sSP}, 1")
        I(f"s_cmp_gt_u32 s{sSP}, {opt('spin', 200000)}")
        I("s_cbranch_scc1 L_END")
        if opt("slp", 1): I(f"s_sleep {opt('slp', 1)}")
    for i in range(4):
        L(f"L_RT{i}")
        I("s_waitcnt vmcnt(0)")
        spin()
        for k in range(i, 4): poll_load(k)
        I("s_waitcnt vmcnt(0)")
        I(f"s_branch L_PW{i}")
    xg = vCA
    def xload(tag):
        for i in range(4):
            I(f"s_mov_b64 exec, {sp(mk(i,3))}")
            I(f"s_cbranch_execz L_XL{tag}{i}")
            I(f"s_movk_i32 s10, {8192*i}")
            I(f"buffer_load_dwordx4 {rr(xg+4*i,4)}, v{pa}, {sq(sD2)}, s10 offen sc1")
            L(f"L_XL{tag}{i}")
        I("s_mov_b64 exec, -1")
    L("L_XT1")
    for i in range(4):
        I(f"v_and_b32 v{u(2)}, 0x1000000, v{vC+4*i+3}")
        I(f"v_cmp_ne_u32 {sp(mk(i,3))}, 0, v{u(2)}")
        I(f"s_bcnt1_i32_b64 s10, {sp(mk(i,3))}")
        I(f"s_lshl2_add_u32 s{sXT}, s10, s{sXT}")
    xload("a")
    I(f"v_or3_b32 v{u(2)}, v{vC+1}, v{vC+5}, v{vC+9}")
    I(f"v_or_b32 v{u(2)}, v{u(2)}, v{vC+13}")
    I(f"v_and_b32 v{u(2)}, 0x10000, v{u(2)}")
    I(f"v_mov_b32 v{u(3)}, {FLAG}")
    I(f"v_cmpx_ne_u32 vcc, 0, v{u(2)}")
    I(f"ds_write_b32 v{u(3)}, v{one} offset:4")
    I("s_mov_b64 exec, 1")
    I(f"v_mov_b32 v{u(2)}, s{sXT}")
    I(f"ds_add_u32 v{u(3)}, v{u(2)} offset:8")
    I("s_mov_b64 exec, -1")
    I("s_branch L_XT1R")
    L("L_XCN")
    I(f"s_sub_u32 s10, s{sL}, {R0 - BIAS}")
    I(f"s_add_u32 s11, s10, s{LEN0}")
    I(f"v_mov_b32 v{u(0)}, s11")
    I(f"s_add_u32 s11, s10, s{sEND}")
    I(f"s_add_u32 s11, s11, {LWB}")
    I(f"v_mov_b32 v{u(1)}, s11")
    I(f"s_lshl_b32 s10, s{sW}, 3")
    I(f"v_mov_b32 v{u(2)}, s10")
    I(f"ds_write_b64 v{u(2)}, {rr(u(0),2)} offset:{CNT}")
    I("s_branch L_XCNR")
    L("L_XT2")
    I("s_waitcnt vmcnt(0)")
    I(f"s_mov_b64 {sp(sTM)}, 0")
    for i in range(4):
        I(f"v_cmp_ne_u32 vcc, s{sK}, v{xg+4*i+1}")
        I(f"s_and_b64 vcc, vcc, {sp(mk(i,3))}")
        I(f"s_or_b64 {sp(sTM)}, {sp(sTM)}, vcc")
    I("s_cbranch_scc0 L_XT2A")
    spin()
    xload("b")
    I("s_branch L_XT2")
    L("L_XT2A")
    I(f"s_cmp_eq_u32 s{sSKIP}, 0")
    I("s_cbranch_scc1 L_XT2R")
    for i in range(4):
        g_ = xg + 4*i
        I(f"s_mov_b64 exec, {sp(mk(i,3))}")
        I(f"v_bfe_u32 v{g_+1}, v{g_}, 18, 8")
        I(f"v_lshlrev_b32 v{g_+1}, 2, v{g_+1}")
        I(f"v_add_u32 v{g_+3}, {MAP}, v{g_+1}")
        I(f"ds_read_b32 v{g_+3}, v{g_+3}")
        put(rec_ops(g_, g_+2, 0, vEB+i, g_+1, g_+2))
        I(f"v_and_b32 v{g_}, 0xffff, v{g_}")
        I("s_waitcnt lgkmcnt(0)")
        I(f"ds_add_rtn_u32 v{g_+3}, v{g_+3}, v{one} offset:{CNT}")
        I("s_waitcnt lgkmcnt(0)")
        I(f"ds_write2st64_b32 v{g_+3}, v{g_}, v{g_+2} {W2}")
    I("s_mov_b64 exec, -1")
    I("s_waitcnt lgkmcnt(0)")
    I("s_branch L_XT2R")
    def lens_from_cnt(t):
        I(f"s_lshl_b32 s10, s{sW}, 3")
        I(f"v_mov_b32 v{t}, s10")
        I(f"ds_read_b64 {rr(t,2)}, v{t} offset:{CNT}")
        I("s_waitcnt lgkmcnt(0)")
        I(f"v_readfirstlane_b32 s{sTM}, v{t}")
        I(f"v_readfirstlane_b32 s{sTM+1}, v{t+1}")
        I(f"s_sub_u32 s10, s{sL}, {R0 - BIAS}")
        I(f"s_sub_u32 s{sTM}, s{sTM}, s10")
        I(f"s_sub_u32 s{sTM+1}, s{sTM+1}, s10")
        I(f"s_sub_u32 s{sTM+1}, s{sTM+1}, {LWB}")
        ntiles(sTM, sTM + 1)
    L("L_XT3")
    lens_from_cnt(u(0))
    I("s_branch L_XT3R")
    L("L_OVF")
    I(f"s_mov_b32 s{sSKIP}, 0")
    I(f"s_mov_b32 s{sN}, 0")
    I(f"s_mov_b32 s{sST}, 0")
    I(f"s_mov_b32 s{sMORE}, 4")
    I("s_waitcnt lgkmcnt(0)")
    I("s_branch L_CA")
    q = vCA
    L("L_PEXT")
    I(f"v_mov_b32 v{q+1}, s{sK}")
    I(f"s_mov_b32 s{sTM}, {256*RS}")
    for i in range(8):
        I(f"v_subrev_u32 v{q+4}, {33*CAP}, v{vRK1+i}")
        I(f"v_cmpx_gt_u32 vcc, {33*8}, v{q+4}")
        I(f"s_cbranch_execz L_PE{i}")
        I(f"v_mov_b32 v{q}, v{vSR+i}")
        I(f"v_mov_b32 v{q+2}, v{vID+(i&3)}")
        I(f"v_bfe_u32 v{q+4}, v{vRK1+i}, 5, 3")
        I(f"v_lshlrev_b32 v{q+4}, 4, v{q+4}")
        I(f"v_mad_u32_u24 v{q+4}, v{vBK+i}, s{cR}, v{q+4}")
        I(f"buffer_store_dwordx4 {rr(q,4)}, v{q+4}, {sq(sCEL)}, s{sTM} offen sc1")
        L(f"L_PE{i}")
        I("s_mov_b64 exec, -1")
    I("s_branch L_PEXTR")
    L("L_POVF")
    I("s_movk_i32 s11, 1986")
    for i in range(4):
        I(f"v_mul_u32_u24 v{q+i}, s11, v{vHS+i}")
        I(f"v_lshrrev_b32 v{q+i}, 16, v{q+i}")
    I(f"v_add_u32 v{q+5}, v{q}, v{q+1}")
    I(f"v_add_u32 v{q+6}, v{q+5}, v{q+2}")
    I(f"v_add_u32 v{q+7}, v{q+6}, v{q+3}")
    I(f"v_mov_b32 v{q+8}, v{q+7}")
    wave_scan(q + 8)
    I("s_nop 0")
    I(f"v_sub_u32 v{q+4}, v{q+8}, v{q+7}")
    I(f"v_add_u32 v{q+7}, v{q+4}, v{q+6}")
    I(f"v_add_u32 v{q+6}, v{q+4}, v{q+5}")
    I(f"v_add_u32 v{q+5}, v{q+4}, v{q}")
    for i in range(4): I(f"v_lshl_or_b32 v{q+4+i}, v{q+i}, 16, v{q+4+i}")
    I(f"v_add_u32 v{q+8}, {HDR}, v{l16}")
    I(f"ds_write_b128 v{q+8}, {rr(q+4,4)}")
    I("s_lshl_b32 s10, s2, 10")
    I(f"s_add_u32 s10, s10, {WS_HD}")
    I(f"buffer_store_dwordx4 {rr(q+4,4)}, v{l16}, {sq(sWS)}, s10 offen sc1")
    for i in range(8):
        I(f"v_and_b32 v{q+10+i}, 0x3fc, v{vHA+i}")
        I(f"v_add_u32 v{q+10+i}, {HDR}, v{q+10+i}")
        I(f"ds_read_u16 v{q+10+i}, v{q+10+i}")
    I("s_waitcnt lgkmcnt(0)")
    for i in range(4):
        I(f"v_cmpx_lt_u32 vcc, {33*(CAP+8)}, v{vHD+i}")
        I(f"v_or_b32 v{vO+4*i+1}, 0x10000, v{vO+4*i+1}")
        I("s_mov_b64 exec, -1")
    I(f"s_mul_i32 s10, s2, {DCH}")
    I(f"s_mov_b32 s{sTM}, {WS_RECS}")
    I(f"s_mov_b32 s{sTM+1}, {WS_LEID}")
    for i in range(8):
        I(f"v_mul_u32_u24 v{q}, s11, v{vRK1+i}")
        I(f"v_lshrrev_b32 v{q}, 16, v{q}")
        I(f"v_add3_u32 v{q}, v{q}, v{q+10+i}, s10")
        I(f"v_lshlrev_b32 v{q+1}, 2, v{q}")
        I(f"v_cmpx_le_u32 vcc, {33*(CAP+8)}, v{vRK1+i}")
        I(f"s_cbranch_execz L_PO{i}")
        I(f"buffer_store_byte v{vID+(i&3)}, v{q}, {sq(sWS)}, s{sTM+1} offen sc1")
        I(f"buffer_store_dword v{vSR+i}, v{q+1}, {sq(sWS)}, s{sTM} offen sc1")
        L(f"L_PO{i}")
        I("s_mov_b64 exec, -1")
    I("s_waitcnt vmcnt(0) lgkmcnt(0)")
    I("s_barrier")
    I("s_branch L_POUT")
    SB = 288
    t0, t1, t2, t3 = vP, vP+1, vP+2, vP+3
    L("L_SLOW")
    I("s_setprio 0")
    I(f"s_lshl_b32 s10, s{sWP}, 6")
    I(f"v_add_u32 v{tid}, s10, v{lane}")
    I(f"s_cmp_lg_u32 s{sMORE}, 4")
    I("s_cbranch_scc1 L_SL1")
    I(f"s_mov_b32 s{sMORE}, 1")
    I(f"v_and_b32 v{t0}, 0xff, v{tid}")
    I(f"v_lshlrev_b32 v{t1}, 7, v{t0}")
    I(f"buffer_load_dword v{t2}, v{t1}, {sq(sCEL)}, 0 offen offset:4 sc1")
    I(f"v_lshlrev_b32 v{t1}, 10, v{t0}")
    I(f"s_lshl_b32 s10, s{sB}, 2")
    I(f"s_add_u32 s10, s10, {WS_HD}")
    I(f"buffer_load_dword v{t3}, v{t1}, {sq(sWS)}, s10 offen sc1")
    I(f"v_lshlrev_b32 v{t0}, 2, v{t0}")
    I(f"v_add_u32 v{t0}, {HDR}, v{t0}")
    I("s_waitcnt vmcnt(0)")
    I(f"v_and_b32 v{t2}, 0x10000, v{t2}")
    I(f"v_cmp_ne_u32 vcc, 0, v{t2}")
    I(f"v_mov_b32 v{t2}, {(CAP+8) << 16}")
    I("s_nop 0")
    I(f"v_cndmask_b32 v{t2}, v{t2}, v{t3}, vcc")
    I(f"ds_write_b32 v{t0}, v{t2}")
    I("s_waitcnt lgkmcnt(0)")
    I("s_barrier")
    L("L_SL1")
    I(f"s_add_u32 s{sR0}, s{sR0}, {SB}")
    I(f"s_cmp_lt_u32 s{sR0}, s{sCNT}")
    I("s_cbranch_scc1 L_BATCH")
    L("L_FIND")
    I(f"s_cmp_lg_u64 {sp(sMSK)}, 0")
    I("s_cbranch_scc1 L_GOT")
    I(f"s_add_u32 s{sCI}, s{sCI}, 1")
    I(f"s_cmp_ge_u32 s{sCI}, 4")
    I("s_cbranch_scc1 L_EPI")
    I(f"s_lshl_b32 s10, s{sCI}, 8")
    I(f"s_add_u32 s10, s10, {HDR}")
    I(f"v_lshl_add_u32 v{t0}, v{lane}, 2, s10")
    I(f"ds_read_u16 v{t0}, v{t0} offset:2")
    I("s_waitcnt lgkmcnt(0)")
    I(f"v_cmp_lt_u32 {sp(sMSK)}, s{sSKIP}, v{t0}")
    I("s_nop 3")
    I("s_branch L_FIND")
    L("L_GOT")
    I(f"s_ff1_i32_b64 s10, {sp(sMSK)}")
    I(f"s_bitset0_b64 {sp(sMSK)}, s10")
    I(f"s_lshl_b32 s11, s{sCI}, 6")
    I(f"s_add_u32 s{sCUR}, s10, s11")
    I(f"s_lshl_b32 s10, s{sCUR}, 2")
    I(f"s_add_u32 s10, s10, {HDR}")
    I(f"v_mov_b32 v{t0}, s10")
    I(f"ds_read_b32 v{t0}, v{t0}")
    I("s_waitcnt lgkmcnt(0)")
    I(f"v_readfirstlane_b32 s10, v{t0}")
    I("s_nop 3")
    I(f"s_lshr_b32 s{sCNT}, s10, 16")
    I(f"s_and_b32 s{sST}, s10, 0xffff")
    I(f"s_mov_b32 s{sR0}, s{sSKIP}")
    L("L_BATCH")
    I("s_waitcnt vmcnt(0)")
    I("s_barrier")
    prefill(vP + 4)
    I(f"v_and_b32 v{t0}, 15, v{lane}")
    I(f"v_mul_u32_u24 v{t1}, {LWB}, v{t0}")
    I(f"v_add_u32 v{t1}, {BIAS}, v{t1}")
    I(f"v_lshlrev_b32 v{t0}, 2, v{t0}")
    I(f"ds_write_b32 v{t0}, v{t1} offset:{CNT}")
    t1, t4, t5 = vQ, vQ + 2, vQ + 3
    I(f"v_add_u32 v{t0}, s{sR0}, v{tid}")
    I(f"s_mul_i32 s{sTM+2}, s{sCUR}, {CH}")
    I(f"s_mul_i32 s11, s{sCUR}, {DCH}")
    I(f"s_add_u32 s11, s11, s{sST}")
    I(f"s_lshl_b32 s{sTM}, s11, 2")
    I(f"s_add_u32 s{sTM}, s{sTM}, {WS_RECS}")
    I(f"v_lshl_add_u32 v{t2}, v{t0}, 2, s{sTM}")
    I(f"s_add_u32 s{sTM}, s11, {WS_LEID}")
    I(f"v_add_u32 v{t3}, s{sTM}, v{t0}")
    I(f"s_mul_i32 s10, s{sB}, {RS}")
    I(f"s_lshl_b32 s{sTM}, s{sCUR}, 7")
    I(f"s_add_u32 s10, s10, s{sTM}")
    I(f"s_add_u32 s10, s10, {WS_CELL}")
    I(f"v_and_b32 v{t4}, 7, v{t0}")
    I(f"v_lshl_add_u32 v{t4}, v{t4}, 4, s10")
    I(f"v_lshrrev_b32 v{t5}, 3, v{t0}")
    I(f"v_cmpx_gt_u32 vcc, {CAP+8}, v{t0}")
    I(f"v_add_u32 v{t2}, {256*RS}, v{t4}")
    I(f"v_add_u32 v{t3}, 8, v{t2}")
    I(f"v_cmpx_gt_u32 vcc, {CAP}, v{t0}")
    I(f"v_lshl_add_u32 v{t2}, v{t5}, 2, v{t4}")
    I(f"v_add3_u32 v{t3}, v{t4}, v{t5}, 12")
    I("s_mov_b64 exec, -1")
    I(f"s_add_u32 s10, s{sR0}, {SB}")
    I(f"s_min_u32 s10, s10, s{sCNT}")
    I(f"v_cmp_gt_u32 vcc, s10, v{t0}")
    I(f"v_mov_b32 v{t4}, 0x7ffffff0")
    I("s_nop 0")
    I(f"v_cndmask_b32 v{t2}, v{t4}, v{t2}, vcc")
    I(f"v_cndmask_b32 v{t3}, v{t4}, v{t3}, vcc")
    I(f"buffer_load_dwordx2 {rr(t1,2)}, v{t2}, {sq(sWS)}, 0 offen sc1")
    I(f"buffer_load_ubyte v{t3}, v{t3}, {sq(sWS)}, 0 offen sc1")
    I("s_waitcnt lgkmcnt(0)")
    I("s_barrier")
    I("s_waitcnt vmcnt(0)")
    I(f"v_cmp_ne_u32 vcc, 3, v{t5}")
    I(f"v_cmp_eq_u32 {sp(sA)}, s{sK}, v{t1+1}")
    I(f"v_mov_b32 v{t4}, s{sTM+2}")
    I(f"s_or_b64 exec, vcc, {sp(sA)}")
    I(f"v_cmpx_ne_u32 vcc, 0, v{t1}")
    I(f"v_bfe_u32 v{t2}, v{t1}, 18, 8")
    I(f"v_lshlrev_b32 v{t2}, 2, v{t2}")
    I(f"v_add_u32 v{t0}, {MAP}, v{t2}")
    I(f"ds_read_b32 v{t0}, v{t0}")
    put(rec_ops(t1, t3, 0, t4, t2, t3))
    I(f"v_mov_b32 v{t2}, 4")
    I(f"v_and_b32 v{t1}, 0xffff, v{t1}")
    I("s_waitcnt lgkmcnt(0)")
    I(f"ds_add_rtn_u32 v{t0}, v{t0}, v{t2} offset:{CNT}")
    I("s_waitcnt lgkmcnt(0)")
    I(f"ds_write2st64_b32 v{t0}, v{t1}, v{t3} {W2}")
    I("s_mov_b64 exec, -1")
    I("s_waitcnt lgkmcnt(0)")
    I("s_barrier")
    listaddr(t2)
    I(f"ds_read_b128 {rr(vQD,4)}, v{vARX}")
    I(f"ds_read_b32 v{vEI}, v{vARE}")
    lens_from_cnt(t2)
    put(dma_tile())
    L("L_LAST")
    I("s_branch L_GO")

def regs_of(tok):
    tok = tok.strip()
    m = re.fullmatch(r"v\[(\d+):(\d+)\]", tok)
    if m: return list(range(int(m.group(1)), int(m.group(2)) + 1))
    m = re.fullmatch(r"v(\d+)", tok)
    if m: return [int(m.group(1))]
    return []
def parse(ins):
    op, _, rest = ins.partition(" ")
    ops = [o.strip().split(" ")[0] for o in rest.split(",")] if rest else []
    if op.startswith("ds_read") or "rtn" in op: return "ds", regs_of(ops[0]), regs_of(ops[1])
    return "other", [], sum((regs_of(o) for o in ops), [])
def check_body(body):
    s2 = [b for b in body if not b.endswith(":")]
    pend = []
    for i, ins in enumerate(s2 * 3):
        k, d, s = parse(ins)
        m = re.search(r"lgkmcnt\((\d+)\)", ins)
        if m:
            while len(pend) > int(m.group(1)): pend.pop(0)
        pr = set(sum(pend, []))
        for r in d + s:
            assert r not in pr, f"pending LDS reg v{r} used by {ins} @{i}"
        if k == "ds":
            pend.append(d); assert len(pend) <= 15

hdr = open("/code/" + NAME + ".s.ref").read().split("\n")
for l in hdr:
    if l.startswith("; Override"): break
    out.append(l)
if opt("list", 0): out.append(f"; @launch kernel={NAME}_kernel grid=(256,1,1) block=(512,1,1) lds={LDS}")
else: out.append(f"; @launch grid=(256,1,1) block=(512,1,1) lds={LDS}")
LEAK = opt("leak", "")
if LEAK: out.append("; @launch kernel=leak_kernel grid=(1,1,1) block=(256,1,1) lds=64")
emit('.amdgcn_target "amdgcn-amd-amdhsa--gfx950"\n.text')
kernel()
if LEAK:
    kind, nm = LEAK[0], LEAK[1:]
    si = STN.index(nm)
    emit(".globl leak_kernel\n.p2align 8\n.type leak_kernel,@function\nleak_kernel:")
    I("s_cmp_lg_u32 s2, 0")
    I("s_cbranch_scc1 LK_END")
    I("s_load_dwordx2 s[4:5], s[0:1], 88")
    I("v_min_u32 v1, 254, v0")
    I("v_lshlrev_b32 v1, 11, v1")
    I("v_mov_b32 v2, 0")
    I("v_mov_b32 v3, 0x7fffffff")
    I("v_mov_b32 v4, 0")
    I("ds_write2_b32 v2, v3, v4 offset0:0 offset1:1")
    I("s_waitcnt lgkmcnt(0)")
    I(f"s_add_u32 s4, s4, {WS_TS}")
    I("s_addc_u32 s5, s5, 0")
    I("global_load_dword v5, v2, s[4:5]")
    for w in range(8):
        I(f"global_load_dword v{8+w}, v1, s[4:5] offset:{256*w}")
        I(f"global_load_dword v{16+w}, v1, s[4:5] offset:{256*w + 4*si}")
    I("s_barrier")
    I("s_waitcnt vmcnt(0)")
    I("v_subrev_u32 v5, 1000, v5")
    for w in range(16): I(f"v_sub_u32 v{8+w}, v{8+w}, v5")
    for w in range(8):
        I(f"ds_min_u32 v2, v{8+w}")
        I(f"ds_{'max' if kind == 'm' else 'add'}_u32 v2, v{16+w} offset:4")
    I("s_waitcnt lgkmcnt(0)")
    I("s_barrier")
    I("ds_read_b64 v[6:7], v2")
    I("s_waitcnt lgkmcnt(0)")
    I("v_lshlrev_b32 v6, 2, v6")
    I("v_lshlrev_b32 v7, 2, v7" if kind == 'm' else "v_lshrrev_b32 v7, 9, v7")
    I("v_sub_u32 v6, v7, v6")
    I("v_min_u32 v6, 20000, v6")
    I("s_nop 0")
    I("v_readfirstlane_b32 s6, v6")
    I("s_memrealtime s[8:9]")
    I("s_waitcnt lgkmcnt(0)")
    L("LK_L")
    I("s_memrealtime s[10:11]")
    I("s_waitcnt lgkmcnt(0)")
    I("s_sub_u32 s7, s10, s8")
    I("s_cmp_lt_u32 s7, s6")
    I("s_cbranch_scc1 LK_L")
    L("LK_END")
    I("s_endpgm")
emit(f""".section .rodata,"a"
.p2align 6
.amdhsa_kernel {NAME}_kernel
  .amdhsa_next_free_vgpr 256
  .amdhsa_next_free_sgpr 102
  .amdhsa_accum_offset 256
  .amdhsa_group_segment_fixed_size 0
  .amdhsa_kernarg_size 96
  .amdhsa_user_sgpr_count 2
  .amdhsa_user_sgpr_kernarg_segment_ptr 1
  .amdhsa_system_sgpr_workgroup_id_x 1
.end_amdhsa_kernel""")
if LEAK:
    emit(""".p2align 6
.amdhsa_kernel leak_kernel
  .amdhsa_next_free_vgpr 32
  .amdhsa_next_free_sgpr 16
  .amdhsa_accum_offset 32
  .amdhsa_group_segment_fixed_size 0
  .amdhsa_kernarg_size 96
  .amdhsa_user_sgpr_count 2
  .amdhsa_user_sgpr_kernarg_segment_ptr 1
  .amdhsa_system_sgpr_workgroup_id_x 1
.end_amdhsa_kernel""")
if TS: out.insert(0, "; stamps " + " ".join(STN))
path = sys.argv[1] if len(sys.argv) > 1 else "/code/" + NAME + ".s"
open(path, "w").write("\n".join(out) + "\n")
print("wrote", path, len(out), "lines; lds", LDS)
```

```python
import sys, re, struct

NAME = "standalone__edge_featured_mpnn_gatedgcn__graph"
OPT = dict(kv.split("=") for kv in sys.argv[2:])
def opt(k, d):
    v = OPT.get(k)
    if v is None: return d
    return type(d)(v)

N, E = 50000, 800000
CH = 3128
BN = 196
XIL = opt('xil', 0)
RS = (513 if XIL else opt('rs', 257)) * 128
XOFF = 256 * 128 if XIL else 256 * RS
WS_CELL = 0x10000
WS_RECS = 0x1200000
WS_LEID = 0x1680000
WS_HD = 0x17a0000
WS_USED = 0x1800000
WS_TS = 0x3000000
KINC = 0x02020202
CAP = 24
LOG2E = 1.4426950408889634
def f2u(f): return struct.unpack("<I", struct.pack("<f", f))[0]

out = []
def emit(s=""):
    for l in s.strip("\n").split("\n"):
        out.append(l.rstrip())
def I(s): out.append("    " + s)
def L(s): out.append(s + ":")
def C(s): out.append("    ; " + s)
def put(seq):
    for s in seq:
        if s.endswith(":"): L(s[:-1])
        else: I(s)
def rr(a, n): return f"v[{a}:{a+n-1}]"
def sp(a): return f"s[{a}:{a+1}]"
def sq(a): return f"s[{a}:{a+3}]"
def pol(p): return (" " + p.replace("_", " ")) if p else ""

def srd(d, lo, size, add=None, stride=0):
    if add is None:
        I(f"s_mov_b32 s{d}, s{lo}")
        I(f"s_mov_b32 s{d+1}, s{lo+1}" if not stride else f"s_or_b32 s{d+1}, s{lo+1}, {stride << 16:#x}")
    else:
        I(f"s_add_u32 s{d}, s{lo}, {add}")
        I(f"s_addc_u32 s{d+1}, s{lo+1}, 0")
    I(f"s_mov_b32 s{d+2}, {size}")
    I(f"s_mov_b32 s{d+3}, 0x20000")

def wave_scan(v, fill=None, half=False):
    def gap():
        if fill and len(fill) >= 2:
            I(fill.pop(0)); I(fill.pop(0))
        else: I("s_nop 1")
    for sh in (1, 2, 4, 8):
        gap()
        I(f"v_add_u32_dpp v{v}, v{v}, v{v} row_shr:{sh} row_mask:0xf bank_mask:0xf bound_ctrl:0")
    gap()
    I(f"v_add_u32_dpp v{v}, v{v}, v{v} row_bcast:15 row_mask:0xa bank_mask:0xf")
    if half: return
    gap()
    I(f"v_add_u32_dpp v{v}, v{v}, v{v} row_bcast:31 row_mask:0xc bank_mask:0xf")

TAB, ZROW, CNT, FLAG = 0, 512, 576, 640
HIST = 1024
ESTG = HIST + 4096
HIST1 = ESTG
EARLY = ESTG + 8192
LWB = 288 * 4
R0 = EARLY + 32768
R1 = R0 + 16 * LWB
XSTG = R1 + 16 * LWB
XI = 1056
SLOT = 4 * XI
OWN = XSTG + 8 * SLOT
PL = 52 * 128 + 32
WR = 160
WUI = OWN + 4 * PL
MAP = WUI + 64 * WR
HDR = MAP + 1024
PRG = HDR + 1024
NT = PRG + 1024
LDS = NT + 1024
WBI, WVI, WCI = EARLY, EARLY + 64 * WR, EARLY + 128 * WR
WAI = XSTG + 8192
LROW = 160
CIMG = R0
assert CIMG + 256 * LROW <= WAI and LDS <= 163840, LDS
BIAS = 8192
assert R1 < 65536 and R0 % 256 == 0 and R1 % 256 == 0
W2 = f"offset0:{(R0-BIAS)//256} offset1:{(R1-BIAS)//256}"

vWB, vWV, vCA, vACC = 0, 32, 64, 96
vX, vEO, vS = 160, 176, 184
vP, vQ, vR = 188, 204, 220
vQD = 236
vEI, vCH, vIDX, vCP, vAX, vcEO, vcS, vARX, vARE, vARO, vARS, vEA = 240, 241, 242, 243, 244, 245, 246, 247, 248, 249, 250, 251
lane, vTS, tid = 253, 254, 255
vC1, vPA = lane, tid
DEN = lambda w, n: vACC + 32 * w + 4 * n
NUM = lambda w, n: vACC + 32 * w + 16 + 4 * n
def m16(d, a, b, c=None):
    return f"v_mfma_f32_16x16x32_bf16 {rr(d,4)}, {rr(a,4)}, {rr(b,4)}, " + ("0" if c is None else rr(c, 4))
def s16(d, b): return f"v_smfmac_f32_16x16x64_bf16 {rr(d,4)}, {rr(vS,4)}, {rr(b,8)}, v{vIDX}"

sWP, sW, sB, sK = 3, 4, 5, 6
sWIN, sF0, sF1, sL = 7, 8, 9, 12
sA, sBt = 10, 11
sSTG, sES, s128 = 13, 14, 15
pX, pE, pSRC, pDST, pWA, pWB, pWC, pWU, pWV, pOUT, pDBG, pWS = 16, 18, 20, 22, 24, 26, 28, 30, 32, 34, 36, 38
sT, sN, sFM, sMORE, sSKIP, sXT, sWS0, sWS1, sB0E, sSH = 16, 17, 18, 19, 20, 21, 22, 23, 24, 25
sCI, sCUR, sR0, sCNT, sST, sEND = 26, 27, 28, 29, 30, 31
sMSK = 32
sTM = 34
sX, sEP, sOUT, sWS, sCEL, sD2 = 40, 44, 48, 52, 56, 60
sM = 64
sJ3, sEM = 96, 98
sSP = 100
sHF = 99
sSG, sRM = 101, 96

TS = opt("ts", 0)
STN = []
YP = opt("yp", "")
def stamp(i):
    if str(i) in YP.split("_"):
        k = YP.split("_").index(str(i))
        I(f"s_cmp_lt_u32 s{sWP}, 4")
        I(f"s_cbranch_scc1 L_YP{k}")
        I(f"s_setprio {1 - (k & 1)}")
        L(f"L_YP{k}")
    if not TS: return
    if isinstance(i, str) and i[0] not in opt("tsx", ""): return
    STN.append(str(i)); i = len(STN) - 1
    I("s_memrealtime vcc" if TS == 1 else "s_memtime vcc")
    I("s_waitcnt lgkmcnt(0)")
    I(f"v_writelane_b32 v{vTS}, vcc_lo, {i}")
def stamp_out():
    if not TS: return
    I("s_waitcnt vmcnt(0)")
    stamp(15)
    I("s_memtime vcc")
    I("s_waitcnt lgkmcnt(0)")
    I(f"v_writelane_b32 v{vTS}, vcc_lo, 58")
    I(f"v_writelane_b32 v{vTS}, s{sN}, 59")
    I(f"v_writelane_b32 v{vTS}, s{sSP}, 60")
    I("s_getreg_b32 s10, hwreg(HW_REG_XCC_ID)")
    I(f"v_writelane_b32 v{vTS}, s10, 55")
    I("s_lshl_b32 s10, s2, 3")
    I(f"s_add_u32 s10, s10, s{sWP}")
    I("s_lshl_b32 s10, s10, 8")
    I(f"s_add_u32 s10, s10, {WS_TS}")
    I(f"v_lshl_add_u32 v{vP}, v{lane}, 2, s10")
    I(f"global_store_dword v{vP}, v{vTS}, {sp(pWS)}")
def cstamp(i):
    if not TS: return
    I("s_memtime vcc")
    I("s_waitcnt lgkmcnt(0)")
    I(f"v_writelane_b32 v{vTS}, vcc_lo, {i}")

LD_P = opt("ldp", "nt")
XP, EP, OP = opt("xp", ""), opt("ep", ""), opt("op", "sc1")
STP = opt("stp", "sc1")
MG = opt("mg", 1)
JE = opt("je", 4 if MG else 2)
EMASK = ((1 << JE) - 1) * 0x01010101
DCH = CH + 1024
SDW = "dst_sel:DWORD dst_unused:UNUSED_PAD"

def dma_tile():
    r = []
    for i in range(4):
        r.append(f"s_add_u32 m0, s{sSTG}, {i*XI}")
        r.append(f"v_mad_u32_u16 v{vQD+i}, v{vQD+i}, s{s128}, v{vCP}")
        r.append(f"buffer_load_dwordx4 v{vQD+i}, {sq(sX)}, 0 offen{pol(XP)} lds")
    r.append(f"s_mov_b32 m0, s{sES}")
    r.append(f"v_and_b32 v{vEI}, 0xfffff, v{vEI}")
    r.append(f"buffer_load_dwordx4 {rr(vEI,2)}, {sq(sEP)}, 0 idxen offen{pol(EP)} lds")
    return r

ORD = [(0, 0), (1, 0), (0, 1), (1, 1)]
def xread(m, s): return f"ds_read_b128 {rr(vX+8*m+4*s,4)}, v{vAX} offset:{512*m + 64*s}"
def g_mfmas(D, ft, w):
    g = [m16(D+8*n+4*m, vEO+4*m, vCA+16*w+8*ft+4*n) for m in range(2) for n in range(2)]
    g += [m16(D+8*n+4*m, vX+8*m+4*s, vWB+16*ft+8*n+4*s, D+8*n+4*m) for m, s in ORD for n in range(2)]
    return g
def h_mfmas(ft):
    return [m16(vQ+8*n+4*m, vX+8*m+4*s, vWV+16*ft+8*n+4*s, None if s == 0 else vQ+8*n+4*m) for m, s in ORD for n in range(2)]
def s_num(w, ft): return [s16(NUM(w, 2*ft+n), vQ+8*n) for n in range(2)]
def s_den(w, ft, G): return [s16(DEN(w, 2*ft+n), G+8*n) for n in range(2)]

def eafix():
    return [f"v_bfi_b32 v{vEA+m}, 31, v{vcEO}, v{vEA+m}" for m in range(2)] + [f"v_max_u32 v{vEA}, v{vEA}, v{vcEO}", f"v_max_u32 v{vEA+1}, v{vEA+1}, v{vC1}"]
LV = [int(c, 16) for c in opt("lv", "015a")]
PAT = opt("pat", "1" * 11 + "5")
FAIR = opt("fair", 1)
BST = opt("bst", 10)
def phase(par, ft, cp=0):
    G, Go = (vP, vR) if ft == 0 else (vR, vP)
    nf = 1 - ft
    wn = par if ft == 0 else par ^ 1
    wp = par ^ 1 if ft == 0 else par
    s1 = [[x] for x in s_num(wp, nf) + h_mfmas(ft) + s_den(wp, nf, Go)]
    s2 = [[x] for x in g_mfmas(Go, nf, wn)]
    if ft == 0:
        o = par * LWB
        s1[0] += [f"ds_read_u16 v{vQD+u}, v{vARS} offset:{o + 16*u}" for u in range(2)]
        s1[8] += ["s_waitcnt lgkmcnt(0)"] + [f"v_bfi_b32 v{vQD+u}, 31, v{vcS}, v{vQD+u}" for u in range(2)]
        if FAIR:
            s1[0] += [f"ds_add_rtn_u32 v{vQD+2}, v{vPA}, v{vIDX}"]
            s1[8] += [f"v_readfirstlane_b32 s{sRM}, v{vQD+2}"]
            s2[1] += [f"s_ashr_i32 s{sRM}, s{sRM}, 24", f"s_mul_i32 s{sRM}, s{sRM}, s{sSG}"]
        o1 = 128 if par else LWB
        s2[0] += [f"ds_read_b64_tr_b16 {rr(vS+2*u,2)}, v{vQD+u}" for u in range(2)]
        s2[0] += [f"ds_read_u16 v{vEA+m}, v{vARO} offset:{o1 + 64*m}" for m in range(2)]
        s2[6] += ["s_waitcnt lgkmcnt(0)"] + eafix()
        s2[6] += [f"ds_read_b128 {rr(vQD,4)}, v{vARX} offset:{o + 128}", f"ds_read_b32 v{vEI}, v{vARE} offset:{o + 128}",
                  f"s_add_u32 s{sT}, s{sT}, 1"]
        if par: s2[7] += [f"v_add_u32 v{r}, 0x80, v{r}" for r in (vARX, vARE, vARO, vARS)]
    else:
        s1[2] = ["s_waitcnt vmcnt(0)"] + [f"ds_read_b128 {rr(vEO+4*m,4)}, v{vEA+m}" for m in range(2)] + s1[2]
        for i, (m, s) in enumerate(ORD): s1[3+2*i].append(xread(m, s))
        s2[0] = ["s_waitcnt lgkmcnt(4)"] + s2[0]
        for i in range(4): s2[4+2*i] = [f"s_waitcnt lgkmcnt({3-i})"] + s2[4+2*i]
        DSP = opt("dsp", "")
        if DSP:
            d = dma_tile(); first = min(int(c, 16) for c in DSP)
            for i in range(4): s2[4+2*i] = s2[4+2*i][1:] if 4+2*i > first else s2[4+2*i]
            s2[first] = ["s_waitcnt lgkmcnt(0)"] + [x for x in s2[first] if not x.startswith("s_waitcnt")]
            for k, c in enumerate(DSP): s2[int(c, 16)] += d[3*k:3*k+3]
        tgt = f"L_CE{par}{cp}" if opt("cpe", 0) else f"L_ND{par}{cp}"
        if not DSP: s2[10] += [f"s_cmp_lt_u32 s{sT}, s{sN}", f"s_cbranch_scc0 {tgt}"] + dma_tile() + [f"L_ND{par}{cp}:"]
    def sec(mf, op):
        r = []; k = 0
        for i, m in enumerate(mf):
            if FAIR:
                if i == 0: r.append(f"s_setprio {cp}")
                if i == BST: r.append("s_setprio 3")
            elif i in LV: r.append(f"s_setprio {LV.index(i)}")
            r += m
            for _ in range(int(PAT[i])):
                r.append(f"{op} v{G+k}, v{G+k}"); k += 1
        assert k == 16
        return r
    r = []
    if opt("tt", 0) and ft == 0:
        r += ["s_memrealtime vcc", "s_memtime s[10:11]", f"s_add_u32 m0, s{sT}, 17", "s_waitcnt lgkmcnt(0)", f"v_writelane_b32 v{vTS}, vcc_lo, m0",
              f"s_add_u32 m0, s{sT}, 35", "s_nop 0", f"v_writelane_b32 v{vTS}, s10, m0"]
    r += sec(s1, "v_exp_f32")
    r += [f"v_pk_add_f32 {rr(G+2*i,2)}, {rr(G+2*i,2)}, 1.0 op_sel_hi:[1,0]" for i in range(8)]
    r += sec(s2, "v_rcp_f32")
    r += [f"v_pk_mul_f32 {rr(vQ+2*i,2)}, {rr(G+2*i,2)}, {rr(vQ+2*i,2)}" for i in range(8)]
    return r

def last_tile(par, half):
    keep = (lambda x: int(re.match(r"\S+ v\[(\d+)", x).group(1)) % 8 == (vP % 8)) if half else (lambda x: True)
    regs = [k for k in range(16) if not (half and k & 4)]
    def sec(mf, op, G):
        r = [f"s_setprio {opt('lpr', 0)}"]; k = 0
        tail = min(len(regs), 4 if half else 5)
        for i, m in enumerate(mf):
            if i == len(mf) - 1: r.append("s_setprio 3")
            r += m
            e_ = (len(regs) - tail) * (i + 1) // (len(mf) - 1) if i < len(mf) - 1 else len(regs)
            while k < e_:
                r.append(f"{op} v{G+regs[k]}, v{G+regs[k]}"); k += 1
        while k < len(regs):
            r.append(f"{op} v{G+regs[k]}, v{G+regs[k]}"); k += 1
        return r
    r = []
    for ft in range(2):
        G, Go = (vP, vR) if ft == 0 else (vR, vP)
        wp = par ^ 1 if ft == 0 else par
        s1 = [[x] for x in s_num(wp, 1-ft) + [h for h in h_mfmas(ft) if keep(h)] + s_den(wp, 1-ft, Go)]
        s2 = [[x] for x in g_mfmas(Go, 1, par) if keep(x)] if ft == 0 else []
        if ft == 0:
            s1[0] += [f"ds_read_u16 v{vQD+u}, v{vARS} offset:{par*LWB + 16*u}" for u in range(2)]
            s1[-2] += ["s_waitcnt lgkmcnt(0)"] + [f"v_bfi_b32 v{vQD+u}, 31, v{vcS}, v{vQD+u}" for u in range(2)]
            s2[0] += [f"ds_read_b64_tr_b16 {rr(vS+2*u,2)}, v{vQD+u}" for u in range(2)]
        else:
            s1[0] = ["s_waitcnt lgkmcnt(0)"] + s1[0]
        r += sec(s1, "v_exp_f32", G)
        r += [f"v_pk_add_f32 {rr(G+k,2)}, {rr(G+k,2)}, 1.0 op_sel_hi:[1,0]" for k in regs[::2]]
        r += sec(s2, "v_rcp_f32", G)
        r += [f"v_pk_mul_f32 {rr(vQ+k,2)}, {rr(G+k,2)}, {rr(vQ+k,2)}" for k in regs[::2]]
    return r + s_den(par, 1, vR) + s_num(par, 1)

def listaddr(t0):
    I(f"v_lshrrev_b32 v{t0}, 3, v{lane}")
    I(f"v_lshl_add_u32 v{vARX}, v{t0}, 4, s{sL}")
    I(f"s_add_u32 s10, s{sL}, {R1-R0}")
    I(f"v_lshrrev_b32 v{t0}, 1, v{lane}")
    I(f"v_lshl_add_u32 v{vARE}, v{t0}, 2, s10")
    I(f"s_add_u32 s10, s10, 2")
    I(f"v_and_b32 v{t0}, 48, v{lane}")
    I(f"v_lshl_add_u32 v{vARS}, v{t0}, 1, s10")
    I(f"v_and_b32 v{t0}, 12, v{lane}")
    I(f"v_add_u32 v{vARS}, v{vARS}, v{t0}")
    I(f"v_lshrrev_b32 v{t0}, 5, v{lane}")
    I(f"v_mul_u32_u24 v{vARO}, {R1-R0}, v{t0}")
    I(f"v_and_b32 v{t0}, 15, v{lane}")
    I(f"v_lshl_add_u32 v{vARO}, v{t0}, 2, v{vARO}")
    I(f"s_add_u32 s10, s{sL}, 2")
    I(f"v_add_u32 v{vARO}, s10, v{vARO}")

def prefill(t):
    for d in range(2): I(f"v_mov_b64 {rr(t+2*d,2)}, 0")
    for d in range(4): I(f"v_mov_b32 v{t+4+d}, {(ZROW << 16) | 0xfffff:#x}")
    I(f"v_lshl_add_u32 v{t+8}, v{lane}, 4, s{sL}")
    for o in (0, 1024, 2*LWB - 1024):
        I(f"ds_write_b128 v{t+8}, {rr(t,4)} offset:{o}")
        I(f"ds_write_b128 v{t+8}, {rr(t+4,4)} offset:{o + R1 - R0}")

def kernel():
    emit(f"""
.globl {NAME}_kernel
.p2align 8
.type {NAME}_kernel,@function
{NAME}_kernel:""")
    FH = opt("fh", 1)
    vD, vSR, vT16 = vACC + 32, vACC, vR + 12
    I("s_load_dwordx16 s[16:31], s[0:1], 0")
    I("s_load_dwordx8 s[32:39], s[0:1], 64")
    CPN = opt("cpn", 8)
    if opt("cpf", 1):
        I(f"s_getpc_b64 {sp(sM)}")
        L("L_PC")
        if CPN == 8: I("s_and_b32 s3, s2, -8")
        else:
            I("s_lshr_b32 s3, s2, 3")
            I(f"s_and_b32 s3, s3, {256//CPN - 1}")
            I(f"s_mul_i32 s3, s3, {CPN}")
        I("v_add_lshl_u32 v1, v0, s3, 7")
        I("v_min_u32 v1, L_LAST-L_PC, v1")
        I(f"v_cmpx_gt_u32 vcc, {CPN}, v0")
        I("s_cbranch_execz L_NOCPF")
        I(f"global_load_dword v{vEA}, v1, {sp(sM)}")
        L("L_NOCPF")
        I("s_mov_b64 exec, -1")
    I("s_cmp_ge_u32 s2, 256")
    I("s_cbranch_scc1 L_END")
    if FH:
        I(f"s_mul_i32 s{sA}, s2, {CH*4}")
        I(f"v_lshl_add_u32 v1, v0, 4, s{sA}")
        I(f"s_add_u32 s{sBt}, s{sA}, {CH*4}")
        I(f"s_min_u32 s{sBt}, s{sBt}, {E*4}")
        BAL = opt("bal", 0)
        if BAL:
            I(f"s_add_u32 s{sA}, s{sA}, 0x2000")
            I(f"v_lshl_add_u32 v2, v0, 3, s{sA}")
            I(f"s_add_u32 s{sA}, s{sA}, 0x1000")
            I(f"v_lshl_add_u32 v3, v0, 2, s{sA}")
            I(f"v_cmp_gt_u32 {sp(sM+6)}, s{sBt}, v2")
            I(f"v_min_u32 v2, {E*4 - 8}, v2")
        else: I("v_add_u32 v2, 0x2000, v1")
        I("s_waitcnt lgkmcnt(0)")
        I(f"global_load_dwordx4 {rr(vD,4)}, v1, {sp(pDST)}{pol(LD_P)}")
        if BAL:
            I(f"global_load_dwordx2 {rr(vD+4,2)}, v2, {sp(pDST)}{pol(LD_P)}")
            I(f"global_load_dwordx4 {rr(vSR,4)}, v1, {sp(pSRC)}{pol(LD_P)}")
            I(f"global_load_dwordx2 {rr(vSR+4,2)}, v2, {sp(pSRC)}{pol(LD_P)}")
            I(f"v_cmpx_gt_u32 {sp(sM+28)}, s{sBt}, v3")
            I("s_cbranch_execz L_NO7")
            I(f"global_load_dword v{vD+6}, v3, {sp(pDST)}{pol(LD_P)}")
            I(f"global_load_dword v{vSR+6}, v3, {sp(pSRC)}{pol(LD_P)}")
        else:
            I(f"global_load_dwordx4 {rr(vSR,4)}, v1, {sp(pSRC)}{pol(LD_P)}")
            I(f"v_cmpx_gt_u32 {sp(sM+6)}, s{sBt}, v2")
            I("s_cbranch_execz L_NO7")
            I(f"global_load_dwordx4 {rr(vD+4,4)}, v2, {sp(pDST)}{pol(LD_P)}")
            I(f"global_load_dwordx4 {rr(vSR+4,4)}, v2, {sp(pSRC)}{pol(LD_P)}")
        L("L_NO7")
        I("s_mov_b64 exec, -1")
        I(f"s_load_dword s{sK}, {sp(pWS)}, 0")
        if opt("tlb", 0):
            I("v_lshlrev_b32 v1, 20, v0")
            I(f"v_add_u32 v1, {WS_CELL + XOFF - 448*(1 << 20) & 0xffffffff:#x}, v1")
            I("v_subrev_u32 v2, 448, v0")
            I("v_cmpx_gt_u32 vcc, 9, v2")
            I("s_cbranch_execz L_NOTLB")
            I(f"global_load_dword v{vEA+1}, v1, {sp(pWS)}")
            L("L_NOTLB")
            I("s_mov_b64 exec, -1")
    if TS: I(f"v_mov_b32 v{vTS}, 0")
    u = lambda i: vP + i
    stamp(0)
    vBK, vRK1, vID, vHA, vIC = vACC + 8, vACC + 16, vACC + 24, vACC + 40, vACC + 48
    vRW = vX
    one, l16 = vS, vS + 1
    vOA, vT16, sOW = vR + 14, vR + 12, 101
    I(f"v_mov_b32 v{tid}, v0")
    I(f"v_lshrrev_b32 v{u(0)}, 6, v0")
    I(f"v_and_b32 v{lane}, 63, v0")
    I(f"v_readfirstlane_b32 s{sWP}, v{u(0)}")
    I(f"v_lshlrev_b32 v{vT16}, 4, v0")
    I(f"v_lshlrev_b32 v{u(2)}, 3, v0")
    I(f"v_lshlrev_b32 v{u(3)}, 2, v0")
    I(f"v_and_b32 v{u(4)}, 0x3fc, v{u(3)}")
    if not FH:
        I(f"s_mul_i32 s{sA}, s2, {CH*4}")
        I(f"s_sub_u32 s{sBt}, {E*4}, s{sA}")
        I(f"s_min_u32 s{sBt}, s{sBt}, {CH*4}")
    I(f"s_and_b32 s{sB}, s2, 7")
    I(f"s_lshr_b32 s{sW}, s2, 3")
    I(f"s_lshl_b32 s{sB}, s{sB}, 5")
    I(f"s_add_u32 s{sB}, s{sB}, s{sW}")
    I(f"s_mul_i32 s{sF1}, s{sB}, {BN}")
    I(f"s_cmp_eq_u32 s{sWP}, 7")
    I(f"s_cselect_b32 s{sOW}, 0, s{sWP}")
    I(f"s_lshl_b32 s{sL}, s{sOW}, 5")
    I(f"s_add_u32 s{sF1}, s{sF1}, s{sL}")
    I(f"v_lshrrev_b32 v{u(5)}, 3, v{lane}")
    I(f"v_lshl_add_u32 v{u(5)}, v{u(5)}, 2, s{sF1}")
    I(f"v_and_b32 v{vCP}, 7, v{lane}")
    I(f"v_lshlrev_b32 v{vCP}, 4, v{vCP}")
    I(f"v_lshl_add_u32 v{vOA}, v{u(5)}, 7, v{vCP}")
    I(f"s_lshl_b32 s{sOW}, s{sOW}, 10")
    I(f"s_add_u32 s{sOW}, s{sOW}, {OWN}")
    if not FH:
        I(f"s_movk_i32 s{sF0}, 0x2000")
        I("s_waitcnt lgkmcnt(0)")
        I(f"s_load_dword s{sK}, {sp(pWS)}, 0")
        srd(sCEL, pDST, f"s{sBt}", f"s{sA}")
        srd(sD2, pSRC, f"s{sBt}", f"s{sA}")
        I(f"buffer_load_dwordx4 {rr(vD,4)}, v{vT16}, {sq(sCEL)}, 0 offen{pol(LD_P)}")
        I(f"buffer_load_dwordx4 {rr(vSR,4)}, v{vT16}, {sq(sD2)}, 0 offen{pol(LD_P)}")
        I(f"s_cmp_ge_u32 s{sWP}, 5")
        I("s_cbranch_scc1 L_NO7")
        I(f"buffer_load_dwordx4 {rr(vD+4,4)}, v{vT16}, {sq(sCEL)}, s{sF0} offen{pol(LD_P)}")
        I(f"buffer_load_dwordx4 {rr(vSR+4,4)}, v{vT16}, {sq(sD2)}, s{sF0} offen{pol(LD_P)}")
        L("L_NO7")
    for d in range(2): I(f"v_mov_b64 {rr(u(8)+2*d,2)}, 0")
    I(f"v_mov_b32 v{u(6)}, {33*JE if MG else 0}")
    I(f"ds_write2st64_b32 v{u(4)}, v{u(6)}, v{u(8)} offset0:{HIST1//256} offset1:{HIST1//256+4}")
    I(f"v_add_u32 v{u(5)}, {CIMG}, v{vT16}")
    for k in range(5): I(f"ds_write_b128 v{u(5)}, {rr(u(8),4)} offset:{8192*k}")
    PF = opt("pf", 0)
    def w_loads():
        I(f"s_cmp_ge_u32 s{sWP}, 2")
        I("s_cbranch_scc1 L_NOC")
        I(f"global_load_dwordx4 {rr(vEO,4)}, v{vT16}, {sp(pWC)}")
        L("L_NOC")
        for k, p in enumerate((pWB, pWV, pWA, pWU)):
            I(f"global_load_dwordx4 {rr(vRW+4*k,4)}, v{vT16}, {sp(p)}")
    def own_loads():
        I(f"s_cmp_eq_u32 s{sWP}, 6")
        I("s_cselect_b32 exec_hi, 0, -1")
        I(f"s_cmp_eq_u32 s{sWP}, 7")
        I("s_cselect_b64 exec, 1, exec")
        for k in range(4):
            I(f"s_add_u32 m0, s{sOW}, {(PL-128)*k}")
            I("s_nop 0")
            I(f"buffer_load_dwordx4 v{vOA}, {sq(sX)}, 0 offen offset:{128*k}{pol(opt('owp', ''))} lds")
        I("s_mov_b64 exec, -1")
        if PF:
            assert PF <= 512
            I(f"s_lshr_b32 s{sTM+1}, s2, 3")
            I(f"s_mul_i32 s{sTM}, s{sTM+1}, {PF*128}")
            I(f"v_min_u32 v{vEA+1}, {PF-1}, v{tid}")
            I(f"v_lshlrev_b32 v{vEA+1}, 7, v{vEA+1}")
            I(f"buffer_load_dword v{vEA+1}, v{vEA+1}, {sq(sX)}, s{sTM} offen")
    LLP = opt("llp", 2)
    OLP = opt("olp", 2)
    NY = 0
    srd(sEP, pE, E, stride=32)
    srd(sOUT, pOUT, N*128)
    srd(sX, pX, N*128)
    OY = 0
    if OLP == 3:
        OW0 = opt("ow0", 5); nw = 8 - OW0; per = -(-28 // nw); OY = per
        I(f"s_cmp_lt_u32 s{sWP}, {OW0}")
        I("s_cbranch_scc1 L_NOOWN")
        I(f"s_mul_i32 s{sF1}, s{sB}, {BN}")
        I(f"v_lshrrev_b32 v{vOA}, 3, v{lane}")
        I(f"v_lshl_add_u32 v{vOA}, v{vOA}, 2, s{sF1}")
        I(f"v_lshl_add_u32 v{vOA}, v{vOA}, 7, v{vCP}")
        I(f"s_sub_u32 s{sF0}, s{sWP}, {OW0}")
        for k in range(per):
            I(f"s_add_u32 s{sF1}, s{sF0}, {nw*k}")
            I(f"s_min_u32 s{sF1}, s{sF1}, 27")
            I(f"s_and_b32 s{sL}, s{sF1}, 3")
            I(f"s_lshr_b32 s{sF1}, s{sF1}, 2")
            I(f"s_mul_i32 s{sOW}, s{sL}, {PL}")
            I(f"s_lshl_b32 s{sL}, s{sL}, 7")
            I(f"s_cmp_eq_u32 s{sF1}, 6")
            I("s_cselect_b32 exec_hi, 0, -1")
            I(f"s_lshl_b32 s{sF1}, s{sF1}, 10")
            I(f"s_add_u32 s{sOW}, s{sOW}, s{sF1}")
            I(f"s_add_u32 m0, s{sOW}, {OWN}")
            I(f"s_lshl2_add_u32 s{sL}, s{sF1}, s{sL}")
            I(f"buffer_load_dwordx4 v{vOA}, {sq(sX)}, s{sL} offen lds")
        I("s_mov_b32 exec_hi, -1")
        L("L_NOOWN")
    srd(sWS, pWS, WS_USED)
    I(f"s_lshl_b32 s{sL}, s2, 7")
    I(f"s_add_u32 s{sL}, s{sL}, {WS_CELL}")
    srd(sCEL, pWS, 255*RS + XOFF + 128, f"s{sL}")
    cM, cN, cP, cPM, cR = sM, sM + 1, sM + 2, sM + 3, sM + 4
    m2 = sM + 6
    I(f"s_mov_b32 s{cM}, 85599")
    I(f"s_mov_b32 s{cN}, {-BN & 0xffffffff}")
    I(f"s_movk_i32 s{cP}, 5368")
    I(f"s_mov_b32 s{cPM}, {opt('phm', 3) << 26:#x}")
    I(f"s_mov_b32 s{cR}, {RS}")
    for i in range(4): I(f"v_add_u32 v{vID+i}, {i}, v{u(3)}")
    I(f"s_lshl_b32 s{sA}, s{sWP}, 28")
    I(f"s_or_b32 s{sA}, s{sA}, 0x20000")
    I(f"v_mov_b32 v{vIC}, s{sA}")
    if BAL:
        assert MG <= 1 and OLP != 3
        I(f"s_lshr_b32 s{sA}, s{sWP}, 1")
        I(f"s_lshl_b32 s{sA}, s{sA}, 28")
        I(f"s_or_b32 s{sA}, s{sA}, 0x80020000")
        I(f"v_mov_b32 v{vIC+1}, s{sA}")
        I(f"v_mov_b32 v{vIC+3}, 0xc0020000")
        I(f"v_lshlrev_b32 v{vID+4}, 1, v{tid}")
        I(f"v_add_u32 v{vID+5}, 1, v{vID+4}")
        I(f"v_mov_b32 v{vID+6}, v{tid}")
    else: I(f"v_or_b32 v{vIC+1}, 0x80000000, v{vIC}")
    idr = (lambda i: vID + i) if BAL else (lambda i: vID + (i & 3))
    icr = (lambda i: vIC + (3 if i == 6 else i >> 2)) if BAL else (lambda i: vIC + (i >> 2))
    NR = 7 if BAL else 8
    I(f"v_mov_b32 v{one}, 33")
    vK1 = vIC + 2
    I(f"v_mov_b32 v{vK1}, 0x400")
    if not FH:
        I(f"s_sub_u32 s{sBt}, s{sBt}, 0x2000")
        I(f"v_cmp_gt_u32 {sp(m2)}, s{sBt}, v{vT16}")
    I(f"s_and_b32 s{sA}, s{sWP}, 3")
    I(f"s_lshr_b32 s{sW}, s{sWP}, 2")
    I(f"s_lshl1_add_u32 s{sW}, s{sA}, s{sW}")
    if opt("swp", 1): I(f"s_xor_b32 s{sW}, s{sW}, 1")
    I(f"s_mul_i32 s{sA}, s{sW}, 49")
    I(f"s_sub_i32 s{sA}, s{sA}, 6")
    I(f"s_ashr_i32 s{sA}, s{sA}, 1")
    I(f"s_max_i32 s{sWIN}, s{sA}, 0")
    I(f"s_mul_i32 s{sSTG}, s{sW}, {SLOT}")
    I(f"s_add_u32 s{sSTG}, s{sSTG}, {XSTG}")
    I(f"s_lshl_b32 s{sES}, s{sW}, 10")
    I(f"s_add_u32 s{sES}, s{sES}, {ESTG}")
    I(f"s_mul_i32 s{sL}, s{sW}, {2*LWB}")
    I(f"s_add_u32 s{sL}, s{sL}, {R0}")
    I(f"s_movk_i32 s{s128}, 128")
    I(f"v_bfe_u32 v{u(6)}, v{tid}, 4, 4")
    I(f"v_and_b32 v{u(7)}, 7, v{tid}")
    I(f"v_cmp_eq_u32 vcc, v{u(6)}, v{u(7)}")
    I(f"v_and_b32 v{u(6)}, 8, v{tid}")
    I(f"v_lshlrev_b32 v{u(6)}, 1, v{u(6)}")
    I(f"v_mov_b32 v{u(8)}, 0x3f80")
    I(f"v_lshlrev_b32 v{u(8)}, v{u(6)}, v{u(8)}")
    I(f"v_cndmask_b32 v{u(8)}, 0, v{u(8)}, vcc")
    I(f"ds_write_b32 v{u(4)}, v{u(8)} offset:{TAB}")
    I(f"v_mov_b64 {rr(u(8),2)}, 0")
    I(f"ds_write_b64 v{u(2)}, {rr(u(8),2)} offset:{HIST}")
    I(f"v_add_u32 v{u(6)}, {PRG}, v{u(4)}")
    I(f"ds_write_b32 v{u(6)}, v{u(8)}")
    go, lo, lo2, ha = vR, vR + 1, vR + 2, vR + 3
    wl, wal = vR + 4, vR + 5
    I(f"v_lshrrev_b32 v{ha}, 3, v{tid}")
    I(f"v_mad_u32_u24 v{go}, v{ha}, s{cR}, v{vCP}")
    I(f"v_mul_u32_u24 v{wl}, {LROW}, v{ha}")
    I(f"v_add_u32 v{lo}, v{wl}, v{vCP}")
    I(f"v_add_u32 v{lo}, {CIMG}, v{lo}")
    assert LROW == WR
    I(f"v_bfe_u32 v{u(6)}, v{tid}, 5, 1")
    I(f"v_bfe_u32 v{u(8)}, v{tid}, 6, 1")
    I(f"v_sub_u32 v{u(6)}, v{u(6)}, v{u(8)}")
    I(f"v_mul_i32_i24 v{u(6)}, {4*WR}, v{u(6)}")
    I(f"v_add_u32 v{wl}, v{wl}, v{u(6)}")
    I(f"v_lshl_add_u32 v{wl}, v{u(7)}, 2, v{wl}")
    I(f"v_add_u32 v{wl}, {WBI}, v{wl}")
    I(f"v_lshlrev_b32 v{l16}, 4, v{lane}")
    I(f"v_and_b32 v{u(6)}, 3, v{lane}")
    I(f"v_lshlrev_b32 v{vcS}, 3, v{u(6)}")
    I(f"v_bfe_u32 v{u(9)}, v{lane}, 2, 3")
    I(f"v_lshrrev_b32 v{u(8)}, 5, v{lane}")
    I(f"v_lshl_add_u32 v{u(9)}, v{u(8)}, 4, v{u(9)}")
    I(f"v_mul_u32_u24 v{wal}, {WR}, v{u(9)}")
    I(f"v_add_u32 v{wal}, v{wal}, v{vcS}")
    mm = lambda i: sM + 8 + 2*i
    def rank_a(rs):
        for i in rs: I(f"v_mul_u32_u24 v{vBK+i}, s{cM}, v{vD+i}")
        if rs[0] // 4 < MG:
            b = rs[0]
            for i in rs: I(f"v_lshrrev_b32 v{vHA+i}, 29, v{vBK+i}")
            t0, t1 = sM + 24, sM + 26
            I(f"v_cmp_eq_u32 {sp(mm(b))}, v{vHA+b}, v{vHA+b+1}")
            I(f"v_cmp_eq_u32 {sp(mm(b+2))}, v{vHA+b+2}, v{vHA+b+3}")
            I(f"v_cmp_eq_u32 vcc, v{vHA+b}, v{vHA+b+2}")
            I(f"v_cmp_eq_u32 {sp(t0)}, v{vHA+b+1}, v{vHA+b+3}")
            I(f"v_cmp_eq_u32 {sp(t1)}, v{vHA+b}, v{vHA+b+3}")
            I(f"v_cmp_eq_u32 {sp(sA)}, v{vHA+b+1}, v{vHA+b+2}")
            for i in rs: I(f"v_lshrrev_b32 v{vBK+i}, 24, v{vBK+i}")
            I(f"s_or_b64 {sp(mm(b+1))}, {sp(mm(b))}, {sp(t0)}")
            I(f"s_or_b64 {sp(mm(b+3))}, {sp(mm(b+2))}, {sp(t0)}")
            I(f"s_or_b64 {sp(mm(b))}, {sp(mm(b))}, vcc")
            I(f"s_or_b64 {sp(mm(b+2))}, {sp(mm(b+2))}, vcc")
            I(f"s_or_b64 {sp(mm(b))}, {sp(mm(b))}, {sp(t1)}")
            I(f"s_or_b64 {sp(mm(b+1))}, {sp(mm(b+1))}, {sp(sA)}")
            I(f"s_or_b64 {sp(mm(b+2))}, {sp(mm(b+2))}, {sp(sA)}")
            I(f"s_or_b64 {sp(mm(b+3))}, {sp(mm(b+3))}, {sp(t1)}")
            for i in rs:
                I(f"v_cndmask_b32 v{vHA+i}, 0, v{vK1}, {sp(mm(i))}")
                I(f"v_lshl_add_u32 v{vHA+i}, v{vBK+i}, 2, v{vHA+i}")
                I(f"ds_add_rtn_u32 v{vRK1+i}, v{vHA+i}, v{one} offset:{HIST1}")
            return
        for i in rs: I(f"v_lshrrev_b32 v{vBK+i}, 24, v{vBK+i}")
        for i in rs:
            I(f"v_lshlrev_b32 v{vHA+i}, 2, v{vBK+i}")
            I(f"ds_add_rtn_u32 v{vRK1+i}, v{vHA+i}, v{one} offset:{HIST1}")
    def again(rs, wait, em):
        for i in rs:
            I(f"s_waitcnt lgkmcnt({wait})")
            I(f"s_mov_b64 exec, {sp(mm(i))}")
            I(f"v_cmpx_le_u32 vcc, {33*JE}, v{vRK1+i}")
            I(f"ds_add_rtn_u32 v{vRK1+i}, v{vHA+i}, v{one} offset:{HIST1 - 1024}")
        I(f"s_mov_b64 exec, {em}")
    def rank_b(rs):
        for i in rs:
            I(f"v_mad_i32_i24 v{vD+i}, v{vBK+i}, s{cN}, v{vD+i}")
            I(f"v_mul_u32_u24 v{u(6)}, s{cP}, v{vSR+i}")
            I(f"v_lshl_or_b32 v{vSR+i}, v{vD+i}, 18, v{vSR+i}")
            I(f"v_and_or_b32 v{u(6)}, v{u(6)}, s{cPM}, v{icr(i)}")
            I(f"v_mad_u32_u24 v{vD+i}, v{vBK+i}, {LROW//4}, s{cN+4}")
            I(f"v_or_b32 v{vSR+i}, v{vSR+i}, v{u(6)}")
    def place(i, wait, em):
        I(f"s_waitcnt lgkmcnt({wait})")
        I(f"v_bfe_u32 v{u(6)}, v{vRK1+i}, 3, 5")
        I(f"v_add_lshl_u32 v{vD+i}, v{u(6)}, v{vD+i}, 2")
        I(f"v_and_b32 v{u(6)}, 3, v{u(6)}")
        I(f"v_mad_i32_i24 v{u(6)}, v{u(6)}, -3, v{vD+i}")
        I(f"v_cmpx_gt_u32 vcc, {33*CAP}, v{vRK1+i}")
        I(f"ds_write_b32 v{vD+i}, v{vSR+i}")
        I(f"ds_write_b8 v{u(6)}, v{idr(i)} offset:12")
        I(f"s_mov_b64 exec, {em}")
    I(f"s_movk_i32 s{cN+4}, {CIMG//4}")
    for d in range(2): I(f"v_mov_b64 {rr(vRK1+4+2*d,2)}, 0")
    I("s_waitcnt lgkmcnt(0)")
    I("s_barrier")
    if BAL:
        m3 = sM + 28
        I("s_waitcnt vmcnt(3)")
        stamp(1)
        if TS: STN.pop()
        rank_a(range(4))
        I("s_waitcnt vmcnt(2)")
        I(f"s_mov_b64 exec, {sp(m2)}")
        rank_a(range(4, 6))
        if MG: again(range(4), 5, "-1")
        else: I("s_mov_b64 exec, -1")
        I("s_waitcnt vmcnt(0)")
        rank_b(range(6))
        I(f"s_mov_b64 exec, {sp(m2)}")
        for i in range(4, 6): place(i, (1 if MG else -3) + i, sp(m2) if i < 5 else "-1")
        for i in range(4): place(i, 7 + i, "-1")
        I(f"s_mov_b64 exec, {sp(m3)}")
        I("s_cbranch_execz L_B1")
        rank_a([6]); rank_b([6]); place(6, 0, "-1")
        I("s_branch L_B1")
    I(f"s_cmp_eq_u64 {sp(m2)}, 0" if FH else f"s_cmp_ge_u32 s{sWP}, 5")
    I("s_cbranch_scc1 L_R4")
    I("s_waitcnt vmcnt(3)")
    stamp(1)
    rank_a(range(4))
    I("s_waitcnt vmcnt(1)")
    I(f"s_mov_b64 exec, {sp(m2)}")
    rank_a(range(4, 8))
    if MG == 0:
        I("s_mov_b64 exec, -1")
        rank_b(range(4))
        for i in range(4): place(i, 7 + i, "-1" if i < 3 else sp(m2))
        I("s_waitcnt vmcnt(0)")
        rank_b(range(4, 8))
        for i in range(4, 8): place(i, 7 + i, sp(m2) if i < 7 else "-1")
    elif MG == 1:
        again(range(4), 7, sp(m2))
        I("s_waitcnt vmcnt(0)")
        rank_b(range(4, 8))
        for i in range(4, 8): place(i, 3 + i, sp(m2) if i < 7 else "-1")
        rank_b(range(4))
        for i in range(4): place(i, 11 + i, "-1")
    else:
        again(range(8), 7, "-1")
        rank_b(range(4))
        for i in range(4): place(i, 7 + i, "-1" if i < 3 else sp(m2))
        I("s_waitcnt vmcnt(0)")
        rank_b(range(4, 8))
        for i in range(4, 8): place(i, 7 + i, sp(m2) if i < 7 else "-1")
    I("s_branch L_B1")
    L("L_R4")
    if OY:
        I(f"s_cmp_ge_u32 s{sWP}, {OW0}")
        I("s_cbranch_scc1 L_R4A")
        I("s_waitcnt vmcnt(0)")
        L("L_R4A")
    I(f"s_waitcnt vmcnt({1 + OY})")
    if TS: STN.pop()
    stamp(1)
    rank_a(range(4))
    I(f"s_waitcnt vmcnt({OY})")
    if MG:
        rank_b(range(2))
        again(range(4), 3, "-1")
        rank_b(range(2, 4))
    else: rank_b(range(4))
    for i in range(4): place(i, 3 + i, "-1")
    L("L_B1")
    if BAL:
        k_ = max(i for i, l in enumerate(out) if l.strip() == "s_cbranch_execz L_B1")
        e_ = next(i for i in range(k_, len(out)) if out[i].strip() == "s_branch L_B1")
        del out[e_:len(out)-1]
        I("s_mov_b64 exec, -1")
    w_loads()
    vTG = vS + 2
    I(f"s_add_u32 s{sK}, s{sK}, {KINC:#x}")
    I(f"v_lshlrev_b32 v{vTG}, v{vcS}, s{sK}")
    I(f"v_and_b32 v{u(6)}, 4, v{lane}")
    I(f"v_mul_u32_u24 v{u(6)}, {37 << 15}, v{u(6)}")
    I(f"v_lshl_add_u32 v{vTG}, v{u(6)}, 8, v{vTG}")
    I(f"v_and_b32 v{vTG}, 0xfe000000, v{vTG}")
    vTH = vS + 3
    I(f"v_and_b32 v{vTH}, 7, v{lane}")
    I(f"v_mul_u32_u24 v{vTH}, 33, v{vTH}")
    I(f"v_add_u32 v{vTH}, {33*CAP}, v{vTH}")
    I(f"v_lshlrev_b32 v{lo2}, 2, v{ha}")
    I(f"s_mov_b32 s{cM}, 0x1000000")
    I("s_waitcnt lgkmcnt(0)")
    I("s_barrier")
    stamp(2)
    vO, vHS = vQ, u(4)
    I(f"ds_read_b128 {rr(vHS,4)}, v{l16} offset:{HIST1}")
    vHD = vR + 8
    for i in range(4):
        I(f"ds_read_b32 v{vHD+i}, v{lo2} offset:{HIST1 + 256*i}")
        I(f"ds_read_b128 {rr(vO+4*i,4)}, v{lo} offset:{64*LROW*i}")
    for i in range(1, 4): I(f"s_mov_b32 s{sM+15+i}, {64*RS*i}")
    I("s_waitcnt lgkmcnt(8)")
    I(f"v_max3_u32 v{u(0)}, v{vHS}, v{vHS+1}, v{vHS+2}")
    I(f"v_max_u32 v{u(0)}, v{u(0)}, v{vHS+3}")
    I(f"v_cmp_lt_u32 vcc, {33*(CAP+8)}, v{u(0)}")
    I("s_cbranch_vccnz L_POVF")
    L("L_POUT")
    for i in range(4):
        I(f"s_waitcnt lgkmcnt({7 - 2*i})")
        I(f"v_sub_u32 v{vHD+i}, v{vTH}, v{vHD+i}")
        I(f"v_and_or_b32 v{vHD+i}, v{vHD+i}, s{cM}, v{vTG}")
        I(f"s_waitcnt lgkmcnt({6 - 2*i})")
        I(f"v_or_b32 v{vO+4*i+3}, v{vO+4*i+3}, v{vHD+i}")
        I(f"buffer_store_dwordx4 {rr(vO+4*i,4)}, v{go}, {sq(sCEL)}, {f's{sM+15+i}' if i else '0'} offen{pol(STP)}")
    stamp(3)
    if "c" in opt("tsx", ""): I("s_waitcnt vmcnt(0)")
    stamp("c0")
    t = vACC + 32
    I(f"s_mov_b32 s{sA}, {f2u(-LOG2E):#x}")
    I(f"s_mov_b32 s{sBt}, s{sA}")
    I(f"s_mov_b32 s{cM}, 0x05040100")
    I(f"s_mov_b32 s{cP}, 0x07060302")
    def wscaled(src, off):
        for d in range(4):
            I(f"v_lshlrev_b32 v{t+2*d}, 16, v{src+d}")
            I(f"v_and_b32 v{t+2*d+1}, 0xffff0000, v{src+d}")
        for d in range(4): I(f"v_pk_mul_f32 {rr(t+2*d,2)}, {rr(t+2*d,2)}, {sp(sA)}")
        for n in range(4): I(f"v_cvt_pk_bf16_f32 v{t+8+n}, v{t+n}, v{t+4+n}")
        wput(t + 8, off)
    def wplain(src, off, tt):
        for n in range(4): I(f"v_perm_b32 v{tt+n}, v{src+2+(n>>1)}, v{src+(n>>1)}, s{cP if n & 1 else cM}")
        wput(tt, off)
    def wput(r, off):
        a = wl
        if off:
            a = r + 4
            I(f"v_add_u32 v{a}, {off}, v{wl}")
        I(f"ds_write2_b32 v{a}, v{r}, v{r+1} offset0:0 offset1:8")
        I(f"ds_write2_b32 v{a}, v{r+2}, v{r+3} offset0:16 offset1:24")
    I("s_waitcnt vmcnt(4)")
    stamp("b4")
    wplain(vRW + 8, WAI - WBI, t + 16)
    wscaled(vRW, 0)
    wplain(vRW + 4, WVI - WBI, t + 24)
    wplain(vRW + 12, WUI - WBI, t + 16)
    I(f"s_cmp_ge_u32 s{sWP}, 2")
    I("s_cbranch_scc1 L_NOWC")
    wscaled(vEO, WCI - WBI)
    L("L_NOWC")
    I(f"s_mul_i32 s{sTM}, s{sB}, {RS}")
    I(f"s_add_u32 s{sTM}, s{sTM}, {WS_CELL}")
    srd(sCEL, pWS, 256*128, f"s{sTM}")
    I(f"s_add_u32 s{sTM}, s{sTM}, {XOFF}")
    srd(sD2, pWS, 256*128, f"s{sTM}")
    vC, vEB = vACC + 32, vACC + 60
    pa = vT16
    for k in (1, 2, 3): I(f"s_movk_i32 s{sCI+k-1}, {8192*k}")
    def poll_load(i):
        so = "0" if i == 0 else f"s{sCI+i-1}"
        I(f"buffer_load_dwordx4 {rr(vC+4*i,4)}, v{pa}, {sq(sCEL)}, {so} offen sc1")
    I("s_waitcnt lgkmcnt(0)")
    I("s_barrier")
    stamp(4)
    if OLP == 0: own_loads()
    vWA = vACC
    I(f"v_add_u32 v{wal}, {WBI}, v{wal}")
    def trw(reg, img):
        return [f"ds_read_b64_tr_b16 {rr(reg+8*n+4*s+2*uu,2)}, v{wal} offset:{img + (32*s + 8*uu)*WR + 32*n}"
                for n in range(4) for s in range(2) for uu in range(2)]
    tw = trw(vWB, 0) + trw(vWV, WVI - WBI)
    for x_ in tw[:14]: I(x_)
    prefill(vCA)
    for x_ in tw[14:24]: I(x_)
    nxt = 24
    I(f"v_mov_b32 v{u(4)}, v{wal}")
    I("s_mov_b32 exec_lo, 0")
    I(f"v_subrev_u32 v{u(4)}, {16*WR}, v{wal}")
    I("s_mov_b32 exec_lo, -1")
    tw += [f"ds_read_b64_tr_b16 {rr(vCA+16+4*n+2*uu,2)}, v{u(4)} offset:{WCI - WBI + 8*uu*WR + 32*n}" for n in range(4) for uu in range(2)]
    vEM, vET = vEO, vACC + 56
    ownn, owna, mapa = vEO + 1, vEO + 2, vEO + 3
    I("s_waitcnt lgkmcnt(4)")
    for x_ in tw[nxt:]: I(x_)
    I(f"v_add_u32 v{wal}, {WAI - WBI}, v{wal}")
    vFF = vEO + 4
    vMU = vR + 8
    lo0, hi0, lo1, hi1 = sWS0, sWS1, sB0E, sSH
    def late_setup():
        I(f"v_and_b32 v{vCH}, 1, v{lane}")
        I(f"v_lshlrev_b32 v{vCH}, 4, v{vCH}")
        I(f"s_bitcmp1_b32 s{sW}, 0")
        I(f"s_cselect_b32 s{sA}, 1, -1")
        I(f"s_lshl_b32 s{sA}, s{sA}, 24")
        I(f"s_or_b32 s{sA}, s{sA}, 0xdddd")
        I(f"v_mov_b32 v{vIDX}, s{sA}")
        I(f"v_and_b32 v{vcEO}, 16, v{lane}")
        I(f"v_and_b32 v{u(6)}, 15, v{lane}")
        I(f"v_lshl_add_u32 v{u(6)}, v{u(6)}, 5, s{sES}")
        I("s_mov_b32 exec_hi, 0")
        I(f"v_add_u32 v{vcEO}, v{vcEO}, v{u(6)}")
        I("s_mov_b32 exec_hi, -1")
        I(f"v_and_b32 v{u(6)}, 3, v{lane}")
        I(f"v_bfe_u32 v{u(8)}, v{lane}, 2, 2")
        I(f"v_and_b32 v{u(9)}, 48, v{lane}")
        I(f"v_lshl_add_u32 v{u(10)}, v{u(8)}, 7, v{u(9)}")
        I(f"v_mul_u32_u24 v{vAX}, {XI}, v{u(6)}")
        I(f"v_add3_u32 v{vAX}, v{vAX}, v{u(10)}, s{sSTG}")
        listaddr(u(6))
        I(f"v_mul_u32_u24 v{vEB}, {CH}, v{ha}")
        for i in range(1, 4): I(f"v_add_u32 v{vEB+i}, {64*i*CH}, v{vEB}")
        I(f"s_mov_b32 s{sEM}, {EMASK:#x}")
        I(f"s_mov_b32 s{sEM+1}, {EMASK:#x}")
        vFF = vEO + 4
        I(f"v_mov_b32 v{vFF}, 0xfffff")
        I(f"v_cndmask_b32 v{vEM}, 0, v{vFF}, {sp(sEM)}")
        I(f"v_add_lshl_u32 v{u(3)}, v{pa}, v{vCP}, 16")
        for i in range(4):
            I(f"v_add_u32 v{vET+i}, {(EARLY + 8192*i) << 16:#x}, v{u(3)}")
            I(f"v_cndmask_b32 v{vET+i}, 0, v{vET+i}, {sp(sEM)}")
        I(f"v_mov_b32 v{one}, 4")
        I(f"v_and_b32 v{ownn}, 31, v{lane}")
        I(f"v_add_lshl_u32 v{mapa}, v{ownn}, s{sWIN}, 2")
        I(f"v_lshrrev_b32 v{u(3)}, 5, v{lane}")
        I(f"v_lshl_add_u32 v{owna}, v{u(3)}, 11, v{mapa}")
        I(f"v_add_u32 v{mapa}, {MAP}, v{mapa}")
        I(f"v_lshlrev_b32 v{u(3)}, 2, v{lane}")
        I(f"v_subrev_u32 v{u(3)}, s{sWIN}, v{u(3)}")
        I("s_mov_b32 s10, 0x10000")
        for i in range(4):
            I(f"v_add_u32 v{vMU+i}, {i}, v{u(3)}")
            I(f"v_and_or_b32 v{vMU+i}, v{vMU+i}, s10, 1")
        I(f"s_movk_i32 s{sFM}, 0xffc")
        I(f"s_movk_i32 s{sSKIP}, {CAP+8}")
        I(f"s_mov_b32 s{sXT}, 0")
        I(f"s_mov_b32 s{sSP}, 0")
        I(f"s_mov_b32 s{sT}, 0x1ffffff")
        I(f"s_mov_b32 s{sN}, 0xffff")
        lo0, hi0, lo1, hi1 = sWS0, sWS1, sB0E, sSH
        I(f"s_mul_i32 s10, s{sW}, 49")
        I(f"s_sub_i32 s{lo0}, s10, 6")
        I(f"s_ashr_i32 s{lo0}, s{lo0}, 1")
        I(f"s_add_i32 s{hi0}, s10, 7")
        I(f"s_ashr_i32 s{hi0}, s{hi0}, 1")
        I(f"s_add_i32 s{lo1}, s10, 43")
        I(f"s_ashr_i32 s{lo1}, s{lo1}, 1")
        I(f"s_add_i32 s{hi1}, s{lo0}, 31")
        I(f"s_cmp_eq_u32 s{sW}, 7")
        I(f"s_cselect_b32 s{lo1}, {BN}, s{lo1}")
        I(f"s_cselect_b32 s{hi1}, {BN}, s{hi1}")
        for r_ in (hi0, lo1, hi1): I(f"s_sub_i32 s{r_}, s{r_}, s{sWIN}")
    LS = opt("ls", 0)
    if LS == 0: late_setup()
    stamp("b0")
    if opt("pw", 1): I(f"s_waitcnt vmcnt({4 if OLP == 0 else 0})")
    stamp("b1")
    if opt("pbar", 0): I("s_barrier")
    for i in range(4): poll_load(i)
    if OLP == 1: own_loads()
    if LS == 1: late_setup()
    PY = 4 if OLP == 1 else 0
    I(f"v_max3_u32 v{u(0)}, v{vRK1}, v{vRK1+1}, v{vRK1+2}")
    I(f"v_max3_u32 v{u(1)}, v{vRK1+3}, v{vRK1+4}, v{vRK1+5}")
    I(f"v_max3_u32 v{u(0)}, v{u(0)}, v{vRK1+6}, v{vRK1+7}")
    I(f"v_max_u32 v{u(0)}, v{u(0)}, v{u(1)}")
    I(f"v_cmp_le_u32 vcc, {33*CAP}, v{u(0)}")
    I("s_cbranch_vccz L_PEXTR")
    q = vCA
    if TS: I(f"v_writelane_b32 v{vTS}, 1, 61")
    I(f"v_mov_b32 v{q+1}, s{sK}")
    I(f"s_lshl_b32 s{sTM}, s2, 7")
    I(f"s_add_u32 s{sTM}, s{sTM}, {WS_CELL + XOFF}")
    for i in range(NR):
        I(f"v_subrev_u32 v{q+4}, {33*CAP}, v{vRK1+i}")
        I(f"v_cmpx_gt_u32 vcc, {33*8}, v{q+4}")
        I(f"s_cbranch_execz L_PE{i}")
        I(f"v_mov_b32 v{q}, v{vSR+i}")
        I(f"v_mov_b32 v{q+2}, v{idr(i)}")
        I(f"v_bfe_u32 v{q+4}, v{vRK1+i}, 5, 3")
        I(f"v_lshlrev_b32 v{q+4}, 4, v{q+4}")
        I(f"v_mad_u32_u24 v{q+4}, v{vBK+i}, s{cR}, v{q+4}")
        I(f"buffer_store_dwordx4 {rr(q,4)}, v{q+4}, {sq(sWS)}, s{sTM} offen sc1")
        L(f"L_PE{i}")
        I("s_mov_b64 exec, -1")
    L("L_PEXTR")
    stamp(5)
    vA, vRK, vR1 = vACC, vACC + 16, vQ
    mk = lambda i, j: sM + 2*(4*i + j)
    def rec_ops(d, x, byte, eb, a, r1, keep=None):
        e_ = r1 if keep is None else keep
        return [f"v_add_u32_sdwa v{e_}, v{x}, v{eb} {SDW} src0_sel:BYTE_{byte} src1_sel:DWORD",
                f"v_lshrrev_b32 v{u(1)}, 28, v{d}",
                f"v_lshl_add_u32 v{e_}, v{u(1)}, 8, v{e_}",
                f"v_and_b32 v{u(1)}, 60, v{a}",
                f"v_lshl_add_u32 v{r1}, v{u(1)}, 19, v{e_}"]
    def spin():
        I(f"s_add_u32 s{sSP}, s{sSP}, 1")
        I(f"s_cmp_gt_u32 s{sSP}, {opt('spin', 200000)}")
        I("s_cbranch_scc1 L_END")
        if opt("slp", 1): I(f"s_sleep {opt('slp', 1)}")
    xg = vCA
    def xload(tag):
        for i in range(4):
            I(f"s_mov_b64 exec, {sp(mk(i,3))}")
            I(f"s_cbranch_execz L_XL{tag}{i}")
            I(f"s_movk_i32 s10, {8192*i}")
            I(f"buffer_load_dwordx4 {rr(xg+4*i,4)}, v{pa}, {sq(sD2)}, s10 offen sc1")
            L(f"L_XL{tag}{i}")
        I("s_mov_b64 exec, -1")
    for i in range(4):
        c_ = vC + 4*i
        L(f"L_PW{i}")
        I(f"s_waitcnt vmcnt({3 - i + PY})")
        I(f"v_xor_b32 v{u(0)}, v{c_+3}, v{vTG}")
        for j in range(3): I(f"v_and_b32_sdwa v{vA+4*i+j}, v{c_+j}, s{sFM} {SDW} src0_sel:WORD_1 src1_sel:DWORD")
        I(f"v_cmp_lt_u32 vcc, s{sT}, v{u(0)}")
        for j in range(3): I(f"v_cmp_ne_u32 {sp(mk(i,j))}, 0, v{c_+j}")
        I(f"s_cbranch_vccnz L_RT{i}")
        if i == 3: stamp(6)
        for j in range(3):
            I(f"s_mov_b64 exec, {sp(mk(i,j))}")
            I(f"ds_add_rtn_u32 v{vRK+4*i+j}, v{vA+4*i+j}, v{one} offset:{HIST}")
        I("s_mov_b64 exec, -1")
        if i == 3:
            I(f"v_or3_b32 v{u(2)}, v{vC+3}, v{vC+7}, v{vC+11}")
            I(f"v_or_b32 v{u(2)}, v{u(2)}, v{vC+15}")
            I(f"v_and_b32 v{u(2)}, 0x1000000, v{u(2)}")
            I(f"v_cmp_ne_u32 vcc, 0, v{u(2)}")
            I("s_cbranch_vccz L_XT1R")
            def xt1():
                if TS: I(f"v_writelane_b32 v{vTS}, 1, 62")
                for i in range(4):
                    I(f"v_and_b32 v{u(2)}, 0x1000000, v{vC+4*i+3}")
                    I(f"v_cmp_ne_u32 {sp(mk(i,3))}, 0, v{u(2)}")
                    I(f"s_bcnt1_i32_b64 s10, {sp(mk(i,3))}")
                    I(f"s_lshl2_add_u32 s{sXT}, s10, s{sXT}")
                xload("a")
                I(f"v_or3_b32 v{u(2)}, v{vC+1}, v{vC+5}, v{vC+9}")
                I(f"v_or_b32 v{u(2)}, v{u(2)}, v{vC+13}")
                I(f"v_and_b32 v{u(2)}, 0x10000, v{u(2)}")
                I(f"v_mov_b32 v{u(3)}, {FLAG}")
                I(f"v_cmpx_ne_u32 vcc, 0, v{u(2)}")
                I(f"ds_write_b32 v{u(3)}, v{one} offset:4")
                I("s_mov_b64 exec, 1")
                I(f"v_mov_b32 v{u(2)}, s{sXT}")
                I(f"ds_add_u32 v{u(3)}, v{u(2)} offset:8")
                I("s_mov_b64 exec, -1")
            xt1()
            L("L_XT1R")
        for j in range(3):
            put(rec_ops(c_+j, c_+3, j, vEB+i, vA+4*i+j, vR1+4*i+j, vR1+4*i+3 if j == 0 and JE else None))
        e_ = vR1 + 4*i + 3
        if JE: I(f"v_cndmask_b32 v{u(0)}, v{vFF}, v{e_}, {sp(mk(i,0))}")
        I(f"v_and_or_b32 v{c_}, v{c_}, s{sN}, v{vET+i}")
        I(f"v_or_b32 v{vR1+4*i}, v{vR1+4*i}, v{vEM}")
        if JE:
            I(f"v_mov_b32_dpp v{u(1)}, v{u(0)} quad_perm:[2,2,3,3] row_mask:0xf bank_mask:0xf")
            I(f"v_mov_b32_dpp v{e_}, v{u(0)} quad_perm:[0,0,1,1] row_mask:0xf bank_mask:0xf")
        I(f"v_and_b32 v{c_+2}, s{sN}, v{c_+2}")
        if JE: I(f"v_mov_b32_dpp v{e_}, v{u(1)} row_shr:4 row_mask:0xf bank_mask:0xa")
    fill = [f"v_and_b32 v{vC+4*i+1}, s{sN}, v{vC+4*i+1}" for i in range(4)]
    I(f"v_mov_b32 v{u(9)}, {FLAG}")
    if OLP == 2: own_loads()
    I("s_waitcnt lgkmcnt(0)")
    stamp("d0")
    I("s_barrier")
    stamp(7)
    def early(i):
        if not JE: return
        I(f"s_lshl_b32 m0, s{sWP}, 10")
        I(f"v_mov_b32 v{vEI}, v{vR1+4*i+3}")
        I(f"s_add_u32 m0, m0, {EARLY + 8192*i}")
        if JE < 4:
            I(f"s_mov_b32 exec_lo, {((1 << 2*JE) - 1) * 0x01010101:#x}")
            I("s_mov_b32 exec_hi, exec_lo")
        else: I("s_nop 0")
        I(f"buffer_load_dwordx4 {rr(vEI,2)}, {sq(sEP)}, 0 idxen offen{pol(opt('eep', ''))} lds")
        if JE < 4: I("s_mov_b64 exec, -1")
    EPOS = opt("epos", "0134")
    def epoint(k):
        for i in range(4):
            if int(EPOS[i]) == k: early(i)
    c, p, tot, sc = u(0), u(4), u(8), u(9)
    hh = vX
    own, to2, ex, z_, eh, el = u(10), u(11), u(12), u(13), u(14), u(15)
    SD = f"{SDW} src0_sel:WORD_0 src1_sel:WORD_0"
    HL = f"{SDW} src0_sel:WORD_0 src1_sel:WORD_1"
    I(f"ds_read_u16 v{own}, v{owna} offset:{HIST}")
    I(f"ds_read_u16 v{to2}, v{owna} offset:{HIST + 1024}")
    for ph in range(4):
        I(f"ds_read_b128 {rr(hh+4*ph,4)}, v{l16} offset:{HIST + 1024*ph}")
    I(f"ds_read_b32 v{vQD}, v{sc} offset:8")
    epoint(0)
    I("s_cmp_lg_u32 s2, 0")
    I("s_cbranch_scc1 L_NOK")
    I(f"v_mov_b32 v{vQD+1}, s{sK}")
    I(f"v_mov_b32 v{vQD+2}, 0")
    I(f"buffer_store_dword v{vQD+1}, v{vQD+2}, {sq(sWS)}, 0 offen sc1")
    L("L_NOK")
    I("s_waitcnt lgkmcnt(5)")
    I(f"v_lshl_or_b32 v{own}, v{to2}, 16, v{own}")
    I(f"v_mov_b32 v{to2}, v{own}")
    I("s_waitcnt lgkmcnt(0)")
    stamp("d1")
    f2 = []
    for i in range(4):
        f2 += [f"v_add_u32_sdwa v{c+i}, v{hh+i}, v{hh+4+i} {SD}", f"v_add_u32_sdwa v{p+i}, v{hh+8+i}, v{hh+12+i} {SD}"]
    f2 += [f"v_add_u32 v{c+i}, v{c+i}, v{p+i}" for i in range(4)]
    wave_scan(to2, f2, half=True)
    put(f2)
    I(f"v_mul_u32_u24 v{tot}, v{c}, v{vMU}")
    for i in range(1, 4): I(f"v_mad_u32_u24 v{tot}, v{c+i}, v{vMU+i}, v{tot}")
    f2 = [f"v_sub_u32 v{ex}, v{to2}, v{own}", f"v_add_u32_sdwa v{eh}, v{to2}, v{to2} {HL}",
          f"v_add_u32_sdwa v{z_}, v{ex}, v{ex} {HL}", f"v_add_u32_sdwa v{el}, v{own}, v{own} {HL}",
          fill.pop(0), f"v_readfirstlane_b32 s{sMORE}, v{vQD}",
          f"v_permlane32_swap_b32 v{z_}, v{eh}", f"v_cndmask_b32 v{el}, 0, v{el}, {sp(sJ3)}",
          f"v_add_u32 v{z_}, v{z_}, v{eh}", fill.pop(0),
          f"v_add_u32 v{eh}, v{z_}, v{el}", fill.pop(0)]
    I(f"s_mov_b32 s{sJ3}, -1")
    I(f"s_mov_b32 s{sJ3+1}, 0")
    wave_scan(tot, f2)
    assert not f2
    stamp("d2")
    I(f"v_sub_u32_sdwa v{el}, v{eh}, v{own} {SDW} src0_sel:DWORD src1_sel:WORD_1")
    I(f"v_readlane_b32 s{sT}, v{tot}, 63")
    epoint(1)
    ASYM = opt("asym", 12)
    I(f"s_bfe_u32 s10, s{sT}, 0xe0002")
    I(f"s_lshr_b32 s{sT}, s{sT}, 16")
    I("s_lshr_b32 s11, s10, 1")
    I(f"s_add_u32 s11, s11, {4*ASYM}")
    I("s_and_b32 s11, s11, -128")
    I(f"s_lshr_b32 s{sF0}, s{sW}, 1")
    I(f"s_mul_i32 s{sF0}, s{sF0}, s10")
    I(f"s_sub_i32 s11, s11, {4*ASYM}")
    I(f"s_sub_i32 s{sF0}, s{sF0}, s{sT}")
    I(f"s_add_i32 s11, s11, s{sF0}")
    I(f"s_add_i32 s10, s10, s{sF0}")
    I(f"s_bitcmp1_b32 s{sW}, 0")
    I(f"s_cselect_b32 s{sEND}, s11, s{sF0}")
    I("s_cselect_b32 s10, s10, s11")
    I(f"v_cmp_gt_i32 vcc, s{sEND}, v{eh}")
    I(f"v_cmp_gt_i32 {sp(sTM)}, s10, v{eh}")
    f0, f1 = sWS0, sWS1
    I(f"s_bcnt1_i32_b32 s{f0}, vcc_lo")
    I(f"s_bcnt1_i32_b32 s10, s{sTM}")
    I(f"s_min_i32 s{f0}, s{f0}, s{hi0}")
    I(f"s_max_i32 s10, s10, s{lo1}")
    I(f"s_min_i32 s{f1}, s10, s{hi1}")
    stamp("d3")
    epoint(2)
    A01, A23, E01, E23, Z1 = sCI, sCUR, sR0, sCNT, sST
    I(f"v_readlane_b32 s{sT}, v{z_}, s{f0}")
    I(f"v_readlane_b32 s{Z1}, v{z_}, s{f1}")
    I(f"s_add_u32 s{sF0}, s{f0}, s{sWIN}")
    I(f"s_add_u32 s{sF1}, s{f1}, s{sWIN}")
    I(f"s_add_u32 s10, s{f0}, 32")
    I(f"s_add_u32 s11, s{f1}, 32")
    I(f"v_readlane_b32 s{A01}, v{ex}, s{f0}")
    I(f"v_readlane_b32 s{E01}, v{ex}, s{f1}")
    I(f"v_readlane_b32 s{A23}, v{ex}, s10")
    I(f"v_readlane_b32 s{E23}, v{ex}, s11")
    I(f"s_sub_u32 s{sEND}, s{Z1}, s{sT}")
    I(f"s_add_u32 s10, s{sEND}, 255")
    I("s_lshr_b32 s10, s10, 8")
    I("s_lshl_b32 s10, s10, 7")
    I(f"s_sub_u32 s10, s10, s{sMORE}")
    I("s_max_i32 s10, s10, 0")
    I(f"s_add_u32 s{sT}, s{sT}, s10")
    I(f"s_add_u32 s10, s{f0}, 16")
    I(f"s_min_u32 s10, s10, s{f1}")
    I(f"s_sub_i32 s11, s{f1}, 16")
    inl, inh, mo = sTM, sTM + 2, sMSK
    I(f"v_cmp_ge_u32 {sp(inl)}, s{sT}, v{el}")
    I(f"v_cmp_ge_u32 {sp(inh)}, s{sT}, v{eh}")
    I(f"v_cmp_gt_i32 vcc, s10, v{ownn}")
    I(f"v_cmp_gt_i32 {sp(sA)}, s11, v{ownn}")
    I(f"v_cmp_le_u32 {sp(mo)}, s{f0}, v{ownn}")
    I(f"v_cmp_gt_u32 {sp(sJ3)}, s{f1}, v{ownn}")
    I(f"s_and_b64 {sp(inl)}, {sp(inl)}, vcc")
    I(f"s_and_b64 {sp(inh)}, {sp(inh)}, vcc")
    I(f"s_or_b64 {sp(inl)}, {sp(inl)}, {sp(sA)}")
    I(f"s_or_b64 {sp(inh)}, {sp(inh)}, {sp(sA)}")
    I(f"s_bcnt1_i32_b32 s{sB0E}, s{inl}")
    I(f"s_bcnt1_i32_b32 s10, s{inh}")
    I(f"s_bcnt1_i32_b32 s11, s{inl+1}")
    I(f"s_bcnt1_i32_b32 s{sSH}, s{inh+1}")
    I(f"v_readlane_b32 s{f0}, v{ex}, s{sB0E}")
    I(f"v_readlane_b32 s10, v{ex}, s10")
    I("s_add_u32 s11, s11, 32")
    I(f"s_add_u32 s{sT}, s{sSH}, 32")
    I(f"v_readlane_b32 s{f1}, v{ex}, s11")
    I(f"v_readlane_b32 s11, v{ex}, s{sT}")
    I(f"v_mov_b32 v{c}, s{sN}")
    I(f"v_cndmask_b32 v{c+1}, 0, v{c}, {sp(inl)}")
    I(f"v_cndmask_b32 v{c}, 0, v{c}, {sp(inh)}")
    I(f"s_and_b64 {sp(mo)}, {sp(mo)}, {sp(sJ3)}")
    Q01, Q23 = f0, f1
    I(f"s_pack_lh_b32_b16 s{Q01}, s{f0}, s10")
    I(f"s_pack_lh_b32_b16 s{Q23}, s{f1}, s11")
    I(f"v_lshl_or_b32 v{c}, v{c}, 16, v{c+1}")
    I(f"s_sub_u32 s{sT}, s{sL}, {R0 - BIAS}")
    I(f"s_pack_ll_b32_b16 s{sT}, s{sT}, s{sT}")
    def bases(lo01, lo23, hi01, hi23, d, keep=None):
        I(f"s_sub_u32 s10, s{hi01}, s{lo01}")
        I(f"s_sub_u32 s11, s{hi23}, s{lo23}")
        I(f"s_mul_i32 s10, s10, 0x10001")
        I(f"s_lshl_b32 vcc_lo, s10, 16")
        I(f"s_pack_hh_b32_b16 s10, s10, s10")
        I(f"s_lshl_b32 vcc_hi, s11, 16")
        I(f"s_add_u32 vcc_hi, vcc_hi, s10")
        if keep is not None:
            I(f"s_add_u32 s{keep}, vcc_hi, s11")
            I(f"s_lshr_b32 s{keep}, s{keep}, 16")
            I(f"s_sub_u32 s{sEND}, s{sEND}, s{keep}")
            I(f"s_cmp_gt_u32 s{sEND}, s{keep}")
            I(f"s_cselect_b32 s{SWP}, {LWB * 0x10001:#x}, 0")
            I(f"s_add_u32 s{sT}, s{sT}, s{SWP}")
        I(f"s_sub_u32 s10, s{sT}, s{lo01}")
        I(f"s_sub_u32 s11, s{sT}, s{lo23}")
        I("s_add_u32 s10, s10, vcc_lo")
        I("s_add_u32 s11, s11, vcc_hi")
        I(f"v_mov_b32 v{d}, s10")
        I(f"v_mov_b32 v{d+1}, s11")
    LEN0, SWP = sJ3, sJ3 + 1
    bases(A01, A23, Q01, Q23, p, LEN0)
    I(f"s_add_u32 s{sT}, s{sT}, {LWB * 0x10001:#x}")
    I(f"s_sub_u32 s{sT}, s{sT}, s{SWP}")
    I(f"s_sub_u32 s{sT}, s{sT}, s{SWP}")
    bases(Q01, Q23, E01, E23, p + 2)
    I(f"v_bfi_b32 v{p}, v{c}, v{p}, v{p+2}")
    I(f"v_bfi_b32 v{p+1}, v{c}, v{p+1}, v{p+3}")
    I(f"s_mov_b32 exec_hi, 0")
    I(f"v_mov_b32 v{p+1}, v{p}")
    I(f"s_mov_b64 exec, {sp(mo)}")
    I(f"v_add_u32 v{ex}, v{ex}, v{p+1}")
    assert LWB & 0x80
    I(f"s_bfe_u32 s10, s{SWP}, 0x10007")
    I(f"s_lshl1_add_u32 s10, s{sW}, s10")
    I("s_lshl_b32 s10, s10, 2")
    I(f"v_cndmask_b32 v{c}, 4, 0, {sp(inl)}")
    I(f"ds_write_b16 v{owna}, v{ex} offset:{HIST + 2}")
    I(f"ds_write_b16_d16_hi v{owna}, v{ex} offset:{HIST + 1024 + 2}")
    I("s_mov_b32 exec_hi, 0")
    I(f"v_xor_b32 v{c}, s10, v{c}")
    I(f"ds_write_b32 v{mapa}, v{c}")
    I("s_mov_b64 exec, -1")
    stamp("d5")
    I(f"s_min_u32 s10, s{sEND}, s{LEN0}")
    I(f"s_max_u32 s{LEN0}, s{sEND}, s{LEN0}")
    I(f"s_mov_b32 s{sEND}, s10")
    I(f"s_add_u32 s10, s{LEN0}, s{sMORE}")
    I(f"s_mul_i32 s11, s{Z1}, {LWB * 65536 // BIAS}")
    I("s_lshr_b32 s11, s11, 16")
    I("s_max_u32 s10, s10, s11")
    I(f"s_cmp_lt_u32 s10, {LWB}")
    I("s_cbranch_scc1 L_LFIT")
    I(f"ds_write_b32 v{sc}, v{one}")
    L("L_LFIT")
    I(f"s_cmp_eq_u32 s{sMORE}, 0")
    I("s_cbranch_scc1 L_XCNR")
    I(f"s_sub_u32 s10, s{sL}, {R0 - BIAS}")
    I(f"s_add_u32 s11, s10, s{LEN0}")
    I(f"v_mov_b32 v{u(0)}, s11")
    I(f"s_add_u32 s11, s10, s{sEND}")
    I(f"s_add_u32 s11, s11, {LWB}")
    I(f"v_mov_b32 v{u(1)}, s11")
    I(f"s_lshl_b32 s10, s{sW}, 3")
    I(f"v_mov_b32 v{u(2)}, s10")
    I(f"ds_write_b64 v{u(2)}, {rr(u(0),2)} offset:{CNT}")
    L("L_XCNR")
    epoint(3)
    put(fill)
    I("s_waitcnt lgkmcnt(0)")
    stamp(8)
    I("s_barrier")
    stamp(9)
    I(f"ds_read_b64 {rr(u(14),2)}, v{sc}")
    for i in range(4):
        for j in range(3):
            I(f"ds_read_u16 v{vA+4*i+j}, v{vA+4*i+j} offset:{HIST + 2}")
    epoint(4)
    def ntiles(l0, l1):
        I(f"s_add_u32 s10, s{l0}, 127")
        I("s_lshr_b32 s10, s10, 7")
        I("s_lshl1_add_u32 s10, s10, -1")
        I(f"s_add_u32 s11, s{l1}, 127")
        I("s_lshr_b32 s11, s11, 6")
        I("s_and_b32 s11, s11, -2")
        I(f"s_max_i32 s{sN}, s10, s11")
        I(f"s_cselect_b32 s10, s{l0}, s{l1}")
        I("s_sub_u32 s10, s10, 1")
        I(f"s_andn2_b32 s{sHF}, 64, s10")
    I(f"s_add_u32 s{sB0E}, s{sB0E}, s{sWIN}")
    I(f"s_add_u32 s11, s{sSH}, s{sWIN}")
    I(f"s_and_b32 s10, s11, 15")
    I(f"s_cmp_lt_u32 s11, s{sB0E}")
    I(f"s_cselect_b32 s{sSH}, s10, 16")
    I(f"s_cmp_lg_u32 s{SWP}, 0")
    I(f"s_cselect_b32 s{sWS1}, s{sF0}, s11")
    I(f"s_cselect_b32 s{sWIN}, s{sF0}, s{sB0E}")
    I(f"s_cselect_b32 s{sF0}, s11, s{sF0}")
    I(f"s_cselect_b32 s{sB0E}, s{sF1}, s{sB0E}")
    I(f"s_cselect_b32 s{sF1}, s11, s{sF1}")
    I(f"s_min_u32 s{sWS0}, s{sF0}, 192")
    I(f"s_min_u32 s{sWS1}, s{sWS1}, 192")
    I(f"s_mov_b32 s{sST}, s{sMORE}")
    I("s_waitcnt lgkmcnt(12)")
    I(f"v_cmp_ne_u32 vcc, 0, v{u(14)}")
    I(f"v_readfirstlane_b32 s{sMORE}, v{u(15)}")
    I("s_cbranch_vccnz L_OVF")
    for i in range(4):
        for j in range(3):
            s_ = 4*i + j
            if j == 0: I("s_waitcnt lgkmcnt(9)")
            I(f"s_mov_b64 exec, {sp(mk(i,j))}")
            I(f"v_add_u32 v{vA+s_}, v{vA+s_}, v{vRK+s_}")
            I(f"ds_write2st64_b32 v{vA+s_}, v{vC+s_}, v{vR1+s_} {W2}")
    I("s_mov_b64 exec, -1")
    ntiles(LEN0, sEND)
    stamp("d6")
    sO0, sO1, sNT, sOK, sCM = sOUT, sD2, sM + 8, sM + 9, sM + 12
    def epi_prep(t0, t1):
        I(f"s_lshl_b32 s{sNT}, s{sW}, 7")
        I(f"s_add_u32 s{sNT}, s{sNT}, {NT}")
        I(f"v_mov_b32 v{t0}, s{sWS0}")
        I("s_mov_b32 exec_lo, 0xffff0000")
        I(f"v_mov_b32 v{t0}, s{sWS1}")
        I("s_mov_b64 exec, 0xffffffff") if False else None
        I("s_mov_b32 exec_lo, -1")
        I("s_mov_b32 exec_hi, 0")
        I(f"v_sub_u32 v{t1}, v{lane}, v{t0}")
        I(f"v_and_b32 v{t1}, 15, v{t1}")
        I(f"v_add_lshl_u32 v{t1}, v{t1}, v{t0}, 5")
        I(f"v_lshl_add_u32 v{t0}, v{lane}, 2, s{sNT}")
        I(f"ds_write_b32 v{t0}, v{t1}")
        I("s_mov_b32 exec_hi, -1")
        I(f"s_mul_i32 s10, s{sB}, {BN}")
        for d, lo_, hi_, k in ((sO1, sWIN, sF1, 1), (sO0, sF0, sB0E, 0)):
            I(f"s_add_u32 s11, s10, s{lo_}")
            I(f"s_add_u32 s{d+2}, s10, s{hi_}")
            I(f"s_min_u32 s11, s11, {N}")
            I(f"s_min_u32 s{d+2}, s{d+2}, {N}")
            I(f"s_sub_u32 s{d+2}, s{d+2}, s11")
            I("s_lshl_b32 s11, s11, 7")
            I(f"s_lshl_b32 s{d+2}, s{d+2}, 7")
            I(f"s_add_u32 s{d}, s{sOUT}, s11")
            I(f"s_addc_u32 s{d+1}, s{sOUT+1}, 0")
            I(f"s_mul_i32 s{sOK+k}, s{lo_}, -128")
        I(f"s_and_b32 s10, s{sSH}, 12")
        I("s_lshl_b32 s10, s10, 2")
        I(f"s_bfm_b64 {sp(sCM)}, 16, s10")
    L("L_CA")
    for x_ in trw(vWA, 0): I(x_)
    I(f"s_cmp_eq_u32 s{sXT}, 0")
    I("s_cbranch_scc1 L_XT2R")
    I(f"s_waitcnt vmcnt({(4 if JE else 0) + (4 if OLP == 2 else 0)})")
    L("L_XT2")
    I(f"s_mov_b64 {sp(sTM)}, 0")
    for i in range(4):
        I(f"v_cmp_ne_u32 vcc, s{sK}, v{xg+4*i+1}")
        I(f"s_and_b64 vcc, vcc, {sp(mk(i,3))}")
        I(f"s_or_b64 {sp(sTM)}, {sp(sTM)}, vcc")
    I("s_cbranch_scc1 L_XT2B")
    I(f"s_cmp_eq_u32 s{sSKIP}, 0")
    I("s_cbranch_scc1 L_XT2R")
    for i in range(4):
        g_ = xg + 4*i
        I(f"s_mov_b64 exec, {sp(mk(i,3))}")
        I(f"s_cbranch_execz L_XS{i}")
        I(f"v_bfe_u32 v{g_+1}, v{g_}, 18, 8")
        I(f"v_lshlrev_b32 v{g_+1}, 2, v{g_+1}")
        I(f"v_add_u32 v{g_+3}, {MAP}, v{g_+1}")
        I(f"ds_read_b32 v{g_+3}, v{g_+3}")
        put(rec_ops(g_, g_+2, 0, vEB+i, g_+1, g_+2))
        I(f"v_and_b32 v{g_}, 0xffff, v{g_}")
        I("s_waitcnt lgkmcnt(0)")
        I(f"ds_add_rtn_u32 v{g_+3}, v{g_+3}, v{one} offset:{CNT}")
        I("s_waitcnt lgkmcnt(0)")
        I(f"ds_write2st64_b32 v{g_+3}, v{g_}, v{g_+2} {W2}")
        L(f"L_XS{i}")
    I("s_mov_b64 exec, -1")
    L("L_XT2R")
    I(f"s_cmp_ge_u32 s{sWP}, 4")
    I("s_cbranch_scc1 L_EP0")
    epi_prep(u(2), u(3))
    L("L_EP0")
    stamp("d7")
    I("s_waitcnt vmcnt(0) lgkmcnt(0)")
    stamp(10)
    I("s_barrier")
    def lens_from_cnt(t):
        I(f"s_lshl_b32 s10, s{sW}, 3")
        I(f"v_mov_b32 v{t}, s10")
        I(f"ds_read_b64 {rr(t,2)}, v{t} offset:{CNT}")
        I("s_waitcnt lgkmcnt(0)")
        I(f"v_readfirstlane_b32 s{sTM}, v{t}")
        I(f"v_readfirstlane_b32 s{sTM+1}, v{t+1}")
        I(f"s_sub_u32 s10, s{sL}, {R0 - BIAS}")
        I(f"s_sub_u32 s{sTM}, s{sTM}, s10")
        I(f"s_sub_u32 s{sTM+1}, s{sTM+1}, s10")
        I(f"s_sub_u32 s{sTM+1}, s{sTM+1}, {LWB}")
        ntiles(sTM, sTM + 1)
    I(f"s_mov_b32 s10, {f2u(1e-6):#x}")
    I(f"ds_read_b128 {rr(vQD,4)}, v{vARX}")
    I(f"ds_read_b32 v{vEI}, v{vARE}")
    stamp(11)
    I(f"v_lshrrev_b32 v{u(0)}, 2, v{lane}")
    I(f"v_and_b32 v{u(0)}, 12, v{u(0)}")
    I(f"v_subrev_u32 v{u(0)}, s{sSH}, v{u(0)}")
    I("s_waitcnt lgkmcnt(0)")
    STAG = opt("stag", 1)
    if STAG:
        I(f"s_cmp_ge_u32 s{sWP}, 4")
        I("s_cbranch_scc1 L_LATE0")
    put(dma_tile())
    L("L_LATE0")
    aw, al, ab = vEO, vEO + 1, vEO + 2
    I(f"s_lshl_b32 s{sTM}, s{sWS0}, 5")
    I(f"s_lshl_b32 s{sTM+1}, s{sWS1}, 5")
    I(f"s_mov_b32 vcc_lo, 0xff00ff00")
    I(f"s_mov_b32 vcc_hi, 0xff00ff00")
    I(f"v_mov_b32 v{aw}, s{sTM+1}")
    I(f"v_mov_b32 v{al}, s{sTM}")
    I(f"v_cndmask_b32 v{aw}, v{aw}, v{al}, vcc")
    I(f"v_and_b32 v{al}, 4, v{lane}")
    I(f"v_lshlrev_b32 v{al}, 6, v{al}")
    I(f"v_lshl_add_u32 v{al}, v{vcS}, 2, v{al}")
    I(f"v_sub_u32 v{al}, v{al}, v{aw}")
    I(f"v_and_b32 v{ab}, 48, v{lane}")
    I(f"s_movk_i32 s{sTM}, {(PL-32)//8}")
    I(f"v_mad_u32_u24 v{ab}, v{vcS}, s{sTM}, v{ab}")
    I(f"s_mov_b32 s{sTM}, {OWN}")
    I(f"v_add3_u32 v{ab}, v{ab}, v{aw}, s{sTM}")
    for t_ in range(2):
        if t_: I(f"v_add_u32 v{al}, 0x80, v{al}")
        I(f"v_and_b32 v{aw}, 0x1ff, v{al}")
        I(f"v_add_u32 v{aw}, v{aw}, v{ab}")
        for s in range(2): I(f"ds_read_b128 {rr(vX+8*t_+4*s,4)}, v{aw} offset:{64*s}")
    I(f"s_mov_b32 s{sTM}, {f2u(-LOG2E):#x}")
    I(f"s_mov_b32 s{sTM+1}, s{sTM}")
    for t_ in range(2):
        for s in range(2):
            I(f"s_waitcnt lgkmcnt({3 - 2*t_ - s})")
            for n in range(4):
                D = vQ + 8*n + 4*t_
                I(m16(D, vX+8*t_+4*s, vWA+8*n+4*s, D if s else None))
    I("s_mov_b32 s11, s10")
    I(f"v_mov_b32 v{u(1)}, s10")
    for i in range(8): I(f"v_mov_b64 {rr(DEN(0,0)+2*i,2)}, {sp(10)}")
    for i in range(4):
        I(f"v_cmp_ne_u32 vcc, {-i}, v{u(0)}")
        I(f"v_mov_b64 {rr(NUM(0,0)+4*i,2)}, 0")
        I(f"v_mov_b64 {rr(NUM(0,0)+4*i+2,2)}, 0")
        I(f"v_cndmask_b32 v{DEN(1,0)+i}, 0, v{u(1)}, vcc")
    for i in range(8): I(f"v_mov_b64 {rr(NUM(1,0)+2*i,2)}, 0")
    for n in range(1, 4):
        for i in range(2): I(f"v_mov_b64 {rr(DEN(1,n)+2*i,2)}, {rr(DEN(1,0)+2*i,2)}")
    for i in range(16): I(f"v_pk_mul_f32 {rr(vQ+2*i,2)}, {rr(vQ+2*i,2)}, {sp(sTM)}")
    for i in range(16): I(f"v_cvt_pk_bf16_f32 v{vCA+i}, v{vQ+2*i}, v{vQ+2*i+1}")
    for i in range(16): I(f"v_permlane32_swap_b32 v{vCA+16+i}, v{vCA+i}")
    I(f"s_mov_b32 s{sCI}, -1")
    I(f"s_mov_b64 {sp(sMSK)}, 0")
    I(f"s_mov_b32 s{sR0}, 0")
    I(f"s_mov_b32 s{sCNT}, 0")
    if STAG:
        I(f"s_cmp_lt_u32 s{sWP}, 4")
        I("s_cbranch_scc1 L_HAD0")
        put(dma_tile())
        epi_prep(u(2), u(3))
        L("L_HAD0")
    I(f"s_cmp_eq_u32 s{sST}, 0")
    I("s_cbranch_scc1 L_GO")
    lens_from_cnt(u(0))
    L("L_GO")
    for m in range(2): I(f"ds_read_u16 v{vEA+m}, v{vARO} offset:{64*m}")
    I(f"ds_read_b128 {rr(vQD,4)}, v{vARX} offset:{LWB}")
    I(f"ds_read_b32 v{vEI}, v{vARE} offset:{LWB}")
    I(f"s_lshr_b32 s10, s{sW}, 1")
    I("s_lshl_b32 s10, s10, 8")
    I(f"s_add_u32 s10, s10, {PRG}")
    I(f"v_lshl_add_u32 v{vPA}, v{lane}, 2, s10")
    I(f"s_bitcmp1_b32 s{sW}, 0")
    I(f"s_cselect_b32 s{sSG}, -1, 1")
    I(f"s_max_i32 s10, s{sN}, 1")
    I("s_sub_u32 s10, s10, 1")
    I(f"s_mul_i32 s10, s{sSG}, s10")
    I("s_lshl_b32 s10, s10, 24")
    I(f"v_mov_b32 v{vQ}, s10")
    I(f"ds_add_u32 v{vPA}, v{vQ}")
    I(f"v_mov_b32 v{vC1}, 0")
    I("s_mov_b32 exec_hi, 0")
    I(f"v_add_u32 v{vC1}, 0x200, v{vcEO}")
    I("s_mov_b32 exec_hi, -1")
    for i in range(16): I(f"v_mov_b64 {rr(vQ+2*i,2)}, 0")
    for i in range(2): I(f"v_mov_b64 {rr(vS+2*i,2)}, 0")
    I("s_waitcnt lgkmcnt(0)")
    put(eafix())
    stamp(12)
    I("s_waitcnt vmcnt(0)")
    stamp(13)
    cstamp(56)
    for m in range(2): I(f"ds_read_b128 {rr(vEO+4*m,4)}, v{vEA+m}")
    for m, s in ORD: I(xread(m, s))
    I(f"s_cmp_lt_i32 s{sN}, 1")
    I("s_cbranch_scc1 L_DONE")
    g = g_mfmas(vP, 0, 0)
    I("s_waitcnt lgkmcnt(4)")
    for x_ in g[:4]: I(x_)
    I("s_waitcnt lgkmcnt(0)")
    for x_ in g[4:]: I(x_)
    I(f"s_mov_b32 s{sT}, 1")
    I(f"s_cmp_eq_u32 s{sN}, 1")
    I("s_cbranch_scc1 L_LT0")
    put(dma_tile())
    for cp in ((1, 0) if FAIR else (0,)):
        sw = lambda par: [f"s_cmp_ge_i32 s{sRM}, {opt('fth', 1)}", f"s_cbranch_scc{1-cp} L_PB{par}{1-cp}", f"L_PB{par}{cp}:"] if FAIR else []
        body = phase(0, 0, cp) + sw(0) + phase(0, 1, cp) + [f"s_cmp_ge_u32 s{sT}, s{sN}", "s_cbranch_scc1 L_LT1"]
        body += phase(1, 0, cp) + sw(1) + phase(1, 1, cp) + [f"s_cmp_lt_u32 s{sT}, s{sN}", f"s_cbranch_scc1 L_LOOP{cp}"]
        check_body(body)
        DBG = opt("dbg", "")
        if "nodma" in DBG: body = [b for b in body if not b.startswith("buffer_load")]
        if "dropS" in DBG: body = [b for b in body if not b.startswith("v_smfmac")]
        if "halfrcp" in DBG: body = [b for b in body if not (b.startswith("v_rcp") and int(b.split("v")[-1]) & 1)]
        if "droppk" in DBG: body = [b for b in body if not b.startswith("v_pk_mul")]
        if "halfx" in DBG: body = [b for b in body if not (b.startswith("v_mfma") and (f"v[{vX+4}:" in b or f"v[{vX+12}:" in b))]
        if "nolds" in DBG: body = [b for b in body if not (b.startswith("ds_read_b128") and f"v{vAX}" in b)]
        emit(".p2align 6")
        L(f"L_LOOP{cp}")
        put(body)
        if cp: I("s_branch L_LT0")
    if opt("cpe", 0):
        I("s_branch L_LT0")
        for cp in ((1, 0) if FAIR else (0,)):
            for par in range(2):
                L(f"L_CE{par}{cp}")
                I(f"s_getpc_b64 {sp(sA)}")
                I(f"v_and_b32 v{vEI}, 0xfc, v{vPA}")
                I(f"v_lshlrev_b32 v{vEI}, 5, v{vEI}")
                I(f"global_load_dword v{vEI}, v{vEI}, {sp(sA)}")
                I(f"s_branch L_ND{par}{cp}")
    for par in range(2):
        L(f"L_LT{par}")
        I(f"s_cmp_lg_u32 s{sHF}, 0")
        I(f"s_cbranch_scc1 L_LH{par}")
        put(last_tile(par, 0))
        I("s_branch L_DONE")
        L(f"L_LH{par}")
        put(last_tile(par, 1))
        if par == 0: I("s_branch L_DONE")
    L("L_DONE")
    I(f"v_mbcnt_lo_u32_b32 v{lane}, -1, 0")
    I(f"v_mbcnt_hi_u32_b32 v{lane}, -1, v{lane}")
    I(f"s_cmp_lg_u32 s{sMORE}, 0")
    I("s_cbranch_scc1 L_SLOW")
    L("L_EPI")
    stamp(14)
    cstamp(57)
    I(f"s_setprio {opt('epr', 0)}")
    assert STAG
    e = lambda i: vCA + i
    xd = vWV
    nd = lambda w, i: e(16 + 4*w + i)
    sO = [sO0, sO1]
    I(f"v_and_b32 v{e(0)}, 48, v{lane}")
    I(f"v_and_b32 v{e(3)}, 15, v{lane}")
    I(f"v_add_u32 v{e(5)}, s{sNT}, v{e(0)}")
    I(f"v_lshl_add_u32 v{e(6)}, v{e(3)}, 2, s{sNT}")
    I("s_waitcnt lgkmcnt(0)")
    for w in range(2): I(f"ds_read_b128 {rr(nd(w,0),4)}, v{e(5)} offset:{64*w}")
    I(f"ds_read2_b32 {rr(e(8),2)}, v{e(6)} offset0:0 offset1:16")
    I(f"v_bfe_u32 v{e(1)}, v{lane}, 2, 3")
    I(f"v_lshrrev_b32 v{e(2)}, 5, v{lane}")
    I(f"v_lshl_add_u32 v{e(1)}, v{e(2)}, 4, v{e(1)}")
    I(f"v_mul_u32_u24 v{e(1)}, {WR}, v{e(1)}")
    I(f"s_mov_b32 s10, {WUI}")
    I(f"v_add3_u32 v{e(1)}, v{e(1)}, v{vcS}, s10")
    wu = [f"ds_read_b64_tr_b16 {rr(vWB+8*n+4*s+2*uu,2)}, v{e(1)} offset:{(32*s + 8*uu)*WR + 32*n}" for s in range(2) for n in range(4) for uu in range(2)]
    for x_ in wu[:8]: I(x_)
    I(f"s_movk_i32 s10, {(PL-32)//8}")
    I(f"v_mad_u32_u24 v{e(0)}, v{vcS}, s10, v{e(0)}")
    I(f"s_mov_b32 s10, {OWN}")
    I(f"v_lshl_add_u32 v{e(5)}, v{e(3)}, 3, s10")
    for w in range(2): I(f"v_lshl_add_u32 v{e(10+w)}, v{e(3)}, 3, s{sOK+w}")
    I(f"s_mov_b64 exec, {sp(sCM)}")
    I(f"s_and_b32 s11, s{sSH}, 19")
    for i in range(4):
        I(f"s_cmp_eq_u32 s11, {i}")
        I(f"s_cbranch_scc1 L_NS{i}")
    L("L_NSR")
    I("s_mov_b64 exec, -1")
    I("s_waitcnt lgkmcnt(8)")
    for w in range(2):
        for i in range(4):
            I(f"v_add_u32 v{e(12)}, v{nd(w,i)}, v{e(5)}")
            I(f"ds_read_b64 {rr(xd+8*w+2*i,2)}, v{e(12)} offset:{i*(PL-32)}")
    for w in range(2):
        I(f"v_add3_u32 v{e(8+w)}, v{e(8+w)}, v{e(0)}, s10")
        for s in range(2): I(f"ds_read_b128 {rr(vX+8*w+4*s,4)}, v{e(8+w)} offset:{64*s}")
    for x_ in wu[8:]: I(x_)
    stamp("e0")
    for w in (1, 0):
        for k in range(16): I(f"v_rcp_f32 v{DEN(w,0)+k}, v{DEN(w,0)+k}")
    I("s_waitcnt lgkmcnt(12)")
    for w in range(2):
        XF = vP if w == 0 else vQ
        for i in range(4):
            for h in range(2):
                I(f"v_lshlrev_b32 v{XF+8*h+i}, 16, v{xd+8*w+2*i+h}")
                I(f"v_and_b32 v{XF+8*h+4+i}, 0xffff0000, v{xd+8*w+2*i+h}")
    for w in range(2):
        XF = vP if w == 0 else vQ
        for k in range(0, 16, 2): I(f"v_pk_fma_f32 {rr(NUM(w,0)+k,2)}, {rr(NUM(w,0)+k,2)}, {rr(DEN(w,0)+k,2)}, {rr(XF+k,2)}")
    I("s_waitcnt lgkmcnt(0)")
    stamp("e1")
    k = 0
    for w in range(2):
        for s in range(2):
            for n in range(4):
                I(m16(NUM(w,n), vX+8*w+4*s, vWB+8*n+4*s, NUM(w,n)))
                if k < 8: I(f"v_lshl_add_u32 v{nd(k>>2,k&3)}, v{nd(k>>2,k&3)}, 2, v{e(10+(k>>2))}")
                k += 1
    for w in range(2):
        XF = vP if w == 0 else vQ
        for i in range(4):
            if not opt("pkm", 1):
                for n in range(4): I(f"v_max_f32 v{NUM(w,n)+i}, v{NUM(w,n)+i}, v{XF+4*n+i}")
            for h in range(2): I(f"v_cvt_pk_bf16_f32 v{DEN(w,0)+2*i+h}, v{NUM(w,2*h)+i}, v{NUM(w,2*h+1)+i}")
            if opt("pkm", 1):
                for h in range(2): I(f"v_pk_max_f16 v{DEN(w,0)+2*i+h}, v{DEN(w,0)+2*i+h}, v{xd+8*w+2*i+h}")
            I(f"buffer_store_dwordx2 {rr(DEN(w,0)+2*i,2)}, v{nd(w,i)}, {sq(sO[w])}, 0 offen{pol(OP)}")
    stamp("e2")
    stamp_out()
    L("L_END")
    I("s_endpgm")
    for i in range(4):
        L(f"L_NS{i}")
        for k in range(8): I(f"v_add_f32 v{vACC+4*k+i}, v{vACC+4*k+i}, v{vACC+32+4*k+i}")
        I("s_branch L_NSR")
    for i in range(4):
        L(f"L_RT{i}")
        I("s_waitcnt vmcnt(0)")
        spin()
        for k in range(i, 4): poll_load(k)
        I("s_waitcnt vmcnt(0)")
        I(f"s_branch L_PW{i}")
    L("L_XT2B")
    spin()
    xload("b")
    I("s_waitcnt vmcnt(0)")
    I("s_branch L_XT2")
    L("L_OVF")
    I(f"s_mov_b32 s{sSKIP}, 0")
    I(f"s_mov_b32 s{sN}, 0")
    I(f"s_mov_b32 s{sST}, 0")
    I(f"s_mov_b32 s{sMORE}, 4")
    I("s_waitcnt lgkmcnt(0)")
    I("s_branch L_CA")
    q = vCA
    L("L_POVF")
    I("s_movk_i32 s11, 1986")
    for i in range(4):
        I(f"v_mul_u32_u24 v{q+i}, s11, v{vHS+i}")
        I(f"v_lshrrev_b32 v{q+i}, 16, v{q+i}")
    I(f"v_add_u32 v{q+5}, v{q}, v{q+1}")
    I(f"v_add_u32 v{q+6}, v{q+5}, v{q+2}")
    I(f"v_add_u32 v{q+7}, v{q+6}, v{q+3}")
    I(f"v_mov_b32 v{q+8}, v{q+7}")
    wave_scan(q + 8)
    I("s_nop 0")
    I(f"v_sub_u32 v{q+4}, v{q+8}, v{q+7}")
    I(f"v_add_u32 v{q+7}, v{q+4}, v{q+6}")
    I(f"v_add_u32 v{q+6}, v{q+4}, v{q+5}")
    I(f"v_add_u32 v{q+5}, v{q+4}, v{q}")
    for i in range(4): I(f"v_lshl_or_b32 v{q+4+i}, v{q+i}, 16, v{q+4+i}")
    I(f"v_add_u32 v{q+8}, {HDR}, v{l16}")
    I(f"ds_write_b128 v{q+8}, {rr(q+4,4)}")
    I("s_lshl_b32 s10, s2, 10")
    I(f"s_add_u32 s10, s10, {WS_HD}")
    I(f"buffer_store_dwordx4 {rr(q+4,4)}, v{l16}, {sq(sWS)}, s10 offen sc1")
    for i in range(8):
        I(f"v_and_b32 v{q+10+i}, 0x3fc, v{vHA+i}")
        I(f"v_add_u32 v{q+10+i}, {HDR}, v{q+10+i}")
        I(f"ds_read_u16 v{q+10+i}, v{q+10+i}")
    I("s_waitcnt lgkmcnt(0)")
    for i in range(4):
        I(f"v_cmpx_lt_u32 vcc, {33*(CAP+8)}, v{vHD+i}")
        I(f"v_or_b32 v{vO+4*i+1}, 0x10000, v{vO+4*i+1}")
        I("s_mov_b64 exec, -1")
    I(f"s_mul_i32 s10, s2, {DCH}")
    I(f"s_mov_b32 s{sTM}, {WS_RECS}")
    I(f"s_mov_b32 s{sTM+1}, {WS_LEID}")
    for i in range(NR):
        I(f"v_mul_u32_u24 v{q}, s11, v{vRK1+i}")
        I(f"v_lshrrev_b32 v{q}, 16, v{q}")
        I(f"v_add3_u32 v{q}, v{q}, v{q+10+i}, s10")
        I(f"v_lshlrev_b32 v{q+1}, 2, v{q}")
        I(f"v_cmpx_le_u32 vcc, {33*(CAP+8)}, v{vRK1+i}")
        I(f"s_cbranch_execz L_PO{i}")
        I(f"buffer_store_byte v{idr(i)}, v{q}, {sq(sWS)}, s{sTM+1} offen sc1")
        I(f"buffer_store_dword v{vSR+i}, v{q+1}, {sq(sWS)}, s{sTM} offen sc1")
        L(f"L_PO{i}")
        I("s_mov_b64 exec, -1")
    I("s_waitcnt vmcnt(0) lgkmcnt(0)")
    I("s_barrier")
    I("s_branch L_POUT")
    SB = 288
    t0, t1, t2, t3 = vP, vP+1, vP+2, vP+3
    L("L_SLOW")
    I("s_setprio 0")
    I(f"s_lshl_b32 s10, s{sWP}, 6")
    I(f"v_add_u32 v{tid}, s10, v{lane}")
    I(f"s_cmp_lg_u32 s{sMORE}, 4")
    I("s_cbranch_scc1 L_SL1")
    I(f"s_mov_b32 s{sMORE}, 1")
    I(f"v_and_b32 v{t0}, 0xff, v{tid}")
    I(f"v_lshlrev_b32 v{t1}, 7, v{t0}")
    I(f"buffer_load_dword v{t2}, v{t1}, {sq(sCEL)}, 0 offen offset:4 sc1")
    I(f"v_lshlrev_b32 v{t1}, 10, v{t0}")
    I(f"s_lshl_b32 s10, s{sB}, 2")
    I(f"s_add_u32 s10, s10, {WS_HD}")
    I(f"buffer_load_dword v{t3}, v{t1}, {sq(sWS)}, s10 offen sc1")
    I(f"v_lshlrev_b32 v{t0}, 2, v{t0}")
    I(f"v_add_u32 v{t0}, {HDR}, v{t0}")
    I("s_waitcnt vmcnt(0)")
    I(f"v_and_b32 v{t2}, 0x10000, v{t2}")
    I(f"v_cmp_ne_u32 vcc, 0, v{t2}")
    I(f"v_mov_b32 v{t2}, {(CAP+8) << 16}")
    I("s_nop 0")
    I(f"v_cndmask_b32 v{t2}, v{t2}, v{t3}, vcc")
    I(f"ds_write_b32 v{t0}, v{t2}")
    I("s_waitcnt lgkmcnt(0)")
    I("s_barrier")
    L("L_SL1")
    I(f"s_add_u32 s{sR0}, s{sR0}, {SB}")
    I(f"s_cmp_lt_u32 s{sR0}, s{sCNT}")
    I("s_cbranch_scc1 L_BATCH")
    L("L_FIND")
    I(f"s_cmp_lg_u64 {sp(sMSK)}, 0")
    I("s_cbranch_scc1 L_GOT")
    I(f"s_add_u32 s{sCI}, s{sCI}, 1")
    I(f"s_cmp_ge_u32 s{sCI}, 4")
    I("s_cbranch_scc1 L_EPI")
    I(f"s_lshl_b32 s10, s{sCI}, 8")
    I(f"s_add_u32 s10, s10, {HDR}")
    I(f"v_lshl_add_u32 v{t0}, v{lane}, 2, s10")
    I(f"ds_read_u16 v{t0}, v{t0} offset:2")
    I("s_waitcnt lgkmcnt(0)")
    I(f"v_cmp_lt_u32 {sp(sMSK)}, s{sSKIP}, v{t0}")
    I("s_nop 3")
    I("s_branch L_FIND")
    L("L_GOT")
    I(f"s_ff1_i32_b64 s10, {sp(sMSK)}")
    I(f"s_bitset0_b64 {sp(sMSK)}, s10")
    I(f"s_lshl_b32 s11, s{sCI}, 6")
    I(f"s_add_u32 s{sCUR}, s10, s11")
    I(f"s_lshl_b32 s10, s{sCUR}, 2")
    I(f"s_add_u32 s10, s10, {HDR}")
    I(f"v_mov_b32 v{t0}, s10")
    I(f"ds_read_b32 v{t0}, v{t0}")
    I("s_waitcnt lgkmcnt(0)")
    I(f"v_readfirstlane_b32 s10, v{t0}")
    I("s_nop 3")
    I(f"s_lshr_b32 s{sCNT}, s10, 16")
    I(f"s_and_b32 s{sST}, s10, 0xffff")
    I(f"s_mov_b32 s{sR0}, s{sSKIP}")
    L("L_BATCH")
    I("s_waitcnt vmcnt(0)")
    I("s_barrier")
    prefill(vP + 4)
    I(f"v_and_b32 v{t0}, 15, v{lane}")
    I(f"v_mul_u32_u24 v{t1}, {LWB}, v{t0}")
    I(f"v_add_u32 v{t1}, {BIAS}, v{t1}")
    I(f"v_lshlrev_b32 v{t0}, 2, v{t0}")
    I(f"ds_write_b32 v{t0}, v{t1} offset:{CNT}")
    t1, t4, t5 = vQ, vQ + 2, vQ + 3
    I(f"v_add_u32 v{t0}, s{sR0}, v{tid}")
    I(f"s_mul_i32 s{sTM+2}, s{sCUR}, {CH}")
    I(f"s_mul_i32 s11, s{sCUR}, {DCH}")
    I(f"s_add_u32 s11, s11, s{sST}")
    I(f"s_lshl_b32 s{sTM}, s11, 2")
    I(f"s_add_u32 s{sTM}, s{sTM}, {WS_RECS}")
    I(f"v_lshl_add_u32 v{t2}, v{t0}, 2, s{sTM}")
    I(f"s_add_u32 s{sTM}, s11, {WS_LEID}")
    I(f"v_add_u32 v{t3}, s{sTM}, v{t0}")
    I(f"s_mul_i32 s10, s{sB}, {RS}")
    I(f"s_lshl_b32 s{sTM}, s{sCUR}, 7")
    I(f"s_add_u32 s10, s10, s{sTM}")
    I(f"s_add_u32 s10, s10, {WS_CELL}")
    I(f"v_and_b32 v{t4}, 7, v{t0}")
    I(f"v_lshl_add_u32 v{t4}, v{t4}, 4, s10")
    I(f"v_lshrrev_b32 v{t5}, 3, v{t0}")
    I(f"v_cmpx_gt_u32 vcc, {CAP+8}, v{t0}")
    I(f"v_add_u32 v{t2}, {XOFF}, v{t4}")
    I(f"v_add_u32 v{t3}, 8, v{t2}")
    I(f"v_cmpx_gt_u32 vcc, {CAP}, v{t0}")
    I(f"v_lshl_add_u32 v{t2}, v{t5}, 2, v{t4}")
    I(f"v_add3_u32 v{t3}, v{t4}, v{t5}, 12")
    I("s_mov_b64 exec, -1")
    I(f"s_add_u32 s10, s{sR0}, {SB}")
    I(f"s_min_u32 s10, s10, s{sCNT}")
    I(f"v_cmp_gt_u32 vcc, s10, v{t0}")
    I(f"v_mov_b32 v{t4}, 0x7ffffff0")
    I("s_nop 0")
    I(f"v_cndmask_b32 v{t2}, v{t4}, v{t2}, vcc")
    I(f"v_cndmask_b32 v{t3}, v{t4}, v{t3}, vcc")
    I(f"buffer_load_dwordx2 {rr(t1,2)}, v{t2}, {sq(sWS)}, 0 offen sc1")
    I(f"buffer_load_ubyte v{t3}, v{t3}, {sq(sWS)}, 0 offen sc1")
    I("s_waitcnt lgkmcnt(0)")
    I("s_barrier")
    I("s_waitcnt vmcnt(0)")
    I(f"v_cmp_ne_u32 vcc, 3, v{t5}")
    I(f"v_cmp_eq_u32 {sp(sA)}, s{sK}, v{t1+1}")
    I(f"v_mov_b32 v{t4}, s{sTM+2}")
    I(f"s_or_b64 exec, vcc, {sp(sA)}")
    I(f"v_cmpx_ne_u32 vcc, 0, v{t1}")
    I(f"v_bfe_u32 v{t2}, v{t1}, 18, 8")
    I(f"v_lshlrev_b32 v{t2}, 2, v{t2}")
    I(f"v_add_u32 v{t0}, {MAP}, v{t2}")
    I(f"ds_read_b32 v{t0}, v{t0}")
    put(rec_ops(t1, t3, 0, t4, t2, t3))
    I(f"v_mov_b32 v{t2}, 4")
    I(f"v_and_b32 v{t1}, 0xffff, v{t1}")
    I("s_waitcnt lgkmcnt(0)")
    I(f"ds_add_rtn_u32 v{t0}, v{t0}, v{t2} offset:{CNT}")
    I("s_waitcnt lgkmcnt(0)")
    I(f"ds_write2st64_b32 v{t0}, v{t1}, v{t3} {W2}")
    I("s_mov_b64 exec, -1")
    I("s_waitcnt lgkmcnt(0)")
    I("s_barrier")
    listaddr(t2)
    I(f"ds_read_b128 {rr(vQD,4)}, v{vARX}")
    I(f"ds_read_b32 v{vEI}, v{vARE}")
    lens_from_cnt(t2)
    put(dma_tile())
    L("L_LAST")
    I("s_branch L_GO")

def regs_of(tok):
    tok = tok.strip()
    m = re.fullmatch(r"v\[(\d+):(\d+)\]", tok)
    if m: return list(range(int(m.group(1)), int(m.group(2)) + 1))
    m = re.fullmatch(r"v(\d+)", tok)
    if m: return [int(m.group(1))]
    return []
def parse(ins):
    op, _, rest = ins.partition(" ")
    ops = [o.strip().split(" ")[0] for o in rest.split(",")] if rest else []
    if op.startswith("ds_read") or "rtn" in op: return "ds", regs_of(ops[0]), regs_of(ops[1])
    return "other", [], sum((regs_of(o) for o in ops), [])
def check_body(body):
    s2 = [b for b in body if not b.endswith(":")]
    pend = []
    for i, ins in enumerate(s2 * 3):
        k, d, s = parse(ins)
        m = re.search(r"lgkmcnt\((\d+)\)", ins)
        if m:
            while len(pend) > int(m.group(1)): pend.pop(0)
        pr = set(sum(pend, []))
        for r in d + s:
            assert r not in pr, f"pending LDS reg v{r} used by {ins} @{i}"
        if k == "ds":
            pend.append(d); assert len(pend) <= 15

hdr = open("/code/" + NAME + ".s.ref").read().split("\n")
for l in hdr:
    if l.startswith("; Override"): break
    out.append(l)
if opt("list", 0): out.append(f"; @launch kernel={NAME}_kernel grid=(256,1,1) block=(512,1,1) lds={LDS}")
else: out.append(f"; @launch grid=(256,1,1) block=(512,1,1) lds={LDS}")
LEAK = opt("leak", "")
if LEAK: out.append("; @launch kernel=leak_kernel grid=(1,1,1) block=(256,1,1) lds=64")
emit('.amdgcn_target "amdgcn-amd-amdhsa--gfx950"\n.text')
kernel()
if LEAK:
    kind, nm = LEAK[0], LEAK[1:]
    si = STN.index(nm)
    emit(".globl leak_kernel\n.p2align 8\n.type leak_kernel,@function\nleak_kernel:")
    I("s_cmp_lg_u32 s2, 0")
    I("s_cbranch_scc1 LK_END")
    I("s_load_dwordx2 s[4:5], s[0:1], 88")
    I("v_min_u32 v1, 254, v0")
    I("v_lshlrev_b32 v1, 11, v1")
    I("v_mov_b32 v2, 0")
    I("v_mov_b32 v3, 0x7fffffff")
    I("v_mov_b32 v4, 0")
    I("ds_write2_b32 v2, v3, v4 offset0:0 offset1:1")
    I("s_waitcnt lgkmcnt(0)")
    I(f"s_add_u32 s4, s4, {WS_TS}")
    I("s_addc_u32 s5, s5, 0")
    I("global_load_dword v5, v2, s[4:5]")
    for w in range(8):
        I(f"global_load_dword v{8+w}, v1, s[4:5] offset:{256*w}")
        I(f"global_load_dword v{16+w}, v1, s[4:5] offset:{256*w + 4*si}")
    I("s_barrier")
    I("s_waitcnt vmcnt(0)")
    I("v_subrev_u32 v5, 1000, v5")
    for w in range(16): I(f"v_sub_u32 v{8+w}, v{8+w}, v5")
    for w in range(8):
        I(f"ds_min_u32 v2, v{8+w}")
        I(f"ds_{'max' if kind == 'm' else 'add'}_u32 v2, v{16+w} offset:4")
    I("s_waitcnt lgkmcnt(0)")
    I("s_barrier")
    I("ds_read_b64 v[6:7], v2")
    I("s_waitcnt lgkmcnt(0)")
    I("v_lshlrev_b32 v6, 2, v6")
    I("v_lshlrev_b32 v7, 2, v7" if kind == 'm' else "v_lshrrev_b32 v7, 9, v7")
    I("v_sub_u32 v6, v7, v6")
    I("v_min_u32 v6, 20000, v6")
    I("s_nop 0")
    I("v_readfirstlane_b32 s6, v6")
    I("s_memrealtime s[8:9]")
    I("s_waitcnt lgkmcnt(0)")
    L("LK_L")
    I("s_memrealtime s[10:11]")
    I("s_waitcnt lgkmcnt(0)")
    I("s_sub_u32 s7, s10, s8")
    I("s_cmp_lt_u32 s7, s6")
    I("s_cbranch_scc1 LK_L")
    L("LK_END")
    I("s_endpgm")
emit(f""".section .rodata,"a"
.p2align 6
.amdhsa_kernel {NAME}_kernel
  .amdhsa_next_free_vgpr 256
  .amdhsa_next_free_sgpr 102
  .amdhsa_accum_offset 256
  .amdhsa_group_segment_fixed_size 0
  .amdhsa_kernarg_size 96
  .amdhsa_user_sgpr_count 2
  .amdhsa_user_sgpr_kernarg_segment_ptr 1
  .amdhsa_system_sgpr_workgroup_id_x 1
.end_amdhsa_kernel""")
if LEAK:
    emit(""".p2align 6
.amdhsa_kernel leak_kernel
  .amdhsa_next_free_vgpr 32
  .amdhsa_next_free_sgpr 16
  .amdhsa_accum_offset 32
  .amdhsa_group_segment_fixed_size 0
  .amdhsa_kernarg_size 96
  .amdhsa_user_sgpr_count 2
  .amdhsa_user_sgpr_kernarg_segment_ptr 1
  .amdhsa_system_sgpr_workgroup_id_x 1
.end_amdhsa_kernel""")
if TS: out.insert(0, "; stamps " + " ".join(STN))
path = sys.argv[1] if len(sys.argv) > 1 else "/code/" + NAME + ".s"
open(path, "w").write("\n".join(out) + "\n")
print("wrote", path, len(out), "lines; lds", LDS)
```

```python
import sys, re, struct

NAME = "standalone__edge_featured_mpnn_gatedgcn__graph"
OPT = dict(kv.split("=") for kv in sys.argv[2:])
def opt(k, d):
    v = OPT.get(k)
    if v is None: return d
    return type(d)(v)

N, E = 50000, 800000
CH = 3128
BN = 196
XIL = opt('xil', 0)
RS = (513 if XIL else opt('rs', 257)) * 128
XOFF = 256 * 128 if XIL else 256 * RS
WS_CELL = 0x10000
WS_RECS = 0x1200000
WS_LEID = 0x1680000
WS_HD = 0x17a0000
WS_USED = 0x1800000
WS_TS = 0x3000000
KINC = 0x02020202
CAP = 24
LOG2E = 1.4426950408889634
def f2u(f): return struct.unpack("<I", struct.pack("<f", f))[0]

out = []
def emit(s=""):
    for l in s.strip("\n").split("\n"):
        out.append(l.rstrip())
def I(s): out.append("    " + s)
def L(s): out.append(s + ":")
def C(s): out.append("    ; " + s)
def put(seq):
    for s in seq:
        if s.endswith(":"): L(s[:-1])
        else: I(s)
def rr(a, n): return f"v[{a}:{a+n-1}]"
def sp(a): return f"s[{a}:{a+1}]"
def sq(a): return f"s[{a}:{a+3}]"
def pol(p): return (" " + p.replace("_", " ")) if p else ""

def srd(d, lo, size, add=None, stride=0):
    if add is None:
        I(f"s_mov_b32 s{d}, s{lo}")
        I(f"s_mov_b32 s{d+1}, s{lo+1}" if not stride else f"s_or_b32 s{d+1}, s{lo+1}, {stride << 16:#x}")
    else:
        I(f"s_add_u32 s{d}, s{lo}, {add}")
        I(f"s_addc_u32 s{d+1}, s{lo+1}, 0")
    I(f"s_mov_b32 s{d+2}, {size}")
    I(f"s_mov_b32 s{d+3}, 0x20000")

def wave_scan(v, fill=None, half=False):
    def gap():
        if fill and len(fill) >= 2:
            I(fill.pop(0)); I(fill.pop(0))
        else: I("s_nop 1")
    for sh in (1, 2, 4, 8):
        gap()
        I(f"v_add_u32_dpp v{v}, v{v}, v{v} row_shr:{sh} row_mask:0xf bank_mask:0xf bound_ctrl:0")
    gap()
    I(f"v_add_u32_dpp v{v}, v{v}, v{v} row_bcast:15 row_mask:0xa bank_mask:0xf")
    if half: return
    gap()
    I(f"v_add_u32_dpp v{v}, v{v}, v{v} row_bcast:31 row_mask:0xc bank_mask:0xf")

TAB, ZROW, CNT, FLAG = 0, 512, 576, 640
HIST = 1024
ESTG = HIST + 4096
HIST1 = ESTG
EARLY = ESTG + 8192
LWB = 288 * 4
R0 = EARLY + 32768
R1 = R0 + 16 * LWB
XSTG = R1 + 16 * LWB
XI = 1056
SLOT = 4 * XI
OWN = XSTG + 8 * SLOT
PL = 52 * 128 + 32
WR = 160
WUI = OWN + 4 * PL
MAP = WUI + 64 * WR
HDR = MAP + 1024
PRG = HDR + 1024
NT = PRG + 1024
LDS = NT + 1024
WBI, WVI, WCI = EARLY, EARLY + 64 * WR, EARLY + 128 * WR
WAI = XSTG + 8192
LROW = 160
CIMG = R0
assert CIMG + 256 * LROW <= WAI and LDS <= 163840, LDS
BIAS = 8192
assert R1 < 65536 and R0 % 256 == 0 and R1 % 256 == 0
W2 = f"offset0:{(R0-BIAS)//256} offset1:{(R1-BIAS)//256}"

vWB, vWV, vCA, vACC = 0, 32, 64, 96
vX, vEO, vS = 160, 176, 184
vP, vQ, vR = 188, 204, 220
vQD = 236
vEI, vCH, vIDX, vCP, vAX, vcEO, vcS, vARX, vARE, vARO, vARS, vEA = 240, 241, 242, 243, 244, 245, 246, 247, 248, 249, 250, 251
lane, vTS, tid = 253, 254, 255
vC1, vPA = lane, tid
DEN = lambda w, n: vACC + 32 * w + 4 * n
NUM = lambda w, n: vACC + 32 * w + 16 + 4 * n
def m16(d, a, b, c=None):
    return f"v_mfma_f32_16x16x32_bf16 {rr(d,4)}, {rr(a,4)}, {rr(b,4)}, " + ("0" if c is None else rr(c, 4))
def s16(d, b): return f"v_smfmac_f32_16x16x64_bf16 {rr(d,4)}, {rr(vS,4)}, {rr(b,8)}, v{vIDX}"

sWP, sW, sB, sK = 3, 4, 5, 6
sWIN, sF0, sF1, sL = 7, 8, 9, 12
sA, sBt = 10, 11
sSTG, sES, s128 = 13, 14, 15
pX, pE, pSRC, pDST, pWA, pWB, pWC, pWU, pWV, pOUT, pDBG, pWS = 16, 18, 20, 22, 24, 26, 28, 30, 32, 34, 36, 38
sT, sN, sFM, sMORE, sSKIP, sXT, sWS0, sWS1, sB0E, sSH = 16, 17, 18, 19, 20, 21, 22, 23, 24, 25
sCI, sCUR, sR0, sCNT, sST, sEND = 26, 27, 28, 29, 30, 31
sMSK = 32
sTM = 34
sX, sEP, sOUT, sWS, sCEL, sD2 = 40, 44, 48, 52, 56, 60
sM = 64
sJ3, sEM = 96, 98
sSP = 100
sHF = 99
sSG, sRM = 101, 96

TS = opt("ts", 0)
STN = []
YP = opt("yp", "")
def stamp(i):
    if str(i) in YP.split("_"):
        k = YP.split("_").index(str(i))
        I(f"s_cmp_lt_u32 s{sWP}, 4")
        I(f"s_cbranch_scc1 L_YP{k}")
        I(f"s_setprio {1 - (k & 1)}")
        L(f"L_YP{k}")
    if not TS: return
    if isinstance(i, str) and i[0] not in opt("tsx", ""): return
    STN.append(str(i)); i = len(STN) - 1
    I("s_memrealtime vcc" if TS == 1 else "s_memtime vcc")
    I("s_waitcnt lgkmcnt(0)")
    I(f"v_writelane_b32 v{vTS}, vcc_lo, {i}")
def stamp_out():
    if not TS: return
    I("s_waitcnt vmcnt(0)")
    stamp(15)
    I("s_memtime vcc")
    I("s_waitcnt lgkmcnt(0)")
    I(f"v_writelane_b32 v{vTS}, vcc_lo, 58")
    I(f"v_writelane_b32 v{vTS}, s{sN}, 59")
    I(f"v_writelane_b32 v{vTS}, s{sSP}, 60")
    I("s_getreg_b32 s10, hwreg(HW_REG_XCC_ID)")
    I(f"v_writelane_b32 v{vTS}, s10, 55")
    I("s_lshl_b32 s10, s2, 3")
    I(f"s_add_u32 s10, s10, s{sWP}")
    I("s_lshl_b32 s10, s10, 8")
    I(f"s_add_u32 s10, s10, {WS_TS}")
    I(f"v_lshl_add_u32 v{vP}, v{lane}, 2, s10")
    I(f"global_store_dword v{vP}, v{vTS}, {sp(pWS)}")
def cstamp(i):
    if not TS: return
    I("s_memtime vcc")
    I("s_waitcnt lgkmcnt(0)")
    I(f"v_writelane_b32 v{vTS}, vcc_lo, {i}")

LD_P = opt("ldp", "nt")
XP, EP, OP = opt("xp", ""), opt("ep", ""), opt("op", "sc1")
STP = opt("stp", "sc1")
MG = opt("mg", 1)
JE = opt("je", 4 if MG else 2)
EMASK = ((1 << JE) - 1) * 0x01010101
DCH = CH + 1024
SDW = "dst_sel:DWORD dst_unused:UNUSED_PAD"

def dma_tile():
    r = []
    for i in range(4):
        r.append(f"s_add_u32 m0, s{sSTG}, {i*XI}")
        r.append(f"v_mad_u32_u16 v{vQD+i}, v{vQD+i}, s{s128}, v{vCP}")
        r.append(f"buffer_load_dwordx4 v{vQD+i}, {sq(sX)}, 0 offen{pol(XP)} lds")
    r.append(f"s_mov_b32 m0, s{sES}")
    r.append(f"v_and_b32 v{vEI}, 0xfffff, v{vEI}")
    r.append(f"buffer_load_dwordx4 {rr(vEI,2)}, {sq(sEP)}, 0 idxen offen{pol(EP)} lds")
    return r

ORD = [(0, 0), (1, 0), (0, 1), (1, 1)]
def xread(m, s): return f"ds_read_b128 {rr(vX+8*m+4*s,4)}, v{vAX} offset:{512*m + 64*s}"
def g_mfmas(D, ft, w):
    g = [m16(D+8*n+4*m, vEO+4*m, vCA+16*w+8*ft+4*n) for m in range(2) for n in range(2)]
    g += [m16(D+8*n+4*m, vX+8*m+4*s, vWB+16*ft+8*n+4*s, D+8*n+4*m) for m, s in ORD for n in range(2)]
    return g
def h_mfmas(ft):
    return [m16(vQ+8*n+4*m, vX+8*m+4*s, vWV+16*ft+8*n+4*s, None if s == 0 else vQ+8*n+4*m) for m, s in ORD for n in range(2)]
def s_num(w, ft): return [s16(NUM(w, 2*ft+n), vQ+8*n) for n in range(2)]
def s_den(w, ft, G): return [s16(DEN(w, 2*ft+n), G+8*n) for n in range(2)]

def eafix():
    return [f"v_bfi_b32 v{vEA+m}, 31, v{vcEO}, v{vEA+m}" for m in range(2)] + [f"v_max_u32 v{vEA}, v{vEA}, v{vcEO}", f"v_max_u32 v{vEA+1}, v{vEA+1}, v{vC1}"]
LV = [int(c, 16) for c in opt("lv", "015a")]
PAT = opt("pat", "1" * 11 + "5")
FAIR = opt("fair", 1)
BST = opt("bst", 10)
def phase(par, ft, cp=0):
    G, Go = (vP, vR) if ft == 0 else (vR, vP)
    nf = 1 - ft
    wn = par if ft == 0 else par ^ 1
    wp = par ^ 1 if ft == 0 else par
    s1 = [[x] for x in s_num(wp, nf) + h_mfmas(ft) + s_den(wp, nf, Go)]
    s2 = [[x] for x in g_mfmas(Go, nf, wn)]
    if ft == 0:
        o = par * LWB
        s1[0] += [f"ds_read_u16 v{vQD+u}, v{vARS} offset:{o + 16*u}" for u in range(2)]
        s1[8] += ["s_waitcnt lgkmcnt(0)"] + [f"v_bfi_b32 v{vQD+u}, 31, v{vcS}, v{vQD+u}" for u in range(2)]
        if FAIR:
            s1[0] += [f"ds_add_rtn_u32 v{vQD+2}, v{vPA}, v{vIDX}"]
            s1[8] += [f"v_readfirstlane_b32 s{sRM}, v{vQD+2}"]
            s2[1] += [f"s_ashr_i32 s{sRM}, s{sRM}, 24", f"s_mul_i32 s{sRM}, s{sRM}, s{sSG}"]
        o1 = 128 if par else LWB
        s2[0] += [f"ds_read_b64_tr_b16 {rr(vS+2*u,2)}, v{vQD+u}" for u in range(2)]
        s2[0] += [f"ds_read_u16 v{vEA+m}, v{vARO} offset:{o1 + 64*m}" for m in range(2)]
        s2[6] += ["s_waitcnt lgkmcnt(0)"] + eafix()
        s2[6] += [f"ds_read_b128 {rr(vQD,4)}, v{vARX} offset:{o + 128}", f"ds_read_b32 v{vEI}, v{vARE} offset:{o + 128}",
                  f"s_add_u32 s{sT}, s{sT}, 1"]
        if par: s2[7] += [f"v_add_u32 v{r}, 0x80, v{r}" for r in (vARX, vARE, vARO, vARS)]
    else:
        s1[2] = ["s_waitcnt vmcnt(0)"] + [f"ds_read_b128 {rr(vEO+4*m,4)}, v{vEA+m}" for m in range(2)] + s1[2]
        for i, (m, s) in enumerate(ORD): s1[3+2*i].append(xread(m, s))
        s2[0] = ["s_waitcnt lgkmcnt(4)"] + s2[0]
        for i in range(4): s2[4+2*i] = [f"s_waitcnt lgkmcnt({3-i})"] + s2[4+2*i]
        DSP = opt("dsp", "")
        if DSP:
            d = dma_tile(); first = min(int(c, 16) for c in DSP)
            for i in range(4): s2[4+2*i] = s2[4+2*i][1:] if 4+2*i > first else s2[4+2*i]
            s2[first] = ["s_waitcnt lgkmcnt(0)"] + [x for x in s2[first] if not x.startswith("s_waitcnt")]
            for k, c in enumerate(DSP): s2[int(c, 16)] += d[3*k:3*k+3]
        tgt = f"L_CE{par}{cp}" if opt("cpe", 0) else f"L_ND{par}{cp}"
        if not DSP: s2[10] += [f"s_cmp_lt_u32 s{sT}, s{sN}", f"s_cbranch_scc0 {tgt}"] + dma_tile() + [f"L_ND{par}{cp}:"]
    def sec(mf, op):
        r = []; k = 0
        for i, m in enumerate(mf):
            if FAIR:
                if i == 0: r.append(f"s_setprio {cp}")
                if i == BST: r.append("s_setprio 3")
            elif i in LV: r.append(f"s_setprio {LV.index(i)}")
            r += m
            for _ in range(int(PAT[i])):
                r.append(f"{op} v{G+k}, v{G+k}"); k += 1
        assert k == 16
        return r
    r = []
    if opt("tt", 0) and ft == 0:
        r += ["s_memrealtime vcc", "s_memtime s[10:11]", f"s_add_u32 m0, s{sT}, 17", "s_waitcnt lgkmcnt(0)", f"v_writelane_b32 v{vTS}, vcc_lo, m0",
              f"s_add_u32 m0, s{sT}, 35", "s_nop 0", f"v_writelane_b32 v{vTS}, s10, m0"]
    r += sec(s1, "v_exp_f32")
    r += [f"v_pk_add_f32 {rr(G+2*i,2)}, {rr(G+2*i,2)}, 1.0 op_sel_hi:[1,0]" for i in range(8)]
    r += sec(s2, "v_rcp_f32")
    r += [f"v_pk_mul_f32 {rr(vQ+2*i,2)}, {rr(G+2*i,2)}, {rr(vQ+2*i,2)}" for i in range(8)]
    return r

def last_tile(par, half):
    keep = (lambda x: int(re.match(r"\S+ v\[(\d+)", x).group(1)) % 8 == (vP % 8)) if half else (lambda x: True)
    regs = [k for k in range(16) if not (half and k & 4)]
    def sec(mf, op, G):
        r = [f"s_setprio {opt('lpr', 0)}"]; k = 0
        tail = min(len(regs), 4 if half else 5)
        for i, m in enumerate(mf):
            if i == len(mf) - 1: r.append("s_setprio 3")
            r += m
            e_ = (len(regs) - tail) * (i + 1) // (len(mf) - 1) if i < len(mf) - 1 else len(regs)
            while k < e_:
                r.append(f"{op} v{G+regs[k]}, v{G+regs[k]}"); k += 1
        while k < len(regs):
            r.append(f"{op} v{G+regs[k]}, v{G+regs[k]}"); k += 1
        return r
    r = []
    for ft in range(2):
        G, Go = (vP, vR) if ft == 0 else (vR, vP)
        wp = par ^ 1 if ft == 0 else par
        s1 = [[x] for x in s_num(wp, 1-ft) + [h for h in h_mfmas(ft) if keep(h)] + s_den(wp, 1-ft, Go)]
        s2 = [[x] for x in g_mfmas(Go, 1, par) if keep(x)] if ft == 0 else []
        if ft == 0:
            s1[0] += [f"ds_read_u16 v{vQD+u}, v{vARS} offset:{par*LWB + 16*u}" for u in range(2)]
            s1[-2] += ["s_waitcnt lgkmcnt(0)"] + [f"v_bfi_b32 v{vQD+u}, 31, v{vcS}, v{vQD+u}" for u in range(2)]
            s2[0] += [f"ds_read_b64_tr_b16 {rr(vS+2*u,2)}, v{vQD+u}" for u in range(2)]
        else:
            s1[0] = ["s_waitcnt lgkmcnt(0)"] + s1[0]
        r += sec(s1, "v_exp_f32", G)
        r += [f"v_pk_add_f32 {rr(G+k,2)}, {rr(G+k,2)}, 1.0 op_sel_hi:[1,0]" for k in regs[::2]]
        r += sec(s2, "v_rcp_f32", G)
        r += [f"v_pk_mul_f32 {rr(vQ+k,2)}, {rr(G+k,2)}, {rr(vQ+k,2)}" for k in regs[::2]]
    return r + s_den(par, 1, vR) + s_num(par, 1)

def listaddr(t0):
    I(f"v_lshrrev_b32 v{t0}, 3, v{lane}")
    I(f"v_lshl_add_u32 v{vARX}, v{t0}, 4, s{sL}")
    I(f"s_add_u32 s10, s{sL}, {R1-R0}")
    I(f"v_lshrrev_b32 v{t0}, 1, v{lane}")
    I(f"v_lshl_add_u32 v{vARE}, v{t0}, 2, s10")
    I(f"s_add_u32 s10, s10, 2")
    I(f"v_and_b32 v{t0}, 48, v{lane}")
    I(f"v_lshl_add_u32 v{vARS}, v{t0}, 1, s10")
    I(f"v_and_b32 v{t0}, 12, v{lane}")
    I(f"v_add_u32 v{vARS}, v{vARS}, v{t0}")
    I(f"v_lshrrev_b32 v{t0}, 5, v{lane}")
    I(f"v_mul_u32_u24 v{vARO}, {R1-R0}, v{t0}")
    I(f"v_and_b32 v{t0}, 15, v{lane}")
    I(f"v_lshl_add_u32 v{vARO}, v{t0}, 2, v{vARO}")
    I(f"s_add_u32 s10, s{sL}, 2")
    I(f"v_add_u32 v{vARO}, s10, v{vARO}")

def prefill(t):
    for d in range(2): I(f"v_mov_b64 {rr(t+2*d,2)}, 0")
    for d in range(4): I(f"v_mov_b32 v{t+4+d}, {(ZROW << 16) | 0xfffff:#x}")
    I(f"v_lshl_add_u32 v{t+8}, v{lane}, 4, s{sL}")
    for o in (0, 1024, 2*LWB - 1024):
        I(f"ds_write_b128 v{t+8}, {rr(t,4)} offset:{o}")
        I(f"ds_write_b128 v{t+8}, {rr(t+4,4)} offset:{o + R1 - R0}")

def kernel():
    emit(f"""
.globl {NAME}_kernel
.p2align 8
.type {NAME}_kernel,@function
{NAME}_kernel:""")
    FH = opt("fh", 1)
    vD, vSR, vT16 = vACC + 32, vACC, vR + 12
    I("s_load_dwordx16 s[16:31], s[0:1], 0")
    I("s_load_dwordx8 s[32:39], s[0:1], 64")
    CPN = opt("cpn", 8)
    if opt("cpf", 1):
        I(f"s_getpc_b64 {sp(sM)}")
        L("L_PC")
        if CPN == 8: I("s_and_b32 s3, s2, -8")
        else:
            I("s_lshr_b32 s3, s2, 3")
            I(f"s_and_b32 s3, s3, {256//CPN - 1}")
            I(f"s_mul_i32 s3, s3, {CPN}")
        I("v_add_lshl_u32 v1, v0, s3, 7")
        I("v_min_u32 v1, L_LAST-L_PC, v1")
        I(f"v_cmpx_gt_u32 vcc, {CPN}, v0")
        I("s_cbranch_execz L_NOCPF")
        I(f"global_load_dword v{vEA}, v1, {sp(sM)}")
        L("L_NOCPF")
        I("s_mov_b64 exec, -1")
    I("s_cmp_ge_u32 s2, 256")
    I("s_cbranch_scc1 L_END")
    if FH:
        I(f"s_mul_i32 s{sA}, s2, {CH*4}")
        I(f"v_lshl_add_u32 v1, v0, 4, s{sA}")
        I(f"s_add_u32 s{sBt}, s{sA}, {CH*4}")
        I(f"s_min_u32 s{sBt}, s{sBt}, {E*4}")
        BAL = opt("bal", 0)
        if BAL:
            I(f"s_add_u32 s{sA}, s{sA}, 0x2000")
            I(f"v_lshl_add_u32 v2, v0, 3, s{sA}")
            I(f"s_add_u32 s{sA}, s{sA}, 0x1000")
            I(f"v_lshl_add_u32 v3, v0, 2, s{sA}")
            I(f"v_cmp_gt_u32 {sp(sM+6)}, s{sBt}, v2")
            I(f"v_min_u32 v2, {E*4 - 8}, v2")
        else: I("v_add_u32 v2, 0x2000, v1")
        I("s_waitcnt lgkmcnt(0)")
        I(f"global_load_dwordx4 {rr(vD,4)}, v1, {sp(pDST)}{pol(LD_P)}")
        if BAL:
            I(f"global_load_dwordx2 {rr(vD+4,2)}, v2, {sp(pDST)}{pol(LD_P)}")
            I(f"global_load_dwordx4 {rr(vSR,4)}, v1, {sp(pSRC)}{pol(LD_P)}")
            I(f"global_load_dwordx2 {rr(vSR+4,2)}, v2, {sp(pSRC)}{pol(LD_P)}")
            I(f"v_cmpx_gt_u32 {sp(sM+28)}, s{sBt}, v3")
            I("s_cbranch_execz L_NO7")
            I(f"global_load_dword v{vD+6}, v3, {sp(pDST)}{pol(LD_P)}")
            I(f"global_load_dword v{vSR+6}, v3, {sp(pSRC)}{pol(LD_P)}")
        else:
            I(f"global_load_dwordx4 {rr(vSR,4)}, v1, {sp(pSRC)}{pol(LD_P)}")
            def group2():
                I(f"v_cmpx_gt_u32 {sp(sM+6)}, s{sBt}, v2")
                I("s_cbranch_execz L_NO8")
                I(f"global_load_dwordx4 {rr(vD+4,4)}, v2, {sp(pDST)}{pol(LD_P)}")
                I(f"global_load_dwordx4 {rr(vSR+4,4)}, v2, {sp(pSRC)}{pol(LD_P)}")
                L("L_NO8")
                I("s_mov_b64 exec, -1")
            G2 = opt("g2", 0)
            if G2 == 0: group2()
        L("L_NO7")
        I("s_mov_b64 exec, -1")
        KV = opt("kv", 0)
        if KV:
            I("v_mov_b32 v1, 0")
            I(f"global_load_dword v{vEA+1}, v1, {sp(pWS)}")
        else: I(f"s_load_dword s{sK}, {sp(pWS)}, 0")
        if opt("tlb", 0):
            I("v_lshlrev_b32 v1, 20, v0")
            I(f"v_add_u32 v1, {WS_CELL + XOFF - 448*(1 << 20) & 0xffffffff:#x}, v1")
            I("v_subrev_u32 v2, 448, v0")
            I("v_cmpx_gt_u32 vcc, 9, v2")
            I("s_cbranch_execz L_NOTLB")
            I(f"global_load_dword v{vEA+1}, v1, {sp(pWS)}")
            L("L_NOTLB")
            I("s_mov_b64 exec, -1")
    if TS: I(f"v_mov_b32 v{vTS}, 0")
    u = lambda i: vP + i
    stamp(0)
    vBK, vRK1, vID, vHA, vIC = vACC + 8, vACC + 16, vACC + 24, vACC + 40, vACC + 48
    vRW = vX
    one, l16 = vS, vS + 1
    vOA, vT16, sOW = vR + 14, vR + 12, 101
    I(f"v_mov_b32 v{tid}, v0")
    I(f"v_lshrrev_b32 v{u(0)}, 6, v0")
    I(f"v_and_b32 v{lane}, 63, v0")
    I(f"v_readfirstlane_b32 s{sWP}, v{u(0)}")
    I(f"v_lshlrev_b32 v{vT16}, 4, v0")
    I(f"v_lshlrev_b32 v{u(2)}, 3, v0")
    I(f"v_lshlrev_b32 v{u(3)}, 2, v0")
    I(f"v_and_b32 v{u(4)}, 0x3fc, v{u(3)}")
    if not FH:
        I(f"s_mul_i32 s{sA}, s2, {CH*4}")
        I(f"s_sub_u32 s{sBt}, {E*4}, s{sA}")
        I(f"s_min_u32 s{sBt}, s{sBt}, {CH*4}")
    I(f"s_and_b32 s{sB}, s2, 7")
    I(f"s_lshr_b32 s{sW}, s2, 3")
    I(f"s_lshl_b32 s{sB}, s{sB}, 5")
    I(f"s_add_u32 s{sB}, s{sB}, s{sW}")
    I(f"s_mul_i32 s{sF1}, s{sB}, {BN}")
    I(f"s_cmp_eq_u32 s{sWP}, 7")
    I(f"s_cselect_b32 s{sOW}, 0, s{sWP}")
    I(f"s_lshl_b32 s{sL}, s{sOW}, 5")
    I(f"s_add_u32 s{sF1}, s{sF1}, s{sL}")
    I(f"v_lshrrev_b32 v{u(5)}, 3, v{lane}")
    I(f"v_lshl_add_u32 v{u(5)}, v{u(5)}, 2, s{sF1}")
    I(f"v_and_b32 v{vCP}, 7, v{lane}")
    I(f"v_lshlrev_b32 v{vCP}, 4, v{vCP}")
    I(f"v_lshl_add_u32 v{vOA}, v{u(5)}, 7, v{vCP}")
    I(f"s_lshl_b32 s{sOW}, s{sOW}, 10")
    I(f"s_add_u32 s{sOW}, s{sOW}, {OWN}")
    if not FH:
        I(f"s_movk_i32 s{sF0}, 0x2000")
        I("s_waitcnt lgkmcnt(0)")
        I(f"s_load_dword s{sK}, {sp(pWS)}, 0")
        srd(sCEL, pDST, f"s{sBt}", f"s{sA}")
        srd(sD2, pSRC, f"s{sBt}", f"s{sA}")
        I(f"buffer_load_dwordx4 {rr(vD,4)}, v{vT16}, {sq(sCEL)}, 0 offen{pol(LD_P)}")
        I(f"buffer_load_dwordx4 {rr(vSR,4)}, v{vT16}, {sq(sD2)}, 0 offen{pol(LD_P)}")
        I(f"s_cmp_ge_u32 s{sWP}, 5")
        I("s_cbranch_scc1 L_NO7")
        I(f"buffer_load_dwordx4 {rr(vD+4,4)}, v{vT16}, {sq(sCEL)}, s{sF0} offen{pol(LD_P)}")
        I(f"buffer_load_dwordx4 {rr(vSR+4,4)}, v{vT16}, {sq(sD2)}, s{sF0} offen{pol(LD_P)}")
        L("L_NO7")
    for d in range(2): I(f"v_mov_b64 {rr(u(8)+2*d,2)}, 0")
    I(f"v_mov_b32 v{u(6)}, {33*JE if MG else 0}")
    I(f"ds_write2st64_b32 v{u(4)}, v{u(6)}, v{u(8)} offset0:{HIST1//256} offset1:{HIST1//256+4}")
    I(f"v_add_u32 v{u(5)}, {CIMG}, v{vT16}")
    if G2 == 1: group2()
    for k in range(5): I(f"ds_write_b128 v{u(5)}, {rr(u(8),4)} offset:{8192*k}")
    if G2 == 2: group2()
    PF = opt("pf", 0)
    def w_loads():
        I(f"s_cmp_ge_u32 s{sWP}, 2")
        I("s_cbranch_scc1 L_NOC")
        I(f"global_load_dwordx4 {rr(vEO,4)}, v{vT16}, {sp(pWC)}")
        L("L_NOC")
        for k, p in enumerate((pWB, pWV, pWA, pWU)):
            I(f"global_load_dwordx4 {rr(vRW+4*k,4)}, v{vT16}, {sp(p)}")
    def own_loads():
        I(f"s_cmp_eq_u32 s{sWP}, 6")
        I("s_cselect_b32 exec_hi, 0, -1")
        I(f"s_cmp_eq_u32 s{sWP}, 7")
        I("s_cselect_b64 exec, 1, exec")
        for k in range(4):
            I(f"s_add_u32 m0, s{sOW}, {(PL-128)*k}")
            I("s_nop 0")
            I(f"buffer_load_dwordx4 v{vOA}, {sq(sX)}, 0 offen offset:{128*k}{pol(opt('owp', ''))} lds")
        I("s_mov_b64 exec, -1")
        if PF:
            assert PF <= 512
            I(f"s_lshr_b32 s{sTM+1}, s2, 3")
            I(f"s_mul_i32 s{sTM}, s{sTM+1}, {PF*128}")
            I(f"v_min_u32 v{vEA+1}, {PF-1}, v{tid}")
            I(f"v_lshlrev_b32 v{vEA+1}, 7, v{vEA+1}")
            I(f"buffer_load_dword v{vEA+1}, v{vEA+1}, {sq(sX)}, s{sTM} offen")
    LLP = opt("llp", 2)
    OLP = opt("olp", 2)
    NY = 0
    srd(sEP, pE, E, stride=32)
    srd(sOUT, pOUT, N*128)
    srd(sX, pX, N*128)
    OY = 0
    if OLP == 3:
        OW0 = opt("ow0", 5); nw = 8 - OW0; per = -(-28 // nw); OY = per
        I(f"s_cmp_lt_u32 s{sWP}, {OW0}")
        I("s_cbranch_scc1 L_NOOWN")
        I(f"s_mul_i32 s{sF1}, s{sB}, {BN}")
        I(f"v_lshrrev_b32 v{vOA}, 3, v{lane}")
        I(f"v_lshl_add_u32 v{vOA}, v{vOA}, 2, s{sF1}")
        I(f"v_lshl_add_u32 v{vOA}, v{vOA}, 7, v{vCP}")
        I(f"s_sub_u32 s{sF0}, s{sWP}, {OW0}")
        for k in range(per):
            I(f"s_add_u32 s{sF1}, s{sF0}, {nw*k}")
            I(f"s_min_u32 s{sF1}, s{sF1}, 27")
            I(f"s_and_b32 s{sL}, s{sF1}, 3")
            I(f"s_lshr_b32 s{sF1}, s{sF1}, 2")
            I(f"s_mul_i32 s{sOW}, s{sL}, {PL}")
            I(f"s_lshl_b32 s{sL}, s{sL}, 7")
            I(f"s_cmp_eq_u32 s{sF1}, 6")
            I("s_cselect_b32 exec_hi, 0, -1")
            I(f"s_lshl_b32 s{sF1}, s{sF1}, 10")
            I(f"s_add_u32 s{sOW}, s{sOW}, s{sF1}")
            I(f"s_add_u32 m0, s{sOW}, {OWN}")
            I(f"s_lshl2_add_u32 s{sL}, s{sF1}, s{sL}")
            I(f"buffer_load_dwordx4 v{vOA}, {sq(sX)}, s{sL} offen lds")
        I("s_mov_b32 exec_hi, -1")
        L("L_NOOWN")
    srd(sWS, pWS, WS_USED)
    I(f"s_lshl_b32 s{sL}, s2, 7")
    I(f"s_add_u32 s{sL}, s{sL}, {WS_CELL}")
    srd(sCEL, pWS, 255*RS + XOFF + 128, f"s{sL}")
    cM, cN, cP, cPM, cR = sM, sM + 1, sM + 2, sM + 3, sM + 4
    m2 = sM + 6
    I(f"s_mov_b32 s{cM}, 85599")
    I(f"s_mov_b32 s{cN}, {-BN & 0xffffffff}")
    I(f"s_movk_i32 s{cP}, 5368")
    I(f"s_mov_b32 s{cPM}, {opt('phm', 3) << 26:#x}")
    I(f"s_mov_b32 s{cR}, {RS}")
    for i in range(4): I(f"v_add_u32 v{vID+i}, {i}, v{u(3)}")
    I(f"s_lshl_b32 s{sA}, s{sWP}, 28")
    I(f"s_or_b32 s{sA}, s{sA}, 0x20000")
    I(f"v_mov_b32 v{vIC}, s{sA}")
    if BAL:
        assert MG <= 1 and OLP != 3
        I(f"s_lshr_b32 s{sA}, s{sWP}, 1")
        I(f"s_lshl_b32 s{sA}, s{sA}, 28")
        I(f"s_or_b32 s{sA}, s{sA}, 0x80020000")
        I(f"v_mov_b32 v{vIC+1}, s{sA}")
        I(f"v_mov_b32 v{vIC+3}, 0xc0020000")
        I(f"v_lshlrev_b32 v{vID+4}, 1, v{tid}")
        I(f"v_add_u32 v{vID+5}, 1, v{vID+4}")
        I(f"v_mov_b32 v{vID+6}, v{tid}")
    else: I(f"v_or_b32 v{vIC+1}, 0x80000000, v{vIC}")
    idr = (lambda i: vID + i) if BAL else (lambda i: vID + (i & 3))
    icr = (lambda i: vIC + (3 if i == 6 else i >> 2)) if BAL else (lambda i: vIC + (i >> 2))
    NR = 7 if BAL else 8
    I(f"v_mov_b32 v{one}, 33")
    vK1 = vIC + 2
    I(f"v_mov_b32 v{vK1}, 0x400")
    if not FH:
        I(f"s_sub_u32 s{sBt}, s{sBt}, 0x2000")
        I(f"v_cmp_gt_u32 {sp(m2)}, s{sBt}, v{vT16}")
    I(f"s_and_b32 s{sA}, s{sWP}, 3")
    I(f"s_lshr_b32 s{sW}, s{sWP}, 2")
    I(f"s_lshl1_add_u32 s{sW}, s{sA}, s{sW}")
    if opt("swp", 1): I(f"s_xor_b32 s{sW}, s{sW}, 1")
    I(f"s_mul_i32 s{sA}, s{sW}, 49")
    I(f"s_sub_i32 s{sA}, s{sA}, 6")
    I(f"s_ashr_i32 s{sA}, s{sA}, 1")
    I(f"s_max_i32 s{sWIN}, s{sA}, 0")
    I(f"s_mul_i32 s{sSTG}, s{sW}, {SLOT}")
    I(f"s_add_u32 s{sSTG}, s{sSTG}, {XSTG}")
    I(f"s_lshl_b32 s{sES}, s{sW}, 10")
    I(f"s_add_u32 s{sES}, s{sES}, {ESTG}")
    I(f"s_mul_i32 s{sL}, s{sW}, {2*LWB}")
    I(f"s_add_u32 s{sL}, s{sL}, {R0}")
    I(f"s_movk_i32 s{s128}, 128")
    if G2 == 3: group2()
    I(f"v_bfe_u32 v{u(6)}, v{tid}, 4, 4")
    I(f"v_and_b32 v{u(7)}, 7, v{tid}")
    I(f"v_cmp_eq_u32 vcc, v{u(6)}, v{u(7)}")
    I(f"v_and_b32 v{u(6)}, 8, v{tid}")
    I(f"v_lshlrev_b32 v{u(6)}, 1, v{u(6)}")
    I(f"v_mov_b32 v{u(8)}, 0x3f80")
    I(f"v_lshlrev_b32 v{u(8)}, v{u(6)}, v{u(8)}")
    I(f"v_cndmask_b32 v{u(8)}, 0, v{u(8)}, vcc")
    I(f"ds_write_b32 v{u(4)}, v{u(8)} offset:{TAB}")
    I(f"v_mov_b64 {rr(u(8),2)}, 0")
    I(f"ds_write_b64 v{u(2)}, {rr(u(8),2)} offset:{HIST}")
    I(f"v_add_u32 v{u(6)}, {PRG}, v{u(4)}")
    I(f"ds_write_b32 v{u(6)}, v{u(8)}")
    go, lo, lo2, ha = vR, vR + 1, vR + 2, vR + 3
    wl, wal = vR + 4, vR + 5
    I(f"v_lshrrev_b32 v{ha}, 3, v{tid}")
    I(f"v_mad_u32_u24 v{go}, v{ha}, s{cR}, v{vCP}")
    I(f"v_mul_u32_u24 v{wl}, {LROW}, v{ha}")
    I(f"v_add_u32 v{lo}, v{wl}, v{vCP}")
    I(f"v_add_u32 v{lo}, {CIMG}, v{lo}")
    assert LROW == WR
    I(f"v_bfe_u32 v{u(6)}, v{tid}, 5, 1")
    I(f"v_bfe_u32 v{u(8)}, v{tid}, 6, 1")
    I(f"v_sub_u32 v{u(6)}, v{u(6)}, v{u(8)}")
    I(f"v_mul_i32_i24 v{u(6)}, {4*WR}, v{u(6)}")
    I(f"v_add_u32 v{wl}, v{wl}, v{u(6)}")
    I(f"v_lshl_add_u32 v{wl}, v{u(7)}, 2, v{wl}")
    I(f"v_add_u32 v{wl}, {WBI}, v{wl}")
    I(f"v_lshlrev_b32 v{l16}, 4, v{lane}")
    I(f"v_and_b32 v{u(6)}, 3, v{lane}")
    I(f"v_lshlrev_b32 v{vcS}, 3, v{u(6)}")
    I(f"v_bfe_u32 v{u(9)}, v{lane}, 2, 3")
    I(f"v_lshrrev_b32 v{u(8)}, 5, v{lane}")
    I(f"v_lshl_add_u32 v{u(9)}, v{u(8)}, 4, v{u(9)}")
    I(f"v_mul_u32_u24 v{wal}, {WR}, v{u(9)}")
    I(f"v_add_u32 v{wal}, v{wal}, v{vcS}")
    mm = lambda i: sM + 8 + 2*i
    def rank_a(rs, wsrc=0):
        for i in rs: I(f"v_mul_u32_u24 v{vBK+i}, s{cM}, v{vD+i}")
        if rs[0] // 4 < MG:
            b = rs[0]
            for i in rs: I(f"v_lshrrev_b32 v{vHA+i}, 29, v{vBK+i}")
            if opt("px", 0):
                I(f"s_waitcnt vmcnt({wsrc})")
                for i in rs:
                    I(f"v_cmp_gt_u32 vcc, {opt('px', 0)}, v{vSR+i}")
                    I("s_nop 1")
                    I(f"v_cndmask_b32 v{vHA+i}, v{vHA+i}, v{vID+(i&3)}, vcc") if False else I(f"v_cndmask_b32_e64 v{vHA+i}, v{vHA+i}, {8+(i&3)}, vcc")
            t0, t1 = sM + 24, sM + 26
            I(f"v_cmp_eq_u32 {sp(mm(b))}, v{vHA+b}, v{vHA+b+1}")
            I(f"v_cmp_eq_u32 {sp(mm(b+2))}, v{vHA+b+2}, v{vHA+b+3}")
            I(f"v_cmp_eq_u32 vcc, v{vHA+b}, v{vHA+b+2}")
            I(f"v_cmp_eq_u32 {sp(t0)}, v{vHA+b+1}, v{vHA+b+3}")
            I(f"v_cmp_eq_u32 {sp(t1)}, v{vHA+b}, v{vHA+b+3}")
            I(f"v_cmp_eq_u32 {sp(sA)}, v{vHA+b+1}, v{vHA+b+2}")
            for i in rs: I(f"v_lshrrev_b32 v{vBK+i}, 24, v{vBK+i}")
            I(f"s_or_b64 {sp(mm(b+1))}, {sp(mm(b))}, {sp(t0)}")
            I(f"s_or_b64 {sp(mm(b+3))}, {sp(mm(b+2))}, {sp(t0)}")
            I(f"s_or_b64 {sp(mm(b))}, {sp(mm(b))}, vcc")
            I(f"s_or_b64 {sp(mm(b+2))}, {sp(mm(b+2))}, vcc")
            I(f"s_or_b64 {sp(mm(b))}, {sp(mm(b))}, {sp(t1)}")
            I(f"s_or_b64 {sp(mm(b+1))}, {sp(mm(b+1))}, {sp(sA)}")
            I(f"s_or_b64 {sp(mm(b+2))}, {sp(mm(b+2))}, {sp(sA)}")
            I(f"s_or_b64 {sp(mm(b+3))}, {sp(mm(b+3))}, {sp(t1)}")
            for i in rs:
                I(f"v_cndmask_b32 v{vHA+i}, 0, v{vK1}, {sp(mm(i))}")
                I(f"v_lshl_add_u32 v{vHA+i}, v{vBK+i}, 2, v{vHA+i}")
                I(f"ds_add_rtn_u32 v{vRK1+i}, v{vHA+i}, v{one} offset:{HIST1}")
            return
        for i in rs: I(f"v_lshrrev_b32 v{vBK+i}, 24, v{vBK+i}")
        for i in rs:
            I(f"v_lshlrev_b32 v{vHA+i}, 2, v{vBK+i}")
            I(f"ds_add_rtn_u32 v{vRK1+i}, v{vHA+i}, v{one} offset:{HIST1}")
    def again(rs, wait, em):
        for i in rs:
            I(f"s_waitcnt lgkmcnt({wait})")
            I(f"s_mov_b64 exec, {sp(mm(i))}")
            I(f"v_cmpx_le_u32 vcc, {33*JE}, v{vRK1+i}")
            I(f"ds_add_rtn_u32 v{vRK1+i}, v{vHA+i}, v{one} offset:{HIST1 - 1024}")
        I(f"s_mov_b64 exec, {em}")
    def rank_b(rs):
        for i in rs:
            I(f"v_mad_i32_i24 v{vD+i}, v{vBK+i}, s{cN}, v{vD+i}")
            I(f"v_mul_u32_u24 v{u(6)}, s{cP}, v{vSR+i}")
            I(f"v_lshl_or_b32 v{vSR+i}, v{vD+i}, 18, v{vSR+i}")
            I(f"v_and_or_b32 v{u(6)}, v{u(6)}, s{cPM}, v{icr(i)}")
            I(f"v_mad_u32_u24 v{vD+i}, v{vBK+i}, {LROW//4}, s{cN+4}")
            I(f"v_or_b32 v{vSR+i}, v{vSR+i}, v{u(6)}")
    def place(i, wait, em):
        I(f"s_waitcnt lgkmcnt({wait})")
        I(f"v_bfe_u32 v{u(6)}, v{vRK1+i}, 3, 5")
        I(f"v_add_lshl_u32 v{vD+i}, v{u(6)}, v{vD+i}, 2")
        I(f"v_and_b32 v{u(6)}, 3, v{u(6)}")
        I(f"v_mad_i32_i24 v{u(6)}, v{u(6)}, -3, v{vD+i}")
        I(f"v_cmpx_gt_u32 vcc, {33*CAP}, v{vRK1+i}")
        I(f"ds_write_b32 v{vD+i}, v{vSR+i}")
        I(f"ds_write_b8 v{u(6)}, v{idr(i)} offset:12")
        I(f"s_mov_b64 exec, {em}")
    I(f"s_movk_i32 s{cN+4}, {CIMG//4}")
    for d in range(2): I(f"v_mov_b64 {rr(vRK1+4+2*d,2)}, 0")
    I("s_waitcnt lgkmcnt(0)")
    I("s_barrier")
    if BAL:
        m3 = sM + 28
        I("s_waitcnt vmcnt(3)")
        stamp(1)
        if TS: STN.pop()
        rank_a(range(4))
        I("s_waitcnt vmcnt(2)")
        I(f"s_mov_b64 exec, {sp(m2)}")
        rank_a(range(4, 6))
        if MG: again(range(4), 5, "-1")
        else: I("s_mov_b64 exec, -1")
        I("s_waitcnt vmcnt(0)")
        rank_b(range(6))
        I(f"s_mov_b64 exec, {sp(m2)}")
        for i in range(4, 6): place(i, (1 if MG else -3) + i, sp(m2) if i < 5 else "-1")
        for i in range(4): place(i, 7 + i, "-1")
        I(f"s_mov_b64 exec, {sp(m3)}")
        I("s_cbranch_execz L_B1")
        rank_a([6]); rank_b([6]); place(6, 0, "-1")
        I("s_branch L_B1")
    I(f"s_cmp_eq_u64 {sp(m2)}, 0" if FH else f"s_cmp_ge_u32 s{sWP}, 5")
    I("s_cbranch_scc1 L_R4")
    I(f"s_waitcnt vmcnt({3+KV})")
    stamp(1)
    rank_a(range(4), 2)
    I(f"s_waitcnt vmcnt({1+KV})")
    I(f"s_mov_b64 exec, {sp(m2)}")
    rank_a(range(4, 8))
    if MG == 0:
        I("s_mov_b64 exec, -1")
        rank_b(range(4))
        for i in range(4): place(i, 7 + i, "-1" if i < 3 else sp(m2))
        I(f"s_waitcnt vmcnt({KV})")
        rank_b(range(4, 8))
        for i in range(4, 8): place(i, 7 + i, sp(m2) if i < 7 else "-1")
    elif MG == 1:
        again(range(4), 7, sp(m2))
        I(f"s_waitcnt vmcnt({KV})")
        rank_b(range(4, 8))
        for i in range(4, 8): place(i, 3 + i, sp(m2) if i < 7 else "-1")
        rank_b(range(4))
        for i in range(4): place(i, 11 + i, "-1")
    else:
        again(range(8), 7, "-1")
        rank_b(range(4))
        for i in range(4): place(i, 7 + i, "-1" if i < 3 else sp(m2))
        I(f"s_waitcnt vmcnt({KV})")
        rank_b(range(4, 8))
        for i in range(4, 8): place(i, 7 + i, sp(m2) if i < 7 else "-1")
    I("s_branch L_B1")
    L("L_R4")
    if OY:
        I(f"s_cmp_ge_u32 s{sWP}, {OW0}")
        I("s_cbranch_scc1 L_R4A")
        I(f"s_waitcnt vmcnt({KV})")
        L("L_R4A")
    I(f"s_waitcnt vmcnt({1 + OY + KV})")
    if TS: STN.pop()
    stamp(1)
    rank_a(range(4))
    I(f"s_waitcnt vmcnt({OY + KV})")
    if MG:
        rank_b(range(2))
        again(range(4), 3, "-1")
        rank_b(range(2, 4))
    else: rank_b(range(4))
    for i in range(4): place(i, 3 + i, "-1")
    L("L_B1")
    if BAL:
        k_ = max(i for i, l in enumerate(out) if l.strip() == "s_cbranch_execz L_B1")
        e_ = next(i for i in range(k_, len(out)) if out[i].strip() == "s_branch L_B1")
        del out[e_:len(out)-1]
        I("s_mov_b64 exec, -1")
    w_loads()
    vTG = vS + 2
    def tagcalc():
        I(f"s_add_u32 s{sK}, s{sK}, {KINC:#x}")
        I(f"v_lshlrev_b32 v{vTG}, v{vcS}, s{sK}")
        I(f"v_and_b32 v{u(1)}, 4, v{lane}")
        I(f"v_mul_u32_u24 v{u(1)}, {37 << 15}, v{u(1)}")
        I(f"v_lshl_add_u32 v{vTG}, v{u(1)}, 8, v{vTG}")
        I(f"v_and_b32 v{vTG}, 0xfe000000, v{vTG}")
    if not KV: tagcalc()
    vTH = vS + 3
    I(f"v_and_b32 v{vTH}, 7, v{lane}")
    I(f"v_mul_u32_u24 v{vTH}, 33, v{vTH}")
    I(f"v_add_u32 v{vTH}, {33*CAP}, v{vTH}")
    I(f"v_lshlrev_b32 v{lo2}, 2, v{ha}")
    I(f"s_mov_b32 s{cM}, 0x1000000")
    I("s_waitcnt lgkmcnt(0)")
    I("s_barrier")
    stamp(2)
    vO, vHS = vQ, u(4)
    I(f"ds_read_b128 {rr(vHS,4)}, v{l16} offset:{HIST1}")
    vHD = vR + 8
    for i in range(4):
        I(f"ds_read_b32 v{vHD+i}, v{lo2} offset:{HIST1 + 256*i}")
        I(f"ds_read_b128 {rr(vO+4*i,4)}, v{lo} offset:{64*LROW*i}")
    if KV:
        I("s_waitcnt vmcnt(4)")
        I(f"v_readfirstlane_b32 s{sK}, v{vEA+1}")
    for i in range(1, 4): I(f"s_mov_b32 s{sM+15+i}, {64*RS*i}")
    if KV: tagcalc()
    I("s_waitcnt lgkmcnt(8)")
    I(f"v_max3_u32 v{u(0)}, v{vHS}, v{vHS+1}, v{vHS+2}")
    I(f"v_max_u32 v{u(0)}, v{u(0)}, v{vHS+3}")
    I(f"v_cmp_lt_u32 vcc, {33*(CAP+8)}, v{u(0)}")
    I("s_cbranch_vccnz L_POVF")
    L("L_POUT")
    for i in range(4):
        I(f"s_waitcnt lgkmcnt({7 - 2*i})")
        I(f"v_sub_u32 v{vHD+i}, v{vTH}, v{vHD+i}")
        I(f"v_and_or_b32 v{vHD+i}, v{vHD+i}, s{cM}, v{vTG}")
        I(f"s_waitcnt lgkmcnt({6 - 2*i})")
        I(f"v_or_b32 v{vO+4*i+3}, v{vO+4*i+3}, v{vHD+i}")
        I(f"buffer_store_dwordx4 {rr(vO+4*i,4)}, v{go}, {sq(sCEL)}, {f's{sM+15+i}' if i else '0'} offen{pol(STP)}")
    stamp(3)
    if "c" in opt("tsx", ""): I("s_waitcnt vmcnt(0)")
    stamp("c0")
    t = vACC + 32
    I(f"s_mov_b32 s{sA}, {f2u(-LOG2E):#x}")
    I(f"s_mov_b32 s{sBt}, s{sA}")
    I(f"s_mov_b32 s{cM}, 0x05040100")
    I(f"s_mov_b32 s{cP}, 0x07060302")
    def wscaled(src, off):
        for d in range(4):
            I(f"v_lshlrev_b32 v{t+2*d}, 16, v{src+d}")
            I(f"v_and_b32 v{t+2*d+1}, 0xffff0000, v{src+d}")
        for d in range(4): I(f"v_pk_mul_f32 {rr(t+2*d,2)}, {rr(t+2*d,2)}, {sp(sA)}")
        for n in range(4): I(f"v_cvt_pk_bf16_f32 v{t+8+n}, v{t+n}, v{t+4+n}")
        wput(t + 8, off)
    def wplain(src, off, tt):
        for n in range(4): I(f"v_perm_b32 v{tt+n}, v{src+2+(n>>1)}, v{src+(n>>1)}, s{cP if n & 1 else cM}")
        wput(tt, off)
    def wput(r, off):
        a = wl
        if off:
            a = r + 4
            I(f"v_add_u32 v{a}, {off}, v{wl}")
        I(f"ds_write2_b32 v{a}, v{r}, v{r+1} offset0:0 offset1:8")
        I(f"ds_write2_b32 v{a}, v{r+2}, v{r+3} offset0:16 offset1:24")
    I("s_waitcnt vmcnt(4)")
    stamp("b4")
    wplain(vRW + 8, WAI - WBI, t + 16)
    wscaled(vRW, 0)
    wplain(vRW + 4, WVI - WBI, t + 24)
    wplain(vRW + 12, WUI - WBI, t + 16)
    I(f"s_cmp_ge_u32 s{sWP}, 2")
    I("s_cbranch_scc1 L_NOWC")
    wscaled(vEO, WCI - WBI)
    L("L_NOWC")
    I(f"s_mul_i32 s{sTM}, s{sB}, {RS}")
    I(f"s_add_u32 s{sTM}, s{sTM}, {WS_CELL}")
    srd(sCEL, pWS, 256*128, f"s{sTM}")
    I(f"s_add_u32 s{sTM}, s{sTM}, {XOFF}")
    srd(sD2, pWS, 256*128, f"s{sTM}")
    vC, vEB = vACC + 32, vACC + 60
    pa = vT16
    for k in (1, 2, 3): I(f"s_movk_i32 s{sCI+k-1}, {8192*k}")
    def poll_load(i):
        so = "0" if i == 0 else f"s{sCI+i-1}"
        I(f"buffer_load_dwordx4 {rr(vC+4*i,4)}, v{pa}, {sq(sCEL)}, {so} offen sc1")
    I("s_waitcnt lgkmcnt(0)")
    I("s_barrier")
    stamp(4)
    if OLP == 0: own_loads()
    vWA = vACC
    I(f"v_add_u32 v{wal}, {WBI}, v{wal}")
    def trw(reg, img):
        return [f"ds_read_b64_tr_b16 {rr(reg+8*n+4*s+2*uu,2)}, v{wal} offset:{img + (32*s + 8*uu)*WR + 32*n}"
                for n in range(4) for s in range(2) for uu in range(2)]
    tw = trw(vWB, 0) + trw(vWV, WVI - WBI)
    for x_ in tw[:14]: I(x_)
    prefill(vCA)
    for x_ in tw[14:24]: I(x_)
    nxt = 24
    I(f"v_mov_b32 v{u(4)}, v{wal}")
    I("s_mov_b32 exec_lo, 0")
    I(f"v_subrev_u32 v{u(4)}, {16*WR}, v{wal}")
    I("s_mov_b32 exec_lo, -1")
    tw += [f"ds_read_b64_tr_b16 {rr(vCA+16+4*n+2*uu,2)}, v{u(4)} offset:{WCI - WBI + 8*uu*WR + 32*n}" for n in range(4) for uu in range(2)]
    vEM, vET = vEO, vACC + 56
    ownn, owna, mapa = vEO + 1, vEO + 2, vEO + 3
    I("s_waitcnt lgkmcnt(4)")
    for x_ in tw[nxt:]: I(x_)
    I(f"v_add_u32 v{wal}, {WAI - WBI}, v{wal}")
    vFF = vEO + 4
    vMU = vR + 8
    lo0, hi0, lo1, hi1 = sWS0, sWS1, sB0E, sSH
    def late_setup():
        I(f"v_and_b32 v{vCH}, 1, v{lane}")
        I(f"v_lshlrev_b32 v{vCH}, 4, v{vCH}")
        I(f"s_bitcmp1_b32 s{sW}, 0")
        I(f"s_cselect_b32 s{sA}, 1, -1")
        I(f"s_lshl_b32 s{sA}, s{sA}, 24")
        I(f"s_or_b32 s{sA}, s{sA}, 0xdddd")
        I(f"v_mov_b32 v{vIDX}, s{sA}")
        I(f"v_and_b32 v{vcEO}, 16, v{lane}")
        I(f"v_and_b32 v{u(6)}, 15, v{lane}")
        I(f"v_lshl_add_u32 v{u(6)}, v{u(6)}, 5, s{sES}")
        I("s_mov_b32 exec_hi, 0")
        I(f"v_add_u32 v{vcEO}, v{vcEO}, v{u(6)}")
        I("s_mov_b32 exec_hi, -1")
        I(f"v_and_b32 v{u(6)}, 3, v{lane}")
        I(f"v_bfe_u32 v{u(8)}, v{lane}, 2, 2")
        I(f"v_and_b32 v{u(9)}, 48, v{lane}")
        I(f"v_lshl_add_u32 v{u(10)}, v{u(8)}, 7, v{u(9)}")
        I(f"v_mul_u32_u24 v{vAX}, {XI}, v{u(6)}")
        I(f"v_add3_u32 v{vAX}, v{vAX}, v{u(10)}, s{sSTG}")
        listaddr(u(6))
        I(f"v_mul_u32_u24 v{vEB}, {CH}, v{ha}")
        for i in range(1, 4): I(f"v_add_u32 v{vEB+i}, {64*i*CH}, v{vEB}")
        I(f"s_mov_b32 s{sEM}, {EMASK:#x}")
        I(f"s_mov_b32 s{sEM+1}, {EMASK:#x}")
        vFF = vEO + 4
        I(f"v_mov_b32 v{vFF}, 0xfffff")
        I(f"v_cndmask_b32 v{vEM}, 0, v{vFF}, {sp(sEM)}")
        I(f"v_add_lshl_u32 v{u(3)}, v{pa}, v{vCP}, 16")
        for i in range(4):
            I(f"v_add_u32 v{vET+i}, {(EARLY + 8192*i) << 16:#x}, v{u(3)}")
            I(f"v_cndmask_b32 v{vET+i}, 0, v{vET+i}, {sp(sEM)}")
        I(f"v_mov_b32 v{one}, 4")
        I(f"v_and_b32 v{ownn}, 31, v{lane}")
        I(f"v_add_lshl_u32 v{mapa}, v{ownn}, s{sWIN}, 2")
        I(f"v_lshrrev_b32 v{u(3)}, 5, v{lane}")
        I(f"v_lshl_add_u32 v{owna}, v{u(3)}, 11, v{mapa}")
        I(f"v_add_u32 v{mapa}, {MAP}, v{mapa}")
        I(f"v_lshlrev_b32 v{u(3)}, 2, v{lane}")
        I(f"v_subrev_u32 v{u(3)}, s{sWIN}, v{u(3)}")
        I("s_mov_b32 s10, 0x10000")
        for i in range(4):
            I(f"v_add_u32 v{vMU+i}, {i}, v{u(3)}")
            I(f"v_and_or_b32 v{vMU+i}, v{vMU+i}, s10, 1")
        I(f"s_movk_i32 s{sFM}, 0xffc")
        I(f"s_movk_i32 s{sSKIP}, {CAP+8}")
        I(f"s_mov_b32 s{sXT}, 0")
        I(f"s_mov_b32 s{sSP}, 0")
        I(f"s_mov_b32 s{sT}, 0x1ffffff")
        I(f"s_mov_b32 s{sN}, 0xffff")
        lo0, hi0, lo1, hi1 = sWS0, sWS1, sB0E, sSH
        I(f"s_mul_i32 s10, s{sW}, 49")
        I(f"s_sub_i32 s{lo0}, s10, 6")
        I(f"s_ashr_i32 s{lo0}, s{lo0}, 1")
        I(f"s_add_i32 s{hi0}, s10, 7")
        I(f"s_ashr_i32 s{hi0}, s{hi0}, 1")
        I(f"s_add_i32 s{lo1}, s10, 43")
        I(f"s_ashr_i32 s{lo1}, s{lo1}, 1")
        I(f"s_add_i32 s{hi1}, s{lo0}, 31")
        I(f"s_cmp_eq_u32 s{sW}, 7")
        I(f"s_cselect_b32 s{lo1}, {BN}, s{lo1}")
        I(f"s_cselect_b32 s{hi1}, {BN}, s{hi1}")
        for r_ in (hi0, lo1, hi1): I(f"s_sub_i32 s{r_}, s{r_}, s{sWIN}")
    LS = opt("ls", 0)
    if LS == 0: late_setup()
    stamp("b0")
    if opt("pw", 1): I(f"s_waitcnt vmcnt({4 if OLP == 0 else 0})")
    stamp("b1")
    if opt("pbar", 0): I("s_barrier")
    for i in range(4): poll_load(i)
    if OLP == 1: own_loads()
    if LS == 1: late_setup()
    PY = 4 if OLP == 1 else 0
    I(f"v_max3_u32 v{u(0)}, v{vRK1}, v{vRK1+1}, v{vRK1+2}")
    I(f"v_max3_u32 v{u(1)}, v{vRK1+3}, v{vRK1+4}, v{vRK1+5}")
    I(f"v_max3_u32 v{u(0)}, v{u(0)}, v{vRK1+6}, v{vRK1+7}")
    I(f"v_max_u32 v{u(0)}, v{u(0)}, v{u(1)}")
    I(f"v_cmp_le_u32 vcc, {33*CAP}, v{u(0)}")
    I("s_cbranch_vccz L_PEXTR")
    q = vCA
    if TS: I(f"v_writelane_b32 v{vTS}, 1, 61")
    I(f"v_mov_b32 v{q+1}, s{sK}")
    I(f"s_lshl_b32 s{sTM}, s2, 7")
    I(f"s_add_u32 s{sTM}, s{sTM}, {WS_CELL + XOFF}")
    for i in range(NR):
        I(f"v_subrev_u32 v{q+4}, {33*CAP}, v{vRK1+i}")
        I(f"v_cmpx_gt_u32 vcc, {33*8}, v{q+4}")
        I(f"s_cbranch_execz L_PE{i}")
        I(f"v_mov_b32 v{q}, v{vSR+i}")
        I(f"v_mov_b32 v{q+2}, v{idr(i)}")
        I(f"v_bfe_u32 v{q+4}, v{vRK1+i}, 5, 3")
        I(f"v_lshlrev_b32 v{q+4}, 4, v{q+4}")
        I(f"v_mad_u32_u24 v{q+4}, v{vBK+i}, s{cR}, v{q+4}")
        I(f"buffer_store_dwordx4 {rr(q,4)}, v{q+4}, {sq(sWS)}, s{sTM} offen sc1")
        L(f"L_PE{i}")
        I("s_mov_b64 exec, -1")
    L("L_PEXTR")
    stamp(5)
    vA, vRK, vR1 = vACC, vACC + 16, vQ
    mk = lambda i, j: sM + 2*(4*i + j)
    def rec_ops(d, x, byte, eb, a, r1, keep=None):
        e_ = r1 if keep is None else keep
        return [f"v_add_u32_sdwa v{e_}, v{x}, v{eb} {SDW} src0_sel:BYTE_{byte} src1_sel:DWORD",
                f"v_lshrrev_b32 v{u(1)}, 28, v{d}",
                f"v_lshl_add_u32 v{e_}, v{u(1)}, 8, v{e_}",
                f"v_and_b32 v{u(1)}, 60, v{a}",
                f"v_lshl_add_u32 v{r1}, v{u(1)}, 19, v{e_}"]
    def spin():
        I(f"s_add_u32 s{sSP}, s{sSP}, 1")
        I(f"s_cmp_gt_u32 s{sSP}, {opt('spin', 200000)}")
        I("s_cbranch_scc1 L_END")
        if opt("slp", 1): I(f"s_sleep {opt('slp', 1)}")
    xg = vCA
    def xload(tag):
        for i in range(4):
            I(f"s_mov_b64 exec, {sp(mk(i,3))}")
            I(f"s_cbranch_execz L_XL{tag}{i}")
            I(f"s_movk_i32 s10, {8192*i}")
            I(f"buffer_load_dwordx4 {rr(xg+4*i,4)}, v{pa}, {sq(sD2)}, s10 offen sc1")
            L(f"L_XL{tag}{i}")
        I("s_mov_b64 exec, -1")
    for i in range(4):
        c_ = vC + 4*i
        L(f"L_PW{i}")
        I(f"s_waitcnt vmcnt({3 - i + PY})")
        I(f"v_xor_b32 v{u(0)}, v{c_+3}, v{vTG}")
        for j in range(3): I(f"v_and_b32_sdwa v{vA+4*i+j}, v{c_+j}, s{sFM} {SDW} src0_sel:WORD_1 src1_sel:DWORD")
        I(f"v_cmp_lt_u32 vcc, s{sT}, v{u(0)}")
        for j in range(3): I(f"v_cmp_ne_u32 {sp(mk(i,j))}, 0, v{c_+j}")
        I(f"s_cbranch_vccnz L_RT{i}")
        if i == 3: stamp(6)
        for j in range(3):
            I(f"s_mov_b64 exec, {sp(mk(i,j))}")
            I(f"ds_add_rtn_u32 v{vRK+4*i+j}, v{vA+4*i+j}, v{one} offset:{HIST}")
        I("s_mov_b64 exec, -1")
        if i == 3:
            I(f"v_or3_b32 v{u(2)}, v{vC+3}, v{vC+7}, v{vC+11}")
            I(f"v_or_b32 v{u(2)}, v{u(2)}, v{vC+15}")
            I(f"v_and_b32 v{u(2)}, 0x1000000, v{u(2)}")
            I(f"v_cmp_ne_u32 vcc, 0, v{u(2)}")
            I("s_cbranch_vccz L_XT1R")
            def xt1():
                if TS: I(f"v_writelane_b32 v{vTS}, 1, 62")
                for i in range(4):
                    I(f"v_and_b32 v{u(2)}, 0x1000000, v{vC+4*i+3}")
                    I(f"v_cmp_ne_u32 {sp(mk(i,3))}, 0, v{u(2)}")
                    I(f"s_bcnt1_i32_b64 s10, {sp(mk(i,3))}")
                    I(f"s_lshl2_add_u32 s{sXT}, s10, s{sXT}")
                xload("a")
                I(f"v_or3_b32 v{u(2)}, v{vC+1}, v{vC+5}, v{vC+9}")
                I(f"v_or_b32 v{u(2)}, v{u(2)}, v{vC+13}")
                I(f"v_and_b32 v{u(2)}, 0x10000, v{u(2)}")
                I(f"v_mov_b32 v{u(3)}, {FLAG}")
                I(f"v_cmpx_ne_u32 vcc, 0, v{u(2)}")
                I(f"ds_write_b32 v{u(3)}, v{one} offset:4")
                I("s_mov_b64 exec, 1")
                I(f"v_mov_b32 v{u(2)}, s{sXT}")
                I(f"ds_add_u32 v{u(3)}, v{u(2)} offset:8")
                I("s_mov_b64 exec, -1")
            xt1()
            L("L_XT1R")
        for j in range(3):
            put(rec_ops(c_+j, c_+3, j, vEB+i, vA+4*i+j, vR1+4*i+j, vR1+4*i+3 if j == 0 and JE else None))
        e_ = vR1 + 4*i + 3
        if JE: I(f"v_cndmask_b32 v{u(0)}, v{vFF}, v{e_}, {sp(mk(i,0))}")
        I(f"v_and_or_b32 v{c_}, v{c_}, s{sN}, v{vET+i}")
        I(f"v_or_b32 v{vR1+4*i}, v{vR1+4*i}, v{vEM}")
        if JE:
            I(f"v_mov_b32_dpp v{u(1)}, v{u(0)} quad_perm:[2,2,3,3] row_mask:0xf bank_mask:0xf")
            I(f"v_mov_b32_dpp v{e_}, v{u(0)} quad_perm:[0,0,1,1] row_mask:0xf bank_mask:0xf")
        I(f"v_and_b32 v{c_+2}, s{sN}, v{c_+2}")
        if JE: I(f"v_mov_b32_dpp v{e_}, v{u(1)} row_shr:4 row_mask:0xf bank_mask:0xa")
    fill = [f"v_and_b32 v{vC+4*i+1}, s{sN}, v{vC+4*i+1}" for i in range(4)]
    I(f"v_mov_b32 v{u(9)}, {FLAG}")
    if OLP == 2: own_loads()
    I("s_waitcnt lgkmcnt(0)")
    stamp("d0")
    I("s_barrier")
    stamp(7)
    def early(i):
        if not JE: return
        I(f"s_lshl_b32 m0, s{sWP}, 10")
        I(f"v_mov_b32 v{vEI}, v{vR1+4*i+3}")
        I(f"s_add_u32 m0, m0, {EARLY + 8192*i}")
        if JE < 4:
            I(f"s_mov_b32 exec_lo, {((1 << 2*JE) - 1) * 0x01010101:#x}")
            I("s_mov_b32 exec_hi, exec_lo")
        else: I("s_nop 0")
        I(f"buffer_load_dwordx4 {rr(vEI,2)}, {sq(sEP)}, 0 idxen offen{pol(opt('eep', ''))} lds")
        if JE < 4: I("s_mov_b64 exec, -1")
    EPOS = opt("epos", "0134")
    def epoint(k):
        for i in range(4):
            if int(EPOS[i]) == k: early(i)
    c, p, tot, sc = u(0), u(4), u(8), u(9)
    hh = vX
    own, to2, ex, z_, eh, el = u(10), u(11), u(12), u(13), u(14), u(15)
    SD = f"{SDW} src0_sel:WORD_0 src1_sel:WORD_0"
    HL = f"{SDW} src0_sel:WORD_0 src1_sel:WORD_1"
    I(f"ds_read_u16 v{own}, v{owna} offset:{HIST}")
    I(f"ds_read_u16 v{to2}, v{owna} offset:{HIST + 1024}")
    for ph in range(4):
        I(f"ds_read_b128 {rr(hh+4*ph,4)}, v{l16} offset:{HIST + 1024*ph}")
    I(f"ds_read_b32 v{vQD}, v{sc} offset:8")
    epoint(0)
    I("s_cmp_lg_u32 s2, 0")
    I("s_cbranch_scc1 L_NOK")
    I(f"v_mov_b32 v{vQD+1}, s{sK}")
    I(f"v_mov_b32 v{vQD+2}, 0")
    I(f"buffer_store_dword v{vQD+1}, v{vQD+2}, {sq(sWS)}, 0 offen sc1")
    L("L_NOK")
    I("s_waitcnt lgkmcnt(5)")
    I(f"v_lshl_or_b32 v{own}, v{to2}, 16, v{own}")
    I(f"v_mov_b32 v{to2}, v{own}")
    I("s_waitcnt lgkmcnt(0)")
    stamp("d1")
    f2 = []
    for i in range(4):
        f2 += [f"v_add_u32_sdwa v{c+i}, v{hh+i}, v{hh+4+i} {SD}", f"v_add_u32_sdwa v{p+i}, v{hh+8+i}, v{hh+12+i} {SD}"]
    f2 += [f"v_add_u32 v{c+i}, v{c+i}, v{p+i}" for i in range(4)]
    wave_scan(to2, f2, half=True)
    put(f2)
    I(f"v_mul_u32_u24 v{tot}, v{c}, v{vMU}")
    for i in range(1, 4): I(f"v_mad_u32_u24 v{tot}, v{c+i}, v{vMU+i}, v{tot}")
    f2 = [f"v_sub_u32 v{ex}, v{to2}, v{own}", f"v_add_u32_sdwa v{eh}, v{to2}, v{to2} {HL}",
          f"v_add_u32_sdwa v{z_}, v{ex}, v{ex} {HL}", f"v_add_u32_sdwa v{el}, v{own}, v{own} {HL}",
          fill.pop(0), f"v_readfirstlane_b32 s{sMORE}, v{vQD}",
          f"v_permlane32_swap_b32 v{z_}, v{eh}", f"v_cndmask_b32 v{el}, 0, v{el}, {sp(sJ3)}",
          f"v_add_u32 v{z_}, v{z_}, v{eh}", fill.pop(0),
          f"v_add_u32 v{eh}, v{z_}, v{el}", fill.pop(0)]
    I(f"s_mov_b32 s{sJ3}, -1")
    I(f"s_mov_b32 s{sJ3+1}, 0")
    wave_scan(tot, f2)
    assert not f2
    stamp("d2")
    I(f"v_sub_u32_sdwa v{el}, v{eh}, v{own} {SDW} src0_sel:DWORD src1_sel:WORD_1")
    I(f"v_readlane_b32 s{sT}, v{tot}, 63")
    epoint(1)
    ASYM = opt("asym", 12)
    I(f"s_bfe_u32 s10, s{sT}, 0xe0002")
    I(f"s_lshr_b32 s{sT}, s{sT}, 16")
    I("s_lshr_b32 s11, s10, 1")
    I(f"s_add_u32 s11, s11, {4*ASYM}")
    I("s_and_b32 s11, s11, -128")
    I(f"s_lshr_b32 s{sF0}, s{sW}, 1")
    I(f"s_mul_i32 s{sF0}, s{sF0}, s10")
    I(f"s_sub_i32 s11, s11, {4*ASYM}")
    I(f"s_sub_i32 s{sF0}, s{sF0}, s{sT}")
    I(f"s_add_i32 s11, s11, s{sF0}")
    I(f"s_add_i32 s10, s10, s{sF0}")
    I(f"s_bitcmp1_b32 s{sW}, 0")
    I(f"s_cselect_b32 s{sEND}, s11, s{sF0}")
    I("s_cselect_b32 s10, s10, s11")
    I(f"v_cmp_gt_i32 vcc, s{sEND}, v{eh}")
    I(f"v_cmp_gt_i32 {sp(sTM)}, s10, v{eh}")
    f0, f1 = sWS0, sWS1
    I(f"s_bcnt1_i32_b32 s{f0}, vcc_lo")
    I(f"s_bcnt1_i32_b32 s10, s{sTM}")
    I(f"s_min_i32 s{f0}, s{f0}, s{hi0}")
    I(f"s_max_i32 s10, s10, s{lo1}")
    I(f"s_min_i32 s{f1}, s10, s{hi1}")
    stamp("d3")
    epoint(2)
    A01, A23, E01, E23, Z1 = sCI, sCUR, sR0, sCNT, sST
    I(f"v_readlane_b32 s{sT}, v{z_}, s{f0}")
    I(f"v_readlane_b32 s{Z1}, v{z_}, s{f1}")
    I(f"s_add_u32 s{sF0}, s{f0}, s{sWIN}")
    I(f"s_add_u32 s{sF1}, s{f1}, s{sWIN}")
    I(f"s_add_u32 s10, s{f0}, 32")
    I(f"s_add_u32 s11, s{f1}, 32")
    I(f"v_readlane_b32 s{A01}, v{ex}, s{f0}")
    I(f"v_readlane_b32 s{E01}, v{ex}, s{f1}")
    I(f"v_readlane_b32 s{A23}, v{ex}, s10")
    I(f"v_readlane_b32 s{E23}, v{ex}, s11")
    I(f"s_sub_u32 s{sEND}, s{Z1}, s{sT}")
    I(f"s_add_u32 s10, s{sEND}, 255")
    I("s_lshr_b32 s10, s10, 8")
    I("s_lshl_b32 s10, s10, 7")
    I(f"s_sub_u32 s10, s10, s{sMORE}")
    I("s_max_i32 s10, s10, 0")
    I(f"s_add_u32 s{sT}, s{sT}, s10")
    I(f"s_add_u32 s10, s{f0}, 16")
    I(f"s_min_u32 s10, s10, s{f1}")
    I(f"s_sub_i32 s11, s{f1}, 16")
    inl, inh, mo = sTM, sTM + 2, sMSK
    I(f"v_cmp_ge_u32 {sp(inl)}, s{sT}, v{el}")
    I(f"v_cmp_ge_u32 {sp(inh)}, s{sT}, v{eh}")
    I(f"v_cmp_gt_i32 vcc, s10, v{ownn}")
    I(f"v_cmp_gt_i32 {sp(sA)}, s11, v{ownn}")
    I(f"v_cmp_le_u32 {sp(mo)}, s{f0}, v{ownn}")
    I(f"v_cmp_gt_u32 {sp(sJ3)}, s{f1}, v{ownn}")
    I(f"s_and_b64 {sp(inl)}, {sp(inl)}, vcc")
    I(f"s_and_b64 {sp(inh)}, {sp(inh)}, vcc")
    I(f"s_or_b64 {sp(inl)}, {sp(inl)}, {sp(sA)}")
    I(f"s_or_b64 {sp(inh)}, {sp(inh)}, {sp(sA)}")
    I(f"s_bcnt1_i32_b32 s{sB0E}, s{inl}")
    I(f"s_bcnt1_i32_b32 s10, s{inh}")
    I(f"s_bcnt1_i32_b32 s11, s{inl+1}")
    I(f"s_bcnt1_i32_b32 s{sSH}, s{inh+1}")
    I(f"v_readlane_b32 s{f0}, v{ex}, s{sB0E}")
    I(f"v_readlane_b32 s10, v{ex}, s10")
    I("s_add_u32 s11, s11, 32")
    I(f"s_add_u32 s{sT}, s{sSH}, 32")
    I(f"v_readlane_b32 s{f1}, v{ex}, s11")
    I(f"v_readlane_b32 s11, v{ex}, s{sT}")
    I(f"v_mov_b32 v{c}, s{sN}")
    I(f"v_cndmask_b32 v{c+1}, 0, v{c}, {sp(inl)}")
    I(f"v_cndmask_b32 v{c}, 0, v{c}, {sp(inh)}")
    I(f"s_and_b64 {sp(mo)}, {sp(mo)}, {sp(sJ3)}")
    Q01, Q23 = f0, f1
    I(f"s_pack_lh_b32_b16 s{Q01}, s{f0}, s10")
    I(f"s_pack_lh_b32_b16 s{Q23}, s{f1}, s11")
    I(f"v_lshl_or_b32 v{c}, v{c}, 16, v{c+1}")
    I(f"s_sub_u32 s{sT}, s{sL}, {R0 - BIAS}")
    I(f"s_pack_ll_b32_b16 s{sT}, s{sT}, s{sT}")
    def bases(lo01, lo23, hi01, hi23, d, keep=None):
        I(f"s_sub_u32 s10, s{hi01}, s{lo01}")
        I(f"s_sub_u32 s11, s{hi23}, s{lo23}")
        I(f"s_mul_i32 s10, s10, 0x10001")
        I(f"s_lshl_b32 vcc_lo, s10, 16")
        I(f"s_pack_hh_b32_b16 s10, s10, s10")
        I(f"s_lshl_b32 vcc_hi, s11, 16")
        I(f"s_add_u32 vcc_hi, vcc_hi, s10")
        if keep is not None:
            I(f"s_add_u32 s{keep}, vcc_hi, s11")
            I(f"s_lshr_b32 s{keep}, s{keep}, 16")
            I(f"s_sub_u32 s{sEND}, s{sEND}, s{keep}")
            I(f"s_cmp_gt_u32 s{sEND}, s{keep}")
            I(f"s_cselect_b32 s{SWP}, {LWB * 0x10001:#x}, 0")
            I(f"s_add_u32 s{sT}, s{sT}, s{SWP}")
        I(f"s_sub_u32 s10, s{sT}, s{lo01}")
        I(f"s_sub_u32 s11, s{sT}, s{lo23}")
        I("s_add_u32 s10, s10, vcc_lo")
        I("s_add_u32 s11, s11, vcc_hi")
        I(f"v_mov_b32 v{d}, s10")
        I(f"v_mov_b32 v{d+1}, s11")
    LEN0, SWP = sJ3, sJ3 + 1
    bases(A01, A23, Q01, Q23, p, LEN0)
    I(f"s_add_u32 s{sT}, s{sT}, {LWB * 0x10001:#x}")
    I(f"s_sub_u32 s{sT}, s{sT}, s{SWP}")
    I(f"s_sub_u32 s{sT}, s{sT}, s{SWP}")
    bases(Q01, Q23, E01, E23, p + 2)
    I(f"v_bfi_b32 v{p}, v{c}, v{p}, v{p+2}")
    I(f"v_bfi_b32 v{p+1}, v{c}, v{p+1}, v{p+3}")
    I(f"s_mov_b32 exec_hi, 0")
    I(f"v_mov_b32 v{p+1}, v{p}")
    I(f"s_mov_b64 exec, {sp(mo)}")
    I(f"v_add_u32 v{ex}, v{ex}, v{p+1}")
    assert LWB & 0x80
    I(f"s_bfe_u32 s10, s{SWP}, 0x10007")
    I(f"s_lshl1_add_u32 s10, s{sW}, s10")
    I("s_lshl_b32 s10, s10, 2")
    I(f"v_cndmask_b32 v{c}, 4, 0, {sp(inl)}")
    I(f"ds_write_b16 v{owna}, v{ex} offset:{HIST + 2}")
    I(f"ds_write_b16_d16_hi v{owna}, v{ex} offset:{HIST + 1024 + 2}")
    I("s_mov_b32 exec_hi, 0")
    I(f"v_xor_b32 v{c}, s10, v{c}")
    I(f"ds_write_b32 v{mapa}, v{c}")
    I("s_mov_b64 exec, -1")
    stamp("d5")
    I(f"s_min_u32 s10, s{sEND}, s{LEN0}")
    I(f"s_max_u32 s{LEN0}, s{sEND}, s{LEN0}")
    I(f"s_mov_b32 s{sEND}, s10")
    I(f"s_add_u32 s10, s{LEN0}, s{sMORE}")
    I(f"s_mul_i32 s11, s{Z1}, {LWB * 65536 // BIAS}")
    I("s_lshr_b32 s11, s11, 16")
    I("s_max_u32 s10, s10, s11")
    I(f"s_cmp_lt_u32 s10, {LWB}")
    I("s_cbranch_scc1 L_LFIT")
    I(f"ds_write_b32 v{sc}, v{one}")
    L("L_LFIT")
    I(f"s_cmp_eq_u32 s{sMORE}, 0")
    I("s_cbranch_scc1 L_XCNR")
    I(f"s_sub_u32 s10, s{sL}, {R0 - BIAS}")
    I(f"s_add_u32 s11, s10, s{LEN0}")
    I(f"v_mov_b32 v{u(0)}, s11")
    I(f"s_add_u32 s11, s10, s{sEND}")
    I(f"s_add_u32 s11, s11, {LWB}")
    I(f"v_mov_b32 v{u(1)}, s11")
    I(f"s_lshl_b32 s10, s{sW}, 3")
    I(f"v_mov_b32 v{u(2)}, s10")
    I(f"ds_write_b64 v{u(2)}, {rr(u(0),2)} offset:{CNT}")
    L("L_XCNR")
    epoint(3)
    put(fill)
    I("s_waitcnt lgkmcnt(0)")
    stamp(8)
    I("s_barrier")
    stamp(9)
    I(f"ds_read_b64 {rr(u(14),2)}, v{sc}")
    for i in range(4):
        for j in range(3):
            I(f"ds_read_u16 v{vA+4*i+j}, v{vA+4*i+j} offset:{HIST + 2}")
    epoint(4)
    def ntiles(l0, l1):
        I(f"s_add_u32 s10, s{l0}, 127")
        I("s_lshr_b32 s10, s10, 7")
        I("s_lshl1_add_u32 s10, s10, -1")
        I(f"s_add_u32 s11, s{l1}, 127")
        I("s_lshr_b32 s11, s11, 6")
        I("s_and_b32 s11, s11, -2")
        I(f"s_max_i32 s{sN}, s10, s11")
        I(f"s_cselect_b32 s10, s{l0}, s{l1}")
        I("s_sub_u32 s10, s10, 1")
        I(f"s_andn2_b32 s{sHF}, 64, s10")
    I(f"s_add_u32 s{sB0E}, s{sB0E}, s{sWIN}")
    I(f"s_add_u32 s11, s{sSH}, s{sWIN}")
    I(f"s_and_b32 s10, s11, 15")
    I(f"s_cmp_lt_u32 s11, s{sB0E}")
    I(f"s_cselect_b32 s{sSH}, s10, 16")
    I(f"s_cmp_lg_u32 s{SWP}, 0")
    I(f"s_cselect_b32 s{sWS1}, s{sF0}, s11")
    I(f"s_cselect_b32 s{sWIN}, s{sF0}, s{sB0E}")
    I(f"s_cselect_b32 s{sF0}, s11, s{sF0}")
    I(f"s_cselect_b32 s{sB0E}, s{sF1}, s{sB0E}")
    I(f"s_cselect_b32 s{sF1}, s11, s{sF1}")
    I(f"s_min_u32 s{sWS0}, s{sF0}, 192")
    I(f"s_min_u32 s{sWS1}, s{sWS1}, 192")
    I(f"s_mov_b32 s{sST}, s{sMORE}")
    I("s_waitcnt lgkmcnt(12)")
    I(f"v_cmp_ne_u32 vcc, 0, v{u(14)}")
    I(f"v_readfirstlane_b32 s{sMORE}, v{u(15)}")
    I("s_cbranch_vccnz L_OVF")
    for i in range(4):
        for j in range(3):
            s_ = 4*i + j
            if j == 0: I("s_waitcnt lgkmcnt(9)")
            I(f"s_mov_b64 exec, {sp(mk(i,j))}")
            I(f"v_add_u32 v{vA+s_}, v{vA+s_}, v{vRK+s_}")
            I(f"ds_write2st64_b32 v{vA+s_}, v{vC+s_}, v{vR1+s_} {W2}")
    I("s_mov_b64 exec, -1")
    ntiles(LEN0, sEND)
    stamp("d6")
    sO0, sO1, sNT, sOK, sCM = sOUT, sD2, sM + 8, sM + 9, sM + 12
    def epi_prep(t0, t1):
        I(f"s_lshl_b32 s{sNT}, s{sW}, 7")
        I(f"s_add_u32 s{sNT}, s{sNT}, {NT}")
        I(f"v_mov_b32 v{t0}, s{sWS0}")
        I("s_mov_b32 exec_lo, 0xffff0000")
        I(f"v_mov_b32 v{t0}, s{sWS1}")
        I("s_mov_b64 exec, 0xffffffff") if False else None
        I("s_mov_b32 exec_lo, -1")
        I("s_mov_b32 exec_hi, 0")
        I(f"v_sub_u32 v{t1}, v{lane}, v{t0}")
        I(f"v_and_b32 v{t1}, 15, v{t1}")
        I(f"v_add_lshl_u32 v{t1}, v{t1}, v{t0}, 5")
        I(f"v_lshl_add_u32 v{t0}, v{lane}, 2, s{sNT}")
        I(f"ds_write_b32 v{t0}, v{t1}")
        I("s_mov_b32 exec_hi, -1")
        I(f"s_mul_i32 s10, s{sB}, {BN}")
        for d, lo_, hi_, k in ((sO1, sWIN, sF1, 1), (sO0, sF0, sB0E, 0)):
            I(f"s_add_u32 s11, s10, s{lo_}")
            I(f"s_add_u32 s{d+2}, s10, s{hi_}")
            I(f"s_min_u32 s11, s11, {N}")
            I(f"s_min_u32 s{d+2}, s{d+2}, {N}")
            I(f"s_sub_u32 s{d+2}, s{d+2}, s11")
            I("s_lshl_b32 s11, s11, 7")
            I(f"s_lshl_b32 s{d+2}, s{d+2}, 7")
            I(f"s_add_u32 s{d}, s{sOUT}, s11")
            I(f"s_addc_u32 s{d+1}, s{sOUT+1}, 0")
            I(f"s_mul_i32 s{sOK+k}, s{lo_}, -128")
        I(f"s_and_b32 s10, s{sSH}, 12")
        I("s_lshl_b32 s10, s10, 2")
        I(f"s_bfm_b64 {sp(sCM)}, 16, s10")
    L("L_CA")
    for x_ in trw(vWA, 0): I(x_)
    I(f"s_cmp_eq_u32 s{sXT}, 0")
    I("s_cbranch_scc1 L_XT2R")
    I(f"s_waitcnt vmcnt({(4 if JE else 0) + (4 if OLP == 2 else 0)})")
    L("L_XT2")
    I(f"s_mov_b64 {sp(sTM)}, 0")
    for i in range(4):
        I(f"v_cmp_ne_u32 vcc, s{sK}, v{xg+4*i+1}")
        I(f"s_and_b64 vcc, vcc, {sp(mk(i,3))}")
        I(f"s_or_b64 {sp(sTM)}, {sp(sTM)}, vcc")
    I("s_cbranch_scc1 L_XT2B")
    I(f"s_cmp_eq_u32 s{sSKIP}, 0")
    I("s_cbranch_scc1 L_XT2R")
    for i in range(4):
        g_ = xg + 4*i
        I(f"s_mov_b64 exec, {sp(mk(i,3))}")
        I(f"s_cbranch_execz L_XS{i}")
        I(f"v_bfe_u32 v{g_+1}, v{g_}, 18, 8")
        I(f"v_lshlrev_b32 v{g_+1}, 2, v{g_+1}")
        I(f"v_add_u32 v{g_+3}, {MAP}, v{g_+1}")
        I(f"ds_read_b32 v{g_+3}, v{g_+3}")
        put(rec_ops(g_, g_+2, 0, vEB+i, g_+1, g_+2))
        I(f"v_and_b32 v{g_}, 0xffff, v{g_}")
        I("s_waitcnt lgkmcnt(0)")
        I(f"ds_add_rtn_u32 v{g_+3}, v{g_+3}, v{one} offset:{CNT}")
        I("s_waitcnt lgkmcnt(0)")
        I(f"ds_write2st64_b32 v{g_+3}, v{g_}, v{g_+2} {W2}")
        L(f"L_XS{i}")
    I("s_mov_b64 exec, -1")
    L("L_XT2R")
    I(f"s_cmp_ge_u32 s{sWP}, 4")
    I("s_cbranch_scc1 L_EP0")
    epi_prep(u(2), u(3))
    L("L_EP0")
    stamp("d7")
    I("s_waitcnt vmcnt(0) lgkmcnt(0)")
    stamp(10)
    I("s_barrier")
    def lens_from_cnt(t):
        I(f"s_lshl_b32 s10, s{sW}, 3")
        I(f"v_mov_b32 v{t}, s10")
        I(f"ds_read_b64 {rr(t,2)}, v{t} offset:{CNT}")
        I("s_waitcnt lgkmcnt(0)")
        I(f"v_readfirstlane_b32 s{sTM}, v{t}")
        I(f"v_readfirstlane_b32 s{sTM+1}, v{t+1}")
        I(f"s_sub_u32 s10, s{sL}, {R0 - BIAS}")
        I(f"s_sub_u32 s{sTM}, s{sTM}, s10")
        I(f"s_sub_u32 s{sTM+1}, s{sTM+1}, s10")
        I(f"s_sub_u32 s{sTM+1}, s{sTM+1}, {LWB}")
        ntiles(sTM, sTM + 1)
    I(f"s_mov_b32 s10, {f2u(1e-6):#x}")
    I(f"ds_read_b128 {rr(vQD,4)}, v{vARX}")
    I(f"ds_read_b32 v{vEI}, v{vARE}")
    stamp(11)
    I(f"v_lshrrev_b32 v{u(0)}, 2, v{lane}")
    I(f"v_and_b32 v{u(0)}, 12, v{u(0)}")
    I(f"v_subrev_u32 v{u(0)}, s{sSH}, v{u(0)}")
    I("s_waitcnt lgkmcnt(0)")
    STAG = opt("stag", 1)
    if STAG:
        I(f"s_cmp_ge_u32 s{sWP}, 4")
        I("s_cbranch_scc1 L_LATE0")
    put(dma_tile())
    L("L_LATE0")
    aw, al, ab = vEO, vEO + 1, vEO + 2
    I(f"s_lshl_b32 s{sTM}, s{sWS0}, 5")
    I(f"s_lshl_b32 s{sTM+1}, s{sWS1}, 5")
    I(f"s_mov_b32 vcc_lo, 0xff00ff00")
    I(f"s_mov_b32 vcc_hi, 0xff00ff00")
    I(f"v_mov_b32 v{aw}, s{sTM+1}")
    I(f"v_mov_b32 v{al}, s{sTM}")
    I(f"v_cndmask_b32 v{aw}, v{aw}, v{al}, vcc")
    I(f"v_and_b32 v{al}, 4, v{lane}")
    I(f"v_lshlrev_b32 v{al}, 6, v{al}")
    I(f"v_lshl_add_u32 v{al}, v{vcS}, 2, v{al}")
    I(f"v_sub_u32 v{al}, v{al}, v{aw}")
    I(f"v_and_b32 v{ab}, 48, v{lane}")
    I(f"s_movk_i32 s{sTM}, {(PL-32)//8}")
    I(f"v_mad_u32_u24 v{ab}, v{vcS}, s{sTM}, v{ab}")
    I(f"s_mov_b32 s{sTM}, {OWN}")
    I(f"v_add3_u32 v{ab}, v{ab}, v{aw}, s{sTM}")
    for t_ in range(2):
        if t_: I(f"v_add_u32 v{al}, 0x80, v{al}")
        I(f"v_and_b32 v{aw}, 0x1ff, v{al}")
        I(f"v_add_u32 v{aw}, v{aw}, v{ab}")
        for s in range(2): I(f"ds_read_b128 {rr(vX+8*t_+4*s,4)}, v{aw} offset:{64*s}")
    I(f"s_mov_b32 s{sTM}, {f2u(-LOG2E):#x}")
    I(f"s_mov_b32 s{sTM+1}, s{sTM}")
    for t_ in range(2):
        for s in range(2):
            I(f"s_waitcnt lgkmcnt({3 - 2*t_ - s})")
            for n in range(4):
                D = vQ + 8*n + 4*t_
                I(m16(D, vX+8*t_+4*s, vWA+8*n+4*s, D if s else None))
    I("s_mov_b32 s11, s10")
    I(f"v_mov_b32 v{u(1)}, s10")
    for i in range(8): I(f"v_mov_b64 {rr(DEN(0,0)+2*i,2)}, {sp(10)}")
    for i in range(4):
        I(f"v_cmp_ne_u32 vcc, {-i}, v{u(0)}")
        I(f"v_mov_b64 {rr(NUM(0,0)+4*i,2)}, 0")
        I(f"v_mov_b64 {rr(NUM(0,0)+4*i+2,2)}, 0")
        I(f"v_cndmask_b32 v{DEN(1,0)+i}, 0, v{u(1)}, vcc")
    for i in range(8): I(f"v_mov_b64 {rr(NUM(1,0)+2*i,2)}, 0")
    for n in range(1, 4):
        for i in range(2): I(f"v_mov_b64 {rr(DEN(1,n)+2*i,2)}, {rr(DEN(1,0)+2*i,2)}")
    for i in range(16): I(f"v_pk_mul_f32 {rr(vQ+2*i,2)}, {rr(vQ+2*i,2)}, {sp(sTM)}")
    for i in range(16): I(f"v_cvt_pk_bf16_f32 v{vCA+i}, v{vQ+2*i}, v{vQ+2*i+1}")
    for i in range(16): I(f"v_permlane32_swap_b32 v{vCA+16+i}, v{vCA+i}")
    I(f"s_mov_b32 s{sCI}, -1")
    I(f"s_mov_b64 {sp(sMSK)}, 0")
    I(f"s_mov_b32 s{sR0}, 0")
    I(f"s_mov_b32 s{sCNT}, 0")
    if STAG:
        I(f"s_cmp_lt_u32 s{sWP}, 4")
        I("s_cbranch_scc1 L_HAD0")
        put(dma_tile())
        epi_prep(u(2), u(3))
        L("L_HAD0")
    I(f"s_cmp_eq_u32 s{sST}, 0")
    I("s_cbranch_scc1 L_GO")
    lens_from_cnt(u(0))
    L("L_GO")
    for m in range(2): I(f"ds_read_u16 v{vEA+m}, v{vARO} offset:{64*m}")
    I(f"ds_read_b128 {rr(vQD,4)}, v{vARX} offset:{LWB}")
    I(f"ds_read_b32 v{vEI}, v{vARE} offset:{LWB}")
    I(f"s_lshr_b32 s10, s{sW}, 1")
    I("s_lshl_b32 s10, s10, 8")
    I(f"s_add_u32 s10, s10, {PRG}")
    I(f"v_lshl_add_u32 v{vPA}, v{lane}, 2, s10")
    I(f"s_bitcmp1_b32 s{sW}, 0")
    I(f"s_cselect_b32 s{sSG}, -1, 1")
    I(f"s_max_i32 s10, s{sN}, 1")
    I("s_sub_u32 s10, s10, 1")
    I(f"s_mul_i32 s10, s{sSG}, s10")
    I("s_lshl_b32 s10, s10, 24")
    I(f"v_mov_b32 v{vQ}, s10")
    I(f"ds_add_u32 v{vPA}, v{vQ}")
    I(f"v_mov_b32 v{vC1}, 0")
    I("s_mov_b32 exec_hi, 0")
    I(f"v_add_u32 v{vC1}, 0x200, v{vcEO}")
    I("s_mov_b32 exec_hi, -1")
    for i in range(16): I(f"v_mov_b64 {rr(vQ+2*i,2)}, 0")
    for i in range(2): I(f"v_mov_b64 {rr(vS+2*i,2)}, 0")
    I("s_waitcnt lgkmcnt(0)")
    put(eafix())
    stamp(12)
    I("s_waitcnt vmcnt(0)")
    stamp(13)
    cstamp(56)
    for m in range(2): I(f"ds_read_b128 {rr(vEO+4*m,4)}, v{vEA+m}")
    for m, s in ORD: I(xread(m, s))
    I(f"s_cmp_lt_i32 s{sN}, 1")
    I("s_cbranch_scc1 L_DONE")
    g = g_mfmas(vP, 0, 0)
    I("s_waitcnt lgkmcnt(4)")
    for x_ in g[:4]: I(x_)
    I("s_waitcnt lgkmcnt(0)")
    for x_ in g[4:]: I(x_)
    I(f"s_mov_b32 s{sT}, 1")
    I(f"s_cmp_eq_u32 s{sN}, 1")
    I("s_cbranch_scc1 L_LT0")
    put(dma_tile())
    for cp in ((1, 0) if FAIR else (0,)):
        sw = lambda par: [f"s_cmp_ge_i32 s{sRM}, {opt('fth', 1)}", f"s_cbranch_scc{1-cp} L_PB{par}{1-cp}", f"L_PB{par}{cp}:"] if FAIR else []
        body = phase(0, 0, cp) + sw(0) + phase(0, 1, cp) + [f"s_cmp_ge_u32 s{sT}, s{sN}", "s_cbranch_scc1 L_LT1"]
        body += phase(1, 0, cp) + sw(1) + phase(1, 1, cp) + [f"s_cmp_lt_u32 s{sT}, s{sN}", f"s_cbranch_scc1 L_LOOP{cp}"]
        check_body(body)
        DBG = opt("dbg", "")
        if "nodma" in DBG: body = [b for b in body if not b.startswith("buffer_load")]
        if "dropS" in DBG: body = [b for b in body if not b.startswith("v_smfmac")]
        if "halfrcp" in DBG: body = [b for b in body if not (b.startswith("v_rcp") and int(b.split("v")[-1]) & 1)]
        if "droppk" in DBG: body = [b for b in body if not b.startswith("v_pk_mul")]
        if "halfx" in DBG: body = [b for b in body if not (b.startswith("v_mfma") and (f"v[{vX+4}:" in b or f"v[{vX+12}:" in b))]
        if "nolds" in DBG: body = [b for b in body if not (b.startswith("ds_read_b128") and f"v{vAX}" in b)]
        emit(".p2align 6")
        L(f"L_LOOP{cp}")
        put(body)
        if cp: I("s_branch L_LT0")
    if opt("cpe", 0):
        I("s_branch L_LT0")
        for cp in ((1, 0) if FAIR else (0,)):
            for par in range(2):
                L(f"L_CE{par}{cp}")
                I(f"s_getpc_b64 {sp(sA)}")
                I(f"v_and_b32 v{vEI}, 0xfc, v{vPA}")
                I(f"v_lshlrev_b32 v{vEI}, 5, v{vEI}")
                I(f"global_load_dword v{vEI}, v{vEI}, {sp(sA)}")
                I(f"s_branch L_ND{par}{cp}")
    for par in range(2):
        L(f"L_LT{par}")
        I(f"s_cmp_lg_u32 s{sHF}, 0")
        I(f"s_cbranch_scc1 L_LH{par}")
        put(last_tile(par, 0))
        I("s_branch L_DONE")
        L(f"L_LH{par}")
        put(last_tile(par, 1))
        if par == 0: I("s_branch L_DONE")
    L("L_DONE")
    I(f"v_mbcnt_lo_u32_b32 v{lane}, -1, 0")
    I(f"v_mbcnt_hi_u32_b32 v{lane}, -1, v{lane}")
    I(f"s_cmp_lg_u32 s{sMORE}, 0")
    I("s_cbranch_scc1 L_SLOW")
    L("L_EPI")
    stamp(14)
    cstamp(57)
    I(f"s_setprio {opt('epr', 0)}")
    assert STAG
    e = lambda i: vCA + i
    xd = vWV
    nd = lambda w, i: e(16 + 4*w + i)
    sO = [sO0, sO1]
    I(f"v_and_b32 v{e(0)}, 48, v{lane}")
    I(f"v_and_b32 v{e(3)}, 15, v{lane}")
    I(f"v_add_u32 v{e(5)}, s{sNT}, v{e(0)}")
    I(f"v_lshl_add_u32 v{e(6)}, v{e(3)}, 2, s{sNT}")
    I("s_waitcnt lgkmcnt(0)")
    for w in range(2): I(f"ds_read_b128 {rr(nd(w,0),4)}, v{e(5)} offset:{64*w}")
    I(f"ds_read2_b32 {rr(e(8),2)}, v{e(6)} offset0:0 offset1:16")
    I(f"v_bfe_u32 v{e(1)}, v{lane}, 2, 3")
    I(f"v_lshrrev_b32 v{e(2)}, 5, v{lane}")
    I(f"v_lshl_add_u32 v{e(1)}, v{e(2)}, 4, v{e(1)}")
    I(f"v_mul_u32_u24 v{e(1)}, {WR}, v{e(1)}")
    I(f"s_mov_b32 s10, {WUI}")
    I(f"v_add3_u32 v{e(1)}, v{e(1)}, v{vcS}, s10")
    wu = [f"ds_read_b64_tr_b16 {rr(vWB+8*n+4*s+2*uu,2)}, v{e(1)} offset:{(32*s + 8*uu)*WR + 32*n}" for s in range(2) for n in range(4) for uu in range(2)]
    for x_ in wu[:8]: I(x_)
    I(f"s_movk_i32 s10, {(PL-32)//8}")
    I(f"v_mad_u32_u24 v{e(0)}, v{vcS}, s10, v{e(0)}")
    I(f"s_mov_b32 s10, {OWN}")
    I(f"v_lshl_add_u32 v{e(5)}, v{e(3)}, 3, s10")
    for w in range(2): I(f"v_lshl_add_u32 v{e(10+w)}, v{e(3)}, 3, s{sOK+w}")
    I(f"s_mov_b64 exec, {sp(sCM)}")
    I(f"s_and_b32 s11, s{sSH}, 19")
    for i in range(4):
        I(f"s_cmp_eq_u32 s11, {i}")
        I(f"s_cbranch_scc1 L_NS{i}")
    L("L_NSR")
    I("s_mov_b64 exec, -1")
    I("s_waitcnt lgkmcnt(8)")
    for w in range(2):
        for i in range(4):
            I(f"v_add_u32 v{e(12)}, v{nd(w,i)}, v{e(5)}")
            I(f"ds_read_b64 {rr(xd+8*w+2*i,2)}, v{e(12)} offset:{i*(PL-32)}")
    for w in range(2):
        I(f"v_add3_u32 v{e(8+w)}, v{e(8+w)}, v{e(0)}, s10")
        for s in range(2): I(f"ds_read_b128 {rr(vX+8*w+4*s,4)}, v{e(8+w)} offset:{64*s}")
    for x_ in wu[8:]: I(x_)
    stamp("e0")
    for w in (1, 0):
        for k in range(16): I(f"v_rcp_f32 v{DEN(w,0)+k}, v{DEN(w,0)+k}")
    I("s_waitcnt lgkmcnt(12)")
    for w in range(2):
        XF = vP if w == 0 else vQ
        for i in range(4):
            for h in range(2):
                I(f"v_lshlrev_b32 v{XF+8*h+i}, 16, v{xd+8*w+2*i+h}")
                I(f"v_and_b32 v{XF+8*h+4+i}, 0xffff0000, v{xd+8*w+2*i+h}")
    for w in range(2):
        XF = vP if w == 0 else vQ
        for k in range(0, 16, 2): I(f"v_pk_fma_f32 {rr(NUM(w,0)+k,2)}, {rr(NUM(w,0)+k,2)}, {rr(DEN(w,0)+k,2)}, {rr(XF+k,2)}")
    I("s_waitcnt lgkmcnt(0)")
    stamp("e1")
    k = 0
    for w in range(2):
        for s in range(2):
            for n in range(4):
                I(m16(NUM(w,n), vX+8*w+4*s, vWB+8*n+4*s, NUM(w,n)))
                if k < 8: I(f"v_lshl_add_u32 v{nd(k>>2,k&3)}, v{nd(k>>2,k&3)}, 2, v{e(10+(k>>2))}")
                k += 1
    for w in range(2):
        XF = vP if w == 0 else vQ
        for i in range(4):
            if not opt("pkm", 1):
                for n in range(4): I(f"v_max_f32 v{NUM(w,n)+i}, v{NUM(w,n)+i}, v{XF+4*n+i}")
            for h in range(2): I(f"v_cvt_pk_bf16_f32 v{DEN(w,0)+2*i+h}, v{NUM(w,2*h)+i}, v{NUM(w,2*h+1)+i}")
            if opt("pkm", 1):
                for h in range(2): I(f"v_pk_max_f16 v{DEN(w,0)+2*i+h}, v{DEN(w,0)+2*i+h}, v{xd+8*w+2*i+h}")
            I(f"buffer_store_dwordx2 {rr(DEN(w,0)+2*i,2)}, v{nd(w,i)}, {sq(sO[w])}, 0 offen{pol(OP)}")
    stamp("e2")
    stamp_out()
    L("L_END")
    I("s_endpgm")
    for i in range(4):
        L(f"L_NS{i}")
        for k in range(8): I(f"v_add_f32 v{vACC+4*k+i}, v{vACC+4*k+i}, v{vACC+32+4*k+i}")
        I("s_branch L_NSR")
    for i in range(4):
        L(f"L_RT{i}")
        I("s_waitcnt vmcnt(0)")
        spin()
        for k in range(i, 4): poll_load(k)
        I("s_waitcnt vmcnt(0)")
        I(f"s_branch L_PW{i}")
    L("L_XT2B")
    spin()
    xload("b")
    I("s_waitcnt vmcnt(0)")
    I("s_branch L_XT2")
    L("L_OVF")
    I(f"s_mov_b32 s{sSKIP}, 0")
    I(f"s_mov_b32 s{sN}, 0")
    I(f"s_mov_b32 s{sST}, 0")
    I(f"s_mov_b32 s{sMORE}, 4")
    I("s_waitcnt lgkmcnt(0)")
    I("s_branch L_CA")
    q = vCA
    L("L_POVF")
    I("s_movk_i32 s11, 1986")
    for i in range(4):
        I(f"v_mul_u32_u24 v{q+i}, s11, v{vHS+i}")
        I(f"v_lshrrev_b32 v{q+i}, 16, v{q+i}")
    I(f"v_add_u32 v{q+5}, v{q}, v{q+1}")
    I(f"v_add_u32 v{q+6}, v{q+5}, v{q+2}")
    I(f"v_add_u32 v{q+7}, v{q+6}, v{q+3}")
    I(f"v_mov_b32 v{q+8}, v{q+7}")
    wave_scan(q + 8)
    I("s_nop 0")
    I(f"v_sub_u32 v{q+4}, v{q+8}, v{q+7}")
    I(f"v_add_u32 v{q+7}, v{q+4}, v{q+6}")
    I(f"v_add_u32 v{q+6}, v{q+4}, v{q+5}")
    I(f"v_add_u32 v{q+5}, v{q+4}, v{q}")
    for i in range(4): I(f"v_lshl_or_b32 v{q+4+i}, v{q+i}, 16, v{q+4+i}")
    I(f"v_add_u32 v{q+8}, {HDR}, v{l16}")
    I(f"ds_write_b128 v{q+8}, {rr(q+4,4)}")
    I("s_lshl_b32 s10, s2, 10")
    I(f"s_add_u32 s10, s10, {WS_HD}")
    I(f"buffer_store_dwordx4 {rr(q+4,4)}, v{l16}, {sq(sWS)}, s10 offen sc1")
    for i in range(8):
        I(f"v_and_b32 v{q+10+i}, 0x3fc, v{vHA+i}")
        I(f"v_add_u32 v{q+10+i}, {HDR}, v{q+10+i}")
        I(f"ds_read_u16 v{q+10+i}, v{q+10+i}")
    I("s_waitcnt lgkmcnt(0)")
    for i in range(4):
        I(f"v_cmpx_lt_u32 vcc, {33*(CAP+8)}, v{vHD+i}")
        I(f"v_or_b32 v{vO+4*i+1}, 0x10000, v{vO+4*i+1}")
        I("s_mov_b64 exec, -1")
    I(f"s_mul_i32 s10, s2, {DCH}")
    I(f"s_mov_b32 s{sTM}, {WS_RECS}")
    I(f"s_mov_b32 s{sTM+1}, {WS_LEID}")
    for i in range(NR):
        I(f"v_mul_u32_u24 v{q}, s11, v{vRK1+i}")
        I(f"v_lshrrev_b32 v{q}, 16, v{q}")
        I(f"v_add3_u32 v{q}, v{q}, v{q+10+i}, s10")
        I(f"v_lshlrev_b32 v{q+1}, 2, v{q}")
        I(f"v_cmpx_le_u32 vcc, {33*(CAP+8)}, v{vRK1+i}")
        I(f"s_cbranch_execz L_PO{i}")
        I(f"buffer_store_byte v{idr(i)}, v{q}, {sq(sWS)}, s{sTM+1} offen sc1")
        I(f"buffer_store_dword v{vSR+i}, v{q+1}, {sq(sWS)}, s{sTM} offen sc1")
        L(f"L_PO{i}")
        I("s_mov_b64 exec, -1")
    I("s_waitcnt vmcnt(0) lgkmcnt(0)")
    I("s_barrier")
    I("s_branch L_POUT")
    SB = 288
    t0, t1, t2, t3 = vP, vP+1, vP+2, vP+3
    L("L_SLOW")
    I("s_setprio 0")
    I(f"s_lshl_b32 s10, s{sWP}, 6")
    I(f"v_add_u32 v{tid}, s10, v{lane}")
    I(f"s_cmp_lg_u32 s{sMORE}, 4")
    I("s_cbranch_scc1 L_SL1")
    I(f"s_mov_b32 s{sMORE}, 1")
    I(f"v_and_b32 v{t0}, 0xff, v{tid}")
    I(f"v_lshlrev_b32 v{t1}, 7, v{t0}")
    I(f"buffer_load_dword v{t2}, v{t1}, {sq(sCEL)}, 0 offen offset:4 sc1")
    I(f"v_lshlrev_b32 v{t1}, 10, v{t0}")
    I(f"s_lshl_b32 s10, s{sB}, 2")
    I(f"s_add_u32 s10, s10, {WS_HD}")
    I(f"buffer_load_dword v{t3}, v{t1}, {sq(sWS)}, s10 offen sc1")
    I(f"v_lshlrev_b32 v{t0}, 2, v{t0}")
    I(f"v_add_u32 v{t0}, {HDR}, v{t0}")
    I("s_waitcnt vmcnt(0)")
    I(f"v_and_b32 v{t2}, 0x10000, v{t2}")
    I(f"v_cmp_ne_u32 vcc, 0, v{t2}")
    I(f"v_mov_b32 v{t2}, {(CAP+8) << 16}")
    I("s_nop 0")
    I(f"v_cndmask_b32 v{t2}, v{t2}, v{t3}, vcc")
    I(f"ds_write_b32 v{t0}, v{t2}")
    I("s_waitcnt lgkmcnt(0)")
    I("s_barrier")
    L("L_SL1")
    I(f"s_add_u32 s{sR0}, s{sR0}, {SB}")
    I(f"s_cmp_lt_u32 s{sR0}, s{sCNT}")
    I("s_cbranch_scc1 L_BATCH")
    L("L_FIND")
    I(f"s_cmp_lg_u64 {sp(sMSK)}, 0")
    I("s_cbranch_scc1 L_GOT")
    I(f"s_add_u32 s{sCI}, s{sCI}, 1")
    I(f"s_cmp_ge_u32 s{sCI}, 4")
    I("s_cbranch_scc1 L_EPI")
    I(f"s_lshl_b32 s10, s{sCI}, 8")
    I(f"s_add_u32 s10, s10, {HDR}")
    I(f"v_lshl_add_u32 v{t0}, v{lane}, 2, s10")
    I(f"ds_read_u16 v{t0}, v{t0} offset:2")
    I("s_waitcnt lgkmcnt(0)")
    I(f"v_cmp_lt_u32 {sp(sMSK)}, s{sSKIP}, v{t0}")
    I("s_nop 3")
    I("s_branch L_FIND")
    L("L_GOT")
    I(f"s_ff1_i32_b64 s10, {sp(sMSK)}")
    I(f"s_bitset0_b64 {sp(sMSK)}, s10")
    I(f"s_lshl_b32 s11, s{sCI}, 6")
    I(f"s_add_u32 s{sCUR}, s10, s11")
    I(f"s_lshl_b32 s10, s{sCUR}, 2")
    I(f"s_add_u32 s10, s10, {HDR}")
    I(f"v_mov_b32 v{t0}, s10")
    I(f"ds_read_b32 v{t0}, v{t0}")
    I("s_waitcnt lgkmcnt(0)")
    I(f"v_readfirstlane_b32 s10, v{t0}")
    I("s_nop 3")
    I(f"s_lshr_b32 s{sCNT}, s10, 16")
    I(f"s_and_b32 s{sST}, s10, 0xffff")
    I(f"s_mov_b32 s{sR0}, s{sSKIP}")
    L("L_BATCH")
    I("s_waitcnt vmcnt(0)")
    I("s_barrier")
    prefill(vP + 4)
    I(f"v_and_b32 v{t0}, 15, v{lane}")
    I(f"v_mul_u32_u24 v{t1}, {LWB}, v{t0}")
    I(f"v_add_u32 v{t1}, {BIAS}, v{t1}")
    I(f"v_lshlrev_b32 v{t0}, 2, v{t0}")
    I(f"ds_write_b32 v{t0}, v{t1} offset:{CNT}")
    t1, t4, t5 = vQ, vQ + 2, vQ + 3
    I(f"v_add_u32 v{t0}, s{sR0}, v{tid}")
    I(f"s_mul_i32 s{sTM+2}, s{sCUR}, {CH}")
    I(f"s_mul_i32 s11, s{sCUR}, {DCH}")
    I(f"s_add_u32 s11, s11, s{sST}")
    I(f"s_lshl_b32 s{sTM}, s11, 2")
    I(f"s_add_u32 s{sTM}, s{sTM}, {WS_RECS}")
    I(f"v_lshl_add_u32 v{t2}, v{t0}, 2, s{sTM}")
    I(f"s_add_u32 s{sTM}, s11, {WS_LEID}")
    I(f"v_add_u32 v{t3}, s{sTM}, v{t0}")
    I(f"s_mul_i32 s10, s{sB}, {RS}")
    I(f"s_lshl_b32 s{sTM}, s{sCUR}, 7")
    I(f"s_add_u32 s10, s10, s{sTM}")
    I(f"s_add_u32 s10, s10, {WS_CELL}")
    I(f"v_and_b32 v{t4}, 7, v{t0}")
    I(f"v_lshl_add_u32 v{t4}, v{t4}, 4, s10")
    I(f"v_lshrrev_b32 v{t5}, 3, v{t0}")
    I(f"v_cmpx_gt_u32 vcc, {CAP+8}, v{t0}")
    I(f"v_add_u32 v{t2}, {XOFF}, v{t4}")
    I(f"v_add_u32 v{t3}, 8, v{t2}")
    I(f"v_cmpx_gt_u32 vcc, {CAP}, v{t0}")
    I(f"v_lshl_add_u32 v{t2}, v{t5}, 2, v{t4}")
    I(f"v_add3_u32 v{t3}, v{t4}, v{t5}, 12")
    I("s_mov_b64 exec, -1")
    I(f"s_add_u32 s10, s{sR0}, {SB}")
    I(f"s_min_u32 s10, s10, s{sCNT}")
    I(f"v_cmp_gt_u32 vcc, s10, v{t0}")
    I(f"v_mov_b32 v{t4}, 0x7ffffff0")
    I("s_nop 0")
    I(f"v_cndmask_b32 v{t2}, v{t4}, v{t2}, vcc")
    I(f"v_cndmask_b32 v{t3}, v{t4}, v{t3}, vcc")
    I(f"buffer_load_dwordx2 {rr(t1,2)}, v{t2}, {sq(sWS)}, 0 offen sc1")
    I(f"buffer_load_ubyte v{t3}, v{t3}, {sq(sWS)}, 0 offen sc1")
    I("s_waitcnt lgkmcnt(0)")
    I("s_barrier")
    I("s_waitcnt vmcnt(0)")
    I(f"v_cmp_ne_u32 vcc, 3, v{t5}")
    I(f"v_cmp_eq_u32 {sp(sA)}, s{sK}, v{t1+1}")
    I(f"v_mov_b32 v{t4}, s{sTM+2}")
    I(f"s_or_b64 exec, vcc, {sp(sA)}")
    I(f"v_cmpx_ne_u32 vcc, 0, v{t1}")
    I(f"v_bfe_u32 v{t2}, v{t1}, 18, 8")
    I(f"v_lshlrev_b32 v{t2}, 2, v{t2}")
    I(f"v_add_u32 v{t0}, {MAP}, v{t2}")
    I(f"ds_read_b32 v{t0}, v{t0}")
    put(rec_ops(t1, t3, 0, t4, t2, t3))
    I(f"v_mov_b32 v{t2}, 4")
    I(f"v_and_b32 v{t1}, 0xffff, v{t1}")
    I("s_waitcnt lgkmcnt(0)")
    I(f"ds_add_rtn_u32 v{t0}, v{t0}, v{t2} offset:{CNT}")
    I("s_waitcnt lgkmcnt(0)")
    I(f"ds_write2st64_b32 v{t0}, v{t1}, v{t3} {W2}")
    I("s_mov_b64 exec, -1")
    I("s_waitcnt lgkmcnt(0)")
    I("s_barrier")
    listaddr(t2)
    I(f"ds_read_b128 {rr(vQD,4)}, v{vARX}")
    I(f"ds_read_b32 v{vEI}, v{vARE}")
    lens_from_cnt(t2)
    put(dma_tile())
    L("L_LAST")
    I("s_branch L_GO")

def regs_of(tok):
    tok = tok.strip()
    m = re.fullmatch(r"v\[(\d+):(\d+)\]", tok)
    if m: return list(range(int(m.group(1)), int(m.group(2)) + 1))
    m = re.fullmatch(r"v(\d+)", tok)
    if m: return [int(m.group(1))]
    return []
def parse(ins):
    op, _, rest = ins.partition(" ")
    ops = [o.strip().split(" ")[0] for o in rest.split(",")] if rest else []
    if op.startswith("ds_read") or "rtn" in op: return "ds", regs_of(ops[0]), regs_of(ops[1])
    return "other", [], sum((regs_of(o) for o in ops), [])
def check_body(body):
    s2 = [b for b in body if not b.endswith(":")]
    pend = []
    for i, ins in enumerate(s2 * 3):
        k, d, s = parse(ins)
        m = re.search(r"lgkmcnt\((\d+)\)", ins)
        if m:
            while len(pend) > int(m.group(1)): pend.pop(0)
        pr = set(sum(pend, []))
        for r in d + s:
            assert r not in pr, f"pending LDS reg v{r} used by {ins} @{i}"
        if k == "ds":
            pend.append(d); assert len(pend) <= 15

hdr = open("/code/" + NAME + ".s.ref").read().split("\n")
for l in hdr:
    if l.startswith("; Override"): break
    out.append(l)
if opt("list", 0): out.append(f"; @launch kernel={NAME}_kernel grid=(256,1,1) block=(512,1,1) lds={LDS}")
else: out.append(f"; @launch grid=(256,1,1) block=(512,1,1) lds={LDS}")
LEAK = opt("leak", "")
if LEAK: out.append("; @launch kernel=leak_kernel grid=(1,1,1) block=(256,1,1) lds=64")
emit('.amdgcn_target "amdgcn-amd-amdhsa--gfx950"\n.text')
kernel()
if LEAK:
    kind, nm = LEAK[0], LEAK[1:]
    si = STN.index(nm)
    emit(".globl leak_kernel\n.p2align 8\n.type leak_kernel,@function\nleak_kernel:")
    I("s_cmp_lg_u32 s2, 0")
    I("s_cbranch_scc1 LK_END")
    I("s_load_dwordx2 s[4:5], s[0:1], 88")
    I("v_min_u32 v1, 254, v0")
    I("v_lshlrev_b32 v1, 11, v1")
    I("v_mov_b32 v2, 0")
    I("v_mov_b32 v3, 0x7fffffff")
    I("v_mov_b32 v4, 0")
    I("ds_write2_b32 v2, v3, v4 offset0:0 offset1:1")
    I("s_waitcnt lgkmcnt(0)")
    I(f"s_add_u32 s4, s4, {WS_TS}")
    I("s_addc_u32 s5, s5, 0")
    I("global_load_dword v5, v2, s[4:5]")
    for w in range(8):
        I(f"global_load_dword v{8+w}, v1, s[4:5] offset:{256*w}")
        I(f"global_load_dword v{16+w}, v1, s[4:5] offset:{256*w + 4*si}")
    I("s_barrier")
    I("s_waitcnt vmcnt(0)")
    I("v_subrev_u32 v5, 1000, v5")
    for w in range(16): I(f"v_sub_u32 v{8+w}, v{8+w}, v5")
    for w in range(8):
        I(f"ds_min_u32 v2, v{8+w}")
        I(f"ds_{'max' if kind == 'm' else 'add'}_u32 v2, v{16+w} offset:4")
    I("s_waitcnt lgkmcnt(0)")
    I("s_barrier")
    I("ds_read_b64 v[6:7], v2")
    I("s_waitcnt lgkmcnt(0)")
    I("v_lshlrev_b32 v6, 2, v6")
    I("v_lshlrev_b32 v7, 2, v7" if kind == 'm' else "v_lshrrev_b32 v7, 9, v7")
    I("v_sub_u32 v6, v7, v6")
    I("v_min_u32 v6, 20000, v6")
    I("s_nop 0")
    I("v_readfirstlane_b32 s6, v6")
    I("s_memrealtime s[8:9]")
    I("s_waitcnt lgkmcnt(0)")
    L("LK_L")
    I("s_memrealtime s[10:11]")
    I("s_waitcnt lgkmcnt(0)")
    I("s_sub_u32 s7, s10, s8")
    I("s_cmp_lt_u32 s7, s6")
    I("s_cbranch_scc1 LK_L")
    L("LK_END")
    I("s_endpgm")
emit(f""".section .rodata,"a"
.p2align 6
.amdhsa_kernel {NAME}_kernel
  .amdhsa_next_free_vgpr 256
  .amdhsa_next_free_sgpr 102
  .amdhsa_accum_offset 256
  .amdhsa_group_segment_fixed_size 0
  .amdhsa_kernarg_size 96
  .amdhsa_user_sgpr_count 2
  .amdhsa_user_sgpr_kernarg_segment_ptr 1
  .amdhsa_system_sgpr_workgroup_id_x 1
.end_amdhsa_kernel""")
if LEAK:
    emit(""".p2align 6
.amdhsa_kernel leak_kernel
  .amdhsa_next_free_vgpr 32
  .amdhsa_next_free_sgpr 16
  .amdhsa_accum_offset 32
  .amdhsa_group_segment_fixed_size 0
  .amdhsa_kernarg_size 96
  .amdhsa_user_sgpr_count 2
  .amdhsa_user_sgpr_kernarg_segment_ptr 1
  .amdhsa_system_sgpr_workgroup_id_x 1
.end_amdhsa_kernel""")
if TS: out.insert(0, "; stamps " + " ".join(STN))
path = sys.argv[1] if len(sys.argv) > 1 else "/code/" + NAME + ".s"
open(path, "w").write("\n".join(out) + "\n")
print("wrote", path, len(out), "lines; lds", LDS)
```

```python
import sys, re, struct

NAME = "standalone__edge_featured_mpnn_gatedgcn__graph"
OPT = dict(kv.split("=") for kv in sys.argv[2:])
def opt(k, d):
    v = OPT.get(k)
    if v is None: return d
    return type(d)(v)

N, E = 50000, 800000
CH = 3128
BN = 196
XIL = opt('xil', 0)
RS = (513 if XIL else opt('rs', 257)) * 128
XOFF = 256 * 128 if XIL else 256 * RS
WS_CELL = 0x10000
WS_RECS = 0x1200000
WS_LEID = 0x1680000
WS_HD = 0x17a0000
WS_USED = 0x1800000
WS_TS = 0x3000000
KINC = 0x02020202
CAP = 24
LOG2E = 1.4426950408889634
def f2u(f): return struct.unpack("<I", struct.pack("<f", f))[0]

out = []
def emit(s=""):
    for l in s.strip("\n").split("\n"):
        out.append(l.rstrip())
def I(s): out.append("    " + s)
def L(s): out.append(s + ":")
def C(s): out.append("    ; " + s)
def put(seq):
    for s in seq:
        if s.endswith(":"): L(s[:-1])
        else: I(s)
def rr(a, n): return f"v[{a}:{a+n-1}]"
def sp(a): return f"s[{a}:{a+1}]"
def sq(a): return f"s[{a}:{a+3}]"
def pol(p): return (" " + p.replace("_", " ")) if p else ""

def srd(d, lo, size, add=None, stride=0):
    if add is None:
        I(f"s_mov_b32 s{d}, s{lo}")
        I(f"s_mov_b32 s{d+1}, s{lo+1}" if not stride else f"s_or_b32 s{d+1}, s{lo+1}, {stride << 16:#x}")
    else:
        I(f"s_add_u32 s{d}, s{lo}, {add}")
        I(f"s_addc_u32 s{d+1}, s{lo+1}, 0")
    I(f"s_mov_b32 s{d+2}, {size}")
    I(f"s_mov_b32 s{d+3}, 0x20000")

def wave_scan(v, fill=None, half=False):
    def gap():
        if fill and len(fill) >= 2:
            I(fill.pop(0)); I(fill.pop(0))
        else: I("s_nop 1")
    for sh in (1, 2, 4, 8):
        gap()
        I(f"v_add_u32_dpp v{v}, v{v}, v{v} row_shr:{sh} row_mask:0xf bank_mask:0xf bound_ctrl:0")
    gap()
    I(f"v_add_u32_dpp v{v}, v{v}, v{v} row_bcast:15 row_mask:0xa bank_mask:0xf")
    if half: return
    gap()
    I(f"v_add_u32_dpp v{v}, v{v}, v{v} row_bcast:31 row_mask:0xc bank_mask:0xf")

TAB, ZROW, CNT, FLAG = 0, 512, 576, 640
HIST = 1024
ESTG = HIST + 4096
HIST1 = ESTG
EARLY = ESTG + 8192
LWB = 288 * 4
R0 = EARLY + 32768
R1 = R0 + 16 * LWB
XSTG = R1 + 16 * LWB
XI = 1056
SLOT = 4 * XI
OWN = XSTG + 8 * SLOT
PL = 52 * 128 + 32
WR = 160
WUI = OWN + 4 * PL
MAP = WUI + 64 * WR
HDR = MAP + 1024
PRG = HDR + 1024
NT = PRG + 1024
LDS = NT + 1024
WBI, WVI, WCI = EARLY, EARLY + 64 * WR, EARLY + 128 * WR
WAI = XSTG + 8192
LROW = 160
CIMG = R0
assert CIMG + 256 * LROW <= WAI and LDS <= 163840, LDS
BIAS = 8192
assert R1 < 65536 and R0 % 256 == 0 and R1 % 256 == 0
W2 = f"offset0:{(R0-BIAS)//256} offset1:{(R1-BIAS)//256}"

vWB, vWV, vCA, vACC = 0, 32, 64, 96
vX, vEO, vS = 160, 176, 184
vP, vQ, vR = 188, 204, 220
vQD = 236
vEI, vCH, vIDX, vCP, vAX, vcEO, vcS, vARX, vARE, vARO, vARS, vEA = 240, 241, 242, 243, 244, 245, 246, 247, 248, 249, 250, 251
lane, vTS, tid = 253, 254, 255
vC1, vPA = lane, tid
DEN = lambda w, n: vACC + 32 * w + 4 * n
NUM = lambda w, n: vACC + 32 * w + 16 + 4 * n
def m16(d, a, b, c=None):
    return f"v_mfma_f32_16x16x32_bf16 {rr(d,4)}, {rr(a,4)}, {rr(b,4)}, " + ("0" if c is None else rr(c, 4))
def s16(d, b): return f"v_smfmac_f32_16x16x64_bf16 {rr(d,4)}, {rr(vS,4)}, {rr(b,8)}, v{vIDX}"

sWP, sW, sB, sK = 3, 4, 5, 6
sWIN, sF0, sF1, sL = 7, 8, 9, 12
sA, sBt = 10, 11
sSTG, sES, s128 = 13, 14, 15
pX, pE, pSRC, pDST, pWA, pWB, pWC, pWU, pWV, pOUT, pDBG, pWS = 16, 18, 20, 22, 24, 26, 28, 30, 32, 34, 36, 38
sT, sN, sFM, sMORE, sSKIP, sXT, sWS0, sWS1, sB0E, sSH = 16, 17, 18, 19, 20, 21, 22, 23, 24, 25
sCI, sCUR, sR0, sCNT, sST, sEND = 26, 27, 28, 29, 30, 31
sMSK = 32
sTM = 34
sX, sEP, sOUT, sWS, sCEL, sD2 = 40, 44, 48, 52, 56, 60
sM = 64
sJ3, sEM = 96, 98
sSP = 100
sHF = 99
sSG, sRM = 101, 96

TS = opt("ts", 0)
STN = []
YP = opt("yp", "")
def stamp(i):
    if str(i) in YP.split("_"):
        k = YP.split("_").index(str(i))
        I(f"s_cmp_lt_u32 s{sWP}, 4")
        I(f"s_cbranch_scc1 L_YP{k}")
        I(f"s_setprio {1 - (k & 1)}")
        L(f"L_YP{k}")
    if not TS: return
    if isinstance(i, str) and i[0] not in opt("tsx", ""): return
    STN.append(str(i)); i = len(STN) - 1
    I("s_memrealtime vcc" if TS == 1 else "s_memtime vcc")
    I("s_waitcnt lgkmcnt(0)")
    I(f"v_writelane_b32 v{vTS}, vcc_lo, {i}")
def stamp_out():
    if not TS: return
    I("s_waitcnt vmcnt(0)")
    stamp(15)
    I("s_memtime vcc")
    I("s_waitcnt lgkmcnt(0)")
    I(f"v_writelane_b32 v{vTS}, vcc_lo, 58")
    I(f"v_writelane_b32 v{vTS}, s{sN}, 59")
    I(f"v_writelane_b32 v{vTS}, s{sSP}, 60")
    I("s_getreg_b32 s10, hwreg(HW_REG_XCC_ID)")
    I(f"v_writelane_b32 v{vTS}, s10, 55")
    I("s_lshl_b32 s10, s2, 3")
    I(f"s_add_u32 s10, s10, s{sWP}")
    I("s_lshl_b32 s10, s10, 8")
    I(f"s_add_u32 s10, s10, {WS_TS}")
    I(f"v_lshl_add_u32 v{vP}, v{lane}, 2, s10")
    I(f"global_store_dword v{vP}, v{vTS}, {sp(pWS)}")
def cstamp(i):
    if not TS: return
    I("s_memtime vcc")
    I("s_waitcnt lgkmcnt(0)")
    I(f"v_writelane_b32 v{vTS}, vcc_lo, {i}")

LD_P = opt("ldp", "nt")
XP, EP, OP = opt("xp", ""), opt("ep", ""), opt("op", "sc1")
STP = opt("stp", "sc1")
MG = opt("mg", 1)
JE = opt("je", 4 if MG else 2)
EMASK = ((1 << JE) - 1) * 0x01010101
DCH = CH + 1024
SDW = "dst_sel:DWORD dst_unused:UNUSED_PAD"

def dma_tile():
    r = []
    for i in range(4):
        r.append(f"s_add_u32 m0, s{sSTG}, {i*XI}")
        r.append(f"v_mad_u32_u16 v{vQD+i}, v{vQD+i}, s{s128}, v{vCP}")
        r.append(f"buffer_load_dwordx4 v{vQD+i}, {sq(sX)}, 0 offen{pol(XP)} lds")
    r.append(f"s_mov_b32 m0, s{sES}")
    r.append(f"v_and_b32 v{vEI}, 0xfffff, v{vEI}")
    r.append(f"buffer_load_dwordx4 {rr(vEI,2)}, {sq(sEP)}, 0 idxen offen{pol(EP)} lds")
    return r

ORD = [(0, 0), (1, 0), (0, 1), (1, 1)]
def xread(m, s): return f"ds_read_b128 {rr(vX+8*m+4*s,4)}, v{vAX} offset:{512*m + 64*s}"
def g_mfmas(D, ft, w):
    g = [m16(D+8*n+4*m, vEO+4*m, vCA+16*w+8*ft+4*n) for m in range(2) for n in range(2)]
    g += [m16(D+8*n+4*m, vX+8*m+4*s, vWB+16*ft+8*n+4*s, D+8*n+4*m) for m, s in ORD for n in range(2)]
    return g
def h_mfmas(ft):
    return [m16(vQ+8*n+4*m, vX+8*m+4*s, vWV+16*ft+8*n+4*s, None if s == 0 else vQ+8*n+4*m) for m, s in ORD for n in range(2)]
def s_num(w, ft): return [s16(NUM(w, 2*ft+n), vQ+8*n) for n in range(2)]
def s_den(w, ft, G): return [s16(DEN(w, 2*ft+n), G+8*n) for n in range(2)]

def eafix():
    return [f"v_bfi_b32 v{vEA+m}, 31, v{vcEO}, v{vEA+m}" for m in range(2)] + [f"v_max_u32 v{vEA}, v{vEA}, v{vcEO}", f"v_max_u32 v{vEA+1}, v{vEA+1}, v{vC1}"]
LV = [int(c, 16) for c in opt("lv", "015a")]
PAT = opt("pat", "1" * 11 + "5")
FAIR = opt("fair", 1)
BST = opt("bst", 10)
def phase(par, ft, cp=0):
    G, Go = (vP, vR) if ft == 0 else (vR, vP)
    nf = 1 - ft
    wn = par if ft == 0 else par ^ 1
    wp = par ^ 1 if ft == 0 else par
    s1 = [[x] for x in s_num(wp, nf) + h_mfmas(ft) + s_den(wp, nf, Go)]
    s2 = [[x] for x in g_mfmas(Go, nf, wn)]
    if ft == 0:
        o = par * LWB
        s1[0] += [f"ds_read_u16 v{vQD+u}, v{vARS} offset:{o + 16*u}" for u in range(2)]
        s1[8] += ["s_waitcnt lgkmcnt(0)"] + [f"v_bfi_b32 v{vQD+u}, 31, v{vcS}, v{vQD+u}" for u in range(2)]
        if FAIR:
            s1[0] += [f"ds_add_rtn_u32 v{vQD+2}, v{vPA}, v{vIDX}"]
            s1[8] += [f"v_readfirstlane_b32 s{sRM}, v{vQD+2}"]
            s2[1] += [f"s_ashr_i32 s{sRM}, s{sRM}, 24", f"s_mul_i32 s{sRM}, s{sRM}, s{sSG}"]
        o1 = 128 if par else LWB
        s2[0] += [f"ds_read_b64_tr_b16 {rr(vS+2*u,2)}, v{vQD+u}" for u in range(2)]
        s2[0] += [f"ds_read_u16 v{vEA+m}, v{vARO} offset:{o1 + 64*m}" for m in range(2)]
        s2[6] += ["s_waitcnt lgkmcnt(0)"] + eafix()
        s2[6] += [f"ds_read_b128 {rr(vQD,4)}, v{vARX} offset:{o + 128}", f"ds_read_b32 v{vEI}, v{vARE} offset:{o + 128}",
                  f"s_add_u32 s{sT}, s{sT}, 1"]
        if par: s2[7] += [f"v_add_u32 v{r}, 0x80, v{r}" for r in (vARX, vARE, vARO, vARS)]
    else:
        s1[2] = ["s_waitcnt vmcnt(0)"] + [f"ds_read_b128 {rr(vEO+4*m,4)}, v{vEA+m}" for m in range(2)] + s1[2]
        for i, (m, s) in enumerate(ORD): s1[3+2*i].append(xread(m, s))
        s2[0] = ["s_waitcnt lgkmcnt(4)"] + s2[0]
        for i in range(4): s2[4+2*i] = [f"s_waitcnt lgkmcnt({3-i})"] + s2[4+2*i]
        DSP = opt("dsp", "")
        if DSP:
            d = dma_tile(); first = min(int(c, 16) for c in DSP)
            for i in range(4): s2[4+2*i] = s2[4+2*i][1:] if 4+2*i > first else s2[4+2*i]
            s2[first] = ["s_waitcnt lgkmcnt(0)"] + [x for x in s2[first] if not x.startswith("s_waitcnt")]
            for k, c in enumerate(DSP): s2[int(c, 16)] += d[3*k:3*k+3]
        tgt = f"L_CE{par}{cp}" if opt("cpe", 0) else f"L_ND{par}{cp}"
        if not DSP: s2[10] += [f"s_cmp_lt_u32 s{sT}, s{sN}", f"s_cbranch_scc0 {tgt}"] + dma_tile() + [f"L_ND{par}{cp}:"]
    def sec(mf, op):
        r = []; k = 0
        for i, m in enumerate(mf):
            if FAIR:
                if i == 0: r.append(f"s_setprio {cp}")
                if i == BST: r.append("s_setprio 3")
            elif i in LV: r.append(f"s_setprio {LV.index(i)}")
            r += m
            for _ in range(int(PAT[i])):
                r.append(f"{op} v{G+k}, v{G+k}"); k += 1
        assert k == 16
        return r
    r = []
    if opt("tt", 0) and ft == 0:
        r += ["s_memrealtime vcc", "s_memtime s[10:11]", f"s_add_u32 m0, s{sT}, 17", "s_waitcnt lgkmcnt(0)", f"v_writelane_b32 v{vTS}, vcc_lo, m0",
              f"s_add_u32 m0, s{sT}, 35", "s_nop 0", f"v_writelane_b32 v{vTS}, s10, m0"]
    r += sec(s1, "v_exp_f32")
    r += [f"v_pk_add_f32 {rr(G+2*i,2)}, {rr(G+2*i,2)}, 1.0 op_sel_hi:[1,0]" for i in range(8)]
    r += sec(s2, "v_rcp_f32")
    r += [f"v_pk_mul_f32 {rr(vQ+2*i,2)}, {rr(G+2*i,2)}, {rr(vQ+2*i,2)}" for i in range(8)]
    return r

def last_tile(par, half):
    keep = (lambda x: int(re.match(r"\S+ v\[(\d+)", x).group(1)) % 8 == (vP % 8)) if half else (lambda x: True)
    regs = [k for k in range(16) if not (half and k & 4)]
    def sec(mf, op, G):
        r = [f"s_setprio {opt('lpr', 0)}"]; k = 0
        tail = min(len(regs), 4 if half else 5)
        for i, m in enumerate(mf):
            if i == len(mf) - 1: r.append("s_setprio 3")
            r += m
            e_ = (len(regs) - tail) * (i + 1) // (len(mf) - 1) if i < len(mf) - 1 else len(regs)
            while k < e_:
                r.append(f"{op} v{G+regs[k]}, v{G+regs[k]}"); k += 1
        while k < len(regs):
            r.append(f"{op} v{G+regs[k]}, v{G+regs[k]}"); k += 1
        return r
    r = []
    for ft in range(2):
        G, Go = (vP, vR) if ft == 0 else (vR, vP)
        wp = par ^ 1 if ft == 0 else par
        s1 = [[x] for x in s_num(wp, 1-ft) + [h for h in h_mfmas(ft) if keep(h)] + s_den(wp, 1-ft, Go)]
        s2 = [[x] for x in g_mfmas(Go, 1, par) if keep(x)] if ft == 0 else []
        if ft == 0:
            s1[0] += [f"ds_read_u16 v{vQD+u}, v{vARS} offset:{par*LWB + 16*u}" for u in range(2)]
            s1[-2] += ["s_waitcnt lgkmcnt(0)"] + [f"v_bfi_b32 v{vQD+u}, 31, v{vcS}, v{vQD+u}" for u in range(2)]
            s2[0] += [f"ds_read_b64_tr_b16 {rr(vS+2*u,2)}, v{vQD+u}" for u in range(2)]
        else:
            s1[0] = ["s_waitcnt lgkmcnt(0)"] + s1[0]
        r += sec(s1, "v_exp_f32", G)
        r += [f"v_pk_add_f32 {rr(G+k,2)}, {rr(G+k,2)}, 1.0 op_sel_hi:[1,0]" for k in regs[::2]]
        r += sec(s2, "v_rcp_f32", G)
        r += [f"v_pk_mul_f32 {rr(vQ+k,2)}, {rr(G+k,2)}, {rr(vQ+k,2)}" for k in regs[::2]]
    return r + s_den(par, 1, vR) + s_num(par, 1)

def listaddr(t0):
    I(f"v_lshrrev_b32 v{t0}, 3, v{lane}")
    I(f"v_lshl_add_u32 v{vARX}, v{t0}, 4, s{sL}")
    I(f"s_add_u32 s10, s{sL}, {R1-R0}")
    I(f"v_lshrrev_b32 v{t0}, 1, v{lane}")
    I(f"v_lshl_add_u32 v{vARE}, v{t0}, 2, s10")
    I(f"s_add_u32 s10, s10, 2")
    I(f"v_and_b32 v{t0}, 48, v{lane}")
    I(f"v_lshl_add_u32 v{vARS}, v{t0}, 1, s10")
    I(f"v_and_b32 v{t0}, 12, v{lane}")
    I(f"v_add_u32 v{vARS}, v{vARS}, v{t0}")
    I(f"v_lshrrev_b32 v{t0}, 5, v{lane}")
    I(f"v_mul_u32_u24 v{vARO}, {R1-R0}, v{t0}")
    I(f"v_and_b32 v{t0}, 15, v{lane}")
    I(f"v_lshl_add_u32 v{vARO}, v{t0}, 2, v{vARO}")
    I(f"s_add_u32 s10, s{sL}, 2")
    I(f"v_add_u32 v{vARO}, s10, v{vARO}")

def prefill(t):
    for d in range(2): I(f"v_mov_b64 {rr(t+2*d,2)}, 0")
    for d in range(4): I(f"v_mov_b32 v{t+4+d}, {(ZROW << 16) | 0xfffff:#x}")
    I(f"v_lshl_add_u32 v{t+8}, v{lane}, 4, s{sL}")
    for o in (0, 1024, 2*LWB - 1024):
        I(f"ds_write_b128 v{t+8}, {rr(t,4)} offset:{o}")
        I(f"ds_write_b128 v{t+8}, {rr(t+4,4)} offset:{o + R1 - R0}")

def kernel():
    emit(f"""
.globl {NAME}_kernel
.p2align 8
.type {NAME}_kernel,@function
{NAME}_kernel:""")
    FH = opt("fh", 1)
    vD, vSR, vT16 = vACC + 32, vACC, vR + 12
    if TS and opt("tz", 0): I("s_memrealtime s[96:97]")
    I("s_load_dwordx16 s[16:31], s[0:1], 0")
    I("s_load_dwordx8 s[32:39], s[0:1], 64")
    CPN = opt("cpn", 8)
    if opt("cpf", 1):
        I(f"s_getpc_b64 {sp(sM)}")
        L("L_PC")
        if CPN == 8: I("s_and_b32 s3, s2, -8")
        else:
            I("s_lshr_b32 s3, s2, 3")
            I(f"s_and_b32 s3, s3, {256//CPN - 1}")
            I(f"s_mul_i32 s3, s3, {CPN}")
        I("v_add_lshl_u32 v1, v0, s3, 7")
        I("v_min_u32 v1, L_LAST-L_PC, v1")
        I(f"v_cmpx_gt_u32 vcc, {CPN}, v0")
        I("s_cbranch_execz L_NOCPF")
        I(f"global_load_dword v{vEA}, v1, {sp(sM)}")
        L("L_NOCPF")
        I("s_mov_b64 exec, -1")
    I("s_cmp_ge_u32 s2, 256")
    I("s_cbranch_scc1 L_END")
    if FH:
        I(f"s_mul_i32 s{sA}, s2, {CH*4}")
        I(f"v_lshl_add_u32 v1, v0, 4, s{sA}")
        I(f"s_add_u32 s{sBt}, s{sA}, {CH*4}")
        I(f"s_min_u32 s{sBt}, s{sBt}, {E*4}")
        BAL = opt("bal", 0)
        if BAL:
            I(f"s_add_u32 s{sA}, s{sA}, 0x2000")
            I(f"v_lshl_add_u32 v2, v0, 3, s{sA}")
            I(f"s_add_u32 s{sA}, s{sA}, 0x1000")
            I(f"v_lshl_add_u32 v3, v0, 2, s{sA}")
            I(f"v_cmp_gt_u32 {sp(sM+6)}, s{sBt}, v2")
            I(f"v_min_u32 v2, {E*4 - 8}, v2")
        else: I("v_add_u32 v2, 0x2000, v1")
        I("s_waitcnt lgkmcnt(0)")
        if TS and opt("tz", 0): I("s_memrealtime s[98:99]")
        I(f"global_load_dwordx4 {rr(vD,4)}, v1, {sp(pDST)}{pol(LD_P)}")
        if BAL:
            I(f"global_load_dwordx2 {rr(vD+4,2)}, v2, {sp(pDST)}{pol(LD_P)}")
            I(f"global_load_dwordx4 {rr(vSR,4)}, v1, {sp(pSRC)}{pol(LD_P)}")
            I(f"global_load_dwordx2 {rr(vSR+4,2)}, v2, {sp(pSRC)}{pol(LD_P)}")
            I(f"v_cmpx_gt_u32 {sp(sM+28)}, s{sBt}, v3")
            I("s_cbranch_execz L_NO7")
            I(f"global_load_dword v{vD+6}, v3, {sp(pDST)}{pol(LD_P)}")
            I(f"global_load_dword v{vSR+6}, v3, {sp(pSRC)}{pol(LD_P)}")
        else:
            I(f"global_load_dwordx4 {rr(vSR,4)}, v1, {sp(pSRC)}{pol(LD_P)}")
            def group2():
                I(f"v_cmpx_gt_u32 {sp(sM+6)}, s{sBt}, v2")
                I("s_cbranch_execz L_NO8")
                I(f"global_load_dwordx4 {rr(vD+4,4)}, v2, {sp(pDST)}{pol(LD_P)}")
                I(f"global_load_dwordx4 {rr(vSR+4,4)}, v2, {sp(pSRC)}{pol(LD_P)}")
                L("L_NO8")
                I("s_mov_b64 exec, -1")
            G2 = opt("g2", 0)
            if G2 == 0: group2()
        L("L_NO7")
        I("s_mov_b64 exec, -1")
        KV = opt("kv", 0)
        if KV:
            I("v_mov_b32 v1, 0")
            I(f"global_load_dword v{vEA+1}, v1, {sp(pWS)}")
        else: I(f"s_load_dword s{sK}, {sp(pWS)}, 0")
        if opt("tlb", 0):
            I("v_lshlrev_b32 v1, 20, v0")
            I(f"v_add_u32 v1, {WS_CELL + XOFF - 448*(1 << 20) & 0xffffffff:#x}, v1")
            I("v_subrev_u32 v2, 448, v0")
            I("v_cmpx_gt_u32 vcc, 9, v2")
            I("s_cbranch_execz L_NOTLB")
            I(f"global_load_dword v{vEA+1}, v1, {sp(pWS)}")
            L("L_NOTLB")
            I("s_mov_b64 exec, -1")
    if TS: I(f"v_mov_b32 v{vTS}, 0")
    u = lambda i: vP + i
    if TS and opt("tz", 0):
        I("s_waitcnt lgkmcnt(0)")
        I(f"v_writelane_b32 v{vTS}, s96, 0")
        I(f"v_writelane_b32 v{vTS}, s98, 1")
        STN.extend(["z", "k"])
    stamp(0)
    vBK, vRK1, vID, vHA, vIC = vACC + 8, vACC + 16, vACC + 24, vACC + 40, vACC + 48
    vRW = vX
    one, l16 = vS, vS + 1
    vOA, vT16, sOW = vR + 14, vR + 12, 101
    I(f"v_mov_b32 v{tid}, v0")
    I(f"v_lshrrev_b32 v{u(0)}, 6, v0")
    I(f"v_and_b32 v{lane}, 63, v0")
    I(f"v_readfirstlane_b32 s{sWP}, v{u(0)}")
    I(f"v_lshlrev_b32 v{vT16}, 4, v0")
    I(f"v_lshlrev_b32 v{u(2)}, 3, v0")
    I(f"v_lshlrev_b32 v{u(3)}, 2, v0")
    I(f"v_and_b32 v{u(4)}, 0x3fc, v{u(3)}")
    if not FH:
        I(f"s_mul_i32 s{sA}, s2, {CH*4}")
        I(f"s_sub_u32 s{sBt}, {E*4}, s{sA}")
        I(f"s_min_u32 s{sBt}, s{sBt}, {CH*4}")
    I(f"s_and_b32 s{sB}, s2, 7")
    I(f"s_lshr_b32 s{sW}, s2, 3")
    I(f"s_lshl_b32 s{sB}, s{sB}, 5")
    I(f"s_add_u32 s{sB}, s{sB}, s{sW}")
    I(f"s_mul_i32 s{sF1}, s{sB}, {BN}")
    I(f"s_cmp_eq_u32 s{sWP}, 7")
    I(f"s_cselect_b32 s{sOW}, 0, s{sWP}")
    I(f"s_lshl_b32 s{sL}, s{sOW}, 5")
    I(f"s_add_u32 s{sF1}, s{sF1}, s{sL}")
    I(f"v_lshrrev_b32 v{u(5)}, 3, v{lane}")
    I(f"v_lshl_add_u32 v{u(5)}, v{u(5)}, 2, s{sF1}")
    I(f"v_and_b32 v{vCP}, 7, v{lane}")
    I(f"v_lshlrev_b32 v{vCP}, 4, v{vCP}")
    I(f"v_lshl_add_u32 v{vOA}, v{u(5)}, 7, v{vCP}")
    I(f"s_lshl_b32 s{sOW}, s{sOW}, 10")
    I(f"s_add_u32 s{sOW}, s{sOW}, {OWN}")
    if not FH:
        I(f"s_movk_i32 s{sF0}, 0x2000")
        I("s_waitcnt lgkmcnt(0)")
        I(f"s_load_dword s{sK}, {sp(pWS)}, 0")
        srd(sCEL, pDST, f"s{sBt}", f"s{sA}")
        srd(sD2, pSRC, f"s{sBt}", f"s{sA}")
        I(f"buffer_load_dwordx4 {rr(vD,4)}, v{vT16}, {sq(sCEL)}, 0 offen{pol(LD_P)}")
        I(f"buffer_load_dwordx4 {rr(vSR,4)}, v{vT16}, {sq(sD2)}, 0 offen{pol(LD_P)}")
        I(f"s_cmp_ge_u32 s{sWP}, 5")
        I("s_cbranch_scc1 L_NO7")
        I(f"buffer_load_dwordx4 {rr(vD+4,4)}, v{vT16}, {sq(sCEL)}, s{sF0} offen{pol(LD_P)}")
        I(f"buffer_load_dwordx4 {rr(vSR+4,4)}, v{vT16}, {sq(sD2)}, s{sF0} offen{pol(LD_P)}")
        L("L_NO7")
    for d in range(2): I(f"v_mov_b64 {rr(u(8)+2*d,2)}, 0")
    I(f"v_mov_b32 v{u(6)}, {33*JE if MG else 0}")
    I(f"ds_write2st64_b32 v{u(4)}, v{u(6)}, v{u(8)} offset0:{HIST1//256} offset1:{HIST1//256+4}")
    I(f"v_add_u32 v{u(5)}, {CIMG}, v{vT16}")
    if G2 == 1: group2()
    for k in range(5): I(f"ds_write_b128 v{u(5)}, {rr(u(8),4)} offset:{8192*k}")
    if G2 == 2: group2()
    PF = opt("pf", 0)
    def w_loads():
        I(f"s_cmp_ge_u32 s{sWP}, 2")
        I("s_cbranch_scc1 L_NOC")
        I(f"global_load_dwordx4 {rr(vEO,4)}, v{vT16}, {sp(pWC)}")
        L("L_NOC")
        for k, p in enumerate((pWB, pWV, pWA, pWU)):
            I(f"global_load_dwordx4 {rr(vRW+4*k,4)}, v{vT16}, {sp(p)}")
    def own_loads():
        I(f"s_cmp_eq_u32 s{sWP}, 6")
        I("s_cselect_b32 exec_hi, 0, -1")
        I(f"s_cmp_eq_u32 s{sWP}, 7")
        I("s_cselect_b64 exec, 1, exec")
        for k in range(4):
            I(f"s_add_u32 m0, s{sOW}, {(PL-128)*k}")
            I("s_nop 0")
            I(f"buffer_load_dwordx4 v{vOA}, {sq(sX)}, 0 offen offset:{128*k}{pol(opt('owp', ''))} lds")
        I("s_mov_b64 exec, -1")
        if PF:
            assert PF <= 512
            I(f"s_lshr_b32 s{sTM+1}, s2, 3")
            I(f"s_mul_i32 s{sTM}, s{sTM+1}, {PF*128}")
            I(f"v_min_u32 v{vEA+1}, {PF-1}, v{tid}")
            I(f"v_lshlrev_b32 v{vEA+1}, 7, v{vEA+1}")
            I(f"buffer_load_dword v{vEA+1}, v{vEA+1}, {sq(sX)}, s{sTM} offen")
    LLP = opt("llp", 2)
    OLP = opt("olp", 2)
    NY = 0
    srd(sEP, pE, E, stride=32)
    srd(sOUT, pOUT, N*128)
    srd(sX, pX, N*128)
    OY = 0
    if OLP == 3:
        OW0 = opt("ow0", 5); nw = 8 - OW0; per = -(-28 // nw); OY = per
        I(f"s_cmp_lt_u32 s{sWP}, {OW0}")
        I("s_cbranch_scc1 L_NOOWN")
        I(f"s_mul_i32 s{sF1}, s{sB}, {BN}")
        I(f"v_lshrrev_b32 v{vOA}, 3, v{lane}")
        I(f"v_lshl_add_u32 v{vOA}, v{vOA}, 2, s{sF1}")
        I(f"v_lshl_add_u32 v{vOA}, v{vOA}, 7, v{vCP}")
        I(f"s_sub_u32 s{sF0}, s{sWP}, {OW0}")
        for k in range(per):
            I(f"s_add_u32 s{sF1}, s{sF0}, {nw*k}")
            I(f"s_min_u32 s{sF1}, s{sF1}, 27")
            I(f"s_and_b32 s{sL}, s{sF1}, 3")
            I(f"s_lshr_b32 s{sF1}, s{sF1}, 2")
            I(f"s_mul_i32 s{sOW}, s{sL}, {PL}")
            I(f"s_lshl_b32 s{sL}, s{sL}, 7")
            I(f"s_cmp_eq_u32 s{sF1}, 6")
            I("s_cselect_b32 exec_hi, 0, -1")
            I(f"s_lshl_b32 s{sF1}, s{sF1}, 10")
            I(f"s_add_u32 s{sOW}, s{sOW}, s{sF1}")
            I(f"s_add_u32 m0, s{sOW}, {OWN}")
            I(f"s_lshl2_add_u32 s{sL}, s{sF1}, s{sL}")
            I(f"buffer_load_dwordx4 v{vOA}, {sq(sX)}, s{sL} offen lds")
        I("s_mov_b32 exec_hi, -1")
        L("L_NOOWN")
    srd(sWS, pWS, WS_USED)
    I(f"s_lshl_b32 s{sL}, s2, 7")
    I(f"s_add_u32 s{sL}, s{sL}, {WS_CELL}")
    srd(sCEL, pWS, 255*RS + XOFF + 128, f"s{sL}")
    cM, cN, cP, cPM, cR = sM, sM + 1, sM + 2, sM + 3, sM + 4
    m2 = sM + 6
    I(f"s_mov_b32 s{cM}, 85599")
    I(f"s_mov_b32 s{cN}, {-BN & 0xffffffff}")
    I(f"s_movk_i32 s{cP}, 5368")
    I(f"s_mov_b32 s{cPM}, {opt('phm', 3) << 26:#x}")
    I(f"s_mov_b32 s{cR}, {RS}")
    for i in range(4): I(f"v_add_u32 v{vID+i}, {i}, v{u(3)}")
    I(f"s_lshl_b32 s{sA}, s{sWP}, 28")
    I(f"s_or_b32 s{sA}, s{sA}, 0x20000")
    I(f"v_mov_b32 v{vIC}, s{sA}")
    if BAL:
        assert MG <= 1 and OLP != 3
        I(f"s_lshr_b32 s{sA}, s{sWP}, 1")
        I(f"s_lshl_b32 s{sA}, s{sA}, 28")
        I(f"s_or_b32 s{sA}, s{sA}, 0x80020000")
        I(f"v_mov_b32 v{vIC+1}, s{sA}")
        I(f"v_mov_b32 v{vIC+3}, 0xc0020000")
        I(f"v_lshlrev_b32 v{vID+4}, 1, v{tid}")
        I(f"v_add_u32 v{vID+5}, 1, v{vID+4}")
        I(f"v_mov_b32 v{vID+6}, v{tid}")
    else: I(f"v_or_b32 v{vIC+1}, 0x80000000, v{vIC}")
    idr = (lambda i: vID + i) if BAL else (lambda i: vID + (i & 3))
    icr = (lambda i: vIC + (3 if i == 6 else i >> 2)) if BAL else (lambda i: vIC + (i >> 2))
    NR = 7 if BAL else 8
    I(f"v_mov_b32 v{one}, 33")
    vK1 = vIC + 2
    I(f"v_mov_b32 v{vK1}, 0x400")
    if not FH:
        I(f"s_sub_u32 s{sBt}, s{sBt}, 0x2000")
        I(f"v_cmp_gt_u32 {sp(m2)}, s{sBt}, v{vT16}")
    I(f"s_and_b32 s{sA}, s{sWP}, 3")
    I(f"s_lshr_b32 s{sW}, s{sWP}, 2")
    I(f"s_lshl1_add_u32 s{sW}, s{sA}, s{sW}")
    if opt("swp", 1): I(f"s_xor_b32 s{sW}, s{sW}, 1")
    I(f"s_mul_i32 s{sA}, s{sW}, 49")
    I(f"s_sub_i32 s{sA}, s{sA}, 6")
    I(f"s_ashr_i32 s{sA}, s{sA}, 1")
    I(f"s_max_i32 s{sWIN}, s{sA}, 0")
    I(f"s_mul_i32 s{sSTG}, s{sW}, {SLOT}")
    I(f"s_add_u32 s{sSTG}, s{sSTG}, {XSTG}")
    I(f"s_lshl_b32 s{sES}, s{sW}, 10")
    I(f"s_add_u32 s{sES}, s{sES}, {ESTG}")
    I(f"s_mul_i32 s{sL}, s{sW}, {2*LWB}")
    I(f"s_add_u32 s{sL}, s{sL}, {R0}")
    I(f"s_movk_i32 s{s128}, 128")
    if G2 == 3: group2()
    I(f"v_bfe_u32 v{u(6)}, v{tid}, 4, 4")
    I(f"v_and_b32 v{u(7)}, 7, v{tid}")
    I(f"v_cmp_eq_u32 vcc, v{u(6)}, v{u(7)}")
    I(f"v_and_b32 v{u(6)}, 8, v{tid}")
    I(f"v_lshlrev_b32 v{u(6)}, 1, v{u(6)}")
    I(f"v_mov_b32 v{u(8)}, 0x3f80")
    I(f"v_lshlrev_b32 v{u(8)}, v{u(6)}, v{u(8)}")
    I(f"v_cndmask_b32 v{u(8)}, 0, v{u(8)}, vcc")
    I(f"ds_write_b32 v{u(4)}, v{u(8)} offset:{TAB}")
    I(f"v_mov_b64 {rr(u(8),2)}, 0")
    I(f"ds_write_b64 v{u(2)}, {rr(u(8),2)} offset:{HIST}")
    I(f"v_add_u32 v{u(6)}, {PRG}, v{u(4)}")
    I(f"ds_write_b32 v{u(6)}, v{u(8)}")
    go, lo, lo2, ha = vR, vR + 1, vR + 2, vR + 3
    wl, wal = vR + 4, vR + 5
    I(f"v_lshrrev_b32 v{ha}, 3, v{tid}")
    I(f"v_mad_u32_u24 v{go}, v{ha}, s{cR}, v{vCP}")
    I(f"v_mul_u32_u24 v{wl}, {LROW}, v{ha}")
    I(f"v_add_u32 v{lo}, v{wl}, v{vCP}")
    I(f"v_add_u32 v{lo}, {CIMG}, v{lo}")
    assert LROW == WR
    I(f"v_bfe_u32 v{u(6)}, v{tid}, 5, 1")
    I(f"v_bfe_u32 v{u(8)}, v{tid}, 6, 1")
    I(f"v_sub_u32 v{u(6)}, v{u(6)}, v{u(8)}")
    I(f"v_mul_i32_i24 v{u(6)}, {4*WR}, v{u(6)}")
    I(f"v_add_u32 v{wl}, v{wl}, v{u(6)}")
    I(f"v_lshl_add_u32 v{wl}, v{u(7)}, 2, v{wl}")
    I(f"v_add_u32 v{wl}, {WBI}, v{wl}")
    I(f"v_lshlrev_b32 v{l16}, 4, v{lane}")
    I(f"v_and_b32 v{u(6)}, 3, v{lane}")
    I(f"v_lshlrev_b32 v{vcS}, 3, v{u(6)}")
    I(f"v_bfe_u32 v{u(9)}, v{lane}, 2, 3")
    I(f"v_lshrrev_b32 v{u(8)}, 5, v{lane}")
    I(f"v_lshl_add_u32 v{u(9)}, v{u(8)}, 4, v{u(9)}")
    I(f"v_mul_u32_u24 v{wal}, {WR}, v{u(9)}")
    I(f"v_add_u32 v{wal}, v{wal}, v{vcS}")
    mm = lambda i: sM + 8 + 2*i
    def rank_a(rs, wsrc=0):
        for i in rs: I(f"v_mul_u32_u24 v{vBK+i}, s{cM}, v{vD+i}")
        if rs[0] // 4 < MG:
            b = rs[0]
            for i in rs: I(f"v_lshrrev_b32 v{vHA+i}, 29, v{vBK+i}")
            if opt("px", 0):
                I(f"s_waitcnt vmcnt({wsrc})")
                for i in rs:
                    I(f"v_cmp_gt_u32 vcc, {opt('px', 0)}, v{vSR+i}")
                    I("s_nop 1")
                    I(f"v_cndmask_b32 v{vHA+i}, v{vHA+i}, v{vID+(i&3)}, vcc") if False else I(f"v_cndmask_b32_e64 v{vHA+i}, v{vHA+i}, {8+(i&3)}, vcc")
            t0, t1 = sM + 24, sM + 26
            I(f"v_cmp_eq_u32 {sp(mm(b))}, v{vHA+b}, v{vHA+b+1}")
            I(f"v_cmp_eq_u32 {sp(mm(b+2))}, v{vHA+b+2}, v{vHA+b+3}")
            I(f"v_cmp_eq_u32 vcc, v{vHA+b}, v{vHA+b+2}")
            I(f"v_cmp_eq_u32 {sp(t0)}, v{vHA+b+1}, v{vHA+b+3}")
            I(f"v_cmp_eq_u32 {sp(t1)}, v{vHA+b}, v{vHA+b+3}")
            I(f"v_cmp_eq_u32 {sp(sA)}, v{vHA+b+1}, v{vHA+b+2}")
            for i in rs: I(f"v_lshrrev_b32 v{vBK+i}, 24, v{vBK+i}")
            I(f"s_or_b64 {sp(mm(b+1))}, {sp(mm(b))}, {sp(t0)}")
            I(f"s_or_b64 {sp(mm(b+3))}, {sp(mm(b+2))}, {sp(t0)}")
            I(f"s_or_b64 {sp(mm(b))}, {sp(mm(b))}, vcc")
            I(f"s_or_b64 {sp(mm(b+2))}, {sp(mm(b+2))}, vcc")
            I(f"s_or_b64 {sp(mm(b))}, {sp(mm(b))}, {sp(t1)}")
            I(f"s_or_b64 {sp(mm(b+1))}, {sp(mm(b+1))}, {sp(sA)}")
            I(f"s_or_b64 {sp(mm(b+2))}, {sp(mm(b+2))}, {sp(sA)}")
            I(f"s_or_b64 {sp(mm(b+3))}, {sp(mm(b+3))}, {sp(t1)}")
            for i in rs:
                I(f"v_cndmask_b32 v{vHA+i}, 0, v{vK1}, {sp(mm(i))}")
                I(f"v_lshl_add_u32 v{vHA+i}, v{vBK+i}, 2, v{vHA+i}")
                I(f"ds_add_rtn_u32 v{vRK1+i}, v{vHA+i}, v{one} offset:{HIST1}")
            return
        for i in rs: I(f"v_lshrrev_b32 v{vBK+i}, 24, v{vBK+i}")
        for i in rs:
            I(f"v_lshlrev_b32 v{vHA+i}, 2, v{vBK+i}")
            I(f"ds_add_rtn_u32 v{vRK1+i}, v{vHA+i}, v{one} offset:{HIST1}")
    def again(rs, wait, em):
        for i in rs:
            I(f"s_waitcnt lgkmcnt({wait})")
            I(f"s_mov_b64 exec, {sp(mm(i))}")
            I(f"v_cmpx_le_u32 vcc, {33*JE}, v{vRK1+i}")
            I(f"ds_add_rtn_u32 v{vRK1+i}, v{vHA+i}, v{one} offset:{HIST1 - 1024}")
        I(f"s_mov_b64 exec, {em}")
    def rank_b(rs):
        for i in rs:
            I(f"v_mad_i32_i24 v{vD+i}, v{vBK+i}, s{cN}, v{vD+i}")
            I(f"v_mul_u32_u24 v{u(6)}, s{cP}, v{vSR+i}")
            I(f"v_lshl_or_b32 v{vSR+i}, v{vD+i}, 18, v{vSR+i}")
            I(f"v_and_or_b32 v{u(6)}, v{u(6)}, s{cPM}, v{icr(i)}")
            I(f"v_mad_u32_u24 v{vD+i}, v{vBK+i}, {LROW//4}, s{cN+4}")
            I(f"v_or_b32 v{vSR+i}, v{vSR+i}, v{u(6)}")
    def place(i, wait, em):
        I(f"s_waitcnt lgkmcnt({wait})")
        I(f"v_bfe_u32 v{u(6)}, v{vRK1+i}, 3, 5")
        I(f"v_add_lshl_u32 v{vD+i}, v{u(6)}, v{vD+i}, 2")
        I(f"v_and_b32 v{u(6)}, 3, v{u(6)}")
        I(f"v_mad_i32_i24 v{u(6)}, v{u(6)}, -3, v{vD+i}")
        I(f"v_cmpx_gt_u32 vcc, {33*CAP}, v{vRK1+i}")
        I(f"ds_write_b32 v{vD+i}, v{vSR+i}")
        I(f"ds_write_b8 v{u(6)}, v{idr(i)} offset:12")
        I(f"s_mov_b64 exec, {em}")
    I(f"s_movk_i32 s{cN+4}, {CIMG//4}")
    for d in range(2): I(f"v_mov_b64 {rr(vRK1+4+2*d,2)}, 0")
    I("s_waitcnt lgkmcnt(0)")
    I("s_barrier")
    if BAL:
        m3 = sM + 28
        I("s_waitcnt vmcnt(3)")
        stamp(1)
        if TS: STN.pop()
        rank_a(range(4))
        I("s_waitcnt vmcnt(2)")
        I(f"s_mov_b64 exec, {sp(m2)}")
        rank_a(range(4, 6))
        if MG: again(range(4), 5, "-1")
        else: I("s_mov_b64 exec, -1")
        I("s_waitcnt vmcnt(0)")
        rank_b(range(6))
        I(f"s_mov_b64 exec, {sp(m2)}")
        for i in range(4, 6): place(i, (1 if MG else -3) + i, sp(m2) if i < 5 else "-1")
        for i in range(4): place(i, 7 + i, "-1")
        I(f"s_mov_b64 exec, {sp(m3)}")
        I("s_cbranch_execz L_B1")
        rank_a([6]); rank_b([6]); place(6, 0, "-1")
        I("s_branch L_B1")
    I(f"s_cmp_eq_u64 {sp(m2)}, 0" if FH else f"s_cmp_ge_u32 s{sWP}, 5")
    I("s_cbranch_scc1 L_R4")
    I(f"s_waitcnt vmcnt({3+KV})")
    stamp(1)
    rank_a(range(4), 2)
    I(f"s_waitcnt vmcnt({1+KV})")
    I(f"s_mov_b64 exec, {sp(m2)}")
    rank_a(range(4, 8))
    if MG == 0:
        I("s_mov_b64 exec, -1")
        rank_b(range(4))
        for i in range(4): place(i, 7 + i, "-1" if i < 3 else sp(m2))
        I(f"s_waitcnt vmcnt({KV})")
        rank_b(range(4, 8))
        for i in range(4, 8): place(i, 7 + i, sp(m2) if i < 7 else "-1")
    elif MG == 1:
        again(range(4), 7, sp(m2))
        I(f"s_waitcnt vmcnt({KV})")
        rank_b(range(4, 8))
        for i in range(4, 8): place(i, 3 + i, sp(m2) if i < 7 else "-1")
        rank_b(range(4))
        for i in range(4): place(i, 11 + i, "-1")
    else:
        again(range(8), 7, "-1")
        rank_b(range(4))
        for i in range(4): place(i, 7 + i, "-1" if i < 3 else sp(m2))
        I(f"s_waitcnt vmcnt({KV})")
        rank_b(range(4, 8))
        for i in range(4, 8): place(i, 7 + i, sp(m2) if i < 7 else "-1")
    I("s_branch L_B1")
    L("L_R4")
    if OY:
        I(f"s_cmp_ge_u32 s{sWP}, {OW0}")
        I("s_cbranch_scc1 L_R4A")
        I(f"s_waitcnt vmcnt({KV})")
        L("L_R4A")
    I(f"s_waitcnt vmcnt({1 + OY + KV})")
    if TS: STN.pop()
    stamp(1)
    rank_a(range(4))
    I(f"s_waitcnt vmcnt({OY + KV})")
    if MG:
        rank_b(range(2))
        again(range(4), 3, "-1")
        rank_b(range(2, 4))
    else: rank_b(range(4))
    for i in range(4): place(i, 3 + i, "-1")
    L("L_B1")
    if BAL:
        k_ = max(i for i, l in enumerate(out) if l.strip() == "s_cbranch_execz L_B1")
        e_ = next(i for i in range(k_, len(out)) if out[i].strip() == "s_branch L_B1")
        del out[e_:len(out)-1]
        I("s_mov_b64 exec, -1")
    w_loads()
    vTG = vS + 2
    def tagcalc():
        I(f"s_add_u32 s{sK}, s{sK}, {KINC:#x}")
        I(f"v_lshlrev_b32 v{vTG}, v{vcS}, s{sK}")
        I(f"v_and_b32 v{u(1)}, 4, v{lane}")
        I(f"v_mul_u32_u24 v{u(1)}, {37 << 15}, v{u(1)}")
        I(f"v_lshl_add_u32 v{vTG}, v{u(1)}, 8, v{vTG}")
        I(f"v_and_b32 v{vTG}, 0xfe000000, v{vTG}")
    if not KV: tagcalc()
    vTH = vS + 3
    I(f"v_and_b32 v{vTH}, 7, v{lane}")
    I(f"v_mul_u32_u24 v{vTH}, 33, v{vTH}")
    I(f"v_add_u32 v{vTH}, {33*CAP}, v{vTH}")
    I(f"v_lshlrev_b32 v{lo2}, 2, v{ha}")
    I(f"s_mov_b32 s{cM}, 0x1000000")
    I("s_waitcnt lgkmcnt(0)")
    I("s_barrier")
    stamp(2)
    vO, vHS = vQ, u(4)
    I(f"ds_read_b128 {rr(vHS,4)}, v{l16} offset:{HIST1}")
    vHD = vR + 8
    for i in range(4):
        I(f"ds_read_b32 v{vHD+i}, v{lo2} offset:{HIST1 + 256*i}")
        I(f"ds_read_b128 {rr(vO+4*i,4)}, v{lo} offset:{64*LROW*i}")
    if KV:
        I("s_waitcnt vmcnt(4)")
        I(f"v_readfirstlane_b32 s{sK}, v{vEA+1}")
    for i in range(1, 4): I(f"s_mov_b32 s{sM+15+i}, {64*RS*i}")
    if KV: tagcalc()
    I("s_waitcnt lgkmcnt(8)")
    I(f"v_max3_u32 v{u(0)}, v{vHS}, v{vHS+1}, v{vHS+2}")
    I(f"v_max_u32 v{u(0)}, v{u(0)}, v{vHS+3}")
    I(f"v_cmp_lt_u32 vcc, {33*(CAP+8)}, v{u(0)}")
    I("s_cbranch_vccnz L_POVF")
    L("L_POUT")
    for i in range(4):
        I(f"s_waitcnt lgkmcnt({7 - 2*i})")
        I(f"v_sub_u32 v{vHD+i}, v{vTH}, v{vHD+i}")
        I(f"v_and_or_b32 v{vHD+i}, v{vHD+i}, s{cM}, v{vTG}")
        I(f"s_waitcnt lgkmcnt({6 - 2*i})")
        I(f"v_or_b32 v{vO+4*i+3}, v{vO+4*i+3}, v{vHD+i}")
        I(f"buffer_store_dwordx4 {rr(vO+4*i,4)}, v{go}, {sq(sCEL)}, {f's{sM+15+i}' if i else '0'} offen{pol(STP)}")
    stamp(3)
    if "c" in opt("tsx", ""): I("s_waitcnt vmcnt(0)")
    stamp("c0")
    t = vACC + 32
    I(f"s_mov_b32 s{sA}, {f2u(-LOG2E):#x}")
    I(f"s_mov_b32 s{sBt}, s{sA}")
    I(f"s_mov_b32 s{cM}, 0x05040100")
    I(f"s_mov_b32 s{cP}, 0x07060302")
    def wscaled(src, off):
        for d in range(4):
            I(f"v_lshlrev_b32 v{t+2*d}, 16, v{src+d}")
            I(f"v_and_b32 v{t+2*d+1}, 0xffff0000, v{src+d}")
        for d in range(4): I(f"v_pk_mul_f32 {rr(t+2*d,2)}, {rr(t+2*d,2)}, {sp(sA)}")
        for n in range(4): I(f"v_cvt_pk_bf16_f32 v{t+8+n}, v{t+n}, v{t+4+n}")
        wput(t + 8, off)
    def wplain(src, off, tt):
        for n in range(4): I(f"v_perm_b32 v{tt+n}, v{src+2+(n>>1)}, v{src+(n>>1)}, s{cP if n & 1 else cM}")
        wput(tt, off)
    def wput(r, off):
        a = wl
        if off:
            a = r + 4
            I(f"v_add_u32 v{a}, {off}, v{wl}")
        I(f"ds_write2_b32 v{a}, v{r}, v{r+1} offset0:0 offset1:8")
        I(f"ds_write2_b32 v{a}, v{r+2}, v{r+3} offset0:16 offset1:24")
    I("s_waitcnt vmcnt(4)")
    stamp("b4")
    wplain(vRW + 8, WAI - WBI, t + 16)
    wscaled(vRW, 0)
    wplain(vRW + 4, WVI - WBI, t + 24)
    wplain(vRW + 12, WUI - WBI, t + 16)
    I(f"s_cmp_ge_u32 s{sWP}, 2")
    I("s_cbranch_scc1 L_NOWC")
    wscaled(vEO, WCI - WBI)
    L("L_NOWC")
    I(f"s_mul_i32 s{sTM}, s{sB}, {RS}")
    I(f"s_add_u32 s{sTM}, s{sTM}, {WS_CELL}")
    srd(sCEL, pWS, 256*128, f"s{sTM}")
    I(f"s_add_u32 s{sTM}, s{sTM}, {XOFF}")
    srd(sD2, pWS, 256*128, f"s{sTM}")
    vC, vEB = vACC + 32, vACC + 60
    pa = vT16
    for k in (1, 2, 3): I(f"s_movk_i32 s{sCI+k-1}, {8192*k}")
    def poll_load(i):
        so = "0" if i == 0 else f"s{sCI+i-1}"
        I(f"buffer_load_dwordx4 {rr(vC+4*i,4)}, v{pa}, {sq(sCEL)}, {so} offen sc1")
    I("s_waitcnt lgkmcnt(0)")
    I("s_barrier")
    stamp(4)
    if OLP == 0: own_loads()
    vWA = vACC
    I(f"v_add_u32 v{wal}, {WBI}, v{wal}")
    def trw(reg, img):
        return [f"ds_read_b64_tr_b16 {rr(reg+8*n+4*s+2*uu,2)}, v{wal} offset:{img + (32*s + 8*uu)*WR + 32*n}"
                for n in range(4) for s in range(2) for uu in range(2)]
    tw = trw(vWB, 0) + trw(vWV, WVI - WBI)
    for x_ in tw[:14]: I(x_)
    prefill(vCA)
    for x_ in tw[14:24]: I(x_)
    nxt = 24
    I(f"v_mov_b32 v{u(4)}, v{wal}")
    I("s_mov_b32 exec_lo, 0")
    I(f"v_subrev_u32 v{u(4)}, {16*WR}, v{wal}")
    I("s_mov_b32 exec_lo, -1")
    tw += [f"ds_read_b64_tr_b16 {rr(vCA+16+4*n+2*uu,2)}, v{u(4)} offset:{WCI - WBI + 8*uu*WR + 32*n}" for n in range(4) for uu in range(2)]
    vEM, vET = vEO, vACC + 56
    ownn, owna, mapa = vEO + 1, vEO + 2, vEO + 3
    I("s_waitcnt lgkmcnt(4)")
    for x_ in tw[nxt:]: I(x_)
    I(f"v_add_u32 v{wal}, {WAI - WBI}, v{wal}")
    vFF = vEO + 4
    vMU = vR + 8
    lo0, hi0, lo1, hi1 = sWS0, sWS1, sB0E, sSH
    def late_setup():
        I(f"v_and_b32 v{vCH}, 1, v{lane}")
        I(f"v_lshlrev_b32 v{vCH}, 4, v{vCH}")
        I(f"s_bitcmp1_b32 s{sW}, 0")
        I(f"s_cselect_b32 s{sA}, 1, -1")
        I(f"s_lshl_b32 s{sA}, s{sA}, 24")
        I(f"s_or_b32 s{sA}, s{sA}, 0xdddd")
        I(f"v_mov_b32 v{vIDX}, s{sA}")
        I(f"v_and_b32 v{vcEO}, 16, v{lane}")
        I(f"v_and_b32 v{u(6)}, 15, v{lane}")
        I(f"v_lshl_add_u32 v{u(6)}, v{u(6)}, 5, s{sES}")
        I("s_mov_b32 exec_hi, 0")
        I(f"v_add_u32 v{vcEO}, v{vcEO}, v{u(6)}")
        I("s_mov_b32 exec_hi, -1")
        I(f"v_and_b32 v{u(6)}, 3, v{lane}")
        I(f"v_bfe_u32 v{u(8)}, v{lane}, 2, 2")
        I(f"v_and_b32 v{u(9)}, 48, v{lane}")
        I(f"v_lshl_add_u32 v{u(10)}, v{u(8)}, 7, v{u(9)}")
        I(f"v_mul_u32_u24 v{vAX}, {XI}, v{u(6)}")
        I(f"v_add3_u32 v{vAX}, v{vAX}, v{u(10)}, s{sSTG}")
        listaddr(u(6))
        I(f"v_mul_u32_u24 v{vEB}, {CH}, v{ha}")
        for i in range(1, 4): I(f"v_add_u32 v{vEB+i}, {64*i*CH}, v{vEB}")
        I(f"s_mov_b32 s{sEM}, {EMASK:#x}")
        I(f"s_mov_b32 s{sEM+1}, {EMASK:#x}")
        vFF = vEO + 4
        I(f"v_mov_b32 v{vFF}, 0xfffff")
        I(f"v_cndmask_b32 v{vEM}, 0, v{vFF}, {sp(sEM)}")
        I(f"v_add_lshl_u32 v{u(3)}, v{pa}, v{vCP}, 16")
        for i in range(4):
            I(f"v_add_u32 v{vET+i}, {(EARLY + 8192*i) << 16:#x}, v{u(3)}")
            I(f"v_cndmask_b32 v{vET+i}, 0, v{vET+i}, {sp(sEM)}")
        I(f"v_mov_b32 v{one}, 4")
        I(f"v_and_b32 v{ownn}, 31, v{lane}")
        I(f"v_add_lshl_u32 v{mapa}, v{ownn}, s{sWIN}, 2")
        I(f"v_lshrrev_b32 v{u(3)}, 5, v{lane}")
        I(f"v_lshl_add_u32 v{owna}, v{u(3)}, 11, v{mapa}")
        I(f"v_add_u32 v{mapa}, {MAP}, v{mapa}")
        I(f"v_lshlrev_b32 v{u(3)}, 2, v{lane}")
        I(f"v_subrev_u32 v{u(3)}, s{sWIN}, v{u(3)}")
        I("s_mov_b32 s10, 0x10000")
        for i in range(4):
            I(f"v_add_u32 v{vMU+i}, {i}, v{u(3)}")
            I(f"v_and_or_b32 v{vMU+i}, v{vMU+i}, s10, 1")
        I(f"s_movk_i32 s{sFM}, 0xffc")
        I(f"s_movk_i32 s{sSKIP}, {CAP+8}")
        I(f"s_mov_b32 s{sXT}, 0")
        I(f"s_mov_b32 s{sSP}, 0")
        I(f"s_mov_b32 s{sT}, 0x1ffffff")
        I(f"s_mov_b32 s{sN}, 0xffff")
        lo0, hi0, lo1, hi1 = sWS0, sWS1, sB0E, sSH
        I(f"s_mul_i32 s10, s{sW}, 49")
        I(f"s_sub_i32 s{lo0}, s10, 6")
        I(f"s_ashr_i32 s{lo0}, s{lo0}, 1")
        I(f"s_add_i32 s{hi0}, s10, 7")
        I(f"s_ashr_i32 s{hi0}, s{hi0}, 1")
        I(f"s_add_i32 s{lo1}, s10, 43")
        I(f"s_ashr_i32 s{lo1}, s{lo1}, 1")
        I(f"s_add_i32 s{hi1}, s{lo0}, 31")
        I(f"s_cmp_eq_u32 s{sW}, 7")
        I(f"s_cselect_b32 s{lo1}, {BN}, s{lo1}")
        I(f"s_cselect_b32 s{hi1}, {BN}, s{hi1}")
        for r_ in (hi0, lo1, hi1): I(f"s_sub_i32 s{r_}, s{r_}, s{sWIN}")
    LS = opt("ls", 0)
    if LS == 0: late_setup()
    stamp("b0")
    if opt("pw", 1): I(f"s_waitcnt vmcnt({4 if OLP == 0 else 0})")
    stamp("b1")
    if opt("pbar", 0): I("s_barrier")
    for i in range(4): poll_load(i)
    if OLP == 1: own_loads()
    if LS == 1: late_setup()
    PY = 4 if OLP == 1 else 0
    I(f"v_max3_u32 v{u(0)}, v{vRK1}, v{vRK1+1}, v{vRK1+2}")
    I(f"v_max3_u32 v{u(1)}, v{vRK1+3}, v{vRK1+4}, v{vRK1+5}")
    I(f"v_max3_u32 v{u(0)}, v{u(0)}, v{vRK1+6}, v{vRK1+7}")
    I(f"v_max_u32 v{u(0)}, v{u(0)}, v{u(1)}")
    I(f"v_cmp_le_u32 vcc, {33*CAP}, v{u(0)}")
    I("s_cbranch_vccz L_PEXTR")
    q = vCA
    if TS: I(f"v_writelane_b32 v{vTS}, 1, 61")
    I(f"v_mov_b32 v{q+1}, s{sK}")
    I(f"s_lshl_b32 s{sTM}, s2, 7")
    I(f"s_add_u32 s{sTM}, s{sTM}, {WS_CELL + XOFF}")
    for i in range(NR):
        I(f"v_subrev_u32 v{q+4}, {33*CAP}, v{vRK1+i}")
        I(f"v_cmpx_gt_u32 vcc, {33*8}, v{q+4}")
        I(f"s_cbranch_execz L_PE{i}")
        I(f"v_mov_b32 v{q}, v{vSR+i}")
        I(f"v_mov_b32 v{q+2}, v{idr(i)}")
        I(f"v_bfe_u32 v{q+4}, v{vRK1+i}, 5, 3")
        I(f"v_lshlrev_b32 v{q+4}, 4, v{q+4}")
        I(f"v_mad_u32_u24 v{q+4}, v{vBK+i}, s{cR}, v{q+4}")
        I(f"buffer_store_dwordx4 {rr(q,4)}, v{q+4}, {sq(sWS)}, s{sTM} offen sc1")
        L(f"L_PE{i}")
        I("s_mov_b64 exec, -1")
    L("L_PEXTR")
    stamp(5)
    vA, vRK, vR1 = vACC, vACC + 16, vQ
    mk = lambda i, j: sM + 2*(4*i + j)
    def rec_ops(d, x, byte, eb, a, r1, keep=None):
        e_ = r1 if keep is None else keep
        return [f"v_add_u32_sdwa v{e_}, v{x}, v{eb} {SDW} src0_sel:BYTE_{byte} src1_sel:DWORD",
                f"v_lshrrev_b32 v{u(1)}, 28, v{d}",
                f"v_lshl_add_u32 v{e_}, v{u(1)}, 8, v{e_}",
                f"v_and_b32 v{u(1)}, 60, v{a}",
                f"v_lshl_add_u32 v{r1}, v{u(1)}, 19, v{e_}"]
    def spin():
        I(f"s_add_u32 s{sSP}, s{sSP}, 1")
        I(f"s_cmp_gt_u32 s{sSP}, {opt('spin', 200000)}")
        I("s_cbranch_scc1 L_END")
        if opt("slp", 1): I(f"s_sleep {opt('slp', 1)}")
    xg = vCA
    def xload(tag):
        for i in range(4):
            I(f"s_mov_b64 exec, {sp(mk(i,3))}")
            I(f"s_cbranch_execz L_XL{tag}{i}")
            I(f"s_movk_i32 s10, {8192*i}")
            I(f"buffer_load_dwordx4 {rr(xg+4*i,4)}, v{pa}, {sq(sD2)}, s10 offen sc1")
            L(f"L_XL{tag}{i}")
        I("s_mov_b64 exec, -1")
    for i in range(4):
        c_ = vC + 4*i
        L(f"L_PW{i}")
        I(f"s_waitcnt vmcnt({3 - i + PY})")
        I(f"v_xor_b32 v{u(0)}, v{c_+3}, v{vTG}")
        for j in range(3): I(f"v_and_b32_sdwa v{vA+4*i+j}, v{c_+j}, s{sFM} {SDW} src0_sel:WORD_1 src1_sel:DWORD")
        I(f"v_cmp_lt_u32 vcc, s{sT}, v{u(0)}")
        for j in range(3): I(f"v_cmp_ne_u32 {sp(mk(i,j))}, 0, v{c_+j}")
        I(f"s_cbranch_vccnz L_RT{i}")
        if i == 3: stamp(6)
        for j in range(3):
            I(f"s_mov_b64 exec, {sp(mk(i,j))}")
            I(f"ds_add_rtn_u32 v{vRK+4*i+j}, v{vA+4*i+j}, v{one} offset:{HIST}")
        I("s_mov_b64 exec, -1")
        if i == 3:
            I(f"v_or3_b32 v{u(2)}, v{vC+3}, v{vC+7}, v{vC+11}")
            I(f"v_or_b32 v{u(2)}, v{u(2)}, v{vC+15}")
            I(f"v_and_b32 v{u(2)}, 0x1000000, v{u(2)}")
            I(f"v_cmp_ne_u32 vcc, 0, v{u(2)}")
            I("s_cbranch_vccz L_XT1R")
            def xt1():
                if TS: I(f"v_writelane_b32 v{vTS}, 1, 62")
                for i in range(4):
                    I(f"v_and_b32 v{u(2)}, 0x1000000, v{vC+4*i+3}")
                    I(f"v_cmp_ne_u32 {sp(mk(i,3))}, 0, v{u(2)}")
                    I(f"s_bcnt1_i32_b64 s10, {sp(mk(i,3))}")
                    I(f"s_lshl2_add_u32 s{sXT}, s10, s{sXT}")
                xload("a")
                I(f"v_or3_b32 v{u(2)}, v{vC+1}, v{vC+5}, v{vC+9}")
                I(f"v_or_b32 v{u(2)}, v{u(2)}, v{vC+13}")
                I(f"v_and_b32 v{u(2)}, 0x10000, v{u(2)}")
                I(f"v_mov_b32 v{u(3)}, {FLAG}")
                I(f"v_cmpx_ne_u32 vcc, 0, v{u(2)}")
                I(f"ds_write_b32 v{u(3)}, v{one} offset:4")
                I("s_mov_b64 exec, 1")
                I(f"v_mov_b32 v{u(2)}, s{sXT}")
                I(f"ds_add_u32 v{u(3)}, v{u(2)} offset:8")
                I("s_mov_b64 exec, -1")
            xt1()
            L("L_XT1R")
        for j in range(3):
            put(rec_ops(c_+j, c_+3, j, vEB+i, vA+4*i+j, vR1+4*i+j, vR1+4*i+3 if j == 0 and JE else None))
        e_ = vR1 + 4*i + 3
        if JE: I(f"v_cndmask_b32 v{u(0)}, v{vFF}, v{e_}, {sp(mk(i,0))}")
        I(f"v_and_or_b32 v{c_}, v{c_}, s{sN}, v{vET+i}")
        I(f"v_or_b32 v{vR1+4*i}, v{vR1+4*i}, v{vEM}")
        if JE:
            I(f"v_mov_b32_dpp v{u(1)}, v{u(0)} quad_perm:[2,2,3,3] row_mask:0xf bank_mask:0xf")
            I(f"v_mov_b32_dpp v{e_}, v{u(0)} quad_perm:[0,0,1,1] row_mask:0xf bank_mask:0xf")
        I(f"v_and_b32 v{c_+2}, s{sN}, v{c_+2}")
        if JE: I(f"v_mov_b32_dpp v{e_}, v{u(1)} row_shr:4 row_mask:0xf bank_mask:0xa")
    fill = [f"v_and_b32 v{vC+4*i+1}, s{sN}, v{vC+4*i+1}" for i in range(4)]
    I(f"v_mov_b32 v{u(9)}, {FLAG}")
    if OLP == 2: own_loads()
    I("s_waitcnt lgkmcnt(0)")
    stamp("d0")
    I("s_barrier")
    stamp(7)
    def early(i):
        if not JE: return
        I(f"s_lshl_b32 m0, s{sWP}, 10")
        I(f"v_mov_b32 v{vEI}, v{vR1+4*i+3}")
        I(f"s_add_u32 m0, m0, {EARLY + 8192*i}")
        if JE < 4:
            I(f"s_mov_b32 exec_lo, {((1 << 2*JE) - 1) * 0x01010101:#x}")
            I("s_mov_b32 exec_hi, exec_lo")
        else: I("s_nop 0")
        I(f"buffer_load_dwordx4 {rr(vEI,2)}, {sq(sEP)}, 0 idxen offen{pol(opt('eep', ''))} lds")
        if JE < 4: I("s_mov_b64 exec, -1")
    EPOS = opt("epos", "0134")
    def epoint(k):
        for i in range(4):
            if int(EPOS[i]) == k: early(i)
    c, p, tot, sc = u(0), u(4), u(8), u(9)
    hh = vX
    own, to2, ex, z_, eh, el = u(10), u(11), u(12), u(13), u(14), u(15)
    SD = f"{SDW} src0_sel:WORD_0 src1_sel:WORD_0"
    HL = f"{SDW} src0_sel:WORD_0 src1_sel:WORD_1"
    I(f"ds_read_u16 v{own}, v{owna} offset:{HIST}")
    I(f"ds_read_u16 v{to2}, v{owna} offset:{HIST + 1024}")
    for ph in range(4):
        I(f"ds_read_b128 {rr(hh+4*ph,4)}, v{l16} offset:{HIST + 1024*ph}")
    I(f"ds_read_b32 v{vQD}, v{sc} offset:8")
    epoint(0)
    I("s_cmp_lg_u32 s2, 0")
    I("s_cbranch_scc1 L_NOK")
    I(f"v_mov_b32 v{vQD+1}, s{sK}")
    I(f"v_mov_b32 v{vQD+2}, 0")
    I(f"buffer_store_dword v{vQD+1}, v{vQD+2}, {sq(sWS)}, 0 offen sc1")
    L("L_NOK")
    I("s_waitcnt lgkmcnt(5)")
    I(f"v_lshl_or_b32 v{own}, v{to2}, 16, v{own}")
    I(f"v_mov_b32 v{to2}, v{own}")
    I("s_waitcnt lgkmcnt(0)")
    stamp("d1")
    f2 = []
    for i in range(4):
        f2 += [f"v_add_u32_sdwa v{c+i}, v{hh+i}, v{hh+4+i} {SD}", f"v_add_u32_sdwa v{p+i}, v{hh+8+i}, v{hh+12+i} {SD}"]
    f2 += [f"v_add_u32 v{c+i}, v{c+i}, v{p+i}" for i in range(4)]
    wave_scan(to2, f2, half=True)
    put(f2)
    I(f"v_mul_u32_u24 v{tot}, v{c}, v{vMU}")
    for i in range(1, 4): I(f"v_mad_u32_u24 v{tot}, v{c+i}, v{vMU+i}, v{tot}")
    f2 = [f"v_sub_u32 v{ex}, v{to2}, v{own}", f"v_add_u32_sdwa v{eh}, v{to2}, v{to2} {HL}",
          f"v_add_u32_sdwa v{z_}, v{ex}, v{ex} {HL}", f"v_add_u32_sdwa v{el}, v{own}, v{own} {HL}",
          fill.pop(0), f"v_readfirstlane_b32 s{sMORE}, v{vQD}",
          f"v_permlane32_swap_b32 v{z_}, v{eh}", f"v_cndmask_b32 v{el}, 0, v{el}, {sp(sJ3)}",
          f"v_add_u32 v{z_}, v{z_}, v{eh}", fill.pop(0),
          f"v_add_u32 v{eh}, v{z_}, v{el}", fill.pop(0)]
    I(f"s_mov_b32 s{sJ3}, -1")
    I(f"s_mov_b32 s{sJ3+1}, 0")
    wave_scan(tot, f2)
    assert not f2
    stamp("d2")
    I(f"v_sub_u32_sdwa v{el}, v{eh}, v{own} {SDW} src0_sel:DWORD src1_sel:WORD_1")
    I(f"v_readlane_b32 s{sT}, v{tot}, 63")
    epoint(1)
    ASYM = opt("asym", 12)
    I(f"s_bfe_u32 s10, s{sT}, 0xe0002")
    I(f"s_lshr_b32 s{sT}, s{sT}, 16")
    I("s_lshr_b32 s11, s10, 1")
    I(f"s_add_u32 s11, s11, {4*ASYM}")
    I("s_and_b32 s11, s11, -128")
    I(f"s_lshr_b32 s{sF0}, s{sW}, 1")
    I(f"s_mul_i32 s{sF0}, s{sF0}, s10")
    I(f"s_sub_i32 s11, s11, {4*ASYM}")
    I(f"s_sub_i32 s{sF0}, s{sF0}, s{sT}")
    I(f"s_add_i32 s11, s11, s{sF0}")
    I(f"s_add_i32 s10, s10, s{sF0}")
    I(f"s_bitcmp1_b32 s{sW}, 0")
    I(f"s_cselect_b32 s{sEND}, s11, s{sF0}")
    I("s_cselect_b32 s10, s10, s11")
    I(f"v_cmp_gt_i32 vcc, s{sEND}, v{eh}")
    I(f"v_cmp_gt_i32 {sp(sTM)}, s10, v{eh}")
    f0, f1 = sWS0, sWS1
    I(f"s_bcnt1_i32_b32 s{f0}, vcc_lo")
    I(f"s_bcnt1_i32_b32 s10, s{sTM}")
    I(f"s_min_i32 s{f0}, s{f0}, s{hi0}")
    I(f"s_max_i32 s10, s10, s{lo1}")
    I(f"s_min_i32 s{f1}, s10, s{hi1}")
    stamp("d3")
    epoint(2)
    A01, A23, E01, E23, Z1 = sCI, sCUR, sR0, sCNT, sST
    I(f"v_readlane_b32 s{sT}, v{z_}, s{f0}")
    I(f"v_readlane_b32 s{Z1}, v{z_}, s{f1}")
    I(f"s_add_u32 s{sF0}, s{f0}, s{sWIN}")
    I(f"s_add_u32 s{sF1}, s{f1}, s{sWIN}")
    I(f"s_add_u32 s10, s{f0}, 32")
    I(f"s_add_u32 s11, s{f1}, 32")
    I(f"v_readlane_b32 s{A01}, v{ex}, s{f0}")
    I(f"v_readlane_b32 s{E01}, v{ex}, s{f1}")
    I(f"v_readlane_b32 s{A23}, v{ex}, s10")
    I(f"v_readlane_b32 s{E23}, v{ex}, s11")
    I(f"s_sub_u32 s{sEND}, s{Z1}, s{sT}")
    I(f"s_add_u32 s10, s{sEND}, 255")
    I("s_lshr_b32 s10, s10, 8")
    I("s_lshl_b32 s10, s10, 7")
    I(f"s_sub_u32 s10, s10, s{sMORE}")
    I("s_max_i32 s10, s10, 0")
    I(f"s_add_u32 s{sT}, s{sT}, s10")
    I(f"s_add_u32 s10, s{f0}, 16")
    I(f"s_min_u32 s10, s10, s{f1}")
    I(f"s_sub_i32 s11, s{f1}, 16")
    inl, inh, mo = sTM, sTM + 2, sMSK
    I(f"v_cmp_ge_u32 {sp(inl)}, s{sT}, v{el}")
    I(f"v_cmp_ge_u32 {sp(inh)}, s{sT}, v{eh}")
    I(f"v_cmp_gt_i32 vcc, s10, v{ownn}")
    I(f"v_cmp_gt_i32 {sp(sA)}, s11, v{ownn}")
    I(f"v_cmp_le_u32 {sp(mo)}, s{f0}, v{ownn}")
    I(f"v_cmp_gt_u32 {sp(sJ3)}, s{f1}, v{ownn}")
    I(f"s_and_b64 {sp(inl)}, {sp(inl)}, vcc")
    I(f"s_and_b64 {sp(inh)}, {sp(inh)}, vcc")
    I(f"s_or_b64 {sp(inl)}, {sp(inl)}, {sp(sA)}")
    I(f"s_or_b64 {sp(inh)}, {sp(inh)}, {sp(sA)}")
    I(f"s_bcnt1_i32_b32 s{sB0E}, s{inl}")
    I(f"s_bcnt1_i32_b32 s10, s{inh}")
    I(f"s_bcnt1_i32_b32 s11, s{inl+1}")
    I(f"s_bcnt1_i32_b32 s{sSH}, s{inh+1}")
    I(f"v_readlane_b32 s{f0}, v{ex}, s{sB0E}")
    I(f"v_readlane_b32 s10, v{ex}, s10")
    I("s_add_u32 s11, s11, 32")
    I(f"s_add_u32 s{sT}, s{sSH}, 32")
    I(f"v_readlane_b32 s{f1}, v{ex}, s11")
    I(f"v_readlane_b32 s11, v{ex}, s{sT}")
    I(f"v_mov_b32 v{c}, s{sN}")
    I(f"v_cndmask_b32 v{c+1}, 0, v{c}, {sp(inl)}")
    I(f"v_cndmask_b32 v{c}, 0, v{c}, {sp(inh)}")
    I(f"s_and_b64 {sp(mo)}, {sp(mo)}, {sp(sJ3)}")
    Q01, Q23 = f0, f1
    I(f"s_pack_lh_b32_b16 s{Q01}, s{f0}, s10")
    I(f"s_pack_lh_b32_b16 s{Q23}, s{f1}, s11")
    I(f"v_lshl_or_b32 v{c}, v{c}, 16, v{c+1}")
    I(f"s_sub_u32 s{sT}, s{sL}, {R0 - BIAS}")
    I(f"s_pack_ll_b32_b16 s{sT}, s{sT}, s{sT}")
    def bases(lo01, lo23, hi01, hi23, d, keep=None):
        I(f"s_sub_u32 s10, s{hi01}, s{lo01}")
        I(f"s_sub_u32 s11, s{hi23}, s{lo23}")
        I(f"s_mul_i32 s10, s10, 0x10001")
        I(f"s_lshl_b32 vcc_lo, s10, 16")
        I(f"s_pack_hh_b32_b16 s10, s10, s10")
        I(f"s_lshl_b32 vcc_hi, s11, 16")
        I(f"s_add_u32 vcc_hi, vcc_hi, s10")
        if keep is not None:
            I(f"s_add_u32 s{keep}, vcc_hi, s11")
            I(f"s_lshr_b32 s{keep}, s{keep}, 16")
            I(f"s_sub_u32 s{sEND}, s{sEND}, s{keep}")
            I(f"s_cmp_gt_u32 s{sEND}, s{keep}")
            I(f"s_cselect_b32 s{SWP}, {LWB * 0x10001:#x}, 0")
            I(f"s_add_u32 s{sT}, s{sT}, s{SWP}")
        I(f"s_sub_u32 s10, s{sT}, s{lo01}")
        I(f"s_sub_u32 s11, s{sT}, s{lo23}")
        I("s_add_u32 s10, s10, vcc_lo")
        I("s_add_u32 s11, s11, vcc_hi")
        I(f"v_mov_b32 v{d}, s10")
        I(f"v_mov_b32 v{d+1}, s11")
    LEN0, SWP = sJ3, sJ3 + 1
    bases(A01, A23, Q01, Q23, p, LEN0)
    I(f"s_add_u32 s{sT}, s{sT}, {LWB * 0x10001:#x}")
    I(f"s_sub_u32 s{sT}, s{sT}, s{SWP}")
    I(f"s_sub_u32 s{sT}, s{sT}, s{SWP}")
    bases(Q01, Q23, E01, E23, p + 2)
    I(f"v_bfi_b32 v{p}, v{c}, v{p}, v{p+2}")
    I(f"v_bfi_b32 v{p+1}, v{c}, v{p+1}, v{p+3}")
    I(f"s_mov_b32 exec_hi, 0")
    I(f"v_mov_b32 v{p+1}, v{p}")
    I(f"s_mov_b64 exec, {sp(mo)}")
    I(f"v_add_u32 v{ex}, v{ex}, v{p+1}")
    assert LWB & 0x80
    I(f"s_bfe_u32 s10, s{SWP}, 0x10007")
    I(f"s_lshl1_add_u32 s10, s{sW}, s10")
    I("s_lshl_b32 s10, s10, 2")
    I(f"v_cndmask_b32 v{c}, 4, 0, {sp(inl)}")
    I(f"ds_write_b16 v{owna}, v{ex} offset:{HIST + 2}")
    I(f"ds_write_b16_d16_hi v{owna}, v{ex} offset:{HIST + 1024 + 2}")
    I("s_mov_b32 exec_hi, 0")
    I(f"v_xor_b32 v{c}, s10, v{c}")
    I(f"ds_write_b32 v{mapa}, v{c}")
    I("s_mov_b64 exec, -1")
    stamp("d5")
    I(f"s_min_u32 s10, s{sEND}, s{LEN0}")
    I(f"s_max_u32 s{LEN0}, s{sEND}, s{LEN0}")
    I(f"s_mov_b32 s{sEND}, s10")
    I(f"s_add_u32 s10, s{LEN0}, s{sMORE}")
    I(f"s_mul_i32 s11, s{Z1}, {LWB * 65536 // BIAS}")
    I("s_lshr_b32 s11, s11, 16")
    I("s_max_u32 s10, s10, s11")
    I(f"s_cmp_lt_u32 s10, {LWB}")
    I("s_cbranch_scc1 L_LFIT")
    I(f"ds_write_b32 v{sc}, v{one}")
    L("L_LFIT")
    I(f"s_cmp_eq_u32 s{sMORE}, 0")
    I("s_cbranch_scc1 L_XCNR")
    I(f"s_sub_u32 s10, s{sL}, {R0 - BIAS}")
    I(f"s_add_u32 s11, s10, s{LEN0}")
    I(f"v_mov_b32 v{u(0)}, s11")
    I(f"s_add_u32 s11, s10, s{sEND}")
    I(f"s_add_u32 s11, s11, {LWB}")
    I(f"v_mov_b32 v{u(1)}, s11")
    I(f"s_lshl_b32 s10, s{sW}, 3")
    I(f"v_mov_b32 v{u(2)}, s10")
    I(f"ds_write_b64 v{u(2)}, {rr(u(0),2)} offset:{CNT}")
    L("L_XCNR")
    epoint(3)
    put(fill)
    I("s_waitcnt lgkmcnt(0)")
    stamp(8)
    I("s_barrier")
    stamp(9)
    I(f"ds_read_b64 {rr(u(14),2)}, v{sc}")
    for i in range(4):
        for j in range(3):
            I(f"ds_read_u16 v{vA+4*i+j}, v{vA+4*i+j} offset:{HIST + 2}")
    epoint(4)
    def ntiles(l0, l1):
        I(f"s_add_u32 s10, s{l0}, 127")
        I("s_lshr_b32 s10, s10, 7")
        I("s_lshl1_add_u32 s10, s10, -1")
        I(f"s_add_u32 s11, s{l1}, 127")
        I("s_lshr_b32 s11, s11, 6")
        I("s_and_b32 s11, s11, -2")
        I(f"s_max_i32 s{sN}, s10, s11")
        I(f"s_cselect_b32 s10, s{l0}, s{l1}")
        I("s_sub_u32 s10, s10, 1")
        I(f"s_andn2_b32 s{sHF}, 64, s10")
    I(f"s_add_u32 s{sB0E}, s{sB0E}, s{sWIN}")
    I(f"s_add_u32 s11, s{sSH}, s{sWIN}")
    I(f"s_and_b32 s10, s11, 15")
    I(f"s_cmp_lt_u32 s11, s{sB0E}")
    I(f"s_cselect_b32 s{sSH}, s10, 16")
    I(f"s_cmp_lg_u32 s{SWP}, 0")
    I(f"s_cselect_b32 s{sWS1}, s{sF0}, s11")
    I(f"s_cselect_b32 s{sWIN}, s{sF0}, s{sB0E}")
    I(f"s_cselect_b32 s{sF0}, s11, s{sF0}")
    I(f"s_cselect_b32 s{sB0E}, s{sF1}, s{sB0E}")
    I(f"s_cselect_b32 s{sF1}, s11, s{sF1}")
    I(f"s_min_u32 s{sWS0}, s{sF0}, 192")
    I(f"s_min_u32 s{sWS1}, s{sWS1}, 192")
    I(f"s_mov_b32 s{sST}, s{sMORE}")
    I("s_waitcnt lgkmcnt(12)")
    I(f"v_cmp_ne_u32 vcc, 0, v{u(14)}")
    I(f"v_readfirstlane_b32 s{sMORE}, v{u(15)}")
    I("s_cbranch_vccnz L_OVF")
    for i in range(4):
        for j in range(3):
            s_ = 4*i + j
            if j == 0: I("s_waitcnt lgkmcnt(9)")
            I(f"s_mov_b64 exec, {sp(mk(i,j))}")
            I(f"v_add_u32 v{vA+s_}, v{vA+s_}, v{vRK+s_}")
            I(f"ds_write2st64_b32 v{vA+s_}, v{vC+s_}, v{vR1+s_} {W2}")
    I("s_mov_b64 exec, -1")
    ntiles(LEN0, sEND)
    stamp("d6")
    sO0, sO1, sNT, sOK, sCM = sOUT, sD2, sM + 8, sM + 9, sM + 12
    def epi_prep(t0, t1):
        I(f"s_lshl_b32 s{sNT}, s{sW}, 7")
        I(f"s_add_u32 s{sNT}, s{sNT}, {NT}")
        I(f"v_mov_b32 v{t0}, s{sWS0}")
        I("s_mov_b32 exec_lo, 0xffff0000")
        I(f"v_mov_b32 v{t0}, s{sWS1}")
        I("s_mov_b64 exec, 0xffffffff") if False else None
        I("s_mov_b32 exec_lo, -1")
        I("s_mov_b32 exec_hi, 0")
        I(f"v_sub_u32 v{t1}, v{lane}, v{t0}")
        I(f"v_and_b32 v{t1}, 15, v{t1}")
        I(f"v_add_lshl_u32 v{t1}, v{t1}, v{t0}, 5")
        I(f"v_lshl_add_u32 v{t0}, v{lane}, 2, s{sNT}")
        I(f"ds_write_b32 v{t0}, v{t1}")
        I("s_mov_b32 exec_hi, -1")
        I(f"s_mul_i32 s10, s{sB}, {BN}")
        for d, lo_, hi_, k in ((sO1, sWIN, sF1, 1), (sO0, sF0, sB0E, 0)):
            I(f"s_add_u32 s11, s10, s{lo_}")
            I(f"s_add_u32 s{d+2}, s10, s{hi_}")
            I(f"s_min_u32 s11, s11, {N}")
            I(f"s_min_u32 s{d+2}, s{d+2}, {N}")
            I(f"s_sub_u32 s{d+2}, s{d+2}, s11")
            I("s_lshl_b32 s11, s11, 7")
            I(f"s_lshl_b32 s{d+2}, s{d+2}, 7")
            I(f"s_add_u32 s{d}, s{sOUT}, s11")
            I(f"s_addc_u32 s{d+1}, s{sOUT+1}, 0")
            I(f"s_mul_i32 s{sOK+k}, s{lo_}, -128")
        I(f"s_and_b32 s10, s{sSH}, 12")
        I("s_lshl_b32 s10, s10, 2")
        I(f"s_bfm_b64 {sp(sCM)}, 16, s10")
    L("L_CA")
    for x_ in trw(vWA, 0): I(x_)
    I(f"s_cmp_eq_u32 s{sXT}, 0")
    I("s_cbranch_scc1 L_XT2R")
    I(f"s_waitcnt vmcnt({(4 if JE else 0) + (4 if OLP == 2 else 0)})")
    L("L_XT2")
    I(f"s_mov_b64 {sp(sTM)}, 0")
    for i in range(4):
        I(f"v_cmp_ne_u32 vcc, s{sK}, v{xg+4*i+1}")
        I(f"s_and_b64 vcc, vcc, {sp(mk(i,3))}")
        I(f"s_or_b64 {sp(sTM)}, {sp(sTM)}, vcc")
    I("s_cbranch_scc1 L_XT2B")
    I(f"s_cmp_eq_u32 s{sSKIP}, 0")
    I("s_cbranch_scc1 L_XT2R")
    for i in range(4):
        g_ = xg + 4*i
        I(f"s_mov_b64 exec, {sp(mk(i,3))}")
        I(f"s_cbranch_execz L_XS{i}")
        I(f"v_bfe_u32 v{g_+1}, v{g_}, 18, 8")
        I(f"v_lshlrev_b32 v{g_+1}, 2, v{g_+1}")
        I(f"v_add_u32 v{g_+3}, {MAP}, v{g_+1}")
        I(f"ds_read_b32 v{g_+3}, v{g_+3}")
        put(rec_ops(g_, g_+2, 0, vEB+i, g_+1, g_+2))
        I(f"v_and_b32 v{g_}, 0xffff, v{g_}")
        I("s_waitcnt lgkmcnt(0)")
        I(f"ds_add_rtn_u32 v{g_+3}, v{g_+3}, v{one} offset:{CNT}")
        I("s_waitcnt lgkmcnt(0)")
        I(f"ds_write2st64_b32 v{g_+3}, v{g_}, v{g_+2} {W2}")
        L(f"L_XS{i}")
    I("s_mov_b64 exec, -1")
    L("L_XT2R")
    I(f"s_cmp_ge_u32 s{sWP}, 4")
    I("s_cbranch_scc1 L_EP0")
    epi_prep(u(2), u(3))
    L("L_EP0")
    stamp("d7")
    I("s_waitcnt vmcnt(0) lgkmcnt(0)")
    stamp(10)
    I("s_barrier")
    def lens_from_cnt(t):
        I(f"s_lshl_b32 s10, s{sW}, 3")
        I(f"v_mov_b32 v{t}, s10")
        I(f"ds_read_b64 {rr(t,2)}, v{t} offset:{CNT}")
        I("s_waitcnt lgkmcnt(0)")
        I(f"v_readfirstlane_b32 s{sTM}, v{t}")
        I(f"v_readfirstlane_b32 s{sTM+1}, v{t+1}")
        I(f"s_sub_u32 s10, s{sL}, {R0 - BIAS}")
        I(f"s_sub_u32 s{sTM}, s{sTM}, s10")
        I(f"s_sub_u32 s{sTM+1}, s{sTM+1}, s10")
        I(f"s_sub_u32 s{sTM+1}, s{sTM+1}, {LWB}")
        ntiles(sTM, sTM + 1)
    I(f"s_mov_b32 s10, {f2u(1e-6):#x}")
    I(f"ds_read_b128 {rr(vQD,4)}, v{vARX}")
    I(f"ds_read_b32 v{vEI}, v{vARE}")
    stamp(11)
    I(f"v_lshrrev_b32 v{u(0)}, 2, v{lane}")
    I(f"v_and_b32 v{u(0)}, 12, v{u(0)}")
    I(f"v_subrev_u32 v{u(0)}, s{sSH}, v{u(0)}")
    I("s_waitcnt lgkmcnt(0)")
    STAG = opt("stag", 1)
    if STAG:
        I(f"s_cmp_ge_u32 s{sWP}, 4")
        I("s_cbranch_scc1 L_LATE0")
    put(dma_tile())
    L("L_LATE0")
    aw, al, ab = vEO, vEO + 1, vEO + 2
    I(f"s_lshl_b32 s{sTM}, s{sWS0}, 5")
    I(f"s_lshl_b32 s{sTM+1}, s{sWS1}, 5")
    I(f"s_mov_b32 vcc_lo, 0xff00ff00")
    I(f"s_mov_b32 vcc_hi, 0xff00ff00")
    I(f"v_mov_b32 v{aw}, s{sTM+1}")
    I(f"v_mov_b32 v{al}, s{sTM}")
    I(f"v_cndmask_b32 v{aw}, v{aw}, v{al}, vcc")
    I(f"v_and_b32 v{al}, 4, v{lane}")
    I(f"v_lshlrev_b32 v{al}, 6, v{al}")
    I(f"v_lshl_add_u32 v{al}, v{vcS}, 2, v{al}")
    I(f"v_sub_u32 v{al}, v{al}, v{aw}")
    I(f"v_and_b32 v{ab}, 48, v{lane}")
    I(f"s_movk_i32 s{sTM}, {(PL-32)//8}")
    I(f"v_mad_u32_u24 v{ab}, v{vcS}, s{sTM}, v{ab}")
    I(f"s_mov_b32 s{sTM}, {OWN}")
    I(f"v_add3_u32 v{ab}, v{ab}, v{aw}, s{sTM}")
    for t_ in range(2):
        if t_: I(f"v_add_u32 v{al}, 0x80, v{al}")
        I(f"v_and_b32 v{aw}, 0x1ff, v{al}")
        I(f"v_add_u32 v{aw}, v{aw}, v{ab}")
        for s in range(2): I(f"ds_read_b128 {rr(vX+8*t_+4*s,4)}, v{aw} offset:{64*s}")
    I(f"s_mov_b32 s{sTM}, {f2u(-LOG2E):#x}")
    I(f"s_mov_b32 s{sTM+1}, s{sTM}")
    for t_ in range(2):
        for s in range(2):
            I(f"s_waitcnt lgkmcnt({3 - 2*t_ - s})")
            for n in range(4):
                D = vQ + 8*n + 4*t_
                I(m16(D, vX+8*t_+4*s, vWA+8*n+4*s, D if s else None))
    I("s_mov_b32 s11, s10")
    I(f"v_mov_b32 v{u(1)}, s10")
    for i in range(8): I(f"v_mov_b64 {rr(DEN(0,0)+2*i,2)}, {sp(10)}")
    for i in range(4):
        I(f"v_cmp_ne_u32 vcc, {-i}, v{u(0)}")
        I(f"v_mov_b64 {rr(NUM(0,0)+4*i,2)}, 0")
        I(f"v_mov_b64 {rr(NUM(0,0)+4*i+2,2)}, 0")
        I(f"v_cndmask_b32 v{DEN(1,0)+i}, 0, v{u(1)}, vcc")
    for i in range(8): I(f"v_mov_b64 {rr(NUM(1,0)+2*i,2)}, 0")
    for n in range(1, 4):
        for i in range(2): I(f"v_mov_b64 {rr(DEN(1,n)+2*i,2)}, {rr(DEN(1,0)+2*i,2)}")
    for i in range(16): I(f"v_pk_mul_f32 {rr(vQ+2*i,2)}, {rr(vQ+2*i,2)}, {sp(sTM)}")
    for i in range(16): I(f"v_cvt_pk_bf16_f32 v{vCA+i}, v{vQ+2*i}, v{vQ+2*i+1}")
    for i in range(16): I(f"v_permlane32_swap_b32 v{vCA+16+i}, v{vCA+i}")
    I(f"s_mov_b32 s{sCI}, -1")
    I(f"s_mov_b64 {sp(sMSK)}, 0")
    I(f"s_mov_b32 s{sR0}, 0")
    I(f"s_mov_b32 s{sCNT}, 0")
    if STAG:
        I(f"s_cmp_lt_u32 s{sWP}, 4")
        I("s_cbranch_scc1 L_HAD0")
        put(dma_tile())
        epi_prep(u(2), u(3))
        L("L_HAD0")
    I(f"s_cmp_eq_u32 s{sST}, 0")
    I("s_cbranch_scc1 L_GO")
    lens_from_cnt(u(0))
    L("L_GO")
    for m in range(2): I(f"ds_read_u16 v{vEA+m}, v{vARO} offset:{64*m}")
    I(f"ds_read_b128 {rr(vQD,4)}, v{vARX} offset:{LWB}")
    I(f"ds_read_b32 v{vEI}, v{vARE} offset:{LWB}")
    I(f"s_lshr_b32 s10, s{sW}, 1")
    I("s_lshl_b32 s10, s10, 8")
    I(f"s_add_u32 s10, s10, {PRG}")
    I(f"v_lshl_add_u32 v{vPA}, v{lane}, 2, s10")
    I(f"s_bitcmp1_b32 s{sW}, 0")
    I(f"s_cselect_b32 s{sSG}, -1, 1")
    I(f"s_max_i32 s10, s{sN}, 1")
    I("s_sub_u32 s10, s10, 1")
    I(f"s_mul_i32 s10, s{sSG}, s10")
    I("s_lshl_b32 s10, s10, 24")
    I(f"v_mov_b32 v{vQ}, s10")
    I(f"ds_add_u32 v{vPA}, v{vQ}")
    I(f"v_mov_b32 v{vC1}, 0")
    I("s_mov_b32 exec_hi, 0")
    I(f"v_add_u32 v{vC1}, 0x200, v{vcEO}")
    I("s_mov_b32 exec_hi, -1")
    for i in range(16): I(f"v_mov_b64 {rr(vQ+2*i,2)}, 0")
    for i in range(2): I(f"v_mov_b64 {rr(vS+2*i,2)}, 0")
    I("s_waitcnt lgkmcnt(0)")
    put(eafix())
    stamp(12)
    I("s_waitcnt vmcnt(0)")
    stamp(13)
    cstamp(56)
    for m in range(2): I(f"ds_read_b128 {rr(vEO+4*m,4)}, v{vEA+m}")
    for m, s in ORD: I(xread(m, s))
    I(f"s_cmp_lt_i32 s{sN}, 1")
    I("s_cbranch_scc1 L_DONE")
    g = g_mfmas(vP, 0, 0)
    I("s_waitcnt lgkmcnt(4)")
    for x_ in g[:4]: I(x_)
    I("s_waitcnt lgkmcnt(0)")
    for x_ in g[4:]: I(x_)
    I(f"s_mov_b32 s{sT}, 1")
    I(f"s_cmp_eq_u32 s{sN}, 1")
    I("s_cbranch_scc1 L_LT0")
    put(dma_tile())
    for cp in ((1, 0) if FAIR else (0,)):
        sw = lambda par: [f"s_cmp_ge_i32 s{sRM}, {opt('fth', 1)}", f"s_cbranch_scc{1-cp} L_PB{par}{1-cp}", f"L_PB{par}{cp}:"] if FAIR else []
        body = phase(0, 0, cp) + sw(0) + phase(0, 1, cp) + [f"s_cmp_ge_u32 s{sT}, s{sN}", "s_cbranch_scc1 L_LT1"]
        body += phase(1, 0, cp) + sw(1) + phase(1, 1, cp) + [f"s_cmp_lt_u32 s{sT}, s{sN}", f"s_cbranch_scc1 L_LOOP{cp}"]
        check_body(body)
        DBG = opt("dbg", "")
        if "nodma" in DBG: body = [b for b in body if not b.startswith("buffer_load")]
        if "dropS" in DBG: body = [b for b in body if not b.startswith("v_smfmac")]
        if "halfrcp" in DBG: body = [b for b in body if not (b.startswith("v_rcp") and int(b.split("v")[-1]) & 1)]
        if "droppk" in DBG: body = [b for b in body if not b.startswith("v_pk_mul")]
        if "halfx" in DBG: body = [b for b in body if not (b.startswith("v_mfma") and (f"v[{vX+4}:" in b or f"v[{vX+12}:" in b))]
        if "nolds" in DBG: body = [b for b in body if not (b.startswith("ds_read_b128") and f"v{vAX}" in b)]
        emit(".p2align 6")
        L(f"L_LOOP{cp}")
        put(body)
        if cp: I("s_branch L_LT0")
    if opt("cpe", 0):
        I("s_branch L_LT0")
        for cp in ((1, 0) if FAIR else (0,)):
            for par in range(2):
                L(f"L_CE{par}{cp}")
                I(f"s_getpc_b64 {sp(sA)}")
                I(f"v_and_b32 v{vEI}, 0xfc, v{vPA}")
                I(f"v_lshlrev_b32 v{vEI}, 5, v{vEI}")
                I(f"global_load_dword v{vEI}, v{vEI}, {sp(sA)}")
                I(f"s_branch L_ND{par}{cp}")
    for par in range(2):
        L(f"L_LT{par}")
        I(f"s_cmp_lg_u32 s{sHF}, 0")
        I(f"s_cbranch_scc1 L_LH{par}")
        put(last_tile(par, 0))
        I("s_branch L_DONE")
        L(f"L_LH{par}")
        put(last_tile(par, 1))
        if par == 0: I("s_branch L_DONE")
    L("L_DONE")
    I(f"v_mbcnt_lo_u32_b32 v{lane}, -1, 0")
    I(f"v_mbcnt_hi_u32_b32 v{lane}, -1, v{lane}")
    I(f"s_cmp_lg_u32 s{sMORE}, 0")
    I("s_cbranch_scc1 L_SLOW")
    L("L_EPI")
    stamp(14)
    cstamp(57)
    I(f"s_setprio {opt('epr', 0)}")
    assert STAG
    e = lambda i: vCA + i
    xd = vWV
    nd = lambda w, i: e(16 + 4*w + i)
    sO = [sO0, sO1]
    I(f"v_and_b32 v{e(0)}, 48, v{lane}")
    I(f"v_and_b32 v{e(3)}, 15, v{lane}")
    I(f"v_add_u32 v{e(5)}, s{sNT}, v{e(0)}")
    I(f"v_lshl_add_u32 v{e(6)}, v{e(3)}, 2, s{sNT}")
    I("s_waitcnt lgkmcnt(0)")
    for w in range(2): I(f"ds_read_b128 {rr(nd(w,0),4)}, v{e(5)} offset:{64*w}")
    I(f"ds_read2_b32 {rr(e(8),2)}, v{e(6)} offset0:0 offset1:16")
    I(f"v_bfe_u32 v{e(1)}, v{lane}, 2, 3")
    I(f"v_lshrrev_b32 v{e(2)}, 5, v{lane}")
    I(f"v_lshl_add_u32 v{e(1)}, v{e(2)}, 4, v{e(1)}")
    I(f"v_mul_u32_u24 v{e(1)}, {WR}, v{e(1)}")
    I(f"s_mov_b32 s10, {WUI}")
    I(f"v_add3_u32 v{e(1)}, v{e(1)}, v{vcS}, s10")
    wu = [f"ds_read_b64_tr_b16 {rr(vWB+8*n+4*s+2*uu,2)}, v{e(1)} offset:{(32*s + 8*uu)*WR + 32*n}" for s in range(2) for n in range(4) for uu in range(2)]
    for x_ in wu[:8]: I(x_)
    I(f"s_movk_i32 s10, {(PL-32)//8}")
    I(f"v_mad_u32_u24 v{e(0)}, v{vcS}, s10, v{e(0)}")
    I(f"s_mov_b32 s10, {OWN}")
    I(f"v_lshl_add_u32 v{e(5)}, v{e(3)}, 3, s10")
    for w in range(2): I(f"v_lshl_add_u32 v{e(10+w)}, v{e(3)}, 3, s{sOK+w}")
    I(f"s_mov_b64 exec, {sp(sCM)}")
    I(f"s_and_b32 s11, s{sSH}, 19")
    for i in range(4):
        I(f"s_cmp_eq_u32 s11, {i}")
        I(f"s_cbranch_scc1 L_NS{i}")
    L("L_NSR")
    I("s_mov_b64 exec, -1")
    I("s_waitcnt lgkmcnt(8)")
    for w in range(2):
        for i in range(4):
            I(f"v_add_u32 v{e(12)}, v{nd(w,i)}, v{e(5)}")
            I(f"ds_read_b64 {rr(xd+8*w+2*i,2)}, v{e(12)} offset:{i*(PL-32)}")
    for w in range(2):
        I(f"v_add3_u32 v{e(8+w)}, v{e(8+w)}, v{e(0)}, s10")
        for s in range(2): I(f"ds_read_b128 {rr(vX+8*w+4*s,4)}, v{e(8+w)} offset:{64*s}")
    for x_ in wu[8:]: I(x_)
    stamp("e0")
    for w in (1, 0):
        for k in range(16): I(f"v_rcp_f32 v{DEN(w,0)+k}, v{DEN(w,0)+k}")
    I("s_waitcnt lgkmcnt(12)")
    for w in range(2):
        XF = vP if w == 0 else vQ
        for i in range(4):
            for h in range(2):
                I(f"v_lshlrev_b32 v{XF+8*h+i}, 16, v{xd+8*w+2*i+h}")
                I(f"v_and_b32 v{XF+8*h+4+i}, 0xffff0000, v{xd+8*w+2*i+h}")
    for w in range(2):
        XF = vP if w == 0 else vQ
        for k in range(0, 16, 2): I(f"v_pk_fma_f32 {rr(NUM(w,0)+k,2)}, {rr(NUM(w,0)+k,2)}, {rr(DEN(w,0)+k,2)}, {rr(XF+k,2)}")
    I("s_waitcnt lgkmcnt(0)")
    stamp("e1")
    k = 0
    for w in range(2):
        for s in range(2):
            for n in range(4):
                I(m16(NUM(w,n), vX+8*w+4*s, vWB+8*n+4*s, NUM(w,n)))
                if k < 8: I(f"v_lshl_add_u32 v{nd(k>>2,k&3)}, v{nd(k>>2,k&3)}, 2, v{e(10+(k>>2))}")
                k += 1
    for w in range(2):
        XF = vP if w == 0 else vQ
        for i in range(4):
            if not opt("pkm", 1):
                for n in range(4): I(f"v_max_f32 v{NUM(w,n)+i}, v{NUM(w,n)+i}, v{XF+4*n+i}")
            for h in range(2): I(f"v_cvt_pk_bf16_f32 v{DEN(w,0)+2*i+h}, v{NUM(w,2*h)+i}, v{NUM(w,2*h+1)+i}")
            if opt("pkm", 1):
                for h in range(2): I(f"v_pk_max_f16 v{DEN(w,0)+2*i+h}, v{DEN(w,0)+2*i+h}, v{xd+8*w+2*i+h}")
            I(f"buffer_store_dwordx2 {rr(DEN(w,0)+2*i,2)}, v{nd(w,i)}, {sq(sO[w])}, 0 offen{pol(OP)}")
    stamp("e2")
    stamp_out()
    L("L_END")
    I("s_endpgm")
    for i in range(4):
        L(f"L_NS{i}")
        for k in range(8): I(f"v_add_f32 v{vACC+4*k+i}, v{vACC+4*k+i}, v{vACC+32+4*k+i}")
        I("s_branch L_NSR")
    for i in range(4):
        L(f"L_RT{i}")
        I("s_waitcnt vmcnt(0)")
        spin()
        for k in range(i, 4): poll_load(k)
        I("s_waitcnt vmcnt(0)")
        I(f"s_branch L_PW{i}")
    L("L_XT2B")
    spin()
    xload("b")
    I("s_waitcnt vmcnt(0)")
    I("s_branch L_XT2")
    L("L_OVF")
    I(f"s_mov_b32 s{sSKIP}, 0")
    I(f"s_mov_b32 s{sN}, 0")
    I(f"s_mov_b32 s{sST}, 0")
    I(f"s_mov_b32 s{sMORE}, 4")
    I("s_waitcnt lgkmcnt(0)")
    I("s_branch L_CA")
    q = vCA
    L("L_POVF")
    I("s_movk_i32 s11, 1986")
    for i in range(4):
        I(f"v_mul_u32_u24 v{q+i}, s11, v{vHS+i}")
        I(f"v_lshrrev_b32 v{q+i}, 16, v{q+i}")
    I(f"v_add_u32 v{q+5}, v{q}, v{q+1}")
    I(f"v_add_u32 v{q+6}, v{q+5}, v{q+2}")
    I(f"v_add_u32 v{q+7}, v{q+6}, v{q+3}")
    I(f"v_mov_b32 v{q+8}, v{q+7}")
    wave_scan(q + 8)
    I("s_nop 0")
    I(f"v_sub_u32 v{q+4}, v{q+8}, v{q+7}")
    I(f"v_add_u32 v{q+7}, v{q+4}, v{q+6}")
    I(f"v_add_u32 v{q+6}, v{q+4}, v{q+5}")
    I(f"v_add_u32 v{q+5}, v{q+4}, v{q}")
    for i in range(4): I(f"v_lshl_or_b32 v{q+4+i}, v{q+i}, 16, v{q+4+i}")
    I(f"v_add_u32 v{q+8}, {HDR}, v{l16}")
    I(f"ds_write_b128 v{q+8}, {rr(q+4,4)}")
    I("s_lshl_b32 s10, s2, 10")
    I(f"s_add_u32 s10, s10, {WS_HD}")
    I(f"buffer_store_dwordx4 {rr(q+4,4)}, v{l16}, {sq(sWS)}, s10 offen sc1")
    for i in range(8):
        I(f"v_and_b32 v{q+10+i}, 0x3fc, v{vHA+i}")
        I(f"v_add_u32 v{q+10+i}, {HDR}, v{q+10+i}")
        I(f"ds_read_u16 v{q+10+i}, v{q+10+i}")
    I("s_waitcnt lgkmcnt(0)")
    for i in range(4):
        I(f"v_cmpx_lt_u32 vcc, {33*(CAP+8)}, v{vHD+i}")
        I(f"v_or_b32 v{vO+4*i+1}, 0x10000, v{vO+4*i+1}")
        I("s_mov_b64 exec, -1")
    I(f"s_mul_i32 s10, s2, {DCH}")
    I(f"s_mov_b32 s{sTM}, {WS_RECS}")
    I(f"s_mov_b32 s{sTM+1}, {WS_LEID}")
    for i in range(NR):
        I(f"v_mul_u32_u24 v{q}, s11, v{vRK1+i}")
        I(f"v_lshrrev_b32 v{q}, 16, v{q}")
        I(f"v_add3_u32 v{q}, v{q}, v{q+10+i}, s10")
        I(f"v_lshlrev_b32 v{q+1}, 2, v{q}")
        I(f"v_cmpx_le_u32 vcc, {33*(CAP+8)}, v{vRK1+i}")
        I(f"s_cbranch_execz L_PO{i}")
        I(f"buffer_store_byte v{idr(i)}, v{q}, {sq(sWS)}, s{sTM+1} offen sc1")
        I(f"buffer_store_dword v{vSR+i}, v{q+1}, {sq(sWS)}, s{sTM} offen sc1")
        L(f"L_PO{i}")
        I("s_mov_b64 exec, -1")
    I("s_waitcnt vmcnt(0) lgkmcnt(0)")
    I("s_barrier")
    I("s_branch L_POUT")
    SB = 288
    t0, t1, t2, t3 = vP, vP+1, vP+2, vP+3
    L("L_SLOW")
    I("s_setprio 0")
    I(f"s_lshl_b32 s10, s{sWP}, 6")
    I(f"v_add_u32 v{tid}, s10, v{lane}")
    I(f"s_cmp_lg_u32 s{sMORE}, 4")
    I("s_cbranch_scc1 L_SL1")
    I(f"s_mov_b32 s{sMORE}, 1")
    I(f"v_and_b32 v{t0}, 0xff, v{tid}")
    I(f"v_lshlrev_b32 v{t1}, 7, v{t0}")
    I(f"buffer_load_dword v{t2}, v{t1}, {sq(sCEL)}, 0 offen offset:4 sc1")
    I(f"v_lshlrev_b32 v{t1}, 10, v{t0}")
    I(f"s_lshl_b32 s10, s{sB}, 2")
    I(f"s_add_u32 s10, s10, {WS_HD}")
    I(f"buffer_load_dword v{t3}, v{t1}, {sq(sWS)}, s10 offen sc1")
    I(f"v_lshlrev_b32 v{t0}, 2, v{t0}")
    I(f"v_add_u32 v{t0}, {HDR}, v{t0}")
    I("s_waitcnt vmcnt(0)")
    I(f"v_and_b32 v{t2}, 0x10000, v{t2}")
    I(f"v_cmp_ne_u32 vcc, 0, v{t2}")
    I(f"v_mov_b32 v{t2}, {(CAP+8) << 16}")
    I("s_nop 0")
    I(f"v_cndmask_b32 v{t2}, v{t2}, v{t3}, vcc")
    I(f"ds_write_b32 v{t0}, v{t2}")
    I("s_waitcnt lgkmcnt(0)")
    I("s_barrier")
    L("L_SL1")
    I(f"s_add_u32 s{sR0}, s{sR0}, {SB}")
    I(f"s_cmp_lt_u32 s{sR0}, s{sCNT}")
    I("s_cbranch_scc1 L_BATCH")
    L("L_FIND")
    I(f"s_cmp_lg_u64 {sp(sMSK)}, 0")
    I("s_cbranch_scc1 L_GOT")
    I(f"s_add_u32 s{sCI}, s{sCI}, 1")
    I(f"s_cmp_ge_u32 s{sCI}, 4")
    I("s_cbranch_scc1 L_EPI")
    I(f"s_lshl_b32 s10, s{sCI}, 8")
    I(f"s_add_u32 s10, s10, {HDR}")
    I(f"v_lshl_add_u32 v{t0}, v{lane}, 2, s10")
    I(f"ds_read_u16 v{t0}, v{t0} offset:2")
    I("s_waitcnt lgkmcnt(0)")
    I(f"v_cmp_lt_u32 {sp(sMSK)}, s{sSKIP}, v{t0}")
    I("s_nop 3")
    I("s_branch L_FIND")
    L("L_GOT")
    I(f"s_ff1_i32_b64 s10, {sp(sMSK)}")
    I(f"s_bitset0_b64 {sp(sMSK)}, s10")
    I(f"s_lshl_b32 s11, s{sCI}, 6")
    I(f"s_add_u32 s{sCUR}, s10, s11")
    I(f"s_lshl_b32 s10, s{sCUR}, 2")
    I(f"s_add_u32 s10, s10, {HDR}")
    I(f"v_mov_b32 v{t0}, s10")
    I(f"ds_read_b32 v{t0}, v{t0}")
    I("s_waitcnt lgkmcnt(0)")
    I(f"v_readfirstlane_b32 s10, v{t0}")
    I("s_nop 3")
    I(f"s_lshr_b32 s{sCNT}, s10, 16")
    I(f"s_and_b32 s{sST}, s10, 0xffff")
    I(f"s_mov_b32 s{sR0}, s{sSKIP}")
    L("L_BATCH")
    I("s_waitcnt vmcnt(0)")
    I("s_barrier")
    prefill(vP + 4)
    I(f"v_and_b32 v{t0}, 15, v{lane}")
    I(f"v_mul_u32_u24 v{t1}, {LWB}, v{t0}")
    I(f"v_add_u32 v{t1}, {BIAS}, v{t1}")
    I(f"v_lshlrev_b32 v{t0}, 2, v{t0}")
    I(f"ds_write_b32 v{t0}, v{t1} offset:{CNT}")
    t1, t4, t5 = vQ, vQ + 2, vQ + 3
    I(f"v_add_u32 v{t0}, s{sR0}, v{tid}")
    I(f"s_mul_i32 s{sTM+2}, s{sCUR}, {CH}")
    I(f"s_mul_i32 s11, s{sCUR}, {DCH}")
    I(f"s_add_u32 s11, s11, s{sST}")
    I(f"s_lshl_b32 s{sTM}, s11, 2")
    I(f"s_add_u32 s{sTM}, s{sTM}, {WS_RECS}")
    I(f"v_lshl_add_u32 v{t2}, v{t0}, 2, s{sTM}")
    I(f"s_add_u32 s{sTM}, s11, {WS_LEID}")
    I(f"v_add_u32 v{t3}, s{sTM}, v{t0}")
    I(f"s_mul_i32 s10, s{sB}, {RS}")
    I(f"s_lshl_b32 s{sTM}, s{sCUR}, 7")
    I(f"s_add_u32 s10, s10, s{sTM}")
    I(f"s_add_u32 s10, s10, {WS_CELL}")
    I(f"v_and_b32 v{t4}, 7, v{t0}")
    I(f"v_lshl_add_u32 v{t4}, v{t4}, 4, s10")
    I(f"v_lshrrev_b32 v{t5}, 3, v{t0}")
    I(f"v_cmpx_gt_u32 vcc, {CAP+8}, v{t0}")
    I(f"v_add_u32 v{t2}, {XOFF}, v{t4}")
    I(f"v_add_u32 v{t3}, 8, v{t2}")
    I(f"v_cmpx_gt_u32 vcc, {CAP}, v{t0}")
    I(f"v_lshl_add_u32 v{t2}, v{t5}, 2, v{t4}")
    I(f"v_add3_u32 v{t3}, v{t4}, v{t5}, 12")
    I("s_mov_b64 exec, -1")
    I(f"s_add_u32 s10, s{sR0}, {SB}")
    I(f"s_min_u32 s10, s10, s{sCNT}")
    I(f"v_cmp_gt_u32 vcc, s10, v{t0}")
    I(f"v_mov_b32 v{t4}, 0x7ffffff0")
    I("s_nop 0")
    I(f"v_cndmask_b32 v{t2}, v{t4}, v{t2}, vcc")
    I(f"v_cndmask_b32 v{t3}, v{t4}, v{t3}, vcc")
    I(f"buffer_load_dwordx2 {rr(t1,2)}, v{t2}, {sq(sWS)}, 0 offen sc1")
    I(f"buffer_load_ubyte v{t3}, v{t3}, {sq(sWS)}, 0 offen sc1")
    I("s_waitcnt lgkmcnt(0)")
    I("s_barrier")
    I("s_waitcnt vmcnt(0)")
    I(f"v_cmp_ne_u32 vcc, 3, v{t5}")
    I(f"v_cmp_eq_u32 {sp(sA)}, s{sK}, v{t1+1}")
    I(f"v_mov_b32 v{t4}, s{sTM+2}")
    I(f"s_or_b64 exec, vcc, {sp(sA)}")
    I(f"v_cmpx_ne_u32 vcc, 0, v{t1}")
    I(f"v_bfe_u32 v{t2}, v{t1}, 18, 8")
    I(f"v_lshlrev_b32 v{t2}, 2, v{t2}")
    I(f"v_add_u32 v{t0}, {MAP}, v{t2}")
    I(f"ds_read_b32 v{t0}, v{t0}")
    put(rec_ops(t1, t3, 0, t4, t2, t3))
    I(f"v_mov_b32 v{t2}, 4")
    I(f"v_and_b32 v{t1}, 0xffff, v{t1}")
    I("s_waitcnt lgkmcnt(0)")
    I(f"ds_add_rtn_u32 v{t0}, v{t0}, v{t2} offset:{CNT}")
    I("s_waitcnt lgkmcnt(0)")
    I(f"ds_write2st64_b32 v{t0}, v{t1}, v{t3} {W2}")
    I("s_mov_b64 exec, -1")
    I("s_waitcnt lgkmcnt(0)")
    I("s_barrier")
    listaddr(t2)
    I(f"ds_read_b128 {rr(vQD,4)}, v{vARX}")
    I(f"ds_read_b32 v{vEI}, v{vARE}")
    lens_from_cnt(t2)
    put(dma_tile())
    L("L_LAST")
    I("s_branch L_GO")

def regs_of(tok):
    tok = tok.strip()
    m = re.fullmatch(r"v\[(\d+):(\d+)\]", tok)
    if m: return list(range(int(m.group(1)), int(m.group(2)) + 1))
    m = re.fullmatch(r"v(\d+)", tok)
    if m: return [int(m.group(1))]
    return []
def parse(ins):
    op, _, rest = ins.partition(" ")
    ops = [o.strip().split(" ")[0] for o in rest.split(",")] if rest else []
    if op.startswith("ds_read") or "rtn" in op: return "ds", regs_of(ops[0]), regs_of(ops[1])
    return "other", [], sum((regs_of(o) for o in ops), [])
def check_body(body):
    s2 = [b for b in body if not b.endswith(":")]
    pend = []
    for i, ins in enumerate(s2 * 3):
        k, d, s = parse(ins)
        m = re.search(r"lgkmcnt\((\d+)\)", ins)
        if m:
            while len(pend) > int(m.group(1)): pend.pop(0)
        pr = set(sum(pend, []))
        for r in d + s:
            assert r not in pr, f"pending LDS reg v{r} used by {ins} @{i}"
        if k == "ds":
            pend.append(d); assert len(pend) <= 15

hdr = open("/code/" + NAME + ".s.ref").read().split("\n")
for l in hdr:
    if l.startswith("; Override"): break
    out.append(l)
if opt("list", 0): out.append(f"; @launch kernel={NAME}_kernel grid=(256,1,1) block=(512,1,1) lds={LDS}")
else: out.append(f"; @launch grid=(256,1,1) block=(512,1,1) lds={LDS}")
LEAK = opt("leak", "")
if LEAK: out.append("; @launch kernel=leak_kernel grid=(1,1,1) block=(256,1,1) lds=64")
emit('.amdgcn_target "amdgcn-amd-amdhsa--gfx950"\n.text')
kernel()
if LEAK:
    kind, nm = LEAK[0], LEAK[1:]
    si = STN.index(nm)
    emit(".globl leak_kernel\n.p2align 8\n.type leak_kernel,@function\nleak_kernel:")
    I("s_cmp_lg_u32 s2, 0")
    I("s_cbranch_scc1 LK_END")
    I("s_load_dwordx2 s[4:5], s[0:1], 88")
    I("v_min_u32 v1, 254, v0")
    I("v_lshlrev_b32 v1, 11, v1")
    I("v_mov_b32 v2, 0")
    I("v_mov_b32 v3, 0x7fffffff")
    I("v_mov_b32 v4, 0")
    I("ds_write2_b32 v2, v3, v4 offset0:0 offset1:1")
    I("s_waitcnt lgkmcnt(0)")
    I(f"s_add_u32 s4, s4, {WS_TS}")
    I("s_addc_u32 s5, s5, 0")
    I("global_load_dword v5, v2, s[4:5]")
    for w in range(8):
        I(f"global_load_dword v{8+w}, v1, s[4:5] offset:{256*w}")
        I(f"global_load_dword v{16+w}, v1, s[4:5] offset:{256*w + 4*si}")
    I("s_barrier")
    I("s_waitcnt vmcnt(0)")
    I("v_subrev_u32 v5, 1000, v5")
    for w in range(16): I(f"v_sub_u32 v{8+w}, v{8+w}, v5")
    for w in range(8):
        I(f"ds_min_u32 v2, v{8+w}")
        I(f"ds_{'max' if kind == 'm' else 'add'}_u32 v2, v{16+w} offset:4")
    I("s_waitcnt lgkmcnt(0)")
    I("s_barrier")
    I("ds_read_b64 v[6:7], v2")
    I("s_waitcnt lgkmcnt(0)")
    I("v_lshlrev_b32 v6, 2, v6")
    I("v_lshlrev_b32 v7, 2, v7" if kind == 'm' else "v_lshrrev_b32 v7, 9, v7")
    I("v_sub_u32 v6, v7, v6")
    I("v_min_u32 v6, 20000, v6")
    I("s_nop 0")
    I("v_readfirstlane_b32 s6, v6")
    I("s_memrealtime s[8:9]")
    I("s_waitcnt lgkmcnt(0)")
    L("LK_L")
    I("s_memrealtime s[10:11]")
    I("s_waitcnt lgkmcnt(0)")
    I("s_sub_u32 s7, s10, s8")
    I("s_cmp_lt_u32 s7, s6")
    I("s_cbranch_scc1 LK_L")
    L("LK_END")
    I("s_endpgm")
emit(f""".section .rodata,"a"
.p2align 6
.amdhsa_kernel {NAME}_kernel
  .amdhsa_next_free_vgpr 256
  .amdhsa_next_free_sgpr 102
  .amdhsa_accum_offset 256
  .amdhsa_group_segment_fixed_size 0
  .amdhsa_kernarg_size 96
  .amdhsa_user_sgpr_count 2
  .amdhsa_user_sgpr_kernarg_segment_ptr 1
  .amdhsa_system_sgpr_workgroup_id_x 1
.end_amdhsa_kernel""")
if LEAK:
    emit(""".p2align 6
.amdhsa_kernel leak_kernel
  .amdhsa_next_free_vgpr 32
  .amdhsa_next_free_sgpr 16
  .amdhsa_accum_offset 32
  .amdhsa_group_segment_fixed_size 0
  .amdhsa_kernarg_size 96
  .amdhsa_user_sgpr_count 2
  .amdhsa_user_sgpr_kernarg_segment_ptr 1
  .amdhsa_system_sgpr_workgroup_id_x 1
.end_amdhsa_kernel""")
if TS: out.insert(0, "; stamps " + " ".join(STN))
path = sys.argv[1] if len(sys.argv) > 1 else "/code/" + NAME + ".s"
open(path, "w").write("\n".join(out) + "\n")
print("wrote", path, len(out), "lines; lds", LDS)
```

```python
import sys, re, struct

NAME = "standalone__edge_featured_mpnn_gatedgcn__graph"
OPT = dict(kv.split("=") for kv in sys.argv[2:])
def opt(k, d):
    v = OPT.get(k)
    if v is None: return d
    return type(d)(v)

N, E = 50000, 800000
CH = 3128
BN = 196
XIL = opt('xil', 0)
RS = (513 if XIL else opt('rs', 257)) * 128
XOFF = 256 * 128 if XIL else 256 * RS
WS_CELL = 0x10000
WS_RECS = 0x1200000
WS_LEID = 0x1680000
WS_HD = 0x17a0000
WS_USED = 0x1800000
WS_TS = 0x3000000
KINC = 0x02020202
CAP = 24
LOG2E = 1.4426950408889634
def f2u(f): return struct.unpack("<I", struct.pack("<f", f))[0]

out = []
def emit(s=""):
    for l in s.strip("\n").split("\n"):
        out.append(l.rstrip())
def I(s): out.append("    " + s)
def L(s): out.append(s + ":")
def C(s): out.append("    ; " + s)
def put(seq):
    for s in seq:
        if s.endswith(":"): L(s[:-1])
        else: I(s)
def rr(a, n): return f"v[{a}:{a+n-1}]"
def sp(a): return f"s[{a}:{a+1}]"
def sq(a): return f"s[{a}:{a+3}]"
def pol(p): return (" " + p.replace("_", " ")) if p else ""

def srd(d, lo, size, add=None, stride=0):
    if add is None:
        I(f"s_mov_b32 s{d}, s{lo}")
        I(f"s_mov_b32 s{d+1}, s{lo+1}" if not stride else f"s_or_b32 s{d+1}, s{lo+1}, {stride << 16:#x}")
    else:
        I(f"s_add_u32 s{d}, s{lo}, {add}")
        I(f"s_addc_u32 s{d+1}, s{lo+1}, 0")
    I(f"s_mov_b32 s{d+2}, {size}")
    I(f"s_mov_b32 s{d+3}, 0x20000")

def wave_scan(v, fill=None, half=False):
    def gap():
        if fill and len(fill) >= 2:
            I(fill.pop(0)); I(fill.pop(0))
        else: I("s_nop 1")
    for sh in (1, 2, 4, 8):
        gap()
        I(f"v_add_u32_dpp v{v}, v{v}, v{v} row_shr:{sh} row_mask:0xf bank_mask:0xf bound_ctrl:0")
    gap()
    I(f"v_add_u32_dpp v{v}, v{v}, v{v} row_bcast:15 row_mask:0xa bank_mask:0xf")
    if half: return
    gap()
    I(f"v_add_u32_dpp v{v}, v{v}, v{v} row_bcast:31 row_mask:0xc bank_mask:0xf")

TAB, ZROW, CNT, FLAG = 0, 512, 576, 640
HIST = 1024
ESTG = HIST + 4096
HIST1 = ESTG
EARLY = ESTG + 8192
LWB = 288 * 4
R0 = EARLY + 32768
R1 = R0 + 16 * LWB
XSTG = R1 + 16 * LWB
XI = 1056
SLOT = 4 * XI
OWN = XSTG + 8 * SLOT
PL = 52 * 128 + 32
WR = 160
WUI = OWN + 4 * PL
MAP = WUI + 64 * WR
HDR = MAP + 1024
PRG = HDR + 1024
NT = PRG + 2048
LDS = NT + 1024
WBI, WVI, WCI = EARLY, EARLY + 64 * WR, EARLY + 128 * WR
WAI = XSTG + 8192
LROW = 160
CIMG = R0
assert CIMG + 256 * LROW <= WAI and LDS <= 163840, LDS
BIAS = 8192
assert R1 < 65536 and R0 % 256 == 0 and R1 % 256 == 0
W2 = f"offset0:{(R0-BIAS)//256} offset1:{(R1-BIAS)//256}"

vWB, vWV, vCA, vACC = 0, 32, 64, 96
vX, vEO, vS = 160, 176, 184
vP, vQ, vR = 188, 204, 220
vQD = 236
vEI, vCH, vONE, vCP, vAX, vcEO, vcS, vARX, vARE, vARO, vARS, vEA = 240, 241, 242, 243, 244, 245, 246, 247, 248, 249, 250, 251
lane, vTS, tid = 253, 254, 255
vC1, vIDX, vPA = lane, tid, vcS
DEN = lambda w, n: vACC + 32 * w + 4 * n
NUM = lambda w, n: vACC + 32 * w + 16 + 4 * n
def m16(d, a, b, c=None):
    return f"v_mfma_f32_16x16x32_bf16 {rr(d,4)}, {rr(a,4)}, {rr(b,4)}, " + ("0" if c is None else rr(c, 4))
def s16(d, b): return f"v_smfmac_f32_16x16x64_bf16 {rr(d,4)}, {rr(vS,4)}, {rr(b,8)}, v{vIDX}"

sWP, sW, sB, sK = 3, 4, 5, 6
sWIN, sF0, sF1, sL = 7, 8, 9, 12
sA, sBt = 10, 11
sSTG, sES, s128 = 13, 14, 15
pX, pE, pSRC, pDST, pWA, pWB, pWC, pWU, pWV, pOUT, pDBG, pWS = 16, 18, 20, 22, 24, 26, 28, 30, 32, 34, 36, 38
sT, sN, sFM, sMORE, sSKIP, sXT, sWS0, sWS1, sB0E, sSH = 16, 17, 18, 19, 20, 21, 22, 23, 24, 25
sCI, sCUR, sR0, sCNT, sST, sEND = 26, 27, 28, 29, 30, 31
sMSK = 32
sTM = 34
sX, sEP, sOUT, sWS, sCEL, sD2 = 40, 44, 48, 52, 56, 60
sM = 64
sJ3, sEM = 96, 98
sSP = 100
sHF = 99
sSG, sRM = 101, 96

TS = opt("ts", 0)
STN = []
YP = opt("yp", "")
def stamp(i):
    if str(i) in YP.split("_"):
        k = YP.split("_").index(str(i))
        I(f"s_cmp_lt_u32 s{sWP}, 4")
        I(f"s_cbranch_scc1 L_YP{k}")
        I(f"s_setprio {1 - (k & 1)}")
        L(f"L_YP{k}")
    if not TS: return
    if isinstance(i, str) and i[0] not in opt("tsx", ""): return
    STN.append(str(i)); i = len(STN) - 1
    I("s_memrealtime vcc" if TS == 1 else "s_memtime vcc")
    I("s_waitcnt lgkmcnt(0)")
    I(f"v_writelane_b32 v{vTS}, vcc_lo, {i}")
def stamp_out():
    if not TS: return
    I("s_waitcnt vmcnt(0)")
    stamp(15)
    I("s_memtime vcc")
    I("s_waitcnt lgkmcnt(0)")
    I(f"v_writelane_b32 v{vTS}, vcc_lo, 58")
    I(f"v_writelane_b32 v{vTS}, s{sN}, 59")
    I(f"v_writelane_b32 v{vTS}, s{sSP}, 60")
    I("s_getreg_b32 s10, hwreg(HW_REG_XCC_ID)")
    I(f"v_writelane_b32 v{vTS}, s10, 55")
    I("s_lshl_b32 s10, s2, 3")
    I(f"s_add_u32 s10, s10, s{sWP}")
    I("s_lshl_b32 s10, s10, 8")
    I(f"s_add_u32 s10, s10, {WS_TS}")
    I(f"v_lshl_add_u32 v{vP}, v{lane}, 2, s10")
    I(f"global_store_dword v{vP}, v{vTS}, {sp(pWS)}")
def cstamp(i):
    if not TS: return
    I("s_memtime vcc")
    I("s_waitcnt lgkmcnt(0)")
    I(f"v_writelane_b32 v{vTS}, vcc_lo, {i}")

LD_P = opt("ldp", "nt")
XP, EP, OP = opt("xp", ""), opt("ep", ""), opt("op", "sc1")
STP = opt("stp", "sc1")
MG = opt("mg", 1)
JE = opt("je", 4 if MG else 2)
EMASK = ((1 << JE) - 1) * 0x01010101
DCH = CH + 1024
SDW = "dst_sel:DWORD dst_unused:UNUSED_PAD"

def dma_tile():
    r = []
    for i in range(4):
        r.append(f"s_add_u32 m0, s{sSTG}, {i*XI}")
        r.append(f"v_mad_u32_u16 v{vQD+i}, v{vQD+i}, s{s128}, v{vCP}")
        r.append(f"buffer_load_dwordx4 v{vQD+i}, {sq(sX)}, 0 offen{pol(XP)} lds")
    r.append(f"s_mov_b32 m0, s{sES}")
    r.append(f"v_and_b32 v{vEI}, 0xfffff, v{vEI}")
    r.append(f"buffer_load_dwordx4 {rr(vEI,2)}, {sq(sEP)}, 0 idxen offen{pol(EP)} lds")
    return r

ORD = [(0, 0), (1, 0), (0, 1), (1, 1)]
def xread(m, s): return f"ds_read_b128 {rr(vX+8*m+4*s,4)}, v{vAX} offset:{512*m + 64*s}"
def g_mfmas(D, ft, w):
    g = [m16(D+8*n+4*m, vEO+4*m, vCA+16*w+8*ft+4*n) for m in range(2) for n in range(2)]
    g += [m16(D+8*n+4*m, vX+8*m+4*s, vWB+16*ft+8*n+4*s, D+8*n+4*m) for m, s in ORD for n in range(2)]
    return g
def h_mfmas(ft):
    return [m16(vQ+8*n+4*m, vX+8*m+4*s, vWV+16*ft+8*n+4*s, None if s == 0 else vQ+8*n+4*m) for m, s in ORD for n in range(2)]
def s_num(w, ft): return [s16(NUM(w, 2*ft+n), vQ+8*n) for n in range(2)]
def s_den(w, ft, G): return [s16(DEN(w, 2*ft+n), G+8*n) for n in range(2)]

def eafix():
    return [f"v_bfi_b32 v{vEA+m}, 31, v{vcEO}, v{vEA+m}" for m in range(2)] + [f"v_max_u32 v{vEA}, v{vEA}, v{vcEO}", f"v_max_u32 v{vEA+1}, v{vEA+1}, v{vC1}"]
LV = [int(c, 16) for c in opt("lv", "015a")]
PAT = opt("pat", "1" * 11 + "5")
FAIR = opt("fair", 1)
F2 = opt("f2", 0)
BST = opt("bst", 10)
LNG = opt("lng", 1)
ASL = [int(x) for x in opt("asl", "12_13_14_18").split("_")]
LLV = [int(x) for x in opt("llv", "0_2_12_26").split("_")]
LLP_ = opt("llp", "0003_1113").split("_")
def add1(q): return f"v_mfma_f32_4x4x4_16b_bf16 {rr(q,4)}, {rr(vONE,2)}, {rr(vONE,2)}, {rr(q,4)}"
def long_sec(mf, G, regs, slots, cp):
    r = []; k = 0
    tr = [f"v_exp_f32 v{G+i}, v{G+i}" for i in regs] + [f"v_rcp_f32 v{G+i}, v{G+i}" for i in regs]
    for i, x in enumerate(tr):
        if i in LLV:
            j = LLV.index(i)
            if j == 0 or LLP_[cp][j] != LLP_[cp][j-1]: r.append(f"s_setprio {LLP_[cp][j]}")
        if i in slots: r.append(add1(G + regs[4*slots.index(i)]))
        elif k < len(mf): r += mf[k]; k += 1
        r.append(x)
    assert k == len(mf)
    return r
def phase(par, ft, cp=0):
    G, Go = (vP, vR) if ft == 0 else (vR, vP)
    nf = 1 - ft
    wn = par if ft == 0 else par ^ 1
    wp = par ^ 1 if ft == 0 else par
    s1 = [[x] for x in s_num(wp, nf) + h_mfmas(ft) + s_den(wp, nf, Go)]
    s2 = [[x] for x in g_mfmas(Go, nf, wn)]
    if ft == 0:
        o = par * LWB
        s1[0] += [f"ds_read_u16 v{vQD+u}, v{vARS} offset:{o + 16*u}" for u in range(2)]
        s1[8] += ["s_waitcnt lgkmcnt(0)"] + [f"v_bfi_b32 v{vQD+u}, 31, v{vcS}, v{vQD+u}" for u in range(2)]
        if FAIR and (par == 0 or not F2):
            s1[0] += [f"ds_add_rtn_u32 v{vQD+2}, v{vPA}, v{vIDX}"]
            s1[8] += [f"v_readfirstlane_b32 s{sRM}, v{vQD+2}"]
            s2[1] += [f"s_ashr_i32 s{sRM}, s{sRM}, 24", f"s_mul_i32 s{sRM}, s{sRM}, s{sSG}"]
        o1 = 128 if par else LWB
        s2[0] += [f"ds_read_b64_tr_b16 {rr(vS+2*u,2)}, v{vQD+u}" for u in range(2)]
        s2[0] += [f"ds_read_u16 v{vEA+m}, v{vARO} offset:{o1 + 64*m}" for m in range(2)]
        s2[6] += ["s_waitcnt lgkmcnt(0)"] + eafix()
        s2[6] += [f"ds_read_b128 {rr(vQD,4)}, v{vARX} offset:{o + 128}", f"ds_read_b32 v{vEI}, v{vARE} offset:{o + 128}",
                  f"s_add_u32 s{sT}, s{sT}, 1"]
        if par: s2[7] += [f"v_add_u32 v{r}, 0x80, v{r}" for r in (vARX, vARE, vARO, vARS)]
    else:
        s1[2] = ["s_waitcnt vmcnt(0)"] + [f"ds_read_b128 {rr(vEO+4*m,4)}, v{vEA+m}" for m in range(2)] + s1[2]
        for i, (m, s) in enumerate(ORD): s1[3+2*i].append(xread(m, s))
        s2[0] = ["s_waitcnt lgkmcnt(4)"] + s2[0]
        for i in range(4): s2[4+2*i] = [f"s_waitcnt lgkmcnt({3-i})"] + s2[4+2*i]
        DSP = opt("dsp", "")
        if DSP:
            d = dma_tile(); first = min(int(c, 16) for c in DSP)
            for i in range(4): s2[4+2*i] = s2[4+2*i][1:] if 4+2*i > first else s2[4+2*i]
            s2[first] = ["s_waitcnt lgkmcnt(0)"] + [x for x in s2[first] if not x.startswith("s_waitcnt")]
            for k, c in enumerate(DSP): s2[int(c, 16)] += d[3*k:3*k+3]
        tgt = f"L_CE{par}{cp}" if opt("cpe", 0) else f"L_ND{par}{cp}"
        if not DSP: s2[10] += [f"s_cmp_lt_u32 s{sT}, s{sN}", f"s_cbranch_scc0 {tgt}"] + dma_tile() + [f"L_ND{par}{cp}:"]
    def sec(mf, op):
        r = []; k = 0
        for i, m in enumerate(mf):
            if opt("lvp", ""):
                lv = opt("lvp", "").split("_")[cp]
                if i in LV:
                    k_ = LV.index(i)
                    if k_ == 0 or lv[k_] != lv[k_-1]: r.append(f"s_setprio {lv[k_]}")
            elif FAIR:
                if i == 0: r.append(f"s_setprio {cp}")
                if i == BST: r.append("s_setprio 3")
            elif i in LV: r.append(f"s_setprio {LV.index(i)}")
            r += m
            for _ in range(int(PAT[i])):
                r.append(f"{op} v{G+k}, v{G+k}"); k += 1
        assert k == 16
        return r
    r = []
    if opt("tt", 0) and ft == 0:
        r += ["s_memrealtime vcc", "s_memtime s[10:11]", f"s_add_u32 m0, s{sT}, 17", "s_waitcnt lgkmcnt(0)", f"v_writelane_b32 v{vTS}, vcc_lo, m0",
              f"s_add_u32 m0, s{sT}, 35", "s_nop 0", f"v_writelane_b32 v{vTS}, s10, m0"]
    if LNG:
        r += long_sec(s1 + s2, G, list(range(16)), ASL, cp)
        return r + [f"v_pk_mul_f32 {rr(vQ+2*i,2)}, {rr(G+2*i,2)}, {rr(vQ+2*i,2)}" for i in range(8)]
    r += sec(s1, "v_exp_f32")
    r += [f"v_pk_add_f32 {rr(G+2*i,2)}, {rr(G+2*i,2)}, 1.0 op_sel_hi:[1,0]" for i in range(8)]
    r += sec(s2, "v_rcp_f32")
    r += [f"v_pk_mul_f32 {rr(vQ+2*i,2)}, {rr(G+2*i,2)}, {rr(vQ+2*i,2)}" for i in range(8)]
    return r

def last_tile(par, half, epi=None, only_b=False):
    keep = (lambda x: int(re.match(r"\S+ v\[(\d+)", x).group(1)) % 8 == (vP % 8)) if half else (lambda x: True)
    regs = [k for k in range(16) if not (half and k & 4)]
    def sec(mf, op, G):
        r = [f"s_setprio {opt('lpr', 0)}"]; k = 0
        tail = min(len(regs), 4 if half else 5)
        for i, m in enumerate(mf):
            if i == len(mf) - 1: r.append("s_setprio 3")
            r += m
            e_ = (len(regs) - tail) * (i + 1) // (len(mf) - 1) if i < len(mf) - 1 else len(regs)
            while k < e_:
                r.append(f"{op} v{G+regs[k]}, v{G+regs[k]}"); k += 1
        while k < len(regs):
            r.append(f"{op} v{G+regs[k]}, v{G+regs[k]}"); k += 1
        return r
    r = []
    for ft in range(1 if only_b else 0, 2):
        G, Go = (vP, vR) if ft == 0 else (vR, vP)
        wp = par ^ 1 if ft == 0 else par
        s1 = [[x] for x in s_num(wp, 1-ft) + [h for h in h_mfmas(ft) if keep(h)] + s_den(wp, 1-ft, Go)]
        s2 = [[x] for x in g_mfmas(Go, 1, par) if keep(x)] if ft == 0 else []
        if ft == 0:
            s1[0] += [f"ds_read_u16 v{vQD+u}, v{vARS} offset:{par*LWB + 16*u}" for u in range(2)]
            s1[-2] += ["s_waitcnt lgkmcnt(0)"] + [f"v_bfi_b32 v{vQD+u}, 31, v{vcS}, v{vQD+u}" for u in range(2)]
            s2[0] += [f"ds_read_b64_tr_b16 {rr(vS+2*u,2)}, v{vQD+u}" for u in range(2)]
        else:
            s1[0] = ["s_waitcnt lgkmcnt(0)"] + s1[0]
            if epi:
                a1, a2, a3 = epi
                r += [f"s_cmp_lg_u32 s{sMORE}, 0", f"s_cbranch_scc1 L_LB{par}"]
                n_ = len(s1) - 3
                for k in range(n_): s1[k] += a1[len(a1)*k//n_:len(a1)*(k+1)//n_]
                s1[-3] += a2[:len(a2)//2]; s1[-2] += a2[len(a2)//2:]
                s2 = [list(x) for x in a3]
        r += sec(s1, "v_exp_f32", G)
        r += [f"v_pk_add_f32 {rr(G+k,2)}, {rr(G+k,2)}, 1.0 op_sel_hi:[1,0]" for k in regs[::2]]
        r += sec(s2, "v_rcp_f32", G)
        r += [f"v_pk_mul_f32 {rr(vQ+k,2)}, {rr(G+k,2)}, {rr(vQ+k,2)}" for k in regs[::2]]
    return r + s_den(par, 1, vR) + s_num(par, 1)

def isize(x):
    op = x.split()[0]
    if x.endswith(":"): return 0
    if op in ("v_exp_f32", "v_rcp_f32", "v_max_u32", "v_readfirstlane_b32"): return 4
    if op.startswith("s_"):
        m = re.search(r", (0x[0-9a-f]+|\d+)$", x)
        return 8 if (m and op not in ("s_setprio", "s_nop", "s_waitcnt") and int(m.group(1), 0) > 64) else 4
    return 8
def align8(body, mode):
    body = list(body); run = []; r = []
    for x in body:
        z = isize(x)
        if z == 8:
            if sum(isize(r[i]) for i in run) % 8:
                c = [i for i in run if r[i].split()[0] in ("v_exp_f32", "v_rcp_f32", "v_max_u32")]
                if c: r[c[-1]] = r[c[-1]].replace(" ", "_e64 ", 1); run = []
                elif mode == 2: r.append("s_nop 0"); run = []
                else: run = [i for i in run if isize(r[i])][:1]
            else: run = []
            r.append(x)
        else:
            run.append(len(r)); r.append(x)
    return r

def listaddr(t0):
    I(f"v_lshrrev_b32 v{t0}, 3, v{lane}")
    I(f"v_lshl_add_u32 v{vARX}, v{t0}, 4, s{sL}")
    I(f"s_add_u32 s10, s{sL}, {R1-R0}")
    I(f"v_lshrrev_b32 v{t0}, 1, v{lane}")
    I(f"v_lshl_add_u32 v{vARE}, v{t0}, 2, s10")
    I(f"s_add_u32 s10, s10, 2")
    I(f"v_and_b32 v{t0}, 48, v{lane}")
    I(f"v_lshl_add_u32 v{vARS}, v{t0}, 1, s10")
    I(f"v_and_b32 v{t0}, 12, v{lane}")
    I(f"v_add_u32 v{vARS}, v{vARS}, v{t0}")
    I(f"v_lshrrev_b32 v{t0}, 5, v{lane}")
    I(f"v_mul_u32_u24 v{vARO}, {R1-R0}, v{t0}")
    I(f"v_and_b32 v{t0}, 15, v{lane}")
    I(f"v_lshl_add_u32 v{vARO}, v{t0}, 2, v{vARO}")
    I(f"s_add_u32 s10, s{sL}, 2")
    I(f"v_add_u32 v{vARO}, s10, v{vARO}")

def prefill(t):
    for d in range(2): I(f"v_mov_b64 {rr(t+2*d,2)}, 0")
    for d in range(4): I(f"v_mov_b32 v{t+4+d}, {(ZROW << 16) | 0xfffff:#x}")
    I(f"v_lshl_add_u32 v{t+8}, v{lane}, 4, s{sL}")
    for o in (0, 1024, 2*LWB - 1024):
        I(f"ds_write_b128 v{t+8}, {rr(t,4)} offset:{o}")
        I(f"ds_write_b128 v{t+8}, {rr(t+4,4)} offset:{o + R1 - R0}")

def kernel():
    emit(f"""
.globl {NAME}_kernel
.p2align 8
.type {NAME}_kernel,@function
{NAME}_kernel:""")
    FH = opt("fh", 1)
    vD, vSR, vT16 = vACC + 32, vACC, vR + 12
    if TS and opt("tz", 0): I("s_memrealtime s[96:97]")
    I("s_load_dwordx16 s[16:31], s[0:1], 0")
    I("s_load_dwordx8 s[32:39], s[0:1], 64")
    CPN = opt("cpn", 8)
    if opt("cpf", 1):
        I(f"s_getpc_b64 {sp(sM)}")
        L("L_PC")
        if CPN == 8: I("s_and_b32 s3, s2, -8")
        else:
            I("s_lshr_b32 s3, s2, 3")
            I(f"s_and_b32 s3, s3, {256//CPN - 1}")
            I(f"s_mul_i32 s3, s3, {CPN}")
        I("v_add_lshl_u32 v1, v0, s3, 7")
        I("v_min_u32 v1, L_LAST-L_PC, v1")
        I(f"v_cmpx_gt_u32 vcc, {CPN}, v0")
        I("s_cbranch_execz L_NOCPF")
        I(f"global_load_dword v{vEA}, v1, {sp(sM)}")
        L("L_NOCPF")
        I("s_mov_b64 exec, -1")
    I("s_cmp_ge_u32 s2, 256")
    I("s_cbranch_scc1 L_END")
    if FH:
        I(f"s_mul_i32 s{sA}, s2, {CH*4}")
        I(f"v_lshl_add_u32 v1, v0, 4, s{sA}")
        I(f"s_add_u32 s{sBt}, s{sA}, {CH*4}")
        I(f"s_min_u32 s{sBt}, s{sBt}, {E*4}")
        BAL = opt("bal", 0)
        if BAL:
            I(f"s_add_u32 s{sA}, s{sA}, 0x2000")
            I(f"v_lshl_add_u32 v2, v0, 3, s{sA}")
            I(f"s_add_u32 s{sA}, s{sA}, 0x1000")
            I(f"v_lshl_add_u32 v3, v0, 2, s{sA}")
            I(f"v_cmp_gt_u32 {sp(sM+6)}, s{sBt}, v2")
            I(f"v_min_u32 v2, {E*4 - 8}, v2")
        else: I("v_add_u32 v2, 0x2000, v1")
        I("s_waitcnt lgkmcnt(0)")
        if TS and opt("tz", 0): I("s_memrealtime s[98:99]")
        I(f"global_load_dwordx4 {rr(vD,4)}, v1, {sp(pDST)}{pol(LD_P)}")
        if BAL:
            I(f"global_load_dwordx2 {rr(vD+4,2)}, v2, {sp(pDST)}{pol(LD_P)}")
            I(f"global_load_dwordx4 {rr(vSR,4)}, v1, {sp(pSRC)}{pol(LD_P)}")
            I(f"global_load_dwordx2 {rr(vSR+4,2)}, v2, {sp(pSRC)}{pol(LD_P)}")
            I(f"v_cmpx_gt_u32 {sp(sM+28)}, s{sBt}, v3")
            I("s_cbranch_execz L_NO7")
            I(f"global_load_dword v{vD+6}, v3, {sp(pDST)}{pol(LD_P)}")
            I(f"global_load_dword v{vSR+6}, v3, {sp(pSRC)}{pol(LD_P)}")
        else:
            I(f"global_load_dwordx4 {rr(vSR,4)}, v1, {sp(pSRC)}{pol(LD_P)}")
            def group2():
                I(f"v_cmpx_gt_u32 {sp(sM+6)}, s{sBt}, v2")
                I("s_cbranch_execz L_NO8")
                I(f"global_load_dwordx4 {rr(vD+4,4)}, v2, {sp(pDST)}{pol(LD_P)}")
                I(f"global_load_dwordx4 {rr(vSR+4,4)}, v2, {sp(pSRC)}{pol(LD_P)}")
                L("L_NO8")
                I("s_mov_b64 exec, -1")
            G2 = opt("g2", 0)
            if G2 == 0: group2()
        L("L_NO7")
        I("s_mov_b64 exec, -1")
        KV = opt("kv", 0)
        if KV:
            I("v_mov_b32 v1, 0")
            I(f"global_load_dword v{vEA+1}, v1, {sp(pWS)}")
        else: I(f"s_load_dword s{sK}, {sp(pWS)}, 0")
        if opt("tlb", 0):
            I("v_lshlrev_b32 v1, 20, v0")
            I(f"v_add_u32 v1, {WS_CELL + XOFF - 448*(1 << 20) & 0xffffffff:#x}, v1")
            I("v_subrev_u32 v2, 448, v0")
            I("v_cmpx_gt_u32 vcc, 9, v2")
            I("s_cbranch_execz L_NOTLB")
            I(f"global_load_dword v{vEA+1}, v1, {sp(pWS)}")
            L("L_NOTLB")
            I("s_mov_b64 exec, -1")
    if TS: I(f"v_mov_b32 v{vTS}, 0")
    u = lambda i: vP + i
    if TS and opt("tz", 0):
        I("s_waitcnt lgkmcnt(0)")
        I(f"v_writelane_b32 v{vTS}, s96, 0")
        I(f"v_writelane_b32 v{vTS}, s98, 1")
        STN.extend(["z", "k"])
    stamp(0)
    vBK, vRK1, vID, vHA, vIC = vACC + 8, vACC + 16, vACC + 24, vACC + 40, vACC + 48
    vRW = vX
    one, l16 = vS, vS + 1
    vOA, vT16, sOW = vR + 14, vR + 12, 101
    I(f"v_mov_b32 v{tid}, v0")
    I(f"v_lshrrev_b32 v{u(0)}, 6, v0")
    I(f"v_and_b32 v{lane}, 63, v0")
    I(f"v_readfirstlane_b32 s{sWP}, v{u(0)}")
    I(f"v_lshlrev_b32 v{vT16}, 4, v0")
    I(f"v_lshlrev_b32 v{u(2)}, 3, v0")
    I(f"v_lshlrev_b32 v{u(3)}, 2, v0")
    I(f"v_and_b32 v{u(4)}, 0x3fc, v{u(3)}")
    if not FH:
        I(f"s_mul_i32 s{sA}, s2, {CH*4}")
        I(f"s_sub_u32 s{sBt}, {E*4}, s{sA}")
        I(f"s_min_u32 s{sBt}, s{sBt}, {CH*4}")
    I(f"s_and_b32 s{sB}, s2, 7")
    I(f"s_lshr_b32 s{sW}, s2, 3")
    I(f"s_lshl_b32 s{sB}, s{sB}, 5")
    I(f"s_add_u32 s{sB}, s{sB}, s{sW}")
    I(f"s_mul_i32 s{sF1}, s{sB}, {BN}")
    I(f"s_cmp_eq_u32 s{sWP}, 7")
    I(f"s_cselect_b32 s{sOW}, 0, s{sWP}")
    I(f"s_lshl_b32 s{sL}, s{sOW}, 5")
    I(f"s_add_u32 s{sF1}, s{sF1}, s{sL}")
    I(f"v_lshrrev_b32 v{u(5)}, 3, v{lane}")
    I(f"v_lshl_add_u32 v{u(5)}, v{u(5)}, 2, s{sF1}")
    I(f"v_and_b32 v{vCP}, 7, v{lane}")
    I(f"v_lshlrev_b32 v{vCP}, 4, v{vCP}")
    I(f"v_lshl_add_u32 v{vOA}, v{u(5)}, 7, v{vCP}")
    I(f"s_lshl_b32 s{sOW}, s{sOW}, 10")
    I(f"s_add_u32 s{sOW}, s{sOW}, {OWN}")
    if not FH:
        I(f"s_movk_i32 s{sF0}, 0x2000")
        I("s_waitcnt lgkmcnt(0)")
        I(f"s_load_dword s{sK}, {sp(pWS)}, 0")
        srd(sCEL, pDST, f"s{sBt}", f"s{sA}")
        srd(sD2, pSRC, f"s{sBt}", f"s{sA}")
        I(f"buffer_load_dwordx4 {rr(vD,4)}, v{vT16}, {sq(sCEL)}, 0 offen{pol(LD_P)}")
        I(f"buffer_load_dwordx4 {rr(vSR,4)}, v{vT16}, {sq(sD2)}, 0 offen{pol(LD_P)}")
        I(f"s_cmp_ge_u32 s{sWP}, 5")
        I("s_cbranch_scc1 L_NO7")
        I(f"buffer_load_dwordx4 {rr(vD+4,4)}, v{vT16}, {sq(sCEL)}, s{sF0} offen{pol(LD_P)}")
        I(f"buffer_load_dwordx4 {rr(vSR+4,4)}, v{vT16}, {sq(sD2)}, s{sF0} offen{pol(LD_P)}")
        L("L_NO7")
    for d in range(2): I(f"v_mov_b64 {rr(u(8)+2*d,2)}, 0")
    I(f"v_mov_b32 v{u(6)}, {33*JE if MG else 0}")
    I(f"ds_write2st64_b32 v{u(4)}, v{u(6)}, v{u(8)} offset0:{HIST1//256} offset1:{HIST1//256+4}")
    I(f"v_add_u32 v{u(5)}, {CIMG}, v{vT16}")
    if G2 == 1: group2()
    for k in range(5): I(f"ds_write_b128 v{u(5)}, {rr(u(8),4)} offset:{8192*k}")
    if G2 == 2: group2()
    PF = opt("pf", 0)
    def w_loads():
        I(f"s_cmp_ge_u32 s{sWP}, 2")
        I("s_cbranch_scc1 L_NOC")
        I(f"global_load_dwordx4 {rr(vEO,4)}, v{vT16}, {sp(pWC)}")
        L("L_NOC")
        for k, p in enumerate((pWB, pWV, pWA, pWU)):
            I(f"global_load_dwordx4 {rr(vRW+4*k,4)}, v{vT16}, {sp(p)}")
    def own_loads():
        I(f"s_cmp_eq_u32 s{sWP}, 6")
        I("s_cselect_b32 exec_hi, 0, -1")
        I(f"s_cmp_eq_u32 s{sWP}, 7")
        I("s_cselect_b64 exec, 1, exec")
        for k in range(4):
            I(f"s_add_u32 m0, s{sOW}, {(PL-128)*k}")
            I("s_nop 0")
            I(f"buffer_load_dwordx4 v{vOA}, {sq(sX)}, 0 offen offset:{128*k}{pol(opt('owp', ''))} lds")
        I("s_mov_b64 exec, -1")
        if PF:
            assert PF <= 512
            I(f"s_lshr_b32 s{sTM+1}, s2, 3")
            I(f"s_mul_i32 s{sTM}, s{sTM+1}, {PF*128}")
            I(f"v_min_u32 v{vEA+1}, {PF-1}, v{tid}")
            I(f"v_lshlrev_b32 v{vEA+1}, 7, v{vEA+1}")
            I(f"buffer_load_dword v{vEA+1}, v{vEA+1}, {sq(sX)}, s{sTM} offen")
    LLP = 2
    OLP = opt("olp", 2)
    NY = 0
    srd(sEP, pE, E, stride=32)
    srd(sOUT, pOUT, N*128)
    srd(sX, pX, N*128)
    OY = 0
    if OLP == 3:
        OW0 = opt("ow0", 5); nw = 8 - OW0; per = -(-28 // nw); OY = per
        I(f"s_cmp_lt_u32 s{sWP}, {OW0}")
        I("s_cbranch_scc1 L_NOOWN")
        I(f"s_mul_i32 s{sF1}, s{sB}, {BN}")
        I(f"v_lshrrev_b32 v{vOA}, 3, v{lane}")
        I(f"v_lshl_add_u32 v{vOA}, v{vOA}, 2, s{sF1}")
        I(f"v_lshl_add_u32 v{vOA}, v{vOA}, 7, v{vCP}")
        I(f"s_sub_u32 s{sF0}, s{sWP}, {OW0}")
        for k in range(per):
            I(f"s_add_u32 s{sF1}, s{sF0}, {nw*k}")
            I(f"s_min_u32 s{sF1}, s{sF1}, 27")
            I(f"s_and_b32 s{sL}, s{sF1}, 3")
            I(f"s_lshr_b32 s{sF1}, s{sF1}, 2")
            I(f"s_mul_i32 s{sOW}, s{sL}, {PL}")
            I(f"s_lshl_b32 s{sL}, s{sL}, 7")
            I(f"s_cmp_eq_u32 s{sF1}, 6")
            I("s_cselect_b32 exec_hi, 0, -1")
            I(f"s_lshl_b32 s{sF1}, s{sF1}, 10")
            I(f"s_add_u32 s{sOW}, s{sOW}, s{sF1}")
            I(f"s_add_u32 m0, s{sOW}, {OWN}")
            I(f"s_lshl2_add_u32 s{sL}, s{sF1}, s{sL}")
            I(f"buffer_load_dwordx4 v{vOA}, {sq(sX)}, s{sL} offen lds")
        I("s_mov_b32 exec_hi, -1")
        L("L_NOOWN")
    srd(sWS, pWS, WS_USED)
    I(f"s_lshl_b32 s{sL}, s2, 7")
    I(f"s_add_u32 s{sL}, s{sL}, {WS_CELL}")
    srd(sCEL, pWS, 255*RS + XOFF + 128, f"s{sL}")
    cM, cN, cP, cPM, cR = sM, sM + 1, sM + 2, sM + 3, sM + 4
    m2 = sM + 6
    I(f"s_mov_b32 s{cM}, 85599")
    I(f"s_mov_b32 s{cN}, {-BN & 0xffffffff}")
    I(f"s_movk_i32 s{cP}, 5368")
    I(f"s_mov_b32 s{cPM}, {opt('phm', 3) << 26:#x}")
    I(f"s_mov_b32 s{cR}, {RS}")
    for i in range(4): I(f"v_add_u32 v{vID+i}, {i}, v{u(3)}")
    I(f"s_lshl_b32 s{sA}, s{sWP}, 28")
    I(f"s_or_b32 s{sA}, s{sA}, 0x20000")
    I(f"v_mov_b32 v{vIC}, s{sA}")
    if BAL:
        assert MG <= 1 and OLP != 3
        I(f"s_lshr_b32 s{sA}, s{sWP}, 1")
        I(f"s_lshl_b32 s{sA}, s{sA}, 28")
        I(f"s_or_b32 s{sA}, s{sA}, 0x80020000")
        I(f"v_mov_b32 v{vIC+1}, s{sA}")
        I(f"v_mov_b32 v{vIC+3}, 0xc0020000")
        I(f"v_lshlrev_b32 v{vID+4}, 1, v{tid}")
        I(f"v_add_u32 v{vID+5}, 1, v{vID+4}")
        I(f"v_mov_b32 v{vID+6}, v{tid}")
    else: I(f"v_or_b32 v{vIC+1}, 0x80000000, v{vIC}")
    idr = (lambda i: vID + i) if BAL else (lambda i: vID + (i & 3))
    icr = (lambda i: vIC + (3 if i == 6 else i >> 2)) if BAL else (lambda i: vIC + (i >> 2))
    NR = 7 if BAL else 8
    I(f"v_mov_b32 v{one}, 33")
    vK1 = vIC + 2
    I(f"v_mov_b32 v{vK1}, 0x400")
    if not FH:
        I(f"s_sub_u32 s{sBt}, s{sBt}, 0x2000")
        I(f"v_cmp_gt_u32 {sp(m2)}, s{sBt}, v{vT16}")
    I(f"s_and_b32 s{sA}, s{sWP}, 3")
    I(f"s_lshr_b32 s{sW}, s{sWP}, 2")
    I(f"s_lshl1_add_u32 s{sW}, s{sA}, s{sW}")
    if opt("swp", 1): I(f"s_xor_b32 s{sW}, s{sW}, 1")
    I(f"s_mul_i32 s{sA}, s{sW}, 49")
    I(f"s_sub_i32 s{sA}, s{sA}, 6")
    I(f"s_ashr_i32 s{sA}, s{sA}, 1")
    I(f"s_max_i32 s{sWIN}, s{sA}, 0")
    I(f"s_mul_i32 s{sSTG}, s{sW}, {SLOT}")
    I(f"s_add_u32 s{sSTG}, s{sSTG}, {XSTG}")
    I(f"s_lshl_b32 s{sES}, s{sW}, 10")
    I(f"s_add_u32 s{sES}, s{sES}, {ESTG}")
    I(f"s_mul_i32 s{sL}, s{sW}, {2*LWB}")
    I(f"s_add_u32 s{sL}, s{sL}, {R0}")
    I(f"s_movk_i32 s{s128}, 128")
    if G2 == 3: group2()
    I(f"v_bfe_u32 v{u(6)}, v{tid}, 4, 4")
    I(f"v_and_b32 v{u(7)}, 7, v{tid}")
    I(f"v_cmp_eq_u32 vcc, v{u(6)}, v{u(7)}")
    I(f"v_and_b32 v{u(6)}, 8, v{tid}")
    I(f"v_lshlrev_b32 v{u(6)}, 1, v{u(6)}")
    I(f"v_mov_b32 v{u(8)}, 0x3f80")
    I(f"v_lshlrev_b32 v{u(8)}, v{u(6)}, v{u(8)}")
    I(f"v_cndmask_b32 v{u(8)}, 0, v{u(8)}, vcc")
    I(f"ds_write_b32 v{u(4)}, v{u(8)} offset:{TAB}")
    I(f"v_mov_b64 {rr(u(8),2)}, 0")
    I(f"ds_write_b64 v{u(2)}, {rr(u(8),2)} offset:{HIST}")
    I(f"v_add_u32 v{u(6)}, {PRG}, v{u(3)}")
    I(f"ds_write_b32 v{u(6)}, v{u(8)}")
    go, lo, lo2, ha = vR, vR + 1, vR + 2, vR + 3
    wl, wal = vR + 4, vR + 5
    I(f"v_lshrrev_b32 v{ha}, 3, v{tid}")
    I(f"v_mad_u32_u24 v{go}, v{ha}, s{cR}, v{vCP}")
    I(f"v_mul_u32_u24 v{wl}, {LROW}, v{ha}")
    I(f"v_add_u32 v{lo}, v{wl}, v{vCP}")
    I(f"v_add_u32 v{lo}, {CIMG}, v{lo}")
    assert LROW == WR
    I(f"v_bfe_u32 v{u(6)}, v{tid}, 5, 1")
    I(f"v_bfe_u32 v{u(8)}, v{tid}, 6, 1")
    I(f"v_sub_u32 v{u(6)}, v{u(6)}, v{u(8)}")
    I(f"v_mul_i32_i24 v{u(6)}, {4*WR}, v{u(6)}")
    I(f"v_add_u32 v{wl}, v{wl}, v{u(6)}")
    I(f"v_lshl_add_u32 v{wl}, v{u(7)}, 2, v{wl}")
    I(f"v_add_u32 v{wl}, {WBI}, v{wl}")
    I(f"v_lshlrev_b32 v{l16}, 4, v{lane}")
    I(f"v_and_b32 v{u(6)}, 3, v{lane}")
    I(f"v_lshlrev_b32 v{vcS}, 3, v{u(6)}")
    I(f"v_bfe_u32 v{u(9)}, v{lane}, 2, 3")
    I(f"v_lshrrev_b32 v{u(8)}, 5, v{lane}")
    I(f"v_lshl_add_u32 v{u(9)}, v{u(8)}, 4, v{u(9)}")
    I(f"v_mul_u32_u24 v{wal}, {WR}, v{u(9)}")
    I(f"v_add_u32 v{wal}, v{wal}, v{vcS}")
    mm = lambda i: sM + 8 + 2*i
    def rank_a(rs, wsrc=0, plain=False):
        for i in rs: I(f"v_mul_u32_u24 v{vBK+i}, s{cM}, v{vD+i}")
        if rs[0] // 4 < MG and not plain:
            b = rs[0]
            for i in rs: I(f"v_lshrrev_b32 v{vHA+i}, 29, v{vBK+i}")
            if opt("px", 0):
                I(f"s_waitcnt vmcnt({wsrc})")
                for i in rs:
                    I(f"v_cmp_gt_u32 vcc, {opt('px', 0)}, v{vSR+i}")
                    I("s_nop 1")
                    I(f"v_cndmask_b32 v{vHA+i}, v{vHA+i}, v{vID+(i&3)}, vcc") if False else I(f"v_cndmask_b32_e64 v{vHA+i}, v{vHA+i}, {8+(i&3)}, vcc")
            t0, t1 = sM + 24, sM + 26
            I(f"v_cmp_eq_u32 {sp(mm(b))}, v{vHA+b}, v{vHA+b+1}")
            I(f"v_cmp_eq_u32 {sp(mm(b+2))}, v{vHA+b+2}, v{vHA+b+3}")
            I(f"v_cmp_eq_u32 vcc, v{vHA+b}, v{vHA+b+2}")
            I(f"v_cmp_eq_u32 {sp(t0)}, v{vHA+b+1}, v{vHA+b+3}")
            I(f"v_cmp_eq_u32 {sp(t1)}, v{vHA+b}, v{vHA+b+3}")
            I(f"v_cmp_eq_u32 {sp(sA)}, v{vHA+b+1}, v{vHA+b+2}")
            for i in rs: I(f"v_lshrrev_b32 v{vBK+i}, 24, v{vBK+i}")
            I(f"s_or_b64 {sp(mm(b+1))}, {sp(mm(b))}, {sp(t0)}")
            I(f"s_or_b64 {sp(mm(b+3))}, {sp(mm(b+2))}, {sp(t0)}")
            I(f"s_or_b64 {sp(mm(b))}, {sp(mm(b))}, vcc")
            I(f"s_or_b64 {sp(mm(b+2))}, {sp(mm(b+2))}, vcc")
            I(f"s_or_b64 {sp(mm(b))}, {sp(mm(b))}, {sp(t1)}")
            I(f"s_or_b64 {sp(mm(b+1))}, {sp(mm(b+1))}, {sp(sA)}")
            I(f"s_or_b64 {sp(mm(b+2))}, {sp(mm(b+2))}, {sp(sA)}")
            I(f"s_or_b64 {sp(mm(b+3))}, {sp(mm(b+3))}, {sp(t1)}")
            for i in rs:
                I(f"v_cndmask_b32 v{vHA+i}, 0, v{vK1}, {sp(mm(i))}")
                I(f"v_lshl_add_u32 v{vHA+i}, v{vBK+i}, 2, v{vHA+i}")
                I(f"ds_add_rtn_u32 v{vRK1+i}, v{vHA+i}, v{one} offset:{HIST1}")
            return
        for i in rs: I(f"v_lshrrev_b32 v{vBK+i}, 24, v{vBK+i}")
        for i in rs:
            I(f"v_lshlrev_b32 v{vHA+i}, 2, v{vBK+i}")
            I(f"ds_add_rtn_u32 v{vRK1+i}, v{vHA+i}, v{one} offset:{HIST1}")
    def again(rs, wait, em):
        for i in rs:
            I(f"s_waitcnt lgkmcnt({wait})")
            I(f"s_mov_b64 exec, {sp(mm(i))}")
            I(f"v_cmpx_le_u32 vcc, {33*JE}, v{vRK1+i}")
            I(f"ds_add_rtn_u32 v{vRK1+i}, v{vHA+i}, v{one} offset:{HIST1 - 1024}")
        I(f"s_mov_b64 exec, {em}")
    def rank_b(rs):
        for i in rs:
            I(f"v_mad_i32_i24 v{vD+i}, v{vBK+i}, s{cN}, v{vD+i}")
            I(f"v_mul_u32_u24 v{u(6)}, s{cP}, v{vSR+i}")
            I(f"v_lshl_or_b32 v{vSR+i}, v{vD+i}, 18, v{vSR+i}")
            I(f"v_and_or_b32 v{u(6)}, v{u(6)}, s{cPM}, v{icr(i)}")
            I(f"v_mad_u32_u24 v{vD+i}, v{vBK+i}, {LROW//4}, s{cN+4}")
            I(f"v_or_b32 v{vSR+i}, v{vSR+i}, v{u(6)}")
    def place(i, wait, em):
        I(f"s_waitcnt lgkmcnt({wait})")
        I(f"v_bfe_u32 v{u(6)}, v{vRK1+i}, 3, 5")
        I(f"v_add_lshl_u32 v{vD+i}, v{u(6)}, v{vD+i}, 2")
        I(f"v_and_b32 v{u(6)}, 3, v{u(6)}")
        I(f"v_mad_i32_i24 v{u(6)}, v{u(6)}, -3, v{vD+i}")
        I(f"v_cmpx_gt_u32 vcc, {33*CAP}, v{vRK1+i}")
        I(f"ds_write_b32 v{vD+i}, v{vSR+i}")
        I(f"ds_write_b8 v{u(6)}, v{idr(i)} offset:12")
        I(f"s_mov_b64 exec, {em}")
    I(f"s_movk_i32 s{cN+4}, {CIMG//4}")
    for d in range(2): I(f"v_mov_b64 {rr(vRK1+4+2*d,2)}, 0")
    I("s_waitcnt lgkmcnt(0)")
    I("s_barrier")
    if BAL:
        m3 = sM + 28
        I("s_waitcnt vmcnt(3)")
        stamp(1)
        if TS: STN.pop()
        rank_a(range(4))
        I("s_waitcnt vmcnt(2)")
        I(f"s_mov_b64 exec, {sp(m2)}")
        rank_a(range(4, 6))
        if MG: again(range(4), 5, "-1")
        else: I("s_mov_b64 exec, -1")
        I("s_waitcnt vmcnt(0)")
        rank_b(range(6))
        I(f"s_mov_b64 exec, {sp(m2)}")
        for i in range(4, 6): place(i, (1 if MG else -3) + i, sp(m2) if i < 5 else "-1")
        for i in range(4): place(i, 7 + i, "-1")
        I(f"s_mov_b64 exec, {sp(m3)}")
        I("s_cbranch_execz L_B1")
        rank_a([6]); rank_b([6]); place(6, 0, "-1")
        I("s_branch L_B1")
    I(f"s_cmp_eq_u64 {sp(m2)}, 0" if FH else f"s_cmp_ge_u32 s{sWP}, 5")
    I("s_cbranch_scc1 L_R4")
    I(f"s_waitcnt vmcnt({3+KV})")
    stamp(1)
    rank_a(range(4), 2)
    I(f"s_waitcnt vmcnt({1+KV})")
    I(f"s_mov_b64 exec, {sp(m2)}")
    rank_a(range(4, 8))
    if MG == 0:
        I("s_mov_b64 exec, -1")
        rank_b(range(4))
        for i in range(4): place(i, 7 + i, "-1" if i < 3 else sp(m2))
        I(f"s_waitcnt vmcnt({KV})")
        rank_b(range(4, 8))
        for i in range(4, 8): place(i, 7 + i, sp(m2) if i < 7 else "-1")
    elif MG == 1:
        again(range(4), 7, sp(m2))
        I(f"s_waitcnt vmcnt({KV})")
        rank_b(range(4, 8))
        for i in range(4, 8): place(i, 3 + i, sp(m2) if i < 7 else "-1")
        rank_b(range(4))
        for i in range(4): place(i, 11 + i, "-1")
    else:
        again(range(8), 7, "-1")
        rank_b(range(4))
        for i in range(4): place(i, 7 + i, "-1" if i < 3 else sp(m2))
        I(f"s_waitcnt vmcnt({KV})")
        rank_b(range(4, 8))
        for i in range(4, 8): place(i, 7 + i, sp(m2) if i < 7 else "-1")
    I("s_branch L_B1")
    L("L_R4")
    if OY:
        I(f"s_cmp_ge_u32 s{sWP}, {OW0}")
        I("s_cbranch_scc1 L_R4A")
        I(f"s_waitcnt vmcnt({KV})")
        L("L_R4A")
    I(f"s_waitcnt vmcnt({1 + OY + KV})")
    if TS: STN.pop()
    stamp(1)
    YM = opt("ym", 1)
    rank_a(range(4), plain=not YM)
    I(f"s_waitcnt vmcnt({OY + KV})")
    if MG and YM:
        rank_b(range(2))
        again(range(4), 3, "-1")
        rank_b(range(2, 4))
    else: rank_b(range(4))
    for i in range(4): place(i, 3 + i, "-1")
    L("L_B1")
    if BAL:
        k_ = max(i for i, l in enumerate(out) if l.strip() == "s_cbranch_execz L_B1")
        e_ = next(i for i in range(k_, len(out)) if out[i].strip() == "s_branch L_B1")
        del out[e_:len(out)-1]
        I("s_mov_b64 exec, -1")
    w_loads()
    vTG = vS + 2
    def tagcalc():
        I(f"s_add_u32 s{sK}, s{sK}, {KINC:#x}")
        I(f"v_lshlrev_b32 v{vTG}, v{vcS}, s{sK}")
        I(f"v_and_b32 v{u(1)}, 4, v{lane}")
        I(f"v_mul_u32_u24 v{u(1)}, {37 << 15}, v{u(1)}")
        I(f"v_lshl_add_u32 v{vTG}, v{u(1)}, 8, v{vTG}")
        I(f"v_and_b32 v{vTG}, 0xfe000000, v{vTG}")
    if not KV: tagcalc()
    vTH = vS + 3
    I(f"v_and_b32 v{vTH}, 7, v{lane}")
    I(f"v_mul_u32_u24 v{vTH}, 33, v{vTH}")
    I(f"v_add_u32 v{vTH}, {33*CAP}, v{vTH}")
    I(f"v_lshlrev_b32 v{lo2}, 2, v{ha}")
    I(f"s_mov_b32 s{cM}, 0x1000000")
    I("s_waitcnt lgkmcnt(0)")
    I("s_barrier")
    stamp(2)
    vO, vHS = vQ, u(4)
    I(f"ds_read_b128 {rr(vHS,4)}, v{l16} offset:{HIST1}")
    vHD = vR + 8
    for i in range(4):
        I(f"ds_read_b32 v{vHD+i}, v{lo2} offset:{HIST1 + 256*i}")
        I(f"ds_read_b128 {rr(vO+4*i,4)}, v{lo} offset:{64*LROW*i}")
    if KV:
        I("s_waitcnt vmcnt(4)")
        I(f"v_readfirstlane_b32 s{sK}, v{vEA+1}")
    for i in range(1, 4): I(f"s_mov_b32 s{sM+15+i}, {64*RS*i}")
    if KV: tagcalc()
    I("s_waitcnt lgkmcnt(8)")
    I(f"v_max3_u32 v{u(0)}, v{vHS}, v{vHS+1}, v{vHS+2}")
    I(f"v_max_u32 v{u(0)}, v{u(0)}, v{vHS+3}")
    I(f"v_cmp_lt_u32 vcc, {33*(CAP+8)}, v{u(0)}")
    I("s_cbranch_vccnz L_POVF")
    L("L_POUT")
    for i in range(4):
        I(f"s_waitcnt lgkmcnt({7 - 2*i})")
        I(f"v_sub_u32 v{vHD+i}, v{vTH}, v{vHD+i}")
        I(f"v_and_or_b32 v{vHD+i}, v{vHD+i}, s{cM}, v{vTG}")
        I(f"s_waitcnt lgkmcnt({6 - 2*i})")
        I(f"v_or_b32 v{vO+4*i+3}, v{vO+4*i+3}, v{vHD+i}")
        I(f"buffer_store_dwordx4 {rr(vO+4*i,4)}, v{go}, {sq(sCEL)}, {f's{sM+15+i}' if i else '0'} offen{pol(STP)}")
    stamp(3)
    if "c" in opt("tsx", ""): I("s_waitcnt vmcnt(0)")
    stamp("c0")
    t = vACC + 32
    I(f"s_mov_b32 s{sA}, {f2u(-LOG2E):#x}")
    I(f"s_mov_b32 s{sBt}, s{sA}")
    I(f"s_mov_b32 s{cM}, 0x05040100")
    I(f"s_mov_b32 s{cP}, 0x07060302")
    def wscaled(src, off):
        for d in range(4):
            I(f"v_lshlrev_b32 v{t+2*d}, 16, v{src+d}")
            I(f"v_and_b32 v{t+2*d+1}, 0xffff0000, v{src+d}")
        for d in range(4): I(f"v_pk_mul_f32 {rr(t+2*d,2)}, {rr(t+2*d,2)}, {sp(sA)}")
        for n in range(4): I(f"v_cvt_pk_bf16_f32 v{t+8+n}, v{t+n}, v{t+4+n}")
        wput(t + 8, off)
    def wplain(src, off, tt):
        for n in range(4): I(f"v_perm_b32 v{tt+n}, v{src+2+(n>>1)}, v{src+(n>>1)}, s{cP if n & 1 else cM}")
        wput(tt, off)
    def wput(r, off):
        a = wl
        if off:
            a = r + 4
            I(f"v_add_u32 v{a}, {off}, v{wl}")
        I(f"ds_write2_b32 v{a}, v{r}, v{r+1} offset0:0 offset1:8")
        I(f"ds_write2_b32 v{a}, v{r+2}, v{r+3} offset0:16 offset1:24")
    I("s_waitcnt vmcnt(4)")
    stamp("b4")
    wplain(vRW + 8, WAI - WBI, t + 16)
    wscaled(vRW, 0)
    wplain(vRW + 4, WVI - WBI, t + 24)
    wplain(vRW + 12, WUI - WBI, t + 16)
    I(f"s_cmp_ge_u32 s{sWP}, 2")
    I("s_cbranch_scc1 L_NOWC")
    wscaled(vEO, WCI - WBI)
    L("L_NOWC")
    I(f"s_mul_i32 s{sTM}, s{sB}, {RS}")
    I(f"s_add_u32 s{sTM}, s{sTM}, {WS_CELL}")
    srd(sCEL, pWS, 256*128, f"s{sTM}")
    I(f"s_add_u32 s{sTM}, s{sTM}, {XOFF}")
    srd(sD2, pWS, 256*128, f"s{sTM}")
    vC, vEB = vACC + 32, vACC + 60
    pa = vT16
    for k in (1, 2, 3): I(f"s_movk_i32 s{sCI+k-1}, {8192*k}")
    def poll_load(i):
        so = "0" if i == 0 else f"s{sCI+i-1}"
        I(f"buffer_load_dwordx4 {rr(vC+4*i,4)}, v{pa}, {sq(sCEL)}, {so} offen sc1")
    I("s_waitcnt lgkmcnt(0)")
    I("s_barrier")
    stamp(4)
    if OLP == 0: own_loads()
    vWA = vACC
    I(f"v_add_u32 v{wal}, {WBI}, v{wal}")
    def trw(reg, img):
        return [f"ds_read_b64_tr_b16 {rr(reg+8*n+4*s+2*uu,2)}, v{wal} offset:{img + (32*s + 8*uu)*WR + 32*n}"
                for n in range(4) for s in range(2) for uu in range(2)]
    tw = trw(vWB, 0) + trw(vWV, WVI - WBI)
    for x_ in tw[:14]: I(x_)
    prefill(vCA)
    for x_ in tw[14:24]: I(x_)
    nxt = 24
    I(f"v_mov_b32 v{u(4)}, v{wal}")
    I("s_mov_b32 exec_lo, 0")
    I(f"v_subrev_u32 v{u(4)}, {16*WR}, v{wal}")
    I("s_mov_b32 exec_lo, -1")
    tw += [f"ds_read_b64_tr_b16 {rr(vCA+16+4*n+2*uu,2)}, v{u(4)} offset:{WCI - WBI + 8*uu*WR + 32*n}" for n in range(4) for uu in range(2)]
    vEM, vET = vEO, vACC + 56
    ownn, owna, mapa = vEO + 1, vEO + 2, vEO + 3
    I("s_waitcnt lgkmcnt(4)")
    for x_ in tw[nxt:]: I(x_)
    I(f"v_add_u32 v{wal}, {WAI - WBI}, v{wal}")
    vFF = vEO + 4
    vMU = vR + 8
    lo0, hi0, lo1, hi1 = sWS0, sWS1, sB0E, sSH
    def late_setup():
        I(f"v_and_b32 v{vCH}, 1, v{lane}")
        I(f"v_lshlrev_b32 v{vCH}, 4, v{vCH}")
        I(f"v_mov_b32 v{vONE}, 0x3f80")
        I(f"v_and_b32 v{vcEO}, 16, v{lane}")
        I(f"v_and_b32 v{u(6)}, 15, v{lane}")
        I(f"v_lshl_add_u32 v{u(6)}, v{u(6)}, 5, s{sES}")
        I("s_mov_b32 exec_hi, 0")
        I(f"v_add_u32 v{vcEO}, v{vcEO}, v{u(6)}")
        I("s_mov_b32 exec_hi, -1")
        I(f"v_and_b32 v{u(6)}, 3, v{lane}")
        I(f"v_bfe_u32 v{u(8)}, v{lane}, 2, 2")
        I(f"v_and_b32 v{u(9)}, 48, v{lane}")
        I(f"v_lshl_add_u32 v{u(10)}, v{u(8)}, 7, v{u(9)}")
        I(f"v_mul_u32_u24 v{vAX}, {XI}, v{u(6)}")
        I(f"v_add3_u32 v{vAX}, v{vAX}, v{u(10)}, s{sSTG}")
        listaddr(u(6))
        I(f"v_mul_u32_u24 v{vEB}, {CH}, v{ha}")
        for i in range(1, 4): I(f"v_add_u32 v{vEB+i}, {64*i*CH}, v{vEB}")
        I(f"s_mov_b32 s{sEM}, {EMASK:#x}")
        I(f"s_mov_b32 s{sEM+1}, {EMASK:#x}")
        vFF = vEO + 4
        I(f"v_mov_b32 v{vFF}, 0xfffff")
        I(f"v_cndmask_b32 v{vEM}, 0, v{vFF}, {sp(sEM)}")
        I(f"v_add_lshl_u32 v{u(3)}, v{pa}, v{vCP}, 16")
        for i in range(4):
            I(f"v_add_u32 v{vET+i}, {(EARLY + 8192*i) << 16:#x}, v{u(3)}")
            I(f"v_cndmask_b32 v{vET+i}, 0, v{vET+i}, {sp(sEM)}")
        I(f"v_mov_b32 v{one}, 4")
        I(f"v_and_b32 v{ownn}, 31, v{lane}")
        I(f"v_add_lshl_u32 v{mapa}, v{ownn}, s{sWIN}, 2")
        I(f"v_lshrrev_b32 v{u(3)}, 5, v{lane}")
        I(f"v_lshl_add_u32 v{owna}, v{u(3)}, 11, v{mapa}")
        I(f"v_add_u32 v{mapa}, {MAP}, v{mapa}")
        I(f"v_lshlrev_b32 v{u(3)}, 2, v{lane}")
        I(f"v_subrev_u32 v{u(3)}, s{sWIN}, v{u(3)}")
        I("s_mov_b32 s10, 0x10000")
        for i in range(4):
            I(f"v_add_u32 v{vMU+i}, {i}, v{u(3)}")
            I(f"v_and_or_b32 v{vMU+i}, v{vMU+i}, s10, 1")
        I(f"s_movk_i32 s{sFM}, 0xffc")
        I(f"s_movk_i32 s{sSKIP}, {CAP+8}")
        I(f"s_mov_b32 s{sXT}, 0")
        I(f"s_mov_b32 s{sSP}, 0")
        I(f"s_mov_b32 s{sT}, 0x1ffffff")
        I(f"s_mov_b32 s{sN}, 0xffff")
        lo0, hi0, lo1, hi1 = sWS0, sWS1, sB0E, sSH
        I(f"s_mul_i32 s10, s{sW}, 49")
        I(f"s_sub_i32 s{lo0}, s10, 6")
        I(f"s_ashr_i32 s{lo0}, s{lo0}, 1")
        I(f"s_add_i32 s{hi0}, s10, 7")
        I(f"s_ashr_i32 s{hi0}, s{hi0}, 1")
        I(f"s_add_i32 s{lo1}, s10, 43")
        I(f"s_ashr_i32 s{lo1}, s{lo1}, 1")
        I(f"s_add_i32 s{hi1}, s{lo0}, 31")
        I(f"s_cmp_eq_u32 s{sW}, 7")
        I(f"s_cselect_b32 s{lo1}, {BN}, s{lo1}")
        I(f"s_cselect_b32 s{hi1}, {BN}, s{hi1}")
        for r_ in (hi0, lo1, hi1): I(f"s_sub_i32 s{r_}, s{r_}, s{sWIN}")
    LS = opt("ls", 0)
    if LS == 0: late_setup()
    stamp("b0")
    if opt("pw", 1): I(f"s_waitcnt vmcnt({4 if OLP == 0 else 0})")
    stamp("b1")
    if opt("pbar", 0): I("s_barrier")
    for i in range(4): poll_load(i)
    if OLP == 1: own_loads()
    if LS == 1: late_setup()
    PY = 4 if OLP == 1 else 0
    I(f"v_max3_u32 v{u(0)}, v{vRK1}, v{vRK1+1}, v{vRK1+2}")
    I(f"v_max3_u32 v{u(1)}, v{vRK1+3}, v{vRK1+4}, v{vRK1+5}")
    I(f"v_max3_u32 v{u(0)}, v{u(0)}, v{vRK1+6}, v{vRK1+7}")
    I(f"v_max_u32 v{u(0)}, v{u(0)}, v{u(1)}")
    I(f"v_cmp_le_u32 vcc, {33*CAP}, v{u(0)}")
    I("s_cbranch_vccz L_PEXTR")
    q = vCA
    if TS: I(f"v_writelane_b32 v{vTS}, 1, 61")
    I(f"v_mov_b32 v{q+1}, s{sK}")
    I(f"s_lshl_b32 s{sTM}, s2, 7")
    I(f"s_add_u32 s{sTM}, s{sTM}, {WS_CELL + XOFF}")
    for i in range(NR):
        I(f"v_subrev_u32 v{q+4}, {33*CAP}, v{vRK1+i}")
        I(f"v_cmpx_gt_u32 vcc, {33*8}, v{q+4}")
        I(f"s_cbranch_execz L_PE{i}")
        I(f"v_mov_b32 v{q}, v{vSR+i}")
        I(f"v_mov_b32 v{q+2}, v{idr(i)}")
        I(f"v_bfe_u32 v{q+4}, v{vRK1+i}, 5, 3")
        I(f"v_lshlrev_b32 v{q+4}, 4, v{q+4}")
        I(f"v_mad_u32_u24 v{q+4}, v{vBK+i}, s{cR}, v{q+4}")
        I(f"buffer_store_dwordx4 {rr(q,4)}, v{q+4}, {sq(sWS)}, s{sTM} offen sc1")
        L(f"L_PE{i}")
        I("s_mov_b64 exec, -1")
    L("L_PEXTR")
    stamp(5)
    vA, vRK, vR1 = vACC, vACC + 16, vQ
    mk = lambda i, j: sM + 2*(4*i + j)
    def rec_ops(d, x, byte, eb, a, r1, keep=None):
        e_ = r1 if keep is None else keep
        return [f"v_add_u32_sdwa v{e_}, v{x}, v{eb} {SDW} src0_sel:BYTE_{byte} src1_sel:DWORD",
                f"v_lshrrev_b32 v{u(1)}, 28, v{d}",
                f"v_lshl_add_u32 v{e_}, v{u(1)}, 8, v{e_}",
                f"v_and_b32 v{u(1)}, 60, v{a}",
                f"v_lshl_add_u32 v{r1}, v{u(1)}, 19, v{e_}"]
    def spin():
        I(f"s_add_u32 s{sSP}, s{sSP}, 1")
        I(f"s_cmp_gt_u32 s{sSP}, {opt('spin', 200000)}")
        I("s_cbranch_scc1 L_END")
        if opt("slp", 1): I(f"s_sleep {opt('slp', 1)}")
    xg = vCA
    def xload(tag):
        for i in range(4):
            I(f"s_mov_b64 exec, {sp(mk(i,3))}")
            I(f"s_cbranch_execz L_XL{tag}{i}")
            I(f"s_movk_i32 s10, {8192*i}")
            I(f"buffer_load_dwordx4 {rr(xg+4*i,4)}, v{pa}, {sq(sD2)}, s10 offen sc1")
            L(f"L_XL{tag}{i}")
        I("s_mov_b64 exec, -1")
    for i in range(4):
        c_ = vC + 4*i
        L(f"L_PW{i}")
        I(f"s_waitcnt vmcnt({3 - i + PY})")
        I(f"v_xor_b32 v{u(0)}, v{c_+3}, v{vTG}")
        for j in range(3): I(f"v_and_b32_sdwa v{vA+4*i+j}, v{c_+j}, s{sFM} {SDW} src0_sel:WORD_1 src1_sel:DWORD")
        I(f"v_cmp_lt_u32 vcc, s{sT}, v{u(0)}")
        for j in range(3): I(f"v_cmp_ne_u32 {sp(mk(i,j))}, 0, v{c_+j}")
        I(f"s_cbranch_vccnz L_RT{i}")
        if i == 3: stamp(6)
        for j in range(3):
            I(f"s_mov_b64 exec, {sp(mk(i,j))}")
            I(f"ds_add_rtn_u32 v{vRK+4*i+j}, v{vA+4*i+j}, v{one} offset:{HIST}")
        I("s_mov_b64 exec, -1")
        if i == 3:
            I(f"v_or3_b32 v{u(2)}, v{vC+3}, v{vC+7}, v{vC+11}")
            I(f"v_or_b32 v{u(2)}, v{u(2)}, v{vC+15}")
            I(f"v_and_b32 v{u(2)}, 0x1000000, v{u(2)}")
            I(f"v_cmp_ne_u32 vcc, 0, v{u(2)}")
            I("s_cbranch_vccz L_XT1R")
            def xt1():
                if TS: I(f"v_writelane_b32 v{vTS}, 1, 62")
                for i in range(4):
                    I(f"v_and_b32 v{u(2)}, 0x1000000, v{vC+4*i+3}")
                    I(f"v_cmp_ne_u32 {sp(mk(i,3))}, 0, v{u(2)}")
                    I(f"s_bcnt1_i32_b64 s10, {sp(mk(i,3))}")
                    I(f"s_lshl2_add_u32 s{sXT}, s10, s{sXT}")
                xload("a")
                I(f"v_or3_b32 v{u(2)}, v{vC+1}, v{vC+5}, v{vC+9}")
                I(f"v_or_b32 v{u(2)}, v{u(2)}, v{vC+13}")
                I(f"v_and_b32 v{u(2)}, 0x10000, v{u(2)}")
                I(f"v_mov_b32 v{u(3)}, {FLAG}")
                I(f"v_cmpx_ne_u32 vcc, 0, v{u(2)}")
                I(f"ds_write_b32 v{u(3)}, v{one} offset:4")
                I("s_mov_b64 exec, 1")
                I(f"v_mov_b32 v{u(2)}, s{sXT}")
                I(f"ds_add_u32 v{u(3)}, v{u(2)} offset:8")
                I("s_mov_b64 exec, -1")
            xt1()
            L("L_XT1R")
        for j in range(3):
            put(rec_ops(c_+j, c_+3, j, vEB+i, vA+4*i+j, vR1+4*i+j, vR1+4*i+3 if j == 0 and JE else None))
        e_ = vR1 + 4*i + 3
        if JE: I(f"v_cndmask_b32 v{u(0)}, v{vFF}, v{e_}, {sp(mk(i,0))}")
        I(f"v_and_or_b32 v{c_}, v{c_}, s{sN}, v{vET+i}")
        I(f"v_or_b32 v{vR1+4*i}, v{vR1+4*i}, v{vEM}")
        if JE:
            I(f"v_mov_b32_dpp v{u(1)}, v{u(0)} quad_perm:[2,2,3,3] row_mask:0xf bank_mask:0xf")
            I(f"v_mov_b32_dpp v{e_}, v{u(0)} quad_perm:[0,0,1,1] row_mask:0xf bank_mask:0xf")
        I(f"v_and_b32 v{c_+2}, s{sN}, v{c_+2}")
        if JE: I(f"v_mov_b32_dpp v{e_}, v{u(1)} row_shr:4 row_mask:0xf bank_mask:0xa")
    fill = [f"v_and_b32 v{vC+4*i+1}, s{sN}, v{vC+4*i+1}" for i in range(4)]
    I(f"v_mov_b32 v{u(9)}, {FLAG}")
    if OLP == 2: own_loads()
    I("s_waitcnt lgkmcnt(0)")
    stamp("d0")
    I("s_barrier")
    stamp(7)
    def early(i):
        if not JE: return
        I(f"s_lshl_b32 m0, s{sWP}, 10")
        I(f"v_mov_b32 v{vEI}, v{vR1+4*i+3}")
        I(f"s_add_u32 m0, m0, {EARLY + 8192*i}")
        if JE < 4:
            I(f"s_mov_b32 exec_lo, {((1 << 2*JE) - 1) * 0x01010101:#x}")
            I("s_mov_b32 exec_hi, exec_lo")
        else: I("s_nop 0")
        I(f"buffer_load_dwordx4 {rr(vEI,2)}, {sq(sEP)}, 0 idxen offen{pol(opt('eep', ''))} lds")
        if JE < 4: I("s_mov_b64 exec, -1")
    EPOS = opt("epos", "0134")
    def epoint(k):
        for i in range(4):
            if int(EPOS[i]) == k: early(i)
    c, p, tot, sc = u(0), u(4), u(8), u(9)
    hh = vX
    own, to2, ex, z_, eh, el = u(10), u(11), u(12), u(13), u(14), u(15)
    SD = f"{SDW} src0_sel:WORD_0 src1_sel:WORD_0"
    HL = f"{SDW} src0_sel:WORD_0 src1_sel:WORD_1"
    I(f"ds_read_u16 v{own}, v{owna} offset:{HIST}")
    I(f"ds_read_u16 v{to2}, v{owna} offset:{HIST + 1024}")
    for ph in range(4):
        I(f"ds_read_b128 {rr(hh+4*ph,4)}, v{l16} offset:{HIST + 1024*ph}")
    I(f"ds_read_b32 v{vQD}, v{sc} offset:8")
    epoint(0)
    I("s_cmp_lg_u32 s2, 0")
    I("s_cbranch_scc1 L_NOK")
    I(f"v_mov_b32 v{vQD+1}, s{sK}")
    I(f"v_mov_b32 v{vQD+2}, 0")
    I(f"buffer_store_dword v{vQD+1}, v{vQD+2}, {sq(sWS)}, 0 offen sc1")
    L("L_NOK")
    I("s_waitcnt lgkmcnt(5)")
    I(f"v_lshl_or_b32 v{own}, v{to2}, 16, v{own}")
    I(f"v_mov_b32 v{to2}, v{own}")
    I("s_waitcnt lgkmcnt(0)")
    stamp("d1")
    f2 = []
    for i in range(4):
        f2 += [f"v_add_u32_sdwa v{c+i}, v{hh+i}, v{hh+4+i} {SD}", f"v_add_u32_sdwa v{p+i}, v{hh+8+i}, v{hh+12+i} {SD}"]
    f2 += [f"v_add_u32 v{c+i}, v{c+i}, v{p+i}" for i in range(4)]
    wave_scan(to2, f2, half=True)
    put(f2)
    I(f"v_mul_u32_u24 v{tot}, v{c}, v{vMU}")
    for i in range(1, 4): I(f"v_mad_u32_u24 v{tot}, v{c+i}, v{vMU+i}, v{tot}")
    f2 = [f"v_sub_u32 v{ex}, v{to2}, v{own}", f"v_add_u32_sdwa v{eh}, v{to2}, v{to2} {HL}",
          f"v_add_u32_sdwa v{z_}, v{ex}, v{ex} {HL}", f"v_add_u32_sdwa v{el}, v{own}, v{own} {HL}",
          fill.pop(0), f"v_readfirstlane_b32 s{sMORE}, v{vQD}",
          f"v_permlane32_swap_b32 v{z_}, v{eh}", f"v_cndmask_b32 v{el}, 0, v{el}, {sp(sJ3)}",
          f"v_add_u32 v{z_}, v{z_}, v{eh}", fill.pop(0),
          f"v_add_u32 v{eh}, v{z_}, v{el}", fill.pop(0)]
    I(f"s_mov_b32 s{sJ3}, -1")
    I(f"s_mov_b32 s{sJ3+1}, 0")
    wave_scan(tot, f2)
    assert not f2
    stamp("d2")
    I(f"v_sub_u32_sdwa v{el}, v{eh}, v{own} {SDW} src0_sel:DWORD src1_sel:WORD_1")
    I(f"v_readlane_b32 s{sT}, v{tot}, 63")
    epoint(1)
    ASYM = opt("asym", 12)
    I(f"s_bfe_u32 s10, s{sT}, 0xe0002")
    I(f"s_lshr_b32 s{sT}, s{sT}, 16")
    I("s_lshr_b32 s11, s10, 1")
    I(f"s_add_u32 s11, s11, {4*ASYM}")
    I("s_and_b32 s11, s11, -128")
    I(f"s_lshr_b32 s{sF0}, s{sW}, 1")
    I(f"s_mul_i32 s{sF0}, s{sF0}, s10")
    I(f"s_sub_i32 s11, s11, {4*ASYM}")
    I(f"s_sub_i32 s{sF0}, s{sF0}, s{sT}")
    I(f"s_add_i32 s11, s11, s{sF0}")
    I(f"s_add_i32 s10, s10, s{sF0}")
    I(f"s_bitcmp1_b32 s{sW}, 0")
    I(f"s_cselect_b32 s{sEND}, s11, s{sF0}")
    I("s_cselect_b32 s10, s10, s11")
    I(f"v_cmp_gt_i32 vcc, s{sEND}, v{eh}")
    I(f"v_cmp_gt_i32 {sp(sTM)}, s10, v{eh}")
    f0, f1 = sWS0, sWS1
    I(f"s_bcnt1_i32_b32 s{f0}, vcc_lo")
    I(f"s_bcnt1_i32_b32 s10, s{sTM}")
    I(f"s_min_i32 s{f0}, s{f0}, s{hi0}")
    I(f"s_max_i32 s10, s10, s{lo1}")
    I(f"s_min_i32 s{f1}, s10, s{hi1}")
    stamp("d3")
    epoint(2)
    A01, A23, E01, E23, Z1 = sCI, sCUR, sR0, sCNT, sST
    I(f"v_readlane_b32 s{sT}, v{z_}, s{f0}")
    I(f"v_readlane_b32 s{Z1}, v{z_}, s{f1}")
    I(f"s_add_u32 s{sF0}, s{f0}, s{sWIN}")
    I(f"s_add_u32 s{sF1}, s{f1}, s{sWIN}")
    I(f"s_add_u32 s10, s{f0}, 32")
    I(f"s_add_u32 s11, s{f1}, 32")
    I(f"v_readlane_b32 s{A01}, v{ex}, s{f0}")
    I(f"v_readlane_b32 s{E01}, v{ex}, s{f1}")
    I(f"v_readlane_b32 s{A23}, v{ex}, s10")
    I(f"v_readlane_b32 s{E23}, v{ex}, s11")
    I(f"s_sub_u32 s{sEND}, s{Z1}, s{sT}")
    I(f"s_add_u32 s10, s{sEND}, 255")
    if opt("flr", 1):
        I(f"s_sub_i32 s11, s{f1}, 16")
        I(f"s_max_i32 s11, s11, s{f0}")
        I(f"v_readlane_b32 s11, v{z_}, s11")
        I(f"s_add_u32 vcc_lo, s{sEND}, 127")
        I(f"s_and_b32 vcc_hi, vcc_lo, 127")
        I(f"s_add_u32 vcc_hi, vcc_hi, s{sMORE}")
        I(f"s_cmp_lt_u32 vcc_hi, 55")
        I(f"s_cselect_b32 vcc_lo, vcc_lo, s10")
        I(f"s_sub_u32 s11, s11, s{sT}")
        I(f"s_add_u32 s11, s11, s{sMORE}")
        I(f"s_lshl_b32 s11, s11, 1")
        I(f"s_and_b32 vcc_lo, vcc_lo, -256")
        I(f"s_cmp_le_u32 s11, vcc_lo")
        I(f"s_cselect_b32 s10, vcc_lo, s10")
    I("s_lshr_b32 s10, s10, 8")
    I("s_lshl_b32 s10, s10, 7")
    I(f"s_sub_u32 s10, s10, s{sMORE}")
    I("s_max_i32 s10, s10, 0")
    I(f"s_add_u32 s{sT}, s{sT}, s10")
    I(f"s_add_u32 s10, s{f0}, 16")
    I(f"s_min_u32 s10, s10, s{f1}")
    I(f"s_sub_i32 s11, s{f1}, 16")
    inl, inh, mo = sTM, sTM + 2, sMSK
    I(f"v_cmp_ge_u32 {sp(inl)}, s{sT}, v{el}")
    I(f"v_cmp_ge_u32 {sp(inh)}, s{sT}, v{eh}")
    I(f"v_cmp_gt_i32 vcc, s10, v{ownn}")
    I(f"v_cmp_gt_i32 {sp(sA)}, s11, v{ownn}")
    I(f"v_cmp_le_u32 {sp(mo)}, s{f0}, v{ownn}")
    I(f"v_cmp_gt_u32 {sp(sJ3)}, s{f1}, v{ownn}")
    I(f"s_and_b64 {sp(inl)}, {sp(inl)}, vcc")
    I(f"s_and_b64 {sp(inh)}, {sp(inh)}, vcc")
    I(f"s_or_b64 {sp(inl)}, {sp(inl)}, {sp(sA)}")
    I(f"s_or_b64 {sp(inh)}, {sp(inh)}, {sp(sA)}")
    I(f"s_bcnt1_i32_b32 s{sB0E}, s{inl}")
    I(f"s_bcnt1_i32_b32 s10, s{inh}")
    I(f"s_bcnt1_i32_b32 s11, s{inl+1}")
    I(f"s_bcnt1_i32_b32 s{sSH}, s{inh+1}")
    I(f"v_readlane_b32 s{f0}, v{ex}, s{sB0E}")
    I(f"v_readlane_b32 s10, v{ex}, s10")
    I("s_add_u32 s11, s11, 32")
    I(f"s_add_u32 s{sT}, s{sSH}, 32")
    I(f"v_readlane_b32 s{f1}, v{ex}, s11")
    I(f"v_readlane_b32 s11, v{ex}, s{sT}")
    I(f"v_mov_b32 v{c}, s{sN}")
    I(f"v_cndmask_b32 v{c+1}, 0, v{c}, {sp(inl)}")
    I(f"v_cndmask_b32 v{c}, 0, v{c}, {sp(inh)}")
    I(f"s_and_b64 {sp(mo)}, {sp(mo)}, {sp(sJ3)}")
    Q01, Q23 = f0, f1
    I(f"s_pack_lh_b32_b16 s{Q01}, s{f0}, s10")
    I(f"s_pack_lh_b32_b16 s{Q23}, s{f1}, s11")
    I(f"v_lshl_or_b32 v{c}, v{c}, 16, v{c+1}")
    I(f"s_sub_u32 s{sT}, s{sL}, {R0 - BIAS}")
    I(f"s_pack_ll_b32_b16 s{sT}, s{sT}, s{sT}")
    def bases(lo01, lo23, hi01, hi23, d, keep=None):
        I(f"s_sub_u32 s10, s{hi01}, s{lo01}")
        I(f"s_sub_u32 s11, s{hi23}, s{lo23}")
        I(f"s_mul_i32 s10, s10, 0x10001")
        I(f"s_lshl_b32 vcc_lo, s10, 16")
        I(f"s_pack_hh_b32_b16 s10, s10, s10")
        I(f"s_lshl_b32 vcc_hi, s11, 16")
        I(f"s_add_u32 vcc_hi, vcc_hi, s10")
        if keep is not None:
            I(f"s_add_u32 s{keep}, vcc_hi, s11")
            I(f"s_lshr_b32 s{keep}, s{keep}, 16")
            I(f"s_sub_u32 s{sEND}, s{sEND}, s{keep}")
            I(f"s_cmp_gt_u32 s{sEND}, s{keep}")
            I(f"s_cselect_b32 s{SWP}, {LWB * 0x10001:#x}, 0")
            I(f"s_add_u32 s{sT}, s{sT}, s{SWP}")
        I(f"s_sub_u32 s10, s{sT}, s{lo01}")
        I(f"s_sub_u32 s11, s{sT}, s{lo23}")
        I("s_add_u32 s10, s10, vcc_lo")
        I("s_add_u32 s11, s11, vcc_hi")
        I(f"v_mov_b32 v{d}, s10")
        I(f"v_mov_b32 v{d+1}, s11")
    LEN0, SWP = sJ3, sJ3 + 1
    bases(A01, A23, Q01, Q23, p, LEN0)
    I(f"s_add_u32 s{sT}, s{sT}, {LWB * 0x10001:#x}")
    I(f"s_sub_u32 s{sT}, s{sT}, s{SWP}")
    I(f"s_sub_u32 s{sT}, s{sT}, s{SWP}")
    bases(Q01, Q23, E01, E23, p + 2)
    I(f"v_bfi_b32 v{p}, v{c}, v{p}, v{p+2}")
    I(f"v_bfi_b32 v{p+1}, v{c}, v{p+1}, v{p+3}")
    I(f"s_mov_b32 exec_hi, 0")
    I(f"v_mov_b32 v{p+1}, v{p}")
    I(f"s_mov_b64 exec, {sp(mo)}")
    I(f"v_add_u32 v{ex}, v{ex}, v{p+1}")
    assert LWB & 0x80
    I(f"s_bfe_u32 s10, s{SWP}, 0x10007")
    I(f"s_lshl1_add_u32 s10, s{sW}, s10")
    I("s_lshl_b32 s10, s10, 2")
    I(f"v_cndmask_b32 v{c}, 4, 0, {sp(inl)}")
    I(f"ds_write_b16 v{owna}, v{ex} offset:{HIST + 2}")
    I(f"ds_write_b16_d16_hi v{owna}, v{ex} offset:{HIST + 1024 + 2}")
    I("s_mov_b32 exec_hi, 0")
    I(f"v_xor_b32 v{c}, s10, v{c}")
    I(f"ds_write_b32 v{mapa}, v{c}")
    I("s_mov_b64 exec, -1")
    stamp("d5")
    I(f"s_min_u32 s10, s{sEND}, s{LEN0}")
    I(f"s_max_u32 s{LEN0}, s{sEND}, s{LEN0}")
    I(f"s_mov_b32 s{sEND}, s10")
    I(f"s_add_u32 s10, s{LEN0}, s{sMORE}")
    I(f"s_mul_i32 s11, s{Z1}, {LWB * 65536 // BIAS}")
    I("s_lshr_b32 s11, s11, 16")
    I("s_max_u32 s10, s10, s11")
    I(f"s_cmp_lt_u32 s10, {LWB}")
    I("s_cbranch_scc1 L_LFIT")
    I(f"ds_write_b32 v{sc}, v{one}")
    L("L_LFIT")
    I(f"s_cmp_eq_u32 s{sMORE}, 0")
    I("s_cbranch_scc1 L_XCNR")
    I(f"s_sub_u32 s10, s{sL}, {R0 - BIAS}")
    I(f"s_add_u32 s11, s10, s{LEN0}")
    I(f"v_mov_b32 v{u(0)}, s11")
    I(f"s_add_u32 s11, s10, s{sEND}")
    I(f"s_add_u32 s11, s11, {LWB}")
    I(f"v_mov_b32 v{u(1)}, s11")
    I(f"s_lshl_b32 s10, s{sW}, 3")
    I(f"v_mov_b32 v{u(2)}, s10")
    I(f"ds_write_b64 v{u(2)}, {rr(u(0),2)} offset:{CNT}")
    L("L_XCNR")
    epoint(3)
    put(fill)
    I("s_waitcnt lgkmcnt(0)")
    stamp(8)
    I("s_barrier")
    stamp(9)
    I(f"ds_read_b64 {rr(u(14),2)}, v{sc}")
    for i in range(4):
        for j in range(3):
            I(f"ds_read_u16 v{vA+4*i+j}, v{vA+4*i+j} offset:{HIST + 2}")
    epoint(4)
    def ntiles(l0, l1):
        I(f"s_add_u32 s10, s{l0}, 127")
        I("s_lshr_b32 s10, s10, 7")
        I("s_lshl1_add_u32 s10, s10, -1")
        I(f"s_add_u32 s11, s{l1}, 127")
        I("s_lshr_b32 s11, s11, 6")
        I("s_and_b32 s11, s11, -2")
        I(f"s_max_i32 s{sN}, s10, s11")
        I(f"s_cselect_b32 s10, s{l0}, s{l1}")
        I("s_sub_u32 s10, s10, 1")
        I(f"s_andn2_b32 s{sHF}, 64, s10")
    I(f"s_add_u32 s{sB0E}, s{sB0E}, s{sWIN}")
    I(f"s_add_u32 s11, s{sSH}, s{sWIN}")
    I(f"s_and_b32 s10, s11, 15")
    I(f"s_cmp_lt_u32 s11, s{sB0E}")
    I(f"s_cselect_b32 s{sSH}, s10, 16")
    I(f"s_cmp_lg_u32 s{SWP}, 0")
    I(f"s_cselect_b32 s{sWS1}, s{sF0}, s11")
    I(f"s_cselect_b32 s{sWIN}, s{sF0}, s{sB0E}")
    I(f"s_cselect_b32 s{sF0}, s11, s{sF0}")
    I(f"s_cselect_b32 s{sB0E}, s{sF1}, s{sB0E}")
    I(f"s_cselect_b32 s{sF1}, s11, s{sF1}")
    I(f"s_min_u32 s{sWS0}, s{sF0}, 192")
    I(f"s_min_u32 s{sWS1}, s{sWS1}, 192")
    I(f"s_mov_b32 s{sST}, s{sMORE}")
    I("s_waitcnt lgkmcnt(12)")
    I(f"v_cmp_ne_u32 vcc, 0, v{u(14)}")
    I(f"v_readfirstlane_b32 s{sMORE}, v{u(15)}")
    I("s_cbranch_vccnz L_OVF")
    for i in range(4):
        for j in range(3):
            s_ = 4*i + j
            if j == 0: I("s_waitcnt lgkmcnt(9)")
            I(f"s_mov_b64 exec, {sp(mk(i,j))}")
            I(f"v_add_u32 v{vA+s_}, v{vA+s_}, v{vRK+s_}")
            I(f"ds_write2st64_b32 v{vA+s_}, v{vC+s_}, v{vR1+s_} {W2}")
    I("s_mov_b64 exec, -1")
    ntiles(LEN0, sEND)
    stamp("d6")
    sO0, sO1, sNT, sOK, sCM = sOUT, sD2, sM + 8, sM + 9, sM + 12
    def epi_prep(t0, t1):
        I(f"s_lshl_b32 s{sNT}, s{sW}, 7")
        I(f"s_add_u32 s{sNT}, s{sNT}, {NT}")
        I(f"v_mov_b32 v{t0}, s{sWS0}")
        I("s_mov_b32 exec_lo, 0xffff0000")
        I(f"v_mov_b32 v{t0}, s{sWS1}")
        I("s_mov_b64 exec, 0xffffffff") if False else None
        I("s_mov_b32 exec_lo, -1")
        I("s_mov_b32 exec_hi, 0")
        I(f"v_sub_u32 v{t1}, v{lane}, v{t0}")
        I(f"v_and_b32 v{t1}, 15, v{t1}")
        I(f"v_add_lshl_u32 v{t1}, v{t1}, v{t0}, 5")
        I(f"v_lshl_add_u32 v{t0}, v{lane}, 2, s{sNT}")
        I(f"ds_write_b32 v{t0}, v{t1}")
        I("s_mov_b32 exec_hi, -1")
        I(f"s_mul_i32 s10, s{sB}, {BN}")
        for d, lo_, hi_, k in ((sO1, sWIN, sF1, 1), (sO0, sF0, sB0E, 0)):
            I(f"s_add_u32 s11, s10, s{lo_}")
            I(f"s_add_u32 s{d+2}, s10, s{hi_}")
            I(f"s_min_u32 s11, s11, {N}")
            I(f"s_min_u32 s{d+2}, s{d+2}, {N}")
            I(f"s_sub_u32 s{d+2}, s{d+2}, s11")
            I("s_lshl_b32 s11, s11, 7")
            I(f"s_lshl_b32 s{d+2}, s{d+2}, 7")
            I(f"s_add_u32 s{d}, s{sOUT}, s11")
            I(f"s_addc_u32 s{d+1}, s{sOUT+1}, 0")
            I(f"s_mul_i32 s{sOK+k}, s{lo_}, -128")
        I(f"s_and_b32 s10, s{sSH}, 12")
        I("s_lshl_b32 s10, s10, 2")
        I(f"s_bfm_b64 {sp(sCM)}, 16, s10")
    L("L_CA")
    for x_ in trw(vWA, 0): I(x_)
    I(f"s_cmp_eq_u32 s{sXT}, 0")
    I("s_cbranch_scc1 L_XT2R")
    I(f"s_waitcnt vmcnt({(4 if JE else 0) + (4 if OLP == 2 else 0)})")
    L("L_XT2")
    I(f"s_mov_b64 {sp(sTM)}, 0")
    for i in range(4):
        I(f"v_cmp_ne_u32 vcc, s{sK}, v{xg+4*i+1}")
        I(f"s_and_b64 vcc, vcc, {sp(mk(i,3))}")
        I(f"s_or_b64 {sp(sTM)}, {sp(sTM)}, vcc")
    I("s_cbranch_scc1 L_XT2B")
    I(f"s_cmp_eq_u32 s{sSKIP}, 0")
    I("s_cbranch_scc1 L_XT2R")
    for i in range(4):
        g_ = xg + 4*i
        I(f"s_mov_b64 exec, {sp(mk(i,3))}")
        I(f"s_cbranch_execz L_XS{i}")
        I(f"v_bfe_u32 v{g_+1}, v{g_}, 18, 8")
        I(f"v_lshlrev_b32 v{g_+1}, 2, v{g_+1}")
        I(f"v_add_u32 v{g_+3}, {MAP}, v{g_+1}")
        I(f"ds_read_b32 v{g_+3}, v{g_+3}")
        put(rec_ops(g_, g_+2, 0, vEB+i, g_+1, g_+2))
        I(f"v_and_b32 v{g_}, 0xffff, v{g_}")
        I("s_waitcnt lgkmcnt(0)")
        I(f"ds_add_rtn_u32 v{g_+3}, v{g_+3}, v{one} offset:{CNT}")
        I("s_waitcnt lgkmcnt(0)")
        I(f"ds_write2st64_b32 v{g_+3}, v{g_}, v{g_+2} {W2}")
        L(f"L_XS{i}")
    I("s_mov_b64 exec, -1")
    L("L_XT2R")
    I(f"s_cmp_ge_u32 s{sWP}, 4")
    I("s_cbranch_scc1 L_EP0")
    epi_prep(u(2), u(3))
    L("L_EP0")
    stamp("d7")
    I("s_waitcnt vmcnt(0) lgkmcnt(0)")
    stamp(10)
    I("s_barrier")
    def lens_from_cnt(t):
        I(f"s_lshl_b32 s10, s{sW}, 3")
        I(f"v_mov_b32 v{t}, s10")
        I(f"ds_read_b64 {rr(t,2)}, v{t} offset:{CNT}")
        I("s_waitcnt lgkmcnt(0)")
        I(f"v_readfirstlane_b32 s{sTM}, v{t}")
        I(f"v_readfirstlane_b32 s{sTM+1}, v{t+1}")
        I(f"s_sub_u32 s10, s{sL}, {R0 - BIAS}")
        I(f"s_sub_u32 s{sTM}, s{sTM}, s10")
        I(f"s_sub_u32 s{sTM+1}, s{sTM+1}, s10")
        I(f"s_sub_u32 s{sTM+1}, s{sTM+1}, {LWB}")
        ntiles(sTM, sTM + 1)
    I(f"s_mov_b32 s10, {f2u(1e-6):#x}")
    I(f"ds_read_b128 {rr(vQD,4)}, v{vARX}")
    I(f"ds_read_b32 v{vEI}, v{vARE}")
    stamp(11)
    I(f"v_lshrrev_b32 v{u(0)}, 2, v{lane}")
    I(f"v_and_b32 v{u(0)}, 12, v{u(0)}")
    I(f"v_subrev_u32 v{u(0)}, s{sSH}, v{u(0)}")
    I("s_waitcnt lgkmcnt(0)")
    STAG = opt("stag", 1)
    if STAG:
        I(f"s_cmp_ge_u32 s{sWP}, 4")
        I("s_cbranch_scc1 L_LATE0")
    put(dma_tile())
    L("L_LATE0")
    aw, al, ab = vEO, vEO + 1, vEO + 2
    I(f"s_lshl_b32 s{sTM}, s{sWS0}, 5")
    I(f"s_lshl_b32 s{sTM+1}, s{sWS1}, 5")
    I(f"s_mov_b32 vcc_lo, 0xff00ff00")
    I(f"s_mov_b32 vcc_hi, 0xff00ff00")
    I(f"v_mov_b32 v{aw}, s{sTM+1}")
    I(f"v_mov_b32 v{al}, s{sTM}")
    I(f"v_cndmask_b32 v{aw}, v{aw}, v{al}, vcc")
    I(f"v_and_b32 v{al}, 4, v{lane}")
    I(f"v_lshlrev_b32 v{al}, 6, v{al}")
    I(f"v_lshl_add_u32 v{al}, v{vcS}, 2, v{al}")
    I(f"v_sub_u32 v{al}, v{al}, v{aw}")
    I(f"v_and_b32 v{ab}, 48, v{lane}")
    I(f"s_movk_i32 s{sTM}, {(PL-32)//8}")
    I(f"v_mad_u32_u24 v{ab}, v{vcS}, s{sTM}, v{ab}")
    I(f"s_mov_b32 s{sTM}, {OWN}")
    I(f"v_add3_u32 v{ab}, v{ab}, v{aw}, s{sTM}")
    for t_ in range(2):
        if t_: I(f"v_add_u32 v{al}, 0x80, v{al}")
        I(f"v_and_b32 v{aw}, 0x1ff, v{al}")
        I(f"v_add_u32 v{aw}, v{aw}, v{ab}")
        for s in range(2): I(f"ds_read_b128 {rr(vX+8*t_+4*s,4)}, v{aw} offset:{64*s}")
    I(f"s_mov_b32 s{sTM}, {f2u(-LOG2E):#x}")
    I(f"s_mov_b32 s{sTM+1}, s{sTM}")
    for t_ in range(2):
        for s in range(2):
            I(f"s_waitcnt lgkmcnt({3 - 2*t_ - s})")
            for n in range(4):
                D = vQ + 8*n + 4*t_
                I(m16(D, vX+8*t_+4*s, vWA+8*n+4*s, D if s else None))
    I("s_mov_b32 s11, s10")
    I(f"v_mov_b32 v{u(1)}, s10")
    for i in range(8): I(f"v_mov_b64 {rr(DEN(0,0)+2*i,2)}, {sp(10)}")
    for i in range(4):
        I(f"v_cmp_ne_u32 vcc, {-i}, v{u(0)}")
        I(f"v_mov_b64 {rr(NUM(0,0)+4*i,2)}, 0")
        I(f"v_mov_b64 {rr(NUM(0,0)+4*i+2,2)}, 0")
        I(f"v_cndmask_b32 v{DEN(1,0)+i}, 0, v{u(1)}, vcc")
    for i in range(8): I(f"v_mov_b64 {rr(NUM(1,0)+2*i,2)}, 0")
    for n in range(1, 4):
        for i in range(2): I(f"v_mov_b64 {rr(DEN(1,n)+2*i,2)}, {rr(DEN(1,0)+2*i,2)}")
    for i in range(16): I(f"v_pk_mul_f32 {rr(vQ+2*i,2)}, {rr(vQ+2*i,2)}, {sp(sTM)}")
    for i in range(16): I(f"v_cvt_pk_bf16_f32 v{vCA+i}, v{vQ+2*i}, v{vQ+2*i+1}")
    for i in range(16): I(f"v_permlane32_swap_b32 v{vCA+16+i}, v{vCA+i}")
    I(f"s_mov_b32 s{sCI}, -1")
    I(f"s_mov_b64 {sp(sMSK)}, 0")
    I(f"s_mov_b32 s{sR0}, 0")
    I(f"s_mov_b32 s{sCNT}, 0")
    if STAG:
        I(f"s_cmp_lt_u32 s{sWP}, 4")
        I("s_cbranch_scc1 L_HAD0")
        put(dma_tile())
        epi_prep(u(2), u(3))
        L("L_HAD0")
    I(f"s_cmp_eq_u32 s{sST}, 0")
    I("s_cbranch_scc1 L_GO")
    lens_from_cnt(u(0))
    L("L_GO")
    for m in range(2): I(f"ds_read_u16 v{vEA+m}, v{vARO} offset:{64*m}")
    I(f"ds_read_b128 {rr(vQD,4)}, v{vARX} offset:{LWB}")
    I(f"ds_read_b32 v{vEI}, v{vARE} offset:{LWB}")
    I(f"s_lshr_b32 s10, s{sW}, 1")
    I("s_lshl_b32 s10, s10, 9")
    I(f"s_add_u32 s10, s10, {PRG}")
    assert PRG % 32 == 0
    I(f"v_lshl_add_u32 v{vPA}, v{lane}, 3, s10")
    I(f"s_bitcmp1_b32 s{sW}, 0")
    I(f"s_cselect_b32 s{sSG}, -1, 1")
    I(f"s_mul_i32 s10, s{sSG}, {-(1 << (25 if F2 else 24)) & 0xffffffff:#x}")
    I("s_or_b32 s10, s10, 0xdddd")
    I(f"v_mov_b32 v{vIDX}, s10")
    I(f"s_max_i32 s10, s{sN}, 1")
    I("s_sub_u32 s10, s10, 1")
    I(f"s_mul_i32 s10, s{sSG}, s10")
    I("s_lshl_b32 s10, s10, 24")
    I(f"v_mov_b32 v{vQ}, s10")
    I(f"ds_add_u32 v{vPA}, v{vQ}")
    I(f"v_mov_b32 v{vC1}, 0")
    I("s_mov_b32 exec_hi, 0")
    I(f"v_add_u32 v{vC1}, 0x200, v{vcEO}")
    I("s_mov_b32 exec_hi, -1")
    for i in range(16): I(f"v_mov_b64 {rr(vQ+2*i,2)}, 0")
    for i in range(2): I(f"v_mov_b64 {rr(vS+2*i,2)}, 0")
    I("s_waitcnt lgkmcnt(0)")
    put(eafix())
    stamp(12)
    I("s_waitcnt vmcnt(0)")
    stamp(13)
    cstamp(56)
    for m in range(2): I(f"ds_read_b128 {rr(vEO+4*m,4)}, v{vEA+m}")
    for m, s in ORD: I(xread(m, s))
    I(f"s_cmp_lt_i32 s{sN}, 1")
    I("s_cbranch_scc1 L_DONE")
    g = g_mfmas(vP, 0, 0)
    I("s_waitcnt lgkmcnt(4)")
    for x_ in g[:4]: I(x_)
    I("s_waitcnt lgkmcnt(0)")
    for x_ in g[4:]: I(x_)
    I(f"s_mov_b32 s{sT}, 1")
    I(f"s_cmp_eq_u32 s{sN}, 1")
    I("s_cbranch_scc1 L_LT0")
    put(dma_tile())
    for cp in ((1, 0) if FAIR else (0,)):
        sw = lambda par: [f"s_cmp_ge_i32 s{sRM}, {opt('fth', 1)}", f"s_cbranch_scc{1-cp} L_PB{par}{1-cp}", f"L_PB{par}{cp}:"] if FAIR and (par == 0 or not F2) else []
        body = phase(0, 0, cp) + sw(0) + phase(0, 1, cp) + [f"s_cmp_ge_u32 s{sT}, s{sN}", "s_cbranch_scc1 L_LT1"]
        body += phase(1, 0, cp) + sw(1) + phase(1, 1, cp) + [f"s_cmp_lt_u32 s{sT}, s{sN}", f"s_cbranch_scc1 L_LOOP{cp}"]
        check_body(body)
        DBG = opt("dbg", "")
        if "nodma" in DBG: body = [b for b in body if not b.startswith("buffer_load")]
        if "dropS" in DBG: body = [b for b in body if not b.startswith("v_smfmac")]
        if "halfrcp" in DBG: body = [b for b in body if not (b.startswith("v_rcp") and int(b.split("v")[-1]) & 1)]
        if "droppk" in DBG: body = [b for b in body if not b.startswith("v_pk_mul")]
        if "halfx" in DBG: body = [b for b in body if not (b.startswith("v_mfma") and (f"v[{vX+4}:" in b or f"v[{vX+12}:" in b))]
        if "nolds" in DBG: body = [b for b in body if not (b.startswith("ds_read_b128") and f"v{vAX}" in b)]
        if opt("al", 0): body = align8(body, opt("al", 0))
        emit(".p2align 6")
        if opt("sh4", 0): I("s_nop 0")
        L(f"L_LOOP{cp}")
        put(body)
        I("s_branch L_LT0")
    if opt("cpe", 0):
        I("s_branch L_LT0")
        for cp in ((1, 0) if FAIR else (0,)):
            for par in range(2):
                L(f"L_CE{par}{cp}")
                I(f"s_getpc_b64 {sp(sA)}")
                I(f"v_and_b32 v{vEI}, 0xfc, v{vPA}")
                I(f"v_lshlrev_b32 v{vEI}, 5, v{vEI}")
                I(f"global_load_dword v{vEI}, v{vEI}, {sp(sA)}")
                I(f"s_branch L_ND{par}{cp}")
    assert STAG
    e = lambda i: vCA + i
    xd = vWV
    ZR = [vP, vWV + 16]
    nd = lambda w, i: e(16 + 4*w + i)
    sO = [sO0, sO1]
    wu = [f"ds_read_b64_tr_b16 {rr(vWB+8*n+4*s+2*uu,2)}, v{e(1)} offset:{(32*s + 8*uu)*WR + 32*n}" for s in range(2) for n in range(4) for uu in range(2)]
    lid = [f"v_mbcnt_lo_u32_b32 v{lane}, -1, 0", f"v_mbcnt_hi_u32_b32 v{lane}, -1, v{lane}", f"v_and_b32 v{vcS}, 24, v{vPA}"]
    a1 = [f"v_and_b32 v{e(0)}, 48, v{lane}", f"v_and_b32 v{e(3)}, 15, v{lane}",
          f"v_add_u32 v{e(5)}, s{sNT}, v{e(0)}", f"v_lshl_add_u32 v{e(6)}, v{e(3)}, 2, s{sNT}"]
    a1 += [f"ds_read_b128 {rr(nd(w,0),4)}, v{e(5)} offset:{64*w}" for w in range(2)]
    a1 += [f"ds_read2_b32 {rr(e(8),2)}, v{e(6)} offset0:0 offset1:16",
           f"v_bfe_u32 v{e(1)}, v{lane}, 2, 3", f"v_lshrrev_b32 v{e(2)}, 5, v{lane}", f"v_lshl_add_u32 v{e(1)}, v{e(2)}, 4, v{e(1)}",
           f"v_mul_u32_u24 v{e(1)}, {WR}, v{e(1)}", f"s_mov_b32 s10, {WUI}", f"v_add3_u32 v{e(1)}, v{e(1)}, v{vcS}, s10"]
    a1 += wu[:12]
    a1 += [f"s_movk_i32 s10, {(PL-32)//8}", f"v_mad_u32_u24 v{e(0)}, v{vcS}, s10, v{e(0)}",
           f"s_mov_b32 s10, {OWN}", f"v_lshl_add_u32 v{e(5)}, v{e(3)}, 3, s10"]
    a1 += [f"v_lshl_add_u32 v{e(10+w)}, v{e(3)}, 3, s{sOK+w}" for w in range(2)]
    a1 += ["s_waitcnt lgkmcnt(8)"] + wu[12:]
    a2 = []
    for w in range(2):
        for i in range(4):
            a2 += [f"v_add_u32 v{e(12)}, v{nd(w,i)}, v{e(5)}", f"ds_read_b64 {rr(xd+8*w+2*i,2)}, v{e(12)} offset:{i*(PL-32)}"]
    for w in range(2):
        a2 += [f"v_add3_u32 v{e(8+w)}, v{e(8+w)}, v{e(0)}, s10"]
        a2 += [f"ds_read_b128 {rr(vX+8*w+4*s,4)}, v{e(8+w)} offset:{64*s}" for s in range(2)]
    def unp(w, n): return [(f"v_and_b32 v{ZR[w]+4*n+i}, 0xffff0000, v{xd+8*w+2*i+(n>>1)}" if n & 1 else
                            f"v_lshlrev_b32 v{ZR[w]+4*n+i}, 16, v{xd+8*w+2*i+(n>>1)}") for i in range(4)]
    blk = [(w, n) for w in range(2) for n in range(4)]
    a3 = [["s_waitcnt lgkmcnt(0)"] + unp(0, 0) + unp(0, 1)]
    for k, (w, n) in enumerate(blk):
        a3[-1] += [m16(ZR[w]+4*n, vX+8*w, vWB+8*n, ZR[w]+4*n)]
        a3.append((unp(*blk[k+2]) if k + 2 < 8 else []) + [f"v_lshl_add_u32 v{nd(w,n)}, v{nd(w,n)}, 2, v{e(10+w)}",
                  m16(ZR[w]+4*n, vX+8*w+4, vWB+8*n+4, ZR[w]+4*n)])
        if k < 7: a3.append([])
    ME = opt("me", 0)
    if ME:
        for par in range(2):
            L(f"L_LB{par}")
            put(last_tile(par, 0, only_b=True))
            I("s_branch L_DONE")
    for par in range(2):
        L(f"L_LT{par}")
        I(f"s_cmp_lg_u32 s{sHF}, 0")
        I(f"s_cbranch_scc1 L_LH{par}")
        for half in range(2):
            if half: L(f"L_LH{par}")
            put(last_tile(par, half, (lid + a1, a2, a3) if ME else None))
            I("s_branch L_EPB" if ME else "s_branch L_DONE")
    L("L_DONE")
    put(lid)
    I(f"s_cmp_lg_u32 s{sMORE}, 0")
    I("s_cbranch_scc1 L_SLOW")
    L("L_EPI")
    I("s_waitcnt lgkmcnt(0)")
    put(a1 + a2 + sum(a3, []))
    L("L_EPB")
    stamp(14)
    cstamp(57)
    I(f"s_setprio {opt('epr', 0)}")
    I(f"s_mov_b64 exec, {sp(sCM)}")
    I(f"s_and_b32 s11, s{sSH}, 19")
    I("s_nop 2")
    for i in range(4):
        I(f"s_cmp_eq_u32 s11, {i}")
        I(f"s_cbranch_scc1 L_NS{i}")
    L("L_NSR")
    I("s_mov_b64 exec, -1")
    for w in range(2):
        for k in range(16): I(f"v_rcp_f32 v{DEN(w,0)+k}, v{DEN(w,0)+k}")
        for k in range(0, 16, 2): I(f"v_pk_fma_f32 {rr(NUM(w,0)+k,2)}, {rr(NUM(w,0)+k,2)}, {rr(DEN(w,0)+k,2)}, {rr(ZR[w]+k,2)}")
        for i in range(4):
            for h in range(2): I(f"v_cvt_pk_bf16_f32 v{DEN(w,0)+2*i+h}, v{NUM(w,2*h)+i}, v{NUM(w,2*h+1)+i}")
            for h in range(2):
                I(f"v_pk_max_f16 v{DEN(w,0)+2*i+h}, v{DEN(w,0)+2*i+h}, v{xd+8*w+2*i+h}")
            I(f"buffer_store_dwordx2 {rr(DEN(w,0)+2*i,2)}, v{nd(w,i)}, {sq(sO[w])}, 0 offen{pol(OP)}")
    stamp("e2")
    stamp_out()
    L("L_END")
    I("s_endpgm")
    for i in range(4):
        L(f"L_NS{i}")
        for k in range(8): I(f"v_add_f32 v{vACC+4*k+i}, v{vACC+4*k+i}, v{vACC+32+4*k+i}")
        I("s_branch L_NSR")
    for i in range(4):
        L(f"L_RT{i}")
        I("s_waitcnt vmcnt(0)")
        spin()
        for k in range(i, 4): poll_load(k)
        I("s_waitcnt vmcnt(0)")
        I(f"s_branch L_PW{i}")
    L("L_XT2B")
    spin()
    xload("b")
    I("s_waitcnt vmcnt(0)")
    I("s_branch L_XT2")
    L("L_OVF")
    I(f"s_mov_b32 s{sSKIP}, 0")
    I(f"s_mov_b32 s{sN}, 0")
    I(f"s_mov_b32 s{sST}, 0")
    I(f"s_mov_b32 s{sMORE}, 4")
    I("s_waitcnt lgkmcnt(0)")
    I("s_branch L_CA")
    q = vCA
    L("L_POVF")
    I("s_movk_i32 s11, 1986")
    for i in range(4):
        I(f"v_mul_u32_u24 v{q+i}, s11, v{vHS+i}")
        I(f"v_lshrrev_b32 v{q+i}, 16, v{q+i}")
    I(f"v_add_u32 v{q+5}, v{q}, v{q+1}")
    I(f"v_add_u32 v{q+6}, v{q+5}, v{q+2}")
    I(f"v_add_u32 v{q+7}, v{q+6}, v{q+3}")
    I(f"v_mov_b32 v{q+8}, v{q+7}")
    wave_scan(q + 8)
    I("s_nop 0")
    I(f"v_sub_u32 v{q+4}, v{q+8}, v{q+7}")
    I(f"v_add_u32 v{q+7}, v{q+4}, v{q+6}")
    I(f"v_add_u32 v{q+6}, v{q+4}, v{q+5}")
    I(f"v_add_u32 v{q+5}, v{q+4}, v{q}")
    for i in range(4): I(f"v_lshl_or_b32 v{q+4+i}, v{q+i}, 16, v{q+4+i}")
    I(f"v_add_u32 v{q+8}, {HDR}, v{l16}")
    I(f"ds_write_b128 v{q+8}, {rr(q+4,4)}")
    I("s_lshl_b32 s10, s2, 10")
    I(f"s_add_u32 s10, s10, {WS_HD}")
    I(f"buffer_store_dwordx4 {rr(q+4,4)}, v{l16}, {sq(sWS)}, s10 offen sc1")
    for i in range(8):
        I(f"v_and_b32 v{q+10+i}, 0x3fc, v{vHA+i}")
        I(f"v_add_u32 v{q+10+i}, {HDR}, v{q+10+i}")
        I(f"ds_read_u16 v{q+10+i}, v{q+10+i}")
    I("s_waitcnt lgkmcnt(0)")
    for i in range(4):
        I(f"v_cmpx_lt_u32 vcc, {33*(CAP+8)}, v{vHD+i}")
        I(f"v_or_b32 v{vO+4*i+1}, 0x10000, v{vO+4*i+1}")
        I("s_mov_b64 exec, -1")
    I(f"s_mul_i32 s10, s2, {DCH}")
    I(f"s_mov_b32 s{sTM}, {WS_RECS}")
    I(f"s_mov_b32 s{sTM+1}, {WS_LEID}")
    for i in range(NR):
        I(f"v_mul_u32_u24 v{q}, s11, v{vRK1+i}")
        I(f"v_lshrrev_b32 v{q}, 16, v{q}")
        I(f"v_add3_u32 v{q}, v{q}, v{q+10+i}, s10")
        I(f"v_lshlrev_b32 v{q+1}, 2, v{q}")
        I(f"v_cmpx_le_u32 vcc, {33*(CAP+8)}, v{vRK1+i}")
        I(f"s_cbranch_execz L_PO{i}")
        I(f"buffer_store_byte v{idr(i)}, v{q}, {sq(sWS)}, s{sTM+1} offen sc1")
        I(f"buffer_store_dword v{vSR+i}, v{q+1}, {sq(sWS)}, s{sTM} offen sc1")
        L(f"L_PO{i}")
        I("s_mov_b64 exec, -1")
    I("s_waitcnt vmcnt(0) lgkmcnt(0)")
    I("s_barrier")
    I("s_branch L_POUT")
    SB = 288
    t0, t1, t2, t3 = vP, vP+1, vP+2, vP+3
    L("L_SLOW")
    I("s_setprio 0")
    I(f"s_lshl_b32 s10, s{sWP}, 6")
    I(f"v_add_u32 v{tid}, s10, v{lane}")
    I(f"s_cmp_lg_u32 s{sMORE}, 4")
    I("s_cbranch_scc1 L_SL1")
    I(f"s_mov_b32 s{sMORE}, 1")
    I(f"v_and_b32 v{t0}, 0xff, v{tid}")
    I(f"v_lshlrev_b32 v{t1}, 7, v{t0}")
    I(f"buffer_load_dword v{t2}, v{t1}, {sq(sCEL)}, 0 offen offset:4 sc1")
    I(f"v_lshlrev_b32 v{t1}, 10, v{t0}")
    I(f"s_lshl_b32 s10, s{sB}, 2")
    I(f"s_add_u32 s10, s10, {WS_HD}")
    I(f"buffer_load_dword v{t3}, v{t1}, {sq(sWS)}, s10 offen sc1")
    I(f"v_lshlrev_b32 v{t0}, 2, v{t0}")
    I(f"v_add_u32 v{t0}, {HDR}, v{t0}")
    I("s_waitcnt vmcnt(0)")
    I(f"v_and_b32 v{t2}, 0x10000, v{t2}")
    I(f"v_cmp_ne_u32 vcc, 0, v{t2}")
    I(f"v_mov_b32 v{t2}, {(CAP+8) << 16}")
    I("s_nop 0")
    I(f"v_cndmask_b32 v{t2}, v{t2}, v{t3}, vcc")
    I(f"ds_write_b32 v{t0}, v{t2}")
    I("s_waitcnt lgkmcnt(0)")
    I("s_barrier")
    L("L_SL1")
    I(f"s_add_u32 s{sR0}, s{sR0}, {SB}")
    I(f"s_cmp_lt_u32 s{sR0}, s{sCNT}")
    I("s_cbranch_scc1 L_BATCH")
    L("L_FIND")
    I(f"s_cmp_lg_u64 {sp(sMSK)}, 0")
    I("s_cbranch_scc1 L_GOT")
    I(f"s_add_u32 s{sCI}, s{sCI}, 1")
    I(f"s_cmp_ge_u32 s{sCI}, 4")
    I("s_cbranch_scc1 L_EPI")
    I(f"s_lshl_b32 s10, s{sCI}, 8")
    I(f"s_add_u32 s10, s10, {HDR}")
    I(f"v_lshl_add_u32 v{t0}, v{lane}, 2, s10")
    I(f"ds_read_u16 v{t0}, v{t0} offset:2")
    I("s_waitcnt lgkmcnt(0)")
    I(f"v_cmp_lt_u32 {sp(sMSK)}, s{sSKIP}, v{t0}")
    I("s_nop 3")
    I("s_branch L_FIND")
    L("L_GOT")
    I(f"s_ff1_i32_b64 s10, {sp(sMSK)}")
    I(f"s_bitset0_b64 {sp(sMSK)}, s10")
    I(f"s_lshl_b32 s11, s{sCI}, 6")
    I(f"s_add_u32 s{sCUR}, s10, s11")
    I(f"s_lshl_b32 s10, s{sCUR}, 2")
    I(f"s_add_u32 s10, s10, {HDR}")
    I(f"v_mov_b32 v{t0}, s10")
    I(f"ds_read_b32 v{t0}, v{t0}")
    I("s_waitcnt lgkmcnt(0)")
    I(f"v_readfirstlane_b32 s10, v{t0}")
    I("s_nop 3")
    I(f"s_lshr_b32 s{sCNT}, s10, 16")
    I(f"s_and_b32 s{sST}, s10, 0xffff")
    I(f"s_mov_b32 s{sR0}, s{sSKIP}")
    L("L_BATCH")
    I("s_waitcnt vmcnt(0)")
    I("s_barrier")
    prefill(vP + 4)
    I(f"v_and_b32 v{t0}, 15, v{lane}")
    I(f"v_mul_u32_u24 v{t1}, {LWB}, v{t0}")
    I(f"v_add_u32 v{t1}, {BIAS}, v{t1}")
    I(f"v_lshlrev_b32 v{t0}, 2, v{t0}")
    I(f"ds_write_b32 v{t0}, v{t1} offset:{CNT}")
    t1, t4, t5 = vQ, vQ + 2, vQ + 3
    I(f"v_add_u32 v{t0}, s{sR0}, v{tid}")
    I(f"s_mul_i32 s{sTM+2}, s{sCUR}, {CH}")
    I(f"s_mul_i32 s11, s{sCUR}, {DCH}")
    I(f"s_add_u32 s11, s11, s{sST}")
    I(f"s_lshl_b32 s{sTM}, s11, 2")
    I(f"s_add_u32 s{sTM}, s{sTM}, {WS_RECS}")
    I(f"v_lshl_add_u32 v{t2}, v{t0}, 2, s{sTM}")
    I(f"s_add_u32 s{sTM}, s11, {WS_LEID}")
    I(f"v_add_u32 v{t3}, s{sTM}, v{t0}")
    I(f"s_mul_i32 s10, s{sB}, {RS}")
    I(f"s_lshl_b32 s{sTM}, s{sCUR}, 7")
    I(f"s_add_u32 s10, s10, s{sTM}")
    I(f"s_add_u32 s10, s10, {WS_CELL}")
    I(f"v_and_b32 v{t4}, 7, v{t0}")
    I(f"v_lshl_add_u32 v{t4}, v{t4}, 4, s10")
    I(f"v_lshrrev_b32 v{t5}, 3, v{t0}")
    I(f"v_cmpx_gt_u32 vcc, {CAP+8}, v{t0}")
    I(f"v_add_u32 v{t2}, {XOFF}, v{t4}")
    I(f"v_add_u32 v{t3}, 8, v{t2}")
    I(f"v_cmpx_gt_u32 vcc, {CAP}, v{t0}")
    I(f"v_lshl_add_u32 v{t2}, v{t5}, 2, v{t4}")
    I(f"v_add3_u32 v{t3}, v{t4}, v{t5}, 12")
    I("s_mov_b64 exec, -1")
    I(f"s_add_u32 s10, s{sR0}, {SB}")
    I(f"s_min_u32 s10, s10, s{sCNT}")
    I(f"v_cmp_gt_u32 vcc, s10, v{t0}")
    I(f"v_mov_b32 v{t4}, 0x7ffffff0")
    I("s_nop 0")
    I(f"v_cndmask_b32 v{t2}, v{t4}, v{t2}, vcc")
    I(f"v_cndmask_b32 v{t3}, v{t4}, v{t3}, vcc")
    I(f"buffer_load_dwordx2 {rr(t1,2)}, v{t2}, {sq(sWS)}, 0 offen sc1")
    I(f"buffer_load_ubyte v{t3}, v{t3}, {sq(sWS)}, 0 offen sc1")
    I("s_waitcnt lgkmcnt(0)")
    I("s_barrier")
    I("s_waitcnt vmcnt(0)")
    I(f"v_cmp_ne_u32 vcc, 3, v{t5}")
    I(f"v_cmp_eq_u32 {sp(sA)}, s{sK}, v{t1+1}")
    I(f"v_mov_b32 v{t4}, s{sTM+2}")
    I(f"s_or_b64 exec, vcc, {sp(sA)}")
    I(f"v_cmpx_ne_u32 vcc, 0, v{t1}")
    I(f"v_bfe_u32 v{t2}, v{t1}, 18, 8")
    I(f"v_lshlrev_b32 v{t2}, 2, v{t2}")
    I(f"v_add_u32 v{t0}, {MAP}, v{t2}")
    I(f"ds_read_b32 v{t0}, v{t0}")
    put(rec_ops(t1, t3, 0, t4, t2, t3))
    I(f"v_mov_b32 v{t2}, 4")
    I(f"v_and_b32 v{t1}, 0xffff, v{t1}")
    I("s_waitcnt lgkmcnt(0)")
    I(f"ds_add_rtn_u32 v{t0}, v{t0}, v{t2} offset:{CNT}")
    I("s_waitcnt lgkmcnt(0)")
    I(f"ds_write2st64_b32 v{t0}, v{t1}, v{t3} {W2}")
    I("s_mov_b64 exec, -1")
    I("s_waitcnt lgkmcnt(0)")
    I("s_barrier")
    listaddr(t2)
    I(f"ds_read_b128 {rr(vQD,4)}, v{vARX}")
    I(f"ds_read_b32 v{vEI}, v{vARE}")
    lens_from_cnt(t2)
    put(dma_tile())
    L("L_LAST")
    I("s_branch L_GO")

def regs_of(tok):
    tok = tok.strip()
    m = re.fullmatch(r"v\[(\d+):(\d+)\]", tok)
    if m: return list(range(int(m.group(1)), int(m.group(2)) + 1))
    m = re.fullmatch(r"v(\d+)", tok)
    if m: return [int(m.group(1))]
    return []
def parse(ins):
    op, _, rest = ins.partition(" ")
    ops = [o.strip().split(" ")[0] for o in rest.split(",")] if rest else []
    if op.startswith("ds_read") or "rtn" in op: return "ds", regs_of(ops[0]), regs_of(ops[1])
    return "other", [], sum((regs_of(o) for o in ops), [])
def check_body(body):
    s2 = [b for b in body if not b.endswith(":")]
    pend = []
    for i, ins in enumerate(s2 * 3):
        k, d, s = parse(ins)
        m = re.search(r"lgkmcnt\((\d+)\)", ins)
        if m:
            while len(pend) > int(m.group(1)): pend.pop(0)
        pr = set(sum(pend, []))
        for r in d + s:
            assert r not in pr, f"pending LDS reg v{r} used by {ins} @{i}"
        if k == "ds":
            pend.append(d); assert len(pend) <= 15

hdr = open("/code/" + NAME + ".s.ref").read().split("\n")
for l in hdr:
    if l.startswith("; Override"): break
    out.append(l)
if opt("list", 0): out.append(f"; @launch kernel={NAME}_kernel grid=(256,1,1) block=(512,1,1) lds={LDS}")
else: out.append(f"; @launch grid=(256,1,1) block=(512,1,1) lds={LDS}")
LEAK = opt("leak", "")
if LEAK: out.append("; @launch kernel=leak_kernel grid=(1,1,1) block=(256,1,1) lds=64")
emit('.amdgcn_target "amdgcn-amd-amdhsa--gfx950"\n.text')
kernel()
if LEAK:
    kind, nm = LEAK[0], LEAK[1:]
    si = STN.index(nm)
    emit(".globl leak_kernel\n.p2align 8\n.type leak_kernel,@function\nleak_kernel:")
    I("s_cmp_lg_u32 s2, 0")
    I("s_cbranch_scc1 LK_END")
    I("s_load_dwordx2 s[4:5], s[0:1], 88")
    I("v_min_u32 v1, 254, v0")
    I("v_lshlrev_b32 v1, 11, v1")
    I("v_mov_b32 v2, 0")
    I("v_mov_b32 v3, 0x7fffffff")
    I("v_mov_b32 v4, 0")
    I("ds_write2_b32 v2, v3, v4 offset0:0 offset1:1")
    I("s_waitcnt lgkmcnt(0)")
    I(f"s_add_u32 s4, s4, {WS_TS}")
    I("s_addc_u32 s5, s5, 0")
    I("global_load_dword v5, v2, s[4:5]")
    for w in range(8):
        I(f"global_load_dword v{8+w}, v1, s[4:5] offset:{256*w}")
        I(f"global_load_dword v{16+w}, v1, s[4:5] offset:{256*w + 4*si}")
    I("s_barrier")
    I("s_waitcnt vmcnt(0)")
    I("v_subrev_u32 v5, 1000, v5")
    for w in range(16): I(f"v_sub_u32 v{8+w}, v{8+w}, v5")
    for w in range(8):
        I(f"ds_min_u32 v2, v{8+w}")
        I(f"ds_{'max' if kind == 'm' else 'add'}_u32 v2, v{16+w} offset:4")
    I("s_waitcnt lgkmcnt(0)")
    I("s_barrier")
    I("ds_read_b64 v[6:7], v2")
    I("s_waitcnt lgkmcnt(0)")
    I("v_lshlrev_b32 v6, 2, v6")
    I("v_lshlrev_b32 v7, 2, v7" if kind == 'm' else "v_lshrrev_b32 v7, 9, v7")
    I("v_sub_u32 v6, v7, v6")
    I("v_min_u32 v6, 20000, v6")
    I("s_nop 0")
    I("v_readfirstlane_b32 s6, v6")
    I("s_memrealtime s[8:9]")
    I("s_waitcnt lgkmcnt(0)")
    L("LK_L")
    I("s_memrealtime s[10:11]")
    I("s_waitcnt lgkmcnt(0)")
    I("s_sub_u32 s7, s10, s8")
    I("s_cmp_lt_u32 s7, s6")
    I("s_cbranch_scc1 LK_L")
    L("LK_END")
    I("s_endpgm")
emit(f""".section .rodata,"a"
.p2align 6
.amdhsa_kernel {NAME}_kernel
  .amdhsa_next_free_vgpr 256
  .amdhsa_next_free_sgpr 102
  .amdhsa_accum_offset 256
  .amdhsa_group_segment_fixed_size 0
  .amdhsa_kernarg_size 96
  .amdhsa_user_sgpr_count 2
  .amdhsa_user_sgpr_kernarg_segment_ptr 1
  .amdhsa_system_sgpr_workgroup_id_x 1
.end_amdhsa_kernel""")
if LEAK:
    emit(""".p2align 6
.amdhsa_kernel leak_kernel
  .amdhsa_next_free_vgpr 32
  .amdhsa_next_free_sgpr 16
  .amdhsa_accum_offset 32
  .amdhsa_group_segment_fixed_size 0
  .amdhsa_kernarg_size 96
  .amdhsa_user_sgpr_count 2
  .amdhsa_user_sgpr_kernarg_segment_ptr 1
  .amdhsa_system_sgpr_workgroup_id_x 1
.end_amdhsa_kernel""")
if TS: out.insert(0, "; stamps " + " ".join(STN))
path = sys.argv[1] if len(sys.argv) > 1 else "/code/" + NAME + ".s"
open(path, "w").write("\n".join(out) + "\n")
print("wrote", path, len(out), "lines; lds", LDS)
```

```python
import sys, re, struct

NAME = "standalone__edge_featured_mpnn_gatedgcn__graph"
OPT = dict(kv.split("=") for kv in sys.argv[2:])
def opt(k, d):
    v = OPT.get(k)
    if v is None: return d
    return type(d)(v)

N, E = 50000, 800000
CH = 3128
BN = 196
XIL = opt('xil', 0)
RS = (513 if XIL else opt('rs', 257)) * 128
XOFF = 256 * 128 if XIL else 256 * RS
WS_CELL = 0x10000
WS_RECS = 0x1200000
WS_LEID = 0x1680000
WS_HD = 0x17a0000
WS_USED = 0x1800000
WS_TS = 0x3000000
KINC = 0x02020202
CAP = 24
LOG2E = 1.4426950408889634
def f2u(f): return struct.unpack("<I", struct.pack("<f", f))[0]

out = []
def emit(s=""):
    for l in s.strip("\n").split("\n"):
        out.append(l.rstrip())
def I(s): out.append("    " + s)
def L(s): out.append(s + ":")
def C(s): out.append("    ; " + s)
def put(seq):
    for s in seq:
        if s.endswith(":"): L(s[:-1])
        else: I(s)
def rr(a, n): return f"v[{a}:{a+n-1}]"
def sp(a): return f"s[{a}:{a+1}]"
def sq(a): return f"s[{a}:{a+3}]"
def pol(p): return (" " + p.replace("_", " ")) if p else ""

def srd(d, lo, size, add=None, stride=0):
    if add is None:
        I(f"s_mov_b32 s{d}, s{lo}")
        I(f"s_mov_b32 s{d+1}, s{lo+1}" if not stride else f"s_or_b32 s{d+1}, s{lo+1}, {stride << 16:#x}")
    else:
        I(f"s_add_u32 s{d}, s{lo}, {add}")
        I(f"s_addc_u32 s{d+1}, s{lo+1}, 0")
    I(f"s_mov_b32 s{d+2}, {size}")
    I(f"s_mov_b32 s{d+3}, 0x20000")

def wave_scan(v, fill=None, half=False):
    def gap():
        if fill and len(fill) >= 2:
            I(fill.pop(0)); I(fill.pop(0))
        else: I("s_nop 1")
    for sh in (1, 2, 4, 8):
        gap()
        I(f"v_add_u32_dpp v{v}, v{v}, v{v} row_shr:{sh} row_mask:0xf bank_mask:0xf bound_ctrl:0")
    gap()
    I(f"v_add_u32_dpp v{v}, v{v}, v{v} row_bcast:15 row_mask:0xa bank_mask:0xf")
    if half: return
    gap()
    I(f"v_add_u32_dpp v{v}, v{v}, v{v} row_bcast:31 row_mask:0xc bank_mask:0xf")

TAB, ZROW, CNT, FLAG = 0, 512, 576, 640
HIST = 1024
ESTG = HIST + 4096
HIST1 = ESTG
EARLY = ESTG + 8192
LWB = 288 * 4
R0 = EARLY + 32768
R1 = R0 + 16 * LWB
XSTG = R1 + 16 * LWB
XI = 1056
SLOT = 4 * XI
OWN = XSTG + 8 * SLOT
PL = 52 * 128 + 32
WR = 160
WUI = OWN + 4 * PL
MAP = WUI + 64 * WR
HDR = MAP + 1024
PRG = HDR + 1024
NT = PRG + 2048
LDS = NT + 1024
WBI, WVI, WCI = EARLY, EARLY + 64 * WR, EARLY + 128 * WR
WAI = XSTG + 8192
LROW = 160
CIMG = R0
assert CIMG + 256 * LROW <= WAI and LDS <= 163840, LDS
BIAS = 8192
assert R1 < 65536 and R0 % 256 == 0 and R1 % 256 == 0
W2 = f"offset0:{(R0-BIAS)//256} offset1:{(R1-BIAS)//256}"

vWB, vWV, vCA, vACC = 0, 32, 64, 96
vX, vEO, vS = 160, 176, 184
vP, vQ, vR = 188, 204, 220
vQD = 236
vEI, vCH, vONE, vCP, vAX, vcEO, vcS, vARX, vARE, vARO, vARS, vEA = 240, 241, 242, 243, 244, 245, 246, 247, 248, 249, 250, 251
lane, vTS, tid = 253, 254, 255
vC1, vIDX, vPA = lane, tid, vcS
DEN = lambda w, n: vACC + 32 * w + 4 * n
NUM = lambda w, n: vACC + 32 * w + 16 + 4 * n
def m16(d, a, b, c=None):
    return f"v_mfma_f32_16x16x32_bf16 {rr(d,4)}, {rr(a,4)}, {rr(b,4)}, " + ("0" if c is None else rr(c, 4))
def s16(d, b): return f"v_smfmac_f32_16x16x64_bf16 {rr(d,4)}, {rr(vS,4)}, {rr(b,8)}, v{vIDX}"

sWP, sW, sB, sK = 3, 4, 5, 6
sWIN, sF0, sF1, sL = 7, 8, 9, 12
sA, sBt = 10, 11
sSTG, sES, s128 = 13, 14, 15
pX, pE, pSRC, pDST, pWA, pWB, pWC, pWU, pWV, pOUT, pDBG, pWS = 16, 18, 20, 22, 24, 26, 28, 30, 32, 34, 36, 38
sT, sN, sFM, sMORE, sSKIP, sXT, sWS0, sWS1, sB0E, sSH = 16, 17, 18, 19, 20, 21, 22, 23, 24, 25
sCI, sCUR, sR0, sCNT, sST, sEND = 26, 27, 28, 29, 30, 31
sMSK = 32
sTM = 34
sX, sEP, sOUT, sWS, sCEL, sD2 = 40, 44, 48, 52, 56, 60
sM = 64
sJ3, sEM = 96, 98
sSP = 100
sHF = 99
sSG, sRM = 101, 96

TS = opt("ts", 0)
STN = []
YP = opt("yp", "")
def stamp(i):
    if str(i) in YP.split("_"):
        k = YP.split("_").index(str(i))
        I(f"s_cmp_lt_u32 s{sWP}, 4")
        I(f"s_cbranch_scc1 L_YP{k}")
        I(f"s_setprio {1 - (k & 1)}")
        L(f"L_YP{k}")
    if not TS: return
    if isinstance(i, str) and i[0] not in opt("tsx", ""): return
    STN.append(str(i)); i = len(STN) - 1
    I("s_memrealtime vcc" if TS == 1 else "s_memtime vcc")
    I("s_waitcnt lgkmcnt(0)")
    I(f"v_writelane_b32 v{vTS}, vcc_lo, {i}")
def stamp_out():
    if not TS: return
    I("s_waitcnt vmcnt(0)")
    stamp(15)
    I("s_memtime vcc")
    I("s_waitcnt lgkmcnt(0)")
    I(f"v_writelane_b32 v{vTS}, vcc_lo, 58")
    I(f"v_writelane_b32 v{vTS}, s{sN}, 59")
    I(f"v_writelane_b32 v{vTS}, s{sSP}, 60")
    I("s_getreg_b32 s10, hwreg(HW_REG_XCC_ID)")
    I(f"v_writelane_b32 v{vTS}, s10, 55")
    I("s_lshl_b32 s10, s2, 3")
    I(f"s_add_u32 s10, s10, s{sWP}")
    I("s_lshl_b32 s10, s10, 8")
    I(f"s_add_u32 s10, s10, {WS_TS}")
    I(f"v_lshl_add_u32 v{vP}, v{lane}, 2, s10")
    I(f"global_store_dword v{vP}, v{vTS}, {sp(pWS)}")
def cstamp(i):
    if not TS: return
    I("s_memtime vcc")
    I("s_waitcnt lgkmcnt(0)")
    I(f"v_writelane_b32 v{vTS}, vcc_lo, {i}")

LD_P = opt("ldp", "nt")
XP, EP, OP = opt("xp", ""), opt("ep", ""), opt("op", "sc1")
STP = opt("stp", "sc1")
MG = opt("mg", 1)
JE = opt("je", 4 if MG else 2)
EMASK = ((1 << JE) - 1) * 0x01010101
DCH = CH + 1024
SDW = "dst_sel:DWORD dst_unused:UNUSED_PAD"

def dma_tile():
    r = []
    for i in range(4):
        r.append(f"s_add_u32 m0, s{sSTG}, {i*XI}")
        r.append(f"v_mad_u32_u16 v{vQD+i}, v{vQD+i}, s{s128}, v{vCP}")
        r.append(f"buffer_load_dwordx4 v{vQD+i}, {sq(sX)}, 0 offen{pol(XP)} lds")
    r.append(f"s_mov_b32 m0, s{sES}")
    r.append(f"v_and_b32 v{vEI}, 0xfffff, v{vEI}")
    r.append(f"buffer_load_dwordx4 {rr(vEI,2)}, {sq(sEP)}, 0 idxen offen{pol(EP)} lds")
    return r

ORD = [(0, 0), (1, 0), (0, 1), (1, 1)]
def xread(m, s): return f"ds_read_b128 {rr(vX+8*m+4*s,4)}, v{vAX} offset:{512*m + 64*s}"
def g_mfmas(D, ft, w):
    g = [m16(D+8*n+4*m, vEO+4*m, vCA+16*w+8*ft+4*n) for m in range(2) for n in range(2)]
    g += [m16(D+8*n+4*m, vX+8*m+4*s, vWB+16*ft+8*n+4*s, D+8*n+4*m) for m, s in ORD for n in range(2)]
    return g
def h_mfmas(ft):
    return [m16(vQ+8*n+4*m, vX+8*m+4*s, vWV+16*ft+8*n+4*s, None if s == 0 else vQ+8*n+4*m) for m, s in ORD for n in range(2)]
def s_num(w, ft): return [s16(NUM(w, 2*ft+n), vQ+8*n) for n in range(2)]
def s_den(w, ft, G): return [s16(DEN(w, 2*ft+n), G+8*n) for n in range(2)]

def eafix():
    return [f"v_bfi_b32 v{vEA+m}, 31, v{vcEO}, v{vEA+m}" for m in range(2)] + [f"v_max_u32 v{vEA}, v{vEA}, v{vcEO}", f"v_max_u32 v{vEA+1}, v{vEA+1}, v{vC1}"]
LV = [int(c, 16) for c in opt("lv", "015a")]
PAT = opt("pat", "1" * 11 + "5")
FAIR = opt("fair", 1)
F2 = opt("f2", 0)
BST = opt("bst", 10)
LNG = opt("lng", 1)
ASL = [int(x) for x in opt("asl", "12_13_14_18").split("_")]
LLV = [int(x) for x in opt("llv", "0_2_12_26").split("_")]
LLP_ = opt("llp", "0003_1113").split("_")
def add1(q): return f"v_mfma_f32_4x4x4_16b_bf16 {rr(q,4)}, {rr(vONE,2)}, {rr(vONE,2)}, {rr(q,4)}"
def long_sec(mf, G, regs, slots, cp):
    r = []; k = 0
    tr = [f"v_exp_f32 v{G+i}, v{G+i}" for i in regs] + [f"v_rcp_f32 v{G+i}, v{G+i}" for i in regs]
    for i, x in enumerate(tr):
        if i in LLV:
            j = LLV.index(i)
            if j == 0 or LLP_[cp][j] != LLP_[cp][j-1]: r.append(f"s_setprio {LLP_[cp][j]}")
        if i in slots: r.append(add1(G + regs[4*slots.index(i)]))
        elif k < len(mf): r += mf[k]; k += 1
        r.append(x)
    assert k == len(mf)
    return r
def phase(par, ft, cp=0):
    G, Go = (vP, vR) if ft == 0 else (vR, vP)
    nf = 1 - ft
    wn = par if ft == 0 else par ^ 1
    wp = par ^ 1 if ft == 0 else par
    s1 = [[x] for x in s_num(wp, nf) + h_mfmas(ft) + s_den(wp, nf, Go)]
    s2 = [[x] for x in g_mfmas(Go, nf, wn)]
    if ft == 0:
        o = par * LWB
        s1[0] += [f"ds_read_u16 v{vQD+u}, v{vARS} offset:{o + 16*u}" for u in range(2)]
        s1[8] += ["s_waitcnt lgkmcnt(0)"] + [f"v_bfi_b32 v{vQD+u}, 31, v{vcS}, v{vQD+u}" for u in range(2)]
        if FAIR and (par == 0 or not F2):
            s1[0] += [f"ds_add_rtn_u32 v{vQD+2}, v{vPA}, v{vIDX}"]
            s1[8] += [f"v_readfirstlane_b32 s{sRM}, v{vQD+2}"]
            s2[1] += [f"s_ashr_i32 s{sRM}, s{sRM}, 24", f"s_mul_i32 s{sRM}, s{sRM}, s{sSG}"]
        o1 = 128 if par else LWB
        s2[0] += [f"ds_read_b64_tr_b16 {rr(vS+2*u,2)}, v{vQD+u}" for u in range(2)]
        s2[0] += [f"ds_read_u16 v{vEA+m}, v{vARO} offset:{o1 + 64*m}" for m in range(2)]
        s2[6] += ["s_waitcnt lgkmcnt(0)"] + eafix()
        s2[6] += [f"ds_read_b128 {rr(vQD,4)}, v{vARX} offset:{o + 128}", f"ds_read_b32 v{vEI}, v{vARE} offset:{o + 128}",
                  f"s_add_u32 s{sT}, s{sT}, 1"]
        if par: s2[7] += [f"v_add_u32 v{r}, 0x80, v{r}" for r in (vARX, vARE, vARO, vARS)]
    else:
        s1[2] = ["s_waitcnt vmcnt(0)"] + [f"ds_read_b128 {rr(vEO+4*m,4)}, v{vEA+m}" for m in range(2)] + s1[2]
        for i, (m, s) in enumerate(ORD): s1[3+2*i].append(xread(m, s))
        s2[0] = ["s_waitcnt lgkmcnt(4)"] + s2[0]
        for i in range(4): s2[4+2*i] = [f"s_waitcnt lgkmcnt({3-i})"] + s2[4+2*i]
        DSP = opt("dsp", "")
        if DSP:
            d = dma_tile(); first = min(int(c, 16) for c in DSP)
            for i in range(4): s2[4+2*i] = s2[4+2*i][1:] if 4+2*i > first else s2[4+2*i]
            s2[first] = ["s_waitcnt lgkmcnt(0)"] + [x for x in s2[first] if not x.startswith("s_waitcnt")]
            for k, c in enumerate(DSP): s2[int(c, 16)] += d[3*k:3*k+3]
        tgt = f"L_CE{par}{cp}" if opt("cpe", 0) else f"L_ND{par}{cp}"
        if not DSP: s2[10] += [f"s_cmp_lt_u32 s{sT}, s{sN}", f"s_cbranch_scc0 {tgt}"] + dma_tile() + [f"L_ND{par}{cp}:"]
    def sec(mf, op):
        r = []; k = 0
        for i, m in enumerate(mf):
            if opt("lvp", ""):
                lv = opt("lvp", "").split("_")[cp]
                if i in LV:
                    k_ = LV.index(i)
                    if k_ == 0 or lv[k_] != lv[k_-1]: r.append(f"s_setprio {lv[k_]}")
            elif FAIR:
                if i == 0: r.append(f"s_setprio {cp}")
                if i == BST: r.append("s_setprio 3")
            elif i in LV: r.append(f"s_setprio {LV.index(i)}")
            r += m
            for _ in range(int(PAT[i])):
                r.append(f"{op} v{G+k}, v{G+k}"); k += 1
        assert k == 16
        return r
    r = []
    if opt("tt", 0) and ft == 0:
        r += ["s_memrealtime vcc", "s_memtime s[10:11]", f"s_add_u32 m0, s{sT}, 17", "s_waitcnt lgkmcnt(0)", f"v_writelane_b32 v{vTS}, vcc_lo, m0",
              f"s_add_u32 m0, s{sT}, 35", "s_nop 0", f"v_writelane_b32 v{vTS}, s10, m0"]
    if LNG:
        r += long_sec(s1 + s2, G, list(range(16)), ASL, cp)
        return r + [f"v_pk_mul_f32 {rr(vQ+2*i,2)}, {rr(G+2*i,2)}, {rr(vQ+2*i,2)}" for i in range(8)]
    r += sec(s1, "v_exp_f32")
    r += [f"v_pk_add_f32 {rr(G+2*i,2)}, {rr(G+2*i,2)}, 1.0 op_sel_hi:[1,0]" for i in range(8)]
    r += sec(s2, "v_rcp_f32")
    r += [f"v_pk_mul_f32 {rr(vQ+2*i,2)}, {rr(G+2*i,2)}, {rr(vQ+2*i,2)}" for i in range(8)]
    return r

def last_tile(par, half, epi=None, only_b=False):
    keep = (lambda x: int(re.match(r"\S+ v\[(\d+)", x).group(1)) % 8 == (vP % 8)) if half else (lambda x: True)
    regs = [k for k in range(16) if not (half and k & 4)]
    def sec(mf, op, G):
        r = [f"s_setprio {opt('lpr', 0)}"]; k = 0
        tail = min(len(regs), 4 if half else 5)
        for i, m in enumerate(mf):
            if i == len(mf) - 1: r.append("s_setprio 3")
            r += m
            e_ = (len(regs) - tail) * (i + 1) // (len(mf) - 1) if i < len(mf) - 1 else len(regs)
            while k < e_:
                r.append(f"{op} v{G+regs[k]}, v{G+regs[k]}"); k += 1
        while k < len(regs):
            r.append(f"{op} v{G+regs[k]}, v{G+regs[k]}"); k += 1
        return r
    r = []
    for ft in range(1 if only_b else 0, 2):
        G, Go = (vP, vR) if ft == 0 else (vR, vP)
        wp = par ^ 1 if ft == 0 else par
        s1 = [[x] for x in s_num(wp, 1-ft) + [h for h in h_mfmas(ft) if keep(h)] + s_den(wp, 1-ft, Go)]
        s2 = [[x] for x in g_mfmas(Go, 1, par) if keep(x)] if ft == 0 else []
        if ft == 0:
            s1[0] += [f"ds_read_u16 v{vQD+u}, v{vARS} offset:{par*LWB + 16*u}" for u in range(2)]
            s1[-2] += ["s_waitcnt lgkmcnt(0)"] + [f"v_bfi_b32 v{vQD+u}, 31, v{vcS}, v{vQD+u}" for u in range(2)]
            s2[0] += [f"ds_read_b64_tr_b16 {rr(vS+2*u,2)}, v{vQD+u}" for u in range(2)]
        else:
            s1[0] = ["s_waitcnt lgkmcnt(0)"] + s1[0]
            if epi:
                a1, a2, a3 = epi
                r += [f"s_cmp_lg_u32 s{sMORE}, 0", f"s_cbranch_scc1 L_LB{par}"]
                n_ = len(s1) - 3
                for k in range(n_): s1[k] += a1[len(a1)*k//n_:len(a1)*(k+1)//n_]
                s1[-3] += a2[:len(a2)//2]; s1[-2] += a2[len(a2)//2:]
                s2 = [list(x) for x in a3]
        r += sec(s1, "v_exp_f32", G)
        r += [f"v_pk_add_f32 {rr(G+k,2)}, {rr(G+k,2)}, 1.0 op_sel_hi:[1,0]" for k in regs[::2]]
        r += sec(s2, "v_rcp_f32", G)
        r += [f"v_pk_mul_f32 {rr(vQ+k,2)}, {rr(G+k,2)}, {rr(vQ+k,2)}" for k in regs[::2]]
    return r + s_den(par, 1, vR) + s_num(par, 1)

def isize(x):
    op = x.split()[0]
    if x.endswith(":"): return 0
    if op in ("v_exp_f32", "v_rcp_f32", "v_max_u32", "v_readfirstlane_b32"): return 4
    if op.startswith("s_"):
        m = re.search(r", (0x[0-9a-f]+|\d+)$", x)
        return 8 if (m and op not in ("s_setprio", "s_nop", "s_waitcnt") and int(m.group(1), 0) > 64) else 4
    return 8
def align8(body, mode):
    body = list(body); run = []; r = []
    for x in body:
        z = isize(x)
        if z == 8:
            if sum(isize(r[i]) for i in run) % 8:
                c = [i for i in run if r[i].split()[0] in ("v_exp_f32", "v_rcp_f32", "v_max_u32")]
                if c: r[c[-1]] = r[c[-1]].replace(" ", "_e64 ", 1); run = []
                elif mode == 2: r.append("s_nop 0"); run = []
                else: run = [i for i in run if isize(r[i])][:1]
            else: run = []
            r.append(x)
        else:
            run.append(len(r)); r.append(x)
    return r

def listaddr(t0):
    I(f"v_lshrrev_b32 v{t0}, 3, v{lane}")
    I(f"v_lshl_add_u32 v{vARX}, v{t0}, 4, s{sL}")
    I(f"s_add_u32 s10, s{sL}, {R1-R0}")
    I(f"v_lshrrev_b32 v{t0}, 1, v{lane}")
    I(f"v_lshl_add_u32 v{vARE}, v{t0}, 2, s10")
    I(f"s_add_u32 s10, s10, 2")
    I(f"v_and_b32 v{t0}, 48, v{lane}")
    I(f"v_lshl_add_u32 v{vARS}, v{t0}, 1, s10")
    I(f"v_and_b32 v{t0}, 12, v{lane}")
    I(f"v_add_u32 v{vARS}, v{vARS}, v{t0}")
    I(f"v_lshrrev_b32 v{t0}, 5, v{lane}")
    I(f"v_mul_u32_u24 v{vARO}, {R1-R0}, v{t0}")
    I(f"v_and_b32 v{t0}, 15, v{lane}")
    I(f"v_lshl_add_u32 v{vARO}, v{t0}, 2, v{vARO}")
    I(f"s_add_u32 s10, s{sL}, 2")
    I(f"v_add_u32 v{vARO}, s10, v{vARO}")

def prefill(t):
    for d in range(2): I(f"v_mov_b64 {rr(t+2*d,2)}, 0")
    for d in range(4): I(f"v_mov_b32 v{t+4+d}, {(ZROW << 16) | 0xfffff:#x}")
    I(f"v_lshl_add_u32 v{t+8}, v{lane}, 4, s{sL}")
    for o in (0, 1024, 2*LWB - 1024):
        I(f"ds_write_b128 v{t+8}, {rr(t,4)} offset:{o}")
        I(f"ds_write_b128 v{t+8}, {rr(t+4,4)} offset:{o + R1 - R0}")

def kernel():
    emit(f"""
.globl {NAME}_kernel
.p2align 8
.type {NAME}_kernel,@function
{NAME}_kernel:""")
    FH = opt("fh", 1)
    vD, vSR, vT16 = vACC + 32, vACC, vR + 12
    if TS and opt("tz", 0): I("s_memrealtime s[96:97]")
    I("s_load_dwordx16 s[16:31], s[0:1], 0")
    I("s_load_dwordx8 s[32:39], s[0:1], 64")
    CPN = opt("cpn", 8)
    if opt("cpf", 1):
        I(f"s_getpc_b64 {sp(sM)}")
        L("L_PC")
        if CPN == 8: I("s_and_b32 s3, s2, -8")
        else:
            I("s_lshr_b32 s3, s2, 3")
            I(f"s_and_b32 s3, s3, {256//CPN - 1}")
            I(f"s_mul_i32 s3, s3, {CPN}")
        I("v_add_lshl_u32 v1, v0, s3, 7")
        I("v_min_u32 v1, L_LAST-L_PC, v1")
        I(f"v_cmpx_gt_u32 vcc, {CPN}, v0")
        I("s_cbranch_execz L_NOCPF")
        I(f"global_load_dword v{vEA}, v1, {sp(sM)}")
        L("L_NOCPF")
        I("s_mov_b64 exec, -1")
    I("s_cmp_ge_u32 s2, 256")
    I("s_cbranch_scc1 L_END")
    if FH:
        I(f"s_mul_i32 s{sA}, s2, {CH*4}")
        I(f"v_lshl_add_u32 v1, v0, 4, s{sA}")
        I(f"s_add_u32 s{sBt}, s{sA}, {CH*4}")
        I(f"s_min_u32 s{sBt}, s{sBt}, {E*4}")
        BAL = opt("bal", 0)
        if BAL:
            I(f"s_add_u32 s{sA}, s{sA}, 0x2000")
            I(f"v_lshl_add_u32 v2, v0, 3, s{sA}")
            I(f"s_add_u32 s{sA}, s{sA}, 0x1000")
            I(f"v_lshl_add_u32 v3, v0, 2, s{sA}")
            I(f"v_cmp_gt_u32 {sp(sM+6)}, s{sBt}, v2")
            I(f"v_min_u32 v2, {E*4 - 8}, v2")
        else: I("v_add_u32 v2, 0x2000, v1")
        I("s_waitcnt lgkmcnt(0)")
        if TS and opt("tz", 0): I("s_memrealtime s[98:99]")
        I(f"global_load_dwordx4 {rr(vD,4)}, v1, {sp(pDST)}{pol(LD_P)}")
        if BAL:
            I(f"global_load_dwordx2 {rr(vD+4,2)}, v2, {sp(pDST)}{pol(LD_P)}")
            I(f"global_load_dwordx4 {rr(vSR,4)}, v1, {sp(pSRC)}{pol(LD_P)}")
            I(f"global_load_dwordx2 {rr(vSR+4,2)}, v2, {sp(pSRC)}{pol(LD_P)}")
            I(f"v_cmpx_gt_u32 {sp(sM+28)}, s{sBt}, v3")
            I("s_cbranch_execz L_NO7")
            I(f"global_load_dword v{vD+6}, v3, {sp(pDST)}{pol(LD_P)}")
            I(f"global_load_dword v{vSR+6}, v3, {sp(pSRC)}{pol(LD_P)}")
        else:
            I(f"global_load_dwordx4 {rr(vSR,4)}, v1, {sp(pSRC)}{pol(LD_P)}")
            def group2():
                I(f"v_cmpx_gt_u32 {sp(sM+6)}, s{sBt}, v2")
                I("s_cbranch_execz L_NO8")
                I(f"global_load_dwordx4 {rr(vD+4,4)}, v2, {sp(pDST)}{pol(LD_P)}")
                I(f"global_load_dwordx4 {rr(vSR+4,4)}, v2, {sp(pSRC)}{pol(LD_P)}")
                L("L_NO8")
                I("s_mov_b64 exec, -1")
            G2 = opt("g2", 0)
            if G2 == 0: group2()
        L("L_NO7")
        I("s_mov_b64 exec, -1")
        KV = opt("kv", 0)
        if KV:
            I("v_mov_b32 v1, 0")
            I(f"global_load_dword v{vEA+1}, v1, {sp(pWS)}")
        else: I(f"s_load_dword s{sK}, {sp(pWS)}, 0")
        if opt("tlb", 0):
            I("v_lshlrev_b32 v1, 20, v0")
            I(f"v_add_u32 v1, {WS_CELL + XOFF - 448*(1 << 20) & 0xffffffff:#x}, v1")
            I("v_subrev_u32 v2, 448, v0")
            I("v_cmpx_gt_u32 vcc, 9, v2")
            I("s_cbranch_execz L_NOTLB")
            I(f"global_load_dword v{vEA+1}, v1, {sp(pWS)}")
            L("L_NOTLB")
            I("s_mov_b64 exec, -1")
    if TS: I(f"v_mov_b32 v{vTS}, 0")
    u = lambda i: vP + i
    if TS and opt("tz", 0):
        I("s_waitcnt lgkmcnt(0)")
        I(f"v_writelane_b32 v{vTS}, s96, 0")
        I(f"v_writelane_b32 v{vTS}, s98, 1")
        STN.extend(["z", "k"])
    stamp(0)
    vBK, vRK1, vID, vHA, vIC = vACC + 8, vACC + 16, vACC + 24, vACC + 40, vACC + 48
    vRW = vX
    one, l16 = vS, vS + 1
    vOA, vT16, sOW = vR + 14, vR + 12, 101
    I(f"v_mov_b32 v{tid}, v0")
    I(f"v_lshrrev_b32 v{u(0)}, 6, v0")
    I(f"v_and_b32 v{lane}, 63, v0")
    I(f"v_readfirstlane_b32 s{sWP}, v{u(0)}")
    I(f"v_lshlrev_b32 v{vT16}, 4, v0")
    I(f"v_lshlrev_b32 v{u(2)}, 3, v0")
    I(f"v_lshlrev_b32 v{u(3)}, 2, v0")
    I(f"v_and_b32 v{u(4)}, 0x3fc, v{u(3)}")
    if not FH:
        I(f"s_mul_i32 s{sA}, s2, {CH*4}")
        I(f"s_sub_u32 s{sBt}, {E*4}, s{sA}")
        I(f"s_min_u32 s{sBt}, s{sBt}, {CH*4}")
    I(f"s_and_b32 s{sB}, s2, 7")
    I(f"s_lshr_b32 s{sW}, s2, 3")
    I(f"s_lshl_b32 s{sB}, s{sB}, 5")
    I(f"s_add_u32 s{sB}, s{sB}, s{sW}")
    I(f"s_mul_i32 s{sF1}, s{sB}, {BN}")
    I(f"s_cmp_eq_u32 s{sWP}, 7")
    I(f"s_cselect_b32 s{sOW}, 0, s{sWP}")
    I(f"s_lshl_b32 s{sL}, s{sOW}, 5")
    I(f"s_add_u32 s{sF1}, s{sF1}, s{sL}")
    I(f"v_lshrrev_b32 v{u(5)}, 3, v{lane}")
    I(f"v_lshl_add_u32 v{u(5)}, v{u(5)}, 2, s{sF1}")
    I(f"v_and_b32 v{vCP}, 7, v{lane}")
    I(f"v_lshlrev_b32 v{vCP}, 4, v{vCP}")
    I(f"v_lshl_add_u32 v{vOA}, v{u(5)}, 7, v{vCP}")
    I(f"s_lshl_b32 s{sOW}, s{sOW}, 10")
    I(f"s_add_u32 s{sOW}, s{sOW}, {OWN}")
    if not FH:
        I(f"s_movk_i32 s{sF0}, 0x2000")
        I("s_waitcnt lgkmcnt(0)")
        I(f"s_load_dword s{sK}, {sp(pWS)}, 0")
        srd(sCEL, pDST, f"s{sBt}", f"s{sA}")
        srd(sD2, pSRC, f"s{sBt}", f"s{sA}")
        I(f"buffer_load_dwordx4 {rr(vD,4)}, v{vT16}, {sq(sCEL)}, 0 offen{pol(LD_P)}")
        I(f"buffer_load_dwordx4 {rr(vSR,4)}, v{vT16}, {sq(sD2)}, 0 offen{pol(LD_P)}")
        I(f"s_cmp_ge_u32 s{sWP}, 5")
        I("s_cbranch_scc1 L_NO7")
        I(f"buffer_load_dwordx4 {rr(vD+4,4)}, v{vT16}, {sq(sCEL)}, s{sF0} offen{pol(LD_P)}")
        I(f"buffer_load_dwordx4 {rr(vSR+4,4)}, v{vT16}, {sq(sD2)}, s{sF0} offen{pol(LD_P)}")
        L("L_NO7")
    for d in range(2): I(f"v_mov_b64 {rr(u(8)+2*d,2)}, 0")
    I(f"v_mov_b32 v{u(6)}, {33*JE if MG else 0}")
    I(f"ds_write2st64_b32 v{u(4)}, v{u(6)}, v{u(8)} offset0:{HIST1//256} offset1:{HIST1//256+4}")
    I(f"v_add_u32 v{u(5)}, {CIMG}, v{vT16}")
    if G2 == 1: group2()
    for k in range(5): I(f"ds_write_b128 v{u(5)}, {rr(u(8),4)} offset:{8192*k}")
    if G2 == 2: group2()
    PF = opt("pf", 0)
    def w_loads():
        I(f"s_cmp_ge_u32 s{sWP}, 2")
        I("s_cbranch_scc1 L_NOC")
        I(f"global_load_dwordx4 {rr(vEO,4)}, v{vT16}, {sp(pWC)}")
        L("L_NOC")
        for k, p in enumerate((pWB, pWV, pWA, pWU)):
            I(f"global_load_dwordx4 {rr(vRW+4*k,4)}, v{vT16}, {sp(p)}")
    def own_loads():
        I(f"s_cmp_eq_u32 s{sWP}, 6")
        I("s_cselect_b32 exec_hi, 0, -1")
        I(f"s_cmp_eq_u32 s{sWP}, 7")
        I("s_cselect_b64 exec, 1, exec")
        for k in range(4):
            I(f"s_add_u32 m0, s{sOW}, {(PL-128)*k}")
            I("s_nop 0")
            I(f"buffer_load_dwordx4 v{vOA}, {sq(sX)}, 0 offen offset:{128*k}{pol(opt('owp', ''))} lds")
        I("s_mov_b64 exec, -1")
        if PF:
            assert PF <= 512
            I(f"s_lshr_b32 s{sTM+1}, s2, 3")
            I(f"s_mul_i32 s{sTM}, s{sTM+1}, {PF*128}")
            I(f"v_min_u32 v{vEA+1}, {PF-1}, v{tid}")
            I(f"v_lshlrev_b32 v{vEA+1}, 7, v{vEA+1}")
            I(f"buffer_load_dword v{vEA+1}, v{vEA+1}, {sq(sX)}, s{sTM} offen")
    LLP = 2
    OLP = opt("olp", 2)
    NY = 0
    srd(sEP, pE, E, stride=32)
    srd(sOUT, pOUT, N*128)
    srd(sX, pX, N*128)
    OY = 0
    if OLP == 3:
        OW0 = opt("ow0", 5); nw = 8 - OW0; per = -(-28 // nw); OY = per
        I(f"s_cmp_lt_u32 s{sWP}, {OW0}")
        I("s_cbranch_scc1 L_NOOWN")
        I(f"s_mul_i32 s{sF1}, s{sB}, {BN}")
        I(f"v_lshrrev_b32 v{vOA}, 3, v{lane}")
        I(f"v_lshl_add_u32 v{vOA}, v{vOA}, 2, s{sF1}")
        I(f"v_lshl_add_u32 v{vOA}, v{vOA}, 7, v{vCP}")
        I(f"s_sub_u32 s{sF0}, s{sWP}, {OW0}")
        for k in range(per):
            I(f"s_add_u32 s{sF1}, s{sF0}, {nw*k}")
            I(f"s_min_u32 s{sF1}, s{sF1}, 27")
            I(f"s_and_b32 s{sL}, s{sF1}, 3")
            I(f"s_lshr_b32 s{sF1}, s{sF1}, 2")
            I(f"s_mul_i32 s{sOW}, s{sL}, {PL}")
            I(f"s_lshl_b32 s{sL}, s{sL}, 7")
            I(f"s_cmp_eq_u32 s{sF1}, 6")
            I("s_cselect_b32 exec_hi, 0, -1")
            I(f"s_lshl_b32 s{sF1}, s{sF1}, 10")
            I(f"s_add_u32 s{sOW}, s{sOW}, s{sF1}")
            I(f"s_add_u32 m0, s{sOW}, {OWN}")
            I(f"s_lshl2_add_u32 s{sL}, s{sF1}, s{sL}")
            I(f"buffer_load_dwordx4 v{vOA}, {sq(sX)}, s{sL} offen lds")
        I("s_mov_b32 exec_hi, -1")
        L("L_NOOWN")
    srd(sWS, pWS, WS_USED)
    I(f"s_lshl_b32 s{sL}, s2, 7")
    I(f"s_add_u32 s{sL}, s{sL}, {WS_CELL}")
    srd(sCEL, pWS, 255*RS + XOFF + 128, f"s{sL}")
    cM, cN, cP, cPM, cR = sM, sM + 1, sM + 2, sM + 3, sM + 4
    m2 = sM + 6
    I(f"s_mov_b32 s{cM}, 85599")
    I(f"s_mov_b32 s{cN}, {-BN & 0xffffffff}")
    I(f"s_movk_i32 s{cP}, 5368")
    I(f"s_mov_b32 s{cPM}, {opt('phm', 3) << 26:#x}")
    I(f"s_mov_b32 s{cR}, {RS}")
    I(f"s_mov_b32 s{sSP}, {-(196*5368) & 0xffffffff:#x}")
    for i in range(4): I(f"v_add_u32 v{vID+i}, {i}, v{u(3)}")
    I(f"s_lshl_b32 s{sA}, s{sWP}, 28")
    I(f"s_or_b32 s{sA}, s{sA}, 0x20000")
    I(f"v_mov_b32 v{vIC}, s{sA}")
    if BAL:
        assert MG <= 1 and OLP != 3
        I(f"s_lshr_b32 s{sA}, s{sWP}, 1")
        I(f"s_lshl_b32 s{sA}, s{sA}, 28")
        I(f"s_or_b32 s{sA}, s{sA}, 0x80020000")
        I(f"v_mov_b32 v{vIC+1}, s{sA}")
        I(f"v_mov_b32 v{vIC+3}, 0xc0020000")
        I(f"v_lshlrev_b32 v{vID+4}, 1, v{tid}")
        I(f"v_add_u32 v{vID+5}, 1, v{vID+4}")
        I(f"v_mov_b32 v{vID+6}, v{tid}")
    else: I(f"v_or_b32 v{vIC+1}, 0x80000000, v{vIC}")
    idr = (lambda i: vID + i) if BAL else (lambda i: vID + (i & 3))
    icr = (lambda i: vIC + (3 if i == 6 else i >> 2)) if BAL else (lambda i: vIC + (i >> 2))
    NR = 7 if BAL else 8
    I(f"v_mov_b32 v{one}, 33")
    vK1 = vIC + 2
    I(f"v_mov_b32 v{vK1}, 0x400")
    if not FH:
        I(f"s_sub_u32 s{sBt}, s{sBt}, 0x2000")
        I(f"v_cmp_gt_u32 {sp(m2)}, s{sBt}, v{vT16}")
    I(f"s_and_b32 s{sA}, s{sWP}, 3")
    I(f"s_lshr_b32 s{sW}, s{sWP}, 2")
    I(f"s_lshl1_add_u32 s{sW}, s{sA}, s{sW}")
    if opt("swp", 1): I(f"s_xor_b32 s{sW}, s{sW}, 1")
    I(f"s_mul_i32 s{sA}, s{sW}, 49")
    I(f"s_sub_i32 s{sA}, s{sA}, 6")
    I(f"s_ashr_i32 s{sA}, s{sA}, 1")
    I(f"s_max_i32 s{sWIN}, s{sA}, 0")
    I(f"s_mul_i32 s{sSTG}, s{sW}, {SLOT}")
    I(f"s_add_u32 s{sSTG}, s{sSTG}, {XSTG}")
    I(f"s_lshl_b32 s{sES}, s{sW}, 10")
    I(f"s_add_u32 s{sES}, s{sES}, {ESTG}")
    I(f"s_mul_i32 s{sL}, s{sW}, {2*LWB}")
    I(f"s_add_u32 s{sL}, s{sL}, {R0}")
    I(f"s_movk_i32 s{s128}, 128")
    if G2 == 3: group2()
    I(f"v_bfe_u32 v{u(6)}, v{tid}, 4, 4")
    I(f"v_and_b32 v{u(7)}, 7, v{tid}")
    I(f"v_cmp_eq_u32 vcc, v{u(6)}, v{u(7)}")
    I(f"v_and_b32 v{u(6)}, 8, v{tid}")
    I(f"v_lshlrev_b32 v{u(6)}, 1, v{u(6)}")
    I(f"v_mov_b32 v{u(8)}, 0x3f80")
    I(f"v_lshlrev_b32 v{u(8)}, v{u(6)}, v{u(8)}")
    I(f"v_cndmask_b32 v{u(8)}, 0, v{u(8)}, vcc")
    I(f"ds_write_b32 v{u(4)}, v{u(8)} offset:{TAB}")
    I(f"v_mov_b64 {rr(u(8),2)}, 0")
    I(f"ds_write_b64 v{u(2)}, {rr(u(8),2)} offset:{HIST}")
    I(f"v_add_u32 v{u(6)}, {PRG}, v{u(3)}")
    I(f"ds_write_b32 v{u(6)}, v{u(8)}")
    go, lo, lo2, ha = vR, vR + 1, vR + 2, vR + 3
    wl, wal = vR + 4, vR + 5
    I(f"v_lshrrev_b32 v{ha}, 3, v{tid}")
    I(f"v_mad_u32_u24 v{go}, v{ha}, s{cR}, v{vCP}")
    I(f"v_mul_u32_u24 v{wl}, {LROW}, v{ha}")
    I(f"v_add_u32 v{lo}, v{wl}, v{vCP}")
    I(f"v_add_u32 v{lo}, {CIMG}, v{lo}")
    assert LROW == WR
    I(f"v_bfe_u32 v{u(6)}, v{tid}, 5, 1")
    I(f"v_bfe_u32 v{u(8)}, v{tid}, 6, 1")
    I(f"v_sub_u32 v{u(6)}, v{u(6)}, v{u(8)}")
    I(f"v_mul_i32_i24 v{u(6)}, {4*WR}, v{u(6)}")
    I(f"v_add_u32 v{wl}, v{wl}, v{u(6)}")
    I(f"v_lshl_add_u32 v{wl}, v{u(7)}, 2, v{wl}")
    I(f"v_add_u32 v{wl}, {WBI}, v{wl}")
    I(f"v_lshlrev_b32 v{l16}, 4, v{lane}")
    I(f"v_and_b32 v{u(6)}, 3, v{lane}")
    I(f"v_lshlrev_b32 v{vcS}, 3, v{u(6)}")
    I(f"v_bfe_u32 v{u(9)}, v{lane}, 2, 3")
    I(f"v_lshrrev_b32 v{u(8)}, 5, v{lane}")
    I(f"v_lshl_add_u32 v{u(9)}, v{u(8)}, 4, v{u(9)}")
    I(f"v_mul_u32_u24 v{wal}, {WR}, v{u(9)}")
    I(f"v_add_u32 v{wal}, v{wal}, v{vcS}")
    mm = lambda i: sM + 8 + 2*i
    def rank_a(rs, wsrc=0, plain=False):
        for i in rs: I(f"v_mul_u32_u24 v{vBK+i}, s{cM}, v{vD+i}")
        if rs[0] // 4 < MG and not plain:
            b = rs[0]
            for i in rs: I(f"v_lshrrev_b32 v{vHA+i}, 29, v{vBK+i}")
            if opt("px", 0):
                I(f"s_waitcnt vmcnt({wsrc})")
                for i in rs:
                    I(f"v_cmp_gt_u32 vcc, {opt('px', 0)}, v{vSR+i}")
                    I("s_nop 1")
                    I(f"v_cndmask_b32 v{vHA+i}, v{vHA+i}, v{vID+(i&3)}, vcc") if False else I(f"v_cndmask_b32_e64 v{vHA+i}, v{vHA+i}, {8+(i&3)}, vcc")
            t0, t1 = sM + 24, sM + 26
            I(f"v_cmp_eq_u32 {sp(mm(b))}, v{vHA+b}, v{vHA+b+1}")
            I(f"v_cmp_eq_u32 {sp(mm(b+2))}, v{vHA+b+2}, v{vHA+b+3}")
            I(f"v_cmp_eq_u32 vcc, v{vHA+b}, v{vHA+b+2}")
            I(f"v_cmp_eq_u32 {sp(t0)}, v{vHA+b+1}, v{vHA+b+3}")
            I(f"v_cmp_eq_u32 {sp(t1)}, v{vHA+b}, v{vHA+b+3}")
            I(f"v_cmp_eq_u32 {sp(sA)}, v{vHA+b+1}, v{vHA+b+2}")
            for i in rs: I(f"v_lshrrev_b32 v{vBK+i}, 24, v{vBK+i}")
            I(f"s_or_b64 {sp(mm(b+1))}, {sp(mm(b))}, {sp(t0)}")
            I(f"s_or_b64 {sp(mm(b+3))}, {sp(mm(b+2))}, {sp(t0)}")
            I(f"s_or_b64 {sp(mm(b))}, {sp(mm(b))}, vcc")
            I(f"s_or_b64 {sp(mm(b+2))}, {sp(mm(b+2))}, vcc")
            I(f"s_or_b64 {sp(mm(b))}, {sp(mm(b))}, {sp(t1)}")
            I(f"s_or_b64 {sp(mm(b+1))}, {sp(mm(b+1))}, {sp(sA)}")
            I(f"s_or_b64 {sp(mm(b+2))}, {sp(mm(b+2))}, {sp(sA)}")
            I(f"s_or_b64 {sp(mm(b+3))}, {sp(mm(b+3))}, {sp(t1)}")
            for i in rs:
                I(f"v_cndmask_b32 v{vHA+i}, 0, v{vK1}, {sp(mm(i))}")
                I(f"v_lshl_add_u32 v{vHA+i}, v{vBK+i}, 2, v{vHA+i}")
                I(f"ds_add_rtn_u32 v{vRK1+i}, v{vHA+i}, v{one} offset:{HIST1}")
            return
        for i in rs: I(f"v_lshrrev_b32 v{vBK+i}, 24, v{vBK+i}")
        for i in rs:
            I(f"v_lshlrev_b32 v{vHA+i}, 2, v{vBK+i}")
            I(f"ds_add_rtn_u32 v{vRK1+i}, v{vHA+i}, v{one} offset:{HIST1}")
    def again(rs, wait, em):
        for i in rs:
            I(f"s_waitcnt lgkmcnt({wait})")
            I(f"s_mov_b64 exec, {sp(mm(i))}")
            I(f"v_cmpx_le_u32 vcc, {33*JE}, v{vRK1+i}")
            I(f"ds_add_rtn_u32 v{vRK1+i}, v{vHA+i}, v{one} offset:{HIST1 - 1024}")
        I(f"s_mov_b64 exec, {em}")
    def rank_b(rs):
        for i in rs:
            I(f"v_mad_i32_i24 v{vD+i}, v{vBK+i}, s{cN}, v{vD+i}")
            I(f"v_mul_u32_u24 v{u(6)}, s{cP}, v{vSR+i}")
            I(f"v_lshl_or_b32 v{vSR+i}, v{vD+i}, 18, v{vSR+i}")
            if opt("rot", 1):
                I(f"v_and_b32 v{vD+i}, 0xe0, v{vBK+i}")
                I(f"v_mad_i32_i24 v{u(6)}, v{vD+i}, s{sSP}, v{u(6)}")
            I(f"v_and_or_b32 v{u(6)}, v{u(6)}, s{cPM}, v{icr(i)}")
            I(f"v_mad_u32_u24 v{vD+i}, v{vBK+i}, {LROW//4}, s{cN+4}")
            I(f"v_or_b32 v{vSR+i}, v{vSR+i}, v{u(6)}")
    def place(i, wait, em):
        I(f"s_waitcnt lgkmcnt({wait})")
        I(f"v_bfe_u32 v{u(6)}, v{vRK1+i}, 3, 5")
        I(f"v_add_lshl_u32 v{vD+i}, v{u(6)}, v{vD+i}, 2")
        I(f"v_and_b32 v{u(6)}, 3, v{u(6)}")
        I(f"v_mad_i32_i24 v{u(6)}, v{u(6)}, -3, v{vD+i}")
        I(f"v_cmpx_gt_u32 vcc, {33*CAP}, v{vRK1+i}")
        I(f"ds_write_b32 v{vD+i}, v{vSR+i}")
        I(f"ds_write_b8 v{u(6)}, v{idr(i)} offset:12")
        I(f"s_mov_b64 exec, {em}")
    I(f"s_movk_i32 s{cN+4}, {CIMG//4}")
    for d in range(2): I(f"v_mov_b64 {rr(vRK1+4+2*d,2)}, 0")
    I("s_waitcnt lgkmcnt(0)")
    I("s_barrier")
    if BAL:
        m3 = sM + 28
        I("s_waitcnt vmcnt(3)")
        stamp(1)
        if TS: STN.pop()
        rank_a(range(4))
        I("s_waitcnt vmcnt(2)")
        I(f"s_mov_b64 exec, {sp(m2)}")
        rank_a(range(4, 6))
        if MG: again(range(4), 5, "-1")
        else: I("s_mov_b64 exec, -1")
        I("s_waitcnt vmcnt(0)")
        rank_b(range(6))
        I(f"s_mov_b64 exec, {sp(m2)}")
        for i in range(4, 6): place(i, (1 if MG else -3) + i, sp(m2) if i < 5 else "-1")
        for i in range(4): place(i, 7 + i, "-1")
        I(f"s_mov_b64 exec, {sp(m3)}")
        I("s_cbranch_execz L_B1")
        rank_a([6]); rank_b([6]); place(6, 0, "-1")
        I("s_branch L_B1")
    I(f"s_cmp_eq_u64 {sp(m2)}, 0" if FH else f"s_cmp_ge_u32 s{sWP}, 5")
    I("s_cbranch_scc1 L_R4")
    I(f"s_waitcnt vmcnt({3+KV})")
    stamp(1)
    rank_a(range(4), 2)
    I(f"s_waitcnt vmcnt({1+KV})")
    I(f"s_mov_b64 exec, {sp(m2)}")
    rank_a(range(4, 8))
    if MG == 0:
        I("s_mov_b64 exec, -1")
        rank_b(range(4))
        for i in range(4): place(i, 7 + i, "-1" if i < 3 else sp(m2))
        I(f"s_waitcnt vmcnt({KV})")
        rank_b(range(4, 8))
        for i in range(4, 8): place(i, 7 + i, sp(m2) if i < 7 else "-1")
    elif MG == 1:
        again(range(4), 7, sp(m2))
        I(f"s_waitcnt vmcnt({KV})")
        rank_b(range(4, 8))
        for i in range(4, 8): place(i, 3 + i, sp(m2) if i < 7 else "-1")
        rank_b(range(4))
        for i in range(4): place(i, 11 + i, "-1")
    else:
        again(range(8), 7, "-1")
        rank_b(range(4))
        for i in range(4): place(i, 7 + i, "-1" if i < 3 else sp(m2))
        I(f"s_waitcnt vmcnt({KV})")
        rank_b(range(4, 8))
        for i in range(4, 8): place(i, 7 + i, sp(m2) if i < 7 else "-1")
    I("s_branch L_B1")
    L("L_R4")
    if OY:
        I(f"s_cmp_ge_u32 s{sWP}, {OW0}")
        I("s_cbranch_scc1 L_R4A")
        I(f"s_waitcnt vmcnt({KV})")
        L("L_R4A")
    I(f"s_waitcnt vmcnt({1 + OY + KV})")
    if TS: STN.pop()
    stamp(1)
    YM = opt("ym", 1)
    rank_a(range(4), plain=not YM)
    I(f"s_waitcnt vmcnt({OY + KV})")
    if MG and YM:
        rank_b(range(2))
        again(range(4), 3, "-1")
        rank_b(range(2, 4))
    else: rank_b(range(4))
    for i in range(4): place(i, 3 + i, "-1")
    L("L_B1")
    if BAL:
        k_ = max(i for i, l in enumerate(out) if l.strip() == "s_cbranch_execz L_B1")
        e_ = next(i for i in range(k_, len(out)) if out[i].strip() == "s_branch L_B1")
        del out[e_:len(out)-1]
        I("s_mov_b64 exec, -1")
    w_loads()
    vTG = vS + 2
    def tagcalc():
        I(f"s_add_u32 s{sK}, s{sK}, {KINC:#x}")
        I(f"v_lshlrev_b32 v{vTG}, v{vcS}, s{sK}")
        I(f"v_and_b32 v{u(1)}, 4, v{lane}")
        I(f"v_mul_u32_u24 v{u(1)}, {37 << 15}, v{u(1)}")
        I(f"v_lshl_add_u32 v{vTG}, v{u(1)}, 8, v{vTG}")
        I(f"v_and_b32 v{vTG}, 0xfe000000, v{vTG}")
    if not KV: tagcalc()
    vTH = vS + 3
    I(f"v_and_b32 v{vTH}, 7, v{lane}")
    I(f"v_mul_u32_u24 v{vTH}, 33, v{vTH}")
    I(f"v_add_u32 v{vTH}, {33*CAP}, v{vTH}")
    I(f"v_lshlrev_b32 v{lo2}, 2, v{ha}")
    I(f"s_mov_b32 s{cM}, 0x1000000")
    I("s_waitcnt lgkmcnt(0)")
    I("s_barrier")
    stamp(2)
    vO, vHS = vQ, u(4)
    I(f"ds_read_b128 {rr(vHS,4)}, v{l16} offset:{HIST1}")
    vHD = vR + 8
    for i in range(4):
        I(f"ds_read_b32 v{vHD+i}, v{lo2} offset:{HIST1 + 256*i}")
        I(f"ds_read_b128 {rr(vO+4*i,4)}, v{lo} offset:{64*LROW*i}")
    if KV:
        I("s_waitcnt vmcnt(4)")
        I(f"v_readfirstlane_b32 s{sK}, v{vEA+1}")
    for i in range(1, 4): I(f"s_mov_b32 s{sM+15+i}, {64*RS*i}")
    if KV: tagcalc()
    I("s_waitcnt lgkmcnt(8)")
    I(f"v_max3_u32 v{u(0)}, v{vHS}, v{vHS+1}, v{vHS+2}")
    I(f"v_max_u32 v{u(0)}, v{u(0)}, v{vHS+3}")
    I(f"v_cmp_lt_u32 vcc, {33*(CAP+8)}, v{u(0)}")
    I("s_cbranch_vccnz L_POVF")
    L("L_POUT")
    for i in range(4):
        I(f"s_waitcnt lgkmcnt({7 - 2*i})")
        I(f"v_sub_u32 v{vHD+i}, v{vTH}, v{vHD+i}")
        I(f"v_and_or_b32 v{vHD+i}, v{vHD+i}, s{cM}, v{vTG}")
        I(f"s_waitcnt lgkmcnt({6 - 2*i})")
        I(f"v_or_b32 v{vO+4*i+3}, v{vO+4*i+3}, v{vHD+i}")
        I(f"buffer_store_dwordx4 {rr(vO+4*i,4)}, v{go}, {sq(sCEL)}, {f's{sM+15+i}' if i else '0'} offen{pol(STP)}")
    stamp(3)
    if "c" in opt("tsx", ""): I("s_waitcnt vmcnt(0)")
    stamp("c0")
    t = vACC + 32
    I(f"s_mov_b32 s{sA}, {f2u(-LOG2E):#x}")
    I(f"s_mov_b32 s{sBt}, s{sA}")
    I(f"s_mov_b32 s{cM}, 0x05040100")
    I(f"s_mov_b32 s{cP}, 0x07060302")
    def wscaled(src, off):
        for d in range(4):
            I(f"v_lshlrev_b32 v{t+2*d}, 16, v{src+d}")
            I(f"v_and_b32 v{t+2*d+1}, 0xffff0000, v{src+d}")
        for d in range(4): I(f"v_pk_mul_f32 {rr(t+2*d,2)}, {rr(t+2*d,2)}, {sp(sA)}")
        for n in range(4): I(f"v_cvt_pk_bf16_f32 v{t+8+n}, v{t+n}, v{t+4+n}")
        wput(t + 8, off)
    def wplain(src, off, tt):
        for n in range(4): I(f"v_perm_b32 v{tt+n}, v{src+2+(n>>1)}, v{src+(n>>1)}, s{cP if n & 1 else cM}")
        wput(tt, off)
    def wput(r, off):
        a = wl
        if off:
            a = r + 4
            I(f"v_add_u32 v{a}, {off}, v{wl}")
        I(f"ds_write2_b32 v{a}, v{r}, v{r+1} offset0:0 offset1:8")
        I(f"ds_write2_b32 v{a}, v{r+2}, v{r+3} offset0:16 offset1:24")
    I("s_waitcnt vmcnt(4)")
    stamp("b4")
    wplain(vRW + 8, WAI - WBI, t + 16)
    wscaled(vRW, 0)
    wplain(vRW + 4, WVI - WBI, t + 24)
    wplain(vRW + 12, WUI - WBI, t + 16)
    I(f"s_cmp_ge_u32 s{sWP}, 2")
    I("s_cbranch_scc1 L_NOWC")
    wscaled(vEO, WCI - WBI)
    L("L_NOWC")
    I(f"s_mul_i32 s{sTM}, s{sB}, {RS}")
    I(f"s_add_u32 s{sTM}, s{sTM}, {WS_CELL}")
    srd(sCEL, pWS, 256*128, f"s{sTM}")
    I(f"s_add_u32 s{sTM}, s{sTM}, {XOFF}")
    srd(sD2, pWS, 256*128, f"s{sTM}")
    vC, vEB = vACC + 32, vACC + 60
    pa = vT16
    for k in (1, 2, 3): I(f"s_movk_i32 s{sCI+k-1}, {8192*k}")
    def poll_load(i):
        so = "0" if i == 0 else f"s{sCI+i-1}"
        I(f"buffer_load_dwordx4 {rr(vC+4*i,4)}, v{pa}, {sq(sCEL)}, {so} offen sc1")
    I("s_waitcnt lgkmcnt(0)")
    I("s_barrier")
    stamp(4)
    if OLP == 0: own_loads()
    vWA = vACC
    I(f"v_add_u32 v{wal}, {WBI}, v{wal}")
    def trw(reg, img):
        return [f"ds_read_b64_tr_b16 {rr(reg+8*n+4*s+2*uu,2)}, v{wal} offset:{img + (32*s + 8*uu)*WR + 32*n}"
                for n in range(4) for s in range(2) for uu in range(2)]
    tw = trw(vWB, 0) + trw(vWV, WVI - WBI)
    for x_ in tw[:14]: I(x_)
    prefill(vCA)
    for x_ in tw[14:24]: I(x_)
    nxt = 24
    I(f"v_mov_b32 v{u(4)}, v{wal}")
    I("s_mov_b32 exec_lo, 0")
    I(f"v_subrev_u32 v{u(4)}, {16*WR}, v{wal}")
    I("s_mov_b32 exec_lo, -1")
    tw += [f"ds_read_b64_tr_b16 {rr(vCA+16+4*n+2*uu,2)}, v{u(4)} offset:{WCI - WBI + 8*uu*WR + 32*n}" for n in range(4) for uu in range(2)]
    vEM, vET = vEO, vACC + 56
    ownn, owna, mapa = vEO + 1, vEO + 2, vEO + 3
    I("s_waitcnt lgkmcnt(4)")
    for x_ in tw[nxt:]: I(x_)
    I(f"v_add_u32 v{wal}, {WAI - WBI}, v{wal}")
    vFF = vEO + 4
    vMU = vR + 8
    lo0, hi0, lo1, hi1 = sWS0, sWS1, sB0E, sSH
    def late_setup():
        I(f"v_and_b32 v{vCH}, 1, v{lane}")
        I(f"v_lshlrev_b32 v{vCH}, 4, v{vCH}")
        I(f"v_mov_b32 v{vONE}, 0x3f80")
        I(f"v_and_b32 v{vcEO}, 16, v{lane}")
        I(f"v_and_b32 v{u(6)}, 15, v{lane}")
        I(f"v_lshl_add_u32 v{u(6)}, v{u(6)}, 5, s{sES}")
        I("s_mov_b32 exec_hi, 0")
        I(f"v_add_u32 v{vcEO}, v{vcEO}, v{u(6)}")
        I("s_mov_b32 exec_hi, -1")
        I(f"v_and_b32 v{u(6)}, 3, v{lane}")
        I(f"v_bfe_u32 v{u(8)}, v{lane}, 2, 2")
        I(f"v_and_b32 v{u(9)}, 48, v{lane}")
        I(f"v_lshl_add_u32 v{u(10)}, v{u(8)}, 7, v{u(9)}")
        I(f"v_mul_u32_u24 v{vAX}, {XI}, v{u(6)}")
        I(f"v_add3_u32 v{vAX}, v{vAX}, v{u(10)}, s{sSTG}")
        listaddr(u(6))
        I(f"v_mul_u32_u24 v{vEB}, {CH}, v{ha}")
        for i in range(1, 4): I(f"v_add_u32 v{vEB+i}, {64*i*CH}, v{vEB}")
        I(f"s_mov_b32 s{sEM}, {EMASK:#x}")
        I(f"s_mov_b32 s{sEM+1}, {EMASK:#x}")
        vFF = vEO + 4
        I(f"v_mov_b32 v{vFF}, 0xfffff")
        I(f"v_cndmask_b32 v{vEM}, 0, v{vFF}, {sp(sEM)}")
        I(f"v_add_lshl_u32 v{u(3)}, v{pa}, v{vCP}, 16")
        for i in range(4):
            I(f"v_add_u32 v{vET+i}, {(EARLY + 8192*i) << 16:#x}, v{u(3)}")
            I(f"v_cndmask_b32 v{vET+i}, 0, v{vET+i}, {sp(sEM)}")
        I(f"v_mov_b32 v{one}, 4")
        I(f"v_and_b32 v{ownn}, 31, v{lane}")
        I(f"v_add_lshl_u32 v{mapa}, v{ownn}, s{sWIN}, 2")
        I(f"v_lshrrev_b32 v{u(3)}, 5, v{lane}")
        I(f"v_lshl_add_u32 v{owna}, v{u(3)}, 11, v{mapa}")
        I(f"v_add_u32 v{mapa}, {MAP}, v{mapa}")
        I(f"v_lshlrev_b32 v{u(3)}, 2, v{lane}")
        I(f"v_subrev_u32 v{u(3)}, s{sWIN}, v{u(3)}")
        I("s_mov_b32 s10, 0x10000")
        for i in range(4):
            I(f"v_add_u32 v{vMU+i}, {i}, v{u(3)}")
            I(f"v_and_or_b32 v{vMU+i}, v{vMU+i}, s10, 1")
        I(f"s_movk_i32 s{sFM}, 0xffc")
        I(f"s_movk_i32 s{sSKIP}, {CAP+8}")
        I(f"s_mov_b32 s{sXT}, 0")
        I(f"s_mov_b32 s{sSP}, 0")
        I(f"s_mov_b32 s{sT}, 0x1ffffff")
        I(f"s_mov_b32 s{sN}, 0xffff")
        lo0, hi0, lo1, hi1 = sWS0, sWS1, sB0E, sSH
        I(f"s_mul_i32 s10, s{sW}, 49")
        I(f"s_sub_i32 s{lo0}, s10, 6")
        I(f"s_ashr_i32 s{lo0}, s{lo0}, 1")
        I(f"s_add_i32 s{hi0}, s10, 7")
        I(f"s_ashr_i32 s{hi0}, s{hi0}, 1")
        I(f"s_add_i32 s{lo1}, s10, 43")
        I(f"s_ashr_i32 s{lo1}, s{lo1}, 1")
        I(f"s_add_i32 s{hi1}, s{lo0}, 31")
        I(f"s_cmp_eq_u32 s{sW}, 7")
        I(f"s_cselect_b32 s{lo1}, {BN}, s{lo1}")
        I(f"s_cselect_b32 s{hi1}, {BN}, s{hi1}")
        for r_ in (hi0, lo1, hi1): I(f"s_sub_i32 s{r_}, s{r_}, s{sWIN}")
    LS = opt("ls", 0)
    if LS == 0: late_setup()
    stamp("b0")
    if opt("pw", 1): I(f"s_waitcnt vmcnt({4 if OLP == 0 else 0})")
    stamp("b1")
    if opt("pbar", 0): I("s_barrier")
    for i in range(4): poll_load(i)
    if OLP == 1: own_loads()
    if LS == 1: late_setup()
    PY = 4 if OLP == 1 else 0
    I(f"v_max3_u32 v{u(0)}, v{vRK1}, v{vRK1+1}, v{vRK1+2}")
    I(f"v_max3_u32 v{u(1)}, v{vRK1+3}, v{vRK1+4}, v{vRK1+5}")
    I(f"v_max3_u32 v{u(0)}, v{u(0)}, v{vRK1+6}, v{vRK1+7}")
    I(f"v_max_u32 v{u(0)}, v{u(0)}, v{u(1)}")
    I(f"v_cmp_le_u32 vcc, {33*CAP}, v{u(0)}")
    I("s_cbranch_vccz L_PEXTR")
    q = vCA
    if TS: I(f"v_writelane_b32 v{vTS}, 1, 61")
    I(f"v_mov_b32 v{q+1}, s{sK}")
    I(f"s_lshl_b32 s{sTM}, s2, 7")
    I(f"s_add_u32 s{sTM}, s{sTM}, {WS_CELL + XOFF}")
    for i in range(NR):
        I(f"v_subrev_u32 v{q+4}, {33*CAP}, v{vRK1+i}")
        I(f"v_cmpx_gt_u32 vcc, {33*8}, v{q+4}")
        I(f"s_cbranch_execz L_PE{i}")
        I(f"v_mov_b32 v{q}, v{vSR+i}")
        I(f"v_mov_b32 v{q+2}, v{idr(i)}")
        I(f"v_bfe_u32 v{q+4}, v{vRK1+i}, 5, 3")
        I(f"v_lshlrev_b32 v{q+4}, 4, v{q+4}")
        I(f"v_mad_u32_u24 v{q+4}, v{vBK+i}, s{cR}, v{q+4}")
        I(f"buffer_store_dwordx4 {rr(q,4)}, v{q+4}, {sq(sWS)}, s{sTM} offen sc1")
        L(f"L_PE{i}")
        I("s_mov_b64 exec, -1")
    L("L_PEXTR")
    stamp(5)
    vA, vRK, vR1 = vACC, vACC + 16, vQ
    mk = lambda i, j: sM + 2*(4*i + j)
    def rec_ops(d, x, byte, eb, a, r1, keep=None):
        e_ = r1 if keep is None else keep
        return [f"v_add_u32_sdwa v{e_}, v{x}, v{eb} {SDW} src0_sel:BYTE_{byte} src1_sel:DWORD",
                f"v_lshrrev_b32 v{u(1)}, 28, v{d}",
                f"v_lshl_add_u32 v{e_}, v{u(1)}, 8, v{e_}",
                f"v_and_b32 v{u(1)}, 60, v{a}",
                f"v_lshl_add_u32 v{r1}, v{u(1)}, 19, v{e_}"]
    def spin():
        I(f"s_add_u32 s{sSP}, s{sSP}, 1")
        I(f"s_cmp_gt_u32 s{sSP}, {opt('spin', 200000)}")
        I("s_cbranch_scc1 L_END")
        if opt("slp", 1): I(f"s_sleep {opt('slp', 1)}")
    xg = vCA
    def xload(tag):
        for i in range(4):
            I(f"s_mov_b64 exec, {sp(mk(i,3))}")
            I(f"s_cbranch_execz L_XL{tag}{i}")
            I(f"s_movk_i32 s10, {8192*i}")
            I(f"buffer_load_dwordx4 {rr(xg+4*i,4)}, v{pa}, {sq(sD2)}, s10 offen sc1")
            L(f"L_XL{tag}{i}")
        I("s_mov_b64 exec, -1")
    for i in range(4):
        c_ = vC + 4*i
        L(f"L_PW{i}")
        I(f"s_waitcnt vmcnt({3 - i + PY})")
        I(f"v_xor_b32 v{u(0)}, v{c_+3}, v{vTG}")
        for j in range(3): I(f"v_and_b32_sdwa v{vA+4*i+j}, v{c_+j}, s{sFM} {SDW} src0_sel:WORD_1 src1_sel:DWORD")
        I(f"v_cmp_lt_u32 vcc, s{sT}, v{u(0)}")
        for j in range(3): I(f"v_cmp_ne_u32 {sp(mk(i,j))}, 0, v{c_+j}")
        I(f"s_cbranch_vccnz L_RT{i}")
        if i == 3: stamp(6)
        for j in range(3):
            I(f"s_mov_b64 exec, {sp(mk(i,j))}")
            I(f"ds_add_rtn_u32 v{vRK+4*i+j}, v{vA+4*i+j}, v{one} offset:{HIST}")
        I("s_mov_b64 exec, -1")
        if i == 3:
            I(f"v_or3_b32 v{u(2)}, v{vC+3}, v{vC+7}, v{vC+11}")
            I(f"v_or_b32 v{u(2)}, v{u(2)}, v{vC+15}")
            I(f"v_and_b32 v{u(2)}, 0x1000000, v{u(2)}")
            I(f"v_cmp_ne_u32 vcc, 0, v{u(2)}")
            I("s_cbranch_vccz L_XT1R")
            def xt1():
                if TS: I(f"v_writelane_b32 v{vTS}, 1, 62")
                for i in range(4):
                    I(f"v_and_b32 v{u(2)}, 0x1000000, v{vC+4*i+3}")
                    I(f"v_cmp_ne_u32 {sp(mk(i,3))}, 0, v{u(2)}")
                    I(f"s_bcnt1_i32_b64 s10, {sp(mk(i,3))}")
                    I(f"s_lshl2_add_u32 s{sXT}, s10, s{sXT}")
                xload("a")
                I(f"v_or3_b32 v{u(2)}, v{vC+1}, v{vC+5}, v{vC+9}")
                I(f"v_or_b32 v{u(2)}, v{u(2)}, v{vC+13}")
                I(f"v_and_b32 v{u(2)}, 0x10000, v{u(2)}")
                I(f"v_mov_b32 v{u(3)}, {FLAG}")
                I(f"v_cmpx_ne_u32 vcc, 0, v{u(2)}")
                I(f"ds_write_b32 v{u(3)}, v{one} offset:4")
                I("s_mov_b64 exec, 1")
                I(f"v_mov_b32 v{u(2)}, s{sXT}")
                I(f"ds_add_u32 v{u(3)}, v{u(2)} offset:8")
                I("s_mov_b64 exec, -1")
            xt1()
            L("L_XT1R")
        for j in range(3):
            put(rec_ops(c_+j, c_+3, j, vEB+i, vA+4*i+j, vR1+4*i+j, vR1+4*i+3 if j == 0 and JE else None))
        e_ = vR1 + 4*i + 3
        if JE: I(f"v_cndmask_b32 v{u(0)}, v{vFF}, v{e_}, {sp(mk(i,0))}")
        I(f"v_and_or_b32 v{c_}, v{c_}, s{sN}, v{vET+i}")
        I(f"v_or_b32 v{vR1+4*i}, v{vR1+4*i}, v{vEM}")
        if JE:
            I(f"v_mov_b32_dpp v{u(1)}, v{u(0)} quad_perm:[2,2,3,3] row_mask:0xf bank_mask:0xf")
            I(f"v_mov_b32_dpp v{e_}, v{u(0)} quad_perm:[0,0,1,1] row_mask:0xf bank_mask:0xf")
        I(f"v_and_b32 v{c_+2}, s{sN}, v{c_+2}")
        if JE: I(f"v_mov_b32_dpp v{e_}, v{u(1)} row_shr:4 row_mask:0xf bank_mask:0xa")
    fill = [f"v_and_b32 v{vC+4*i+1}, s{sN}, v{vC+4*i+1}" for i in range(4)]
    I(f"v_mov_b32 v{u(9)}, {FLAG}")
    if OLP == 2: own_loads()
    I("s_waitcnt lgkmcnt(0)")
    stamp("d0")
    I("s_barrier")
    stamp(7)
    def early(i):
        if not JE: return
        I(f"s_lshl_b32 m0, s{sWP}, 10")
        I(f"v_mov_b32 v{vEI}, v{vR1+4*i+3}")
        I(f"s_add_u32 m0, m0, {EARLY + 8192*i}")
        if JE < 4:
            I(f"s_mov_b32 exec_lo, {((1 << 2*JE) - 1) * 0x01010101:#x}")
            I("s_mov_b32 exec_hi, exec_lo")
        else: I("s_nop 0")
        I(f"buffer_load_dwordx4 {rr(vEI,2)}, {sq(sEP)}, 0 idxen offen{pol(opt('eep', ''))} lds")
        if JE < 4: I("s_mov_b64 exec, -1")
    EPOS = opt("epos", "0134")
    def epoint(k):
        for i in range(4):
            if int(EPOS[i]) == k: early(i)
    c, p, tot, sc = u(0), u(4), u(8), u(9)
    hh = vX
    own, to2, ex, z_, eh, el = u(10), u(11), u(12), u(13), u(14), u(15)
    SD = f"{SDW} src0_sel:WORD_0 src1_sel:WORD_0"
    HL = f"{SDW} src0_sel:WORD_0 src1_sel:WORD_1"
    I(f"ds_read_u16 v{own}, v{owna} offset:{HIST}")
    I(f"ds_read_u16 v{to2}, v{owna} offset:{HIST + 1024}")
    for ph in range(4):
        I(f"ds_read_b128 {rr(hh+4*ph,4)}, v{l16} offset:{HIST + 1024*ph}")
    I(f"ds_read_b32 v{vQD}, v{sc} offset:8")
    epoint(0)
    I("s_cmp_lg_u32 s2, 0")
    I("s_cbranch_scc1 L_NOK")
    I(f"v_mov_b32 v{vQD+1}, s{sK}")
    I(f"v_mov_b32 v{vQD+2}, 0")
    I(f"buffer_store_dword v{vQD+1}, v{vQD+2}, {sq(sWS)}, 0 offen sc1")
    L("L_NOK")
    I("s_waitcnt lgkmcnt(5)")
    I(f"v_lshl_or_b32 v{own}, v{to2}, 16, v{own}")
    I(f"v_mov_b32 v{to2}, v{own}")
    I("s_waitcnt lgkmcnt(0)")
    stamp("d1")
    f2 = []
    for i in range(4):
        f2 += [f"v_add_u32_sdwa v{c+i}, v{hh+i}, v{hh+4+i} {SD}", f"v_add_u32_sdwa v{p+i}, v{hh+8+i}, v{hh+12+i} {SD}"]
    f2 += [f"v_add_u32 v{c+i}, v{c+i}, v{p+i}" for i in range(4)]
    wave_scan(to2, f2, half=True)
    put(f2)
    I(f"v_mul_u32_u24 v{tot}, v{c}, v{vMU}")
    for i in range(1, 4): I(f"v_mad_u32_u24 v{tot}, v{c+i}, v{vMU+i}, v{tot}")
    f2 = [f"v_sub_u32 v{ex}, v{to2}, v{own}", f"v_add_u32_sdwa v{eh}, v{to2}, v{to2} {HL}",
          f"v_add_u32_sdwa v{z_}, v{ex}, v{ex} {HL}", f"v_add_u32_sdwa v{el}, v{own}, v{own} {HL}",
          fill.pop(0), f"v_readfirstlane_b32 s{sMORE}, v{vQD}",
          f"v_permlane32_swap_b32 v{z_}, v{eh}", f"v_cndmask_b32 v{el}, 0, v{el}, {sp(sJ3)}",
          f"v_add_u32 v{z_}, v{z_}, v{eh}", fill.pop(0),
          f"v_add_u32 v{eh}, v{z_}, v{el}", fill.pop(0)]
    I(f"s_mov_b32 s{sJ3}, -1")
    I(f"s_mov_b32 s{sJ3+1}, 0")
    wave_scan(tot, f2)
    assert not f2
    stamp("d2")
    I(f"v_sub_u32_sdwa v{el}, v{eh}, v{own} {SDW} src0_sel:DWORD src1_sel:WORD_1")
    I(f"v_readlane_b32 s{sT}, v{tot}, 63")
    epoint(1)
    ASYM = opt("asym", 12)
    I(f"s_bfe_u32 s10, s{sT}, 0xe0002")
    I(f"s_lshr_b32 s{sT}, s{sT}, 16")
    I("s_lshr_b32 s11, s10, 1")
    I(f"s_add_u32 s11, s11, {4*ASYM}")
    I("s_and_b32 s11, s11, -128")
    I(f"s_lshr_b32 s{sF0}, s{sW}, 1")
    I(f"s_mul_i32 s{sF0}, s{sF0}, s10")
    I(f"s_sub_i32 s11, s11, {4*ASYM}")
    I(f"s_sub_i32 s{sF0}, s{sF0}, s{sT}")
    I(f"s_add_i32 s11, s11, s{sF0}")
    I(f"s_add_i32 s10, s10, s{sF0}")
    I(f"s_bitcmp1_b32 s{sW}, 0")
    I(f"s_cselect_b32 s{sEND}, s11, s{sF0}")
    I("s_cselect_b32 s10, s10, s11")
    I(f"v_cmp_gt_i32 vcc, s{sEND}, v{eh}")
    I(f"v_cmp_gt_i32 {sp(sTM)}, s10, v{eh}")
    f0, f1 = sWS0, sWS1
    I(f"s_bcnt1_i32_b32 s{f0}, vcc_lo")
    I(f"s_bcnt1_i32_b32 s10, s{sTM}")
    I(f"s_min_i32 s{f0}, s{f0}, s{hi0}")
    I(f"s_max_i32 s10, s10, s{lo1}")
    I(f"s_min_i32 s{f1}, s10, s{hi1}")
    stamp("d3")
    epoint(2)
    A01, A23, E01, E23, Z1 = sCI, sCUR, sR0, sCNT, sST
    I(f"v_readlane_b32 s{sT}, v{z_}, s{f0}")
    I(f"v_readlane_b32 s{Z1}, v{z_}, s{f1}")
    I(f"s_add_u32 s{sF0}, s{f0}, s{sWIN}")
    I(f"s_add_u32 s{sF1}, s{f1}, s{sWIN}")
    I(f"s_add_u32 s10, s{f0}, 32")
    I(f"s_add_u32 s11, s{f1}, 32")
    I(f"v_readlane_b32 s{A01}, v{ex}, s{f0}")
    I(f"v_readlane_b32 s{E01}, v{ex}, s{f1}")
    I(f"v_readlane_b32 s{A23}, v{ex}, s10")
    I(f"v_readlane_b32 s{E23}, v{ex}, s11")
    I(f"s_sub_u32 s{sEND}, s{Z1}, s{sT}")
    I(f"s_add_u32 s10, s{sEND}, 255")
    if opt("flr", 1):
        I(f"s_sub_i32 s11, s{f1}, 16")
        I(f"s_max_i32 s11, s11, s{f0}")
        I(f"v_readlane_b32 s11, v{z_}, s11")
        I(f"s_add_u32 vcc_lo, s{sEND}, 127")
        I(f"s_and_b32 vcc_hi, vcc_lo, 127")
        I(f"s_add_u32 vcc_hi, vcc_hi, s{sMORE}")
        I(f"s_cmp_lt_u32 vcc_hi, 55")
        I(f"s_cselect_b32 vcc_lo, vcc_lo, s10")
        I(f"s_sub_u32 s11, s11, s{sT}")
        I(f"s_add_u32 s11, s11, s{sMORE}")
        I(f"s_lshl_b32 s11, s11, 1")
        I(f"s_and_b32 vcc_lo, vcc_lo, -256")
        I(f"s_cmp_le_u32 s11, vcc_lo")
        I(f"s_cselect_b32 s10, vcc_lo, s10")
    I("s_lshr_b32 s10, s10, 8")
    I("s_lshl_b32 s10, s10, 7")
    I(f"s_sub_u32 s10, s10, s{sMORE}")
    I("s_max_i32 s10, s10, 0")
    I(f"s_add_u32 s{sT}, s{sT}, s10")
    I(f"s_add_u32 s10, s{f0}, 16")
    I(f"s_min_u32 s10, s10, s{f1}")
    I(f"s_sub_i32 s11, s{f1}, 16")
    inl, inh, mo = sTM, sTM + 2, sMSK
    I(f"v_cmp_ge_u32 {sp(inl)}, s{sT}, v{el}")
    I(f"v_cmp_ge_u32 {sp(inh)}, s{sT}, v{eh}")
    I(f"v_cmp_gt_i32 vcc, s10, v{ownn}")
    I(f"v_cmp_gt_i32 {sp(sA)}, s11, v{ownn}")
    I(f"v_cmp_le_u32 {sp(mo)}, s{f0}, v{ownn}")
    I(f"v_cmp_gt_u32 {sp(sJ3)}, s{f1}, v{ownn}")
    I(f"s_and_b64 {sp(inl)}, {sp(inl)}, vcc")
    I(f"s_and_b64 {sp(inh)}, {sp(inh)}, vcc")
    I(f"s_or_b64 {sp(inl)}, {sp(inl)}, {sp(sA)}")
    I(f"s_or_b64 {sp(inh)}, {sp(inh)}, {sp(sA)}")
    I(f"s_bcnt1_i32_b32 s{sB0E}, s{inl}")
    I(f"s_bcnt1_i32_b32 s10, s{inh}")
    I(f"s_bcnt1_i32_b32 s11, s{inl+1}")
    I(f"s_bcnt1_i32_b32 s{sSH}, s{inh+1}")
    I(f"v_readlane_b32 s{f0}, v{ex}, s{sB0E}")
    I(f"v_readlane_b32 s10, v{ex}, s10")
    I("s_add_u32 s11, s11, 32")
    I(f"s_add_u32 s{sT}, s{sSH}, 32")
    I(f"v_readlane_b32 s{f1}, v{ex}, s11")
    I(f"v_readlane_b32 s11, v{ex}, s{sT}")
    I(f"v_mov_b32 v{c}, s{sN}")
    I(f"v_cndmask_b32 v{c+1}, 0, v{c}, {sp(inl)}")
    I(f"v_cndmask_b32 v{c}, 0, v{c}, {sp(inh)}")
    I(f"s_and_b64 {sp(mo)}, {sp(mo)}, {sp(sJ3)}")
    Q01, Q23 = f0, f1
    I(f"s_pack_lh_b32_b16 s{Q01}, s{f0}, s10")
    I(f"s_pack_lh_b32_b16 s{Q23}, s{f1}, s11")
    I(f"v_lshl_or_b32 v{c}, v{c}, 16, v{c+1}")
    I(f"s_sub_u32 s{sT}, s{sL}, {R0 - BIAS}")
    I(f"s_pack_ll_b32_b16 s{sT}, s{sT}, s{sT}")
    def bases(lo01, lo23, hi01, hi23, d, keep=None):
        I(f"s_sub_u32 s10, s{hi01}, s{lo01}")
        I(f"s_sub_u32 s11, s{hi23}, s{lo23}")
        I(f"s_mul_i32 s10, s10, 0x10001")
        I(f"s_lshl_b32 vcc_lo, s10, 16")
        I(f"s_pack_hh_b32_b16 s10, s10, s10")
        I(f"s_lshl_b32 vcc_hi, s11, 16")
        I(f"s_add_u32 vcc_hi, vcc_hi, s10")
        if keep is not None:
            I(f"s_add_u32 s{keep}, vcc_hi, s11")
            I(f"s_lshr_b32 s{keep}, s{keep}, 16")
            I(f"s_sub_u32 s{sEND}, s{sEND}, s{keep}")
            I(f"s_cmp_gt_u32 s{sEND}, s{keep}")
            I(f"s_cselect_b32 s{SWP}, {LWB * 0x10001:#x}, 0")
            I(f"s_add_u32 s{sT}, s{sT}, s{SWP}")
        I(f"s_sub_u32 s10, s{sT}, s{lo01}")
        I(f"s_sub_u32 s11, s{sT}, s{lo23}")
        I("s_add_u32 s10, s10, vcc_lo")
        I("s_add_u32 s11, s11, vcc_hi")
        I(f"v_mov_b32 v{d}, s10")
        I(f"v_mov_b32 v{d+1}, s11")
    LEN0, SWP = sJ3, sJ3 + 1
    bases(A01, A23, Q01, Q23, p, LEN0)
    I(f"s_add_u32 s{sT}, s{sT}, {LWB * 0x10001:#x}")
    I(f"s_sub_u32 s{sT}, s{sT}, s{SWP}")
    I(f"s_sub_u32 s{sT}, s{sT}, s{SWP}")
    bases(Q01, Q23, E01, E23, p + 2)
    I(f"v_bfi_b32 v{p}, v{c}, v{p}, v{p+2}")
    I(f"v_bfi_b32 v{p+1}, v{c}, v{p+1}, v{p+3}")
    I(f"s_mov_b32 exec_hi, 0")
    I(f"v_mov_b32 v{p+1}, v{p}")
    I(f"s_mov_b64 exec, {sp(mo)}")
    I(f"v_add_u32 v{ex}, v{ex}, v{p+1}")
    assert LWB & 0x80
    I(f"s_bfe_u32 s10, s{SWP}, 0x10007")
    I(f"s_lshl1_add_u32 s10, s{sW}, s10")
    I("s_lshl_b32 s10, s10, 2")
    I(f"v_cndmask_b32 v{c}, 4, 0, {sp(inl)}")
    I(f"ds_write_b16 v{owna}, v{ex} offset:{HIST + 2}")
    I(f"ds_write_b16_d16_hi v{owna}, v{ex} offset:{HIST + 1024 + 2}")
    I("s_mov_b32 exec_hi, 0")
    I(f"v_xor_b32 v{c}, s10, v{c}")
    I(f"ds_write_b32 v{mapa}, v{c}")
    I("s_mov_b64 exec, -1")
    stamp("d5")
    I(f"s_min_u32 s10, s{sEND}, s{LEN0}")
    I(f"s_max_u32 s{LEN0}, s{sEND}, s{LEN0}")
    I(f"s_mov_b32 s{sEND}, s10")
    I(f"s_add_u32 s10, s{LEN0}, s{sMORE}")
    I(f"s_mul_i32 s11, s{Z1}, {LWB * 65536 // BIAS}")
    I("s_lshr_b32 s11, s11, 16")
    I("s_max_u32 s10, s10, s11")
    I(f"s_cmp_lt_u32 s10, {LWB}")
    I("s_cbranch_scc1 L_LFIT")
    I(f"ds_write_b32 v{sc}, v{one}")
    L("L_LFIT")
    I(f"s_cmp_eq_u32 s{sMORE}, 0")
    I("s_cbranch_scc1 L_XCNR")
    I(f"s_sub_u32 s10, s{sL}, {R0 - BIAS}")
    I(f"s_add_u32 s11, s10, s{LEN0}")
    I(f"v_mov_b32 v{u(0)}, s11")
    I(f"s_add_u32 s11, s10, s{sEND}")
    I(f"s_add_u32 s11, s11, {LWB}")
    I(f"v_mov_b32 v{u(1)}, s11")
    I(f"s_lshl_b32 s10, s{sW}, 3")
    I(f"v_mov_b32 v{u(2)}, s10")
    I(f"ds_write_b64 v{u(2)}, {rr(u(0),2)} offset:{CNT}")
    L("L_XCNR")
    epoint(3)
    put(fill)
    I("s_waitcnt lgkmcnt(0)")
    stamp(8)
    I("s_barrier")
    stamp(9)
    I(f"ds_read_b64 {rr(u(14),2)}, v{sc}")
    for i in range(4):
        for j in range(3):
            I(f"ds_read_u16 v{vA+4*i+j}, v{vA+4*i+j} offset:{HIST + 2}")
    epoint(4)
    def ntiles(l0, l1):
        I(f"s_add_u32 s10, s{l0}, 127")
        I("s_lshr_b32 s10, s10, 7")
        I("s_lshl1_add_u32 s10, s10, -1")
        I(f"s_add_u32 s11, s{l1}, 127")
        I("s_lshr_b32 s11, s11, 6")
        I("s_and_b32 s11, s11, -2")
        I(f"s_max_i32 s{sN}, s10, s11")
        I(f"s_cselect_b32 s10, s{l0}, s{l1}")
        I("s_sub_u32 s10, s10, 1")
        I(f"s_andn2_b32 s{sHF}, 64, s10")
    I(f"s_add_u32 s{sB0E}, s{sB0E}, s{sWIN}")
    I(f"s_add_u32 s11, s{sSH}, s{sWIN}")
    I(f"s_and_b32 s10, s11, 15")
    I(f"s_cmp_lt_u32 s11, s{sB0E}")
    I(f"s_cselect_b32 s{sSH}, s10, 16")
    I(f"s_cmp_lg_u32 s{SWP}, 0")
    I(f"s_cselect_b32 s{sWS1}, s{sF0}, s11")
    I(f"s_cselect_b32 s{sWIN}, s{sF0}, s{sB0E}")
    I(f"s_cselect_b32 s{sF0}, s11, s{sF0}")
    I(f"s_cselect_b32 s{sB0E}, s{sF1}, s{sB0E}")
    I(f"s_cselect_b32 s{sF1}, s11, s{sF1}")
    I(f"s_min_u32 s{sWS0}, s{sF0}, 192")
    I(f"s_min_u32 s{sWS1}, s{sWS1}, 192")
    I(f"s_mov_b32 s{sST}, s{sMORE}")
    I("s_waitcnt lgkmcnt(12)")
    I(f"v_cmp_ne_u32 vcc, 0, v{u(14)}")
    I(f"v_readfirstlane_b32 s{sMORE}, v{u(15)}")
    I("s_cbranch_vccnz L_OVF")
    for i in range(4):
        for j in range(3):
            s_ = 4*i + j
            if j == 0: I("s_waitcnt lgkmcnt(9)")
            I(f"s_mov_b64 exec, {sp(mk(i,j))}")
            I(f"v_add_u32 v{vA+s_}, v{vA+s_}, v{vRK+s_}")
            I(f"ds_write2st64_b32 v{vA+s_}, v{vC+s_}, v{vR1+s_} {W2}")
    I("s_mov_b64 exec, -1")
    ntiles(LEN0, sEND)
    stamp("d6")
    sO0, sO1, sNT, sOK, sCM = sOUT, sD2, sM + 8, sM + 9, sM + 12
    def epi_prep(t0, t1):
        I(f"s_lshl_b32 s{sNT}, s{sW}, 7")
        I(f"s_add_u32 s{sNT}, s{sNT}, {NT}")
        I(f"v_mov_b32 v{t0}, s{sWS0}")
        I("s_mov_b32 exec_lo, 0xffff0000")
        I(f"v_mov_b32 v{t0}, s{sWS1}")
        I("s_mov_b64 exec, 0xffffffff") if False else None
        I("s_mov_b32 exec_lo, -1")
        I("s_mov_b32 exec_hi, 0")
        I(f"v_sub_u32 v{t1}, v{lane}, v{t0}")
        I(f"v_and_b32 v{t1}, 15, v{t1}")
        I(f"v_add_lshl_u32 v{t1}, v{t1}, v{t0}, 5")
        I(f"v_lshl_add_u32 v{t0}, v{lane}, 2, s{sNT}")
        I(f"ds_write_b32 v{t0}, v{t1}")
        I("s_mov_b32 exec_hi, -1")
        I(f"s_mul_i32 s10, s{sB}, {BN}")
        for d, lo_, hi_, k in ((sO1, sWIN, sF1, 1), (sO0, sF0, sB0E, 0)):
            I(f"s_add_u32 s11, s10, s{lo_}")
            I(f"s_add_u32 s{d+2}, s10, s{hi_}")
            I(f"s_min_u32 s11, s11, {N}")
            I(f"s_min_u32 s{d+2}, s{d+2}, {N}")
            I(f"s_sub_u32 s{d+2}, s{d+2}, s11")
            I("s_lshl_b32 s11, s11, 7")
            I(f"s_lshl_b32 s{d+2}, s{d+2}, 7")
            I(f"s_add_u32 s{d}, s{sOUT}, s11")
            I(f"s_addc_u32 s{d+1}, s{sOUT+1}, 0")
            I(f"s_mul_i32 s{sOK+k}, s{lo_}, -128")
        I(f"s_and_b32 s10, s{sSH}, 12")
        I("s_lshl_b32 s10, s10, 2")
        I(f"s_bfm_b64 {sp(sCM)}, 16, s10")
    L("L_CA")
    for x_ in trw(vWA, 0): I(x_)
    I(f"s_cmp_eq_u32 s{sXT}, 0")
    I("s_cbranch_scc1 L_XT2R")
    I(f"s_waitcnt vmcnt({(4 if JE else 0) + (4 if OLP == 2 else 0)})")
    L("L_XT2")
    I(f"s_mov_b64 {sp(sTM)}, 0")
    for i in range(4):
        I(f"v_cmp_ne_u32 vcc, s{sK}, v{xg+4*i+1}")
        I(f"s_and_b64 vcc, vcc, {sp(mk(i,3))}")
        I(f"s_or_b64 {sp(sTM)}, {sp(sTM)}, vcc")
    I("s_cbranch_scc1 L_XT2B")
    I(f"s_cmp_eq_u32 s{sSKIP}, 0")
    I("s_cbranch_scc1 L_XT2R")
    for i in range(4):
        g_ = xg + 4*i
        I(f"s_mov_b64 exec, {sp(mk(i,3))}")
        I(f"s_cbranch_execz L_XS{i}")
        I(f"v_bfe_u32 v{g_+1}, v{g_}, 18, 8")
        I(f"v_lshlrev_b32 v{g_+1}, 2, v{g_+1}")
        I(f"v_add_u32 v{g_+3}, {MAP}, v{g_+1}")
        I(f"ds_read_b32 v{g_+3}, v{g_+3}")
        put(rec_ops(g_, g_+2, 0, vEB+i, g_+1, g_+2))
        I(f"v_and_b32 v{g_}, 0xffff, v{g_}")
        I("s_waitcnt lgkmcnt(0)")
        I(f"ds_add_rtn_u32 v{g_+3}, v{g_+3}, v{one} offset:{CNT}")
        I("s_waitcnt lgkmcnt(0)")
        I(f"ds_write2st64_b32 v{g_+3}, v{g_}, v{g_+2} {W2}")
        L(f"L_XS{i}")
    I("s_mov_b64 exec, -1")
    L("L_XT2R")
    aw, al, ab = vEO, vEO + 1, vEO + 2
    I(f"s_lshl_b32 s{sTM}, s{sWS0}, 5")
    I(f"s_lshl_b32 s{sTM+1}, s{sWS1}, 5")
    I(f"s_mov_b32 vcc_lo, 0xff00ff00")
    I(f"s_mov_b32 vcc_hi, 0xff00ff00")
    I(f"v_mov_b32 v{aw}, s{sTM+1}")
    I(f"v_mov_b32 v{al}, s{sTM}")
    I(f"v_cndmask_b32 v{aw}, v{aw}, v{al}, vcc")
    I(f"v_and_b32 v{al}, 4, v{lane}")
    I(f"v_lshlrev_b32 v{al}, 6, v{al}")
    I(f"v_lshl_add_u32 v{al}, v{vcS}, 2, v{al}")
    I(f"v_sub_u32 v{al}, v{al}, v{aw}")
    I(f"v_and_b32 v{ab}, 48, v{lane}")
    I(f"s_movk_i32 s{sTM}, {(PL-32)//8}")
    I(f"v_mad_u32_u24 v{ab}, v{vcS}, s{sTM}, v{ab}")
    I(f"s_mov_b32 s{sTM}, {OWN}")
    I(f"v_add3_u32 v{ab}, v{ab}, v{aw}, s{sTM}")
    I(f"v_and_b32 v{aw}, 0x1ff, v{al}")
    I(f"v_add_u32 v{aw}, v{aw}, v{ab}")
    I(f"v_add_u32 v{al}, 0x80, v{al}")
    I(f"v_and_b32 v{al}, 0x1ff, v{al}")
    I(f"v_add_u32 v{al}, v{al}, v{ab}")
    zero16 = lambda d: f"v_mfma_f32_32x32x16_bf16 {rr(d,16)}, {rr(vS,4)}, {rr(vS,4)}, 0"
    for i in range(2): I(f"v_mov_b64 {rr(vS+2*i,2)}, 0")
    I(f"v_lshrrev_b32 v{u(0)}, 2, v{lane}")
    I(f"v_and_b32 v{u(0)}, 12, v{u(0)}")
    I(f"v_subrev_u32 v{u(0)}, s{sSH}, v{u(0)}")
    I(f"v_mov_b32 v{u(1)}, {f2u(1e-6):#x}")
    I(zero16(NUM(1,0)))
    for i in range(4): I(f"v_cmp_ne_u32 {sp(sM+16+2*i)}, {-i}, v{u(0)}")
    for i in range(4): I(f"v_cndmask_b32 v{DEN(1,0)+i}, 0, v{u(1)}, {sp(sM+16+2*i)}")
    for n in range(1, 4):
        for i in range(2): I(f"v_mov_b64 {rr(DEN(1,n)+2*i,2)}, {rr(DEN(1,0)+2*i,2)}")
    I(f"s_cmp_ge_u32 s{sWP}, 4")
    I("s_cbranch_scc1 L_EP0")
    epi_prep(u(2), u(3))
    L("L_EP0")
    stamp("d7")
    I("s_waitcnt vmcnt(0) lgkmcnt(0)")
    stamp(10)
    I("s_barrier")
    def lens_from_cnt(t):
        I(f"s_lshl_b32 s10, s{sW}, 3")
        I(f"v_mov_b32 v{t}, s10")
        I(f"ds_read_b64 {rr(t,2)}, v{t} offset:{CNT}")
        I("s_waitcnt lgkmcnt(0)")
        I(f"v_readfirstlane_b32 s{sTM}, v{t}")
        I(f"v_readfirstlane_b32 s{sTM+1}, v{t+1}")
        I(f"s_sub_u32 s10, s{sL}, {R0 - BIAS}")
        I(f"s_sub_u32 s{sTM}, s{sTM}, s10")
        I(f"s_sub_u32 s{sTM+1}, s{sTM+1}, s10")
        I(f"s_sub_u32 s{sTM+1}, s{sTM+1}, {LWB}")
        ntiles(sTM, sTM + 1)
    I(f"s_mov_b32 s10, {f2u(1e-6):#x}")
    I(f"ds_read_b128 {rr(vQD,4)}, v{vARX}")
    I(f"ds_read_b32 v{vEI}, v{vARE}")
    stamp(11)
    for t_ in range(2):
        for s in range(2): I(f"ds_read_b128 {rr(vX+8*t_+4*s,4)}, v{(aw, al)[t_]} offset:{64*s}")
    I("s_waitcnt lgkmcnt(4)")
    STAG = opt("stag", 1)
    if STAG:
        I(f"s_cmp_ge_u32 s{sWP}, 4")
        I("s_cbranch_scc1 L_LATE0")
    put(dma_tile())
    L("L_LATE0")
    I(f"s_mov_b32 s{sTM}, {f2u(-LOG2E):#x}")
    I(f"s_mov_b32 s{sTM+1}, s{sTM}")
    for t_ in range(2):
        for s in range(2):
            I(f"s_waitcnt lgkmcnt({3 - 2*t_ - s})")
            for n in range(4):
                D = vQ + 8*n + 4*t_
                I(m16(D, vX+8*t_+4*s, vWA+8*n+4*s, D if s else None))
    I("s_mov_b32 s11, s10")
    for i in range(8): I(f"v_mov_b64 {rr(DEN(0,0)+2*i,2)}, {sp(10)}")
    for i in range(16): I(f"v_pk_mul_f32 {rr(vQ+2*i,2)}, {rr(vQ+2*i,2)}, {sp(sTM)}")
    I(zero16(NUM(0,0)))
    for i in range(16): I(f"v_cvt_pk_bf16_f32 v{vCA+i}, v{vQ+2*i}, v{vQ+2*i+1}")
    for i in range(16): I(f"v_permlane32_swap_b32 v{vCA+16+i}, v{vCA+i}")
    I(f"s_mov_b32 s{sCI}, -1")
    I(f"s_mov_b64 {sp(sMSK)}, 0")
    I(f"s_mov_b32 s{sR0}, 0")
    I(f"s_mov_b32 s{sCNT}, 0")
    if STAG:
        I(f"s_cmp_lt_u32 s{sWP}, 4")
        I("s_cbranch_scc1 L_HAD0")
        put(dma_tile())
        epi_prep(u(2), u(3))
        L("L_HAD0")
    I(f"s_cmp_eq_u32 s{sST}, 0")
    I("s_cbranch_scc1 L_GO")
    lens_from_cnt(u(0))
    L("L_GO")
    for m in range(2): I(f"ds_read_u16 v{vEA+m}, v{vARO} offset:{64*m}")
    I(f"ds_read_b128 {rr(vQD,4)}, v{vARX} offset:{LWB}")
    I(f"ds_read_b32 v{vEI}, v{vARE} offset:{LWB}")
    I(f"s_lshr_b32 s10, s{sW}, 1")
    I("s_lshl_b32 s10, s10, 9")
    I(f"s_add_u32 s10, s10, {PRG}")
    assert PRG % 32 == 0
    I(f"v_lshl_add_u32 v{vPA}, v{lane}, 3, s10")
    I(f"s_bitcmp1_b32 s{sW}, 0")
    I(f"s_cselect_b32 s{sSG}, -1, 1")
    I(f"s_mul_i32 s10, s{sSG}, {-(1 << (25 if F2 else 24)) & 0xffffffff:#x}")
    I("s_or_b32 s10, s10, 0xdddd")
    I(f"v_mov_b32 v{vIDX}, s10")
    I(f"s_max_i32 s10, s{sN}, 1")
    I("s_sub_u32 s10, s10, 1")
    I(f"s_mul_i32 s10, s{sSG}, s10")
    I("s_lshl_b32 s10, s10, 24")
    I(f"v_mov_b32 v{u(0)}, s10")
    I(f"ds_add_u32 v{vPA}, v{u(0)}")
    I(f"v_mov_b32 v{vC1}, 0")
    I("s_mov_b32 exec_hi, 0")
    I(f"v_add_u32 v{vC1}, 0x200, v{vcEO}")
    I("s_mov_b32 exec_hi, -1")
    I("s_waitcnt lgkmcnt(0)")
    put(eafix())
    stamp(12)
    I("s_waitcnt vmcnt(0)")
    stamp(13)
    cstamp(56)
    for m in range(2): I(f"ds_read_b128 {rr(vEO+4*m,4)}, v{vEA+m}")
    for m, s in ORD: I(xread(m, s))
    I(f"s_cmp_lt_i32 s{sN}, 1")
    I("s_cbranch_scc1 L_DONE")
    g = g_mfmas(vP, 0, 0)
    I("s_waitcnt lgkmcnt(4)")
    for x_ in g[:4]: I(x_)
    I("s_waitcnt lgkmcnt(0)")
    for x_ in g[4:]: I(x_)
    I(f"s_mov_b32 s{sT}, 1")
    I(f"s_cmp_eq_u32 s{sN}, 1")
    I("s_cbranch_scc1 L_LT0")
    put(dma_tile())
    for cp in ((1, 0) if FAIR else (0,)):
        sw = lambda par: [f"s_cmp_ge_i32 s{sRM}, {opt('fth', 1)}", f"s_cbranch_scc{1-cp} L_PB{par}{1-cp}", f"L_PB{par}{cp}:"] if FAIR and (par == 0 or not F2) else []
        body = phase(0, 0, cp) + sw(0) + phase(0, 1, cp) + [f"s_cmp_ge_u32 s{sT}, s{sN}", "s_cbranch_scc1 L_LT1"]
        body += phase(1, 0, cp) + sw(1) + phase(1, 1, cp) + [f"s_cmp_lt_u32 s{sT}, s{sN}", f"s_cbranch_scc1 L_LOOP{cp}"]
        check_body(body)
        DBG = opt("dbg", "")
        if "nodma" in DBG: body = [b for b in body if not b.startswith("buffer_load")]
        if "dropS" in DBG: body = [b for b in body if not b.startswith("v_smfmac")]
        if "halfrcp" in DBG: body = [b for b in body if not (b.startswith("v_rcp") and int(b.split("v")[-1]) & 1)]
        if "droppk" in DBG: body = [b for b in body if not b.startswith("v_pk_mul")]
        if "halfx" in DBG: body = [b for b in body if not (b.startswith("v_mfma") and (f"v[{vX+4}:" in b or f"v[{vX+12}:" in b))]
        if "nolds" in DBG: body = [b for b in body if not (b.startswith("ds_read_b128") and f"v{vAX}" in b)]
        if opt("al", 0): body = align8(body, opt("al", 0))
        emit(".p2align 6")
        if opt("sh4", 0): I("s_nop 0")
        L(f"L_LOOP{cp}")
        put(body)
        I("s_branch L_LT0")
    if opt("cpe", 0):
        I("s_branch L_LT0")
        for cp in ((1, 0) if FAIR else (0,)):
            for par in range(2):
                L(f"L_CE{par}{cp}")
                I(f"s_getpc_b64 {sp(sA)}")
                I(f"v_and_b32 v{vEI}, 0xfc, v{vPA}")
                I(f"v_lshlrev_b32 v{vEI}, 5, v{vEI}")
                I(f"global_load_dword v{vEI}, v{vEI}, {sp(sA)}")
                I(f"s_branch L_ND{par}{cp}")
    assert STAG
    e = lambda i: vCA + i
    xd = vWV
    ZR = [vP, vWV + 16]
    nd = lambda w, i: e(16 + 4*w + i)
    sO = [sO0, sO1]
    wu = [f"ds_read_b64_tr_b16 {rr(vWB+8*n+4*s+2*uu,2)}, v{e(1)} offset:{(32*s + 8*uu)*WR + 32*n}" for s in range(2) for n in range(4) for uu in range(2)]
    lid = [f"v_mbcnt_lo_u32_b32 v{lane}, -1, 0", f"v_mbcnt_hi_u32_b32 v{lane}, -1, v{lane}", f"v_and_b32 v{vcS}, 24, v{vPA}"]
    a1 = [f"v_and_b32 v{e(0)}, 48, v{lane}", f"v_and_b32 v{e(3)}, 15, v{lane}",
          f"v_add_u32 v{e(5)}, s{sNT}, v{e(0)}", f"v_lshl_add_u32 v{e(6)}, v{e(3)}, 2, s{sNT}"]
    a1 += [f"ds_read_b128 {rr(nd(w,0),4)}, v{e(5)} offset:{64*w}" for w in range(2)]
    a1 += [f"ds_read2_b32 {rr(e(8),2)}, v{e(6)} offset0:0 offset1:16",
           f"v_bfe_u32 v{e(1)}, v{lane}, 2, 3", f"v_lshrrev_b32 v{e(2)}, 5, v{lane}", f"v_lshl_add_u32 v{e(1)}, v{e(2)}, 4, v{e(1)}",
           f"v_mul_u32_u24 v{e(1)}, {WR}, v{e(1)}", f"s_mov_b32 s10, {WUI}", f"v_add3_u32 v{e(1)}, v{e(1)}, v{vcS}, s10"]
    a1 += wu[:12]
    a1 += [f"s_movk_i32 s10, {(PL-32)//8}", f"v_mad_u32_u24 v{e(0)}, v{vcS}, s10, v{e(0)}",
           f"s_mov_b32 s10, {OWN}", f"v_lshl_add_u32 v{e(5)}, v{e(3)}, 3, s10"]
    a1 += [f"v_lshl_add_u32 v{e(10+w)}, v{e(3)}, 3, s{sOK+w}" for w in range(2)]
    a1 += ["s_waitcnt lgkmcnt(8)"] + wu[12:]
    a2 = []
    for w in range(2):
        for i in range(4):
            a2 += [f"v_add_u32 v{e(12)}, v{nd(w,i)}, v{e(5)}", f"ds_read_b64 {rr(xd+8*w+2*i,2)}, v{e(12)} offset:{i*(PL-32)}"]
    for w in range(2):
        a2 += [f"v_add3_u32 v{e(8+w)}, v{e(8+w)}, v{e(0)}, s10"]
        a2 += [f"ds_read_b128 {rr(vX+8*w+4*s,4)}, v{e(8+w)} offset:{64*s}" for s in range(2)]
    def unp(w, n): return [(f"v_and_b32 v{ZR[w]+4*n+i}, 0xffff0000, v{xd+8*w+2*i+(n>>1)}" if n & 1 else
                            f"v_lshlrev_b32 v{ZR[w]+4*n+i}, 16, v{xd+8*w+2*i+(n>>1)}") for i in range(4)]
    blk = [(w, n) for w in range(2) for n in range(4)]
    a3 = [["s_waitcnt lgkmcnt(0)"] + unp(0, 0) + unp(0, 1)]
    for k, (w, n) in enumerate(blk):
        a3[-1] += [m16(ZR[w]+4*n, vX+8*w, vWB+8*n, ZR[w]+4*n)]
        a3.append((unp(*blk[k+2]) if k + 2 < 8 else []) + [f"v_lshl_add_u32 v{nd(w,n)}, v{nd(w,n)}, 2, v{e(10+w)}",
                  m16(ZR[w]+4*n, vX+8*w+4, vWB+8*n+4, ZR[w]+4*n)])
        if k < 7: a3.append([])
    ME = opt("me", 0)
    if ME:
        for par in range(2):
            L(f"L_LB{par}")
            put(last_tile(par, 0, only_b=True))
            I("s_branch L_DONE")
    for par in range(2):
        L(f"L_LT{par}")
        I(f"s_cmp_lg_u32 s{sHF}, 0")
        I(f"s_cbranch_scc1 L_LH{par}")
        for half in range(2):
            if half: L(f"L_LH{par}")
            put(last_tile(par, half, (lid + a1, a2, a3) if ME else None))
            I("s_branch L_EPB" if ME else "s_branch L_DONE")
    L("L_DONE")
    put(lid)
    I(f"s_cmp_lg_u32 s{sMORE}, 0")
    I("s_cbranch_scc1 L_SLOW")
    L("L_EPI")
    I("s_waitcnt lgkmcnt(0)")
    put(a1 + a2 + sum(a3, []))
    L("L_EPB")
    stamp(14)
    cstamp(57)
    I(f"s_setprio {opt('epr', 0)}")
    I(f"s_mov_b64 exec, {sp(sCM)}")
    I(f"s_and_b32 s11, s{sSH}, 19")
    I("s_nop 2")
    for i in range(4):
        I(f"s_cmp_eq_u32 s11, {i}")
        I(f"s_cbranch_scc1 L_NS{i}")
    L("L_NSR")
    I("s_mov_b64 exec, -1")
    for w in range(2):
        for k in range(16): I(f"v_rcp_f32 v{DEN(w,0)+k}, v{DEN(w,0)+k}")
        for k in range(0, 16, 2): I(f"v_pk_fma_f32 {rr(NUM(w,0)+k,2)}, {rr(NUM(w,0)+k,2)}, {rr(DEN(w,0)+k,2)}, {rr(ZR[w]+k,2)}")
        for i in range(4):
            for h in range(2): I(f"v_cvt_pk_bf16_f32 v{DEN(w,0)+2*i+h}, v{NUM(w,2*h)+i}, v{NUM(w,2*h+1)+i}")
            for h in range(2):
                I(f"v_pk_max_f16 v{DEN(w,0)+2*i+h}, v{DEN(w,0)+2*i+h}, v{xd+8*w+2*i+h}")
            I(f"buffer_store_dwordx2 {rr(DEN(w,0)+2*i,2)}, v{nd(w,i)}, {sq(sO[w])}, 0 offen{pol(OP)}")
    stamp("e2")
    stamp_out()
    L("L_END")
    I("s_endpgm")
    for i in range(4):
        L(f"L_NS{i}")
        for k in range(8): I(f"v_add_f32 v{vACC+4*k+i}, v{vACC+4*k+i}, v{vACC+32+4*k+i}")
        I("s_branch L_NSR")
    for i in range(4):
        L(f"L_RT{i}")
        I("s_waitcnt vmcnt(0)")
        spin()
        for k in range(i, 4): poll_load(k)
        I("s_waitcnt vmcnt(0)")
        I(f"s_branch L_PW{i}")
    L("L_XT2B")
    spin()
    xload("b")
    I("s_waitcnt vmcnt(0)")
    I("s_branch L_XT2")
    L("L_OVF")
    I(f"s_mov_b32 s{sSKIP}, 0")
    I(f"s_mov_b32 s{sN}, 0")
    I(f"s_mov_b32 s{sST}, 0")
    I(f"s_mov_b32 s{sMORE}, 4")
    I("s_waitcnt lgkmcnt(0)")
    I("s_branch L_CA")
    q = vCA
    L("L_POVF")
    I("s_movk_i32 s11, 1986")
    for i in range(4):
        I(f"v_mul_u32_u24 v{q+i}, s11, v{vHS+i}")
        I(f"v_lshrrev_b32 v{q+i}, 16, v{q+i}")
    I(f"v_add_u32 v{q+5}, v{q}, v{q+1}")
    I(f"v_add_u32 v{q+6}, v{q+5}, v{q+2}")
    I(f"v_add_u32 v{q+7}, v{q+6}, v{q+3}")
    I(f"v_mov_b32 v{q+8}, v{q+7}")
    wave_scan(q + 8)
    I("s_nop 0")
    I(f"v_sub_u32 v{q+4}, v{q+8}, v{q+7}")
    I(f"v_add_u32 v{q+7}, v{q+4}, v{q+6}")
    I(f"v_add_u32 v{q+6}, v{q+4}, v{q+5}")
    I(f"v_add_u32 v{q+5}, v{q+4}, v{q}")
    for i in range(4): I(f"v_lshl_or_b32 v{q+4+i}, v{q+i}, 16, v{q+4+i}")
    I(f"v_add_u32 v{q+8}, {HDR}, v{l16}")
    I(f"ds_write_b128 v{q+8}, {rr(q+4,4)}")
    I("s_lshl_b32 s10, s2, 10")
    I(f"s_add_u32 s10, s10, {WS_HD}")
    I(f"buffer_store_dwordx4 {rr(q+4,4)}, v{l16}, {sq(sWS)}, s10 offen sc1")
    for i in range(8):
        I(f"v_and_b32 v{q+10+i}, 0x3fc, v{vHA+i}")
        I(f"v_add_u32 v{q+10+i}, {HDR}, v{q+10+i}")
        I(f"ds_read_u16 v{q+10+i}, v{q+10+i}")
    I("s_waitcnt lgkmcnt(0)")
    for i in range(4):
        I(f"v_cmpx_lt_u32 vcc, {33*(CAP+8)}, v{vHD+i}")
        I(f"v_or_b32 v{vO+4*i+1}, 0x10000, v{vO+4*i+1}")
        I("s_mov_b64 exec, -1")
    I(f"s_mul_i32 s10, s2, {DCH}")
    I(f"s_mov_b32 s{sTM}, {WS_RECS}")
    I(f"s_mov_b32 s{sTM+1}, {WS_LEID}")
    for i in range(NR):
        I(f"v_mul_u32_u24 v{q}, s11, v{vRK1+i}")
        I(f"v_lshrrev_b32 v{q}, 16, v{q}")
        I(f"v_add3_u32 v{q}, v{q}, v{q+10+i}, s10")
        I(f"v_lshlrev_b32 v{q+1}, 2, v{q}")
        I(f"v_cmpx_le_u32 vcc, {33*(CAP+8)}, v{vRK1+i}")
        I(f"s_cbranch_execz L_PO{i}")
        I(f"buffer_store_byte v{idr(i)}, v{q}, {sq(sWS)}, s{sTM+1} offen sc1")
        I(f"buffer_store_dword v{vSR+i}, v{q+1}, {sq(sWS)}, s{sTM} offen sc1")
        L(f"L_PO{i}")
        I("s_mov_b64 exec, -1")
    I("s_waitcnt vmcnt(0) lgkmcnt(0)")
    I("s_barrier")
    I("s_branch L_POUT")
    SB = 288
    t0, t1, t2, t3 = vP, vP+1, vP+2, vP+3
    L("L_SLOW")
    I("s_setprio 0")
    I(f"s_lshl_b32 s10, s{sWP}, 6")
    I(f"v_add_u32 v{tid}, s10, v{lane}")
    I(f"s_cmp_lg_u32 s{sMORE}, 4")
    I("s_cbranch_scc1 L_SL1")
    I(f"s_mov_b32 s{sMORE}, 1")
    I(f"v_and_b32 v{t0}, 0xff, v{tid}")
    I(f"v_lshlrev_b32 v{t1}, 7, v{t0}")
    I(f"buffer_load_dword v{t2}, v{t1}, {sq(sCEL)}, 0 offen offset:4 sc1")
    I(f"v_lshlrev_b32 v{t1}, 10, v{t0}")
    I(f"s_lshl_b32 s10, s{sB}, 2")
    I(f"s_add_u32 s10, s10, {WS_HD}")
    I(f"buffer_load_dword v{t3}, v{t1}, {sq(sWS)}, s10 offen sc1")
    I(f"v_lshlrev_b32 v{t0}, 2, v{t0}")
    I(f"v_add_u32 v{t0}, {HDR}, v{t0}")
    I("s_waitcnt vmcnt(0)")
    I(f"v_and_b32 v{t2}, 0x10000, v{t2}")
    I(f"v_cmp_ne_u32 vcc, 0, v{t2}")
    I(f"v_mov_b32 v{t2}, {(CAP+8) << 16}")
    I("s_nop 0")
    I(f"v_cndmask_b32 v{t2}, v{t2}, v{t3}, vcc")
    I(f"ds_write_b32 v{t0}, v{t2}")
    I("s_waitcnt lgkmcnt(0)")
    I("s_barrier")
    L("L_SL1")
    I(f"s_add_u32 s{sR0}, s{sR0}, {SB}")
    I(f"s_cmp_lt_u32 s{sR0}, s{sCNT}")
    I("s_cbranch_scc1 L_BATCH")
    L("L_FIND")
    I(f"s_cmp_lg_u64 {sp(sMSK)}, 0")
    I("s_cbranch_scc1 L_GOT")
    I(f"s_add_u32 s{sCI}, s{sCI}, 1")
    I(f"s_cmp_ge_u32 s{sCI}, 4")
    I("s_cbranch_scc1 L_EPI")
    I(f"s_lshl_b32 s10, s{sCI}, 8")
    I(f"s_add_u32 s10, s10, {HDR}")
    I(f"v_lshl_add_u32 v{t0}, v{lane}, 2, s10")
    I(f"ds_read_u16 v{t0}, v{t0} offset:2")
    I("s_waitcnt lgkmcnt(0)")
    I(f"v_cmp_lt_u32 {sp(sMSK)}, s{sSKIP}, v{t0}")
    I("s_nop 3")
    I("s_branch L_FIND")
    L("L_GOT")
    I(f"s_ff1_i32_b64 s10, {sp(sMSK)}")
    I(f"s_bitset0_b64 {sp(sMSK)}, s10")
    I(f"s_lshl_b32 s11, s{sCI}, 6")
    I(f"s_add_u32 s{sCUR}, s10, s11")
    I(f"s_lshl_b32 s10, s{sCUR}, 2")
    I(f"s_add_u32 s10, s10, {HDR}")
    I(f"v_mov_b32 v{t0}, s10")
    I(f"ds_read_b32 v{t0}, v{t0}")
    I("s_waitcnt lgkmcnt(0)")
    I(f"v_readfirstlane_b32 s10, v{t0}")
    I("s_nop 3")
    I(f"s_lshr_b32 s{sCNT}, s10, 16")
    I(f"s_and_b32 s{sST}, s10, 0xffff")
    I(f"s_mov_b32 s{sR0}, s{sSKIP}")
    L("L_BATCH")
    I("s_waitcnt vmcnt(0)")
    I("s_barrier")
    prefill(vP + 4)
    I(f"v_and_b32 v{t0}, 15, v{lane}")
    I(f"v_mul_u32_u24 v{t1}, {LWB}, v{t0}")
    I(f"v_add_u32 v{t1}, {BIAS}, v{t1}")
    I(f"v_lshlrev_b32 v{t0}, 2, v{t0}")
    I(f"ds_write_b32 v{t0}, v{t1} offset:{CNT}")
    t1, t4, t5 = vQ, vQ + 2, vQ + 3
    I(f"v_add_u32 v{t0}, s{sR0}, v{tid}")
    I(f"s_mul_i32 s{sTM+2}, s{sCUR}, {CH}")
    I(f"s_mul_i32 s11, s{sCUR}, {DCH}")
    I(f"s_add_u32 s11, s11, s{sST}")
    I(f"s_lshl_b32 s{sTM}, s11, 2")
    I(f"s_add_u32 s{sTM}, s{sTM}, {WS_RECS}")
    I(f"v_lshl_add_u32 v{t2}, v{t0}, 2, s{sTM}")
    I(f"s_add_u32 s{sTM}, s11, {WS_LEID}")
    I(f"v_add_u32 v{t3}, s{sTM}, v{t0}")
    I(f"s_mul_i32 s10, s{sB}, {RS}")
    I(f"s_lshl_b32 s{sTM}, s{sCUR}, 7")
    I(f"s_add_u32 s10, s10, s{sTM}")
    I(f"s_add_u32 s10, s10, {WS_CELL}")
    I(f"v_and_b32 v{t4}, 7, v{t0}")
    I(f"v_lshl_add_u32 v{t4}, v{t4}, 4, s10")
    I(f"v_lshrrev_b32 v{t5}, 3, v{t0}")
    I(f"v_cmpx_gt_u32 vcc, {CAP+8}, v{t0}")
    I(f"v_add_u32 v{t2}, {XOFF}, v{t4}")
    I(f"v_add_u32 v{t3}, 8, v{t2}")
    I(f"v_cmpx_gt_u32 vcc, {CAP}, v{t0}")
    I(f"v_lshl_add_u32 v{t2}, v{t5}, 2, v{t4}")
    I(f"v_add3_u32 v{t3}, v{t4}, v{t5}, 12")
    I("s_mov_b64 exec, -1")
    I(f"s_add_u32 s10, s{sR0}, {SB}")
    I(f"s_min_u32 s10, s10, s{sCNT}")
    I(f"v_cmp_gt_u32 vcc, s10, v{t0}")
    I(f"v_mov_b32 v{t4}, 0x7ffffff0")
    I("s_nop 0")
    I(f"v_cndmask_b32 v{t2}, v{t4}, v{t2}, vcc")
    I(f"v_cndmask_b32 v{t3}, v{t4}, v{t3}, vcc")
    I(f"buffer_load_dwordx2 {rr(t1,2)}, v{t2}, {sq(sWS)}, 0 offen sc1")
    I(f"buffer_load_ubyte v{t3}, v{t3}, {sq(sWS)}, 0 offen sc1")
    I("s_waitcnt lgkmcnt(0)")
    I("s_barrier")
    I("s_waitcnt vmcnt(0)")
    I(f"v_cmp_ne_u32 vcc, 3, v{t5}")
    I(f"v_cmp_eq_u32 {sp(sA)}, s{sK}, v{t1+1}")
    I(f"v_mov_b32 v{t4}, s{sTM+2}")
    I(f"s_or_b64 exec, vcc, {sp(sA)}")
    I(f"v_cmpx_ne_u32 vcc, 0, v{t1}")
    I(f"v_bfe_u32 v{t2}, v{t1}, 18, 8")
    I(f"v_lshlrev_b32 v{t2}, 2, v{t2}")
    I(f"v_add_u32 v{t0}, {MAP}, v{t2}")
    I(f"ds_read_b32 v{t0}, v{t0}")
    put(rec_ops(t1, t3, 0, t4, t2, t3))
    I(f"v_mov_b32 v{t2}, 4")
    I(f"v_and_b32 v{t1}, 0xffff, v{t1}")
    I("s_waitcnt lgkmcnt(0)")
    I(f"ds_add_rtn_u32 v{t0}, v{t0}, v{t2} offset:{CNT}")
    I("s_waitcnt lgkmcnt(0)")
    I(f"ds_write2st64_b32 v{t0}, v{t1}, v{t3} {W2}")
    I("s_mov_b64 exec, -1")
    I("s_waitcnt lgkmcnt(0)")
    I("s_barrier")
    listaddr(t2)
    I(f"ds_read_b128 {rr(vQD,4)}, v{vARX}")
    I(f"ds_read_b32 v{vEI}, v{vARE}")
    lens_from_cnt(t2)
    for r_ in (vQ, vQ + 2, vS, vS + 2): I(f"v_mov_b64 {rr(r_,2)}, 0")
    put(dma_tile())
    L("L_LAST")
    I("s_branch L_GO")

def regs_of(tok):
    tok = tok.strip()
    m = re.fullmatch(r"v\[(\d+):(\d+)\]", tok)
    if m: return list(range(int(m.group(1)), int(m.group(2)) + 1))
    m = re.fullmatch(r"v(\d+)", tok)
    if m: return [int(m.group(1))]
    return []
def parse(ins):
    op, _, rest = ins.partition(" ")
    ops = [o.strip().split(" ")[0] for o in rest.split(",")] if rest else []
    if op.startswith("ds_read") or "rtn" in op: return "ds", regs_of(ops[0]), regs_of(ops[1])
    return "other", [], sum((regs_of(o) for o in ops), [])
def check_body(body):
    s2 = [b for b in body if not b.endswith(":")]
    pend = []
    for i, ins in enumerate(s2 * 3):
        k, d, s = parse(ins)
        m = re.search(r"lgkmcnt\((\d+)\)", ins)
        if m:
            while len(pend) > int(m.group(1)): pend.pop(0)
        pr = set(sum(pend, []))
        for r in d + s:
            assert r not in pr, f"pending LDS reg v{r} used by {ins} @{i}"
        if k == "ds":
            pend.append(d); assert len(pend) <= 15

hdr = open("/code/" + NAME + ".s.ref").read().split("\n")
for l in hdr:
    if l.startswith("; Override"): break
    out.append(l)
if opt("list", 0): out.append(f"; @launch kernel={NAME}_kernel grid=(256,1,1) block=(512,1,1) lds={LDS}")
else: out.append(f"; @launch grid=(256,1,1) block=(512,1,1) lds={LDS}")
LEAK = opt("leak", "")
if LEAK: out.append("; @launch kernel=leak_kernel grid=(1,1,1) block=(256,1,1) lds=64")
emit('.amdgcn_target "amdgcn-amd-amdhsa--gfx950"\n.text')
kernel()
if LEAK:
    kind, nm = LEAK[0], LEAK[1:]
    si = STN.index(nm)
    emit(".globl leak_kernel\n.p2align 8\n.type leak_kernel,@function\nleak_kernel:")
    I("s_cmp_lg_u32 s2, 0")
    I("s_cbranch_scc1 LK_END")
    I("s_load_dwordx2 s[4:5], s[0:1], 88")
    I("v_min_u32 v1, 254, v0")
    I("v_lshlrev_b32 v1, 11, v1")
    I("v_mov_b32 v2, 0")
    I("v_mov_b32 v3, 0x7fffffff")
    I("v_mov_b32 v4, 0")
    I("ds_write2_b32 v2, v3, v4 offset0:0 offset1:1")
    I("s_waitcnt lgkmcnt(0)")
    I(f"s_add_u32 s4, s4, {WS_TS}")
    I("s_addc_u32 s5, s5, 0")
    I("global_load_dword v5, v2, s[4:5]")
    for w in range(8):
        I(f"global_load_dword v{8+w}, v1, s[4:5] offset:{256*w}")
        I(f"global_load_dword v{16+w}, v1, s[4:5] offset:{256*w + 4*si}")
    I("s_barrier")
    I("s_waitcnt vmcnt(0)")
    I("v_subrev_u32 v5, 1000, v5")
    for w in range(16): I(f"v_sub_u32 v{8+w}, v{8+w}, v5")
    for w in range(8):
        I(f"ds_min_u32 v2, v{8+w}")
        I(f"ds_{'max' if kind == 'm' else 'add'}_u32 v2, v{16+w} offset:4")
    I("s_waitcnt lgkmcnt(0)")
    I("s_barrier")
    I("ds_read_b64 v[6:7], v2")
    I("s_waitcnt lgkmcnt(0)")
    I("v_lshlrev_b32 v6, 2, v6")
    I("v_lshlrev_b32 v7, 2, v7" if kind == 'm' else "v_lshrrev_b32 v7, 9, v7")
    I("v_sub_u32 v6, v7, v6")
    I("v_min_u32 v6, 20000, v6")
    I("s_nop 0")
    I("v_readfirstlane_b32 s6, v6")
    I("s_memrealtime s[8:9]")
    I("s_waitcnt lgkmcnt(0)")
    L("LK_L")
    I("s_memrealtime s[10:11]")
    I("s_waitcnt lgkmcnt(0)")
    I("s_sub_u32 s7, s10, s8")
    I("s_cmp_lt_u32 s7, s6")
    I("s_cbranch_scc1 LK_L")
    L("LK_END")
    I("s_endpgm")
emit(f""".section .rodata,"a"
.p2align 6
.amdhsa_kernel {NAME}_kernel
  .amdhsa_next_free_vgpr 256
  .amdhsa_next_free_sgpr 102
  .amdhsa_accum_offset 256
  .amdhsa_group_segment_fixed_size 0
  .amdhsa_kernarg_size 96
  .amdhsa_user_sgpr_count 2
  .amdhsa_user_sgpr_kernarg_segment_ptr 1
  .amdhsa_system_sgpr_workgroup_id_x 1
.end_amdhsa_kernel""")
if LEAK:
    emit(""".p2align 6
.amdhsa_kernel leak_kernel
  .amdhsa_next_free_vgpr 32
  .amdhsa_next_free_sgpr 16
  .amdhsa_accum_offset 32
  .amdhsa_group_segment_fixed_size 0
  .amdhsa_kernarg_size 96
  .amdhsa_user_sgpr_count 2
  .amdhsa_user_sgpr_kernarg_segment_ptr 1
  .amdhsa_system_sgpr_workgroup_id_x 1
.end_amdhsa_kernel""")
if TS: out.insert(0, "; stamps " + " ".join(STN))
path = sys.argv[1] if len(sys.argv) > 1 else "/code/" + NAME + ".s"
open(path, "w").write("\n".join(out) + "\n")
print("wrote", path, len(out), "lines; lds", LDS)
```

```python
import sys, re, struct

NAME = "standalone__edge_featured_mpnn_gatedgcn__graph"
OPT = dict(kv.split("=") for kv in sys.argv[2:])
def opt(k, d):
    v = OPT.get(k)
    if v is None: return d
    return type(d)(v)

N, E = 50000, 800000
CH = 3128
BN = 196
XIL = opt('xil', 0)
RS = (513 if XIL else opt('rs', 257)) * 128
XOFF = 256 * 128 if XIL else 256 * RS
WS_CELL = 0x10000
WS_RECS = 0x1200000
WS_LEID = 0x1680000
WS_HD = 0x17a0000
WS_USED = 0x1800000
WS_TS = 0x3000000
KINC = 0x02020202
CAP = 24
LOG2E = 1.4426950408889634
def f2u(f): return struct.unpack("<I", struct.pack("<f", f))[0]

out = []
def emit(s=""):
    for l in s.strip("\n").split("\n"):
        out.append(l.rstrip())
def I(s): out.append("    " + s)
def L(s): out.append(s + ":")
def C(s): out.append("    ; " + s)
def put(seq):
    for s in seq:
        if s.endswith(":"): L(s[:-1])
        else: I(s)
def rr(a, n): return f"v[{a}:{a+n-1}]"
def sp(a): return f"s[{a}:{a+1}]"
def sq(a): return f"s[{a}:{a+3}]"
def pol(p): return (" " + p.replace("_", " ")) if p else ""

def srd(d, lo, size, add=None, stride=0):
    if add is None:
        I(f"s_mov_b32 s{d}, s{lo}")
        I(f"s_mov_b32 s{d+1}, s{lo+1}" if not stride else f"s_or_b32 s{d+1}, s{lo+1}, {stride << 16:#x}")
    else:
        I(f"s_add_u32 s{d}, s{lo}, {add}")
        I(f"s_addc_u32 s{d+1}, s{lo+1}, 0")
    I(f"s_mov_b32 s{d+2}, {size}")
    I(f"s_mov_b32 s{d+3}, 0x20000")

def wave_scan(v, fill=None, half=False):
    def gap():
        if fill and len(fill) >= 2:
            I(fill.pop(0)); I(fill.pop(0))
        else: I("s_nop 1")
    for sh in (1, 2, 4, 8):
        gap()
        I(f"v_add_u32_dpp v{v}, v{v}, v{v} row_shr:{sh} row_mask:0xf bank_mask:0xf bound_ctrl:0")
    gap()
    I(f"v_add_u32_dpp v{v}, v{v}, v{v} row_bcast:15 row_mask:0xa bank_mask:0xf")
    if half: return
    gap()
    I(f"v_add_u32_dpp v{v}, v{v}, v{v} row_bcast:31 row_mask:0xc bank_mask:0xf")

TAB, ZROW, CNT, FLAG = 0, 512, 576, 640
HIST = 1024
ESTG = HIST + 4096
HIST1 = ESTG
EARLY = ESTG + 8192
LWB = 288 * 4
R0 = EARLY + 32768
R1 = R0 + 16 * LWB
XSTG = R1 + 16 * LWB
XI = 1056
SLOT = 4 * XI
OWN = XSTG + 8 * SLOT
PL = 52 * 128 + 32
WR = 160
WUI = OWN + 4 * PL
MAP = WUI + 64 * WR
HDR = MAP + 1024
PRG = HDR + 1024
NT = PRG + 2048
LDS = NT + 1024
WBI, WVI, WCI = EARLY, EARLY + 64 * WR, EARLY + 128 * WR
WAI = XSTG + 8192
LROW = 160
CIMG = R0
assert CIMG + 256 * LROW <= WAI and LDS <= 163840, LDS
BIAS = 8192
assert R1 < 65536 and R0 % 256 == 0 and R1 % 256 == 0
W2 = f"offset0:{(R0-BIAS)//256} offset1:{(R1-BIAS)//256}"

vWB, vWV, vCA, vACC = 0, 32, 64, 96
vX, vEO, vS = 160, 176, 184
vP, vQ, vR = 188, 204, 220
vQD = 236
vEI, vCH, vONE, vCP, vAX, vcEO, vcS, vARX, vARE, vARO, vARS, vEA = 240, 241, 242, 243, 244, 245, 246, 247, 248, 249, 250, 251
lane, vTS, tid = 253, 254, 255
vC1, vIDX, vPA = lane, tid, vcS
DEN = lambda w, n: vACC + 32 * w + 4 * n
NUM = lambda w, n: vACC + 32 * w + 16 + 4 * n
def m16(d, a, b, c=None):
    return f"v_mfma_f32_16x16x32_bf16 {rr(d,4)}, {rr(a,4)}, {rr(b,4)}, " + ("0" if c is None else rr(c, 4))
def s16(d, b): return f"v_smfmac_f32_16x16x64_bf16 {rr(d,4)}, {rr(vS,4)}, {rr(b,8)}, v{vIDX}"

sWP, sW, sB, sK = 3, 4, 5, 6
sWIN, sF0, sF1, sL = 7, 8, 9, 12
sA, sBt = 10, 11
sSTG, sES, s128 = 13, 14, 15
pX, pE, pSRC, pDST, pWA, pWB, pWC, pWU, pWV, pOUT, pDBG, pWS = 16, 18, 20, 22, 24, 26, 28, 30, 32, 34, 36, 38
sT, sN, sFM, sMORE, sSKIP, sXT, sWS0, sWS1, sB0E, sSH = 16, 17, 18, 19, 20, 21, 22, 23, 24, 25
sCI, sCUR, sR0, sCNT, sST, sEND = 26, 27, 28, 29, 30, 31
sMSK = 32
sTM = 34
sX, sEP, sOUT, sWS, sCEL, sD2 = 40, 44, 48, 52, 56, 60
sM = 64
sJ3, sEM = 96, 98
sSP = 100
sHF = 99
sSG, sRM = 101, 96

TS = opt("ts", 0)
STN = []
YP = opt("yp", "")
def stamp(i):
    if str(i) in YP.split("_"):
        k = YP.split("_").index(str(i))
        I(f"s_cmp_lt_u32 s{sWP}, 4")
        I(f"s_cbranch_scc1 L_YP{k}")
        I(f"s_setprio {1 - (k & 1)}")
        L(f"L_YP{k}")
    if not TS: return
    if isinstance(i, str) and i[0] not in opt("tsx", ""): return
    STN.append(str(i)); i = len(STN) - 1
    I("s_memrealtime vcc" if TS == 1 else "s_memtime vcc")
    I("s_waitcnt lgkmcnt(0)")
    I(f"v_writelane_b32 v{vTS}, vcc_lo, {i}")
def stamp_out():
    if not TS: return
    I("s_waitcnt vmcnt(0)")
    stamp(15)
    I("s_memtime vcc")
    I("s_waitcnt lgkmcnt(0)")
    I(f"v_writelane_b32 v{vTS}, vcc_lo, 58")
    I(f"v_writelane_b32 v{vTS}, s{sN}, 59")
    I(f"v_writelane_b32 v{vTS}, s{sSP}, 60")
    I("s_getreg_b32 s10, hwreg(HW_REG_XCC_ID)")
    I(f"v_writelane_b32 v{vTS}, s10, 55")
    I("s_lshl_b32 s10, s2, 3")
    I(f"s_add_u32 s10, s10, s{sWP}")
    I("s_lshl_b32 s10, s10, 8")
    I(f"s_add_u32 s10, s10, {WS_TS}")
    I(f"v_lshl_add_u32 v{vP}, v{lane}, 2, s10")
    I(f"global_store_dword v{vP}, v{vTS}, {sp(pWS)}")
def cstamp(i):
    if not TS: return
    I("s_memtime vcc")
    I("s_waitcnt lgkmcnt(0)")
    I(f"v_writelane_b32 v{vTS}, vcc_lo, {i}")

LD_P = opt("ldp", "nt")
XP, EP, OP = opt("xp", ""), opt("ep", ""), opt("op", "sc1")
STP = opt("stp", "sc1")
MG = opt("mg", 1)
JE = opt("je", 4 if MG else 2)
EMASK = ((1 << JE) - 1) * 0x01010101
DCH = CH + 1024
SDW = "dst_sel:DWORD dst_unused:UNUSED_PAD"

def dma_tile():
    r = []
    for i in range(4):
        r.append(f"s_add_u32 m0, s{sSTG}, {i*XI}")
        r.append(f"v_mad_u32_u16 v{vQD+i}, v{vQD+i}, s{s128}, v{vCP}")
        r.append(f"buffer_load_dwordx4 v{vQD+i}, {sq(sX)}, 0 offen{pol(XP)} lds")
    r.append(f"s_mov_b32 m0, s{sES}")
    r.append(f"v_and_b32 v{vEI}, 0xfffff, v{vEI}")
    r.append(f"buffer_load_dwordx4 {rr(vEI,2)}, {sq(sEP)}, 0 idxen offen{pol(EP)} lds")
    return r

ORD = [(0, 0), (1, 0), (0, 1), (1, 1)]
def xread(m, s): return f"ds_read_b128 {rr(vX+8*m+4*s,4)}, v{vAX} offset:{512*m + 64*s}"
def g_mfmas(D, ft, w):
    g = [m16(D+8*n+4*m, vEO+4*m, vCA+16*w+8*ft+4*n) for m in range(2) for n in range(2)]
    g += [m16(D+8*n+4*m, vX+8*m+4*s, vWB+16*ft+8*n+4*s, D+8*n+4*m) for m, s in ORD for n in range(2)]
    return g
def h_mfmas(ft):
    return [m16(vQ+8*n+4*m, vX+8*m+4*s, vWV+16*ft+8*n+4*s, None if s == 0 else vQ+8*n+4*m) for m, s in ORD for n in range(2)]
def s_num(w, ft): return [s16(NUM(w, 2*ft+n), vQ+8*n) for n in range(2)]
def s_den(w, ft, G): return [s16(DEN(w, 2*ft+n), G+8*n) for n in range(2)]

def eafix():
    return [f"v_bfi_b32 v{vEA+m}, 31, v{vcEO}, v{vEA+m}" for m in range(2)] + [f"v_max_u32 v{vEA}, v{vEA}, v{vcEO}", f"v_max_u32 v{vEA+1}, v{vEA+1}, v{vC1}"]
LV = [int(c, 16) for c in opt("lv", "015a")]
PAT = opt("pat", "1" * 11 + "5")
FAIR = opt("fair", 1)
F2 = opt("f2", 0)
BST = opt("bst", 10)
LNG = opt("lng", 1)
ASL = [int(x) for x in opt("asl", "12_13_14_18").split("_")]
LLV = [int(x) for x in opt("llv", "0_2_12_26").split("_")]
LLP_ = opt("llp", "0003_1113").split("_")
def add1(q): return f"v_mfma_f32_4x4x4_16b_bf16 {rr(q,4)}, {rr(vONE,2)}, {rr(vONE,2)}, {rr(q,4)}"
def long_sec(mf, G, regs, slots, cp):
    r = []; k = 0
    tr = [f"v_exp_f32 v{G+i}, v{G+i}" for i in regs] + [f"v_rcp_f32 v{G+i}, v{G+i}" for i in regs]
    for i, x in enumerate(tr):
        if i in LLV:
            j = LLV.index(i)
            if j == 0 or LLP_[cp][j] != LLP_[cp][j-1]: r.append(f"s_setprio {LLP_[cp][j]}")
        if i in slots: r.append(add1(G + regs[4*slots.index(i)]))
        elif k < len(mf): r += mf[k]; k += 1
        r.append(x)
    assert k == len(mf)
    return r
def phase(par, ft, cp=0):
    G, Go = (vP, vR) if ft == 0 else (vR, vP)
    nf = 1 - ft
    wn = par if ft == 0 else par ^ 1
    wp = par ^ 1 if ft == 0 else par
    s1 = [[x] for x in s_num(wp, nf) + h_mfmas(ft) + s_den(wp, nf, Go)]
    s2 = [[x] for x in g_mfmas(Go, nf, wn)]
    if ft == 0:
        o = par * LWB
        s1[0] += [f"ds_read_u16 v{vQD+u}, v{vARS} offset:{o + 16*u}" for u in range(2)]
        s1[8] += ["s_waitcnt lgkmcnt(0)"] + [f"v_bfi_b32 v{vQD+u}, 31, v{vcS}, v{vQD+u}" for u in range(2)]
        if FAIR and (par == 0 or not F2):
            s1[0] += [f"ds_add_rtn_u32 v{vQD+2}, v{vPA}, v{vIDX}"]
            s1[8] += [f"v_readfirstlane_b32 s{sRM}, v{vQD+2}"]
            s2[1] += [f"s_ashr_i32 s{sRM}, s{sRM}, 24", f"s_mul_i32 s{sRM}, s{sRM}, s{sSG}"]
        o1 = 128 if par else LWB
        s2[0] += [f"ds_read_b64_tr_b16 {rr(vS+2*u,2)}, v{vQD+u}" for u in range(2)]
        s2[0] += [f"ds_read_u16 v{vEA+m}, v{vARO} offset:{o1 + 64*m}" for m in range(2)]
        s2[6] += ["s_waitcnt lgkmcnt(0)"] + eafix()
        s2[6] += [f"ds_read_b128 {rr(vQD,4)}, v{vARX} offset:{o + 128}", f"ds_read_b32 v{vEI}, v{vARE} offset:{o + 128}",
                  f"s_add_u32 s{sT}, s{sT}, 1"]
        if par: s2[7] += [f"v_add_u32 v{r}, 0x80, v{r}" for r in (vARX, vARE, vARO, vARS)]
    else:
        s1[2] = ["s_waitcnt vmcnt(0)"] + [f"ds_read_b128 {rr(vEO+4*m,4)}, v{vEA+m}" for m in range(2)] + s1[2]
        for i, (m, s) in enumerate(ORD): s1[3+2*i].append(xread(m, s))
        s2[0] = ["s_waitcnt lgkmcnt(4)"] + s2[0]
        for i in range(4): s2[4+2*i] = [f"s_waitcnt lgkmcnt({3-i})"] + s2[4+2*i]
        DSP = opt("dsp", "")
        if DSP:
            d = dma_tile(); first = min(int(c, 16) for c in DSP)
            for i in range(4): s2[4+2*i] = s2[4+2*i][1:] if 4+2*i > first else s2[4+2*i]
            s2[first] = ["s_waitcnt lgkmcnt(0)"] + [x for x in s2[first] if not x.startswith("s_waitcnt")]
            for k, c in enumerate(DSP): s2[int(c, 16)] += d[3*k:3*k+3]
        tgt = f"L_CE{par}{cp}" if opt("cpe", 0) else f"L_ND{par}{cp}"
        if not DSP: s2[10] += [f"s_cmp_lt_u32 s{sT}, s{sN}", f"s_cbranch_scc0 {tgt}"] + dma_tile() + [f"L_ND{par}{cp}:"]
    def sec(mf, op):
        r = []; k = 0
        for i, m in enumerate(mf):
            if opt("lvp", ""):
                lv = opt("lvp", "").split("_")[cp]
                if i in LV:
                    k_ = LV.index(i)
                    if k_ == 0 or lv[k_] != lv[k_-1]: r.append(f"s_setprio {lv[k_]}")
            elif FAIR:
                if i == 0: r.append(f"s_setprio {cp}")
                if i == BST: r.append("s_setprio 3")
            elif i in LV: r.append(f"s_setprio {LV.index(i)}")
            r += m
            for _ in range(int(PAT[i])):
                r.append(f"{op} v{G+k}, v{G+k}"); k += 1
        assert k == 16
        return r
    r = []
    if opt("tt", 0) and ft == 0:
        r += ["s_memrealtime vcc", "s_memtime s[10:11]", f"s_add_u32 m0, s{sT}, 17", "s_waitcnt lgkmcnt(0)", f"v_writelane_b32 v{vTS}, vcc_lo, m0",
              f"s_add_u32 m0, s{sT}, 35", "s_nop 0", f"v_writelane_b32 v{vTS}, s10, m0"]
    if LNG:
        r += long_sec(s1 + s2, G, list(range(16)), ASL, cp)
        return r + [f"v_pk_mul_f32 {rr(vQ+2*i,2)}, {rr(G+2*i,2)}, {rr(vQ+2*i,2)}" for i in range(8)]
    r += sec(s1, "v_exp_f32")
    r += [f"v_pk_add_f32 {rr(G+2*i,2)}, {rr(G+2*i,2)}, 1.0 op_sel_hi:[1,0]" for i in range(8)]
    r += sec(s2, "v_rcp_f32")
    r += [f"v_pk_mul_f32 {rr(vQ+2*i,2)}, {rr(G+2*i,2)}, {rr(vQ+2*i,2)}" for i in range(8)]
    return r

def last_tile(par, half, epi=None, only_b=False):
    keep = (lambda x: int(re.match(r"\S+ v\[(\d+)", x).group(1)) % 8 == (vP % 8)) if half else (lambda x: True)
    regs = [k for k in range(16) if not (half and k & 4)]
    def sec(mf, op, G):
        r = [f"s_setprio {opt('lpr', 0)}"]; k = 0
        tail = min(len(regs), 4 if half else 5)
        for i, m in enumerate(mf):
            if i == len(mf) - 1: r.append("s_setprio 3")
            r += m
            e_ = (len(regs) - tail) * (i + 1) // (len(mf) - 1) if i < len(mf) - 1 else len(regs)
            while k < e_:
                r.append(f"{op} v{G+regs[k]}, v{G+regs[k]}"); k += 1
        while k < len(regs):
            r.append(f"{op} v{G+regs[k]}, v{G+regs[k]}"); k += 1
        return r
    r = []
    for ft in range(1 if only_b else 0, 2):
        G, Go = (vP, vR) if ft == 0 else (vR, vP)
        wp = par ^ 1 if ft == 0 else par
        s1 = [[x] for x in s_num(wp, 1-ft) + [h for h in h_mfmas(ft) if keep(h)] + s_den(wp, 1-ft, Go)]
        s2 = [[x] for x in g_mfmas(Go, 1, par) if keep(x)] if ft == 0 else []
        if ft == 0:
            s1[0] += [f"ds_read_u16 v{vQD+u}, v{vARS} offset:{par*LWB + 16*u}" for u in range(2)]
            s1[-2] += ["s_waitcnt lgkmcnt(0)"] + [f"v_bfi_b32 v{vQD+u}, 31, v{vcS}, v{vQD+u}" for u in range(2)]
            s2[0] += [f"ds_read_b64_tr_b16 {rr(vS+2*u,2)}, v{vQD+u}" for u in range(2)]
        else:
            s1[0] = ["s_waitcnt lgkmcnt(0)"] + s1[0]
            if epi:
                a1, a2, a3 = epi
                r += [f"s_cmp_lg_u32 s{sMORE}, 0", f"s_cbranch_scc1 L_LB{par}"]
                n_ = len(s1) - 3
                for k in range(n_): s1[k] += a1[len(a1)*k//n_:len(a1)*(k+1)//n_]
                s1[-3] += a2[:len(a2)//2]; s1[-2] += a2[len(a2)//2:]
                s2 = [list(x) for x in a3]
        r += sec(s1, "v_exp_f32", G)
        r += [f"v_pk_add_f32 {rr(G+k,2)}, {rr(G+k,2)}, 1.0 op_sel_hi:[1,0]" for k in regs[::2]]
        r += sec(s2, "v_rcp_f32", G)
        r += [f"v_pk_mul_f32 {rr(vQ+k,2)}, {rr(G+k,2)}, {rr(vQ+k,2)}" for k in regs[::2]]
    return r + s_den(par, 1, vR) + s_num(par, 1)

def isize(x):
    op = x.split()[0]
    if x.endswith(":"): return 0
    if op in ("v_exp_f32", "v_rcp_f32", "v_max_u32", "v_readfirstlane_b32"): return 4
    if op.startswith("s_"):
        m = re.search(r", (0x[0-9a-f]+|\d+)$", x)
        return 8 if (m and op not in ("s_setprio", "s_nop", "s_waitcnt") and int(m.group(1), 0) > 64) else 4
    return 8
def align8(body, mode):
    body = list(body); run = []; r = []
    for x in body:
        z = isize(x)
        if z == 8:
            if sum(isize(r[i]) for i in run) % 8:
                c = [i for i in run if r[i].split()[0] in ("v_exp_f32", "v_rcp_f32", "v_max_u32")]
                if c: r[c[-1]] = r[c[-1]].replace(" ", "_e64 ", 1); run = []
                elif mode == 2: r.append("s_nop 0"); run = []
                else: run = [i for i in run if isize(r[i])][:1]
            else: run = []
            r.append(x)
        else:
            run.append(len(r)); r.append(x)
    return r

def listaddr(t0):
    I(f"v_lshrrev_b32 v{t0}, 3, v{lane}")
    I(f"v_lshl_add_u32 v{vARX}, v{t0}, 4, s{sL}")
    I(f"s_add_u32 s10, s{sL}, {R1-R0}")
    I(f"v_lshrrev_b32 v{t0}, 1, v{lane}")
    I(f"v_lshl_add_u32 v{vARE}, v{t0}, 2, s10")
    I(f"s_add_u32 s10, s10, 2")
    I(f"v_and_b32 v{t0}, 48, v{lane}")
    I(f"v_lshl_add_u32 v{vARS}, v{t0}, 1, s10")
    I(f"v_and_b32 v{t0}, 12, v{lane}")
    I(f"v_add_u32 v{vARS}, v{vARS}, v{t0}")
    I(f"v_lshrrev_b32 v{t0}, 5, v{lane}")
    I(f"v_mul_u32_u24 v{vARO}, {R1-R0}, v{t0}")
    I(f"v_and_b32 v{t0}, 15, v{lane}")
    I(f"v_lshl_add_u32 v{vARO}, v{t0}, 2, v{vARO}")
    I(f"s_add_u32 s10, s{sL}, 2")
    I(f"v_add_u32 v{vARO}, s10, v{vARO}")

def prefill(t):
    for d in range(2): I(f"v_mov_b64 {rr(t+2*d,2)}, 0")
    for d in range(4): I(f"v_mov_b32 v{t+4+d}, {(ZROW << 16) | 0xfffff:#x}")
    I(f"v_lshl_add_u32 v{t+8}, v{lane}, 4, s{sL}")
    for o in (0, 1024, 2*LWB - 1024):
        I(f"ds_write_b128 v{t+8}, {rr(t,4)} offset:{o}")
        I(f"ds_write_b128 v{t+8}, {rr(t+4,4)} offset:{o + R1 - R0}")

def kernel():
    emit(f"""
.globl {NAME}_kernel
.p2align 8
.type {NAME}_kernel,@function
{NAME}_kernel:""")
    FH = opt("fh", 1)
    vD, vSR, vT16 = vACC + 32, vACC, vR + 12
    if TS and opt("tz", 0): I("s_memrealtime s[96:97]")
    I("s_load_dwordx16 s[16:31], s[0:1], 0")
    I("s_load_dwordx8 s[32:39], s[0:1], 64")
    CPN = opt("cpn", 8)
    if opt("cpf", 1):
        I(f"s_getpc_b64 {sp(sM)}")
        L("L_PC")
        if CPN == 8: I("s_and_b32 s3, s2, -8")
        else:
            I("s_lshr_b32 s3, s2, 3")
            I(f"s_and_b32 s3, s3, {256//CPN - 1}")
            I(f"s_mul_i32 s3, s3, {CPN}")
        I("v_add_lshl_u32 v1, v0, s3, 7")
        I("v_min_u32 v1, L_LAST-L_PC, v1")
        I(f"v_cmpx_gt_u32 vcc, {CPN}, v0")
        I("s_cbranch_execz L_NOCPF")
        I(f"global_load_dword v{vEA}, v1, {sp(sM)}")
        L("L_NOCPF")
        I("s_mov_b64 exec, -1")
    I("s_cmp_ge_u32 s2, 256")
    I("s_cbranch_scc1 L_END")
    if FH:
        I(f"s_mul_i32 s{sA}, s2, {CH*4}")
        I(f"v_lshl_add_u32 v1, v0, 4, s{sA}")
        I(f"s_add_u32 s{sBt}, s{sA}, {CH*4}")
        I(f"s_min_u32 s{sBt}, s{sBt}, {E*4}")
        BAL = opt("bal", 0)
        if BAL:
            I(f"s_add_u32 s{sA}, s{sA}, 0x2000")
            I(f"v_lshl_add_u32 v2, v0, 3, s{sA}")
            I(f"s_add_u32 s{sA}, s{sA}, 0x1000")
            I(f"v_lshl_add_u32 v3, v0, 2, s{sA}")
            I(f"v_cmp_gt_u32 {sp(sM+6)}, s{sBt}, v2")
            I(f"v_min_u32 v2, {E*4 - 8}, v2")
        else: I("v_add_u32 v2, 0x2000, v1")
        I("s_waitcnt lgkmcnt(0)")
        if TS and opt("tz", 0): I("s_memrealtime s[98:99]")
        I(f"global_load_dwordx4 {rr(vD,4)}, v1, {sp(pDST)}{pol(LD_P)}")
        if BAL:
            I(f"global_load_dwordx2 {rr(vD+4,2)}, v2, {sp(pDST)}{pol(LD_P)}")
            I(f"global_load_dwordx4 {rr(vSR,4)}, v1, {sp(pSRC)}{pol(LD_P)}")
            I(f"global_load_dwordx2 {rr(vSR+4,2)}, v2, {sp(pSRC)}{pol(LD_P)}")
            I(f"v_cmpx_gt_u32 {sp(sM+28)}, s{sBt}, v3")
            I("s_cbranch_execz L_NO7")
            I(f"global_load_dword v{vD+6}, v3, {sp(pDST)}{pol(LD_P)}")
            I(f"global_load_dword v{vSR+6}, v3, {sp(pSRC)}{pol(LD_P)}")
        else:
            I(f"global_load_dwordx4 {rr(vSR,4)}, v1, {sp(pSRC)}{pol(LD_P)}")
            def group2():
                I(f"v_cmpx_gt_u32 {sp(sM+6)}, s{sBt}, v2")
                I("s_cbranch_execz L_NO8")
                I(f"global_load_dwordx4 {rr(vD+4,4)}, v2, {sp(pDST)}{pol(LD_P)}")
                I(f"global_load_dwordx4 {rr(vSR+4,4)}, v2, {sp(pSRC)}{pol(LD_P)}")
                L("L_NO8")
                I("s_mov_b64 exec, -1")
            G2 = opt("g2", 0)
            if G2 == 0: group2()
        L("L_NO7")
        I("s_mov_b64 exec, -1")
        KV = opt("kv", 0)
        if KV:
            I("v_mov_b32 v1, 0")
            I(f"global_load_dword v{vEA+1}, v1, {sp(pWS)}")
        else: I(f"s_load_dword s{sK}, {sp(pWS)}, 0")
        if opt("tlb", 0):
            I("v_lshlrev_b32 v1, 20, v0")
            I(f"v_add_u32 v1, {WS_CELL + XOFF - 448*(1 << 20) & 0xffffffff:#x}, v1")
            I("v_subrev_u32 v2, 448, v0")
            I("v_cmpx_gt_u32 vcc, 9, v2")
            I("s_cbranch_execz L_NOTLB")
            I(f"global_load_dword v{vEA+1}, v1, {sp(pWS)}")
            L("L_NOTLB")
            I("s_mov_b64 exec, -1")
    if TS: I(f"v_mov_b32 v{vTS}, 0")
    u = lambda i: vP + i
    if TS and opt("tz", 0):
        I("s_waitcnt lgkmcnt(0)")
        I(f"v_writelane_b32 v{vTS}, s96, 0")
        I(f"v_writelane_b32 v{vTS}, s98, 1")
        STN.extend(["z", "k"])
    stamp(0)
    vBK, vRK1, vID, vHA, vIC = vACC + 8, vACC + 16, vACC + 24, vACC + 40, vACC + 48
    vRW = vX
    one, l16 = vS, vS + 1
    vOA, vT16, sOW = vR + 14, vR + 12, 101
    I(f"v_mov_b32 v{tid}, v0")
    I(f"v_lshrrev_b32 v{u(0)}, 6, v0")
    I(f"v_and_b32 v{lane}, 63, v0")
    I(f"v_readfirstlane_b32 s{sWP}, v{u(0)}")
    I(f"v_lshlrev_b32 v{vT16}, 4, v0")
    I(f"v_lshlrev_b32 v{u(2)}, 3, v0")
    I(f"v_lshlrev_b32 v{u(3)}, 2, v0")
    I(f"v_and_b32 v{u(4)}, 0x3fc, v{u(3)}")
    if not FH:
        I(f"s_mul_i32 s{sA}, s2, {CH*4}")
        I(f"s_sub_u32 s{sBt}, {E*4}, s{sA}")
        I(f"s_min_u32 s{sBt}, s{sBt}, {CH*4}")
    I(f"s_and_b32 s{sB}, s2, 7")
    I(f"s_lshr_b32 s{sW}, s2, 3")
    I(f"s_lshl_b32 s{sB}, s{sB}, 5")
    I(f"s_add_u32 s{sB}, s{sB}, s{sW}")
    I(f"s_mul_i32 s{sF1}, s{sB}, {BN}")
    I(f"s_cmp_eq_u32 s{sWP}, 7")
    I(f"s_cselect_b32 s{sOW}, 0, s{sWP}")
    I(f"s_lshl_b32 s{sL}, s{sOW}, 5")
    I(f"s_add_u32 s{sF1}, s{sF1}, s{sL}")
    I(f"v_lshrrev_b32 v{u(5)}, 3, v{lane}")
    I(f"v_lshl_add_u32 v{u(5)}, v{u(5)}, 2, s{sF1}")
    I(f"v_and_b32 v{vCP}, 7, v{lane}")
    I(f"v_lshlrev_b32 v{vCP}, 4, v{vCP}")
    I(f"v_lshl_add_u32 v{vOA}, v{u(5)}, 7, v{vCP}")
    I(f"s_lshl_b32 s{sOW}, s{sOW}, 10")
    I(f"s_add_u32 s{sOW}, s{sOW}, {OWN}")
    if not FH:
        I(f"s_movk_i32 s{sF0}, 0x2000")
        I("s_waitcnt lgkmcnt(0)")
        I(f"s_load_dword s{sK}, {sp(pWS)}, 0")
        srd(sCEL, pDST, f"s{sBt}", f"s{sA}")
        srd(sD2, pSRC, f"s{sBt}", f"s{sA}")
        I(f"buffer_load_dwordx4 {rr(vD,4)}, v{vT16}, {sq(sCEL)}, 0 offen{pol(LD_P)}")
        I(f"buffer_load_dwordx4 {rr(vSR,4)}, v{vT16}, {sq(sD2)}, 0 offen{pol(LD_P)}")
        I(f"s_cmp_ge_u32 s{sWP}, 5")
        I("s_cbranch_scc1 L_NO7")
        I(f"buffer_load_dwordx4 {rr(vD+4,4)}, v{vT16}, {sq(sCEL)}, s{sF0} offen{pol(LD_P)}")
        I(f"buffer_load_dwordx4 {rr(vSR+4,4)}, v{vT16}, {sq(sD2)}, s{sF0} offen{pol(LD_P)}")
        L("L_NO7")
    for d in range(2): I(f"v_mov_b64 {rr(u(8)+2*d,2)}, 0")
    I(f"v_mov_b32 v{u(6)}, {33*JE if MG else 0}")
    I(f"ds_write2st64_b32 v{u(4)}, v{u(6)}, v{u(8)} offset0:{HIST1//256} offset1:{HIST1//256+4}")
    I(f"v_add_u32 v{u(5)}, {CIMG}, v{vT16}")
    if G2 == 1: group2()
    for k in range(5): I(f"ds_write_b128 v{u(5)}, {rr(u(8),4)} offset:{8192*k}")
    if G2 == 2: group2()
    PF = opt("pf", 0)
    def w_loads():
        I(f"s_cmp_ge_u32 s{sWP}, 2")
        I("s_cbranch_scc1 L_NOC")
        I(f"global_load_dwordx4 {rr(vEO,4)}, v{vT16}, {sp(pWC)}")
        L("L_NOC")
        for k, p in enumerate((pWB, pWV, pWA, pWU)):
            I(f"global_load_dwordx4 {rr(vRW+4*k,4)}, v{vT16}, {sp(p)}")
    def own_loads():
        I(f"s_cmp_eq_u32 s{sWP}, 6")
        I("s_cselect_b32 exec_hi, 0, -1")
        I(f"s_cmp_eq_u32 s{sWP}, 7")
        I("s_cselect_b64 exec, 1, exec")
        for k in range(4):
            I(f"s_add_u32 m0, s{sOW}, {(PL-128)*k}")
            I("s_nop 0")
            I(f"buffer_load_dwordx4 v{vOA}, {sq(sX)}, 0 offen offset:{128*k}{pol(opt('owp', ''))} lds")
        I("s_mov_b64 exec, -1")
        if PF:
            assert PF <= 512
            I(f"s_lshr_b32 s{sTM+1}, s2, 3")
            I(f"s_mul_i32 s{sTM}, s{sTM+1}, {PF*128}")
            I(f"v_min_u32 v{vEA+1}, {PF-1}, v{tid}")
            I(f"v_lshlrev_b32 v{vEA+1}, 7, v{vEA+1}")
            I(f"buffer_load_dword v{vEA+1}, v{vEA+1}, {sq(sX)}, s{sTM} offen")
    LLP = 2
    OLP = opt("olp", 2)
    NY = 0
    srd(sEP, pE, E, stride=32)
    srd(sOUT, pOUT, N*128)
    srd(sX, pX, N*128)
    OY = 0
    if OLP == 3:
        OW0 = opt("ow0", 5); nw = 8 - OW0; per = -(-28 // nw); OY = per
        I(f"s_cmp_lt_u32 s{sWP}, {OW0}")
        I("s_cbranch_scc1 L_NOOWN")
        I(f"s_mul_i32 s{sF1}, s{sB}, {BN}")
        I(f"v_lshrrev_b32 v{vOA}, 3, v{lane}")
        I(f"v_lshl_add_u32 v{vOA}, v{vOA}, 2, s{sF1}")
        I(f"v_lshl_add_u32 v{vOA}, v{vOA}, 7, v{vCP}")
        I(f"s_sub_u32 s{sF0}, s{sWP}, {OW0}")
        for k in range(per):
            I(f"s_add_u32 s{sF1}, s{sF0}, {nw*k}")
            I(f"s_min_u32 s{sF1}, s{sF1}, 27")
            I(f"s_and_b32 s{sL}, s{sF1}, 3")
            I(f"s_lshr_b32 s{sF1}, s{sF1}, 2")
            I(f"s_mul_i32 s{sOW}, s{sL}, {PL}")
            I(f"s_lshl_b32 s{sL}, s{sL}, 7")
            I(f"s_cmp_eq_u32 s{sF1}, 6")
            I("s_cselect_b32 exec_hi, 0, -1")
            I(f"s_lshl_b32 s{sF1}, s{sF1}, 10")
            I(f"s_add_u32 s{sOW}, s{sOW}, s{sF1}")
            I(f"s_add_u32 m0, s{sOW}, {OWN}")
            I(f"s_lshl2_add_u32 s{sL}, s{sF1}, s{sL}")
            I(f"buffer_load_dwordx4 v{vOA}, {sq(sX)}, s{sL} offen lds")
        I("s_mov_b32 exec_hi, -1")
        L("L_NOOWN")
    srd(sWS, pWS, WS_USED)
    I(f"s_lshl_b32 s{sL}, s2, 7")
    I(f"s_add_u32 s{sL}, s{sL}, {WS_CELL}")
    srd(sCEL, pWS, 255*RS + XOFF + 128, f"s{sL}")
    cM, cN, cP, cPM, cR = sM, sM + 1, sM + 2, sM + 3, sM + 4
    m2 = sM + 6
    I(f"s_mov_b32 s{cM}, 85599")
    I(f"s_mov_b32 s{cN}, {-BN & 0xffffffff}")
    I(f"s_movk_i32 s{cP}, 5368")
    I(f"s_mov_b32 s{cPM}, {opt('phm', 3) << 26:#x}")
    I(f"s_mov_b32 s{cR}, {RS}")
    I(f"s_mov_b32 s{sSP}, {-(196*5368) & 0xffffffff:#x}")
    for i in range(4): I(f"v_add_u32 v{vID+i}, {i}, v{u(3)}")
    I(f"s_lshl_b32 s{sA}, s{sWP}, 28")
    I(f"s_or_b32 s{sA}, s{sA}, 0x20000")
    I(f"v_mov_b32 v{vIC}, s{sA}")
    if BAL:
        assert MG <= 1 and OLP != 3
        I(f"s_lshr_b32 s{sA}, s{sWP}, 1")
        I(f"s_lshl_b32 s{sA}, s{sA}, 28")
        I(f"s_or_b32 s{sA}, s{sA}, 0x80020000")
        I(f"v_mov_b32 v{vIC+1}, s{sA}")
        I(f"v_mov_b32 v{vIC+3}, 0xc0020000")
        I(f"v_lshlrev_b32 v{vID+4}, 1, v{tid}")
        I(f"v_add_u32 v{vID+5}, 1, v{vID+4}")
        I(f"v_mov_b32 v{vID+6}, v{tid}")
    else: I(f"v_or_b32 v{vIC+1}, 0x80000000, v{vIC}")
    idr = (lambda i: vID + i) if BAL else (lambda i: vID + (i & 3))
    icr = (lambda i: vIC + (3 if i == 6 else i >> 2)) if BAL else (lambda i: vIC + (i >> 2))
    NR = 7 if BAL else 8
    I(f"v_mov_b32 v{one}, 33")
    vK1 = vIC + 2
    I(f"v_mov_b32 v{vK1}, 0x400")
    if not FH:
        I(f"s_sub_u32 s{sBt}, s{sBt}, 0x2000")
        I(f"v_cmp_gt_u32 {sp(m2)}, s{sBt}, v{vT16}")
    I(f"s_and_b32 s{sA}, s{sWP}, 3")
    I(f"s_lshr_b32 s{sW}, s{sWP}, 2")
    I(f"s_lshl1_add_u32 s{sW}, s{sA}, s{sW}")
    if opt("swp", 1): I(f"s_xor_b32 s{sW}, s{sW}, 1")
    I(f"s_mul_i32 s{sA}, s{sW}, 49")
    I(f"s_sub_i32 s{sA}, s{sA}, 6")
    I(f"s_ashr_i32 s{sA}, s{sA}, 1")
    I(f"s_max_i32 s{sWIN}, s{sA}, 0")
    I(f"s_mul_i32 s{sSTG}, s{sW}, {SLOT}")
    I(f"s_add_u32 s{sSTG}, s{sSTG}, {XSTG}")
    I(f"s_lshl_b32 s{sES}, s{sW}, 10")
    I(f"s_add_u32 s{sES}, s{sES}, {ESTG}")
    I(f"s_mul_i32 s{sL}, s{sW}, {2*LWB}")
    I(f"s_add_u32 s{sL}, s{sL}, {R0}")
    I(f"s_movk_i32 s{s128}, 128")
    if G2 == 3: group2()
    I(f"v_bfe_u32 v{u(6)}, v{tid}, 4, 4")
    I(f"v_and_b32 v{u(7)}, 7, v{tid}")
    I(f"v_cmp_eq_u32 vcc, v{u(6)}, v{u(7)}")
    I(f"v_and_b32 v{u(6)}, 8, v{tid}")
    I(f"v_lshlrev_b32 v{u(6)}, 1, v{u(6)}")
    I(f"v_mov_b32 v{u(8)}, 0x3f80")
    I(f"v_lshlrev_b32 v{u(8)}, v{u(6)}, v{u(8)}")
    I(f"v_cndmask_b32 v{u(8)}, 0, v{u(8)}, vcc")
    I(f"ds_write_b32 v{u(4)}, v{u(8)} offset:{TAB}")
    I(f"v_mov_b64 {rr(u(8),2)}, 0")
    I(f"ds_write_b64 v{u(2)}, {rr(u(8),2)} offset:{HIST}")
    I(f"v_add_u32 v{u(6)}, {PRG}, v{u(3)}")
    I(f"ds_write_b32 v{u(6)}, v{u(8)}")
    go, lo, lo2, ha = vR, vR + 1, vR + 2, vR + 3
    wl, wal = vR + 4, vR + 5
    I(f"v_lshrrev_b32 v{ha}, 3, v{tid}")
    I(f"v_mad_u32_u24 v{go}, v{ha}, s{cR}, v{vCP}")
    I(f"v_mul_u32_u24 v{wl}, {LROW}, v{ha}")
    I(f"v_add_u32 v{lo}, v{wl}, v{vCP}")
    I(f"v_add_u32 v{lo}, {CIMG}, v{lo}")
    assert LROW == WR
    I(f"v_bfe_u32 v{u(6)}, v{tid}, 5, 1")
    I(f"v_bfe_u32 v{u(8)}, v{tid}, 6, 1")
    I(f"v_sub_u32 v{u(6)}, v{u(6)}, v{u(8)}")
    I(f"v_mul_i32_i24 v{u(6)}, {4*WR}, v{u(6)}")
    I(f"v_add_u32 v{wl}, v{wl}, v{u(6)}")
    I(f"v_lshl_add_u32 v{wl}, v{u(7)}, 2, v{wl}")
    I(f"v_add_u32 v{wl}, {WBI}, v{wl}")
    I(f"v_lshlrev_b32 v{l16}, 4, v{lane}")
    I(f"v_and_b32 v{u(6)}, 3, v{lane}")
    I(f"v_lshlrev_b32 v{vcS}, 3, v{u(6)}")
    I(f"v_bfe_u32 v{u(9)}, v{lane}, 2, 3")
    I(f"v_lshrrev_b32 v{u(8)}, 5, v{lane}")
    I(f"v_lshl_add_u32 v{u(9)}, v{u(8)}, 4, v{u(9)}")
    I(f"v_mul_u32_u24 v{wal}, {WR}, v{u(9)}")
    I(f"v_add_u32 v{wal}, v{wal}, v{vcS}")
    mm = lambda i: sM + 8 + 2*i
    def rank_a(rs, wsrc=0, plain=False):
        for i in rs: I(f"v_mul_u32_u24 v{vBK+i}, s{cM}, v{vD+i}")
        if rs[0] // 4 < MG and not plain:
            b = rs[0]
            for i in rs: I(f"v_lshrrev_b32 v{vHA+i}, 29, v{vBK+i}")
            if opt("px", 0):
                I(f"s_waitcnt vmcnt({wsrc})")
                for i in rs:
                    I(f"v_cmp_gt_u32 vcc, {opt('px', 0)}, v{vSR+i}")
                    I("s_nop 1")
                    I(f"v_cndmask_b32 v{vHA+i}, v{vHA+i}, v{vID+(i&3)}, vcc") if False else I(f"v_cndmask_b32_e64 v{vHA+i}, v{vHA+i}, {8+(i&3)}, vcc")
            t0, t1 = sM + 24, sM + 26
            I(f"v_cmp_eq_u32 {sp(mm(b))}, v{vHA+b}, v{vHA+b+1}")
            I(f"v_cmp_eq_u32 {sp(mm(b+2))}, v{vHA+b+2}, v{vHA+b+3}")
            I(f"v_cmp_eq_u32 vcc, v{vHA+b}, v{vHA+b+2}")
            I(f"v_cmp_eq_u32 {sp(t0)}, v{vHA+b+1}, v{vHA+b+3}")
            I(f"v_cmp_eq_u32 {sp(t1)}, v{vHA+b}, v{vHA+b+3}")
            I(f"v_cmp_eq_u32 {sp(sA)}, v{vHA+b+1}, v{vHA+b+2}")
            for i in rs: I(f"v_lshrrev_b32 v{vBK+i}, 24, v{vBK+i}")
            I(f"s_or_b64 {sp(mm(b+1))}, {sp(mm(b))}, {sp(t0)}")
            I(f"s_or_b64 {sp(mm(b+3))}, {sp(mm(b+2))}, {sp(t0)}")
            I(f"s_or_b64 {sp(mm(b))}, {sp(mm(b))}, vcc")
            I(f"s_or_b64 {sp(mm(b+2))}, {sp(mm(b+2))}, vcc")
            I(f"s_or_b64 {sp(mm(b))}, {sp(mm(b))}, {sp(t1)}")
            I(f"s_or_b64 {sp(mm(b+1))}, {sp(mm(b+1))}, {sp(sA)}")
            I(f"s_or_b64 {sp(mm(b+2))}, {sp(mm(b+2))}, {sp(sA)}")
            I(f"s_or_b64 {sp(mm(b+3))}, {sp(mm(b+3))}, {sp(t1)}")
            for i in rs:
                I(f"v_cndmask_b32 v{vHA+i}, 0, v{vK1}, {sp(mm(i))}")
                I(f"v_lshl_add_u32 v{vHA+i}, v{vBK+i}, 2, v{vHA+i}")
                I(f"ds_add_rtn_u32 v{vRK1+i}, v{vHA+i}, v{one} offset:{HIST1}")
            return
        for i in rs: I(f"v_lshrrev_b32 v{vBK+i}, 24, v{vBK+i}")
        for i in rs:
            I(f"v_lshlrev_b32 v{vHA+i}, 2, v{vBK+i}")
            I(f"ds_add_rtn_u32 v{vRK1+i}, v{vHA+i}, v{one} offset:{HIST1}")
    def again(rs, wait, em):
        for i in rs:
            I(f"s_waitcnt lgkmcnt({wait})")
            I(f"s_mov_b64 exec, {sp(mm(i))}")
            I(f"v_cmpx_le_u32 vcc, {33*JE}, v{vRK1+i}")
            I(f"ds_add_rtn_u32 v{vRK1+i}, v{vHA+i}, v{one} offset:{HIST1 - 1024}")
        I(f"s_mov_b64 exec, {em}")
    def rank_b(rs):
        for i in rs:
            I(f"v_mad_i32_i24 v{vD+i}, v{vBK+i}, s{cN}, v{vD+i}")
            I(f"v_mul_u32_u24 v{u(6)}, s{cP}, v{vSR+i}")
            I(f"v_lshl_or_b32 v{vSR+i}, v{vD+i}, 18, v{vSR+i}")
            if opt("rot", 1):
                I(f"v_and_b32 v{vD+i}, 0xe0, v{vBK+i}")
                I(f"v_mad_i32_i24 v{u(6)}, v{vD+i}, s{sSP}, v{u(6)}")
            I(f"v_and_or_b32 v{u(6)}, v{u(6)}, s{cPM}, v{icr(i)}")
            I(f"v_mad_u32_u24 v{vD+i}, v{vBK+i}, {LROW//4}, s{cN+4}")
            I(f"v_or_b32 v{vSR+i}, v{vSR+i}, v{u(6)}")
    def place(i, wait, em):
        I(f"s_waitcnt lgkmcnt({wait})")
        I(f"v_bfe_u32 v{u(6)}, v{vRK1+i}, 3, 5")
        I(f"v_add_lshl_u32 v{vD+i}, v{u(6)}, v{vD+i}, 2")
        I(f"v_and_b32 v{u(6)}, 3, v{u(6)}")
        I(f"v_mad_i32_i24 v{u(6)}, v{u(6)}, -3, v{vD+i}")
        I(f"v_cmpx_gt_u32 vcc, {33*CAP}, v{vRK1+i}")
        I(f"ds_write_b32 v{vD+i}, v{vSR+i}")
        I(f"ds_write_b8 v{u(6)}, v{idr(i)} offset:12")
        I(f"s_mov_b64 exec, {em}")
    I(f"s_movk_i32 s{cN+4}, {CIMG//4}")
    for d in range(2): I(f"v_mov_b64 {rr(vRK1+4+2*d,2)}, 0")
    I("s_waitcnt lgkmcnt(0)")
    I("s_barrier")
    if BAL:
        m3 = sM + 28
        I("s_waitcnt vmcnt(3)")
        stamp(1)
        if TS: STN.pop()
        rank_a(range(4))
        I("s_waitcnt vmcnt(2)")
        I(f"s_mov_b64 exec, {sp(m2)}")
        rank_a(range(4, 6))
        if MG: again(range(4), 5, "-1")
        else: I("s_mov_b64 exec, -1")
        I("s_waitcnt vmcnt(0)")
        rank_b(range(6))
        I(f"s_mov_b64 exec, {sp(m2)}")
        for i in range(4, 6): place(i, (1 if MG else -3) + i, sp(m2) if i < 5 else "-1")
        for i in range(4): place(i, 7 + i, "-1")
        I(f"s_mov_b64 exec, {sp(m3)}")
        I("s_cbranch_execz L_B1")
        rank_a([6]); rank_b([6]); place(6, 0, "-1")
        I("s_branch L_B1")
    I(f"s_cmp_eq_u64 {sp(m2)}, 0" if FH else f"s_cmp_ge_u32 s{sWP}, 5")
    I("s_cbranch_scc1 L_R4")
    I(f"s_waitcnt vmcnt({3+KV})")
    stamp(1)
    rank_a(range(4), 2)
    I(f"s_waitcnt vmcnt({1+KV})")
    I(f"s_mov_b64 exec, {sp(m2)}")
    rank_a(range(4, 8))
    if MG == 0:
        I("s_mov_b64 exec, -1")
        rank_b(range(4))
        for i in range(4): place(i, 7 + i, "-1" if i < 3 else sp(m2))
        I(f"s_waitcnt vmcnt({KV})")
        rank_b(range(4, 8))
        for i in range(4, 8): place(i, 7 + i, sp(m2) if i < 7 else "-1")
    elif MG == 1:
        again(range(4), 7, sp(m2))
        I(f"s_waitcnt vmcnt({KV})")
        rank_b(range(4, 8))
        for i in range(4, 8): place(i, 3 + i, sp(m2) if i < 7 else "-1")
        rank_b(range(4))
        for i in range(4): place(i, 11 + i, "-1")
    else:
        again(range(8), 7, "-1")
        rank_b(range(4))
        for i in range(4): place(i, 7 + i, "-1" if i < 3 else sp(m2))
        I(f"s_waitcnt vmcnt({KV})")
        rank_b(range(4, 8))
        for i in range(4, 8): place(i, 7 + i, sp(m2) if i < 7 else "-1")
    I("s_branch L_B1")
    L("L_R4")
    if OY:
        I(f"s_cmp_ge_u32 s{sWP}, {OW0}")
        I("s_cbranch_scc1 L_R4A")
        I(f"s_waitcnt vmcnt({KV})")
        L("L_R4A")
    I(f"s_waitcnt vmcnt({1 + OY + KV})")
    if TS: STN.pop()
    stamp(1)
    YM = opt("ym", 1)
    rank_a(range(4), plain=not YM)
    I(f"s_waitcnt vmcnt({OY + KV})")
    if MG and YM:
        rank_b(range(2))
        again(range(4), 3, "-1")
        rank_b(range(2, 4))
    else: rank_b(range(4))
    for i in range(4): place(i, 3 + i, "-1")
    L("L_B1")
    if BAL:
        k_ = max(i for i, l in enumerate(out) if l.strip() == "s_cbranch_execz L_B1")
        e_ = next(i for i in range(k_, len(out)) if out[i].strip() == "s_branch L_B1")
        del out[e_:len(out)-1]
        I("s_mov_b64 exec, -1")
    w_loads()
    vTG = vS + 2
    def tagcalc():
        I(f"s_add_u32 s{sK}, s{sK}, {KINC:#x}")
        I(f"v_lshlrev_b32 v{vTG}, v{vcS}, s{sK}")
        I(f"v_and_b32 v{u(1)}, 4, v{lane}")
        I(f"v_mul_u32_u24 v{u(1)}, {37 << 15}, v{u(1)}")
        I(f"v_lshl_add_u32 v{vTG}, v{u(1)}, 8, v{vTG}")
        I(f"v_and_b32 v{vTG}, 0xfe000000, v{vTG}")
    if not KV: tagcalc()
    vTH = vS + 3
    I(f"v_and_b32 v{vTH}, 7, v{lane}")
    I(f"v_mul_u32_u24 v{vTH}, 33, v{vTH}")
    I(f"v_add_u32 v{vTH}, {33*CAP}, v{vTH}")
    I(f"v_lshlrev_b32 v{lo2}, 2, v{ha}")
    I(f"s_mov_b32 s{cM}, 0x1000000")
    I("s_waitcnt lgkmcnt(0)")
    I("s_barrier")
    stamp(2)
    vO, vHS = vQ, u(4)
    I(f"ds_read_b128 {rr(vHS,4)}, v{l16} offset:{HIST1}")
    vHD = vR + 8
    for i in range(4):
        I(f"ds_read_b32 v{vHD+i}, v{lo2} offset:{HIST1 + 256*i}")
        I(f"ds_read_b128 {rr(vO+4*i,4)}, v{lo} offset:{64*LROW*i}")
    if KV:
        I("s_waitcnt vmcnt(4)")
        I(f"v_readfirstlane_b32 s{sK}, v{vEA+1}")
    for i in range(1, 4): I(f"s_mov_b32 s{sM+15+i}, {64*RS*i}")
    if KV: tagcalc()
    I("s_waitcnt lgkmcnt(8)")
    I(f"v_max3_u32 v{u(0)}, v{vHS}, v{vHS+1}, v{vHS+2}")
    I(f"v_max_u32 v{u(0)}, v{u(0)}, v{vHS+3}")
    I(f"v_cmp_lt_u32 vcc, {33*(CAP+8)}, v{u(0)}")
    I("s_cbranch_vccnz L_POVF")
    L("L_POUT")
    for i in range(4):
        I(f"s_waitcnt lgkmcnt({7 - 2*i})")
        I(f"v_sub_u32 v{vHD+i}, v{vTH}, v{vHD+i}")
        I(f"v_and_or_b32 v{vHD+i}, v{vHD+i}, s{cM}, v{vTG}")
        I(f"s_waitcnt lgkmcnt({6 - 2*i})")
        I(f"v_or_b32 v{vO+4*i+3}, v{vO+4*i+3}, v{vHD+i}")
        I(f"buffer_store_dwordx4 {rr(vO+4*i,4)}, v{go}, {sq(sCEL)}, {f's{sM+15+i}' if i else '0'} offen{pol(STP)}")
    stamp(3)
    if "c" in opt("tsx", ""): I("s_waitcnt vmcnt(0)")
    stamp("c0")
    t = vACC + 32
    I(f"s_mov_b32 s{sA}, {f2u(-LOG2E):#x}")
    I(f"s_mov_b32 s{sBt}, s{sA}")
    I(f"s_mov_b32 s{cM}, 0x05040100")
    I(f"s_mov_b32 s{cP}, 0x07060302")
    def wscaled(src, off):
        for d in range(4):
            I(f"v_lshlrev_b32 v{t+2*d}, 16, v{src+d}")
            I(f"v_and_b32 v{t+2*d+1}, 0xffff0000, v{src+d}")
        for d in range(4): I(f"v_pk_mul_f32 {rr(t+2*d,2)}, {rr(t+2*d,2)}, {sp(sA)}")
        for n in range(4): I(f"v_cvt_pk_bf16_f32 v{t+8+n}, v{t+n}, v{t+4+n}")
        wput(t + 8, off)
    def wplain(src, off, tt):
        for n in range(4): I(f"v_perm_b32 v{tt+n}, v{src+2+(n>>1)}, v{src+(n>>1)}, s{cP if n & 1 else cM}")
        wput(tt, off)
    def wput(r, off):
        a = wl
        if off:
            a = r + 4
            I(f"v_add_u32 v{a}, {off}, v{wl}")
        I(f"ds_write2_b32 v{a}, v{r}, v{r+1} offset0:0 offset1:8")
        I(f"ds_write2_b32 v{a}, v{r+2}, v{r+3} offset0:16 offset1:24")
    I("s_waitcnt vmcnt(4)")
    stamp("b4")
    wplain(vRW + 8, WAI - WBI, t + 16)
    wscaled(vRW, 0)
    wplain(vRW + 4, WVI - WBI, t + 24)
    wplain(vRW + 12, WUI - WBI, t + 16)
    I(f"s_cmp_ge_u32 s{sWP}, 2")
    I("s_cbranch_scc1 L_NOWC")
    wscaled(vEO, WCI - WBI)
    L("L_NOWC")
    I(f"s_mul_i32 s{sTM}, s{sB}, {RS}")
    I(f"s_add_u32 s{sTM}, s{sTM}, {WS_CELL}")
    srd(sCEL, pWS, 256*128, f"s{sTM}")
    I(f"s_add_u32 s{sTM}, s{sTM}, {XOFF}")
    srd(sD2, pWS, 256*128, f"s{sTM}")
    vC, vEB = vACC + 32, vACC + 60
    pa = vT16
    for k in (1, 2, 3): I(f"s_movk_i32 s{sCI+k-1}, {8192*k}")
    def poll_load(i):
        so = "0" if i == 0 else f"s{sCI+i-1}"
        I(f"buffer_load_dwordx4 {rr(vC+4*i,4)}, v{pa}, {sq(sCEL)}, {so} offen sc1")
    I("s_waitcnt lgkmcnt(0)")
    I("s_barrier")
    stamp(4)
    if OLP == 0: own_loads()
    vWA = vACC
    I(f"v_add_u32 v{wal}, {WBI}, v{wal}")
    def trw(reg, img):
        return [f"ds_read_b64_tr_b16 {rr(reg+8*n+4*s+2*uu,2)}, v{wal} offset:{img + (32*s + 8*uu)*WR + 32*n}"
                for n in range(4) for s in range(2) for uu in range(2)]
    tw = trw(vWB, 0) + trw(vWV, WVI - WBI)
    for x_ in tw[:14]: I(x_)
    prefill(vCA)
    for x_ in tw[14:24]: I(x_)
    nxt = 24
    I(f"v_mov_b32 v{u(4)}, v{wal}")
    I("s_mov_b32 exec_lo, 0")
    I(f"v_subrev_u32 v{u(4)}, {16*WR}, v{wal}")
    I("s_mov_b32 exec_lo, -1")
    tw += [f"ds_read_b64_tr_b16 {rr(vCA+16+4*n+2*uu,2)}, v{u(4)} offset:{WCI - WBI + 8*uu*WR + 32*n}" for n in range(4) for uu in range(2)]
    vEM, vET = vEO, vACC + 56
    ownn, owna, mapa = vEO + 1, vEO + 2, vEO + 3
    I("s_waitcnt lgkmcnt(4)")
    for x_ in tw[nxt:]: I(x_)
    I(f"v_add_u32 v{wal}, {WAI - WBI}, v{wal}")
    vFF = vEO + 4
    vMU = vR + 8
    lo0, hi0, lo1, hi1 = sWS0, sWS1, sB0E, sSH
    def late_setup():
        I(f"v_and_b32 v{vCH}, 1, v{lane}")
        I(f"v_lshlrev_b32 v{vCH}, 4, v{vCH}")
        I(f"v_mov_b32 v{vONE}, 0x3f80")
        I(f"v_and_b32 v{vcEO}, 16, v{lane}")
        I(f"v_and_b32 v{u(6)}, 15, v{lane}")
        I(f"v_lshl_add_u32 v{u(6)}, v{u(6)}, 5, s{sES}")
        I("s_mov_b32 exec_hi, 0")
        I(f"v_add_u32 v{vcEO}, v{vcEO}, v{u(6)}")
        I("s_mov_b32 exec_hi, -1")
        I(f"v_and_b32 v{u(6)}, 3, v{lane}")
        I(f"v_bfe_u32 v{u(8)}, v{lane}, 2, 2")
        I(f"v_and_b32 v{u(9)}, 48, v{lane}")
        I(f"v_lshl_add_u32 v{u(10)}, v{u(8)}, 7, v{u(9)}")
        I(f"v_mul_u32_u24 v{vAX}, {XI}, v{u(6)}")
        I(f"v_add3_u32 v{vAX}, v{vAX}, v{u(10)}, s{sSTG}")
        listaddr(u(6))
        I(f"v_mul_u32_u24 v{vEB}, {CH}, v{ha}")
        for i in range(1, 4): I(f"v_add_u32 v{vEB+i}, {64*i*CH}, v{vEB}")
        I(f"s_mov_b32 s{sEM}, {EMASK:#x}")
        I(f"s_mov_b32 s{sEM+1}, {EMASK:#x}")
        vFF = vEO + 4
        I(f"v_mov_b32 v{vFF}, 0xfffff")
        I(f"v_cndmask_b32 v{vEM}, 0, v{vFF}, {sp(sEM)}")
        I(f"v_add_lshl_u32 v{u(3)}, v{pa}, v{vCP}, 16")
        for i in range(4):
            I(f"v_add_u32 v{vET+i}, {(EARLY + 8192*i) << 16:#x}, v{u(3)}")
            I(f"v_cndmask_b32 v{vET+i}, 0, v{vET+i}, {sp(sEM)}")
        I(f"v_mov_b32 v{one}, 4")
        I(f"v_and_b32 v{ownn}, 31, v{lane}")
        I(f"v_add_lshl_u32 v{mapa}, v{ownn}, s{sWIN}, 2")
        I(f"v_lshrrev_b32 v{u(3)}, 5, v{lane}")
        I(f"v_lshl_add_u32 v{owna}, v{u(3)}, 11, v{mapa}")
        I(f"v_add_u32 v{mapa}, {MAP}, v{mapa}")
        I(f"v_lshlrev_b32 v{u(3)}, 2, v{lane}")
        I(f"v_subrev_u32 v{u(3)}, s{sWIN}, v{u(3)}")
        I("s_mov_b32 s10, 0x10000")
        for i in range(4):
            I(f"v_add_u32 v{vMU+i}, {i}, v{u(3)}")
            I(f"v_and_or_b32 v{vMU+i}, v{vMU+i}, s10, 1")
        I(f"s_movk_i32 s{sFM}, 0xffc")
        I(f"s_movk_i32 s{sSKIP}, {CAP+8}")
        I(f"s_mov_b32 s{sXT}, 0")
        I(f"s_mov_b32 s{sSP}, 0")
        I(f"s_mov_b32 s{sT}, 0x1ffffff")
        I(f"s_mov_b32 s{sN}, 0xffff")
        lo0, hi0, lo1, hi1 = sWS0, sWS1, sB0E, sSH
        I(f"s_mul_i32 s10, s{sW}, 49")
        I(f"s_sub_i32 s{lo0}, s10, 6")
        I(f"s_ashr_i32 s{lo0}, s{lo0}, 1")
        I(f"s_add_i32 s{hi0}, s10, 7")
        I(f"s_ashr_i32 s{hi0}, s{hi0}, 1")
        I(f"s_add_i32 s{lo1}, s10, 43")
        I(f"s_ashr_i32 s{lo1}, s{lo1}, 1")
        I(f"s_add_i32 s{hi1}, s{lo0}, 31")
        I(f"s_cmp_eq_u32 s{sW}, 7")
        I(f"s_cselect_b32 s{lo1}, {BN}, s{lo1}")
        I(f"s_cselect_b32 s{hi1}, {BN}, s{hi1}")
        for r_ in (hi0, lo1, hi1): I(f"s_sub_i32 s{r_}, s{r_}, s{sWIN}")
    LS = opt("ls", 0)
    if LS == 0: late_setup()
    stamp("b0")
    if opt("pw", 1): I(f"s_waitcnt vmcnt({4 if OLP == 0 else 0})")
    stamp("b1")
    if opt("pbar", 0): I("s_barrier")
    for i in range(4): poll_load(i)
    if OLP == 1: own_loads()
    if LS == 1: late_setup()
    PY = 4 if OLP == 1 else 0
    I(f"v_max3_u32 v{u(0)}, v{vRK1}, v{vRK1+1}, v{vRK1+2}")
    I(f"v_max3_u32 v{u(1)}, v{vRK1+3}, v{vRK1+4}, v{vRK1+5}")
    I(f"v_max3_u32 v{u(0)}, v{u(0)}, v{vRK1+6}, v{vRK1+7}")
    I(f"v_max_u32 v{u(0)}, v{u(0)}, v{u(1)}")
    I(f"v_cmp_le_u32 vcc, {33*CAP}, v{u(0)}")
    I("s_cbranch_vccz L_PEXTR")
    q = vCA
    if TS: I(f"v_writelane_b32 v{vTS}, 1, 61")
    I(f"v_mov_b32 v{q+1}, s{sK}")
    I(f"s_lshl_b32 s{sTM}, s2, 7")
    I(f"s_add_u32 s{sTM}, s{sTM}, {WS_CELL + XOFF}")
    for i in range(NR):
        I(f"v_subrev_u32 v{q+4}, {33*CAP}, v{vRK1+i}")
        I(f"v_cmpx_gt_u32 vcc, {33*8}, v{q+4}")
        I(f"s_cbranch_execz L_PE{i}")
        I(f"v_mov_b32 v{q}, v{vSR+i}")
        I(f"v_mov_b32 v{q+2}, v{idr(i)}")
        I(f"v_bfe_u32 v{q+4}, v{vRK1+i}, 5, 3")
        I(f"v_lshlrev_b32 v{q+4}, 4, v{q+4}")
        I(f"v_mad_u32_u24 v{q+4}, v{vBK+i}, s{cR}, v{q+4}")
        I(f"buffer_store_dwordx4 {rr(q,4)}, v{q+4}, {sq(sWS)}, s{sTM} offen sc1")
        L(f"L_PE{i}")
        I("s_mov_b64 exec, -1")
    L("L_PEXTR")
    stamp(5)
    vA, vRK, vR1 = vACC, vACC + 16, vQ
    mk = lambda i, j: sM + 2*(4*i + j)
    def rec_ops(d, x, byte, eb, a, r1, keep=None):
        e_ = r1 if keep is None else keep
        return [f"v_add_u32_sdwa v{e_}, v{x}, v{eb} {SDW} src0_sel:BYTE_{byte} src1_sel:DWORD",
                f"v_lshrrev_b32 v{u(1)}, 28, v{d}",
                f"v_lshl_add_u32 v{e_}, v{u(1)}, 8, v{e_}",
                f"v_and_b32 v{u(1)}, 60, v{a}",
                f"v_lshl_add_u32 v{r1}, v{u(1)}, 19, v{e_}"]
    def spin():
        I(f"s_add_u32 s{sSP}, s{sSP}, 1")
        I(f"s_cmp_gt_u32 s{sSP}, {opt('spin', 200000)}")
        I("s_cbranch_scc1 L_END")
        if opt("slp", 1): I(f"s_sleep {opt('slp', 1)}")
    xg = vCA
    def xload(tag):
        for i in range(4):
            I(f"s_mov_b64 exec, {sp(mk(i,3))}")
            I(f"s_cbranch_execz L_XL{tag}{i}")
            I(f"s_movk_i32 s10, {8192*i}")
            I(f"buffer_load_dwordx4 {rr(xg+4*i,4)}, v{pa}, {sq(sD2)}, s10 offen sc1")
            L(f"L_XL{tag}{i}")
        I("s_mov_b64 exec, -1")
    for i in range(4):
        c_ = vC + 4*i
        L(f"L_PW{i}")
        I(f"s_waitcnt vmcnt({3 - i + PY})")
        I(f"v_xor_b32 v{u(0)}, v{c_+3}, v{vTG}")
        for j in range(3): I(f"v_and_b32_sdwa v{vA+4*i+j}, v{c_+j}, s{sFM} {SDW} src0_sel:WORD_1 src1_sel:DWORD")
        I(f"v_cmp_lt_u32 vcc, s{sT}, v{u(0)}")
        for j in range(3): I(f"v_cmp_ne_u32 {sp(mk(i,j))}, 0, v{c_+j}")
        I(f"s_cbranch_vccnz L_RT{i}")
        if i == 3: stamp(6)
        for j in range(3):
            I(f"s_mov_b64 exec, {sp(mk(i,j))}")
            I(f"ds_add_rtn_u32 v{vRK+4*i+j}, v{vA+4*i+j}, v{one} offset:{HIST}")
        I("s_mov_b64 exec, -1")
        if i == 3:
            I(f"v_or3_b32 v{u(2)}, v{vC+3}, v{vC+7}, v{vC+11}")
            I(f"v_or_b32 v{u(2)}, v{u(2)}, v{vC+15}")
            I(f"v_and_b32 v{u(2)}, 0x1000000, v{u(2)}")
            I(f"v_cmp_ne_u32 vcc, 0, v{u(2)}")
            I("s_cbranch_vccz L_XT1R")
            def xt1():
                if TS: I(f"v_writelane_b32 v{vTS}, 1, 62")
                for i in range(4):
                    I(f"v_and_b32 v{u(2)}, 0x1000000, v{vC+4*i+3}")
                    I(f"v_cmp_ne_u32 {sp(mk(i,3))}, 0, v{u(2)}")
                    I(f"s_bcnt1_i32_b64 s10, {sp(mk(i,3))}")
                    I(f"s_lshl2_add_u32 s{sXT}, s10, s{sXT}")
                xload("a")
                I(f"v_or3_b32 v{u(2)}, v{vC+1}, v{vC+5}, v{vC+9}")
                I(f"v_or_b32 v{u(2)}, v{u(2)}, v{vC+13}")
                I(f"v_and_b32 v{u(2)}, 0x10000, v{u(2)}")
                I(f"v_mov_b32 v{u(3)}, {FLAG}")
                I(f"v_cmpx_ne_u32 vcc, 0, v{u(2)}")
                I(f"ds_write_b32 v{u(3)}, v{one} offset:4")
                I("s_mov_b64 exec, 1")
                I(f"v_mov_b32 v{u(2)}, s{sXT}")
                I(f"ds_add_u32 v{u(3)}, v{u(2)} offset:8")
                I("s_mov_b64 exec, -1")
            xt1()
            L("L_XT1R")
        for j in range(3):
            put(rec_ops(c_+j, c_+3, j, vEB+i, vA+4*i+j, vR1+4*i+j, vR1+4*i+3 if j == 0 and JE else None))
        e_ = vR1 + 4*i + 3
        if JE: I(f"v_cndmask_b32 v{u(0)}, v{vFF}, v{e_}, {sp(mk(i,0))}")
        I(f"v_and_or_b32 v{c_}, v{c_}, s{sN}, v{vET+i}")
        I(f"v_or_b32 v{vR1+4*i}, v{vR1+4*i}, v{vEM}")
        if JE:
            I(f"v_mov_b32_dpp v{u(1)}, v{u(0)} quad_perm:[2,2,3,3] row_mask:0xf bank_mask:0xf")
            I(f"v_mov_b32_dpp v{e_}, v{u(0)} quad_perm:[0,0,1,1] row_mask:0xf bank_mask:0xf")
        I(f"v_and_b32 v{c_+2}, s{sN}, v{c_+2}")
        if JE: I(f"v_mov_b32_dpp v{e_}, v{u(1)} row_shr:4 row_mask:0xf bank_mask:0xa")
    fill = [f"v_and_b32 v{vC+4*i+1}, s{sN}, v{vC+4*i+1}" for i in range(4)]
    I(f"v_mov_b32 v{u(9)}, {FLAG}")
    if OLP == 2: own_loads()
    I("s_waitcnt lgkmcnt(0)")
    stamp("d0")
    I("s_barrier")
    stamp(7)
    def early(i):
        if not JE: return
        I(f"s_lshl_b32 m0, s{sWP}, 10")
        I(f"v_mov_b32 v{vEI}, v{vR1+4*i+3}")
        I(f"s_add_u32 m0, m0, {EARLY + 8192*i}")
        if JE < 4:
            I(f"s_mov_b32 exec_lo, {((1 << 2*JE) - 1) * 0x01010101:#x}")
            I("s_mov_b32 exec_hi, exec_lo")
        else: I("s_nop 0")
        I(f"buffer_load_dwordx4 {rr(vEI,2)}, {sq(sEP)}, 0 idxen offen{pol(opt('eep', ''))} lds")
        if JE < 4: I("s_mov_b64 exec, -1")
    EPOS = opt("epos", "0134")
    def epoint(k):
        for i in range(4):
            if int(EPOS[i]) == k: early(i)
    c, p, tot, sc = u(0), u(4), u(8), u(9)
    hh = vX
    own, to2, ex, z_, eh, el = u(10), u(11), u(12), u(13), u(14), u(15)
    SD = f"{SDW} src0_sel:WORD_0 src1_sel:WORD_0"
    HL = f"{SDW} src0_sel:WORD_0 src1_sel:WORD_1"
    I(f"ds_read_u16 v{own}, v{owna} offset:{HIST}")
    I(f"ds_read_u16 v{to2}, v{owna} offset:{HIST + 1024}")
    for ph in range(4):
        I(f"ds_read_b128 {rr(hh+4*ph,4)}, v{l16} offset:{HIST + 1024*ph}")
    I(f"ds_read_b32 v{vQD}, v{sc} offset:8")
    epoint(0)
    I("s_cmp_lg_u32 s2, 0")
    I("s_cbranch_scc1 L_NOK")
    I(f"v_mov_b32 v{vQD+1}, s{sK}")
    I(f"v_mov_b32 v{vQD+2}, 0")
    I(f"buffer_store_dword v{vQD+1}, v{vQD+2}, {sq(sWS)}, 0 offen sc1")
    L("L_NOK")
    I("s_waitcnt lgkmcnt(5)")
    I(f"v_lshl_or_b32 v{own}, v{to2}, 16, v{own}")
    I(f"v_mov_b32 v{to2}, v{own}")
    I("s_waitcnt lgkmcnt(0)")
    stamp("d1")
    f2 = []
    for i in range(4):
        f2 += [f"v_add_u32_sdwa v{c+i}, v{hh+i}, v{hh+4+i} {SD}", f"v_add_u32_sdwa v{p+i}, v{hh+8+i}, v{hh+12+i} {SD}"]
    f2 += [f"v_add_u32 v{c+i}, v{c+i}, v{p+i}" for i in range(4)]
    wave_scan(to2, f2, half=True)
    put(f2)
    I(f"v_mul_u32_u24 v{tot}, v{c}, v{vMU}")
    for i in range(1, 4): I(f"v_mad_u32_u24 v{tot}, v{c+i}, v{vMU+i}, v{tot}")
    f2 = [f"v_sub_u32 v{ex}, v{to2}, v{own}", f"v_add_u32_sdwa v{eh}, v{to2}, v{to2} {HL}",
          f"v_add_u32_sdwa v{z_}, v{ex}, v{ex} {HL}", f"v_add_u32_sdwa v{el}, v{own}, v{own} {HL}",
          fill.pop(0), f"v_readfirstlane_b32 s{sMORE}, v{vQD}",
          f"v_permlane32_swap_b32 v{z_}, v{eh}", f"v_cndmask_b32 v{el}, 0, v{el}, {sp(sJ3)}",
          f"v_add_u32 v{z_}, v{z_}, v{eh}", fill.pop(0),
          f"v_add_u32 v{eh}, v{z_}, v{el}", fill.pop(0)]
    I(f"s_mov_b32 s{sJ3}, -1")
    I(f"s_mov_b32 s{sJ3+1}, 0")
    wave_scan(tot, f2)
    assert not f2
    stamp("d2")
    I(f"v_sub_u32_sdwa v{el}, v{eh}, v{own} {SDW} src0_sel:DWORD src1_sel:WORD_1")
    I(f"v_readlane_b32 s{sT}, v{tot}, 63")
    epoint(1)
    ASYM = opt("asym", 12)
    I(f"s_bfe_u32 s10, s{sT}, 0xe0002")
    I(f"s_lshr_b32 s{sT}, s{sT}, 16")
    I("s_lshr_b32 s11, s10, 1")
    I(f"s_add_u32 s11, s11, {4*ASYM}")
    I("s_and_b32 s11, s11, -128")
    I(f"s_lshr_b32 s{sF0}, s{sW}, 1")
    I(f"s_mul_i32 s{sF0}, s{sF0}, s10")
    I(f"s_sub_i32 s11, s11, {4*ASYM}")
    I(f"s_sub_i32 s{sF0}, s{sF0}, s{sT}")
    I(f"s_add_i32 s11, s11, s{sF0}")
    I(f"s_add_i32 s10, s10, s{sF0}")
    I(f"s_bitcmp1_b32 s{sW}, 0")
    I(f"s_cselect_b32 s{sEND}, s11, s{sF0}")
    I("s_cselect_b32 s10, s10, s11")
    I(f"v_cmp_gt_i32 vcc, s{sEND}, v{eh}")
    I(f"v_cmp_gt_i32 {sp(sTM)}, s10, v{eh}")
    f0, f1 = sWS0, sWS1
    I(f"s_bcnt1_i32_b32 s{f0}, vcc_lo")
    I(f"s_bcnt1_i32_b32 s10, s{sTM}")
    I(f"s_min_i32 s{f0}, s{f0}, s{hi0}")
    I(f"s_max_i32 s10, s10, s{lo1}")
    I(f"s_min_i32 s{f1}, s10, s{hi1}")
    stamp("d3")
    epoint(2)
    A01, A23, E01, E23, Z1 = sCI, sCUR, sR0, sCNT, sST
    I(f"v_readlane_b32 s{sT}, v{z_}, s{f0}")
    I(f"v_readlane_b32 s{Z1}, v{z_}, s{f1}")
    I(f"s_add_u32 s{sF0}, s{f0}, s{sWIN}")
    I(f"s_add_u32 s{sF1}, s{f1}, s{sWIN}")
    I(f"s_add_u32 s10, s{f0}, 32")
    I(f"s_add_u32 s11, s{f1}, 32")
    I(f"v_readlane_b32 s{A01}, v{ex}, s{f0}")
    I(f"v_readlane_b32 s{E01}, v{ex}, s{f1}")
    I(f"v_readlane_b32 s{A23}, v{ex}, s10")
    I(f"v_readlane_b32 s{E23}, v{ex}, s11")
    I(f"s_sub_u32 s{sEND}, s{Z1}, s{sT}")
    I(f"s_add_u32 s10, s{sEND}, 255")
    if opt("flr", 1):
        I(f"s_sub_i32 s11, s{f1}, 16")
        I(f"s_max_i32 s11, s11, s{f0}")
        I(f"v_readlane_b32 s11, v{z_}, s11")
        I(f"s_add_u32 vcc_lo, s{sEND}, 127")
        I(f"s_and_b32 vcc_hi, vcc_lo, 127")
        I(f"s_add_u32 vcc_hi, vcc_hi, s{sMORE}")
        I(f"s_cmp_lt_u32 vcc_hi, 55")
        I(f"s_cselect_b32 vcc_lo, vcc_lo, s10")
        I(f"s_sub_u32 s11, s11, s{sT}")
        I(f"s_add_u32 s11, s11, s{sMORE}")
        I(f"s_lshl_b32 s11, s11, 1")
        I(f"s_and_b32 vcc_lo, vcc_lo, -256")
        I(f"s_cmp_le_u32 s11, vcc_lo")
        I(f"s_cselect_b32 s10, vcc_lo, s10")
    I("s_lshr_b32 s10, s10, 8")
    I("s_lshl_b32 s10, s10, 7")
    I(f"s_sub_u32 s10, s10, s{sMORE}")
    I("s_max_i32 s10, s10, 0")
    I(f"s_add_u32 s{sT}, s{sT}, s10")
    I(f"s_add_u32 s10, s{f0}, 16")
    I(f"s_min_u32 s10, s10, s{f1}")
    I(f"s_sub_i32 s11, s{f1}, 16")
    inl, inh, mo = sTM, sTM + 2, sMSK
    I(f"v_cmp_ge_u32 {sp(inl)}, s{sT}, v{el}")
    I(f"v_cmp_ge_u32 {sp(inh)}, s{sT}, v{eh}")
    I(f"v_cmp_gt_i32 vcc, s10, v{ownn}")
    I(f"v_cmp_gt_i32 {sp(sA)}, s11, v{ownn}")
    I(f"v_cmp_le_u32 {sp(mo)}, s{f0}, v{ownn}")
    I(f"v_cmp_gt_u32 {sp(sJ3)}, s{f1}, v{ownn}")
    I(f"s_and_b64 {sp(inl)}, {sp(inl)}, vcc")
    I(f"s_and_b64 {sp(inh)}, {sp(inh)}, vcc")
    I(f"s_or_b64 {sp(inl)}, {sp(inl)}, {sp(sA)}")
    I(f"s_or_b64 {sp(inh)}, {sp(inh)}, {sp(sA)}")
    I(f"s_bcnt1_i32_b32 s{sB0E}, s{inl}")
    I(f"s_bcnt1_i32_b32 s10, s{inh}")
    I(f"s_bcnt1_i32_b32 s11, s{inl+1}")
    I(f"s_bcnt1_i32_b32 s{sSH}, s{inh+1}")
    I(f"v_readlane_b32 s{f0}, v{ex}, s{sB0E}")
    I(f"v_readlane_b32 s10, v{ex}, s10")
    I("s_add_u32 s11, s11, 32")
    I(f"s_add_u32 s{sT}, s{sSH}, 32")
    I(f"v_readlane_b32 s{f1}, v{ex}, s11")
    I(f"v_readlane_b32 s11, v{ex}, s{sT}")
    I(f"v_mov_b32 v{c}, s{sN}")
    I(f"v_cndmask_b32 v{c+1}, 0, v{c}, {sp(inl)}")
    I(f"v_cndmask_b32 v{c}, 0, v{c}, {sp(inh)}")
    I(f"s_and_b64 {sp(mo)}, {sp(mo)}, {sp(sJ3)}")
    Q01, Q23 = f0, f1
    I(f"s_pack_lh_b32_b16 s{Q01}, s{f0}, s10")
    I(f"s_pack_lh_b32_b16 s{Q23}, s{f1}, s11")
    I(f"v_lshl_or_b32 v{c}, v{c}, 16, v{c+1}")
    I(f"s_sub_u32 s{sT}, s{sL}, {R0 - BIAS}")
    I(f"s_pack_ll_b32_b16 s{sT}, s{sT}, s{sT}")
    def bases(lo01, lo23, hi01, hi23, d, keep=None):
        I(f"s_sub_u32 s10, s{hi01}, s{lo01}")
        I(f"s_sub_u32 s11, s{hi23}, s{lo23}")
        I(f"s_mul_i32 s10, s10, 0x10001")
        I(f"s_lshl_b32 vcc_lo, s10, 16")
        I(f"s_pack_hh_b32_b16 s10, s10, s10")
        I(f"s_lshl_b32 vcc_hi, s11, 16")
        I(f"s_add_u32 vcc_hi, vcc_hi, s10")
        if keep is not None:
            I(f"s_add_u32 s{keep}, vcc_hi, s11")
            I(f"s_lshr_b32 s{keep}, s{keep}, 16")
            I(f"s_sub_u32 s{sEND}, s{sEND}, s{keep}")
            I(f"s_cmp_gt_u32 s{sEND}, s{keep}")
            I(f"s_cselect_b32 s{SWP}, {LWB * 0x10001:#x}, 0")
            I(f"s_add_u32 s{sT}, s{sT}, s{SWP}")
        I(f"s_sub_u32 s10, s{sT}, s{lo01}")
        I(f"s_sub_u32 s11, s{sT}, s{lo23}")
        I("s_add_u32 s10, s10, vcc_lo")
        I("s_add_u32 s11, s11, vcc_hi")
        I(f"v_mov_b32 v{d}, s10")
        I(f"v_mov_b32 v{d+1}, s11")
    LEN0, SWP = sJ3, sJ3 + 1
    bases(A01, A23, Q01, Q23, p, LEN0)
    I(f"s_add_u32 s{sT}, s{sT}, {LWB * 0x10001:#x}")
    I(f"s_sub_u32 s{sT}, s{sT}, s{SWP}")
    I(f"s_sub_u32 s{sT}, s{sT}, s{SWP}")
    bases(Q01, Q23, E01, E23, p + 2)
    I(f"v_bfi_b32 v{p}, v{c}, v{p}, v{p+2}")
    I(f"v_bfi_b32 v{p+1}, v{c}, v{p+1}, v{p+3}")
    I(f"s_mov_b32 exec_hi, 0")
    I(f"v_mov_b32 v{p+1}, v{p}")
    I(f"s_mov_b64 exec, {sp(mo)}")
    I(f"v_add_u32 v{ex}, v{ex}, v{p+1}")
    assert LWB & 0x80
    I(f"s_bfe_u32 s10, s{SWP}, 0x10007")
    I(f"s_lshl1_add_u32 s10, s{sW}, s10")
    I("s_lshl_b32 s10, s10, 2")
    I(f"v_cndmask_b32 v{c}, 4, 0, {sp(inl)}")
    I(f"ds_write_b16 v{owna}, v{ex} offset:{HIST + 2}")
    I(f"ds_write_b16_d16_hi v{owna}, v{ex} offset:{HIST + 1024 + 2}")
    I("s_mov_b32 exec_hi, 0")
    I(f"v_xor_b32 v{c}, s10, v{c}")
    I(f"ds_write_b32 v{mapa}, v{c}")
    I("s_mov_b64 exec, -1")
    stamp("d5")
    I(f"s_min_u32 s10, s{sEND}, s{LEN0}")
    I(f"s_max_u32 s{LEN0}, s{sEND}, s{LEN0}")
    I(f"s_mov_b32 s{sEND}, s10")
    I(f"s_add_u32 s10, s{LEN0}, s{sMORE}")
    I(f"s_mul_i32 s11, s{Z1}, {LWB * 65536 // BIAS}")
    I("s_lshr_b32 s11, s11, 16")
    I("s_max_u32 s10, s10, s11")
    I(f"s_cmp_lt_u32 s10, {LWB}")
    I("s_cbranch_scc1 L_LFIT")
    I(f"ds_write_b32 v{sc}, v{one}")
    L("L_LFIT")
    I(f"s_cmp_eq_u32 s{sMORE}, 0")
    I("s_cbranch_scc1 L_XCNR")
    I(f"s_sub_u32 s10, s{sL}, {R0 - BIAS}")
    I(f"s_add_u32 s11, s10, s{LEN0}")
    I(f"v_mov_b32 v{u(0)}, s11")
    I(f"s_add_u32 s11, s10, s{sEND}")
    I(f"s_add_u32 s11, s11, {LWB}")
    I(f"v_mov_b32 v{u(1)}, s11")
    I(f"s_lshl_b32 s10, s{sW}, 3")
    I(f"v_mov_b32 v{u(2)}, s10")
    I(f"ds_write_b64 v{u(2)}, {rr(u(0),2)} offset:{CNT}")
    L("L_XCNR")
    epoint(3)
    put(fill)
    I("s_waitcnt lgkmcnt(0)")
    stamp(8)
    I("s_barrier")
    stamp(9)
    I(f"ds_read_b64 {rr(u(14),2)}, v{sc}")
    for i in range(4):
        for j in range(3):
            I(f"ds_read_u16 v{vA+4*i+j}, v{vA+4*i+j} offset:{HIST + 2}")
    epoint(4)
    def ntiles(l0, l1):
        I(f"s_add_u32 s10, s{l0}, 127")
        I("s_lshr_b32 s10, s10, 7")
        I("s_lshl1_add_u32 s10, s10, -1")
        I(f"s_add_u32 s11, s{l1}, 127")
        I("s_lshr_b32 s11, s11, 6")
        I("s_and_b32 s11, s11, -2")
        I(f"s_max_i32 s{sN}, s10, s11")
        I(f"s_cselect_b32 s10, s{l0}, s{l1}")
        I("s_sub_u32 s10, s10, 1")
        I(f"s_andn2_b32 s{sHF}, 64, s10")
    I(f"s_add_u32 s{sB0E}, s{sB0E}, s{sWIN}")
    I(f"s_add_u32 s11, s{sSH}, s{sWIN}")
    I(f"s_and_b32 s10, s11, 15")
    I(f"s_cmp_lt_u32 s11, s{sB0E}")
    I(f"s_cselect_b32 s{sSH}, s10, 16")
    I(f"s_cmp_lg_u32 s{SWP}, 0")
    I(f"s_cselect_b32 s{sWS1}, s{sF0}, s11")
    I(f"s_cselect_b32 s{sWIN}, s{sF0}, s{sB0E}")
    I(f"s_cselect_b32 s{sF0}, s11, s{sF0}")
    I(f"s_cselect_b32 s{sB0E}, s{sF1}, s{sB0E}")
    I(f"s_cselect_b32 s{sF1}, s11, s{sF1}")
    I(f"s_min_u32 s{sWS0}, s{sF0}, 192")
    I(f"s_min_u32 s{sWS1}, s{sWS1}, 192")
    I(f"s_mov_b32 s{sST}, s{sMORE}")
    I("s_waitcnt lgkmcnt(12)")
    I(f"v_cmp_ne_u32 vcc, 0, v{u(14)}")
    I(f"v_readfirstlane_b32 s{sMORE}, v{u(15)}")
    I("s_cbranch_vccnz L_OVF")
    for i in range(4):
        for j in range(3):
            s_ = 4*i + j
            if j == 0: I("s_waitcnt lgkmcnt(9)")
            I(f"s_mov_b64 exec, {sp(mk(i,j))}")
            I(f"v_add_u32 v{vA+s_}, v{vA+s_}, v{vRK+s_}")
            I(f"ds_write2st64_b32 v{vA+s_}, v{vC+s_}, v{vR1+s_} {W2}")
    I("s_mov_b64 exec, -1")
    ntiles(LEN0, sEND)
    stamp("d6")
    sO0, sO1, sNT, sOK, sCM = sOUT, sD2, sM + 8, sM + 9, sM + 12
    def epi_prep(t0, t1):
        I(f"s_lshl_b32 s{sNT}, s{sW}, 7")
        I(f"s_add_u32 s{sNT}, s{sNT}, {NT}")
        I(f"v_mov_b32 v{t0}, s{sWS0}")
        I("s_mov_b32 exec_lo, 0xffff0000")
        I(f"v_mov_b32 v{t0}, s{sWS1}")
        I("s_mov_b64 exec, 0xffffffff") if False else None
        I("s_mov_b32 exec_lo, -1")
        I("s_mov_b32 exec_hi, 0")
        I(f"v_sub_u32 v{t1}, v{lane}, v{t0}")
        I(f"v_and_b32 v{t1}, 15, v{t1}")
        I(f"v_add_lshl_u32 v{t1}, v{t1}, v{t0}, 5")
        I(f"v_lshl_add_u32 v{t0}, v{lane}, 2, s{sNT}")
        I(f"ds_write_b32 v{t0}, v{t1}")
        I("s_mov_b32 exec_hi, -1")
        I(f"s_mul_i32 s10, s{sB}, {BN}")
        for d, lo_, hi_, k in ((sO1, sWIN, sF1, 1), (sO0, sF0, sB0E, 0)):
            I(f"s_add_u32 s11, s10, s{lo_}")
            I(f"s_add_u32 s{d+2}, s10, s{hi_}")
            I(f"s_min_u32 s11, s11, {N}")
            I(f"s_min_u32 s{d+2}, s{d+2}, {N}")
            I(f"s_sub_u32 s{d+2}, s{d+2}, s11")
            I("s_lshl_b32 s11, s11, 7")
            I(f"s_lshl_b32 s{d+2}, s{d+2}, 7")
            I(f"s_add_u32 s{d}, s{sOUT}, s11")
            I(f"s_addc_u32 s{d+1}, s{sOUT+1}, 0")
            I(f"s_mul_i32 s{sOK+k}, s{lo_}, -128")
        I(f"s_and_b32 s10, s{sSH}, 12")
        I("s_lshl_b32 s10, s10, 2")
        I(f"s_bfm_b64 {sp(sCM)}, 16, s10")
    L("L_CA")
    for x_ in trw(vWA, 0): I(x_)
    I(f"s_cmp_eq_u32 s{sXT}, 0")
    I("s_cbranch_scc1 L_XT2R")
    I(f"s_waitcnt vmcnt({(4 if JE else 0) + (4 if OLP == 2 else 0)})")
    L("L_XT2")
    I(f"s_mov_b64 {sp(sTM)}, 0")
    for i in range(4):
        I(f"v_cmp_ne_u32 vcc, s{sK}, v{xg+4*i+1}")
        I(f"s_and_b64 vcc, vcc, {sp(mk(i,3))}")
        I(f"s_or_b64 {sp(sTM)}, {sp(sTM)}, vcc")
    I("s_cbranch_scc1 L_XT2B")
    I(f"s_cmp_eq_u32 s{sSKIP}, 0")
    I("s_cbranch_scc1 L_XT2R")
    for i in range(4):
        g_ = xg + 4*i
        I(f"s_mov_b64 exec, {sp(mk(i,3))}")
        I(f"s_cbranch_execz L_XS{i}")
        I(f"v_bfe_u32 v{g_+1}, v{g_}, 18, 8")
        I(f"v_lshlrev_b32 v{g_+1}, 2, v{g_+1}")
        I(f"v_add_u32 v{g_+3}, {MAP}, v{g_+1}")
        I(f"ds_read_b32 v{g_+3}, v{g_+3}")
        put(rec_ops(g_, g_+2, 0, vEB+i, g_+1, g_+2))
        I(f"v_and_b32 v{g_}, 0xffff, v{g_}")
        I("s_waitcnt lgkmcnt(0)")
        I(f"ds_add_rtn_u32 v{g_+3}, v{g_+3}, v{one} offset:{CNT}")
        I("s_waitcnt lgkmcnt(0)")
        I(f"ds_write2st64_b32 v{g_+3}, v{g_}, v{g_+2} {W2}")
        L(f"L_XS{i}")
    I("s_mov_b64 exec, -1")
    L("L_XT2R")
    aw, al, ab = vEO, vEO + 1, vEO + 2
    I(f"s_lshl_b32 s{sTM}, s{sWS0}, 5")
    I(f"s_lshl_b32 s{sTM+1}, s{sWS1}, 5")
    I(f"s_mov_b32 vcc_lo, 0xff00ff00")
    I(f"s_mov_b32 vcc_hi, 0xff00ff00")
    I(f"v_mov_b32 v{aw}, s{sTM+1}")
    I(f"v_mov_b32 v{al}, s{sTM}")
    I(f"v_cndmask_b32 v{aw}, v{aw}, v{al}, vcc")
    I(f"v_and_b32 v{al}, 4, v{lane}")
    I(f"v_lshlrev_b32 v{al}, 6, v{al}")
    I(f"v_lshl_add_u32 v{al}, v{vcS}, 2, v{al}")
    I(f"v_sub_u32 v{al}, v{al}, v{aw}")
    I(f"v_and_b32 v{ab}, 48, v{lane}")
    I(f"s_movk_i32 s{sTM}, {(PL-32)//8}")
    I(f"v_mad_u32_u24 v{ab}, v{vcS}, s{sTM}, v{ab}")
    I(f"s_mov_b32 s{sTM}, {OWN}")
    I(f"v_add3_u32 v{ab}, v{ab}, v{aw}, s{sTM}")
    I(f"v_and_b32 v{aw}, 0x1ff, v{al}")
    I(f"v_add_u32 v{aw}, v{aw}, v{ab}")
    I(f"v_add_u32 v{al}, 0x80, v{al}")
    I(f"v_and_b32 v{al}, 0x1ff, v{al}")
    I(f"v_add_u32 v{al}, v{al}, v{ab}")
    zero16 = lambda d: f"v_mfma_f32_32x32x16_bf16 {rr(d,16)}, {rr(vS,4)}, {rr(vS,4)}, 0"
    for i in range(2): I(f"v_mov_b64 {rr(vS+2*i,2)}, 0")
    I(f"v_lshrrev_b32 v{u(0)}, 2, v{lane}")
    I(f"v_and_b32 v{u(0)}, 12, v{u(0)}")
    I(f"v_subrev_u32 v{u(0)}, s{sSH}, v{u(0)}")
    I(f"v_mov_b32 v{u(1)}, {f2u(1e-6):#x}")
    I(zero16(NUM(1,0)))
    for i in range(4): I(f"v_cmp_ne_u32 {sp(sM+16+2*i)}, {-i}, v{u(0)}")
    for i in range(4): I(f"v_cndmask_b32 v{DEN(1,0)+i}, 0, v{u(1)}, {sp(sM+16+2*i)}")
    for n in range(1, 4):
        for i in range(2): I(f"v_mov_b64 {rr(DEN(1,n)+2*i,2)}, {rr(DEN(1,0)+2*i,2)}")
    I(f"s_cmp_ge_u32 s{sWP}, 4")
    I("s_cbranch_scc1 L_EP0")
    epi_prep(u(2), u(3))
    L("L_EP0")
    stamp("d7")
    I("s_waitcnt vmcnt(0) lgkmcnt(0)")
    stamp(10)
    I("s_barrier")
    def lens_from_cnt(t):
        I(f"s_lshl_b32 s10, s{sW}, 3")
        I(f"v_mov_b32 v{t}, s10")
        I(f"ds_read_b64 {rr(t,2)}, v{t} offset:{CNT}")
        I("s_waitcnt lgkmcnt(0)")
        I(f"v_readfirstlane_b32 s{sTM}, v{t}")
        I(f"v_readfirstlane_b32 s{sTM+1}, v{t+1}")
        I(f"s_sub_u32 s10, s{sL}, {R0 - BIAS}")
        I(f"s_sub_u32 s{sTM}, s{sTM}, s10")
        I(f"s_sub_u32 s{sTM+1}, s{sTM+1}, s10")
        I(f"s_sub_u32 s{sTM+1}, s{sTM+1}, {LWB}")
        ntiles(sTM, sTM + 1)
    I(f"s_mov_b32 s10, {f2u(1e-6):#x}")
    I(f"ds_read_b128 {rr(vQD,4)}, v{vARX}")
    I(f"ds_read_b32 v{vEI}, v{vARE}")
    stamp(11)
    for t_ in range(2):
        for s in range(2): I(f"ds_read_b128 {rr(vX+8*t_+4*s,4)}, v{(aw, al)[t_]} offset:{64*s}")
    I("s_waitcnt lgkmcnt(4)")
    STAG = opt("stag", 1)
    if STAG:
        I(f"s_cmp_ge_u32 s{sWP}, 4")
        I("s_cbranch_scc1 L_LATE0")
    put(dma_tile())
    L("L_LATE0")
    I(f"s_mov_b32 s{sTM}, {f2u(-LOG2E):#x}")
    I(f"s_mov_b32 s{sTM+1}, s{sTM}")
    for t_ in range(2):
        for s in range(2):
            I(f"s_waitcnt lgkmcnt({3 - 2*t_ - s})")
            for n in range(4):
                D = vQ + 8*n + 4*t_
                I(m16(D, vX+8*t_+4*s, vWA+8*n+4*s, D if s else None))
    I("s_mov_b32 s11, s10")
    for i in range(8): I(f"v_mov_b64 {rr(DEN(0,0)+2*i,2)}, {sp(10)}")
    for i in range(16): I(f"v_pk_mul_f32 {rr(vQ+2*i,2)}, {rr(vQ+2*i,2)}, {sp(sTM)}")
    I(zero16(NUM(0,0)))
    for i in range(16): I(f"v_cvt_pk_bf16_f32 v{vCA+i}, v{vQ+2*i}, v{vQ+2*i+1}")
    for i in range(16): I(f"v_permlane32_swap_b32 v{vCA+16+i}, v{vCA+i}")
    I(f"s_mov_b32 s{sCI}, -1")
    I(f"s_mov_b64 {sp(sMSK)}, 0")
    I(f"s_mov_b32 s{sR0}, 0")
    I(f"s_mov_b32 s{sCNT}, 0")
    if STAG:
        I(f"s_cmp_lt_u32 s{sWP}, 4")
        I("s_cbranch_scc1 L_HAD0")
        put(dma_tile())
        epi_prep(u(2), u(3))
        L("L_HAD0")
    I(f"s_cmp_eq_u32 s{sST}, 0")
    I("s_cbranch_scc1 L_GO")
    lens_from_cnt(u(0))
    L("L_GO")
    for m in range(2): I(f"ds_read_u16 v{vEA+m}, v{vARO} offset:{64*m}")
    I(f"ds_read_b128 {rr(vQD,4)}, v{vARX} offset:{LWB}")
    I(f"ds_read_b32 v{vEI}, v{vARE} offset:{LWB}")
    I(f"s_lshr_b32 s10, s{sW}, 1")
    I("s_lshl_b32 s10, s10, 9")
    I(f"s_add_u32 s10, s10, {PRG}")
    assert PRG % 32 == 0
    I(f"v_lshl_add_u32 v{vPA}, v{lane}, 3, s10")
    I(f"s_bitcmp1_b32 s{sW}, 0")
    I(f"s_cselect_b32 s{sSG}, -1, 1")
    I(f"s_mul_i32 s10, s{sSG}, {-(1 << (25 if F2 else 24)) & 0xffffffff:#x}")
    I("s_or_b32 s10, s10, 0xdddd")
    I(f"v_mov_b32 v{vIDX}, s10")
    I(f"s_max_i32 s10, s{sN}, 1")
    I("s_sub_u32 s10, s10, 1")
    I(f"s_mul_i32 s10, s{sSG}, s10")
    I("s_lshl_b32 s10, s10, 24")
    I(f"v_mov_b32 v{u(0)}, s10")
    I(f"ds_add_u32 v{vPA}, v{u(0)}")
    I(f"v_mov_b32 v{vC1}, 0")
    I("s_mov_b32 exec_hi, 0")
    I(f"v_add_u32 v{vC1}, 0x200, v{vcEO}")
    I("s_mov_b32 exec_hi, -1")
    I("s_waitcnt lgkmcnt(0)")
    put(eafix())
    stamp(12)
    I("s_waitcnt vmcnt(0)")
    stamp(13)
    cstamp(56)
    for m in range(2): I(f"ds_read_b128 {rr(vEO+4*m,4)}, v{vEA+m}")
    for m, s in ORD: I(xread(m, s))
    I(f"s_cmp_lt_i32 s{sN}, 1")
    I("s_cbranch_scc1 L_DONE")
    g = g_mfmas(vP, 0, 0)
    I("s_waitcnt lgkmcnt(4)")
    for x_ in g[:4]: I(x_)
    I("s_waitcnt lgkmcnt(0)")
    for x_ in g[4:]: I(x_)
    I(f"s_mov_b32 s{sT}, 1")
    I(f"s_cmp_eq_u32 s{sN}, 1")
    I("s_cbranch_scc1 L_LT0")
    put(dma_tile())
    for cp in ((1, 0) if FAIR else (0,)):
        sw = lambda par: [f"s_cmp_ge_i32 s{sRM}, {opt('fth', 1)}", f"s_cbranch_scc{1-cp} L_PB{par}{1-cp}", f"L_PB{par}{cp}:"] if FAIR and (par == 0 or not F2) else []
        body = phase(0, 0, cp) + sw(0) + phase(0, 1, cp) + [f"s_cmp_ge_u32 s{sT}, s{sN}", "s_cbranch_scc1 L_LT1"]
        body += phase(1, 0, cp) + sw(1) + phase(1, 1, cp) + [f"s_cmp_lt_u32 s{sT}, s{sN}", f"s_cbranch_scc1 L_LOOP{cp}"]
        check_body(body)
        DBG = opt("dbg", "")
        if "nodma" in DBG: body = [b for b in body if not b.startswith("buffer_load")]
        if "dropS" in DBG: body = [b for b in body if not b.startswith("v_smfmac")]
        if "halfrcp" in DBG: body = [b for b in body if not (b.startswith("v_rcp") and int(b.split("v")[-1]) & 1)]
        if "droppk" in DBG: body = [b for b in body if not b.startswith("v_pk_mul")]
        if "halfx" in DBG: body = [b for b in body if not (b.startswith("v_mfma") and (f"v[{vX+4}:" in b or f"v[{vX+12}:" in b))]
        if "nolds" in DBG: body = [b for b in body if not (b.startswith("ds_read_b128") and f"v{vAX}" in b)]
        if opt("al", 0): body = align8(body, opt("al", 0))
        emit(".p2align 6")
        if opt("sh4", 0): I("s_nop 0")
        L(f"L_LOOP{cp}")
        put(body)
        I("s_branch L_LT0")
    if opt("cpe", 0):
        I("s_branch L_LT0")
        for cp in ((1, 0) if FAIR else (0,)):
            for par in range(2):
                L(f"L_CE{par}{cp}")
                I(f"s_getpc_b64 {sp(sA)}")
                I(f"v_and_b32 v{vEI}, 0xfc, v{vPA}")
                I(f"v_lshlrev_b32 v{vEI}, 5, v{vEI}")
                I(f"global_load_dword v{vEI}, v{vEI}, {sp(sA)}")
                I(f"s_branch L_ND{par}{cp}")
    assert STAG
    e = lambda i: vCA + i
    xd = vWV
    ZR = [vP, vWV + 16]
    nd = lambda w, i: e(16 + 4*w + i)
    sO = [sO0, sO1]
    wu = [f"ds_read_b64_tr_b16 {rr(vWB+8*n+4*s+2*uu,2)}, v{e(1)} offset:{(32*s + 8*uu)*WR + 32*n}" for s in range(2) for n in range(4) for uu in range(2)]
    lid = [f"v_mbcnt_lo_u32_b32 v{lane}, -1, 0", f"v_mbcnt_hi_u32_b32 v{lane}, -1, v{lane}", f"v_and_b32 v{vcS}, 24, v{vPA}"]
    a1 = [f"v_and_b32 v{e(0)}, 48, v{lane}", f"v_and_b32 v{e(3)}, 15, v{lane}",
          f"v_add_u32 v{e(5)}, s{sNT}, v{e(0)}", f"v_lshl_add_u32 v{e(6)}, v{e(3)}, 2, s{sNT}"]
    a1 += [f"ds_read_b128 {rr(nd(w,0),4)}, v{e(5)} offset:{64*w}" for w in range(2)]
    a1 += [f"ds_read2_b32 {rr(e(8),2)}, v{e(6)} offset0:0 offset1:16",
           f"v_bfe_u32 v{e(1)}, v{lane}, 2, 3", f"v_lshrrev_b32 v{e(2)}, 5, v{lane}", f"v_lshl_add_u32 v{e(1)}, v{e(2)}, 4, v{e(1)}",
           f"v_mul_u32_u24 v{e(1)}, {WR}, v{e(1)}", f"s_mov_b32 s10, {WUI}", f"v_add3_u32 v{e(1)}, v{e(1)}, v{vcS}, s10"]
    a1 += wu[:12]
    a1 += [f"s_movk_i32 s10, {(PL-32)//8}", f"v_mad_u32_u24 v{e(0)}, v{vcS}, s10, v{e(0)}",
           f"s_mov_b32 s10, {OWN}", f"v_lshl_add_u32 v{e(5)}, v{e(3)}, 3, s10"]
    a1 += [f"v_lshl_add_u32 v{e(10+w)}, v{e(3)}, 3, s{sOK+w}" for w in range(2)]
    a1 += ["s_waitcnt lgkmcnt(8)"] + wu[12:]
    a2 = []
    for w in range(2):
        for i in range(4):
            a2 += [f"v_add_u32 v{e(12)}, v{nd(w,i)}, v{e(5)}", f"ds_read_b64 {rr(xd+8*w+2*i,2)}, v{e(12)} offset:{i*(PL-32)}"]
    for w in range(2):
        a2 += [f"v_add3_u32 v{e(8+w)}, v{e(8+w)}, v{e(0)}, s10"]
        a2 += [f"ds_read_b128 {rr(vX+8*w+4*s,4)}, v{e(8+w)} offset:{64*s}" for s in range(2)]
    def unp(w, n): return [(f"v_and_b32 v{ZR[w]+4*n+i}, 0xffff0000, v{xd+8*w+2*i+(n>>1)}" if n & 1 else
                            f"v_lshlrev_b32 v{ZR[w]+4*n+i}, 16, v{xd+8*w+2*i+(n>>1)}") for i in range(4)]
    blk = [(w, n) for w in range(2) for n in range(4)]
    a3 = [["s_waitcnt lgkmcnt(0)"] + unp(0, 0) + unp(0, 1)]
    for k, (w, n) in enumerate(blk):
        a3[-1] += [m16(ZR[w]+4*n, vX+8*w, vWB+8*n, ZR[w]+4*n)]
        a3.append((unp(*blk[k+2]) if k + 2 < 8 else []) + [f"v_lshl_add_u32 v{nd(w,n)}, v{nd(w,n)}, 2, v{e(10+w)}",
                  m16(ZR[w]+4*n, vX+8*w+4, vWB+8*n+4, ZR[w]+4*n)])
        if k < 7: a3.append([])
    ME = opt("me", 0)
    if ME:
        for par in range(2):
            L(f"L_LB{par}")
            put(last_tile(par, 0, only_b=True))
            I("s_branch L_DONE")
    for par in range(2):
        L(f"L_LT{par}")
        I(f"s_cmp_lg_u32 s{sHF}, 0")
        I(f"s_cbranch_scc1 L_LH{par}")
        for half in range(2):
            if half: L(f"L_LH{par}")
            put(last_tile(par, half, (lid + a1, a2, a3) if ME else None))
            I("s_branch L_EPB" if ME else "s_branch L_DONE")
    L("L_DONE")
    put(lid)
    I(f"s_cmp_lg_u32 s{sMORE}, 0")
    I("s_cbranch_scc1 L_SLOW")
    L("L_EPI")
    I("s_waitcnt lgkmcnt(0)")
    put(a1 + a2 + sum(a3, []))
    L("L_EPB")
    stamp(14)
    cstamp(57)
    I(f"s_setprio {opt('epr', 0)}")
    I(f"s_mov_b64 exec, {sp(sCM)}")
    I(f"s_and_b32 s11, s{sSH}, 19")
    I("s_nop 2")
    for i in range(4):
        I(f"s_cmp_eq_u32 s11, {i}")
        I(f"s_cbranch_scc1 L_NS{i}")
    L("L_NSR")
    I("s_mov_b64 exec, -1")
    for w in range(2):
        for k in range(16): I(f"v_rcp_f32 v{DEN(w,0)+k}, v{DEN(w,0)+k}")
        for k in range(0, 16, 2): I(f"v_pk_fma_f32 {rr(NUM(w,0)+k,2)}, {rr(NUM(w,0)+k,2)}, {rr(DEN(w,0)+k,2)}, {rr(ZR[w]+k,2)}")
        for i in range(4):
            for h in range(2): I(f"v_cvt_pk_bf16_f32 v{DEN(w,0)+2*i+h}, v{NUM(w,2*h)+i}, v{NUM(w,2*h+1)+i}")
            for h in range(2):
                I(f"v_pk_max_f16 v{DEN(w,0)+2*i+h}, v{DEN(w,0)+2*i+h}, v{xd+8*w+2*i+h}")
            I(f"buffer_store_dwordx2 {rr(DEN(w,0)+2*i,2)}, v{nd(w,i)}, {sq(sO[w])}, 0 offen{pol(OP)}")
    stamp("e2")
    stamp_out()
    L("L_END")
    I("s_endpgm")
    for i in range(4):
        L(f"L_NS{i}")
        for k in range(8): I(f"v_add_f32 v{vACC+4*k+i}, v{vACC+4*k+i}, v{vACC+32+4*k+i}")
        I("s_branch L_NSR")
    for i in range(4):
        L(f"L_RT{i}")
        I("s_waitcnt vmcnt(0)")
        spin()
        for k in range(i, 4): poll_load(k)
        I("s_waitcnt vmcnt(0)")
        I(f"s_branch L_PW{i}")
    L("L_XT2B")
    spin()
    xload("b")
    I("s_waitcnt vmcnt(0)")
    I("s_branch L_XT2")
    L("L_OVF")
    I(f"s_mov_b32 s{sSKIP}, 0")
    I(f"s_mov_b32 s{sN}, 0")
    I(f"s_mov_b32 s{sST}, 0")
    I(f"s_mov_b32 s{sMORE}, 4")
    I("s_waitcnt lgkmcnt(0)")
    I("s_branch L_CA")
    q = vCA
    L("L_POVF")
    I("s_movk_i32 s11, 1986")
    for i in range(4):
        I(f"v_mul_u32_u24 v{q+i}, s11, v{vHS+i}")
        I(f"v_lshrrev_b32 v{q+i}, 16, v{q+i}")
    I(f"v_add_u32 v{q+5}, v{q}, v{q+1}")
    I(f"v_add_u32 v{q+6}, v{q+5}, v{q+2}")
    I(f"v_add_u32 v{q+7}, v{q+6}, v{q+3}")
    I(f"v_mov_b32 v{q+8}, v{q+7}")
    wave_scan(q + 8)
    I("s_nop 0")
    I(f"v_sub_u32 v{q+4}, v{q+8}, v{q+7}")
    I(f"v_add_u32 v{q+7}, v{q+4}, v{q+6}")
    I(f"v_add_u32 v{q+6}, v{q+4}, v{q+5}")
    I(f"v_add_u32 v{q+5}, v{q+4}, v{q}")
    for i in range(4): I(f"v_lshl_or_b32 v{q+4+i}, v{q+i}, 16, v{q+4+i}")
    I(f"v_add_u32 v{q+8}, {HDR}, v{l16}")
    I(f"ds_write_b128 v{q+8}, {rr(q+4,4)}")
    I("s_lshl_b32 s10, s2, 10")
    I(f"s_add_u32 s10, s10, {WS_HD}")
    I(f"buffer_store_dwordx4 {rr(q+4,4)}, v{l16}, {sq(sWS)}, s10 offen sc1")
    for i in range(8):
        I(f"v_and_b32 v{q+10+i}, 0x3fc, v{vHA+i}")
        I(f"v_add_u32 v{q+10+i}, {HDR}, v{q+10+i}")
        I(f"ds_read_u16 v{q+10+i}, v{q+10+i}")
    I("s_waitcnt lgkmcnt(0)")
    for i in range(4):
        I(f"v_cmpx_lt_u32 vcc, {33*(CAP+8)}, v{vHD+i}")
        I(f"v_or_b32 v{vO+4*i+1}, 0x10000, v{vO+4*i+1}")
        I("s_mov_b64 exec, -1")
    I(f"s_mul_i32 s10, s2, {DCH}")
    I(f"s_mov_b32 s{sTM}, {WS_RECS}")
    I(f"s_mov_b32 s{sTM+1}, {WS_LEID}")
    for i in range(NR):
        I(f"v_mul_u32_u24 v{q}, s11, v{vRK1+i}")
        I(f"v_lshrrev_b32 v{q}, 16, v{q}")
        I(f"v_add3_u32 v{q}, v{q}, v{q+10+i}, s10")
        I(f"v_lshlrev_b32 v{q+1}, 2, v{q}")
        I(f"v_cmpx_le_u32 vcc, {33*(CAP+8)}, v{vRK1+i}")
        I(f"s_cbranch_execz L_PO{i}")
        I(f"buffer_store_byte v{idr(i)}, v{q}, {sq(sWS)}, s{sTM+1} offen sc1")
        I(f"buffer_store_dword v{vSR+i}, v{q+1}, {sq(sWS)}, s{sTM} offen sc1")
        L(f"L_PO{i}")
        I("s_mov_b64 exec, -1")
    I("s_waitcnt vmcnt(0) lgkmcnt(0)")
    I("s_barrier")
    I("s_branch L_POUT")
    SB = 288
    t0, t1, t2, t3 = vP, vP+1, vP+2, vP+3
    L("L_SLOW")
    I("s_setprio 0")
    I(f"s_lshl_b32 s10, s{sWP}, 6")
    I(f"v_add_u32 v{tid}, s10, v{lane}")
    I(f"s_cmp_lg_u32 s{sMORE}, 4")
    I("s_cbranch_scc1 L_SL1")
    I(f"s_mov_b32 s{sMORE}, 1")
    I(f"v_and_b32 v{t0}, 0xff, v{tid}")
    I(f"v_lshlrev_b32 v{t1}, 7, v{t0}")
    I(f"buffer_load_dword v{t2}, v{t1}, {sq(sCEL)}, 0 offen offset:4 sc1")
    I(f"v_lshlrev_b32 v{t1}, 10, v{t0}")
    I(f"s_lshl_b32 s10, s{sB}, 2")
    I(f"s_add_u32 s10, s10, {WS_HD}")
    I(f"buffer_load_dword v{t3}, v{t1}, {sq(sWS)}, s10 offen sc1")
    I(f"v_lshlrev_b32 v{t0}, 2, v{t0}")
    I(f"v_add_u32 v{t0}, {HDR}, v{t0}")
    I("s_waitcnt vmcnt(0)")
    I(f"v_and_b32 v{t2}, 0x10000, v{t2}")
    I(f"v_cmp_ne_u32 vcc, 0, v{t2}")
    I(f"v_mov_b32 v{t2}, {(CAP+8) << 16}")
    I("s_nop 0")
    I(f"v_cndmask_b32 v{t2}, v{t2}, v{t3}, vcc")
    I(f"ds_write_b32 v{t0}, v{t2}")
    I("s_waitcnt lgkmcnt(0)")
    I("s_barrier")
    L("L_SL1")
    I(f"s_add_u32 s{sR0}, s{sR0}, {SB}")
    I(f"s_cmp_lt_u32 s{sR0}, s{sCNT}")
    I("s_cbranch_scc1 L_BATCH")
    L("L_FIND")
    I(f"s_cmp_lg_u64 {sp(sMSK)}, 0")
    I("s_cbranch_scc1 L_GOT")
    I(f"s_add_u32 s{sCI}, s{sCI}, 1")
    I(f"s_cmp_ge_u32 s{sCI}, 4")
    I("s_cbranch_scc1 L_EPI")
    I(f"s_lshl_b32 s10, s{sCI}, 8")
    I(f"s_add_u32 s10, s10, {HDR}")
    I(f"v_lshl_add_u32 v{t0}, v{lane}, 2, s10")
    I(f"ds_read_u16 v{t0}, v{t0} offset:2")
    I("s_waitcnt lgkmcnt(0)")
    I(f"v_cmp_lt_u32 {sp(sMSK)}, s{sSKIP}, v{t0}")
    I("s_nop 3")
    I("s_branch L_FIND")
    L("L_GOT")
    I(f"s_ff1_i32_b64 s10, {sp(sMSK)}")
    I(f"s_bitset0_b64 {sp(sMSK)}, s10")
    I(f"s_lshl_b32 s11, s{sCI}, 6")
    I(f"s_add_u32 s{sCUR}, s10, s11")
    I(f"s_lshl_b32 s10, s{sCUR}, 2")
    I(f"s_add_u32 s10, s10, {HDR}")
    I(f"v_mov_b32 v{t0}, s10")
    I(f"ds_read_b32 v{t0}, v{t0}")
    I("s_waitcnt lgkmcnt(0)")
    I(f"v_readfirstlane_b32 s10, v{t0}")
    I("s_nop 3")
    I(f"s_lshr_b32 s{sCNT}, s10, 16")
    I(f"s_and_b32 s{sST}, s10, 0xffff")
    I(f"s_mov_b32 s{sR0}, s{sSKIP}")
    L("L_BATCH")
    I("s_waitcnt vmcnt(0)")
    I("s_barrier")
    prefill(vP + 4)
    I(f"v_and_b32 v{t0}, 15, v{lane}")
    I(f"v_mul_u32_u24 v{t1}, {LWB}, v{t0}")
    I(f"v_add_u32 v{t1}, {BIAS}, v{t1}")
    I(f"v_lshlrev_b32 v{t0}, 2, v{t0}")
    I(f"ds_write_b32 v{t0}, v{t1} offset:{CNT}")
    t1, t4, t5 = vQ, vQ + 2, vQ + 3
    I(f"v_add_u32 v{t0}, s{sR0}, v{tid}")
    I(f"s_mul_i32 s{sTM+2}, s{sCUR}, {CH}")
    I(f"s_mul_i32 s11, s{sCUR}, {DCH}")
    I(f"s_add_u32 s11, s11, s{sST}")
    I(f"s_lshl_b32 s{sTM}, s11, 2")
    I(f"s_add_u32 s{sTM}, s{sTM}, {WS_RECS}")
    I(f"v_lshl_add_u32 v{t2}, v{t0}, 2, s{sTM}")
    I(f"s_add_u32 s{sTM}, s11, {WS_LEID}")
    I(f"v_add_u32 v{t3}, s{sTM}, v{t0}")
    I(f"s_mul_i32 s10, s{sB}, {RS}")
    I(f"s_lshl_b32 s{sTM}, s{sCUR}, 7")
    I(f"s_add_u32 s10, s10, s{sTM}")
    I(f"s_add_u32 s10, s10, {WS_CELL}")
    I(f"v_and_b32 v{t4}, 7, v{t0}")
    I(f"v_lshl_add_u32 v{t4}, v{t4}, 4, s10")
    I(f"v_lshrrev_b32 v{t5}, 3, v{t0}")
    I(f"v_cmpx_gt_u32 vcc, {CAP+8}, v{t0}")
    I(f"v_add_u32 v{t2}, {XOFF}, v{t4}")
    I(f"v_add_u32 v{t3}, 8, v{t2}")
    I(f"v_cmpx_gt_u32 vcc, {CAP}, v{t0}")
    I(f"v_lshl_add_u32 v{t2}, v{t5}, 2, v{t4}")
    I(f"v_add3_u32 v{t3}, v{t4}, v{t5}, 12")
    I("s_mov_b64 exec, -1")
    I(f"s_add_u32 s10, s{sR0}, {SB}")
    I(f"s_min_u32 s10, s10, s{sCNT}")
    I(f"v_cmp_gt_u32 vcc, s10, v{t0}")
    I(f"v_mov_b32 v{t4}, 0x7ffffff0")
    I("s_nop 0")
    I(f"v_cndmask_b32 v{t2}, v{t4}, v{t2}, vcc")
    I(f"v_cndmask_b32 v{t3}, v{t4}, v{t3}, vcc")
    I(f"buffer_load_dwordx2 {rr(t1,2)}, v{t2}, {sq(sWS)}, 0 offen sc1")
    I(f"buffer_load_ubyte v{t3}, v{t3}, {sq(sWS)}, 0 offen sc1")
    I("s_waitcnt lgkmcnt(0)")
    I("s_barrier")
    I("s_waitcnt vmcnt(0)")
    I(f"v_cmp_ne_u32 vcc, 3, v{t5}")
    I(f"v_cmp_eq_u32 {sp(sA)}, s{sK}, v{t1+1}")
    I(f"v_mov_b32 v{t4}, s{sTM+2}")
    I(f"s_or_b64 exec, vcc, {sp(sA)}")
    I(f"v_cmpx_ne_u32 vcc, 0, v{t1}")
    I(f"v_bfe_u32 v{t2}, v{t1}, 18, 8")
    I(f"v_lshlrev_b32 v{t2}, 2, v{t2}")
    I(f"v_add_u32 v{t0}, {MAP}, v{t2}")
    I(f"ds_read_b32 v{t0}, v{t0}")
    put(rec_ops(t1, t3, 0, t4, t2, t3))
    I(f"v_mov_b32 v{t2}, 4")
    I(f"v_and_b32 v{t1}, 0xffff, v{t1}")
    I("s_waitcnt lgkmcnt(0)")
    I(f"ds_add_rtn_u32 v{t0}, v{t0}, v{t2} offset:{CNT}")
    I("s_waitcnt lgkmcnt(0)")
    I(f"ds_write2st64_b32 v{t0}, v{t1}, v{t3} {W2}")
    I("s_mov_b64 exec, -1")
    I("s_waitcnt lgkmcnt(0)")
    I("s_barrier")
    listaddr(t2)
    I(f"ds_read_b128 {rr(vQD,4)}, v{vARX}")
    I(f"ds_read_b32 v{vEI}, v{vARE}")
    lens_from_cnt(t2)
    for r_ in (vQ, vQ + 2, vS, vS + 2): I(f"v_mov_b64 {rr(r_,2)}, 0")
    put(dma_tile())
    L("L_LAST")
    I("s_branch L_GO")

def regs_of(tok):
    tok = tok.strip()
    m = re.fullmatch(r"v\[(\d+):(\d+)\]", tok)
    if m: return list(range(int(m.group(1)), int(m.group(2)) + 1))
    m = re.fullmatch(r"v(\d+)", tok)
    if m: return [int(m.group(1))]
    return []
def parse(ins):
    op, _, rest = ins.partition(" ")
    ops = [o.strip().split(" ")[0] for o in rest.split(",")] if rest else []
    if op.startswith("ds_read") or "rtn" in op: return "ds", regs_of(ops[0]), regs_of(ops[1])
    return "other", [], sum((regs_of(o) for o in ops), [])
def check_body(body):
    s2 = [b for b in body if not b.endswith(":")]
    pend = []
    for i, ins in enumerate(s2 * 3):
        k, d, s = parse(ins)
        m = re.search(r"lgkmcnt\((\d+)\)", ins)
        if m:
            while len(pend) > int(m.group(1)): pend.pop(0)
        pr = set(sum(pend, []))
        for r in d + s:
            assert r not in pr, f"pending LDS reg v{r} used by {ins} @{i}"
        if k == "ds":
            pend.append(d); assert len(pend) <= 15

hdr = open("/code/" + NAME + ".s.ref").read().split("\n")
for l in hdr:
    if l.startswith("; Override"): break
    out.append(l)
if opt("list", 0): out.append(f"; @launch kernel={NAME}_kernel grid=(256,1,1) block=(512,1,1) lds={LDS}")
else: out.append(f"; @launch grid=(256,1,1) block=(512,1,1) lds={LDS}")
LEAK = opt("leak", "")
if LEAK: out.append("; @launch kernel=leak_kernel grid=(1,1,1) block=(256,1,1) lds=64")
emit('.amdgcn_target "amdgcn-amd-amdhsa--gfx950"\n.text')
kernel()
if LEAK:
    kind, nm = LEAK[0], LEAK[1:]
    PT = opt("pt", 0)
    si = STN.index(nm)
    emit(".globl leak_kernel\n.p2align 8\n.type leak_kernel,@function\nleak_kernel:")
    I("s_cmp_lg_u32 s2, 0")
    I("s_cbranch_scc1 LK_END")
    I("s_load_dwordx2 s[4:5], s[0:1], 88")
    I("v_min_u32 v1, 254, v0")
    I("v_lshlrev_b32 v1, 11, v1")
    I("v_mov_b32 v2, 0")
    I("v_mov_b32 v3, 0x7fffffff")
    I("v_mov_b32 v4, 0")
    I("ds_write2_b32 v2, v3, v4 offset0:0 offset1:1")
    I("s_waitcnt lgkmcnt(0)")
    I(f"s_add_u32 s4, s4, {WS_TS}")
    I("s_addc_u32 s5, s5, 0")
    I("global_load_dword v5, v2, s[4:5]")
    for w in range(8):
        I(f"global_load_dword v{8+w}, v1, s[4:5] offset:{256*w}")
        I(f"global_load_dword v{16+w}, v1, s[4:5] offset:{256*w + 4*si}")
    I("s_barrier")
    I("s_waitcnt vmcnt(0)")
    I("v_subrev_u32 v5, 1000, v5")
    for w in range(16): I(f"v_sub_u32 v{8+w}, v{8+w}, v5")
    for w in range(8):
        I(f"ds_min_u32 v2, v{8+w}")
        I(f"ds_{'max' if kind == 'm' else 'add'}_u32 v2, v{16+w} offset:4")
    I("s_waitcnt lgkmcnt(0)")
    I("s_barrier")
    I("ds_read_b64 v[6:7], v2")
    I("s_waitcnt lgkmcnt(0)")
    I("v_lshlrev_b32 v6, 2, v6")
    I("v_lshlrev_b32 v7, 2, v7" if kind == 'm' else "v_lshrrev_b32 v7, 9, v7")
    I("v_sub_u32 v6, v7, v6")
    I("v_min_u32 v6, 20000, v6")
    I("s_nop 0")
    I("v_readfirstlane_b32 s6, v6")
    I("s_memrealtime s[8:9]")
    I("s_waitcnt lgkmcnt(0)")
    if PT:
        I(f"s_cmp_gt_u32 s6, {4*PT}")
        I("s_cselect_b32 s6, 6000, 0")
        I("s_mul_i32 s7, s8, 0x9e3779b1")
        I("s_lshr_b32 s7, s7, 20")
        I("s_add_u32 s6, s6, s7")
    L("LK_L")
    I("s_memrealtime s[10:11]")
    I("s_waitcnt lgkmcnt(0)")
    I("s_sub_u32 s7, s10, s8")
    I("s_cmp_lt_u32 s7, s6")
    I("s_cbranch_scc1 LK_L")
    L("LK_END")
    I("s_endpgm")
emit(f""".section .rodata,"a"
.p2align 6
.amdhsa_kernel {NAME}_kernel
  .amdhsa_next_free_vgpr 256
  .amdhsa_next_free_sgpr 102
  .amdhsa_accum_offset 256
  .amdhsa_group_segment_fixed_size 0
  .amdhsa_kernarg_size 96
  .amdhsa_user_sgpr_count 2
  .amdhsa_user_sgpr_kernarg_segment_ptr 1
  .amdhsa_system_sgpr_workgroup_id_x 1
.end_amdhsa_kernel""")
if LEAK:
    emit(""".p2align 6
.amdhsa_kernel leak_kernel
  .amdhsa_next_free_vgpr 32
  .amdhsa_next_free_sgpr 16
  .amdhsa_accum_offset 32
  .amdhsa_group_segment_fixed_size 0
  .amdhsa_kernarg_size 96
  .amdhsa_user_sgpr_count 2
  .amdhsa_user_sgpr_kernarg_segment_ptr 1
  .amdhsa_system_sgpr_workgroup_id_x 1
.end_amdhsa_kernel""")
if TS: out.insert(0, "; stamps " + " ".join(STN))
path = sys.argv[1] if len(sys.argv) > 1 else "/code/" + NAME + ".s"
open(path, "w").write("\n".join(out) + "\n")
print("wrote", path, len(out), "lines; lds", LDS)
```

```python
import sys, re, struct

NAME = "standalone__edge_featured_mpnn_gatedgcn__graph"
OPT = dict(kv.split("=") for kv in sys.argv[2:])
def opt(k, d):
    v = OPT.get(k)
    if v is None: return d
    return type(d)(v)

N, E = 50000, 800000
CH = 3128
BN = 196
XIL = opt('xil', 0)
RS = (513 if XIL else opt('rs', 257)) * 128
XOFF = 256 * 128 if XIL else 256 * RS
WS_CELL = 0x10000
WS_RECS = 0x1200000
WS_LEID = 0x1680000
WS_HD = 0x17a0000
WS_USED = 0x1800000
WS_TS = 0x3000000
KINC = 0x02020202
CAP = 24
LOG2E = 1.4426950408889634
def f2u(f): return struct.unpack("<I", struct.pack("<f", f))[0]

out = []
def emit(s=""):
    for l in s.strip("\n").split("\n"):
        out.append(l.rstrip())
def I(s): out.append("    " + s)
def L(s): out.append(s + ":")
def C(s): out.append("    ; " + s)
def put(seq):
    for s in seq:
        if s.endswith(":"): L(s[:-1])
        else: I(s)
def rr(a, n): return f"v[{a}:{a+n-1}]"
def sp(a): return f"s[{a}:{a+1}]"
def sq(a): return f"s[{a}:{a+3}]"
def pol(p): return (" " + p.replace("_", " ")) if p else ""

def srd(d, lo, size, add=None, stride=0):
    if add is None:
        I(f"s_mov_b32 s{d}, s{lo}")
        I(f"s_mov_b32 s{d+1}, s{lo+1}" if not stride else f"s_or_b32 s{d+1}, s{lo+1}, {stride << 16:#x}")
    else:
        I(f"s_add_u32 s{d}, s{lo}, {add}")
        I(f"s_addc_u32 s{d+1}, s{lo+1}, 0")
    I(f"s_mov_b32 s{d+2}, {size}")
    I(f"s_mov_b32 s{d+3}, 0x20000")

def wave_scan(v, fill=None, half=False):
    def gap():
        if fill and len(fill) >= 2:
            I(fill.pop(0)); I(fill.pop(0))
        else: I("s_nop 1")
    for sh in (1, 2, 4, 8):
        gap()
        I(f"v_add_u32_dpp v{v}, v{v}, v{v} row_shr:{sh} row_mask:0xf bank_mask:0xf bound_ctrl:0")
    gap()
    I(f"v_add_u32_dpp v{v}, v{v}, v{v} row_bcast:15 row_mask:0xa bank_mask:0xf")
    if half: return
    gap()
    I(f"v_add_u32_dpp v{v}, v{v}, v{v} row_bcast:31 row_mask:0xc bank_mask:0xf")

TAB, ZROW, CNT, FLAG = 0, 512, 576, 640
HIST = 1024
ESTG = HIST + 4096
HIST1 = ESTG
EARLY = ESTG + 8192
LWB = 288 * 4
R0 = EARLY + 32768
R1 = R0 + 16 * LWB
XSTG = R1 + 16 * LWB
XI = 1056
SLOT = 4 * XI
OWN = XSTG + 8 * SLOT
PL = 52 * 128 + 32
WR = 160
WUI = OWN + 4 * PL
MAP = WUI + 64 * WR
HDR = MAP + 1024
PRG = HDR + 1024
NT = PRG + 2048
LDS = NT + 1024
WBI, WVI, WCI = EARLY, EARLY + 64 * WR, EARLY + 128 * WR
WAI = XSTG + 8192
LROW = 160
CIMG = R0
assert CIMG + 256 * LROW <= WAI and LDS <= 163840, LDS
BIAS = 8192
assert R1 < 65536 and R0 % 256 == 0 and R1 % 256 == 0
W2 = f"offset0:{(R0-BIAS)//256} offset1:{(R1-BIAS)//256}"

vWB, vWV, vCA, vACC = 0, 32, 64, 96
vX, vEO, vS = 160, 176, 184
vP, vQ, vR = 188, 204, 220
vQD = 236
vEI, vCH, vONE, vCP, vAX, vcEO, vcS, vARX, vARE, vARO, vARS, vEA = 240, 241, 242, 243, 244, 245, 246, 247, 248, 249, 250, 251
lane, vTS, tid = 253, 254, 255
vC1, vIDX, vPA = lane, tid, vcS
DEN = lambda w, n: vACC + 32 * w + 4 * n
NUM = lambda w, n: vACC + 32 * w + 16 + 4 * n
def m16(d, a, b, c=None):
    return f"v_mfma_f32_16x16x32_bf16 {rr(d,4)}, {rr(a,4)}, {rr(b,4)}, " + ("0" if c is None else rr(c, 4))
def s16(d, b): return f"v_smfmac_f32_16x16x64_bf16 {rr(d,4)}, {rr(vS,4)}, {rr(b,8)}, v{vIDX}"

sWP, sW, sB, sK = 3, 4, 5, 6
sWIN, sF0, sF1, sL = 7, 8, 9, 12
sA, sBt = 10, 11
sSTG, sES, s128 = 13, 14, 15
pX, pE, pSRC, pDST, pWA, pWB, pWC, pWU, pWV, pOUT, pDBG, pWS = 16, 18, 20, 22, 24, 26, 28, 30, 32, 34, 36, 38
sT, sN, sFM, sMORE, sSKIP, sXT, sWS0, sWS1, sB0E, sSH = 16, 17, 18, 19, 20, 21, 22, 23, 24, 25
sCI, sCUR, sR0, sCNT, sST, sEND = 26, 27, 28, 29, 30, 31
sMSK = 32
sTM = 34
sX, sEP, sOUT, sWS, sCEL, sD2 = 40, 44, 48, 52, 56, 60
sM = 64
sJ3, sEM = 96, 98
sSP = 100
sHF = 99
sSG, sRM = 101, 96

TS = opt("ts", 0)
STN = []
YP = opt("yp", "")
def stamp(i):
    if str(i) in YP.split("_"):
        k = YP.split("_").index(str(i))
        I(f"s_cmp_lt_u32 s{sWP}, 4")
        I(f"s_cbranch_scc1 L_YP{k}")
        I(f"s_setprio {1 - (k & 1)}")
        L(f"L_YP{k}")
    if not TS: return
    if isinstance(i, str) and i[0] not in opt("tsx", ""): return
    STN.append(str(i)); i = len(STN) - 1
    I("s_memrealtime vcc" if TS == 1 else "s_memtime vcc")
    I("s_waitcnt lgkmcnt(0)")
    I(f"v_writelane_b32 v{vTS}, vcc_lo, {i}")
def stamp_out():
    if not TS: return
    I("s_waitcnt vmcnt(0)")
    stamp(15)
    I("s_memtime vcc")
    I("s_waitcnt lgkmcnt(0)")
    I(f"v_writelane_b32 v{vTS}, vcc_lo, 58")
    I(f"v_writelane_b32 v{vTS}, s{sN}, 59")
    I(f"v_writelane_b32 v{vTS}, s{sSP}, 60")
    I("s_getreg_b32 s10, hwreg(HW_REG_XCC_ID)")
    I(f"v_writelane_b32 v{vTS}, s10, 55")
    I("s_lshl_b32 s10, s2, 3")
    I(f"s_add_u32 s10, s10, s{sWP}")
    I("s_lshl_b32 s10, s10, 8")
    I(f"s_add_u32 s10, s10, {WS_TS}")
    I(f"v_lshl_add_u32 v{vP}, v{lane}, 2, s10")
    I(f"global_store_dword v{vP}, v{vTS}, {sp(pWS)}")
def cstamp(i):
    if not TS: return
    I("s_memtime vcc")
    I("s_waitcnt lgkmcnt(0)")
    I(f"v_writelane_b32 v{vTS}, vcc_lo, {i}")

LD_P = opt("ldp", "nt")
XP, EP, OP = opt("xp", ""), opt("ep", ""), opt("op", "sc1")
STP = opt("stp", "sc1")
MG = opt("mg", 1)
JE = opt("je", 4 if MG else 2)
EMASK = ((1 << JE) - 1) * 0x01010101
DCH = CH + 1024
SDW = "dst_sel:DWORD dst_unused:UNUSED_PAD"

def dma_tile():
    r = []
    for i in range(4):
        r.append(f"s_add_u32 m0, s{sSTG}, {i*XI}")
        r.append(f"v_mad_u32_u16 v{vQD+i}, v{vQD+i}, s{s128}, v{vCP}")
        r.append(f"buffer_load_dwordx4 v{vQD+i}, {sq(sX)}, 0 offen{pol(XP)} lds")
    r.append(f"s_mov_b32 m0, s{sES}")
    r.append(f"v_and_b32 v{vEI}, 0xfffff, v{vEI}")
    r.append(f"buffer_load_dwordx4 {rr(vEI,2)}, {sq(sEP)}, 0 idxen offen{pol(EP)} lds")
    return r

ORD = [(0, 0), (1, 0), (0, 1), (1, 1)]
def xread(m, s): return f"ds_read_b128 {rr(vX+8*m+4*s,4)}, v{vAX} offset:{512*m + 64*s}"
def g_mfmas(D, ft, w):
    g = [m16(D+8*n+4*m, vEO+4*m, vCA+16*w+8*ft+4*n) for m in range(2) for n in range(2)]
    g += [m16(D+8*n+4*m, vX+8*m+4*s, vWB+16*ft+8*n+4*s, D+8*n+4*m) for m, s in ORD for n in range(2)]
    return g
def h_mfmas(ft):
    return [m16(vQ+8*n+4*m, vX+8*m+4*s, vWV+16*ft+8*n+4*s, None if s == 0 else vQ+8*n+4*m) for m, s in ORD for n in range(2)]
def s_num(w, ft): return [s16(NUM(w, 2*ft+n), vQ+8*n) for n in range(2)]
def s_den(w, ft, G): return [s16(DEN(w, 2*ft+n), G+8*n) for n in range(2)]

def eafix():
    return [f"v_bfi_b32 v{vEA+m}, 31, v{vcEO}, v{vEA+m}" for m in range(2)] + [f"v_max_u32 v{vEA}, v{vEA}, v{vcEO}", f"v_max_u32 v{vEA+1}, v{vEA+1}, v{vC1}"]
LV = [int(c, 16) for c in opt("lv", "015a")]
PAT = opt("pat", "1" * 11 + "5")
FAIR = opt("fair", 1)
F2 = opt("f2", 0)
BST = opt("bst", 10)
LNG = opt("lng", 1)
ASL = [int(x) for x in opt("asl", "12_13_14_18").split("_")]
LLV = [int(x) for x in opt("llv", "0_2_12_26").split("_")]
LLP_ = opt("llp", "0003_1113").split("_")
def add1(q): return f"v_mfma_f32_4x4x4_16b_bf16 {rr(q,4)}, {rr(vONE,2)}, {rr(vONE,2)}, {rr(q,4)}"
def long_sec(mf, G, regs, slots, cp):
    r = []; k = 0
    tr = [f"v_exp_f32 v{G+i}, v{G+i}" for i in regs] + [f"v_rcp_f32 v{G+i}, v{G+i}" for i in regs]
    for i, x in enumerate(tr):
        if i in LLV:
            j = LLV.index(i)
            if j == 0 or LLP_[cp][j] != LLP_[cp][j-1]: r.append(f"s_setprio {LLP_[cp][j]}")
        if i in slots: r.append(add1(G + regs[4*slots.index(i)]))
        elif k < len(mf): r += mf[k]; k += 1
        r.append(x)
    assert k == len(mf)
    return r
def phase(par, ft, cp=0):
    G, Go = (vP, vR) if ft == 0 else (vR, vP)
    nf = 1 - ft
    wn = par if ft == 0 else par ^ 1
    wp = par ^ 1 if ft == 0 else par
    s1 = [[x] for x in s_num(wp, nf) + h_mfmas(ft) + s_den(wp, nf, Go)]
    s2 = [[x] for x in g_mfmas(Go, nf, wn)]
    if ft == 0:
        o = par * LWB
        s1[0] += [f"ds_read_u16 v{vQD+u}, v{vARS} offset:{o + 16*u}" for u in range(2)]
        s1[8] += ["s_waitcnt lgkmcnt(0)"] + [f"v_bfi_b32 v{vQD+u}, 31, v{vcS}, v{vQD+u}" for u in range(2)]
        if FAIR and (par == 0 or not F2):
            s1[0] += [f"ds_add_rtn_u32 v{vQD+2}, v{vPA}, v{vIDX}"]
            s1[8] += [f"v_readfirstlane_b32 s{sRM}, v{vQD+2}"]
            s2[1] += [f"s_ashr_i32 s{sRM}, s{sRM}, 24", f"s_mul_i32 s{sRM}, s{sRM}, s{sSG}"]
        o1 = 128 if par else LWB
        s2[0] += [f"ds_read_b64_tr_b16 {rr(vS+2*u,2)}, v{vQD+u}" for u in range(2)]
        s2[0] += [f"ds_read_u16 v{vEA+m}, v{vARO} offset:{o1 + 64*m}" for m in range(2)]
        s2[6] += ["s_waitcnt lgkmcnt(0)"] + eafix()
        s2[6] += [f"ds_read_b128 {rr(vQD,4)}, v{vARX} offset:{o + 128}", f"ds_read_b32 v{vEI}, v{vARE} offset:{o + 128}",
                  f"s_add_u32 s{sT}, s{sT}, 1"]
        if par: s2[7] += [f"v_add_u32 v{r}, 0x80, v{r}" for r in (vARX, vARE, vARO, vARS)]
    else:
        s1[2] = ["s_waitcnt vmcnt(0)"] + [f"ds_read_b128 {rr(vEO+4*m,4)}, v{vEA+m}" for m in range(2)] + s1[2]
        for i, (m, s) in enumerate(ORD): s1[3+2*i].append(xread(m, s))
        s2[0] = ["s_waitcnt lgkmcnt(4)"] + s2[0]
        for i in range(4): s2[4+2*i] = [f"s_waitcnt lgkmcnt({3-i})"] + s2[4+2*i]
        DSP = opt("dsp", "")
        if DSP:
            d = dma_tile(); first = min(int(c, 16) for c in DSP)
            for i in range(4): s2[4+2*i] = s2[4+2*i][1:] if 4+2*i > first else s2[4+2*i]
            s2[first] = ["s_waitcnt lgkmcnt(0)"] + [x for x in s2[first] if not x.startswith("s_waitcnt")]
            for k, c in enumerate(DSP): s2[int(c, 16)] += d[3*k:3*k+3]
        tgt = f"L_CE{par}{cp}" if opt("cpe", 0) else f"L_ND{par}{cp}"
        if not DSP: s2[10] += [f"s_cmp_lt_u32 s{sT}, s{sN}", f"s_cbranch_scc0 {tgt}"] + dma_tile() + [f"L_ND{par}{cp}:"]
    def sec(mf, op):
        r = []; k = 0
        for i, m in enumerate(mf):
            if opt("lvp", ""):
                lv = opt("lvp", "").split("_")[cp]
                if i in LV:
                    k_ = LV.index(i)
                    if k_ == 0 or lv[k_] != lv[k_-1]: r.append(f"s_setprio {lv[k_]}")
            elif FAIR:
                if i == 0: r.append(f"s_setprio {cp}")
                if i == BST: r.append("s_setprio 3")
            elif i in LV: r.append(f"s_setprio {LV.index(i)}")
            r += m
            for _ in range(int(PAT[i])):
                r.append(f"{op} v{G+k}, v{G+k}"); k += 1
        assert k == 16
        return r
    r = []
    if opt("tt", 0) and ft == 0:
        r += ["s_memrealtime vcc", "s_memtime s[10:11]", f"s_add_u32 m0, s{sT}, 17", "s_waitcnt lgkmcnt(0)", f"v_writelane_b32 v{vTS}, vcc_lo, m0",
              f"s_add_u32 m0, s{sT}, 35", "s_nop 0", f"v_writelane_b32 v{vTS}, s10, m0"]
    if LNG:
        r += long_sec(s1 + s2, G, list(range(16)), ASL, cp)
        return r + [f"v_pk_mul_f32 {rr(vQ+2*i,2)}, {rr(G+2*i,2)}, {rr(vQ+2*i,2)}" for i in range(8)]
    r += sec(s1, "v_exp_f32")
    r += [f"v_pk_add_f32 {rr(G+2*i,2)}, {rr(G+2*i,2)}, 1.0 op_sel_hi:[1,0]" for i in range(8)]
    r += sec(s2, "v_rcp_f32")
    r += [f"v_pk_mul_f32 {rr(vQ+2*i,2)}, {rr(G+2*i,2)}, {rr(vQ+2*i,2)}" for i in range(8)]
    return r

def last_tile(par, half, epi=None, only_b=False):
    keep = (lambda x: int(re.match(r"\S+ v\[(\d+)", x).group(1)) % 8 == (vP % 8)) if half else (lambda x: True)
    regs = [k for k in range(16) if not (half and k & 4)]
    def sec(mf, op, G):
        r = [f"s_setprio {opt('lpr', 0)}"]; k = 0
        tail = min(len(regs), 4 if half else 5)
        for i, m in enumerate(mf):
            if i == len(mf) - 1: r.append("s_setprio 3")
            r += m
            e_ = (len(regs) - tail) * (i + 1) // (len(mf) - 1) if i < len(mf) - 1 else len(regs)
            while k < e_:
                r.append(f"{op} v{G+regs[k]}, v{G+regs[k]}"); k += 1
        while k < len(regs):
            r.append(f"{op} v{G+regs[k]}, v{G+regs[k]}"); k += 1
        return r
    r = []
    for ft in range(1 if only_b else 0, 2):
        G, Go = (vP, vR) if ft == 0 else (vR, vP)
        wp = par ^ 1 if ft == 0 else par
        s1 = [[x] for x in s_num(wp, 1-ft) + [h for h in h_mfmas(ft) if keep(h)] + s_den(wp, 1-ft, Go)]
        s2 = [[x] for x in g_mfmas(Go, 1, par) if keep(x)] if ft == 0 else []
        if ft == 0:
            s1[0] += [f"ds_read_u16 v{vQD+u}, v{vARS} offset:{par*LWB + 16*u}" for u in range(2)]
            s1[-2] += ["s_waitcnt lgkmcnt(0)"] + [f"v_bfi_b32 v{vQD+u}, 31, v{vcS}, v{vQD+u}" for u in range(2)]
            s2[0] += [f"ds_read_b64_tr_b16 {rr(vS+2*u,2)}, v{vQD+u}" for u in range(2)]
        else:
            s1[0] = ["s_waitcnt lgkmcnt(0)"] + s1[0]
            if epi:
                a1, a2, a3 = epi
                r += [f"s_cmp_lg_u32 s{sMORE}, 0", f"s_cbranch_scc1 L_LB{par}"]
                n_ = len(s1) - 3
                for k in range(n_): s1[k] += a1[len(a1)*k//n_:len(a1)*(k+1)//n_]
                s1[-3] += a2[:len(a2)//2]; s1[-2] += a2[len(a2)//2:]
                s2 = [list(x) for x in a3]
        r += sec(s1, "v_exp_f32", G)
        r += [f"v_pk_add_f32 {rr(G+k,2)}, {rr(G+k,2)}, 1.0 op_sel_hi:[1,0]" for k in regs[::2]]
        r += sec(s2, "v_rcp_f32", G)
        r += [f"v_pk_mul_f32 {rr(vQ+k,2)}, {rr(G+k,2)}, {rr(vQ+k,2)}" for k in regs[::2]]
    return r + s_den(par, 1, vR) + s_num(par, 1)

def isize(x):
    op = x.split()[0]
    if x.endswith(":"): return 0
    if op in ("v_exp_f32", "v_rcp_f32", "v_max_u32", "v_readfirstlane_b32"): return 4
    if op.startswith("s_"):
        m = re.search(r", (0x[0-9a-f]+|\d+)$", x)
        return 8 if (m and op not in ("s_setprio", "s_nop", "s_waitcnt") and int(m.group(1), 0) > 64) else 4
    return 8
def align8(body, mode):
    body = list(body); run = []; r = []
    for x in body:
        z = isize(x)
        if z == 8:
            if sum(isize(r[i]) for i in run) % 8:
                c = [i for i in run if r[i].split()[0] in ("v_exp_f32", "v_rcp_f32", "v_max_u32")]
                if c: r[c[-1]] = r[c[-1]].replace(" ", "_e64 ", 1); run = []
                elif mode == 2: r.append("s_nop 0"); run = []
                else: run = [i for i in run if isize(r[i])][:1]
            else: run = []
            r.append(x)
        else:
            run.append(len(r)); r.append(x)
    return r

def listaddr(t0):
    I(f"v_lshrrev_b32 v{t0}, 3, v{lane}")
    I(f"v_lshl_add_u32 v{vARX}, v{t0}, 4, s{sL}")
    I(f"s_add_u32 s10, s{sL}, {R1-R0}")
    I(f"v_lshrrev_b32 v{t0}, 1, v{lane}")
    I(f"v_lshl_add_u32 v{vARE}, v{t0}, 2, s10")
    I(f"s_add_u32 s10, s10, 2")
    I(f"v_and_b32 v{t0}, 48, v{lane}")
    I(f"v_lshl_add_u32 v{vARS}, v{t0}, 1, s10")
    I(f"v_and_b32 v{t0}, 12, v{lane}")
    I(f"v_add_u32 v{vARS}, v{vARS}, v{t0}")
    I(f"v_lshrrev_b32 v{t0}, 5, v{lane}")
    I(f"v_mul_u32_u24 v{vARO}, {R1-R0}, v{t0}")
    I(f"v_and_b32 v{t0}, 15, v{lane}")
    I(f"v_lshl_add_u32 v{vARO}, v{t0}, 2, v{vARO}")
    I(f"s_add_u32 s10, s{sL}, 2")
    I(f"v_add_u32 v{vARO}, s10, v{vARO}")

def prefill(t):
    for d in range(2): I(f"v_mov_b64 {rr(t+2*d,2)}, 0")
    for d in range(4): I(f"v_mov_b32 v{t+4+d}, {(ZROW << 16) | 0xfffff:#x}")
    I(f"v_lshl_add_u32 v{t+8}, v{lane}, 4, s{sL}")
    for o in (0, 1024, 2*LWB - 1024):
        I(f"ds_write_b128 v{t+8}, {rr(t,4)} offset:{o}")
        I(f"ds_write_b128 v{t+8}, {rr(t+4,4)} offset:{o + R1 - R0}")

def kernel():
    emit(f"""
.globl {NAME}_kernel
.p2align 8
.type {NAME}_kernel,@function
{NAME}_kernel:""")
    FH = opt("fh", 1)
    vD, vSR, vT16 = vACC + 32, vACC, vR + 12
    if TS and opt("tz", 0): I("s_memrealtime s[96:97]")
    I("s_load_dwordx16 s[16:31], s[0:1], 0")
    I("s_load_dwordx8 s[32:39], s[0:1], 64")
    CPN = opt("cpn", 8)
    if opt("cpf", 1):
        I(f"s_getpc_b64 {sp(sM)}")
        L("L_PC")
        if CPN == 8: I("s_and_b32 s3, s2, -8")
        else:
            I("s_lshr_b32 s3, s2, 3")
            I(f"s_and_b32 s3, s3, {256//CPN - 1}")
            I(f"s_mul_i32 s3, s3, {CPN}")
        I("v_add_lshl_u32 v1, v0, s3, 7")
        I("v_min_u32 v1, L_LAST-L_PC, v1")
        I(f"v_cmpx_gt_u32 vcc, {CPN}, v0")
        I("s_cbranch_execz L_NOCPF")
        I(f"global_load_dword v{vEA}, v1, {sp(sM)}")
        L("L_NOCPF")
        I("s_mov_b64 exec, -1")
    I("s_cmp_ge_u32 s2, 256")
    I("s_cbranch_scc1 L_END")
    if FH:
        I(f"s_mul_i32 s{sA}, s2, {CH*4}")
        I(f"v_lshl_add_u32 v1, v0, 4, s{sA}")
        I(f"s_add_u32 s{sBt}, s{sA}, {CH*4}")
        I(f"s_min_u32 s{sBt}, s{sBt}, {E*4}")
        BAL = opt("bal", 0)
        if BAL:
            I(f"s_add_u32 s{sA}, s{sA}, 0x2000")
            I(f"v_lshl_add_u32 v2, v0, 3, s{sA}")
            I(f"s_add_u32 s{sA}, s{sA}, 0x1000")
            I(f"v_lshl_add_u32 v3, v0, 2, s{sA}")
            I(f"v_cmp_gt_u32 {sp(sM+6)}, s{sBt}, v2")
            I(f"v_min_u32 v2, {E*4 - 8}, v2")
        else: I("v_add_u32 v2, 0x2000, v1")
        I("s_waitcnt lgkmcnt(0)")
        if TS and opt("tz", 0): I("s_memrealtime s[98:99]")
        I(f"global_load_dwordx4 {rr(vD,4)}, v1, {sp(pDST)}{pol(LD_P)}")
        if BAL:
            I(f"global_load_dwordx2 {rr(vD+4,2)}, v2, {sp(pDST)}{pol(LD_P)}")
            I(f"global_load_dwordx4 {rr(vSR,4)}, v1, {sp(pSRC)}{pol(LD_P)}")
            I(f"global_load_dwordx2 {rr(vSR+4,2)}, v2, {sp(pSRC)}{pol(LD_P)}")
            I(f"v_cmpx_gt_u32 {sp(sM+28)}, s{sBt}, v3")
            I("s_cbranch_execz L_NO7")
            I(f"global_load_dword v{vD+6}, v3, {sp(pDST)}{pol(LD_P)}")
            I(f"global_load_dword v{vSR+6}, v3, {sp(pSRC)}{pol(LD_P)}")
        else:
            I(f"global_load_dwordx4 {rr(vSR,4)}, v1, {sp(pSRC)}{pol(LD_P)}")
            def group2():
                I(f"v_cmpx_gt_u32 {sp(sM+6)}, s{sBt}, v2")
                I("s_cbranch_execz L_NO8")
                I(f"global_load_dwordx4 {rr(vD+4,4)}, v2, {sp(pDST)}{pol(LD_P)}")
                I(f"global_load_dwordx4 {rr(vSR+4,4)}, v2, {sp(pSRC)}{pol(LD_P)}")
                L("L_NO8")
                I("s_mov_b64 exec, -1")
            G2 = opt("g2", 0)
            if G2 == 0: group2()
        L("L_NO7")
        I("s_mov_b64 exec, -1")
        KV = opt("kv", 0)
        if KV:
            I("v_mov_b32 v1, 0")
            I(f"global_load_dword v{vEA+1}, v1, {sp(pWS)}")
        else: I(f"s_load_dword s{sK}, {sp(pWS)}, 0")
        if opt("tlb", 0):
            I("v_lshlrev_b32 v1, 20, v0")
            I(f"v_add_u32 v1, {WS_CELL + XOFF - 448*(1 << 20) & 0xffffffff:#x}, v1")
            I("v_subrev_u32 v2, 448, v0")
            I("v_cmpx_gt_u32 vcc, 9, v2")
            I("s_cbranch_execz L_NOTLB")
            I(f"global_load_dword v{vEA+1}, v1, {sp(pWS)}")
            L("L_NOTLB")
            I("s_mov_b64 exec, -1")
    if TS: I(f"v_mov_b32 v{vTS}, 0")
    u = lambda i: vP + i
    if TS and opt("tz", 0):
        I("s_waitcnt lgkmcnt(0)")
        I(f"v_writelane_b32 v{vTS}, s96, 0")
        I(f"v_writelane_b32 v{vTS}, s98, 1")
        STN.extend(["z", "k"])
    stamp(0)
    vBK, vRK1, vID, vHA, vIC = vACC + 8, vACC + 16, vACC + 24, vACC + 40, vACC + 48
    vRW = vX
    one, l16 = vS, vS + 1
    vOA, vT16, sOW = vR + 14, vR + 12, 101
    I(f"v_mov_b32 v{tid}, v0")
    I(f"v_lshrrev_b32 v{u(0)}, 6, v0")
    I(f"v_and_b32 v{lane}, 63, v0")
    I(f"v_readfirstlane_b32 s{sWP}, v{u(0)}")
    I(f"v_lshlrev_b32 v{vT16}, 4, v0")
    I(f"v_lshlrev_b32 v{u(2)}, 3, v0")
    I(f"v_lshlrev_b32 v{u(3)}, 2, v0")
    I(f"v_and_b32 v{u(4)}, 0x3fc, v{u(3)}")
    if not FH:
        I(f"s_mul_i32 s{sA}, s2, {CH*4}")
        I(f"s_sub_u32 s{sBt}, {E*4}, s{sA}")
        I(f"s_min_u32 s{sBt}, s{sBt}, {CH*4}")
    I(f"s_and_b32 s{sB}, s2, 7")
    I(f"s_lshr_b32 s{sW}, s2, 3")
    I(f"s_lshl_b32 s{sB}, s{sB}, 5")
    I(f"s_add_u32 s{sB}, s{sB}, s{sW}")
    I(f"s_mul_i32 s{sF1}, s{sB}, {BN}")
    I(f"s_cmp_eq_u32 s{sWP}, 7")
    I(f"s_cselect_b32 s{sOW}, 0, s{sWP}")
    I(f"s_lshl_b32 s{sL}, s{sOW}, 5")
    I(f"s_add_u32 s{sF1}, s{sF1}, s{sL}")
    I(f"v_lshrrev_b32 v{u(5)}, 3, v{lane}")
    I(f"v_lshl_add_u32 v{u(5)}, v{u(5)}, 2, s{sF1}")
    I(f"v_and_b32 v{vCP}, 7, v{lane}")
    I(f"v_lshlrev_b32 v{vCP}, 4, v{vCP}")
    I(f"v_lshl_add_u32 v{vOA}, v{u(5)}, 7, v{vCP}")
    I(f"s_lshl_b32 s{sOW}, s{sOW}, 10")
    I(f"s_add_u32 s{sOW}, s{sOW}, {OWN}")
    if not FH:
        I(f"s_movk_i32 s{sF0}, 0x2000")
        I("s_waitcnt lgkmcnt(0)")
        I(f"s_load_dword s{sK}, {sp(pWS)}, 0")
        srd(sCEL, pDST, f"s{sBt}", f"s{sA}")
        srd(sD2, pSRC, f"s{sBt}", f"s{sA}")
        I(f"buffer_load_dwordx4 {rr(vD,4)}, v{vT16}, {sq(sCEL)}, 0 offen{pol(LD_P)}")
        I(f"buffer_load_dwordx4 {rr(vSR,4)}, v{vT16}, {sq(sD2)}, 0 offen{pol(LD_P)}")
        I(f"s_cmp_ge_u32 s{sWP}, 5")
        I("s_cbranch_scc1 L_NO7")
        I(f"buffer_load_dwordx4 {rr(vD+4,4)}, v{vT16}, {sq(sCEL)}, s{sF0} offen{pol(LD_P)}")
        I(f"buffer_load_dwordx4 {rr(vSR+4,4)}, v{vT16}, {sq(sD2)}, s{sF0} offen{pol(LD_P)}")
        L("L_NO7")
    for d in range(2): I(f"v_mov_b64 {rr(u(8)+2*d,2)}, 0")
    I(f"v_mov_b32 v{u(6)}, {33*JE if MG else 0}")
    I(f"ds_write2st64_b32 v{u(4)}, v{u(6)}, v{u(8)} offset0:{HIST1//256} offset1:{HIST1//256+4}")
    I(f"v_add_u32 v{u(5)}, {CIMG}, v{vT16}")
    if G2 == 1: group2()
    for k in range(5): I(f"ds_write_b128 v{u(5)}, {rr(u(8),4)} offset:{8192*k}")
    if G2 == 2: group2()
    PF = opt("pf", 0)
    def w_loads():
        I(f"s_cmp_ge_u32 s{sWP}, 2")
        I("s_cbranch_scc1 L_NOC")
        I(f"global_load_dwordx4 {rr(vEO,4)}, v{vT16}, {sp(pWC)}")
        L("L_NOC")
        for k, p in enumerate((pWB, pWV, pWA, pWU)):
            I(f"global_load_dwordx4 {rr(vRW+4*k,4)}, v{vT16}, {sp(p)}")
    def own_loads():
        I(f"s_cmp_eq_u32 s{sWP}, 6")
        I("s_cselect_b32 exec_hi, 0, -1")
        I(f"s_cmp_eq_u32 s{sWP}, 7")
        I("s_cselect_b64 exec, 1, exec")
        for k in range(4):
            I(f"s_add_u32 m0, s{sOW}, {(PL-128)*k}")
            I("s_nop 0")
            I(f"buffer_load_dwordx4 v{vOA}, {sq(sX)}, 0 offen offset:{128*k}{pol(opt('owp', ''))} lds")
        I("s_mov_b64 exec, -1")
    def x_prefetch():
        if not PF: return
        I(f"s_add_u32 s{sTM}, s2, 1")
        I(f"s_and_b32 s{sTM}, s{sTM}, 7")
        I(f"s_mul_i32 s{sTM}, s{sTM}, {32*BN}")
        I(f"s_lshr_b32 s{sTM+1}, s2, 3")
        I(f"s_mul_i32 s{sTM+1}, s{sTM+1}, {PF}")
        I(f"s_add_u32 s{sTM}, s{sTM}, s{sTM+1}")
        I(f"s_mul_i32 s{sTM+1}, s{sWP}, {PF//8}")
        I(f"s_add_u32 s{sTM}, s{sTM}, s{sTM+1}")
        I(f"v_min_u32 v{vEA+1}, {PF//8 - 1}, v{lane}")
        I(f"v_add_lshl_u32 v{vEA+1}, v{vEA+1}, s{sTM}, 7")
        I(f"buffer_load_dword v{vEA+1}, v{vEA+1}, {sq(sX)}, 0 offen")
    PFP = opt("pfp", 0)
    LLP = 2
    OLP = opt("olp", 2)
    NY = 0
    srd(sEP, pE, E, stride=32)
    srd(sOUT, pOUT, N*128)
    srd(sX, pX, N*128)
    OY = 0
    if OLP == 3:
        OW0 = opt("ow0", 5); nw = 8 - OW0; per = -(-28 // nw); OY = per
        I(f"s_cmp_lt_u32 s{sWP}, {OW0}")
        I("s_cbranch_scc1 L_NOOWN")
        I(f"s_mul_i32 s{sF1}, s{sB}, {BN}")
        I(f"v_lshrrev_b32 v{vOA}, 3, v{lane}")
        I(f"v_lshl_add_u32 v{vOA}, v{vOA}, 2, s{sF1}")
        I(f"v_lshl_add_u32 v{vOA}, v{vOA}, 7, v{vCP}")
        I(f"s_sub_u32 s{sF0}, s{sWP}, {OW0}")
        for k in range(per):
            I(f"s_add_u32 s{sF1}, s{sF0}, {nw*k}")
            I(f"s_min_u32 s{sF1}, s{sF1}, 27")
            I(f"s_and_b32 s{sL}, s{sF1}, 3")
            I(f"s_lshr_b32 s{sF1}, s{sF1}, 2")
            I(f"s_mul_i32 s{sOW}, s{sL}, {PL}")
            I(f"s_lshl_b32 s{sL}, s{sL}, 7")
            I(f"s_cmp_eq_u32 s{sF1}, 6")
            I("s_cselect_b32 exec_hi, 0, -1")
            I(f"s_lshl_b32 s{sF1}, s{sF1}, 10")
            I(f"s_add_u32 s{sOW}, s{sOW}, s{sF1}")
            I(f"s_add_u32 m0, s{sOW}, {OWN}")
            I(f"s_lshl2_add_u32 s{sL}, s{sF1}, s{sL}")
            I(f"buffer_load_dwordx4 v{vOA}, {sq(sX)}, s{sL} offen lds")
        I("s_mov_b32 exec_hi, -1")
        L("L_NOOWN")
    srd(sWS, pWS, WS_USED)
    I(f"s_lshl_b32 s{sL}, s2, 7")
    I(f"s_add_u32 s{sL}, s{sL}, {WS_CELL}")
    srd(sCEL, pWS, 255*RS + XOFF + 128, f"s{sL}")
    cM, cN, cP, cPM, cR = sM, sM + 1, sM + 2, sM + 3, sM + 4
    m2 = sM + 6
    I(f"s_mov_b32 s{cM}, 85599")
    I(f"s_mov_b32 s{cN}, {-BN & 0xffffffff}")
    I(f"s_movk_i32 s{cP}, 5368")
    I(f"s_mov_b32 s{cPM}, {opt('phm', 3) << 26:#x}")
    I(f"s_mov_b32 s{cR}, {RS}")
    I(f"s_mov_b32 s{sSP}, {-(196*5368) & 0xffffffff:#x}")
    for i in range(4): I(f"v_add_u32 v{vID+i}, {i}, v{u(3)}")
    I(f"s_lshl_b32 s{sA}, s{sWP}, 28")
    I(f"s_or_b32 s{sA}, s{sA}, 0x20000")
    I(f"v_mov_b32 v{vIC}, s{sA}")
    if BAL:
        assert MG <= 1 and OLP != 3
        I(f"s_lshr_b32 s{sA}, s{sWP}, 1")
        I(f"s_lshl_b32 s{sA}, s{sA}, 28")
        I(f"s_or_b32 s{sA}, s{sA}, 0x80020000")
        I(f"v_mov_b32 v{vIC+1}, s{sA}")
        I(f"v_mov_b32 v{vIC+3}, 0xc0020000")
        I(f"v_lshlrev_b32 v{vID+4}, 1, v{tid}")
        I(f"v_add_u32 v{vID+5}, 1, v{vID+4}")
        I(f"v_mov_b32 v{vID+6}, v{tid}")
    else: I(f"v_or_b32 v{vIC+1}, 0x80000000, v{vIC}")
    idr = (lambda i: vID + i) if BAL else (lambda i: vID + (i & 3))
    icr = (lambda i: vIC + (3 if i == 6 else i >> 2)) if BAL else (lambda i: vIC + (i >> 2))
    NR = 7 if BAL else 8
    I(f"v_mov_b32 v{one}, 33")
    vK1 = vIC + 2
    I(f"v_mov_b32 v{vK1}, 0x400")
    if not FH:
        I(f"s_sub_u32 s{sBt}, s{sBt}, 0x2000")
        I(f"v_cmp_gt_u32 {sp(m2)}, s{sBt}, v{vT16}")
    I(f"s_and_b32 s{sA}, s{sWP}, 3")
    I(f"s_lshr_b32 s{sW}, s{sWP}, 2")
    I(f"s_lshl1_add_u32 s{sW}, s{sA}, s{sW}")
    if opt("swp", 1): I(f"s_xor_b32 s{sW}, s{sW}, 1")
    I(f"s_mul_i32 s{sA}, s{sW}, 49")
    I(f"s_sub_i32 s{sA}, s{sA}, 6")
    I(f"s_ashr_i32 s{sA}, s{sA}, 1")
    I(f"s_max_i32 s{sWIN}, s{sA}, 0")
    I(f"s_mul_i32 s{sSTG}, s{sW}, {SLOT}")
    I(f"s_add_u32 s{sSTG}, s{sSTG}, {XSTG}")
    I(f"s_lshl_b32 s{sES}, s{sW}, 10")
    I(f"s_add_u32 s{sES}, s{sES}, {ESTG}")
    I(f"s_mul_i32 s{sL}, s{sW}, {2*LWB}")
    I(f"s_add_u32 s{sL}, s{sL}, {R0}")
    I(f"s_movk_i32 s{s128}, 128")
    if G2 == 3: group2()
    I(f"v_bfe_u32 v{u(6)}, v{tid}, 4, 4")
    I(f"v_and_b32 v{u(7)}, 7, v{tid}")
    I(f"v_cmp_eq_u32 vcc, v{u(6)}, v{u(7)}")
    I(f"v_and_b32 v{u(6)}, 8, v{tid}")
    I(f"v_lshlrev_b32 v{u(6)}, 1, v{u(6)}")
    I(f"v_mov_b32 v{u(8)}, 0x3f80")
    I(f"v_lshlrev_b32 v{u(8)}, v{u(6)}, v{u(8)}")
    I(f"v_cndmask_b32 v{u(8)}, 0, v{u(8)}, vcc")
    I(f"ds_write_b32 v{u(4)}, v{u(8)} offset:{TAB}")
    I(f"v_mov_b64 {rr(u(8),2)}, 0")
    I(f"ds_write_b64 v{u(2)}, {rr(u(8),2)} offset:{HIST}")
    I(f"v_add_u32 v{u(6)}, {PRG}, v{u(3)}")
    I(f"ds_write_b32 v{u(6)}, v{u(8)}")
    go, lo, lo2, ha = vR, vR + 1, vR + 2, vR + 3
    wl, wal = vR + 4, vR + 5
    I(f"v_lshrrev_b32 v{ha}, 3, v{tid}")
    I(f"v_mad_u32_u24 v{go}, v{ha}, s{cR}, v{vCP}")
    I(f"v_mul_u32_u24 v{wl}, {LROW}, v{ha}")
    I(f"v_add_u32 v{lo}, v{wl}, v{vCP}")
    I(f"v_add_u32 v{lo}, {CIMG}, v{lo}")
    assert LROW == WR
    I(f"v_bfe_u32 v{u(6)}, v{tid}, 5, 1")
    I(f"v_bfe_u32 v{u(8)}, v{tid}, 6, 1")
    I(f"v_sub_u32 v{u(6)}, v{u(6)}, v{u(8)}")
    I(f"v_mul_i32_i24 v{u(6)}, {4*WR}, v{u(6)}")
    I(f"v_add_u32 v{wl}, v{wl}, v{u(6)}")
    I(f"v_lshl_add_u32 v{wl}, v{u(7)}, 2, v{wl}")
    I(f"v_add_u32 v{wl}, {WBI}, v{wl}")
    I(f"v_lshlrev_b32 v{l16}, 4, v{lane}")
    I(f"v_and_b32 v{u(6)}, 3, v{lane}")
    I(f"v_lshlrev_b32 v{vcS}, 3, v{u(6)}")
    I(f"v_bfe_u32 v{u(9)}, v{lane}, 2, 3")
    I(f"v_lshrrev_b32 v{u(8)}, 5, v{lane}")
    I(f"v_lshl_add_u32 v{u(9)}, v{u(8)}, 4, v{u(9)}")
    I(f"v_mul_u32_u24 v{wal}, {WR}, v{u(9)}")
    I(f"v_add_u32 v{wal}, v{wal}, v{vcS}")
    mm = lambda i: sM + 8 + 2*i
    def rank_a(rs, wsrc=0, plain=False):
        for i in rs: I(f"v_mul_u32_u24 v{vBK+i}, s{cM}, v{vD+i}")
        if rs[0] // 4 < MG and not plain:
            b = rs[0]
            for i in rs: I(f"v_lshrrev_b32 v{vHA+i}, 29, v{vBK+i}")
            if opt("px", 0):
                I(f"s_waitcnt vmcnt({wsrc})")
                for i in rs:
                    I(f"v_cmp_gt_u32 vcc, {opt('px', 0)}, v{vSR+i}")
                    I("s_nop 1")
                    I(f"v_cndmask_b32 v{vHA+i}, v{vHA+i}, v{vID+(i&3)}, vcc") if False else I(f"v_cndmask_b32_e64 v{vHA+i}, v{vHA+i}, {8+(i&3)}, vcc")
            t0, t1 = sM + 24, sM + 26
            I(f"v_cmp_eq_u32 {sp(mm(b))}, v{vHA+b}, v{vHA+b+1}")
            I(f"v_cmp_eq_u32 {sp(mm(b+2))}, v{vHA+b+2}, v{vHA+b+3}")
            I(f"v_cmp_eq_u32 vcc, v{vHA+b}, v{vHA+b+2}")
            I(f"v_cmp_eq_u32 {sp(t0)}, v{vHA+b+1}, v{vHA+b+3}")
            I(f"v_cmp_eq_u32 {sp(t1)}, v{vHA+b}, v{vHA+b+3}")
            I(f"v_cmp_eq_u32 {sp(sA)}, v{vHA+b+1}, v{vHA+b+2}")
            for i in rs: I(f"v_lshrrev_b32 v{vBK+i}, 24, v{vBK+i}")
            I(f"s_or_b64 {sp(mm(b+1))}, {sp(mm(b))}, {sp(t0)}")
            I(f"s_or_b64 {sp(mm(b+3))}, {sp(mm(b+2))}, {sp(t0)}")
            I(f"s_or_b64 {sp(mm(b))}, {sp(mm(b))}, vcc")
            I(f"s_or_b64 {sp(mm(b+2))}, {sp(mm(b+2))}, vcc")
            I(f"s_or_b64 {sp(mm(b))}, {sp(mm(b))}, {sp(t1)}")
            I(f"s_or_b64 {sp(mm(b+1))}, {sp(mm(b+1))}, {sp(sA)}")
            I(f"s_or_b64 {sp(mm(b+2))}, {sp(mm(b+2))}, {sp(sA)}")
            I(f"s_or_b64 {sp(mm(b+3))}, {sp(mm(b+3))}, {sp(t1)}")
            for i in rs:
                I(f"v_cndmask_b32 v{vHA+i}, 0, v{vK1}, {sp(mm(i))}")
                I(f"v_lshl_add_u32 v{vHA+i}, v{vBK+i}, 2, v{vHA+i}")
                I(f"ds_add_rtn_u32 v{vRK1+i}, v{vHA+i}, v{one} offset:{HIST1}")
            return
        for i in rs: I(f"v_lshrrev_b32 v{vBK+i}, 24, v{vBK+i}")
        for i in rs:
            I(f"v_lshlrev_b32 v{vHA+i}, 2, v{vBK+i}")
            I(f"ds_add_rtn_u32 v{vRK1+i}, v{vHA+i}, v{one} offset:{HIST1}")
    def again(rs, wait, em):
        for i in rs:
            I(f"s_waitcnt lgkmcnt({wait})")
            I(f"s_mov_b64 exec, {sp(mm(i))}")
            I(f"v_cmpx_le_u32 vcc, {33*JE}, v{vRK1+i}")
            I(f"ds_add_rtn_u32 v{vRK1+i}, v{vHA+i}, v{one} offset:{HIST1 - 1024}")
        I(f"s_mov_b64 exec, {em}")
    def rank_b(rs):
        for i in rs:
            I(f"v_mad_i32_i24 v{vD+i}, v{vBK+i}, s{cN}, v{vD+i}")
            I(f"v_mul_u32_u24 v{u(6)}, s{cP}, v{vSR+i}")
            I(f"v_lshl_or_b32 v{vSR+i}, v{vD+i}, 18, v{vSR+i}")
            if opt("rot", 1):
                I(f"v_and_b32 v{vD+i}, 0xe0, v{vBK+i}")
                I(f"v_mad_i32_i24 v{u(6)}, v{vD+i}, s{sSP}, v{u(6)}")
            I(f"v_and_or_b32 v{u(6)}, v{u(6)}, s{cPM}, v{icr(i)}")
            I(f"v_mad_u32_u24 v{vD+i}, v{vBK+i}, {LROW//4}, s{cN+4}")
            I(f"v_or_b32 v{vSR+i}, v{vSR+i}, v{u(6)}")
    def place(i, wait, em):
        I(f"s_waitcnt lgkmcnt({wait})")
        I(f"v_bfe_u32 v{u(6)}, v{vRK1+i}, 3, 5")
        I(f"v_add_lshl_u32 v{vD+i}, v{u(6)}, v{vD+i}, 2")
        I(f"v_and_b32 v{u(6)}, 3, v{u(6)}")
        I(f"v_mad_i32_i24 v{u(6)}, v{u(6)}, -3, v{vD+i}")
        I(f"v_cmpx_gt_u32 vcc, {33*CAP}, v{vRK1+i}")
        I(f"ds_write_b32 v{vD+i}, v{vSR+i}")
        I(f"ds_write_b8 v{u(6)}, v{idr(i)} offset:12")
        I(f"s_mov_b64 exec, {em}")
    I(f"s_movk_i32 s{cN+4}, {CIMG//4}")
    for d in range(2): I(f"v_mov_b64 {rr(vRK1+4+2*d,2)}, 0")
    I("s_waitcnt lgkmcnt(0)")
    I("s_barrier")
    if BAL:
        m3 = sM + 28
        I("s_waitcnt vmcnt(3)")
        stamp(1)
        if TS: STN.pop()
        rank_a(range(4))
        I("s_waitcnt vmcnt(2)")
        I(f"s_mov_b64 exec, {sp(m2)}")
        rank_a(range(4, 6))
        if MG: again(range(4), 5, "-1")
        else: I("s_mov_b64 exec, -1")
        I("s_waitcnt vmcnt(0)")
        rank_b(range(6))
        I(f"s_mov_b64 exec, {sp(m2)}")
        for i in range(4, 6): place(i, (1 if MG else -3) + i, sp(m2) if i < 5 else "-1")
        for i in range(4): place(i, 7 + i, "-1")
        I(f"s_mov_b64 exec, {sp(m3)}")
        I("s_cbranch_execz L_B1")
        rank_a([6]); rank_b([6]); place(6, 0, "-1")
        I("s_branch L_B1")
    I(f"s_cmp_eq_u64 {sp(m2)}, 0" if FH else f"s_cmp_ge_u32 s{sWP}, 5")
    I("s_cbranch_scc1 L_R4")
    I(f"s_waitcnt vmcnt({3+KV})")
    stamp(1)
    rank_a(range(4), 2)
    I(f"s_waitcnt vmcnt({1+KV})")
    I(f"s_mov_b64 exec, {sp(m2)}")
    rank_a(range(4, 8))
    if MG == 0:
        I("s_mov_b64 exec, -1")
        rank_b(range(4))
        for i in range(4): place(i, 7 + i, "-1" if i < 3 else sp(m2))
        I(f"s_waitcnt vmcnt({KV})")
        rank_b(range(4, 8))
        for i in range(4, 8): place(i, 7 + i, sp(m2) if i < 7 else "-1")
    elif MG == 1:
        again(range(4), 7, sp(m2))
        I(f"s_waitcnt vmcnt({KV})")
        rank_b(range(4, 8))
        for i in range(4, 8): place(i, 3 + i, sp(m2) if i < 7 else "-1")
        rank_b(range(4))
        for i in range(4): place(i, 11 + i, "-1")
    else:
        again(range(8), 7, "-1")
        rank_b(range(4))
        for i in range(4): place(i, 7 + i, "-1" if i < 3 else sp(m2))
        I(f"s_waitcnt vmcnt({KV})")
        rank_b(range(4, 8))
        for i in range(4, 8): place(i, 7 + i, sp(m2) if i < 7 else "-1")
    I("s_branch L_B1")
    L("L_R4")
    if OY:
        I(f"s_cmp_ge_u32 s{sWP}, {OW0}")
        I("s_cbranch_scc1 L_R4A")
        I(f"s_waitcnt vmcnt({KV})")
        L("L_R4A")
    I(f"s_waitcnt vmcnt({1 + OY + KV})")
    if TS: STN.pop()
    stamp(1)
    YM = opt("ym", 1)
    rank_a(range(4), plain=not YM)
    I(f"s_waitcnt vmcnt({OY + KV})")
    if MG and YM:
        rank_b(range(2))
        again(range(4), 3, "-1")
        rank_b(range(2, 4))
    else: rank_b(range(4))
    for i in range(4): place(i, 3 + i, "-1")
    L("L_B1")
    if BAL:
        k_ = max(i for i, l in enumerate(out) if l.strip() == "s_cbranch_execz L_B1")
        e_ = next(i for i in range(k_, len(out)) if out[i].strip() == "s_branch L_B1")
        del out[e_:len(out)-1]
        I("s_mov_b64 exec, -1")
    WL = opt("wl", 0)
    if not WL: w_loads()
    vTG = vS + 2
    def tagcalc():
        I(f"s_add_u32 s{sK}, s{sK}, {KINC:#x}")
        I(f"v_lshlrev_b32 v{vTG}, v{vcS}, s{sK}")
        I(f"v_and_b32 v{u(1)}, 4, v{lane}")
        I(f"v_mul_u32_u24 v{u(1)}, {37 << 15}, v{u(1)}")
        I(f"v_lshl_add_u32 v{vTG}, v{u(1)}, 8, v{vTG}")
        I(f"v_and_b32 v{vTG}, 0xfe000000, v{vTG}")
    if not KV: tagcalc()
    vTH = vS + 3
    I(f"v_and_b32 v{vTH}, 7, v{lane}")
    I(f"v_mul_u32_u24 v{vTH}, 33, v{vTH}")
    I(f"v_add_u32 v{vTH}, {33*CAP}, v{vTH}")
    I(f"v_lshlrev_b32 v{lo2}, 2, v{ha}")
    I(f"s_mov_b32 s{cM}, 0x1000000")
    I("s_waitcnt lgkmcnt(0)")
    I("s_barrier")
    stamp(2)
    vO, vHS = vQ, u(4)
    I(f"ds_read_b128 {rr(vHS,4)}, v{l16} offset:{HIST1}")
    vHD = vR + 8
    for i in range(4):
        I(f"ds_read_b32 v{vHD+i}, v{lo2} offset:{HIST1 + 256*i}")
        I(f"ds_read_b128 {rr(vO+4*i,4)}, v{lo} offset:{64*LROW*i}")
    if KV:
        I("s_waitcnt vmcnt(4)")
        I(f"v_readfirstlane_b32 s{sK}, v{vEA+1}")
    for i in range(1, 4): I(f"s_mov_b32 s{sM+15+i}, {64*RS*i}")
    if KV: tagcalc()
    I("s_waitcnt lgkmcnt(8)")
    I(f"v_max3_u32 v{u(0)}, v{vHS}, v{vHS+1}, v{vHS+2}")
    I(f"v_max_u32 v{u(0)}, v{u(0)}, v{vHS+3}")
    I(f"v_cmp_lt_u32 vcc, {33*(CAP+8)}, v{u(0)}")
    I("s_cbranch_vccnz L_POVF")
    L("L_POUT")
    for i in range(4):
        I(f"s_waitcnt lgkmcnt({7 - 2*i})")
        I(f"v_sub_u32 v{vHD+i}, v{vTH}, v{vHD+i}")
        I(f"v_and_or_b32 v{vHD+i}, v{vHD+i}, s{cM}, v{vTG}")
        I(f"s_waitcnt lgkmcnt({6 - 2*i})")
        I(f"v_or_b32 v{vO+4*i+3}, v{vO+4*i+3}, v{vHD+i}")
        I(f"buffer_store_dwordx4 {rr(vO+4*i,4)}, v{go}, {sq(sCEL)}, {f's{sM+15+i}' if i else '0'} offen{pol(STP)}")
    stamp(3)
    if WL: w_loads()
    if "c" in opt("tsx", ""): I("s_waitcnt vmcnt(0)")
    stamp("c0")
    t = vACC + 32
    I(f"s_mov_b32 s{sA}, {f2u(-LOG2E):#x}")
    I(f"s_mov_b32 s{sBt}, s{sA}")
    I(f"s_mov_b32 s{cM}, 0x05040100")
    I(f"s_mov_b32 s{cP}, 0x07060302")
    def wscaled(src, off):
        for d in range(4):
            I(f"v_lshlrev_b32 v{t+2*d}, 16, v{src+d}")
            I(f"v_and_b32 v{t+2*d+1}, 0xffff0000, v{src+d}")
        for d in range(4): I(f"v_pk_mul_f32 {rr(t+2*d,2)}, {rr(t+2*d,2)}, {sp(sA)}")
        for n in range(4): I(f"v_cvt_pk_bf16_f32 v{t+8+n}, v{t+n}, v{t+4+n}")
        wput(t + 8, off)
    def wplain(src, off, tt):
        for n in range(4): I(f"v_perm_b32 v{tt+n}, v{src+2+(n>>1)}, v{src+(n>>1)}, s{cP if n & 1 else cM}")
        wput(tt, off)
    def wput(r, off):
        a = wl
        if off:
            a = r + 4
            I(f"v_add_u32 v{a}, {off}, v{wl}")
        I(f"ds_write2_b32 v{a}, v{r}, v{r+1} offset0:0 offset1:8")
        I(f"ds_write2_b32 v{a}, v{r+2}, v{r+3} offset0:16 offset1:24")
    I(f"s_waitcnt vmcnt({0 if WL else 4})")
    if PFP == 0: x_prefetch()
    stamp("b4")
    wplain(vRW + 8, WAI - WBI, t + 16)
    wscaled(vRW, 0)
    wplain(vRW + 4, WVI - WBI, t + 24)
    wplain(vRW + 12, WUI - WBI, t + 16)
    I(f"s_cmp_ge_u32 s{sWP}, 2")
    I("s_cbranch_scc1 L_NOWC")
    wscaled(vEO, WCI - WBI)
    L("L_NOWC")
    I(f"s_mul_i32 s{sTM}, s{sB}, {RS}")
    I(f"s_add_u32 s{sTM}, s{sTM}, {WS_CELL}")
    srd(sCEL, pWS, 256*128, f"s{sTM}")
    I(f"s_add_u32 s{sTM}, s{sTM}, {XOFF}")
    srd(sD2, pWS, 256*128, f"s{sTM}")
    vC, vEB = vACC + 32, vACC + 60
    pa = vT16
    for k in (1, 2, 3): I(f"s_movk_i32 s{sCI+k-1}, {8192*k}")
    def poll_load(i):
        so = "0" if i == 0 else f"s{sCI+i-1}"
        I(f"buffer_load_dwordx4 {rr(vC+4*i,4)}, v{pa}, {sq(sCEL)}, {so} offen sc1")
    I("s_waitcnt lgkmcnt(0)")
    I("s_barrier")
    stamp(4)
    if WL == 1:
        for i in range(4): poll_load(i)
    if PFP == 1: x_prefetch()
    if OLP == 0: own_loads()
    vWA = vACC
    I(f"v_add_u32 v{wal}, {WBI}, v{wal}")
    def trw(reg, img):
        return [f"ds_read_b64_tr_b16 {rr(reg+8*n+4*s+2*uu,2)}, v{wal} offset:{img + (32*s + 8*uu)*WR + 32*n}"
                for n in range(4) for s in range(2) for uu in range(2)]
    tw = trw(vWB, 0) + trw(vWV, WVI - WBI)
    for x_ in tw[:14]: I(x_)
    prefill(vCA)
    if WL == 2:
        for i in range(4): poll_load(i)
    for x_ in tw[14:24]: I(x_)
    nxt = 24
    I(f"v_mov_b32 v{u(4)}, v{wal}")
    I("s_mov_b32 exec_lo, 0")
    I(f"v_subrev_u32 v{u(4)}, {16*WR}, v{wal}")
    I("s_mov_b32 exec_lo, -1")
    tw += [f"ds_read_b64_tr_b16 {rr(vCA+16+4*n+2*uu,2)}, v{u(4)} offset:{WCI - WBI + 8*uu*WR + 32*n}" for n in range(4) for uu in range(2)]
    vEM, vET = vEO, vACC + 56
    ownn, owna, mapa = vEO + 1, vEO + 2, vEO + 3
    I("s_waitcnt lgkmcnt(4)")
    for x_ in tw[nxt:]: I(x_)
    I(f"v_add_u32 v{wal}, {WAI - WBI}, v{wal}")
    vFF = vEO + 4
    vMU = vR + 8
    lo0, hi0, lo1, hi1 = sWS0, sWS1, sB0E, sSH
    def late_setup():
        I(f"v_and_b32 v{vCH}, 1, v{lane}")
        I(f"v_lshlrev_b32 v{vCH}, 4, v{vCH}")
        I(f"v_mov_b32 v{vONE}, 0x3f80")
        I(f"v_and_b32 v{vcEO}, 16, v{lane}")
        I(f"v_and_b32 v{u(6)}, 15, v{lane}")
        I(f"v_lshl_add_u32 v{u(6)}, v{u(6)}, 5, s{sES}")
        I("s_mov_b32 exec_hi, 0")
        I(f"v_add_u32 v{vcEO}, v{vcEO}, v{u(6)}")
        I("s_mov_b32 exec_hi, -1")
        I(f"v_and_b32 v{u(6)}, 3, v{lane}")
        I(f"v_bfe_u32 v{u(8)}, v{lane}, 2, 2")
        I(f"v_and_b32 v{u(9)}, 48, v{lane}")
        I(f"v_lshl_add_u32 v{u(10)}, v{u(8)}, 7, v{u(9)}")
        I(f"v_mul_u32_u24 v{vAX}, {XI}, v{u(6)}")
        I(f"v_add3_u32 v{vAX}, v{vAX}, v{u(10)}, s{sSTG}")
        listaddr(u(6))
        I(f"v_mul_u32_u24 v{vEB}, {CH}, v{ha}")
        for i in range(1, 4): I(f"v_add_u32 v{vEB+i}, {64*i*CH}, v{vEB}")
        I(f"s_mov_b32 s{sEM}, {EMASK:#x}")
        I(f"s_mov_b32 s{sEM+1}, {EMASK:#x}")
        vFF = vEO + 4
        I(f"v_mov_b32 v{vFF}, 0xfffff")
        I(f"v_cndmask_b32 v{vEM}, 0, v{vFF}, {sp(sEM)}")
        I(f"v_add_lshl_u32 v{u(3)}, v{pa}, v{vCP}, 16")
        for i in range(4):
            I(f"v_add_u32 v{vET+i}, {(EARLY + 8192*i) << 16:#x}, v{u(3)}")
            I(f"v_cndmask_b32 v{vET+i}, 0, v{vET+i}, {sp(sEM)}")
        I(f"v_mov_b32 v{one}, 4")
        I(f"v_and_b32 v{ownn}, 31, v{lane}")
        I(f"v_add_lshl_u32 v{mapa}, v{ownn}, s{sWIN}, 2")
        I(f"v_lshrrev_b32 v{u(3)}, 5, v{lane}")
        I(f"v_lshl_add_u32 v{owna}, v{u(3)}, 11, v{mapa}")
        I(f"v_add_u32 v{mapa}, {MAP}, v{mapa}")
        I(f"v_lshlrev_b32 v{u(3)}, 2, v{lane}")
        I(f"v_subrev_u32 v{u(3)}, s{sWIN}, v{u(3)}")
        I("s_mov_b32 s10, 0x10000")
        for i in range(4):
            I(f"v_add_u32 v{vMU+i}, {i}, v{u(3)}")
            I(f"v_and_or_b32 v{vMU+i}, v{vMU+i}, s10, 1")
        I(f"s_movk_i32 s{sFM}, 0xffc")
        I(f"s_movk_i32 s{sSKIP}, {CAP+8}")
        I(f"s_mov_b32 s{sXT}, 0")
        I(f"s_mov_b32 s{sSP}, 0")
        I(f"s_mov_b32 s{sT}, 0x1ffffff")
        I(f"s_mov_b32 s{sN}, 0xffff")
        lo0, hi0, lo1, hi1 = sWS0, sWS1, sB0E, sSH
        I(f"s_mul_i32 s10, s{sW}, 49")
        I(f"s_sub_i32 s{lo0}, s10, 6")
        I(f"s_ashr_i32 s{lo0}, s{lo0}, 1")
        I(f"s_add_i32 s{hi0}, s10, 7")
        I(f"s_ashr_i32 s{hi0}, s{hi0}, 1")
        I(f"s_add_i32 s{lo1}, s10, 43")
        I(f"s_ashr_i32 s{lo1}, s{lo1}, 1")
        I(f"s_add_i32 s{hi1}, s{lo0}, 31")
        I(f"s_cmp_eq_u32 s{sW}, 7")
        I(f"s_cselect_b32 s{lo1}, {BN}, s{lo1}")
        I(f"s_cselect_b32 s{hi1}, {BN}, s{hi1}")
        for r_ in (hi0, lo1, hi1): I(f"s_sub_i32 s{r_}, s{r_}, s{sWIN}")
    LS = opt("ls", 0)
    if LS == 0: late_setup()
    stamp("b0")
    if opt("pw", 1) and not WL: I(f"s_waitcnt vmcnt({4 if OLP == 0 else 0})")
    stamp("b1")
    if opt("pbar", 0): I("s_barrier")
    if WL in (0, 3):
        for i in range(4): poll_load(i)
    if OLP == 1: own_loads()
    if LS == 1: late_setup()
    PY = 4 if OLP == 1 else 0
    I(f"v_max3_u32 v{u(0)}, v{vRK1}, v{vRK1+1}, v{vRK1+2}")
    I(f"v_max3_u32 v{u(1)}, v{vRK1+3}, v{vRK1+4}, v{vRK1+5}")
    I(f"v_max3_u32 v{u(0)}, v{u(0)}, v{vRK1+6}, v{vRK1+7}")
    I(f"v_max_u32 v{u(0)}, v{u(0)}, v{u(1)}")
    I(f"v_cmp_le_u32 vcc, {33*CAP}, v{u(0)}")
    I("s_cbranch_vccz L_PEXTR")
    q = vCA
    if TS: I(f"v_writelane_b32 v{vTS}, 1, 61")
    I(f"v_mov_b32 v{q+1}, s{sK}")
    I(f"s_lshl_b32 s{sTM}, s2, 7")
    I(f"s_add_u32 s{sTM}, s{sTM}, {WS_CELL + XOFF}")
    for i in range(NR):
        I(f"v_subrev_u32 v{q+4}, {33*CAP}, v{vRK1+i}")
        I(f"v_cmpx_gt_u32 vcc, {33*8}, v{q+4}")
        I(f"s_cbranch_execz L_PE{i}")
        I(f"v_mov_b32 v{q}, v{vSR+i}")
        I(f"v_mov_b32 v{q+2}, v{idr(i)}")
        I(f"v_bfe_u32 v{q+4}, v{vRK1+i}, 5, 3")
        I(f"v_lshlrev_b32 v{q+4}, 4, v{q+4}")
        I(f"v_mad_u32_u24 v{q+4}, v{vBK+i}, s{cR}, v{q+4}")
        I(f"buffer_store_dwordx4 {rr(q,4)}, v{q+4}, {sq(sWS)}, s{sTM} offen sc1")
        L(f"L_PE{i}")
        I("s_mov_b64 exec, -1")
    L("L_PEXTR")
    stamp(5)
    vA, vRK, vR1 = vACC, vACC + 16, vQ
    mk = lambda i, j: sM + 2*(4*i + j)
    def rec_ops(d, x, byte, eb, a, r1, keep=None):
        e_ = r1 if keep is None else keep
        return [f"v_add_u32_sdwa v{e_}, v{x}, v{eb} {SDW} src0_sel:BYTE_{byte} src1_sel:DWORD",
                f"v_lshrrev_b32 v{u(1)}, 28, v{d}",
                f"v_lshl_add_u32 v{e_}, v{u(1)}, 8, v{e_}",
                f"v_and_b32 v{u(1)}, 60, v{a}",
                f"v_lshl_add_u32 v{r1}, v{u(1)}, 19, v{e_}"]
    def spin():
        I(f"s_add_u32 s{sSP}, s{sSP}, 1")
        I(f"s_cmp_gt_u32 s{sSP}, {opt('spin', 200000)}")
        I("s_cbranch_scc1 L_END")
        if opt("slp", 1): I(f"s_sleep {opt('slp', 1)}")
    xg = vCA
    def xload(tag):
        for i in range(4):
            I(f"s_mov_b64 exec, {sp(mk(i,3))}")
            I(f"s_cbranch_execz L_XL{tag}{i}")
            I(f"s_movk_i32 s10, {8192*i}")
            I(f"buffer_load_dwordx4 {rr(xg+4*i,4)}, v{pa}, {sq(sD2)}, s10 offen sc1")
            L(f"L_XL{tag}{i}")
        I("s_mov_b64 exec, -1")
    for i in range(4):
        c_ = vC + 4*i
        L(f"L_PW{i}")
        I(f"s_waitcnt vmcnt({3 - i + PY})")
        I(f"v_xor_b32 v{u(0)}, v{c_+3}, v{vTG}")
        for j in range(3): I(f"v_and_b32_sdwa v{vA+4*i+j}, v{c_+j}, s{sFM} {SDW} src0_sel:WORD_1 src1_sel:DWORD")
        I(f"v_cmp_lt_u32 vcc, s{sT}, v{u(0)}")
        for j in range(3): I(f"v_cmp_ne_u32 {sp(mk(i,j))}, 0, v{c_+j}")
        I(f"s_cbranch_vccnz L_RT{i}")
        if i == 3: stamp(6)
        for j in range(3):
            I(f"s_mov_b64 exec, {sp(mk(i,j))}")
            I(f"ds_add_rtn_u32 v{vRK+4*i+j}, v{vA+4*i+j}, v{one} offset:{HIST}")
        I("s_mov_b64 exec, -1")
        if i == 3:
            I(f"v_or3_b32 v{u(2)}, v{vC+3}, v{vC+7}, v{vC+11}")
            I(f"v_or_b32 v{u(2)}, v{u(2)}, v{vC+15}")
            I(f"v_and_b32 v{u(2)}, 0x1000000, v{u(2)}")
            I(f"v_cmp_ne_u32 vcc, 0, v{u(2)}")
            I("s_cbranch_vccz L_XT1R")
            def xt1():
                if TS: I(f"v_writelane_b32 v{vTS}, 1, 62")
                for i in range(4):
                    I(f"v_and_b32 v{u(2)}, 0x1000000, v{vC+4*i+3}")
                    I(f"v_cmp_ne_u32 {sp(mk(i,3))}, 0, v{u(2)}")
                    I(f"s_bcnt1_i32_b64 s10, {sp(mk(i,3))}")
                    I(f"s_lshl2_add_u32 s{sXT}, s10, s{sXT}")
                xload("a")
                I(f"v_or3_b32 v{u(2)}, v{vC+1}, v{vC+5}, v{vC+9}")
                I(f"v_or_b32 v{u(2)}, v{u(2)}, v{vC+13}")
                I(f"v_and_b32 v{u(2)}, 0x10000, v{u(2)}")
                I(f"v_mov_b32 v{u(3)}, {FLAG}")
                I(f"v_cmpx_ne_u32 vcc, 0, v{u(2)}")
                I(f"ds_write_b32 v{u(3)}, v{one} offset:4")
                I("s_mov_b64 exec, 1")
                I(f"v_mov_b32 v{u(2)}, s{sXT}")
                I(f"ds_add_u32 v{u(3)}, v{u(2)} offset:8")
                I("s_mov_b64 exec, -1")
            xt1()
            L("L_XT1R")
        for j in range(3):
            put(rec_ops(c_+j, c_+3, j, vEB+i, vA+4*i+j, vR1+4*i+j, vR1+4*i+3 if j == 0 and JE else None))
        e_ = vR1 + 4*i + 3
        if JE: I(f"v_cndmask_b32 v{u(0)}, v{vFF}, v{e_}, {sp(mk(i,0))}")
        I(f"v_and_or_b32 v{c_}, v{c_}, s{sN}, v{vET+i}")
        I(f"v_or_b32 v{vR1+4*i}, v{vR1+4*i}, v{vEM}")
        if JE:
            I(f"v_mov_b32_dpp v{u(1)}, v{u(0)} quad_perm:[2,2,3,3] row_mask:0xf bank_mask:0xf")
            I(f"v_mov_b32_dpp v{e_}, v{u(0)} quad_perm:[0,0,1,1] row_mask:0xf bank_mask:0xf")
        I(f"v_and_b32 v{c_+2}, s{sN}, v{c_+2}")
        if JE: I(f"v_mov_b32_dpp v{e_}, v{u(1)} row_shr:4 row_mask:0xf bank_mask:0xa")
    fill = [f"v_and_b32 v{vC+4*i+1}, s{sN}, v{vC+4*i+1}" for i in range(4)]
    I(f"v_mov_b32 v{u(9)}, {FLAG}")
    if OLP == 2: own_loads()
    if PFP == 2: x_prefetch()
    I("s_waitcnt lgkmcnt(0)")
    stamp("d0")
    I("s_barrier")
    stamp(7)
    def early(i):
        if not JE: return
        I(f"s_lshl_b32 m0, s{sWP}, 10")
        I(f"v_mov_b32 v{vEI}, v{vR1+4*i+3}")
        I(f"s_add_u32 m0, m0, {EARLY + 8192*i}")
        if JE < 4:
            I(f"s_mov_b32 exec_lo, {((1 << 2*JE) - 1) * 0x01010101:#x}")
            I("s_mov_b32 exec_hi, exec_lo")
        else: I("s_nop 0")
        I(f"buffer_load_dwordx4 {rr(vEI,2)}, {sq(sEP)}, 0 idxen offen{pol(opt('eep', ''))} lds")
        if JE < 4: I("s_mov_b64 exec, -1")
    EPOS = opt("epos", "0134")
    def epoint(k):
        for i in range(4):
            if int(EPOS[i]) == k: early(i)
    c, p, tot, sc = u(0), u(4), u(8), u(9)
    hh = vX
    own, to2, ex, z_, eh, el = u(10), u(11), u(12), u(13), u(14), u(15)
    SD = f"{SDW} src0_sel:WORD_0 src1_sel:WORD_0"
    HL = f"{SDW} src0_sel:WORD_0 src1_sel:WORD_1"
    I(f"ds_read_u16 v{own}, v{owna} offset:{HIST}")
    I(f"ds_read_u16 v{to2}, v{owna} offset:{HIST + 1024}")
    for ph in range(4):
        I(f"ds_read_b128 {rr(hh+4*ph,4)}, v{l16} offset:{HIST + 1024*ph}")
    I(f"ds_read_b32 v{vQD}, v{sc} offset:8")
    if OLP == 4: own_loads()
    epoint(0)
    I("s_cmp_lg_u32 s2, 0")
    I("s_cbranch_scc1 L_NOK")
    I(f"v_mov_b32 v{vQD+1}, s{sK}")
    I(f"v_mov_b32 v{vQD+2}, 0")
    I(f"buffer_store_dword v{vQD+1}, v{vQD+2}, {sq(sWS)}, 0 offen sc1")
    L("L_NOK")
    I("s_waitcnt lgkmcnt(5)")
    I(f"v_lshl_or_b32 v{own}, v{to2}, 16, v{own}")
    I(f"v_mov_b32 v{to2}, v{own}")
    I("s_waitcnt lgkmcnt(0)")
    stamp("d1")
    f2 = []
    for i in range(4):
        f2 += [f"v_add_u32_sdwa v{c+i}, v{hh+i}, v{hh+4+i} {SD}", f"v_add_u32_sdwa v{p+i}, v{hh+8+i}, v{hh+12+i} {SD}"]
    f2 += [f"v_add_u32 v{c+i}, v{c+i}, v{p+i}" for i in range(4)]
    wave_scan(to2, f2, half=True)
    put(f2)
    I(f"v_mul_u32_u24 v{tot}, v{c}, v{vMU}")
    for i in range(1, 4): I(f"v_mad_u32_u24 v{tot}, v{c+i}, v{vMU+i}, v{tot}")
    f2 = [f"v_sub_u32 v{ex}, v{to2}, v{own}", f"v_add_u32_sdwa v{eh}, v{to2}, v{to2} {HL}",
          f"v_add_u32_sdwa v{z_}, v{ex}, v{ex} {HL}", f"v_add_u32_sdwa v{el}, v{own}, v{own} {HL}",
          fill.pop(0), f"v_readfirstlane_b32 s{sMORE}, v{vQD}",
          f"v_permlane32_swap_b32 v{z_}, v{eh}", f"v_cndmask_b32 v{el}, 0, v{el}, {sp(sJ3)}",
          f"v_add_u32 v{z_}, v{z_}, v{eh}", fill.pop(0),
          f"v_add_u32 v{eh}, v{z_}, v{el}", fill.pop(0)]
    I(f"s_mov_b32 s{sJ3}, -1")
    I(f"s_mov_b32 s{sJ3+1}, 0")
    wave_scan(tot, f2)
    assert not f2
    stamp("d2")
    I(f"v_sub_u32_sdwa v{el}, v{eh}, v{own} {SDW} src0_sel:DWORD src1_sel:WORD_1")
    I(f"v_readlane_b32 s{sT}, v{tot}, 63")
    epoint(1)
    ASYM = opt("asym", 12)
    I(f"s_bfe_u32 s10, s{sT}, 0xe0002")
    I(f"s_lshr_b32 s{sT}, s{sT}, 16")
    I("s_lshr_b32 s11, s10, 1")
    I(f"s_add_u32 s11, s11, {4*ASYM}")
    I("s_and_b32 s11, s11, -128")
    I(f"s_lshr_b32 s{sF0}, s{sW}, 1")
    I(f"s_mul_i32 s{sF0}, s{sF0}, s10")
    I(f"s_sub_i32 s11, s11, {4*ASYM}")
    I(f"s_sub_i32 s{sF0}, s{sF0}, s{sT}")
    I(f"s_add_i32 s11, s11, s{sF0}")
    I(f"s_add_i32 s10, s10, s{sF0}")
    I(f"s_bitcmp1_b32 s{sW}, 0")
    I(f"s_cselect_b32 s{sEND}, s11, s{sF0}")
    I("s_cselect_b32 s10, s10, s11")
    I(f"v_cmp_gt_i32 vcc, s{sEND}, v{eh}")
    I(f"v_cmp_gt_i32 {sp(sTM)}, s10, v{eh}")
    f0, f1 = sWS0, sWS1
    I(f"s_bcnt1_i32_b32 s{f0}, vcc_lo")
    I(f"s_bcnt1_i32_b32 s10, s{sTM}")
    I(f"s_min_i32 s{f0}, s{f0}, s{hi0}")
    I(f"s_max_i32 s10, s10, s{lo1}")
    I(f"s_min_i32 s{f1}, s10, s{hi1}")
    stamp("d3")
    epoint(2)
    A01, A23, E01, E23, Z1 = sCI, sCUR, sR0, sCNT, sST
    I(f"v_readlane_b32 s{sT}, v{z_}, s{f0}")
    I(f"v_readlane_b32 s{Z1}, v{z_}, s{f1}")
    I(f"s_add_u32 s{sF0}, s{f0}, s{sWIN}")
    I(f"s_add_u32 s{sF1}, s{f1}, s{sWIN}")
    I(f"s_add_u32 s10, s{f0}, 32")
    I(f"s_add_u32 s11, s{f1}, 32")
    I(f"v_readlane_b32 s{A01}, v{ex}, s{f0}")
    I(f"v_readlane_b32 s{E01}, v{ex}, s{f1}")
    I(f"v_readlane_b32 s{A23}, v{ex}, s10")
    I(f"v_readlane_b32 s{E23}, v{ex}, s11")
    I(f"s_sub_u32 s{sEND}, s{Z1}, s{sT}")
    I(f"s_add_u32 s10, s{sEND}, 255")
    if opt("flr", 1):
        I(f"s_sub_i32 s11, s{f1}, 16")
        I(f"s_max_i32 s11, s11, s{f0}")
        I(f"v_readlane_b32 s11, v{z_}, s11")
        I(f"s_add_u32 vcc_lo, s{sEND}, 127")
        I(f"s_and_b32 vcc_hi, vcc_lo, 127")
        I(f"s_add_u32 vcc_hi, vcc_hi, s{sMORE}")
        I(f"s_cmp_lt_u32 vcc_hi, 55")
        I(f"s_cselect_b32 vcc_lo, vcc_lo, s10")
        I(f"s_sub_u32 s11, s11, s{sT}")
        I(f"s_add_u32 s11, s11, s{sMORE}")
        I(f"s_lshl_b32 s11, s11, 1")
        I(f"s_and_b32 vcc_lo, vcc_lo, -256")
        I(f"s_cmp_le_u32 s11, vcc_lo")
        I(f"s_cselect_b32 s10, vcc_lo, s10")
    I("s_lshr_b32 s10, s10, 8")
    I("s_lshl_b32 s10, s10, 7")
    I(f"s_sub_u32 s10, s10, s{sMORE}")
    I("s_max_i32 s10, s10, 0")
    I(f"s_add_u32 s{sT}, s{sT}, s10")
    I(f"s_add_u32 s10, s{f0}, 16")
    I(f"s_min_u32 s10, s10, s{f1}")
    I(f"s_sub_i32 s11, s{f1}, 16")
    inl, inh, mo = sTM, sTM + 2, sMSK
    I(f"v_cmp_ge_u32 {sp(inl)}, s{sT}, v{el}")
    I(f"v_cmp_ge_u32 {sp(inh)}, s{sT}, v{eh}")
    I(f"v_cmp_gt_i32 vcc, s10, v{ownn}")
    I(f"v_cmp_gt_i32 {sp(sA)}, s11, v{ownn}")
    I(f"v_cmp_le_u32 {sp(mo)}, s{f0}, v{ownn}")
    I(f"v_cmp_gt_u32 {sp(sJ3)}, s{f1}, v{ownn}")
    I(f"s_and_b64 {sp(inl)}, {sp(inl)}, vcc")
    I(f"s_and_b64 {sp(inh)}, {sp(inh)}, vcc")
    I(f"s_or_b64 {sp(inl)}, {sp(inl)}, {sp(sA)}")
    I(f"s_or_b64 {sp(inh)}, {sp(inh)}, {sp(sA)}")
    I(f"s_bcnt1_i32_b32 s{sB0E}, s{inl}")
    I(f"s_bcnt1_i32_b32 s10, s{inh}")
    I(f"s_bcnt1_i32_b32 s11, s{inl+1}")
    I(f"s_bcnt1_i32_b32 s{sSH}, s{inh+1}")
    I(f"v_readlane_b32 s{f0}, v{ex}, s{sB0E}")
    I(f"v_readlane_b32 s10, v{ex}, s10")
    I("s_add_u32 s11, s11, 32")
    I(f"s_add_u32 s{sT}, s{sSH}, 32")
    I(f"v_readlane_b32 s{f1}, v{ex}, s11")
    I(f"v_readlane_b32 s11, v{ex}, s{sT}")
    I(f"v_mov_b32 v{c}, s{sN}")
    I(f"v_cndmask_b32 v{c+1}, 0, v{c}, {sp(inl)}")
    I(f"v_cndmask_b32 v{c}, 0, v{c}, {sp(inh)}")
    I(f"s_and_b64 {sp(mo)}, {sp(mo)}, {sp(sJ3)}")
    Q01, Q23 = f0, f1
    I(f"s_pack_lh_b32_b16 s{Q01}, s{f0}, s10")
    I(f"s_pack_lh_b32_b16 s{Q23}, s{f1}, s11")
    I(f"v_lshl_or_b32 v{c}, v{c}, 16, v{c+1}")
    I(f"s_sub_u32 s{sT}, s{sL}, {R0 - BIAS}")
    I(f"s_pack_ll_b32_b16 s{sT}, s{sT}, s{sT}")
    def bases(lo01, lo23, hi01, hi23, d, keep=None):
        I(f"s_sub_u32 s10, s{hi01}, s{lo01}")
        I(f"s_sub_u32 s11, s{hi23}, s{lo23}")
        I(f"s_mul_i32 s10, s10, 0x10001")
        I(f"s_lshl_b32 vcc_lo, s10, 16")
        I(f"s_pack_hh_b32_b16 s10, s10, s10")
        I(f"s_lshl_b32 vcc_hi, s11, 16")
        I(f"s_add_u32 vcc_hi, vcc_hi, s10")
        if keep is not None:
            I(f"s_add_u32 s{keep}, vcc_hi, s11")
            I(f"s_lshr_b32 s{keep}, s{keep}, 16")
            I(f"s_sub_u32 s{sEND}, s{sEND}, s{keep}")
            I(f"s_cmp_gt_u32 s{sEND}, s{keep}")
            I(f"s_cselect_b32 s{SWP}, {LWB * 0x10001:#x}, 0")
            I(f"s_add_u32 s{sT}, s{sT}, s{SWP}")
        I(f"s_sub_u32 s10, s{sT}, s{lo01}")
        I(f"s_sub_u32 s11, s{sT}, s{lo23}")
        I("s_add_u32 s10, s10, vcc_lo")
        I("s_add_u32 s11, s11, vcc_hi")
        I(f"v_mov_b32 v{d}, s10")
        I(f"v_mov_b32 v{d+1}, s11")
    LEN0, SWP = sJ3, sJ3 + 1
    bases(A01, A23, Q01, Q23, p, LEN0)
    I(f"s_add_u32 s{sT}, s{sT}, {LWB * 0x10001:#x}")
    I(f"s_sub_u32 s{sT}, s{sT}, s{SWP}")
    I(f"s_sub_u32 s{sT}, s{sT}, s{SWP}")
    bases(Q01, Q23, E01, E23, p + 2)
    I(f"v_bfi_b32 v{p}, v{c}, v{p}, v{p+2}")
    I(f"v_bfi_b32 v{p+1}, v{c}, v{p+1}, v{p+3}")
    I(f"s_mov_b32 exec_hi, 0")
    I(f"v_mov_b32 v{p+1}, v{p}")
    I(f"s_mov_b64 exec, {sp(mo)}")
    I(f"v_add_u32 v{ex}, v{ex}, v{p+1}")
    assert LWB & 0x80
    I(f"s_bfe_u32 s10, s{SWP}, 0x10007")
    I(f"s_lshl1_add_u32 s10, s{sW}, s10")
    I("s_lshl_b32 s10, s10, 2")
    I(f"v_cndmask_b32 v{c}, 4, 0, {sp(inl)}")
    I(f"ds_write_b16 v{owna}, v{ex} offset:{HIST + 2}")
    I(f"ds_write_b16_d16_hi v{owna}, v{ex} offset:{HIST + 1024 + 2}")
    I("s_mov_b32 exec_hi, 0")
    I(f"v_xor_b32 v{c}, s10, v{c}")
    I(f"ds_write_b32 v{mapa}, v{c}")
    I("s_mov_b64 exec, -1")
    stamp("d5")
    I(f"s_min_u32 s10, s{sEND}, s{LEN0}")
    I(f"s_max_u32 s{LEN0}, s{sEND}, s{LEN0}")
    I(f"s_mov_b32 s{sEND}, s10")
    I(f"s_add_u32 s10, s{LEN0}, s{sMORE}")
    I(f"s_mul_i32 s11, s{Z1}, {LWB * 65536 // BIAS}")
    I("s_lshr_b32 s11, s11, 16")
    I("s_max_u32 s10, s10, s11")
    I(f"s_cmp_lt_u32 s10, {LWB}")
    I("s_cbranch_scc1 L_LFIT")
    I(f"ds_write_b32 v{sc}, v{one}")
    L("L_LFIT")
    I(f"s_cmp_eq_u32 s{sMORE}, 0")
    I("s_cbranch_scc1 L_XCNR")
    I(f"s_sub_u32 s10, s{sL}, {R0 - BIAS}")
    I(f"s_add_u32 s11, s10, s{LEN0}")
    I(f"v_mov_b32 v{u(0)}, s11")
    I(f"s_add_u32 s11, s10, s{sEND}")
    I(f"s_add_u32 s11, s11, {LWB}")
    I(f"v_mov_b32 v{u(1)}, s11")
    I(f"s_lshl_b32 s10, s{sW}, 3")
    I(f"v_mov_b32 v{u(2)}, s10")
    I(f"ds_write_b64 v{u(2)}, {rr(u(0),2)} offset:{CNT}")
    L("L_XCNR")
    epoint(3)
    put(fill)
    I("s_waitcnt lgkmcnt(0)")
    stamp(8)
    I("s_barrier")
    stamp(9)
    I(f"ds_read_b64 {rr(u(14),2)}, v{sc}")
    for i in range(4):
        for j in range(3):
            I(f"ds_read_u16 v{vA+4*i+j}, v{vA+4*i+j} offset:{HIST + 2}")
    epoint(4)
    def ntiles(l0, l1):
        I(f"s_add_u32 s10, s{l0}, 127")
        I("s_lshr_b32 s10, s10, 7")
        I("s_lshl1_add_u32 s10, s10, -1")
        I(f"s_add_u32 s11, s{l1}, 127")
        I("s_lshr_b32 s11, s11, 6")
        I("s_and_b32 s11, s11, -2")
        I(f"s_max_i32 s{sN}, s10, s11")
        I(f"s_cselect_b32 s10, s{l0}, s{l1}")
        I("s_sub_u32 s10, s10, 1")
        I(f"s_andn2_b32 s{sHF}, 64, s10")
    I(f"s_add_u32 s{sB0E}, s{sB0E}, s{sWIN}")
    I(f"s_add_u32 s11, s{sSH}, s{sWIN}")
    I(f"s_and_b32 s10, s11, 15")
    I(f"s_cmp_lt_u32 s11, s{sB0E}")
    I(f"s_cselect_b32 s{sSH}, s10, 16")
    I(f"s_cmp_lg_u32 s{SWP}, 0")
    I(f"s_cselect_b32 s{sWS1}, s{sF0}, s11")
    I(f"s_cselect_b32 s{sWIN}, s{sF0}, s{sB0E}")
    I(f"s_cselect_b32 s{sF0}, s11, s{sF0}")
    I(f"s_cselect_b32 s{sB0E}, s{sF1}, s{sB0E}")
    I(f"s_cselect_b32 s{sF1}, s11, s{sF1}")
    I(f"s_min_u32 s{sWS0}, s{sF0}, 192")
    I(f"s_min_u32 s{sWS1}, s{sWS1}, 192")
    I(f"s_mov_b32 s{sST}, s{sMORE}")
    I("s_waitcnt lgkmcnt(12)")
    I(f"v_cmp_ne_u32 vcc, 0, v{u(14)}")
    I(f"v_readfirstlane_b32 s{sMORE}, v{u(15)}")
    I("s_cbranch_vccnz L_OVF")
    for i in range(4):
        for j in range(3):
            s_ = 4*i + j
            if j == 0: I("s_waitcnt lgkmcnt(9)")
            I(f"s_mov_b64 exec, {sp(mk(i,j))}")
            I(f"v_add_u32 v{vA+s_}, v{vA+s_}, v{vRK+s_}")
            I(f"ds_write2st64_b32 v{vA+s_}, v{vC+s_}, v{vR1+s_} {W2}")
    I("s_mov_b64 exec, -1")
    ntiles(LEN0, sEND)
    stamp("d6")
    sO0, sO1, sNT, sOK, sCM = sOUT, sD2, sM + 8, sM + 9, sM + 12
    def epi_prep(t0, t1):
        I(f"s_lshl_b32 s{sNT}, s{sW}, 7")
        I(f"s_add_u32 s{sNT}, s{sNT}, {NT}")
        I(f"v_mov_b32 v{t0}, s{sWS0}")
        I("s_mov_b32 exec_lo, 0xffff0000")
        I(f"v_mov_b32 v{t0}, s{sWS1}")
        I("s_mov_b64 exec, 0xffffffff") if False else None
        I("s_mov_b32 exec_lo, -1")
        I("s_mov_b32 exec_hi, 0")
        I(f"v_sub_u32 v{t1}, v{lane}, v{t0}")
        I(f"v_and_b32 v{t1}, 15, v{t1}")
        I(f"v_add_lshl_u32 v{t1}, v{t1}, v{t0}, 5")
        I(f"v_lshl_add_u32 v{t0}, v{lane}, 2, s{sNT}")
        I(f"ds_write_b32 v{t0}, v{t1}")
        I("s_mov_b32 exec_hi, -1")
        I(f"s_mul_i32 s10, s{sB}, {BN}")
        for d, lo_, hi_, k in ((sO1, sWIN, sF1, 1), (sO0, sF0, sB0E, 0)):
            I(f"s_add_u32 s11, s10, s{lo_}")
            I(f"s_add_u32 s{d+2}, s10, s{hi_}")
            I(f"s_min_u32 s11, s11, {N}")
            I(f"s_min_u32 s{d+2}, s{d+2}, {N}")
            I(f"s_sub_u32 s{d+2}, s{d+2}, s11")
            I("s_lshl_b32 s11, s11, 7")
            I(f"s_lshl_b32 s{d+2}, s{d+2}, 7")
            I(f"s_add_u32 s{d}, s{sOUT}, s11")
            I(f"s_addc_u32 s{d+1}, s{sOUT+1}, 0")
            I(f"s_mul_i32 s{sOK+k}, s{lo_}, -128")
        I(f"s_and_b32 s10, s{sSH}, 12")
        I("s_lshl_b32 s10, s10, 2")
        I(f"s_bfm_b64 {sp(sCM)}, 16, s10")
    L("L_CA")
    for x_ in trw(vWA, 0): I(x_)
    I(f"s_cmp_eq_u32 s{sXT}, 0")
    I("s_cbranch_scc1 L_XT2R")
    I(f"s_waitcnt vmcnt({(4 if JE else 0) + (4 if OLP in (2, 4) else 0)})")
    L("L_XT2")
    I(f"s_mov_b64 {sp(sTM)}, 0")
    for i in range(4):
        I(f"v_cmp_ne_u32 vcc, s{sK}, v{xg+4*i+1}")
        I(f"s_and_b64 vcc, vcc, {sp(mk(i,3))}")
        I(f"s_or_b64 {sp(sTM)}, {sp(sTM)}, vcc")
    I("s_cbranch_scc1 L_XT2B")
    I(f"s_cmp_eq_u32 s{sSKIP}, 0")
    I("s_cbranch_scc1 L_XT2R")
    for i in range(4):
        g_ = xg + 4*i
        I(f"s_mov_b64 exec, {sp(mk(i,3))}")
        I(f"s_cbranch_execz L_XS{i}")
        I(f"v_bfe_u32 v{g_+1}, v{g_}, 18, 8")
        I(f"v_lshlrev_b32 v{g_+1}, 2, v{g_+1}")
        I(f"v_add_u32 v{g_+3}, {MAP}, v{g_+1}")
        I(f"ds_read_b32 v{g_+3}, v{g_+3}")
        put(rec_ops(g_, g_+2, 0, vEB+i, g_+1, g_+2))
        I(f"v_and_b32 v{g_}, 0xffff, v{g_}")
        I("s_waitcnt lgkmcnt(0)")
        I(f"ds_add_rtn_u32 v{g_+3}, v{g_+3}, v{one} offset:{CNT}")
        I("s_waitcnt lgkmcnt(0)")
        I(f"ds_write2st64_b32 v{g_+3}, v{g_}, v{g_+2} {W2}")
        L(f"L_XS{i}")
    I("s_mov_b64 exec, -1")
    L("L_XT2R")
    aw, al, ab = vEO, vEO + 1, vEO + 2
    I(f"s_lshl_b32 s{sTM}, s{sWS0}, 5")
    I(f"s_lshl_b32 s{sTM+1}, s{sWS1}, 5")
    I(f"s_mov_b32 vcc_lo, 0xff00ff00")
    I(f"s_mov_b32 vcc_hi, 0xff00ff00")
    I(f"v_mov_b32 v{aw}, s{sTM+1}")
    I(f"v_mov_b32 v{al}, s{sTM}")
    I(f"v_cndmask_b32 v{aw}, v{aw}, v{al}, vcc")
    I(f"v_and_b32 v{al}, 4, v{lane}")
    I(f"v_lshlrev_b32 v{al}, 6, v{al}")
    I(f"v_lshl_add_u32 v{al}, v{vcS}, 2, v{al}")
    I(f"v_sub_u32 v{al}, v{al}, v{aw}")
    I(f"v_and_b32 v{ab}, 48, v{lane}")
    I(f"s_movk_i32 s{sTM}, {(PL-32)//8}")
    I(f"v_mad_u32_u24 v{ab}, v{vcS}, s{sTM}, v{ab}")
    I(f"s_mov_b32 s{sTM}, {OWN}")
    I(f"v_add3_u32 v{ab}, v{ab}, v{aw}, s{sTM}")
    I(f"v_and_b32 v{aw}, 0x1ff, v{al}")
    I(f"v_add_u32 v{aw}, v{aw}, v{ab}")
    I(f"v_add_u32 v{al}, 0x80, v{al}")
    I(f"v_and_b32 v{al}, 0x1ff, v{al}")
    I(f"v_add_u32 v{al}, v{al}, v{ab}")
    zero16 = lambda d: f"v_mfma_f32_32x32x16_bf16 {rr(d,16)}, {rr(vS,4)}, {rr(vS,4)}, 0"
    for i in range(2): I(f"v_mov_b64 {rr(vS+2*i,2)}, 0")
    I(f"v_lshrrev_b32 v{u(0)}, 2, v{lane}")
    I(f"v_and_b32 v{u(0)}, 12, v{u(0)}")
    I(f"v_subrev_u32 v{u(0)}, s{sSH}, v{u(0)}")
    I(f"v_mov_b32 v{u(1)}, {f2u(1e-6):#x}")
    I(zero16(NUM(1,0)))
    for i in range(4): I(f"v_cmp_ne_u32 {sp(sM+16+2*i)}, {-i}, v{u(0)}")
    for i in range(4): I(f"v_cndmask_b32 v{DEN(1,0)+i}, 0, v{u(1)}, {sp(sM+16+2*i)}")
    for n in range(1, 4):
        for i in range(2): I(f"v_mov_b64 {rr(DEN(1,n)+2*i,2)}, {rr(DEN(1,0)+2*i,2)}")
    I(f"s_cmp_ge_u32 s{sWP}, 4")
    I("s_cbranch_scc1 L_EP0")
    epi_prep(u(2), u(3))
    L("L_EP0")
    stamp("d7")
    I("s_waitcnt vmcnt(0) lgkmcnt(0)")
    stamp(10)
    I("s_barrier")
    def lens_from_cnt(t):
        I(f"s_lshl_b32 s10, s{sW}, 3")
        I(f"v_mov_b32 v{t}, s10")
        I(f"ds_read_b64 {rr(t,2)}, v{t} offset:{CNT}")
        I("s_waitcnt lgkmcnt(0)")
        I(f"v_readfirstlane_b32 s{sTM}, v{t}")
        I(f"v_readfirstlane_b32 s{sTM+1}, v{t+1}")
        I(f"s_sub_u32 s10, s{sL}, {R0 - BIAS}")
        I(f"s_sub_u32 s{sTM}, s{sTM}, s10")
        I(f"s_sub_u32 s{sTM+1}, s{sTM+1}, s10")
        I(f"s_sub_u32 s{sTM+1}, s{sTM+1}, {LWB}")
        ntiles(sTM, sTM + 1)
    I(f"s_mov_b32 s10, {f2u(1e-6):#x}")
    I(f"ds_read_b128 {rr(vQD,4)}, v{vARX}")
    I(f"ds_read_b32 v{vEI}, v{vARE}")
    stamp(11)
    for t_ in range(2):
        for s in range(2): I(f"ds_read_b128 {rr(vX+8*t_+4*s,4)}, v{(aw, al)[t_]} offset:{64*s}")
    I("s_waitcnt lgkmcnt(4)")
    STAG = opt("stag", 1)
    if STAG != 2:
        I(f"s_cmp_ge_u32 s{sWP}, 4")
        I("s_cbranch_scc1 L_LATE0")
    put(dma_tile())
    L("L_LATE0")
    I(f"s_mov_b32 s{sTM}, {f2u(-LOG2E):#x}")
    I(f"s_mov_b32 s{sTM+1}, s{sTM}")
    for t_ in range(2):
        for s in range(2):
            I(f"s_waitcnt lgkmcnt({3 - 2*t_ - s})")
            for n in range(4):
                D = vQ + 8*n + 4*t_
                I(m16(D, vX+8*t_+4*s, vWA+8*n+4*s, D if s else None))
    if STAG == 3:
        I(f"s_cmp_lt_u32 s{sWP}, 4")
        I("s_cbranch_scc1 L_HAD1")
        put(dma_tile())
        L("L_HAD1")
    I("s_mov_b32 s11, s10")
    for i in range(8): I(f"v_mov_b64 {rr(DEN(0,0)+2*i,2)}, {sp(10)}")
    for i in range(16): I(f"v_pk_mul_f32 {rr(vQ+2*i,2)}, {rr(vQ+2*i,2)}, {sp(sTM)}")
    I(zero16(NUM(0,0)))
    for i in range(16): I(f"v_cvt_pk_bf16_f32 v{vCA+i}, v{vQ+2*i}, v{vQ+2*i+1}")
    for i in range(16): I(f"v_permlane32_swap_b32 v{vCA+16+i}, v{vCA+i}")
    I(f"s_mov_b32 s{sCI}, -1")
    I(f"s_mov_b64 {sp(sMSK)}, 0")
    I(f"s_mov_b32 s{sR0}, 0")
    I(f"s_mov_b32 s{sCNT}, 0")
    if STAG:
        I(f"s_cmp_lt_u32 s{sWP}, 4")
        I("s_cbranch_scc1 L_HAD0")
        if STAG == 1: put(dma_tile())
        epi_prep(u(2), u(3))
        L("L_HAD0")
    I(f"s_cmp_eq_u32 s{sST}, 0")
    I("s_cbranch_scc1 L_GO")
    lens_from_cnt(u(0))
    L("L_GO")
    for m in range(2): I(f"ds_read_u16 v{vEA+m}, v{vARO} offset:{64*m}")
    I(f"ds_read_b128 {rr(vQD,4)}, v{vARX} offset:{LWB}")
    I(f"ds_read_b32 v{vEI}, v{vARE} offset:{LWB}")
    I(f"s_lshr_b32 s10, s{sW}, 1")
    I("s_lshl_b32 s10, s10, 9")
    I(f"s_add_u32 s10, s10, {PRG}")
    assert PRG % 32 == 0
    I(f"v_lshl_add_u32 v{vPA}, v{lane}, 3, s10")
    I(f"s_bitcmp1_b32 s{sW}, 0")
    I(f"s_cselect_b32 s{sSG}, -1, 1")
    I(f"s_mul_i32 s10, s{sSG}, {-(1 << (25 if F2 else 24)) & 0xffffffff:#x}")
    I("s_or_b32 s10, s10, 0xdddd")
    I(f"v_mov_b32 v{vIDX}, s10")
    I(f"s_max_i32 s10, s{sN}, 1")
    I("s_sub_u32 s10, s10, 1")
    I(f"s_mul_i32 s10, s{sSG}, s10")
    I("s_lshl_b32 s10, s10, 24")
    I(f"v_mov_b32 v{u(0)}, s10")
    I(f"ds_add_u32 v{vPA}, v{u(0)}")
    I(f"v_mov_b32 v{vC1}, 0")
    I("s_mov_b32 exec_hi, 0")
    I(f"v_add_u32 v{vC1}, 0x200, v{vcEO}")
    I("s_mov_b32 exec_hi, -1")
    I("s_waitcnt lgkmcnt(0)")
    put(eafix())
    stamp(12)
    I("s_waitcnt vmcnt(0)")
    stamp(13)
    cstamp(56)
    for m in range(2): I(f"ds_read_b128 {rr(vEO+4*m,4)}, v{vEA+m}")
    for m, s in ORD: I(xread(m, s))
    I(f"s_cmp_lt_i32 s{sN}, 1")
    I("s_cbranch_scc1 L_DONE")
    g = g_mfmas(vP, 0, 0)
    I("s_waitcnt lgkmcnt(4)")
    for x_ in g[:4]: I(x_)
    I("s_waitcnt lgkmcnt(0)")
    for x_ in g[4:]: I(x_)
    I(f"s_mov_b32 s{sT}, 1")
    I(f"s_cmp_eq_u32 s{sN}, 1")
    I("s_cbranch_scc1 L_LT0")
    put(dma_tile())
    for cp in ((1, 0) if FAIR else (0,)):
        sw = lambda par: [f"s_cmp_ge_i32 s{sRM}, {opt('fth', 1)}", f"s_cbranch_scc{1-cp} L_PB{par}{1-cp}", f"L_PB{par}{cp}:"] if FAIR and (par == 0 or not F2) else []
        body = phase(0, 0, cp) + sw(0) + phase(0, 1, cp) + [f"s_cmp_ge_u32 s{sT}, s{sN}", "s_cbranch_scc1 L_LT1"]
        body += phase(1, 0, cp) + sw(1) + phase(1, 1, cp) + [f"s_cmp_lt_u32 s{sT}, s{sN}", f"s_cbranch_scc1 L_LOOP{cp}"]
        check_body(body)
        DBG = opt("dbg", "")
        if "nodma" in DBG: body = [b for b in body if not b.startswith("buffer_load")]
        if "dropS" in DBG: body = [b for b in body if not b.startswith("v_smfmac")]
        if "halfrcp" in DBG: body = [b for b in body if not (b.startswith("v_rcp") and int(b.split("v")[-1]) & 1)]
        if "droppk" in DBG: body = [b for b in body if not b.startswith("v_pk_mul")]
        if "halfx" in DBG: body = [b for b in body if not (b.startswith("v_mfma") and (f"v[{vX+4}:" in b or f"v[{vX+12}:" in b))]
        if "nolds" in DBG: body = [b for b in body if not (b.startswith("ds_read_b128") and f"v{vAX}" in b)]
        if opt("al", 0): body = align8(body, opt("al", 0))
        emit(".p2align 6")
        if opt("sh4", 0): I("s_nop 0")
        L(f"L_LOOP{cp}")
        put(body)
        I("s_branch L_LT0")
    if opt("cpe", 0):
        I("s_branch L_LT0")
        for cp in ((1, 0) if FAIR else (0,)):
            for par in range(2):
                L(f"L_CE{par}{cp}")
                I(f"s_getpc_b64 {sp(sA)}")
                I(f"v_and_b32 v{vEI}, 0xfc, v{vPA}")
                I(f"v_lshlrev_b32 v{vEI}, 5, v{vEI}")
                I(f"global_load_dword v{vEI}, v{vEI}, {sp(sA)}")
                I(f"s_branch L_ND{par}{cp}")
    assert STAG
    e = lambda i: vCA + i
    xd = vWV
    ZR = [vP, vWV + 16]
    nd = lambda w, i: e(16 + 4*w + i)
    sO = [sO0, sO1]
    wu = [f"ds_read_b64_tr_b16 {rr(vWB+8*n+4*s+2*uu,2)}, v{e(1)} offset:{(32*s + 8*uu)*WR + 32*n}" for s in range(2) for n in range(4) for uu in range(2)]
    lid = [f"v_mbcnt_lo_u32_b32 v{lane}, -1, 0", f"v_mbcnt_hi_u32_b32 v{lane}, -1, v{lane}", f"v_and_b32 v{vcS}, 24, v{vPA}"]
    a1 = [f"v_and_b32 v{e(0)}, 48, v{lane}", f"v_and_b32 v{e(3)}, 15, v{lane}",
          f"v_add_u32 v{e(5)}, s{sNT}, v{e(0)}", f"v_lshl_add_u32 v{e(6)}, v{e(3)}, 2, s{sNT}"]
    a1 += [f"ds_read_b128 {rr(nd(w,0),4)}, v{e(5)} offset:{64*w}" for w in range(2)]
    a1 += [f"ds_read2_b32 {rr(e(8),2)}, v{e(6)} offset0:0 offset1:16",
           f"v_bfe_u32 v{e(1)}, v{lane}, 2, 3", f"v_lshrrev_b32 v{e(2)}, 5, v{lane}", f"v_lshl_add_u32 v{e(1)}, v{e(2)}, 4, v{e(1)}",
           f"v_mul_u32_u24 v{e(1)}, {WR}, v{e(1)}", f"s_mov_b32 s10, {WUI}", f"v_add3_u32 v{e(1)}, v{e(1)}, v{vcS}, s10"]
    a1 += wu[:12]
    a1 += [f"s_movk_i32 s10, {(PL-32)//8}", f"v_mad_u32_u24 v{e(0)}, v{vcS}, s10, v{e(0)}",
           f"s_mov_b32 s10, {OWN}", f"v_lshl_add_u32 v{e(5)}, v{e(3)}, 3, s10"]
    a1 += [f"v_lshl_add_u32 v{e(10+w)}, v{e(3)}, 3, s{sOK+w}" for w in range(2)]
    a1 += ["s_waitcnt lgkmcnt(8)"] + wu[12:]
    a2 = []
    for w in range(2):
        for i in range(4):
            a2 += [f"v_add_u32 v{e(12)}, v{nd(w,i)}, v{e(5)}", f"ds_read_b64 {rr(xd+8*w+2*i,2)}, v{e(12)} offset:{i*(PL-32)}"]
    for w in range(2):
        a2 += [f"v_add3_u32 v{e(8+w)}, v{e(8+w)}, v{e(0)}, s10"]
        a2 += [f"ds_read_b128 {rr(vX+8*w+4*s,4)}, v{e(8+w)} offset:{64*s}" for s in range(2)]
    def unp(w, n): return [(f"v_and_b32 v{ZR[w]+4*n+i}, 0xffff0000, v{xd+8*w+2*i+(n>>1)}" if n & 1 else
                            f"v_lshlrev_b32 v{ZR[w]+4*n+i}, 16, v{xd+8*w+2*i+(n>>1)}") for i in range(4)]
    blk = [(w, n) for w in range(2) for n in range(4)]
    a3 = [["s_waitcnt lgkmcnt(0)"] + unp(0, 0) + unp(0, 1)]
    for k, (w, n) in enumerate(blk):
        a3[-1] += [m16(ZR[w]+4*n, vX+8*w, vWB+8*n, ZR[w]+4*n)]
        a3.append((unp(*blk[k+2]) if k + 2 < 8 else []) + [f"v_lshl_add_u32 v{nd(w,n)}, v{nd(w,n)}, 2, v{e(10+w)}",
                  m16(ZR[w]+4*n, vX+8*w+4, vWB+8*n+4, ZR[w]+4*n)])
        if k < 7: a3.append([])
    ME = opt("me", 0)
    if ME:
        for par in range(2):
            L(f"L_LB{par}")
            put(last_tile(par, 0, only_b=True))
            I("s_branch L_DONE")
    for par in range(2):
        L(f"L_LT{par}")
        I(f"s_cmp_lg_u32 s{sHF}, 0")
        I(f"s_cbranch_scc1 L_LH{par}")
        for half in range(2):
            if half: L(f"L_LH{par}")
            put(last_tile(par, half, (lid + a1, a2, a3) if ME else None))
            I("s_branch L_EPB" if ME else "s_branch L_DONE")
    L("L_DONE")
    put(lid)
    I(f"s_cmp_lg_u32 s{sMORE}, 0")
    I("s_cbranch_scc1 L_SLOW")
    L("L_EPI")
    I("s_waitcnt lgkmcnt(0)")
    put(a1 + a2 + sum(a3, []))
    L("L_EPB")
    stamp(14)
    cstamp(57)
    I(f"s_setprio {opt('epr', 0)}")
    I(f"s_mov_b64 exec, {sp(sCM)}")
    I(f"s_and_b32 s11, s{sSH}, 19")
    I("s_nop 2")
    for i in range(4):
        I(f"s_cmp_eq_u32 s11, {i}")
        I(f"s_cbranch_scc1 L_NS{i}")
    L("L_NSR")
    I("s_mov_b64 exec, -1")
    for w in range(2):
        for k in range(16): I(f"v_rcp_f32 v{DEN(w,0)+k}, v{DEN(w,0)+k}")
        for k in range(0, 16, 2): I(f"v_pk_fma_f32 {rr(NUM(w,0)+k,2)}, {rr(NUM(w,0)+k,2)}, {rr(DEN(w,0)+k,2)}, {rr(ZR[w]+k,2)}")
        for i in range(4):
            for h in range(2): I(f"v_cvt_pk_bf16_f32 v{DEN(w,0)+2*i+h}, v{NUM(w,2*h)+i}, v{NUM(w,2*h+1)+i}")
            for h in range(2):
                I(f"v_pk_max_f16 v{DEN(w,0)+2*i+h}, v{DEN(w,0)+2*i+h}, v{xd+8*w+2*i+h}")
            I(f"buffer_store_dwordx2 {rr(DEN(w,0)+2*i,2)}, v{nd(w,i)}, {sq(sO[w])}, 0 offen{pol(OP)}")
    stamp("e2")
    stamp_out()
    L("L_END")
    I("s_endpgm")
    for i in range(4):
        L(f"L_NS{i}")
        for k in range(8): I(f"v_add_f32 v{vACC+4*k+i}, v{vACC+4*k+i}, v{vACC+32+4*k+i}")
        I("s_branch L_NSR")
    for i in range(4):
        L(f"L_RT{i}")
        I("s_waitcnt vmcnt(0)")
        spin()
        for k in range(i, 4): poll_load(k)
        I("s_waitcnt vmcnt(0)")
        I(f"s_branch L_PW{i}")
    L("L_XT2B")
    spin()
    xload("b")
    I("s_waitcnt vmcnt(0)")
    I("s_branch L_XT2")
    L("L_OVF")
    I(f"s_mov_b32 s{sSKIP}, 0")
    I(f"s_mov_b32 s{sN}, 0")
    I(f"s_mov_b32 s{sST}, 0")
    I(f"s_mov_b32 s{sMORE}, 4")
    I("s_waitcnt lgkmcnt(0)")
    I("s_branch L_CA")
    q = vCA
    L("L_POVF")
    I("s_movk_i32 s11, 1986")
    for i in range(4):
        I(f"v_mul_u32_u24 v{q+i}, s11, v{vHS+i}")
        I(f"v_lshrrev_b32 v{q+i}, 16, v{q+i}")
    I(f"v_add_u32 v{q+5}, v{q}, v{q+1}")
    I(f"v_add_u32 v{q+6}, v{q+5}, v{q+2}")
    I(f"v_add_u32 v{q+7}, v{q+6}, v{q+3}")
    I(f"v_mov_b32 v{q+8}, v{q+7}")
    wave_scan(q + 8)
    I("s_nop 0")
    I(f"v_sub_u32 v{q+4}, v{q+8}, v{q+7}")
    I(f"v_add_u32 v{q+7}, v{q+4}, v{q+6}")
    I(f"v_add_u32 v{q+6}, v{q+4}, v{q+5}")
    I(f"v_add_u32 v{q+5}, v{q+4}, v{q}")
    for i in range(4): I(f"v_lshl_or_b32 v{q+4+i}, v{q+i}, 16, v{q+4+i}")
    I(f"v_add_u32 v{q+8}, {HDR}, v{l16}")
    I(f"ds_write_b128 v{q+8}, {rr(q+4,4)}")
    I("s_lshl_b32 s10, s2, 10")
    I(f"s_add_u32 s10, s10, {WS_HD}")
    I(f"buffer_store_dwordx4 {rr(q+4,4)}, v{l16}, {sq(sWS)}, s10 offen sc1")
    for i in range(8):
        I(f"v_and_b32 v{q+10+i}, 0x3fc, v{vHA+i}")
        I(f"v_add_u32 v{q+10+i}, {HDR}, v{q+10+i}")
        I(f"ds_read_u16 v{q+10+i}, v{q+10+i}")
    I("s_waitcnt lgkmcnt(0)")
    for i in range(4):
        I(f"v_cmpx_lt_u32 vcc, {33*(CAP+8)}, v{vHD+i}")
        I(f"v_or_b32 v{vO+4*i+1}, 0x10000, v{vO+4*i+1}")
        I("s_mov_b64 exec, -1")
    I(f"s_mul_i32 s10, s2, {DCH}")
    I(f"s_mov_b32 s{sTM}, {WS_RECS}")
    I(f"s_mov_b32 s{sTM+1}, {WS_LEID}")
    for i in range(NR):
        I(f"v_mul_u32_u24 v{q}, s11, v{vRK1+i}")
        I(f"v_lshrrev_b32 v{q}, 16, v{q}")
        I(f"v_add3_u32 v{q}, v{q}, v{q+10+i}, s10")
        I(f"v_lshlrev_b32 v{q+1}, 2, v{q}")
        I(f"v_cmpx_le_u32 vcc, {33*(CAP+8)}, v{vRK1+i}")
        I(f"s_cbranch_execz L_PO{i}")
        I(f"buffer_store_byte v{idr(i)}, v{q}, {sq(sWS)}, s{sTM+1} offen sc1")
        I(f"buffer_store_dword v{vSR+i}, v{q+1}, {sq(sWS)}, s{sTM} offen sc1")
        L(f"L_PO{i}")
        I("s_mov_b64 exec, -1")
    I("s_waitcnt vmcnt(0) lgkmcnt(0)")
    I("s_barrier")
    I("s_branch L_POUT")
    SB = 288
    t0, t1, t2, t3 = vP, vP+1, vP+2, vP+3
    L("L_SLOW")
    I("s_setprio 0")
    I(f"s_lshl_b32 s10, s{sWP}, 6")
    I(f"v_add_u32 v{tid}, s10, v{lane}")
    I(f"s_cmp_lg_u32 s{sMORE}, 4")
    I("s_cbranch_scc1 L_SL1")
    I(f"s_mov_b32 s{sMORE}, 1")
    I(f"v_and_b32 v{t0}, 0xff, v{tid}")
    I(f"v_lshlrev_b32 v{t1}, 7, v{t0}")
    I(f"buffer_load_dword v{t2}, v{t1}, {sq(sCEL)}, 0 offen offset:4 sc1")
    I(f"v_lshlrev_b32 v{t1}, 10, v{t0}")
    I(f"s_lshl_b32 s10, s{sB}, 2")
    I(f"s_add_u32 s10, s10, {WS_HD}")
    I(f"buffer_load_dword v{t3}, v{t1}, {sq(sWS)}, s10 offen sc1")
    I(f"v_lshlrev_b32 v{t0}, 2, v{t0}")
    I(f"v_add_u32 v{t0}, {HDR}, v{t0}")
    I("s_waitcnt vmcnt(0)")
    I(f"v_and_b32 v{t2}, 0x10000, v{t2}")
    I(f"v_cmp_ne_u32 vcc, 0, v{t2}")
    I(f"v_mov_b32 v{t2}, {(CAP+8) << 16}")
    I("s_nop 0")
    I(f"v_cndmask_b32 v{t2}, v{t2}, v{t3}, vcc")
    I(f"ds_write_b32 v{t0}, v{t2}")
    I("s_waitcnt lgkmcnt(0)")
    I("s_barrier")
    L("L_SL1")
    I(f"s_add_u32 s{sR0}, s{sR0}, {SB}")
    I(f"s_cmp_lt_u32 s{sR0}, s{sCNT}")
    I("s_cbranch_scc1 L_BATCH")
    L("L_FIND")
    I(f"s_cmp_lg_u64 {sp(sMSK)}, 0")
    I("s_cbranch_scc1 L_GOT")
    I(f"s_add_u32 s{sCI}, s{sCI}, 1")
    I(f"s_cmp_ge_u32 s{sCI}, 4")
    I("s_cbranch_scc1 L_EPI")
    I(f"s_lshl_b32 s10, s{sCI}, 8")
    I(f"s_add_u32 s10, s10, {HDR}")
    I(f"v_lshl_add_u32 v{t0}, v{lane}, 2, s10")
    I(f"ds_read_u16 v{t0}, v{t0} offset:2")
    I("s_waitcnt lgkmcnt(0)")
    I(f"v_cmp_lt_u32 {sp(sMSK)}, s{sSKIP}, v{t0}")
    I("s_nop 3")
    I("s_branch L_FIND")
    L("L_GOT")
    I(f"s_ff1_i32_b64 s10, {sp(sMSK)}")
    I(f"s_bitset0_b64 {sp(sMSK)}, s10")
    I(f"s_lshl_b32 s11, s{sCI}, 6")
    I(f"s_add_u32 s{sCUR}, s10, s11")
    I(f"s_lshl_b32 s10, s{sCUR}, 2")
    I(f"s_add_u32 s10, s10, {HDR}")
    I(f"v_mov_b32 v{t0}, s10")
    I(f"ds_read_b32 v{t0}, v{t0}")
    I("s_waitcnt lgkmcnt(0)")
    I(f"v_readfirstlane_b32 s10, v{t0}")
    I("s_nop 3")
    I(f"s_lshr_b32 s{sCNT}, s10, 16")
    I(f"s_and_b32 s{sST}, s10, 0xffff")
    I(f"s_mov_b32 s{sR0}, s{sSKIP}")
    L("L_BATCH")
    I("s_waitcnt vmcnt(0)")
    I("s_barrier")
    prefill(vP + 4)
    I(f"v_and_b32 v{t0}, 15, v{lane}")
    I(f"v_mul_u32_u24 v{t1}, {LWB}, v{t0}")
    I(f"v_add_u32 v{t1}, {BIAS}, v{t1}")
    I(f"v_lshlrev_b32 v{t0}, 2, v{t0}")
    I(f"ds_write_b32 v{t0}, v{t1} offset:{CNT}")
    t1, t4, t5 = vQ, vQ + 2, vQ + 3
    I(f"v_add_u32 v{t0}, s{sR0}, v{tid}")
    I(f"s_mul_i32 s{sTM+2}, s{sCUR}, {CH}")
    I(f"s_mul_i32 s11, s{sCUR}, {DCH}")
    I(f"s_add_u32 s11, s11, s{sST}")
    I(f"s_lshl_b32 s{sTM}, s11, 2")
    I(f"s_add_u32 s{sTM}, s{sTM}, {WS_RECS}")
    I(f"v_lshl_add_u32 v{t2}, v{t0}, 2, s{sTM}")
    I(f"s_add_u32 s{sTM}, s11, {WS_LEID}")
    I(f"v_add_u32 v{t3}, s{sTM}, v{t0}")
    I(f"s_mul_i32 s10, s{sB}, {RS}")
    I(f"s_lshl_b32 s{sTM}, s{sCUR}, 7")
    I(f"s_add_u32 s10, s10, s{sTM}")
    I(f"s_add_u32 s10, s10, {WS_CELL}")
    I(f"v_and_b32 v{t4}, 7, v{t0}")
    I(f"v_lshl_add_u32 v{t4}, v{t4}, 4, s10")
    I(f"v_lshrrev_b32 v{t5}, 3, v{t0}")
    I(f"v_cmpx_gt_u32 vcc, {CAP+8}, v{t0}")
    I(f"v_add_u32 v{t2}, {XOFF}, v{t4}")
    I(f"v_add_u32 v{t3}, 8, v{t2}")
    I(f"v_cmpx_gt_u32 vcc, {CAP}, v{t0}")
    I(f"v_lshl_add_u32 v{t2}, v{t5}, 2, v{t4}")
    I(f"v_add3_u32 v{t3}, v{t4}, v{t5}, 12")
    I("s_mov_b64 exec, -1")
    I(f"s_add_u32 s10, s{sR0}, {SB}")
    I(f"s_min_u32 s10, s10, s{sCNT}")
    I(f"v_cmp_gt_u32 vcc, s10, v{t0}")
    I(f"v_mov_b32 v{t4}, 0x7ffffff0")
    I("s_nop 0")
    I(f"v_cndmask_b32 v{t2}, v{t4}, v{t2}, vcc")
    I(f"v_cndmask_b32 v{t3}, v{t4}, v{t3}, vcc")
    I(f"buffer_load_dwordx2 {rr(t1,2)}, v{t2}, {sq(sWS)}, 0 offen sc1")
    I(f"buffer_load_ubyte v{t3}, v{t3}, {sq(sWS)}, 0 offen sc1")
    I("s_waitcnt lgkmcnt(0)")
    I("s_barrier")
    I("s_waitcnt vmcnt(0)")
    I(f"v_cmp_ne_u32 vcc, 3, v{t5}")
    I(f"v_cmp_eq_u32 {sp(sA)}, s{sK}, v{t1+1}")
    I(f"v_mov_b32 v{t4}, s{sTM+2}")
    I(f"s_or_b64 exec, vcc, {sp(sA)}")
    I(f"v_cmpx_ne_u32 vcc, 0, v{t1}")
    I(f"v_bfe_u32 v{t2}, v{t1}, 18, 8")
    I(f"v_lshlrev_b32 v{t2}, 2, v{t2}")
    I(f"v_add_u32 v{t0}, {MAP}, v{t2}")
    I(f"ds_read_b32 v{t0}, v{t0}")
    put(rec_ops(t1, t3, 0, t4, t2, t3))
    I(f"v_mov_b32 v{t2}, 4")
    I(f"v_and_b32 v{t1}, 0xffff, v{t1}")
    I("s_waitcnt lgkmcnt(0)")
    I(f"ds_add_rtn_u32 v{t0}, v{t0}, v{t2} offset:{CNT}")
    I("s_waitcnt lgkmcnt(0)")
    I(f"ds_write2st64_b32 v{t0}, v{t1}, v{t3} {W2}")
    I("s_mov_b64 exec, -1")
    I("s_waitcnt lgkmcnt(0)")
    I("s_barrier")
    listaddr(t2)
    I(f"ds_read_b128 {rr(vQD,4)}, v{vARX}")
    I(f"ds_read_b32 v{vEI}, v{vARE}")
    lens_from_cnt(t2)
    for r_ in (vQ, vQ + 2, vS, vS + 2): I(f"v_mov_b64 {rr(r_,2)}, 0")
    put(dma_tile())
    L("L_LAST")
    I("s_branch L_GO")

def regs_of(tok):
    tok = tok.strip()
    m = re.fullmatch(r"v\[(\d+):(\d+)\]", tok)
    if m: return list(range(int(m.group(1)), int(m.group(2)) + 1))
    m = re.fullmatch(r"v(\d+)", tok)
    if m: return [int(m.group(1))]
    return []
def parse(ins):
    op, _, rest = ins.partition(" ")
    ops = [o.strip().split(" ")[0] for o in rest.split(",")] if rest else []
    if op.startswith("ds_read") or "rtn" in op: return "ds", regs_of(ops[0]), regs_of(ops[1])
    return "other", [], sum((regs_of(o) for o in ops), [])
def check_body(body):
    s2 = [b for b in body if not b.endswith(":")]
    pend = []
    for i, ins in enumerate(s2 * 3):
        k, d, s = parse(ins)
        m = re.search(r"lgkmcnt\((\d+)\)", ins)
        if m:
            while len(pend) > int(m.group(1)): pend.pop(0)
        pr = set(sum(pend, []))
        for r in d + s:
            assert r not in pr, f"pending LDS reg v{r} used by {ins} @{i}"
        if k == "ds":
            pend.append(d); assert len(pend) <= 15

hdr = open("/code/" + NAME + ".s.ref").read().split("\n")
for l in hdr:
    if l.startswith("; Override"): break
    out.append(l)
if opt("list", 0): out.append(f"; @launch kernel={NAME}_kernel grid=(256,1,1) block=(512,1,1) lds={LDS}")
else: out.append(f"; @launch grid=(256,1,1) block=(512,1,1) lds={LDS}")
LEAK = opt("leak", "")
if LEAK: out.append("; @launch kernel=leak_kernel grid=(1,1,1) block=(256,1,1) lds=64")
emit('.amdgcn_target "amdgcn-amd-amdhsa--gfx950"\n.text')
kernel()
if LEAK:
    kind, nm = LEAK[0], LEAK[1:]
    PT = opt("pt", 0)
    si = STN.index(nm)
    emit(".globl leak_kernel\n.p2align 8\n.type leak_kernel,@function\nleak_kernel:")
    I("s_cmp_lg_u32 s2, 0")
    I("s_cbranch_scc1 LK_END")
    I("s_load_dwordx2 s[4:5], s[0:1], 88")
    I("v_min_u32 v1, 254, v0")
    I("v_lshlrev_b32 v1, 11, v1")
    I("v_mov_b32 v2, 0")
    I("v_mov_b32 v3, 0x7fffffff")
    I("v_mov_b32 v4, 0")
    I("ds_write2_b32 v2, v3, v4 offset0:0 offset1:1")
    I("s_waitcnt lgkmcnt(0)")
    I(f"s_add_u32 s4, s4, {WS_TS}")
    I("s_addc_u32 s5, s5, 0")
    I("global_load_dword v5, v2, s[4:5]")
    for w in range(8):
        I(f"global_load_dword v{8+w}, v1, s[4:5] offset:{256*w}")
        I(f"global_load_dword v{16+w}, v1, s[4:5] offset:{256*w + 4*si}")
    I("s_barrier")
    I("s_waitcnt vmcnt(0)")
    I("v_subrev_u32 v5, 1000, v5")
    for w in range(16): I(f"v_sub_u32 v{8+w}, v{8+w}, v5")
    for w in range(8):
        I(f"ds_min_u32 v2, v{8+w}")
        I(f"ds_{'max' if kind == 'm' else 'add'}_u32 v2, v{16+w} offset:4")
    I("s_waitcnt lgkmcnt(0)")
    I("s_barrier")
    I("ds_read_b64 v[6:7], v2")
    I("s_waitcnt lgkmcnt(0)")
    I("v_lshlrev_b32 v6, 2, v6")
    I("v_lshlrev_b32 v7, 2, v7" if kind == 'm' else "v_lshrrev_b32 v7, 9, v7")
    I("v_sub_u32 v6, v7, v6")
    I("v_min_u32 v6, 20000, v6")
    I("s_nop 0")
    I("v_readfirstlane_b32 s6, v6")
    I("s_memrealtime s[8:9]")
    I("s_waitcnt lgkmcnt(0)")
    if PT:
        I(f"s_cmp_gt_u32 s6, {4*PT}")
        I("s_cselect_b32 s6, 6000, 0")
        I("s_mul_i32 s7, s8, 0x9e3779b1")
        I("s_lshr_b32 s7, s7, 20")
        I("s_add_u32 s6, s6, s7")
    L("LK_L")
    I("s_memrealtime s[10:11]")
    I("s_waitcnt lgkmcnt(0)")
    I("s_sub_u32 s7, s10, s8")
    I("s_cmp_lt_u32 s7, s6")
    I("s_cbranch_scc1 LK_L")
    L("LK_END")
    I("s_endpgm")
emit(f""".section .rodata,"a"
.p2align 6
.amdhsa_kernel {NAME}_kernel
  .amdhsa_next_free_vgpr 256
  .amdhsa_next_free_sgpr 102
  .amdhsa_accum_offset 256
  .amdhsa_group_segment_fixed_size 0
  .amdhsa_kernarg_size 96
  .amdhsa_user_sgpr_count 2
  .amdhsa_user_sgpr_kernarg_segment_ptr 1
  .amdhsa_system_sgpr_workgroup_id_x 1
.end_amdhsa_kernel""")
if LEAK:
    emit(""".p2align 6
.amdhsa_kernel leak_kernel
  .amdhsa_next_free_vgpr 32
  .amdhsa_next_free_sgpr 16
  .amdhsa_accum_offset 32
  .amdhsa_group_segment_fixed_size 0
  .amdhsa_kernarg_size 96
  .amdhsa_user_sgpr_count 2
  .amdhsa_user_sgpr_kernarg_segment_ptr 1
  .amdhsa_system_sgpr_workgroup_id_x 1
.end_amdhsa_kernel""")
if TS: out.insert(0, "; stamps " + " ".join(STN))
path = sys.argv[1] if len(sys.argv) > 1 else "/code/" + NAME + ".s"
open(path, "w").write("\n".join(out) + "\n")
print("wrote", path, len(out), "lines; lds", LDS)
```

```python
import sys, re, struct

NAME = "standalone__edge_featured_mpnn_gatedgcn__graph"
OPT = dict(kv.split("=") for kv in sys.argv[2:])
def opt(k, d):
    v = OPT.get(k)
    if v is None: return d
    return type(d)(v)

N, E = 50000, 800000
CH = 3128
BN = 196
XIL = opt('xil', 0)
RS = (513 if XIL else opt('rs', 257)) * 128
XOFF = 256 * 128 if XIL else 256 * RS
WS_CELL = 0x10000
WS_RECS = 0x1200000
WS_LEID = 0x1680000
WS_HD = 0x17a0000
WS_USED = 0x1800000
WS_TS = 0x3000000
KINC = 0x02020202
CAP = 24
LOG2E = 1.4426950408889634
def f2u(f): return struct.unpack("<I", struct.pack("<f", f))[0]

out = []
def emit(s=""):
    for l in s.strip("\n").split("\n"):
        out.append(l.rstrip())
def I(s): out.append("    " + s)
def L(s): out.append(s + ":")
def C(s): out.append("    ; " + s)
def put(seq):
    for s in seq:
        if s.endswith(":"): L(s[:-1])
        else: I(s)
def rr(a, n): return f"v[{a}:{a+n-1}]"
def sp(a): return f"s[{a}:{a+1}]"
def sq(a): return f"s[{a}:{a+3}]"
def pol(p): return (" " + p.replace("_", " ")) if p else ""

def srd(d, lo, size, add=None, stride=0):
    if add is None:
        I(f"s_mov_b32 s{d}, s{lo}")
        I(f"s_mov_b32 s{d+1}, s{lo+1}" if not stride else f"s_or_b32 s{d+1}, s{lo+1}, {stride << 16:#x}")
    else:
        I(f"s_add_u32 s{d}, s{lo}, {add}")
        I(f"s_addc_u32 s{d+1}, s{lo+1}, 0")
    I(f"s_mov_b32 s{d+2}, {size}")
    I(f"s_mov_b32 s{d+3}, 0x20000")

def wave_scan(v, fill=None, half=False):
    def gap():
        if fill and len(fill) >= 2:
            I(fill.pop(0)); I(fill.pop(0))
        else: I("s_nop 1")
    for sh in (1, 2, 4, 8):
        gap()
        I(f"v_add_u32_dpp v{v}, v{v}, v{v} row_shr:{sh} row_mask:0xf bank_mask:0xf bound_ctrl:0")
    gap()
    I(f"v_add_u32_dpp v{v}, v{v}, v{v} row_bcast:15 row_mask:0xa bank_mask:0xf")
    if half: return
    gap()
    I(f"v_add_u32_dpp v{v}, v{v}, v{v} row_bcast:31 row_mask:0xc bank_mask:0xf")

TAB, ZROW, CNT, FLAG = 0, 512, 576, 640
HIST = 1024
ESTG = HIST + 4096
HIST1 = ESTG
EARLY = ESTG + 8192
LWB = 288 * 4
R0 = EARLY + 32768
R1 = R0 + 16 * LWB
XSTG = R1 + 16 * LWB
XI = 1056
SLOT = 4 * XI
OWN = XSTG + 8 * SLOT
PL = 52 * 128 + 32
WR = 160
WUI = OWN + 4 * PL
MAP = WUI + 64 * WR
HDR = MAP + 1024
PRG = HDR + 1024
NT = PRG + 2048
LDS = NT + 1024
WBI, WVI, WCI = EARLY, EARLY + 64 * WR, EARLY + 128 * WR
WAI = XSTG + 8192
LROW = 160
CIMG = R0
assert CIMG + 256 * LROW <= WAI and LDS <= 163840, LDS
BIAS = 8192
assert R1 < 65536 and R0 % 256 == 0 and R1 % 256 == 0
W2 = f"offset0:{(R0-BIAS)//256} offset1:{(R1-BIAS)//256}"

vWB, vWV, vCA, vACC = 0, 32, 64, 96
vX, vEO, vS = 160, 176, 184
vP, vQ, vR = 188, 204, 220
vQD = 236
vEI, vCH, vONE, vCP, vAX, vcEO, vcS, vARX, vARE, vARO, vARS, vEA = 240, 241, 242, 243, 244, 245, 246, 248, 249, 250, 251, 252
lane, vTS, tid = 247, 254, 255
vC1, vIDX, vPA = lane, tid, vcS
DEN = lambda w, n: vACC + 32 * w + 4 * n
NUM = lambda w, n: vACC + 32 * w + 16 + 4 * n
def m16(d, a, b, c=None):
    return f"v_mfma_f32_16x16x32_bf16 {rr(d,4)}, {rr(a,4)}, {rr(b,4)}, " + ("0" if c is None else rr(c, 4))
def s16(d, b): return f"v_smfmac_f32_16x16x64_bf16 {rr(d,4)}, {rr(vS,4)}, {rr(b,8)}, v{vIDX}"

sWP, sW, sB, sK = 3, 4, 5, 6
sWIN, sF0, sF1, sL = 7, 8, 9, 12
sA, sBt = 10, 11
sSTG, sES, s128 = 13, 14, 15
pX, pE, pSRC, pDST, pWA, pWB, pWC, pWU, pWV, pOUT, pDBG, pWS = 16, 18, 20, 22, 24, 26, 28, 30, 32, 34, 36, 38
sT, sN, sFM, sMORE, sSKIP, sXT, sWS0, sWS1, sB0E, sSH = 16, 17, 18, 19, 20, 21, 22, 23, 24, 25
sCI, sCUR, sR0, sCNT, sST, sEND = 26, 27, 28, 29, 30, 31
sMSK = 32
sTM = 34
sX, sEP, sOUT, sWS, sCEL, sD2 = 40, 44, 48, 52, 56, 60
sM = 64
sJ3, sEM = 96, 98
sSP = 100
sHF = 99
sINC = 94
sSG, sRM = 101, 96

TS = opt("ts", 0)
STN = []
YP = opt("yp", "")
def stamp(i):
    if str(i) in YP.split("_"):
        k = YP.split("_").index(str(i))
        I(f"s_cmp_lt_u32 s{sWP}, 4")
        I(f"s_cbranch_scc1 L_YP{k}")
        I(f"s_setprio {1 - (k & 1)}")
        L(f"L_YP{k}")
    if not TS: return
    if isinstance(i, str) and i[0] not in opt("tsx", ""): return
    STN.append(str(i)); i = len(STN) - 1
    I("s_memrealtime vcc" if TS == 1 else "s_memtime vcc")
    I("s_waitcnt lgkmcnt(0)")
    I(f"v_writelane_b32 v{vTS}, vcc_lo, {i}")
def stamp_out():
    if not TS: return
    I("s_waitcnt vmcnt(0)")
    stamp(15)
    I("s_memtime vcc")
    I("s_waitcnt lgkmcnt(0)")
    I(f"v_writelane_b32 v{vTS}, vcc_lo, 58")
    I(f"v_writelane_b32 v{vTS}, s{sN}, 59")
    I(f"v_writelane_b32 v{vTS}, s{sSP}, 60")
    I("s_getreg_b32 s10, hwreg(HW_REG_XCC_ID)")
    I(f"v_writelane_b32 v{vTS}, s10, 55")
    I("s_lshl_b32 s10, s2, 3")
    I(f"s_add_u32 s10, s10, s{sWP}")
    I("s_lshl_b32 s10, s10, 8")
    I(f"s_add_u32 s10, s10, {WS_TS}")
    I(f"v_lshl_add_u32 v{vP}, v{lane}, 2, s10")
    I(f"global_store_dword v{vP}, v{vTS}, {sp(pWS)}")
def cstamp(i):
    if not TS: return
    I("s_memtime vcc")
    I("s_waitcnt lgkmcnt(0)")
    I(f"v_writelane_b32 v{vTS}, vcc_lo, {i}")

LD_P = opt("ldp", "nt")
XP, EP, OP = opt("xp", ""), opt("ep", ""), opt("op", "sc1")
STP = opt("stp", "sc1")
MG = opt("mg", 1)
JE = opt("je", 4 if MG else 2)
EMASK = ((1 << JE) - 1) * 0x01010101
DCH = CH + 1024
SDW = "dst_sel:DWORD dst_unused:UNUSED_PAD"

def dma_tile():
    mad = lambda i: f"v_mad_u32_u16 v{vQD+i}, v{vQD+i}, s{s128}, v{vCP}"
    r = []
    for i in range(4):
        r += [f"s_add_u32 m0, s{sSTG}, {i*XI}", mad(i), f"buffer_load_dwordx4 v{vQD+i}, {sq(sX)}, 0 offen{pol(XP)} lds"]
    r += [f"s_mov_b32 m0, s{sES}", "s_nop 0", f"buffer_load_dwordx4 {rr(vEI,2)}, {sq(sEP)}, 0 idxen offen{pol(EP)} lds"]
    return r

ORD = [(0, 0), (1, 0), (0, 1), (1, 1)]
def xread(m, s): return f"ds_read_b128 {rr(vX+8*m+4*s,4)}, v{vAX} offset:{512*m + 64*s}"
def g_mfmas(D, ft, w):
    g = [m16(D+8*n+4*m, vEO+4*m, vCA+16*w+8*ft+4*n) for m in range(2) for n in range(2)]
    g += [m16(D+8*n+4*m, vX+8*m+4*s, vWB+16*ft+8*n+4*s, D+8*n+4*m) for m, s in ORD for n in range(2)]
    return g
def h_mfmas(ft):
    return [m16(vQ+8*n+4*m, vX+8*m+4*s, vWV+16*ft+8*n+4*s, None if s == 0 else vQ+8*n+4*m) for m, s in ORD for n in range(2)]
def s_num(w, ft): return [s16(NUM(w, 2*ft+n), vQ+8*n) for n in range(2)]
def s_den(w, ft, G): return [s16(DEN(w, 2*ft+n), G+8*n) for n in range(2)]

def eafix():
    return [f"v_bfi_b32 v{vEA+m}, 31, v{vcEO}, v{vEA+m}" for m in range(2)] + [f"v_max_u32 v{vEA}, v{vEA}, v{vcEO}", f"v_max_u32 v{vEA+1}, v{vEA+1}, v{vC1}"]
LV = [int(c, 16) for c in opt("lv", "015a")]
PAT = opt("pat", "1" * 11 + "5")
FAIR = opt("fair", 1)
F2 = opt("f2", 0)
BST = opt("bst", 10)
LNG = opt("lng", 1)
ASL = [int(x) for x in opt("asl", "12_13_14_18").split("_")]
LLV = [int(x) for x in opt("llv", "0_2_12_26").split("_")]
LLP_ = opt("llp", "0003_1113").split("_")
def add1(q): return f"v_mfma_f32_4x4x4_16b_bf16 {rr(q,4)}, {rr(vONE,2)}, {rr(vONE,2)}, {rr(q,4)}"
def long_sec(mf, G, regs, slots, cp):
    r = []; k = 0
    tr = [f"v_exp_f32 v{G+i}, v{G+i}" for i in regs] + [f"v_rcp_f32 v{G+i}, v{G+i}" for i in regs]
    for i, x in enumerate(tr):
        if i in LLV:
            j = LLV.index(i)
            if j == 0 or LLP_[cp][j] != LLP_[cp][j-1]: r.append(f"s_setprio {LLP_[cp][j]}")
        if i in slots: r.append(add1(G + regs[4*slots.index(i)]))
        elif k < len(mf): r += mf[k]; k += 1
        r.append(x)
    assert k == len(mf)
    return r
def phase(par, ft, cp=0):
    G, Go = (vP, vR) if ft == 0 else (vR, vP)
    nf = 1 - ft
    wn = par if ft == 0 else par ^ 1
    wp = par ^ 1 if ft == 0 else par
    s1 = [[x] for x in s_num(wp, nf) + h_mfmas(ft) + s_den(wp, nf, Go)]
    s2 = [[x] for x in g_mfmas(Go, nf, wn)]
    if ft == 0:
        o = par * LWB
        s1[0] += [f"ds_read_u16 v{vQD+u}, v{vARS} offset:{o + 16*u}" for u in range(2)]
        s1[8] += ["s_waitcnt lgkmcnt(0)"] + [f"v_bfi_b32 v{vQD+u}, 31, v{vcS}, v{vQD+u}" for u in range(2)]
        if FAIR and (par == 0 or not F2):
            s1[0] += [f"ds_add_rtn_u32 v{vQD+2}, v{vPA}, v{vIDX}"]
            s1[8] += [f"v_readfirstlane_b32 s{sRM}, v{vQD+2}"]
            s2[1] += [f"s_ashr_i32 s{sRM}, s{sRM}, 24", f"s_mul_i32 s{sRM}, s{sRM}, s{sSG}"]
        o1 = 128 if par else LWB
        s2[0] += [f"ds_read_b64_tr_b16 {rr(vS+2*u,2)}, v{vQD+u}" for u in range(2)]
        s2[0] += [f"ds_read_u16 v{vEA+m}, v{vARO} offset:{o1 + 64*m}" for m in range(2)]
        s2[6] += ["s_waitcnt lgkmcnt(0)"] + eafix()
        s2[6] += [f"ds_read_b128 {rr(vQD,4)}, v{vARX} offset:{o + 128}", f"ds_read_b32 v{vEI}, v{vARE} offset:{o + 128}",
                  f"s_add_u32 s{sT}, s{sT}, 1"]
        if par: s2[7] += [f"v_lshl_add_u64 {rr(r,2)}, {rr(r,2)}, 0, {sp(sINC)}" for r in (vARX, vARO)]
    else:
        s1[2] = ["s_waitcnt vmcnt(0)"] + [f"ds_read_b128 {rr(vEO+4*m,4)}, v{vEA+m}" for m in range(2)] + s1[2]
        for i, (m, s) in enumerate(ORD): s1[3+2*i].append(xread(m, s))
        s2[0] = ["s_waitcnt lgkmcnt(4)"] + s2[0]
        for i in range(4): s2[4+2*i] = [f"s_waitcnt lgkmcnt({3-i})"] + s2[4+2*i]
        DSP = opt("dsp", "")
        if DSP:
            d = dma_tile(); first = min(int(c, 16) for c in DSP)
            for i in range(4): s2[4+2*i] = s2[4+2*i][1:] if 4+2*i > first else s2[4+2*i]
            s2[first] = ["s_waitcnt lgkmcnt(0)"] + [x for x in s2[first] if not x.startswith("s_waitcnt")]
            for k, c in enumerate(DSP): s2[int(c, 16)] += d[3*k:3*k+3]
        tgt = f"L_CE{par}{cp}" if opt("cpe", 0) else f"L_ND{par}{cp}"
        if not DSP: s2[10] += [f"s_cmp_lt_u32 s{sT}, s{sN}", f"s_cbranch_scc0 {tgt}"] + dma_tile() + [f"L_ND{par}{cp}:"]
    def sec(mf, op):
        r = []; k = 0
        for i, m in enumerate(mf):
            if opt("lvp", ""):
                lv = opt("lvp", "").split("_")[cp]
                if i in LV:
                    k_ = LV.index(i)
                    if k_ == 0 or lv[k_] != lv[k_-1]: r.append(f"s_setprio {lv[k_]}")
            elif FAIR:
                if i == 0: r.append(f"s_setprio {cp}")
                if i == BST: r.append("s_setprio 3")
            elif i in LV: r.append(f"s_setprio {LV.index(i)}")
            r += m
            for _ in range(int(PAT[i])):
                r.append(f"{op} v{G+k}, v{G+k}"); k += 1
        assert k == 16
        return r
    r = []
    if opt("tt", 0) and ft == 0:
        r += ["s_memrealtime vcc", "s_memtime s[10:11]", f"s_add_u32 m0, s{sT}, 17", "s_waitcnt lgkmcnt(0)", f"v_writelane_b32 v{vTS}, vcc_lo, m0",
              f"s_add_u32 m0, s{sT}, 35", "s_nop 0", f"v_writelane_b32 v{vTS}, s10, m0"]
    if LNG:
        r += long_sec(s1 + s2, G, list(range(16)), ASL, cp)
        return r + [f"v_pk_mul_f32 {rr(vQ+2*i,2)}, {rr(G+2*i,2)}, {rr(vQ+2*i,2)}" for i in range(8)]
    r += sec(s1, "v_exp_f32")
    r += [f"v_pk_add_f32 {rr(G+2*i,2)}, {rr(G+2*i,2)}, 1.0 op_sel_hi:[1,0]" for i in range(8)]
    r += sec(s2, "v_rcp_f32")
    r += [f"v_pk_mul_f32 {rr(vQ+2*i,2)}, {rr(G+2*i,2)}, {rr(vQ+2*i,2)}" for i in range(8)]
    return r

def last_tile(par, half, epi=None, only_b=False):
    keep = (lambda x: int(re.match(r"\S+ v\[(\d+)", x).group(1)) % 8 == (vP % 8)) if half else (lambda x: True)
    regs = [k for k in range(16) if not (half and k & 4)]
    def sec(mf, op, G):
        r = [f"s_setprio {opt('lpr', 0)}"]; k = 0
        tail = min(len(regs), 4 if half else 5)
        for i, m in enumerate(mf):
            if i == len(mf) - 1: r.append("s_setprio 3")
            r += m
            e_ = (len(regs) - tail) * (i + 1) // (len(mf) - 1) if i < len(mf) - 1 else len(regs)
            while k < e_:
                r.append(f"{op} v{G+regs[k]}, v{G+regs[k]}"); k += 1
        while k < len(regs):
            r.append(f"{op} v{G+regs[k]}, v{G+regs[k]}"); k += 1
        return r
    r = []
    for ft in range(1 if only_b else 0, 2):
        G, Go = (vP, vR) if ft == 0 else (vR, vP)
        wp = par ^ 1 if ft == 0 else par
        s1 = [[x] for x in s_num(wp, 1-ft) + [h for h in h_mfmas(ft) if keep(h)] + s_den(wp, 1-ft, Go)]
        s2 = [[x] for x in g_mfmas(Go, 1, par) if keep(x)] if ft == 0 else []
        if ft == 0:
            s1[0] += [f"ds_read_u16 v{vQD+u}, v{vARS} offset:{par*LWB + 16*u}" for u in range(2)]
            s1[-2] += ["s_waitcnt lgkmcnt(0)"] + [f"v_bfi_b32 v{vQD+u}, 31, v{vcS}, v{vQD+u}" for u in range(2)]
            s2[0] += [f"ds_read_b64_tr_b16 {rr(vS+2*u,2)}, v{vQD+u}" for u in range(2)]
        else:
            s1[0] = ["s_waitcnt lgkmcnt(0)"] + s1[0]
            if epi:
                a1, a2, a3 = epi
                r += [f"s_cmp_lg_u32 s{sMORE}, 0", f"s_cbranch_scc1 L_LB{par}"]
                n_ = len(s1) - 3
                for k in range(n_): s1[k] += a1[len(a1)*k//n_:len(a1)*(k+1)//n_]
                s1[-3] += a2[:len(a2)//2]; s1[-2] += a2[len(a2)//2:]
                s2 = [list(x) for x in a3]
        r += sec(s1, "v_exp_f32", G)
        r += [f"v_pk_add_f32 {rr(G+k,2)}, {rr(G+k,2)}, 1.0 op_sel_hi:[1,0]" for k in regs[::2]]
        r += sec(s2, "v_rcp_f32", G)
        r += [f"v_pk_mul_f32 {rr(vQ+k,2)}, {rr(G+k,2)}, {rr(vQ+k,2)}" for k in regs[::2]]
    return r + s_den(par, 1, vR) + s_num(par, 1)

def isize(x):
    op = x.split()[0]
    if x.endswith(":"): return 0
    if op in ("v_exp_f32", "v_rcp_f32", "v_max_u32", "v_readfirstlane_b32"): return 4
    if op.startswith("s_"):
        m = re.search(r", (0x[0-9a-f]+|\d+)$", x)
        return 8 if (m and op not in ("s_setprio", "s_nop", "s_waitcnt") and int(m.group(1), 0) > 64) else 4
    return 8
def align8(body, mode):
    body = list(body); run = []; r = []
    for x in body:
        z = isize(x)
        if z == 8:
            if sum(isize(r[i]) for i in run) % 8:
                c = [i for i in run if r[i].split()[0] in ("v_exp_f32", "v_rcp_f32", "v_max_u32")]
                if c: r[c[-1]] = r[c[-1]].replace(" ", "_e64 ", 1); run = []
                elif mode == 2: r.append("s_nop 0"); run = []
                else: run = [i for i in run if isize(r[i])][:1]
            else: run = []
            r.append(x)
        else:
            run.append(len(r)); r.append(x)
    return r

def listaddr(t0):
    I(f"v_lshrrev_b32 v{t0}, 3, v{lane}")
    I(f"v_lshl_add_u32 v{vARX}, v{t0}, 4, s{sL}")
    I(f"s_add_u32 s10, s{sL}, {R1-R0}")
    I(f"v_lshrrev_b32 v{t0}, 1, v{lane}")
    I(f"v_lshl_add_u32 v{vARE}, v{t0}, 2, s10")
    I(f"s_add_u32 s10, s10, 2")
    I(f"v_lshrrev_b32 v{t0}, 5, v{lane}")
    I(f"v_mul_i32_i24 v{vARO}, {(R0-R1) & 0xffffffff:#x}, v{t0}")
    I(f"v_and_b32 v{t0}, 15, v{lane}")
    I(f"v_lshl_add_u32 v{vARO}, v{t0}, 2, v{vARO}")
    I(f"v_add_u32 v{vARO}, s10, v{vARO}")
    I(f"s_add_u32 s10, s{sL}, 2")
    I(f"v_and_b32 v{t0}, 48, v{lane}")
    I(f"v_lshl_add_u32 v{vARS}, v{t0}, 1, s10")
    I(f"v_and_b32 v{t0}, 12, v{lane}")
    I(f"v_add_u32 v{vARS}, v{vARS}, v{t0}")

def prefill(t):
    for d in range(4): I(f"v_mov_b32 v{t+d}, {ZROW << 16:#x}")
    for d in range(4): I(f"v_mov_b32 v{t+4+d}, 0xfffff")
    I(f"v_lshl_add_u32 v{t+8}, v{lane}, 4, s{sL}")
    for o in (0, 1024, 2*LWB - 1024):
        I(f"ds_write_b128 v{t+8}, {rr(t,4)} offset:{o}")
        I(f"ds_write_b128 v{t+8}, {rr(t+4,4)} offset:{o + R1 - R0}")

def kernel():
    emit(f"""
.globl {NAME}_kernel
.p2align 8
.type {NAME}_kernel,@function
{NAME}_kernel:""")
    FH = opt("fh", 1)
    vD, vSR, vT16 = vACC + 32, vACC, vR + 12
    if TS and opt("tz", 0): I("s_memrealtime s[96:97]")
    I("s_load_dwordx16 s[16:31], s[0:1], 0")
    I("s_load_dwordx8 s[32:39], s[0:1], 64")
    CPN = opt("cpn", 8)
    if opt("cpf", 1):
        I(f"s_getpc_b64 {sp(sM)}")
        L("L_PC")
        if CPN == 8: I("s_and_b32 s3, s2, -8")
        else:
            I("s_lshr_b32 s3, s2, 3")
            I(f"s_and_b32 s3, s3, {256//CPN - 1}")
            I(f"s_mul_i32 s3, s3, {CPN}")
        I("v_add_lshl_u32 v1, v0, s3, 7")
        I("v_min_u32 v1, L_LAST-L_PC, v1")
        I(f"v_cmpx_gt_u32 vcc, {CPN}, v0")
        I("s_cbranch_execz L_NOCPF")
        I(f"global_load_dword v{vEA}, v1, {sp(sM)}")
        L("L_NOCPF")
        I("s_mov_b64 exec, -1")
    I("s_cmp_ge_u32 s2, 256")
    I("s_cbranch_scc1 L_END")
    if FH:
        I(f"s_mul_i32 s{sA}, s2, {CH*4}")
        I(f"v_lshl_add_u32 v1, v0, 4, s{sA}")
        I(f"s_add_u32 s{sBt}, s{sA}, {CH*4}")
        I(f"s_min_u32 s{sBt}, s{sBt}, {E*4}")
        BAL = opt("bal", 0)
        if BAL:
            I(f"s_add_u32 s{sA}, s{sA}, 0x2000")
            I(f"v_lshl_add_u32 v2, v0, 3, s{sA}")
            I(f"s_add_u32 s{sA}, s{sA}, 0x1000")
            I(f"v_lshl_add_u32 v3, v0, 2, s{sA}")
            I(f"v_cmp_gt_u32 {sp(sM+6)}, s{sBt}, v2")
            I(f"v_min_u32 v2, {E*4 - 8}, v2")
        else: I("v_add_u32 v2, 0x2000, v1")
        I("s_waitcnt lgkmcnt(0)")
        if TS and opt("tz", 0): I("s_memrealtime s[98:99]")
        I(f"global_load_dwordx4 {rr(vD,4)}, v1, {sp(pDST)}{pol(LD_P)}")
        if BAL:
            I(f"global_load_dwordx2 {rr(vD+4,2)}, v2, {sp(pDST)}{pol(LD_P)}")
            I(f"global_load_dwordx4 {rr(vSR,4)}, v1, {sp(pSRC)}{pol(LD_P)}")
            I(f"global_load_dwordx2 {rr(vSR+4,2)}, v2, {sp(pSRC)}{pol(LD_P)}")
            I(f"v_cmpx_gt_u32 {sp(sM+28)}, s{sBt}, v3")
            I("s_cbranch_execz L_NO7")
            I(f"global_load_dword v{vD+6}, v3, {sp(pDST)}{pol(LD_P)}")
            I(f"global_load_dword v{vSR+6}, v3, {sp(pSRC)}{pol(LD_P)}")
        else:
            I(f"global_load_dwordx4 {rr(vSR,4)}, v1, {sp(pSRC)}{pol(LD_P)}")
            def group2():
                I(f"v_cmpx_gt_u32 {sp(sM+6)}, s{sBt}, v2")
                I("s_cbranch_execz L_NO8")
                I(f"global_load_dwordx4 {rr(vD+4,4)}, v2, {sp(pDST)}{pol(LD_P)}")
                I(f"global_load_dwordx4 {rr(vSR+4,4)}, v2, {sp(pSRC)}{pol(LD_P)}")
                L("L_NO8")
                I("s_mov_b64 exec, -1")
            G2 = opt("g2", 0)
            if G2 == 0: group2()
        L("L_NO7")
        I("s_mov_b64 exec, -1")
        KV = opt("kv", 0)
        if KV:
            I("v_mov_b32 v1, 0")
            I(f"global_load_dword v{vEA+1}, v1, {sp(pWS)}")
        else: I(f"s_load_dword s{sK}, {sp(pWS)}, 0")
        if opt("tlb", 0):
            I("v_lshlrev_b32 v1, 20, v0")
            I(f"v_add_u32 v1, {WS_CELL + XOFF - 448*(1 << 20) & 0xffffffff:#x}, v1")
            I("v_subrev_u32 v2, 448, v0")
            I("v_cmpx_gt_u32 vcc, 9, v2")
            I("s_cbranch_execz L_NOTLB")
            I(f"global_load_dword v{vEA+1}, v1, {sp(pWS)}")
            L("L_NOTLB")
            I("s_mov_b64 exec, -1")
    if TS: I(f"v_mov_b32 v{vTS}, 0")
    u = lambda i: vP + i
    if TS and opt("tz", 0):
        I("s_waitcnt lgkmcnt(0)")
        I(f"v_writelane_b32 v{vTS}, s96, 0")
        I(f"v_writelane_b32 v{vTS}, s98, 1")
        STN.extend(["z", "k"])
    stamp(0)
    vBK, vRK1, vID, vHA, vIC = vACC + 8, vACC + 16, vACC + 24, vACC + 40, vACC + 48
    vRW = vX
    one, l16 = vS, vS + 1
    vOA, vT16, sOW = vR + 14, vR + 12, 101
    I(f"v_mov_b32 v{tid}, v0")
    I(f"v_lshrrev_b32 v{u(0)}, 6, v0")
    I(f"v_and_b32 v{lane}, 63, v0")
    I(f"v_readfirstlane_b32 s{sWP}, v{u(0)}")
    I(f"v_lshlrev_b32 v{vT16}, 4, v0")
    I(f"v_lshlrev_b32 v{u(2)}, 3, v0")
    I(f"v_lshlrev_b32 v{u(3)}, 2, v0")
    I(f"v_and_b32 v{u(4)}, 0x3fc, v{u(3)}")
    if not FH:
        I(f"s_mul_i32 s{sA}, s2, {CH*4}")
        I(f"s_sub_u32 s{sBt}, {E*4}, s{sA}")
        I(f"s_min_u32 s{sBt}, s{sBt}, {CH*4}")
    I(f"s_and_b32 s{sB}, s2, 7")
    I(f"s_lshr_b32 s{sW}, s2, 3")
    I(f"s_lshl_b32 s{sB}, s{sB}, 5")
    I(f"s_add_u32 s{sB}, s{sB}, s{sW}")
    I(f"s_mul_i32 s{sF1}, s{sB}, {BN}")
    I(f"s_cmp_eq_u32 s{sWP}, 7")
    I(f"s_cselect_b32 s{sOW}, 0, s{sWP}")
    I(f"s_lshl_b32 s{sL}, s{sOW}, 5")
    I(f"s_add_u32 s{sF1}, s{sF1}, s{sL}")
    I(f"v_lshrrev_b32 v{u(5)}, 3, v{lane}")
    I(f"v_lshl_add_u32 v{u(5)}, v{u(5)}, 2, s{sF1}")
    I(f"v_and_b32 v{vCP}, 7, v{lane}")
    I(f"v_lshlrev_b32 v{vCP}, 4, v{vCP}")
    I(f"v_lshl_add_u32 v{vOA}, v{u(5)}, 7, v{vCP}")
    I(f"s_lshl_b32 s{sOW}, s{sOW}, 10")
    I(f"s_add_u32 s{sOW}, s{sOW}, {OWN}")
    if not FH:
        I(f"s_movk_i32 s{sF0}, 0x2000")
        I("s_waitcnt lgkmcnt(0)")
        I(f"s_load_dword s{sK}, {sp(pWS)}, 0")
        srd(sCEL, pDST, f"s{sBt}", f"s{sA}")
        srd(sD2, pSRC, f"s{sBt}", f"s{sA}")
        I(f"buffer_load_dwordx4 {rr(vD,4)}, v{vT16}, {sq(sCEL)}, 0 offen{pol(LD_P)}")
        I(f"buffer_load_dwordx4 {rr(vSR,4)}, v{vT16}, {sq(sD2)}, 0 offen{pol(LD_P)}")
        I(f"s_cmp_ge_u32 s{sWP}, 5")
        I("s_cbranch_scc1 L_NO7")
        I(f"buffer_load_dwordx4 {rr(vD+4,4)}, v{vT16}, {sq(sCEL)}, s{sF0} offen{pol(LD_P)}")
        I(f"buffer_load_dwordx4 {rr(vSR+4,4)}, v{vT16}, {sq(sD2)}, s{sF0} offen{pol(LD_P)}")
        L("L_NO7")
    for d in range(2): I(f"v_mov_b64 {rr(u(8)+2*d,2)}, 0")
    I(f"v_mov_b32 v{u(6)}, {33*JE if MG else 0}")
    I(f"ds_write2st64_b32 v{u(4)}, v{u(6)}, v{u(8)} offset0:{HIST1//256} offset1:{HIST1//256+4}")
    I(f"v_add_u32 v{u(5)}, {CIMG}, v{vT16}")
    if G2 == 1: group2()
    for k in range(5): I(f"ds_write_b128 v{u(5)}, {rr(u(8),4)} offset:{8192*k}")
    if G2 == 2: group2()
    PF = opt("pf", 0)
    def w_loads():
        I(f"s_cmp_ge_u32 s{sWP}, 2")
        I("s_cbranch_scc1 L_NOC")
        I(f"global_load_dwordx4 {rr(vEO,4)}, v{vT16}, {sp(pWC)}")
        L("L_NOC")
        for k, p in enumerate((pWB, pWV, pWA, pWU)):
            I(f"global_load_dwordx4 {rr(vRW+4*k,4)}, v{vT16}, {sp(p)}")
    def own_loads():
        I(f"s_cmp_eq_u32 s{sWP}, 6")
        I("s_cselect_b32 exec_hi, 0, -1")
        I(f"s_cmp_eq_u32 s{sWP}, 7")
        I("s_cselect_b64 exec, 1, exec")
        for k in range(4):
            I(f"s_add_u32 m0, s{sOW}, {(PL-128)*k}")
            I("s_nop 0")
            I(f"buffer_load_dwordx4 v{vOA}, {sq(sX)}, 0 offen offset:{128*k}{pol(opt('owp', ''))} lds")
        I("s_mov_b64 exec, -1")
    def x_prefetch():
        if not PF: return
        I(f"s_add_u32 s{sTM}, s2, 1")
        I(f"s_and_b32 s{sTM}, s{sTM}, 7")
        I(f"s_mul_i32 s{sTM}, s{sTM}, {32*BN}")
        I(f"s_lshr_b32 s{sTM+1}, s2, 3")
        I(f"s_mul_i32 s{sTM+1}, s{sTM+1}, {PF}")
        I(f"s_add_u32 s{sTM}, s{sTM}, s{sTM+1}")
        I(f"s_mul_i32 s{sTM+1}, s{sWP}, {PF//8}")
        I(f"s_add_u32 s{sTM}, s{sTM}, s{sTM+1}")
        I(f"v_min_u32 v{vEA+1}, {PF//8 - 1}, v{lane}")
        I(f"v_add_lshl_u32 v{vEA+1}, v{vEA+1}, s{sTM}, 7")
        I(f"buffer_load_dword v{vEA+1}, v{vEA+1}, {sq(sX)}, 0 offen")
    PFP = opt("pfp", 0)
    LLP = 2
    OLP = opt("olp", 2)
    NY = 0
    srd(sEP, pE, E, stride=32)
    srd(sOUT, pOUT, N*128)
    srd(sX, pX, N*128)
    OY = 0
    if OLP == 3:
        OW0 = opt("ow0", 5); nw = 8 - OW0; per = -(-28 // nw); OY = per
        I(f"s_cmp_lt_u32 s{sWP}, {OW0}")
        I("s_cbranch_scc1 L_NOOWN")
        I(f"s_mul_i32 s{sF1}, s{sB}, {BN}")
        I(f"v_lshrrev_b32 v{vOA}, 3, v{lane}")
        I(f"v_lshl_add_u32 v{vOA}, v{vOA}, 2, s{sF1}")
        I(f"v_lshl_add_u32 v{vOA}, v{vOA}, 7, v{vCP}")
        I(f"s_sub_u32 s{sF0}, s{sWP}, {OW0}")
        for k in range(per):
            I(f"s_add_u32 s{sF1}, s{sF0}, {nw*k}")
            I(f"s_min_u32 s{sF1}, s{sF1}, 27")
            I(f"s_and_b32 s{sL}, s{sF1}, 3")
            I(f"s_lshr_b32 s{sF1}, s{sF1}, 2")
            I(f"s_mul_i32 s{sOW}, s{sL}, {PL}")
            I(f"s_lshl_b32 s{sL}, s{sL}, 7")
            I(f"s_cmp_eq_u32 s{sF1}, 6")
            I("s_cselect_b32 exec_hi, 0, -1")
            I(f"s_lshl_b32 s{sF1}, s{sF1}, 10")
            I(f"s_add_u32 s{sOW}, s{sOW}, s{sF1}")
            I(f"s_add_u32 m0, s{sOW}, {OWN}")
            I(f"s_lshl2_add_u32 s{sL}, s{sF1}, s{sL}")
            I(f"buffer_load_dwordx4 v{vOA}, {sq(sX)}, s{sL} offen lds")
        I("s_mov_b32 exec_hi, -1")
        L("L_NOOWN")
    srd(sWS, pWS, WS_USED)
    I(f"s_lshl_b32 s{sL}, s2, 7")
    I(f"s_add_u32 s{sL}, s{sL}, {WS_CELL}")
    srd(sCEL, pWS, 255*RS + XOFF + 128, f"s{sL}")
    cM, cN, cP, cPM, cR = sM, sM + 1, sM + 2, sM + 3, sM + 4
    m2 = sM + 6
    I(f"s_mov_b32 s{cM}, 85599")
    I(f"s_mov_b32 s{cN}, {-BN & 0xffffffff}")
    I(f"s_movk_i32 s{cP}, 5368")
    I(f"s_mov_b32 s{cPM}, {opt('phm', 3) << 26:#x}")
    I(f"s_mov_b32 s{cR}, {RS}")
    I(f"s_mov_b32 s{sSP}, {-(196*5368) & 0xffffffff:#x}")
    for i in range(4): I(f"v_add_u32 v{vID+i}, {i}, v{u(3)}")
    I(f"s_lshl_b32 s{sA}, s{sWP}, 28")
    I(f"s_or_b32 s{sA}, s{sA}, 0x20000")
    I(f"v_mov_b32 v{vIC}, s{sA}")
    if BAL:
        assert MG <= 1 and OLP != 3
        I(f"s_lshr_b32 s{sA}, s{sWP}, 1")
        I(f"s_lshl_b32 s{sA}, s{sA}, 28")
        I(f"s_or_b32 s{sA}, s{sA}, 0x80020000")
        I(f"v_mov_b32 v{vIC+1}, s{sA}")
        I(f"v_mov_b32 v{vIC+3}, 0xc0020000")
        I(f"v_lshlrev_b32 v{vID+4}, 1, v{tid}")
        I(f"v_add_u32 v{vID+5}, 1, v{vID+4}")
        I(f"v_mov_b32 v{vID+6}, v{tid}")
    else: I(f"v_or_b32 v{vIC+1}, 0x80000000, v{vIC}")
    idr = (lambda i: vID + i) if BAL else (lambda i: vID + (i & 3))
    icr = (lambda i: vIC + (3 if i == 6 else i >> 2)) if BAL else (lambda i: vIC + (i >> 2))
    NR = 7 if BAL else 8
    I(f"v_mov_b32 v{one}, 33")
    vK1 = vIC + 2
    I(f"v_mov_b32 v{vK1}, 0x400")
    if not FH:
        I(f"s_sub_u32 s{sBt}, s{sBt}, 0x2000")
        I(f"v_cmp_gt_u32 {sp(m2)}, s{sBt}, v{vT16}")
    I(f"s_and_b32 s{sA}, s{sWP}, 3")
    I(f"s_lshr_b32 s{sW}, s{sWP}, 2")
    I(f"s_lshl1_add_u32 s{sW}, s{sA}, s{sW}")
    if opt("swp", 1): I(f"s_xor_b32 s{sW}, s{sW}, 1")
    I(f"s_mul_i32 s{sA}, s{sW}, 49")
    I(f"s_sub_i32 s{sA}, s{sA}, 6")
    I(f"s_ashr_i32 s{sA}, s{sA}, 1")
    I(f"s_max_i32 s{sWIN}, s{sA}, 0")
    I(f"s_mul_i32 s{sSTG}, s{sW}, {SLOT}")
    I(f"s_add_u32 s{sSTG}, s{sSTG}, {XSTG}")
    I(f"s_lshl_b32 s{sES}, s{sW}, 10")
    I(f"s_add_u32 s{sES}, s{sES}, {ESTG}")
    I(f"s_mul_i32 s{sL}, s{sW}, {2*LWB}")
    I(f"s_add_u32 s{sL}, s{sL}, {R0}")
    I(f"s_movk_i32 s{s128}, 128")
    if G2 == 3: group2()
    I(f"v_bfe_u32 v{u(6)}, v{tid}, 4, 4")
    I(f"v_and_b32 v{u(7)}, 7, v{tid}")
    I(f"v_cmp_eq_u32 vcc, v{u(6)}, v{u(7)}")
    I(f"v_and_b32 v{u(6)}, 8, v{tid}")
    I(f"v_lshlrev_b32 v{u(6)}, 1, v{u(6)}")
    I(f"v_mov_b32 v{u(8)}, 0x3f80")
    I(f"v_lshlrev_b32 v{u(8)}, v{u(6)}, v{u(8)}")
    I(f"v_cndmask_b32 v{u(8)}, 0, v{u(8)}, vcc")
    I(f"ds_write_b32 v{u(4)}, v{u(8)} offset:{TAB}")
    I(f"v_mov_b64 {rr(u(8),2)}, 0")
    I(f"ds_write_b64 v{u(2)}, {rr(u(8),2)} offset:{HIST}")
    I(f"v_add_u32 v{u(6)}, {PRG}, v{u(3)}")
    I(f"ds_write_b32 v{u(6)}, v{u(8)}")
    go, lo, lo2, ha = vR, vR + 1, vR + 2, vR + 3
    wl, wal = vR + 4, vR + 5
    I(f"v_lshrrev_b32 v{ha}, 3, v{tid}")
    I(f"v_mad_u32_u24 v{go}, v{ha}, s{cR}, v{vCP}")
    I(f"v_mul_u32_u24 v{wl}, {LROW}, v{ha}")
    I(f"v_add_u32 v{lo}, v{wl}, v{vCP}")
    I(f"v_add_u32 v{lo}, {CIMG}, v{lo}")
    assert LROW == WR
    I(f"v_bfe_u32 v{u(6)}, v{tid}, 5, 1")
    I(f"v_bfe_u32 v{u(8)}, v{tid}, 6, 1")
    I(f"v_sub_u32 v{u(6)}, v{u(6)}, v{u(8)}")
    I(f"v_mul_i32_i24 v{u(6)}, {4*WR}, v{u(6)}")
    I(f"v_add_u32 v{wl}, v{wl}, v{u(6)}")
    I(f"v_lshl_add_u32 v{wl}, v{u(7)}, 2, v{wl}")
    I(f"v_add_u32 v{wl}, {WBI}, v{wl}")
    I(f"v_lshlrev_b32 v{l16}, 4, v{lane}")
    I(f"v_and_b32 v{u(6)}, 3, v{lane}")
    I(f"v_lshlrev_b32 v{vcS}, 3, v{u(6)}")
    I(f"v_bfe_u32 v{u(9)}, v{lane}, 2, 3")
    I(f"v_lshrrev_b32 v{u(8)}, 5, v{lane}")
    I(f"v_lshl_add_u32 v{u(9)}, v{u(8)}, 4, v{u(9)}")
    I(f"v_mul_u32_u24 v{wal}, {WR}, v{u(9)}")
    I(f"v_add_u32 v{wal}, v{wal}, v{vcS}")
    mm = lambda i: sM + 8 + 2*i
    def rank_a(rs, wsrc=0, plain=False):
        for i in rs: I(f"v_mul_u32_u24 v{vBK+i}, s{cM}, v{vD+i}")
        if rs[0] // 4 < MG and not plain:
            b = rs[0]
            for i in rs: I(f"v_lshrrev_b32 v{vHA+i}, 29, v{vBK+i}")
            if opt("px", 0):
                I(f"s_waitcnt vmcnt({wsrc})")
                for i in rs:
                    I(f"v_cmp_gt_u32 vcc, {opt('px', 0)}, v{vSR+i}")
                    I("s_nop 1")
                    I(f"v_cndmask_b32 v{vHA+i}, v{vHA+i}, v{vID+(i&3)}, vcc") if False else I(f"v_cndmask_b32_e64 v{vHA+i}, v{vHA+i}, {8+(i&3)}, vcc")
            t0, t1 = sM + 24, sM + 26
            I(f"v_cmp_eq_u32 {sp(mm(b))}, v{vHA+b}, v{vHA+b+1}")
            I(f"v_cmp_eq_u32 {sp(mm(b+2))}, v{vHA+b+2}, v{vHA+b+3}")
            I(f"v_cmp_eq_u32 vcc, v{vHA+b}, v{vHA+b+2}")
            I(f"v_cmp_eq_u32 {sp(t0)}, v{vHA+b+1}, v{vHA+b+3}")
            I(f"v_cmp_eq_u32 {sp(t1)}, v{vHA+b}, v{vHA+b+3}")
            I(f"v_cmp_eq_u32 {sp(sA)}, v{vHA+b+1}, v{vHA+b+2}")
            for i in rs: I(f"v_lshrrev_b32 v{vBK+i}, 24, v{vBK+i}")
            I(f"s_or_b64 {sp(mm(b+1))}, {sp(mm(b))}, {sp(t0)}")
            I(f"s_or_b64 {sp(mm(b+3))}, {sp(mm(b+2))}, {sp(t0)}")
            I(f"s_or_b64 {sp(mm(b))}, {sp(mm(b))}, vcc")
            I(f"s_or_b64 {sp(mm(b+2))}, {sp(mm(b+2))}, vcc")
            I(f"s_or_b64 {sp(mm(b))}, {sp(mm(b))}, {sp(t1)}")
            I(f"s_or_b64 {sp(mm(b+1))}, {sp(mm(b+1))}, {sp(sA)}")
            I(f"s_or_b64 {sp(mm(b+2))}, {sp(mm(b+2))}, {sp(sA)}")
            I(f"s_or_b64 {sp(mm(b+3))}, {sp(mm(b+3))}, {sp(t1)}")
            for i in rs:
                I(f"v_cndmask_b32 v{vHA+i}, 0, v{vK1}, {sp(mm(i))}")
                I(f"v_lshl_add_u32 v{vHA+i}, v{vBK+i}, 2, v{vHA+i}")
                I(f"ds_add_rtn_u32 v{vRK1+i}, v{vHA+i}, v{one} offset:{HIST1}")
            return
        for i in rs: I(f"v_lshrrev_b32 v{vBK+i}, 24, v{vBK+i}")
        for i in rs:
            I(f"v_lshlrev_b32 v{vHA+i}, 2, v{vBK+i}")
            I(f"ds_add_rtn_u32 v{vRK1+i}, v{vHA+i}, v{one} offset:{HIST1}")
    def again(rs, wait, em):
        for i in rs:
            I(f"s_waitcnt lgkmcnt({wait})")
            I(f"s_mov_b64 exec, {sp(mm(i))}")
            I(f"v_cmpx_le_u32 vcc, {33*JE}, v{vRK1+i}")
            I(f"ds_add_rtn_u32 v{vRK1+i}, v{vHA+i}, v{one} offset:{HIST1 - 1024}")
        I(f"s_mov_b64 exec, {em}")
    def rank_b(rs):
        for i in rs:
            I(f"v_mad_i32_i24 v{vD+i}, v{vBK+i}, s{cN}, v{vD+i}")
            I(f"v_mul_u32_u24 v{u(6)}, s{cP}, v{vSR+i}")
            I(f"v_lshl_or_b32 v{vSR+i}, v{vD+i}, 18, v{vSR+i}")
            if opt("rot", 1):
                I(f"v_and_b32 v{vD+i}, 0xe0, v{vBK+i}")
                I(f"v_mad_i32_i24 v{u(6)}, v{vD+i}, s{sSP}, v{u(6)}")
            I(f"v_and_or_b32 v{u(6)}, v{u(6)}, s{cPM}, v{icr(i)}")
            I(f"v_mad_u32_u24 v{vD+i}, v{vBK+i}, {LROW//4}, s{cN+4}")
            I(f"v_or_b32 v{vSR+i}, v{vSR+i}, v{u(6)}")
    def place(i, wait, em):
        I(f"s_waitcnt lgkmcnt({wait})")
        I(f"v_bfe_u32 v{u(6)}, v{vRK1+i}, 3, 5")
        I(f"v_add_lshl_u32 v{vD+i}, v{u(6)}, v{vD+i}, 2")
        I(f"v_and_b32 v{u(6)}, 3, v{u(6)}")
        I(f"v_mad_i32_i24 v{u(6)}, v{u(6)}, -3, v{vD+i}")
        I(f"v_cmpx_gt_u32 vcc, {33*CAP}, v{vRK1+i}")
        I(f"ds_write_b32 v{vD+i}, v{vSR+i}")
        I(f"ds_write_b8 v{u(6)}, v{idr(i)} offset:12")
        I(f"s_mov_b64 exec, {em}")
    I(f"s_movk_i32 s{cN+4}, {CIMG//4}")
    for d in range(2): I(f"v_mov_b64 {rr(vRK1+4+2*d,2)}, 0")
    I("s_waitcnt lgkmcnt(0)")
    I("s_barrier")
    if BAL:
        m3 = sM + 28
        I("s_waitcnt vmcnt(3)")
        stamp(1)
        if TS: STN.pop()
        rank_a(range(4))
        I("s_waitcnt vmcnt(2)")
        I(f"s_mov_b64 exec, {sp(m2)}")
        rank_a(range(4, 6))
        if MG: again(range(4), 5, "-1")
        else: I("s_mov_b64 exec, -1")
        I("s_waitcnt vmcnt(0)")
        rank_b(range(6))
        I(f"s_mov_b64 exec, {sp(m2)}")
        for i in range(4, 6): place(i, (1 if MG else -3) + i, sp(m2) if i < 5 else "-1")
        for i in range(4): place(i, 7 + i, "-1")
        I(f"s_mov_b64 exec, {sp(m3)}")
        I("s_cbranch_execz L_B1")
        rank_a([6]); rank_b([6]); place(6, 0, "-1")
        I("s_branch L_B1")
    I(f"s_cmp_eq_u64 {sp(m2)}, 0" if FH else f"s_cmp_ge_u32 s{sWP}, 5")
    I("s_cbranch_scc1 L_R4")
    I(f"s_waitcnt vmcnt({3+KV})")
    stamp(1)
    rank_a(range(4), 2)
    I(f"s_waitcnt vmcnt({1+KV})")
    I(f"s_mov_b64 exec, {sp(m2)}")
    rank_a(range(4, 8))
    if MG == 0:
        I("s_mov_b64 exec, -1")
        rank_b(range(4))
        for i in range(4): place(i, 7 + i, "-1" if i < 3 else sp(m2))
        I(f"s_waitcnt vmcnt({KV})")
        rank_b(range(4, 8))
        for i in range(4, 8): place(i, 7 + i, sp(m2) if i < 7 else "-1")
    elif MG == 1:
        again(range(4), 7, sp(m2))
        I(f"s_waitcnt vmcnt({KV})")
        rank_b(range(4, 8))
        for i in range(4, 8): place(i, 3 + i, sp(m2) if i < 7 else "-1")
        rank_b(range(4))
        for i in range(4): place(i, 11 + i, "-1")
    else:
        again(range(8), 7, "-1")
        rank_b(range(4))
        for i in range(4): place(i, 7 + i, "-1" if i < 3 else sp(m2))
        I(f"s_waitcnt vmcnt({KV})")
        rank_b(range(4, 8))
        for i in range(4, 8): place(i, 7 + i, sp(m2) if i < 7 else "-1")
    I("s_branch L_B1")
    L("L_R4")
    if OY:
        I(f"s_cmp_ge_u32 s{sWP}, {OW0}")
        I("s_cbranch_scc1 L_R4A")
        I(f"s_waitcnt vmcnt({KV})")
        L("L_R4A")
    I(f"s_waitcnt vmcnt({1 + OY + KV})")
    if TS: STN.pop()
    stamp(1)
    YM = opt("ym", 1)
    rank_a(range(4), plain=not YM)
    I(f"s_waitcnt vmcnt({OY + KV})")
    if MG and YM:
        rank_b(range(2))
        again(range(4), 3, "-1")
        rank_b(range(2, 4))
    else: rank_b(range(4))
    for i in range(4): place(i, 3 + i, "-1")
    L("L_B1")
    if BAL:
        k_ = max(i for i, l in enumerate(out) if l.strip() == "s_cbranch_execz L_B1")
        e_ = next(i for i in range(k_, len(out)) if out[i].strip() == "s_branch L_B1")
        del out[e_:len(out)-1]
        I("s_mov_b64 exec, -1")
    WL = opt("wl", 0)
    if not WL: w_loads()
    vTG = vS + 2
    def tagcalc():
        I(f"s_add_u32 s{sK}, s{sK}, {KINC:#x}")
        I(f"v_lshlrev_b32 v{vTG}, v{vcS}, s{sK}")
        I(f"v_and_b32 v{u(1)}, 4, v{lane}")
        I(f"v_mul_u32_u24 v{u(1)}, {37 << 15}, v{u(1)}")
        I(f"v_lshl_add_u32 v{vTG}, v{u(1)}, 8, v{vTG}")
        I(f"v_and_b32 v{vTG}, 0xfe000000, v{vTG}")
    if not KV: tagcalc()
    vTH = vS + 3
    I(f"v_and_b32 v{vTH}, 7, v{lane}")
    I(f"v_mul_u32_u24 v{vTH}, 33, v{vTH}")
    I(f"v_add_u32 v{vTH}, {33*CAP}, v{vTH}")
    I(f"v_lshlrev_b32 v{lo2}, 2, v{ha}")
    I(f"s_mov_b32 s{cM}, 0x1000000")
    I("s_waitcnt lgkmcnt(0)")
    I("s_barrier")
    stamp(2)
    vO, vHS = vQ, u(4)
    I(f"ds_read_b128 {rr(vHS,4)}, v{l16} offset:{HIST1}")
    vHD = vR + 8
    for i in range(4):
        I(f"ds_read_b32 v{vHD+i}, v{lo2} offset:{HIST1 + 256*i}")
        I(f"ds_read_b128 {rr(vO+4*i,4)}, v{lo} offset:{64*LROW*i}")
    if KV:
        I("s_waitcnt vmcnt(4)")
        I(f"v_readfirstlane_b32 s{sK}, v{vEA+1}")
    for i in range(1, 4): I(f"s_mov_b32 s{sM+15+i}, {64*RS*i}")
    if KV: tagcalc()
    I("s_waitcnt lgkmcnt(8)")
    I(f"v_max3_u32 v{u(0)}, v{vHS}, v{vHS+1}, v{vHS+2}")
    I(f"v_max_u32 v{u(0)}, v{u(0)}, v{vHS+3}")
    I(f"v_cmp_lt_u32 vcc, {33*(CAP+8)}, v{u(0)}")
    I("s_cbranch_vccnz L_POVF")
    L("L_POUT")
    for i in range(4):
        I(f"s_waitcnt lgkmcnt({7 - 2*i})")
        I(f"v_sub_u32 v{vHD+i}, v{vTH}, v{vHD+i}")
        I(f"v_and_or_b32 v{vHD+i}, v{vHD+i}, s{cM}, v{vTG}")
        I(f"s_waitcnt lgkmcnt({6 - 2*i})")
        I(f"v_or_b32 v{vO+4*i+3}, v{vO+4*i+3}, v{vHD+i}")
        I(f"buffer_store_dwordx4 {rr(vO+4*i,4)}, v{go}, {sq(sCEL)}, {f's{sM+15+i}' if i else '0'} offen{pol(STP)}")
    stamp(3)
    if WL: w_loads()
    if "c" in opt("tsx", ""): I("s_waitcnt vmcnt(0)")
    stamp("c0")
    t = vACC + 32
    I(f"s_mov_b32 s{sA}, {f2u(-LOG2E):#x}")
    I(f"s_mov_b32 s{sBt}, s{sA}")
    I(f"s_mov_b32 s{cM}, 0x05040100")
    I(f"s_mov_b32 s{cP}, 0x07060302")
    def wscaled(src, off):
        for d in range(4):
            I(f"v_lshlrev_b32 v{t+2*d}, 16, v{src+d}")
            I(f"v_and_b32 v{t+2*d+1}, 0xffff0000, v{src+d}")
        for d in range(4): I(f"v_pk_mul_f32 {rr(t+2*d,2)}, {rr(t+2*d,2)}, {sp(sA)}")
        for n in range(4): I(f"v_cvt_pk_bf16_f32 v{t+8+n}, v{t+n}, v{t+4+n}")
        wput(t + 8, off)
    def wplain(src, off, tt):
        for n in range(4): I(f"v_perm_b32 v{tt+n}, v{src+2+(n>>1)}, v{src+(n>>1)}, s{cP if n & 1 else cM}")
        wput(tt, off)
    def wput(r, off):
        a = wl
        if off:
            a = r + 4
            I(f"v_add_u32 v{a}, {off}, v{wl}")
        I(f"ds_write2_b32 v{a}, v{r}, v{r+1} offset0:0 offset1:8")
        I(f"ds_write2_b32 v{a}, v{r+2}, v{r+3} offset0:16 offset1:24")
    I(f"s_waitcnt vmcnt({0 if WL else 4})")
    if PFP == 0: x_prefetch()
    stamp("b4")
    wplain(vRW + 8, WAI - WBI, t + 16)
    wscaled(vRW, 0)
    wplain(vRW + 4, WVI - WBI, t + 24)
    wplain(vRW + 12, WUI - WBI, t + 16)
    I(f"s_cmp_ge_u32 s{sWP}, 2")
    I("s_cbranch_scc1 L_NOWC")
    wscaled(vEO, WCI - WBI)
    L("L_NOWC")
    I(f"s_mul_i32 s{sTM}, s{sB}, {RS}")
    I(f"s_add_u32 s{sTM}, s{sTM}, {WS_CELL}")
    srd(sCEL, pWS, 256*128, f"s{sTM}")
    I(f"s_add_u32 s{sTM}, s{sTM}, {XOFF}")
    srd(sD2, pWS, 256*128, f"s{sTM}")
    vC, vEB = vACC + 32, vACC + 60
    pa = vT16
    for k in (1, 2, 3): I(f"s_movk_i32 s{sCI+k-1}, {8192*k}")
    def poll_load(i):
        so = "0" if i == 0 else f"s{sCI+i-1}"
        I(f"buffer_load_dwordx4 {rr(vC+4*i,4)}, v{pa}, {sq(sCEL)}, {so} offen sc1")
    I("s_waitcnt lgkmcnt(0)")
    I("s_barrier")
    stamp(4)
    if WL == 1:
        for i in range(4): poll_load(i)
    if PFP == 1: x_prefetch()
    if OLP == 0: own_loads()
    vWA = vACC
    I(f"v_add_u32 v{wal}, {WBI}, v{wal}")
    def trw(reg, img):
        return [f"ds_read_b64_tr_b16 {rr(reg+8*n+4*s+2*uu,2)}, v{wal} offset:{img + (32*s + 8*uu)*WR + 32*n}"
                for n in range(4) for s in range(2) for uu in range(2)]
    tw = trw(vWB, 0) + trw(vWV, WVI - WBI)
    for x_ in tw[:14]: I(x_)
    prefill(vCA)
    if WL == 2:
        for i in range(4): poll_load(i)
    for x_ in tw[14:24]: I(x_)
    nxt = 24
    I(f"v_mov_b32 v{u(4)}, v{wal}")
    I("s_mov_b32 exec_lo, 0")
    I(f"v_subrev_u32 v{u(4)}, {16*WR}, v{wal}")
    I("s_mov_b32 exec_lo, -1")
    tw += [f"ds_read_b64_tr_b16 {rr(vCA+16+4*n+2*uu,2)}, v{u(4)} offset:{WCI - WBI + 8*uu*WR + 32*n}" for n in range(4) for uu in range(2)]
    vEM, vET = vEO, vACC + 56
    ownn, owna, mapa = vEO + 1, vEO + 2, vEO + 3
    I("s_waitcnt lgkmcnt(4)")
    for x_ in tw[nxt:]: I(x_)
    I(f"v_add_u32 v{wal}, {WAI - WBI}, v{wal}")
    vFF = vEO + 4
    vMU = vR + 8
    lo0, hi0, lo1, hi1 = sWS0, sWS1, sB0E, sSH
    def late_setup():
        I(f"v_and_b32 v{vCH}, 1, v{lane}")
        I(f"v_lshlrev_b32 v{vCH}, 4, v{vCH}")
        I(f"v_mov_b32 v{vONE}, 0x3f80")
        I(f"v_and_b32 v{vcEO}, 16, v{lane}")
        I(f"v_and_b32 v{u(6)}, 15, v{lane}")
        I(f"v_lshl_add_u32 v{u(6)}, v{u(6)}, 5, s{sES}")
        I("s_mov_b32 exec_hi, 0")
        I(f"v_add_u32 v{vcEO}, v{vcEO}, v{u(6)}")
        I("s_mov_b32 exec_hi, -1")
        I(f"v_and_b32 v{u(6)}, 3, v{lane}")
        I(f"v_bfe_u32 v{u(8)}, v{lane}, 2, 2")
        I(f"v_and_b32 v{u(9)}, 48, v{lane}")
        I(f"v_lshl_add_u32 v{u(10)}, v{u(8)}, 7, v{u(9)}")
        I(f"v_mul_u32_u24 v{vAX}, {XI}, v{u(6)}")
        I(f"v_add3_u32 v{vAX}, v{vAX}, v{u(10)}, s{sSTG}")
        listaddr(u(6))
        I(f"v_mul_u32_u24 v{vEB}, {CH}, v{ha}")
        for i in range(1, 4): I(f"v_add_u32 v{vEB+i}, {64*i*CH}, v{vEB}")
        I(f"s_mov_b32 s{sEM}, {EMASK:#x}")
        I(f"s_mov_b32 s{sEM+1}, {EMASK:#x}")
        vFF = vEO + 4
        I(f"v_mov_b32 v{vFF}, 0xfffff")
        I(f"v_mov_b32 v{vEM}, 0")
        I(f"v_add_lshl_u32 v{u(3)}, v{pa}, v{vCP}, 16")
        for i in range(4):
            I(f"v_add_u32 v{vET+i}, {(EARLY + 8192*i) << 16:#x}, v{u(3)}")
            I(f"v_cndmask_b32 v{vET+i}, 0, v{vET+i}, {sp(sEM)}")
        I(f"v_mov_b32 v{one}, 4")
        I(f"v_and_b32 v{ownn}, 31, v{lane}")
        I(f"v_add_lshl_u32 v{mapa}, v{ownn}, s{sWIN}, 2")
        I(f"v_lshrrev_b32 v{u(3)}, 5, v{lane}")
        I(f"v_lshl_add_u32 v{owna}, v{u(3)}, 11, v{mapa}")
        I(f"v_add_u32 v{mapa}, {MAP}, v{mapa}")
        I(f"v_lshlrev_b32 v{u(3)}, 2, v{lane}")
        I(f"v_subrev_u32 v{u(3)}, s{sWIN}, v{u(3)}")
        I("s_mov_b32 s10, 0x10000")
        for i in range(4):
            I(f"v_add_u32 v{vMU+i}, {i}, v{u(3)}")
            I(f"v_and_or_b32 v{vMU+i}, v{vMU+i}, s10, 1")
        I(f"s_movk_i32 s{sFM}, 0xffc")
        I(f"s_movk_i32 s{sSKIP}, {CAP+8}")
        I(f"s_mov_b32 s{sXT}, 0")
        I(f"s_mov_b32 s{sSP}, 0")
        I(f"s_mov_b32 s{sT}, 0x1ffffff")
        I(f"s_mov_b32 s{sN}, 0xffff")
        lo0, hi0, lo1, hi1 = sWS0, sWS1, sB0E, sSH
        I(f"s_mul_i32 s10, s{sW}, 49")
        I(f"s_sub_i32 s{lo0}, s10, 6")
        I(f"s_ashr_i32 s{lo0}, s{lo0}, 1")
        I(f"s_add_i32 s{hi0}, s10, 7")
        I(f"s_ashr_i32 s{hi0}, s{hi0}, 1")
        I(f"s_add_i32 s{lo1}, s10, 43")
        I(f"s_ashr_i32 s{lo1}, s{lo1}, 1")
        I(f"s_add_i32 s{hi1}, s{lo0}, 31")
        I(f"s_cmp_eq_u32 s{sW}, 7")
        I(f"s_cselect_b32 s{lo1}, {BN}, s{lo1}")
        I(f"s_cselect_b32 s{hi1}, {BN}, s{hi1}")
        for r_ in (hi0, lo1, hi1): I(f"s_sub_i32 s{r_}, s{r_}, s{sWIN}")
    LS = opt("ls", 0)
    if LS == 0: late_setup()
    stamp("b0")
    if opt("pw", 1) and not WL: I(f"s_waitcnt vmcnt({4 if OLP == 0 else 0})")
    stamp("b1")
    if opt("pbar", 0): I("s_barrier")
    if WL in (0, 3):
        for i in range(4): poll_load(i)
    if OLP == 1: own_loads()
    if LS == 1: late_setup()
    PY = 4 if OLP == 1 else 0
    I(f"v_max3_u32 v{u(0)}, v{vRK1}, v{vRK1+1}, v{vRK1+2}")
    I(f"v_max3_u32 v{u(1)}, v{vRK1+3}, v{vRK1+4}, v{vRK1+5}")
    I(f"v_max3_u32 v{u(0)}, v{u(0)}, v{vRK1+6}, v{vRK1+7}")
    I(f"v_max_u32 v{u(0)}, v{u(0)}, v{u(1)}")
    I(f"v_cmp_le_u32 vcc, {33*CAP}, v{u(0)}")
    I("s_cbranch_vccz L_PEXTR")
    q = vCA
    if TS: I(f"v_writelane_b32 v{vTS}, 1, 61")
    I(f"v_mov_b32 v{q+1}, s{sK}")
    I(f"s_lshl_b32 s{sTM}, s2, 7")
    I(f"s_add_u32 s{sTM}, s{sTM}, {WS_CELL + XOFF}")
    for i in range(NR):
        I(f"v_subrev_u32 v{q+4}, {33*CAP}, v{vRK1+i}")
        I(f"v_cmpx_gt_u32 vcc, {33*8}, v{q+4}")
        I(f"s_cbranch_execz L_PE{i}")
        I(f"v_mov_b32 v{q}, v{vSR+i}")
        I(f"v_mov_b32 v{q+2}, v{idr(i)}")
        I(f"v_bfe_u32 v{q+4}, v{vRK1+i}, 5, 3")
        I(f"v_lshlrev_b32 v{q+4}, 4, v{q+4}")
        I(f"v_mad_u32_u24 v{q+4}, v{vBK+i}, s{cR}, v{q+4}")
        I(f"buffer_store_dwordx4 {rr(q,4)}, v{q+4}, {sq(sWS)}, s{sTM} offen sc1")
        L(f"L_PE{i}")
        I("s_mov_b64 exec, -1")
    L("L_PEXTR")
    stamp(5)
    vA, vRK, vR1 = vACC, vACC + 16, vQ
    mk = lambda i, j: sM + 2*(4*i + j)
    def rec_ops(d, x, byte, eb, a, r1):
        return [f"v_add_u32_sdwa v{r1}, v{x}, v{eb} {SDW} src0_sel:BYTE_{byte} src1_sel:DWORD",
                f"v_lshrrev_b32 v{u(1)}, 28, v{d}",
                f"v_lshl_add_u32 v{r1}, v{u(1)}, 8, v{r1}",
                f"v_and_b32 v{u(1)}, 60, v{a}",
                f"v_and_b32 v{d}, 0xffff, v{d}",
                f"v_lshl_or_b32 v{d}, v{u(1)}, 19, v{d}"]
    def spin():
        I(f"s_add_u32 s{sSP}, s{sSP}, 1")
        I(f"s_cmp_gt_u32 s{sSP}, {opt('spin', 200000)}")
        I("s_cbranch_scc1 L_END")
        if opt("slp", 1): I(f"s_sleep {opt('slp', 1)}")
    xg = vCA
    def xload(tag):
        for i in range(4):
            I(f"s_mov_b64 exec, {sp(mk(i,3))}")
            I(f"s_cbranch_execz L_XL{tag}{i}")
            I(f"s_movk_i32 s10, {8192*i}")
            I(f"buffer_load_dwordx4 {rr(xg+4*i,4)}, v{pa}, {sq(sD2)}, s10 offen sc1")
            L(f"L_XL{tag}{i}")
        I("s_mov_b64 exec, -1")
    for i in range(4):
        c_ = vC + 4*i
        L(f"L_PW{i}")
        I(f"s_waitcnt vmcnt({3 - i + PY})")
        I(f"v_xor_b32 v{u(0)}, v{c_+3}, v{vTG}")
        for j in range(3): I(f"v_and_b32_sdwa v{vA+4*i+j}, v{c_+j}, s{sFM} {SDW} src0_sel:WORD_1 src1_sel:DWORD")
        I(f"v_cmp_lt_u32 vcc, s{sT}, v{u(0)}")
        for j in range(3): I(f"v_cmp_ne_u32 {sp(mk(i,j))}, 0, v{c_+j}")
        I(f"s_cbranch_vccnz L_RT{i}")
        if i == 3: stamp(6)
        for j in range(3):
            I(f"s_mov_b64 exec, {sp(mk(i,j))}")
            I(f"ds_add_rtn_u32 v{vRK+4*i+j}, v{vA+4*i+j}, v{one} offset:{HIST}")
        I("s_mov_b64 exec, -1")
        I(f"v_or_b32 v{vEM}, v{vEM}, v{c_+1}")
        if i == 3:
            I(f"v_or3_b32 v{u(2)}, v{vC+3}, v{vC+7}, v{vC+11}")
            I(f"v_or_b32 v{u(2)}, v{u(2)}, v{vC+15}")
            I(f"v_and_b32 v{u(2)}, 0x1000000, v{u(2)}")
            I(f"v_cmp_ne_u32 vcc, 0, v{u(2)}")
            I("s_cbranch_vccz L_XT1R")
            def xt1():
                if TS: I(f"v_writelane_b32 v{vTS}, 1, 62")
                for i in range(4):
                    I(f"v_and_b32 v{u(2)}, 0x1000000, v{vC+4*i+3}")
                    I(f"v_cmp_ne_u32 {sp(mk(i,3))}, 0, v{u(2)}")
                    I(f"s_bcnt1_i32_b64 s10, {sp(mk(i,3))}")
                    I(f"s_lshl2_add_u32 s{sXT}, s10, s{sXT}")
                xload("a")
                I(f"v_and_b32 v{u(2)}, 0x10000, v{vEM}")
                I(f"v_mov_b32 v{u(3)}, {FLAG}")
                I(f"v_cmpx_ne_u32 vcc, 0, v{u(2)}")
                I(f"ds_write_b32 v{u(3)}, v{one} offset:4")
                I("s_mov_b64 exec, 1")
                I(f"v_mov_b32 v{u(2)}, s{sXT}")
                I(f"ds_add_u32 v{u(3)}, v{u(2)} offset:8")
                I("s_mov_b64 exec, -1")
            xt1()
            L("L_XT1R")
        ro = [rec_ops(c_+j, c_+3, j, vEB+i, vA+4*i+j, vR1+4*i+j) for j in range(3)]
        e_ = vR1 + 4*i + 3
        put(ro[0])
        if JE:
            I(f"v_cndmask_b32 v{u(0)}, v{vFF}, v{vR1+4*i}, {sp(mk(i,0))}")
            I(f"v_max_u32 v{vR1+4*i}, v{vR1+4*i}, v{vET+i}")
        put(ro[1])
        if JE:
            I(f"v_mov_b32_dpp v{u(2)}, v{u(0)} quad_perm:[2,2,3,3] row_mask:0xf bank_mask:0xf")
            I(f"v_mov_b32_dpp v{e_}, v{u(0)} quad_perm:[0,0,1,1] row_mask:0xf bank_mask:0xf")
        if i < 3: put(ro[2])
        else:
            put(ro[2][:3])
            fill = [x.replace(f"v{u(1)}", f"v{vQD+3}") for x in ro[2][3:]]
        if JE: I(f"v_mov_b32_dpp v{e_}, v{u(2)} row_shr:4 row_mask:0xf bank_mask:0xa")
    I(f"v_mov_b32 v{u(9)}, {FLAG}")
    if OLP == 2: own_loads()
    if PFP == 2: x_prefetch()
    I("s_waitcnt lgkmcnt(0)")
    stamp("d0")
    I("s_barrier")
    stamp(7)
    def early(i):
        if not JE: return
        I(f"s_lshl_b32 m0, s{sWP}, 10")
        I(f"v_mov_b32 v{vEI}, v{vR1+4*i+3}")
        I(f"s_add_u32 m0, m0, {EARLY + 8192*i}")
        if JE < 4:
            I(f"s_mov_b32 exec_lo, {((1 << 2*JE) - 1) * 0x01010101:#x}")
            I("s_mov_b32 exec_hi, exec_lo")
        else: I("s_nop 0")
        I(f"buffer_load_dwordx4 {rr(vEI,2)}, {sq(sEP)}, 0 idxen offen{pol(opt('eep', ''))} lds")
        if JE < 4: I("s_mov_b64 exec, -1")
    EPOS = opt("epos", "0134")
    def epoint(k):
        for i in range(4):
            if int(EPOS[i]) == k: early(i)
    c, p, tot, sc = u(0), u(4), u(8), u(9)
    hh = vX
    own, to2, ex, z_, eh, el = u(10), u(11), u(12), u(13), u(14), u(15)
    SD = f"{SDW} src0_sel:WORD_0 src1_sel:WORD_0"
    HL = f"{SDW} src0_sel:WORD_0 src1_sel:WORD_1"
    I(f"ds_read_u16 v{own}, v{owna} offset:{HIST}")
    I(f"ds_read_u16 v{to2}, v{owna} offset:{HIST + 1024}")
    for ph in range(4):
        I(f"ds_read_b128 {rr(hh+4*ph,4)}, v{l16} offset:{HIST + 1024*ph}")
    I(f"ds_read_b32 v{vQD}, v{sc} offset:8")
    if OLP == 4: own_loads()
    epoint(0)
    I("s_cmp_lg_u32 s2, 0")
    I("s_cbranch_scc1 L_NOK")
    I(f"v_mov_b32 v{vQD+1}, s{sK}")
    I(f"v_mov_b32 v{vQD+2}, 0")
    I(f"buffer_store_dword v{vQD+1}, v{vQD+2}, {sq(sWS)}, 0 offen sc1")
    L("L_NOK")
    I("s_waitcnt lgkmcnt(5)")
    I(f"v_lshl_or_b32 v{own}, v{to2}, 16, v{own}")
    I(f"v_mov_b32 v{to2}, v{own}")
    I("s_waitcnt lgkmcnt(0)")
    stamp("d1")
    f2 = []
    for i in range(4):
        f2 += [f"v_add_u32_sdwa v{c+i}, v{hh+i}, v{hh+4+i} {SD}", f"v_add_u32_sdwa v{p+i}, v{hh+8+i}, v{hh+12+i} {SD}"]
    f2 += [f"v_add_u32 v{c+i}, v{c+i}, v{p+i}" for i in range(4)]
    wave_scan(to2, f2, half=True)
    put(f2)
    I(f"v_mul_u32_u24 v{tot}, v{c}, v{vMU}")
    for i in range(1, 4): I(f"v_mad_u32_u24 v{tot}, v{c+i}, v{vMU+i}, v{tot}")
    f2 = [f"v_sub_u32 v{ex}, v{to2}, v{own}", f"v_add_u32_sdwa v{eh}, v{to2}, v{to2} {HL}",
          f"v_add_u32_sdwa v{z_}, v{ex}, v{ex} {HL}", f"v_add_u32_sdwa v{el}, v{own}, v{own} {HL}",
          fill.pop(0), f"v_readfirstlane_b32 s{sMORE}, v{vQD}",
          f"v_permlane32_swap_b32 v{z_}, v{eh}", f"v_cndmask_b32 v{el}, 0, v{el}, {sp(sJ3)}",
          f"v_add_u32 v{z_}, v{z_}, v{eh}", fill.pop(0),
          f"v_add_u32 v{eh}, v{z_}, v{el}", fill.pop(0)]
    I(f"s_mov_b32 s{sJ3}, -1")
    I(f"s_mov_b32 s{sJ3+1}, 0")
    wave_scan(tot, f2)
    assert not f2
    stamp("d2")
    I(f"v_sub_u32_sdwa v{el}, v{eh}, v{own} {SDW} src0_sel:DWORD src1_sel:WORD_1")
    I(f"v_readlane_b32 s{sT}, v{tot}, 63")
    epoint(1)
    ASYM = opt("asym", 12)
    I(f"s_bfe_u32 s10, s{sT}, 0xe0002")
    I(f"s_lshr_b32 s{sT}, s{sT}, 16")
    I("s_lshr_b32 s11, s10, 1")
    I(f"s_add_u32 s11, s11, {4*ASYM}")
    I("s_and_b32 s11, s11, -128")
    I(f"s_lshr_b32 s{sF0}, s{sW}, 1")
    I(f"s_mul_i32 s{sF0}, s{sF0}, s10")
    I(f"s_sub_i32 s11, s11, {4*ASYM}")
    I(f"s_sub_i32 s{sF0}, s{sF0}, s{sT}")
    I(f"s_add_i32 s11, s11, s{sF0}")
    I(f"s_add_i32 s10, s10, s{sF0}")
    I(f"s_bitcmp1_b32 s{sW}, 0")
    I(f"s_cselect_b32 s{sEND}, s11, s{sF0}")
    I("s_cselect_b32 s10, s10, s11")
    I(f"v_cmp_gt_i32 vcc, s{sEND}, v{eh}")
    I(f"v_cmp_gt_i32 {sp(sTM)}, s10, v{eh}")
    f0, f1 = sWS0, sWS1
    I(f"s_bcnt1_i32_b32 s{f0}, vcc_lo")
    I(f"s_bcnt1_i32_b32 s10, s{sTM}")
    I(f"s_min_i32 s{f0}, s{f0}, s{hi0}")
    I(f"s_max_i32 s10, s10, s{lo1}")
    I(f"s_min_i32 s{f1}, s10, s{hi1}")
    stamp("d3")
    epoint(2)
    A01, A23, E01, E23, Z1 = sCI, sCUR, sR0, sCNT, sST
    I(f"v_readlane_b32 s{sT}, v{z_}, s{f0}")
    I(f"v_readlane_b32 s{Z1}, v{z_}, s{f1}")
    I(f"s_add_u32 s{sF0}, s{f0}, s{sWIN}")
    I(f"s_add_u32 s{sF1}, s{f1}, s{sWIN}")
    I(f"s_add_u32 s10, s{f0}, 32")
    I(f"s_add_u32 s11, s{f1}, 32")
    I(f"v_readlane_b32 s{A01}, v{ex}, s{f0}")
    I(f"v_readlane_b32 s{E01}, v{ex}, s{f1}")
    I(f"v_readlane_b32 s{A23}, v{ex}, s10")
    I(f"v_readlane_b32 s{E23}, v{ex}, s11")
    I(f"s_sub_u32 s{sEND}, s{Z1}, s{sT}")
    I(f"s_add_u32 s10, s{sEND}, 255")
    if opt("flr", 1):
        I(f"s_sub_i32 s11, s{f1}, 16")
        I(f"s_max_i32 s11, s11, s{f0}")
        I(f"v_readlane_b32 s11, v{z_}, s11")
        I(f"s_add_u32 vcc_lo, s{sEND}, 127")
        I(f"s_and_b32 vcc_hi, vcc_lo, 127")
        I(f"s_add_u32 vcc_hi, vcc_hi, s{sMORE}")
        I(f"s_cmp_lt_u32 vcc_hi, 55")
        I(f"s_cselect_b32 vcc_lo, vcc_lo, s10")
        I(f"s_sub_u32 s11, s11, s{sT}")
        I(f"s_add_u32 s11, s11, s{sMORE}")
        I(f"s_lshl_b32 s11, s11, 1")
        I(f"s_and_b32 vcc_lo, vcc_lo, -256")
        I(f"s_cmp_le_u32 s11, vcc_lo")
        I(f"s_cselect_b32 s10, vcc_lo, s10")
    I("s_lshr_b32 s10, s10, 8")
    I("s_lshl_b32 s10, s10, 7")
    I(f"s_sub_u32 s10, s10, s{sMORE}")
    I("s_max_i32 s10, s10, 0")
    I(f"s_add_u32 s{sT}, s{sT}, s10")
    I(f"s_add_u32 s10, s{f0}, 16")
    I(f"s_min_u32 s10, s10, s{f1}")
    I(f"s_sub_i32 s11, s{f1}, 16")
    inl, inh, mo = sTM, sTM + 2, sMSK
    I(f"v_cmp_ge_u32 {sp(inl)}, s{sT}, v{el}")
    I(f"v_cmp_ge_u32 {sp(inh)}, s{sT}, v{eh}")
    I(f"v_cmp_gt_i32 vcc, s10, v{ownn}")
    I(f"v_cmp_gt_i32 {sp(sA)}, s11, v{ownn}")
    I(f"v_cmp_le_u32 {sp(mo)}, s{f0}, v{ownn}")
    I(f"v_cmp_gt_u32 {sp(sJ3)}, s{f1}, v{ownn}")
    I(f"s_and_b64 {sp(inl)}, {sp(inl)}, vcc")
    I(f"s_and_b64 {sp(inh)}, {sp(inh)}, vcc")
    I(f"s_or_b64 {sp(inl)}, {sp(inl)}, {sp(sA)}")
    I(f"s_or_b64 {sp(inh)}, {sp(inh)}, {sp(sA)}")
    I(f"s_bcnt1_i32_b32 s{sB0E}, s{inl}")
    I(f"s_bcnt1_i32_b32 s10, s{inh}")
    I(f"s_bcnt1_i32_b32 s11, s{inl+1}")
    I(f"s_bcnt1_i32_b32 s{sSH}, s{inh+1}")
    I(f"v_readlane_b32 s{f0}, v{ex}, s{sB0E}")
    I(f"v_readlane_b32 s10, v{ex}, s10")
    I("s_add_u32 s11, s11, 32")
    I(f"s_add_u32 s{sT}, s{sSH}, 32")
    I(f"v_readlane_b32 s{f1}, v{ex}, s11")
    I(f"v_readlane_b32 s11, v{ex}, s{sT}")
    I(f"v_mov_b32 v{c}, s{sN}")
    I(f"v_cndmask_b32 v{c+1}, 0, v{c}, {sp(inl)}")
    I(f"v_cndmask_b32 v{c}, 0, v{c}, {sp(inh)}")
    I(f"s_and_b64 {sp(mo)}, {sp(mo)}, {sp(sJ3)}")
    Q01, Q23 = f0, f1
    I(f"s_pack_lh_b32_b16 s{Q01}, s{f0}, s10")
    I(f"s_pack_lh_b32_b16 s{Q23}, s{f1}, s11")
    I(f"v_lshl_or_b32 v{c}, v{c}, 16, v{c+1}")
    I(f"s_sub_u32 s{sT}, s{sL}, {R0 - BIAS}")
    I(f"s_pack_ll_b32_b16 s{sT}, s{sT}, s{sT}")
    def bases(lo01, lo23, hi01, hi23, d, keep=None):
        I(f"s_sub_u32 s10, s{hi01}, s{lo01}")
        I(f"s_sub_u32 s11, s{hi23}, s{lo23}")
        I(f"s_mul_i32 s10, s10, 0x10001")
        I(f"s_lshl_b32 vcc_lo, s10, 16")
        I(f"s_pack_hh_b32_b16 s10, s10, s10")
        I(f"s_lshl_b32 vcc_hi, s11, 16")
        I(f"s_add_u32 vcc_hi, vcc_hi, s10")
        if keep is not None:
            I(f"s_add_u32 s{keep}, vcc_hi, s11")
            I(f"s_lshr_b32 s{keep}, s{keep}, 16")
            I(f"s_sub_u32 s{sEND}, s{sEND}, s{keep}")
            I(f"s_cmp_gt_u32 s{sEND}, s{keep}")
            I(f"s_cselect_b32 s{SWP}, {LWB * 0x10001:#x}, 0")
            I(f"s_add_u32 s{sT}, s{sT}, s{SWP}")
        I(f"s_sub_u32 s10, s{sT}, s{lo01}")
        I(f"s_sub_u32 s11, s{sT}, s{lo23}")
        I("s_add_u32 s10, s10, vcc_lo")
        I("s_add_u32 s11, s11, vcc_hi")
        I(f"v_mov_b32 v{d}, s10")
        I(f"v_mov_b32 v{d+1}, s11")
    LEN0, SWP = sJ3, sJ3 + 1
    bases(A01, A23, Q01, Q23, p, LEN0)
    I(f"s_add_u32 s{sT}, s{sT}, {LWB * 0x10001:#x}")
    I(f"s_sub_u32 s{sT}, s{sT}, s{SWP}")
    I(f"s_sub_u32 s{sT}, s{sT}, s{SWP}")
    bases(Q01, Q23, E01, E23, p + 2)
    I(f"v_bfi_b32 v{p}, v{c}, v{p}, v{p+2}")
    I(f"v_bfi_b32 v{p+1}, v{c}, v{p+1}, v{p+3}")
    I(f"s_mov_b32 exec_hi, 0")
    I(f"v_mov_b32 v{p+1}, v{p}")
    I(f"s_mov_b64 exec, {sp(mo)}")
    I(f"v_add_u32 v{ex}, v{ex}, v{p+1}")
    assert LWB & 0x80
    I(f"s_bfe_u32 s10, s{SWP}, 0x10007")
    I(f"s_lshl1_add_u32 s10, s{sW}, s10")
    I("s_lshl_b32 s10, s10, 2")
    I(f"v_cndmask_b32 v{c}, 4, 0, {sp(inl)}")
    I(f"ds_write_b16 v{owna}, v{ex} offset:{HIST + 2}")
    I(f"ds_write_b16_d16_hi v{owna}, v{ex} offset:{HIST + 1024 + 2}")
    I("s_mov_b32 exec_hi, 0")
    I(f"v_xor_b32 v{c}, s10, v{c}")
    I(f"ds_write_b32 v{mapa}, v{c}")
    I("s_mov_b64 exec, -1")
    stamp("d5")
    I(f"s_min_u32 s10, s{sEND}, s{LEN0}")
    I(f"s_max_u32 s{LEN0}, s{sEND}, s{LEN0}")
    I(f"s_mov_b32 s{sEND}, s10")
    I(f"s_add_u32 s10, s{LEN0}, s{sMORE}")
    I(f"s_mul_i32 s11, s{Z1}, {LWB * 65536 // BIAS}")
    I("s_lshr_b32 s11, s11, 16")
    I("s_max_u32 s10, s10, s11")
    I(f"s_cmp_lt_u32 s10, {LWB}")
    I("s_cbranch_scc1 L_LFIT")
    I(f"ds_write_b32 v{sc}, v{one}")
    L("L_LFIT")
    I(f"s_cmp_eq_u32 s{sMORE}, 0")
    I("s_cbranch_scc1 L_XCNR")
    I(f"s_sub_u32 s10, s{sL}, {R0 - BIAS}")
    I(f"s_add_u32 s11, s10, s{LEN0}")
    I(f"v_mov_b32 v{u(0)}, s11")
    I(f"s_add_u32 s11, s10, s{sEND}")
    I(f"s_add_u32 s11, s11, {LWB}")
    I(f"v_mov_b32 v{u(1)}, s11")
    I(f"s_lshl_b32 s10, s{sW}, 3")
    I(f"v_mov_b32 v{u(2)}, s10")
    I(f"ds_write_b64 v{u(2)}, {rr(u(0),2)} offset:{CNT}")
    L("L_XCNR")
    epoint(3)
    put(fill)
    I("s_waitcnt lgkmcnt(0)")
    stamp(8)
    I("s_barrier")
    stamp(9)
    I(f"ds_read_b64 {rr(u(14),2)}, v{sc}")
    for i in range(4):
        for j in range(3):
            I(f"ds_read_u16 v{vA+4*i+j}, v{vA+4*i+j} offset:{HIST + 2}")
    epoint(4)
    def ntiles(l0, l1):
        I(f"s_add_u32 s10, s{l0}, 127")
        I("s_lshr_b32 s10, s10, 7")
        I("s_lshl1_add_u32 s10, s10, -1")
        I(f"s_add_u32 s11, s{l1}, 127")
        I("s_lshr_b32 s11, s11, 6")
        I("s_and_b32 s11, s11, -2")
        I(f"s_max_i32 s{sN}, s10, s11")
        I(f"s_cselect_b32 s10, s{l0}, s{l1}")
        I("s_sub_u32 s10, s10, 1")
        I(f"s_andn2_b32 s{sHF}, 64, s10")
    I(f"s_add_u32 s{sB0E}, s{sB0E}, s{sWIN}")
    I(f"s_add_u32 s11, s{sSH}, s{sWIN}")
    I(f"s_and_b32 s10, s11, 15")
    I(f"s_cmp_lt_u32 s11, s{sB0E}")
    I(f"s_cselect_b32 s{sSH}, s10, 16")
    I(f"s_cmp_lg_u32 s{SWP}, 0")
    I(f"s_cselect_b32 s{sWS1}, s{sF0}, s11")
    I(f"s_cselect_b32 s{sWIN}, s{sF0}, s{sB0E}")
    I(f"s_cselect_b32 s{sF0}, s11, s{sF0}")
    I(f"s_cselect_b32 s{sB0E}, s{sF1}, s{sB0E}")
    I(f"s_cselect_b32 s{sF1}, s11, s{sF1}")
    I(f"s_min_u32 s{sWS0}, s{sF0}, 192")
    I(f"s_min_u32 s{sWS1}, s{sWS1}, 192")
    I(f"s_mov_b32 s{sST}, s{sMORE}")
    I("s_waitcnt lgkmcnt(12)")
    I(f"v_cmp_ne_u32 vcc, 0, v{u(14)}")
    I(f"v_readfirstlane_b32 s{sMORE}, v{u(15)}")
    I("s_cbranch_vccnz L_OVF")
    for i in range(4):
        for j in range(3):
            s_ = 4*i + j
            if j == 0: I("s_waitcnt lgkmcnt(9)")
            I(f"s_mov_b64 exec, {sp(mk(i,j))}")
            I(f"v_add_u32 v{vA+s_}, v{vA+s_}, v{vRK+s_}")
            I(f"ds_write2st64_b32 v{vA+s_}, v{vC+s_}, v{vR1+s_} {W2}")
    I("s_mov_b64 exec, -1")
    ntiles(LEN0, sEND)
    stamp("d6")
    sO0, sO1, sNT, sOK, sCM = sOUT, sD2, sM + 8, sM + 9, sM + 12
    def epi_prep(t0, t1):
        I(f"s_lshl_b32 s{sNT}, s{sW}, 7")
        I(f"s_add_u32 s{sNT}, s{sNT}, {NT}")
        I(f"v_mov_b32 v{t0}, s{sWS0}")
        I("s_mov_b32 exec_lo, 0xffff0000")
        I(f"v_mov_b32 v{t0}, s{sWS1}")
        I("s_mov_b64 exec, 0xffffffff") if False else None
        I("s_mov_b32 exec_lo, -1")
        I("s_mov_b32 exec_hi, 0")
        I(f"v_sub_u32 v{t1}, v{lane}, v{t0}")
        I(f"v_and_b32 v{t1}, 15, v{t1}")
        I(f"v_add_lshl_u32 v{t1}, v{t1}, v{t0}, 5")
        I(f"v_lshl_add_u32 v{t0}, v{lane}, 2, s{sNT}")
        I(f"ds_write_b32 v{t0}, v{t1}")
        I("s_mov_b32 exec_hi, -1")
        I(f"s_mul_i32 s10, s{sB}, {BN}")
        for d, lo_, hi_, k in ((sO1, sWIN, sF1, 1), (sO0, sF0, sB0E, 0)):
            I(f"s_add_u32 s11, s10, s{lo_}")
            I(f"s_add_u32 s{d+2}, s10, s{hi_}")
            I(f"s_min_u32 s11, s11, {N}")
            I(f"s_min_u32 s{d+2}, s{d+2}, {N}")
            I(f"s_sub_u32 s{d+2}, s{d+2}, s11")
            I("s_lshl_b32 s11, s11, 7")
            I(f"s_lshl_b32 s{d+2}, s{d+2}, 7")
            I(f"s_add_u32 s{d}, s{sOUT}, s11")
            I(f"s_addc_u32 s{d+1}, s{sOUT+1}, 0")
            I(f"s_mul_i32 s{sOK+k}, s{lo_}, -128")
        I(f"s_and_b32 s10, s{sSH}, 12")
        I("s_lshl_b32 s10, s10, 2")
        I(f"s_bfm_b64 {sp(sCM)}, 16, s10")
    L("L_CA")
    for x_ in trw(vWA, 0): I(x_)
    I(f"s_cmp_eq_u32 s{sXT}, 0")
    I("s_cbranch_scc1 L_XT2R")
    I(f"s_waitcnt vmcnt({(4 if JE else 0) + (4 if OLP in (2, 4) else 0)})")
    L("L_XT2")
    I(f"s_mov_b64 {sp(sTM)}, 0")
    for i in range(4):
        I(f"v_cmp_ne_u32 vcc, s{sK}, v{xg+4*i+1}")
        I(f"s_and_b64 vcc, vcc, {sp(mk(i,3))}")
        I(f"s_or_b64 {sp(sTM)}, {sp(sTM)}, vcc")
    I("s_cbranch_scc1 L_XT2B")
    I(f"s_cmp_eq_u32 s{sSKIP}, 0")
    I("s_cbranch_scc1 L_XT2R")
    for i in range(4):
        g_ = xg + 4*i
        I(f"s_mov_b64 exec, {sp(mk(i,3))}")
        I(f"s_cbranch_execz L_XS{i}")
        I(f"v_bfe_u32 v{g_+1}, v{g_}, 18, 8")
        I(f"v_lshlrev_b32 v{g_+1}, 2, v{g_+1}")
        I(f"v_add_u32 v{g_+3}, {MAP}, v{g_+1}")
        I(f"ds_read_b32 v{g_+3}, v{g_+3}")
        put(rec_ops(g_, g_+2, 0, vEB+i, g_+1, g_+2))
        I("s_waitcnt lgkmcnt(0)")
        I(f"ds_add_rtn_u32 v{g_+3}, v{g_+3}, v{one} offset:{CNT}")
        I("s_waitcnt lgkmcnt(0)")
        I(f"ds_write2st64_b32 v{g_+3}, v{g_}, v{g_+2} {W2}")
        L(f"L_XS{i}")
    I("s_mov_b64 exec, -1")
    L("L_XT2R")
    aw, al, ab = vEO, vEO + 1, vEO + 2
    I(f"s_lshl_b32 s{sTM}, s{sWS0}, 5")
    I(f"s_lshl_b32 s{sTM+1}, s{sWS1}, 5")
    I(f"s_mov_b32 vcc_lo, 0xff00ff00")
    I(f"s_mov_b32 vcc_hi, 0xff00ff00")
    I(f"v_mov_b32 v{aw}, s{sTM+1}")
    I(f"v_mov_b32 v{al}, s{sTM}")
    I(f"v_cndmask_b32 v{aw}, v{aw}, v{al}, vcc")
    I(f"v_and_b32 v{al}, 4, v{lane}")
    I(f"v_lshlrev_b32 v{al}, 6, v{al}")
    I(f"v_lshl_add_u32 v{al}, v{vcS}, 2, v{al}")
    I(f"v_sub_u32 v{al}, v{al}, v{aw}")
    I(f"v_and_b32 v{ab}, 48, v{lane}")
    I(f"s_movk_i32 s{sTM}, {(PL-32)//8}")
    I(f"v_mad_u32_u24 v{ab}, v{vcS}, s{sTM}, v{ab}")
    I(f"s_mov_b32 s{sTM}, {OWN}")
    I(f"v_add3_u32 v{ab}, v{ab}, v{aw}, s{sTM}")
    I(f"v_and_b32 v{aw}, 0x1ff, v{al}")
    I(f"v_add_u32 v{aw}, v{aw}, v{ab}")
    I(f"v_add_u32 v{al}, 0x80, v{al}")
    I(f"v_and_b32 v{al}, 0x1ff, v{al}")
    I(f"v_add_u32 v{al}, v{al}, v{ab}")
    zero16 = lambda d: f"v_mfma_f32_32x32x16_bf16 {rr(d,16)}, {rr(vS,4)}, {rr(vS,4)}, 0"
    for i in range(2): I(f"v_mov_b64 {rr(vS+2*i,2)}, 0")
    I(f"v_lshrrev_b32 v{u(0)}, 2, v{lane}")
    I(f"v_and_b32 v{u(0)}, 12, v{u(0)}")
    I(f"v_subrev_u32 v{u(0)}, s{sSH}, v{u(0)}")
    I(f"v_mov_b32 v{u(1)}, {f2u(1e-6):#x}")
    I(zero16(NUM(1,0)))
    for i in range(4): I(f"v_cmp_ne_u32 {sp(sM+16+2*i)}, {-i}, v{u(0)}")
    for i in range(4): I(f"v_cndmask_b32 v{DEN(1,0)+i}, 0, v{u(1)}, {sp(sM+16+2*i)}")
    for n in range(1, 4):
        for i in range(2): I(f"v_mov_b64 {rr(DEN(1,n)+2*i,2)}, {rr(DEN(1,0)+2*i,2)}")
    I(f"s_cmp_ge_u32 s{sWP}, 4")
    I("s_cbranch_scc1 L_EP0")
    epi_prep(u(2), u(3))
    L("L_EP0")
    stamp("d7")
    I("s_waitcnt vmcnt(0) lgkmcnt(0)")
    stamp(10)
    I("s_barrier")
    def lens_from_cnt(t):
        I(f"s_lshl_b32 s10, s{sW}, 3")
        I(f"v_mov_b32 v{t}, s10")
        I(f"ds_read_b64 {rr(t,2)}, v{t} offset:{CNT}")
        I("s_waitcnt lgkmcnt(0)")
        I(f"v_readfirstlane_b32 s{sTM}, v{t}")
        I(f"v_readfirstlane_b32 s{sTM+1}, v{t+1}")
        I(f"s_sub_u32 s10, s{sL}, {R0 - BIAS}")
        I(f"s_sub_u32 s{sTM}, s{sTM}, s10")
        I(f"s_sub_u32 s{sTM+1}, s{sTM+1}, s10")
        I(f"s_sub_u32 s{sTM+1}, s{sTM+1}, {LWB}")
        ntiles(sTM, sTM + 1)
    I(f"s_mov_b32 s10, {f2u(1e-6):#x}")
    I(f"ds_read_b128 {rr(vQD,4)}, v{vARX}")
    I(f"ds_read_b32 v{vEI}, v{vARE}")
    stamp(11)
    for t_ in range(2):
        for s in range(2): I(f"ds_read_b128 {rr(vX+8*t_+4*s,4)}, v{(aw, al)[t_]} offset:{64*s}")
    I("s_waitcnt lgkmcnt(4)")
    STAG = opt("stag", 1)
    if STAG != 2:
        I(f"s_cmp_ge_u32 s{sWP}, 4")
        I("s_cbranch_scc1 L_LATE0")
    put(dma_tile())
    L("L_LATE0")
    I(f"s_mov_b32 s{sTM}, {f2u(-LOG2E):#x}")
    I(f"s_mov_b32 s{sTM+1}, s{sTM}")
    for t_ in range(2):
        for s in range(2):
            I(f"s_waitcnt lgkmcnt({3 - 2*t_ - s})")
            for n in range(4):
                D = vQ + 8*n + 4*t_
                I(m16(D, vX+8*t_+4*s, vWA+8*n+4*s, D if s else None))
    if STAG == 3:
        I(f"s_cmp_lt_u32 s{sWP}, 4")
        I("s_cbranch_scc1 L_HAD1")
        put(dma_tile())
        L("L_HAD1")
    I("s_mov_b32 s11, s10")
    for i in range(8): I(f"v_mov_b64 {rr(DEN(0,0)+2*i,2)}, {sp(10)}")
    for i in range(16): I(f"v_pk_mul_f32 {rr(vQ+2*i,2)}, {rr(vQ+2*i,2)}, {sp(sTM)}")
    I(zero16(NUM(0,0)))
    for i in range(16): I(f"v_cvt_pk_bf16_f32 v{vCA+i}, v{vQ+2*i}, v{vQ+2*i+1}")
    for i in range(16): I(f"v_permlane32_swap_b32 v{vCA+16+i}, v{vCA+i}")
    I(f"s_mov_b32 s{sCI}, -1")
    I(f"s_mov_b64 {sp(sMSK)}, 0")
    I(f"s_mov_b32 s{sR0}, 0")
    I(f"s_mov_b32 s{sCNT}, 0")
    if STAG:
        I(f"s_cmp_lt_u32 s{sWP}, 4")
        I("s_cbranch_scc1 L_HAD0")
        if STAG == 1: put(dma_tile())
        epi_prep(u(2), u(3))
        L("L_HAD0")
    I(f"s_cmp_eq_u32 s{sST}, 0")
    I("s_cbranch_scc1 L_GO")
    lens_from_cnt(u(0))
    L("L_GO")
    for m in range(2): I(f"ds_read_u16 v{vEA+m}, v{vARO} offset:{64*m}")
    I(f"ds_read_b128 {rr(vQD,4)}, v{vARX} offset:{LWB}")
    I(f"ds_read_b32 v{vEI}, v{vARE} offset:{LWB}")
    I(f"s_lshr_b32 s10, s{sW}, 1")
    I("s_lshl_b32 s10, s10, 9")
    I(f"s_add_u32 s10, s10, {PRG}")
    assert PRG % 32 == 0
    I(f"v_lshl_add_u32 v{vPA}, v{lane}, 3, s10")
    I(f"s_bitcmp1_b32 s{sW}, 0")
    I(f"s_cselect_b32 s{sSG}, -1, 1")
    I(f"s_mul_i32 s10, s{sSG}, {-(1 << (25 if F2 else 24)) & 0xffffffff:#x}")
    I("s_or_b32 s10, s10, 0xdddd")
    I(f"v_mov_b32 v{vIDX}, s10")
    I(f"s_max_i32 s10, s{sN}, 1")
    I("s_sub_u32 s10, s10, 1")
    I(f"s_mul_i32 s10, s{sSG}, s10")
    I("s_lshl_b32 s10, s10, 24")
    I(f"v_mov_b32 v{u(0)}, s10")
    I(f"ds_add_u32 v{vPA}, v{u(0)}")
    I(f"s_movk_i32 s{sINC}, 128")
    I(f"s_movk_i32 s{sINC+1}, 128")
    I(f"v_mov_b32 v{vC1}, 0")
    I("s_mov_b32 exec_hi, 0")
    I(f"v_add_u32 v{vC1}, 0x200, v{vcEO}")
    I("s_mov_b32 exec_hi, -1")
    I("s_waitcnt lgkmcnt(0)")
    put(eafix())
    stamp(12)
    I("s_waitcnt vmcnt(0)")
    stamp(13)
    cstamp(56)
    for m in range(2): I(f"ds_read_b128 {rr(vEO+4*m,4)}, v{vEA+m}")
    for m, s in ORD: I(xread(m, s))
    I(f"s_cmp_lt_i32 s{sN}, 1")
    I("s_cbranch_scc1 L_DONE")
    g = g_mfmas(vP, 0, 0)
    I("s_waitcnt lgkmcnt(4)")
    for x_ in g[:4]: I(x_)
    I("s_waitcnt lgkmcnt(0)")
    for x_ in g[4:]: I(x_)
    I(f"s_mov_b32 s{sT}, 1")
    I(f"s_cmp_eq_u32 s{sN}, 1")
    I("s_cbranch_scc1 L_LT0")
    put(dma_tile())
    for cp in ((1, 0) if FAIR else (0,)):
        sw = lambda par: [f"s_cmp_ge_i32 s{sRM}, {opt('fth', 1)}", f"s_cbranch_scc{1-cp} L_PB{par}{1-cp}", f"L_PB{par}{cp}:"] if FAIR and (par == 0 or not F2) else []
        body = phase(0, 0, cp) + sw(0) + phase(0, 1, cp) + [f"s_cmp_ge_u32 s{sT}, s{sN}", "s_cbranch_scc1 L_LT1"]
        body += phase(1, 0, cp) + sw(1) + phase(1, 1, cp) + [f"s_cmp_lt_u32 s{sT}, s{sN}", f"s_cbranch_scc1 L_LOOP{cp}"]
        check_body(body)
        DBG = opt("dbg", "")
        if "nodma" in DBG: body = [b for b in body if not b.startswith("buffer_load")]
        if "dropS" in DBG: body = [b for b in body if not b.startswith("v_smfmac")]
        if "halfrcp" in DBG: body = [b for b in body if not (b.startswith("v_rcp") and int(b.split("v")[-1]) & 1)]
        if "droppk" in DBG: body = [b for b in body if not b.startswith("v_pk_mul")]
        if "halfx" in DBG: body = [b for b in body if not (b.startswith("v_mfma") and (f"v[{vX+4}:" in b or f"v[{vX+12}:" in b))]
        if "nolds" in DBG: body = [b for b in body if not (b.startswith("ds_read_b128") and f"v{vAX}" in b)]
        if opt("al", 0): body = align8(body, opt("al", 0))
        emit(".p2align 6")
        if opt("sh4", 0): I("s_nop 0")
        L(f"L_LOOP{cp}")
        put(body)
        I("s_branch L_LT0")
    if opt("cpe", 0):
        I("s_branch L_LT0")
        for cp in ((1, 0) if FAIR else (0,)):
            for par in range(2):
                L(f"L_CE{par}{cp}")
                I(f"s_getpc_b64 {sp(sA)}")
                I(f"v_and_b32 v{vEI}, 0xfc, v{vPA}")
                I(f"v_lshlrev_b32 v{vEI}, 5, v{vEI}")
                I(f"global_load_dword v{vEI}, v{vEI}, {sp(sA)}")
                I(f"s_branch L_ND{par}{cp}")
    assert STAG
    e = lambda i: vCA + i
    xd = vWV
    ZR = [vP, vWV + 16]
    nd = lambda w, i: e(16 + 4*w + i)
    sO = [sO0, sO1]
    wu = [f"ds_read_b64_tr_b16 {rr(vWB+8*n+4*s+2*uu,2)}, v{e(1)} offset:{(32*s + 8*uu)*WR + 32*n}" for s in range(2) for n in range(4) for uu in range(2)]
    lid = [f"v_mbcnt_lo_u32_b32 v{lane}, -1, 0", f"v_mbcnt_hi_u32_b32 v{lane}, -1, v{lane}", f"v_and_b32 v{vcS}, 24, v{vPA}"]
    a1 = [f"v_and_b32 v{e(0)}, 48, v{lane}", f"v_and_b32 v{e(3)}, 15, v{lane}",
          f"v_add_u32 v{e(5)}, s{sNT}, v{e(0)}", f"v_lshl_add_u32 v{e(6)}, v{e(3)}, 2, s{sNT}"]
    a1 += [f"ds_read_b128 {rr(nd(w,0),4)}, v{e(5)} offset:{64*w}" for w in range(2)]
    a1 += [f"ds_read2_b32 {rr(e(8),2)}, v{e(6)} offset0:0 offset1:16",
           f"v_bfe_u32 v{e(1)}, v{lane}, 2, 3", f"v_lshrrev_b32 v{e(2)}, 5, v{lane}", f"v_lshl_add_u32 v{e(1)}, v{e(2)}, 4, v{e(1)}",
           f"v_mul_u32_u24 v{e(1)}, {WR}, v{e(1)}", f"s_mov_b32 s10, {WUI}", f"v_add3_u32 v{e(1)}, v{e(1)}, v{vcS}, s10"]
    a1 += wu[:12]
    a1 += [f"s_movk_i32 s10, {(PL-32)//8}", f"v_mad_u32_u24 v{e(0)}, v{vcS}, s10, v{e(0)}",
           f"s_mov_b32 s10, {OWN}", f"v_lshl_add_u32 v{e(5)}, v{e(3)}, 3, s10"]
    a1 += [f"v_lshl_add_u32 v{e(10+w)}, v{e(3)}, 3, s{sOK+w}" for w in range(2)]
    a1 += ["s_waitcnt lgkmcnt(8)"] + wu[12:]
    a2 = []
    for w in range(2):
        for i in range(4):
            a2 += [f"v_add_u32 v{e(12)}, v{nd(w,i)}, v{e(5)}", f"ds_read_b64 {rr(xd+8*w+2*i,2)}, v{e(12)} offset:{i*(PL-32)}"]
    for w in range(2):
        a2 += [f"v_add3_u32 v{e(8+w)}, v{e(8+w)}, v{e(0)}, s10"]
        a2 += [f"ds_read_b128 {rr(vX+8*w+4*s,4)}, v{e(8+w)} offset:{64*s}" for s in range(2)]
    def unp(w, n): return [(f"v_and_b32 v{ZR[w]+4*n+i}, 0xffff0000, v{xd+8*w+2*i+(n>>1)}" if n & 1 else
                            f"v_lshlrev_b32 v{ZR[w]+4*n+i}, 16, v{xd+8*w+2*i+(n>>1)}") for i in range(4)]
    blk = [(w, n) for w in range(2) for n in range(4)]
    a3 = [["s_waitcnt lgkmcnt(0)"] + unp(0, 0) + unp(0, 1)]
    for k, (w, n) in enumerate(blk):
        a3[-1] += [m16(ZR[w]+4*n, vX+8*w, vWB+8*n, ZR[w]+4*n)]
        a3.append((unp(*blk[k+2]) if k + 2 < 8 else []) + [f"v_lshl_add_u32 v{nd(w,n)}, v{nd(w,n)}, 2, v{e(10+w)}",
                  m16(ZR[w]+4*n, vX+8*w+4, vWB+8*n+4, ZR[w]+4*n)])
        if k < 7: a3.append([])
    ME = opt("me", 0)
    if ME:
        for par in range(2):
            L(f"L_LB{par}")
            put(last_tile(par, 0, only_b=True))
            I("s_branch L_DONE")
    for par in range(2):
        L(f"L_LT{par}")
        I(f"s_cmp_lg_u32 s{sHF}, 0")
        I(f"s_cbranch_scc1 L_LH{par}")
        for half in range(2):
            if half: L(f"L_LH{par}")
            put(last_tile(par, half, (lid + a1, a2, a3) if ME else None))
            I("s_branch L_EPB" if ME else "s_branch L_DONE")
    L("L_DONE")
    put(lid)
    I(f"s_cmp_lg_u32 s{sMORE}, 0")
    I("s_cbranch_scc1 L_SLOW")
    L("L_EPI")
    I("s_waitcnt lgkmcnt(0)")
    put(a1 + a2 + sum(a3, []))
    L("L_EPB")
    stamp(14)
    cstamp(57)
    I(f"s_setprio {opt('epr', 0)}")
    I(f"s_mov_b64 exec, {sp(sCM)}")
    I(f"s_and_b32 s11, s{sSH}, 19")
    I("s_nop 2")
    for i in range(4):
        I(f"s_cmp_eq_u32 s11, {i}")
        I(f"s_cbranch_scc1 L_NS{i}")
    L("L_NSR")
    I("s_mov_b64 exec, -1")
    for w in range(2):
        for k in range(16): I(f"v_rcp_f32 v{DEN(w,0)+k}, v{DEN(w,0)+k}")
        for k in range(0, 16, 2): I(f"v_pk_fma_f32 {rr(NUM(w,0)+k,2)}, {rr(NUM(w,0)+k,2)}, {rr(DEN(w,0)+k,2)}, {rr(ZR[w]+k,2)}")
        for i in range(4):
            for h in range(2): I(f"v_cvt_pk_bf16_f32 v{DEN(w,0)+2*i+h}, v{NUM(w,2*h)+i}, v{NUM(w,2*h+1)+i}")
            for h in range(2):
                I(f"v_pk_max_f16 v{DEN(w,0)+2*i+h}, v{DEN(w,0)+2*i+h}, v{xd+8*w+2*i+h}")
            I(f"buffer_store_dwordx2 {rr(DEN(w,0)+2*i,2)}, v{nd(w,i)}, {sq(sO[w])}, 0 offen{pol(OP)}")
    stamp("e2")
    stamp_out()
    L("L_END")
    I("s_endpgm")
    for i in range(4):
        L(f"L_NS{i}")
        for k in range(8): I(f"v_add_f32 v{vACC+4*k+i}, v{vACC+4*k+i}, v{vACC+32+4*k+i}")
        I("s_branch L_NSR")
    for i in range(4):
        L(f"L_RT{i}")
        I("s_waitcnt vmcnt(0)")
        spin()
        for k in range(i, 4): poll_load(k)
        I("s_waitcnt vmcnt(0)")
        I(f"s_branch L_PW{i}")
    L("L_XT2B")
    spin()
    xload("b")
    I("s_waitcnt vmcnt(0)")
    I("s_branch L_XT2")
    L("L_OVF")
    I(f"s_mov_b32 s{sSKIP}, 0")
    I(f"s_mov_b32 s{sN}, 0")
    I(f"s_mov_b32 s{sST}, 0")
    I(f"s_mov_b32 s{sMORE}, 4")
    I("s_waitcnt lgkmcnt(0)")
    I("s_branch L_CA")
    q = vCA
    L("L_POVF")
    I("s_movk_i32 s11, 1986")
    for i in range(4):
        I(f"v_mul_u32_u24 v{q+i}, s11, v{vHS+i}")
        I(f"v_lshrrev_b32 v{q+i}, 16, v{q+i}")
    I(f"v_add_u32 v{q+5}, v{q}, v{q+1}")
    I(f"v_add_u32 v{q+6}, v{q+5}, v{q+2}")
    I(f"v_add_u32 v{q+7}, v{q+6}, v{q+3}")
    I(f"v_mov_b32 v{q+8}, v{q+7}")
    wave_scan(q + 8)
    I("s_nop 0")
    I(f"v_sub_u32 v{q+4}, v{q+8}, v{q+7}")
    I(f"v_add_u32 v{q+7}, v{q+4}, v{q+6}")
    I(f"v_add_u32 v{q+6}, v{q+4}, v{q+5}")
    I(f"v_add_u32 v{q+5}, v{q+4}, v{q}")
    for i in range(4): I(f"v_lshl_or_b32 v{q+4+i}, v{q+i}, 16, v{q+4+i}")
    I(f"v_add_u32 v{q+8}, {HDR}, v{l16}")
    I(f"ds_write_b128 v{q+8}, {rr(q+4,4)}")
    I("s_lshl_b32 s10, s2, 10")
    I(f"s_add_u32 s10, s10, {WS_HD}")
    I(f"buffer_store_dwordx4 {rr(q+4,4)}, v{l16}, {sq(sWS)}, s10 offen sc1")
    for i in range(8):
        I(f"v_and_b32 v{q+10+i}, 0x3fc, v{vHA+i}")
        I(f"v_add_u32 v{q+10+i}, {HDR}, v{q+10+i}")
        I(f"ds_read_u16 v{q+10+i}, v{q+10+i}")
    I("s_waitcnt lgkmcnt(0)")
    for i in range(4):
        I(f"v_cmpx_lt_u32 vcc, {33*(CAP+8)}, v{vHD+i}")
        I(f"v_or_b32 v{vO+4*i+1}, 0x10000, v{vO+4*i+1}")
        I("s_mov_b64 exec, -1")
    I(f"s_mul_i32 s10, s2, {DCH}")
    I(f"s_mov_b32 s{sTM}, {WS_RECS}")
    I(f"s_mov_b32 s{sTM+1}, {WS_LEID}")
    for i in range(NR):
        I(f"v_mul_u32_u24 v{q}, s11, v{vRK1+i}")
        I(f"v_lshrrev_b32 v{q}, 16, v{q}")
        I(f"v_add3_u32 v{q}, v{q}, v{q+10+i}, s10")
        I(f"v_lshlrev_b32 v{q+1}, 2, v{q}")
        I(f"v_cmpx_le_u32 vcc, {33*(CAP+8)}, v{vRK1+i}")
        I(f"s_cbranch_execz L_PO{i}")
        I(f"buffer_store_byte v{idr(i)}, v{q}, {sq(sWS)}, s{sTM+1} offen sc1")
        I(f"buffer_store_dword v{vSR+i}, v{q+1}, {sq(sWS)}, s{sTM} offen sc1")
        L(f"L_PO{i}")
        I("s_mov_b64 exec, -1")
    I("s_waitcnt vmcnt(0) lgkmcnt(0)")
    I("s_barrier")
    I("s_branch L_POUT")
    SB = 288
    t0, t1, t2, t3 = vP, vP+1, vP+2, vP+3
    L("L_SLOW")
    I("s_setprio 0")
    I(f"s_lshl_b32 s10, s{sWP}, 6")
    I(f"v_add_u32 v{tid}, s10, v{lane}")
    I(f"s_cmp_lg_u32 s{sMORE}, 4")
    I("s_cbranch_scc1 L_SL1")
    I(f"s_mov_b32 s{sMORE}, 1")
    I(f"v_and_b32 v{t0}, 0xff, v{tid}")
    I(f"v_lshlrev_b32 v{t1}, 7, v{t0}")
    I(f"buffer_load_dword v{t2}, v{t1}, {sq(sCEL)}, 0 offen offset:4 sc1")
    I(f"v_lshlrev_b32 v{t1}, 10, v{t0}")
    I(f"s_lshl_b32 s10, s{sB}, 2")
    I(f"s_add_u32 s10, s10, {WS_HD}")
    I(f"buffer_load_dword v{t3}, v{t1}, {sq(sWS)}, s10 offen sc1")
    I(f"v_lshlrev_b32 v{t0}, 2, v{t0}")
    I(f"v_add_u32 v{t0}, {HDR}, v{t0}")
    I("s_waitcnt vmcnt(0)")
    I(f"v_and_b32 v{t2}, 0x10000, v{t2}")
    I(f"v_cmp_ne_u32 vcc, 0, v{t2}")
    I(f"v_mov_b32 v{t2}, {(CAP+8) << 16}")
    I("s_nop 0")
    I(f"v_cndmask_b32 v{t2}, v{t2}, v{t3}, vcc")
    I(f"ds_write_b32 v{t0}, v{t2}")
    I("s_waitcnt lgkmcnt(0)")
    I("s_barrier")
    L("L_SL1")
    I(f"s_add_u32 s{sR0}, s{sR0}, {SB}")
    I(f"s_cmp_lt_u32 s{sR0}, s{sCNT}")
    I("s_cbranch_scc1 L_BATCH")
    L("L_FIND")
    I(f"s_cmp_lg_u64 {sp(sMSK)}, 0")
    I("s_cbranch_scc1 L_GOT")
    I(f"s_add_u32 s{sCI}, s{sCI}, 1")
    I(f"s_cmp_ge_u32 s{sCI}, 4")
    I("s_cbranch_scc1 L_EPI")
    I(f"s_lshl_b32 s10, s{sCI}, 8")
    I(f"s_add_u32 s10, s10, {HDR}")
    I(f"v_lshl_add_u32 v{t0}, v{lane}, 2, s10")
    I(f"ds_read_u16 v{t0}, v{t0} offset:2")
    I("s_waitcnt lgkmcnt(0)")
    I(f"v_cmp_lt_u32 {sp(sMSK)}, s{sSKIP}, v{t0}")
    I("s_nop 3")
    I("s_branch L_FIND")
    L("L_GOT")
    I(f"s_ff1_i32_b64 s10, {sp(sMSK)}")
    I(f"s_bitset0_b64 {sp(sMSK)}, s10")
    I(f"s_lshl_b32 s11, s{sCI}, 6")
    I(f"s_add_u32 s{sCUR}, s10, s11")
    I(f"s_lshl_b32 s10, s{sCUR}, 2")
    I(f"s_add_u32 s10, s10, {HDR}")
    I(f"v_mov_b32 v{t0}, s10")
    I(f"ds_read_b32 v{t0}, v{t0}")
    I("s_waitcnt lgkmcnt(0)")
    I(f"v_readfirstlane_b32 s10, v{t0}")
    I("s_nop 3")
    I(f"s_lshr_b32 s{sCNT}, s10, 16")
    I(f"s_and_b32 s{sST}, s10, 0xffff")
    I(f"s_mov_b32 s{sR0}, s{sSKIP}")
    L("L_BATCH")
    I("s_waitcnt vmcnt(0)")
    I("s_barrier")
    prefill(vP + 4)
    I(f"v_and_b32 v{t0}, 15, v{lane}")
    I(f"v_mul_u32_u24 v{t1}, {LWB}, v{t0}")
    I(f"v_add_u32 v{t1}, {BIAS}, v{t1}")
    I(f"v_lshlrev_b32 v{t0}, 2, v{t0}")
    I(f"ds_write_b32 v{t0}, v{t1} offset:{CNT}")
    t1, t4, t5 = vQ, vQ + 2, vQ + 3
    I(f"v_add_u32 v{t0}, s{sR0}, v{tid}")
    I(f"s_mul_i32 s{sTM+2}, s{sCUR}, {CH}")
    I(f"s_mul_i32 s11, s{sCUR}, {DCH}")
    I(f"s_add_u32 s11, s11, s{sST}")
    I(f"s_lshl_b32 s{sTM}, s11, 2")
    I(f"s_add_u32 s{sTM}, s{sTM}, {WS_RECS}")
    I(f"v_lshl_add_u32 v{t2}, v{t0}, 2, s{sTM}")
    I(f"s_add_u32 s{sTM}, s11, {WS_LEID}")
    I(f"v_add_u32 v{t3}, s{sTM}, v{t0}")
    I(f"s_mul_i32 s10, s{sB}, {RS}")
    I(f"s_lshl_b32 s{sTM}, s{sCUR}, 7")
    I(f"s_add_u32 s10, s10, s{sTM}")
    I(f"s_add_u32 s10, s10, {WS_CELL}")
    I(f"v_and_b32 v{t4}, 7, v{t0}")
    I(f"v_lshl_add_u32 v{t4}, v{t4}, 4, s10")
    I(f"v_lshrrev_b32 v{t5}, 3, v{t0}")
    I(f"v_cmpx_gt_u32 vcc, {CAP+8}, v{t0}")
    I(f"v_add_u32 v{t2}, {XOFF}, v{t4}")
    I(f"v_add_u32 v{t3}, 8, v{t2}")
    I(f"v_cmpx_gt_u32 vcc, {CAP}, v{t0}")
    I(f"v_lshl_add_u32 v{t2}, v{t5}, 2, v{t4}")
    I(f"v_add3_u32 v{t3}, v{t4}, v{t5}, 12")
    I("s_mov_b64 exec, -1")
    I(f"s_add_u32 s10, s{sR0}, {SB}")
    I(f"s_min_u32 s10, s10, s{sCNT}")
    I(f"v_cmp_gt_u32 vcc, s10, v{t0}")
    I(f"v_mov_b32 v{t4}, 0x7ffffff0")
    I("s_nop 0")
    I(f"v_cndmask_b32 v{t2}, v{t4}, v{t2}, vcc")
    I(f"v_cndmask_b32 v{t3}, v{t4}, v{t3}, vcc")
    I(f"buffer_load_dwordx2 {rr(t1,2)}, v{t2}, {sq(sWS)}, 0 offen sc1")
    I(f"buffer_load_ubyte v{t3}, v{t3}, {sq(sWS)}, 0 offen sc1")
    I("s_waitcnt lgkmcnt(0)")
    I("s_barrier")
    I("s_waitcnt vmcnt(0)")
    I(f"v_cmp_ne_u32 vcc, 3, v{t5}")
    I(f"v_cmp_eq_u32 {sp(sA)}, s{sK}, v{t1+1}")
    I(f"v_mov_b32 v{t4}, s{sTM+2}")
    I(f"s_or_b64 exec, vcc, {sp(sA)}")
    I(f"v_cmpx_ne_u32 vcc, 0, v{t1}")
    I(f"v_bfe_u32 v{t2}, v{t1}, 18, 8")
    I(f"v_lshlrev_b32 v{t2}, 2, v{t2}")
    I(f"v_add_u32 v{t0}, {MAP}, v{t2}")
    I(f"ds_read_b32 v{t0}, v{t0}")
    put(rec_ops(t1, t3, 0, t4, t2, t3))
    I(f"v_mov_b32 v{t2}, 4")
    I("s_waitcnt lgkmcnt(0)")
    I(f"ds_add_rtn_u32 v{t0}, v{t0}, v{t2} offset:{CNT}")
    I("s_waitcnt lgkmcnt(0)")
    I(f"ds_write2st64_b32 v{t0}, v{t1}, v{t3} {W2}")
    I("s_mov_b64 exec, -1")
    I("s_waitcnt lgkmcnt(0)")
    I("s_barrier")
    listaddr(t2)
    I(f"ds_read_b128 {rr(vQD,4)}, v{vARX}")
    I(f"ds_read_b32 v{vEI}, v{vARE}")
    lens_from_cnt(t2)
    for r_ in (vQ, vQ + 2, vS, vS + 2): I(f"v_mov_b64 {rr(r_,2)}, 0")
    put(dma_tile())
    L("L_LAST")
    I("s_branch L_GO")

def regs_of(tok):
    tok = tok.strip()
    m = re.fullmatch(r"v\[(\d+):(\d+)\]", tok)
    if m: return list(range(int(m.group(1)), int(m.group(2)) + 1))
    m = re.fullmatch(r"v(\d+)", tok)
    if m: return [int(m.group(1))]
    return []
def parse(ins):
    op, _, rest = ins.partition(" ")
    ops = [o.strip().split(" ")[0] for o in rest.split(",")] if rest else []
    if op.startswith("ds_read") or "rtn" in op: return "ds", regs_of(ops[0]), regs_of(ops[1])
    return "other", [], sum((regs_of(o) for o in ops), [])
def check_body(body):
    s2 = [b for b in body if not b.endswith(":")]
    pend = []
    for i, ins in enumerate(s2 * 3):
        k, d, s = parse(ins)
        m = re.search(r"lgkmcnt\((\d+)\)", ins)
        if m:
            while len(pend) > int(m.group(1)): pend.pop(0)
        pr = set(sum(pend, []))
        for r in d + s:
            assert r not in pr, f"pending LDS reg v{r} used by {ins} @{i}"
        if k == "ds":
            pend.append(d); assert len(pend) <= 15

hdr = open("/code/" + NAME + ".s.ref").read().split("\n")
for l in hdr:
    if l.startswith("; Override"): break
    out.append(l)
if opt("list", 0): out.append(f"; @launch kernel={NAME}_kernel grid=(256,1,1) block=(512,1,1) lds={LDS}")
else: out.append(f"; @launch grid=(256,1,1) block=(512,1,1) lds={LDS}")
LEAK = opt("leak", "")
if LEAK: out.append("; @launch kernel=leak_kernel grid=(1,1,1) block=(256,1,1) lds=64")
emit('.amdgcn_target "amdgcn-amd-amdhsa--gfx950"\n.text')
kernel()
if LEAK:
    kind, nm = LEAK[0], LEAK[1:]
    PT = opt("pt", 0)
    si = STN.index(nm)
    emit(".globl leak_kernel\n.p2align 8\n.type leak_kernel,@function\nleak_kernel:")
    I("s_cmp_lg_u32 s2, 0")
    I("s_cbranch_scc1 LK_END")
    I("s_load_dwordx2 s[4:5], s[0:1], 88")
    I("v_min_u32 v1, 254, v0")
    I("v_lshlrev_b32 v1, 11, v1")
    I("v_mov_b32 v2, 0")
    I("v_mov_b32 v3, 0x7fffffff")
    I("v_mov_b32 v4, 0")
    I("ds_write2_b32 v2, v3, v4 offset0:0 offset1:1")
    I("s_waitcnt lgkmcnt(0)")
    I(f"s_add_u32 s4, s4, {WS_TS}")
    I("s_addc_u32 s5, s5, 0")
    I("global_load_dword v5, v2, s[4:5]")
    for w in range(8):
        I(f"global_load_dword v{8+w}, v1, s[4:5] offset:{256*w}")
        I(f"global_load_dword v{16+w}, v1, s[4:5] offset:{256*w + 4*si}")
    I("s_barrier")
    I("s_waitcnt vmcnt(0)")
    I("v_subrev_u32 v5, 1000, v5")
    for w in range(16): I(f"v_sub_u32 v{8+w}, v{8+w}, v5")
    for w in range(8):
        I(f"ds_min_u32 v2, v{8+w}")
        I(f"ds_{'max' if kind == 'm' else 'add'}_u32 v2, v{16+w} offset:4")
    I("s_waitcnt lgkmcnt(0)")
    I("s_barrier")
    I("ds_read_b64 v[6:7], v2")
    I("s_waitcnt lgkmcnt(0)")
    I("v_lshlrev_b32 v6, 2, v6")
    I("v_lshlrev_b32 v7, 2, v7" if kind == 'm' else "v_lshrrev_b32 v7, 9, v7")
    I("v_sub_u32 v6, v7, v6")
    I("v_min_u32 v6, 20000, v6")
    I("s_nop 0")
    I("v_readfirstlane_b32 s6, v6")
    I("s_memrealtime s[8:9]")
    I("s_waitcnt lgkmcnt(0)")
    if PT:
        I(f"s_cmp_gt_u32 s6, {4*PT}")
        I("s_cselect_b32 s6, 6000, 0")
        I("s_mul_i32 s7, s8, 0x9e3779b1")
        I("s_lshr_b32 s7, s7, 20")
        I("s_add_u32 s6, s6, s7")
    L("LK_L")
    I("s_memrealtime s[10:11]")
    I("s_waitcnt lgkmcnt(0)")
    I("s_sub_u32 s7, s10, s8")
    I("s_cmp_lt_u32 s7, s6")
    I("s_cbranch_scc1 LK_L")
    L("LK_END")
    I("s_endpgm")
emit(f""".section .rodata,"a"
.p2align 6
.amdhsa_kernel {NAME}_kernel
  .amdhsa_next_free_vgpr 256
  .amdhsa_next_free_sgpr 102
  .amdhsa_accum_offset 256
  .amdhsa_group_segment_fixed_size 0
  .amdhsa_kernarg_size 96
  .amdhsa_user_sgpr_count 2
  .amdhsa_user_sgpr_kernarg_segment_ptr 1
  .amdhsa_system_sgpr_workgroup_id_x 1
.end_amdhsa_kernel""")
if LEAK:
    emit(""".p2align 6
.amdhsa_kernel leak_kernel
  .amdhsa_next_free_vgpr 32
  .amdhsa_next_free_sgpr 16
  .amdhsa_accum_offset 32
  .amdhsa_group_segment_fixed_size 0
  .amdhsa_kernarg_size 96
  .amdhsa_user_sgpr_count 2
  .amdhsa_user_sgpr_kernarg_segment_ptr 1
  .amdhsa_system_sgpr_workgroup_id_x 1
.end_amdhsa_kernel""")
if TS: out.insert(0, "; stamps " + " ".join(STN))
path = sys.argv[1] if len(sys.argv) > 1 else "/code/" + NAME + ".s"
open(path, "w").write("\n".join(out) + "\n")
print("wrote", path, len(out), "lines; lds", LDS)
```

```python
import sys, re, struct

NAME = "standalone__edge_featured_mpnn_gatedgcn__graph"
OPT = dict(kv.split("=") for kv in sys.argv[2:])
def opt(k, d):
    v = OPT.get(k)
    if v is None: return d
    return type(d)(v)

N, E = 50000, 800000
CH = 3128
BN = 196
XIL = opt('xil', 0)
RS = (513 if XIL else opt('rs', 257)) * 128
XOFF = 256 * 128 if XIL else 256 * RS
WS_CELL = 0x10000
WS_RECS = 0x1200000
WS_LEID = 0x1680000
WS_HD = 0x17a0000
WS_USED = 0x1800000
WS_TS = 0x3000000
KINC = 0x02020202
CAP = 24
LOG2E = 1.4426950408889634
def f2u(f): return struct.unpack("<I", struct.pack("<f", f))[0]

out = []
def emit(s=""):
    for l in s.strip("\n").split("\n"):
        out.append(l.rstrip())
def I(s): out.append("    " + s)
def L(s): out.append(s + ":")
def C(s): out.append("    ; " + s)
def put(seq):
    for s in seq:
        if s.endswith(":"): L(s[:-1])
        else: I(s)
def rr(a, n): return f"v[{a}:{a+n-1}]"
def sp(a): return f"s[{a}:{a+1}]"
def sq(a): return f"s[{a}:{a+3}]"
def pol(p): return (" " + p.replace("_", " ")) if p else ""

def srd(d, lo, size, add=None, stride=0):
    if add is None:
        I(f"s_mov_b32 s{d}, s{lo}")
        I(f"s_mov_b32 s{d+1}, s{lo+1}" if not stride else f"s_or_b32 s{d+1}, s{lo+1}, {stride << 16:#x}")
    else:
        I(f"s_add_u32 s{d}, s{lo}, {add}")
        I(f"s_addc_u32 s{d+1}, s{lo+1}, 0")
    I(f"s_mov_b32 s{d+2}, {size}")
    I(f"s_mov_b32 s{d+3}, 0x20000")

def wave_scan(v, fill=None, half=False):
    def gap():
        if fill and len(fill) >= 2:
            I(fill.pop(0)); I(fill.pop(0))
        else: I("s_nop 1")
    for sh in (1, 2, 4, 8):
        gap()
        I(f"v_add_u32_dpp v{v}, v{v}, v{v} row_shr:{sh} row_mask:0xf bank_mask:0xf bound_ctrl:0")
    gap()
    I(f"v_add_u32_dpp v{v}, v{v}, v{v} row_bcast:15 row_mask:0xa bank_mask:0xf")
    if half: return
    gap()
    I(f"v_add_u32_dpp v{v}, v{v}, v{v} row_bcast:31 row_mask:0xc bank_mask:0xf")

TAB, ZROW, CNT, FLAG = 0, 512, 576, 640
HIST = 1024
ESTG = HIST + 4096
HIST1 = ESTG
EARLY = ESTG + 8192
LWB = 288 * 4
R0 = EARLY + 32768
R1 = R0 + 16 * LWB
XSTG = R1 + 16 * LWB
XI = 1056
SLOT = 4 * XI
OWN = XSTG + 8 * SLOT
PL = 52 * 128 + 32
WR = 160
WUI = OWN + 4 * PL
MAP = WUI + 64 * WR
HDR = MAP + 1024
PRG = HDR + 1024
NT = PRG + 2048
LDS = NT + 1024
WBI, WVI, WCI = EARLY, EARLY + 64 * WR, EARLY + 128 * WR
WAI = XSTG + 8192
LROW = 160
CIMG = R0
assert CIMG + 256 * LROW <= WAI and LDS <= 163840, LDS
BIAS = 8192
assert R1 < 65536 and R0 % 256 == 0 and R1 % 256 == 0
W2 = f"offset0:{(R0-BIAS)//256} offset1:{(R1-BIAS)//256}"

vWB, vWV, vCA, vACC = 0, 32, 64, 96
vX, vEO, vS = 160, 176, 184
vP, vQ, vR = 188, 204, 220
vQD = 236
vEI, vCH, vONE, vCP, vAX, vcEO, vcS, vARX, vARE, vARO, vARS, vEA = 240, 241, 242, 243, 244, 245, 246, 248, 249, 250, 251, 252
lane, vTS, tid = 247, 254, 255
vC1, vIDX, vPA = lane, tid, vcS
DEN = lambda w, n: vACC + 32 * w + 4 * n
NUM = lambda w, n: vACC + 32 * w + 16 + 4 * n
def m16(d, a, b, c=None):
    return f"v_mfma_f32_16x16x32_bf16 {rr(d,4)}, {rr(a,4)}, {rr(b,4)}, " + ("0" if c is None else rr(c, 4))
def s16(d, b): return f"v_smfmac_f32_16x16x64_bf16 {rr(d,4)}, {rr(vS,4)}, {rr(b,8)}, v{vIDX}"

sWP, sW, sB, sK = 3, 4, 5, 6
sWIN, sF0, sF1, sL = 7, 8, 9, 12
sA, sBt = 10, 11
sSTG, sES, s128 = 13, 14, 15
pX, pE, pSRC, pDST, pWA, pWB, pWC, pWU, pWV, pOUT, pDBG, pWS = 16, 18, 20, 22, 24, 26, 28, 30, 32, 34, 36, 38
sT, sN, sFM, sMORE, sSKIP, sXT, sWS0, sWS1, sB0E, sSH = 16, 17, 18, 19, 20, 21, 22, 23, 24, 25
sCI, sCUR, sR0, sCNT, sST, sEND = 26, 27, 28, 29, 30, 31
sMSK = 32
sTM = 34
sX, sEP, sOUT, sWS, sCEL, sD2 = 40, 44, 48, 52, 56, 60
sM = 64
sJ3, sEM = 96, 98
sSP = 100
sHF = 99
sINC = 94
sSG, sRM = 101, 96

TS = opt("ts", 0)
STN = []
YP = opt("yp", "")
def stamp(i):
    if str(i) in YP.split("_"):
        k = YP.split("_").index(str(i))
        I(f"s_cmp_lt_u32 s{sWP}, 4")
        I(f"s_cbranch_scc1 L_YP{k}")
        I(f"s_setprio {1 - (k & 1)}")
        L(f"L_YP{k}")
    if not TS: return
    if isinstance(i, str) and i[0] not in opt("tsx", ""): return
    STN.append(str(i)); i = len(STN) - 1
    I("s_memrealtime vcc" if TS == 1 else "s_memtime vcc")
    I("s_waitcnt lgkmcnt(0)")
    I(f"v_writelane_b32 v{vTS}, vcc_lo, {i}")
def stamp_out():
    if not TS: return
    I("s_waitcnt vmcnt(0)")
    stamp(15)
    I("s_memtime vcc")
    I("s_waitcnt lgkmcnt(0)")
    I(f"v_writelane_b32 v{vTS}, vcc_lo, 58")
    I(f"v_writelane_b32 v{vTS}, s{sN}, 59")
    I(f"v_writelane_b32 v{vTS}, s{sSP}, 60")
    I("s_getreg_b32 s10, hwreg(HW_REG_XCC_ID)")
    I(f"v_writelane_b32 v{vTS}, s10, 55")
    I("s_lshl_b32 s10, s2, 3")
    I(f"s_add_u32 s10, s10, s{sWP}")
    I("s_lshl_b32 s10, s10, 8")
    I(f"s_add_u32 s10, s10, {WS_TS}")
    I(f"v_lshl_add_u32 v{vP}, v{lane}, 2, s10")
    I(f"global_store_dword v{vP}, v{vTS}, {sp(pWS)}")
def cstamp(i):
    if not TS: return
    I("s_memtime vcc")
    I("s_waitcnt lgkmcnt(0)")
    I(f"v_writelane_b32 v{vTS}, vcc_lo, {i}")

LD_P = opt("ldp", "nt")
XP, EP, OP = opt("xp", ""), opt("ep", ""), opt("op", "sc1")
STP = opt("stp", "sc1")
MG = opt("mg", 1)
JE = opt("je", 4 if MG else 2)
EMASK = ((1 << JE) - 1) * 0x01010101
DCH = CH + 1024
SDW = "dst_sel:DWORD dst_unused:UNUSED_PAD"

def dma_tile():
    mad = lambda i: f"v_mad_u32_u16 v{vQD+i}, v{vQD+i}, s{s128}, v{vCP}"
    r = []
    for i in range(4):
        r += [f"s_add_u32 m0, s{sSTG}, {i*XI}", mad(i), f"buffer_load_dwordx4 v{vQD+i}, {sq(sX)}, 0 offen{pol(XP)} lds"]
    r += [f"s_mov_b32 m0, s{sES}", "s_nop 0", f"buffer_load_dwordx4 {rr(vEI,2)}, {sq(sEP)}, 0 idxen offen{pol(EP)} lds"]
    return r

ORD = [(0, 0), (1, 0), (0, 1), (1, 1)]
def xread(m, s): return f"ds_read_b128 {rr(vX+8*m+4*s,4)}, v{vAX} offset:{512*m + 64*s}"
def g_mfmas(D, ft, w):
    g = [m16(D+8*n+4*m, vEO+4*m, vCA+16*w+8*ft+4*n) for m in range(2) for n in range(2)]
    g += [m16(D+8*n+4*m, vX+8*m+4*s, vWB+16*ft+8*n+4*s, D+8*n+4*m) for m, s in ORD for n in range(2)]
    return g
def h_mfmas(ft):
    return [m16(vQ+8*n+4*m, vX+8*m+4*s, vWV+16*ft+8*n+4*s, None if s == 0 else vQ+8*n+4*m) for m, s in ORD for n in range(2)]
def s_num(w, ft): return [s16(NUM(w, 2*ft+n), vQ+8*n) for n in range(2)]
def s_den(w, ft, G): return [s16(DEN(w, 2*ft+n), G+8*n) for n in range(2)]

def eafix():
    return [f"v_bfi_b32 v{vEA+m}, 31, v{vcEO}, v{vEA+m}" for m in range(2)] + [f"v_max_u32 v{vEA}, v{vEA}, v{vcEO}", f"v_max_u32 v{vEA+1}, v{vEA+1}, v{vC1}"]
LV = [int(c, 16) for c in opt("lv", "015a")]
PAT = opt("pat", "1" * 11 + "5")
FAIR = opt("fair", 1)
F2 = opt("f2", 0)
BST = opt("bst", 10)
LNG = opt("lng", 1)
ASL = [int(x) for x in opt("asl", "12_13_14_18").split("_")]
LLV = [int(x) for x in opt("llv", "0_2_12_26").split("_")]
LLP_ = opt("llp", "0003_1113").split("_")
def add1(q): return f"v_mfma_f32_4x4x4_16b_bf16 {rr(q,4)}, {rr(vONE,2)}, {rr(vONE,2)}, {rr(q,4)}"
def long_sec(mf, G, regs, slots, cp):
    r = []; k = 0
    tr = [f"v_exp_f32 v{G+i}, v{G+i}" for i in regs] + [f"v_rcp_f32 v{G+i}, v{G+i}" for i in regs]
    for i, x in enumerate(tr):
        if i in LLV:
            j = LLV.index(i)
            if j == 0 or LLP_[cp][j] != LLP_[cp][j-1]: r.append(f"s_setprio {LLP_[cp][j]}")
        if i in slots: r.append(add1(G + regs[4*slots.index(i)]))
        elif k < len(mf): r += mf[k]; k += 1
        r.append(x)
    assert k == len(mf)
    return r
def phase(par, ft, cp=0):
    G, Go = (vP, vR) if ft == 0 else (vR, vP)
    nf = 1 - ft
    wn = par if ft == 0 else par ^ 1
    wp = par ^ 1 if ft == 0 else par
    s1 = [[x] for x in s_num(wp, nf) + h_mfmas(ft) + s_den(wp, nf, Go)]
    s2 = [[x] for x in g_mfmas(Go, nf, wn)]
    if ft == 0:
        o = par * LWB
        s1[0] += [f"ds_read_u16 v{vQD+u}, v{vARS} offset:{o + 16*u}" for u in range(2)]
        s1[8] += ["s_waitcnt lgkmcnt(0)"] + [f"v_bfi_b32 v{vQD+u}, 31, v{vcS}, v{vQD+u}" for u in range(2)]
        if FAIR and (par == 0 or not F2):
            s1[0] += [f"ds_add_rtn_u32 v{vQD+2}, v{vPA}, v{vIDX}"]
            s1[8] += [f"v_readfirstlane_b32 s{sRM}, v{vQD+2}"]
            s2[1] += [f"s_ashr_i32 s{sRM}, s{sRM}, 24", f"s_mul_i32 s{sRM}, s{sRM}, s{sSG}"]
        o1 = 128 if par else LWB
        s2[0] += [f"ds_read_b64_tr_b16 {rr(vS+2*u,2)}, v{vQD+u}" for u in range(2)]
        s2[0] += [f"ds_read_u16 v{vEA+m}, v{vARO} offset:{o1 + 64*m}" for m in range(2)]
        s2[6] += ["s_waitcnt lgkmcnt(0)"] + eafix()
        s2[6] += [f"ds_read_b128 {rr(vQD,4)}, v{vARX} offset:{o + 128}", f"ds_read_b32 v{vEI}, v{vARE} offset:{o + 128}",
                  f"s_add_u32 s{sT}, s{sT}, 1"]
        if par: s2[7] += [f"v_lshl_add_u64 {rr(r,2)}, {rr(r,2)}, 0, {sp(sINC)}" for r in (vARX, vARO)]
    elif opt("el", 0):
        g = [m16(Go+8*n+4*m, vX+8*m+4*s, vWB+16*nf+8*n+4*s, None if s == 0 else Go+8*n+4*m) for m, s in ORD for n in range(2)]
        g += [m16(Go+8*n+4*m, vEO+4*m, vCA+16*wn+8*nf+4*n, Go+8*n+4*m) for m in range(2) for n in range(2)]
        s2 = [[x] for x in g]
        s1[2] = ["s_waitcnt vmcnt(1)"] + s1[2]
        for i, (m, s) in enumerate(ORD): s1[3+2*i].append(xread(m, s))
        s2[0] = ["s_waitcnt lgkmcnt(2)"] + s2[0]
        ep = opt("el", 0)
        s2[ep] += ["s_waitcnt vmcnt(0)"] + [f"ds_read_b128 {rr(vEO+4*m,4)}, v{vEA+m}" for m in range(2)]
        s2[4] = [f"s_waitcnt lgkmcnt({2 if ep < 4 else 0})"] + s2[4]
        s2[8] = ["s_waitcnt lgkmcnt(0)"] + s2[8]
        s2[opt("eld", 9)] += [f"s_cmp_lt_u32 s{sT}, s{sN}", f"s_cbranch_scc0 L_ND{par}{cp}"] + dma_tile() + [f"L_ND{par}{cp}:"]
    else:
        s1[2] = ["s_waitcnt vmcnt(0)"] + [f"ds_read_b128 {rr(vEO+4*m,4)}, v{vEA+m}" for m in range(2)] + s1[2]
        for i, (m, s) in enumerate(ORD): s1[3+2*i].append(xread(m, s))
        s2[0] = ["s_waitcnt lgkmcnt(4)"] + s2[0]
        for i in range(4): s2[4+2*i] = [f"s_waitcnt lgkmcnt({3-i})"] + s2[4+2*i]
        DSP = opt("dsp", "")
        if DSP:
            d = dma_tile(); first = min(int(c, 16) for c in DSP)
            for i in range(4): s2[4+2*i] = s2[4+2*i][1:] if 4+2*i > first else s2[4+2*i]
            s2[first] = ["s_waitcnt lgkmcnt(0)"] + [x for x in s2[first] if not x.startswith("s_waitcnt")]
            for k, c in enumerate(DSP): s2[int(c, 16)] += d[3*k:3*k+3]
        tgt = f"L_CE{par}{cp}" if opt("cpe", 0) else f"L_ND{par}{cp}"
        if not DSP: s2[10] += [f"s_cmp_lt_u32 s{sT}, s{sN}", f"s_cbranch_scc0 {tgt}"] + dma_tile() + [f"L_ND{par}{cp}:"]
    def sec(mf, op):
        r = []; k = 0
        for i, m in enumerate(mf):
            if opt("lvp", ""):
                lv = opt("lvp", "").split("_")[cp]
                if i in LV:
                    k_ = LV.index(i)
                    if k_ == 0 or lv[k_] != lv[k_-1]: r.append(f"s_setprio {lv[k_]}")
            elif FAIR:
                if i == 0: r.append(f"s_setprio {cp}")
                if i == BST: r.append("s_setprio 3")
            elif i in LV: r.append(f"s_setprio {LV.index(i)}")
            r += m
            for _ in range(int(PAT[i])):
                r.append(f"{op} v{G+k}, v{G+k}"); k += 1
        assert k == 16
        return r
    r = []
    if opt("tt", 0) and ft == 0:
        r += ["s_memrealtime vcc", "s_memtime s[10:11]", f"s_add_u32 m0, s{sT}, 17", "s_waitcnt lgkmcnt(0)", f"v_writelane_b32 v{vTS}, vcc_lo, m0",
              f"s_add_u32 m0, s{sT}, 35", "s_nop 0", f"v_writelane_b32 v{vTS}, s10, m0"]
    if LNG:
        r += long_sec(s1 + s2, G, list(range(16)), ASL, cp)
        return r + [f"v_pk_mul_f32 {rr(vQ+2*i,2)}, {rr(G+2*i,2)}, {rr(vQ+2*i,2)}" for i in range(8)]
    r += sec(s1, "v_exp_f32")
    r += [f"v_pk_add_f32 {rr(G+2*i,2)}, {rr(G+2*i,2)}, 1.0 op_sel_hi:[1,0]" for i in range(8)]
    r += sec(s2, "v_rcp_f32")
    r += [f"v_pk_mul_f32 {rr(vQ+2*i,2)}, {rr(G+2*i,2)}, {rr(vQ+2*i,2)}" for i in range(8)]
    return r

def last_tile(par, half, epi=None, only_b=False):
    keep = (lambda x: int(re.match(r"\S+ v\[(\d+)", x).group(1)) % 8 == (vP % 8)) if half else (lambda x: True)
    regs = [k for k in range(16) if not (half and k & 4)]
    def sec(mf, op, G):
        r = [f"s_setprio {opt('lpr', 0)}"]; k = 0
        tail = min(len(regs), 4 if half else 5)
        for i, m in enumerate(mf):
            if i == len(mf) - 1: r.append("s_setprio 3")
            r += m
            e_ = (len(regs) - tail) * (i + 1) // (len(mf) - 1) if i < len(mf) - 1 else len(regs)
            while k < e_:
                r.append(f"{op} v{G+regs[k]}, v{G+regs[k]}"); k += 1
        while k < len(regs):
            r.append(f"{op} v{G+regs[k]}, v{G+regs[k]}"); k += 1
        return r
    r = []
    for ft in range(1 if only_b else 0, 2):
        G, Go = (vP, vR) if ft == 0 else (vR, vP)
        wp = par ^ 1 if ft == 0 else par
        s1 = [[x] for x in s_num(wp, 1-ft) + [h for h in h_mfmas(ft) if keep(h)] + s_den(wp, 1-ft, Go)]
        s2 = [[x] for x in g_mfmas(Go, 1, par) if keep(x)] if ft == 0 else []
        if ft == 0:
            s1[0] += [f"ds_read_u16 v{vQD+u}, v{vARS} offset:{par*LWB + 16*u}" for u in range(2)]
            s1[-2] += ["s_waitcnt lgkmcnt(0)"] + [f"v_bfi_b32 v{vQD+u}, 31, v{vcS}, v{vQD+u}" for u in range(2)]
            s2[0] += [f"ds_read_b64_tr_b16 {rr(vS+2*u,2)}, v{vQD+u}" for u in range(2)]
        else:
            s1[0] = ["s_waitcnt lgkmcnt(0)"] + s1[0]
            if epi:
                a1, a2, a3 = epi
                r += [f"s_cmp_lg_u32 s{sMORE}, 0", f"s_cbranch_scc1 L_LB{par}"]
                n_ = len(s1) - 3
                for k in range(n_): s1[k] += a1[len(a1)*k//n_:len(a1)*(k+1)//n_]
                s1[-3] += a2[:len(a2)//2]; s1[-2] += a2[len(a2)//2:]
                s2 = [list(x) for x in a3]
        r += sec(s1, "v_exp_f32", G)
        r += [f"v_pk_add_f32 {rr(G+k,2)}, {rr(G+k,2)}, 1.0 op_sel_hi:[1,0]" for k in regs[::2]]
        r += sec(s2, "v_rcp_f32", G)
        r += [f"v_pk_mul_f32 {rr(vQ+k,2)}, {rr(G+k,2)}, {rr(vQ+k,2)}" for k in regs[::2]]
    return r + s_den(par, 1, vR) + s_num(par, 1)

def isize(x):
    op = x.split()[0]
    if x.endswith(":"): return 0
    if op in ("v_exp_f32", "v_rcp_f32", "v_max_u32", "v_readfirstlane_b32"): return 4
    if op.startswith("s_"):
        m = re.search(r", (0x[0-9a-f]+|\d+)$", x)
        return 8 if (m and op not in ("s_setprio", "s_nop", "s_waitcnt") and int(m.group(1), 0) > 64) else 4
    return 8
def align8(body, mode):
    body = list(body); run = []; r = []
    for x in body:
        z = isize(x)
        if z == 8:
            if sum(isize(r[i]) for i in run) % 8:
                c = [i for i in run if r[i].split()[0] in ("v_exp_f32", "v_rcp_f32", "v_max_u32")]
                if c: r[c[-1]] = r[c[-1]].replace(" ", "_e64 ", 1); run = []
                elif mode == 2: r.append("s_nop 0"); run = []
                else: run = [i for i in run if isize(r[i])][:1]
            else: run = []
            r.append(x)
        else:
            run.append(len(r)); r.append(x)
    return r

def listaddr(t0):
    I(f"v_lshrrev_b32 v{t0}, 3, v{lane}")
    I(f"v_lshl_add_u32 v{vARX}, v{t0}, 4, s{sL}")
    I(f"s_add_u32 s10, s{sL}, {R1-R0}")
    I(f"v_lshrrev_b32 v{t0}, 1, v{lane}")
    I(f"v_lshl_add_u32 v{vARE}, v{t0}, 2, s10")
    I(f"s_add_u32 s10, s10, 2")
    I(f"v_lshrrev_b32 v{t0}, 5, v{lane}")
    I(f"v_mul_i32_i24 v{vARO}, {(R0-R1) & 0xffffffff:#x}, v{t0}")
    I(f"v_and_b32 v{t0}, 15, v{lane}")
    I(f"v_lshl_add_u32 v{vARO}, v{t0}, 2, v{vARO}")
    I(f"v_add_u32 v{vARO}, s10, v{vARO}")
    I(f"s_add_u32 s10, s{sL}, 2")
    I(f"v_and_b32 v{t0}, 48, v{lane}")
    I(f"v_lshl_add_u32 v{vARS}, v{t0}, 1, s10")
    I(f"v_and_b32 v{t0}, 12, v{lane}")
    I(f"v_add_u32 v{vARS}, v{vARS}, v{t0}")

def prefill(t):
    for d in range(4): I(f"v_mov_b32 v{t+d}, {ZROW << 16:#x}")
    for d in range(4): I(f"v_mov_b32 v{t+4+d}, 0xfffff")
    I(f"v_lshl_add_u32 v{t+8}, v{lane}, 4, s{sL}")
    for o in (0, 1024, 2*LWB - 1024):
        I(f"ds_write_b128 v{t+8}, {rr(t,4)} offset:{o}")
        I(f"ds_write_b128 v{t+8}, {rr(t+4,4)} offset:{o + R1 - R0}")

def kernel():
    emit(f"""
.globl {NAME}_kernel
.p2align 8
.type {NAME}_kernel,@function
{NAME}_kernel:""")
    FH = opt("fh", 1)
    vD, vSR, vT16 = vACC + 32, vACC, vR + 12
    if TS and opt("tz", 0): I("s_memrealtime s[96:97]")
    I("s_load_dwordx16 s[16:31], s[0:1], 0")
    I("s_load_dwordx8 s[32:39], s[0:1], 64")
    CPN = opt("cpn", 8)
    if opt("cpf", 1):
        I(f"s_getpc_b64 {sp(sM)}")
        L("L_PC")
        if CPN == 8: I("s_and_b32 s3, s2, -8")
        else:
            I("s_lshr_b32 s3, s2, 3")
            I(f"s_and_b32 s3, s3, {256//CPN - 1}")
            I(f"s_mul_i32 s3, s3, {CPN}")
        I("v_add_lshl_u32 v1, v0, s3, 7")
        I("v_min_u32 v1, L_LAST-L_PC, v1")
        I(f"v_cmpx_gt_u32 vcc, {CPN}, v0")
        I("s_cbranch_execz L_NOCPF")
        I(f"global_load_dword v{vEA}, v1, {sp(sM)}")
        L("L_NOCPF")
        I("s_mov_b64 exec, -1")
    I("s_cmp_ge_u32 s2, 256")
    I("s_cbranch_scc1 L_END")
    if FH:
        I(f"s_mul_i32 s{sA}, s2, {CH*4}")
        I(f"v_lshl_add_u32 v1, v0, 4, s{sA}")
        I(f"s_add_u32 s{sBt}, s{sA}, {CH*4}")
        I(f"s_min_u32 s{sBt}, s{sBt}, {E*4}")
        BAL = opt("bal", 0)
        if BAL:
            I(f"s_add_u32 s{sA}, s{sA}, 0x2000")
            I(f"v_lshl_add_u32 v2, v0, 3, s{sA}")
            I(f"s_add_u32 s{sA}, s{sA}, 0x1000")
            I(f"v_lshl_add_u32 v3, v0, 2, s{sA}")
            I(f"v_cmp_gt_u32 {sp(sM+6)}, s{sBt}, v2")
            I(f"v_min_u32 v2, {E*4 - 8}, v2")
        else: I("v_add_u32 v2, 0x2000, v1")
        I("s_waitcnt lgkmcnt(0)")
        if TS and opt("tz", 0): I("s_memrealtime s[98:99]")
        I(f"global_load_dwordx4 {rr(vD,4)}, v1, {sp(pDST)}{pol(LD_P)}")
        if BAL:
            I(f"global_load_dwordx2 {rr(vD+4,2)}, v2, {sp(pDST)}{pol(LD_P)}")
            I(f"global_load_dwordx4 {rr(vSR,4)}, v1, {sp(pSRC)}{pol(LD_P)}")
            I(f"global_load_dwordx2 {rr(vSR+4,2)}, v2, {sp(pSRC)}{pol(LD_P)}")
            I(f"v_cmpx_gt_u32 {sp(sM+28)}, s{sBt}, v3")
            I("s_cbranch_execz L_NO7")
            I(f"global_load_dword v{vD+6}, v3, {sp(pDST)}{pol(LD_P)}")
            I(f"global_load_dword v{vSR+6}, v3, {sp(pSRC)}{pol(LD_P)}")
        else:
            I(f"global_load_dwordx4 {rr(vSR,4)}, v1, {sp(pSRC)}{pol(LD_P)}")
            def group2():
                I(f"v_cmpx_gt_u32 {sp(sM+6)}, s{sBt}, v2")
                I("s_cbranch_execz L_NO8")
                I(f"global_load_dwordx4 {rr(vD+4,4)}, v2, {sp(pDST)}{pol(LD_P)}")
                I(f"global_load_dwordx4 {rr(vSR+4,4)}, v2, {sp(pSRC)}{pol(LD_P)}")
                L("L_NO8")
                I("s_mov_b64 exec, -1")
            G2 = opt("g2", 0)
            if G2 == 0: group2()
        L("L_NO7")
        I("s_mov_b64 exec, -1")
        KV = opt("kv", 0)
        if KV:
            I("v_mov_b32 v1, 0")
            I(f"global_load_dword v{vEA+1}, v1, {sp(pWS)}")
        else: I(f"s_load_dword s{sK}, {sp(pWS)}, 0")
        if opt("tlb", 0):
            I("v_lshlrev_b32 v1, 20, v0")
            I(f"v_add_u32 v1, {WS_CELL + XOFF - 448*(1 << 20) & 0xffffffff:#x}, v1")
            I("v_subrev_u32 v2, 448, v0")
            I("v_cmpx_gt_u32 vcc, 9, v2")
            I("s_cbranch_execz L_NOTLB")
            I(f"global_load_dword v{vEA+1}, v1, {sp(pWS)}")
            L("L_NOTLB")
            I("s_mov_b64 exec, -1")
    if TS: I(f"v_mov_b32 v{vTS}, 0")
    u = lambda i: vP + i
    if TS and opt("tz", 0):
        I("s_waitcnt lgkmcnt(0)")
        I(f"v_writelane_b32 v{vTS}, s96, 0")
        I(f"v_writelane_b32 v{vTS}, s98, 1")
        STN.extend(["z", "k"])
    stamp(0)
    vBK, vRK1, vID, vHA, vIC = vACC + 8, vACC + 16, vACC + 24, vACC + 40, vACC + 48
    vRW = vX
    one, l16 = vS, vS + 1
    vOA, vT16, sOW = vR + 14, vR + 12, 101
    I(f"v_mov_b32 v{tid}, v0")
    I(f"v_lshrrev_b32 v{u(0)}, 6, v0")
    I(f"v_and_b32 v{lane}, 63, v0")
    I(f"v_readfirstlane_b32 s{sWP}, v{u(0)}")
    I(f"v_lshlrev_b32 v{vT16}, 4, v0")
    I(f"v_lshlrev_b32 v{u(2)}, 3, v0")
    I(f"v_lshlrev_b32 v{u(3)}, 2, v0")
    I(f"v_and_b32 v{u(4)}, 0x3fc, v{u(3)}")
    if not FH:
        I(f"s_mul_i32 s{sA}, s2, {CH*4}")
        I(f"s_sub_u32 s{sBt}, {E*4}, s{sA}")
        I(f"s_min_u32 s{sBt}, s{sBt}, {CH*4}")
    I(f"s_and_b32 s{sB}, s2, 7")
    I(f"s_lshr_b32 s{sW}, s2, 3")
    I(f"s_lshl_b32 s{sB}, s{sB}, 5")
    I(f"s_add_u32 s{sB}, s{sB}, s{sW}")
    I(f"s_mul_i32 s{sF1}, s{sB}, {BN}")
    I(f"s_cmp_eq_u32 s{sWP}, 7")
    I(f"s_cselect_b32 s{sOW}, 0, s{sWP}")
    I(f"s_lshl_b32 s{sL}, s{sOW}, 5")
    I(f"s_add_u32 s{sF1}, s{sF1}, s{sL}")
    I(f"v_lshrrev_b32 v{u(5)}, 3, v{lane}")
    I(f"v_lshl_add_u32 v{u(5)}, v{u(5)}, 2, s{sF1}")
    I(f"v_and_b32 v{vCP}, 7, v{lane}")
    I(f"v_lshlrev_b32 v{vCP}, 4, v{vCP}")
    I(f"v_lshl_add_u32 v{vOA}, v{u(5)}, 7, v{vCP}")
    I(f"s_lshl_b32 s{sOW}, s{sOW}, 10")
    I(f"s_add_u32 s{sOW}, s{sOW}, {OWN}")
    if not FH:
        I(f"s_movk_i32 s{sF0}, 0x2000")
        I("s_waitcnt lgkmcnt(0)")
        I(f"s_load_dword s{sK}, {sp(pWS)}, 0")
        srd(sCEL, pDST, f"s{sBt}", f"s{sA}")
        srd(sD2, pSRC, f"s{sBt}", f"s{sA}")
        I(f"buffer_load_dwordx4 {rr(vD,4)}, v{vT16}, {sq(sCEL)}, 0 offen{pol(LD_P)}")
        I(f"buffer_load_dwordx4 {rr(vSR,4)}, v{vT16}, {sq(sD2)}, 0 offen{pol(LD_P)}")
        I(f"s_cmp_ge_u32 s{sWP}, 5")
        I("s_cbranch_scc1 L_NO7")
        I(f"buffer_load_dwordx4 {rr(vD+4,4)}, v{vT16}, {sq(sCEL)}, s{sF0} offen{pol(LD_P)}")
        I(f"buffer_load_dwordx4 {rr(vSR+4,4)}, v{vT16}, {sq(sD2)}, s{sF0} offen{pol(LD_P)}")
        L("L_NO7")
    for d in range(2): I(f"v_mov_b64 {rr(u(8)+2*d,2)}, 0")
    I(f"v_mov_b32 v{u(6)}, {33*JE if MG else 0}")
    I(f"ds_write2st64_b32 v{u(4)}, v{u(6)}, v{u(8)} offset0:{HIST1//256} offset1:{HIST1//256+4}")
    I(f"v_add_u32 v{u(5)}, {CIMG}, v{vT16}")
    if G2 == 1: group2()
    for k in range(5): I(f"ds_write_b128 v{u(5)}, {rr(u(8),4)} offset:{8192*k}")
    if G2 == 2: group2()
    PF = opt("pf", 0)
    def w_loads():
        I(f"s_cmp_ge_u32 s{sWP}, 2")
        I("s_cbranch_scc1 L_NOC")
        I(f"global_load_dwordx4 {rr(vEO,4)}, v{vT16}, {sp(pWC)}")
        L("L_NOC")
        for k, p in enumerate((pWB, pWV, pWA, pWU)):
            I(f"global_load_dwordx4 {rr(vRW+4*k,4)}, v{vT16}, {sp(p)}")
    def own_loads():
        I(f"s_cmp_eq_u32 s{sWP}, 6")
        I("s_cselect_b32 exec_hi, 0, -1")
        I(f"s_cmp_eq_u32 s{sWP}, 7")
        I("s_cselect_b64 exec, 1, exec")
        for k in range(4):
            I(f"s_add_u32 m0, s{sOW}, {(PL-128)*k}")
            I("s_nop 0")
            I(f"buffer_load_dwordx4 v{vOA}, {sq(sX)}, 0 offen offset:{128*k}{pol(opt('owp', ''))} lds")
        I("s_mov_b64 exec, -1")
    def x_prefetch():
        if not PF: return
        I(f"s_add_u32 s{sTM}, s2, 1")
        I(f"s_and_b32 s{sTM}, s{sTM}, 7")
        I(f"s_mul_i32 s{sTM}, s{sTM}, {32*BN}")
        I(f"s_lshr_b32 s{sTM+1}, s2, 3")
        I(f"s_mul_i32 s{sTM+1}, s{sTM+1}, {PF}")
        I(f"s_add_u32 s{sTM}, s{sTM}, s{sTM+1}")
        I(f"s_mul_i32 s{sTM+1}, s{sWP}, {PF//8}")
        I(f"s_add_u32 s{sTM}, s{sTM}, s{sTM+1}")
        I(f"v_min_u32 v{vEA+1}, {PF//8 - 1}, v{lane}")
        I(f"v_add_lshl_u32 v{vEA+1}, v{vEA+1}, s{sTM}, 7")
        I(f"buffer_load_dword v{vEA+1}, v{vEA+1}, {sq(sX)}, 0 offen")
    PFP = opt("pfp", 0)
    LLP = 2
    OLP = opt("olp", 2)
    NY = 0
    srd(sEP, pE, E, stride=32)
    srd(sOUT, pOUT, N*128)
    srd(sX, pX, N*128)
    OY = 0
    if OLP == 3:
        OW0 = opt("ow0", 5); nw = 8 - OW0; per = -(-28 // nw); OY = per
        I(f"s_cmp_lt_u32 s{sWP}, {OW0}")
        I("s_cbranch_scc1 L_NOOWN")
        I(f"s_mul_i32 s{sF1}, s{sB}, {BN}")
        I(f"v_lshrrev_b32 v{vOA}, 3, v{lane}")
        I(f"v_lshl_add_u32 v{vOA}, v{vOA}, 2, s{sF1}")
        I(f"v_lshl_add_u32 v{vOA}, v{vOA}, 7, v{vCP}")
        I(f"s_sub_u32 s{sF0}, s{sWP}, {OW0}")
        for k in range(per):
            I(f"s_add_u32 s{sF1}, s{sF0}, {nw*k}")
            I(f"s_min_u32 s{sF1}, s{sF1}, 27")
            I(f"s_and_b32 s{sL}, s{sF1}, 3")
            I(f"s_lshr_b32 s{sF1}, s{sF1}, 2")
            I(f"s_mul_i32 s{sOW}, s{sL}, {PL}")
            I(f"s_lshl_b32 s{sL}, s{sL}, 7")
            I(f"s_cmp_eq_u32 s{sF1}, 6")
            I("s_cselect_b32 exec_hi, 0, -1")
            I(f"s_lshl_b32 s{sF1}, s{sF1}, 10")
            I(f"s_add_u32 s{sOW}, s{sOW}, s{sF1}")
            I(f"s_add_u32 m0, s{sOW}, {OWN}")
            I(f"s_lshl2_add_u32 s{sL}, s{sF1}, s{sL}")
            I(f"buffer_load_dwordx4 v{vOA}, {sq(sX)}, s{sL} offen lds")
        I("s_mov_b32 exec_hi, -1")
        L("L_NOOWN")
    srd(sWS, pWS, WS_USED)
    I(f"s_lshl_b32 s{sL}, s2, 7")
    I(f"s_add_u32 s{sL}, s{sL}, {WS_CELL}")
    srd(sCEL, pWS, 255*RS + XOFF + 128, f"s{sL}")
    cM, cN, cP, cPM, cR = sM, sM + 1, sM + 2, sM + 3, sM + 4
    m2 = sM + 6
    I(f"s_mov_b32 s{cM}, 85599")
    I(f"s_mov_b32 s{cN}, {-BN & 0xffffffff}")
    I(f"s_movk_i32 s{cP}, 5368")
    I(f"s_mov_b32 s{cPM}, {opt('phm', 3) << 26:#x}")
    I(f"s_mov_b32 s{cR}, {RS}")
    I(f"s_mov_b32 s{sSP}, {-(196*5368) & 0xffffffff:#x}")
    for i in range(4): I(f"v_add_u32 v{vID+i}, {i}, v{u(3)}")
    I(f"s_lshl_b32 s{sA}, s{sWP}, 28")
    I(f"s_or_b32 s{sA}, s{sA}, 0x20000")
    I(f"v_mov_b32 v{vIC}, s{sA}")
    if BAL:
        assert MG <= 1 and OLP != 3
        I(f"s_lshr_b32 s{sA}, s{sWP}, 1")
        I(f"s_lshl_b32 s{sA}, s{sA}, 28")
        I(f"s_or_b32 s{sA}, s{sA}, 0x80020000")
        I(f"v_mov_b32 v{vIC+1}, s{sA}")
        I(f"v_mov_b32 v{vIC+3}, 0xc0020000")
        I(f"v_lshlrev_b32 v{vID+4}, 1, v{tid}")
        I(f"v_add_u32 v{vID+5}, 1, v{vID+4}")
        I(f"v_mov_b32 v{vID+6}, v{tid}")
    else: I(f"v_or_b32 v{vIC+1}, 0x80000000, v{vIC}")
    idr = (lambda i: vID + i) if BAL else (lambda i: vID + (i & 3))
    icr = (lambda i: vIC + (3 if i == 6 else i >> 2)) if BAL else (lambda i: vIC + (i >> 2))
    NR = 7 if BAL else 8
    I(f"v_mov_b32 v{one}, 33")
    vK1 = vIC + 2
    I(f"v_mov_b32 v{vK1}, 0x400")
    if not FH:
        I(f"s_sub_u32 s{sBt}, s{sBt}, 0x2000")
        I(f"v_cmp_gt_u32 {sp(m2)}, s{sBt}, v{vT16}")
    I(f"s_and_b32 s{sA}, s{sWP}, 3")
    I(f"s_lshr_b32 s{sW}, s{sWP}, 2")
    I(f"s_lshl1_add_u32 s{sW}, s{sA}, s{sW}")
    if opt("swp", 1): I(f"s_xor_b32 s{sW}, s{sW}, 1")
    I(f"s_mul_i32 s{sA}, s{sW}, 49")
    I(f"s_sub_i32 s{sA}, s{sA}, 6")
    I(f"s_ashr_i32 s{sA}, s{sA}, 1")
    I(f"s_max_i32 s{sWIN}, s{sA}, 0")
    I(f"s_mul_i32 s{sSTG}, s{sW}, {SLOT}")
    I(f"s_add_u32 s{sSTG}, s{sSTG}, {XSTG}")
    I(f"s_lshl_b32 s{sES}, s{sW}, 10")
    I(f"s_add_u32 s{sES}, s{sES}, {ESTG}")
    I(f"s_mul_i32 s{sL}, s{sW}, {2*LWB}")
    I(f"s_add_u32 s{sL}, s{sL}, {R0}")
    I(f"s_movk_i32 s{s128}, 128")
    if G2 == 3: group2()
    I(f"v_bfe_u32 v{u(6)}, v{tid}, 4, 4")
    I(f"v_and_b32 v{u(7)}, 7, v{tid}")
    I(f"v_cmp_eq_u32 vcc, v{u(6)}, v{u(7)}")
    I(f"v_and_b32 v{u(6)}, 8, v{tid}")
    I(f"v_lshlrev_b32 v{u(6)}, 1, v{u(6)}")
    I(f"v_mov_b32 v{u(8)}, 0x3f80")
    I(f"v_lshlrev_b32 v{u(8)}, v{u(6)}, v{u(8)}")
    I(f"v_cndmask_b32 v{u(8)}, 0, v{u(8)}, vcc")
    I(f"ds_write_b32 v{u(4)}, v{u(8)} offset:{TAB}")
    I(f"v_mov_b64 {rr(u(8),2)}, 0")
    I(f"ds_write_b64 v{u(2)}, {rr(u(8),2)} offset:{HIST}")
    I(f"v_add_u32 v{u(6)}, {PRG}, v{u(3)}")
    I(f"ds_write_b32 v{u(6)}, v{u(8)}")
    go, lo, lo2, ha = vR, vR + 1, vR + 2, vR + 3
    wl, wal = vR + 4, vR + 5
    I(f"v_lshrrev_b32 v{ha}, 3, v{tid}")
    TW = opt("tw", "")
    lob, l2b = vR + 6, vR + 7
    sRG = sM + 28
    I(f"v_mul_u32_u24 v{wl}, {LROW}, v{ha}")
    if TW:
        I(f"v_and_b32 v{lo2}, 24, v{ha}")
        I(f"v_and_b32 v{go}, 7, v{ha}")
        I(f"v_lshl_add_u32 v{lo2}, v{lo2}, 1, v{go}")
        I(f"v_mad_u32_u24 v{go}, v{lo2}, s{cR}, v{vCP}")
        I(f"s_lshr_b32 s{sRG}, s{sWP}, 2")
        I(f"s_lshl_b32 s{sRG}, s{sRG}, 7")
        I(f"s_sub_u32 s{sRG}, s{sRG}, s2")
        I(f"s_add_u32 s{sRG}, s{sRG}, 63")
        I(f"s_add_u32 s{sRG+1}, s{sRG}, 64")
        I(f"s_and_b32 s{sRG}, s{sRG}, 0xc0")
        I(f"s_and_b32 s{sRG+1}, s{sRG+1}, 0xc0")
        I(f"v_add_u32 v{l2b}, s{sRG+1}, v{lo2}")
        I(f"v_add_u32 v{lo2}, s{sRG}, v{lo2}")
        I(f"v_add_u32 v{u(6)}, {CIMG}, v{vCP}")
        I(f"s_movk_i32 s{sA}, {LROW}")
        I(f"v_mad_u32_u24 v{lo}, v{lo2}, s{sA}, v{u(6)}")
        I(f"v_mad_u32_u24 v{lob}, v{l2b}, s{sA}, v{u(6)}")
        I(f"v_lshlrev_b32 v{lo2}, 2, v{lo2}")
        I(f"v_lshlrev_b32 v{l2b}, 2, v{l2b}")
    else:
        I(f"v_mad_u32_u24 v{go}, v{ha}, s{cR}, v{vCP}")
        I(f"v_add_u32 v{lo}, v{wl}, v{vCP}")
        I(f"v_add_u32 v{lo}, {CIMG}, v{lo}")
    assert LROW == WR
    I(f"v_bfe_u32 v{u(6)}, v{tid}, 5, 1")
    I(f"v_bfe_u32 v{u(8)}, v{tid}, 6, 1")
    I(f"v_sub_u32 v{u(6)}, v{u(6)}, v{u(8)}")
    I(f"v_mul_i32_i24 v{u(6)}, {4*WR}, v{u(6)}")
    I(f"v_add_u32 v{wl}, v{wl}, v{u(6)}")
    I(f"v_lshl_add_u32 v{wl}, v{u(7)}, 2, v{wl}")
    I(f"v_add_u32 v{wl}, {WBI}, v{wl}")
    I(f"v_lshlrev_b32 v{l16}, 4, v{lane}")
    I(f"v_and_b32 v{u(6)}, 3, v{lane}")
    I(f"v_lshlrev_b32 v{vcS}, 3, v{u(6)}")
    I(f"v_bfe_u32 v{u(9)}, v{lane}, 2, 3")
    I(f"v_lshrrev_b32 v{u(8)}, 5, v{lane}")
    I(f"v_lshl_add_u32 v{u(9)}, v{u(8)}, 4, v{u(9)}")
    I(f"v_mul_u32_u24 v{wal}, {WR}, v{u(9)}")
    I(f"v_add_u32 v{wal}, v{wal}, v{vcS}")
    mm = lambda i: sM + 8 + 2*i
    def rank_a(rs, wsrc=0, plain=False):
        for i in rs: I(f"v_mul_u32_u24 v{vBK+i}, s{cM}, v{vD+i}")
        if rs[0] // 4 < MG and not plain:
            b = rs[0]
            for i in rs: I(f"v_lshrrev_b32 v{vHA+i}, 29, v{vBK+i}")
            if opt("px", 0):
                I(f"s_waitcnt vmcnt({wsrc})")
                for i in rs:
                    I(f"v_cmp_gt_u32 vcc, {opt('px', 0)}, v{vSR+i}")
                    I("s_nop 1")
                    I(f"v_cndmask_b32 v{vHA+i}, v{vHA+i}, v{vID+(i&3)}, vcc") if False else I(f"v_cndmask_b32_e64 v{vHA+i}, v{vHA+i}, {8+(i&3)}, vcc")
            t0, t1 = sM + 24, sM + 26
            I(f"v_cmp_eq_u32 {sp(mm(b))}, v{vHA+b}, v{vHA+b+1}")
            I(f"v_cmp_eq_u32 {sp(mm(b+2))}, v{vHA+b+2}, v{vHA+b+3}")
            I(f"v_cmp_eq_u32 vcc, v{vHA+b}, v{vHA+b+2}")
            I(f"v_cmp_eq_u32 {sp(t0)}, v{vHA+b+1}, v{vHA+b+3}")
            I(f"v_cmp_eq_u32 {sp(t1)}, v{vHA+b}, v{vHA+b+3}")
            I(f"v_cmp_eq_u32 {sp(sA)}, v{vHA+b+1}, v{vHA+b+2}")
            for i in rs: I(f"v_lshrrev_b32 v{vBK+i}, 24, v{vBK+i}")
            I(f"s_or_b64 {sp(mm(b+1))}, {sp(mm(b))}, {sp(t0)}")
            I(f"s_or_b64 {sp(mm(b+3))}, {sp(mm(b+2))}, {sp(t0)}")
            I(f"s_or_b64 {sp(mm(b))}, {sp(mm(b))}, vcc")
            I(f"s_or_b64 {sp(mm(b+2))}, {sp(mm(b+2))}, vcc")
            I(f"s_or_b64 {sp(mm(b))}, {sp(mm(b))}, {sp(t1)}")
            I(f"s_or_b64 {sp(mm(b+1))}, {sp(mm(b+1))}, {sp(sA)}")
            I(f"s_or_b64 {sp(mm(b+2))}, {sp(mm(b+2))}, {sp(sA)}")
            I(f"s_or_b64 {sp(mm(b+3))}, {sp(mm(b+3))}, {sp(t1)}")
            for i in rs:
                I(f"v_cndmask_b32 v{vHA+i}, 0, v{vK1}, {sp(mm(i))}")
                I(f"v_lshl_add_u32 v{vHA+i}, v{vBK+i}, 2, v{vHA+i}")
                I(f"ds_add_rtn_u32 v{vRK1+i}, v{vHA+i}, v{one} offset:{HIST1}")
            return
        for i in rs: I(f"v_lshrrev_b32 v{vBK+i}, 24, v{vBK+i}")
        for i in rs:
            I(f"v_lshlrev_b32 v{vHA+i}, 2, v{vBK+i}")
            I(f"ds_add_rtn_u32 v{vRK1+i}, v{vHA+i}, v{one} offset:{HIST1}")
    def again(rs, wait, em):
        for i in rs:
            I(f"s_waitcnt lgkmcnt({wait})")
            I(f"s_mov_b64 exec, {sp(mm(i))}")
            I(f"v_cmpx_le_u32 vcc, {33*JE}, v{vRK1+i}")
            I(f"ds_add_rtn_u32 v{vRK1+i}, v{vHA+i}, v{one} offset:{HIST1 - 1024}")
        I(f"s_mov_b64 exec, {em}")
    def rank_b(rs):
        for i in rs:
            I(f"v_mad_i32_i24 v{vD+i}, v{vBK+i}, s{cN}, v{vD+i}")
            I(f"v_mul_u32_u24 v{u(6)}, s{cP}, v{vSR+i}")
            I(f"v_lshl_or_b32 v{vSR+i}, v{vD+i}, 18, v{vSR+i}")
            if opt("rot", 1):
                I(f"v_and_b32 v{vD+i}, 0xe0, v{vBK+i}")
                I(f"v_mad_i32_i24 v{u(6)}, v{vD+i}, s{sSP}, v{u(6)}")
            I(f"v_and_or_b32 v{u(6)}, v{u(6)}, s{cPM}, v{icr(i)}")
            I(f"v_mad_u32_u24 v{vD+i}, v{vBK+i}, {LROW//4}, s{cN+4}")
            I(f"v_or_b32 v{vSR+i}, v{vSR+i}, v{u(6)}")
    def place(i, wait, em):
        I(f"s_waitcnt lgkmcnt({wait})")
        I(f"v_bfe_u32 v{u(6)}, v{vRK1+i}, 3, 5")
        I(f"v_add_lshl_u32 v{vD+i}, v{u(6)}, v{vD+i}, 2")
        I(f"v_and_b32 v{u(6)}, 3, v{u(6)}")
        I(f"v_mad_i32_i24 v{u(6)}, v{u(6)}, -3, v{vD+i}")
        I(f"v_cmpx_gt_u32 vcc, {33*CAP}, v{vRK1+i}")
        I(f"ds_write_b32 v{vD+i}, v{vSR+i}")
        I(f"ds_write_b8 v{u(6)}, v{idr(i)} offset:12")
        I(f"s_mov_b64 exec, {em}")
    I(f"s_movk_i32 s{cN+4}, {CIMG//4}")
    for d in range(2): I(f"v_mov_b64 {rr(vRK1+4+2*d,2)}, 0")
    I("s_waitcnt lgkmcnt(0)")
    I("s_barrier")
    if BAL:
        m3 = sM + 28
        I("s_waitcnt vmcnt(3)")
        stamp(1)
        if TS: STN.pop()
        rank_a(range(4))
        I("s_waitcnt vmcnt(2)")
        I(f"s_mov_b64 exec, {sp(m2)}")
        rank_a(range(4, 6))
        if MG: again(range(4), 5, "-1")
        else: I("s_mov_b64 exec, -1")
        I("s_waitcnt vmcnt(0)")
        rank_b(range(6))
        I(f"s_mov_b64 exec, {sp(m2)}")
        for i in range(4, 6): place(i, (1 if MG else -3) + i, sp(m2) if i < 5 else "-1")
        for i in range(4): place(i, 7 + i, "-1")
        I(f"s_mov_b64 exec, {sp(m3)}")
        I("s_cbranch_execz L_B1")
        rank_a([6]); rank_b([6]); place(6, 0, "-1")
        I("s_branch L_B1")
    I(f"s_cmp_eq_u64 {sp(m2)}, 0" if FH else f"s_cmp_ge_u32 s{sWP}, 5")
    I("s_cbranch_scc1 L_R4")
    I(f"s_waitcnt vmcnt({3+KV})")
    stamp(1)
    rank_a(range(4), 2)
    I(f"s_waitcnt vmcnt({1+KV})")
    I(f"s_mov_b64 exec, {sp(m2)}")
    rank_a(range(4, 8))
    if MG == 0:
        I("s_mov_b64 exec, -1")
        rank_b(range(4))
        for i in range(4): place(i, 7 + i, "-1" if i < 3 else sp(m2))
        I(f"s_waitcnt vmcnt({KV})")
        rank_b(range(4, 8))
        for i in range(4, 8): place(i, 7 + i, sp(m2) if i < 7 else "-1")
    elif MG == 1:
        again(range(4), 7, sp(m2))
        I(f"s_waitcnt vmcnt({KV})")
        rank_b(range(4, 8))
        for i in range(4, 8): place(i, 3 + i, sp(m2) if i < 7 else "-1")
        rank_b(range(4))
        for i in range(4): place(i, 11 + i, "-1")
    else:
        again(range(8), 7, "-1")
        rank_b(range(4))
        for i in range(4): place(i, 7 + i, "-1" if i < 3 else sp(m2))
        I(f"s_waitcnt vmcnt({KV})")
        rank_b(range(4, 8))
        for i in range(4, 8): place(i, 7 + i, sp(m2) if i < 7 else "-1")
    I("s_branch L_B1")
    L("L_R4")
    if OY:
        I(f"s_cmp_ge_u32 s{sWP}, {OW0}")
        I("s_cbranch_scc1 L_R4A")
        I(f"s_waitcnt vmcnt({KV})")
        L("L_R4A")
    I(f"s_waitcnt vmcnt({1 + OY + KV})")
    if TS: STN.pop()
    stamp(1)
    YM = opt("ym", 1)
    rank_a(range(4), plain=not YM)
    I(f"s_waitcnt vmcnt({OY + KV})")
    if MG and YM:
        rank_b(range(2))
        again(range(4), 3, "-1")
        rank_b(range(2, 4))
    else: rank_b(range(4))
    for i in range(4): place(i, 3 + i, "-1")
    L("L_B1")
    if BAL:
        k_ = max(i for i, l in enumerate(out) if l.strip() == "s_cbranch_execz L_B1")
        e_ = next(i for i in range(k_, len(out)) if out[i].strip() == "s_branch L_B1")
        del out[e_:len(out)-1]
        I("s_mov_b64 exec, -1")
    WL = opt("wl", 0)
    if not WL: w_loads()
    vTG = vS + 2
    def tagcalc():
        I(f"s_add_u32 s{sK}, s{sK}, {KINC:#x}")
        I(f"v_lshlrev_b32 v{vTG}, v{vcS}, s{sK}")
        I(f"v_and_b32 v{u(1)}, 4, v{lane}")
        I(f"v_mul_u32_u24 v{u(1)}, {37 << 15}, v{u(1)}")
        I(f"v_lshl_add_u32 v{vTG}, v{u(1)}, 8, v{vTG}")
        I(f"v_and_b32 v{vTG}, 0xfe000000, v{vTG}")
    if not KV: tagcalc()
    vTH = vS + 3
    I(f"v_and_b32 v{vTH}, 7, v{lane}")
    I(f"v_mul_u32_u24 v{vTH}, 33, v{vTH}")
    I(f"v_add_u32 v{vTH}, {33*CAP}, v{vTH}")
    if not TW: I(f"v_lshlrev_b32 v{lo2}, 2, v{ha}")
    I(f"s_mov_b32 s{cM}, 0x1000000")
    I("s_waitcnt lgkmcnt(0)")
    I("s_barrier")
    stamp(2)
    vO, vHS = vQ, u(4)
    I(f"ds_read_b128 {rr(vHS,4)}, v{l16} offset:{HIST1}")
    vHD = vR + 8
    for i in range(4):
        if TW:
            I(f"ds_read_b32 v{vHD+i}, v{(lo2, l2b)[i>>1]} offset:{HIST1 + 32*(i&1)}")
            I(f"ds_read_b128 {rr(vO+4*i,4)}, v{(lo, lob)[i>>1]} offset:{8*LROW*(i&1)}")
            continue
        I(f"ds_read_b32 v{vHD+i}, v{lo2} offset:{HIST1 + 256*i}")
        I(f"ds_read_b128 {rr(vO+4*i,4)}, v{lo} offset:{64*LROW*i}")
    if KV:
        I("s_waitcnt vmcnt(4)")
        I(f"v_readfirstlane_b32 s{sK}, v{vEA+1}")
    if TW:
        for h in range(2):
            I(f"s_mul_i32 s{sM+15+2*h}, s{sRG+h}, {RS}")
            I(f"s_add_u32 s{sM+16+2*h}, s{sM+15+2*h}, {8*RS}")
    else:
        for i in range(1, 4): I(f"s_mov_b32 s{sM+15+i}, {64*RS*i}")
    if KV: tagcalc()
    I("s_waitcnt lgkmcnt(8)")
    I(f"v_max3_u32 v{u(0)}, v{vHS}, v{vHS+1}, v{vHS+2}")
    I(f"v_max_u32 v{u(0)}, v{u(0)}, v{vHS+3}")
    I(f"v_cmp_lt_u32 vcc, {33*(CAP+8)}, v{u(0)}")
    I("s_cbranch_vccnz L_POVF")
    L("L_POUT")
    for i in range(4):
        I(f"s_waitcnt lgkmcnt({7 - 2*i})")
        I(f"v_sub_u32 v{vHD+i}, v{vTH}, v{vHD+i}")
        I(f"v_and_or_b32 v{vHD+i}, v{vHD+i}, s{cM}, v{vTG}")
        I(f"s_waitcnt lgkmcnt({6 - 2*i})")
        I(f"v_or_b32 v{vO+4*i+3}, v{vO+4*i+3}, v{vHD+i}")
        I(f"buffer_store_dwordx4 {rr(vO+4*i,4)}, v{go}, {sq(sCEL)}, {f's{sM+15+i}' if i or TW else '0'} offen{pol(STP)}")
    stamp(3)
    if WL: w_loads()
    if "c" in opt("tsx", ""): I("s_waitcnt vmcnt(0)")
    stamp("c0")
    t = vACC + 32
    I(f"s_mov_b32 s{sA}, {f2u(-LOG2E):#x}")
    I(f"s_mov_b32 s{sBt}, s{sA}")
    I(f"s_mov_b32 s{cM}, 0x05040100")
    I(f"s_mov_b32 s{cP}, 0x07060302")
    def wscaled(src, off):
        for d in range(4):
            I(f"v_lshlrev_b32 v{t+2*d}, 16, v{src+d}")
            I(f"v_and_b32 v{t+2*d+1}, 0xffff0000, v{src+d}")
        for d in range(4): I(f"v_pk_mul_f32 {rr(t+2*d,2)}, {rr(t+2*d,2)}, {sp(sA)}")
        for n in range(4): I(f"v_cvt_pk_bf16_f32 v{t+8+n}, v{t+n}, v{t+4+n}")
        wput(t + 8, off)
    def wplain(src, off, tt):
        for n in range(4): I(f"v_perm_b32 v{tt+n}, v{src+2+(n>>1)}, v{src+(n>>1)}, s{cP if n & 1 else cM}")
        wput(tt, off)
    def wput(r, off):
        a = wl
        if off:
            a = r + 4
            I(f"v_add_u32 v{a}, {off}, v{wl}")
        I(f"ds_write2_b32 v{a}, v{r}, v{r+1} offset0:0 offset1:8")
        I(f"ds_write2_b32 v{a}, v{r+2}, v{r+3} offset0:16 offset1:24")
    I(f"s_waitcnt vmcnt({0 if WL else 4})")
    if PFP == 0: x_prefetch()
    stamp("b4")
    wplain(vRW + 8, WAI - WBI, t + 16)
    wscaled(vRW, 0)
    wplain(vRW + 4, WVI - WBI, t + 24)
    wplain(vRW + 12, WUI - WBI, t + 16)
    I(f"s_cmp_ge_u32 s{sWP}, 2")
    I("s_cbranch_scc1 L_NOWC")
    wscaled(vEO, WCI - WBI)
    L("L_NOWC")
    I(f"s_mul_i32 s{sTM}, s{sB}, {RS}")
    I(f"s_add_u32 s{sTM}, s{sTM}, {WS_CELL}")
    srd(sCEL, pWS, 256*128, f"s{sTM}")
    I(f"s_add_u32 s{sTM}, s{sTM}, {XOFF}")
    srd(sD2, pWS, 256*128, f"s{sTM}")
    vC, vEB = vACC + 32, vACC + 60
    pa = vT16
    def goff(d, k):
        if not TW: return I(f"s_movk_i32 s{d}, {8192*k}")
        I(f"s_sub_u32 s{d}, {64*k + 63}, s{sB}")
        I(f"s_and_b32 s{d}, s{d}, 0xc0")
        I(f"s_lshl_b32 s{d}, s{d}, 7")
    for k in range(4): goff(sCI + k, k)
    def poll_load(i):
        so = f"s{sCI+i}"
        I(f"buffer_load_dwordx4 {rr(vC+4*i,4)}, v{pa}, {sq(sCEL)}, {so} offen sc1")
    I("s_waitcnt lgkmcnt(0)")
    I("s_barrier")
    stamp(4)
    def ppoint(k):
        for i in range(4):
            if TW and int(TW[i]) == k: poll_load(i)
    ppoint(0)
    if WL == 1:
        for i in range(4): poll_load(i)
    if PFP == 1: x_prefetch()
    if OLP == 0: own_loads()
    vWA = vACC
    I(f"v_add_u32 v{wal}, {WBI}, v{wal}")
    def trw(reg, img):
        return [f"ds_read_b64_tr_b16 {rr(reg+8*n+4*s+2*uu,2)}, v{wal} offset:{img + (32*s + 8*uu)*WR + 32*n}"
                for n in range(4) for s in range(2) for uu in range(2)]
    tw = trw(vWB, 0) + trw(vWV, WVI - WBI)
    for x_ in tw[:14]: I(x_)
    prefill(vCA)
    ppoint(1)
    if WL == 2:
        for i in range(4): poll_load(i)
    for x_ in tw[14:24]: I(x_)
    nxt = 24
    I(f"v_mov_b32 v{u(4)}, v{wal}")
    I("s_mov_b32 exec_lo, 0")
    I(f"v_subrev_u32 v{u(4)}, {16*WR}, v{wal}")
    I("s_mov_b32 exec_lo, -1")
    tw += [f"ds_read_b64_tr_b16 {rr(vCA+16+4*n+2*uu,2)}, v{u(4)} offset:{WCI - WBI + 8*uu*WR + 32*n}" for n in range(4) for uu in range(2)]
    vEM, vET = vEO, vACC + 56
    ownn, owna, mapa = vEO + 1, vEO + 2, vEO + 3
    I("s_waitcnt lgkmcnt(4)")
    for x_ in tw[nxt:]: I(x_)
    I(f"v_add_u32 v{wal}, {WAI - WBI}, v{wal}")
    ppoint(2)
    vFF = vEO + 4
    vMU = vR + 8
    lo0, hi0, lo1, hi1 = sWS0, sWS1, sB0E, sSH
    def late_setup():
        I(f"v_and_b32 v{vCH}, 1, v{lane}")
        I(f"v_lshlrev_b32 v{vCH}, 4, v{vCH}")
        I(f"v_mov_b32 v{vONE}, 0x3f80")
        I(f"v_and_b32 v{vcEO}, 16, v{lane}")
        I(f"v_and_b32 v{u(6)}, 15, v{lane}")
        I(f"v_lshl_add_u32 v{u(6)}, v{u(6)}, 5, s{sES}")
        I("s_mov_b32 exec_hi, 0")
        I(f"v_add_u32 v{vcEO}, v{vcEO}, v{u(6)}")
        I("s_mov_b32 exec_hi, -1")
        I(f"v_and_b32 v{u(6)}, 3, v{lane}")
        I(f"v_bfe_u32 v{u(8)}, v{lane}, 2, 2")
        I(f"v_and_b32 v{u(9)}, 48, v{lane}")
        I(f"v_lshl_add_u32 v{u(10)}, v{u(8)}, 7, v{u(9)}")
        I(f"v_mul_u32_u24 v{vAX}, {XI}, v{u(6)}")
        I(f"v_add3_u32 v{vAX}, v{vAX}, v{u(10)}, s{sSTG}")
        listaddr(u(6))
        I(f"v_mul_u32_u24 v{vEB+3}, {CH}, v{ha}")
        for i in range(4):
            if not TW:
                I(f"v_add_u32 v{vEB+i}, {64*i*CH}, v{vEB+3}"); continue
            I(f"s_lshr_b32 s10, s{sCI+i}, 7")
            I(f"s_mul_i32 s10, s10, {CH}")
            I(f"v_add_u32 v{vEB+i}, s10, v{vEB+3}")
        I(f"s_mov_b32 s{sEM}, {EMASK:#x}")
        I(f"s_mov_b32 s{sEM+1}, {EMASK:#x}")
        vFF = vEO + 4
        I(f"v_mov_b32 v{vFF}, 0xfffff")
        I(f"v_mov_b32 v{vEM}, 0")
        I(f"v_add_lshl_u32 v{u(3)}, v{pa}, v{vCP}, 16")
        for i in range(4):
            I(f"v_add_u32 v{vET+i}, {(EARLY + 8192*i) << 16:#x}, v{u(3)}")
            I(f"v_cndmask_b32 v{vET+i}, 0, v{vET+i}, {sp(sEM)}")
        I(f"v_mov_b32 v{one}, 4")
        I(f"v_and_b32 v{ownn}, 31, v{lane}")
        I(f"v_add_lshl_u32 v{mapa}, v{ownn}, s{sWIN}, 2")
        I(f"v_lshrrev_b32 v{u(3)}, 5, v{lane}")
        I(f"v_lshl_add_u32 v{owna}, v{u(3)}, 11, v{mapa}")
        I(f"v_add_u32 v{mapa}, {MAP}, v{mapa}")
        I(f"v_lshlrev_b32 v{u(3)}, 2, v{lane}")
        I(f"v_subrev_u32 v{u(3)}, s{sWIN}, v{u(3)}")
        I("s_mov_b32 s10, 0x10000")
        for i in range(4):
            I(f"v_add_u32 v{vMU+i}, {i}, v{u(3)}")
            I(f"v_and_or_b32 v{vMU+i}, v{vMU+i}, s10, 1")
        I(f"s_movk_i32 s{sFM}, 0xffc")
        I(f"s_movk_i32 s{sSKIP}, {CAP+8}")
        I(f"s_mov_b32 s{sXT}, 0")
        I(f"s_mov_b32 s{sSP}, 0")
        I(f"s_mov_b32 s{sT}, 0x1ffffff")
        I(f"s_mov_b32 s{sN}, 0xffff")
        lo0, hi0, lo1, hi1 = sWS0, sWS1, sB0E, sSH
        I(f"s_mul_i32 s10, s{sW}, 49")
        I(f"s_sub_i32 s{lo0}, s10, 6")
        I(f"s_ashr_i32 s{lo0}, s{lo0}, 1")
        I(f"s_add_i32 s{hi0}, s10, 7")
        I(f"s_ashr_i32 s{hi0}, s{hi0}, 1")
        I(f"s_add_i32 s{lo1}, s10, 43")
        I(f"s_ashr_i32 s{lo1}, s{lo1}, 1")
        I(f"s_add_i32 s{hi1}, s{lo0}, 31")
        I(f"s_cmp_eq_u32 s{sW}, 7")
        I(f"s_cselect_b32 s{lo1}, {BN}, s{lo1}")
        I(f"s_cselect_b32 s{hi1}, {BN}, s{hi1}")
        for r_ in (hi0, lo1, hi1): I(f"s_sub_i32 s{r_}, s{r_}, s{sWIN}")
    LS = opt("ls", 0)
    if LS == 0: late_setup()
    stamp("b0")
    if opt("pw", 1) and not WL: I(f"s_waitcnt vmcnt({sum(c != '3' for c in TW)})")
    stamp("b1")
    if opt("pbar", 0): I("s_barrier")
    if TW: ppoint(3)
    elif WL in (0, 3):
        for i in range(4): poll_load(i)
    if OLP == 1: own_loads()
    if LS == 1: late_setup()
    PY = 4 if OLP == 1 else 0
    I(f"v_max3_u32 v{u(0)}, v{vRK1}, v{vRK1+1}, v{vRK1+2}")
    I(f"v_max3_u32 v{u(1)}, v{vRK1+3}, v{vRK1+4}, v{vRK1+5}")
    I(f"v_max3_u32 v{u(0)}, v{u(0)}, v{vRK1+6}, v{vRK1+7}")
    I(f"v_max_u32 v{u(0)}, v{u(0)}, v{u(1)}")
    I(f"v_cmp_le_u32 vcc, {33*CAP}, v{u(0)}")
    I("s_cbranch_vccz L_PEXTR")
    q = vCA
    if TS: I(f"v_writelane_b32 v{vTS}, 1, 61")
    I(f"v_mov_b32 v{q+1}, s{sK}")
    I(f"s_lshl_b32 s{sTM}, s2, 7")
    I(f"s_add_u32 s{sTM}, s{sTM}, {WS_CELL + XOFF}")
    for i in range(NR):
        I(f"v_subrev_u32 v{q+4}, {33*CAP}, v{vRK1+i}")
        I(f"v_cmpx_gt_u32 vcc, {33*8}, v{q+4}")
        I(f"s_cbranch_execz L_PE{i}")
        I(f"v_mov_b32 v{q}, v{vSR+i}")
        I(f"v_mov_b32 v{q+2}, v{idr(i)}")
        I(f"v_bfe_u32 v{q+4}, v{vRK1+i}, 5, 3")
        I(f"v_lshlrev_b32 v{q+4}, 4, v{q+4}")
        I(f"v_mad_u32_u24 v{q+4}, v{vBK+i}, s{cR}, v{q+4}")
        I(f"buffer_store_dwordx4 {rr(q,4)}, v{q+4}, {sq(sWS)}, s{sTM} offen sc1")
        L(f"L_PE{i}")
        I("s_mov_b64 exec, -1")
    L("L_PEXTR")
    stamp(5)
    vA, vRK, vR1 = vACC, vACC + 16, vQ
    mk = lambda i, j: sM + 2*(4*i + j)
    def rec_ops(d, x, byte, eb, a, r1):
        return [f"v_add_u32_sdwa v{r1}, v{x}, v{eb} {SDW} src0_sel:BYTE_{byte} src1_sel:DWORD",
                f"v_lshrrev_b32 v{u(1)}, 28, v{d}",
                f"v_lshl_add_u32 v{r1}, v{u(1)}, 8, v{r1}",
                f"v_and_b32 v{u(1)}, 60, v{a}",
                f"v_and_b32 v{d}, 0xffff, v{d}",
                f"v_lshl_or_b32 v{d}, v{u(1)}, 19, v{d}"]
    def spin():
        I(f"s_add_u32 s{sSP}, s{sSP}, 1")
        I(f"s_cmp_gt_u32 s{sSP}, {opt('spin', 200000)}")
        I("s_cbranch_scc1 L_END")
        if opt("slp", 1): I(f"s_sleep {opt('slp', 1)}")
    xg = vCA
    def xload(tag):
        for i in range(4):
            I(f"s_mov_b64 exec, {sp(mk(i,3))}")
            I(f"s_cbranch_execz L_XL{tag}{i}")
            goff(10, i)
            I(f"buffer_load_dwordx4 {rr(xg+4*i,4)}, v{pa}, {sq(sD2)}, s10 offen sc1")
            L(f"L_XL{tag}{i}")
        I("s_mov_b64 exec, -1")
    for i in range(4):
        c_ = vC + 4*i
        L(f"L_PW{i}")
        I(f"s_waitcnt vmcnt({3 - i + PY})")
        I(f"v_xor_b32 v{u(0)}, v{c_+3}, v{vTG}")
        for j in range(3): I(f"v_and_b32_sdwa v{vA+4*i+j}, v{c_+j}, s{sFM} {SDW} src0_sel:WORD_1 src1_sel:DWORD")
        I(f"v_cmp_lt_u32 vcc, s{sT}, v{u(0)}")
        for j in range(3): I(f"v_cmp_ne_u32 {sp(mk(i,j))}, 0, v{c_+j}")
        I(f"s_cbranch_vccnz L_RT{i}")
        if i == 3: stamp(6)
        for j in range(3):
            I(f"s_mov_b64 exec, {sp(mk(i,j))}")
            I(f"ds_add_rtn_u32 v{vRK+4*i+j}, v{vA+4*i+j}, v{one} offset:{HIST}")
        I("s_mov_b64 exec, -1")
        I(f"v_or_b32 v{vEM}, v{vEM}, v{c_+1}")
        if i == 3:
            I(f"v_or3_b32 v{u(2)}, v{vC+3}, v{vC+7}, v{vC+11}")
            I(f"v_or_b32 v{u(2)}, v{u(2)}, v{vC+15}")
            I(f"v_and_b32 v{u(2)}, 0x1000000, v{u(2)}")
            I(f"v_cmp_ne_u32 vcc, 0, v{u(2)}")
            I("s_cbranch_vccz L_XT1R")
            def xt1():
                if TS: I(f"v_writelane_b32 v{vTS}, 1, 62")
                for i in range(4):
                    I(f"v_and_b32 v{u(2)}, 0x1000000, v{vC+4*i+3}")
                    I(f"v_cmp_ne_u32 {sp(mk(i,3))}, 0, v{u(2)}")
                    I(f"s_bcnt1_i32_b64 s10, {sp(mk(i,3))}")
                    I(f"s_lshl2_add_u32 s{sXT}, s10, s{sXT}")
                xload("a")
                I(f"v_and_b32 v{u(2)}, 0x10000, v{vEM}")
                I(f"v_mov_b32 v{u(3)}, {FLAG}")
                I(f"v_cmpx_ne_u32 vcc, 0, v{u(2)}")
                I(f"ds_write_b32 v{u(3)}, v{one} offset:4")
                I("s_mov_b64 exec, 1")
                I(f"v_mov_b32 v{u(2)}, s{sXT}")
                I(f"ds_add_u32 v{u(3)}, v{u(2)} offset:8")
                I("s_mov_b64 exec, -1")
            xt1()
            L("L_XT1R")
        ro = [rec_ops(c_+j, c_+3, j, vEB+i, vA+4*i+j, vR1+4*i+j) for j in range(3)]
        e_ = vR1 + 4*i + 3
        put(ro[0])
        if JE:
            I(f"v_cndmask_b32 v{u(0)}, v{vFF}, v{vR1+4*i}, {sp(mk(i,0))}")
            I(f"v_max_u32 v{vR1+4*i}, v{vR1+4*i}, v{vET+i}")
        put(ro[1])
        if JE:
            I(f"v_mov_b32_dpp v{u(2)}, v{u(0)} quad_perm:[2,2,3,3] row_mask:0xf bank_mask:0xf")
            I(f"v_mov_b32_dpp v{e_}, v{u(0)} quad_perm:[0,0,1,1] row_mask:0xf bank_mask:0xf")
        if i < 3: put(ro[2])
        else:
            put(ro[2][:3])
            fill = [x.replace(f"v{u(1)}", f"v{vQD+3}") for x in ro[2][3:]]
        if JE: I(f"v_mov_b32_dpp v{e_}, v{u(2)} row_shr:4 row_mask:0xf bank_mask:0xa")
    I(f"v_mov_b32 v{u(9)}, {FLAG}")
    if OLP == 2: own_loads()
    if PFP == 2: x_prefetch()
    I("s_waitcnt lgkmcnt(0)")
    stamp("d0")
    I("s_barrier")
    stamp(7)
    def early(i):
        if not JE: return
        I(f"s_lshl_b32 m0, s{sWP}, 10")
        I(f"v_mov_b32 v{vEI}, v{vR1+4*i+3}")
        I(f"s_add_u32 m0, m0, {EARLY + 8192*i}")
        if JE < 4:
            I(f"s_mov_b32 exec_lo, {((1 << 2*JE) - 1) * 0x01010101:#x}")
            I("s_mov_b32 exec_hi, exec_lo")
        else: I("s_nop 0")
        I(f"buffer_load_dwordx4 {rr(vEI,2)}, {sq(sEP)}, 0 idxen offen{pol(opt('eep', ''))} lds")
        if JE < 4: I("s_mov_b64 exec, -1")
    EPOS = opt("epos", "0134")
    def epoint(k):
        for i in range(4):
            if int(EPOS[i]) == k: early(i)
    c, p, tot, sc = u(0), u(4), u(8), u(9)
    hh = vX
    own, to2, ex, z_, eh, el = u(10), u(11), u(12), u(13), u(14), u(15)
    SD = f"{SDW} src0_sel:WORD_0 src1_sel:WORD_0"
    HL = f"{SDW} src0_sel:WORD_0 src1_sel:WORD_1"
    I(f"ds_read_u16 v{own}, v{owna} offset:{HIST}")
    I(f"ds_read_u16 v{to2}, v{owna} offset:{HIST + 1024}")
    for ph in range(4):
        I(f"ds_read_b128 {rr(hh+4*ph,4)}, v{l16} offset:{HIST + 1024*ph}")
    I(f"ds_read_b32 v{vQD}, v{sc} offset:8")
    if OLP == 4: own_loads()
    epoint(0)
    I("s_cmp_lg_u32 s2, 0")
    I("s_cbranch_scc1 L_NOK")
    I(f"v_mov_b32 v{vQD+1}, s{sK}")
    I(f"v_mov_b32 v{vQD+2}, 0")
    I(f"buffer_store_dword v{vQD+1}, v{vQD+2}, {sq(sWS)}, 0 offen sc1")
    L("L_NOK")
    I("s_waitcnt lgkmcnt(5)")
    I(f"v_lshl_or_b32 v{own}, v{to2}, 16, v{own}")
    I(f"v_mov_b32 v{to2}, v{own}")
    I("s_waitcnt lgkmcnt(0)")
    stamp("d1")
    f2 = []
    for i in range(4):
        f2 += [f"v_add_u32_sdwa v{c+i}, v{hh+i}, v{hh+4+i} {SD}", f"v_add_u32_sdwa v{p+i}, v{hh+8+i}, v{hh+12+i} {SD}"]
    f2 += [f"v_add_u32 v{c+i}, v{c+i}, v{p+i}" for i in range(4)]
    wave_scan(to2, f2, half=True)
    put(f2)
    I(f"v_mul_u32_u24 v{tot}, v{c}, v{vMU}")
    for i in range(1, 4): I(f"v_mad_u32_u24 v{tot}, v{c+i}, v{vMU+i}, v{tot}")
    f2 = [f"v_sub_u32 v{ex}, v{to2}, v{own}", f"v_add_u32_sdwa v{eh}, v{to2}, v{to2} {HL}",
          f"v_add_u32_sdwa v{z_}, v{ex}, v{ex} {HL}", f"v_add_u32_sdwa v{el}, v{own}, v{own} {HL}",
          fill.pop(0), f"v_readfirstlane_b32 s{sMORE}, v{vQD}",
          f"v_permlane32_swap_b32 v{z_}, v{eh}", f"v_cndmask_b32 v{el}, 0, v{el}, {sp(sJ3)}",
          f"v_add_u32 v{z_}, v{z_}, v{eh}", fill.pop(0),
          f"v_add_u32 v{eh}, v{z_}, v{el}", fill.pop(0)]
    I(f"s_mov_b32 s{sJ3}, -1")
    I(f"s_mov_b32 s{sJ3+1}, 0")
    wave_scan(tot, f2)
    assert not f2
    stamp("d2")
    I(f"v_sub_u32_sdwa v{el}, v{eh}, v{own} {SDW} src0_sel:DWORD src1_sel:WORD_1")
    I(f"v_readlane_b32 s{sT}, v{tot}, 63")
    epoint(1)
    ASYM = opt("asym", 12)
    I(f"s_bfe_u32 s10, s{sT}, 0xe0002")
    I(f"s_lshr_b32 s{sT}, s{sT}, 16")
    I("s_lshr_b32 s11, s10, 1")
    I(f"s_add_u32 s11, s11, {4*ASYM}")
    I("s_and_b32 s11, s11, -128")
    I(f"s_lshr_b32 s{sF0}, s{sW}, 1")
    I(f"s_mul_i32 s{sF0}, s{sF0}, s10")
    I(f"s_sub_i32 s11, s11, {4*ASYM}")
    I(f"s_sub_i32 s{sF0}, s{sF0}, s{sT}")
    I(f"s_add_i32 s11, s11, s{sF0}")
    I(f"s_add_i32 s10, s10, s{sF0}")
    I(f"s_bitcmp1_b32 s{sW}, 0")
    I(f"s_cselect_b32 s{sEND}, s11, s{sF0}")
    I("s_cselect_b32 s10, s10, s11")
    I(f"v_cmp_gt_i32 vcc, s{sEND}, v{eh}")
    I(f"v_cmp_gt_i32 {sp(sTM)}, s10, v{eh}")
    f0, f1 = sWS0, sWS1
    I(f"s_bcnt1_i32_b32 s{f0}, vcc_lo")
    I(f"s_bcnt1_i32_b32 s10, s{sTM}")
    I(f"s_min_i32 s{f0}, s{f0}, s{hi0}")
    I(f"s_max_i32 s10, s10, s{lo1}")
    I(f"s_min_i32 s{f1}, s10, s{hi1}")
    stamp("d3")
    epoint(2)
    A01, A23, E01, E23, Z1 = sCI, sCUR, sR0, sCNT, sST
    I(f"v_readlane_b32 s{sT}, v{z_}, s{f0}")
    I(f"v_readlane_b32 s{Z1}, v{z_}, s{f1}")
    I(f"s_add_u32 s{sF0}, s{f0}, s{sWIN}")
    I(f"s_add_u32 s{sF1}, s{f1}, s{sWIN}")
    I(f"s_add_u32 s10, s{f0}, 32")
    I(f"s_add_u32 s11, s{f1}, 32")
    I(f"v_readlane_b32 s{A01}, v{ex}, s{f0}")
    I(f"v_readlane_b32 s{E01}, v{ex}, s{f1}")
    I(f"v_readlane_b32 s{A23}, v{ex}, s10")
    I(f"v_readlane_b32 s{E23}, v{ex}, s11")
    I(f"s_sub_u32 s{sEND}, s{Z1}, s{sT}")
    I(f"s_add_u32 s10, s{sEND}, 255")
    if opt("flr", 1):
        I(f"s_sub_i32 s11, s{f1}, 16")
        I(f"s_max_i32 s11, s11, s{f0}")
        I(f"v_readlane_b32 s11, v{z_}, s11")
        I(f"s_add_u32 vcc_lo, s{sEND}, 127")
        I(f"s_and_b32 vcc_hi, vcc_lo, 127")
        I(f"s_add_u32 vcc_hi, vcc_hi, s{sMORE}")
        I(f"s_cmp_lt_u32 vcc_hi, 55")
        I(f"s_cselect_b32 vcc_lo, vcc_lo, s10")
        I(f"s_sub_u32 s11, s11, s{sT}")
        I(f"s_add_u32 s11, s11, s{sMORE}")
        I(f"s_lshl_b32 s11, s11, 1")
        I(f"s_and_b32 vcc_lo, vcc_lo, -256")
        I(f"s_cmp_le_u32 s11, vcc_lo")
        I(f"s_cselect_b32 s10, vcc_lo, s10")
    I("s_lshr_b32 s10, s10, 8")
    I("s_lshl_b32 s10, s10, 7")
    I(f"s_sub_u32 s10, s10, s{sMORE}")
    I("s_max_i32 s10, s10, 0")
    I(f"s_add_u32 s{sT}, s{sT}, s10")
    I(f"s_add_u32 s10, s{f0}, 16")
    I(f"s_min_u32 s10, s10, s{f1}")
    I(f"s_sub_i32 s11, s{f1}, 16")
    inl, inh, mo = sTM, sTM + 2, sMSK
    I(f"v_cmp_ge_u32 {sp(inl)}, s{sT}, v{el}")
    I(f"v_cmp_ge_u32 {sp(inh)}, s{sT}, v{eh}")
    I(f"v_cmp_gt_i32 vcc, s10, v{ownn}")
    I(f"v_cmp_gt_i32 {sp(sA)}, s11, v{ownn}")
    I(f"v_cmp_le_u32 {sp(mo)}, s{f0}, v{ownn}")
    I(f"v_cmp_gt_u32 {sp(sJ3)}, s{f1}, v{ownn}")
    I(f"s_and_b64 {sp(inl)}, {sp(inl)}, vcc")
    I(f"s_and_b64 {sp(inh)}, {sp(inh)}, vcc")
    I(f"s_or_b64 {sp(inl)}, {sp(inl)}, {sp(sA)}")
    I(f"s_or_b64 {sp(inh)}, {sp(inh)}, {sp(sA)}")
    I(f"s_bcnt1_i32_b32 s{sB0E}, s{inl}")
    I(f"s_bcnt1_i32_b32 s10, s{inh}")
    I(f"s_bcnt1_i32_b32 s11, s{inl+1}")
    I(f"s_bcnt1_i32_b32 s{sSH}, s{inh+1}")
    I(f"v_readlane_b32 s{f0}, v{ex}, s{sB0E}")
    I(f"v_readlane_b32 s10, v{ex}, s10")
    I("s_add_u32 s11, s11, 32")
    I(f"s_add_u32 s{sT}, s{sSH}, 32")
    I(f"v_readlane_b32 s{f1}, v{ex}, s11")
    I(f"v_readlane_b32 s11, v{ex}, s{sT}")
    I(f"v_mov_b32 v{c}, s{sN}")
    I(f"v_cndmask_b32 v{c+1}, 0, v{c}, {sp(inl)}")
    I(f"v_cndmask_b32 v{c}, 0, v{c}, {sp(inh)}")
    I(f"s_and_b64 {sp(mo)}, {sp(mo)}, {sp(sJ3)}")
    Q01, Q23 = f0, f1
    I(f"s_pack_lh_b32_b16 s{Q01}, s{f0}, s10")
    I(f"s_pack_lh_b32_b16 s{Q23}, s{f1}, s11")
    I(f"v_lshl_or_b32 v{c}, v{c}, 16, v{c+1}")
    I(f"s_sub_u32 s{sT}, s{sL}, {R0 - BIAS}")
    I(f"s_pack_ll_b32_b16 s{sT}, s{sT}, s{sT}")
    def bases(lo01, lo23, hi01, hi23, d, keep=None):
        I(f"s_sub_u32 s10, s{hi01}, s{lo01}")
        I(f"s_sub_u32 s11, s{hi23}, s{lo23}")
        I(f"s_mul_i32 s10, s10, 0x10001")
        I(f"s_lshl_b32 vcc_lo, s10, 16")
        I(f"s_pack_hh_b32_b16 s10, s10, s10")
        I(f"s_lshl_b32 vcc_hi, s11, 16")
        I(f"s_add_u32 vcc_hi, vcc_hi, s10")
        if keep is not None:
            I(f"s_add_u32 s{keep}, vcc_hi, s11")
            I(f"s_lshr_b32 s{keep}, s{keep}, 16")
            I(f"s_sub_u32 s{sEND}, s{sEND}, s{keep}")
            I(f"s_cmp_gt_u32 s{sEND}, s{keep}")
            I(f"s_cselect_b32 s{SWP}, {LWB * 0x10001:#x}, 0")
            I(f"s_add_u32 s{sT}, s{sT}, s{SWP}")
        I(f"s_sub_u32 s10, s{sT}, s{lo01}")
        I(f"s_sub_u32 s11, s{sT}, s{lo23}")
        I("s_add_u32 s10, s10, vcc_lo")
        I("s_add_u32 s11, s11, vcc_hi")
        I(f"v_mov_b32 v{d}, s10")
        I(f"v_mov_b32 v{d+1}, s11")
    LEN0, SWP = sJ3, sJ3 + 1
    bases(A01, A23, Q01, Q23, p, LEN0)
    I(f"s_add_u32 s{sT}, s{sT}, {LWB * 0x10001:#x}")
    I(f"s_sub_u32 s{sT}, s{sT}, s{SWP}")
    I(f"s_sub_u32 s{sT}, s{sT}, s{SWP}")
    bases(Q01, Q23, E01, E23, p + 2)
    I(f"v_bfi_b32 v{p}, v{c}, v{p}, v{p+2}")
    I(f"v_bfi_b32 v{p+1}, v{c}, v{p+1}, v{p+3}")
    I(f"s_mov_b32 exec_hi, 0")
    I(f"v_mov_b32 v{p+1}, v{p}")
    I(f"s_mov_b64 exec, {sp(mo)}")
    I(f"v_add_u32 v{ex}, v{ex}, v{p+1}")
    assert LWB & 0x80
    I(f"s_bfe_u32 s10, s{SWP}, 0x10007")
    I(f"s_lshl1_add_u32 s10, s{sW}, s10")
    I("s_lshl_b32 s10, s10, 2")
    I(f"v_cndmask_b32 v{c}, 4, 0, {sp(inl)}")
    I(f"ds_write_b16 v{owna}, v{ex} offset:{HIST + 2}")
    I(f"ds_write_b16_d16_hi v{owna}, v{ex} offset:{HIST + 1024 + 2}")
    I("s_mov_b32 exec_hi, 0")
    I(f"v_xor_b32 v{c}, s10, v{c}")
    I(f"ds_write_b32 v{mapa}, v{c}")
    I("s_mov_b64 exec, -1")
    stamp("d5")
    I(f"s_min_u32 s10, s{sEND}, s{LEN0}")
    I(f"s_max_u32 s{LEN0}, s{sEND}, s{LEN0}")
    I(f"s_mov_b32 s{sEND}, s10")
    I(f"s_add_u32 s10, s{LEN0}, s{sMORE}")
    I(f"s_mul_i32 s11, s{Z1}, {LWB * 65536 // BIAS}")
    I("s_lshr_b32 s11, s11, 16")
    I("s_max_u32 s10, s10, s11")
    I(f"s_cmp_lt_u32 s10, {LWB}")
    I("s_cbranch_scc1 L_LFIT")
    I(f"ds_write_b32 v{sc}, v{one}")
    L("L_LFIT")
    I(f"s_cmp_eq_u32 s{sMORE}, 0")
    I("s_cbranch_scc1 L_XCNR")
    I(f"s_sub_u32 s10, s{sL}, {R0 - BIAS}")
    I(f"s_add_u32 s11, s10, s{LEN0}")
    I(f"v_mov_b32 v{u(0)}, s11")
    I(f"s_add_u32 s11, s10, s{sEND}")
    I(f"s_add_u32 s11, s11, {LWB}")
    I(f"v_mov_b32 v{u(1)}, s11")
    I(f"s_lshl_b32 s10, s{sW}, 3")
    I(f"v_mov_b32 v{u(2)}, s10")
    I(f"ds_write_b64 v{u(2)}, {rr(u(0),2)} offset:{CNT}")
    L("L_XCNR")
    epoint(3)
    put(fill)
    I("s_waitcnt lgkmcnt(0)")
    stamp(8)
    I("s_barrier")
    stamp(9)
    I(f"ds_read_b64 {rr(u(14),2)}, v{sc}")
    for i in range(4):
        for j in range(3):
            I(f"ds_read_u16 v{vA+4*i+j}, v{vA+4*i+j} offset:{HIST + 2}")
    epoint(4)
    def ntiles(l0, l1):
        I(f"s_add_u32 s10, s{l0}, 127")
        I("s_lshr_b32 s10, s10, 7")
        I("s_lshl1_add_u32 s10, s10, -1")
        I(f"s_add_u32 s11, s{l1}, 127")
        I("s_lshr_b32 s11, s11, 6")
        I("s_and_b32 s11, s11, -2")
        I(f"s_max_i32 s{sN}, s10, s11")
        I(f"s_cselect_b32 s10, s{l0}, s{l1}")
        I("s_sub_u32 s10, s10, 1")
        I(f"s_andn2_b32 s{sHF}, 64, s10")
    I(f"s_add_u32 s{sB0E}, s{sB0E}, s{sWIN}")
    I(f"s_add_u32 s11, s{sSH}, s{sWIN}")
    I(f"s_and_b32 s10, s11, 15")
    I(f"s_cmp_lt_u32 s11, s{sB0E}")
    I(f"s_cselect_b32 s{sSH}, s10, 16")
    I(f"s_cmp_lg_u32 s{SWP}, 0")
    I(f"s_cselect_b32 s{sWS1}, s{sF0}, s11")
    I(f"s_cselect_b32 s{sWIN}, s{sF0}, s{sB0E}")
    I(f"s_cselect_b32 s{sF0}, s11, s{sF0}")
    I(f"s_cselect_b32 s{sB0E}, s{sF1}, s{sB0E}")
    I(f"s_cselect_b32 s{sF1}, s11, s{sF1}")
    I(f"s_min_u32 s{sWS0}, s{sF0}, 192")
    I(f"s_min_u32 s{sWS1}, s{sWS1}, 192")
    I(f"s_mov_b32 s{sST}, s{sMORE}")
    I("s_waitcnt lgkmcnt(12)")
    I(f"v_cmp_ne_u32 vcc, 0, v{u(14)}")
    I(f"v_readfirstlane_b32 s{sMORE}, v{u(15)}")
    I("s_cbranch_vccnz L_OVF")
    for i in range(4):
        for j in range(3):
            s_ = 4*i + j
            if j == 0: I("s_waitcnt lgkmcnt(9)")
            I(f"s_mov_b64 exec, {sp(mk(i,j))}")
            I(f"v_add_u32 v{vA+s_}, v{vA+s_}, v{vRK+s_}")
            I(f"ds_write2st64_b32 v{vA+s_}, v{vC+s_}, v{vR1+s_} {W2}")
    I("s_mov_b64 exec, -1")
    ntiles(LEN0, sEND)
    stamp("d6")
    sO0, sO1, sNT, sOK, sCM = sOUT, sD2, sM + 8, sM + 9, sM + 12
    def epi_prep(t0, t1):
        I(f"s_lshl_b32 s{sNT}, s{sW}, 7")
        I(f"s_add_u32 s{sNT}, s{sNT}, {NT}")
        I(f"v_mov_b32 v{t0}, s{sWS0}")
        I("s_mov_b32 exec_lo, 0xffff0000")
        I(f"v_mov_b32 v{t0}, s{sWS1}")
        I("s_mov_b64 exec, 0xffffffff") if False else None
        I("s_mov_b32 exec_lo, -1")
        I("s_mov_b32 exec_hi, 0")
        I(f"v_sub_u32 v{t1}, v{lane}, v{t0}")
        I(f"v_and_b32 v{t1}, 15, v{t1}")
        I(f"v_add_lshl_u32 v{t1}, v{t1}, v{t0}, 5")
        I(f"v_lshl_add_u32 v{t0}, v{lane}, 2, s{sNT}")
        I(f"ds_write_b32 v{t0}, v{t1}")
        I("s_mov_b32 exec_hi, -1")
        I(f"s_mul_i32 s10, s{sB}, {BN}")
        for d, lo_, hi_, k in ((sO1, sWIN, sF1, 1), (sO0, sF0, sB0E, 0)):
            I(f"s_add_u32 s11, s10, s{lo_}")
            I(f"s_add_u32 s{d+2}, s10, s{hi_}")
            I(f"s_min_u32 s11, s11, {N}")
            I(f"s_min_u32 s{d+2}, s{d+2}, {N}")
            I(f"s_sub_u32 s{d+2}, s{d+2}, s11")
            I("s_lshl_b32 s11, s11, 7")
            I(f"s_lshl_b32 s{d+2}, s{d+2}, 7")
            I(f"s_add_u32 s{d}, s{sOUT}, s11")
            I(f"s_addc_u32 s{d+1}, s{sOUT+1}, 0")
            I(f"s_mul_i32 s{sOK+k}, s{lo_}, -128")
        I(f"s_and_b32 s10, s{sSH}, 12")
        I("s_lshl_b32 s10, s10, 2")
        I(f"s_bfm_b64 {sp(sCM)}, 16, s10")
    L("L_CA")
    for x_ in trw(vWA, 0): I(x_)
    I(f"s_cmp_eq_u32 s{sXT}, 0")
    I("s_cbranch_scc1 L_XT2R")
    I(f"s_waitcnt vmcnt({(4 if JE else 0) + (4 if OLP in (2, 4) else 0)})")
    L("L_XT2")
    I(f"s_mov_b64 {sp(sTM)}, 0")
    for i in range(4):
        I(f"v_cmp_ne_u32 vcc, s{sK}, v{xg+4*i+1}")
        I(f"s_and_b64 vcc, vcc, {sp(mk(i,3))}")
        I(f"s_or_b64 {sp(sTM)}, {sp(sTM)}, vcc")
    I("s_cbranch_scc1 L_XT2B")
    I(f"s_cmp_eq_u32 s{sSKIP}, 0")
    I("s_cbranch_scc1 L_XT2R")
    for i in range(4):
        g_ = xg + 4*i
        I(f"s_mov_b64 exec, {sp(mk(i,3))}")
        I(f"s_cbranch_execz L_XS{i}")
        I(f"v_bfe_u32 v{g_+1}, v{g_}, 18, 8")
        I(f"v_lshlrev_b32 v{g_+1}, 2, v{g_+1}")
        I(f"v_add_u32 v{g_+3}, {MAP}, v{g_+1}")
        I(f"ds_read_b32 v{g_+3}, v{g_+3}")
        put(rec_ops(g_, g_+2, 0, vEB+i, g_+1, g_+2))
        I("s_waitcnt lgkmcnt(0)")
        I(f"ds_add_rtn_u32 v{g_+3}, v{g_+3}, v{one} offset:{CNT}")
        I("s_waitcnt lgkmcnt(0)")
        I(f"ds_write2st64_b32 v{g_+3}, v{g_}, v{g_+2} {W2}")
        L(f"L_XS{i}")
    I("s_mov_b64 exec, -1")
    L("L_XT2R")
    aw, al, ab = vEO, vEO + 1, vEO + 2
    I(f"s_lshl_b32 s{sTM}, s{sWS0}, 5")
    I(f"s_lshl_b32 s{sTM+1}, s{sWS1}, 5")
    I(f"s_mov_b32 vcc_lo, 0xff00ff00")
    I(f"s_mov_b32 vcc_hi, 0xff00ff00")
    I(f"v_mov_b32 v{aw}, s{sTM+1}")
    I(f"v_mov_b32 v{al}, s{sTM}")
    I(f"v_cndmask_b32 v{aw}, v{aw}, v{al}, vcc")
    I(f"v_and_b32 v{al}, 4, v{lane}")
    I(f"v_lshlrev_b32 v{al}, 6, v{al}")
    I(f"v_lshl_add_u32 v{al}, v{vcS}, 2, v{al}")
    I(f"v_sub_u32 v{al}, v{al}, v{aw}")
    I(f"v_and_b32 v{ab}, 48, v{lane}")
    I(f"s_movk_i32 s{sTM}, {(PL-32)//8}")
    I(f"v_mad_u32_u24 v{ab}, v{vcS}, s{sTM}, v{ab}")
    I(f"s_mov_b32 s{sTM}, {OWN}")
    I(f"v_add3_u32 v{ab}, v{ab}, v{aw}, s{sTM}")
    I(f"v_and_b32 v{aw}, 0x1ff, v{al}")
    I(f"v_add_u32 v{aw}, v{aw}, v{ab}")
    I(f"v_add_u32 v{al}, 0x80, v{al}")
    I(f"v_and_b32 v{al}, 0x1ff, v{al}")
    I(f"v_add_u32 v{al}, v{al}, v{ab}")
    zero16 = lambda d: f"v_mfma_f32_32x32x16_bf16 {rr(d,16)}, {rr(vS,4)}, {rr(vS,4)}, 0"
    for i in range(2): I(f"v_mov_b64 {rr(vS+2*i,2)}, 0")
    I(f"v_lshrrev_b32 v{u(0)}, 2, v{lane}")
    I(f"v_and_b32 v{u(0)}, 12, v{u(0)}")
    I(f"v_subrev_u32 v{u(0)}, s{sSH}, v{u(0)}")
    I(f"v_mov_b32 v{u(1)}, {f2u(1e-6):#x}")
    I(zero16(NUM(1,0)))
    for i in range(4): I(f"v_cmp_ne_u32 {sp(sM+16+2*i)}, {-i}, v{u(0)}")
    for i in range(4): I(f"v_cndmask_b32 v{DEN(1,0)+i}, 0, v{u(1)}, {sp(sM+16+2*i)}")
    for n in range(1, 4):
        for i in range(2): I(f"v_mov_b64 {rr(DEN(1,n)+2*i,2)}, {rr(DEN(1,0)+2*i,2)}")
    I(f"s_cmp_ge_u32 s{sWP}, 4")
    I("s_cbranch_scc1 L_EP0")
    epi_prep(u(2), u(3))
    L("L_EP0")
    stamp("d7")
    I("s_waitcnt vmcnt(0) lgkmcnt(0)")
    stamp(10)
    I("s_barrier")
    def lens_from_cnt(t):
        I(f"s_lshl_b32 s10, s{sW}, 3")
        I(f"v_mov_b32 v{t}, s10")
        I(f"ds_read_b64 {rr(t,2)}, v{t} offset:{CNT}")
        I("s_waitcnt lgkmcnt(0)")
        I(f"v_readfirstlane_b32 s{sTM}, v{t}")
        I(f"v_readfirstlane_b32 s{sTM+1}, v{t+1}")
        I(f"s_sub_u32 s10, s{sL}, {R0 - BIAS}")
        I(f"s_sub_u32 s{sTM}, s{sTM}, s10")
        I(f"s_sub_u32 s{sTM+1}, s{sTM+1}, s10")
        I(f"s_sub_u32 s{sTM+1}, s{sTM+1}, {LWB}")
        ntiles(sTM, sTM + 1)
    I(f"s_mov_b32 s10, {f2u(1e-6):#x}")
    I(f"ds_read_b128 {rr(vQD,4)}, v{vARX}")
    I(f"ds_read_b32 v{vEI}, v{vARE}")
    stamp(11)
    for t_ in range(2):
        for s in range(2): I(f"ds_read_b128 {rr(vX+8*t_+4*s,4)}, v{(aw, al)[t_]} offset:{64*s}")
    I("s_waitcnt lgkmcnt(4)")
    STAG = opt("stag", 1)
    if STAG != 2:
        I(f"s_cmp_ge_u32 s{sWP}, 4")
        I("s_cbranch_scc1 L_LATE0")
    put(dma_tile())
    L("L_LATE0")
    I(f"s_mov_b32 s{sTM}, {f2u(-LOG2E):#x}")
    I(f"s_mov_b32 s{sTM+1}, s{sTM}")
    for t_ in range(2):
        for s in range(2):
            I(f"s_waitcnt lgkmcnt({3 - 2*t_ - s})")
            for n in range(4):
                D = vQ + 8*n + 4*t_
                I(m16(D, vX+8*t_+4*s, vWA+8*n+4*s, D if s else None))
    if STAG == 3:
        I(f"s_cmp_lt_u32 s{sWP}, 4")
        I("s_cbranch_scc1 L_HAD1")
        put(dma_tile())
        L("L_HAD1")
    I("s_mov_b32 s11, s10")
    for i in range(8): I(f"v_mov_b64 {rr(DEN(0,0)+2*i,2)}, {sp(10)}")
    for i in range(16): I(f"v_pk_mul_f32 {rr(vQ+2*i,2)}, {rr(vQ+2*i,2)}, {sp(sTM)}")
    I(zero16(NUM(0,0)))
    for i in range(16): I(f"v_cvt_pk_bf16_f32 v{vCA+i}, v{vQ+2*i}, v{vQ+2*i+1}")
    for i in range(16): I(f"v_permlane32_swap_b32 v{vCA+16+i}, v{vCA+i}")
    I(f"s_mov_b32 s{sCI}, -1")
    I(f"s_mov_b64 {sp(sMSK)}, 0")
    I(f"s_mov_b32 s{sR0}, 0")
    I(f"s_mov_b32 s{sCNT}, 0")
    if STAG:
        I(f"s_cmp_lt_u32 s{sWP}, 4")
        I("s_cbranch_scc1 L_HAD0")
        if STAG == 1: put(dma_tile())
        epi_prep(u(2), u(3))
        L("L_HAD0")
    I(f"s_cmp_eq_u32 s{sST}, 0")
    I("s_cbranch_scc1 L_GO")
    lens_from_cnt(u(0))
    L("L_GO")
    for m in range(2): I(f"ds_read_u16 v{vEA+m}, v{vARO} offset:{64*m}")
    I(f"ds_read_b128 {rr(vQD,4)}, v{vARX} offset:{LWB}")
    I(f"ds_read_b32 v{vEI}, v{vARE} offset:{LWB}")
    I(f"s_lshr_b32 s10, s{sW}, 1")
    I("s_lshl_b32 s10, s10, 9")
    I(f"s_add_u32 s10, s10, {PRG}")
    assert PRG % 32 == 0
    I(f"v_lshl_add_u32 v{vPA}, v{lane}, 3, s10")
    I(f"s_bitcmp1_b32 s{sW}, 0")
    I(f"s_cselect_b32 s{sSG}, -1, 1")
    I(f"s_mul_i32 s10, s{sSG}, {-(1 << (25 if F2 else 24)) & 0xffffffff:#x}")
    I("s_or_b32 s10, s10, 0xdddd")
    I(f"v_mov_b32 v{vIDX}, s10")
    I(f"s_max_i32 s10, s{sN}, 1")
    I("s_sub_u32 s10, s10, 1")
    I(f"s_mul_i32 s10, s{sSG}, s10")
    I("s_lshl_b32 s10, s10, 24")
    I(f"v_mov_b32 v{u(0)}, s10")
    I(f"ds_add_u32 v{vPA}, v{u(0)}")
    I(f"s_movk_i32 s{sINC}, 128")
    I(f"s_movk_i32 s{sINC+1}, 128")
    I(f"v_mov_b32 v{vC1}, 0")
    I("s_mov_b32 exec_hi, 0")
    I(f"v_add_u32 v{vC1}, 0x200, v{vcEO}")
    I("s_mov_b32 exec_hi, -1")
    I("s_waitcnt lgkmcnt(0)")
    put(eafix())
    stamp(12)
    I("s_waitcnt vmcnt(0)")
    stamp(13)
    cstamp(56)
    for m in range(2): I(f"ds_read_b128 {rr(vEO+4*m,4)}, v{vEA+m}")
    for m, s in ORD: I(xread(m, s))
    I(f"s_cmp_lt_i32 s{sN}, 1")
    I("s_cbranch_scc1 L_DONE")
    g = g_mfmas(vP, 0, 0)
    I("s_waitcnt lgkmcnt(4)")
    for x_ in g[:4]: I(x_)
    I("s_waitcnt lgkmcnt(0)")
    for x_ in g[4:]: I(x_)
    I(f"s_mov_b32 s{sT}, 1")
    I(f"s_cmp_eq_u32 s{sN}, 1")
    I("s_cbranch_scc1 L_LT0")
    put(dma_tile())
    for cp in ((1, 0) if FAIR else (0,)):
        sw = lambda par: [f"s_cmp_ge_i32 s{sRM}, {opt('fth', 1)}", f"s_cbranch_scc{1-cp} L_PB{par}{1-cp}", f"L_PB{par}{cp}:"] if FAIR and (par == 0 or not F2) else []
        body = phase(0, 0, cp) + sw(0) + phase(0, 1, cp) + [f"s_cmp_ge_u32 s{sT}, s{sN}", "s_cbranch_scc1 L_LT1"]
        body += phase(1, 0, cp) + sw(1) + phase(1, 1, cp) + [f"s_cmp_lt_u32 s{sT}, s{sN}", f"s_cbranch_scc1 L_LOOP{cp}"]
        check_body(body)
        DBG = opt("dbg", "")
        if "nodma" in DBG: body = [b for b in body if not b.startswith("buffer_load")]
        if "dropS" in DBG: body = [b for b in body if not b.startswith("v_smfmac")]
        if "halfrcp" in DBG: body = [b for b in body if not (b.startswith("v_rcp") and int(b.split("v")[-1]) & 1)]
        if "droppk" in DBG: body = [b for b in body if not b.startswith("v_pk_mul")]
        if "halfx" in DBG: body = [b for b in body if not (b.startswith("v_mfma") and (f"v[{vX+4}:" in b or f"v[{vX+12}:" in b))]
        if "nolds" in DBG: body = [b for b in body if not (b.startswith("ds_read_b128") and f"v{vAX}" in b)]
        if opt("al", 0): body = align8(body, opt("al", 0))
        emit(".p2align 6")
        if opt("sh4", 0): I("s_nop 0")
        L(f"L_LOOP{cp}")
        put(body)
        I("s_branch L_LT0")
    if opt("cpe", 0):
        I("s_branch L_LT0")
        for cp in ((1, 0) if FAIR else (0,)):
            for par in range(2):
                L(f"L_CE{par}{cp}")
                I(f"s_getpc_b64 {sp(sA)}")
                I(f"v_and_b32 v{vEI}, 0xfc, v{vPA}")
                I(f"v_lshlrev_b32 v{vEI}, 5, v{vEI}")
                I(f"global_load_dword v{vEI}, v{vEI}, {sp(sA)}")
                I(f"s_branch L_ND{par}{cp}")
    assert STAG
    e = lambda i: vCA + i
    xd = vWV
    ZR = [vP, vWV + 16]
    nd = lambda w, i: e(16 + 4*w + i)
    sO = [sO0, sO1]
    wu = [f"ds_read_b64_tr_b16 {rr(vWB+8*n+4*s+2*uu,2)}, v{e(1)} offset:{(32*s + 8*uu)*WR + 32*n}" for s in range(2) for n in range(4) for uu in range(2)]
    lid = [f"v_mbcnt_lo_u32_b32 v{lane}, -1, 0", f"v_mbcnt_hi_u32_b32 v{lane}, -1, v{lane}", f"v_and_b32 v{vcS}, 24, v{vPA}"]
    a1 = [f"v_and_b32 v{e(0)}, 48, v{lane}", f"v_and_b32 v{e(3)}, 15, v{lane}",
          f"v_add_u32 v{e(5)}, s{sNT}, v{e(0)}", f"v_lshl_add_u32 v{e(6)}, v{e(3)}, 2, s{sNT}"]
    a1 += [f"ds_read_b128 {rr(nd(w,0),4)}, v{e(5)} offset:{64*w}" for w in range(2)]
    a1 += [f"ds_read2_b32 {rr(e(8),2)}, v{e(6)} offset0:0 offset1:16",
           f"v_bfe_u32 v{e(1)}, v{lane}, 2, 3", f"v_lshrrev_b32 v{e(2)}, 5, v{lane}", f"v_lshl_add_u32 v{e(1)}, v{e(2)}, 4, v{e(1)}",
           f"v_mul_u32_u24 v{e(1)}, {WR}, v{e(1)}", f"s_mov_b32 s10, {WUI}", f"v_add3_u32 v{e(1)}, v{e(1)}, v{vcS}, s10"]
    a1 += wu[:12]
    a1 += [f"s_movk_i32 s10, {(PL-32)//8}", f"v_mad_u32_u24 v{e(0)}, v{vcS}, s10, v{e(0)}",
           f"s_mov_b32 s10, {OWN}", f"v_lshl_add_u32 v{e(5)}, v{e(3)}, 3, s10"]
    a1 += [f"v_lshl_add_u32 v{e(10+w)}, v{e(3)}, 3, s{sOK+w}" for w in range(2)]
    a1 += ["s_waitcnt lgkmcnt(8)"] + wu[12:]
    a2 = []
    for w in range(2):
        for i in range(4):
            a2 += [f"v_add_u32 v{e(12)}, v{nd(w,i)}, v{e(5)}", f"ds_read_b64 {rr(xd+8*w+2*i,2)}, v{e(12)} offset:{i*(PL-32)}"]
    for w in range(2):
        a2 += [f"v_add3_u32 v{e(8+w)}, v{e(8+w)}, v{e(0)}, s10"]
        a2 += [f"ds_read_b128 {rr(vX+8*w+4*s,4)}, v{e(8+w)} offset:{64*s}" for s in range(2)]
    def unp(w, n): return [(f"v_and_b32 v{ZR[w]+4*n+i}, 0xffff0000, v{xd+8*w+2*i+(n>>1)}" if n & 1 else
                            f"v_lshlrev_b32 v{ZR[w]+4*n+i}, 16, v{xd+8*w+2*i+(n>>1)}") for i in range(4)]
    blk = [(w, n) for w in range(2) for n in range(4)]
    a3 = [["s_waitcnt lgkmcnt(0)"] + unp(0, 0) + unp(0, 1)]
    for k, (w, n) in enumerate(blk):
        a3[-1] += [m16(ZR[w]+4*n, vX+8*w, vWB+8*n, ZR[w]+4*n)]
        a3.append((unp(*blk[k+2]) if k + 2 < 8 else []) + [f"v_lshl_add_u32 v{nd(w,n)}, v{nd(w,n)}, 2, v{e(10+w)}",
                  m16(ZR[w]+4*n, vX+8*w+4, vWB+8*n+4, ZR[w]+4*n)])
        if k < 7: a3.append([])
    ME = opt("me", 0)
    if ME:
        for par in range(2):
            L(f"L_LB{par}")
            put(last_tile(par, 0, only_b=True))
            I("s_branch L_DONE")
    for par in range(2):
        L(f"L_LT{par}")
        I(f"s_cmp_lg_u32 s{sHF}, 0")
        I(f"s_cbranch_scc1 L_LH{par}")
        for half in range(2):
            if half: L(f"L_LH{par}")
            put(last_tile(par, half, (lid + a1, a2, a3) if ME else None))
            I("s_branch L_EPB" if ME else "s_branch L_DONE")
    L("L_DONE")
    put(lid)
    I(f"s_cmp_lg_u32 s{sMORE}, 0")
    I("s_cbranch_scc1 L_SLOW")
    L("L_EPI")
    I("s_waitcnt lgkmcnt(0)")
    put(a1 + a2 + sum(a3, []))
    L("L_EPB")
    stamp(14)
    cstamp(57)
    I(f"s_setprio {opt('epr', 0)}")
    I(f"s_mov_b64 exec, {sp(sCM)}")
    I(f"s_and_b32 s11, s{sSH}, 19")
    I("s_nop 2")
    for i in range(4):
        I(f"s_cmp_eq_u32 s11, {i}")
        I(f"s_cbranch_scc1 L_NS{i}")
    L("L_NSR")
    I("s_mov_b64 exec, -1")
    for w in range(2):
        for k in range(16): I(f"v_rcp_f32 v{DEN(w,0)+k}, v{DEN(w,0)+k}")
        for k in range(0, 16, 2): I(f"v_pk_fma_f32 {rr(NUM(w,0)+k,2)}, {rr(NUM(w,0)+k,2)}, {rr(DEN(w,0)+k,2)}, {rr(ZR[w]+k,2)}")
        for i in range(4):
            for h in range(2): I(f"v_cvt_pk_bf16_f32 v{DEN(w,0)+2*i+h}, v{NUM(w,2*h)+i}, v{NUM(w,2*h+1)+i}")
            for h in range(2):
                I(f"v_pk_max_f16 v{DEN(w,0)+2*i+h}, v{DEN(w,0)+2*i+h}, v{xd+8*w+2*i+h}")
            I(f"buffer_store_dwordx2 {rr(DEN(w,0)+2*i,2)}, v{nd(w,i)}, {sq(sO[w])}, 0 offen{pol(OP)}")
    stamp("e2")
    stamp_out()
    L("L_END")
    I("s_endpgm")
    for i in range(4):
        L(f"L_NS{i}")
        for k in range(8): I(f"v_add_f32 v{vACC+4*k+i}, v{vACC+4*k+i}, v{vACC+32+4*k+i}")
        I("s_branch L_NSR")
    for i in range(4):
        L(f"L_RT{i}")
        I("s_waitcnt vmcnt(0)")
        spin()
        for k in range(i, 4): poll_load(k)
        I("s_waitcnt vmcnt(0)")
        I(f"s_branch L_PW{i}")
    L("L_XT2B")
    spin()
    xload("b")
    I("s_waitcnt vmcnt(0)")
    I("s_branch L_XT2")
    L("L_OVF")
    I(f"s_mov_b32 s{sSKIP}, 0")
    I(f"s_mov_b32 s{sN}, 0")
    I(f"s_mov_b32 s{sST}, 0")
    I(f"s_mov_b32 s{sMORE}, 4")
    I("s_waitcnt lgkmcnt(0)")
    I("s_branch L_CA")
    q = vCA
    L("L_POVF")
    I("s_movk_i32 s11, 1986")
    for i in range(4):
        I(f"v_mul_u32_u24 v{q+i}, s11, v{vHS+i}")
        I(f"v_lshrrev_b32 v{q+i}, 16, v{q+i}")
    I(f"v_add_u32 v{q+5}, v{q}, v{q+1}")
    I(f"v_add_u32 v{q+6}, v{q+5}, v{q+2}")
    I(f"v_add_u32 v{q+7}, v{q+6}, v{q+3}")
    I(f"v_mov_b32 v{q+8}, v{q+7}")
    wave_scan(q + 8)
    I("s_nop 0")
    I(f"v_sub_u32 v{q+4}, v{q+8}, v{q+7}")
    I(f"v_add_u32 v{q+7}, v{q+4}, v{q+6}")
    I(f"v_add_u32 v{q+6}, v{q+4}, v{q+5}")
    I(f"v_add_u32 v{q+5}, v{q+4}, v{q}")
    for i in range(4): I(f"v_lshl_or_b32 v{q+4+i}, v{q+i}, 16, v{q+4+i}")
    I(f"v_add_u32 v{q+8}, {HDR}, v{l16}")
    I(f"ds_write_b128 v{q+8}, {rr(q+4,4)}")
    I("s_lshl_b32 s10, s2, 10")
    I(f"s_add_u32 s10, s10, {WS_HD}")
    I(f"buffer_store_dwordx4 {rr(q+4,4)}, v{l16}, {sq(sWS)}, s10 offen sc1")
    for i in range(8):
        I(f"v_and_b32 v{q+10+i}, 0x3fc, v{vHA+i}")
        I(f"v_add_u32 v{q+10+i}, {HDR}, v{q+10+i}")
        I(f"ds_read_u16 v{q+10+i}, v{q+10+i}")
    I("s_waitcnt lgkmcnt(0)")
    for i in range(4):
        I(f"v_cmpx_lt_u32 vcc, {33*(CAP+8)}, v{vHD+i}")
        I(f"v_or_b32 v{vO+4*i+1}, 0x10000, v{vO+4*i+1}")
        I("s_mov_b64 exec, -1")
    I(f"s_mul_i32 s10, s2, {DCH}")
    I(f"s_mov_b32 s{sTM}, {WS_RECS}")
    I(f"s_mov_b32 s{sTM+1}, {WS_LEID}")
    for i in range(NR):
        I(f"v_mul_u32_u24 v{q}, s11, v{vRK1+i}")
        I(f"v_lshrrev_b32 v{q}, 16, v{q}")
        I(f"v_add3_u32 v{q}, v{q}, v{q+10+i}, s10")
        I(f"v_lshlrev_b32 v{q+1}, 2, v{q}")
        I(f"v_cmpx_le_u32 vcc, {33*(CAP+8)}, v{vRK1+i}")
        I(f"s_cbranch_execz L_PO{i}")
        I(f"buffer_store_byte v{idr(i)}, v{q}, {sq(sWS)}, s{sTM+1} offen sc1")
        I(f"buffer_store_dword v{vSR+i}, v{q+1}, {sq(sWS)}, s{sTM} offen sc1")
        L(f"L_PO{i}")
        I("s_mov_b64 exec, -1")
    I("s_waitcnt vmcnt(0) lgkmcnt(0)")
    I("s_barrier")
    I("s_branch L_POUT")
    SB = 288
    t0, t1, t2, t3 = vP, vP+1, vP+2, vP+3
    L("L_SLOW")
    I("s_setprio 0")
    I(f"s_lshl_b32 s10, s{sWP}, 6")
    I(f"v_add_u32 v{tid}, s10, v{lane}")
    I(f"s_cmp_lg_u32 s{sMORE}, 4")
    I("s_cbranch_scc1 L_SL1")
    I(f"s_mov_b32 s{sMORE}, 1")
    I(f"v_and_b32 v{t0}, 0xff, v{tid}")
    I(f"v_lshlrev_b32 v{t1}, 7, v{t0}")
    I(f"buffer_load_dword v{t2}, v{t1}, {sq(sCEL)}, 0 offen offset:4 sc1")
    I(f"v_lshlrev_b32 v{t1}, 10, v{t0}")
    I(f"s_lshl_b32 s10, s{sB}, 2")
    I(f"s_add_u32 s10, s10, {WS_HD}")
    I(f"buffer_load_dword v{t3}, v{t1}, {sq(sWS)}, s10 offen sc1")
    I(f"v_lshlrev_b32 v{t0}, 2, v{t0}")
    I(f"v_add_u32 v{t0}, {HDR}, v{t0}")
    I("s_waitcnt vmcnt(0)")
    I(f"v_and_b32 v{t2}, 0x10000, v{t2}")
    I(f"v_cmp_ne_u32 vcc, 0, v{t2}")
    I(f"v_mov_b32 v{t2}, {(CAP+8) << 16}")
    I("s_nop 0")
    I(f"v_cndmask_b32 v{t2}, v{t2}, v{t3}, vcc")
    I(f"ds_write_b32 v{t0}, v{t2}")
    I("s_waitcnt lgkmcnt(0)")
    I("s_barrier")
    L("L_SL1")
    I(f"s_add_u32 s{sR0}, s{sR0}, {SB}")
    I(f"s_cmp_lt_u32 s{sR0}, s{sCNT}")
    I("s_cbranch_scc1 L_BATCH")
    L("L_FIND")
    I(f"s_cmp_lg_u64 {sp(sMSK)}, 0")
    I("s_cbranch_scc1 L_GOT")
    I(f"s_add_u32 s{sCI}, s{sCI}, 1")
    I(f"s_cmp_ge_u32 s{sCI}, 4")
    I("s_cbranch_scc1 L_EPI")
    I(f"s_lshl_b32 s10, s{sCI}, 8")
    I(f"s_add_u32 s10, s10, {HDR}")
    I(f"v_lshl_add_u32 v{t0}, v{lane}, 2, s10")
    I(f"ds_read_u16 v{t0}, v{t0} offset:2")
    I("s_waitcnt lgkmcnt(0)")
    I(f"v_cmp_lt_u32 {sp(sMSK)}, s{sSKIP}, v{t0}")
    I("s_nop 3")
    I("s_branch L_FIND")
    L("L_GOT")
    I(f"s_ff1_i32_b64 s10, {sp(sMSK)}")
    I(f"s_bitset0_b64 {sp(sMSK)}, s10")
    I(f"s_lshl_b32 s11, s{sCI}, 6")
    I(f"s_add_u32 s{sCUR}, s10, s11")
    I(f"s_lshl_b32 s10, s{sCUR}, 2")
    I(f"s_add_u32 s10, s10, {HDR}")
    I(f"v_mov_b32 v{t0}, s10")
    I(f"ds_read_b32 v{t0}, v{t0}")
    I("s_waitcnt lgkmcnt(0)")
    I(f"v_readfirstlane_b32 s10, v{t0}")
    I("s_nop 3")
    I(f"s_lshr_b32 s{sCNT}, s10, 16")
    I(f"s_and_b32 s{sST}, s10, 0xffff")
    I(f"s_mov_b32 s{sR0}, s{sSKIP}")
    L("L_BATCH")
    I("s_waitcnt vmcnt(0)")
    I("s_barrier")
    prefill(vP + 4)
    I(f"v_and_b32 v{t0}, 15, v{lane}")
    I(f"v_mul_u32_u24 v{t1}, {LWB}, v{t0}")
    I(f"v_add_u32 v{t1}, {BIAS}, v{t1}")
    I(f"v_lshlrev_b32 v{t0}, 2, v{t0}")
    I(f"ds_write_b32 v{t0}, v{t1} offset:{CNT}")
    t1, t4, t5 = vQ, vQ + 2, vQ + 3
    I(f"v_add_u32 v{t0}, s{sR0}, v{tid}")
    I(f"s_mul_i32 s{sTM+2}, s{sCUR}, {CH}")
    I(f"s_mul_i32 s11, s{sCUR}, {DCH}")
    I(f"s_add_u32 s11, s11, s{sST}")
    I(f"s_lshl_b32 s{sTM}, s11, 2")
    I(f"s_add_u32 s{sTM}, s{sTM}, {WS_RECS}")
    I(f"v_lshl_add_u32 v{t2}, v{t0}, 2, s{sTM}")
    I(f"s_add_u32 s{sTM}, s11, {WS_LEID}")
    I(f"v_add_u32 v{t3}, s{sTM}, v{t0}")
    I(f"s_mul_i32 s10, s{sB}, {RS}")
    I(f"s_lshl_b32 s{sTM}, s{sCUR}, 7")
    I(f"s_add_u32 s10, s10, s{sTM}")
    I(f"s_add_u32 s10, s10, {WS_CELL}")
    I(f"v_and_b32 v{t4}, 7, v{t0}")
    I(f"v_lshl_add_u32 v{t4}, v{t4}, 4, s10")
    I(f"v_lshrrev_b32 v{t5}, 3, v{t0}")
    I(f"v_cmpx_gt_u32 vcc, {CAP+8}, v{t0}")
    I(f"v_add_u32 v{t2}, {XOFF}, v{t4}")
    I(f"v_add_u32 v{t3}, 8, v{t2}")
    I(f"v_cmpx_gt_u32 vcc, {CAP}, v{t0}")
    I(f"v_lshl_add_u32 v{t2}, v{t5}, 2, v{t4}")
    I(f"v_add3_u32 v{t3}, v{t4}, v{t5}, 12")
    I("s_mov_b64 exec, -1")
    I(f"s_add_u32 s10, s{sR0}, {SB}")
    I(f"s_min_u32 s10, s10, s{sCNT}")
    I(f"v_cmp_gt_u32 vcc, s10, v{t0}")
    I(f"v_mov_b32 v{t4}, 0x7ffffff0")
    I("s_nop 0")
    I(f"v_cndmask_b32 v{t2}, v{t4}, v{t2}, vcc")
    I(f"v_cndmask_b32 v{t3}, v{t4}, v{t3}, vcc")
    I(f"buffer_load_dwordx2 {rr(t1,2)}, v{t2}, {sq(sWS)}, 0 offen sc1")
    I(f"buffer_load_ubyte v{t3}, v{t3}, {sq(sWS)}, 0 offen sc1")
    I("s_waitcnt lgkmcnt(0)")
    I("s_barrier")
    I("s_waitcnt vmcnt(0)")
    I(f"v_cmp_ne_u32 vcc, 3, v{t5}")
    I(f"v_cmp_eq_u32 {sp(sA)}, s{sK}, v{t1+1}")
    I(f"v_mov_b32 v{t4}, s{sTM+2}")
    I(f"s_or_b64 exec, vcc, {sp(sA)}")
    I(f"v_cmpx_ne_u32 vcc, 0, v{t1}")
    I(f"v_bfe_u32 v{t2}, v{t1}, 18, 8")
    I(f"v_lshlrev_b32 v{t2}, 2, v{t2}")
    I(f"v_add_u32 v{t0}, {MAP}, v{t2}")
    I(f"ds_read_b32 v{t0}, v{t0}")
    put(rec_ops(t1, t3, 0, t4, t2, t3))
    I(f"v_mov_b32 v{t2}, 4")
    I("s_waitcnt lgkmcnt(0)")
    I(f"ds_add_rtn_u32 v{t0}, v{t0}, v{t2} offset:{CNT}")
    I("s_waitcnt lgkmcnt(0)")
    I(f"ds_write2st64_b32 v{t0}, v{t1}, v{t3} {W2}")
    I("s_mov_b64 exec, -1")
    I("s_waitcnt lgkmcnt(0)")
    I("s_barrier")
    listaddr(t2)
    I(f"ds_read_b128 {rr(vQD,4)}, v{vARX}")
    I(f"ds_read_b32 v{vEI}, v{vARE}")
    lens_from_cnt(t2)
    for r_ in (vQ, vQ + 2, vS, vS + 2): I(f"v_mov_b64 {rr(r_,2)}, 0")
    put(dma_tile())
    L("L_LAST")
    I("s_branch L_GO")

def regs_of(tok):
    tok = tok.strip()
    m = re.fullmatch(r"v\[(\d+):(\d+)\]", tok)
    if m: return list(range(int(m.group(1)), int(m.group(2)) + 1))
    m = re.fullmatch(r"v(\d+)", tok)
    if m: return [int(m.group(1))]
    return []
def parse(ins):
    op, _, rest = ins.partition(" ")
    ops = [o.strip().split(" ")[0] for o in rest.split(",")] if rest else []
    if op.startswith("ds_read") or "rtn" in op: return "ds", regs_of(ops[0]), regs_of(ops[1])
    return "other", [], sum((regs_of(o) for o in ops), [])
def check_body(body):
    s2 = [b for b in body if not b.endswith(":")]
    pend = []
    for i, ins in enumerate(s2 * 3):
        k, d, s = parse(ins)
        m = re.search(r"lgkmcnt\((\d+)\)", ins)
        if m:
            while len(pend) > int(m.group(1)): pend.pop(0)
        pr = set(sum(pend, []))
        for r in d + s:
            assert r not in pr, f"pending LDS reg v{r} used by {ins} @{i}"
        if k == "ds":
            pend.append(d); assert len(pend) <= 15

hdr = open("/code/" + NAME + ".s.ref").read().split("\n")
for l in hdr:
    if l.startswith("; Override"): break
    out.append(l)
if opt("list", 0): out.append(f"; @launch kernel={NAME}_kernel grid=(256,1,1) block=(512,1,1) lds={LDS}")
else: out.append(f"; @launch grid=(256,1,1) block=(512,1,1) lds={LDS}")
LEAK = opt("leak", "")
if LEAK: out.append("; @launch kernel=leak_kernel grid=(1,1,1) block=(256,1,1) lds=64")
emit('.amdgcn_target "amdgcn-amd-amdhsa--gfx950"\n.text')
kernel()
if LEAK:
    kind, nm = LEAK[0], LEAK[1:]
    PT = opt("pt", 0)
    si = STN.index(nm)
    emit(".globl leak_kernel\n.p2align 8\n.type leak_kernel,@function\nleak_kernel:")
    I("s_cmp_lg_u32 s2, 0")
    I("s_cbranch_scc1 LK_END")
    I("s_load_dwordx2 s[4:5], s[0:1], 88")
    I("v_min_u32 v1, 254, v0")
    I("v_lshlrev_b32 v1, 11, v1")
    I("v_mov_b32 v2, 0")
    I("v_mov_b32 v3, 0x7fffffff")
    I("v_mov_b32 v4, 0")
    I("ds_write2_b32 v2, v3, v4 offset0:0 offset1:1")
    I("s_waitcnt lgkmcnt(0)")
    I(f"s_add_u32 s4, s4, {WS_TS}")
    I("s_addc_u32 s5, s5, 0")
    I("global_load_dword v5, v2, s[4:5]")
    for w in range(8):
        I(f"global_load_dword v{8+w}, v1, s[4:5] offset:{256*w}")
        I(f"global_load_dword v{16+w}, v1, s[4:5] offset:{256*w + 4*si}")
    I("s_barrier")
    I("s_waitcnt vmcnt(0)")
    I("v_subrev_u32 v5, 1000, v5")
    for w in range(16): I(f"v_sub_u32 v{8+w}, v{8+w}, v5")
    for w in range(8):
        I(f"ds_min_u32 v2, v{8+w}")
        I(f"ds_{'max' if kind == 'm' else 'add'}_u32 v2, v{16+w} offset:4")
    I("s_waitcnt lgkmcnt(0)")
    I("s_barrier")
    I("ds_read_b64 v[6:7], v2")
    I("s_waitcnt lgkmcnt(0)")
    I("v_lshlrev_b32 v6, 2, v6")
    I("v_lshlrev_b32 v7, 2, v7" if kind == 'm' else "v_lshrrev_b32 v7, 9, v7")
    I("v_sub_u32 v6, v7, v6")
    I("v_min_u32 v6, 20000, v6")
    I("s_nop 0")
    I("v_readfirstlane_b32 s6, v6")
    I("s_memrealtime s[8:9]")
    I("s_waitcnt lgkmcnt(0)")
    if PT:
        I(f"s_cmp_gt_u32 s6, {4*PT}")
        I("s_cselect_b32 s6, 6000, 0")
        I("s_mul_i32 s7, s8, 0x9e3779b1")
        I("s_lshr_b32 s7, s7, 20")
        I("s_add_u32 s6, s6, s7")
    L("LK_L")
    I("s_memrealtime s[10:11]")
    I("s_waitcnt lgkmcnt(0)")
    I("s_sub_u32 s7, s10, s8")
    I("s_cmp_lt_u32 s7, s6")
    I("s_cbranch_scc1 LK_L")
    L("LK_END")
    I("s_endpgm")
emit(f""".section .rodata,"a"
.p2align 6
.amdhsa_kernel {NAME}_kernel
  .amdhsa_next_free_vgpr 256
  .amdhsa_next_free_sgpr 102
  .amdhsa_accum_offset 256
  .amdhsa_group_segment_fixed_size 0
  .amdhsa_kernarg_size 96
  .amdhsa_user_sgpr_count 2
  .amdhsa_user_sgpr_kernarg_segment_ptr 1
  .amdhsa_system_sgpr_workgroup_id_x 1
.end_amdhsa_kernel""")
if LEAK:
    emit(""".p2align 6
.amdhsa_kernel leak_kernel
  .amdhsa_next_free_vgpr 32
  .amdhsa_next_free_sgpr 16
  .amdhsa_accum_offset 32
  .amdhsa_group_segment_fixed_size 0
  .amdhsa_kernarg_size 96
  .amdhsa_user_sgpr_count 2
  .amdhsa_user_sgpr_kernarg_segment_ptr 1
  .amdhsa_system_sgpr_workgroup_id_x 1
.end_amdhsa_kernel""")
if TS: out.insert(0, "; stamps " + " ".join(STN))
path = sys.argv[1] if len(sys.argv) > 1 else "/code/" + NAME + ".s"
open(path, "w").write("\n".join(out) + "\n")
print("wrote", path, len(out), "lines; lds", LDS)
```

```python
import sys, re, struct

NAME = "standalone__edge_featured_mpnn_gatedgcn__graph"
OPT = dict(kv.split("=") for kv in sys.argv[2:])
def opt(k, d):
    v = OPT.get(k)
    if v is None: return d
    return type(d)(v)

N, E = 50000, 800000
CH = 3128
BN = 196
XIL = opt('xil', 0)
RS = (513 if XIL else opt('rs', 257)) * 128
XOFF = 256 * 128 if XIL else 256 * RS
WS_CELL = 0x10000
WS_RECS = 0x1200000
WS_LEID = 0x1680000
WS_HD = 0x17a0000
WS_USED = 0x1800000
WS_TS = 0x3000000
KINC = 0x02020202
CAP = 24
LOG2E = 1.4426950408889634
def f2u(f): return struct.unpack("<I", struct.pack("<f", f))[0]

out = []
def emit(s=""):
    for l in s.strip("\n").split("\n"):
        out.append(l.rstrip())
def I(s): out.append("    " + s)
def L(s): out.append(s + ":")
def C(s): out.append("    ; " + s)
def put(seq):
    for s in seq:
        if s.endswith(":"): L(s[:-1])
        else: I(s)
def rr(a, n): return f"v[{a}:{a+n-1}]"
def sp(a): return f"s[{a}:{a+1}]"
def sq(a): return f"s[{a}:{a+3}]"
def pol(p): return (" " + p.replace("_", " ")) if p else ""

def srd(d, lo, size, add=None, stride=0):
    if add is None:
        I(f"s_mov_b32 s{d}, s{lo}")
        I(f"s_mov_b32 s{d+1}, s{lo+1}" if not stride else f"s_or_b32 s{d+1}, s{lo+1}, {stride << 16:#x}")
    else:
        I(f"s_add_u32 s{d}, s{lo}, {add}")
        I(f"s_addc_u32 s{d+1}, s{lo+1}, 0")
    I(f"s_mov_b32 s{d+2}, {size}")
    I(f"s_mov_b32 s{d+3}, 0x20000")

def wave_scan(v, fill=None, half=False):
    def gap():
        if fill and len(fill) >= 2:
            I(fill.pop(0)); I(fill.pop(0))
        else: I("s_nop 1")
    for sh in (1, 2, 4, 8):
        gap()
        I(f"v_add_u32_dpp v{v}, v{v}, v{v} row_shr:{sh} row_mask:0xf bank_mask:0xf bound_ctrl:0")
    gap()
    I(f"v_add_u32_dpp v{v}, v{v}, v{v} row_bcast:15 row_mask:0xa bank_mask:0xf")
    if half: return
    gap()
    I(f"v_add_u32_dpp v{v}, v{v}, v{v} row_bcast:31 row_mask:0xc bank_mask:0xf")

TAB, ZROW, CNT, FLAG = 0, 512, 576, 640
HIST = 1024
ESTG = HIST + 4096
HIST1 = ESTG
EARLY = ESTG + 8192
LWB = 288 * 4
R0 = EARLY + 32768
R1 = R0 + 16 * LWB
XSTG = R1 + 16 * LWB
XI = 1056
SLOT = 4 * XI
OWN = XSTG + 8 * SLOT
PL = 52 * 128 + 32
WR = 160
WUI = OWN + 4 * PL
MAP = WUI + 64 * WR
HDR = MAP + 1024
PRG = HDR + 1024
NT = PRG + 2048
LDS = NT + 1024
WBI, WVI, WCI = EARLY, EARLY + 64 * WR, EARLY + 128 * WR
WAI = XSTG + 8192
LROW = 160
CIMG = R0
assert CIMG + 256 * LROW <= WAI and LDS <= 163840, LDS
BIAS = 8192
assert R1 < 65536 and R0 % 256 == 0 and R1 % 256 == 0
W2 = f"offset0:{(R0-BIAS)//256} offset1:{(R1-BIAS)//256}"

vWB, vWV, vCA, vACC = 0, 32, 64, 96
vX, vEO, vS = 160, 176, 184
vP, vQ, vR = 188, 204, 220
vQD = 236
vEI, vCH, vONE, vCP, vAX, vcEO, vcS, vARX, vARE, vARO, vARS, vEA = 240, 241, 242, 243, 244, 245, 246, 248, 249, 250, 251, 252
lane, vTS, tid = 247, 254, 255
vC1, vIDX, vPA = lane, tid, vcS
DEN = lambda w, n: vACC + 32 * w + 4 * n
NUM = lambda w, n: vACC + 32 * w + 16 + 4 * n
def m16(d, a, b, c=None):
    return f"v_mfma_f32_16x16x32_bf16 {rr(d,4)}, {rr(a,4)}, {rr(b,4)}, " + ("0" if c is None else rr(c, 4))
def s16(d, b): return f"v_smfmac_f32_16x16x64_bf16 {rr(d,4)}, {rr(vS,4)}, {rr(b,8)}, v{vIDX}"

sWP, sW, sB, sK = 3, 4, 5, 6
sWIN, sF0, sF1, sL = 7, 8, 9, 12
sA, sBt = 10, 11
sSTG, sES, s128 = 13, 14, 15
pX, pE, pSRC, pDST, pWA, pWB, pWC, pWU, pWV, pOUT, pDBG, pWS = 16, 18, 20, 22, 24, 26, 28, 30, 32, 34, 36, 38
sT, sN, sFM, sMORE, sSKIP, sXT, sWS0, sWS1, sB0E, sSH = 16, 17, 18, 19, 20, 21, 22, 23, 24, 25
sCI, sCUR, sR0, sCNT, sST, sEND = 26, 27, 28, 29, 30, 31
sMSK = 32
sTM = 34
sX, sEP, sOUT, sWS, sCEL, sD2 = 40, 44, 48, 52, 56, 60
sM = 64
sJ3, sEM = 96, 98
sSP = 100
sHF = 99
sINC = 94
sSG, sRM = 101, 96

TS = opt("ts", 0)
STN = []
YP = opt("yp", "")
def stamp(i):
    if str(i) in YP.split("_"):
        k = YP.split("_").index(str(i))
        I(f"s_cmp_lt_u32 s{sWP}, 4")
        I(f"s_cbranch_scc1 L_YP{k}")
        I(f"s_setprio {1 - (k & 1)}")
        L(f"L_YP{k}")
    if not TS: return
    if isinstance(i, str) and i[0] not in opt("tsx", ""): return
    STN.append(str(i)); i = len(STN) - 1
    I("s_memrealtime vcc" if TS == 1 else "s_memtime vcc")
    I("s_waitcnt lgkmcnt(0)")
    I(f"v_writelane_b32 v{vTS}, vcc_lo, {i}")
def stamp_out():
    if not TS: return
    I("s_waitcnt vmcnt(0)")
    stamp(15)
    I("s_memtime vcc")
    I("s_waitcnt lgkmcnt(0)")
    I(f"v_writelane_b32 v{vTS}, vcc_lo, 58")
    I(f"v_writelane_b32 v{vTS}, s{sN}, 59")
    I(f"v_writelane_b32 v{vTS}, s{sSP}, 60")
    I("s_getreg_b32 s10, hwreg(HW_REG_XCC_ID)")
    I(f"v_writelane_b32 v{vTS}, s10, 55")
    I("s_lshl_b32 s10, s2, 3")
    I(f"s_add_u32 s10, s10, s{sWP}")
    I("s_lshl_b32 s10, s10, 8")
    I(f"s_add_u32 s10, s10, {WS_TS}")
    I(f"v_lshl_add_u32 v{vP}, v{lane}, 2, s10")
    I(f"global_store_dword v{vP}, v{vTS}, {sp(pWS)}")
def cstamp(i):
    if not TS: return
    I("s_memtime vcc")
    I("s_waitcnt lgkmcnt(0)")
    I(f"v_writelane_b32 v{vTS}, vcc_lo, {i}")

LD_P = opt("ldp", "nt")
XP, EP, OP = opt("xp", ""), opt("ep", ""), opt("op", "sc1")
STP = opt("stp", "sc1")
MG = opt("mg", 1)
JE = opt("je", 4 if MG else 2)
EMASK = ((1 << JE) - 1) * 0x01010101
DCH = CH + 1024
SDW = "dst_sel:DWORD dst_unused:UNUSED_PAD"

def dma_tile():
    mad = lambda i: f"v_mad_u32_u16 v{vQD+i}, v{vQD+i}, s{s128}, v{vCP}"
    r = []
    for i in range(4):
        r += [f"s_add_u32 m0, s{sSTG}, {i*XI}", mad(i), f"buffer_load_dwordx4 v{vQD+i}, {sq(sX)}, 0 offen{pol(XP)} lds"]
    r += [f"s_mov_b32 m0, s{sES}", "s_nop 0", f"buffer_load_dwordx4 {rr(vEI,2)}, {sq(sEP)}, 0 idxen offen{pol(EP)} lds"]
    return r

ORD = [(0, 0), (1, 0), (0, 1), (1, 1)]
def xread(m, s): return f"ds_read_b128 {rr(vX+8*m+4*s,4)}, v{vAX} offset:{512*m + 64*s}"
def g_mfmas(D, ft, w):
    g = [m16(D+8*n+4*m, vEO+4*m, vCA+16*w+8*ft+4*n) for m in range(2) for n in range(2)]
    g += [m16(D+8*n+4*m, vX+8*m+4*s, vWB+16*ft+8*n+4*s, D+8*n+4*m) for m, s in ORD for n in range(2)]
    return g
def h_mfmas(ft):
    return [m16(vQ+8*n+4*m, vX+8*m+4*s, vWV+16*ft+8*n+4*s, None if s == 0 else vQ+8*n+4*m) for m, s in ORD for n in range(2)]
def s_num(w, ft): return [s16(NUM(w, 2*ft+n), vQ+8*n) for n in range(2)]
def s_den(w, ft, G): return [s16(DEN(w, 2*ft+n), G+8*n) for n in range(2)]

def eafix():
    return [f"v_bfi_b32 v{vEA+m}, 31, v{vcEO}, v{vEA+m}" for m in range(2)] + [f"v_max_u32 v{vEA}, v{vEA}, v{vcEO}", f"v_max_u32 v{vEA+1}, v{vEA+1}, v{vC1}"]
LV = [int(c, 16) for c in opt("lv", "015a")]
PAT = opt("pat", "1" * 11 + "5")
FAIR = opt("fair", 1)
F2 = opt("f2", 0)
BST = opt("bst", 10)
LNG = opt("lng", 1)
ASL = [int(x) for x in opt("asl", "12_13_14_18").split("_")]
LLV = [int(x) for x in opt("llv", "0_2_12_26").split("_")]
LLP_ = opt("llp", "0003_1113").split("_")
def add1(q): return f"v_mfma_f32_4x4x4_16b_bf16 {rr(q,4)}, {rr(vONE,2)}, {rr(vONE,2)}, {rr(q,4)}"
def long_sec(mf, G, regs, slots, cp):
    r = []; k = 0
    tr = [f"v_exp_f32 v{G+i}, v{G+i}" for i in regs] + [f"v_rcp_f32 v{G+i}, v{G+i}" for i in regs]
    for i, x in enumerate(tr):
        if i in LLV:
            j = LLV.index(i)
            if j == 0 or LLP_[cp][j] != LLP_[cp][j-1]: r.append(f"s_setprio {LLP_[cp][j]}")
        if i in slots: r.append(add1(G + regs[4*slots.index(i)]))
        elif k < len(mf): r += mf[k]; k += 1
        r.append(x)
    assert k == len(mf)
    return r
def phase(par, ft, cp=0):
    G, Go = (vP, vR) if ft == 0 else (vR, vP)
    nf = 1 - ft
    wn = par if ft == 0 else par ^ 1
    wp = par ^ 1 if ft == 0 else par
    s1 = [[x] for x in s_num(wp, nf) + h_mfmas(ft) + s_den(wp, nf, Go)]
    s2 = [[x] for x in g_mfmas(Go, nf, wn)]
    if ft == 0:
        o = par * LWB
        s1[0] += [f"ds_read_u16 v{vQD+u}, v{vARS} offset:{o + 16*u}" for u in range(2)]
        s1[8] += ["s_waitcnt lgkmcnt(0)"] + [f"v_bfi_b32 v{vQD+u}, 31, v{vcS}, v{vQD+u}" for u in range(2)]
        if FAIR and (par == 0 or not F2):
            s1[0] += [f"ds_add_rtn_u32 v{vQD+2}, v{vPA}, v{vIDX}"]
            s1[8] += [f"v_readfirstlane_b32 s{sRM}, v{vQD+2}"]
            s2[1] += [f"s_ashr_i32 s{sRM}, s{sRM}, 24", f"s_mul_i32 s{sRM}, s{sRM}, s{sSG}"]
        o1 = 128 if par else LWB
        s2[0] += [f"ds_read_b64_tr_b16 {rr(vS+2*u,2)}, v{vQD+u}" for u in range(2)]
        s2[0] += [f"ds_read_u16 v{vEA+m}, v{vARO} offset:{o1 + 64*m}" for m in range(2)]
        s2[6] += ["s_waitcnt lgkmcnt(0)"] + eafix()
        s2[6] += [f"ds_read_b128 {rr(vQD,4)}, v{vARX} offset:{o + 128}", f"ds_read_b32 v{vEI}, v{vARE} offset:{o + 128}",
                  f"s_add_u32 s{sT}, s{sT}, 1"]
        if par: s2[7] += [f"v_lshl_add_u64 {rr(r,2)}, {rr(r,2)}, 0, {sp(sINC)}" for r in (vARX, vARO)]
    elif opt("el", 0):
        g = [m16(Go+8*n+4*m, vX+8*m+4*s, vWB+16*nf+8*n+4*s, None if s == 0 else Go+8*n+4*m) for m, s in ORD for n in range(2)]
        g += [m16(Go+8*n+4*m, vEO+4*m, vCA+16*wn+8*nf+4*n, Go+8*n+4*m) for m in range(2) for n in range(2)]
        s2 = [[x] for x in g]
        s1[2] = ["s_waitcnt vmcnt(1)"] + s1[2]
        for i, (m, s) in enumerate(ORD): s1[3+2*i].append(xread(m, s))
        s2[0] = ["s_waitcnt lgkmcnt(2)"] + s2[0]
        ep = opt("el", 0)
        s2[ep] += ["s_waitcnt vmcnt(0)"] + [f"ds_read_b128 {rr(vEO+4*m,4)}, v{vEA+m}" for m in range(2)]
        s2[4] = [f"s_waitcnt lgkmcnt({2 if ep < 4 else 0})"] + s2[4]
        s2[8] = ["s_waitcnt lgkmcnt(0)"] + s2[8]
        s2[opt("eld", 9)] += [f"s_cmp_lt_u32 s{sT}, s{sN}", f"s_cbranch_scc0 L_ND{par}{cp}"] + dma_tile() + [f"L_ND{par}{cp}:"]
    else:
        s1[2] = ["s_waitcnt vmcnt(0)"] + [f"ds_read_b128 {rr(vEO+4*m,4)}, v{vEA+m}" for m in range(2)] + s1[2]
        for i, (m, s) in enumerate(ORD): s1[3+2*i].append(xread(m, s))
        s2[0] = ["s_waitcnt lgkmcnt(4)"] + s2[0]
        for i in range(4): s2[4+2*i] = [f"s_waitcnt lgkmcnt({3-i})"] + s2[4+2*i]
        DSP = opt("dsp", "")
        if DSP:
            d = dma_tile(); first = min(int(c, 16) for c in DSP)
            for i in range(4): s2[4+2*i] = s2[4+2*i][1:] if 4+2*i > first else s2[4+2*i]
            s2[first] = ["s_waitcnt lgkmcnt(0)"] + [x for x in s2[first] if not x.startswith("s_waitcnt")]
            for k, c in enumerate(DSP): s2[int(c, 16)] += d[3*k:3*k+3]
        tgt = f"L_CE{par}{cp}" if opt("cpe", 0) else f"L_ND{par}{cp}"
        if not DSP: s2[10] += [f"s_cmp_lt_u32 s{sT}, s{sN}", f"s_cbranch_scc0 {tgt}"] + dma_tile() + [f"L_ND{par}{cp}:"]
    def sec(mf, op):
        r = []; k = 0
        for i, m in enumerate(mf):
            if opt("lvp", ""):
                lv = opt("lvp", "").split("_")[cp]
                if i in LV:
                    k_ = LV.index(i)
                    if k_ == 0 or lv[k_] != lv[k_-1]: r.append(f"s_setprio {lv[k_]}")
            elif FAIR:
                if i == 0: r.append(f"s_setprio {cp}")
                if i == BST: r.append("s_setprio 3")
            elif i in LV: r.append(f"s_setprio {LV.index(i)}")
            r += m
            for _ in range(int(PAT[i])):
                r.append(f"{op} v{G+k}, v{G+k}"); k += 1
        assert k == 16
        return r
    r = []
    if opt("tt", 0) and ft == 0:
        r += ["s_memrealtime vcc", "s_memtime s[10:11]", f"s_add_u32 m0, s{sT}, 17", "s_waitcnt lgkmcnt(0)", f"v_writelane_b32 v{vTS}, vcc_lo, m0",
              f"s_add_u32 m0, s{sT}, 35", "s_nop 0", f"v_writelane_b32 v{vTS}, s10, m0"]
    if LNG:
        r += long_sec(s1 + s2, G, list(range(16)), ASL, cp)
        return r + [f"v_pk_mul_f32 {rr(vQ+2*i,2)}, {rr(G+2*i,2)}, {rr(vQ+2*i,2)}" for i in range(8)]
    r += sec(s1, "v_exp_f32")
    r += [f"v_pk_add_f32 {rr(G+2*i,2)}, {rr(G+2*i,2)}, 1.0 op_sel_hi:[1,0]" for i in range(8)]
    r += sec(s2, "v_rcp_f32")
    r += [f"v_pk_mul_f32 {rr(vQ+2*i,2)}, {rr(G+2*i,2)}, {rr(vQ+2*i,2)}" for i in range(8)]
    return r

def last_tile(par, half, epi=None, only_b=False):
    keep = (lambda x: int(re.match(r"\S+ v\[(\d+)", x).group(1)) % 8 == (vP % 8)) if half else (lambda x: True)
    regs = [k for k in range(16) if not (half and k & 4)]
    def sec(mf, op, G):
        r = [f"s_setprio {opt('lpr', 0)}"]; k = 0
        tail = min(len(regs), 4 if half else 5)
        for i, m in enumerate(mf):
            if i == len(mf) - 1: r.append("s_setprio 3")
            r += m
            e_ = (len(regs) - tail) * (i + 1) // (len(mf) - 1) if i < len(mf) - 1 else len(regs)
            while k < e_:
                r.append(f"{op} v{G+regs[k]}, v{G+regs[k]}"); k += 1
        while k < len(regs):
            r.append(f"{op} v{G+regs[k]}, v{G+regs[k]}"); k += 1
        return r
    r = []
    for ft in range(1 if only_b else 0, 2):
        G, Go = (vP, vR) if ft == 0 else (vR, vP)
        wp = par ^ 1 if ft == 0 else par
        s1 = [[x] for x in s_num(wp, 1-ft) + [h for h in h_mfmas(ft) if keep(h)] + s_den(wp, 1-ft, Go)]
        s2 = [[x] for x in g_mfmas(Go, 1, par) if keep(x)] if ft == 0 else []
        if ft == 0:
            s1[0] += [f"ds_read_u16 v{vQD+u}, v{vARS} offset:{par*LWB + 16*u}" for u in range(2)]
            s1[-2] += ["s_waitcnt lgkmcnt(0)"] + [f"v_bfi_b32 v{vQD+u}, 31, v{vcS}, v{vQD+u}" for u in range(2)]
            s2[0] += [f"ds_read_b64_tr_b16 {rr(vS+2*u,2)}, v{vQD+u}" for u in range(2)]
        else:
            s1[0] = ["s_waitcnt lgkmcnt(0)"] + s1[0]
            if epi:
                a1, a2, a3 = epi
                r += [f"s_cmp_lg_u32 s{sMORE}, 0", f"s_cbranch_scc1 L_LB{par}"]
                n_ = len(s1) - 3
                for k in range(n_): s1[k] += a1[len(a1)*k//n_:len(a1)*(k+1)//n_]
                s1[-3] += a2[:len(a2)//2]; s1[-2] += a2[len(a2)//2:]
                s2 = [list(x) for x in a3]
        r += sec(s1, "v_exp_f32", G)
        r += [f"v_pk_add_f32 {rr(G+k,2)}, {rr(G+k,2)}, 1.0 op_sel_hi:[1,0]" for k in regs[::2]]
        r += sec(s2, "v_rcp_f32", G)
        r += [f"v_pk_mul_f32 {rr(vQ+k,2)}, {rr(G+k,2)}, {rr(vQ+k,2)}" for k in regs[::2]]
    return r + s_den(par, 1, vR) + s_num(par, 1)

def isize(x):
    op = x.split()[0]
    if x.endswith(":"): return 0
    if op in ("v_exp_f32", "v_rcp_f32", "v_max_u32", "v_readfirstlane_b32"): return 4
    if op.startswith("s_"):
        m = re.search(r", (0x[0-9a-f]+|\d+)$", x)
        return 8 if (m and op not in ("s_setprio", "s_nop", "s_waitcnt") and int(m.group(1), 0) > 64) else 4
    return 8
def align8(body, mode):
    body = list(body); run = []; r = []
    for x in body:
        z = isize(x)
        if z == 8:
            if sum(isize(r[i]) for i in run) % 8:
                c = [i for i in run if r[i].split()[0] in ("v_exp_f32", "v_rcp_f32", "v_max_u32")]
                if c: r[c[-1]] = r[c[-1]].replace(" ", "_e64 ", 1); run = []
                elif mode == 2: r.append("s_nop 0"); run = []
                else: run = [i for i in run if isize(r[i])][:1]
            else: run = []
            r.append(x)
        else:
            run.append(len(r)); r.append(x)
    return r

def listaddr(t0):
    I(f"v_lshrrev_b32 v{t0}, 3, v{lane}")
    I(f"v_lshl_add_u32 v{vARX}, v{t0}, 4, s{sL}")
    I(f"s_add_u32 s10, s{sL}, {R1-R0}")
    I(f"v_lshrrev_b32 v{t0}, 1, v{lane}")
    I(f"v_lshl_add_u32 v{vARE}, v{t0}, 2, s10")
    I(f"s_add_u32 s10, s10, 2")
    I(f"v_lshrrev_b32 v{t0}, 5, v{lane}")
    I(f"v_mul_i32_i24 v{vARO}, {(R0-R1) & 0xffffffff:#x}, v{t0}")
    I(f"v_and_b32 v{t0}, 15, v{lane}")
    I(f"v_lshl_add_u32 v{vARO}, v{t0}, 2, v{vARO}")
    I(f"v_add_u32 v{vARO}, s10, v{vARO}")
    I(f"s_add_u32 s10, s{sL}, 2")
    I(f"v_and_b32 v{t0}, 48, v{lane}")
    I(f"v_lshl_add_u32 v{vARS}, v{t0}, 1, s10")
    I(f"v_and_b32 v{t0}, 12, v{lane}")
    I(f"v_add_u32 v{vARS}, v{vARS}, v{t0}")

def prefill(t):
    for d in range(4): I(f"v_mov_b32 v{t+d}, {ZROW << 16:#x}")
    for d in range(4): I(f"v_mov_b32 v{t+4+d}, 0xfffff")
    I(f"v_lshl_add_u32 v{t+8}, v{lane}, 4, s{sL}")
    for o in (0, 1024, 2*LWB - 1024):
        I(f"ds_write_b128 v{t+8}, {rr(t,4)} offset:{o}")
        I(f"ds_write_b128 v{t+8}, {rr(t+4,4)} offset:{o + R1 - R0}")

def kernel():
    emit(f"""
.globl {NAME}_kernel
.p2align 8
.type {NAME}_kernel,@function
{NAME}_kernel:""")
    FH = opt("fh", 1)
    vD, vSR, vT16 = vACC + 32, vACC, vR + 12
    if TS and opt("tz", 0): I("s_memrealtime s[96:97]")
    I("s_load_dwordx16 s[16:31], s[0:1], 0")
    I("s_load_dwordx8 s[32:39], s[0:1], 64")
    CPN = opt("cpn", 8)
    if opt("cpf", 1):
        I(f"s_getpc_b64 {sp(sM)}")
        L("L_PC")
        if CPN == 8: I("s_and_b32 s3, s2, -8")
        else:
            I("s_lshr_b32 s3, s2, 3")
            I(f"s_and_b32 s3, s3, {256//CPN - 1}")
            I(f"s_mul_i32 s3, s3, {CPN}")
        I("v_add_lshl_u32 v1, v0, s3, 7")
        I("v_min_u32 v1, L_LAST-L_PC, v1")
        I(f"v_cmpx_gt_u32 vcc, {CPN}, v0")
        I("s_cbranch_execz L_NOCPF")
        I(f"global_load_dword v{vEA}, v1, {sp(sM)}")
        L("L_NOCPF")
        I("s_mov_b64 exec, -1")
    I("s_cmp_ge_u32 s2, 256")
    I("s_cbranch_scc1 L_END")
    if FH:
        I(f"s_mul_i32 s{sA}, s2, {CH*4}")
        I(f"v_lshl_add_u32 v1, v0, 4, s{sA}")
        I(f"s_add_u32 s{sBt}, s{sA}, {CH*4}")
        I(f"s_min_u32 s{sBt}, s{sBt}, {E*4}")
        BAL = opt("bal", 0)
        if BAL:
            I(f"s_add_u32 s{sA}, s{sA}, 0x2000")
            I(f"v_lshl_add_u32 v2, v0, 3, s{sA}")
            I(f"s_add_u32 s{sA}, s{sA}, 0x1000")
            I(f"v_lshl_add_u32 v3, v0, 2, s{sA}")
            I(f"v_cmp_gt_u32 {sp(sM+6)}, s{sBt}, v2")
            I(f"v_min_u32 v2, {E*4 - 8}, v2")
        else: I("v_add_u32 v2, 0x2000, v1")
        I("s_waitcnt lgkmcnt(0)")
        if TS and opt("tz", 0): I("s_memrealtime s[98:99]")
        I(f"global_load_dwordx4 {rr(vD,4)}, v1, {sp(pDST)}{pol(LD_P)}")
        if BAL:
            I(f"global_load_dwordx2 {rr(vD+4,2)}, v2, {sp(pDST)}{pol(LD_P)}")
            I(f"global_load_dwordx4 {rr(vSR,4)}, v1, {sp(pSRC)}{pol(LD_P)}")
            I(f"global_load_dwordx2 {rr(vSR+4,2)}, v2, {sp(pSRC)}{pol(LD_P)}")
            I(f"v_cmpx_gt_u32 {sp(sM+28)}, s{sBt}, v3")
            I("s_cbranch_execz L_NO7")
            I(f"global_load_dword v{vD+6}, v3, {sp(pDST)}{pol(LD_P)}")
            I(f"global_load_dword v{vSR+6}, v3, {sp(pSRC)}{pol(LD_P)}")
        else:
            I(f"global_load_dwordx4 {rr(vSR,4)}, v1, {sp(pSRC)}{pol(LD_P)}")
            def group2():
                I(f"v_cmpx_gt_u32 {sp(sM+6)}, s{sBt}, v2")
                I("s_cbranch_execz L_NO8")
                I(f"global_load_dwordx4 {rr(vD+4,4)}, v2, {sp(pDST)}{pol(LD_P)}")
                I(f"global_load_dwordx4 {rr(vSR+4,4)}, v2, {sp(pSRC)}{pol(LD_P)}")
                L("L_NO8")
                I("s_mov_b64 exec, -1")
            G2 = opt("g2", 0)
            if G2 == 0: group2()
        L("L_NO7")
        I("s_mov_b64 exec, -1")
        KV = opt("kv", 0)
        if KV:
            I("v_mov_b32 v1, 0")
            I(f"global_load_dword v{vEA+1}, v1, {sp(pWS)}")
        else: I(f"s_load_dword s{sK}, {sp(pWS)}, 0")
        if opt("tlb", 0):
            I("v_lshlrev_b32 v1, 20, v0")
            I(f"v_add_u32 v1, {WS_CELL + XOFF - 448*(1 << 20) & 0xffffffff:#x}, v1")
            I("v_subrev_u32 v2, 448, v0")
            I("v_cmpx_gt_u32 vcc, 9, v2")
            I("s_cbranch_execz L_NOTLB")
            I(f"global_load_dword v{vEA+1}, v1, {sp(pWS)}")
            L("L_NOTLB")
            I("s_mov_b64 exec, -1")
    if TS: I(f"v_mov_b32 v{vTS}, 0")
    u = lambda i: vP + i
    if TS and opt("tz", 0):
        I("s_waitcnt lgkmcnt(0)")
        I(f"v_writelane_b32 v{vTS}, s96, 0")
        I(f"v_writelane_b32 v{vTS}, s98, 1")
        STN.extend(["z", "k"])
    stamp(0)
    vBK, vRK1, vID, vHA, vIC = vACC + 8, vACC + 16, vACC + 24, vACC + 40, vACC + 48
    vRW = vX
    one, l16 = vS, vS + 1
    vOA, vT16, sOW = vR + 14, vR + 12, 101
    I(f"v_mov_b32 v{tid}, v0")
    I(f"v_lshrrev_b32 v{u(0)}, 6, v0")
    I(f"v_and_b32 v{lane}, 63, v0")
    I(f"v_readfirstlane_b32 s{sWP}, v{u(0)}")
    I(f"v_lshlrev_b32 v{vT16}, 4, v0")
    I(f"v_lshlrev_b32 v{u(2)}, 3, v0")
    I(f"v_lshlrev_b32 v{u(3)}, 2, v0")
    I(f"v_and_b32 v{u(4)}, 0x3fc, v{u(3)}")
    if not FH:
        I(f"s_mul_i32 s{sA}, s2, {CH*4}")
        I(f"s_sub_u32 s{sBt}, {E*4}, s{sA}")
        I(f"s_min_u32 s{sBt}, s{sBt}, {CH*4}")
    I(f"s_and_b32 s{sB}, s2, 7")
    I(f"s_lshr_b32 s{sW}, s2, 3")
    I(f"s_lshl_b32 s{sB}, s{sB}, 5")
    I(f"s_add_u32 s{sB}, s{sB}, s{sW}")
    I(f"s_mul_i32 s{sF1}, s{sB}, {BN}")
    I(f"s_cmp_eq_u32 s{sWP}, 7")
    I(f"s_cselect_b32 s{sOW}, 0, s{sWP}")
    I(f"s_lshl_b32 s{sL}, s{sOW}, 5")
    I(f"s_add_u32 s{sF1}, s{sF1}, s{sL}")
    I(f"v_lshrrev_b32 v{u(5)}, 3, v{lane}")
    I(f"v_lshl_add_u32 v{u(5)}, v{u(5)}, 2, s{sF1}")
    I(f"v_and_b32 v{vCP}, 7, v{lane}")
    I(f"v_lshlrev_b32 v{vCP}, 4, v{vCP}")
    I(f"v_lshl_add_u32 v{vOA}, v{u(5)}, 7, v{vCP}")
    I(f"s_lshl_b32 s{sOW}, s{sOW}, 10")
    I(f"s_add_u32 s{sOW}, s{sOW}, {OWN}")
    if not FH:
        I(f"s_movk_i32 s{sF0}, 0x2000")
        I("s_waitcnt lgkmcnt(0)")
        I(f"s_load_dword s{sK}, {sp(pWS)}, 0")
        srd(sCEL, pDST, f"s{sBt}", f"s{sA}")
        srd(sD2, pSRC, f"s{sBt}", f"s{sA}")
        I(f"buffer_load_dwordx4 {rr(vD,4)}, v{vT16}, {sq(sCEL)}, 0 offen{pol(LD_P)}")
        I(f"buffer_load_dwordx4 {rr(vSR,4)}, v{vT16}, {sq(sD2)}, 0 offen{pol(LD_P)}")
        I(f"s_cmp_ge_u32 s{sWP}, 5")
        I("s_cbranch_scc1 L_NO7")
        I(f"buffer_load_dwordx4 {rr(vD+4,4)}, v{vT16}, {sq(sCEL)}, s{sF0} offen{pol(LD_P)}")
        I(f"buffer_load_dwordx4 {rr(vSR+4,4)}, v{vT16}, {sq(sD2)}, s{sF0} offen{pol(LD_P)}")
        L("L_NO7")
    for d in range(2): I(f"v_mov_b64 {rr(u(8)+2*d,2)}, 0")
    I(f"v_mov_b32 v{u(6)}, {33*JE if MG else 0}")
    I(f"ds_write2st64_b32 v{u(4)}, v{u(6)}, v{u(8)} offset0:{HIST1//256} offset1:{HIST1//256+4}")
    I(f"v_add_u32 v{u(5)}, {CIMG}, v{vT16}")
    if G2 == 1: group2()
    for k in range(5): I(f"ds_write_b128 v{u(5)}, {rr(u(8),4)} offset:{8192*k}")
    if G2 == 2: group2()
    PF = opt("pf", 0)
    def w_loads():
        I(f"s_cmp_ge_u32 s{sWP}, 2")
        I("s_cbranch_scc1 L_NOC")
        I(f"global_load_dwordx4 {rr(vEO,4)}, v{vT16}, {sp(pWC)}")
        L("L_NOC")
        for k, p in enumerate((pWB, pWV, pWA, pWU)):
            I(f"global_load_dwordx4 {rr(vRW+4*k,4)}, v{vT16}, {sp(p)}")
    def own_loads():
        I(f"s_cmp_eq_u32 s{sWP}, 6")
        I("s_cselect_b32 exec_hi, 0, -1")
        I(f"s_cmp_eq_u32 s{sWP}, 7")
        I("s_cselect_b64 exec, 1, exec")
        for k in range(4):
            I(f"s_add_u32 m0, s{sOW}, {(PL-128)*k}")
            I("s_nop 0")
            I(f"buffer_load_dwordx4 v{vOA}, {sq(sX)}, 0 offen offset:{128*k}{pol(opt('owp', ''))} lds")
        I("s_mov_b64 exec, -1")
    def x_prefetch():
        if not PF: return
        I(f"s_add_u32 s{sTM}, s2, 1")
        I(f"s_and_b32 s{sTM}, s{sTM}, 7")
        I(f"s_mul_i32 s{sTM}, s{sTM}, {32*BN}")
        I(f"s_lshr_b32 s{sTM+1}, s2, 3")
        I(f"s_mul_i32 s{sTM+1}, s{sTM+1}, {PF}")
        I(f"s_add_u32 s{sTM}, s{sTM}, s{sTM+1}")
        I(f"s_mul_i32 s{sTM+1}, s{sWP}, {PF//8}")
        I(f"s_add_u32 s{sTM}, s{sTM}, s{sTM+1}")
        I(f"v_min_u32 v{vEA+1}, {PF//8 - 1}, v{lane}")
        I(f"v_add_lshl_u32 v{vEA+1}, v{vEA+1}, s{sTM}, 7")
        I(f"buffer_load_dword v{vEA+1}, v{vEA+1}, {sq(sX)}, 0 offen")
    PFP = opt("pfp", 0)
    LLP = 2
    OLP = opt("olp", 2)
    NY = 0
    srd(sEP, pE, E, stride=32)
    srd(sOUT, pOUT, N*128)
    srd(sX, pX, N*128)
    OY = 0
    if OLP == 3:
        OW0 = opt("ow0", 5); nw = 8 - OW0; per = -(-28 // nw); OY = per
        I(f"s_cmp_lt_u32 s{sWP}, {OW0}")
        I("s_cbranch_scc1 L_NOOWN")
        I(f"s_mul_i32 s{sF1}, s{sB}, {BN}")
        I(f"v_lshrrev_b32 v{vOA}, 3, v{lane}")
        I(f"v_lshl_add_u32 v{vOA}, v{vOA}, 2, s{sF1}")
        I(f"v_lshl_add_u32 v{vOA}, v{vOA}, 7, v{vCP}")
        I(f"s_sub_u32 s{sF0}, s{sWP}, {OW0}")
        for k in range(per):
            I(f"s_add_u32 s{sF1}, s{sF0}, {nw*k}")
            I(f"s_min_u32 s{sF1}, s{sF1}, 27")
            I(f"s_and_b32 s{sL}, s{sF1}, 3")
            I(f"s_lshr_b32 s{sF1}, s{sF1}, 2")
            I(f"s_mul_i32 s{sOW}, s{sL}, {PL}")
            I(f"s_lshl_b32 s{sL}, s{sL}, 7")
            I(f"s_cmp_eq_u32 s{sF1}, 6")
            I("s_cselect_b32 exec_hi, 0, -1")
            I(f"s_lshl_b32 s{sF1}, s{sF1}, 10")
            I(f"s_add_u32 s{sOW}, s{sOW}, s{sF1}")
            I(f"s_add_u32 m0, s{sOW}, {OWN}")
            I(f"s_lshl2_add_u32 s{sL}, s{sF1}, s{sL}")
            I(f"buffer_load_dwordx4 v{vOA}, {sq(sX)}, s{sL} offen lds")
        I("s_mov_b32 exec_hi, -1")
        L("L_NOOWN")
    srd(sWS, pWS, WS_USED)
    I(f"s_lshl_b32 s{sL}, s2, 7")
    I(f"s_add_u32 s{sL}, s{sL}, {WS_CELL}")
    srd(sCEL, pWS, 255*RS + XOFF + 128, f"s{sL}")
    cM, cN, cP, cPM, cR = sM, sM + 1, sM + 2, sM + 3, sM + 4
    m2 = sM + 6
    I(f"s_mov_b32 s{cM}, 85599")
    I(f"s_mov_b32 s{cN}, {-BN & 0xffffffff}")
    I(f"s_movk_i32 s{cP}, 5368")
    I(f"s_mov_b32 s{cPM}, {opt('phm', 3) << 26:#x}")
    I(f"s_mov_b32 s{cR}, {RS}")
    if opt("rot", 0): I(f"s_mov_b32 s{sSP}, {-(196*5368) & 0xffffffff:#x}")
    for i in range(4): I(f"v_add_u32 v{vID+i}, {i}, v{u(3)}")
    I(f"s_lshl_b32 s{sA}, s{sWP}, 28")
    I(f"s_or_b32 s{sA}, s{sA}, 0x20000")
    I(f"v_mov_b32 v{vIC}, s{sA}")
    if BAL:
        assert MG <= 1 and OLP != 3
        I(f"s_lshr_b32 s{sA}, s{sWP}, 1")
        I(f"s_lshl_b32 s{sA}, s{sA}, 28")
        I(f"s_or_b32 s{sA}, s{sA}, 0x80020000")
        I(f"v_mov_b32 v{vIC+1}, s{sA}")
        I(f"v_mov_b32 v{vIC+3}, 0xc0020000")
        I(f"v_lshlrev_b32 v{vID+4}, 1, v{tid}")
        I(f"v_add_u32 v{vID+5}, 1, v{vID+4}")
        I(f"v_mov_b32 v{vID+6}, v{tid}")
    else: I(f"v_or_b32 v{vIC+1}, 0x80000000, v{vIC}")
    idr = (lambda i: vID + i) if BAL else (lambda i: vID + (i & 3))
    icr = (lambda i: vIC + (3 if i == 6 else i >> 2)) if BAL else (lambda i: vIC + (i >> 2))
    NR = 7 if BAL else 8
    I(f"v_mov_b32 v{one}, 33")
    vK1 = vIC + 2
    I(f"v_mov_b32 v{vK1}, 0x400")
    if opt("ro", 0): I(f"v_mov_b32 v{vIC+4}, {opt('ro', 0) << 24:#x}")
    if not FH:
        I(f"s_sub_u32 s{sBt}, s{sBt}, 0x2000")
        I(f"v_cmp_gt_u32 {sp(m2)}, s{sBt}, v{vT16}")
    I(f"s_and_b32 s{sA}, s{sWP}, 3")
    I(f"s_lshr_b32 s{sW}, s{sWP}, 2")
    I(f"s_lshl1_add_u32 s{sW}, s{sA}, s{sW}")
    if opt("swp", 1): I(f"s_xor_b32 s{sW}, s{sW}, 1")
    I(f"s_mul_i32 s{sA}, s{sW}, 49")
    I(f"s_sub_i32 s{sA}, s{sA}, 6")
    I(f"s_ashr_i32 s{sA}, s{sA}, 1")
    I(f"s_max_i32 s{sWIN}, s{sA}, 0")
    I(f"s_mul_i32 s{sSTG}, s{sW}, {SLOT}")
    I(f"s_add_u32 s{sSTG}, s{sSTG}, {XSTG}")
    I(f"s_lshl_b32 s{sES}, s{sW}, 10")
    I(f"s_add_u32 s{sES}, s{sES}, {ESTG}")
    I(f"s_mul_i32 s{sL}, s{sW}, {2*LWB}")
    I(f"s_add_u32 s{sL}, s{sL}, {R0}")
    I(f"s_movk_i32 s{s128}, 128")
    if G2 == 3: group2()
    I(f"v_bfe_u32 v{u(6)}, v{tid}, 4, 4")
    I(f"v_and_b32 v{u(7)}, 7, v{tid}")
    I(f"v_cmp_eq_u32 vcc, v{u(6)}, v{u(7)}")
    I(f"v_and_b32 v{u(6)}, 8, v{tid}")
    I(f"v_lshlrev_b32 v{u(6)}, 1, v{u(6)}")
    I(f"v_mov_b32 v{u(8)}, 0x3f80")
    I(f"v_lshlrev_b32 v{u(8)}, v{u(6)}, v{u(8)}")
    I(f"v_cndmask_b32 v{u(8)}, 0, v{u(8)}, vcc")
    I(f"ds_write_b32 v{u(4)}, v{u(8)} offset:{TAB}")
    I(f"v_mov_b64 {rr(u(8),2)}, 0")
    I(f"ds_write_b64 v{u(2)}, {rr(u(8),2)} offset:{HIST}")
    I(f"v_add_u32 v{u(6)}, {PRG}, v{u(3)}")
    I(f"ds_write_b32 v{u(6)}, v{u(8)}")
    go, lo, lo2, ha = vR, vR + 1, vR + 2, vR + 3
    wl, wal = vR + 4, vR + 5
    I(f"v_lshrrev_b32 v{ha}, 3, v{tid}")
    TW = opt("tw", "")
    lob, l2b = vR + 6, vR + 7
    sRG = sM + 28
    I(f"v_mul_u32_u24 v{wl}, {LROW}, v{ha}")
    if TW:
        I(f"v_and_b32 v{lo2}, 24, v{ha}")
        I(f"v_and_b32 v{go}, 7, v{ha}")
        I(f"v_lshl_add_u32 v{lo2}, v{lo2}, 1, v{go}")
        I(f"v_mad_u32_u24 v{go}, v{lo2}, s{cR}, v{vCP}")
        I(f"s_lshr_b32 s{sRG}, s{sWP}, 2")
        I(f"s_lshl_b32 s{sRG}, s{sRG}, 7")
        I(f"s_sub_u32 s{sRG}, s{sRG}, s2")
        I(f"s_add_u32 s{sRG}, s{sRG}, 63")
        I(f"s_add_u32 s{sRG+1}, s{sRG}, 64")
        I(f"s_and_b32 s{sRG}, s{sRG}, 0xc0")
        I(f"s_and_b32 s{sRG+1}, s{sRG+1}, 0xc0")
        I(f"v_add_u32 v{l2b}, s{sRG+1}, v{lo2}")
        I(f"v_add_u32 v{lo2}, s{sRG}, v{lo2}")
        I(f"v_add_u32 v{u(6)}, {CIMG}, v{vCP}")
        I(f"s_movk_i32 s{sA}, {LROW}")
        I(f"v_mad_u32_u24 v{lo}, v{lo2}, s{sA}, v{u(6)}")
        I(f"v_mad_u32_u24 v{lob}, v{l2b}, s{sA}, v{u(6)}")
        I(f"v_lshlrev_b32 v{lo2}, 2, v{lo2}")
        I(f"v_lshlrev_b32 v{l2b}, 2, v{l2b}")
    else:
        I(f"v_mad_u32_u24 v{go}, v{ha}, s{cR}, v{vCP}")
        I(f"v_add_u32 v{lo}, v{wl}, v{vCP}")
        I(f"v_add_u32 v{lo}, {CIMG}, v{lo}")
    assert LROW == WR
    I(f"v_bfe_u32 v{u(6)}, v{tid}, 5, 1")
    I(f"v_bfe_u32 v{u(8)}, v{tid}, 6, 1")
    I(f"v_sub_u32 v{u(6)}, v{u(6)}, v{u(8)}")
    I(f"v_mul_i32_i24 v{u(6)}, {4*WR}, v{u(6)}")
    I(f"v_add_u32 v{wl}, v{wl}, v{u(6)}")
    I(f"v_lshl_add_u32 v{wl}, v{u(7)}, 2, v{wl}")
    I(f"v_add_u32 v{wl}, {WBI}, v{wl}")
    I(f"v_lshlrev_b32 v{l16}, 4, v{lane}")
    I(f"v_and_b32 v{u(6)}, 3, v{lane}")
    I(f"v_lshlrev_b32 v{vcS}, 3, v{u(6)}")
    I(f"v_bfe_u32 v{u(9)}, v{lane}, 2, 3")
    I(f"v_lshrrev_b32 v{u(8)}, 5, v{lane}")
    I(f"v_lshl_add_u32 v{u(9)}, v{u(8)}, 4, v{u(9)}")
    I(f"v_mul_u32_u24 v{wal}, {WR}, v{u(9)}")
    I(f"v_add_u32 v{wal}, v{wal}, v{vcS}")
    mm = lambda i: sM + 8 + 2*i
    def rank_a(rs, wsrc=0, plain=False):
        for i in rs: I(f"v_mul_u32_u24 v{vBK+i}, s{cM}, v{vD+i}")
        if rs[0] // 4 < MG and not plain:
            b = rs[0]
            for i in rs: I(f"v_lshrrev_b32 v{vHA+i}, 29, v{vBK+i}")
            if opt("px", 0):
                I(f"s_waitcnt vmcnt({wsrc})")
                for i in rs:
                    I(f"v_cmp_gt_u32 vcc, {opt('px', 0)}, v{vSR+i}")
                    I("s_nop 1")
                    I(f"v_cndmask_b32 v{vHA+i}, v{vHA+i}, v{vID+(i&3)}, vcc") if False else I(f"v_cndmask_b32_e64 v{vHA+i}, v{vHA+i}, {8+(i&3)}, vcc")
            t0, t1 = sM + 24, sM + 26
            I(f"v_cmp_eq_u32 {sp(mm(b))}, v{vHA+b}, v{vHA+b+1}")
            I(f"v_cmp_eq_u32 {sp(mm(b+2))}, v{vHA+b+2}, v{vHA+b+3}")
            I(f"v_cmp_eq_u32 vcc, v{vHA+b}, v{vHA+b+2}")
            I(f"v_cmp_eq_u32 {sp(t0)}, v{vHA+b+1}, v{vHA+b+3}")
            I(f"v_cmp_eq_u32 {sp(t1)}, v{vHA+b}, v{vHA+b+3}")
            I(f"v_cmp_eq_u32 {sp(sA)}, v{vHA+b+1}, v{vHA+b+2}")
            for i in rs: I(f"v_lshrrev_b32 v{vBK+i}, 24, v{vBK+i}")
            I(f"s_or_b64 {sp(mm(b+1))}, {sp(mm(b))}, {sp(t0)}")
            I(f"s_or_b64 {sp(mm(b+3))}, {sp(mm(b+2))}, {sp(t0)}")
            I(f"s_or_b64 {sp(mm(b))}, {sp(mm(b))}, vcc")
            I(f"s_or_b64 {sp(mm(b+2))}, {sp(mm(b+2))}, vcc")
            I(f"s_or_b64 {sp(mm(b))}, {sp(mm(b))}, {sp(t1)}")
            I(f"s_or_b64 {sp(mm(b+1))}, {sp(mm(b+1))}, {sp(sA)}")
            I(f"s_or_b64 {sp(mm(b+2))}, {sp(mm(b+2))}, {sp(sA)}")
            I(f"s_or_b64 {sp(mm(b+3))}, {sp(mm(b+3))}, {sp(t1)}")
            for i in rs:
                I(f"v_cndmask_b32 v{vHA+i}, 0, v{vK1}, {sp(mm(i))}")
                I(f"v_lshl_add_u32 v{vHA+i}, v{vBK+i}, 2, v{vHA+i}")
                I(f"ds_add_rtn_u32 v{vRK1+i}, v{vHA+i}, v{one} offset:{HIST1}")
            return
        for i in rs: I(f"v_lshrrev_b32 v{vBK+i}, 24, v{vBK+i}")
        for i in rs:
            I(f"v_lshlrev_b32 v{vHA+i}, 2, v{vBK+i}")
            I(f"ds_add_rtn_u32 v{vRK1+i}, v{vHA+i}, v{one} offset:{HIST1}")
    def again(rs, wait, em):
        for i in rs:
            I(f"s_waitcnt lgkmcnt({wait})")
            I(f"s_mov_b64 exec, {sp(mm(i))}")
            I(f"v_cmpx_le_u32 vcc, {33*JE}, v{vRK1+i}")
            I(f"ds_add_rtn_u32 v{vRK1+i}, v{vHA+i}, v{one} offset:{HIST1 - 1024}")
        I(f"s_mov_b64 exec, {em}")
    def rank_b(rs):
        for i in rs:
            I(f"v_mad_i32_i24 v{vD+i}, v{vBK+i}, s{cN}, v{vD+i}")
            if opt("ro", 0): I(f"v_mad_u32_u24 v{u(6)}, s{cP}, v{vSR+i}, v{vIC+4}")
            else: I(f"v_mul_u32_u24 v{u(6)}, s{cP}, v{vSR+i}")
            I(f"v_lshl_or_b32 v{vSR+i}, v{vD+i}, 18, v{vSR+i}")
            if opt("rot", 0):
                I(f"v_and_b32 v{vD+i}, 0xe0, v{vBK+i}")
                I(f"v_mad_i32_i24 v{u(6)}, v{vD+i}, s{sSP}, v{u(6)}")
            I(f"v_and_or_b32 v{u(6)}, v{u(6)}, s{cPM}, v{icr(i)}")
            I(f"v_mad_u32_u24 v{vD+i}, v{vBK+i}, {LROW//4}, s{cN+4}")
            I(f"v_or_b32 v{vSR+i}, v{vSR+i}, v{u(6)}")
    def place(i, wait, em):
        I(f"s_waitcnt lgkmcnt({wait})")
        I(f"v_bfe_u32 v{u(6)}, v{vRK1+i}, 3, 5")
        I(f"v_add_lshl_u32 v{vD+i}, v{u(6)}, v{vD+i}, 2")
        I(f"v_and_b32 v{u(6)}, 3, v{u(6)}")
        I(f"v_mad_i32_i24 v{u(6)}, v{u(6)}, -3, v{vD+i}")
        I(f"v_cmpx_gt_u32 vcc, {33*CAP}, v{vRK1+i}")
        I(f"ds_write_b32 v{vD+i}, v{vSR+i}")
        I(f"ds_write_b8 v{u(6)}, v{idr(i)} offset:12")
        I(f"s_mov_b64 exec, {em}")
    I(f"s_movk_i32 s{cN+4}, {CIMG//4}")
    for d in range(2): I(f"v_mov_b64 {rr(vRK1+4+2*d,2)}, 0")
    I("s_waitcnt lgkmcnt(0)")
    I("s_barrier")
    if BAL:
        m3 = sM + 28
        I("s_waitcnt vmcnt(3)")
        stamp(1)
        if TS: STN.pop()
        rank_a(range(4))
        I("s_waitcnt vmcnt(2)")
        I(f"s_mov_b64 exec, {sp(m2)}")
        rank_a(range(4, 6))
        if MG: again(range(4), 5, "-1")
        else: I("s_mov_b64 exec, -1")
        I("s_waitcnt vmcnt(0)")
        rank_b(range(6))
        I(f"s_mov_b64 exec, {sp(m2)}")
        for i in range(4, 6): place(i, (1 if MG else -3) + i, sp(m2) if i < 5 else "-1")
        for i in range(4): place(i, 7 + i, "-1")
        I(f"s_mov_b64 exec, {sp(m3)}")
        I("s_cbranch_execz L_B1")
        rank_a([6]); rank_b([6]); place(6, 0, "-1")
        I("s_branch L_B1")
    I(f"s_cmp_eq_u64 {sp(m2)}, 0" if FH else f"s_cmp_ge_u32 s{sWP}, 5")
    I("s_cbranch_scc1 L_R4")
    I(f"s_waitcnt vmcnt({3+KV})")
    stamp(1)
    rank_a(range(4), 2)
    I(f"s_waitcnt vmcnt({1+KV})")
    I(f"s_mov_b64 exec, {sp(m2)}")
    rank_a(range(4, 8))
    if MG == 0:
        I("s_mov_b64 exec, -1")
        rank_b(range(4))
        for i in range(4): place(i, 7 + i, "-1" if i < 3 else sp(m2))
        I(f"s_waitcnt vmcnt({KV})")
        rank_b(range(4, 8))
        for i in range(4, 8): place(i, 7 + i, sp(m2) if i < 7 else "-1")
    elif MG == 1:
        again(range(4), 7, sp(m2))
        I(f"s_waitcnt vmcnt({KV})")
        rank_b(range(4, 8))
        for i in range(4, 8): place(i, 3 + i, sp(m2) if i < 7 else "-1")
        rank_b(range(4))
        for i in range(4): place(i, 11 + i, "-1")
    else:
        again(range(8), 7, "-1")
        rank_b(range(4))
        for i in range(4): place(i, 7 + i, "-1" if i < 3 else sp(m2))
        I(f"s_waitcnt vmcnt({KV})")
        rank_b(range(4, 8))
        for i in range(4, 8): place(i, 7 + i, sp(m2) if i < 7 else "-1")
    I("s_branch L_B1")
    L("L_R4")
    if OY:
        I(f"s_cmp_ge_u32 s{sWP}, {OW0}")
        I("s_cbranch_scc1 L_R4A")
        I(f"s_waitcnt vmcnt({KV})")
        L("L_R4A")
    I(f"s_waitcnt vmcnt({1 + OY + KV})")
    if TS: STN.pop()
    stamp(1)
    YM = opt("ym", 1)
    rank_a(range(4), plain=not YM)
    I(f"s_waitcnt vmcnt({OY + KV})")
    if MG and YM:
        rank_b(range(2))
        again(range(4), 3, "-1")
        rank_b(range(2, 4))
    else: rank_b(range(4))
    for i in range(4): place(i, 3 + i, "-1")
    L("L_B1")
    if BAL:
        k_ = max(i for i, l in enumerate(out) if l.strip() == "s_cbranch_execz L_B1")
        e_ = next(i for i in range(k_, len(out)) if out[i].strip() == "s_branch L_B1")
        del out[e_:len(out)-1]
        I("s_mov_b64 exec, -1")
    WL = opt("wl", 0)
    if not WL: w_loads()
    vTG = vS + 2
    def tagcalc():
        I(f"s_add_u32 s{sK}, s{sK}, {KINC:#x}")
        I(f"v_lshlrev_b32 v{vTG}, v{vcS}, s{sK}")
        I(f"v_and_b32 v{u(1)}, 4, v{lane}")
        I(f"v_mul_u32_u24 v{u(1)}, {37 << 15}, v{u(1)}")
        I(f"v_lshl_add_u32 v{vTG}, v{u(1)}, 8, v{vTG}")
        I(f"v_and_b32 v{vTG}, 0xfe000000, v{vTG}")
    if not KV: tagcalc()
    vTH = vS + 3
    I(f"v_and_b32 v{vTH}, 7, v{lane}")
    I(f"v_mul_u32_u24 v{vTH}, 33, v{vTH}")
    I(f"v_add_u32 v{vTH}, {33*CAP}, v{vTH}")
    if not TW: I(f"v_lshlrev_b32 v{lo2}, 2, v{ha}")
    I(f"s_mov_b32 s{cM}, 0x1000000")
    I("s_waitcnt lgkmcnt(0)")
    I("s_barrier")
    stamp(2)
    vO, vHS = vQ, u(4)
    I(f"ds_read_b128 {rr(vHS,4)}, v{l16} offset:{HIST1}")
    vHD = vR + 8
    for i in range(4):
        if TW:
            I(f"ds_read_b32 v{vHD+i}, v{(lo2, l2b)[i>>1]} offset:{HIST1 + 32*(i&1)}")
            I(f"ds_read_b128 {rr(vO+4*i,4)}, v{(lo, lob)[i>>1]} offset:{8*LROW*(i&1)}")
            continue
        I(f"ds_read_b32 v{vHD+i}, v{lo2} offset:{HIST1 + 256*i}")
        I(f"ds_read_b128 {rr(vO+4*i,4)}, v{lo} offset:{64*LROW*i}")
    if KV:
        I("s_waitcnt vmcnt(4)")
        I(f"v_readfirstlane_b32 s{sK}, v{vEA+1}")
    if TW:
        for h in range(2):
            I(f"s_mul_i32 s{sM+15+2*h}, s{sRG+h}, {RS}")
            I(f"s_add_u32 s{sM+16+2*h}, s{sM+15+2*h}, {8*RS}")
    else:
        for i in range(1, 4): I(f"s_mov_b32 s{sM+15+i}, {64*RS*i}")
    if KV: tagcalc()
    I("s_waitcnt lgkmcnt(8)")
    I(f"v_max3_u32 v{u(0)}, v{vHS}, v{vHS+1}, v{vHS+2}")
    I(f"v_max_u32 v{u(0)}, v{u(0)}, v{vHS+3}")
    I(f"v_cmp_lt_u32 vcc, {33*(CAP+8)}, v{u(0)}")
    I("s_cbranch_vccnz L_POVF")
    L("L_POUT")
    for i in range(4):
        I(f"s_waitcnt lgkmcnt({7 - 2*i})")
        I(f"v_sub_u32 v{vHD+i}, v{vTH}, v{vHD+i}")
        I(f"v_and_or_b32 v{vHD+i}, v{vHD+i}, s{cM}, v{vTG}")
        I(f"s_waitcnt lgkmcnt({6 - 2*i})")
        I(f"v_or_b32 v{vO+4*i+3}, v{vO+4*i+3}, v{vHD+i}")
        I(f"buffer_store_dwordx4 {rr(vO+4*i,4)}, v{go}, {sq(sCEL)}, {f's{sM+15+i}' if i or TW else '0'} offen{pol(STP)}")
    stamp(3)
    if WL: w_loads()
    if "c" in opt("tsx", ""): I("s_waitcnt vmcnt(0)")
    stamp("c0")
    t = vACC + 32
    I(f"s_mov_b32 s{sA}, {f2u(-LOG2E):#x}")
    I(f"s_mov_b32 s{sBt}, s{sA}")
    I(f"s_mov_b32 s{cM}, 0x05040100")
    I(f"s_mov_b32 s{cP}, 0x07060302")
    def wscaled(src, off):
        for d in range(4):
            I(f"v_lshlrev_b32 v{t+2*d}, 16, v{src+d}")
            I(f"v_and_b32 v{t+2*d+1}, 0xffff0000, v{src+d}")
        for d in range(4): I(f"v_pk_mul_f32 {rr(t+2*d,2)}, {rr(t+2*d,2)}, {sp(sA)}")
        for n in range(4): I(f"v_cvt_pk_bf16_f32 v{t+8+n}, v{t+n}, v{t+4+n}")
        wput(t + 8, off)
    def wplain(src, off, tt):
        for n in range(4): I(f"v_perm_b32 v{tt+n}, v{src+2+(n>>1)}, v{src+(n>>1)}, s{cP if n & 1 else cM}")
        wput(tt, off)
    def wput(r, off):
        a = wl
        if off:
            a = r + 4
            I(f"v_add_u32 v{a}, {off}, v{wl}")
        I(f"ds_write2_b32 v{a}, v{r}, v{r+1} offset0:0 offset1:8")
        I(f"ds_write2_b32 v{a}, v{r+2}, v{r+3} offset0:16 offset1:24")
    I(f"s_waitcnt vmcnt({0 if WL else 4})")
    if PFP == 0: x_prefetch()
    stamp("b4")
    wplain(vRW + 8, WAI - WBI, t + 16)
    wscaled(vRW, 0)
    wplain(vRW + 4, WVI - WBI, t + 24)
    wplain(vRW + 12, WUI - WBI, t + 16)
    I(f"s_cmp_ge_u32 s{sWP}, 2")
    I("s_cbranch_scc1 L_NOWC")
    wscaled(vEO, WCI - WBI)
    L("L_NOWC")
    I(f"s_mul_i32 s{sTM}, s{sB}, {RS}")
    I(f"s_add_u32 s{sTM}, s{sTM}, {WS_CELL}")
    srd(sCEL, pWS, 256*128, f"s{sTM}")
    I(f"s_add_u32 s{sTM}, s{sTM}, {XOFF}")
    srd(sD2, pWS, 256*128, f"s{sTM}")
    vC, vEB = vACC + 32, vACC + 60
    pa = vT16
    def goff(d, k):
        if not TW: return I(f"s_movk_i32 s{d}, {8192*k}")
        I(f"s_sub_u32 s{d}, {64*k + 63}, s{sB}")
        I(f"s_and_b32 s{d}, s{d}, 0xc0")
        I(f"s_lshl_b32 s{d}, s{d}, 7")
    for k in range(4): goff(sCI + k, k)
    def poll_load(i):
        so = f"s{sCI+i}"
        I(f"buffer_load_dwordx4 {rr(vC+4*i,4)}, v{pa}, {sq(sCEL)}, {so} offen sc1")
    I("s_waitcnt lgkmcnt(0)")
    I("s_barrier")
    stamp(4)
    def ppoint(k):
        for i in range(4):
            if TW and int(TW[i]) == k: poll_load(i)
    ppoint(0)
    if WL == 1:
        for i in range(4): poll_load(i)
    if PFP == 1: x_prefetch()
    if OLP == 0: own_loads()
    vWA = vACC
    I(f"v_add_u32 v{wal}, {WBI}, v{wal}")
    def trw(reg, img):
        return [f"ds_read_b64_tr_b16 {rr(reg+8*n+4*s+2*uu,2)}, v{wal} offset:{img + (32*s + 8*uu)*WR + 32*n}"
                for n in range(4) for s in range(2) for uu in range(2)]
    tw = trw(vWB, 0) + trw(vWV, WVI - WBI)
    for x_ in tw[:14]: I(x_)
    prefill(vCA)
    ppoint(1)
    if WL == 2:
        for i in range(4): poll_load(i)
    for x_ in tw[14:24]: I(x_)
    nxt = 24
    I(f"v_mov_b32 v{u(4)}, v{wal}")
    I("s_mov_b32 exec_lo, 0")
    I(f"v_subrev_u32 v{u(4)}, {16*WR}, v{wal}")
    I("s_mov_b32 exec_lo, -1")
    tw += [f"ds_read_b64_tr_b16 {rr(vCA+16+4*n+2*uu,2)}, v{u(4)} offset:{WCI - WBI + 8*uu*WR + 32*n}" for n in range(4) for uu in range(2)]
    vEM, vET = vEO, vACC + 56
    ownn, owna, mapa = vEO + 1, vEO + 2, vEO + 3
    I("s_waitcnt lgkmcnt(4)")
    for x_ in tw[nxt:]: I(x_)
    I(f"v_add_u32 v{wal}, {WAI - WBI}, v{wal}")
    ppoint(2)
    vFF = vEO + 4
    vMU = vR + 8
    lo0, hi0, lo1, hi1 = sWS0, sWS1, sB0E, sSH
    def late_setup():
        I(f"v_and_b32 v{vCH}, 1, v{lane}")
        I(f"v_lshlrev_b32 v{vCH}, 4, v{vCH}")
        I(f"v_mov_b32 v{vONE}, 0x3f80")
        I(f"v_and_b32 v{vcEO}, 16, v{lane}")
        I(f"v_and_b32 v{u(6)}, 15, v{lane}")
        I(f"v_lshl_add_u32 v{u(6)}, v{u(6)}, 5, s{sES}")
        I("s_mov_b32 exec_hi, 0")
        I(f"v_add_u32 v{vcEO}, v{vcEO}, v{u(6)}")
        I("s_mov_b32 exec_hi, -1")
        I(f"v_and_b32 v{u(6)}, 3, v{lane}")
        I(f"v_bfe_u32 v{u(8)}, v{lane}, 2, 2")
        I(f"v_and_b32 v{u(9)}, 48, v{lane}")
        I(f"v_lshl_add_u32 v{u(10)}, v{u(8)}, 7, v{u(9)}")
        I(f"v_mul_u32_u24 v{vAX}, {XI}, v{u(6)}")
        I(f"v_add3_u32 v{vAX}, v{vAX}, v{u(10)}, s{sSTG}")
        listaddr(u(6))
        I(f"v_mul_u32_u24 v{vEB+3}, {CH}, v{ha}")
        for i in range(4):
            if not TW:
                I(f"v_add_u32 v{vEB+i}, {64*i*CH}, v{vEB+3}"); continue
            I(f"s_lshr_b32 s10, s{sCI+i}, 7")
            I(f"s_mul_i32 s10, s10, {CH}")
            I(f"v_add_u32 v{vEB+i}, s10, v{vEB+3}")
        I(f"s_mov_b32 s{sEM}, {EMASK:#x}")
        I(f"s_mov_b32 s{sEM+1}, {EMASK:#x}")
        vFF = vEO + 4
        I(f"v_mov_b32 v{vFF}, 0xfffff")
        I(f"v_mov_b32 v{vEM}, 0")
        I(f"v_add_lshl_u32 v{u(3)}, v{pa}, v{vCP}, 16")
        for i in range(4):
            I(f"v_add_u32 v{vET+i}, {(EARLY + 8192*i) << 16:#x}, v{u(3)}")
            I(f"v_cndmask_b32 v{vET+i}, 0, v{vET+i}, {sp(sEM)}")
        I(f"v_mov_b32 v{one}, 4")
        I(f"v_and_b32 v{ownn}, 31, v{lane}")
        I(f"v_add_lshl_u32 v{mapa}, v{ownn}, s{sWIN}, 2")
        I(f"v_lshrrev_b32 v{u(3)}, 5, v{lane}")
        I(f"v_lshl_add_u32 v{owna}, v{u(3)}, 11, v{mapa}")
        I(f"v_add_u32 v{mapa}, {MAP}, v{mapa}")
        I(f"v_lshlrev_b32 v{u(3)}, 2, v{lane}")
        I(f"v_subrev_u32 v{u(3)}, s{sWIN}, v{u(3)}")
        I("s_mov_b32 s10, 0x10000")
        for i in range(4):
            I(f"v_add_u32 v{vMU+i}, {i}, v{u(3)}")
            I(f"v_and_or_b32 v{vMU+i}, v{vMU+i}, s10, 1")
        I(f"s_movk_i32 s{sFM}, 0xffc")
        I(f"s_movk_i32 s{sSKIP}, {CAP+8}")
        I(f"s_mov_b32 s{sXT}, 0")
        I(f"s_mov_b32 s{sSP}, 0")
        I(f"s_mov_b32 s{sT}, 0x1ffffff")
        I(f"s_mov_b32 s{sN}, 0xffff")
        lo0, hi0, lo1, hi1 = sWS0, sWS1, sB0E, sSH
        I(f"s_mul_i32 s10, s{sW}, 49")
        I(f"s_sub_i32 s{lo0}, s10, 6")
        I(f"s_ashr_i32 s{lo0}, s{lo0}, 1")
        I(f"s_add_i32 s{hi0}, s10, 7")
        I(f"s_ashr_i32 s{hi0}, s{hi0}, 1")
        I(f"s_add_i32 s{lo1}, s10, 43")
        I(f"s_ashr_i32 s{lo1}, s{lo1}, 1")
        I(f"s_add_i32 s{hi1}, s{lo0}, 31")
        I(f"s_cmp_eq_u32 s{sW}, 7")
        I(f"s_cselect_b32 s{lo1}, {BN}, s{lo1}")
        I(f"s_cselect_b32 s{hi1}, {BN}, s{hi1}")
        for r_ in (hi0, lo1, hi1): I(f"s_sub_i32 s{r_}, s{r_}, s{sWIN}")
    LS = opt("ls", 0)
    if LS == 0: late_setup()
    stamp("b0")
    if opt("pw", 1) and not WL: I(f"s_waitcnt vmcnt({sum(c != '3' for c in TW)})")
    stamp("b1")
    if opt("pbar", 0): I("s_barrier")
    if TW: ppoint(3)
    elif WL in (0, 3):
        for i in range(4): poll_load(i)
    if OLP == 1: own_loads()
    if LS == 1: late_setup()
    PY = 4 if OLP == 1 else 0
    I(f"v_max3_u32 v{u(0)}, v{vRK1}, v{vRK1+1}, v{vRK1+2}")
    I(f"v_max3_u32 v{u(1)}, v{vRK1+3}, v{vRK1+4}, v{vRK1+5}")
    I(f"v_max3_u32 v{u(0)}, v{u(0)}, v{vRK1+6}, v{vRK1+7}")
    I(f"v_max_u32 v{u(0)}, v{u(0)}, v{u(1)}")
    I(f"v_cmp_le_u32 vcc, {33*CAP}, v{u(0)}")
    I("s_cbranch_vccz L_PEXTR")
    q = vCA
    if TS: I(f"v_writelane_b32 v{vTS}, 1, 61")
    I(f"v_mov_b32 v{q+1}, s{sK}")
    I(f"s_lshl_b32 s{sTM}, s2, 7")
    I(f"s_add_u32 s{sTM}, s{sTM}, {WS_CELL + XOFF}")
    for i in range(NR):
        I(f"v_subrev_u32 v{q+4}, {33*CAP}, v{vRK1+i}")
        I(f"v_cmpx_gt_u32 vcc, {33*8}, v{q+4}")
        I(f"s_cbranch_execz L_PE{i}")
        I(f"v_mov_b32 v{q}, v{vSR+i}")
        I(f"v_mov_b32 v{q+2}, v{idr(i)}")
        I(f"v_bfe_u32 v{q+4}, v{vRK1+i}, 5, 3")
        I(f"v_lshlrev_b32 v{q+4}, 4, v{q+4}")
        I(f"v_mad_u32_u24 v{q+4}, v{vBK+i}, s{cR}, v{q+4}")
        I(f"buffer_store_dwordx4 {rr(q,4)}, v{q+4}, {sq(sWS)}, s{sTM} offen sc1")
        L(f"L_PE{i}")
        I("s_mov_b64 exec, -1")
    L("L_PEXTR")
    stamp(5)
    vA, vRK, vR1 = vACC, vACC + 16, vQ
    mk = lambda i, j: sM + 2*(4*i + j)
    def rec_ops(d, x, byte, eb, a, r1):
        return [f"v_add_u32_sdwa v{r1}, v{x}, v{eb} {SDW} src0_sel:BYTE_{byte} src1_sel:DWORD",
                f"v_lshrrev_b32 v{u(1)}, 28, v{d}",
                f"v_lshl_add_u32 v{r1}, v{u(1)}, 8, v{r1}",
                f"v_and_b32 v{u(1)}, 60, v{a}",
                f"v_and_b32 v{d}, 0xffff, v{d}",
                f"v_lshl_or_b32 v{d}, v{u(1)}, 19, v{d}"]
    def spin():
        I(f"s_add_u32 s{sSP}, s{sSP}, 1")
        I(f"s_cmp_gt_u32 s{sSP}, {opt('spin', 200000)}")
        I("s_cbranch_scc1 L_END")
        if opt("slp", 1): I(f"s_sleep {opt('slp', 1)}")
    xg = vCA
    def xload(tag):
        for i in range(4):
            I(f"s_mov_b64 exec, {sp(mk(i,3))}")
            I(f"s_cbranch_execz L_XL{tag}{i}")
            goff(10, i)
            I(f"buffer_load_dwordx4 {rr(xg+4*i,4)}, v{pa}, {sq(sD2)}, s10 offen sc1")
            L(f"L_XL{tag}{i}")
        I("s_mov_b64 exec, -1")
    for i in range(4):
        c_ = vC + 4*i
        L(f"L_PW{i}")
        I(f"s_waitcnt vmcnt({3 - i + PY})")
        I(f"v_xor_b32 v{u(0)}, v{c_+3}, v{vTG}")
        for j in range(3): I(f"v_and_b32_sdwa v{vA+4*i+j}, v{c_+j}, s{sFM} {SDW} src0_sel:WORD_1 src1_sel:DWORD")
        I(f"v_cmp_lt_u32 vcc, s{sT}, v{u(0)}")
        for j in range(3): I(f"v_cmp_ne_u32 {sp(mk(i,j))}, 0, v{c_+j}")
        I(f"s_cbranch_vccnz L_RT{i}")
        if i == 3: stamp(6)
        for j in range(3):
            I(f"s_mov_b64 exec, {sp(mk(i,j))}")
            I(f"ds_add_rtn_u32 v{vRK+4*i+j}, v{vA+4*i+j}, v{one} offset:{HIST}")
        I("s_mov_b64 exec, -1")
        I(f"v_or_b32 v{vEM}, v{vEM}, v{c_+1}")
        if i == 3:
            I(f"v_or3_b32 v{u(2)}, v{vC+3}, v{vC+7}, v{vC+11}")
            I(f"v_or_b32 v{u(2)}, v{u(2)}, v{vC+15}")
            I(f"v_and_b32 v{u(2)}, 0x1000000, v{u(2)}")
            I(f"v_cmp_ne_u32 vcc, 0, v{u(2)}")
            I("s_cbranch_vccz L_XT1R")
            def xt1():
                if TS: I(f"v_writelane_b32 v{vTS}, 1, 62")
                for i in range(4):
                    I(f"v_and_b32 v{u(2)}, 0x1000000, v{vC+4*i+3}")
                    I(f"v_cmp_ne_u32 {sp(mk(i,3))}, 0, v{u(2)}")
                    I(f"s_bcnt1_i32_b64 s10, {sp(mk(i,3))}")
                    I(f"s_lshl2_add_u32 s{sXT}, s10, s{sXT}")
                xload("a")
                I(f"v_and_b32 v{u(2)}, 0x10000, v{vEM}")
                I(f"v_mov_b32 v{u(3)}, {FLAG}")
                I(f"v_cmpx_ne_u32 vcc, 0, v{u(2)}")
                I(f"ds_write_b32 v{u(3)}, v{one} offset:4")
                I("s_mov_b64 exec, 1")
                I(f"v_mov_b32 v{u(2)}, s{sXT}")
                I(f"ds_add_u32 v{u(3)}, v{u(2)} offset:8")
                I("s_mov_b64 exec, -1")
            xt1()
            L("L_XT1R")
        ro = [rec_ops(c_+j, c_+3, j, vEB+i, vA+4*i+j, vR1+4*i+j) for j in range(3)]
        e_ = vR1 + 4*i + 3
        put(ro[0])
        if JE:
            I(f"v_cndmask_b32 v{u(0)}, v{vFF}, v{vR1+4*i}, {sp(mk(i,0))}")
            I(f"v_max_u32 v{vR1+4*i}, v{vR1+4*i}, v{vET+i}")
        put(ro[1])
        if JE:
            I(f"v_mov_b32_dpp v{u(2)}, v{u(0)} quad_perm:[2,2,3,3] row_mask:0xf bank_mask:0xf")
            I(f"v_mov_b32_dpp v{e_}, v{u(0)} quad_perm:[0,0,1,1] row_mask:0xf bank_mask:0xf")
        if i < 3: put(ro[2])
        else:
            put(ro[2][:3])
            fill = [x.replace(f"v{u(1)}", f"v{vQD+3}") for x in ro[2][3:]]
        if JE: I(f"v_mov_b32_dpp v{e_}, v{u(2)} row_shr:4 row_mask:0xf bank_mask:0xa")
    I(f"v_mov_b32 v{u(9)}, {FLAG}")
    if OLP == 2: own_loads()
    if PFP == 2: x_prefetch()
    I("s_waitcnt lgkmcnt(0)")
    stamp("d0")
    I("s_barrier")
    stamp(7)
    def early(i):
        if not JE: return
        I(f"s_lshl_b32 m0, s{sWP}, 10")
        I(f"v_mov_b32 v{vEI}, v{vR1+4*i+3}")
        I(f"s_add_u32 m0, m0, {EARLY + 8192*i}")
        if JE < 4:
            I(f"s_mov_b32 exec_lo, {((1 << 2*JE) - 1) * 0x01010101:#x}")
            I("s_mov_b32 exec_hi, exec_lo")
        else: I("s_nop 0")
        I(f"buffer_load_dwordx4 {rr(vEI,2)}, {sq(sEP)}, 0 idxen offen{pol(opt('eep', ''))} lds")
        if JE < 4: I("s_mov_b64 exec, -1")
    EPOS = opt("epos", "0134")
    def epoint(k):
        for i in range(4):
            if int(EPOS[i]) == k: early(i)
    c, p, tot, sc = u(0), u(4), u(8), u(9)
    hh = vX
    own, to2, ex, z_, eh, el = u(10), u(11), u(12), u(13), u(14), u(15)
    SD = f"{SDW} src0_sel:WORD_0 src1_sel:WORD_0"
    HL = f"{SDW} src0_sel:WORD_0 src1_sel:WORD_1"
    I(f"ds_read_u16 v{own}, v{owna} offset:{HIST}")
    I(f"ds_read_u16 v{to2}, v{owna} offset:{HIST + 1024}")
    for ph in range(4):
        I(f"ds_read_b128 {rr(hh+4*ph,4)}, v{l16} offset:{HIST + 1024*ph}")
    I(f"ds_read_b32 v{vQD}, v{sc} offset:8")
    if OLP == 4: own_loads()
    epoint(0)
    I("s_cmp_lg_u32 s2, 0")
    I("s_cbranch_scc1 L_NOK")
    I(f"v_mov_b32 v{vQD+1}, s{sK}")
    I(f"v_mov_b32 v{vQD+2}, 0")
    I(f"buffer_store_dword v{vQD+1}, v{vQD+2}, {sq(sWS)}, 0 offen sc1")
    L("L_NOK")
    I("s_waitcnt lgkmcnt(5)")
    I(f"v_lshl_or_b32 v{own}, v{to2}, 16, v{own}")
    I(f"v_mov_b32 v{to2}, v{own}")
    I("s_waitcnt lgkmcnt(0)")
    stamp("d1")
    f2 = []
    for i in range(4):
        f2 += [f"v_add_u32_sdwa v{c+i}, v{hh+i}, v{hh+4+i} {SD}", f"v_add_u32_sdwa v{p+i}, v{hh+8+i}, v{hh+12+i} {SD}"]
    f2 += [f"v_add_u32 v{c+i}, v{c+i}, v{p+i}" for i in range(4)]
    wave_scan(to2, f2, half=True)
    put(f2)
    I(f"v_mul_u32_u24 v{tot}, v{c}, v{vMU}")
    for i in range(1, 4): I(f"v_mad_u32_u24 v{tot}, v{c+i}, v{vMU+i}, v{tot}")
    f2 = [f"v_sub_u32 v{ex}, v{to2}, v{own}", f"v_add_u32_sdwa v{eh}, v{to2}, v{to2} {HL}",
          f"v_add_u32_sdwa v{z_}, v{ex}, v{ex} {HL}", f"v_add_u32_sdwa v{el}, v{own}, v{own} {HL}",
          fill.pop(0), f"v_readfirstlane_b32 s{sMORE}, v{vQD}",
          f"v_permlane32_swap_b32 v{z_}, v{eh}", f"v_cndmask_b32 v{el}, 0, v{el}, {sp(sJ3)}",
          f"v_add_u32 v{z_}, v{z_}, v{eh}", fill.pop(0),
          f"v_add_u32 v{eh}, v{z_}, v{el}", fill.pop(0)]
    I(f"s_mov_b32 s{sJ3}, -1")
    I(f"s_mov_b32 s{sJ3+1}, 0")
    wave_scan(tot, f2)
    assert not f2
    stamp("d2")
    I(f"v_sub_u32_sdwa v{el}, v{eh}, v{own} {SDW} src0_sel:DWORD src1_sel:WORD_1")
    I(f"v_readlane_b32 s{sT}, v{tot}, 63")
    epoint(1)
    ASYM = opt("asym", 12)
    I(f"s_bfe_u32 s10, s{sT}, 0xe0002")
    I(f"s_lshr_b32 s{sT}, s{sT}, 16")
    I("s_lshr_b32 s11, s10, 1")
    I(f"s_add_u32 s11, s11, {4*ASYM}")
    I("s_and_b32 s11, s11, -128")
    I(f"s_lshr_b32 s{sF0}, s{sW}, 1")
    I(f"s_mul_i32 s{sF0}, s{sF0}, s10")
    I(f"s_sub_i32 s11, s11, {4*ASYM}")
    I(f"s_sub_i32 s{sF0}, s{sF0}, s{sT}")
    I(f"s_add_i32 s11, s11, s{sF0}")
    I(f"s_add_i32 s10, s10, s{sF0}")
    I(f"s_bitcmp1_b32 s{sW}, 0")
    I(f"s_cselect_b32 s{sEND}, s11, s{sF0}")
    I("s_cselect_b32 s10, s10, s11")
    I(f"v_cmp_gt_i32 vcc, s{sEND}, v{eh}")
    I(f"v_cmp_gt_i32 {sp(sTM)}, s10, v{eh}")
    f0, f1 = sWS0, sWS1
    I(f"s_bcnt1_i32_b32 s{f0}, vcc_lo")
    I(f"s_bcnt1_i32_b32 s10, s{sTM}")
    I(f"s_min_i32 s{f0}, s{f0}, s{hi0}")
    I(f"s_max_i32 s10, s10, s{lo1}")
    I(f"s_min_i32 s{f1}, s10, s{hi1}")
    stamp("d3")
    epoint(2)
    A01, A23, E01, E23, Z1 = sCI, sCUR, sR0, sCNT, sST
    I(f"v_readlane_b32 s{sT}, v{z_}, s{f0}")
    I(f"v_readlane_b32 s{Z1}, v{z_}, s{f1}")
    I(f"s_add_u32 s{sF0}, s{f0}, s{sWIN}")
    I(f"s_add_u32 s{sF1}, s{f1}, s{sWIN}")
    I(f"s_add_u32 s10, s{f0}, 32")
    I(f"s_add_u32 s11, s{f1}, 32")
    I(f"v_readlane_b32 s{A01}, v{ex}, s{f0}")
    I(f"v_readlane_b32 s{E01}, v{ex}, s{f1}")
    I(f"v_readlane_b32 s{A23}, v{ex}, s10")
    I(f"v_readlane_b32 s{E23}, v{ex}, s11")
    I(f"s_sub_u32 s{sEND}, s{Z1}, s{sT}")
    I(f"s_add_u32 s10, s{sEND}, 255")
    if opt("flr", 1):
        I(f"s_sub_i32 s11, s{f1}, 16")
        I(f"s_max_i32 s11, s11, s{f0}")
        I(f"v_readlane_b32 s11, v{z_}, s11")
        I(f"s_add_u32 vcc_lo, s{sEND}, 127")
        I(f"s_and_b32 vcc_hi, vcc_lo, 127")
        I(f"s_add_u32 vcc_hi, vcc_hi, s{sMORE}")
        I(f"s_cmp_lt_u32 vcc_hi, 55")
        I(f"s_cselect_b32 vcc_lo, vcc_lo, s10")
        I(f"s_sub_u32 s11, s11, s{sT}")
        I(f"s_add_u32 s11, s11, s{sMORE}")
        I(f"s_lshl_b32 s11, s11, 1")
        I(f"s_and_b32 vcc_lo, vcc_lo, -256")
        I(f"s_cmp_le_u32 s11, vcc_lo")
        I(f"s_cselect_b32 s10, vcc_lo, s10")
    I("s_lshr_b32 s10, s10, 8")
    I("s_lshl_b32 s10, s10, 7")
    I(f"s_sub_u32 s10, s10, s{sMORE}")
    I("s_max_i32 s10, s10, 0")
    I(f"s_add_u32 s{sT}, s{sT}, s10")
    I(f"s_add_u32 s10, s{f0}, 16")
    I(f"s_min_u32 s10, s10, s{f1}")
    I(f"s_sub_i32 s11, s{f1}, 16")
    inl, inh, mo = sTM, sTM + 2, sMSK
    I(f"v_cmp_ge_u32 {sp(inl)}, s{sT}, v{el}")
    I(f"v_cmp_ge_u32 {sp(inh)}, s{sT}, v{eh}")
    I(f"v_cmp_gt_i32 vcc, s10, v{ownn}")
    I(f"v_cmp_gt_i32 {sp(sA)}, s11, v{ownn}")
    I(f"v_cmp_le_u32 {sp(mo)}, s{f0}, v{ownn}")
    I(f"v_cmp_gt_u32 {sp(sJ3)}, s{f1}, v{ownn}")
    I(f"s_and_b64 {sp(inl)}, {sp(inl)}, vcc")
    I(f"s_and_b64 {sp(inh)}, {sp(inh)}, vcc")
    I(f"s_or_b64 {sp(inl)}, {sp(inl)}, {sp(sA)}")
    I(f"s_or_b64 {sp(inh)}, {sp(inh)}, {sp(sA)}")
    I(f"s_bcnt1_i32_b32 s{sB0E}, s{inl}")
    I(f"s_bcnt1_i32_b32 s10, s{inh}")
    I(f"s_bcnt1_i32_b32 s11, s{inl+1}")
    I(f"s_bcnt1_i32_b32 s{sSH}, s{inh+1}")
    I(f"v_readlane_b32 s{f0}, v{ex}, s{sB0E}")
    I(f"v_readlane_b32 s10, v{ex}, s10")
    I("s_add_u32 s11, s11, 32")
    I(f"s_add_u32 s{sT}, s{sSH}, 32")
    I(f"v_readlane_b32 s{f1}, v{ex}, s11")
    I(f"v_readlane_b32 s11, v{ex}, s{sT}")
    I(f"v_mov_b32 v{c}, s{sN}")
    I(f"v_cndmask_b32 v{c+1}, 0, v{c}, {sp(inl)}")
    I(f"v_cndmask_b32 v{c}, 0, v{c}, {sp(inh)}")
    I(f"s_and_b64 {sp(mo)}, {sp(mo)}, {sp(sJ3)}")
    Q01, Q23 = f0, f1
    I(f"s_pack_lh_b32_b16 s{Q01}, s{f0}, s10")
    I(f"s_pack_lh_b32_b16 s{Q23}, s{f1}, s11")
    I(f"v_lshl_or_b32 v{c}, v{c}, 16, v{c+1}")
    I(f"s_sub_u32 s{sT}, s{sL}, {R0 - BIAS}")
    I(f"s_pack_ll_b32_b16 s{sT}, s{sT}, s{sT}")
    def bases(lo01, lo23, hi01, hi23, d, keep=None):
        I(f"s_sub_u32 s10, s{hi01}, s{lo01}")
        I(f"s_sub_u32 s11, s{hi23}, s{lo23}")
        I(f"s_mul_i32 s10, s10, 0x10001")
        I(f"s_lshl_b32 vcc_lo, s10, 16")
        I(f"s_pack_hh_b32_b16 s10, s10, s10")
        I(f"s_lshl_b32 vcc_hi, s11, 16")
        I(f"s_add_u32 vcc_hi, vcc_hi, s10")
        if keep is not None:
            I(f"s_add_u32 s{keep}, vcc_hi, s11")
            I(f"s_lshr_b32 s{keep}, s{keep}, 16")
            I(f"s_sub_u32 s{sEND}, s{sEND}, s{keep}")
            I(f"s_cmp_gt_u32 s{sEND}, s{keep}")
            I(f"s_cselect_b32 s{SWP}, {LWB * 0x10001:#x}, 0")
            I(f"s_add_u32 s{sT}, s{sT}, s{SWP}")
        I(f"s_sub_u32 s10, s{sT}, s{lo01}")
        I(f"s_sub_u32 s11, s{sT}, s{lo23}")
        I("s_add_u32 s10, s10, vcc_lo")
        I("s_add_u32 s11, s11, vcc_hi")
        I(f"v_mov_b32 v{d}, s10")
        I(f"v_mov_b32 v{d+1}, s11")
    LEN0, SWP = sJ3, sJ3 + 1
    bases(A01, A23, Q01, Q23, p, LEN0)
    I(f"s_add_u32 s{sT}, s{sT}, {LWB * 0x10001:#x}")
    I(f"s_sub_u32 s{sT}, s{sT}, s{SWP}")
    I(f"s_sub_u32 s{sT}, s{sT}, s{SWP}")
    bases(Q01, Q23, E01, E23, p + 2)
    I(f"v_bfi_b32 v{p}, v{c}, v{p}, v{p+2}")
    I(f"v_bfi_b32 v{p+1}, v{c}, v{p+1}, v{p+3}")
    I(f"s_mov_b32 exec_hi, 0")
    I(f"v_mov_b32 v{p+1}, v{p}")
    I(f"s_mov_b64 exec, {sp(mo)}")
    I(f"v_add_u32 v{ex}, v{ex}, v{p+1}")
    assert LWB & 0x80
    I(f"s_bfe_u32 s10, s{SWP}, 0x10007")
    I(f"s_lshl1_add_u32 s10, s{sW}, s10")
    I("s_lshl_b32 s10, s10, 2")
    I(f"v_cndmask_b32 v{c}, 4, 0, {sp(inl)}")
    I(f"ds_write_b16 v{owna}, v{ex} offset:{HIST + 2}")
    I(f"ds_write_b16_d16_hi v{owna}, v{ex} offset:{HIST + 1024 + 2}")
    I("s_mov_b32 exec_hi, 0")
    I(f"v_xor_b32 v{c}, s10, v{c}")
    I(f"ds_write_b32 v{mapa}, v{c}")
    I("s_mov_b64 exec, -1")
    stamp("d5")
    I(f"s_min_u32 s10, s{sEND}, s{LEN0}")
    I(f"s_max_u32 s{LEN0}, s{sEND}, s{LEN0}")
    I(f"s_mov_b32 s{sEND}, s10")
    I(f"s_add_u32 s10, s{LEN0}, s{sMORE}")
    I(f"s_mul_i32 s11, s{Z1}, {LWB * 65536 // BIAS}")
    I("s_lshr_b32 s11, s11, 16")
    I("s_max_u32 s10, s10, s11")
    I(f"s_cmp_lt_u32 s10, {LWB}")
    I("s_cbranch_scc1 L_LFIT")
    I(f"ds_write_b32 v{sc}, v{one}")
    L("L_LFIT")
    I(f"s_cmp_eq_u32 s{sMORE}, 0")
    I("s_cbranch_scc1 L_XCNR")
    I(f"s_sub_u32 s10, s{sL}, {R0 - BIAS}")
    I(f"s_add_u32 s11, s10, s{LEN0}")
    I(f"v_mov_b32 v{u(0)}, s11")
    I(f"s_add_u32 s11, s10, s{sEND}")
    I(f"s_add_u32 s11, s11, {LWB}")
    I(f"v_mov_b32 v{u(1)}, s11")
    I(f"s_lshl_b32 s10, s{sW}, 3")
    I(f"v_mov_b32 v{u(2)}, s10")
    I(f"ds_write_b64 v{u(2)}, {rr(u(0),2)} offset:{CNT}")
    L("L_XCNR")
    epoint(3)
    put(fill)
    I("s_waitcnt lgkmcnt(0)")
    stamp(8)
    I("s_barrier")
    stamp(9)
    I(f"ds_read_b64 {rr(u(14),2)}, v{sc}")
    for i in range(4):
        for j in range(3):
            I(f"ds_read_u16 v{vA+4*i+j}, v{vA+4*i+j} offset:{HIST + 2}")
    epoint(4)
    def ntiles(l0, l1):
        I(f"s_add_u32 s10, s{l0}, 127")
        I("s_lshr_b32 s10, s10, 7")
        I("s_lshl1_add_u32 s10, s10, -1")
        I(f"s_add_u32 s11, s{l1}, 127")
        I("s_lshr_b32 s11, s11, 6")
        I("s_and_b32 s11, s11, -2")
        I(f"s_max_i32 s{sN}, s10, s11")
        I(f"s_cselect_b32 s10, s{l0}, s{l1}")
        I("s_sub_u32 s10, s10, 1")
        I(f"s_andn2_b32 s{sHF}, 64, s10")
    I(f"s_add_u32 s{sB0E}, s{sB0E}, s{sWIN}")
    I(f"s_add_u32 s11, s{sSH}, s{sWIN}")
    I(f"s_and_b32 s10, s11, 15")
    I(f"s_cmp_lt_u32 s11, s{sB0E}")
    I(f"s_cselect_b32 s{sSH}, s10, 16")
    I(f"s_cmp_lg_u32 s{SWP}, 0")
    I(f"s_cselect_b32 s{sWS1}, s{sF0}, s11")
    I(f"s_cselect_b32 s{sWIN}, s{sF0}, s{sB0E}")
    I(f"s_cselect_b32 s{sF0}, s11, s{sF0}")
    I(f"s_cselect_b32 s{sB0E}, s{sF1}, s{sB0E}")
    I(f"s_cselect_b32 s{sF1}, s11, s{sF1}")
    I(f"s_min_u32 s{sWS0}, s{sF0}, 192")
    I(f"s_min_u32 s{sWS1}, s{sWS1}, 192")
    I(f"s_mov_b32 s{sST}, s{sMORE}")
    I("s_waitcnt lgkmcnt(12)")
    I(f"v_cmp_ne_u32 vcc, 0, v{u(14)}")
    I(f"v_readfirstlane_b32 s{sMORE}, v{u(15)}")
    I("s_cbranch_vccnz L_OVF")
    for i in range(4):
        for j in range(3):
            s_ = 4*i + j
            if j == 0: I("s_waitcnt lgkmcnt(9)")
            I(f"s_mov_b64 exec, {sp(mk(i,j))}")
            I(f"v_add_u32 v{vA+s_}, v{vA+s_}, v{vRK+s_}")
            I(f"ds_write2st64_b32 v{vA+s_}, v{vC+s_}, v{vR1+s_} {W2}")
    I("s_mov_b64 exec, -1")
    ntiles(LEN0, sEND)
    stamp("d6")
    sO0, sO1, sNT, sOK, sCM = sOUT, sD2, sM + 8, sM + 9, sM + 12
    def epi_prep(t0, t1):
        I(f"s_lshl_b32 s{sNT}, s{sW}, 7")
        I(f"s_add_u32 s{sNT}, s{sNT}, {NT}")
        I(f"v_mov_b32 v{t0}, s{sWS0}")
        I("s_mov_b32 exec_lo, 0xffff0000")
        I(f"v_mov_b32 v{t0}, s{sWS1}")
        I("s_mov_b64 exec, 0xffffffff") if False else None
        I("s_mov_b32 exec_lo, -1")
        I("s_mov_b32 exec_hi, 0")
        I(f"v_sub_u32 v{t1}, v{lane}, v{t0}")
        I(f"v_and_b32 v{t1}, 15, v{t1}")
        I(f"v_add_lshl_u32 v{t1}, v{t1}, v{t0}, 5")
        I(f"v_lshl_add_u32 v{t0}, v{lane}, 2, s{sNT}")
        I(f"ds_write_b32 v{t0}, v{t1}")
        I("s_mov_b32 exec_hi, -1")
        I(f"s_mul_i32 s10, s{sB}, {BN}")
        for d, lo_, hi_, k in ((sO1, sWIN, sF1, 1), (sO0, sF0, sB0E, 0)):
            I(f"s_add_u32 s11, s10, s{lo_}")
            I(f"s_add_u32 s{d+2}, s10, s{hi_}")
            I(f"s_min_u32 s11, s11, {N}")
            I(f"s_min_u32 s{d+2}, s{d+2}, {N}")
            I(f"s_sub_u32 s{d+2}, s{d+2}, s11")
            I("s_lshl_b32 s11, s11, 7")
            I(f"s_lshl_b32 s{d+2}, s{d+2}, 7")
            I(f"s_add_u32 s{d}, s{sOUT}, s11")
            I(f"s_addc_u32 s{d+1}, s{sOUT+1}, 0")
            I(f"s_mul_i32 s{sOK+k}, s{lo_}, -128")
        I(f"s_and_b32 s10, s{sSH}, 12")
        I("s_lshl_b32 s10, s10, 2")
        I(f"s_bfm_b64 {sp(sCM)}, 16, s10")
    L("L_CA")
    for x_ in trw(vWA, 0): I(x_)
    I(f"s_cmp_eq_u32 s{sXT}, 0")
    I("s_cbranch_scc1 L_XT2R")
    I(f"s_waitcnt vmcnt({(4 if JE else 0) + (4 if OLP in (2, 4) else 0)})")
    L("L_XT2")
    I(f"s_mov_b64 {sp(sTM)}, 0")
    for i in range(4):
        I(f"v_cmp_ne_u32 vcc, s{sK}, v{xg+4*i+1}")
        I(f"s_and_b64 vcc, vcc, {sp(mk(i,3))}")
        I(f"s_or_b64 {sp(sTM)}, {sp(sTM)}, vcc")
    I("s_cbranch_scc1 L_XT2B")
    I(f"s_cmp_eq_u32 s{sSKIP}, 0")
    I("s_cbranch_scc1 L_XT2R")
    for i in range(4):
        g_ = xg + 4*i
        I(f"s_mov_b64 exec, {sp(mk(i,3))}")
        I(f"s_cbranch_execz L_XS{i}")
        I(f"v_bfe_u32 v{g_+1}, v{g_}, 18, 8")
        I(f"v_lshlrev_b32 v{g_+1}, 2, v{g_+1}")
        I(f"v_add_u32 v{g_+3}, {MAP}, v{g_+1}")
        I(f"ds_read_b32 v{g_+3}, v{g_+3}")
        put(rec_ops(g_, g_+2, 0, vEB+i, g_+1, g_+2))
        I("s_waitcnt lgkmcnt(0)")
        I(f"ds_add_rtn_u32 v{g_+3}, v{g_+3}, v{one} offset:{CNT}")
        I("s_waitcnt lgkmcnt(0)")
        I(f"ds_write2st64_b32 v{g_+3}, v{g_}, v{g_+2} {W2}")
        L(f"L_XS{i}")
    I("s_mov_b64 exec, -1")
    L("L_XT2R")
    aw, al, ab = vEO, vEO + 1, vEO + 2
    I(f"s_lshl_b32 s{sTM}, s{sWS0}, 5")
    I(f"s_lshl_b32 s{sTM+1}, s{sWS1}, 5")
    I(f"s_mov_b32 vcc_lo, 0xff00ff00")
    I(f"s_mov_b32 vcc_hi, 0xff00ff00")
    I(f"v_mov_b32 v{aw}, s{sTM+1}")
    I(f"v_mov_b32 v{al}, s{sTM}")
    I(f"v_cndmask_b32 v{aw}, v{aw}, v{al}, vcc")
    I(f"v_and_b32 v{al}, 4, v{lane}")
    I(f"v_lshlrev_b32 v{al}, 6, v{al}")
    I(f"v_lshl_add_u32 v{al}, v{vcS}, 2, v{al}")
    I(f"v_sub_u32 v{al}, v{al}, v{aw}")
    I(f"v_and_b32 v{ab}, 48, v{lane}")
    I(f"s_movk_i32 s{sTM}, {(PL-32)//8}")
    I(f"v_mad_u32_u24 v{ab}, v{vcS}, s{sTM}, v{ab}")
    I(f"s_mov_b32 s{sTM}, {OWN}")
    I(f"v_add3_u32 v{ab}, v{ab}, v{aw}, s{sTM}")
    I(f"v_and_b32 v{aw}, 0x1ff, v{al}")
    I(f"v_add_u32 v{aw}, v{aw}, v{ab}")
    I(f"v_add_u32 v{al}, 0x80, v{al}")
    I(f"v_and_b32 v{al}, 0x1ff, v{al}")
    I(f"v_add_u32 v{al}, v{al}, v{ab}")
    zero16 = lambda d: f"v_mfma_f32_32x32x16_bf16 {rr(d,16)}, {rr(vS,4)}, {rr(vS,4)}, 0"
    for i in range(2): I(f"v_mov_b64 {rr(vS+2*i,2)}, 0")
    I(f"v_lshrrev_b32 v{u(0)}, 2, v{lane}")
    I(f"v_and_b32 v{u(0)}, 12, v{u(0)}")
    I(f"v_subrev_u32 v{u(0)}, s{sSH}, v{u(0)}")
    I(f"v_mov_b32 v{u(1)}, {f2u(1e-6):#x}")
    I(zero16(NUM(1,0)))
    for i in range(4): I(f"v_cmp_ne_u32 {sp(sM+16+2*i)}, {-i}, v{u(0)}")
    for i in range(4): I(f"v_cndmask_b32 v{DEN(1,0)+i}, 0, v{u(1)}, {sp(sM+16+2*i)}")
    for n in range(1, 4):
        for i in range(2): I(f"v_mov_b64 {rr(DEN(1,n)+2*i,2)}, {rr(DEN(1,0)+2*i,2)}")
    I(f"s_cmp_ge_u32 s{sWP}, 4")
    I("s_cbranch_scc1 L_EP0")
    epi_prep(u(2), u(3))
    L("L_EP0")
    stamp("d7")
    I("s_waitcnt vmcnt(0) lgkmcnt(0)")
    stamp(10)
    I("s_barrier")
    def lens_from_cnt(t):
        I(f"s_lshl_b32 s10, s{sW}, 3")
        I(f"v_mov_b32 v{t}, s10")
        I(f"ds_read_b64 {rr(t,2)}, v{t} offset:{CNT}")
        I("s_waitcnt lgkmcnt(0)")
        I(f"v_readfirstlane_b32 s{sTM}, v{t}")
        I(f"v_readfirstlane_b32 s{sTM+1}, v{t+1}")
        I(f"s_sub_u32 s10, s{sL}, {R0 - BIAS}")
        I(f"s_sub_u32 s{sTM}, s{sTM}, s10")
        I(f"s_sub_u32 s{sTM+1}, s{sTM+1}, s10")
        I(f"s_sub_u32 s{sTM+1}, s{sTM+1}, {LWB}")
        ntiles(sTM, sTM + 1)
    I(f"s_mov_b32 s10, {f2u(1e-6):#x}")
    I(f"ds_read_b128 {rr(vQD,4)}, v{vARX}")
    I(f"ds_read_b32 v{vEI}, v{vARE}")
    stamp(11)
    for t_ in range(2):
        for s in range(2): I(f"ds_read_b128 {rr(vX+8*t_+4*s,4)}, v{(aw, al)[t_]} offset:{64*s}")
    I("s_waitcnt lgkmcnt(4)")
    STAG = opt("stag", 1)
    if STAG != 2:
        I(f"s_cmp_ge_u32 s{sWP}, 4")
        I("s_cbranch_scc1 L_LATE0")
    put(dma_tile())
    L("L_LATE0")
    I(f"s_mov_b32 s{sTM}, {f2u(-LOG2E):#x}")
    I(f"s_mov_b32 s{sTM+1}, s{sTM}")
    for t_ in range(2):
        for s in range(2):
            I(f"s_waitcnt lgkmcnt({3 - 2*t_ - s})")
            for n in range(4):
                D = vQ + 8*n + 4*t_
                I(m16(D, vX+8*t_+4*s, vWA+8*n+4*s, D if s else None))
    if STAG == 3:
        I(f"s_cmp_lt_u32 s{sWP}, 4")
        I("s_cbranch_scc1 L_HAD1")
        put(dma_tile())
        L("L_HAD1")
    I("s_mov_b32 s11, s10")
    for i in range(8): I(f"v_mov_b64 {rr(DEN(0,0)+2*i,2)}, {sp(10)}")
    for i in range(16): I(f"v_pk_mul_f32 {rr(vQ+2*i,2)}, {rr(vQ+2*i,2)}, {sp(sTM)}")
    I(zero16(NUM(0,0)))
    for i in range(16): I(f"v_cvt_pk_bf16_f32 v{vCA+i}, v{vQ+2*i}, v{vQ+2*i+1}")
    for i in range(16): I(f"v_permlane32_swap_b32 v{vCA+16+i}, v{vCA+i}")
    I(f"s_mov_b32 s{sCI}, -1")
    I(f"s_mov_b64 {sp(sMSK)}, 0")
    I(f"s_mov_b32 s{sR0}, 0")
    I(f"s_mov_b32 s{sCNT}, 0")
    if STAG:
        I(f"s_cmp_lt_u32 s{sWP}, 4")
        I("s_cbranch_scc1 L_HAD0")
        if STAG == 1: put(dma_tile())
        epi_prep(u(2), u(3))
        if STAG == 4: put(dma_tile())
        L("L_HAD0")
    I(f"s_cmp_eq_u32 s{sST}, 0")
    I("s_cbranch_scc1 L_GO")
    lens_from_cnt(u(0))
    L("L_GO")
    for m in range(2): I(f"ds_read_u16 v{vEA+m}, v{vARO} offset:{64*m}")
    q1 = [f"ds_read_b128 {rr(vQD,4)}, v{vARX} offset:{LWB}", f"ds_read_b32 v{vEI}, v{vARE} offset:{LWB}"]
    if STAG != 5: put(q1)
    I(f"s_lshr_b32 s10, s{sW}, 1")
    I("s_lshl_b32 s10, s10, 9")
    I(f"s_add_u32 s10, s10, {PRG}")
    assert PRG % 32 == 0
    I(f"v_lshl_add_u32 v{vPA}, v{lane}, 3, s10")
    I(f"s_bitcmp1_b32 s{sW}, 0")
    I(f"s_cselect_b32 s{sSG}, -1, 1")
    I(f"s_mul_i32 s10, s{sSG}, {-(1 << (25 if F2 else 24)) & 0xffffffff:#x}")
    I("s_or_b32 s10, s10, 0xdddd")
    I(f"v_mov_b32 v{vIDX}, s10")
    I(f"s_max_i32 s10, s{sN}, 1")
    I("s_sub_u32 s10, s10, 1")
    I(f"s_mul_i32 s10, s{sSG}, s10")
    I("s_lshl_b32 s10, s10, 24")
    I(f"v_mov_b32 v{u(0)}, s10")
    I(f"ds_add_u32 v{vPA}, v{u(0)}")
    I(f"s_movk_i32 s{sINC}, 128")
    I(f"s_movk_i32 s{sINC+1}, 128")
    I(f"v_mov_b32 v{vC1}, 0")
    I("s_mov_b32 exec_hi, 0")
    I(f"v_add_u32 v{vC1}, 0x200, v{vcEO}")
    I("s_mov_b32 exec_hi, -1")
    I("s_waitcnt lgkmcnt(0)")
    put(eafix())
    if STAG == 5:
        I(f"s_cmp_lt_u32 s{sWP}, 4")
        I("s_cbranch_scc1 L_HAD2")
        I(f"s_cmp_lg_u32 s{sCI}, -1")
        I("s_cbranch_scc1 L_HAD2")
        put(dma_tile())
        L("L_HAD2")
        put(q1)
    stamp(12)
    I("s_waitcnt vmcnt(0)")
    stamp(13)
    cstamp(56)
    for m in range(2): I(f"ds_read_b128 {rr(vEO+4*m,4)}, v{vEA+m}")
    for m, s in ORD: I(xread(m, s))
    I(f"s_cmp_lt_i32 s{sN}, 1")
    I("s_cbranch_scc1 L_DONE")
    g = g_mfmas(vP, 0, 0)
    I("s_waitcnt lgkmcnt(4)")
    for x_ in g[:4]: I(x_)
    I("s_waitcnt lgkmcnt(0)")
    for x_ in g[4:]: I(x_)
    I(f"s_mov_b32 s{sT}, 1")
    I(f"s_cmp_eq_u32 s{sN}, 1")
    I("s_cbranch_scc1 L_LT0")
    put(dma_tile())
    for cp in ((1, 0) if FAIR else (0,)):
        sw = lambda par: [f"s_cmp_ge_i32 s{sRM}, {opt('fth', 1)}", f"s_cbranch_scc{1-cp} L_PB{par}{1-cp}", f"L_PB{par}{cp}:"] if FAIR and (par == 0 or not F2) else []
        body = phase(0, 0, cp) + sw(0) + phase(0, 1, cp) + [f"s_cmp_ge_u32 s{sT}, s{sN}", "s_cbranch_scc1 L_LT1"]
        body += phase(1, 0, cp) + sw(1) + phase(1, 1, cp) + [f"s_cmp_lt_u32 s{sT}, s{sN}", f"s_cbranch_scc1 L_LOOP{cp}"]
        check_body(body)
        DBG = opt("dbg", "")
        if "nodma" in DBG: body = [b for b in body if not b.startswith("buffer_load")]
        if "dropS" in DBG: body = [b for b in body if not b.startswith("v_smfmac")]
        if "halfrcp" in DBG: body = [b for b in body if not (b.startswith("v_rcp") and int(b.split("v")[-1]) & 1)]
        if "droppk" in DBG: body = [b for b in body if not b.startswith("v_pk_mul")]
        if "halfx" in DBG: body = [b for b in body if not (b.startswith("v_mfma") and (f"v[{vX+4}:" in b or f"v[{vX+12}:" in b))]
        if "nolds" in DBG: body = [b for b in body if not (b.startswith("ds_read_b128") and f"v{vAX}" in b)]
        if opt("al", 0): body = align8(body, opt("al", 0))
        emit(".p2align 6")
        if opt("sh4", 0): I("s_nop 0")
        L(f"L_LOOP{cp}")
        put(body)
        I("s_branch L_LT0")
    if opt("cpe", 0):
        I("s_branch L_LT0")
        for cp in ((1, 0) if FAIR else (0,)):
            for par in range(2):
                L(f"L_CE{par}{cp}")
                I(f"s_getpc_b64 {sp(sA)}")
                I(f"v_and_b32 v{vEI}, 0xfc, v{vPA}")
                I(f"v_lshlrev_b32 v{vEI}, 5, v{vEI}")
                I(f"global_load_dword v{vEI}, v{vEI}, {sp(sA)}")
                I(f"s_branch L_ND{par}{cp}")
    assert STAG
    e = lambda i: vCA + i
    xd = vWV
    ZR = [vP, vWV + 16]
    nd = lambda w, i: e(16 + 4*w + i)
    sO = [sO0, sO1]
    wu = [f"ds_read_b64_tr_b16 {rr(vWB+8*n+4*s+2*uu,2)}, v{e(1)} offset:{(32*s + 8*uu)*WR + 32*n}" for s in range(2) for n in range(4) for uu in range(2)]
    lid = [f"v_mbcnt_lo_u32_b32 v{lane}, -1, 0", f"v_mbcnt_hi_u32_b32 v{lane}, -1, v{lane}", f"v_and_b32 v{vcS}, 24, v{vPA}"]
    a1 = [f"v_and_b32 v{e(0)}, 48, v{lane}", f"v_and_b32 v{e(3)}, 15, v{lane}",
          f"v_add_u32 v{e(5)}, s{sNT}, v{e(0)}", f"v_lshl_add_u32 v{e(6)}, v{e(3)}, 2, s{sNT}"]
    a1 += [f"ds_read_b128 {rr(nd(w,0),4)}, v{e(5)} offset:{64*w}" for w in range(2)]
    a1 += [f"ds_read2_b32 {rr(e(8),2)}, v{e(6)} offset0:0 offset1:16",
           f"v_bfe_u32 v{e(1)}, v{lane}, 2, 3", f"v_lshrrev_b32 v{e(2)}, 5, v{lane}", f"v_lshl_add_u32 v{e(1)}, v{e(2)}, 4, v{e(1)}",
           f"v_mul_u32_u24 v{e(1)}, {WR}, v{e(1)}", f"s_mov_b32 s10, {WUI}", f"v_add3_u32 v{e(1)}, v{e(1)}, v{vcS}, s10"]
    a1 += wu[:12]
    a1 += [f"s_movk_i32 s10, {(PL-32)//8}", f"v_mad_u32_u24 v{e(0)}, v{vcS}, s10, v{e(0)}",
           f"s_mov_b32 s10, {OWN}", f"v_lshl_add_u32 v{e(5)}, v{e(3)}, 3, s10"]
    a1 += [f"v_lshl_add_u32 v{e(10+w)}, v{e(3)}, 3, s{sOK+w}" for w in range(2)]
    a1 += ["s_waitcnt lgkmcnt(8)"] + wu[12:]
    a2 = []
    for w in range(2):
        for i in range(4):
            a2 += [f"v_add_u32 v{e(12)}, v{nd(w,i)}, v{e(5)}", f"ds_read_b64 {rr(xd+8*w+2*i,2)}, v{e(12)} offset:{i*(PL-32)}"]
    for w in range(2):
        a2 += [f"v_add3_u32 v{e(8+w)}, v{e(8+w)}, v{e(0)}, s10"]
        a2 += [f"ds_read_b128 {rr(vX+8*w+4*s,4)}, v{e(8+w)} offset:{64*s}" for s in range(2)]
    def unp(w, n): return [(f"v_and_b32 v{ZR[w]+4*n+i}, 0xffff0000, v{xd+8*w+2*i+(n>>1)}" if n & 1 else
                            f"v_lshlrev_b32 v{ZR[w]+4*n+i}, 16, v{xd+8*w+2*i+(n>>1)}") for i in range(4)]
    blk = [(w, n) for w in range(2) for n in range(4)]
    a3 = [["s_waitcnt lgkmcnt(0)"] + unp(0, 0) + unp(0, 1)]
    for k, (w, n) in enumerate(blk):
        a3[-1] += [m16(ZR[w]+4*n, vX+8*w, vWB+8*n, ZR[w]+4*n)]
        a3.append((unp(*blk[k+2]) if k + 2 < 8 else []) + [f"v_lshl_add_u32 v{nd(w,n)}, v{nd(w,n)}, 2, v{e(10+w)}",
                  m16(ZR[w]+4*n, vX+8*w+4, vWB+8*n+4, ZR[w]+4*n)])
        if k < 7: a3.append([])
    ME = opt("me", 0)
    if ME:
        for par in range(2):
            L(f"L_LB{par}")
            put(last_tile(par, 0, only_b=True))
            I("s_branch L_DONE")
    for par in range(2):
        L(f"L_LT{par}")
        I(f"s_cmp_lg_u32 s{sHF}, 0")
        I(f"s_cbranch_scc1 L_LH{par}")
        for half in range(2):
            if half: L(f"L_LH{par}")
            put(last_tile(par, half, (lid + a1, a2, a3) if ME else None))
            I("s_branch L_EPB" if ME else "s_branch L_DONE")
    L("L_DONE")
    put(lid)
    I(f"s_cmp_lg_u32 s{sMORE}, 0")
    I("s_cbranch_scc1 L_SLOW")
    L("L_EPI")
    I("s_waitcnt lgkmcnt(0)")
    put(a1 + a2 + sum(a3, []))
    L("L_EPB")
    stamp(14)
    cstamp(57)
    I(f"s_setprio {opt('epr', 0)}")
    I(f"s_mov_b64 exec, {sp(sCM)}")
    I(f"s_and_b32 s11, s{sSH}, 19")
    I("s_nop 2")
    for i in range(4):
        I(f"s_cmp_eq_u32 s11, {i}")
        I(f"s_cbranch_scc1 L_NS{i}")
    L("L_NSR")
    I("s_mov_b64 exec, -1")
    for w in range(2):
        for k in range(16): I(f"v_rcp_f32 v{DEN(w,0)+k}, v{DEN(w,0)+k}")
        for k in range(0, 16, 2): I(f"v_pk_fma_f32 {rr(NUM(w,0)+k,2)}, {rr(NUM(w,0)+k,2)}, {rr(DEN(w,0)+k,2)}, {rr(ZR[w]+k,2)}")
        for i in range(4):
            for h in range(2): I(f"v_cvt_pk_bf16_f32 v{DEN(w,0)+2*i+h}, v{NUM(w,2*h)+i}, v{NUM(w,2*h+1)+i}")
            for h in range(2):
                I(f"v_pk_max_f16 v{DEN(w,0)+2*i+h}, v{DEN(w,0)+2*i+h}, v{xd+8*w+2*i+h}")
            I(f"buffer_store_dwordx2 {rr(DEN(w,0)+2*i,2)}, v{nd(w,i)}, {sq(sO[w])}, 0 offen{pol(OP)}")
    stamp("e2")
    stamp_out()
    L("L_END")
    I("s_endpgm")
    for i in range(4):
        L(f"L_NS{i}")
        for k in range(8): I(f"v_add_f32 v{vACC+4*k+i}, v{vACC+4*k+i}, v{vACC+32+4*k+i}")
        I("s_branch L_NSR")
    for i in range(4):
        L(f"L_RT{i}")
        I("s_waitcnt vmcnt(0)")
        spin()
        for k in range(i, 4): poll_load(k)
        I("s_waitcnt vmcnt(0)")
        I(f"s_branch L_PW{i}")
    L("L_XT2B")
    spin()
    xload("b")
    I("s_waitcnt vmcnt(0)")
    I("s_branch L_XT2")
    L("L_OVF")
    I(f"s_mov_b32 s{sSKIP}, 0")
    I(f"s_mov_b32 s{sN}, 0")
    I(f"s_mov_b32 s{sST}, 0")
    I(f"s_mov_b32 s{sMORE}, 4")
    I("s_waitcnt lgkmcnt(0)")
    I("s_branch L_CA")
    q = vCA
    L("L_POVF")
    I("s_movk_i32 s11, 1986")
    for i in range(4):
        I(f"v_mul_u32_u24 v{q+i}, s11, v{vHS+i}")
        I(f"v_lshrrev_b32 v{q+i}, 16, v{q+i}")
    I(f"v_add_u32 v{q+5}, v{q}, v{q+1}")
    I(f"v_add_u32 v{q+6}, v{q+5}, v{q+2}")
    I(f"v_add_u32 v{q+7}, v{q+6}, v{q+3}")
    I(f"v_mov_b32 v{q+8}, v{q+7}")
    wave_scan(q + 8)
    I("s_nop 0")
    I(f"v_sub_u32 v{q+4}, v{q+8}, v{q+7}")
    I(f"v_add_u32 v{q+7}, v{q+4}, v{q+6}")
    I(f"v_add_u32 v{q+6}, v{q+4}, v{q+5}")
    I(f"v_add_u32 v{q+5}, v{q+4}, v{q}")
    for i in range(4): I(f"v_lshl_or_b32 v{q+4+i}, v{q+i}, 16, v{q+4+i}")
    I(f"v_add_u32 v{q+8}, {HDR}, v{l16}")
    I(f"ds_write_b128 v{q+8}, {rr(q+4,4)}")
    I("s_lshl_b32 s10, s2, 10")
    I(f"s_add_u32 s10, s10, {WS_HD}")
    I(f"buffer_store_dwordx4 {rr(q+4,4)}, v{l16}, {sq(sWS)}, s10 offen sc1")
    for i in range(8):
        I(f"v_and_b32 v{q+10+i}, 0x3fc, v{vHA+i}")
        I(f"v_add_u32 v{q+10+i}, {HDR}, v{q+10+i}")
        I(f"ds_read_u16 v{q+10+i}, v{q+10+i}")
    I("s_waitcnt lgkmcnt(0)")
    for i in range(4):
        I(f"v_cmpx_lt_u32 vcc, {33*(CAP+8)}, v{vHD+i}")
        I(f"v_or_b32 v{vO+4*i+1}, 0x10000, v{vO+4*i+1}")
        I("s_mov_b64 exec, -1")
    I(f"s_mul_i32 s10, s2, {DCH}")
    I(f"s_mov_b32 s{sTM}, {WS_RECS}")
    I(f"s_mov_b32 s{sTM+1}, {WS_LEID}")
    for i in range(NR):
        I(f"v_mul_u32_u24 v{q}, s11, v{vRK1+i}")
        I(f"v_lshrrev_b32 v{q}, 16, v{q}")
        I(f"v_add3_u32 v{q}, v{q}, v{q+10+i}, s10")
        I(f"v_lshlrev_b32 v{q+1}, 2, v{q}")
        I(f"v_cmpx_le_u32 vcc, {33*(CAP+8)}, v{vRK1+i}")
        I(f"s_cbranch_execz L_PO{i}")
        I(f"buffer_store_byte v{idr(i)}, v{q}, {sq(sWS)}, s{sTM+1} offen sc1")
        I(f"buffer_store_dword v{vSR+i}, v{q+1}, {sq(sWS)}, s{sTM} offen sc1")
        L(f"L_PO{i}")
        I("s_mov_b64 exec, -1")
    I("s_waitcnt vmcnt(0) lgkmcnt(0)")
    I("s_barrier")
    I("s_branch L_POUT")
    SB = 288
    t0, t1, t2, t3 = vP, vP+1, vP+2, vP+3
    L("L_SLOW")
    I("s_setprio 0")
    I(f"s_lshl_b32 s10, s{sWP}, 6")
    I(f"v_add_u32 v{tid}, s10, v{lane}")
    I(f"s_cmp_lg_u32 s{sMORE}, 4")
    I("s_cbranch_scc1 L_SL1")
    I(f"s_mov_b32 s{sMORE}, 1")
    I(f"v_and_b32 v{t0}, 0xff, v{tid}")
    I(f"v_lshlrev_b32 v{t1}, 7, v{t0}")
    I(f"buffer_load_dword v{t2}, v{t1}, {sq(sCEL)}, 0 offen offset:4 sc1")
    I(f"v_lshlrev_b32 v{t1}, 10, v{t0}")
    I(f"s_lshl_b32 s10, s{sB}, 2")
    I(f"s_add_u32 s10, s10, {WS_HD}")
    I(f"buffer_load_dword v{t3}, v{t1}, {sq(sWS)}, s10 offen sc1")
    I(f"v_lshlrev_b32 v{t0}, 2, v{t0}")
    I(f"v_add_u32 v{t0}, {HDR}, v{t0}")
    I("s_waitcnt vmcnt(0)")
    I(f"v_and_b32 v{t2}, 0x10000, v{t2}")
    I(f"v_cmp_ne_u32 vcc, 0, v{t2}")
    I(f"v_mov_b32 v{t2}, {(CAP+8) << 16}")
    I("s_nop 0")
    I(f"v_cndmask_b32 v{t2}, v{t2}, v{t3}, vcc")
    I(f"ds_write_b32 v{t0}, v{t2}")
    I("s_waitcnt lgkmcnt(0)")
    I("s_barrier")
    L("L_SL1")
    I(f"s_add_u32 s{sR0}, s{sR0}, {SB}")
    I(f"s_cmp_lt_u32 s{sR0}, s{sCNT}")
    I("s_cbranch_scc1 L_BATCH")
    L("L_FIND")
    I(f"s_cmp_lg_u64 {sp(sMSK)}, 0")
    I("s_cbranch_scc1 L_GOT")
    I(f"s_add_u32 s{sCI}, s{sCI}, 1")
    I(f"s_cmp_ge_u32 s{sCI}, 4")
    I("s_cbranch_scc1 L_EPI")
    I(f"s_lshl_b32 s10, s{sCI}, 8")
    I(f"s_add_u32 s10, s10, {HDR}")
    I(f"v_lshl_add_u32 v{t0}, v{lane}, 2, s10")
    I(f"ds_read_u16 v{t0}, v{t0} offset:2")
    I("s_waitcnt lgkmcnt(0)")
    I(f"v_cmp_lt_u32 {sp(sMSK)}, s{sSKIP}, v{t0}")
    I("s_nop 3")
    I("s_branch L_FIND")
    L("L_GOT")
    I(f"s_ff1_i32_b64 s10, {sp(sMSK)}")
    I(f"s_bitset0_b64 {sp(sMSK)}, s10")
    I(f"s_lshl_b32 s11, s{sCI}, 6")
    I(f"s_add_u32 s{sCUR}, s10, s11")
    I(f"s_lshl_b32 s10, s{sCUR}, 2")
    I(f"s_add_u32 s10, s10, {HDR}")
    I(f"v_mov_b32 v{t0}, s10")
    I(f"ds_read_b32 v{t0}, v{t0}")
    I("s_waitcnt lgkmcnt(0)")
    I(f"v_readfirstlane_b32 s10, v{t0}")
    I("s_nop 3")
    I(f"s_lshr_b32 s{sCNT}, s10, 16")
    I(f"s_and_b32 s{sST}, s10, 0xffff")
    I(f"s_mov_b32 s{sR0}, s{sSKIP}")
    L("L_BATCH")
    I("s_waitcnt vmcnt(0)")
    I("s_barrier")
    prefill(vP + 4)
    I(f"v_and_b32 v{t0}, 15, v{lane}")
    I(f"v_mul_u32_u24 v{t1}, {LWB}, v{t0}")
    I(f"v_add_u32 v{t1}, {BIAS}, v{t1}")
    I(f"v_lshlrev_b32 v{t0}, 2, v{t0}")
    I(f"ds_write_b32 v{t0}, v{t1} offset:{CNT}")
    t1, t4, t5 = vQ, vQ + 2, vQ + 3
    I(f"v_add_u32 v{t0}, s{sR0}, v{tid}")
    I(f"s_mul_i32 s{sTM+2}, s{sCUR}, {CH}")
    I(f"s_mul_i32 s11, s{sCUR}, {DCH}")
    I(f"s_add_u32 s11, s11, s{sST}")
    I(f"s_lshl_b32 s{sTM}, s11, 2")
    I(f"s_add_u32 s{sTM}, s{sTM}, {WS_RECS}")
    I(f"v_lshl_add_u32 v{t2}, v{t0}, 2, s{sTM}")
    I(f"s_add_u32 s{sTM}, s11, {WS_LEID}")
    I(f"v_add_u32 v{t3}, s{sTM}, v{t0}")
    I(f"s_mul_i32 s10, s{sB}, {RS}")
    I(f"s_lshl_b32 s{sTM}, s{sCUR}, 7")
    I(f"s_add_u32 s10, s10, s{sTM}")
    I(f"s_add_u32 s10, s10, {WS_CELL}")
    I(f"v_and_b32 v{t4}, 7, v{t0}")
    I(f"v_lshl_add_u32 v{t4}, v{t4}, 4, s10")
    I(f"v_lshrrev_b32 v{t5}, 3, v{t0}")
    I(f"v_cmpx_gt_u32 vcc, {CAP+8}, v{t0}")
    I(f"v_add_u32 v{t2}, {XOFF}, v{t4}")
    I(f"v_add_u32 v{t3}, 8, v{t2}")
    I(f"v_cmpx_gt_u32 vcc, {CAP}, v{t0}")
    I(f"v_lshl_add_u32 v{t2}, v{t5}, 2, v{t4}")
    I(f"v_add3_u32 v{t3}, v{t4}, v{t5}, 12")
    I("s_mov_b64 exec, -1")
    I(f"s_add_u32 s10, s{sR0}, {SB}")
    I(f"s_min_u32 s10, s10, s{sCNT}")
    I(f"v_cmp_gt_u32 vcc, s10, v{t0}")
    I(f"v_mov_b32 v{t4}, 0x7ffffff0")
    I("s_nop 0")
    I(f"v_cndmask_b32 v{t2}, v{t4}, v{t2}, vcc")
    I(f"v_cndmask_b32 v{t3}, v{t4}, v{t3}, vcc")
    I(f"buffer_load_dwordx2 {rr(t1,2)}, v{t2}, {sq(sWS)}, 0 offen sc1")
    I(f"buffer_load_ubyte v{t3}, v{t3}, {sq(sWS)}, 0 offen sc1")
    I("s_waitcnt lgkmcnt(0)")
    I("s_barrier")
    I("s_waitcnt vmcnt(0)")
    I(f"v_cmp_ne_u32 vcc, 3, v{t5}")
    I(f"v_cmp_eq_u32 {sp(sA)}, s{sK}, v{t1+1}")
    I(f"v_mov_b32 v{t4}, s{sTM+2}")
    I(f"s_or_b64 exec, vcc, {sp(sA)}")
    I(f"v_cmpx_ne_u32 vcc, 0, v{t1}")
    I(f"v_bfe_u32 v{t2}, v{t1}, 18, 8")
    I(f"v_lshlrev_b32 v{t2}, 2, v{t2}")
    I(f"v_add_u32 v{t0}, {MAP}, v{t2}")
    I(f"ds_read_b32 v{t0}, v{t0}")
    put(rec_ops(t1, t3, 0, t4, t2, t3))
    I(f"v_mov_b32 v{t2}, 4")
    I("s_waitcnt lgkmcnt(0)")
    I(f"ds_add_rtn_u32 v{t0}, v{t0}, v{t2} offset:{CNT}")
    I("s_waitcnt lgkmcnt(0)")
    I(f"ds_write2st64_b32 v{t0}, v{t1}, v{t3} {W2}")
    I("s_mov_b64 exec, -1")
    I("s_waitcnt lgkmcnt(0)")
    I("s_barrier")
    listaddr(t2)
    I(f"ds_read_b128 {rr(vQD,4)}, v{vARX}")
    I(f"ds_read_b32 v{vEI}, v{vARE}")
    lens_from_cnt(t2)
    for r_ in (vQ, vQ + 2, vS, vS + 2): I(f"v_mov_b64 {rr(r_,2)}, 0")
    put(dma_tile())
    L("L_LAST")
    I("s_branch L_GO")

def regs_of(tok):
    tok = tok.strip()
    m = re.fullmatch(r"v\[(\d+):(\d+)\]", tok)
    if m: return list(range(int(m.group(1)), int(m.group(2)) + 1))
    m = re.fullmatch(r"v(\d+)", tok)
    if m: return [int(m.group(1))]
    return []
def parse(ins):
    op, _, rest = ins.partition(" ")
    ops = [o.strip().split(" ")[0] for o in rest.split(",")] if rest else []
    if op.startswith("ds_read") or "rtn" in op: return "ds", regs_of(ops[0]), regs_of(ops[1])
    return "other", [], sum((regs_of(o) for o in ops), [])
def check_body(body):
    s2 = [b for b in body if not b.endswith(":")]
    pend = []
    for i, ins in enumerate(s2 * 3):
        k, d, s = parse(ins)
        m = re.search(r"lgkmcnt\((\d+)\)", ins)
        if m:
            while len(pend) > int(m.group(1)): pend.pop(0)
        pr = set(sum(pend, []))
        for r in d + s:
            assert r not in pr, f"pending LDS reg v{r} used by {ins} @{i}"
        if k == "ds":
            pend.append(d); assert len(pend) <= 15

hdr = open("/code/" + NAME + ".s.ref").read().split("\n")
for l in hdr:
    if l.startswith("; Override"): break
    out.append(l)
if opt("list", 0): out.append(f"; @launch kernel={NAME}_kernel grid=(256,1,1) block=(512,1,1) lds={LDS}")
else: out.append(f"; @launch grid=(256,1,1) block=(512,1,1) lds={LDS}")
LEAK = opt("leak", "")
if LEAK: out.append("; @launch kernel=leak_kernel grid=(1,1,1) block=(256,1,1) lds=64")
emit('.amdgcn_target "amdgcn-amd-amdhsa--gfx950"\n.text')
kernel()
if LEAK:
    kind, nm = LEAK[0], LEAK[1:]
    PT = opt("pt", 0)
    si = STN.index(nm)
    emit(".globl leak_kernel\n.p2align 8\n.type leak_kernel,@function\nleak_kernel:")
    I("s_cmp_lg_u32 s2, 0")
    I("s_cbranch_scc1 LK_END")
    I("s_load_dwordx2 s[4:5], s[0:1], 88")
    I("v_min_u32 v1, 254, v0")
    I("v_lshlrev_b32 v1, 11, v1")
    I("v_mov_b32 v2, 0")
    I("v_mov_b32 v3, 0x7fffffff")
    I("v_mov_b32 v4, 0")
    I("ds_write2_b32 v2, v3, v4 offset0:0 offset1:1")
    I("s_waitcnt lgkmcnt(0)")
    I(f"s_add_u32 s4, s4, {WS_TS}")
    I("s_addc_u32 s5, s5, 0")
    I("global_load_dword v5, v2, s[4:5]")
    for w in range(8):
        I(f"global_load_dword v{8+w}, v1, s[4:5] offset:{256*w}")
        I(f"global_load_dword v{16+w}, v1, s[4:5] offset:{256*w + 4*si}")
    I("s_barrier")
    I("s_waitcnt vmcnt(0)")
    I("v_subrev_u32 v5, 1000, v5")
    for w in range(16): I(f"v_sub_u32 v{8+w}, v{8+w}, v5")
    for w in range(8):
        I(f"ds_min_u32 v2, v{8+w}")
        I(f"ds_{'max' if kind == 'm' else 'add'}_u32 v2, v{16+w} offset:4")
    I("s_waitcnt lgkmcnt(0)")
    I("s_barrier")
    I("ds_read_b64 v[6:7], v2")
    I("s_waitcnt lgkmcnt(0)")
    I("v_lshlrev_b32 v6, 2, v6")
    I("v_lshlrev_b32 v7, 2, v7" if kind == 'm' else "v_lshrrev_b32 v7, 9, v7")
    I("v_sub_u32 v6, v7, v6")
    I("v_min_u32 v6, 20000, v6")
    I("s_nop 0")
    I("v_readfirstlane_b32 s6, v6")
    I("s_memrealtime s[8:9]")
    I("s_waitcnt lgkmcnt(0)")
    if PT:
        I(f"s_cmp_gt_u32 s6, {4*PT}")
        I("s_cselect_b32 s6, 6000, 0")
        I("s_mul_i32 s7, s8, 0x9e3779b1")
        I("s_lshr_b32 s7, s7, 20")
        I("s_add_u32 s6, s6, s7")
    L("LK_L")
    I("s_memrealtime s[10:11]")
    I("s_waitcnt lgkmcnt(0)")
    I("s_sub_u32 s7, s10, s8")
    I("s_cmp_lt_u32 s7, s6")
    I("s_cbranch_scc1 LK_L")
    L("LK_END")
    I("s_endpgm")
emit(f""".section .rodata,"a"
.p2align 6
.amdhsa_kernel {NAME}_kernel
  .amdhsa_next_free_vgpr 256
  .amdhsa_next_free_sgpr 102
  .amdhsa_accum_offset 256
  .amdhsa_group_segment_fixed_size 0
  .amdhsa_kernarg_size 96
  .amdhsa_user_sgpr_count 2
  .amdhsa_user_sgpr_kernarg_segment_ptr 1
  .amdhsa_system_sgpr_workgroup_id_x 1
.end_amdhsa_kernel""")
if LEAK:
    emit(""".p2align 6
.amdhsa_kernel leak_kernel
  .amdhsa_next_free_vgpr 32
  .amdhsa_next_free_sgpr 16
  .amdhsa_accum_offset 32
  .amdhsa_group_segment_fixed_size 0
  .amdhsa_kernarg_size 96
  .amdhsa_user_sgpr_count 2
  .amdhsa_user_sgpr_kernarg_segment_ptr 1
  .amdhsa_system_sgpr_workgroup_id_x 1
.end_amdhsa_kernel""")
if TS: out.insert(0, "; stamps " + " ".join(STN))
path = sys.argv[1] if len(sys.argv) > 1 else "/code/" + NAME + ".s"
open(path, "w").write("\n".join(out) + "\n")
print("wrote", path, len(out), "lines; lds", LDS)
```

```python
import sys, re, struct

NAME = "standalone__edge_featured_mpnn_gatedgcn__graph"
OPT = dict(kv.split("=") for kv in sys.argv[2:])
def opt(k, d):
    v = OPT.get(k)
    if v is None: return d
    return type(d)(v)

N, E = 50000, 800000
CH = 3128
BN = 196
XIL = opt('xil', 0)
RS = (513 if XIL else opt('rs', 257)) * 128
XOFF = 256 * 128 if XIL else 256 * RS
WS_CELL = 0x10000
WS_RECS = 0x1200000
WS_LEID = 0x1680000
WS_HD = 0x17a0000
WS_USED = 0x1800000
WS_TS = 0x3000000
KINC = 0x02020202
CAP = 24
LOG2E = 1.4426950408889634
def f2u(f): return struct.unpack("<I", struct.pack("<f", f))[0]

out = []
def emit(s=""):
    for l in s.strip("\n").split("\n"):
        out.append(l.rstrip())
def I(s): out.append("    " + s)
def L(s): out.append(s + ":")
def C(s): out.append("    ; " + s)
def put(seq):
    for s in seq:
        if s.endswith(":"): L(s[:-1])
        else: I(s)
def rr(a, n): return f"v[{a}:{a+n-1}]"
def sp(a): return f"s[{a}:{a+1}]"
def sq(a): return f"s[{a}:{a+3}]"
def pol(p): return (" " + p.replace("_", " ")) if p else ""

def srd(d, lo, size, add=None, stride=0):
    if add is None:
        I(f"s_mov_b32 s{d}, s{lo}")
        I(f"s_mov_b32 s{d+1}, s{lo+1}" if not stride else f"s_or_b32 s{d+1}, s{lo+1}, {stride << 16:#x}")
    else:
        I(f"s_add_u32 s{d}, s{lo}, {add}")
        I(f"s_addc_u32 s{d+1}, s{lo+1}, 0")
    I(f"s_mov_b32 s{d+2}, {size}")
    I(f"s_mov_b32 s{d+3}, 0x20000")

def wave_scan(v, fill=None, half=False):
    def gap():
        if fill and len(fill) >= 2:
            I(fill.pop(0)); I(fill.pop(0))
        else: I("s_nop 1")
    for sh in (1, 2, 4, 8):
        gap()
        I(f"v_add_u32_dpp v{v}, v{v}, v{v} row_shr:{sh} row_mask:0xf bank_mask:0xf bound_ctrl:0")
    gap()
    I(f"v_add_u32_dpp v{v}, v{v}, v{v} row_bcast:15 row_mask:0xa bank_mask:0xf")
    if half: return
    gap()
    I(f"v_add_u32_dpp v{v}, v{v}, v{v} row_bcast:31 row_mask:0xc bank_mask:0xf")

TAB, ZROW, CNT, FLAG = 0, 512, 576, 640
HIST = 1024
ESTG = HIST + 4096
HIST1 = ESTG
EARLY = ESTG + 8192
LWB = 288 * 4
R0 = EARLY + 32768
R1 = R0 + 16 * LWB
XSTG = R1 + 16 * LWB
XI = 1056
SLOT = 4 * XI
OWN = XSTG + 8 * SLOT
PL = 52 * 128 + 32
WR = 160
WUI = OWN + 4 * PL
MAP = WUI + 64 * WR
HDR = MAP + 1024
PRG = HDR + 1024
NT = PRG + 2048
LDS = NT + 1024
WBI, WVI, WCI = EARLY, EARLY + 64 * WR, EARLY + 128 * WR
WAI = XSTG + 8192
LROW = 160
CIMG = R0
assert CIMG + 256 * LROW <= WAI and LDS <= 163840, LDS
BIAS = 8192
assert R1 < 65536 and R0 % 256 == 0 and R1 % 256 == 0
W2 = f"offset0:{(R0-BIAS)//256} offset1:{(R1-BIAS)//256}"

vWB, vWV, vCA, vACC = 0, 32, 64, 96
vX, vEO, vS = 160, 176, 184
vP, vQ, vR = 188, 204, 220
vQD = 236
vEI, vCH, vONE, vCP, vAX, vcEO, vcS, vARX, vARE, vARO, vARS, vEA = 240, 241, 242, 243, 244, 245, 246, 248, 249, 250, 251, 252
lane, vTS, tid = 247, 254, 255
vC1, vIDX, vPA = lane, tid, vcS
DEN = lambda w, n: vACC + 32 * w + 4 * n
NUM = lambda w, n: vACC + 32 * w + 16 + 4 * n
def m16(d, a, b, c=None):
    return f"v_mfma_f32_16x16x32_bf16 {rr(d,4)}, {rr(a,4)}, {rr(b,4)}, " + ("0" if c is None else rr(c, 4))
def s16(d, b): return f"v_smfmac_f32_16x16x64_bf16 {rr(d,4)}, {rr(vS,4)}, {rr(b,8)}, v{vIDX}"

sWP, sW, sB, sK = 3, 4, 5, 6
sWIN, sF0, sF1, sL = 7, 8, 9, 12
sA, sBt = 10, 11
sSTG, sES, s128 = 13, 14, 15
pX, pE, pSRC, pDST, pWA, pWB, pWC, pWU, pWV, pOUT, pDBG, pWS = 16, 18, 20, 22, 24, 26, 28, 30, 32, 34, 36, 38
sT, sN, sFM, sMORE, sSKIP, sXT, sWS0, sWS1, sB0E, sSH = 16, 17, 18, 19, 20, 21, 22, 23, 24, 25
sCI, sCUR, sR0, sCNT, sST, sEND = 26, 27, 28, 29, 30, 31
sMSK = 32
sTM = 34
sX, sEP, sOUT, sWS, sCEL, sD2 = 40, 44, 48, 52, 56, 60
sM = 64
sJ3, sEM = 96, 98
sSP = 100
sHF = 99
sINC = 94
sSG, sRM = 101, 96

TS = opt("ts", 0)
STN = []
YP = opt("yp", "")
def stamp(i):
    if str(i) in YP.split("_"):
        k = YP.split("_").index(str(i))
        I(f"s_cmp_lt_u32 s{sWP}, 4")
        I(f"s_cbranch_scc1 L_YP{k}")
        I(f"s_setprio {1 - (k & 1)}")
        L(f"L_YP{k}")
    if not TS: return
    if isinstance(i, str) and i[0] not in opt("tsx", ""): return
    STN.append(str(i)); i = len(STN) - 1
    I("s_memrealtime vcc" if TS == 1 else "s_memtime vcc")
    I("s_waitcnt lgkmcnt(0)")
    I(f"v_writelane_b32 v{vTS}, vcc_lo, {i}")
def stamp_out():
    if not TS: return
    I("s_waitcnt vmcnt(0)")
    stamp(15)
    I("s_memtime vcc")
    I("s_waitcnt lgkmcnt(0)")
    I(f"v_writelane_b32 v{vTS}, vcc_lo, 58")
    I(f"v_writelane_b32 v{vTS}, s{sN}, 59")
    I(f"v_writelane_b32 v{vTS}, s{sSP}, 60")
    I("s_getreg_b32 s10, hwreg(HW_REG_XCC_ID)")
    I(f"v_writelane_b32 v{vTS}, s10, 55")
    I("s_lshl_b32 s10, s2, 3")
    I(f"s_add_u32 s10, s10, s{sWP}")
    I("s_lshl_b32 s10, s10, 8")
    I(f"s_add_u32 s10, s10, {WS_TS}")
    I(f"v_lshl_add_u32 v{vP}, v{lane}, 2, s10")
    I(f"global_store_dword v{vP}, v{vTS}, {sp(pWS)}")
def cstamp(i):
    if not TS: return
    I("s_memtime vcc")
    I("s_waitcnt lgkmcnt(0)")
    I(f"v_writelane_b32 v{vTS}, vcc_lo, {i}")

LD_P = opt("ldp", "nt")
XP, EP, OP = opt("xp", ""), opt("ep", ""), opt("op", "sc1")
STP = opt("stp", "sc1")
MG = opt("mg", 1)
JE = opt("je", 4 if MG else 2)
EMASK = ((1 << JE) - 1) * 0x01010101
DCH = CH + 1024
SDW = "dst_sel:DWORD dst_unused:UNUSED_PAD"

def dma_tile():
    mad = lambda i: f"v_mad_u32_u16 v{vQD+i}, v{vQD+i}, s{s128}, v{vCP}"
    r = []
    for i in range(4):
        r += [f"s_add_u32 m0, s{sSTG}, {i*XI}", mad(i), f"buffer_load_dwordx4 v{vQD+i}, {sq(sX)}, 0 offen{pol(XP)} lds"]
    r += [f"s_mov_b32 m0, s{sES}", "s_nop 0", f"buffer_load_dwordx4 {rr(vEI,2)}, {sq(sEP)}, 0 idxen offen{pol(EP)} lds"]
    return r

ORD = [(0, 0), (1, 0), (0, 1), (1, 1)]
def xread(m, s): return f"ds_read_b128 {rr(vX+8*m+4*s,4)}, v{vAX} offset:{512*m + 64*s}"
def g_mfmas(D, ft, w):
    g = [m16(D+8*n+4*m, vEO+4*m, vCA+16*w+8*ft+4*n) for m in range(2) for n in range(2)]
    g += [m16(D+8*n+4*m, vX+8*m+4*s, vWB+16*ft+8*n+4*s, D+8*n+4*m) for m, s in ORD for n in range(2)]
    return g
def h_mfmas(ft):
    return [m16(vQ+8*n+4*m, vX+8*m+4*s, vWV+16*ft+8*n+4*s, None if s == 0 else vQ+8*n+4*m) for m, s in ORD for n in range(2)]
def s_num(w, ft): return [s16(NUM(w, 2*ft+n), vQ+8*n) for n in range(2)]
def s_den(w, ft, G): return [s16(DEN(w, 2*ft+n), G+8*n) for n in range(2)]

def eafix():
    return [f"v_bfi_b32 v{vEA+m}, 31, v{vcEO}, v{vEA+m}" for m in range(2)] + [f"v_max_u32 v{vEA}, v{vEA}, v{vcEO}", f"v_max_u32 v{vEA+1}, v{vEA+1}, v{vC1}"]
LV = [int(c, 16) for c in opt("lv", "015a")]
PAT = opt("pat", "1" * 11 + "5")
FAIR = opt("fair", 1)
F2 = opt("f2", 0)
BST = opt("bst", 10)
LNG = opt("lng", 1)
ASL = [int(x) for x in opt("asl", "12_13_14_18").split("_")]
LLV = [int(x) for x in opt("llv", "0_2_12_26").split("_")]
LLP_ = opt("llp", "0003_1113").split("_")
def add1(q): return f"v_mfma_f32_4x4x4_16b_bf16 {rr(q,4)}, {rr(vONE,2)}, {rr(vONE,2)}, {rr(q,4)}"
def long_sec(mf, G, regs, slots, cp):
    r = []; k = 0
    tr = [f"v_exp_f32 v{G+i}, v{G+i}" for i in regs] + [f"v_rcp_f32 v{G+i}, v{G+i}" for i in regs]
    for i, x in enumerate(tr):
        if i in LLV:
            j = LLV.index(i)
            if j == 0 or LLP_[cp][j] != LLP_[cp][j-1]: r.append(f"s_setprio {LLP_[cp][j]}")
        if i in slots: r.append(add1(G + regs[4*slots.index(i)]))
        elif k < len(mf): r += mf[k]; k += 1
        r.append(x)
    assert k == len(mf)
    return r
def phase(par, ft, cp=0):
    G, Go = (vP, vR) if ft == 0 else (vR, vP)
    nf = 1 - ft
    wn = par if ft == 0 else par ^ 1
    wp = par ^ 1 if ft == 0 else par
    s1 = [[x] for x in s_num(wp, nf) + h_mfmas(ft) + s_den(wp, nf, Go)]
    s2 = [[x] for x in g_mfmas(Go, nf, wn)]
    if ft == 0:
        o = par * LWB
        s1[0] += [f"ds_read_u16 v{vQD+u}, v{vARS} offset:{o + 16*u}" for u in range(2)]
        s1[8] += ["s_waitcnt lgkmcnt(0)"] + [f"v_bfi_b32 v{vQD+u}, 31, v{vcS}, v{vQD+u}" for u in range(2)]
        if FAIR and (par == 0 or not F2):
            s1[0] += [f"ds_add_rtn_u32 v{vQD+2}, v{vPA}, v{vIDX}"]
            s1[8] += [f"v_readfirstlane_b32 s{sRM}, v{vQD+2}"]
            s2[1] += [f"s_ashr_i32 s{sRM}, s{sRM}, 24", f"s_mul_i32 s{sRM}, s{sRM}, s{sSG}"]
        o1 = 128 if par else LWB
        s2[0] += [f"ds_read_b64_tr_b16 {rr(vS+2*u,2)}, v{vQD+u}" for u in range(2)]
        s2[0] += [f"ds_read_u16 v{vEA+m}, v{vARO} offset:{o1 + 64*m}" for m in range(2)]
        s2[6] += ["s_waitcnt lgkmcnt(0)"] + eafix()
        s2[6] += [f"ds_read_b128 {rr(vQD,4)}, v{vARX} offset:{o + 128}", f"ds_read_b32 v{vEI}, v{vARE} offset:{o + 128}",
                  f"s_add_u32 s{sT}, s{sT}, 1"]
        if par: s2[7] += [f"v_lshl_add_u64 {rr(r,2)}, {rr(r,2)}, 0, {sp(sINC)}" for r in (vARX, vARO)]
    elif opt("el", 0):
        g = [m16(Go+8*n+4*m, vX+8*m+4*s, vWB+16*nf+8*n+4*s, None if s == 0 else Go+8*n+4*m) for m, s in ORD for n in range(2)]
        g += [m16(Go+8*n+4*m, vEO+4*m, vCA+16*wn+8*nf+4*n, Go+8*n+4*m) for m in range(2) for n in range(2)]
        s2 = [[x] for x in g]
        s1[2] = ["s_waitcnt vmcnt(1)"] + s1[2]
        for i, (m, s) in enumerate(ORD): s1[3+2*i].append(xread(m, s))
        s2[0] = ["s_waitcnt lgkmcnt(2)"] + s2[0]
        ep = opt("el", 0)
        s2[ep] += ["s_waitcnt vmcnt(0)"] + [f"ds_read_b128 {rr(vEO+4*m,4)}, v{vEA+m}" for m in range(2)]
        s2[4] = [f"s_waitcnt lgkmcnt({2 if ep < 4 else 0})"] + s2[4]
        s2[8] = ["s_waitcnt lgkmcnt(0)"] + s2[8]
        s2[opt("eld", 9)] += [f"s_cmp_lt_u32 s{sT}, s{sN}", f"s_cbranch_scc0 L_ND{par}{cp}"] + dma_tile() + [f"L_ND{par}{cp}:"]
    else:
        s1[2] = ["s_waitcnt vmcnt(0)"] + [f"ds_read_b128 {rr(vEO+4*m,4)}, v{vEA+m}" for m in range(2)] + s1[2]
        for i, (m, s) in enumerate(ORD): s1[3+2*i].append(xread(m, s))
        s2[0] = ["s_waitcnt lgkmcnt(4)"] + s2[0]
        for i in range(4): s2[4+2*i] = [f"s_waitcnt lgkmcnt({3-i})"] + s2[4+2*i]
        DSP = opt("dsp", "")
        if DSP:
            d = dma_tile(); first = min(int(c, 16) for c in DSP)
            for i in range(4): s2[4+2*i] = s2[4+2*i][1:] if 4+2*i > first else s2[4+2*i]
            s2[first] = ["s_waitcnt lgkmcnt(0)"] + [x for x in s2[first] if not x.startswith("s_waitcnt")]
            for k, c in enumerate(DSP): s2[int(c, 16)] += d[3*k:3*k+3]
        tgt = f"L_CE{par}{cp}" if opt("cpe", 0) else f"L_ND{par}{cp}"
        if not DSP: s2[10] += [f"s_cmp_lt_u32 s{sT}, s{sN}", f"s_cbranch_scc0 {tgt}"] + dma_tile() + [f"L_ND{par}{cp}:"]
    def sec(mf, op):
        r = []; k = 0
        for i, m in enumerate(mf):
            if opt("lvp", ""):
                lv = opt("lvp", "").split("_")[cp]
                if i in LV:
                    k_ = LV.index(i)
                    if k_ == 0 or lv[k_] != lv[k_-1]: r.append(f"s_setprio {lv[k_]}")
            elif FAIR:
                if i == 0: r.append(f"s_setprio {cp}")
                if i == BST: r.append("s_setprio 3")
            elif i in LV: r.append(f"s_setprio {LV.index(i)}")
            r += m
            for _ in range(int(PAT[i])):
                r.append(f"{op} v{G+k}, v{G+k}"); k += 1
        assert k == 16
        return r
    r = []
    if opt("tt", 0) and ft == 0:
        r += ["s_memrealtime vcc", "s_memtime s[10:11]", f"s_add_u32 m0, s{sT}, 17", "s_waitcnt lgkmcnt(0)", f"v_writelane_b32 v{vTS}, vcc_lo, m0",
              f"s_add_u32 m0, s{sT}, 35", "s_nop 0", f"v_writelane_b32 v{vTS}, s10, m0"]
    if LNG:
        r += long_sec(s1 + s2, G, list(range(16)), ASL, cp)
        return r + [f"v_pk_mul_f32 {rr(vQ+2*i,2)}, {rr(G+2*i,2)}, {rr(vQ+2*i,2)}" for i in range(8)]
    r += sec(s1, "v_exp_f32")
    r += [f"v_pk_add_f32 {rr(G+2*i,2)}, {rr(G+2*i,2)}, 1.0 op_sel_hi:[1,0]" for i in range(8)]
    r += sec(s2, "v_rcp_f32")
    r += [f"v_pk_mul_f32 {rr(vQ+2*i,2)}, {rr(G+2*i,2)}, {rr(vQ+2*i,2)}" for i in range(8)]
    return r

def last_tile(par, half, epi=None, only_b=False):
    keep = (lambda x: int(re.match(r"\S+ v\[(\d+)", x).group(1)) % 8 == (vP % 8)) if half else (lambda x: True)
    regs = [k for k in range(16) if not (half and k & 4)]
    def sec(mf, op, G):
        r = [f"s_setprio {opt('lpr', 0)}"]; k = 0
        tail = min(len(regs), 4 if half else 5)
        for i, m in enumerate(mf):
            if i == len(mf) - 1: r.append("s_setprio 3")
            r += m
            e_ = (len(regs) - tail) * (i + 1) // (len(mf) - 1) if i < len(mf) - 1 else len(regs)
            while k < e_:
                r.append(f"{op} v{G+regs[k]}, v{G+regs[k]}"); k += 1
        while k < len(regs):
            r.append(f"{op} v{G+regs[k]}, v{G+regs[k]}"); k += 1
        return r
    r = []
    for ft in range(1 if only_b else 0, 2):
        G, Go = (vP, vR) if ft == 0 else (vR, vP)
        wp = par ^ 1 if ft == 0 else par
        s1 = [[x] for x in s_num(wp, 1-ft) + [h for h in h_mfmas(ft) if keep(h)] + s_den(wp, 1-ft, Go)]
        s2 = [[x] for x in g_mfmas(Go, 1, par) if keep(x)] if ft == 0 else []
        if ft == 0:
            s1[0] += [f"ds_read_u16 v{vQD+u}, v{vARS} offset:{par*LWB + 16*u}" for u in range(2)]
            s1[-2] += ["s_waitcnt lgkmcnt(0)"] + [f"v_bfi_b32 v{vQD+u}, 31, v{vcS}, v{vQD+u}" for u in range(2)]
            s2[0] += [f"ds_read_b64_tr_b16 {rr(vS+2*u,2)}, v{vQD+u}" for u in range(2)]
        else:
            s1[0] = ["s_waitcnt lgkmcnt(0)"] + s1[0]
            if epi:
                a1, a2, a3 = epi
                r += [f"s_cmp_lg_u32 s{sMORE}, 0", f"s_cbranch_scc1 L_LB{par}"]
                n_ = len(s1) - 3
                for k in range(n_): s1[k] += a1[len(a1)*k//n_:len(a1)*(k+1)//n_]
                s1[-3] += a2[:len(a2)//2]; s1[-2] += a2[len(a2)//2:]
                s2 = [list(x) for x in a3]
        r += sec(s1, "v_exp_f32", G)
        r += [f"v_pk_add_f32 {rr(G+k,2)}, {rr(G+k,2)}, 1.0 op_sel_hi:[1,0]" for k in regs[::2]]
        r += sec(s2, "v_rcp_f32", G)
        r += [f"v_pk_mul_f32 {rr(vQ+k,2)}, {rr(G+k,2)}, {rr(vQ+k,2)}" for k in regs[::2]]
    return r + s_den(par, 1, vR) + s_num(par, 1)

def isize(x):
    op = x.split()[0]
    if x.endswith(":"): return 0
    if op in ("v_exp_f32", "v_rcp_f32", "v_max_u32", "v_readfirstlane_b32"): return 4
    if op.startswith("s_"):
        m = re.search(r", (0x[0-9a-f]+|\d+)$", x)
        return 8 if (m and op not in ("s_setprio", "s_nop", "s_waitcnt") and int(m.group(1), 0) > 64) else 4
    return 8
def align8(body, mode):
    body = list(body); run = []; r = []
    for x in body:
        z = isize(x)
        if z == 8:
            if sum(isize(r[i]) for i in run) % 8:
                c = [i for i in run if r[i].split()[0] in ("v_exp_f32", "v_rcp_f32", "v_max_u32")]
                if c: r[c[-1]] = r[c[-1]].replace(" ", "_e64 ", 1); run = []
                elif mode == 2: r.append("s_nop 0"); run = []
                else: run = [i for i in run if isize(r[i])][:1]
            else: run = []
            r.append(x)
        else:
            run.append(len(r)); r.append(x)
    return r

def listaddr(t0):
    I(f"v_lshrrev_b32 v{t0}, 3, v{lane}")
    I(f"v_lshl_add_u32 v{vARX}, v{t0}, 4, s{sL}")
    I(f"s_add_u32 s10, s{sL}, {R1-R0}")
    I(f"v_lshrrev_b32 v{t0}, 1, v{lane}")
    I(f"v_lshl_add_u32 v{vARE}, v{t0}, 2, s10")
    I(f"s_add_u32 s10, s10, 2")
    I(f"v_lshrrev_b32 v{t0}, 5, v{lane}")
    I(f"v_mul_i32_i24 v{vARO}, {(R0-R1) & 0xffffffff:#x}, v{t0}")
    I(f"v_and_b32 v{t0}, 15, v{lane}")
    I(f"v_lshl_add_u32 v{vARO}, v{t0}, 2, v{vARO}")
    I(f"v_add_u32 v{vARO}, s10, v{vARO}")
    I(f"s_add_u32 s10, s{sL}, 2")
    I(f"v_and_b32 v{t0}, 48, v{lane}")
    I(f"v_lshl_add_u32 v{vARS}, v{t0}, 1, s10")
    I(f"v_and_b32 v{t0}, 12, v{lane}")
    I(f"v_add_u32 v{vARS}, v{vARS}, v{t0}")

def prefill(t):
    for d in range(4): I(f"v_mov_b32 v{t+d}, {ZROW << 16:#x}")
    for d in range(4): I(f"v_mov_b32 v{t+4+d}, 0xfffff")
    I(f"v_lshl_add_u32 v{t+8}, v{lane}, 4, s{sL}")
    for o in (0, 1024, 2*LWB - 1024):
        I(f"ds_write_b128 v{t+8}, {rr(t,4)} offset:{o}")
        I(f"ds_write_b128 v{t+8}, {rr(t+4,4)} offset:{o + R1 - R0}")

def kernel():
    emit(f"""
.globl {NAME}_kernel
.p2align 8
.type {NAME}_kernel,@function
{NAME}_kernel:""")
    FH = opt("fh", 1)
    vD, vSR, vT16 = vACC + 32, vACC, vR + 12
    if TS and opt("tz", 0): I("s_memrealtime s[96:97]")
    I("s_load_dwordx16 s[16:31], s[0:1], 0")
    I("s_load_dwordx8 s[32:39], s[0:1], 64")
    CPN = opt("cpn", 8)
    if opt("cpf", 1):
        I(f"s_getpc_b64 {sp(sM)}")
        L("L_PC")
        if CPN == 8: I("s_and_b32 s3, s2, -8")
        else:
            I("s_lshr_b32 s3, s2, 3")
            I(f"s_and_b32 s3, s3, {256//CPN - 1}")
            I(f"s_mul_i32 s3, s3, {CPN}")
        I("v_add_lshl_u32 v1, v0, s3, 7")
        I("v_min_u32 v1, L_LAST-L_PC, v1")
        I(f"v_cmpx_gt_u32 vcc, {CPN}, v0")
        I("s_cbranch_execz L_NOCPF")
        I(f"global_load_dword v{vEA}, v1, {sp(sM)}")
        L("L_NOCPF")
        I("s_mov_b64 exec, -1")
    I("s_cmp_ge_u32 s2, 256")
    I("s_cbranch_scc1 L_END")
    if FH:
        I(f"s_mul_i32 s{sA}, s2, {CH*4}")
        I(f"v_lshl_add_u32 v1, v0, 4, s{sA}")
        I(f"s_add_u32 s{sBt}, s{sA}, {CH*4}")
        I(f"s_min_u32 s{sBt}, s{sBt}, {E*4}")
        BAL = opt("bal", 0)
        if BAL:
            I(f"s_add_u32 s{sA}, s{sA}, 0x2000")
            I(f"v_lshl_add_u32 v2, v0, 3, s{sA}")
            I(f"s_add_u32 s{sA}, s{sA}, 0x1000")
            I(f"v_lshl_add_u32 v3, v0, 2, s{sA}")
            I(f"v_cmp_gt_u32 {sp(sM+6)}, s{sBt}, v2")
            I(f"v_min_u32 v2, {E*4 - 8}, v2")
        else: I("v_add_u32 v2, 0x2000, v1")
        I("s_waitcnt lgkmcnt(0)")
        if TS and opt("tz", 0): I("s_memrealtime s[98:99]")
        I(f"global_load_dwordx4 {rr(vD,4)}, v1, {sp(pDST)}{pol(LD_P)}")
        if BAL:
            I(f"global_load_dwordx2 {rr(vD+4,2)}, v2, {sp(pDST)}{pol(LD_P)}")
            I(f"global_load_dwordx4 {rr(vSR,4)}, v1, {sp(pSRC)}{pol(LD_P)}")
            I(f"global_load_dwordx2 {rr(vSR+4,2)}, v2, {sp(pSRC)}{pol(LD_P)}")
            I(f"v_cmpx_gt_u32 {sp(sM+28)}, s{sBt}, v3")
            I("s_cbranch_execz L_NO7")
            I(f"global_load_dword v{vD+6}, v3, {sp(pDST)}{pol(LD_P)}")
            I(f"global_load_dword v{vSR+6}, v3, {sp(pSRC)}{pol(LD_P)}")
        else:
            I(f"global_load_dwordx4 {rr(vSR,4)}, v1, {sp(pSRC)}{pol(LD_P)}")
            def group2():
                I(f"v_cmpx_gt_u32 {sp(sM+6)}, s{sBt}, v2")
                I("s_cbranch_execz L_NO8")
                I(f"global_load_dwordx4 {rr(vD+4,4)}, v2, {sp(pDST)}{pol(LD_P)}")
                I(f"global_load_dwordx4 {rr(vSR+4,4)}, v2, {sp(pSRC)}{pol(LD_P)}")
                L("L_NO8")
                I("s_mov_b64 exec, -1")
            G2 = opt("g2", 0)
            if G2 == 0: group2()
        L("L_NO7")
        I("s_mov_b64 exec, -1")
        KV = opt("kv", 0)
        if KV:
            I("v_mov_b32 v1, 0")
            I(f"global_load_dword v{vEA+1}, v1, {sp(pWS)}")
        else: I(f"s_load_dword s{sK}, {sp(pWS)}, 0")
        if opt("tlb", 0):
            I("v_lshlrev_b32 v1, 20, v0")
            I(f"v_add_u32 v1, {WS_CELL + XOFF - 448*(1 << 20) & 0xffffffff:#x}, v1")
            I("v_subrev_u32 v2, 448, v0")
            I("v_cmpx_gt_u32 vcc, 9, v2")
            I("s_cbranch_execz L_NOTLB")
            I(f"global_load_dword v{vEA+1}, v1, {sp(pWS)}")
            L("L_NOTLB")
            I("s_mov_b64 exec, -1")
    if TS: I(f"v_mov_b32 v{vTS}, 0")
    u = lambda i: vP + i
    if TS and opt("tz", 0):
        I("s_waitcnt lgkmcnt(0)")
        I(f"v_writelane_b32 v{vTS}, s96, 0")
        I(f"v_writelane_b32 v{vTS}, s98, 1")
        STN.extend(["z", "k"])
    stamp(0)
    vBK, vRK1, vID, vHA, vIC = vACC + 8, vACC + 16, vACC + 24, vACC + 40, vACC + 48
    vRW = vX
    one, l16 = vS, vS + 1
    vOA, vT16, sOW = vR + 14, vR + 12, 101
    I(f"v_mov_b32 v{tid}, v0")
    I(f"v_lshrrev_b32 v{u(0)}, 6, v0")
    I(f"v_and_b32 v{lane}, 63, v0")
    I(f"v_readfirstlane_b32 s{sWP}, v{u(0)}")
    I(f"v_lshlrev_b32 v{vT16}, 4, v0")
    I(f"v_lshlrev_b32 v{u(2)}, 3, v0")
    I(f"v_lshlrev_b32 v{u(3)}, 2, v0")
    I(f"v_and_b32 v{u(4)}, 0x3fc, v{u(3)}")
    if not FH:
        I(f"s_mul_i32 s{sA}, s2, {CH*4}")
        I(f"s_sub_u32 s{sBt}, {E*4}, s{sA}")
        I(f"s_min_u32 s{sBt}, s{sBt}, {CH*4}")
    I(f"s_and_b32 s{sB}, s2, 7")
    I(f"s_lshr_b32 s{sW}, s2, 3")
    I(f"s_lshl_b32 s{sB}, s{sB}, 5")
    I(f"s_add_u32 s{sB}, s{sB}, s{sW}")
    I(f"s_mul_i32 s{sF1}, s{sB}, {BN}")
    I(f"s_cmp_eq_u32 s{sWP}, 7")
    I(f"s_cselect_b32 s{sOW}, 0, s{sWP}")
    I(f"s_lshl_b32 s{sL}, s{sOW}, 5")
    I(f"s_add_u32 s{sF1}, s{sF1}, s{sL}")
    I(f"v_lshrrev_b32 v{u(5)}, 3, v{lane}")
    I(f"v_lshl_add_u32 v{u(5)}, v{u(5)}, 2, s{sF1}")
    I(f"v_and_b32 v{vCP}, 7, v{lane}")
    I(f"v_lshlrev_b32 v{vCP}, 4, v{vCP}")
    I(f"v_lshl_add_u32 v{vOA}, v{u(5)}, 7, v{vCP}")
    I(f"s_lshl_b32 s{sOW}, s{sOW}, 10")
    I(f"s_add_u32 s{sOW}, s{sOW}, {OWN}")
    if not FH:
        I(f"s_movk_i32 s{sF0}, 0x2000")
        I("s_waitcnt lgkmcnt(0)")
        I(f"s_load_dword s{sK}, {sp(pWS)}, 0")
        srd(sCEL, pDST, f"s{sBt}", f"s{sA}")
        srd(sD2, pSRC, f"s{sBt}", f"s{sA}")
        I(f"buffer_load_dwordx4 {rr(vD,4)}, v{vT16}, {sq(sCEL)}, 0 offen{pol(LD_P)}")
        I(f"buffer_load_dwordx4 {rr(vSR,4)}, v{vT16}, {sq(sD2)}, 0 offen{pol(LD_P)}")
        I(f"s_cmp_ge_u32 s{sWP}, 5")
        I("s_cbranch_scc1 L_NO7")
        I(f"buffer_load_dwordx4 {rr(vD+4,4)}, v{vT16}, {sq(sCEL)}, s{sF0} offen{pol(LD_P)}")
        I(f"buffer_load_dwordx4 {rr(vSR+4,4)}, v{vT16}, {sq(sD2)}, s{sF0} offen{pol(LD_P)}")
        L("L_NO7")
    for d in range(2): I(f"v_mov_b64 {rr(u(8)+2*d,2)}, 0")
    I(f"v_mov_b32 v{u(6)}, {33*JE if MG else 0}")
    I(f"ds_write2st64_b32 v{u(4)}, v{u(6)}, v{u(8)} offset0:{HIST1//256} offset1:{HIST1//256+4}")
    I(f"v_add_u32 v{u(5)}, {CIMG}, v{vT16}")
    if G2 == 1: group2()
    for k in range(5): I(f"ds_write_b128 v{u(5)}, {rr(u(8),4)} offset:{8192*k}")
    if G2 == 2: group2()
    PF = opt("pf", 0)
    def w_loads():
        I(f"s_cmp_ge_u32 s{sWP}, 2")
        I("s_cbranch_scc1 L_NOC")
        I(f"global_load_dwordx4 {rr(vEO,4)}, v{vT16}, {sp(pWC)}")
        L("L_NOC")
        for k, p in enumerate((pWB, pWV, pWA, pWU)):
            I(f"global_load_dwordx4 {rr(vRW+4*k,4)}, v{vT16}, {sp(p)}")
    def own_loads():
        I(f"s_cmp_eq_u32 s{sWP}, 6")
        I("s_cselect_b32 exec_hi, 0, -1")
        I(f"s_cmp_eq_u32 s{sWP}, 7")
        I("s_cselect_b64 exec, 1, exec")
        for k in range(4):
            I(f"s_add_u32 m0, s{sOW}, {(PL-128)*k}")
            I("s_nop 0")
            I(f"buffer_load_dwordx4 v{vOA}, {sq(sX)}, 0 offen offset:{128*k}{pol(opt('owp', ''))} lds")
        I("s_mov_b64 exec, -1")
    def x_prefetch():
        if not PF: return
        I(f"s_add_u32 s{sTM}, s2, 1")
        I(f"s_and_b32 s{sTM}, s{sTM}, 7")
        I(f"s_mul_i32 s{sTM}, s{sTM}, {32*BN}")
        I(f"s_lshr_b32 s{sTM+1}, s2, 3")
        I(f"s_mul_i32 s{sTM+1}, s{sTM+1}, {PF}")
        I(f"s_add_u32 s{sTM}, s{sTM}, s{sTM+1}")
        I(f"s_mul_i32 s{sTM+1}, s{sWP}, {PF//8}")
        I(f"s_add_u32 s{sTM}, s{sTM}, s{sTM+1}")
        I(f"v_min_u32 v{vEA+1}, {PF//8 - 1}, v{lane}")
        I(f"v_add_lshl_u32 v{vEA+1}, v{vEA+1}, s{sTM}, 7")
        I(f"buffer_load_dword v{vEA+1}, v{vEA+1}, {sq(sX)}, 0 offen")
    PFP = opt("pfp", 0)
    LLP = 2
    OLP = opt("olp", 2)
    NY = 0
    srd(sEP, pE, E, stride=32)
    srd(sOUT, pOUT, N*128)
    srd(sX, pX, N*128)
    OY = 0
    if OLP == 3:
        OW0 = opt("ow0", 5); nw = 8 - OW0; per = -(-28 // nw); OY = per
        I(f"s_cmp_lt_u32 s{sWP}, {OW0}")
        I("s_cbranch_scc1 L_NOOWN")
        I(f"s_mul_i32 s{sF1}, s{sB}, {BN}")
        I(f"v_lshrrev_b32 v{vOA}, 3, v{lane}")
        I(f"v_lshl_add_u32 v{vOA}, v{vOA}, 2, s{sF1}")
        I(f"v_lshl_add_u32 v{vOA}, v{vOA}, 7, v{vCP}")
        I(f"s_sub_u32 s{sF0}, s{sWP}, {OW0}")
        for k in range(per):
            I(f"s_add_u32 s{sF1}, s{sF0}, {nw*k}")
            I(f"s_min_u32 s{sF1}, s{sF1}, 27")
            I(f"s_and_b32 s{sL}, s{sF1}, 3")
            I(f"s_lshr_b32 s{sF1}, s{sF1}, 2")
            I(f"s_mul_i32 s{sOW}, s{sL}, {PL}")
            I(f"s_lshl_b32 s{sL}, s{sL}, 7")
            I(f"s_cmp_eq_u32 s{sF1}, 6")
            I("s_cselect_b32 exec_hi, 0, -1")
            I(f"s_lshl_b32 s{sF1}, s{sF1}, 10")
            I(f"s_add_u32 s{sOW}, s{sOW}, s{sF1}")
            I(f"s_add_u32 m0, s{sOW}, {OWN}")
            I(f"s_lshl2_add_u32 s{sL}, s{sF1}, s{sL}")
            I(f"buffer_load_dwordx4 v{vOA}, {sq(sX)}, s{sL} offen lds")
        I("s_mov_b32 exec_hi, -1")
        L("L_NOOWN")
    srd(sWS, pWS, WS_USED)
    I(f"s_lshl_b32 s{sL}, s2, 7")
    I(f"s_add_u32 s{sL}, s{sL}, {WS_CELL}")
    srd(sCEL, pWS, 255*RS + XOFF + 128, f"s{sL}")
    cM, cN, cP, cPM, cR = sM, sM + 1, sM + 2, sM + 3, sM + 4
    m2 = sM + 6
    I(f"s_mov_b32 s{cM}, 85599")
    I(f"s_mov_b32 s{cN}, {-BN & 0xffffffff}")
    I(f"s_movk_i32 s{cP}, 5368")
    I(f"s_mov_b32 s{cPM}, {opt('phm', 3) << 26:#x}")
    I(f"s_mov_b32 s{cR}, {RS}")
    if opt("rot", 1): I(f"s_mov_b32 s{sSP}, {-(196*5368) & 0xffffffff:#x}")
    for i in range(4): I(f"v_add_u32 v{vID+i}, {i}, v{u(3)}")
    I(f"s_lshl_b32 s{sA}, s{sWP}, 28")
    I(f"s_or_b32 s{sA}, s{sA}, 0x20000")
    I(f"v_mov_b32 v{vIC}, s{sA}")
    if BAL:
        assert MG <= 1 and OLP != 3
        I(f"s_lshr_b32 s{sA}, s{sWP}, 1")
        I(f"s_lshl_b32 s{sA}, s{sA}, 28")
        I(f"s_or_b32 s{sA}, s{sA}, 0x80020000")
        I(f"v_mov_b32 v{vIC+1}, s{sA}")
        I(f"v_mov_b32 v{vIC+3}, 0xc0020000")
        I(f"v_lshlrev_b32 v{vID+4}, 1, v{tid}")
        I(f"v_add_u32 v{vID+5}, 1, v{vID+4}")
        I(f"v_mov_b32 v{vID+6}, v{tid}")
    else: I(f"v_or_b32 v{vIC+1}, 0x80000000, v{vIC}")
    idr = (lambda i: vID + i) if BAL else (lambda i: vID + (i & 3))
    icr = (lambda i: vIC + (3 if i == 6 else i >> 2)) if BAL else (lambda i: vIC + (i >> 2))
    NR = 7 if BAL else 8
    I(f"v_mov_b32 v{one}, 33")
    vK1 = vIC + 2
    I(f"v_mov_b32 v{vK1}, 0x400")
    if opt("ro", 0): I(f"v_mov_b32 v{vIC+4}, {opt('ro', 0) << 24:#x}")
    if not FH:
        I(f"s_sub_u32 s{sBt}, s{sBt}, 0x2000")
        I(f"v_cmp_gt_u32 {sp(m2)}, s{sBt}, v{vT16}")
    I(f"s_and_b32 s{sA}, s{sWP}, 3")
    I(f"s_lshr_b32 s{sW}, s{sWP}, 2")
    I(f"s_lshl1_add_u32 s{sW}, s{sA}, s{sW}")
    if opt("swp", 1): I(f"s_xor_b32 s{sW}, s{sW}, 1")
    I(f"s_mul_i32 s{sA}, s{sW}, 49")
    I(f"s_sub_i32 s{sA}, s{sA}, 6")
    I(f"s_ashr_i32 s{sA}, s{sA}, 1")
    I(f"s_max_i32 s{sWIN}, s{sA}, 0")
    I(f"s_mul_i32 s{sSTG}, s{sW}, {SLOT}")
    I(f"s_add_u32 s{sSTG}, s{sSTG}, {XSTG}")
    I(f"s_lshl_b32 s{sES}, s{sW}, 10")
    I(f"s_add_u32 s{sES}, s{sES}, {ESTG}")
    I(f"s_mul_i32 s{sL}, s{sW}, {2*LWB}")
    I(f"s_add_u32 s{sL}, s{sL}, {R0}")
    I(f"s_movk_i32 s{s128}, 128")
    if G2 == 3: group2()
    I(f"v_bfe_u32 v{u(6)}, v{tid}, 4, 4")
    I(f"v_and_b32 v{u(7)}, 7, v{tid}")
    I(f"v_cmp_eq_u32 vcc, v{u(6)}, v{u(7)}")
    I(f"v_and_b32 v{u(6)}, 8, v{tid}")
    I(f"v_lshlrev_b32 v{u(6)}, 1, v{u(6)}")
    I(f"v_mov_b32 v{u(8)}, 0x3f80")
    I(f"v_lshlrev_b32 v{u(8)}, v{u(6)}, v{u(8)}")
    I(f"v_cndmask_b32 v{u(8)}, 0, v{u(8)}, vcc")
    I(f"ds_write_b32 v{u(4)}, v{u(8)} offset:{TAB}")
    I(f"v_mov_b64 {rr(u(8),2)}, 0")
    I(f"ds_write_b64 v{u(2)}, {rr(u(8),2)} offset:{HIST}")
    I(f"v_add_u32 v{u(6)}, {PRG}, v{u(3)}")
    I(f"ds_write_b32 v{u(6)}, v{u(8)}")
    go, lo, lo2, ha = vR, vR + 1, vR + 2, vR + 3
    wl, wal = vR + 4, vR + 5
    I(f"v_lshrrev_b32 v{ha}, 3, v{tid}")
    TW = opt("tw", "")
    lob, l2b = vR + 6, vR + 7
    sRG = sM + 28
    I(f"v_mul_u32_u24 v{wl}, {LROW}, v{ha}")
    if TW:
        I(f"v_and_b32 v{lo2}, 24, v{ha}")
        I(f"v_and_b32 v{go}, 7, v{ha}")
        I(f"v_lshl_add_u32 v{lo2}, v{lo2}, 1, v{go}")
        I(f"v_mad_u32_u24 v{go}, v{lo2}, s{cR}, v{vCP}")
        I(f"s_lshr_b32 s{sRG}, s{sWP}, 2")
        I(f"s_lshl_b32 s{sRG}, s{sRG}, 7")
        I(f"s_sub_u32 s{sRG}, s{sRG}, s2")
        I(f"s_add_u32 s{sRG}, s{sRG}, 63")
        I(f"s_add_u32 s{sRG+1}, s{sRG}, 64")
        I(f"s_and_b32 s{sRG}, s{sRG}, 0xc0")
        I(f"s_and_b32 s{sRG+1}, s{sRG+1}, 0xc0")
        I(f"v_add_u32 v{l2b}, s{sRG+1}, v{lo2}")
        I(f"v_add_u32 v{lo2}, s{sRG}, v{lo2}")
        I(f"v_add_u32 v{u(6)}, {CIMG}, v{vCP}")
        I(f"s_movk_i32 s{sA}, {LROW}")
        I(f"v_mad_u32_u24 v{lo}, v{lo2}, s{sA}, v{u(6)}")
        I(f"v_mad_u32_u24 v{lob}, v{l2b}, s{sA}, v{u(6)}")
        I(f"v_lshlrev_b32 v{lo2}, 2, v{lo2}")
        I(f"v_lshlrev_b32 v{l2b}, 2, v{l2b}")
    else:
        I(f"v_mad_u32_u24 v{go}, v{ha}, s{cR}, v{vCP}")
        I(f"v_add_u32 v{lo}, v{wl}, v{vCP}")
        I(f"v_add_u32 v{lo}, {CIMG}, v{lo}")
    assert LROW == WR
    I(f"v_bfe_u32 v{u(6)}, v{tid}, 5, 1")
    I(f"v_bfe_u32 v{u(8)}, v{tid}, 6, 1")
    I(f"v_sub_u32 v{u(6)}, v{u(6)}, v{u(8)}")
    I(f"v_mul_i32_i24 v{u(6)}, {4*WR}, v{u(6)}")
    I(f"v_add_u32 v{wl}, v{wl}, v{u(6)}")
    I(f"v_lshl_add_u32 v{wl}, v{u(7)}, 2, v{wl}")
    I(f"v_add_u32 v{wl}, {WBI}, v{wl}")
    I(f"v_lshlrev_b32 v{l16}, 4, v{lane}")
    I(f"v_and_b32 v{u(6)}, 3, v{lane}")
    I(f"v_lshlrev_b32 v{vcS}, 3, v{u(6)}")
    I(f"v_bfe_u32 v{u(9)}, v{lane}, 2, 3")
    I(f"v_lshrrev_b32 v{u(8)}, 5, v{lane}")
    I(f"v_lshl_add_u32 v{u(9)}, v{u(8)}, 4, v{u(9)}")
    I(f"v_mul_u32_u24 v{wal}, {WR}, v{u(9)}")
    I(f"v_add_u32 v{wal}, v{wal}, v{vcS}")
    mm = lambda i: sM + 8 + 2*i
    def rank_a(rs, wsrc=0, plain=False):
        for i in rs: I(f"v_mul_u32_u24 v{vBK+i}, s{cM}, v{vD+i}")
        if rs[0] // 4 < MG and not plain:
            b = rs[0]
            for i in rs: I(f"v_lshrrev_b32 v{vHA+i}, 29, v{vBK+i}")
            if opt("px", 0):
                I(f"s_waitcnt vmcnt({wsrc})")
                for i in rs:
                    I(f"v_cmp_gt_u32 vcc, {opt('px', 0)}, v{vSR+i}")
                    I("s_nop 1")
                    I(f"v_cndmask_b32 v{vHA+i}, v{vHA+i}, v{vID+(i&3)}, vcc") if False else I(f"v_cndmask_b32_e64 v{vHA+i}, v{vHA+i}, {8+(i&3)}, vcc")
            t0, t1 = sM + 24, sM + 26
            I(f"v_cmp_eq_u32 {sp(mm(b))}, v{vHA+b}, v{vHA+b+1}")
            I(f"v_cmp_eq_u32 {sp(mm(b+2))}, v{vHA+b+2}, v{vHA+b+3}")
            I(f"v_cmp_eq_u32 vcc, v{vHA+b}, v{vHA+b+2}")
            I(f"v_cmp_eq_u32 {sp(t0)}, v{vHA+b+1}, v{vHA+b+3}")
            I(f"v_cmp_eq_u32 {sp(t1)}, v{vHA+b}, v{vHA+b+3}")
            I(f"v_cmp_eq_u32 {sp(sA)}, v{vHA+b+1}, v{vHA+b+2}")
            for i in rs: I(f"v_lshrrev_b32 v{vBK+i}, 24, v{vBK+i}")
            I(f"s_or_b64 {sp(mm(b+1))}, {sp(mm(b))}, {sp(t0)}")
            I(f"s_or_b64 {sp(mm(b+3))}, {sp(mm(b+2))}, {sp(t0)}")
            I(f"s_or_b64 {sp(mm(b))}, {sp(mm(b))}, vcc")
            I(f"s_or_b64 {sp(mm(b+2))}, {sp(mm(b+2))}, vcc")
            I(f"s_or_b64 {sp(mm(b))}, {sp(mm(b))}, {sp(t1)}")
            I(f"s_or_b64 {sp(mm(b+1))}, {sp(mm(b+1))}, {sp(sA)}")
            I(f"s_or_b64 {sp(mm(b+2))}, {sp(mm(b+2))}, {sp(sA)}")
            I(f"s_or_b64 {sp(mm(b+3))}, {sp(mm(b+3))}, {sp(t1)}")
            for i in rs:
                I(f"v_cndmask_b32 v{vHA+i}, 0, v{vK1}, {sp(mm(i))}")
                I(f"v_lshl_add_u32 v{vHA+i}, v{vBK+i}, 2, v{vHA+i}")
                I(f"ds_add_rtn_u32 v{vRK1+i}, v{vHA+i}, v{one} offset:{HIST1}")
            return
        for i in rs: I(f"v_lshrrev_b32 v{vBK+i}, 24, v{vBK+i}")
        for i in rs:
            I(f"v_lshlrev_b32 v{vHA+i}, 2, v{vBK+i}")
            I(f"ds_add_rtn_u32 v{vRK1+i}, v{vHA+i}, v{one} offset:{HIST1}")
    def again(rs, wait, em):
        for i in rs:
            I(f"s_waitcnt lgkmcnt({wait})")
            I(f"s_mov_b64 exec, {sp(mm(i))}")
            I(f"v_cmpx_le_u32 vcc, {33*JE}, v{vRK1+i}")
            I(f"ds_add_rtn_u32 v{vRK1+i}, v{vHA+i}, v{one} offset:{HIST1 - 1024}")
        I(f"s_mov_b64 exec, {em}")
    def rank_b(rs):
        for i in rs:
            I(f"v_mad_i32_i24 v{vD+i}, v{vBK+i}, s{cN}, v{vD+i}")
            if opt("ro", 0): I(f"v_mad_u32_u24 v{u(6)}, s{cP}, v{vSR+i}, v{vIC+4}")
            else: I(f"v_mul_u32_u24 v{u(6)}, s{cP}, v{vSR+i}")
            I(f"v_lshl_or_b32 v{vSR+i}, v{vD+i}, 18, v{vSR+i}")
            if opt("rot", 1):
                I(f"v_and_b32 v{vD+i}, 0xe0, v{vBK+i}")
                I(f"v_mad_i32_i24 v{u(6)}, v{vD+i}, s{sSP}, v{u(6)}")
            I(f"v_and_or_b32 v{u(6)}, v{u(6)}, s{cPM}, v{icr(i)}")
            I(f"v_mad_u32_u24 v{vD+i}, v{vBK+i}, {LROW//4}, s{cN+4}")
            I(f"v_or_b32 v{vSR+i}, v{vSR+i}, v{u(6)}")
    def place(i, wait, em):
        I(f"s_waitcnt lgkmcnt({wait})")
        I(f"v_bfe_u32 v{u(6)}, v{vRK1+i}, 3, 5")
        I(f"v_add_lshl_u32 v{vD+i}, v{u(6)}, v{vD+i}, 2")
        I(f"v_and_b32 v{u(6)}, 3, v{u(6)}")
        I(f"v_mad_i32_i24 v{u(6)}, v{u(6)}, -3, v{vD+i}")
        I(f"v_cmpx_gt_u32 vcc, {33*CAP}, v{vRK1+i}")
        I(f"ds_write_b32 v{vD+i}, v{vSR+i}")
        I(f"ds_write_b8 v{u(6)}, v{idr(i)} offset:12")
        I(f"s_mov_b64 exec, {em}")
    I(f"s_movk_i32 s{cN+4}, {CIMG//4}")
    for d in range(2): I(f"v_mov_b64 {rr(vRK1+4+2*d,2)}, 0")
    I("s_waitcnt lgkmcnt(0)")
    I("s_barrier")
    if BAL:
        m3 = sM + 28
        I("s_waitcnt vmcnt(3)")
        stamp(1)
        if TS: STN.pop()
        rank_a(range(4))
        I("s_waitcnt vmcnt(2)")
        I(f"s_mov_b64 exec, {sp(m2)}")
        rank_a(range(4, 6))
        if MG: again(range(4), 5, "-1")
        else: I("s_mov_b64 exec, -1")
        I("s_waitcnt vmcnt(0)")
        rank_b(range(6))
        I(f"s_mov_b64 exec, {sp(m2)}")
        for i in range(4, 6): place(i, (1 if MG else -3) + i, sp(m2) if i < 5 else "-1")
        for i in range(4): place(i, 7 + i, "-1")
        I(f"s_mov_b64 exec, {sp(m3)}")
        I("s_cbranch_execz L_B1")
        rank_a([6]); rank_b([6]); place(6, 0, "-1")
        I("s_branch L_B1")
    I(f"s_cmp_eq_u64 {sp(m2)}, 0" if FH else f"s_cmp_ge_u32 s{sWP}, 5")
    I("s_cbranch_scc1 L_R4")
    I(f"s_waitcnt vmcnt({3+KV})")
    stamp(1)
    rank_a(range(4), 2)
    I(f"s_waitcnt vmcnt({1+KV})")
    I(f"s_mov_b64 exec, {sp(m2)}")
    rank_a(range(4, 8))
    if MG == 0:
        I("s_mov_b64 exec, -1")
        rank_b(range(4))
        for i in range(4): place(i, 7 + i, "-1" if i < 3 else sp(m2))
        I(f"s_waitcnt vmcnt({KV})")
        rank_b(range(4, 8))
        for i in range(4, 8): place(i, 7 + i, sp(m2) if i < 7 else "-1")
    elif MG == 1:
        again(range(4), 7, sp(m2))
        I(f"s_waitcnt vmcnt({KV})")
        rank_b(range(4, 8))
        for i in range(4, 8): place(i, 3 + i, sp(m2) if i < 7 else "-1")
        rank_b(range(4))
        for i in range(4): place(i, 11 + i, "-1")
    else:
        again(range(8), 7, "-1")
        rank_b(range(4))
        for i in range(4): place(i, 7 + i, "-1" if i < 3 else sp(m2))
        I(f"s_waitcnt vmcnt({KV})")
        rank_b(range(4, 8))
        for i in range(4, 8): place(i, 7 + i, sp(m2) if i < 7 else "-1")
    I("s_branch L_B1")
    L("L_R4")
    TL = opt("tl", 0)
    if TL:
        OY = 3
        I(f"s_lshl_b32 s10, s2, 7")
        I(f"v_lshl_add_u32 v{vEA}, v{lane}, {TL}, s10")
        I(f"v_lshrrev_b32 v{vEI}, 5, v{vEA}")
        I(f"s_cmp_eq_u32 s{sWP}, 7")
        I("s_cselect_b64 exec, -1, 1")
        I(f"buffer_load_dword v{vEA+1}, v{vEA}, {sq(sX)}, 0 offen")
        I(f"buffer_load_dword v{vEA+1}, v{vEI}, {sq(sEP)}, 0 idxen")
        I(f"buffer_load_dword v{vEA+1}, v{vEA}, {sq(sOUT)}, 0 offen")
        I("s_mov_b64 exec, -1")
    elif OY:
        I(f"s_cmp_ge_u32 s{sWP}, {OW0}")
        I("s_cbranch_scc1 L_R4A")
        I(f"s_waitcnt vmcnt({KV})")
        L("L_R4A")
    I(f"s_waitcnt vmcnt({1 + OY + KV})")
    if TS: STN.pop()
    stamp(1)
    YM = opt("ym", 1)
    rank_a(range(4), plain=not YM)
    I(f"s_waitcnt vmcnt({OY + KV})")
    if MG and YM:
        rank_b(range(2))
        again(range(4), 3, "-1")
        rank_b(range(2, 4))
    else: rank_b(range(4))
    for i in range(4): place(i, 3 + i, "-1")
    L("L_B1")
    if BAL:
        k_ = max(i for i, l in enumerate(out) if l.strip() == "s_cbranch_execz L_B1")
        e_ = next(i for i in range(k_, len(out)) if out[i].strip() == "s_branch L_B1")
        del out[e_:len(out)-1]
        I("s_mov_b64 exec, -1")
    WL = opt("wl", 0)
    if not WL: w_loads()
    vTG = vS + 2
    def tagcalc():
        I(f"s_add_u32 s{sK}, s{sK}, {KINC:#x}")
        I(f"v_lshlrev_b32 v{vTG}, v{vcS}, s{sK}")
        I(f"v_and_b32 v{u(1)}, 4, v{lane}")
        I(f"v_mul_u32_u24 v{u(1)}, {37 << 15}, v{u(1)}")
        I(f"v_lshl_add_u32 v{vTG}, v{u(1)}, 8, v{vTG}")
        I(f"v_and_b32 v{vTG}, 0xfe000000, v{vTG}")
    if not KV: tagcalc()
    vTH = vS + 3
    I(f"v_and_b32 v{vTH}, 7, v{lane}")
    I(f"v_mul_u32_u24 v{vTH}, 33, v{vTH}")
    I(f"v_add_u32 v{vTH}, {33*CAP}, v{vTH}")
    if not TW: I(f"v_lshlrev_b32 v{lo2}, 2, v{ha}")
    I(f"s_mov_b32 s{cM}, 0x1000000")
    I("s_waitcnt lgkmcnt(0)")
    I("s_barrier")
    stamp(2)
    vO, vHS = vQ, u(4)
    I(f"ds_read_b128 {rr(vHS,4)}, v{l16} offset:{HIST1}")
    vHD = vR + 8
    for i in range(4):
        if TW:
            I(f"ds_read_b32 v{vHD+i}, v{(lo2, l2b)[i>>1]} offset:{HIST1 + 32*(i&1)}")
            I(f"ds_read_b128 {rr(vO+4*i,4)}, v{(lo, lob)[i>>1]} offset:{8*LROW*(i&1)}")
            continue
        I(f"ds_read_b32 v{vHD+i}, v{lo2} offset:{HIST1 + 256*i}")
        I(f"ds_read_b128 {rr(vO+4*i,4)}, v{lo} offset:{64*LROW*i}")
    if KV:
        I("s_waitcnt vmcnt(4)")
        I(f"v_readfirstlane_b32 s{sK}, v{vEA+1}")
    if TW:
        for h in range(2):
            I(f"s_mul_i32 s{sM+15+2*h}, s{sRG+h}, {RS}")
            I(f"s_add_u32 s{sM+16+2*h}, s{sM+15+2*h}, {8*RS}")
    else:
        for i in range(1, 4): I(f"s_mov_b32 s{sM+15+i}, {64*RS*i}")
    if KV: tagcalc()
    I("s_waitcnt lgkmcnt(8)")
    I(f"v_max3_u32 v{u(0)}, v{vHS}, v{vHS+1}, v{vHS+2}")
    I(f"v_max_u32 v{u(0)}, v{u(0)}, v{vHS+3}")
    I(f"v_cmp_lt_u32 vcc, {33*(CAP+8)}, v{u(0)}")
    I("s_cbranch_vccnz L_POVF")
    L("L_POUT")
    for i in range(4):
        I(f"s_waitcnt lgkmcnt({7 - 2*i})")
        I(f"v_sub_u32 v{vHD+i}, v{vTH}, v{vHD+i}")
        I(f"v_and_or_b32 v{vHD+i}, v{vHD+i}, s{cM}, v{vTG}")
        I(f"s_waitcnt lgkmcnt({6 - 2*i})")
        I(f"v_or_b32 v{vO+4*i+3}, v{vO+4*i+3}, v{vHD+i}")
        I(f"buffer_store_dwordx4 {rr(vO+4*i,4)}, v{go}, {sq(sCEL)}, {f's{sM+15+i}' if i or TW else '0'} offen{pol(STP)}")
    stamp(3)
    if WL: w_loads()
    if "c" in opt("tsx", ""): I("s_waitcnt vmcnt(0)")
    stamp("c0")
    t = vACC + 32
    I(f"s_mov_b32 s{sA}, {f2u(-LOG2E):#x}")
    I(f"s_mov_b32 s{sBt}, s{sA}")
    I(f"s_mov_b32 s{cM}, 0x05040100")
    I(f"s_mov_b32 s{cP}, 0x07060302")
    def wscaled(src, off):
        for d in range(4):
            I(f"v_lshlrev_b32 v{t+2*d}, 16, v{src+d}")
            I(f"v_and_b32 v{t+2*d+1}, 0xffff0000, v{src+d}")
        for d in range(4): I(f"v_pk_mul_f32 {rr(t+2*d,2)}, {rr(t+2*d,2)}, {sp(sA)}")
        for n in range(4): I(f"v_cvt_pk_bf16_f32 v{t+8+n}, v{t+n}, v{t+4+n}")
        wput(t + 8, off)
    def wplain(src, off, tt):
        for n in range(4): I(f"v_perm_b32 v{tt+n}, v{src+2+(n>>1)}, v{src+(n>>1)}, s{cP if n & 1 else cM}")
        wput(tt, off)
    def wput(r, off):
        a = wl
        if off:
            a = r + 4
            I(f"v_add_u32 v{a}, {off}, v{wl}")
        I(f"ds_write2_b32 v{a}, v{r}, v{r+1} offset0:0 offset1:8")
        I(f"ds_write2_b32 v{a}, v{r+2}, v{r+3} offset0:16 offset1:24")
    I(f"s_waitcnt vmcnt({0 if WL else 4})")
    if PFP == 0: x_prefetch()
    stamp("b4")
    wplain(vRW + 8, WAI - WBI, t + 16)
    wscaled(vRW, 0)
    wplain(vRW + 4, WVI - WBI, t + 24)
    wplain(vRW + 12, WUI - WBI, t + 16)
    I(f"s_cmp_ge_u32 s{sWP}, 2")
    I("s_cbranch_scc1 L_NOWC")
    wscaled(vEO, WCI - WBI)
    L("L_NOWC")
    I(f"s_mul_i32 s{sTM}, s{sB}, {RS}")
    I(f"s_add_u32 s{sTM}, s{sTM}, {WS_CELL}")
    srd(sCEL, pWS, 256*128, f"s{sTM}")
    I(f"s_add_u32 s{sTM}, s{sTM}, {XOFF}")
    srd(sD2, pWS, 256*128, f"s{sTM}")
    vC, vEB = vACC + 32, vACC + 60
    pa = vT16
    def goff(d, k):
        if not TW: return I(f"s_movk_i32 s{d}, {8192*k}")
        I(f"s_sub_u32 s{d}, {64*k + 63}, s{sB}")
        I(f"s_and_b32 s{d}, s{d}, 0xc0")
        I(f"s_lshl_b32 s{d}, s{d}, 7")
    for k in range(4): goff(sCI + k, k)
    def poll_load(i):
        so = f"s{sCI+i}"
        I(f"buffer_load_dwordx4 {rr(vC+4*i,4)}, v{pa}, {sq(sCEL)}, {so} offen sc1")
    I("s_waitcnt lgkmcnt(0)")
    I("s_barrier")
    stamp(4)
    def ppoint(k):
        for i in range(4):
            if TW and int(TW[i]) == k: poll_load(i)
    ppoint(0)
    if WL == 1:
        for i in range(4): poll_load(i)
    if PFP == 1: x_prefetch()
    if OLP == 0: own_loads()
    vWA = vACC
    I(f"v_add_u32 v{wal}, {WBI}, v{wal}")
    def trw(reg, img):
        return [f"ds_read_b64_tr_b16 {rr(reg+8*n+4*s+2*uu,2)}, v{wal} offset:{img + (32*s + 8*uu)*WR + 32*n}"
                for n in range(4) for s in range(2) for uu in range(2)]
    tw = trw(vWB, 0) + trw(vWV, WVI - WBI)
    for x_ in tw[:14]: I(x_)
    prefill(vCA)
    ppoint(1)
    if WL == 2:
        for i in range(4): poll_load(i)
    for x_ in tw[14:24]: I(x_)
    nxt = 24
    I(f"v_mov_b32 v{u(4)}, v{wal}")
    I("s_mov_b32 exec_lo, 0")
    I(f"v_subrev_u32 v{u(4)}, {16*WR}, v{wal}")
    I("s_mov_b32 exec_lo, -1")
    tw += [f"ds_read_b64_tr_b16 {rr(vCA+16+4*n+2*uu,2)}, v{u(4)} offset:{WCI - WBI + 8*uu*WR + 32*n}" for n in range(4) for uu in range(2)]
    vEM, vET = vEO, vACC + 56
    ownn, owna, mapa = vEO + 1, vEO + 2, vEO + 3
    I("s_waitcnt lgkmcnt(4)")
    for x_ in tw[nxt:]: I(x_)
    I(f"v_add_u32 v{wal}, {WAI - WBI}, v{wal}")
    ppoint(2)
    vFF = vEO + 4
    vMU = vR + 8
    lo0, hi0, lo1, hi1 = sWS0, sWS1, sB0E, sSH
    def late_setup():
        I(f"v_and_b32 v{vCH}, 1, v{lane}")
        I(f"v_lshlrev_b32 v{vCH}, 4, v{vCH}")
        I(f"v_mov_b32 v{vONE}, 0x3f80")
        I(f"v_and_b32 v{vcEO}, 16, v{lane}")
        I(f"v_and_b32 v{u(6)}, 15, v{lane}")
        I(f"v_lshl_add_u32 v{u(6)}, v{u(6)}, 5, s{sES}")
        I("s_mov_b32 exec_hi, 0")
        I(f"v_add_u32 v{vcEO}, v{vcEO}, v{u(6)}")
        I("s_mov_b32 exec_hi, -1")
        I(f"v_and_b32 v{u(6)}, 3, v{lane}")
        I(f"v_bfe_u32 v{u(8)}, v{lane}, 2, 2")
        I(f"v_and_b32 v{u(9)}, 48, v{lane}")
        I(f"v_lshl_add_u32 v{u(10)}, v{u(8)}, 7, v{u(9)}")
        I(f"v_mul_u32_u24 v{vAX}, {XI}, v{u(6)}")
        I(f"v_add3_u32 v{vAX}, v{vAX}, v{u(10)}, s{sSTG}")
        listaddr(u(6))
        I(f"v_mul_u32_u24 v{vEB+3}, {CH}, v{ha}")
        for i in range(4):
            if not TW:
                I(f"v_add_u32 v{vEB+i}, {64*i*CH}, v{vEB+3}"); continue
            I(f"s_lshr_b32 s10, s{sCI+i}, 7")
            I(f"s_mul_i32 s10, s10, {CH}")
            I(f"v_add_u32 v{vEB+i}, s10, v{vEB+3}")
        I(f"s_mov_b32 s{sEM}, {EMASK:#x}")
        I(f"s_mov_b32 s{sEM+1}, {EMASK:#x}")
        vFF = vEO + 4
        I(f"v_mov_b32 v{vFF}, 0xfffff")
        I(f"v_mov_b32 v{vEM}, 0")
        I(f"v_add_lshl_u32 v{u(3)}, v{pa}, v{vCP}, 16")
        for i in range(4):
            I(f"v_add_u32 v{vET+i}, {(EARLY + 8192*i) << 16:#x}, v{u(3)}")
            I(f"v_cndmask_b32 v{vET+i}, 0, v{vET+i}, {sp(sEM)}")
        I(f"v_mov_b32 v{one}, 4")
        I(f"v_and_b32 v{ownn}, 31, v{lane}")
        I(f"v_add_lshl_u32 v{mapa}, v{ownn}, s{sWIN}, 2")
        I(f"v_lshrrev_b32 v{u(3)}, 5, v{lane}")
        I(f"v_lshl_add_u32 v{owna}, v{u(3)}, 11, v{mapa}")
        I(f"v_add_u32 v{mapa}, {MAP}, v{mapa}")
        I(f"v_lshlrev_b32 v{u(3)}, 2, v{lane}")
        I(f"v_subrev_u32 v{u(3)}, s{sWIN}, v{u(3)}")
        I("s_mov_b32 s10, 0x10000")
        for i in range(4):
            I(f"v_add_u32 v{vMU+i}, {i}, v{u(3)}")
            I(f"v_and_or_b32 v{vMU+i}, v{vMU+i}, s10, 1")
        I(f"s_movk_i32 s{sFM}, 0xffc")
        I(f"s_movk_i32 s{sSKIP}, {CAP+8}")
        I(f"s_mov_b32 s{sXT}, 0")
        I(f"s_mov_b32 s{sSP}, 0")
        I(f"s_mov_b32 s{sT}, 0x1ffffff")
        I(f"s_mov_b32 s{sN}, 0xffff")
        lo0, hi0, lo1, hi1 = sWS0, sWS1, sB0E, sSH
        I(f"s_mul_i32 s10, s{sW}, 49")
        I(f"s_sub_i32 s{lo0}, s10, 6")
        I(f"s_ashr_i32 s{lo0}, s{lo0}, 1")
        I(f"s_add_i32 s{hi0}, s10, 7")
        I(f"s_ashr_i32 s{hi0}, s{hi0}, 1")
        I(f"s_add_i32 s{lo1}, s10, 43")
        I(f"s_ashr_i32 s{lo1}, s{lo1}, 1")
        I(f"s_add_i32 s{hi1}, s{lo0}, 31")
        I(f"s_cmp_eq_u32 s{sW}, 7")
        I(f"s_cselect_b32 s{lo1}, {BN}, s{lo1}")
        I(f"s_cselect_b32 s{hi1}, {BN}, s{hi1}")
        for r_ in (hi0, lo1, hi1): I(f"s_sub_i32 s{r_}, s{r_}, s{sWIN}")
    LS = opt("ls", 0)
    if LS == 0: late_setup()
    stamp("b0")
    if opt("pw", 1) and not WL: I(f"s_waitcnt vmcnt({sum(c != '3' for c in TW)})")
    stamp("b1")
    if opt("pbar", 0): I("s_barrier")
    if TW: ppoint(3)
    elif WL in (0, 3):
        for i in range(4): poll_load(i)
    if OLP == 1: own_loads()
    if LS == 1: late_setup()
    PY = 4 if OLP == 1 else 0
    I(f"v_max3_u32 v{u(0)}, v{vRK1}, v{vRK1+1}, v{vRK1+2}")
    I(f"v_max3_u32 v{u(1)}, v{vRK1+3}, v{vRK1+4}, v{vRK1+5}")
    I(f"v_max3_u32 v{u(0)}, v{u(0)}, v{vRK1+6}, v{vRK1+7}")
    I(f"v_max_u32 v{u(0)}, v{u(0)}, v{u(1)}")
    I(f"v_cmp_le_u32 vcc, {33*CAP}, v{u(0)}")
    I("s_cbranch_vccz L_PEXTR")
    q = vCA
    if TS: I(f"v_writelane_b32 v{vTS}, 1, 61")
    I(f"v_mov_b32 v{q+1}, s{sK}")
    I(f"s_lshl_b32 s{sTM}, s2, 7")
    I(f"s_add_u32 s{sTM}, s{sTM}, {WS_CELL + XOFF}")
    for i in range(NR):
        I(f"v_subrev_u32 v{q+4}, {33*CAP}, v{vRK1+i}")
        I(f"v_cmpx_gt_u32 vcc, {33*8}, v{q+4}")
        I(f"s_cbranch_execz L_PE{i}")
        I(f"v_mov_b32 v{q}, v{vSR+i}")
        I(f"v_mov_b32 v{q+2}, v{idr(i)}")
        I(f"v_bfe_u32 v{q+4}, v{vRK1+i}, 5, 3")
        I(f"v_lshlrev_b32 v{q+4}, 4, v{q+4}")
        I(f"v_mad_u32_u24 v{q+4}, v{vBK+i}, s{cR}, v{q+4}")
        I(f"buffer_store_dwordx4 {rr(q,4)}, v{q+4}, {sq(sWS)}, s{sTM} offen sc1")
        L(f"L_PE{i}")
        I("s_mov_b64 exec, -1")
    L("L_PEXTR")
    stamp(5)
    vA, vRK, vR1 = vACC, vACC + 16, vQ
    mk = lambda i, j: sM + 2*(4*i + j)
    def rec_ops(d, x, byte, eb, a, r1):
        return [f"v_add_u32_sdwa v{r1}, v{x}, v{eb} {SDW} src0_sel:BYTE_{byte} src1_sel:DWORD",
                f"v_lshrrev_b32 v{u(1)}, 28, v{d}",
                f"v_lshl_add_u32 v{r1}, v{u(1)}, 8, v{r1}",
                f"v_and_b32 v{u(1)}, 60, v{a}",
                f"v_and_b32 v{d}, 0xffff, v{d}",
                f"v_lshl_or_b32 v{d}, v{u(1)}, 19, v{d}"]
    def spin():
        I(f"s_add_u32 s{sSP}, s{sSP}, 1")
        I(f"s_cmp_gt_u32 s{sSP}, {opt('spin', 200000)}")
        I("s_cbranch_scc1 L_END")
        if opt("slp", 1): I(f"s_sleep {opt('slp', 1)}")
    xg = vCA
    def xload(tag):
        for i in range(4):
            I(f"s_mov_b64 exec, {sp(mk(i,3))}")
            I(f"s_cbranch_execz L_XL{tag}{i}")
            goff(10, i)
            I(f"buffer_load_dwordx4 {rr(xg+4*i,4)}, v{pa}, {sq(sD2)}, s10 offen sc1")
            L(f"L_XL{tag}{i}")
        I("s_mov_b64 exec, -1")
    for i in range(4):
        c_ = vC + 4*i
        L(f"L_PW{i}")
        I(f"s_waitcnt vmcnt({3 - i + PY})")
        I(f"v_xor_b32 v{u(0)}, v{c_+3}, v{vTG}")
        for j in range(3): I(f"v_and_b32_sdwa v{vA+4*i+j}, v{c_+j}, s{sFM} {SDW} src0_sel:WORD_1 src1_sel:DWORD")
        I(f"v_cmp_lt_u32 vcc, s{sT}, v{u(0)}")
        for j in range(3): I(f"v_cmp_ne_u32 {sp(mk(i,j))}, 0, v{c_+j}")
        I(f"s_cbranch_vccnz L_RT{i}")
        if i == 3: stamp(6)
        for j in range(3):
            I(f"s_mov_b64 exec, {sp(mk(i,j))}")
            I(f"ds_add_rtn_u32 v{vRK+4*i+j}, v{vA+4*i+j}, v{one} offset:{HIST}")
        I("s_mov_b64 exec, -1")
        I(f"v_or_b32 v{vEM}, v{vEM}, v{c_+1}")
        if i == 3:
            I(f"v_or3_b32 v{u(2)}, v{vC+3}, v{vC+7}, v{vC+11}")
            I(f"v_or_b32 v{u(2)}, v{u(2)}, v{vC+15}")
            I(f"v_and_b32 v{u(2)}, 0x1000000, v{u(2)}")
            I(f"v_cmp_ne_u32 vcc, 0, v{u(2)}")
            I("s_cbranch_vccz L_XT1R")
            def xt1():
                if TS: I(f"v_writelane_b32 v{vTS}, 1, 62")
                for i in range(4):
                    I(f"v_and_b32 v{u(2)}, 0x1000000, v{vC+4*i+3}")
                    I(f"v_cmp_ne_u32 {sp(mk(i,3))}, 0, v{u(2)}")
                    I(f"s_bcnt1_i32_b64 s10, {sp(mk(i,3))}")
                    I(f"s_lshl2_add_u32 s{sXT}, s10, s{sXT}")
                xload("a")
                I(f"v_and_b32 v{u(2)}, 0x10000, v{vEM}")
                I(f"v_mov_b32 v{u(3)}, {FLAG}")
                I(f"v_cmpx_ne_u32 vcc, 0, v{u(2)}")
                I(f"ds_write_b32 v{u(3)}, v{one} offset:4")
                I("s_mov_b64 exec, 1")
                I(f"v_mov_b32 v{u(2)}, s{sXT}")
                I(f"ds_add_u32 v{u(3)}, v{u(2)} offset:8")
                I("s_mov_b64 exec, -1")
            xt1()
            L("L_XT1R")
        ro = [rec_ops(c_+j, c_+3, j, vEB+i, vA+4*i+j, vR1+4*i+j) for j in range(3)]
        e_ = vR1 + 4*i + 3
        put(ro[0])
        if JE:
            I(f"v_cndmask_b32 v{u(0)}, v{vFF}, v{vR1+4*i}, {sp(mk(i,0))}")
            I(f"v_max_u32 v{vR1+4*i}, v{vR1+4*i}, v{vET+i}")
        put(ro[1])
        if JE:
            I(f"v_mov_b32_dpp v{u(2)}, v{u(0)} quad_perm:[2,2,3,3] row_mask:0xf bank_mask:0xf")
            I(f"v_mov_b32_dpp v{e_}, v{u(0)} quad_perm:[0,0,1,1] row_mask:0xf bank_mask:0xf")
        if i < 3: put(ro[2])
        else:
            put(ro[2][:3])
            fill = [x.replace(f"v{u(1)}", f"v{vQD+3}") for x in ro[2][3:]]
        if JE: I(f"v_mov_b32_dpp v{e_}, v{u(2)} row_shr:4 row_mask:0xf bank_mask:0xa")
    I(f"v_mov_b32 v{u(9)}, {FLAG}")
    if OLP == 2: own_loads()
    if PFP == 2: x_prefetch()
    I("s_waitcnt lgkmcnt(0)")
    stamp("d0")
    I("s_barrier")
    stamp(7)
    def early(i):
        if not JE: return
        I(f"s_lshl_b32 m0, s{sWP}, 10")
        I(f"v_mov_b32 v{vEI}, v{vR1+4*i+3}")
        I(f"s_add_u32 m0, m0, {EARLY + 8192*i}")
        if JE < 4:
            I(f"s_mov_b32 exec_lo, {((1 << 2*JE) - 1) * 0x01010101:#x}")
            I("s_mov_b32 exec_hi, exec_lo")
        else: I("s_nop 0")
        I(f"buffer_load_dwordx4 {rr(vEI,2)}, {sq(sEP)}, 0 idxen offen{pol(opt('eep', ''))} lds")
        if JE < 4: I("s_mov_b64 exec, -1")
    EPOS = opt("epos", "0134")
    def epoint(k):
        for i in range(4):
            if int(EPOS[i]) == k: early(i)
    c, p, tot, sc = u(0), u(4), u(8), u(9)
    hh = vX
    own, to2, ex, z_, eh, el = u(10), u(11), u(12), u(13), u(14), u(15)
    SD = f"{SDW} src0_sel:WORD_0 src1_sel:WORD_0"
    HL = f"{SDW} src0_sel:WORD_0 src1_sel:WORD_1"
    I(f"ds_read_u16 v{own}, v{owna} offset:{HIST}")
    I(f"ds_read_u16 v{to2}, v{owna} offset:{HIST + 1024}")
    for ph in range(4):
        I(f"ds_read_b128 {rr(hh+4*ph,4)}, v{l16} offset:{HIST + 1024*ph}")
    I(f"ds_read_b32 v{vQD}, v{sc} offset:8")
    if OLP == 4: own_loads()
    epoint(0)
    I("s_cmp_lg_u32 s2, 0")
    I("s_cbranch_scc1 L_NOK")
    I(f"v_mov_b32 v{vQD+1}, s{sK}")
    I(f"v_mov_b32 v{vQD+2}, 0")
    I(f"buffer_store_dword v{vQD+1}, v{vQD+2}, {sq(sWS)}, 0 offen sc1")
    L("L_NOK")
    I("s_waitcnt lgkmcnt(5)")
    I(f"v_lshl_or_b32 v{own}, v{to2}, 16, v{own}")
    I(f"v_mov_b32 v{to2}, v{own}")
    I("s_waitcnt lgkmcnt(0)")
    stamp("d1")
    f2 = []
    for i in range(4):
        f2 += [f"v_add_u32_sdwa v{c+i}, v{hh+i}, v{hh+4+i} {SD}", f"v_add_u32_sdwa v{p+i}, v{hh+8+i}, v{hh+12+i} {SD}"]
    f2 += [f"v_add_u32 v{c+i}, v{c+i}, v{p+i}" for i in range(4)]
    wave_scan(to2, f2, half=True)
    put(f2)
    I(f"v_mul_u32_u24 v{tot}, v{c}, v{vMU}")
    for i in range(1, 4): I(f"v_mad_u32_u24 v{tot}, v{c+i}, v{vMU+i}, v{tot}")
    f2 = [f"v_sub_u32 v{ex}, v{to2}, v{own}", f"v_add_u32_sdwa v{eh}, v{to2}, v{to2} {HL}",
          f"v_add_u32_sdwa v{z_}, v{ex}, v{ex} {HL}", f"v_add_u32_sdwa v{el}, v{own}, v{own} {HL}",
          fill.pop(0), f"v_readfirstlane_b32 s{sMORE}, v{vQD}",
          f"v_permlane32_swap_b32 v{z_}, v{eh}", f"v_cndmask_b32 v{el}, 0, v{el}, {sp(sJ3)}",
          f"v_add_u32 v{z_}, v{z_}, v{eh}", fill.pop(0),
          f"v_add_u32 v{eh}, v{z_}, v{el}", fill.pop(0)]
    I(f"s_mov_b32 s{sJ3}, -1")
    I(f"s_mov_b32 s{sJ3+1}, 0")
    wave_scan(tot, f2)
    assert not f2
    stamp("d2")
    I(f"v_sub_u32_sdwa v{el}, v{eh}, v{own} {SDW} src0_sel:DWORD src1_sel:WORD_1")
    I(f"v_readlane_b32 s{sT}, v{tot}, 63")
    epoint(1)
    ASYM = opt("asym", 12)
    I(f"s_bfe_u32 s10, s{sT}, 0xe0002")
    I(f"s_lshr_b32 s{sT}, s{sT}, 16")
    I("s_lshr_b32 s11, s10, 1")
    I(f"s_add_u32 s11, s11, {4*ASYM}")
    I("s_and_b32 s11, s11, -128")
    I(f"s_lshr_b32 s{sF0}, s{sW}, 1")
    I(f"s_mul_i32 s{sF0}, s{sF0}, s10")
    I(f"s_sub_i32 s11, s11, {4*ASYM}")
    I(f"s_sub_i32 s{sF0}, s{sF0}, s{sT}")
    I(f"s_add_i32 s11, s11, s{sF0}")
    I(f"s_add_i32 s10, s10, s{sF0}")
    I(f"s_bitcmp1_b32 s{sW}, 0")
    I(f"s_cselect_b32 s{sEND}, s11, s{sF0}")
    I("s_cselect_b32 s10, s10, s11")
    I(f"v_cmp_gt_i32 vcc, s{sEND}, v{eh}")
    I(f"v_cmp_gt_i32 {sp(sTM)}, s10, v{eh}")
    f0, f1 = sWS0, sWS1
    I(f"s_bcnt1_i32_b32 s{f0}, vcc_lo")
    I(f"s_bcnt1_i32_b32 s10, s{sTM}")
    I(f"s_min_i32 s{f0}, s{f0}, s{hi0}")
    I(f"s_max_i32 s10, s10, s{lo1}")
    I(f"s_min_i32 s{f1}, s10, s{hi1}")
    stamp("d3")
    epoint(2)
    A01, A23, E01, E23, Z1 = sCI, sCUR, sR0, sCNT, sST
    I(f"v_readlane_b32 s{sT}, v{z_}, s{f0}")
    I(f"v_readlane_b32 s{Z1}, v{z_}, s{f1}")
    I(f"s_add_u32 s{sF0}, s{f0}, s{sWIN}")
    I(f"s_add_u32 s{sF1}, s{f1}, s{sWIN}")
    I(f"s_add_u32 s10, s{f0}, 32")
    I(f"s_add_u32 s11, s{f1}, 32")
    I(f"v_readlane_b32 s{A01}, v{ex}, s{f0}")
    I(f"v_readlane_b32 s{E01}, v{ex}, s{f1}")
    I(f"v_readlane_b32 s{A23}, v{ex}, s10")
    I(f"v_readlane_b32 s{E23}, v{ex}, s11")
    I(f"s_sub_u32 s{sEND}, s{Z1}, s{sT}")
    I(f"s_add_u32 s10, s{sEND}, 255")
    if opt("flr", 1):
        I(f"s_sub_i32 s11, s{f1}, 16")
        I(f"s_max_i32 s11, s11, s{f0}")
        I(f"v_readlane_b32 s11, v{z_}, s11")
        I(f"s_add_u32 vcc_lo, s{sEND}, 127")
        I(f"s_and_b32 vcc_hi, vcc_lo, 127")
        I(f"s_add_u32 vcc_hi, vcc_hi, s{sMORE}")
        I(f"s_cmp_lt_u32 vcc_hi, 55")
        I(f"s_cselect_b32 vcc_lo, vcc_lo, s10")
        I(f"s_sub_u32 s11, s11, s{sT}")
        I(f"s_add_u32 s11, s11, s{sMORE}")
        I(f"s_lshl_b32 s11, s11, 1")
        I(f"s_and_b32 vcc_lo, vcc_lo, -256")
        I(f"s_cmp_le_u32 s11, vcc_lo")
        I(f"s_cselect_b32 s10, vcc_lo, s10")
    I("s_lshr_b32 s10, s10, 8")
    I("s_lshl_b32 s10, s10, 7")
    I(f"s_sub_u32 s10, s10, s{sMORE}")
    I("s_max_i32 s10, s10, 0")
    I(f"s_add_u32 s{sT}, s{sT}, s10")
    I(f"s_add_u32 s10, s{f0}, 16")
    I(f"s_min_u32 s10, s10, s{f1}")
    I(f"s_sub_i32 s11, s{f1}, 16")
    inl, inh, mo = sTM, sTM + 2, sMSK
    I(f"v_cmp_ge_u32 {sp(inl)}, s{sT}, v{el}")
    I(f"v_cmp_ge_u32 {sp(inh)}, s{sT}, v{eh}")
    I(f"v_cmp_gt_i32 vcc, s10, v{ownn}")
    I(f"v_cmp_gt_i32 {sp(sA)}, s11, v{ownn}")
    I(f"v_cmp_le_u32 {sp(mo)}, s{f0}, v{ownn}")
    I(f"v_cmp_gt_u32 {sp(sJ3)}, s{f1}, v{ownn}")
    I(f"s_and_b64 {sp(inl)}, {sp(inl)}, vcc")
    I(f"s_and_b64 {sp(inh)}, {sp(inh)}, vcc")
    I(f"s_or_b64 {sp(inl)}, {sp(inl)}, {sp(sA)}")
    I(f"s_or_b64 {sp(inh)}, {sp(inh)}, {sp(sA)}")
    I(f"s_bcnt1_i32_b32 s{sB0E}, s{inl}")
    I(f"s_bcnt1_i32_b32 s10, s{inh}")
    I(f"s_bcnt1_i32_b32 s11, s{inl+1}")
    I(f"s_bcnt1_i32_b32 s{sSH}, s{inh+1}")
    I(f"v_readlane_b32 s{f0}, v{ex}, s{sB0E}")
    I(f"v_readlane_b32 s10, v{ex}, s10")
    I("s_add_u32 s11, s11, 32")
    I(f"s_add_u32 s{sT}, s{sSH}, 32")
    I(f"v_readlane_b32 s{f1}, v{ex}, s11")
    I(f"v_readlane_b32 s11, v{ex}, s{sT}")
    I(f"v_mov_b32 v{c}, s{sN}")
    I(f"v_cndmask_b32 v{c+1}, 0, v{c}, {sp(inl)}")
    I(f"v_cndmask_b32 v{c}, 0, v{c}, {sp(inh)}")
    I(f"s_and_b64 {sp(mo)}, {sp(mo)}, {sp(sJ3)}")
    Q01, Q23 = f0, f1
    I(f"s_pack_lh_b32_b16 s{Q01}, s{f0}, s10")
    I(f"s_pack_lh_b32_b16 s{Q23}, s{f1}, s11")
    I(f"v_lshl_or_b32 v{c}, v{c}, 16, v{c+1}")
    I(f"s_sub_u32 s{sT}, s{sL}, {R0 - BIAS}")
    I(f"s_pack_ll_b32_b16 s{sT}, s{sT}, s{sT}")
    def bases(lo01, lo23, hi01, hi23, d, keep=None):
        I(f"s_sub_u32 s10, s{hi01}, s{lo01}")
        I(f"s_sub_u32 s11, s{hi23}, s{lo23}")
        I(f"s_mul_i32 s10, s10, 0x10001")
        I(f"s_lshl_b32 vcc_lo, s10, 16")
        I(f"s_pack_hh_b32_b16 s10, s10, s10")
        I(f"s_lshl_b32 vcc_hi, s11, 16")
        I(f"s_add_u32 vcc_hi, vcc_hi, s10")
        if keep is not None:
            I(f"s_add_u32 s{keep}, vcc_hi, s11")
            I(f"s_lshr_b32 s{keep}, s{keep}, 16")
            I(f"s_sub_u32 s{sEND}, s{sEND}, s{keep}")
            I(f"s_cmp_gt_u32 s{sEND}, s{keep}")
            I(f"s_cselect_b32 s{SWP}, {LWB * 0x10001:#x}, 0")
            I(f"s_add_u32 s{sT}, s{sT}, s{SWP}")
        I(f"s_sub_u32 s10, s{sT}, s{lo01}")
        I(f"s_sub_u32 s11, s{sT}, s{lo23}")
        I("s_add_u32 s10, s10, vcc_lo")
        I("s_add_u32 s11, s11, vcc_hi")
        I(f"v_mov_b32 v{d}, s10")
        I(f"v_mov_b32 v{d+1}, s11")
    LEN0, SWP = sJ3, sJ3 + 1
    bases(A01, A23, Q01, Q23, p, LEN0)
    I(f"s_add_u32 s{sT}, s{sT}, {LWB * 0x10001:#x}")
    I(f"s_sub_u32 s{sT}, s{sT}, s{SWP}")
    I(f"s_sub_u32 s{sT}, s{sT}, s{SWP}")
    bases(Q01, Q23, E01, E23, p + 2)
    I(f"v_bfi_b32 v{p}, v{c}, v{p}, v{p+2}")
    I(f"v_bfi_b32 v{p+1}, v{c}, v{p+1}, v{p+3}")
    I(f"s_mov_b32 exec_hi, 0")
    I(f"v_mov_b32 v{p+1}, v{p}")
    I(f"s_mov_b64 exec, {sp(mo)}")
    I(f"v_add_u32 v{ex}, v{ex}, v{p+1}")
    assert LWB & 0x80
    I(f"s_bfe_u32 s10, s{SWP}, 0x10007")
    I(f"s_lshl1_add_u32 s10, s{sW}, s10")
    I("s_lshl_b32 s10, s10, 2")
    I(f"v_cndmask_b32 v{c}, 4, 0, {sp(inl)}")
    I(f"ds_write_b16 v{owna}, v{ex} offset:{HIST + 2}")
    I(f"ds_write_b16_d16_hi v{owna}, v{ex} offset:{HIST + 1024 + 2}")
    I("s_mov_b32 exec_hi, 0")
    I(f"v_xor_b32 v{c}, s10, v{c}")
    I(f"ds_write_b32 v{mapa}, v{c}")
    I("s_mov_b64 exec, -1")
    stamp("d5")
    I(f"s_min_u32 s10, s{sEND}, s{LEN0}")
    I(f"s_max_u32 s{LEN0}, s{sEND}, s{LEN0}")
    I(f"s_mov_b32 s{sEND}, s10")
    I(f"s_add_u32 s10, s{LEN0}, s{sMORE}")
    I(f"s_mul_i32 s11, s{Z1}, {LWB * 65536 // BIAS}")
    I("s_lshr_b32 s11, s11, 16")
    I("s_max_u32 s10, s10, s11")
    I(f"s_cmp_lt_u32 s10, {LWB}")
    I("s_cbranch_scc1 L_LFIT")
    I(f"ds_write_b32 v{sc}, v{one}")
    L("L_LFIT")
    I(f"s_cmp_eq_u32 s{sMORE}, 0")
    I("s_cbranch_scc1 L_XCNR")
    I(f"s_sub_u32 s10, s{sL}, {R0 - BIAS}")
    I(f"s_add_u32 s11, s10, s{LEN0}")
    I(f"v_mov_b32 v{u(0)}, s11")
    I(f"s_add_u32 s11, s10, s{sEND}")
    I(f"s_add_u32 s11, s11, {LWB}")
    I(f"v_mov_b32 v{u(1)}, s11")
    I(f"s_lshl_b32 s10, s{sW}, 3")
    I(f"v_mov_b32 v{u(2)}, s10")
    I(f"ds_write_b64 v{u(2)}, {rr(u(0),2)} offset:{CNT}")
    L("L_XCNR")
    epoint(3)
    put(fill)
    I("s_waitcnt lgkmcnt(0)")
    stamp(8)
    I("s_barrier")
    stamp(9)
    I(f"ds_read_b64 {rr(u(14),2)}, v{sc}")
    for i in range(4):
        for j in range(3):
            I(f"ds_read_u16 v{vA+4*i+j}, v{vA+4*i+j} offset:{HIST + 2}")
    epoint(4)
    def ntiles(l0, l1):
        I(f"s_add_u32 s10, s{l0}, 127")
        I("s_lshr_b32 s10, s10, 7")
        I("s_lshl1_add_u32 s10, s10, -1")
        I(f"s_add_u32 s11, s{l1}, 127")
        I("s_lshr_b32 s11, s11, 6")
        I("s_and_b32 s11, s11, -2")
        I(f"s_max_i32 s{sN}, s10, s11")
        I(f"s_cselect_b32 s10, s{l0}, s{l1}")
        I("s_sub_u32 s10, s10, 1")
        I(f"s_andn2_b32 s{sHF}, 64, s10")
    I(f"s_add_u32 s{sB0E}, s{sB0E}, s{sWIN}")
    I(f"s_add_u32 s11, s{sSH}, s{sWIN}")
    I(f"s_and_b32 s10, s11, 15")
    I(f"s_cmp_lt_u32 s11, s{sB0E}")
    I(f"s_cselect_b32 s{sSH}, s10, 16")
    I(f"s_cmp_lg_u32 s{SWP}, 0")
    I(f"s_cselect_b32 s{sWS1}, s{sF0}, s11")
    I(f"s_cselect_b32 s{sWIN}, s{sF0}, s{sB0E}")
    I(f"s_cselect_b32 s{sF0}, s11, s{sF0}")
    I(f"s_cselect_b32 s{sB0E}, s{sF1}, s{sB0E}")
    I(f"s_cselect_b32 s{sF1}, s11, s{sF1}")
    I(f"s_min_u32 s{sWS0}, s{sF0}, 192")
    I(f"s_min_u32 s{sWS1}, s{sWS1}, 192")
    I(f"s_mov_b32 s{sST}, s{sMORE}")
    I("s_waitcnt lgkmcnt(12)")
    I(f"v_cmp_ne_u32 vcc, 0, v{u(14)}")
    I(f"v_readfirstlane_b32 s{sMORE}, v{u(15)}")
    I("s_cbranch_vccnz L_OVF")
    for i in range(4):
        for j in range(3):
            s_ = 4*i + j
            if j == 0: I("s_waitcnt lgkmcnt(9)")
            I(f"s_mov_b64 exec, {sp(mk(i,j))}")
            I(f"v_add_u32 v{vA+s_}, v{vA+s_}, v{vRK+s_}")
            I(f"ds_write2st64_b32 v{vA+s_}, v{vC+s_}, v{vR1+s_} {W2}")
    I("s_mov_b64 exec, -1")
    ntiles(LEN0, sEND)
    stamp("d6")
    sO0, sO1, sNT, sOK, sCM = sOUT, sD2, sM + 8, sM + 9, sM + 12
    def epi_prep(t0, t1):
        I(f"s_lshl_b32 s{sNT}, s{sW}, 7")
        I(f"s_add_u32 s{sNT}, s{sNT}, {NT}")
        I(f"v_mov_b32 v{t0}, s{sWS0}")
        I("s_mov_b32 exec_lo, 0xffff0000")
        I(f"v_mov_b32 v{t0}, s{sWS1}")
        I("s_mov_b64 exec, 0xffffffff") if False else None
        I("s_mov_b32 exec_lo, -1")
        I("s_mov_b32 exec_hi, 0")
        I(f"v_sub_u32 v{t1}, v{lane}, v{t0}")
        I(f"v_and_b32 v{t1}, 15, v{t1}")
        I(f"v_add_lshl_u32 v{t1}, v{t1}, v{t0}, 5")
        I(f"v_lshl_add_u32 v{t0}, v{lane}, 2, s{sNT}")
        I(f"ds_write_b32 v{t0}, v{t1}")
        I("s_mov_b32 exec_hi, -1")
        I(f"s_mul_i32 s10, s{sB}, {BN}")
        for d, lo_, hi_, k in ((sO1, sWIN, sF1, 1), (sO0, sF0, sB0E, 0)):
            I(f"s_add_u32 s11, s10, s{lo_}")
            I(f"s_add_u32 s{d+2}, s10, s{hi_}")
            I(f"s_min_u32 s11, s11, {N}")
            I(f"s_min_u32 s{d+2}, s{d+2}, {N}")
            I(f"s_sub_u32 s{d+2}, s{d+2}, s11")
            I("s_lshl_b32 s11, s11, 7")
            I(f"s_lshl_b32 s{d+2}, s{d+2}, 7")
            I(f"s_add_u32 s{d}, s{sOUT}, s11")
            I(f"s_addc_u32 s{d+1}, s{sOUT+1}, 0")
            I(f"s_mul_i32 s{sOK+k}, s{lo_}, -128")
        I(f"s_and_b32 s10, s{sSH}, 12")
        I("s_lshl_b32 s10, s10, 2")
        I(f"s_bfm_b64 {sp(sCM)}, 16, s10")
    L("L_CA")
    for x_ in trw(vWA, 0): I(x_)
    I(f"s_cmp_eq_u32 s{sXT}, 0")
    I("s_cbranch_scc1 L_XT2R")
    I(f"s_waitcnt vmcnt({(4 if JE else 0) + (4 if OLP in (2, 4) else 0)})")
    L("L_XT2")
    I(f"s_mov_b64 {sp(sTM)}, 0")
    for i in range(4):
        I(f"v_cmp_ne_u32 vcc, s{sK}, v{xg+4*i+1}")
        I(f"s_and_b64 vcc, vcc, {sp(mk(i,3))}")
        I(f"s_or_b64 {sp(sTM)}, {sp(sTM)}, vcc")
    I("s_cbranch_scc1 L_XT2B")
    I(f"s_cmp_eq_u32 s{sSKIP}, 0")
    I("s_cbranch_scc1 L_XT2R")
    for i in range(4):
        g_ = xg + 4*i
        I(f"s_mov_b64 exec, {sp(mk(i,3))}")
        I(f"s_cbranch_execz L_XS{i}")
        I(f"v_bfe_u32 v{g_+1}, v{g_}, 18, 8")
        I(f"v_lshlrev_b32 v{g_+1}, 2, v{g_+1}")
        I(f"v_add_u32 v{g_+3}, {MAP}, v{g_+1}")
        I(f"ds_read_b32 v{g_+3}, v{g_+3}")
        put(rec_ops(g_, g_+2, 0, vEB+i, g_+1, g_+2))
        I("s_waitcnt lgkmcnt(0)")
        I(f"ds_add_rtn_u32 v{g_+3}, v{g_+3}, v{one} offset:{CNT}")
        I("s_waitcnt lgkmcnt(0)")
        I(f"ds_write2st64_b32 v{g_+3}, v{g_}, v{g_+2} {W2}")
        L(f"L_XS{i}")
    I("s_mov_b64 exec, -1")
    L("L_XT2R")
    aw, al, ab = vEO, vEO + 1, vEO + 2
    I(f"s_lshl_b32 s{sTM}, s{sWS0}, 5")
    I(f"s_lshl_b32 s{sTM+1}, s{sWS1}, 5")
    I(f"s_mov_b32 vcc_lo, 0xff00ff00")
    I(f"s_mov_b32 vcc_hi, 0xff00ff00")
    I(f"v_mov_b32 v{aw}, s{sTM+1}")
    I(f"v_mov_b32 v{al}, s{sTM}")
    I(f"v_cndmask_b32 v{aw}, v{aw}, v{al}, vcc")
    I(f"v_and_b32 v{al}, 4, v{lane}")
    I(f"v_lshlrev_b32 v{al}, 6, v{al}")
    I(f"v_lshl_add_u32 v{al}, v{vcS}, 2, v{al}")
    I(f"v_sub_u32 v{al}, v{al}, v{aw}")
    I(f"v_and_b32 v{ab}, 48, v{lane}")
    I(f"s_movk_i32 s{sTM}, {(PL-32)//8}")
    I(f"v_mad_u32_u24 v{ab}, v{vcS}, s{sTM}, v{ab}")
    I(f"s_mov_b32 s{sTM}, {OWN}")
    I(f"v_add3_u32 v{ab}, v{ab}, v{aw}, s{sTM}")
    I(f"v_and_b32 v{aw}, 0x1ff, v{al}")
    I(f"v_add_u32 v{aw}, v{aw}, v{ab}")
    I(f"v_add_u32 v{al}, 0x80, v{al}")
    I(f"v_and_b32 v{al}, 0x1ff, v{al}")
    I(f"v_add_u32 v{al}, v{al}, v{ab}")
    zero16 = lambda d: f"v_mfma_f32_32x32x16_bf16 {rr(d,16)}, {rr(vS,4)}, {rr(vS,4)}, 0"
    for i in range(2): I(f"v_mov_b64 {rr(vS+2*i,2)}, 0")
    I(f"v_lshrrev_b32 v{u(0)}, 2, v{lane}")
    I(f"v_and_b32 v{u(0)}, 12, v{u(0)}")
    I(f"v_subrev_u32 v{u(0)}, s{sSH}, v{u(0)}")
    I(f"v_mov_b32 v{u(1)}, {f2u(1e-6):#x}")
    I(zero16(NUM(1,0)))
    for i in range(4): I(f"v_cmp_ne_u32 {sp(sM+16+2*i)}, {-i}, v{u(0)}")
    for i in range(4): I(f"v_cndmask_b32 v{DEN(1,0)+i}, 0, v{u(1)}, {sp(sM+16+2*i)}")
    for n in range(1, 4):
        for i in range(2): I(f"v_mov_b64 {rr(DEN(1,n)+2*i,2)}, {rr(DEN(1,0)+2*i,2)}")
    I(f"s_cmp_ge_u32 s{sWP}, 4")
    I("s_cbranch_scc1 L_EP0")
    epi_prep(u(2), u(3))
    L("L_EP0")
    stamp("d7")
    I("s_waitcnt vmcnt(0) lgkmcnt(0)")
    stamp(10)
    I("s_barrier")
    def lens_from_cnt(t):
        I(f"s_lshl_b32 s10, s{sW}, 3")
        I(f"v_mov_b32 v{t}, s10")
        I(f"ds_read_b64 {rr(t,2)}, v{t} offset:{CNT}")
        I("s_waitcnt lgkmcnt(0)")
        I(f"v_readfirstlane_b32 s{sTM}, v{t}")
        I(f"v_readfirstlane_b32 s{sTM+1}, v{t+1}")
        I(f"s_sub_u32 s10, s{sL}, {R0 - BIAS}")
        I(f"s_sub_u32 s{sTM}, s{sTM}, s10")
        I(f"s_sub_u32 s{sTM+1}, s{sTM+1}, s10")
        I(f"s_sub_u32 s{sTM+1}, s{sTM+1}, {LWB}")
        ntiles(sTM, sTM + 1)
    I(f"s_mov_b32 s10, {f2u(1e-6):#x}")
    I(f"ds_read_b128 {rr(vQD,4)}, v{vARX}")
    I(f"ds_read_b32 v{vEI}, v{vARE}")
    stamp(11)
    for t_ in range(2):
        for s in range(2): I(f"ds_read_b128 {rr(vX+8*t_+4*s,4)}, v{(aw, al)[t_]} offset:{64*s}")
    I("s_waitcnt lgkmcnt(4)")
    STAG = opt("stag", 1)
    if STAG != 2:
        I(f"s_cmp_ge_u32 s{sWP}, 4")
        I("s_cbranch_scc1 L_LATE0")
    put(dma_tile())
    L("L_LATE0")
    I(f"s_mov_b32 s{sTM}, {f2u(-LOG2E):#x}")
    I(f"s_mov_b32 s{sTM+1}, s{sTM}")
    for t_ in range(2):
        for s in range(2):
            I(f"s_waitcnt lgkmcnt({3 - 2*t_ - s})")
            for n in range(4):
                D = vQ + 8*n + 4*t_
                I(m16(D, vX+8*t_+4*s, vWA+8*n+4*s, D if s else None))
    if STAG == 3:
        I(f"s_cmp_lt_u32 s{sWP}, 4")
        I("s_cbranch_scc1 L_HAD1")
        put(dma_tile())
        L("L_HAD1")
    I("s_mov_b32 s11, s10")
    for i in range(8): I(f"v_mov_b64 {rr(DEN(0,0)+2*i,2)}, {sp(10)}")
    for i in range(16): I(f"v_pk_mul_f32 {rr(vQ+2*i,2)}, {rr(vQ+2*i,2)}, {sp(sTM)}")
    I(zero16(NUM(0,0)))
    for i in range(16): I(f"v_cvt_pk_bf16_f32 v{vCA+i}, v{vQ+2*i}, v{vQ+2*i+1}")
    for i in range(16): I(f"v_permlane32_swap_b32 v{vCA+16+i}, v{vCA+i}")
    I(f"s_mov_b32 s{sCI}, -1")
    I(f"s_mov_b64 {sp(sMSK)}, 0")
    I(f"s_mov_b32 s{sR0}, 0")
    I(f"s_mov_b32 s{sCNT}, 0")
    if STAG:
        I(f"s_cmp_lt_u32 s{sWP}, 4")
        I("s_cbranch_scc1 L_HAD0")
        if STAG == 1: put(dma_tile())
        epi_prep(u(2), u(3))
        if STAG == 4: put(dma_tile())
        L("L_HAD0")
    I(f"s_cmp_eq_u32 s{sST}, 0")
    I("s_cbranch_scc1 L_GO")
    lens_from_cnt(u(0))
    L("L_GO")
    for m in range(2): I(f"ds_read_u16 v{vEA+m}, v{vARO} offset:{64*m}")
    q1 = [f"ds_read_b128 {rr(vQD,4)}, v{vARX} offset:{LWB}", f"ds_read_b32 v{vEI}, v{vARE} offset:{LWB}"]
    if STAG != 5: put(q1)
    I(f"s_lshr_b32 s10, s{sW}, 1")
    I("s_lshl_b32 s10, s10, 9")
    I(f"s_add_u32 s10, s10, {PRG}")
    assert PRG % 32 == 0
    I(f"v_lshl_add_u32 v{vPA}, v{lane}, 3, s10")
    I(f"s_bitcmp1_b32 s{sW}, 0")
    I(f"s_cselect_b32 s{sSG}, -1, 1")
    I(f"s_mul_i32 s10, s{sSG}, {-(1 << (25 if F2 else 24)) & 0xffffffff:#x}")
    I("s_or_b32 s10, s10, 0xdddd")
    I(f"v_mov_b32 v{vIDX}, s10")
    I(f"s_max_i32 s10, s{sN}, 1")
    I("s_sub_u32 s10, s10, 1")
    I(f"s_mul_i32 s10, s{sSG}, s10")
    I("s_lshl_b32 s10, s10, 24")
    I(f"v_mov_b32 v{u(0)}, s10")
    I(f"ds_add_u32 v{vPA}, v{u(0)}")
    I(f"s_movk_i32 s{sINC}, 128")
    I(f"s_movk_i32 s{sINC+1}, 128")
    I(f"v_mov_b32 v{vC1}, 0")
    I("s_mov_b32 exec_hi, 0")
    I(f"v_add_u32 v{vC1}, 0x200, v{vcEO}")
    I("s_mov_b32 exec_hi, -1")
    I("s_waitcnt lgkmcnt(0)")
    put(eafix())
    if STAG == 5:
        I(f"s_cmp_lt_u32 s{sWP}, 4")
        I("s_cbranch_scc1 L_HAD2")
        I(f"s_cmp_lg_u32 s{sCI}, -1")
        I("s_cbranch_scc1 L_HAD2")
        put(dma_tile())
        L("L_HAD2")
        put(q1)
    stamp(12)
    I("s_waitcnt vmcnt(0)")
    stamp(13)
    cstamp(56)
    for m in range(2): I(f"ds_read_b128 {rr(vEO+4*m,4)}, v{vEA+m}")
    for m, s in ORD: I(xread(m, s))
    I(f"s_cmp_lt_i32 s{sN}, 1")
    I("s_cbranch_scc1 L_DONE")
    g = g_mfmas(vP, 0, 0)
    I("s_waitcnt lgkmcnt(4)")
    for x_ in g[:4]: I(x_)
    I("s_waitcnt lgkmcnt(0)")
    for x_ in g[4:]: I(x_)
    I(f"s_mov_b32 s{sT}, 1")
    I(f"s_cmp_eq_u32 s{sN}, 1")
    I("s_cbranch_scc1 L_LT0")
    put(dma_tile())
    for cp in ((1, 0) if FAIR else (0,)):
        sw = lambda par: [f"s_cmp_ge_i32 s{sRM}, {opt('fth', 1)}", f"s_cbranch_scc{1-cp} L_PB{par}{1-cp}", f"L_PB{par}{cp}:"] if FAIR and (par == 0 or not F2) else []
        body = phase(0, 0, cp) + sw(0) + phase(0, 1, cp) + [f"s_cmp_ge_u32 s{sT}, s{sN}", "s_cbranch_scc1 L_LT1"]
        body += phase(1, 0, cp) + sw(1) + phase(1, 1, cp) + [f"s_cmp_lt_u32 s{sT}, s{sN}", f"s_cbranch_scc1 L_LOOP{cp}"]
        check_body(body)
        DBG = opt("dbg", "")
        if "nodma" in DBG: body = [b for b in body if not b.startswith("buffer_load")]
        if "dropS" in DBG: body = [b for b in body if not b.startswith("v_smfmac")]
        if "halfrcp" in DBG: body = [b for b in body if not (b.startswith("v_rcp") and int(b.split("v")[-1]) & 1)]
        if "droppk" in DBG: body = [b for b in body if not b.startswith("v_pk_mul")]
        if "halfx" in DBG: body = [b for b in body if not (b.startswith("v_mfma") and (f"v[{vX+4}:" in b or f"v[{vX+12}:" in b))]
        if "nolds" in DBG: body = [b for b in body if not (b.startswith("ds_read_b128") and f"v{vAX}" in b)]
        if opt("al", 0): body = align8(body, opt("al", 0))
        emit(".p2align 6")
        if opt("sh4", 0): I("s_nop 0")
        L(f"L_LOOP{cp}")
        put(body)
        I("s_branch L_LT0")
    if opt("cpe", 0):
        I("s_branch L_LT0")
        for cp in ((1, 0) if FAIR else (0,)):
            for par in range(2):
                L(f"L_CE{par}{cp}")
                I(f"s_getpc_b64 {sp(sA)}")
                I(f"v_and_b32 v{vEI}, 0xfc, v{vPA}")
                I(f"v_lshlrev_b32 v{vEI}, 5, v{vEI}")
                I(f"global_load_dword v{vEI}, v{vEI}, {sp(sA)}")
                I(f"s_branch L_ND{par}{cp}")
    assert STAG
    e = lambda i: vCA + i
    xd = vWV
    ZR = [vP, vWV + 16]
    nd = lambda w, i: e(16 + 4*w + i)
    sO = [sO0, sO1]
    wu = [f"ds_read_b64_tr_b16 {rr(vWB+8*n+4*s+2*uu,2)}, v{e(1)} offset:{(32*s + 8*uu)*WR + 32*n}" for s in range(2) for n in range(4) for uu in range(2)]
    lid = [f"v_mbcnt_lo_u32_b32 v{lane}, -1, 0", f"v_mbcnt_hi_u32_b32 v{lane}, -1, v{lane}", f"v_and_b32 v{vcS}, 24, v{vPA}"]
    a1 = [f"v_and_b32 v{e(0)}, 48, v{lane}", f"v_and_b32 v{e(3)}, 15, v{lane}",
          f"v_add_u32 v{e(5)}, s{sNT}, v{e(0)}", f"v_lshl_add_u32 v{e(6)}, v{e(3)}, 2, s{sNT}"]
    a1 += [f"ds_read_b128 {rr(nd(w,0),4)}, v{e(5)} offset:{64*w}" for w in range(2)]
    a1 += [f"ds_read2_b32 {rr(e(8),2)}, v{e(6)} offset0:0 offset1:16",
           f"v_bfe_u32 v{e(1)}, v{lane}, 2, 3", f"v_lshrrev_b32 v{e(2)}, 5, v{lane}", f"v_lshl_add_u32 v{e(1)}, v{e(2)}, 4, v{e(1)}",
           f"v_mul_u32_u24 v{e(1)}, {WR}, v{e(1)}", f"s_mov_b32 s10, {WUI}", f"v_add3_u32 v{e(1)}, v{e(1)}, v{vcS}, s10"]
    a1 += wu[:12]
    a1 += [f"s_movk_i32 s10, {(PL-32)//8}", f"v_mad_u32_u24 v{e(0)}, v{vcS}, s10, v{e(0)}",
           f"s_mov_b32 s10, {OWN}", f"v_lshl_add_u32 v{e(5)}, v{e(3)}, 3, s10"]
    a1 += [f"v_lshl_add_u32 v{e(10+w)}, v{e(3)}, 3, s{sOK+w}" for w in range(2)]
    a1 += ["s_waitcnt lgkmcnt(8)"] + wu[12:]
    a2 = []
    for w in range(2):
        for i in range(4):
            a2 += [f"v_add_u32 v{e(12)}, v{nd(w,i)}, v{e(5)}", f"ds_read_b64 {rr(xd+8*w+2*i,2)}, v{e(12)} offset:{i*(PL-32)}"]
    for w in range(2):
        a2 += [f"v_add3_u32 v{e(8+w)}, v{e(8+w)}, v{e(0)}, s10"]
        a2 += [f"ds_read_b128 {rr(vX+8*w+4*s,4)}, v{e(8+w)} offset:{64*s}" for s in range(2)]
    def unp(w, n): return [(f"v_and_b32 v{ZR[w]+4*n+i}, 0xffff0000, v{xd+8*w+2*i+(n>>1)}" if n & 1 else
                            f"v_lshlrev_b32 v{ZR[w]+4*n+i}, 16, v{xd+8*w+2*i+(n>>1)}") for i in range(4)]
    blk = [(w, n) for w in range(2) for n in range(4)]
    a3 = [["s_waitcnt lgkmcnt(0)"] + unp(0, 0) + unp(0, 1)]
    for k, (w, n) in enumerate(blk):
        a3[-1] += [m16(ZR[w]+4*n, vX+8*w, vWB+8*n, ZR[w]+4*n)]
        a3.append((unp(*blk[k+2]) if k + 2 < 8 else []) + [f"v_lshl_add_u32 v{nd(w,n)}, v{nd(w,n)}, 2, v{e(10+w)}",
                  m16(ZR[w]+4*n, vX+8*w+4, vWB+8*n+4, ZR[w]+4*n)])
        if k < 7: a3.append([])
    ME = opt("me", 0)
    if ME:
        for par in range(2):
            L(f"L_LB{par}")
            put(last_tile(par, 0, only_b=True))
            I("s_branch L_DONE")
    for par in range(2):
        L(f"L_LT{par}")
        I(f"s_cmp_lg_u32 s{sHF}, 0")
        I(f"s_cbranch_scc1 L_LH{par}")
        for half in range(2):
            if half: L(f"L_LH{par}")
            put(last_tile(par, half, (lid + a1, a2, a3) if ME else None))
            I("s_branch L_EPB" if ME else "s_branch L_DONE")
    L("L_DONE")
    put(lid)
    I(f"s_cmp_lg_u32 s{sMORE}, 0")
    I("s_cbranch_scc1 L_SLOW")
    L("L_EPI")
    I("s_waitcnt lgkmcnt(0)")
    put(a1 + a2 + sum(a3, []))
    L("L_EPB")
    stamp(14)
    cstamp(57)
    I(f"s_setprio {opt('epr', 0)}")
    I(f"s_mov_b64 exec, {sp(sCM)}")
    I(f"s_and_b32 s11, s{sSH}, 19")
    I("s_nop 2")
    for i in range(4):
        I(f"s_cmp_eq_u32 s11, {i}")
        I(f"s_cbranch_scc1 L_NS{i}")
    L("L_NSR")
    I("s_mov_b64 exec, -1")
    for w in range(2):
        for k in range(16): I(f"v_rcp_f32 v{DEN(w,0)+k}, v{DEN(w,0)+k}")
        for k in range(0, 16, 2): I(f"v_pk_fma_f32 {rr(NUM(w,0)+k,2)}, {rr(NUM(w,0)+k,2)}, {rr(DEN(w,0)+k,2)}, {rr(ZR[w]+k,2)}")
        for i in range(4):
            for h in range(2): I(f"v_cvt_pk_bf16_f32 v{DEN(w,0)+2*i+h}, v{NUM(w,2*h)+i}, v{NUM(w,2*h+1)+i}")
            for h in range(2):
                I(f"v_pk_max_f16 v{DEN(w,0)+2*i+h}, v{DEN(w,0)+2*i+h}, v{xd+8*w+2*i+h}")
            I(f"buffer_store_dwordx2 {rr(DEN(w,0)+2*i,2)}, v{nd(w,i)}, {sq(sO[w])}, 0 offen{pol(OP)}")
    stamp("e2")
    stamp_out()
    L("L_END")
    I("s_endpgm")
    for i in range(4):
        L(f"L_NS{i}")
        for k in range(8): I(f"v_add_f32 v{vACC+4*k+i}, v{vACC+4*k+i}, v{vACC+32+4*k+i}")
        I("s_branch L_NSR")
    for i in range(4):
        L(f"L_RT{i}")
        I("s_waitcnt vmcnt(0)")
        spin()
        for k in range(i, 4): poll_load(k)
        I("s_waitcnt vmcnt(0)")
        I(f"s_branch L_PW{i}")
    L("L_XT2B")
    spin()
    xload("b")
    I("s_waitcnt vmcnt(0)")
    I("s_branch L_XT2")
    L("L_OVF")
    I(f"s_mov_b32 s{sSKIP}, 0")
    I(f"s_mov_b32 s{sN}, 0")
    I(f"s_mov_b32 s{sST}, 0")
    I(f"s_mov_b32 s{sMORE}, 4")
    I("s_waitcnt lgkmcnt(0)")
    I("s_branch L_CA")
    q = vCA
    L("L_POVF")
    I("s_movk_i32 s11, 1986")
    for i in range(4):
        I(f"v_mul_u32_u24 v{q+i}, s11, v{vHS+i}")
        I(f"v_lshrrev_b32 v{q+i}, 16, v{q+i}")
    I(f"v_add_u32 v{q+5}, v{q}, v{q+1}")
    I(f"v_add_u32 v{q+6}, v{q+5}, v{q+2}")
    I(f"v_add_u32 v{q+7}, v{q+6}, v{q+3}")
    I(f"v_mov_b32 v{q+8}, v{q+7}")
    wave_scan(q + 8)
    I("s_nop 0")
    I(f"v_sub_u32 v{q+4}, v{q+8}, v{q+7}")
    I(f"v_add_u32 v{q+7}, v{q+4}, v{q+6}")
    I(f"v_add_u32 v{q+6}, v{q+4}, v{q+5}")
    I(f"v_add_u32 v{q+5}, v{q+4}, v{q}")
    for i in range(4): I(f"v_lshl_or_b32 v{q+4+i}, v{q+i}, 16, v{q+4+i}")
    I(f"v_add_u32 v{q+8}, {HDR}, v{l16}")
    I(f"ds_write_b128 v{q+8}, {rr(q+4,4)}")
    I("s_lshl_b32 s10, s2, 10")
    I(f"s_add_u32 s10, s10, {WS_HD}")
    I(f"buffer_store_dwordx4 {rr(q+4,4)}, v{l16}, {sq(sWS)}, s10 offen sc1")
    for i in range(8):
        I(f"v_and_b32 v{q+10+i}, 0x3fc, v{vHA+i}")
        I(f"v_add_u32 v{q+10+i}, {HDR}, v{q+10+i}")
        I(f"ds_read_u16 v{q+10+i}, v{q+10+i}")
    I("s_waitcnt lgkmcnt(0)")
    for i in range(4):
        I(f"v_cmpx_lt_u32 vcc, {33*(CAP+8)}, v{vHD+i}")
        I(f"v_or_b32 v{vO+4*i+1}, 0x10000, v{vO+4*i+1}")
        I("s_mov_b64 exec, -1")
    I(f"s_mul_i32 s10, s2, {DCH}")
    I(f"s_mov_b32 s{sTM}, {WS_RECS}")
    I(f"s_mov_b32 s{sTM+1}, {WS_LEID}")
    for i in range(NR):
        I(f"v_mul_u32_u24 v{q}, s11, v{vRK1+i}")
        I(f"v_lshrrev_b32 v{q}, 16, v{q}")
        I(f"v_add3_u32 v{q}, v{q}, v{q+10+i}, s10")
        I(f"v_lshlrev_b32 v{q+1}, 2, v{q}")
        I(f"v_cmpx_le_u32 vcc, {33*(CAP+8)}, v{vRK1+i}")
        I(f"s_cbranch_execz L_PO{i}")
        I(f"buffer_store_byte v{idr(i)}, v{q}, {sq(sWS)}, s{sTM+1} offen sc1")
        I(f"buffer_store_dword v{vSR+i}, v{q+1}, {sq(sWS)}, s{sTM} offen sc1")
        L(f"L_PO{i}")
        I("s_mov_b64 exec, -1")
    I("s_waitcnt vmcnt(0) lgkmcnt(0)")
    I("s_barrier")
    I("s_branch L_POUT")
    SB = 288
    t0, t1, t2, t3 = vP, vP+1, vP+2, vP+3
    L("L_SLOW")
    I("s_setprio 0")
    I(f"s_lshl_b32 s10, s{sWP}, 6")
    I(f"v_add_u32 v{tid}, s10, v{lane}")
    I(f"s_cmp_lg_u32 s{sMORE}, 4")
    I("s_cbranch_scc1 L_SL1")
    I(f"s_mov_b32 s{sMORE}, 1")
    I(f"v_and_b32 v{t0}, 0xff, v{tid}")
    I(f"v_lshlrev_b32 v{t1}, 7, v{t0}")
    I(f"buffer_load_dword v{t2}, v{t1}, {sq(sCEL)}, 0 offen offset:4 sc1")
    I(f"v_lshlrev_b32 v{t1}, 10, v{t0}")
    I(f"s_lshl_b32 s10, s{sB}, 2")
    I(f"s_add_u32 s10, s10, {WS_HD}")
    I(f"buffer_load_dword v{t3}, v{t1}, {sq(sWS)}, s10 offen sc1")
    I(f"v_lshlrev_b32 v{t0}, 2, v{t0}")
    I(f"v_add_u32 v{t0}, {HDR}, v{t0}")
    I("s_waitcnt vmcnt(0)")
    I(f"v_and_b32 v{t2}, 0x10000, v{t2}")
    I(f"v_cmp_ne_u32 vcc, 0, v{t2}")
    I(f"v_mov_b32 v{t2}, {(CAP+8) << 16}")
    I("s_nop 0")
    I(f"v_cndmask_b32 v{t2}, v{t2}, v{t3}, vcc")
    I(f"ds_write_b32 v{t0}, v{t2}")
    I("s_waitcnt lgkmcnt(0)")
    I("s_barrier")
    L("L_SL1")
    I(f"s_add_u32 s{sR0}, s{sR0}, {SB}")
    I(f"s_cmp_lt_u32 s{sR0}, s{sCNT}")
    I("s_cbranch_scc1 L_BATCH")
    L("L_FIND")
    I(f"s_cmp_lg_u64 {sp(sMSK)}, 0")
    I("s_cbranch_scc1 L_GOT")
    I(f"s_add_u32 s{sCI}, s{sCI}, 1")
    I(f"s_cmp_ge_u32 s{sCI}, 4")
    I("s_cbranch_scc1 L_EPI")
    I(f"s_lshl_b32 s10, s{sCI}, 8")
    I(f"s_add_u32 s10, s10, {HDR}")
    I(f"v_lshl_add_u32 v{t0}, v{lane}, 2, s10")
    I(f"ds_read_u16 v{t0}, v{t0} offset:2")
    I("s_waitcnt lgkmcnt(0)")
    I(f"v_cmp_lt_u32 {sp(sMSK)}, s{sSKIP}, v{t0}")
    I("s_nop 3")
    I("s_branch L_FIND")
    L("L_GOT")
    I(f"s_ff1_i32_b64 s10, {sp(sMSK)}")
    I(f"s_bitset0_b64 {sp(sMSK)}, s10")
    I(f"s_lshl_b32 s11, s{sCI}, 6")
    I(f"s_add_u32 s{sCUR}, s10, s11")
    I(f"s_lshl_b32 s10, s{sCUR}, 2")
    I(f"s_add_u32 s10, s10, {HDR}")
    I(f"v_mov_b32 v{t0}, s10")
    I(f"ds_read_b32 v{t0}, v{t0}")
    I("s_waitcnt lgkmcnt(0)")
    I(f"v_readfirstlane_b32 s10, v{t0}")
    I("s_nop 3")
    I(f"s_lshr_b32 s{sCNT}, s10, 16")
    I(f"s_and_b32 s{sST}, s10, 0xffff")
    I(f"s_mov_b32 s{sR0}, s{sSKIP}")
    L("L_BATCH")
    I("s_waitcnt vmcnt(0)")
    I("s_barrier")
    prefill(vP + 4)
    I(f"v_and_b32 v{t0}, 15, v{lane}")
    I(f"v_mul_u32_u24 v{t1}, {LWB}, v{t0}")
    I(f"v_add_u32 v{t1}, {BIAS}, v{t1}")
    I(f"v_lshlrev_b32 v{t0}, 2, v{t0}")
    I(f"ds_write_b32 v{t0}, v{t1} offset:{CNT}")
    t1, t4, t5 = vQ, vQ + 2, vQ + 3
    I(f"v_add_u32 v{t0}, s{sR0}, v{tid}")
    I(f"s_mul_i32 s{sTM+2}, s{sCUR}, {CH}")
    I(f"s_mul_i32 s11, s{sCUR}, {DCH}")
    I(f"s_add_u32 s11, s11, s{sST}")
    I(f"s_lshl_b32 s{sTM}, s11, 2")
    I(f"s_add_u32 s{sTM}, s{sTM}, {WS_RECS}")
    I(f"v_lshl_add_u32 v{t2}, v{t0}, 2, s{sTM}")
    I(f"s_add_u32 s{sTM}, s11, {WS_LEID}")
    I(f"v_add_u32 v{t3}, s{sTM}, v{t0}")
    I(f"s_mul_i32 s10, s{sB}, {RS}")
    I(f"s_lshl_b32 s{sTM}, s{sCUR}, 7")
    I(f"s_add_u32 s10, s10, s{sTM}")
    I(f"s_add_u32 s10, s10, {WS_CELL}")
    I(f"v_and_b32 v{t4}, 7, v{t0}")
    I(f"v_lshl_add_u32 v{t4}, v{t4}, 4, s10")
    I(f"v_lshrrev_b32 v{t5}, 3, v{t0}")
    I(f"v_cmpx_gt_u32 vcc, {CAP+8}, v{t0}")
    I(f"v_add_u32 v{t2}, {XOFF}, v{t4}")
    I(f"v_add_u32 v{t3}, 8, v{t2}")
    I(f"v_cmpx_gt_u32 vcc, {CAP}, v{t0}")
    I(f"v_lshl_add_u32 v{t2}, v{t5}, 2, v{t4}")
    I(f"v_add3_u32 v{t3}, v{t4}, v{t5}, 12")
    I("s_mov_b64 exec, -1")
    I(f"s_add_u32 s10, s{sR0}, {SB}")
    I(f"s_min_u32 s10, s10, s{sCNT}")
    I(f"v_cmp_gt_u32 vcc, s10, v{t0}")
    I(f"v_mov_b32 v{t4}, 0x7ffffff0")
    I("s_nop 0")
    I(f"v_cndmask_b32 v{t2}, v{t4}, v{t2}, vcc")
    I(f"v_cndmask_b32 v{t3}, v{t4}, v{t3}, vcc")
    I(f"buffer_load_dwordx2 {rr(t1,2)}, v{t2}, {sq(sWS)}, 0 offen sc1")
    I(f"buffer_load_ubyte v{t3}, v{t3}, {sq(sWS)}, 0 offen sc1")
    I("s_waitcnt lgkmcnt(0)")
    I("s_barrier")
    I("s_waitcnt vmcnt(0)")
    I(f"v_cmp_ne_u32 vcc, 3, v{t5}")
    I(f"v_cmp_eq_u32 {sp(sA)}, s{sK}, v{t1+1}")
    I(f"v_mov_b32 v{t4}, s{sTM+2}")
    I(f"s_or_b64 exec, vcc, {sp(sA)}")
    I(f"v_cmpx_ne_u32 vcc, 0, v{t1}")
    I(f"v_bfe_u32 v{t2}, v{t1}, 18, 8")
    I(f"v_lshlrev_b32 v{t2}, 2, v{t2}")
    I(f"v_add_u32 v{t0}, {MAP}, v{t2}")
    I(f"ds_read_b32 v{t0}, v{t0}")
    put(rec_ops(t1, t3, 0, t4, t2, t3))
    I(f"v_mov_b32 v{t2}, 4")
    I("s_waitcnt lgkmcnt(0)")
    I(f"ds_add_rtn_u32 v{t0}, v{t0}, v{t2} offset:{CNT}")
    I("s_waitcnt lgkmcnt(0)")
    I(f"ds_write2st64_b32 v{t0}, v{t1}, v{t3} {W2}")
    I("s_mov_b64 exec, -1")
    I("s_waitcnt lgkmcnt(0)")
    I("s_barrier")
    listaddr(t2)
    I(f"ds_read_b128 {rr(vQD,4)}, v{vARX}")
    I(f"ds_read_b32 v{vEI}, v{vARE}")
    lens_from_cnt(t2)
    for r_ in (vQ, vQ + 2, vS, vS + 2): I(f"v_mov_b64 {rr(r_,2)}, 0")
    put(dma_tile())
    L("L_LAST")
    I("s_branch L_GO")

def regs_of(tok):
    tok = tok.strip()
    m = re.fullmatch(r"v\[(\d+):(\d+)\]", tok)
    if m: return list(range(int(m.group(1)), int(m.group(2)) + 1))
    m = re.fullmatch(r"v(\d+)", tok)
    if m: return [int(m.group(1))]
    return []
def parse(ins):
    op, _, rest = ins.partition(" ")
    ops = [o.strip().split(" ")[0] for o in rest.split(",")] if rest else []
    if op.startswith("ds_read") or "rtn" in op: return "ds", regs_of(ops[0]), regs_of(ops[1])
    return "other", [], sum((regs_of(o) for o in ops), [])
def check_body(body):
    s2 = [b for b in body if not b.endswith(":")]
    pend = []
    for i, ins in enumerate(s2 * 3):
        k, d, s = parse(ins)
        m = re.search(r"lgkmcnt\((\d+)\)", ins)
        if m:
            while len(pend) > int(m.group(1)): pend.pop(0)
        pr = set(sum(pend, []))
        for r in d + s:
            assert r not in pr, f"pending LDS reg v{r} used by {ins} @{i}"
        if k == "ds":
            pend.append(d); assert len(pend) <= 15

hdr = open("/code/" + NAME + ".s.ref").read().split("\n")
for l in hdr:
    if l.startswith("; Override"): break
    out.append(l)
if opt("list", 0): out.append(f"; @launch kernel={NAME}_kernel grid=(256,1,1) block=(512,1,1) lds={LDS}")
else: out.append(f"; @launch grid=(256,1,1) block=(512,1,1) lds={LDS}")
LEAK = opt("leak", "")
if LEAK: out.append("; @launch kernel=leak_kernel grid=(1,1,1) block=(256,1,1) lds=64")
emit('.amdgcn_target "amdgcn-amd-amdhsa--gfx950"\n.text')
kernel()
if LEAK:
    kind, nm = LEAK[0], LEAK[1:]
    PT = opt("pt", 0)
    si = STN.index(nm)
    emit(".globl leak_kernel\n.p2align 8\n.type leak_kernel,@function\nleak_kernel:")
    I("s_cmp_lg_u32 s2, 0")
    I("s_cbranch_scc1 LK_END")
    I("s_load_dwordx2 s[4:5], s[0:1], 88")
    I("v_min_u32 v1, 254, v0")
    I("v_lshlrev_b32 v1, 11, v1")
    I("v_mov_b32 v2, 0")
    I("v_mov_b32 v3, 0x7fffffff")
    I("v_mov_b32 v4, 0")
    I("ds_write2_b32 v2, v3, v4 offset0:0 offset1:1")
    I("s_waitcnt lgkmcnt(0)")
    I(f"s_add_u32 s4, s4, {WS_TS}")
    I("s_addc_u32 s5, s5, 0")
    I("global_load_dword v5, v2, s[4:5]")
    for w in range(8):
        I(f"global_load_dword v{8+w}, v1, s[4:5] offset:{256*w}")
        I(f"global_load_dword v{16+w}, v1, s[4:5] offset:{256*w + 4*si}")
    I("s_barrier")
    I("s_waitcnt vmcnt(0)")
    I("v_subrev_u32 v5, 1000, v5")
    for w in range(16): I(f"v_sub_u32 v{8+w}, v{8+w}, v5")
    for w in range(8):
        I(f"ds_min_u32 v2, v{8+w}")
        I(f"ds_{'max' if kind == 'm' else 'add'}_u32 v2, v{16+w} offset:4")
    I("s_waitcnt lgkmcnt(0)")
    I("s_barrier")
    I("ds_read_b64 v[6:7], v2")
    I("s_waitcnt lgkmcnt(0)")
    I("v_lshlrev_b32 v6, 2, v6")
    I("v_lshlrev_b32 v7, 2, v7" if kind == 'm' else "v_lshrrev_b32 v7, 9, v7")
    I("v_sub_u32 v6, v7, v6")
    I("v_min_u32 v6, 20000, v6")
    I("s_nop 0")
    I("v_readfirstlane_b32 s6, v6")
    I("s_memrealtime s[8:9]")
    I("s_waitcnt lgkmcnt(0)")
    if PT:
        I(f"s_cmp_gt_u32 s6, {4*PT}")
        I("s_cselect_b32 s6, 6000, 0")
        I("s_mul_i32 s7, s8, 0x9e3779b1")
        I("s_lshr_b32 s7, s7, 20")
        I("s_add_u32 s6, s6, s7")
    L("LK_L")
    I("s_memrealtime s[10:11]")
    I("s_waitcnt lgkmcnt(0)")
    I("s_sub_u32 s7, s10, s8")
    I("s_cmp_lt_u32 s7, s6")
    I("s_cbranch_scc1 LK_L")
    L("LK_END")
    I("s_endpgm")
emit(f""".section .rodata,"a"
.p2align 6
.amdhsa_kernel {NAME}_kernel
  .amdhsa_next_free_vgpr 256
  .amdhsa_next_free_sgpr 102
  .amdhsa_accum_offset 256
  .amdhsa_group_segment_fixed_size 0
  .amdhsa_kernarg_size 96
  .amdhsa_user_sgpr_count 2
  .amdhsa_user_sgpr_kernarg_segment_ptr 1
  .amdhsa_system_sgpr_workgroup_id_x 1
.end_amdhsa_kernel""")
if LEAK:
    emit(""".p2align 6
.amdhsa_kernel leak_kernel
  .amdhsa_next_free_vgpr 32
  .amdhsa_next_free_sgpr 16
  .amdhsa_accum_offset 32
  .amdhsa_group_segment_fixed_size 0
  .amdhsa_kernarg_size 96
  .amdhsa_user_sgpr_count 2
  .amdhsa_user_sgpr_kernarg_segment_ptr 1
  .amdhsa_system_sgpr_workgroup_id_x 1
.end_amdhsa_kernel""")
if TS: out.insert(0, "; stamps " + " ".join(STN))
path = sys.argv[1] if len(sys.argv) > 1 else "/code/" + NAME + ".s"
open(path, "w").write("\n".join(out) + "\n")
print("wrote", path, len(out), "lines; lds", LDS)
```

```python
import sys, re, struct

NAME = "standalone__edge_featured_mpnn_gatedgcn__graph"
OPT = dict(kv.split("=") for kv in sys.argv[2:])
def opt(k, d):
    v = OPT.get(k)
    if v is None: return d
    return type(d)(v)

N, E = 50000, 800000
CH = 3128
BN = 196
XIL = opt('xil', 0)
RS = (513 if XIL else opt('rs', 257)) * 128
XOFF = 256 * 128 if XIL else 256 * RS
WS_CELL = 0x10000
WS_RECS = 0x1200000
WS_LEID = 0x1680000
WS_HD = 0x17a0000
WS_USED = 0x1800000
WS_TS = 0x3000000
KINC = 0x02020202
CAP = 24
LOG2E = 1.4426950408889634
def f2u(f): return struct.unpack("<I", struct.pack("<f", f))[0]

out = []
def emit(s=""):
    for l in s.strip("\n").split("\n"):
        out.append(l.rstrip())
def I(s): out.append("    " + s)
def L(s): out.append(s + ":")
def C(s): out.append("    ; " + s)
def put(seq):
    for s in seq:
        if s.endswith(":"): L(s[:-1])
        else: I(s)
def rr(a, n): return f"v[{a}:{a+n-1}]"
def sp(a): return f"s[{a}:{a+1}]"
def sq(a): return f"s[{a}:{a+3}]"
def pol(p): return (" " + p.replace("_", " ")) if p else ""

def srd(d, lo, size, add=None, stride=0):
    if add is None:
        I(f"s_mov_b32 s{d}, s{lo}")
        I(f"s_mov_b32 s{d+1}, s{lo+1}" if not stride else f"s_or_b32 s{d+1}, s{lo+1}, {stride << 16:#x}")
    else:
        I(f"s_add_u32 s{d}, s{lo}, {add}")
        I(f"s_addc_u32 s{d+1}, s{lo+1}, 0")
    I(f"s_mov_b32 s{d+2}, {size}")
    I(f"s_mov_b32 s{d+3}, 0x20000")

def wave_scan(v, fill=None, half=False):
    def gap():
        if fill and len(fill) >= 2:
            I(fill.pop(0)); I(fill.pop(0))
        else: I("s_nop 1")
    for sh in (1, 2, 4, 8):
        gap()
        I(f"v_add_u32_dpp v{v}, v{v}, v{v} row_shr:{sh} row_mask:0xf bank_mask:0xf bound_ctrl:0")
    gap()
    I(f"v_add_u32_dpp v{v}, v{v}, v{v} row_bcast:15 row_mask:0xa bank_mask:0xf")
    if half: return
    gap()
    I(f"v_add_u32_dpp v{v}, v{v}, v{v} row_bcast:31 row_mask:0xc bank_mask:0xf")

TAB, ZROW, CNT, FLAG = 0, 512, 576, 640
HIST = 1024
ESTG = HIST + 4096
HIST1 = ESTG
EARLY = ESTG + 8192
LWB = 288 * 4
R0 = EARLY + 32768
R1 = R0 + 16 * LWB
XSTG = R1 + 16 * LWB
XI = 1056
SLOT = 4 * XI
OWN = XSTG + 8 * SLOT
PL = 52 * 128 + 32
WR = 160
WUI = OWN + 4 * PL
MAP = WUI + 64 * WR
HDR = MAP + 1024
PRG = HDR + 1024
NT = PRG + 2048
LDS = NT + 1024
WBI, WVI, WCI = EARLY, EARLY + 64 * WR, EARLY + 128 * WR
WAI = XSTG + 8192
LROW = 160
CIMG = R0
assert CIMG + 256 * LROW <= WAI and LDS <= 163840, LDS
BIAS = 8192
assert R1 < 65536 and R0 % 256 == 0 and R1 % 256 == 0
W2 = f"offset0:{(R0-BIAS)//256} offset1:{(R1-BIAS)//256}"

vWB, vWV, vCA, vACC = 0, 32, 64, 96
vX, vEO, vS = 160, 176, 184
vP, vQ, vR = 188, 204, 220
vQD = 236
vEI, vCH, vONE, vCP, vAX, vcEO, vcS, vARX, vARE, vARO, vARS, vEA = 240, 241, 242, 243, 244, 245, 246, 248, 249, 250, 251, 252
lane, vTS, tid = 247, 254, 255
vC1, vIDX, vPA = lane, tid, vcS
DEN = lambda w, n: vACC + 32 * w + 4 * n
NUM = lambda w, n: vACC + 32 * w + 16 + 4 * n
def m16(d, a, b, c=None):
    return f"v_mfma_f32_16x16x32_bf16 {rr(d,4)}, {rr(a,4)}, {rr(b,4)}, " + ("0" if c is None else rr(c, 4))
def s16(d, b): return f"v_smfmac_f32_16x16x64_bf16 {rr(d,4)}, {rr(vS,4)}, {rr(b,8)}, v{vIDX}"

sWP, sW, sB, sK = 3, 4, 5, 6
sWIN, sF0, sF1, sL = 7, 8, 9, 12
sA, sBt = 10, 11
sSTG, sES, s128 = 13, 14, 15
pX, pE, pSRC, pDST, pWA, pWB, pWC, pWU, pWV, pOUT, pDBG, pWS = 16, 18, 20, 22, 24, 26, 28, 30, 32, 34, 36, 38
sT, sN, sFM, sMORE, sSKIP, sXT, sWS0, sWS1, sB0E, sSH = 16, 17, 18, 19, 20, 21, 22, 23, 24, 25
sCI, sCUR, sR0, sCNT, sST, sEND = 26, 27, 28, 29, 30, 31
sMSK = 32
sTM = 34
sX, sEP, sOUT, sWS, sCEL, sD2 = 40, 44, 48, 52, 56, 60
sM = 64
sJ3, sEM = 96, 98
sSP = 100
sHF = 99
sINC = 94
sSG, sRM = 101, 96

TS = opt("ts", 0)
STN = []
YP = opt("yp", "")
def stamp(i):
    if str(i) in YP.split("_"):
        k = YP.split("_").index(str(i))
        I(f"s_cmp_lt_u32 s{sWP}, 4")
        I(f"s_cbranch_scc1 L_YP{k}")
        I(f"s_setprio {1 - (k & 1)}")
        L(f"L_YP{k}")
    if not TS: return
    if isinstance(i, str) and i[0] not in opt("tsx", ""): return
    STN.append(str(i)); i = len(STN) - 1
    I("s_memrealtime vcc" if TS == 1 else "s_memtime vcc")
    I("s_waitcnt lgkmcnt(0)")
    I(f"v_writelane_b32 v{vTS}, vcc_lo, {i}")
def stamp_out():
    if not TS: return
    I("s_waitcnt vmcnt(0)")
    stamp(15)
    I("s_memtime vcc")
    I("s_waitcnt lgkmcnt(0)")
    I(f"v_writelane_b32 v{vTS}, vcc_lo, 58")
    I(f"v_writelane_b32 v{vTS}, s{sN}, 59")
    I(f"v_writelane_b32 v{vTS}, s{sSP}, 60")
    I("s_getreg_b32 s10, hwreg(HW_REG_XCC_ID)")
    I(f"v_writelane_b32 v{vTS}, s10, 55")
    I("s_lshl_b32 s10, s2, 3")
    I(f"s_add_u32 s10, s10, s{sWP}")
    I("s_lshl_b32 s10, s10, 8")
    I(f"s_add_u32 s10, s10, {WS_TS}")
    I(f"v_lshl_add_u32 v{vP}, v{lane}, 2, s10")
    I(f"global_store_dword v{vP}, v{vTS}, {sp(pWS)}")
def cstamp(i):
    if not TS: return
    I("s_memtime vcc")
    I("s_waitcnt lgkmcnt(0)")
    I(f"v_writelane_b32 v{vTS}, vcc_lo, {i}")

LD_P = opt("ldp", "nt")
XP, EP, OP = opt("xp", ""), opt("ep", ""), opt("op", "sc1")
STP = opt("stp", "sc1")
MG = opt("mg", 1)
JE = opt("je", 4 if MG else 2)
EMASK = ((1 << JE) - 1) * 0x01010101
DCH = CH + 1024
SDW = "dst_sel:DWORD dst_unused:UNUSED_PAD"

def dma_tile():
    mad = lambda i: f"v_mad_u32_u16 v{vQD+i}, v{vQD+i}, s{s128}, v{vCP}"
    r = []
    for i in range(4):
        r += [f"s_add_u32 m0, s{sSTG}, {i*XI}", mad(i), f"buffer_load_dwordx4 v{vQD+i}, {sq(sX)}, 0 offen{pol(XP)} lds"]
    r += [f"s_mov_b32 m0, s{sES}", "s_nop 0", f"buffer_load_dwordx4 {rr(vEI,2)}, {sq(sEP)}, 0 idxen offen{pol(EP)} lds"]
    return r

ORD = [(0, 0), (1, 0), (0, 1), (1, 1)]
def xread(m, s): return f"ds_read_b128 {rr(vX+8*m+4*s,4)}, v{vAX} offset:{512*m + 64*s}"
def g_mfmas(D, ft, w):
    g = [m16(D+8*n+4*m, vEO+4*m, vCA+16*w+8*ft+4*n) for m in range(2) for n in range(2)]
    g += [m16(D+8*n+4*m, vX+8*m+4*s, vWB+16*ft+8*n+4*s, D+8*n+4*m) for m, s in ORD for n in range(2)]
    return g
def h_mfmas(ft):
    return [m16(vQ+8*n+4*m, vX+8*m+4*s, vWV+16*ft+8*n+4*s, None if s == 0 else vQ+8*n+4*m) for m, s in ORD for n in range(2)]
def s_num(w, ft): return [s16(NUM(w, 2*ft+n), vQ+8*n) for n in range(2)]
def s_den(w, ft, G): return [s16(DEN(w, 2*ft+n), G+8*n) for n in range(2)]

def eafix():
    return [f"v_bfi_b32 v{vEA+m}, 31, v{vcEO}, v{vEA+m}" for m in range(2)] + [f"v_max_u32 v{vEA}, v{vEA}, v{vcEO}", f"v_max_u32 v{vEA+1}, v{vEA+1}, v{vC1}"]
LV = [int(c, 16) for c in opt("lv", "015a")]
PAT = opt("pat", "1" * 11 + "5")
FAIR = opt("fair", 1)
F2 = opt("f2", 0)
BST = opt("bst", 10)
LNG = opt("lng", 1)
ASL = [int(x) for x in opt("asl", "12_13_14_18").split("_")]
LLV = [int(x) for x in opt("llv", "0_2_12_26").split("_")]
LLP_ = opt("llp", "0003_1113").split("_")
def add1(q): return f"v_mfma_f32_4x4x4_16b_bf16 {rr(q,4)}, {rr(vONE,2)}, {rr(vONE,2)}, {rr(q,4)}"
def long_sec(mf, G, regs, slots, cp):
    r = []; k = 0
    tr = [f"v_exp_f32 v{G+i}, v{G+i}" for i in regs] + [f"v_rcp_f32 v{G+i}, v{G+i}" for i in regs]
    for i, x in enumerate(tr):
        if i in LLV:
            j = LLV.index(i)
            if j == 0 or LLP_[cp][j] != LLP_[cp][j-1]: r.append(f"s_setprio {LLP_[cp][j]}")
        if i in slots: r.append(add1(G + regs[4*slots.index(i)]))
        elif k < len(mf): r += mf[k]; k += 1
        r.append(x)
    assert k == len(mf)
    return r
def phase(par, ft, cp=0):
    G, Go = (vP, vR) if ft == 0 else (vR, vP)
    nf = 1 - ft
    wn = par if ft == 0 else par ^ 1
    wp = par ^ 1 if ft == 0 else par
    s1 = [[x] for x in s_num(wp, nf) + h_mfmas(ft) + s_den(wp, nf, Go)]
    s2 = [[x] for x in g_mfmas(Go, nf, wn)]
    if ft == 0:
        o = par * LWB
        s1[0] += [f"ds_read_u16 v{vQD+u}, v{vARS} offset:{o + 16*u}" for u in range(2)]
        s1[8] += ["s_waitcnt lgkmcnt(0)"] + [f"v_bfi_b32 v{vQD+u}, 31, v{vcS}, v{vQD+u}" for u in range(2)]
        if FAIR and (par == 0 or not F2):
            s1[0] += [f"ds_add_rtn_u32 v{vQD+2}, v{vPA}, v{vIDX}"]
            s1[8] += [f"v_readfirstlane_b32 s{sRM}, v{vQD+2}"]
            s2[1] += [f"s_ashr_i32 s{sRM}, s{sRM}, 24", f"s_mul_i32 s{sRM}, s{sRM}, s{sSG}"]
        o1 = 128 if par else LWB
        s2[0] += [f"ds_read_b64_tr_b16 {rr(vS+2*u,2)}, v{vQD+u}" for u in range(2)]
        s2[0] += [f"ds_read_u16 v{vEA+m}, v{vARO} offset:{o1 + 64*m}" for m in range(2)]
        s2[6] += ["s_waitcnt lgkmcnt(0)"] + eafix()
        s2[6] += [f"ds_read_b128 {rr(vQD,4)}, v{vARX} offset:{o + 128}", f"ds_read_b32 v{vEI}, v{vARE} offset:{o + 128}",
                  f"s_add_u32 s{sT}, s{sT}, 1"]
        if par: s2[7] += [f"v_lshl_add_u64 {rr(r,2)}, {rr(r,2)}, 0, {sp(sINC)}" for r in (vARX, vARO)]
    elif opt("el", 0):
        g = [m16(Go+8*n+4*m, vX+8*m+4*s, vWB+16*nf+8*n+4*s, None if s == 0 else Go+8*n+4*m) for m, s in ORD for n in range(2)]
        g += [m16(Go+8*n+4*m, vEO+4*m, vCA+16*wn+8*nf+4*n, Go+8*n+4*m) for m in range(2) for n in range(2)]
        s2 = [[x] for x in g]
        s1[2] = ["s_waitcnt vmcnt(1)"] + s1[2]
        for i, (m, s) in enumerate(ORD): s1[3+2*i].append(xread(m, s))
        s2[0] = ["s_waitcnt lgkmcnt(2)"] + s2[0]
        ep = opt("el", 0)
        s2[ep] += ["s_waitcnt vmcnt(0)"] + [f"ds_read_b128 {rr(vEO+4*m,4)}, v{vEA+m}" for m in range(2)]
        s2[4] = [f"s_waitcnt lgkmcnt({2 if ep < 4 else 0})"] + s2[4]
        s2[8] = ["s_waitcnt lgkmcnt(0)"] + s2[8]
        s2[opt("eld", 9)] += [f"s_cmp_lt_u32 s{sT}, s{sN}", f"s_cbranch_scc0 L_ND{par}{cp}"] + dma_tile() + [f"L_ND{par}{cp}:"]
    else:
        s1[2] = ["s_waitcnt vmcnt(0)"] + [f"ds_read_b128 {rr(vEO+4*m,4)}, v{vEA+m}" for m in range(2)] + s1[2]
        for i, (m, s) in enumerate(ORD): s1[3+2*i].append(xread(m, s))
        s2[0] = ["s_waitcnt lgkmcnt(4)"] + s2[0]
        for i in range(4): s2[4+2*i] = [f"s_waitcnt lgkmcnt({3-i})"] + s2[4+2*i]
        DSP = opt("dsp", "")
        if DSP:
            d = dma_tile(); first = min(int(c, 16) for c in DSP)
            for i in range(4): s2[4+2*i] = s2[4+2*i][1:] if 4+2*i > first else s2[4+2*i]
            s2[first] = ["s_waitcnt lgkmcnt(0)"] + [x for x in s2[first] if not x.startswith("s_waitcnt")]
            for k, c in enumerate(DSP): s2[int(c, 16)] += d[3*k:3*k+3]
        tgt = f"L_CE{par}{cp}" if opt("cpe", 0) else f"L_ND{par}{cp}"
        if not DSP: s2[10] += [f"s_cmp_lt_u32 s{sT}, s{sN}", f"s_cbranch_scc0 {tgt}"] + dma_tile() + [f"L_ND{par}{cp}:"]
    def sec(mf, op):
        r = []; k = 0
        for i, m in enumerate(mf):
            if opt("lvp", ""):
                lv = opt("lvp", "").split("_")[cp]
                if i in LV:
                    k_ = LV.index(i)
                    if k_ == 0 or lv[k_] != lv[k_-1]: r.append(f"s_setprio {lv[k_]}")
            elif FAIR:
                if i == 0: r.append(f"s_setprio {cp}")
                if i == BST: r.append("s_setprio 3")
            elif i in LV: r.append(f"s_setprio {LV.index(i)}")
            r += m
            for _ in range(int(PAT[i])):
                r.append(f"{op} v{G+k}, v{G+k}"); k += 1
        assert k == 16
        return r
    r = []
    if opt("tt", 0) and ft == 0:
        r += ["s_memrealtime vcc", "s_memtime s[10:11]", f"s_add_u32 m0, s{sT}, 17", "s_waitcnt lgkmcnt(0)", f"v_writelane_b32 v{vTS}, vcc_lo, m0",
              f"s_add_u32 m0, s{sT}, 35", "s_nop 0", f"v_writelane_b32 v{vTS}, s10, m0"]
    if LNG:
        r += long_sec(s1 + s2, G, list(range(16)), ASL, cp)
        return r + [f"v_pk_mul_f32 {rr(vQ+2*i,2)}, {rr(G+2*i,2)}, {rr(vQ+2*i,2)}" for i in range(8)]
    r += sec(s1, "v_exp_f32")
    r += [f"v_pk_add_f32 {rr(G+2*i,2)}, {rr(G+2*i,2)}, 1.0 op_sel_hi:[1,0]" for i in range(8)]
    r += sec(s2, "v_rcp_f32")
    r += [f"v_pk_mul_f32 {rr(vQ+2*i,2)}, {rr(G+2*i,2)}, {rr(vQ+2*i,2)}" for i in range(8)]
    return r

def last_tile(par, half, epi=None, only_b=False):
    keep = (lambda x: int(re.match(r"\S+ v\[(\d+)", x).group(1)) % 8 == (vP % 8)) if half else (lambda x: True)
    regs = [k for k in range(16) if not (half and k & 4)]
    def sec(mf, op, G):
        r = [f"s_setprio {opt('lpr', 0)}"]; k = 0
        tail = min(len(regs), 4 if half else 5)
        for i, m in enumerate(mf):
            if i == len(mf) - 1: r.append("s_setprio 3")
            r += m
            e_ = (len(regs) - tail) * (i + 1) // (len(mf) - 1) if i < len(mf) - 1 else len(regs)
            while k < e_:
                r.append(f"{op} v{G+regs[k]}, v{G+regs[k]}"); k += 1
        while k < len(regs):
            r.append(f"{op} v{G+regs[k]}, v{G+regs[k]}"); k += 1
        return r
    r = []
    for ft in range(1 if only_b else 0, 2):
        G, Go = (vP, vR) if ft == 0 else (vR, vP)
        wp = par ^ 1 if ft == 0 else par
        s1 = [[x] for x in s_num(wp, 1-ft) + [h for h in h_mfmas(ft) if keep(h)] + s_den(wp, 1-ft, Go)]
        s2 = [[x] for x in g_mfmas(Go, 1, par) if keep(x)] if ft == 0 else []
        if ft == 0:
            s1[0] += [f"ds_read_u16 v{vQD+u}, v{vARS} offset:{par*LWB + 16*u}" for u in range(2)]
            s1[-2] += ["s_waitcnt lgkmcnt(0)"] + [f"v_bfi_b32 v{vQD+u}, 31, v{vcS}, v{vQD+u}" for u in range(2)]
            s2[0] += [f"ds_read_b64_tr_b16 {rr(vS+2*u,2)}, v{vQD+u}" for u in range(2)]
        else:
            s1[0] = ["s_waitcnt lgkmcnt(0)"] + s1[0]
            if epi:
                a1, a2, a3 = epi
                r += [f"s_cmp_lg_u32 s{sMORE}, 0", f"s_cbranch_scc1 L_LB{par}"]
                n_ = len(s1) - 3
                for k in range(n_): s1[k] += a1[len(a1)*k//n_:len(a1)*(k+1)//n_]
                s1[-3] += a2[:len(a2)//2]; s1[-2] += a2[len(a2)//2:]
                s2 = [list(x) for x in a3]
        r += sec(s1, "v_exp_f32", G)
        r += [f"v_pk_add_f32 {rr(G+k,2)}, {rr(G+k,2)}, 1.0 op_sel_hi:[1,0]" for k in regs[::2]]
        r += sec(s2, "v_rcp_f32", G)
        r += [f"v_pk_mul_f32 {rr(vQ+k,2)}, {rr(G+k,2)}, {rr(vQ+k,2)}" for k in regs[::2]]
    return r + s_den(par, 1, vR) + s_num(par, 1)

def isize(x):
    op = x.split()[0]
    if x.endswith(":"): return 0
    if op in ("v_exp_f32", "v_rcp_f32", "v_max_u32", "v_readfirstlane_b32"): return 4
    if op.startswith("s_"):
        m = re.search(r", (0x[0-9a-f]+|\d+)$", x)
        return 8 if (m and op not in ("s_setprio", "s_nop", "s_waitcnt") and int(m.group(1), 0) > 64) else 4
    return 8
def align8(body, mode):
    body = list(body); run = []; r = []
    for x in body:
        z = isize(x)
        if z == 8:
            if sum(isize(r[i]) for i in run) % 8:
                c = [i for i in run if r[i].split()[0] in ("v_exp_f32", "v_rcp_f32", "v_max_u32")]
                if c: r[c[-1]] = r[c[-1]].replace(" ", "_e64 ", 1); run = []
                elif mode == 2: r.append("s_nop 0"); run = []
                else: run = [i for i in run if isize(r[i])][:1]
            else: run = []
            r.append(x)
        else:
            run.append(len(r)); r.append(x)
    return r

def listaddr(t0):
    I(f"v_lshrrev_b32 v{t0}, 3, v{lane}")
    I(f"v_lshl_add_u32 v{vARX}, v{t0}, 4, s{sL}")
    I(f"s_add_u32 s10, s{sL}, {R1-R0}")
    I(f"v_lshrrev_b32 v{t0}, 1, v{lane}")
    I(f"v_lshl_add_u32 v{vARE}, v{t0}, 2, s10")
    I(f"s_add_u32 s10, s10, 2")
    I(f"v_lshrrev_b32 v{t0}, 5, v{lane}")
    I(f"v_mul_i32_i24 v{vARO}, {(R0-R1) & 0xffffffff:#x}, v{t0}")
    I(f"v_and_b32 v{t0}, 15, v{lane}")
    I(f"v_lshl_add_u32 v{vARO}, v{t0}, 2, v{vARO}")
    I(f"v_add_u32 v{vARO}, s10, v{vARO}")
    I(f"s_add_u32 s10, s{sL}, 2")
    I(f"v_and_b32 v{t0}, 48, v{lane}")
    I(f"v_lshl_add_u32 v{vARS}, v{t0}, 1, s10")
    I(f"v_and_b32 v{t0}, 12, v{lane}")
    I(f"v_add_u32 v{vARS}, v{vARS}, v{t0}")

def prefill(t):
    for d in range(4): I(f"v_mov_b32 v{t+d}, {ZROW << 16:#x}")
    for d in range(4): I(f"v_mov_b32 v{t+4+d}, 0xfffff")
    I(f"v_lshl_add_u32 v{t+8}, v{lane}, 4, s{sL}")
    for o in (0, 1024, 2*LWB - 1024):
        I(f"ds_write_b128 v{t+8}, {rr(t,4)} offset:{o}")
        I(f"ds_write_b128 v{t+8}, {rr(t+4,4)} offset:{o + R1 - R0}")

def kernel():
    emit(f"""
.globl {NAME}_kernel
.p2align 8
.type {NAME}_kernel,@function
{NAME}_kernel:""")
    FH = opt("fh", 1)
    vD, vSR, vT16 = vACC + 32, vACC, vR + 12
    if TS and opt("tz", 0): I("s_memrealtime s[96:97]")
    I("s_load_dwordx16 s[16:31], s[0:1], 0")
    I("s_load_dwordx8 s[32:39], s[0:1], 64")
    CPN = opt("cpn", 8)
    if opt("cpf", 1):
        I(f"s_getpc_b64 {sp(sM)}")
        L("L_PC")
        if CPN == 8: I("s_and_b32 s3, s2, -8")
        else:
            I("s_lshr_b32 s3, s2, 3")
            I(f"s_and_b32 s3, s3, {256//CPN - 1}")
            I(f"s_mul_i32 s3, s3, {CPN}")
        I("v_add_lshl_u32 v1, v0, s3, 7")
        I("v_min_u32 v1, L_LAST-L_PC, v1")
        I(f"v_cmpx_gt_u32 vcc, {CPN}, v0")
        I("s_cbranch_execz L_NOCPF")
        I(f"global_load_dword v{vEA}, v1, {sp(sM)}")
        L("L_NOCPF")
        I("s_mov_b64 exec, -1")
    I("s_cmp_ge_u32 s2, 256")
    I("s_cbranch_scc1 L_END")
    if FH:
        I(f"s_mul_i32 s{sA}, s2, {CH*4}")
        I(f"v_lshl_add_u32 v1, v0, 4, s{sA}")
        I(f"s_add_u32 s{sBt}, s{sA}, {CH*4}")
        I(f"s_min_u32 s{sBt}, s{sBt}, {E*4}")
        BAL = opt("bal", 0)
        if BAL:
            I(f"s_add_u32 s{sA}, s{sA}, 0x2000")
            I(f"v_lshl_add_u32 v2, v0, 3, s{sA}")
            I(f"s_add_u32 s{sA}, s{sA}, 0x1000")
            I(f"v_lshl_add_u32 v3, v0, 2, s{sA}")
            I(f"v_cmp_gt_u32 {sp(sM+6)}, s{sBt}, v2")
            I(f"v_min_u32 v2, {E*4 - 8}, v2")
        else: I("v_add_u32 v2, 0x2000, v1")
        I("s_waitcnt lgkmcnt(0)")
        if TS and opt("tz", 0): I("s_memrealtime s[98:99]")
        I(f"global_load_dwordx4 {rr(vD,4)}, v1, {sp(pDST)}{pol(LD_P)}")
        if BAL:
            I(f"global_load_dwordx2 {rr(vD+4,2)}, v2, {sp(pDST)}{pol(LD_P)}")
            I(f"global_load_dwordx4 {rr(vSR,4)}, v1, {sp(pSRC)}{pol(LD_P)}")
            I(f"global_load_dwordx2 {rr(vSR+4,2)}, v2, {sp(pSRC)}{pol(LD_P)}")
            I(f"v_cmpx_gt_u32 {sp(sM+28)}, s{sBt}, v3")
            I("s_cbranch_execz L_NO7")
            I(f"global_load_dword v{vD+6}, v3, {sp(pDST)}{pol(LD_P)}")
            I(f"global_load_dword v{vSR+6}, v3, {sp(pSRC)}{pol(LD_P)}")
        else:
            I(f"global_load_dwordx4 {rr(vSR,4)}, v1, {sp(pSRC)}{pol(LD_P)}")
            def group2():
                I(f"v_cmpx_gt_u32 {sp(sM+6)}, s{sBt}, v2")
                I("s_cbranch_execz L_NO8")
                I(f"global_load_dwordx4 {rr(vD+4,4)}, v2, {sp(pDST)}{pol(LD_P)}")
                I(f"global_load_dwordx4 {rr(vSR+4,4)}, v2, {sp(pSRC)}{pol(LD_P)}")
                L("L_NO8")
                I("s_mov_b64 exec, -1")
            G2 = opt("g2", 0)
            if G2 == 0: group2()
        L("L_NO7")
        I("s_mov_b64 exec, -1")
        KV = opt("kv", 0)
        if KV:
            I("v_mov_b32 v1, 0")
            I(f"global_load_dword v{vEA+1}, v1, {sp(pWS)}")
        else: I(f"s_load_dword s{sK}, {sp(pWS)}, 0")
        if opt("tlb", 0):
            I("v_lshlrev_b32 v1, 20, v0")
            I(f"v_add_u32 v1, {WS_CELL + XOFF - 448*(1 << 20) & 0xffffffff:#x}, v1")
            I("v_subrev_u32 v2, 448, v0")
            I("v_cmpx_gt_u32 vcc, 9, v2")
            I("s_cbranch_execz L_NOTLB")
            I(f"global_load_dword v{vEA+1}, v1, {sp(pWS)}")
            L("L_NOTLB")
            I("s_mov_b64 exec, -1")
    if TS: I(f"v_mov_b32 v{vTS}, 0")
    u = lambda i: vP + i
    if TS and opt("tz", 0):
        I("s_waitcnt lgkmcnt(0)")
        I(f"v_writelane_b32 v{vTS}, s96, 0")
        I(f"v_writelane_b32 v{vTS}, s98, 1")
        STN.extend(["z", "k"])
    stamp(0)
    vBK, vRK1, vID, vHA, vIC = vACC + 8, vACC + 16, vACC + 24, vACC + 40, vACC + 48
    vRW = vX
    one, l16 = vS, vS + 1
    vOA, vT16, sOW = vR + 14, vR + 12, 101
    I(f"v_mov_b32 v{tid}, v0")
    I(f"v_lshrrev_b32 v{u(0)}, 6, v0")
    I(f"v_and_b32 v{lane}, 63, v0")
    I(f"v_readfirstlane_b32 s{sWP}, v{u(0)}")
    I(f"v_lshlrev_b32 v{vT16}, 4, v0")
    I(f"v_lshlrev_b32 v{u(2)}, 3, v0")
    I(f"v_lshlrev_b32 v{u(3)}, 2, v0")
    I(f"v_and_b32 v{u(4)}, 0x3fc, v{u(3)}")
    if not FH:
        I(f"s_mul_i32 s{sA}, s2, {CH*4}")
        I(f"s_sub_u32 s{sBt}, {E*4}, s{sA}")
        I(f"s_min_u32 s{sBt}, s{sBt}, {CH*4}")
    I(f"s_and_b32 s{sB}, s2, 7")
    I(f"s_lshr_b32 s{sW}, s2, 3")
    I(f"s_lshl_b32 s{sB}, s{sB}, 5")
    I(f"s_add_u32 s{sB}, s{sB}, s{sW}")
    I(f"s_mul_i32 s{sF1}, s{sB}, {BN}")
    I(f"s_cmp_eq_u32 s{sWP}, 7")
    I(f"s_cselect_b32 s{sOW}, 0, s{sWP}")
    I(f"s_lshl_b32 s{sL}, s{sOW}, 5")
    I(f"s_add_u32 s{sF1}, s{sF1}, s{sL}")
    I(f"v_lshrrev_b32 v{u(5)}, 3, v{lane}")
    I(f"v_lshl_add_u32 v{u(5)}, v{u(5)}, 2, s{sF1}")
    I(f"v_and_b32 v{vCP}, 7, v{lane}")
    I(f"v_lshlrev_b32 v{vCP}, 4, v{vCP}")
    I(f"v_lshl_add_u32 v{vOA}, v{u(5)}, 7, v{vCP}")
    I(f"s_lshl_b32 s{sOW}, s{sOW}, 10")
    I(f"s_add_u32 s{sOW}, s{sOW}, {OWN}")
    if not FH:
        I(f"s_movk_i32 s{sF0}, 0x2000")
        I("s_waitcnt lgkmcnt(0)")
        I(f"s_load_dword s{sK}, {sp(pWS)}, 0")
        srd(sCEL, pDST, f"s{sBt}", f"s{sA}")
        srd(sD2, pSRC, f"s{sBt}", f"s{sA}")
        I(f"buffer_load_dwordx4 {rr(vD,4)}, v{vT16}, {sq(sCEL)}, 0 offen{pol(LD_P)}")
        I(f"buffer_load_dwordx4 {rr(vSR,4)}, v{vT16}, {sq(sD2)}, 0 offen{pol(LD_P)}")
        I(f"s_cmp_ge_u32 s{sWP}, 5")
        I("s_cbranch_scc1 L_NO7")
        I(f"buffer_load_dwordx4 {rr(vD+4,4)}, v{vT16}, {sq(sCEL)}, s{sF0} offen{pol(LD_P)}")
        I(f"buffer_load_dwordx4 {rr(vSR+4,4)}, v{vT16}, {sq(sD2)}, s{sF0} offen{pol(LD_P)}")
        L("L_NO7")
    for d in range(2): I(f"v_mov_b64 {rr(u(8)+2*d,2)}, 0")
    I(f"v_mov_b32 v{u(6)}, {33*JE if MG else 0}")
    I(f"ds_write2st64_b32 v{u(4)}, v{u(6)}, v{u(8)} offset0:{HIST1//256} offset1:{HIST1//256+4}")
    I(f"v_add_u32 v{u(5)}, {CIMG}, v{vT16}")
    if G2 == 1: group2()
    for k in range(5): I(f"ds_write_b128 v{u(5)}, {rr(u(8),4)} offset:{8192*k}")
    if G2 == 2: group2()
    PF = opt("pf", 0)
    def w_loads():
        I(f"s_cmp_ge_u32 s{sWP}, 2")
        I("s_cbranch_scc1 L_NOC")
        I(f"global_load_dwordx4 {rr(vEO,4)}, v{vT16}, {sp(pWC)}")
        L("L_NOC")
        for k, p in enumerate((pWB, pWV, pWA, pWU)):
            I(f"global_load_dwordx4 {rr(vRW+4*k,4)}, v{vT16}, {sp(p)}")
    def own_loads():
        I(f"s_cmp_eq_u32 s{sWP}, 6")
        I("s_cselect_b32 exec_hi, 0, -1")
        I(f"s_cmp_eq_u32 s{sWP}, 7")
        I("s_cselect_b64 exec, 1, exec")
        for k in range(4):
            I(f"s_add_u32 m0, s{sOW}, {(PL-128)*k}")
            I("s_nop 0")
            I(f"buffer_load_dwordx4 v{vOA}, {sq(sX)}, 0 offen offset:{128*k}{pol(opt('owp', ''))} lds")
        I("s_mov_b64 exec, -1")
    def x_prefetch():
        if not PF: return
        I(f"s_add_u32 s{sTM}, s2, 1")
        I(f"s_and_b32 s{sTM}, s{sTM}, 7")
        I(f"s_mul_i32 s{sTM}, s{sTM}, {32*BN}")
        I(f"s_lshr_b32 s{sTM+1}, s2, 3")
        I(f"s_mul_i32 s{sTM+1}, s{sTM+1}, {PF}")
        I(f"s_add_u32 s{sTM}, s{sTM}, s{sTM+1}")
        I(f"s_mul_i32 s{sTM+1}, s{sWP}, {PF//8}")
        I(f"s_add_u32 s{sTM}, s{sTM}, s{sTM+1}")
        I(f"v_min_u32 v{vEA+1}, {PF//8 - 1}, v{lane}")
        I(f"v_add_lshl_u32 v{vEA+1}, v{vEA+1}, s{sTM}, 7")
        I(f"buffer_load_dword v{vEA+1}, v{vEA+1}, {sq(sX)}, 0 offen")
    PFP = opt("pfp", 0)
    LLP = 2
    OLP = opt("olp", 2)
    NY = 0
    srd(sEP, pE, E, stride=32)
    srd(sOUT, pOUT, N*128)
    srd(sX, pX, N*128)
    OY = 0
    if OLP == 3:
        OW0 = opt("ow0", 5); nw = 8 - OW0; per = -(-28 // nw); OY = per
        I(f"s_cmp_lt_u32 s{sWP}, {OW0}")
        I("s_cbranch_scc1 L_NOOWN")
        I(f"s_mul_i32 s{sF1}, s{sB}, {BN}")
        I(f"v_lshrrev_b32 v{vOA}, 3, v{lane}")
        I(f"v_lshl_add_u32 v{vOA}, v{vOA}, 2, s{sF1}")
        I(f"v_lshl_add_u32 v{vOA}, v{vOA}, 7, v{vCP}")
        I(f"s_sub_u32 s{sF0}, s{sWP}, {OW0}")
        for k in range(per):
            I(f"s_add_u32 s{sF1}, s{sF0}, {nw*k}")
            I(f"s_min_u32 s{sF1}, s{sF1}, 27")
            I(f"s_and_b32 s{sL}, s{sF1}, 3")
            I(f"s_lshr_b32 s{sF1}, s{sF1}, 2")
            I(f"s_mul_i32 s{sOW}, s{sL}, {PL}")
            I(f"s_lshl_b32 s{sL}, s{sL}, 7")
            I(f"s_cmp_eq_u32 s{sF1}, 6")
            I("s_cselect_b32 exec_hi, 0, -1")
            I(f"s_lshl_b32 s{sF1}, s{sF1}, 10")
            I(f"s_add_u32 s{sOW}, s{sOW}, s{sF1}")
            I(f"s_add_u32 m0, s{sOW}, {OWN}")
            I(f"s_lshl2_add_u32 s{sL}, s{sF1}, s{sL}")
            I(f"buffer_load_dwordx4 v{vOA}, {sq(sX)}, s{sL} offen lds")
        I("s_mov_b32 exec_hi, -1")
        L("L_NOOWN")
    srd(sWS, pWS, WS_USED)
    I(f"s_lshl_b32 s{sL}, s2, 7")
    I(f"s_add_u32 s{sL}, s{sL}, {WS_CELL}")
    srd(sCEL, pWS, 255*RS + XOFF + 128, f"s{sL}")
    cM, cN, cP, cPM, cR = sM, sM + 1, sM + 2, sM + 3, sM + 4
    m2 = sM + 6
    I(f"s_mov_b32 s{cM}, 85599")
    I(f"s_mov_b32 s{cN}, {-BN & 0xffffffff}")
    I(f"s_movk_i32 s{cP}, 5368")
    I(f"s_mov_b32 s{cPM}, {opt('phm', 3) << 26:#x}")
    I(f"s_mov_b32 s{cR}, {RS}")
    if opt("rot", 1): I(f"s_mov_b32 s{sSP}, {-(196*5368) & 0xffffffff:#x}")
    for i in range(4): I(f"v_add_u32 v{vID+i}, {i}, v{u(3)}")
    I(f"s_lshl_b32 s{sA}, s{sWP}, 28")
    I(f"s_or_b32 s{sA}, s{sA}, 0x20000")
    I(f"v_mov_b32 v{vIC}, s{sA}")
    if BAL:
        assert MG <= 1 and OLP != 3
        I(f"s_lshr_b32 s{sA}, s{sWP}, 1")
        I(f"s_lshl_b32 s{sA}, s{sA}, 28")
        I(f"s_or_b32 s{sA}, s{sA}, 0x80020000")
        I(f"v_mov_b32 v{vIC+1}, s{sA}")
        I(f"v_mov_b32 v{vIC+3}, 0xc0020000")
        I(f"v_lshlrev_b32 v{vID+4}, 1, v{tid}")
        I(f"v_add_u32 v{vID+5}, 1, v{vID+4}")
        I(f"v_mov_b32 v{vID+6}, v{tid}")
    else: I(f"v_or_b32 v{vIC+1}, 0x80000000, v{vIC}")
    idr = (lambda i: vID + i) if BAL else (lambda i: vID + (i & 3))
    icr = (lambda i: vIC + (3 if i == 6 else i >> 2)) if BAL else (lambda i: vIC + (i >> 2))
    NR = 7 if BAL else 8
    I(f"v_mov_b32 v{one}, 33")
    vK1 = vIC + 2
    I(f"v_mov_b32 v{vK1}, 0x400")
    if opt("ro", 0): I(f"v_mov_b32 v{vIC+4}, {opt('ro', 0) << 24:#x}")
    if not FH:
        I(f"s_sub_u32 s{sBt}, s{sBt}, 0x2000")
        I(f"v_cmp_gt_u32 {sp(m2)}, s{sBt}, v{vT16}")
    I(f"s_and_b32 s{sA}, s{sWP}, 3")
    I(f"s_lshr_b32 s{sW}, s{sWP}, 2")
    I(f"s_lshl1_add_u32 s{sW}, s{sA}, s{sW}")
    if opt("swp", 1): I(f"s_xor_b32 s{sW}, s{sW}, 1")
    I(f"s_mul_i32 s{sA}, s{sW}, 49")
    I(f"s_sub_i32 s{sA}, s{sA}, 6")
    I(f"s_ashr_i32 s{sA}, s{sA}, 1")
    I(f"s_max_i32 s{sWIN}, s{sA}, 0")
    I(f"s_mul_i32 s{sSTG}, s{sW}, {SLOT}")
    I(f"s_add_u32 s{sSTG}, s{sSTG}, {XSTG}")
    I(f"s_lshl_b32 s{sES}, s{sW}, 10")
    I(f"s_add_u32 s{sES}, s{sES}, {ESTG}")
    I(f"s_mul_i32 s{sL}, s{sW}, {2*LWB}")
    I(f"s_add_u32 s{sL}, s{sL}, {R0}")
    I(f"s_movk_i32 s{s128}, 128")
    if G2 == 3: group2()
    I(f"v_bfe_u32 v{u(6)}, v{tid}, 4, 4")
    I(f"v_and_b32 v{u(7)}, 7, v{tid}")
    I(f"v_cmp_eq_u32 vcc, v{u(6)}, v{u(7)}")
    I(f"v_and_b32 v{u(6)}, 8, v{tid}")
    I(f"v_lshlrev_b32 v{u(6)}, 1, v{u(6)}")
    I(f"v_mov_b32 v{u(8)}, 0x3f80")
    I(f"v_lshlrev_b32 v{u(8)}, v{u(6)}, v{u(8)}")
    I(f"v_cndmask_b32 v{u(8)}, 0, v{u(8)}, vcc")
    I(f"ds_write_b32 v{u(4)}, v{u(8)} offset:{TAB}")
    I(f"v_mov_b64 {rr(u(8),2)}, 0")
    I(f"ds_write_b64 v{u(2)}, {rr(u(8),2)} offset:{HIST}")
    I(f"v_add_u32 v{u(6)}, {PRG}, v{u(3)}")
    I(f"ds_write_b32 v{u(6)}, v{u(8)}")
    go, lo, lo2, ha = vR, vR + 1, vR + 2, vR + 3
    wl, wal = vR + 4, vR + 5
    I(f"v_lshrrev_b32 v{ha}, 3, v{tid}")
    TW = opt("tw", "")
    lob, l2b = vR + 6, vR + 7
    sRG = sM + 28
    I(f"v_mul_u32_u24 v{wl}, {LROW}, v{ha}")
    if TW:
        I(f"v_and_b32 v{lo2}, 24, v{ha}")
        I(f"v_and_b32 v{go}, 7, v{ha}")
        I(f"v_lshl_add_u32 v{lo2}, v{lo2}, 1, v{go}")
        I(f"v_mad_u32_u24 v{go}, v{lo2}, s{cR}, v{vCP}")
        I(f"s_lshr_b32 s{sRG}, s{sWP}, 2")
        I(f"s_lshl_b32 s{sRG}, s{sRG}, 7")
        I(f"s_sub_u32 s{sRG}, s{sRG}, s2")
        I(f"s_add_u32 s{sRG}, s{sRG}, 63")
        I(f"s_add_u32 s{sRG+1}, s{sRG}, 64")
        I(f"s_and_b32 s{sRG}, s{sRG}, 0xc0")
        I(f"s_and_b32 s{sRG+1}, s{sRG+1}, 0xc0")
        I(f"v_add_u32 v{l2b}, s{sRG+1}, v{lo2}")
        I(f"v_add_u32 v{lo2}, s{sRG}, v{lo2}")
        I(f"v_add_u32 v{u(6)}, {CIMG}, v{vCP}")
        I(f"s_movk_i32 s{sA}, {LROW}")
        I(f"v_mad_u32_u24 v{lo}, v{lo2}, s{sA}, v{u(6)}")
        I(f"v_mad_u32_u24 v{lob}, v{l2b}, s{sA}, v{u(6)}")
        I(f"v_lshlrev_b32 v{lo2}, 2, v{lo2}")
        I(f"v_lshlrev_b32 v{l2b}, 2, v{l2b}")
    else:
        I(f"v_mad_u32_u24 v{go}, v{ha}, s{cR}, v{vCP}")
        I(f"v_add_u32 v{lo}, v{wl}, v{vCP}")
        I(f"v_add_u32 v{lo}, {CIMG}, v{lo}")
    assert LROW == WR
    I(f"v_bfe_u32 v{u(6)}, v{tid}, 5, 1")
    I(f"v_bfe_u32 v{u(8)}, v{tid}, 6, 1")
    I(f"v_sub_u32 v{u(6)}, v{u(6)}, v{u(8)}")
    I(f"v_mul_i32_i24 v{u(6)}, {4*WR}, v{u(6)}")
    I(f"v_add_u32 v{wl}, v{wl}, v{u(6)}")
    I(f"v_lshl_add_u32 v{wl}, v{u(7)}, 2, v{wl}")
    I(f"v_add_u32 v{wl}, {WBI}, v{wl}")
    I(f"v_lshlrev_b32 v{l16}, 4, v{lane}")
    I(f"v_and_b32 v{u(6)}, 3, v{lane}")
    I(f"v_lshlrev_b32 v{vcS}, 3, v{u(6)}")
    I(f"v_bfe_u32 v{u(9)}, v{lane}, 2, 3")
    I(f"v_lshrrev_b32 v{u(8)}, 5, v{lane}")
    I(f"v_lshl_add_u32 v{u(9)}, v{u(8)}, 4, v{u(9)}")
    I(f"v_mul_u32_u24 v{wal}, {WR}, v{u(9)}")
    I(f"v_add_u32 v{wal}, v{wal}, v{vcS}")
    mm = lambda i: sM + 8 + 2*i
    def rank_a(rs, wsrc=0, plain=False):
        for i in rs: I(f"v_mul_u32_u24 v{vBK+i}, s{cM}, v{vD+i}")
        if rs[0] // 4 < MG and not plain:
            b = rs[0]
            for i in rs: I(f"v_lshrrev_b32 v{vHA+i}, 29, v{vBK+i}")
            if opt("px", 0):
                I(f"s_waitcnt vmcnt({wsrc})")
                for i in rs:
                    I(f"v_cmp_gt_u32 vcc, {opt('px', 0)}, v{vSR+i}")
                    I("s_nop 1")
                    I(f"v_cndmask_b32 v{vHA+i}, v{vHA+i}, v{vID+(i&3)}, vcc") if False else I(f"v_cndmask_b32_e64 v{vHA+i}, v{vHA+i}, {8+(i&3)}, vcc")
            t0, t1 = sM + 24, sM + 26
            I(f"v_cmp_eq_u32 {sp(mm(b))}, v{vHA+b}, v{vHA+b+1}")
            I(f"v_cmp_eq_u32 {sp(mm(b+2))}, v{vHA+b+2}, v{vHA+b+3}")
            I(f"v_cmp_eq_u32 vcc, v{vHA+b}, v{vHA+b+2}")
            I(f"v_cmp_eq_u32 {sp(t0)}, v{vHA+b+1}, v{vHA+b+3}")
            I(f"v_cmp_eq_u32 {sp(t1)}, v{vHA+b}, v{vHA+b+3}")
            I(f"v_cmp_eq_u32 {sp(sA)}, v{vHA+b+1}, v{vHA+b+2}")
            for i in rs: I(f"v_lshrrev_b32 v{vBK+i}, 24, v{vBK+i}")
            I(f"s_or_b64 {sp(mm(b+1))}, {sp(mm(b))}, {sp(t0)}")
            I(f"s_or_b64 {sp(mm(b+3))}, {sp(mm(b+2))}, {sp(t0)}")
            I(f"s_or_b64 {sp(mm(b))}, {sp(mm(b))}, vcc")
            I(f"s_or_b64 {sp(mm(b+2))}, {sp(mm(b+2))}, vcc")
            I(f"s_or_b64 {sp(mm(b))}, {sp(mm(b))}, {sp(t1)}")
            I(f"s_or_b64 {sp(mm(b+1))}, {sp(mm(b+1))}, {sp(sA)}")
            I(f"s_or_b64 {sp(mm(b+2))}, {sp(mm(b+2))}, {sp(sA)}")
            I(f"s_or_b64 {sp(mm(b+3))}, {sp(mm(b+3))}, {sp(t1)}")
            for i in rs:
                I(f"v_cndmask_b32 v{vHA+i}, 0, v{vK1}, {sp(mm(i))}")
                I(f"v_lshl_add_u32 v{vHA+i}, v{vBK+i}, 2, v{vHA+i}")
                I(f"ds_add_rtn_u32 v{vRK1+i}, v{vHA+i}, v{one} offset:{HIST1}")
            return
        for i in rs: I(f"v_lshrrev_b32 v{vBK+i}, 24, v{vBK+i}")
        for i in rs:
            I(f"v_lshlrev_b32 v{vHA+i}, 2, v{vBK+i}")
            I(f"ds_add_rtn_u32 v{vRK1+i}, v{vHA+i}, v{one} offset:{HIST1}")
    def again(rs, wait, em):
        for i in rs:
            I(f"s_waitcnt lgkmcnt({wait})")
            I(f"s_mov_b64 exec, {sp(mm(i))}")
            I(f"v_cmpx_le_u32 vcc, {33*JE}, v{vRK1+i}")
            I(f"ds_add_rtn_u32 v{vRK1+i}, v{vHA+i}, v{one} offset:{HIST1 - 1024}")
        I(f"s_mov_b64 exec, {em}")
    def rank_b(rs):
        for i in rs:
            I(f"v_mad_i32_i24 v{vD+i}, v{vBK+i}, s{cN}, v{vD+i}")
            if opt("ro", 0): I(f"v_mad_u32_u24 v{u(6)}, s{cP}, v{vSR+i}, v{vIC+4}")
            else: I(f"v_mul_u32_u24 v{u(6)}, s{cP}, v{vSR+i}")
            I(f"v_lshl_or_b32 v{vSR+i}, v{vD+i}, 18, v{vSR+i}")
            if opt("rot", 1):
                I(f"v_and_b32 v{vD+i}, 0xe0, v{vBK+i}")
                I(f"v_mad_i32_i24 v{u(6)}, v{vD+i}, s{sSP}, v{u(6)}")
            I(f"v_and_or_b32 v{u(6)}, v{u(6)}, s{cPM}, v{icr(i)}")
            I(f"v_mad_u32_u24 v{vD+i}, v{vBK+i}, {LROW//4}, s{cN+4}")
            I(f"v_or_b32 v{vSR+i}, v{vSR+i}, v{u(6)}")
    def place(i, wait, em):
        I(f"s_waitcnt lgkmcnt({wait})")
        I(f"v_bfe_u32 v{u(6)}, v{vRK1+i}, 3, 5")
        I(f"v_add_lshl_u32 v{vD+i}, v{u(6)}, v{vD+i}, 2")
        I(f"v_and_b32 v{u(6)}, 3, v{u(6)}")
        I(f"v_mad_i32_i24 v{u(6)}, v{u(6)}, -3, v{vD+i}")
        I(f"v_cmpx_gt_u32 vcc, {33*CAP}, v{vRK1+i}")
        I(f"ds_write_b32 v{vD+i}, v{vSR+i}")
        I(f"ds_write_b8 v{u(6)}, v{idr(i)} offset:12")
        I(f"s_mov_b64 exec, {em}")
    I(f"s_movk_i32 s{cN+4}, {CIMG//4}")
    for d in range(2): I(f"v_mov_b64 {rr(vRK1+4+2*d,2)}, 0")
    I("s_waitcnt lgkmcnt(0)")
    I("s_barrier")
    if BAL:
        m3 = sM + 28
        I("s_waitcnt vmcnt(3)")
        stamp(1)
        if TS: STN.pop()
        rank_a(range(4))
        I("s_waitcnt vmcnt(2)")
        I(f"s_mov_b64 exec, {sp(m2)}")
        rank_a(range(4, 6))
        if MG: again(range(4), 5, "-1")
        else: I("s_mov_b64 exec, -1")
        I("s_waitcnt vmcnt(0)")
        rank_b(range(6))
        I(f"s_mov_b64 exec, {sp(m2)}")
        for i in range(4, 6): place(i, (1 if MG else -3) + i, sp(m2) if i < 5 else "-1")
        for i in range(4): place(i, 7 + i, "-1")
        I(f"s_mov_b64 exec, {sp(m3)}")
        I("s_cbranch_execz L_B1")
        rank_a([6]); rank_b([6]); place(6, 0, "-1")
        I("s_branch L_B1")
    I(f"s_cmp_eq_u64 {sp(m2)}, 0" if FH else f"s_cmp_ge_u32 s{sWP}, 5")
    I("s_cbranch_scc1 L_R4")
    I(f"s_waitcnt vmcnt({3+KV})")
    stamp(1)
    rank_a(range(4), 2)
    I(f"s_waitcnt vmcnt({1+KV})")
    I(f"s_mov_b64 exec, {sp(m2)}")
    rank_a(range(4, 8))
    if MG == 0:
        I("s_mov_b64 exec, -1")
        rank_b(range(4))
        for i in range(4): place(i, 7 + i, "-1" if i < 3 else sp(m2))
        I(f"s_waitcnt vmcnt({KV})")
        rank_b(range(4, 8))
        for i in range(4, 8): place(i, 7 + i, sp(m2) if i < 7 else "-1")
    elif MG == 1:
        again(range(4), 7, sp(m2))
        I(f"s_waitcnt vmcnt({KV})")
        rank_b(range(4, 8))
        for i in range(4, 8): place(i, 3 + i, sp(m2) if i < 7 else "-1")
        rank_b(range(4))
        for i in range(4): place(i, 11 + i, "-1")
    else:
        again(range(8), 7, "-1")
        rank_b(range(4))
        for i in range(4): place(i, 7 + i, "-1" if i < 3 else sp(m2))
        I(f"s_waitcnt vmcnt({KV})")
        rank_b(range(4, 8))
        for i in range(4, 8): place(i, 7 + i, sp(m2) if i < 7 else "-1")
    I("s_branch L_B1")
    L("L_R4")
    TL = opt("tl", 0)
    if TL:
        TM = opt("tm", "xeo")
        OY = len(TM)
        if opt("tl2", 0):
            I("s_lshr_b32 s10, s2, 3")
            I(f"s_lshl_b32 s10, s10, {TL-5}")
        else: I(f"s_lshl_b32 s10, s2, 7")
        I(f"v_lshl_add_u32 v{vEA}, v{lane}, {TL}, s10")
        I(f"v_lshrrev_b32 v{vEI}, 5, v{vEA}")
        I(f"s_cmp_eq_u32 s{sWP}, 7")
        I("s_cselect_b64 exec, -1, 1")
        if "w" in TM:
            I("s_and_b32 s10, s2, -8")
            I(f"v_and_b32 v{vQD}, 7, v{lane}")
            I(f"v_add_u32 v{vQD}, s10, v{vQD}")
            I(f"v_mul_u32_u24 v{vQD}, {RS}, v{vQD}")
            I(f"s_mov_b32 s10, {WS_CELL + 256*128}")
            I(f"buffer_load_dword v{vEA+1}, v{vQD}, {sq(sWS)}, s10 offen")
        if "x" in TM: I(f"buffer_load_dword v{vEA+1}, v{vEA}, {sq(sX)}, 0 offen")
        if "e" in TM: I(f"buffer_load_dword v{vEA+1}, v{vEI}, {sq(sEP)}, 0 idxen")
        if "o" in TM: I(f"buffer_load_dword v{vEA+1}, v{vEA}, {sq(sOUT)}, 0 offen")
        I("s_mov_b64 exec, -1")
    elif OY:
        I(f"s_cmp_ge_u32 s{sWP}, {OW0}")
        I("s_cbranch_scc1 L_R4A")
        I(f"s_waitcnt vmcnt({KV})")
        L("L_R4A")
    I(f"s_waitcnt vmcnt({1 + OY + KV})")
    if TS: STN.pop()
    stamp(1)
    YM = opt("ym", 1)
    rank_a(range(4), plain=not YM)
    I(f"s_waitcnt vmcnt({OY + KV})")
    if MG and YM:
        rank_b(range(2))
        again(range(4), 3, "-1")
        rank_b(range(2, 4))
    else: rank_b(range(4))
    for i in range(4): place(i, 3 + i, "-1")
    L("L_B1")
    if BAL:
        k_ = max(i for i, l in enumerate(out) if l.strip() == "s_cbranch_execz L_B1")
        e_ = next(i for i in range(k_, len(out)) if out[i].strip() == "s_branch L_B1")
        del out[e_:len(out)-1]
        I("s_mov_b64 exec, -1")
    WL = opt("wl", 0)
    if not WL: w_loads()
    vTG = vS + 2
    def tagcalc():
        I(f"s_add_u32 s{sK}, s{sK}, {KINC:#x}")
        I(f"v_lshlrev_b32 v{vTG}, v{vcS}, s{sK}")
        I(f"v_and_b32 v{u(1)}, 4, v{lane}")
        I(f"v_mul_u32_u24 v{u(1)}, {37 << 15}, v{u(1)}")
        I(f"v_lshl_add_u32 v{vTG}, v{u(1)}, 8, v{vTG}")
        I(f"v_and_b32 v{vTG}, 0xfe000000, v{vTG}")
    if not KV: tagcalc()
    vTH = vS + 3
    I(f"v_and_b32 v{vTH}, 7, v{lane}")
    I(f"v_mul_u32_u24 v{vTH}, 33, v{vTH}")
    I(f"v_add_u32 v{vTH}, {33*CAP}, v{vTH}")
    if not TW: I(f"v_lshlrev_b32 v{lo2}, 2, v{ha}")
    I(f"s_mov_b32 s{cM}, 0x1000000")
    I("s_waitcnt lgkmcnt(0)")
    I("s_barrier")
    stamp(2)
    vO, vHS = vQ, u(4)
    I(f"ds_read_b128 {rr(vHS,4)}, v{l16} offset:{HIST1}")
    vHD = vR + 8
    for i in range(4):
        if TW:
            I(f"ds_read_b32 v{vHD+i}, v{(lo2, l2b)[i>>1]} offset:{HIST1 + 32*(i&1)}")
            I(f"ds_read_b128 {rr(vO+4*i,4)}, v{(lo, lob)[i>>1]} offset:{8*LROW*(i&1)}")
            continue
        I(f"ds_read_b32 v{vHD+i}, v{lo2} offset:{HIST1 + 256*i}")
        I(f"ds_read_b128 {rr(vO+4*i,4)}, v{lo} offset:{64*LROW*i}")
    if KV:
        I("s_waitcnt vmcnt(4)")
        I(f"v_readfirstlane_b32 s{sK}, v{vEA+1}")
    if TW:
        for h in range(2):
            I(f"s_mul_i32 s{sM+15+2*h}, s{sRG+h}, {RS}")
            I(f"s_add_u32 s{sM+16+2*h}, s{sM+15+2*h}, {8*RS}")
    else:
        for i in range(1, 4): I(f"s_mov_b32 s{sM+15+i}, {64*RS*i}")
    if KV: tagcalc()
    I("s_waitcnt lgkmcnt(8)")
    I(f"v_max3_u32 v{u(0)}, v{vHS}, v{vHS+1}, v{vHS+2}")
    I(f"v_max_u32 v{u(0)}, v{u(0)}, v{vHS+3}")
    I(f"v_cmp_lt_u32 vcc, {33*(CAP+8)}, v{u(0)}")
    I("s_cbranch_vccnz L_POVF")
    L("L_POUT")
    for i in range(4):
        I(f"s_waitcnt lgkmcnt({7 - 2*i})")
        I(f"v_sub_u32 v{vHD+i}, v{vTH}, v{vHD+i}")
        I(f"v_and_or_b32 v{vHD+i}, v{vHD+i}, s{cM}, v{vTG}")
        I(f"s_waitcnt lgkmcnt({6 - 2*i})")
        I(f"v_or_b32 v{vO+4*i+3}, v{vO+4*i+3}, v{vHD+i}")
        I(f"buffer_store_dwordx4 {rr(vO+4*i,4)}, v{go}, {sq(sCEL)}, {f's{sM+15+i}' if i or TW else '0'} offen{pol(STP)}")
    stamp(3)
    if WL: w_loads()
    if "c" in opt("tsx", ""): I("s_waitcnt vmcnt(0)")
    stamp("c0")
    t = vACC + 32
    I(f"s_mov_b32 s{sA}, {f2u(-LOG2E):#x}")
    I(f"s_mov_b32 s{sBt}, s{sA}")
    I(f"s_mov_b32 s{cM}, 0x05040100")
    I(f"s_mov_b32 s{cP}, 0x07060302")
    def wscaled(src, off):
        for d in range(4):
            I(f"v_lshlrev_b32 v{t+2*d}, 16, v{src+d}")
            I(f"v_and_b32 v{t+2*d+1}, 0xffff0000, v{src+d}")
        for d in range(4): I(f"v_pk_mul_f32 {rr(t+2*d,2)}, {rr(t+2*d,2)}, {sp(sA)}")
        for n in range(4): I(f"v_cvt_pk_bf16_f32 v{t+8+n}, v{t+n}, v{t+4+n}")
        wput(t + 8, off)
    def wplain(src, off, tt):
        for n in range(4): I(f"v_perm_b32 v{tt+n}, v{src+2+(n>>1)}, v{src+(n>>1)}, s{cP if n & 1 else cM}")
        wput(tt, off)
    def wput(r, off):
        a = wl
        if off:
            a = r + 4
            I(f"v_add_u32 v{a}, {off}, v{wl}")
        I(f"ds_write2_b32 v{a}, v{r}, v{r+1} offset0:0 offset1:8")
        I(f"ds_write2_b32 v{a}, v{r+2}, v{r+3} offset0:16 offset1:24")
    I(f"s_waitcnt vmcnt({0 if WL else 4})")
    if PFP == 0: x_prefetch()
    stamp("b4")
    wplain(vRW + 8, WAI - WBI, t + 16)
    wscaled(vRW, 0)
    wplain(vRW + 4, WVI - WBI, t + 24)
    wplain(vRW + 12, WUI - WBI, t + 16)
    I(f"s_cmp_ge_u32 s{sWP}, 2")
    I("s_cbranch_scc1 L_NOWC")
    wscaled(vEO, WCI - WBI)
    L("L_NOWC")
    I(f"s_mul_i32 s{sTM}, s{sB}, {RS}")
    I(f"s_add_u32 s{sTM}, s{sTM}, {WS_CELL}")
    srd(sCEL, pWS, 256*128, f"s{sTM}")
    I(f"s_add_u32 s{sTM}, s{sTM}, {XOFF}")
    srd(sD2, pWS, 256*128, f"s{sTM}")
    vC, vEB = vACC + 32, vACC + 60
    pa = vT16
    def goff(d, k):
        if not TW: return I(f"s_movk_i32 s{d}, {8192*k}")
        I(f"s_sub_u32 s{d}, {64*k + 63}, s{sB}")
        I(f"s_and_b32 s{d}, s{d}, 0xc0")
        I(f"s_lshl_b32 s{d}, s{d}, 7")
    for k in range(4): goff(sCI + k, k)
    def poll_load(i):
        so = f"s{sCI+i}"
        I(f"buffer_load_dwordx4 {rr(vC+4*i,4)}, v{pa}, {sq(sCEL)}, {so} offen sc1")
    I("s_waitcnt lgkmcnt(0)")
    I("s_barrier")
    stamp(4)
    def ppoint(k):
        for i in range(4):
            if TW and int(TW[i]) == k: poll_load(i)
    ppoint(0)
    if WL == 1:
        for i in range(4): poll_load(i)
    if PFP == 1: x_prefetch()
    if OLP == 0: own_loads()
    vWA = vACC
    I(f"v_add_u32 v{wal}, {WBI}, v{wal}")
    def trw(reg, img):
        return [f"ds_read_b64_tr_b16 {rr(reg+8*n+4*s+2*uu,2)}, v{wal} offset:{img + (32*s + 8*uu)*WR + 32*n}"
                for n in range(4) for s in range(2) for uu in range(2)]
    tw = trw(vWB, 0) + trw(vWV, WVI - WBI)
    for x_ in tw[:14]: I(x_)
    prefill(vCA)
    ppoint(1)
    if WL == 2:
        for i in range(4): poll_load(i)
    for x_ in tw[14:24]: I(x_)
    nxt = 24
    I(f"v_mov_b32 v{u(4)}, v{wal}")
    I("s_mov_b32 exec_lo, 0")
    I(f"v_subrev_u32 v{u(4)}, {16*WR}, v{wal}")
    I("s_mov_b32 exec_lo, -1")
    tw += [f"ds_read_b64_tr_b16 {rr(vCA+16+4*n+2*uu,2)}, v{u(4)} offset:{WCI - WBI + 8*uu*WR + 32*n}" for n in range(4) for uu in range(2)]
    vEM, vET = vEO, vACC + 56
    ownn, owna, mapa = vEO + 1, vEO + 2, vEO + 3
    I("s_waitcnt lgkmcnt(4)")
    for x_ in tw[nxt:]: I(x_)
    I(f"v_add_u32 v{wal}, {WAI - WBI}, v{wal}")
    ppoint(2)
    vFF = vEO + 4
    vMU = vR + 8
    lo0, hi0, lo1, hi1 = sWS0, sWS1, sB0E, sSH
    def late_setup():
        I(f"v_and_b32 v{vCH}, 1, v{lane}")
        I(f"v_lshlrev_b32 v{vCH}, 4, v{vCH}")
        I(f"v_mov_b32 v{vONE}, 0x3f80")
        I(f"v_and_b32 v{vcEO}, 16, v{lane}")
        I(f"v_and_b32 v{u(6)}, 15, v{lane}")
        I(f"v_lshl_add_u32 v{u(6)}, v{u(6)}, 5, s{sES}")
        I("s_mov_b32 exec_hi, 0")
        I(f"v_add_u32 v{vcEO}, v{vcEO}, v{u(6)}")
        I("s_mov_b32 exec_hi, -1")
        I(f"v_and_b32 v{u(6)}, 3, v{lane}")
        I(f"v_bfe_u32 v{u(8)}, v{lane}, 2, 2")
        I(f"v_and_b32 v{u(9)}, 48, v{lane}")
        I(f"v_lshl_add_u32 v{u(10)}, v{u(8)}, 7, v{u(9)}")
        I(f"v_mul_u32_u24 v{vAX}, {XI}, v{u(6)}")
        I(f"v_add3_u32 v{vAX}, v{vAX}, v{u(10)}, s{sSTG}")
        listaddr(u(6))
        I(f"v_mul_u32_u24 v{vEB+3}, {CH}, v{ha}")
        for i in range(4):
            if not TW:
                I(f"v_add_u32 v{vEB+i}, {64*i*CH}, v{vEB+3}"); continue
            I(f"s_lshr_b32 s10, s{sCI+i}, 7")
            I(f"s_mul_i32 s10, s10, {CH}")
            I(f"v_add_u32 v{vEB+i}, s10, v{vEB+3}")
        I(f"s_mov_b32 s{sEM}, {EMASK:#x}")
        I(f"s_mov_b32 s{sEM+1}, {EMASK:#x}")
        vFF = vEO + 4
        I(f"v_mov_b32 v{vFF}, 0xfffff")
        I(f"v_mov_b32 v{vEM}, 0")
        I(f"v_add_lshl_u32 v{u(3)}, v{pa}, v{vCP}, 16")
        for i in range(4):
            I(f"v_add_u32 v{vET+i}, {(EARLY + 8192*i) << 16:#x}, v{u(3)}")
            I(f"v_cndmask_b32 v{vET+i}, 0, v{vET+i}, {sp(sEM)}")
        I(f"v_mov_b32 v{one}, 4")
        I(f"v_and_b32 v{ownn}, 31, v{lane}")
        I(f"v_add_lshl_u32 v{mapa}, v{ownn}, s{sWIN}, 2")
        I(f"v_lshrrev_b32 v{u(3)}, 5, v{lane}")
        I(f"v_lshl_add_u32 v{owna}, v{u(3)}, 11, v{mapa}")
        I(f"v_add_u32 v{mapa}, {MAP}, v{mapa}")
        I(f"v_lshlrev_b32 v{u(3)}, 2, v{lane}")
        I(f"v_subrev_u32 v{u(3)}, s{sWIN}, v{u(3)}")
        I("s_mov_b32 s10, 0x10000")
        for i in range(4):
            I(f"v_add_u32 v{vMU+i}, {i}, v{u(3)}")
            I(f"v_and_or_b32 v{vMU+i}, v{vMU+i}, s10, 1")
        I(f"s_movk_i32 s{sFM}, 0xffc")
        I(f"s_movk_i32 s{sSKIP}, {CAP+8}")
        I(f"s_mov_b32 s{sXT}, 0")
        I(f"s_mov_b32 s{sSP}, 0")
        I(f"s_mov_b32 s{sT}, 0x1ffffff")
        I(f"s_mov_b32 s{sN}, 0xffff")
        lo0, hi0, lo1, hi1 = sWS0, sWS1, sB0E, sSH
        I(f"s_mul_i32 s10, s{sW}, 49")
        I(f"s_sub_i32 s{lo0}, s10, 6")
        I(f"s_ashr_i32 s{lo0}, s{lo0}, 1")
        I(f"s_add_i32 s{hi0}, s10, 7")
        I(f"s_ashr_i32 s{hi0}, s{hi0}, 1")
        I(f"s_add_i32 s{lo1}, s10, 43")
        I(f"s_ashr_i32 s{lo1}, s{lo1}, 1")
        I(f"s_add_i32 s{hi1}, s{lo0}, 31")
        I(f"s_cmp_eq_u32 s{sW}, 7")
        I(f"s_cselect_b32 s{lo1}, {BN}, s{lo1}")
        I(f"s_cselect_b32 s{hi1}, {BN}, s{hi1}")
        for r_ in (hi0, lo1, hi1): I(f"s_sub_i32 s{r_}, s{r_}, s{sWIN}")
    LS = opt("ls", 0)
    if LS == 0: late_setup()
    stamp("b0")
    if opt("pw", 1) and not WL: I(f"s_waitcnt vmcnt({sum(c != '3' for c in TW)})")
    stamp("b1")
    if opt("pbar", 0): I("s_barrier")
    if TW: ppoint(3)
    elif WL in (0, 3):
        for i in range(4): poll_load(i)
    if OLP == 1: own_loads()
    if LS == 1: late_setup()
    PY = 4 if OLP == 1 else 0
    I(f"v_max3_u32 v{u(0)}, v{vRK1}, v{vRK1+1}, v{vRK1+2}")
    I(f"v_max3_u32 v{u(1)}, v{vRK1+3}, v{vRK1+4}, v{vRK1+5}")
    I(f"v_max3_u32 v{u(0)}, v{u(0)}, v{vRK1+6}, v{vRK1+7}")
    I(f"v_max_u32 v{u(0)}, v{u(0)}, v{u(1)}")
    I(f"v_cmp_le_u32 vcc, {33*CAP}, v{u(0)}")
    I("s_cbranch_vccz L_PEXTR")
    q = vCA
    if TS: I(f"v_writelane_b32 v{vTS}, 1, 61")
    I(f"v_mov_b32 v{q+1}, s{sK}")
    I(f"s_lshl_b32 s{sTM}, s2, 7")
    I(f"s_add_u32 s{sTM}, s{sTM}, {WS_CELL + XOFF}")
    for i in range(NR):
        I(f"v_subrev_u32 v{q+4}, {33*CAP}, v{vRK1+i}")
        I(f"v_cmpx_gt_u32 vcc, {33*8}, v{q+4}")
        I(f"s_cbranch_execz L_PE{i}")
        I(f"v_mov_b32 v{q}, v{vSR+i}")
        I(f"v_mov_b32 v{q+2}, v{idr(i)}")
        I(f"v_bfe_u32 v{q+4}, v{vRK1+i}, 5, 3")
        I(f"v_lshlrev_b32 v{q+4}, 4, v{q+4}")
        I(f"v_mad_u32_u24 v{q+4}, v{vBK+i}, s{cR}, v{q+4}")
        I(f"buffer_store_dwordx4 {rr(q,4)}, v{q+4}, {sq(sWS)}, s{sTM} offen sc1")
        L(f"L_PE{i}")
        I("s_mov_b64 exec, -1")
    L("L_PEXTR")
    stamp(5)
    vA, vRK, vR1 = vACC, vACC + 16, vQ
    mk = lambda i, j: sM + 2*(4*i + j)
    def rec_ops(d, x, byte, eb, a, r1):
        return [f"v_add_u32_sdwa v{r1}, v{x}, v{eb} {SDW} src0_sel:BYTE_{byte} src1_sel:DWORD",
                f"v_lshrrev_b32 v{u(1)}, 28, v{d}",
                f"v_lshl_add_u32 v{r1}, v{u(1)}, 8, v{r1}",
                f"v_and_b32 v{u(1)}, 60, v{a}",
                f"v_and_b32 v{d}, 0xffff, v{d}",
                f"v_lshl_or_b32 v{d}, v{u(1)}, 19, v{d}"]
    def spin():
        I(f"s_add_u32 s{sSP}, s{sSP}, 1")
        I(f"s_cmp_gt_u32 s{sSP}, {opt('spin', 200000)}")
        I("s_cbranch_scc1 L_END")
        if opt("slp", 1): I(f"s_sleep {opt('slp', 1)}")
    xg = vCA
    def xload(tag):
        for i in range(4):
            I(f"s_mov_b64 exec, {sp(mk(i,3))}")
            I(f"s_cbranch_execz L_XL{tag}{i}")
            goff(10, i)
            I(f"buffer_load_dwordx4 {rr(xg+4*i,4)}, v{pa}, {sq(sD2)}, s10 offen sc1")
            L(f"L_XL{tag}{i}")
        I("s_mov_b64 exec, -1")
    for i in range(4):
        c_ = vC + 4*i
        L(f"L_PW{i}")
        I(f"s_waitcnt vmcnt({3 - i + PY})")
        I(f"v_xor_b32 v{u(0)}, v{c_+3}, v{vTG}")
        for j in range(3): I(f"v_and_b32_sdwa v{vA+4*i+j}, v{c_+j}, s{sFM} {SDW} src0_sel:WORD_1 src1_sel:DWORD")
        I(f"v_cmp_lt_u32 vcc, s{sT}, v{u(0)}")
        for j in range(3): I(f"v_cmp_ne_u32 {sp(mk(i,j))}, 0, v{c_+j}")
        I(f"s_cbranch_vccnz L_RT{i}")
        if i == 3: stamp(6)
        for j in range(3):
            I(f"s_mov_b64 exec, {sp(mk(i,j))}")
            I(f"ds_add_rtn_u32 v{vRK+4*i+j}, v{vA+4*i+j}, v{one} offset:{HIST}")
        I("s_mov_b64 exec, -1")
        I(f"v_or_b32 v{vEM}, v{vEM}, v{c_+1}")
        if i == 3:
            I(f"v_or3_b32 v{u(2)}, v{vC+3}, v{vC+7}, v{vC+11}")
            I(f"v_or_b32 v{u(2)}, v{u(2)}, v{vC+15}")
            I(f"v_and_b32 v{u(2)}, 0x1000000, v{u(2)}")
            I(f"v_cmp_ne_u32 vcc, 0, v{u(2)}")
            I("s_cbranch_vccz L_XT1R")
            def xt1():
                if TS: I(f"v_writelane_b32 v{vTS}, 1, 62")
                for i in range(4):
                    I(f"v_and_b32 v{u(2)}, 0x1000000, v{vC+4*i+3}")
                    I(f"v_cmp_ne_u32 {sp(mk(i,3))}, 0, v{u(2)}")
                    I(f"s_bcnt1_i32_b64 s10, {sp(mk(i,3))}")
                    I(f"s_lshl2_add_u32 s{sXT}, s10, s{sXT}")
                xload("a")
                I(f"v_and_b32 v{u(2)}, 0x10000, v{vEM}")
                I(f"v_mov_b32 v{u(3)}, {FLAG}")
                I(f"v_cmpx_ne_u32 vcc, 0, v{u(2)}")
                I(f"ds_write_b32 v{u(3)}, v{one} offset:4")
                I("s_mov_b64 exec, 1")
                I(f"v_mov_b32 v{u(2)}, s{sXT}")
                I(f"ds_add_u32 v{u(3)}, v{u(2)} offset:8")
                I("s_mov_b64 exec, -1")
            xt1()
            L("L_XT1R")
        ro = [rec_ops(c_+j, c_+3, j, vEB+i, vA+4*i+j, vR1+4*i+j) for j in range(3)]
        e_ = vR1 + 4*i + 3
        put(ro[0])
        if JE:
            I(f"v_cndmask_b32 v{u(0)}, v{vFF}, v{vR1+4*i}, {sp(mk(i,0))}")
            I(f"v_max_u32 v{vR1+4*i}, v{vR1+4*i}, v{vET+i}")
        put(ro[1])
        if JE:
            I(f"v_mov_b32_dpp v{u(2)}, v{u(0)} quad_perm:[2,2,3,3] row_mask:0xf bank_mask:0xf")
            I(f"v_mov_b32_dpp v{e_}, v{u(0)} quad_perm:[0,0,1,1] row_mask:0xf bank_mask:0xf")
        if i < 3: put(ro[2])
        else:
            put(ro[2][:3])
            fill = [x.replace(f"v{u(1)}", f"v{vQD+3}") for x in ro[2][3:]]
        if JE: I(f"v_mov_b32_dpp v{e_}, v{u(2)} row_shr:4 row_mask:0xf bank_mask:0xa")
    I(f"v_mov_b32 v{u(9)}, {FLAG}")
    if OLP == 2: own_loads()
    if PFP == 2: x_prefetch()
    I("s_waitcnt lgkmcnt(0)")
    stamp("d0")
    I("s_barrier")
    stamp(7)
    def early(i):
        if not JE: return
        I(f"s_lshl_b32 m0, s{sWP}, 10")
        I(f"v_mov_b32 v{vEI}, v{vR1+4*i+3}")
        I(f"s_add_u32 m0, m0, {EARLY + 8192*i}")
        if JE < 4:
            I(f"s_mov_b32 exec_lo, {((1 << 2*JE) - 1) * 0x01010101:#x}")
            I("s_mov_b32 exec_hi, exec_lo")
        else: I("s_nop 0")
        I(f"buffer_load_dwordx4 {rr(vEI,2)}, {sq(sEP)}, 0 idxen offen{pol(opt('eep', ''))} lds")
        if JE < 4: I("s_mov_b64 exec, -1")
    EPOS = opt("epos", "0134")
    def epoint(k):
        for i in range(4):
            if int(EPOS[i]) == k: early(i)
    c, p, tot, sc = u(0), u(4), u(8), u(9)
    hh = vX
    own, to2, ex, z_, eh, el = u(10), u(11), u(12), u(13), u(14), u(15)
    SD = f"{SDW} src0_sel:WORD_0 src1_sel:WORD_0"
    HL = f"{SDW} src0_sel:WORD_0 src1_sel:WORD_1"
    I(f"ds_read_u16 v{own}, v{owna} offset:{HIST}")
    I(f"ds_read_u16 v{to2}, v{owna} offset:{HIST + 1024}")
    for ph in range(4):
        I(f"ds_read_b128 {rr(hh+4*ph,4)}, v{l16} offset:{HIST + 1024*ph}")
    I(f"ds_read_b32 v{vQD}, v{sc} offset:8")
    if OLP == 4: own_loads()
    epoint(0)
    I("s_cmp_lg_u32 s2, 0")
    I("s_cbranch_scc1 L_NOK")
    I(f"v_mov_b32 v{vQD+1}, s{sK}")
    I(f"v_mov_b32 v{vQD+2}, 0")
    I(f"buffer_store_dword v{vQD+1}, v{vQD+2}, {sq(sWS)}, 0 offen sc1")
    L("L_NOK")
    I("s_waitcnt lgkmcnt(5)")
    I(f"v_lshl_or_b32 v{own}, v{to2}, 16, v{own}")
    I(f"v_mov_b32 v{to2}, v{own}")
    I("s_waitcnt lgkmcnt(0)")
    stamp("d1")
    f2 = []
    for i in range(4):
        f2 += [f"v_add_u32_sdwa v{c+i}, v{hh+i}, v{hh+4+i} {SD}", f"v_add_u32_sdwa v{p+i}, v{hh+8+i}, v{hh+12+i} {SD}"]
    f2 += [f"v_add_u32 v{c+i}, v{c+i}, v{p+i}" for i in range(4)]
    wave_scan(to2, f2, half=True)
    put(f2)
    I(f"v_mul_u32_u24 v{tot}, v{c}, v{vMU}")
    for i in range(1, 4): I(f"v_mad_u32_u24 v{tot}, v{c+i}, v{vMU+i}, v{tot}")
    f2 = [f"v_sub_u32 v{ex}, v{to2}, v{own}", f"v_add_u32_sdwa v{eh}, v{to2}, v{to2} {HL}",
          f"v_add_u32_sdwa v{z_}, v{ex}, v{ex} {HL}", f"v_add_u32_sdwa v{el}, v{own}, v{own} {HL}",
          fill.pop(0), f"v_readfirstlane_b32 s{sMORE}, v{vQD}",
          f"v_permlane32_swap_b32 v{z_}, v{eh}", f"v_cndmask_b32 v{el}, 0, v{el}, {sp(sJ3)}",
          f"v_add_u32 v{z_}, v{z_}, v{eh}", fill.pop(0),
          f"v_add_u32 v{eh}, v{z_}, v{el}", fill.pop(0)]
    I(f"s_mov_b32 s{sJ3}, -1")
    I(f"s_mov_b32 s{sJ3+1}, 0")
    wave_scan(tot, f2)
    assert not f2
    stamp("d2")
    I(f"v_sub_u32_sdwa v{el}, v{eh}, v{own} {SDW} src0_sel:DWORD src1_sel:WORD_1")
    I(f"v_readlane_b32 s{sT}, v{tot}, 63")
    epoint(1)
    ASYM = opt("asym", 12)
    I(f"s_bfe_u32 s10, s{sT}, 0xe0002")
    I(f"s_lshr_b32 s{sT}, s{sT}, 16")
    I("s_lshr_b32 s11, s10, 1")
    I(f"s_add_u32 s11, s11, {4*ASYM}")
    I("s_and_b32 s11, s11, -128")
    I(f"s_lshr_b32 s{sF0}, s{sW}, 1")
    I(f"s_mul_i32 s{sF0}, s{sF0}, s10")
    I(f"s_sub_i32 s11, s11, {4*ASYM}")
    I(f"s_sub_i32 s{sF0}, s{sF0}, s{sT}")
    I(f"s_add_i32 s11, s11, s{sF0}")
    I(f"s_add_i32 s10, s10, s{sF0}")
    I(f"s_bitcmp1_b32 s{sW}, 0")
    I(f"s_cselect_b32 s{sEND}, s11, s{sF0}")
    I("s_cselect_b32 s10, s10, s11")
    I(f"v_cmp_gt_i32 vcc, s{sEND}, v{eh}")
    I(f"v_cmp_gt_i32 {sp(sTM)}, s10, v{eh}")
    f0, f1 = sWS0, sWS1
    I(f"s_bcnt1_i32_b32 s{f0}, vcc_lo")
    I(f"s_bcnt1_i32_b32 s10, s{sTM}")
    I(f"s_min_i32 s{f0}, s{f0}, s{hi0}")
    I(f"s_max_i32 s10, s10, s{lo1}")
    I(f"s_min_i32 s{f1}, s10, s{hi1}")
    stamp("d3")
    epoint(2)
    A01, A23, E01, E23, Z1 = sCI, sCUR, sR0, sCNT, sST
    I(f"v_readlane_b32 s{sT}, v{z_}, s{f0}")
    I(f"v_readlane_b32 s{Z1}, v{z_}, s{f1}")
    I(f"s_add_u32 s{sF0}, s{f0}, s{sWIN}")
    I(f"s_add_u32 s{sF1}, s{f1}, s{sWIN}")
    I(f"s_add_u32 s10, s{f0}, 32")
    I(f"s_add_u32 s11, s{f1}, 32")
    I(f"v_readlane_b32 s{A01}, v{ex}, s{f0}")
    I(f"v_readlane_b32 s{E01}, v{ex}, s{f1}")
    I(f"v_readlane_b32 s{A23}, v{ex}, s10")
    I(f"v_readlane_b32 s{E23}, v{ex}, s11")
    I(f"s_sub_u32 s{sEND}, s{Z1}, s{sT}")
    I(f"s_add_u32 s10, s{sEND}, 255")
    if opt("flr", 1):
        I(f"s_sub_i32 s11, s{f1}, 16")
        I(f"s_max_i32 s11, s11, s{f0}")
        I(f"v_readlane_b32 s11, v{z_}, s11")
        I(f"s_add_u32 vcc_lo, s{sEND}, 127")
        I(f"s_and_b32 vcc_hi, vcc_lo, 127")
        I(f"s_add_u32 vcc_hi, vcc_hi, s{sMORE}")
        I(f"s_cmp_lt_u32 vcc_hi, 55")
        I(f"s_cselect_b32 vcc_lo, vcc_lo, s10")
        I(f"s_sub_u32 s11, s11, s{sT}")
        I(f"s_add_u32 s11, s11, s{sMORE}")
        I(f"s_lshl_b32 s11, s11, 1")
        I(f"s_and_b32 vcc_lo, vcc_lo, -256")
        I(f"s_cmp_le_u32 s11, vcc_lo")
        I(f"s_cselect_b32 s10, vcc_lo, s10")
    I("s_lshr_b32 s10, s10, 8")
    I("s_lshl_b32 s10, s10, 7")
    I(f"s_sub_u32 s10, s10, s{sMORE}")
    I("s_max_i32 s10, s10, 0")
    I(f"s_add_u32 s{sT}, s{sT}, s10")
    I(f"s_add_u32 s10, s{f0}, 16")
    I(f"s_min_u32 s10, s10, s{f1}")
    I(f"s_sub_i32 s11, s{f1}, 16")
    inl, inh, mo = sTM, sTM + 2, sMSK
    I(f"v_cmp_ge_u32 {sp(inl)}, s{sT}, v{el}")
    I(f"v_cmp_ge_u32 {sp(inh)}, s{sT}, v{eh}")
    I(f"v_cmp_gt_i32 vcc, s10, v{ownn}")
    I(f"v_cmp_gt_i32 {sp(sA)}, s11, v{ownn}")
    I(f"v_cmp_le_u32 {sp(mo)}, s{f0}, v{ownn}")
    I(f"v_cmp_gt_u32 {sp(sJ3)}, s{f1}, v{ownn}")
    I(f"s_and_b64 {sp(inl)}, {sp(inl)}, vcc")
    I(f"s_and_b64 {sp(inh)}, {sp(inh)}, vcc")
    I(f"s_or_b64 {sp(inl)}, {sp(inl)}, {sp(sA)}")
    I(f"s_or_b64 {sp(inh)}, {sp(inh)}, {sp(sA)}")
    I(f"s_bcnt1_i32_b32 s{sB0E}, s{inl}")
    I(f"s_bcnt1_i32_b32 s10, s{inh}")
    I(f"s_bcnt1_i32_b32 s11, s{inl+1}")
    I(f"s_bcnt1_i32_b32 s{sSH}, s{inh+1}")
    I(f"v_readlane_b32 s{f0}, v{ex}, s{sB0E}")
    I(f"v_readlane_b32 s10, v{ex}, s10")
    I("s_add_u32 s11, s11, 32")
    I(f"s_add_u32 s{sT}, s{sSH}, 32")
    I(f"v_readlane_b32 s{f1}, v{ex}, s11")
    I(f"v_readlane_b32 s11, v{ex}, s{sT}")
    I(f"v_mov_b32 v{c}, s{sN}")
    I(f"v_cndmask_b32 v{c+1}, 0, v{c}, {sp(inl)}")
    I(f"v_cndmask_b32 v{c}, 0, v{c}, {sp(inh)}")
    I(f"s_and_b64 {sp(mo)}, {sp(mo)}, {sp(sJ3)}")
    Q01, Q23 = f0, f1
    I(f"s_pack_lh_b32_b16 s{Q01}, s{f0}, s10")
    I(f"s_pack_lh_b32_b16 s{Q23}, s{f1}, s11")
    I(f"v_lshl_or_b32 v{c}, v{c}, 16, v{c+1}")
    I(f"s_sub_u32 s{sT}, s{sL}, {R0 - BIAS}")
    I(f"s_pack_ll_b32_b16 s{sT}, s{sT}, s{sT}")
    def bases(lo01, lo23, hi01, hi23, d, keep=None):
        I(f"s_sub_u32 s10, s{hi01}, s{lo01}")
        I(f"s_sub_u32 s11, s{hi23}, s{lo23}")
        I(f"s_mul_i32 s10, s10, 0x10001")
        I(f"s_lshl_b32 vcc_lo, s10, 16")
        I(f"s_pack_hh_b32_b16 s10, s10, s10")
        I(f"s_lshl_b32 vcc_hi, s11, 16")
        I(f"s_add_u32 vcc_hi, vcc_hi, s10")
        if keep is not None:
            I(f"s_add_u32 s{keep}, vcc_hi, s11")
            I(f"s_lshr_b32 s{keep}, s{keep}, 16")
            I(f"s_sub_u32 s{sEND}, s{sEND}, s{keep}")
            I(f"s_cmp_gt_u32 s{sEND}, s{keep}")
            I(f"s_cselect_b32 s{SWP}, {LWB * 0x10001:#x}, 0")
            I(f"s_add_u32 s{sT}, s{sT}, s{SWP}")
        I(f"s_sub_u32 s10, s{sT}, s{lo01}")
        I(f"s_sub_u32 s11, s{sT}, s{lo23}")
        I("s_add_u32 s10, s10, vcc_lo")
        I("s_add_u32 s11, s11, vcc_hi")
        I(f"v_mov_b32 v{d}, s10")
        I(f"v_mov_b32 v{d+1}, s11")
    LEN0, SWP = sJ3, sJ3 + 1
    bases(A01, A23, Q01, Q23, p, LEN0)
    I(f"s_add_u32 s{sT}, s{sT}, {LWB * 0x10001:#x}")
    I(f"s_sub_u32 s{sT}, s{sT}, s{SWP}")
    I(f"s_sub_u32 s{sT}, s{sT}, s{SWP}")
    bases(Q01, Q23, E01, E23, p + 2)
    I(f"v_bfi_b32 v{p}, v{c}, v{p}, v{p+2}")
    I(f"v_bfi_b32 v{p+1}, v{c}, v{p+1}, v{p+3}")
    I(f"s_mov_b32 exec_hi, 0")
    I(f"v_mov_b32 v{p+1}, v{p}")
    I(f"s_mov_b64 exec, {sp(mo)}")
    I(f"v_add_u32 v{ex}, v{ex}, v{p+1}")
    assert LWB & 0x80
    I(f"s_bfe_u32 s10, s{SWP}, 0x10007")
    I(f"s_lshl1_add_u32 s10, s{sW}, s10")
    I("s_lshl_b32 s10, s10, 2")
    I(f"v_cndmask_b32 v{c}, 4, 0, {sp(inl)}")
    I(f"ds_write_b16 v{owna}, v{ex} offset:{HIST + 2}")
    I(f"ds_write_b16_d16_hi v{owna}, v{ex} offset:{HIST + 1024 + 2}")
    I("s_mov_b32 exec_hi, 0")
    I(f"v_xor_b32 v{c}, s10, v{c}")
    I(f"ds_write_b32 v{mapa}, v{c}")
    I("s_mov_b64 exec, -1")
    stamp("d5")
    I(f"s_min_u32 s10, s{sEND}, s{LEN0}")
    I(f"s_max_u32 s{LEN0}, s{sEND}, s{LEN0}")
    I(f"s_mov_b32 s{sEND}, s10")
    I(f"s_add_u32 s10, s{LEN0}, s{sMORE}")
    I(f"s_mul_i32 s11, s{Z1}, {LWB * 65536 // BIAS}")
    I("s_lshr_b32 s11, s11, 16")
    I("s_max_u32 s10, s10, s11")
    I(f"s_cmp_lt_u32 s10, {LWB}")
    I("s_cbranch_scc1 L_LFIT")
    I(f"ds_write_b32 v{sc}, v{one}")
    L("L_LFIT")
    I(f"s_cmp_eq_u32 s{sMORE}, 0")
    I("s_cbranch_scc1 L_XCNR")
    I(f"s_sub_u32 s10, s{sL}, {R0 - BIAS}")
    I(f"s_add_u32 s11, s10, s{LEN0}")
    I(f"v_mov_b32 v{u(0)}, s11")
    I(f"s_add_u32 s11, s10, s{sEND}")
    I(f"s_add_u32 s11, s11, {LWB}")
    I(f"v_mov_b32 v{u(1)}, s11")
    I(f"s_lshl_b32 s10, s{sW}, 3")
    I(f"v_mov_b32 v{u(2)}, s10")
    I(f"ds_write_b64 v{u(2)}, {rr(u(0),2)} offset:{CNT}")
    L("L_XCNR")
    epoint(3)
    put(fill)
    I("s_waitcnt lgkmcnt(0)")
    stamp(8)
    I("s_barrier")
    stamp(9)
    I(f"ds_read_b64 {rr(u(14),2)}, v{sc}")
    for i in range(4):
        for j in range(3):
            I(f"ds_read_u16 v{vA+4*i+j}, v{vA+4*i+j} offset:{HIST + 2}")
    epoint(4)
    def ntiles(l0, l1):
        I(f"s_add_u32 s10, s{l0}, 127")
        I("s_lshr_b32 s10, s10, 7")
        I("s_lshl1_add_u32 s10, s10, -1")
        I(f"s_add_u32 s11, s{l1}, 127")
        I("s_lshr_b32 s11, s11, 6")
        I("s_and_b32 s11, s11, -2")
        I(f"s_max_i32 s{sN}, s10, s11")
        I(f"s_cselect_b32 s10, s{l0}, s{l1}")
        I("s_sub_u32 s10, s10, 1")
        I(f"s_andn2_b32 s{sHF}, 64, s10")
    I(f"s_add_u32 s{sB0E}, s{sB0E}, s{sWIN}")
    I(f"s_add_u32 s11, s{sSH}, s{sWIN}")
    I(f"s_and_b32 s10, s11, 15")
    I(f"s_cmp_lt_u32 s11, s{sB0E}")
    I(f"s_cselect_b32 s{sSH}, s10, 16")
    I(f"s_cmp_lg_u32 s{SWP}, 0")
    I(f"s_cselect_b32 s{sWS1}, s{sF0}, s11")
    I(f"s_cselect_b32 s{sWIN}, s{sF0}, s{sB0E}")
    I(f"s_cselect_b32 s{sF0}, s11, s{sF0}")
    I(f"s_cselect_b32 s{sB0E}, s{sF1}, s{sB0E}")
    I(f"s_cselect_b32 s{sF1}, s11, s{sF1}")
    I(f"s_min_u32 s{sWS0}, s{sF0}, 192")
    I(f"s_min_u32 s{sWS1}, s{sWS1}, 192")
    I(f"s_mov_b32 s{sST}, s{sMORE}")
    I("s_waitcnt lgkmcnt(12)")
    I(f"v_cmp_ne_u32 vcc, 0, v{u(14)}")
    I(f"v_readfirstlane_b32 s{sMORE}, v{u(15)}")
    I("s_cbranch_vccnz L_OVF")
    for i in range(4):
        for j in range(3):
            s_ = 4*i + j
            if j == 0: I("s_waitcnt lgkmcnt(9)")
            I(f"s_mov_b64 exec, {sp(mk(i,j))}")
            I(f"v_add_u32 v{vA+s_}, v{vA+s_}, v{vRK+s_}")
            I(f"ds_write2st64_b32 v{vA+s_}, v{vC+s_}, v{vR1+s_} {W2}")
    I("s_mov_b64 exec, -1")
    ntiles(LEN0, sEND)
    stamp("d6")
    sO0, sO1, sNT, sOK, sCM = sOUT, sD2, sM + 8, sM + 9, sM + 12
    def epi_prep(t0, t1):
        I(f"s_lshl_b32 s{sNT}, s{sW}, 7")
        I(f"s_add_u32 s{sNT}, s{sNT}, {NT}")
        I(f"v_mov_b32 v{t0}, s{sWS0}")
        I("s_mov_b32 exec_lo, 0xffff0000")
        I(f"v_mov_b32 v{t0}, s{sWS1}")
        I("s_mov_b64 exec, 0xffffffff") if False else None
        I("s_mov_b32 exec_lo, -1")
        I("s_mov_b32 exec_hi, 0")
        I(f"v_sub_u32 v{t1}, v{lane}, v{t0}")
        I(f"v_and_b32 v{t1}, 15, v{t1}")
        I(f"v_add_lshl_u32 v{t1}, v{t1}, v{t0}, 5")
        I(f"v_lshl_add_u32 v{t0}, v{lane}, 2, s{sNT}")
        I(f"ds_write_b32 v{t0}, v{t1}")
        I("s_mov_b32 exec_hi, -1")
        I(f"s_mul_i32 s10, s{sB}, {BN}")
        for d, lo_, hi_, k in ((sO1, sWIN, sF1, 1), (sO0, sF0, sB0E, 0)):
            I(f"s_add_u32 s11, s10, s{lo_}")
            I(f"s_add_u32 s{d+2}, s10, s{hi_}")
            I(f"s_min_u32 s11, s11, {N}")
            I(f"s_min_u32 s{d+2}, s{d+2}, {N}")
            I(f"s_sub_u32 s{d+2}, s{d+2}, s11")
            I("s_lshl_b32 s11, s11, 7")
            I(f"s_lshl_b32 s{d+2}, s{d+2}, 7")
            I(f"s_add_u32 s{d}, s{sOUT}, s11")
            I(f"s_addc_u32 s{d+1}, s{sOUT+1}, 0")
            I(f"s_mul_i32 s{sOK+k}, s{lo_}, -128")
        I(f"s_and_b32 s10, s{sSH}, 12")
        I("s_lshl_b32 s10, s10, 2")
        I(f"s_bfm_b64 {sp(sCM)}, 16, s10")
    L("L_CA")
    for x_ in trw(vWA, 0): I(x_)
    I(f"s_cmp_eq_u32 s{sXT}, 0")
    I("s_cbranch_scc1 L_XT2R")
    I(f"s_waitcnt vmcnt({(4 if JE else 0) + (4 if OLP in (2, 4) else 0)})")
    L("L_XT2")
    I(f"s_mov_b64 {sp(sTM)}, 0")
    for i in range(4):
        I(f"v_cmp_ne_u32 vcc, s{sK}, v{xg+4*i+1}")
        I(f"s_and_b64 vcc, vcc, {sp(mk(i,3))}")
        I(f"s_or_b64 {sp(sTM)}, {sp(sTM)}, vcc")
    I("s_cbranch_scc1 L_XT2B")
    I(f"s_cmp_eq_u32 s{sSKIP}, 0")
    I("s_cbranch_scc1 L_XT2R")
    for i in range(4):
        g_ = xg + 4*i
        I(f"s_mov_b64 exec, {sp(mk(i,3))}")
        I(f"s_cbranch_execz L_XS{i}")
        I(f"v_bfe_u32 v{g_+1}, v{g_}, 18, 8")
        I(f"v_lshlrev_b32 v{g_+1}, 2, v{g_+1}")
        I(f"v_add_u32 v{g_+3}, {MAP}, v{g_+1}")
        I(f"ds_read_b32 v{g_+3}, v{g_+3}")
        put(rec_ops(g_, g_+2, 0, vEB+i, g_+1, g_+2))
        I("s_waitcnt lgkmcnt(0)")
        I(f"ds_add_rtn_u32 v{g_+3}, v{g_+3}, v{one} offset:{CNT}")
        I("s_waitcnt lgkmcnt(0)")
        I(f"ds_write2st64_b32 v{g_+3}, v{g_}, v{g_+2} {W2}")
        L(f"L_XS{i}")
    I("s_mov_b64 exec, -1")
    L("L_XT2R")
    aw, al, ab = vEO, vEO + 1, vEO + 2
    I(f"s_lshl_b32 s{sTM}, s{sWS0}, 5")
    I(f"s_lshl_b32 s{sTM+1}, s{sWS1}, 5")
    I(f"s_mov_b32 vcc_lo, 0xff00ff00")
    I(f"s_mov_b32 vcc_hi, 0xff00ff00")
    I(f"v_mov_b32 v{aw}, s{sTM+1}")
    I(f"v_mov_b32 v{al}, s{sTM}")
    I(f"v_cndmask_b32 v{aw}, v{aw}, v{al}, vcc")
    I(f"v_and_b32 v{al}, 4, v{lane}")
    I(f"v_lshlrev_b32 v{al}, 6, v{al}")
    I(f"v_lshl_add_u32 v{al}, v{vcS}, 2, v{al}")
    I(f"v_sub_u32 v{al}, v{al}, v{aw}")
    I(f"v_and_b32 v{ab}, 48, v{lane}")
    I(f"s_movk_i32 s{sTM}, {(PL-32)//8}")
    I(f"v_mad_u32_u24 v{ab}, v{vcS}, s{sTM}, v{ab}")
    I(f"s_mov_b32 s{sTM}, {OWN}")
    I(f"v_add3_u32 v{ab}, v{ab}, v{aw}, s{sTM}")
    I(f"v_and_b32 v{aw}, 0x1ff, v{al}")
    I(f"v_add_u32 v{aw}, v{aw}, v{ab}")
    I(f"v_add_u32 v{al}, 0x80, v{al}")
    I(f"v_and_b32 v{al}, 0x1ff, v{al}")
    I(f"v_add_u32 v{al}, v{al}, v{ab}")
    zero16 = lambda d: f"v_mfma_f32_32x32x16_bf16 {rr(d,16)}, {rr(vS,4)}, {rr(vS,4)}, 0"
    for i in range(2): I(f"v_mov_b64 {rr(vS+2*i,2)}, 0")
    I(f"v_lshrrev_b32 v{u(0)}, 2, v{lane}")
    I(f"v_and_b32 v{u(0)}, 12, v{u(0)}")
    I(f"v_subrev_u32 v{u(0)}, s{sSH}, v{u(0)}")
    I(f"v_mov_b32 v{u(1)}, {f2u(1e-6):#x}")
    I(zero16(NUM(1,0)))
    for i in range(4): I(f"v_cmp_ne_u32 {sp(sM+16+2*i)}, {-i}, v{u(0)}")
    for i in range(4): I(f"v_cndmask_b32 v{DEN(1,0)+i}, 0, v{u(1)}, {sp(sM+16+2*i)}")
    for n in range(1, 4):
        for i in range(2): I(f"v_mov_b64 {rr(DEN(1,n)+2*i,2)}, {rr(DEN(1,0)+2*i,2)}")
    I(f"s_cmp_ge_u32 s{sWP}, 4")
    I("s_cbranch_scc1 L_EP0")
    epi_prep(u(2), u(3))
    L("L_EP0")
    stamp("d7")
    I("s_waitcnt vmcnt(0) lgkmcnt(0)")
    stamp(10)
    I("s_barrier")
    def lens_from_cnt(t):
        I(f"s_lshl_b32 s10, s{sW}, 3")
        I(f"v_mov_b32 v{t}, s10")
        I(f"ds_read_b64 {rr(t,2)}, v{t} offset:{CNT}")
        I("s_waitcnt lgkmcnt(0)")
        I(f"v_readfirstlane_b32 s{sTM}, v{t}")
        I(f"v_readfirstlane_b32 s{sTM+1}, v{t+1}")
        I(f"s_sub_u32 s10, s{sL}, {R0 - BIAS}")
        I(f"s_sub_u32 s{sTM}, s{sTM}, s10")
        I(f"s_sub_u32 s{sTM+1}, s{sTM+1}, s10")
        I(f"s_sub_u32 s{sTM+1}, s{sTM+1}, {LWB}")
        ntiles(sTM, sTM + 1)
    I(f"s_mov_b32 s10, {f2u(1e-6):#x}")
    I(f"ds_read_b128 {rr(vQD,4)}, v{vARX}")
    I(f"ds_read_b32 v{vEI}, v{vARE}")
    stamp(11)
    for t_ in range(2):
        for s in range(2): I(f"ds_read_b128 {rr(vX+8*t_+4*s,4)}, v{(aw, al)[t_]} offset:{64*s}")
    I("s_waitcnt lgkmcnt(4)")
    STAG = opt("stag", 4)
    if STAG != 2:
        I(f"s_cmp_ge_u32 s{sWP}, 4")
        I("s_cbranch_scc1 L_LATE0")
    put(dma_tile())
    L("L_LATE0")
    I(f"s_mov_b32 s{sTM}, {f2u(-LOG2E):#x}")
    I(f"s_mov_b32 s{sTM+1}, s{sTM}")
    for t_ in range(2):
        for s in range(2):
            I(f"s_waitcnt lgkmcnt({3 - 2*t_ - s})")
            for n in range(4):
                D = vQ + 8*n + 4*t_
                I(m16(D, vX+8*t_+4*s, vWA+8*n+4*s, D if s else None))
    if STAG == 3:
        I(f"s_cmp_lt_u32 s{sWP}, 4")
        I("s_cbranch_scc1 L_HAD1")
        put(dma_tile())
        L("L_HAD1")
    I("s_mov_b32 s11, s10")
    for i in range(8): I(f"v_mov_b64 {rr(DEN(0,0)+2*i,2)}, {sp(10)}")
    for i in range(16): I(f"v_pk_mul_f32 {rr(vQ+2*i,2)}, {rr(vQ+2*i,2)}, {sp(sTM)}")
    I(zero16(NUM(0,0)))
    for i in range(16): I(f"v_cvt_pk_bf16_f32 v{vCA+i}, v{vQ+2*i}, v{vQ+2*i+1}")
    for i in range(16): I(f"v_permlane32_swap_b32 v{vCA+16+i}, v{vCA+i}")
    I(f"s_mov_b32 s{sCI}, -1")
    I(f"s_mov_b64 {sp(sMSK)}, 0")
    I(f"s_mov_b32 s{sR0}, 0")
    I(f"s_mov_b32 s{sCNT}, 0")
    if STAG:
        I(f"s_cmp_lt_u32 s{sWP}, 4")
        I("s_cbranch_scc1 L_HAD0")
        if STAG == 1: put(dma_tile())
        epi_prep(u(2), u(3))
        if STAG == 4: put(dma_tile())
        L("L_HAD0")
    I(f"s_cmp_eq_u32 s{sST}, 0")
    I("s_cbranch_scc1 L_GO")
    lens_from_cnt(u(0))
    L("L_GO")
    for m in range(2): I(f"ds_read_u16 v{vEA+m}, v{vARO} offset:{64*m}")
    q1 = [f"ds_read_b128 {rr(vQD,4)}, v{vARX} offset:{LWB}", f"ds_read_b32 v{vEI}, v{vARE} offset:{LWB}"]
    if STAG != 5: put(q1)
    I(f"s_lshr_b32 s10, s{sW}, 1")
    I("s_lshl_b32 s10, s10, 9")
    I(f"s_add_u32 s10, s10, {PRG}")
    assert PRG % 32 == 0
    I(f"v_lshl_add_u32 v{vPA}, v{lane}, 3, s10")
    I(f"s_bitcmp1_b32 s{sW}, 0")
    I(f"s_cselect_b32 s{sSG}, -1, 1")
    I(f"s_mul_i32 s10, s{sSG}, {-(1 << (25 if F2 else 24)) & 0xffffffff:#x}")
    I("s_or_b32 s10, s10, 0xdddd")
    I(f"v_mov_b32 v{vIDX}, s10")
    I(f"s_max_i32 s10, s{sN}, 1")
    I("s_sub_u32 s10, s10, 1")
    I(f"s_mul_i32 s10, s{sSG}, s10")
    I("s_lshl_b32 s10, s10, 24")
    I(f"v_mov_b32 v{u(0)}, s10")
    I(f"ds_add_u32 v{vPA}, v{u(0)}")
    I(f"s_movk_i32 s{sINC}, 128")
    I(f"s_movk_i32 s{sINC+1}, 128")
    I(f"v_mov_b32 v{vC1}, 0")
    I("s_mov_b32 exec_hi, 0")
    I(f"v_add_u32 v{vC1}, 0x200, v{vcEO}")
    I("s_mov_b32 exec_hi, -1")
    I("s_waitcnt lgkmcnt(0)")
    put(eafix())
    if STAG == 5:
        I(f"s_cmp_lt_u32 s{sWP}, 4")
        I("s_cbranch_scc1 L_HAD2")
        I(f"s_cmp_lg_u32 s{sCI}, -1")
        I("s_cbranch_scc1 L_HAD2")
        put(dma_tile())
        L("L_HAD2")
        put(q1)
    stamp(12)
    I("s_waitcnt vmcnt(0)")
    stamp(13)
    cstamp(56)
    for m in range(2): I(f"ds_read_b128 {rr(vEO+4*m,4)}, v{vEA+m}")
    for m, s in ORD: I(xread(m, s))
    I(f"s_cmp_lt_i32 s{sN}, 1")
    I("s_cbranch_scc1 L_DONE")
    g = g_mfmas(vP, 0, 0)
    I("s_waitcnt lgkmcnt(4)")
    for x_ in g[:4]: I(x_)
    I("s_waitcnt lgkmcnt(0)")
    for x_ in g[4:]: I(x_)
    I(f"s_mov_b32 s{sT}, 1")
    I(f"s_cmp_eq_u32 s{sN}, 1")
    I("s_cbranch_scc1 L_LT0")
    put(dma_tile())
    for cp in ((1, 0) if FAIR else (0,)):
        sw = lambda par: [f"s_cmp_ge_i32 s{sRM}, {opt('fth', 1)}", f"s_cbranch_scc{1-cp} L_PB{par}{1-cp}", f"L_PB{par}{cp}:"] if FAIR and (par == 0 or not F2) else []
        body = phase(0, 0, cp) + sw(0) + phase(0, 1, cp) + [f"s_cmp_ge_u32 s{sT}, s{sN}", "s_cbranch_scc1 L_LT1"]
        body += phase(1, 0, cp) + sw(1) + phase(1, 1, cp) + [f"s_cmp_lt_u32 s{sT}, s{sN}", f"s_cbranch_scc1 L_LOOP{cp}"]
        check_body(body)
        DBG = opt("dbg", "")
        if "nodma" in DBG: body = [b for b in body if not b.startswith("buffer_load")]
        if "dropS" in DBG: body = [b for b in body if not b.startswith("v_smfmac")]
        if "halfrcp" in DBG: body = [b for b in body if not (b.startswith("v_rcp") and int(b.split("v")[-1]) & 1)]
        if "droppk" in DBG: body = [b for b in body if not b.startswith("v_pk_mul")]
        if "halfx" in DBG: body = [b for b in body if not (b.startswith("v_mfma") and (f"v[{vX+4}:" in b or f"v[{vX+12}:" in b))]
        if "nolds" in DBG: body = [b for b in body if not (b.startswith("ds_read_b128") and f"v{vAX}" in b)]
        if opt("al", 0): body = align8(body, opt("al", 0))
        emit(".p2align 6")
        if opt("sh4", 0): I("s_nop 0")
        L(f"L_LOOP{cp}")
        put(body)
        I("s_branch L_LT0")
    if opt("cpe", 0):
        I("s_branch L_LT0")
        for cp in ((1, 0) if FAIR else (0,)):
            for par in range(2):
                L(f"L_CE{par}{cp}")
                I(f"s_getpc_b64 {sp(sA)}")
                I(f"v_and_b32 v{vEI}, 0xfc, v{vPA}")
                I(f"v_lshlrev_b32 v{vEI}, 5, v{vEI}")
                I(f"global_load_dword v{vEI}, v{vEI}, {sp(sA)}")
                I(f"s_branch L_ND{par}{cp}")
    assert STAG
    e = lambda i: vCA + i
    xd = vWV
    ZR = [vP, vWV + 16]
    nd = lambda w, i: e(16 + 4*w + i)
    sO = [sO0, sO1]
    wu = [f"ds_read_b64_tr_b16 {rr(vWB+8*n+4*s+2*uu,2)}, v{e(1)} offset:{(32*s + 8*uu)*WR + 32*n}" for s in range(2) for n in range(4) for uu in range(2)]
    lid = [f"v_mbcnt_lo_u32_b32 v{lane}, -1, 0", f"v_mbcnt_hi_u32_b32 v{lane}, -1, v{lane}", f"v_and_b32 v{vcS}, 24, v{vPA}"]
    a1 = [f"v_and_b32 v{e(0)}, 48, v{lane}", f"v_and_b32 v{e(3)}, 15, v{lane}",
          f"v_add_u32 v{e(5)}, s{sNT}, v{e(0)}", f"v_lshl_add_u32 v{e(6)}, v{e(3)}, 2, s{sNT}"]
    a1 += [f"ds_read_b128 {rr(nd(w,0),4)}, v{e(5)} offset:{64*w}" for w in range(2)]
    a1 += [f"ds_read2_b32 {rr(e(8),2)}, v{e(6)} offset0:0 offset1:16",
           f"v_bfe_u32 v{e(1)}, v{lane}, 2, 3", f"v_lshrrev_b32 v{e(2)}, 5, v{lane}", f"v_lshl_add_u32 v{e(1)}, v{e(2)}, 4, v{e(1)}",
           f"v_mul_u32_u24 v{e(1)}, {WR}, v{e(1)}", f"s_mov_b32 s10, {WUI}", f"v_add3_u32 v{e(1)}, v{e(1)}, v{vcS}, s10"]
    a1 += wu[:12]
    a1 += [f"s_movk_i32 s10, {(PL-32)//8}", f"v_mad_u32_u24 v{e(0)}, v{vcS}, s10, v{e(0)}",
           f"s_mov_b32 s10, {OWN}", f"v_lshl_add_u32 v{e(5)}, v{e(3)}, 3, s10"]
    a1 += [f"v_lshl_add_u32 v{e(10+w)}, v{e(3)}, 3, s{sOK+w}" for w in range(2)]
    a1 += ["s_waitcnt lgkmcnt(8)"] + wu[12:]
    a2 = []
    for w in range(2):
        for i in range(4):
            a2 += [f"v_add_u32 v{e(12)}, v{nd(w,i)}, v{e(5)}", f"ds_read_b64 {rr(xd+8*w+2*i,2)}, v{e(12)} offset:{i*(PL-32)}"]
    for w in range(2):
        a2 += [f"v_add3_u32 v{e(8+w)}, v{e(8+w)}, v{e(0)}, s10"]
        a2 += [f"ds_read_b128 {rr(vX+8*w+4*s,4)}, v{e(8+w)} offset:{64*s}" for s in range(2)]
    def unp(w, n): return [(f"v_and_b32 v{ZR[w]+4*n+i}, 0xffff0000, v{xd+8*w+2*i+(n>>1)}" if n & 1 else
                            f"v_lshlrev_b32 v{ZR[w]+4*n+i}, 16, v{xd+8*w+2*i+(n>>1)}") for i in range(4)]
    blk = [(w, n) for w in range(2) for n in range(4)]
    a3 = [["s_waitcnt lgkmcnt(0)"] + unp(0, 0) + unp(0, 1)]
    for k, (w, n) in enumerate(blk):
        a3[-1] += [m16(ZR[w]+4*n, vX+8*w, vWB+8*n, ZR[w]+4*n)]
        a3.append((unp(*blk[k+2]) if k + 2 < 8 else []) + [f"v_lshl_add_u32 v{nd(w,n)}, v{nd(w,n)}, 2, v{e(10+w)}",
                  m16(ZR[w]+4*n, vX+8*w+4, vWB+8*n+4, ZR[w]+4*n)])
        if k < 7: a3.append([])
    ME = opt("me", 0)
    if ME:
        for par in range(2):
            L(f"L_LB{par}")
            put(last_tile(par, 0, only_b=True))
            I("s_branch L_DONE")
    for par in range(2):
        L(f"L_LT{par}")
        I(f"s_cmp_lg_u32 s{sHF}, 0")
        I(f"s_cbranch_scc1 L_LH{par}")
        for half in range(2):
            if half: L(f"L_LH{par}")
            put(last_tile(par, half, (lid + a1, a2, a3) if ME else None))
            I("s_branch L_EPB" if ME else "s_branch L_DONE")
    L("L_DONE")
    put(lid)
    I(f"s_cmp_lg_u32 s{sMORE}, 0")
    I("s_cbranch_scc1 L_SLOW")
    L("L_EPI")
    I("s_waitcnt lgkmcnt(0)")
    put(a1 + a2 + sum(a3, []))
    L("L_EPB")
    stamp(14)
    cstamp(57)
    I(f"s_setprio {opt('epr', 0)}")
    I(f"s_mov_b64 exec, {sp(sCM)}")
    I(f"s_and_b32 s11, s{sSH}, 19")
    I("s_nop 2")
    for i in range(4):
        I(f"s_cmp_eq_u32 s11, {i}")
        I(f"s_cbranch_scc1 L_NS{i}")
    L("L_NSR")
    I("s_mov_b64 exec, -1")
    for w in range(2):
        for k in range(16): I(f"v_rcp_f32 v{DEN(w,0)+k}, v{DEN(w,0)+k}")
        for k in range(0, 16, 2): I(f"v_pk_fma_f32 {rr(NUM(w,0)+k,2)}, {rr(NUM(w,0)+k,2)}, {rr(DEN(w,0)+k,2)}, {rr(ZR[w]+k,2)}")
        for i in range(4):
            for h in range(2): I(f"v_cvt_pk_bf16_f32 v{DEN(w,0)+2*i+h}, v{NUM(w,2*h)+i}, v{NUM(w,2*h+1)+i}")
            for h in range(2):
                I(f"v_pk_max_f16 v{DEN(w,0)+2*i+h}, v{DEN(w,0)+2*i+h}, v{xd+8*w+2*i+h}")
            I(f"buffer_store_dwordx2 {rr(DEN(w,0)+2*i,2)}, v{nd(w,i)}, {sq(sO[w])}, 0 offen{pol(OP)}")
    stamp("e2")
    stamp_out()
    L("L_END")
    I("s_endpgm")
    for i in range(4):
        L(f"L_NS{i}")
        for k in range(8): I(f"v_add_f32 v{vACC+4*k+i}, v{vACC+4*k+i}, v{vACC+32+4*k+i}")
        I("s_branch L_NSR")
    for i in range(4):
        L(f"L_RT{i}")
        I("s_waitcnt vmcnt(0)")
        spin()
        for k in range(i, 4): poll_load(k)
        I("s_waitcnt vmcnt(0)")
        I(f"s_branch L_PW{i}")
    L("L_XT2B")
    spin()
    xload("b")
    I("s_waitcnt vmcnt(0)")
    I("s_branch L_XT2")
    L("L_OVF")
    I(f"s_mov_b32 s{sSKIP}, 0")
    I(f"s_mov_b32 s{sN}, 0")
    I(f"s_mov_b32 s{sST}, 0")
    I(f"s_mov_b32 s{sMORE}, 4")
    I("s_waitcnt lgkmcnt(0)")
    I("s_branch L_CA")
    q = vCA
    L("L_POVF")
    I("s_movk_i32 s11, 1986")
    for i in range(4):
        I(f"v_mul_u32_u24 v{q+i}, s11, v{vHS+i}")
        I(f"v_lshrrev_b32 v{q+i}, 16, v{q+i}")
    I(f"v_add_u32 v{q+5}, v{q}, v{q+1}")
    I(f"v_add_u32 v{q+6}, v{q+5}, v{q+2}")
    I(f"v_add_u32 v{q+7}, v{q+6}, v{q+3}")
    I(f"v_mov_b32 v{q+8}, v{q+7}")
    wave_scan(q + 8)
    I("s_nop 0")
    I(f"v_sub_u32 v{q+4}, v{q+8}, v{q+7}")
    I(f"v_add_u32 v{q+7}, v{q+4}, v{q+6}")
    I(f"v_add_u32 v{q+6}, v{q+4}, v{q+5}")
    I(f"v_add_u32 v{q+5}, v{q+4}, v{q}")
    for i in range(4): I(f"v_lshl_or_b32 v{q+4+i}, v{q+i}, 16, v{q+4+i}")
    I(f"v_add_u32 v{q+8}, {HDR}, v{l16}")
    I(f"ds_write_b128 v{q+8}, {rr(q+4,4)}")
    I("s_lshl_b32 s10, s2, 10")
    I(f"s_add_u32 s10, s10, {WS_HD}")
    I(f"buffer_store_dwordx4 {rr(q+4,4)}, v{l16}, {sq(sWS)}, s10 offen sc1")
    for i in range(8):
        I(f"v_and_b32 v{q+10+i}, 0x3fc, v{vHA+i}")
        I(f"v_add_u32 v{q+10+i}, {HDR}, v{q+10+i}")
        I(f"ds_read_u16 v{q+10+i}, v{q+10+i}")
    I("s_waitcnt lgkmcnt(0)")
    for i in range(4):
        I(f"v_cmpx_lt_u32 vcc, {33*(CAP+8)}, v{vHD+i}")
        I(f"v_or_b32 v{vO+4*i+1}, 0x10000, v{vO+4*i+1}")
        I("s_mov_b64 exec, -1")
    I(f"s_mul_i32 s10, s2, {DCH}")
    I(f"s_mov_b32 s{sTM}, {WS_RECS}")
    I(f"s_mov_b32 s{sTM+1}, {WS_LEID}")
    for i in range(NR):
        I(f"v_mul_u32_u24 v{q}, s11, v{vRK1+i}")
        I(f"v_lshrrev_b32 v{q}, 16, v{q}")
        I(f"v_add3_u32 v{q}, v{q}, v{q+10+i}, s10")
        I(f"v_lshlrev_b32 v{q+1}, 2, v{q}")
        I(f"v_cmpx_le_u32 vcc, {33*(CAP+8)}, v{vRK1+i}")
        I(f"s_cbranch_execz L_PO{i}")
        I(f"buffer_store_byte v{idr(i)}, v{q}, {sq(sWS)}, s{sTM+1} offen sc1")
        I(f"buffer_store_dword v{vSR+i}, v{q+1}, {sq(sWS)}, s{sTM} offen sc1")
        L(f"L_PO{i}")
        I("s_mov_b64 exec, -1")
    I("s_waitcnt vmcnt(0) lgkmcnt(0)")
    I("s_barrier")
    I("s_branch L_POUT")
    SB = 288
    t0, t1, t2, t3 = vP, vP+1, vP+2, vP+3
    L("L_SLOW")
    I("s_setprio 0")
    I(f"s_lshl_b32 s10, s{sWP}, 6")
    I(f"v_add_u32 v{tid}, s10, v{lane}")
    I(f"s_cmp_lg_u32 s{sMORE}, 4")
    I("s_cbranch_scc1 L_SL1")
    I(f"s_mov_b32 s{sMORE}, 1")
    I(f"v_and_b32 v{t0}, 0xff, v{tid}")
    I(f"v_lshlrev_b32 v{t1}, 7, v{t0}")
    I(f"buffer_load_dword v{t2}, v{t1}, {sq(sCEL)}, 0 offen offset:4 sc1")
    I(f"v_lshlrev_b32 v{t1}, 10, v{t0}")
    I(f"s_lshl_b32 s10, s{sB}, 2")
    I(f"s_add_u32 s10, s10, {WS_HD}")
    I(f"buffer_load_dword v{t3}, v{t1}, {sq(sWS)}, s10 offen sc1")
    I(f"v_lshlrev_b32 v{t0}, 2, v{t0}")
    I(f"v_add_u32 v{t0}, {HDR}, v{t0}")
    I("s_waitcnt vmcnt(0)")
    I(f"v_and_b32 v{t2}, 0x10000, v{t2}")
    I(f"v_cmp_ne_u32 vcc, 0, v{t2}")
    I(f"v_mov_b32 v{t2}, {(CAP+8) << 16}")
    I("s_nop 0")
    I(f"v_cndmask_b32 v{t2}, v{t2}, v{t3}, vcc")
    I(f"ds_write_b32 v{t0}, v{t2}")
    I("s_waitcnt lgkmcnt(0)")
    I("s_barrier")
    L("L_SL1")
    I(f"s_add_u32 s{sR0}, s{sR0}, {SB}")
    I(f"s_cmp_lt_u32 s{sR0}, s{sCNT}")
    I("s_cbranch_scc1 L_BATCH")
    L("L_FIND")
    I(f"s_cmp_lg_u64 {sp(sMSK)}, 0")
    I("s_cbranch_scc1 L_GOT")
    I(f"s_add_u32 s{sCI}, s{sCI}, 1")
    I(f"s_cmp_ge_u32 s{sCI}, 4")
    I("s_cbranch_scc1 L_EPI")
    I(f"s_lshl_b32 s10, s{sCI}, 8")
    I(f"s_add_u32 s10, s10, {HDR}")
    I(f"v_lshl_add_u32 v{t0}, v{lane}, 2, s10")
    I(f"ds_read_u16 v{t0}, v{t0} offset:2")
    I("s_waitcnt lgkmcnt(0)")
    I(f"v_cmp_lt_u32 {sp(sMSK)}, s{sSKIP}, v{t0}")
    I("s_nop 3")
    I("s_branch L_FIND")
    L("L_GOT")
    I(f"s_ff1_i32_b64 s10, {sp(sMSK)}")
    I(f"s_bitset0_b64 {sp(sMSK)}, s10")
    I(f"s_lshl_b32 s11, s{sCI}, 6")
    I(f"s_add_u32 s{sCUR}, s10, s11")
    I(f"s_lshl_b32 s10, s{sCUR}, 2")
    I(f"s_add_u32 s10, s10, {HDR}")
    I(f"v_mov_b32 v{t0}, s10")
    I(f"ds_read_b32 v{t0}, v{t0}")
    I("s_waitcnt lgkmcnt(0)")
    I(f"v_readfirstlane_b32 s10, v{t0}")
    I("s_nop 3")
    I(f"s_lshr_b32 s{sCNT}, s10, 16")
    I(f"s_and_b32 s{sST}, s10, 0xffff")
    I(f"s_mov_b32 s{sR0}, s{sSKIP}")
    L("L_BATCH")
    I("s_waitcnt vmcnt(0)")
    I("s_barrier")
    prefill(vP + 4)
    I(f"v_and_b32 v{t0}, 15, v{lane}")
    I(f"v_mul_u32_u24 v{t1}, {LWB}, v{t0}")
    I(f"v_add_u32 v{t1}, {BIAS}, v{t1}")
    I(f"v_lshlrev_b32 v{t0}, 2, v{t0}")
    I(f"ds_write_b32 v{t0}, v{t1} offset:{CNT}")
    t1, t4, t5 = vQ, vQ + 2, vQ + 3
    I(f"v_add_u32 v{t0}, s{sR0}, v{tid}")
    I(f"s_mul_i32 s{sTM+2}, s{sCUR}, {CH}")
    I(f"s_mul_i32 s11, s{sCUR}, {DCH}")
    I(f"s_add_u32 s11, s11, s{sST}")
    I(f"s_lshl_b32 s{sTM}, s11, 2")
    I(f"s_add_u32 s{sTM}, s{sTM}, {WS_RECS}")
    I(f"v_lshl_add_u32 v{t2}, v{t0}, 2, s{sTM}")
    I(f"s_add_u32 s{sTM}, s11, {WS_LEID}")
    I(f"v_add_u32 v{t3}, s{sTM}, v{t0}")
    I(f"s_mul_i32 s10, s{sB}, {RS}")
    I(f"s_lshl_b32 s{sTM}, s{sCUR}, 7")
    I(f"s_add_u32 s10, s10, s{sTM}")
    I(f"s_add_u32 s10, s10, {WS_CELL}")
    I(f"v_and_b32 v{t4}, 7, v{t0}")
    I(f"v_lshl_add_u32 v{t4}, v{t4}, 4, s10")
    I(f"v_lshrrev_b32 v{t5}, 3, v{t0}")
    I(f"v_cmpx_gt_u32 vcc, {CAP+8}, v{t0}")
    I(f"v_add_u32 v{t2}, {XOFF}, v{t4}")
    I(f"v_add_u32 v{t3}, 8, v{t2}")
    I(f"v_cmpx_gt_u32 vcc, {CAP}, v{t0}")
    I(f"v_lshl_add_u32 v{t2}, v{t5}, 2, v{t4}")
    I(f"v_add3_u32 v{t3}, v{t4}, v{t5}, 12")
    I("s_mov_b64 exec, -1")
    I(f"s_add_u32 s10, s{sR0}, {SB}")
    I(f"s_min_u32 s10, s10, s{sCNT}")
    I(f"v_cmp_gt_u32 vcc, s10, v{t0}")
    I(f"v_mov_b32 v{t4}, 0x7ffffff0")
    I("s_nop 0")
    I(f"v_cndmask_b32 v{t2}, v{t4}, v{t2}, vcc")
    I(f"v_cndmask_b32 v{t3}, v{t4}, v{t3}, vcc")
    I(f"buffer_load_dwordx2 {rr(t1,2)}, v{t2}, {sq(sWS)}, 0 offen sc1")
    I(f"buffer_load_ubyte v{t3}, v{t3}, {sq(sWS)}, 0 offen sc1")
    I("s_waitcnt lgkmcnt(0)")
    I("s_barrier")
    I("s_waitcnt vmcnt(0)")
    I(f"v_cmp_ne_u32 vcc, 3, v{t5}")
    I(f"v_cmp_eq_u32 {sp(sA)}, s{sK}, v{t1+1}")
    I(f"v_mov_b32 v{t4}, s{sTM+2}")
    I(f"s_or_b64 exec, vcc, {sp(sA)}")
    I(f"v_cmpx_ne_u32 vcc, 0, v{t1}")
    I(f"v_bfe_u32 v{t2}, v{t1}, 18, 8")
    I(f"v_lshlrev_b32 v{t2}, 2, v{t2}")
    I(f"v_add_u32 v{t0}, {MAP}, v{t2}")
    I(f"ds_read_b32 v{t0}, v{t0}")
    put(rec_ops(t1, t3, 0, t4, t2, t3))
    I(f"v_mov_b32 v{t2}, 4")
    I("s_waitcnt lgkmcnt(0)")
    I(f"ds_add_rtn_u32 v{t0}, v{t0}, v{t2} offset:{CNT}")
    I("s_waitcnt lgkmcnt(0)")
    I(f"ds_write2st64_b32 v{t0}, v{t1}, v{t3} {W2}")
    I("s_mov_b64 exec, -1")
    I("s_waitcnt lgkmcnt(0)")
    I("s_barrier")
    listaddr(t2)
    I(f"ds_read_b128 {rr(vQD,4)}, v{vARX}")
    I(f"ds_read_b32 v{vEI}, v{vARE}")
    lens_from_cnt(t2)
    for r_ in (vQ, vQ + 2, vS, vS + 2): I(f"v_mov_b64 {rr(r_,2)}, 0")
    put(dma_tile())
    L("L_LAST")
    I("s_branch L_GO")

def regs_of(tok):
    tok = tok.strip()
    m = re.fullmatch(r"v\[(\d+):(\d+)\]", tok)
    if m: return list(range(int(m.group(1)), int(m.group(2)) + 1))
    m = re.fullmatch(r"v(\d+)", tok)
    if m: return [int(m.group(1))]
    return []
def parse(ins):
    op, _, rest = ins.partition(" ")
    ops = [o.strip().split(" ")[0] for o in rest.split(",")] if rest else []
    if op.startswith("ds_read") or "rtn" in op: return "ds", regs_of(ops[0]), regs_of(ops[1])
    return "other", [], sum((regs_of(o) for o in ops), [])
def check_body(body):
    s2 = [b for b in body if not b.endswith(":")]
    pend = []
    for i, ins in enumerate(s2 * 3):
        k, d, s = parse(ins)
        m = re.search(r"lgkmcnt\((\d+)\)", ins)
        if m:
            while len(pend) > int(m.group(1)): pend.pop(0)
        pr = set(sum(pend, []))
        for r in d + s:
            assert r not in pr, f"pending LDS reg v{r} used by {ins} @{i}"
        if k == "ds":
            pend.append(d); assert len(pend) <= 15

hdr = open("/code/" + NAME + ".s.ref").read().split("\n")
for l in hdr:
    if l.startswith("; Override"): break
    out.append(l)
if opt("list", 0): out.append(f"; @launch kernel={NAME}_kernel grid=(256,1,1) block=(512,1,1) lds={LDS}")
else: out.append(f"; @launch grid=(256,1,1) block=(512,1,1) lds={LDS}")
LEAK = opt("leak", "")
if LEAK: out.append("; @launch kernel=leak_kernel grid=(1,1,1) block=(256,1,1) lds=64")
emit('.amdgcn_target "amdgcn-amd-amdhsa--gfx950"\n.text')
kernel()
if LEAK:
    kind, nm = LEAK[0], LEAK[1:]
    PT = opt("pt", 0)
    si = STN.index(nm)
    emit(".globl leak_kernel\n.p2align 8\n.type leak_kernel,@function\nleak_kernel:")
    I("s_cmp_lg_u32 s2, 0")
    I("s_cbranch_scc1 LK_END")
    I("s_load_dwordx2 s[4:5], s[0:1], 88")
    I("v_min_u32 v1, 254, v0")
    I("v_lshlrev_b32 v1, 11, v1")
    I("v_mov_b32 v2, 0")
    I("v_mov_b32 v3, 0x7fffffff")
    I("v_mov_b32 v4, 0")
    I("ds_write2_b32 v2, v3, v4 offset0:0 offset1:1")
    I("s_waitcnt lgkmcnt(0)")
    I(f"s_add_u32 s4, s4, {WS_TS}")
    I("s_addc_u32 s5, s5, 0")
    I("global_load_dword v5, v2, s[4:5]")
    for w in range(8):
        I(f"global_load_dword v{8+w}, v1, s[4:5] offset:{256*w}")
        I(f"global_load_dword v{16+w}, v1, s[4:5] offset:{256*w + 4*si}")
    I("s_barrier")
    I("s_waitcnt vmcnt(0)")
    I("v_subrev_u32 v5, 1000, v5")
    for w in range(16): I(f"v_sub_u32 v{8+w}, v{8+w}, v5")
    for w in range(8):
        I(f"ds_min_u32 v2, v{8+w}")
        I(f"ds_{'max' if kind == 'm' else 'add'}_u32 v2, v{16+w} offset:4")
    I("s_waitcnt lgkmcnt(0)")
    I("s_barrier")
    I("ds_read_b64 v[6:7], v2")
    I("s_waitcnt lgkmcnt(0)")
    I("v_lshlrev_b32 v6, 2, v6")
    I("v_lshlrev_b32 v7, 2, v7" if kind == 'm' else "v_lshrrev_b32 v7, 9, v7")
    I("v_sub_u32 v6, v7, v6")
    I("v_min_u32 v6, 20000, v6")
    I("s_nop 0")
    I("v_readfirstlane_b32 s6, v6")
    I("s_memrealtime s[8:9]")
    I("s_waitcnt lgkmcnt(0)")
    if PT:
        I(f"s_cmp_gt_u32 s6, {4*PT}")
        I("s_cselect_b32 s6, 6000, 0")
        I("s_mul_i32 s7, s8, 0x9e3779b1")
        I("s_lshr_b32 s7, s7, 20")
        I("s_add_u32 s6, s6, s7")
    L("LK_L")
    I("s_memrealtime s[10:11]")
    I("s_waitcnt lgkmcnt(0)")
    I("s_sub_u32 s7, s10, s8")
    I("s_cmp_lt_u32 s7, s6")
    I("s_cbranch_scc1 LK_L")
    L("LK_END")
    I("s_endpgm")
emit(f""".section .rodata,"a"
.p2align 6
.amdhsa_kernel {NAME}_kernel
  .amdhsa_next_free_vgpr 256
  .amdhsa_next_free_sgpr 102
  .amdhsa_accum_offset 256
  .amdhsa_group_segment_fixed_size 0
  .amdhsa_kernarg_size 96
  .amdhsa_user_sgpr_count 2
  .amdhsa_user_sgpr_kernarg_segment_ptr 1
  .amdhsa_system_sgpr_workgroup_id_x 1
.end_amdhsa_kernel""")
if LEAK:
    emit(""".p2align 6
.amdhsa_kernel leak_kernel
  .amdhsa_next_free_vgpr 32
  .amdhsa_next_free_sgpr 16
  .amdhsa_accum_offset 32
  .amdhsa_group_segment_fixed_size 0
  .amdhsa_kernarg_size 96
  .amdhsa_user_sgpr_count 2
  .amdhsa_user_sgpr_kernarg_segment_ptr 1
  .amdhsa_system_sgpr_workgroup_id_x 1
.end_amdhsa_kernel""")
if TS: out.insert(0, "; stamps " + " ".join(STN))
path = sys.argv[1] if len(sys.argv) > 1 else "/code/" + NAME + ".s"
open(path, "w").write("\n".join(out) + "\n")
print("wrote", path, len(out), "lines; lds", LDS)
```

```python
import sys, re, struct

NAME = "standalone__edge_featured_mpnn_gatedgcn__graph"
OPT = dict(kv.split("=") for kv in sys.argv[2:])
def opt(k, d):
    v = OPT.get(k)
    if v is None: return d
    return type(d)(v)

N, E = 50000, 800000
CH = 3128
BN = 196
XIL = opt('xil', 0)
RS = (513 if XIL else opt('rs', 257)) * 128
XOFF = 256 * 128 if XIL else 256 * RS
WS_CELL = 0x10000
WS_RECS = 0x1200000
WS_LEID = 0x1680000
WS_HD = 0x17a0000
WS_USED = 0x1800000
WS_TS = 0x3000000
KINC = 0x02020202
CAP = 24
LOG2E = 1.4426950408889634
def f2u(f): return struct.unpack("<I", struct.pack("<f", f))[0]

out = []
def emit(s=""):
    for l in s.strip("\n").split("\n"):
        out.append(l.rstrip())
def I(s): out.append("    " + s)
def L(s): out.append(s + ":")
def C(s): out.append("    ; " + s)
def put(seq):
    for s in seq:
        if s.endswith(":"): L(s[:-1])
        else: I(s)
def rr(a, n): return f"v[{a}:{a+n-1}]"
def sp(a): return f"s[{a}:{a+1}]"
def sq(a): return f"s[{a}:{a+3}]"
def pol(p): return (" " + p.replace("_", " ")) if p else ""

def srd(d, lo, size, add=None, stride=0):
    if add is None:
        I(f"s_mov_b32 s{d}, s{lo}")
        I(f"s_mov_b32 s{d+1}, s{lo+1}" if not stride else f"s_or_b32 s{d+1}, s{lo+1}, {stride << 16:#x}")
    else:
        I(f"s_add_u32 s{d}, s{lo}, {add}")
        I(f"s_addc_u32 s{d+1}, s{lo+1}, 0")
    I(f"s_mov_b32 s{d+2}, {size}")
    I(f"s_mov_b32 s{d+3}, 0x20000")

def wave_scan(v, fill=None, half=False):
    def gap():
        if fill and len(fill) >= 2:
            I(fill.pop(0)); I(fill.pop(0))
        else: I("s_nop 1")
    for sh in (1, 2, 4, 8):
        gap()
        I(f"v_add_u32_dpp v{v}, v{v}, v{v} row_shr:{sh} row_mask:0xf bank_mask:0xf bound_ctrl:0")
    gap()
    I(f"v_add_u32_dpp v{v}, v{v}, v{v} row_bcast:15 row_mask:0xa bank_mask:0xf")
    if half: return
    gap()
    I(f"v_add_u32_dpp v{v}, v{v}, v{v} row_bcast:31 row_mask:0xc bank_mask:0xf")

TAB, ZROW, CNT, FLAG = 0, 512, 576, 640
HIST = 1024
ESTG = HIST + 4096
HIST1 = ESTG
EARLY = ESTG + 8192
LWB = 288 * 4
R0 = EARLY + 32768
R1 = R0 + 16 * LWB
XSTG = R1 + 16 * LWB
XI = 1056
SLOT = 4 * XI
OWN = XSTG + 8 * SLOT
PL = 52 * 128 + 32
WR = 160
WUI = OWN + 4 * PL
MAP = WUI + 64 * WR
HDR = MAP + 1024
PRG = HDR + 1024
NT = PRG + 2048
LDS = NT + 1024
WBI, WVI, WCI = EARLY, EARLY + 64 * WR, EARLY + 128 * WR
WAI = XSTG + 8192
LROW = 160
CIMG = R0
assert CIMG + 256 * LROW <= WAI and LDS <= 163840, LDS
BIAS = 8192
assert R1 < 65536 and R0 % 256 == 0 and R1 % 256 == 0
W2 = f"offset0:{(R0-BIAS)//256} offset1:{(R1-BIAS)//256}"

vWB, vWV, vCA, vACC = 0, 32, 64, 96
vX, vEO, vS = 160, 176, 184
vP, vQ, vR = 188, 204, 220
vQD = 236
vEI, vCH, vONE, vCP, vAX, vcEO, vcS, vARX, vARE, vARO, vARS, vEA = 240, 241, 242, 243, 244, 245, 246, 248, 249, 250, 251, 252
lane, vTS, tid = 247, 254, 255
vC1, vIDX, vPA = lane, tid, vcS
DEN = lambda w, n: vACC + 32 * w + 4 * n
NUM = lambda w, n: vACC + 32 * w + 16 + 4 * n
def m16(d, a, b, c=None):
    return f"v_mfma_f32_16x16x32_bf16 {rr(d,4)}, {rr(a,4)}, {rr(b,4)}, " + ("0" if c is None else rr(c, 4))
def s16(d, b): return f"v_smfmac_f32_16x16x64_bf16 {rr(d,4)}, {rr(vS,4)}, {rr(b,8)}, v{vIDX}"

sWP, sW, sB, sK = 3, 4, 5, 6
sWIN, sF0, sF1, sL = 7, 8, 9, 12
sA, sBt = 10, 11
sSTG, sES, s128 = 13, 14, 15
pX, pE, pSRC, pDST, pWA, pWB, pWC, pWU, pWV, pOUT, pDBG, pWS = 16, 18, 20, 22, 24, 26, 28, 30, 32, 34, 36, 38
sT, sN, sFM, sMORE, sSKIP, sXT, sWS0, sWS1, sB0E, sSH = 16, 17, 18, 19, 20, 21, 22, 23, 24, 25
sCI, sCUR, sR0, sCNT, sST, sEND = 26, 27, 28, 29, 30, 31
sMSK = 32
sTM = 34
sX, sEP, sOUT, sWS, sCEL, sD2 = 40, 44, 48, 52, 56, 60
sM = 64
sJ3, sEM = 96, 98
sSP = 100
sHF = 99
sINC = 94
sSG, sRM = 101, 96

TS = opt("ts", 0)
STN = []
YP = opt("yp", "")
def stamp(i):
    if str(i) in YP.split("_"):
        k = YP.split("_").index(str(i))
        I(f"s_cmp_lt_u32 s{sWP}, 4")
        I(f"s_cbranch_scc1 L_YP{k}")
        I(f"s_setprio {1 - (k & 1)}")
        L(f"L_YP{k}")
    if not TS: return
    if isinstance(i, str) and i[0] not in opt("tsx", ""): return
    STN.append(str(i)); i = len(STN) - 1
    I("s_memrealtime vcc" if TS == 1 else "s_memtime vcc")
    I("s_waitcnt lgkmcnt(0)")
    I(f"v_writelane_b32 v{vTS}, vcc_lo, {i}")
def stamp_out():
    if not TS: return
    I("s_waitcnt vmcnt(0)")
    stamp(15)
    I("s_memtime vcc")
    I("s_waitcnt lgkmcnt(0)")
    I(f"v_writelane_b32 v{vTS}, vcc_lo, 58")
    I(f"v_writelane_b32 v{vTS}, s{sN}, 59")
    I(f"v_writelane_b32 v{vTS}, s{sSP}, 60")
    I("s_getreg_b32 s10, hwreg(HW_REG_XCC_ID)")
    I(f"v_writelane_b32 v{vTS}, s10, 55")
    I("s_lshl_b32 s10, s2, 3")
    I(f"s_add_u32 s10, s10, s{sWP}")
    I("s_lshl_b32 s10, s10, 8")
    I(f"s_add_u32 s10, s10, {WS_TS}")
    I(f"v_lshl_add_u32 v{vP}, v{lane}, 2, s10")
    I(f"global_store_dword v{vP}, v{vTS}, {sp(pWS)}")
def cstamp(i):
    if not TS: return
    I("s_memtime vcc")
    I("s_waitcnt lgkmcnt(0)")
    I(f"v_writelane_b32 v{vTS}, vcc_lo, {i}")

LD_P = opt("ldp", "nt")
XP, EP, OP = opt("xp", ""), opt("ep", ""), opt("op", "sc1")
STP = opt("stp", "sc1")
MG = opt("mg", 1)
JE = opt("je", 4 if MG else 2)
EMASK = ((1 << JE) - 1) * 0x01010101
DCH = CH + 1024
SDW = "dst_sel:DWORD dst_unused:UNUSED_PAD"

def dma_tile():
    mad = lambda i: f"v_mad_u32_u16 v{vQD+i}, v{vQD+i}, s{s128}, v{vCP}"
    r = []
    for i in range(4):
        r += [f"s_add_u32 m0, s{sSTG}, {i*XI}", mad(i), f"buffer_load_dwordx4 v{vQD+i}, {sq(sX)}, 0 offen{pol(XP)} lds"]
    r += [f"s_mov_b32 m0, s{sES}", "s_nop 0", f"buffer_load_dwordx4 {rr(vEI,2)}, {sq(sEP)}, 0 idxen offen{pol(EP)} lds"]
    return r

ORD = [(0, 0), (1, 0), (0, 1), (1, 1)]
def xread(m, s): return f"ds_read_b128 {rr(vX+8*m+4*s,4)}, v{vAX} offset:{512*m + 64*s}"
def g_mfmas(D, ft, w):
    g = [m16(D+8*n+4*m, vEO+4*m, vCA+16*w+8*ft+4*n) for m in range(2) for n in range(2)]
    g += [m16(D+8*n+4*m, vX+8*m+4*s, vWB+16*ft+8*n+4*s, D+8*n+4*m) for m, s in ORD for n in range(2)]
    return g
def h_mfmas(ft):
    return [m16(vQ+8*n+4*m, vX+8*m+4*s, vWV+16*ft+8*n+4*s, None if s == 0 else vQ+8*n+4*m) for m, s in ORD for n in range(2)]
def s_num(w, ft): return [s16(NUM(w, 2*ft+n), vQ+8*n) for n in range(2)]
def s_den(w, ft, G): return [s16(DEN(w, 2*ft+n), G+8*n) for n in range(2)]

def eafix():
    return [f"v_bfi_b32 v{vEA+m}, 31, v{vcEO}, v{vEA+m}" for m in range(2)] + [f"v_max_u32 v{vEA}, v{vEA}, v{vcEO}", f"v_max_u32 v{vEA+1}, v{vEA+1}, v{vC1}"]
LV = [int(c, 16) for c in opt("lv", "015a")]
PAT = opt("pat", "1" * 11 + "5")
FAIR = opt("fair", 1)
F2 = opt("f2", 0)
BST = opt("bst", 10)
LNG = opt("lng", 1)
ASL = [int(x) for x in opt("asl", "12_13_14_18").split("_")]
LLV = [int(x) for x in opt("llv", "0_2_12_26").split("_")]
LLP_ = opt("llp", "0003_1113").split("_")
def add1(q): return f"v_mfma_f32_4x4x4_16b_bf16 {rr(q,4)}, {rr(vONE,2)}, {rr(vONE,2)}, {rr(q,4)}"
def long_sec(mf, G, regs, slots, cp):
    r = []; k = 0
    tr = [f"v_exp_f32 v{G+i}, v{G+i}" for i in regs] + [f"v_rcp_f32 v{G+i}, v{G+i}" for i in regs]
    for i, x in enumerate(tr):
        if i in LLV:
            j = LLV.index(i)
            if j == 0 or LLP_[cp][j] != LLP_[cp][j-1]: r.append(f"s_setprio {LLP_[cp][j]}")
        if i in slots: r.append(add1(G + regs[4*slots.index(i)]))
        elif k < len(mf): r += mf[k]; k += 1
        r.append(x)
    assert k == len(mf)
    return r
def phase(par, ft, cp=0):
    G, Go = (vP, vR) if ft == 0 else (vR, vP)
    nf = 1 - ft
    wn = par if ft == 0 else par ^ 1
    wp = par ^ 1 if ft == 0 else par
    s1 = [[x] for x in s_num(wp, nf) + h_mfmas(ft) + s_den(wp, nf, Go)]
    s2 = [[x] for x in g_mfmas(Go, nf, wn)]
    if ft == 0:
        o = par * LWB
        s1[0] += [f"ds_read_u16 v{vQD+u}, v{vARS} offset:{o + 16*u}" for u in range(2)]
        s1[8] += ["s_waitcnt lgkmcnt(0)"] + [f"v_bfi_b32 v{vQD+u}, 31, v{vcS}, v{vQD+u}" for u in range(2)]
        if FAIR and (par == 0 or not F2):
            s1[0] += [f"ds_add_rtn_u32 v{vQD+2}, v{vPA}, v{vIDX}"]
            s1[8] += [f"v_readfirstlane_b32 s{sRM}, v{vQD+2}"]
            s2[1] += [f"s_ashr_i32 s{sRM}, s{sRM}, 24", f"s_mul_i32 s{sRM}, s{sRM}, s{sSG}"]
        o1 = 128 if par else LWB
        s2[0] += [f"ds_read_b64_tr_b16 {rr(vS+2*u,2)}, v{vQD+u}" for u in range(2)]
        s2[0] += [f"ds_read_u16 v{vEA+m}, v{vARO} offset:{o1 + 64*m}" for m in range(2)]
        s2[6] += ["s_waitcnt lgkmcnt(0)"] + eafix()
        s2[6] += [f"ds_read_b128 {rr(vQD,4)}, v{vARX} offset:{o + 128}", f"ds_read_b32 v{vEI}, v{vARE} offset:{o + 128}",
                  f"s_add_u32 s{sT}, s{sT}, 1"]
        if par: s2[7] += [f"v_lshl_add_u64 {rr(r,2)}, {rr(r,2)}, 0, {sp(sINC)}" for r in (vARX, vARO)]
    elif opt("el", 0):
        g = [m16(Go+8*n+4*m, vX+8*m+4*s, vWB+16*nf+8*n+4*s, None if s == 0 else Go+8*n+4*m) for m, s in ORD for n in range(2)]
        g += [m16(Go+8*n+4*m, vEO+4*m, vCA+16*wn+8*nf+4*n, Go+8*n+4*m) for m in range(2) for n in range(2)]
        s2 = [[x] for x in g]
        s1[2] = ["s_waitcnt vmcnt(1)"] + s1[2]
        for i, (m, s) in enumerate(ORD): s1[3+2*i].append(xread(m, s))
        s2[0] = ["s_waitcnt lgkmcnt(2)"] + s2[0]
        ep = opt("el", 0)
        s2[ep] += ["s_waitcnt vmcnt(0)"] + [f"ds_read_b128 {rr(vEO+4*m,4)}, v{vEA+m}" for m in range(2)]
        s2[4] = [f"s_waitcnt lgkmcnt({2 if ep < 4 else 0})"] + s2[4]
        s2[8] = ["s_waitcnt lgkmcnt(0)"] + s2[8]
        s2[opt("eld", 9)] += [f"s_cmp_lt_u32 s{sT}, s{sN}", f"s_cbranch_scc0 L_ND{par}{cp}"] + dma_tile() + [f"L_ND{par}{cp}:"]
    else:
        s1[2] = ["s_waitcnt vmcnt(0)"] + [f"ds_read_b128 {rr(vEO+4*m,4)}, v{vEA+m}" for m in range(2)] + s1[2]
        for i, (m, s) in enumerate(ORD): s1[3+2*i].append(xread(m, s))
        s2[0] = ["s_waitcnt lgkmcnt(4)"] + s2[0]
        for i in range(4): s2[4+2*i] = [f"s_waitcnt lgkmcnt({3-i})"] + s2[4+2*i]
        DSP = opt("dsp", "")
        if DSP:
            d = dma_tile(); first = min(int(c, 16) for c in DSP)
            for i in range(4): s2[4+2*i] = s2[4+2*i][1:] if 4+2*i > first else s2[4+2*i]
            s2[first] = ["s_waitcnt lgkmcnt(0)"] + [x for x in s2[first] if not x.startswith("s_waitcnt")]
            for k, c in enumerate(DSP): s2[int(c, 16)] += d[3*k:3*k+3]
        tgt = f"L_CE{par}{cp}" if opt("cpe", 0) else f"L_ND{par}{cp}"
        if not DSP: s2[10] += [f"s_cmp_lt_u32 s{sT}, s{sN}", f"s_cbranch_scc0 {tgt}"] + dma_tile() + [f"L_ND{par}{cp}:"]
    def sec(mf, op):
        r = []; k = 0
        for i, m in enumerate(mf):
            if opt("lvp", ""):
                lv = opt("lvp", "").split("_")[cp]
                if i in LV:
                    k_ = LV.index(i)
                    if k_ == 0 or lv[k_] != lv[k_-1]: r.append(f"s_setprio {lv[k_]}")
            elif FAIR:
                if i == 0: r.append(f"s_setprio {cp}")
                if i == BST: r.append("s_setprio 3")
            elif i in LV: r.append(f"s_setprio {LV.index(i)}")
            r += m
            for _ in range(int(PAT[i])):
                r.append(f"{op} v{G+k}, v{G+k}"); k += 1
        assert k == 16
        return r
    r = []
    if opt("tt", 0) and ft == 0:
        r += ["s_memrealtime vcc", "s_memtime s[10:11]", f"s_add_u32 m0, s{sT}, 17", "s_waitcnt lgkmcnt(0)", f"v_writelane_b32 v{vTS}, vcc_lo, m0",
              f"s_add_u32 m0, s{sT}, 35", "s_nop 0", f"v_writelane_b32 v{vTS}, s10, m0"]
    if LNG:
        r += long_sec(s1 + s2, G, list(range(16)), ASL, cp)
        return r + [f"v_pk_mul_f32 {rr(vQ+2*i,2)}, {rr(G+2*i,2)}, {rr(vQ+2*i,2)}" for i in range(8)]
    r += sec(s1, "v_exp_f32")
    r += [f"v_pk_add_f32 {rr(G+2*i,2)}, {rr(G+2*i,2)}, 1.0 op_sel_hi:[1,0]" for i in range(8)]
    r += sec(s2, "v_rcp_f32")
    r += [f"v_pk_mul_f32 {rr(vQ+2*i,2)}, {rr(G+2*i,2)}, {rr(vQ+2*i,2)}" for i in range(8)]
    return r

def last_tile(par, half, epi=None, only_b=False):
    keep = (lambda x: int(re.match(r"\S+ v\[(\d+)", x).group(1)) % 8 == (vP % 8)) if half else (lambda x: True)
    regs = [k for k in range(16) if not (half and k & 4)]
    def sec(mf, op, G):
        r = [f"s_setprio {opt('lpr', 0)}"]; k = 0
        tail = min(len(regs), 4 if half else 5)
        for i, m in enumerate(mf):
            if i == len(mf) - 1: r.append("s_setprio 3")
            r += m
            e_ = (len(regs) - tail) * (i + 1) // (len(mf) - 1) if i < len(mf) - 1 else len(regs)
            while k < e_:
                r.append(f"{op} v{G+regs[k]}, v{G+regs[k]}"); k += 1
        while k < len(regs):
            r.append(f"{op} v{G+regs[k]}, v{G+regs[k]}"); k += 1
        return r
    r = []
    for ft in range(1 if only_b else 0, 2):
        G, Go = (vP, vR) if ft == 0 else (vR, vP)
        wp = par ^ 1 if ft == 0 else par
        s1 = [[x] for x in s_num(wp, 1-ft) + [h for h in h_mfmas(ft) if keep(h)] + s_den(wp, 1-ft, Go)]
        s2 = [[x] for x in g_mfmas(Go, 1, par) if keep(x)] if ft == 0 else []
        if ft == 0:
            s1[0] += [f"ds_read_u16 v{vQD+u}, v{vARS} offset:{par*LWB + 16*u}" for u in range(2)]
            s1[-2] += ["s_waitcnt lgkmcnt(0)"] + [f"v_bfi_b32 v{vQD+u}, 31, v{vcS}, v{vQD+u}" for u in range(2)]
            s2[0] += [f"ds_read_b64_tr_b16 {rr(vS+2*u,2)}, v{vQD+u}" for u in range(2)]
        else:
            s1[0] = ["s_waitcnt lgkmcnt(0)"] + s1[0]
            if epi:
                a1, a2, a3 = epi
                r += [f"s_cmp_lg_u32 s{sMORE}, 0", f"s_cbranch_scc1 L_LB{par}"]
                n_ = len(s1) - 3
                for k in range(n_): s1[k] += a1[len(a1)*k//n_:len(a1)*(k+1)//n_]
                s1[-3] += a2[:len(a2)//2]; s1[-2] += a2[len(a2)//2:]
                s2 = [list(x) for x in a3]
        r += sec(s1, "v_exp_f32", G)
        r += [f"v_pk_add_f32 {rr(G+k,2)}, {rr(G+k,2)}, 1.0 op_sel_hi:[1,0]" for k in regs[::2]]
        r += sec(s2, "v_rcp_f32", G)
        r += [f"v_pk_mul_f32 {rr(vQ+k,2)}, {rr(G+k,2)}, {rr(vQ+k,2)}" for k in regs[::2]]
    return r + s_den(par, 1, vR) + s_num(par, 1)

def isize(x):
    op = x.split()[0]
    if x.endswith(":"): return 0
    if op in ("v_exp_f32", "v_rcp_f32", "v_max_u32", "v_readfirstlane_b32"): return 4
    if op.startswith("s_"):
        m = re.search(r", (0x[0-9a-f]+|\d+)$", x)
        return 8 if (m and op not in ("s_setprio", "s_nop", "s_waitcnt") and int(m.group(1), 0) > 64) else 4
    return 8
def align8(body, mode):
    body = list(body); run = []; r = []
    for x in body:
        z = isize(x)
        if z == 8:
            if sum(isize(r[i]) for i in run) % 8:
                c = [i for i in run if r[i].split()[0] in ("v_exp_f32", "v_rcp_f32", "v_max_u32")]
                if c: r[c[-1]] = r[c[-1]].replace(" ", "_e64 ", 1); run = []
                elif mode == 2: r.append("s_nop 0"); run = []
                else: run = [i for i in run if isize(r[i])][:1]
            else: run = []
            r.append(x)
        else:
            run.append(len(r)); r.append(x)
    return r

def listaddr(t0):
    I(f"v_lshrrev_b32 v{t0}, 3, v{lane}")
    I(f"v_lshl_add_u32 v{vARX}, v{t0}, 4, s{sL}")
    I(f"s_add_u32 s10, s{sL}, {R1-R0}")
    I(f"v_lshrrev_b32 v{t0}, 1, v{lane}")
    I(f"v_lshl_add_u32 v{vARE}, v{t0}, 2, s10")
    I(f"s_add_u32 s10, s10, 2")
    I(f"v_lshrrev_b32 v{t0}, 5, v{lane}")
    I(f"v_mul_i32_i24 v{vARO}, {(R0-R1) & 0xffffffff:#x}, v{t0}")
    I(f"v_and_b32 v{t0}, 15, v{lane}")
    I(f"v_lshl_add_u32 v{vARO}, v{t0}, 2, v{vARO}")
    I(f"v_add_u32 v{vARO}, s10, v{vARO}")
    I(f"s_add_u32 s10, s{sL}, 2")
    I(f"v_and_b32 v{t0}, 48, v{lane}")
    I(f"v_lshl_add_u32 v{vARS}, v{t0}, 1, s10")
    I(f"v_and_b32 v{t0}, 12, v{lane}")
    I(f"v_add_u32 v{vARS}, v{vARS}, v{t0}")

def prefill(t):
    for d in range(4): I(f"v_mov_b32 v{t+d}, {ZROW << 16:#x}")
    for d in range(4): I(f"v_mov_b32 v{t+4+d}, 0xfffff")
    I(f"v_lshl_add_u32 v{t+8}, v{lane}, 4, s{sL}")
    for o in (0, 1024, 2*LWB - 1024):
        I(f"ds_write_b128 v{t+8}, {rr(t,4)} offset:{o}")
        I(f"ds_write_b128 v{t+8}, {rr(t+4,4)} offset:{o + R1 - R0}")

def kernel():
    emit(f"""
.globl {NAME}_kernel
.p2align 8
.type {NAME}_kernel,@function
{NAME}_kernel:""")
    FH = opt("fh", 1)
    vD, vSR, vT16 = vACC + 32, vACC, vR + 12
    if TS and opt("tz", 0): I("s_memrealtime s[96:97]")
    I("s_load_dwordx16 s[16:31], s[0:1], 0")
    I("s_load_dwordx8 s[32:39], s[0:1], 64")
    CPN = opt("cpn", 8)
    if opt("cpf", 1):
        I(f"s_getpc_b64 {sp(sM)}")
        L("L_PC")
        if CPN == 8: I("s_and_b32 s3, s2, -8")
        else:
            I("s_lshr_b32 s3, s2, 3")
            I(f"s_and_b32 s3, s3, {256//CPN - 1}")
            I(f"s_mul_i32 s3, s3, {CPN}")
        I("v_add_lshl_u32 v1, v0, s3, 7")
        I("v_min_u32 v1, L_LAST-L_PC, v1")
        I(f"v_cmpx_gt_u32 vcc, {CPN}, v0")
        I("s_cbranch_execz L_NOCPF")
        I(f"global_load_dword v{vEA}, v1, {sp(sM)}")
        L("L_NOCPF")
        I("s_mov_b64 exec, -1")
    I("s_cmp_ge_u32 s2, 256")
    I("s_cbranch_scc1 L_END")
    if FH:
        I(f"s_mul_i32 s{sA}, s2, {CH*4}")
        I(f"v_lshl_add_u32 v1, v0, 4, s{sA}")
        I(f"s_add_u32 s{sBt}, s{sA}, {CH*4}")
        I(f"s_min_u32 s{sBt}, s{sBt}, {E*4}")
        BAL = opt("bal", 0)
        if BAL:
            I(f"s_add_u32 s{sA}, s{sA}, 0x2000")
            I(f"v_lshl_add_u32 v2, v0, 3, s{sA}")
            I(f"s_add_u32 s{sA}, s{sA}, 0x1000")
            I(f"v_lshl_add_u32 v3, v0, 2, s{sA}")
            I(f"v_cmp_gt_u32 {sp(sM+6)}, s{sBt}, v2")
            I(f"v_min_u32 v2, {E*4 - 8}, v2")
        else: I("v_add_u32 v2, 0x2000, v1")
        I("s_waitcnt lgkmcnt(0)")
        if TS and opt("tz", 0): I("s_memrealtime s[98:99]")
        I(f"global_load_dwordx4 {rr(vD,4)}, v1, {sp(pDST)}{pol(LD_P)}")
        if BAL:
            I(f"global_load_dwordx2 {rr(vD+4,2)}, v2, {sp(pDST)}{pol(LD_P)}")
            I(f"global_load_dwordx4 {rr(vSR,4)}, v1, {sp(pSRC)}{pol(LD_P)}")
            I(f"global_load_dwordx2 {rr(vSR+4,2)}, v2, {sp(pSRC)}{pol(LD_P)}")
            I(f"v_cmpx_gt_u32 {sp(sM+28)}, s{sBt}, v3")
            I("s_cbranch_execz L_NO7")
            I(f"global_load_dword v{vD+6}, v3, {sp(pDST)}{pol(LD_P)}")
            I(f"global_load_dword v{vSR+6}, v3, {sp(pSRC)}{pol(LD_P)}")
        else:
            I(f"global_load_dwordx4 {rr(vSR,4)}, v1, {sp(pSRC)}{pol(LD_P)}")
            def group2():
                I(f"v_cmpx_gt_u32 {sp(sM+6)}, s{sBt}, v2")
                I("s_cbranch_execz L_NO8")
                I(f"global_load_dwordx4 {rr(vD+4,4)}, v2, {sp(pDST)}{pol(LD_P)}")
                I(f"global_load_dwordx4 {rr(vSR+4,4)}, v2, {sp(pSRC)}{pol(LD_P)}")
                L("L_NO8")
                I("s_mov_b64 exec, -1")
            G2 = opt("g2", 0)
            if G2 == 0: group2()
        L("L_NO7")
        I("s_mov_b64 exec, -1")
        KV = opt("kv", 0)
        if KV:
            I("v_mov_b32 v1, 0")
            I(f"global_load_dword v{vEA+1}, v1, {sp(pWS)}")
        else: I(f"s_load_dword s{sK}, {sp(pWS)}, 0")
        if opt("tlb", 0):
            I("v_lshlrev_b32 v1, 20, v0")
            I(f"v_add_u32 v1, {WS_CELL + XOFF - 448*(1 << 20) & 0xffffffff:#x}, v1")
            I("v_subrev_u32 v2, 448, v0")
            I("v_cmpx_gt_u32 vcc, 9, v2")
            I("s_cbranch_execz L_NOTLB")
            I(f"global_load_dword v{vEA+1}, v1, {sp(pWS)}")
            L("L_NOTLB")
            I("s_mov_b64 exec, -1")
    if TS: I(f"v_mov_b32 v{vTS}, 0")
    u = lambda i: vP + i
    if TS and opt("tz", 0):
        I("s_waitcnt lgkmcnt(0)")
        I(f"v_writelane_b32 v{vTS}, s96, 0")
        I(f"v_writelane_b32 v{vTS}, s98, 1")
        STN.extend(["z", "k"])
    stamp(0)
    vBK, vRK1, vID, vHA, vIC = vACC + 8, vACC + 16, vACC + 24, vACC + 40, vACC + 48
    vRW = vX
    one, l16 = vS, vS + 1
    vOA, vT16, sOW = vR + 14, vR + 12, 101
    I(f"v_mov_b32 v{tid}, v0")
    I(f"v_lshrrev_b32 v{u(0)}, 6, v0")
    I(f"v_and_b32 v{lane}, 63, v0")
    I(f"v_readfirstlane_b32 s{sWP}, v{u(0)}")
    I(f"v_lshlrev_b32 v{vT16}, 4, v0")
    I(f"v_lshlrev_b32 v{u(2)}, 3, v0")
    I(f"v_lshlrev_b32 v{u(3)}, 2, v0")
    I(f"v_and_b32 v{u(4)}, 0x3fc, v{u(3)}")
    if not FH:
        I(f"s_mul_i32 s{sA}, s2, {CH*4}")
        I(f"s_sub_u32 s{sBt}, {E*4}, s{sA}")
        I(f"s_min_u32 s{sBt}, s{sBt}, {CH*4}")
    I(f"s_and_b32 s{sB}, s2, 7")
    I(f"s_lshr_b32 s{sW}, s2, 3")
    I(f"s_lshl_b32 s{sB}, s{sB}, 5")
    I(f"s_add_u32 s{sB}, s{sB}, s{sW}")
    I(f"s_mul_i32 s{sF1}, s{sB}, {BN}")
    I(f"s_cmp_eq_u32 s{sWP}, 7")
    I(f"s_cselect_b32 s{sOW}, 0, s{sWP}")
    I(f"s_lshl_b32 s{sL}, s{sOW}, 5")
    I(f"s_add_u32 s{sF1}, s{sF1}, s{sL}")
    I(f"v_lshrrev_b32 v{u(5)}, 3, v{lane}")
    I(f"v_lshl_add_u32 v{u(5)}, v{u(5)}, 2, s{sF1}")
    I(f"v_and_b32 v{vCP}, 7, v{lane}")
    I(f"v_lshlrev_b32 v{vCP}, 4, v{vCP}")
    I(f"v_lshl_add_u32 v{vOA}, v{u(5)}, 7, v{vCP}")
    I(f"s_lshl_b32 s{sOW}, s{sOW}, 10")
    I(f"s_add_u32 s{sOW}, s{sOW}, {OWN}")
    if not FH:
        I(f"s_movk_i32 s{sF0}, 0x2000")
        I("s_waitcnt lgkmcnt(0)")
        I(f"s_load_dword s{sK}, {sp(pWS)}, 0")
        srd(sCEL, pDST, f"s{sBt}", f"s{sA}")
        srd(sD2, pSRC, f"s{sBt}", f"s{sA}")
        I(f"buffer_load_dwordx4 {rr(vD,4)}, v{vT16}, {sq(sCEL)}, 0 offen{pol(LD_P)}")
        I(f"buffer_load_dwordx4 {rr(vSR,4)}, v{vT16}, {sq(sD2)}, 0 offen{pol(LD_P)}")
        I(f"s_cmp_ge_u32 s{sWP}, 5")
        I("s_cbranch_scc1 L_NO7")
        I(f"buffer_load_dwordx4 {rr(vD+4,4)}, v{vT16}, {sq(sCEL)}, s{sF0} offen{pol(LD_P)}")
        I(f"buffer_load_dwordx4 {rr(vSR+4,4)}, v{vT16}, {sq(sD2)}, s{sF0} offen{pol(LD_P)}")
        L("L_NO7")
    for d in range(2): I(f"v_mov_b64 {rr(u(8)+2*d,2)}, 0")
    I(f"v_mov_b32 v{u(6)}, {33*JE if MG else 0}")
    I(f"ds_write2st64_b32 v{u(4)}, v{u(6)}, v{u(8)} offset0:{HIST1//256} offset1:{HIST1//256+4}")
    I(f"v_add_u32 v{u(5)}, {CIMG}, v{vT16}")
    if G2 == 1: group2()
    for k in range(5): I(f"ds_write_b128 v{u(5)}, {rr(u(8),4)} offset:{8192*k}")
    if G2 == 2: group2()
    PF = opt("pf", 0)
    def w_loads():
        I(f"s_cmp_ge_u32 s{sWP}, 2")
        I("s_cbranch_scc1 L_NOC")
        I(f"global_load_dwordx4 {rr(vEO,4)}, v{vT16}, {sp(pWC)}")
        L("L_NOC")
        for k, p in enumerate((pWB, pWV, pWA, pWU)):
            I(f"global_load_dwordx4 {rr(vRW+4*k,4)}, v{vT16}, {sp(p)}")
    def own_loads():
        I(f"s_cmp_eq_u32 s{sWP}, 6")
        I("s_cselect_b32 exec_hi, 0, -1")
        I(f"s_cmp_eq_u32 s{sWP}, 7")
        I("s_cselect_b64 exec, 1, exec")
        for k in range(4):
            I(f"s_add_u32 m0, s{sOW}, {(PL-128)*k}")
            I("s_nop 0")
            I(f"buffer_load_dwordx4 v{vOA}, {sq(sX)}, 0 offen offset:{128*k}{pol(opt('owp', ''))} lds")
        I("s_mov_b64 exec, -1")
    def x_prefetch():
        if not PF: return
        I(f"s_add_u32 s{sTM}, s2, 1")
        I(f"s_and_b32 s{sTM}, s{sTM}, 7")
        I(f"s_mul_i32 s{sTM}, s{sTM}, {32*BN}")
        I(f"s_lshr_b32 s{sTM+1}, s2, 3")
        I(f"s_mul_i32 s{sTM+1}, s{sTM+1}, {PF}")
        I(f"s_add_u32 s{sTM}, s{sTM}, s{sTM+1}")
        I(f"s_mul_i32 s{sTM+1}, s{sWP}, {PF//8}")
        I(f"s_add_u32 s{sTM}, s{sTM}, s{sTM+1}")
        I(f"v_min_u32 v{vEA+1}, {PF//8 - 1}, v{lane}")
        I(f"v_add_lshl_u32 v{vEA+1}, v{vEA+1}, s{sTM}, 7")
        I(f"buffer_load_dword v{vEA+1}, v{vEA+1}, {sq(sX)}, 0 offen")
    PFP = opt("pfp", 0)
    LLP = 2
    OLP = opt("olp", 2)
    NY = 0
    srd(sEP, pE, E, stride=32)
    srd(sOUT, pOUT, N*128)
    srd(sX, pX, N*128)
    OY = 0
    if OLP == 3:
        OW0 = opt("ow0", 5); nw = 8 - OW0; per = -(-28 // nw); OY = per
        I(f"s_cmp_lt_u32 s{sWP}, {OW0}")
        I("s_cbranch_scc1 L_NOOWN")
        I(f"s_mul_i32 s{sF1}, s{sB}, {BN}")
        I(f"v_lshrrev_b32 v{vOA}, 3, v{lane}")
        I(f"v_lshl_add_u32 v{vOA}, v{vOA}, 2, s{sF1}")
        I(f"v_lshl_add_u32 v{vOA}, v{vOA}, 7, v{vCP}")
        I(f"s_sub_u32 s{sF0}, s{sWP}, {OW0}")
        for k in range(per):
            I(f"s_add_u32 s{sF1}, s{sF0}, {nw*k}")
            I(f"s_min_u32 s{sF1}, s{sF1}, 27")
            I(f"s_and_b32 s{sL}, s{sF1}, 3")
            I(f"s_lshr_b32 s{sF1}, s{sF1}, 2")
            I(f"s_mul_i32 s{sOW}, s{sL}, {PL}")
            I(f"s_lshl_b32 s{sL}, s{sL}, 7")
            I(f"s_cmp_eq_u32 s{sF1}, 6")
            I("s_cselect_b32 exec_hi, 0, -1")
            I(f"s_lshl_b32 s{sF1}, s{sF1}, 10")
            I(f"s_add_u32 s{sOW}, s{sOW}, s{sF1}")
            I(f"s_add_u32 m0, s{sOW}, {OWN}")
            I(f"s_lshl2_add_u32 s{sL}, s{sF1}, s{sL}")
            I(f"buffer_load_dwordx4 v{vOA}, {sq(sX)}, s{sL} offen lds")
        I("s_mov_b32 exec_hi, -1")
        L("L_NOOWN")
    srd(sWS, pWS, WS_USED)
    I(f"s_lshl_b32 s{sL}, s2, 7")
    I(f"s_add_u32 s{sL}, s{sL}, {WS_CELL}")
    srd(sCEL, pWS, 255*RS + XOFF + 128, f"s{sL}")
    cM, cN, cP, cPM, cR = sM, sM + 1, sM + 2, sM + 3, sM + 4
    m2 = sM + 6
    I(f"s_mov_b32 s{cM}, 85599")
    I(f"s_mov_b32 s{cN}, {-BN & 0xffffffff}")
    I(f"s_movk_i32 s{cP}, 5368")
    I(f"s_mov_b32 s{cPM}, {opt('phm', 3) << 26:#x}")
    I(f"s_mov_b32 s{cR}, {RS}")
    if opt("rot", 1): I(f"s_mov_b32 s{sSP}, {-(196*5368) & 0xffffffff:#x}")
    for i in range(4): I(f"v_add_u32 v{vID+i}, {i}, v{u(3)}")
    I(f"s_lshl_b32 s{sA}, s{sWP}, 28")
    I(f"s_or_b32 s{sA}, s{sA}, 0x20000")
    I(f"v_mov_b32 v{vIC}, s{sA}")
    if BAL:
        assert MG <= 1 and OLP != 3
        I(f"s_lshr_b32 s{sA}, s{sWP}, 1")
        I(f"s_lshl_b32 s{sA}, s{sA}, 28")
        I(f"s_or_b32 s{sA}, s{sA}, 0x80020000")
        I(f"v_mov_b32 v{vIC+1}, s{sA}")
        I(f"v_mov_b32 v{vIC+3}, 0xc0020000")
        I(f"v_lshlrev_b32 v{vID+4}, 1, v{tid}")
        I(f"v_add_u32 v{vID+5}, 1, v{vID+4}")
        I(f"v_mov_b32 v{vID+6}, v{tid}")
    else: I(f"v_or_b32 v{vIC+1}, 0x80000000, v{vIC}")
    idr = (lambda i: vID + i) if BAL else (lambda i: vID + (i & 3))
    icr = (lambda i: vIC + (3 if i == 6 else i >> 2)) if BAL else (lambda i: vIC + (i >> 2))
    NR = 7 if BAL else 8
    I(f"v_mov_b32 v{one}, 33")
    vK1 = vIC + 2
    I(f"v_mov_b32 v{vK1}, 0x400")
    if opt("ro", 0): I(f"v_mov_b32 v{vIC+4}, {opt('ro', 0) << 24:#x}")
    if not FH:
        I(f"s_sub_u32 s{sBt}, s{sBt}, 0x2000")
        I(f"v_cmp_gt_u32 {sp(m2)}, s{sBt}, v{vT16}")
    I(f"s_and_b32 s{sA}, s{sWP}, 3")
    I(f"s_lshr_b32 s{sW}, s{sWP}, 2")
    I(f"s_lshl1_add_u32 s{sW}, s{sA}, s{sW}")
    if opt("swp", 1): I(f"s_xor_b32 s{sW}, s{sW}, 1")
    I(f"s_mul_i32 s{sA}, s{sW}, 49")
    I(f"s_sub_i32 s{sA}, s{sA}, 6")
    I(f"s_ashr_i32 s{sA}, s{sA}, 1")
    I(f"s_max_i32 s{sWIN}, s{sA}, 0")
    I(f"s_mul_i32 s{sSTG}, s{sW}, {SLOT}")
    I(f"s_add_u32 s{sSTG}, s{sSTG}, {XSTG}")
    I(f"s_lshl_b32 s{sES}, s{sW}, 10")
    I(f"s_add_u32 s{sES}, s{sES}, {ESTG}")
    I(f"s_mul_i32 s{sL}, s{sW}, {2*LWB}")
    I(f"s_add_u32 s{sL}, s{sL}, {R0}")
    I(f"s_movk_i32 s{s128}, 128")
    if G2 == 3: group2()
    I(f"v_bfe_u32 v{u(6)}, v{tid}, 4, 4")
    I(f"v_and_b32 v{u(7)}, 7, v{tid}")
    I(f"v_cmp_eq_u32 vcc, v{u(6)}, v{u(7)}")
    I(f"v_and_b32 v{u(6)}, 8, v{tid}")
    I(f"v_lshlrev_b32 v{u(6)}, 1, v{u(6)}")
    I(f"v_mov_b32 v{u(8)}, 0x3f80")
    I(f"v_lshlrev_b32 v{u(8)}, v{u(6)}, v{u(8)}")
    I(f"v_cndmask_b32 v{u(8)}, 0, v{u(8)}, vcc")
    I(f"ds_write_b32 v{u(4)}, v{u(8)} offset:{TAB}")
    I(f"v_mov_b64 {rr(u(8),2)}, 0")
    I(f"ds_write_b64 v{u(2)}, {rr(u(8),2)} offset:{HIST}")
    I(f"v_add_u32 v{u(6)}, {PRG}, v{u(3)}")
    I(f"ds_write_b32 v{u(6)}, v{u(8)}")
    go, lo, lo2, ha = vR, vR + 1, vR + 2, vR + 3
    wl, wal = vR + 4, vR + 5
    I(f"v_lshrrev_b32 v{ha}, 3, v{tid}")
    TW = opt("tw", "")
    lob, l2b = vR + 6, vR + 7
    sRG = sM + 28
    I(f"v_mul_u32_u24 v{wl}, {LROW}, v{ha}")
    if TW:
        I(f"v_and_b32 v{lo2}, 24, v{ha}")
        I(f"v_and_b32 v{go}, 7, v{ha}")
        I(f"v_lshl_add_u32 v{lo2}, v{lo2}, 1, v{go}")
        I(f"v_mad_u32_u24 v{go}, v{lo2}, s{cR}, v{vCP}")
        I(f"s_lshr_b32 s{sRG}, s{sWP}, 2")
        I(f"s_lshl_b32 s{sRG}, s{sRG}, 7")
        I(f"s_sub_u32 s{sRG}, s{sRG}, s2")
        I(f"s_add_u32 s{sRG}, s{sRG}, 63")
        I(f"s_add_u32 s{sRG+1}, s{sRG}, 64")
        I(f"s_and_b32 s{sRG}, s{sRG}, 0xc0")
        I(f"s_and_b32 s{sRG+1}, s{sRG+1}, 0xc0")
        I(f"v_add_u32 v{l2b}, s{sRG+1}, v{lo2}")
        I(f"v_add_u32 v{lo2}, s{sRG}, v{lo2}")
        I(f"v_add_u32 v{u(6)}, {CIMG}, v{vCP}")
        I(f"s_movk_i32 s{sA}, {LROW}")
        I(f"v_mad_u32_u24 v{lo}, v{lo2}, s{sA}, v{u(6)}")
        I(f"v_mad_u32_u24 v{lob}, v{l2b}, s{sA}, v{u(6)}")
        I(f"v_lshlrev_b32 v{lo2}, 2, v{lo2}")
        I(f"v_lshlrev_b32 v{l2b}, 2, v{l2b}")
    else:
        I(f"v_mad_u32_u24 v{go}, v{ha}, s{cR}, v{vCP}")
        I(f"v_add_u32 v{lo}, v{wl}, v{vCP}")
        I(f"v_add_u32 v{lo}, {CIMG}, v{lo}")
    assert LROW == WR
    I(f"v_bfe_u32 v{u(6)}, v{tid}, 5, 1")
    I(f"v_bfe_u32 v{u(8)}, v{tid}, 6, 1")
    I(f"v_sub_u32 v{u(6)}, v{u(6)}, v{u(8)}")
    I(f"v_mul_i32_i24 v{u(6)}, {4*WR}, v{u(6)}")
    I(f"v_add_u32 v{wl}, v{wl}, v{u(6)}")
    I(f"v_lshl_add_u32 v{wl}, v{u(7)}, 2, v{wl}")
    I(f"v_add_u32 v{wl}, {WBI}, v{wl}")
    I(f"v_lshlrev_b32 v{l16}, 4, v{lane}")
    I(f"v_and_b32 v{u(6)}, 3, v{lane}")
    I(f"v_lshlrev_b32 v{vcS}, 3, v{u(6)}")
    I(f"v_bfe_u32 v{u(9)}, v{lane}, 2, 3")
    I(f"v_lshrrev_b32 v{u(8)}, 5, v{lane}")
    I(f"v_lshl_add_u32 v{u(9)}, v{u(8)}, 4, v{u(9)}")
    I(f"v_mul_u32_u24 v{wal}, {WR}, v{u(9)}")
    I(f"v_add_u32 v{wal}, v{wal}, v{vcS}")
    mm = lambda i: sM + 8 + 2*i
    def rank_a(rs, wsrc=0, plain=False):
        for i in rs: I(f"v_mul_u32_u24 v{vBK+i}, s{cM}, v{vD+i}")
        if rs[0] // 4 < MG and not plain:
            b = rs[0]
            for i in rs: I(f"v_lshrrev_b32 v{vHA+i}, 29, v{vBK+i}")
            if opt("px", 0):
                I(f"s_waitcnt vmcnt({wsrc})")
                for i in rs:
                    I(f"v_cmp_gt_u32 vcc, {opt('px', 0)}, v{vSR+i}")
                    I("s_nop 1")
                    I(f"v_cndmask_b32 v{vHA+i}, v{vHA+i}, v{vID+(i&3)}, vcc") if False else I(f"v_cndmask_b32_e64 v{vHA+i}, v{vHA+i}, {8+(i&3)}, vcc")
            t0, t1 = sM + 24, sM + 26
            I(f"v_cmp_eq_u32 {sp(mm(b))}, v{vHA+b}, v{vHA+b+1}")
            I(f"v_cmp_eq_u32 {sp(mm(b+2))}, v{vHA+b+2}, v{vHA+b+3}")
            I(f"v_cmp_eq_u32 vcc, v{vHA+b}, v{vHA+b+2}")
            I(f"v_cmp_eq_u32 {sp(t0)}, v{vHA+b+1}, v{vHA+b+3}")
            I(f"v_cmp_eq_u32 {sp(t1)}, v{vHA+b}, v{vHA+b+3}")
            I(f"v_cmp_eq_u32 {sp(sA)}, v{vHA+b+1}, v{vHA+b+2}")
            for i in rs: I(f"v_lshrrev_b32 v{vBK+i}, 24, v{vBK+i}")
            I(f"s_or_b64 {sp(mm(b+1))}, {sp(mm(b))}, {sp(t0)}")
            I(f"s_or_b64 {sp(mm(b+3))}, {sp(mm(b+2))}, {sp(t0)}")
            I(f"s_or_b64 {sp(mm(b))}, {sp(mm(b))}, vcc")
            I(f"s_or_b64 {sp(mm(b+2))}, {sp(mm(b+2))}, vcc")
            I(f"s_or_b64 {sp(mm(b))}, {sp(mm(b))}, {sp(t1)}")
            I(f"s_or_b64 {sp(mm(b+1))}, {sp(mm(b+1))}, {sp(sA)}")
            I(f"s_or_b64 {sp(mm(b+2))}, {sp(mm(b+2))}, {sp(sA)}")
            I(f"s_or_b64 {sp(mm(b+3))}, {sp(mm(b+3))}, {sp(t1)}")
            for i in rs:
                I(f"v_cndmask_b32 v{vHA+i}, 0, v{vK1}, {sp(mm(i))}")
                I(f"v_lshl_add_u32 v{vHA+i}, v{vBK+i}, 2, v{vHA+i}")
                I(f"ds_add_rtn_u32 v{vRK1+i}, v{vHA+i}, v{one} offset:{HIST1}")
            return
        for i in rs: I(f"v_lshrrev_b32 v{vBK+i}, 24, v{vBK+i}")
        for i in rs:
            I(f"v_lshlrev_b32 v{vHA+i}, 2, v{vBK+i}")
            I(f"ds_add_rtn_u32 v{vRK1+i}, v{vHA+i}, v{one} offset:{HIST1}")
    def again(rs, wait, em):
        for i in rs:
            I(f"s_waitcnt lgkmcnt({wait})")
            I(f"s_mov_b64 exec, {sp(mm(i))}")
            I(f"v_cmpx_le_u32 vcc, {33*JE}, v{vRK1+i}")
            I(f"ds_add_rtn_u32 v{vRK1+i}, v{vHA+i}, v{one} offset:{HIST1 - 1024}")
        I(f"s_mov_b64 exec, {em}")
    def rank_b(rs):
        for i in rs:
            I(f"v_mad_i32_i24 v{vD+i}, v{vBK+i}, s{cN}, v{vD+i}")
            if opt("ro", 0): I(f"v_mad_u32_u24 v{u(6)}, s{cP}, v{vSR+i}, v{vIC+4}")
            else: I(f"v_mul_u32_u24 v{u(6)}, s{cP}, v{vSR+i}")
            I(f"v_lshl_or_b32 v{vSR+i}, v{vD+i}, 18, v{vSR+i}")
            if opt("rot", 1):
                I(f"v_and_b32 v{vD+i}, 0xe0, v{vBK+i}")
                I(f"v_mad_i32_i24 v{u(6)}, v{vD+i}, s{sSP}, v{u(6)}")
            I(f"v_and_or_b32 v{u(6)}, v{u(6)}, s{cPM}, v{icr(i)}")
            I(f"v_mad_u32_u24 v{vD+i}, v{vBK+i}, {LROW//4}, s{cN+4}")
            I(f"v_or_b32 v{vSR+i}, v{vSR+i}, v{u(6)}")
    def place(i, wait, em):
        I(f"s_waitcnt lgkmcnt({wait})")
        I(f"v_bfe_u32 v{u(6)}, v{vRK1+i}, 3, 5")
        I(f"v_add_lshl_u32 v{vD+i}, v{u(6)}, v{vD+i}, 2")
        I(f"v_and_b32 v{u(6)}, 3, v{u(6)}")
        I(f"v_mad_i32_i24 v{u(6)}, v{u(6)}, -3, v{vD+i}")
        I(f"v_cmpx_gt_u32 vcc, {33*CAP}, v{vRK1+i}")
        I(f"ds_write_b32 v{vD+i}, v{vSR+i}")
        I(f"ds_write_b8 v{u(6)}, v{idr(i)} offset:12")
        I(f"s_mov_b64 exec, {em}")
    I(f"s_movk_i32 s{cN+4}, {CIMG//4}")
    for d in range(2): I(f"v_mov_b64 {rr(vRK1+4+2*d,2)}, 0")
    I("s_waitcnt lgkmcnt(0)")
    I("s_barrier")
    if BAL:
        m3 = sM + 28
        I("s_waitcnt vmcnt(3)")
        stamp(1)
        if TS: STN.pop()
        rank_a(range(4))
        I("s_waitcnt vmcnt(2)")
        I(f"s_mov_b64 exec, {sp(m2)}")
        rank_a(range(4, 6))
        if MG: again(range(4), 5, "-1")
        else: I("s_mov_b64 exec, -1")
        I("s_waitcnt vmcnt(0)")
        rank_b(range(6))
        I(f"s_mov_b64 exec, {sp(m2)}")
        for i in range(4, 6): place(i, (1 if MG else -3) + i, sp(m2) if i < 5 else "-1")
        for i in range(4): place(i, 7 + i, "-1")
        I(f"s_mov_b64 exec, {sp(m3)}")
        I("s_cbranch_execz L_B1")
        rank_a([6]); rank_b([6]); place(6, 0, "-1")
        I("s_branch L_B1")
    I(f"s_cmp_eq_u64 {sp(m2)}, 0" if FH else f"s_cmp_ge_u32 s{sWP}, 5")
    I("s_cbranch_scc1 L_R4")
    I(f"s_waitcnt vmcnt({3+KV})")
    stamp(1)
    rank_a(range(4), 2)
    I(f"s_waitcnt vmcnt({1+KV})")
    I(f"s_mov_b64 exec, {sp(m2)}")
    rank_a(range(4, 8))
    if MG == 0:
        I("s_mov_b64 exec, -1")
        rank_b(range(4))
        for i in range(4): place(i, 7 + i, "-1" if i < 3 else sp(m2))
        I(f"s_waitcnt vmcnt({KV})")
        rank_b(range(4, 8))
        for i in range(4, 8): place(i, 7 + i, sp(m2) if i < 7 else "-1")
    elif MG == 1:
        again(range(4), 7, sp(m2))
        I(f"s_waitcnt vmcnt({KV})")
        rank_b(range(4, 8))
        for i in range(4, 8): place(i, 3 + i, sp(m2) if i < 7 else "-1")
        rank_b(range(4))
        for i in range(4): place(i, 11 + i, "-1")
    else:
        again(range(8), 7, "-1")
        rank_b(range(4))
        for i in range(4): place(i, 7 + i, "-1" if i < 3 else sp(m2))
        I(f"s_waitcnt vmcnt({KV})")
        rank_b(range(4, 8))
        for i in range(4, 8): place(i, 7 + i, sp(m2) if i < 7 else "-1")
    I("s_branch L_B1")
    L("L_R4")
    TL = opt("tl", 0)
    if TL:
        TM = opt("tm", "xeo")
        OY = len(TM)
        if opt("tl2", 0):
            I("s_lshr_b32 s10, s2, 3")
            I(f"s_lshl_b32 s10, s10, {TL-5}")
        else: I(f"s_lshl_b32 s10, s2, 7")
        I(f"v_lshl_add_u32 v{vEA}, v{lane}, {TL}, s10")
        I(f"v_lshrrev_b32 v{vEI}, 5, v{vEA}")
        I(f"s_cmp_eq_u32 s{sWP}, 7")
        I("s_cselect_b64 exec, -1, 1")
        if "w" in TM:
            I("s_and_b32 s10, s2, -8")
            I(f"v_and_b32 v{vQD}, 7, v{lane}")
            I(f"v_add_u32 v{vQD}, s10, v{vQD}")
            I(f"v_mul_u32_u24 v{vQD}, {RS}, v{vQD}")
            I(f"s_mov_b32 s10, {WS_CELL + 256*128}")
            I(f"buffer_load_dword v{vEA+1}, v{vQD}, {sq(sWS)}, s10 offen")
        if "x" in TM: I(f"buffer_load_dword v{vEA+1}, v{vEA}, {sq(sX)}, 0 offen")
        if "e" in TM: I(f"buffer_load_dword v{vEA+1}, v{vEI}, {sq(sEP)}, 0 idxen")
        if "o" in TM: I(f"buffer_load_dword v{vEA+1}, v{vEA}, {sq(sOUT)}, 0 offen")
        I("s_mov_b64 exec, -1")
    elif OY:
        I(f"s_cmp_ge_u32 s{sWP}, {OW0}")
        I("s_cbranch_scc1 L_R4A")
        I(f"s_waitcnt vmcnt({KV})")
        L("L_R4A")
    I(f"s_waitcnt vmcnt({1 + OY + KV})")
    if TS: STN.pop()
    stamp(1)
    YM = opt("ym", 1)
    rank_a(range(4), plain=not YM)
    I(f"s_waitcnt vmcnt({OY + KV})")
    if MG and YM:
        rank_b(range(2))
        again(range(4), 3, "-1")
        rank_b(range(2, 4))
    else: rank_b(range(4))
    for i in range(4): place(i, 3 + i, "-1")
    L("L_B1")
    if BAL:
        k_ = max(i for i, l in enumerate(out) if l.strip() == "s_cbranch_execz L_B1")
        e_ = next(i for i in range(k_, len(out)) if out[i].strip() == "s_branch L_B1")
        del out[e_:len(out)-1]
        I("s_mov_b64 exec, -1")
    WL = opt("wl", 0)
    if not WL: w_loads()
    vTG = vS + 2
    def tagcalc():
        I(f"s_add_u32 s{sK}, s{sK}, {KINC:#x}")
        I(f"v_lshlrev_b32 v{vTG}, v{vcS}, s{sK}")
        I(f"v_and_b32 v{u(1)}, 4, v{lane}")
        I(f"v_mul_u32_u24 v{u(1)}, {37 << 15}, v{u(1)}")
        I(f"v_lshl_add_u32 v{vTG}, v{u(1)}, 8, v{vTG}")
        I(f"v_and_b32 v{vTG}, 0xfe000000, v{vTG}")
    if not KV: tagcalc()
    vTH = vS + 3
    I(f"v_and_b32 v{vTH}, 7, v{lane}")
    I(f"v_mul_u32_u24 v{vTH}, 33, v{vTH}")
    I(f"v_add_u32 v{vTH}, {33*CAP}, v{vTH}")
    if not TW: I(f"v_lshlrev_b32 v{lo2}, 2, v{ha}")
    I(f"s_mov_b32 s{cM}, 0x1000000")
    I("s_waitcnt lgkmcnt(0)")
    I("s_barrier")
    stamp(2)
    vO, vHS = vQ, u(4)
    I(f"ds_read_b128 {rr(vHS,4)}, v{l16} offset:{HIST1}")
    vHD = vR + 8
    for i in range(4):
        if TW:
            I(f"ds_read_b32 v{vHD+i}, v{(lo2, l2b)[i>>1]} offset:{HIST1 + 32*(i&1)}")
            I(f"ds_read_b128 {rr(vO+4*i,4)}, v{(lo, lob)[i>>1]} offset:{8*LROW*(i&1)}")
            continue
        I(f"ds_read_b32 v{vHD+i}, v{lo2} offset:{HIST1 + 256*i}")
        I(f"ds_read_b128 {rr(vO+4*i,4)}, v{lo} offset:{64*LROW*i}")
    if KV:
        I("s_waitcnt vmcnt(4)")
        I(f"v_readfirstlane_b32 s{sK}, v{vEA+1}")
    if TW:
        for h in range(2):
            I(f"s_mul_i32 s{sM+15+2*h}, s{sRG+h}, {RS}")
            I(f"s_add_u32 s{sM+16+2*h}, s{sM+15+2*h}, {8*RS}")
    else:
        for i in range(1, 4): I(f"s_mov_b32 s{sM+15+i}, {64*RS*i}")
    if KV: tagcalc()
    I("s_waitcnt lgkmcnt(8)")
    I(f"v_max3_u32 v{u(0)}, v{vHS}, v{vHS+1}, v{vHS+2}")
    I(f"v_max_u32 v{u(0)}, v{u(0)}, v{vHS+3}")
    I(f"v_cmp_lt_u32 vcc, {33*(CAP+8)}, v{u(0)}")
    I("s_cbranch_vccnz L_POVF")
    L("L_POUT")
    for i in range(4):
        I(f"s_waitcnt lgkmcnt({7 - 2*i})")
        I(f"v_sub_u32 v{vHD+i}, v{vTH}, v{vHD+i}")
        I(f"v_and_or_b32 v{vHD+i}, v{vHD+i}, s{cM}, v{vTG}")
        I(f"s_waitcnt lgkmcnt({6 - 2*i})")
        I(f"v_or_b32 v{vO+4*i+3}, v{vO+4*i+3}, v{vHD+i}")
        I(f"buffer_store_dwordx4 {rr(vO+4*i,4)}, v{go}, {sq(sCEL)}, {f's{sM+15+i}' if i or TW else '0'} offen{pol(STP)}")
    stamp(3)
    if WL: w_loads()
    if "c" in opt("tsx", ""): I("s_waitcnt vmcnt(0)")
    stamp("c0")
    t = vACC + 32
    I(f"s_mov_b32 s{sA}, {f2u(-LOG2E):#x}")
    I(f"s_mov_b32 s{sBt}, s{sA}")
    I(f"s_mov_b32 s{cM}, 0x05040100")
    I(f"s_mov_b32 s{cP}, 0x07060302")
    def wscaled(src, off):
        for d in range(4):
            I(f"v_lshlrev_b32 v{t+2*d}, 16, v{src+d}")
            I(f"v_and_b32 v{t+2*d+1}, 0xffff0000, v{src+d}")
        for d in range(4): I(f"v_pk_mul_f32 {rr(t+2*d,2)}, {rr(t+2*d,2)}, {sp(sA)}")
        for n in range(4): I(f"v_cvt_pk_bf16_f32 v{t+8+n}, v{t+n}, v{t+4+n}")
        wput(t + 8, off)
    def wplain(src, off, tt):
        for n in range(4): I(f"v_perm_b32 v{tt+n}, v{src+2+(n>>1)}, v{src+(n>>1)}, s{cP if n & 1 else cM}")
        wput(tt, off)
    def wput(r, off):
        a = wl
        if off:
            a = r + 4
            I(f"v_add_u32 v{a}, {off}, v{wl}")
        I(f"ds_write2_b32 v{a}, v{r}, v{r+1} offset0:0 offset1:8")
        I(f"ds_write2_b32 v{a}, v{r+2}, v{r+3} offset0:16 offset1:24")
    I(f"s_waitcnt vmcnt({0 if WL else 4})")
    if PFP == 0: x_prefetch()
    stamp("b4")
    wplain(vRW + 8, WAI - WBI, t + 16)
    wscaled(vRW, 0)
    wplain(vRW + 4, WVI - WBI, t + 24)
    wplain(vRW + 12, WUI - WBI, t + 16)
    I(f"s_cmp_ge_u32 s{sWP}, 2")
    I("s_cbranch_scc1 L_NOWC")
    wscaled(vEO, WCI - WBI)
    L("L_NOWC")
    I(f"s_mul_i32 s{sTM}, s{sB}, {RS}")
    I(f"s_add_u32 s{sTM}, s{sTM}, {WS_CELL}")
    srd(sCEL, pWS, 256*128, f"s{sTM}")
    I(f"s_add_u32 s{sTM}, s{sTM}, {XOFF}")
    srd(sD2, pWS, 256*128, f"s{sTM}")
    vC, vEB = vACC + 32, vACC + 60
    pa = vT16
    def goff(d, k):
        if not TW: return I(f"s_movk_i32 s{d}, {8192*k}")
        I(f"s_sub_u32 s{d}, {64*k + 63}, s{sB}")
        I(f"s_and_b32 s{d}, s{d}, 0xc0")
        I(f"s_lshl_b32 s{d}, s{d}, 7")
    for k in range(4): goff(sCI + k, k)
    def poll_load(i):
        so = f"s{sCI+i}"
        I(f"buffer_load_dwordx4 {rr(vC+4*i,4)}, v{pa}, {sq(sCEL)}, {so} offen sc1")
    I("s_waitcnt lgkmcnt(0)")
    I("s_barrier")
    stamp(4)
    def ppoint(k):
        for i in range(4):
            if TW and int(TW[i]) == k: poll_load(i)
    ppoint(0)
    if WL == 1:
        for i in range(4): poll_load(i)
    if PFP == 1: x_prefetch()
    if OLP == 0: own_loads()
    vWA = vACC
    I(f"v_add_u32 v{wal}, {WBI}, v{wal}")
    def trw(reg, img):
        return [f"ds_read_b64_tr_b16 {rr(reg+8*n+4*s+2*uu,2)}, v{wal} offset:{img + (32*s + 8*uu)*WR + 32*n}"
                for n in range(4) for s in range(2) for uu in range(2)]
    tw = trw(vWB, 0) + trw(vWV, WVI - WBI)
    for x_ in tw[:14]: I(x_)
    prefill(vCA)
    ppoint(1)
    if WL == 2:
        for i in range(4): poll_load(i)
    for x_ in tw[14:24]: I(x_)
    nxt = 24
    I(f"v_mov_b32 v{u(4)}, v{wal}")
    I("s_mov_b32 exec_lo, 0")
    I(f"v_subrev_u32 v{u(4)}, {16*WR}, v{wal}")
    I("s_mov_b32 exec_lo, -1")
    tw += [f"ds_read_b64_tr_b16 {rr(vCA+16+4*n+2*uu,2)}, v{u(4)} offset:{WCI - WBI + 8*uu*WR + 32*n}" for n in range(4) for uu in range(2)]
    vEM, vET = vEO, vACC + 56
    ownn, owna, mapa = vEO + 1, vEO + 2, vEO + 3
    I("s_waitcnt lgkmcnt(4)")
    for x_ in tw[nxt:]: I(x_)
    I(f"v_add_u32 v{wal}, {WAI - WBI}, v{wal}")
    ppoint(2)
    vFF = vEO + 4
    vMU = vR + 8
    lo0, hi0, lo1, hi1 = sWS0, sWS1, sB0E, sSH
    def late_setup():
        I(f"v_and_b32 v{vCH}, 1, v{lane}")
        I(f"v_lshlrev_b32 v{vCH}, 4, v{vCH}")
        I(f"v_mov_b32 v{vONE}, 0x3f80")
        I(f"v_and_b32 v{vcEO}, 16, v{lane}")
        I(f"v_and_b32 v{u(6)}, 15, v{lane}")
        I(f"v_lshl_add_u32 v{u(6)}, v{u(6)}, 5, s{sES}")
        I("s_mov_b32 exec_hi, 0")
        I(f"v_add_u32 v{vcEO}, v{vcEO}, v{u(6)}")
        I("s_mov_b32 exec_hi, -1")
        I(f"v_and_b32 v{u(6)}, 3, v{lane}")
        I(f"v_bfe_u32 v{u(8)}, v{lane}, 2, 2")
        I(f"v_and_b32 v{u(9)}, 48, v{lane}")
        I(f"v_lshl_add_u32 v{u(10)}, v{u(8)}, 7, v{u(9)}")
        I(f"v_mul_u32_u24 v{vAX}, {XI}, v{u(6)}")
        I(f"v_add3_u32 v{vAX}, v{vAX}, v{u(10)}, s{sSTG}")
        listaddr(u(6))
        I(f"v_mul_u32_u24 v{vEB+3}, {CH}, v{ha}")
        for i in range(4):
            if not TW:
                I(f"v_add_u32 v{vEB+i}, {64*i*CH}, v{vEB+3}"); continue
            I(f"s_lshr_b32 s10, s{sCI+i}, 7")
            I(f"s_mul_i32 s10, s10, {CH}")
            I(f"v_add_u32 v{vEB+i}, s10, v{vEB+3}")
        I(f"s_mov_b32 s{sEM}, {EMASK:#x}")
        I(f"s_mov_b32 s{sEM+1}, {EMASK:#x}")
        vFF = vEO + 4
        I(f"v_mov_b32 v{vFF}, 0xfffff")
        I(f"v_mov_b32 v{vEM}, 0")
        I(f"v_add_lshl_u32 v{u(3)}, v{pa}, v{vCP}, 16")
        for i in range(4):
            I(f"v_add_u32 v{vET+i}, {(EARLY + 8192*i) << 16:#x}, v{u(3)}")
            I(f"v_cndmask_b32 v{vET+i}, 0, v{vET+i}, {sp(sEM)}")
        I(f"v_mov_b32 v{one}, 4")
        I(f"v_and_b32 v{ownn}, 31, v{lane}")
        I(f"v_add_lshl_u32 v{mapa}, v{ownn}, s{sWIN}, 2")
        I(f"v_lshrrev_b32 v{u(3)}, 5, v{lane}")
        I(f"v_lshl_add_u32 v{owna}, v{u(3)}, 11, v{mapa}")
        I(f"v_add_u32 v{mapa}, {MAP}, v{mapa}")
        I(f"v_lshlrev_b32 v{u(3)}, 2, v{lane}")
        I(f"v_subrev_u32 v{u(3)}, s{sWIN}, v{u(3)}")
        I("s_mov_b32 s10, 0x10000")
        for i in range(4):
            I(f"v_add_u32 v{vMU+i}, {i}, v{u(3)}")
            I(f"v_and_or_b32 v{vMU+i}, v{vMU+i}, s10, 1")
        I(f"s_movk_i32 s{sFM}, 0xffc")
        I(f"s_movk_i32 s{sSKIP}, {CAP+8}")
        I(f"s_mov_b32 s{sXT}, 0")
        I(f"s_mov_b32 s{sSP}, 0")
        I(f"s_mov_b32 s{sT}, 0x1ffffff")
        I(f"s_mov_b32 s{sN}, 0xffff")
        lo0, hi0, lo1, hi1 = sWS0, sWS1, sB0E, sSH
        I(f"s_mul_i32 s10, s{sW}, 49")
        I(f"s_sub_i32 s{lo0}, s10, 6")
        I(f"s_ashr_i32 s{lo0}, s{lo0}, 1")
        I(f"s_add_i32 s{hi0}, s10, 7")
        I(f"s_ashr_i32 s{hi0}, s{hi0}, 1")
        I(f"s_add_i32 s{lo1}, s10, 43")
        I(f"s_ashr_i32 s{lo1}, s{lo1}, 1")
        I(f"s_add_i32 s{hi1}, s{lo0}, 31")
        I(f"s_cmp_eq_u32 s{sW}, 7")
        I(f"s_cselect_b32 s{lo1}, {BN}, s{lo1}")
        I(f"s_cselect_b32 s{hi1}, {BN}, s{hi1}")
        for r_ in (hi0, lo1, hi1): I(f"s_sub_i32 s{r_}, s{r_}, s{sWIN}")
    LS = opt("ls", 0)
    if LS == 0: late_setup()
    stamp("b0")
    if opt("pw", 1) and not WL: I(f"s_waitcnt vmcnt({sum(c != '3' for c in TW)})")
    stamp("b1")
    if opt("pbar", 0): I("s_barrier")
    if TW: ppoint(3)
    elif WL in (0, 3):
        for i in range(4): poll_load(i)
    if OLP == 1: own_loads()
    if LS == 1: late_setup()
    PY = 4 if OLP == 1 else 0
    I(f"v_max3_u32 v{u(0)}, v{vRK1}, v{vRK1+1}, v{vRK1+2}")
    I(f"v_max3_u32 v{u(1)}, v{vRK1+3}, v{vRK1+4}, v{vRK1+5}")
    I(f"v_max3_u32 v{u(0)}, v{u(0)}, v{vRK1+6}, v{vRK1+7}")
    I(f"v_max_u32 v{u(0)}, v{u(0)}, v{u(1)}")
    I(f"v_cmp_le_u32 vcc, {33*CAP}, v{u(0)}")
    I("s_cbranch_vccz L_PEXTR")
    q = vCA
    if TS: I(f"v_writelane_b32 v{vTS}, 1, 61")
    I(f"v_mov_b32 v{q+1}, s{sK}")
    I(f"s_lshl_b32 s{sTM}, s2, 7")
    I(f"s_add_u32 s{sTM}, s{sTM}, {WS_CELL + XOFF}")
    for i in range(NR):
        I(f"v_subrev_u32 v{q+4}, {33*CAP}, v{vRK1+i}")
        I(f"v_cmpx_gt_u32 vcc, {33*8}, v{q+4}")
        I(f"s_cbranch_execz L_PE{i}")
        I(f"v_mov_b32 v{q}, v{vSR+i}")
        I(f"v_mov_b32 v{q+2}, v{idr(i)}")
        I(f"v_bfe_u32 v{q+4}, v{vRK1+i}, 5, 3")
        I(f"v_lshlrev_b32 v{q+4}, 4, v{q+4}")
        I(f"v_mad_u32_u24 v{q+4}, v{vBK+i}, s{cR}, v{q+4}")
        I(f"buffer_store_dwordx4 {rr(q,4)}, v{q+4}, {sq(sWS)}, s{sTM} offen sc1")
        L(f"L_PE{i}")
        I("s_mov_b64 exec, -1")
    L("L_PEXTR")
    stamp(5)
    vA, vRK, vR1 = vACC, vACC + 16, vQ
    mk = lambda i, j: sM + 2*(4*i + j)
    def rec_ops(d, x, byte, eb, a, r1):
        return [f"v_add_u32_sdwa v{r1}, v{x}, v{eb} {SDW} src0_sel:BYTE_{byte} src1_sel:DWORD",
                f"v_lshrrev_b32 v{u(1)}, 28, v{d}",
                f"v_lshl_add_u32 v{r1}, v{u(1)}, 8, v{r1}",
                f"v_and_b32 v{u(1)}, 60, v{a}",
                f"v_and_b32 v{d}, 0xffff, v{d}",
                f"v_lshl_or_b32 v{d}, v{u(1)}, 19, v{d}"]
    def spin():
        I(f"s_add_u32 s{sSP}, s{sSP}, 1")
        I(f"s_cmp_gt_u32 s{sSP}, {opt('spin', 200000)}")
        I("s_cbranch_scc1 L_END")
        if opt("slp", 1): I(f"s_sleep {opt('slp', 1)}")
    xg = vCA
    def xload(tag):
        for i in range(4):
            I(f"s_mov_b64 exec, {sp(mk(i,3))}")
            I(f"s_cbranch_execz L_XL{tag}{i}")
            goff(10, i)
            I(f"buffer_load_dwordx4 {rr(xg+4*i,4)}, v{pa}, {sq(sD2)}, s10 offen sc1")
            L(f"L_XL{tag}{i}")
        I("s_mov_b64 exec, -1")
    for i in range(4):
        c_ = vC + 4*i
        L(f"L_PW{i}")
        I(f"s_waitcnt vmcnt({3 - i + PY})")
        I(f"v_xor_b32 v{u(0)}, v{c_+3}, v{vTG}")
        for j in range(3): I(f"v_and_b32_sdwa v{vA+4*i+j}, v{c_+j}, s{sFM} {SDW} src0_sel:WORD_1 src1_sel:DWORD")
        I(f"v_cmp_lt_u32 vcc, s{sT}, v{u(0)}")
        for j in range(3): I(f"v_cmp_ne_u32 {sp(mk(i,j))}, 0, v{c_+j}")
        I(f"s_cbranch_vccnz L_RT{i}")
        if i == 3: stamp(6)
        for j in range(3):
            I(f"s_mov_b64 exec, {sp(mk(i,j))}")
            I(f"ds_add_rtn_u32 v{vRK+4*i+j}, v{vA+4*i+j}, v{one} offset:{HIST}")
        I("s_mov_b64 exec, -1")
        I(f"v_or_b32 v{vEM}, v{vEM}, v{c_+1}")
        if i == 3:
            I(f"v_or3_b32 v{u(2)}, v{vC+3}, v{vC+7}, v{vC+11}")
            I(f"v_or_b32 v{u(2)}, v{u(2)}, v{vC+15}")
            I(f"v_and_b32 v{u(2)}, 0x1000000, v{u(2)}")
            I(f"v_cmp_ne_u32 vcc, 0, v{u(2)}")
            I("s_cbranch_vccz L_XT1R")
            def xt1():
                if TS: I(f"v_writelane_b32 v{vTS}, 1, 62")
                for i in range(4):
                    I(f"v_and_b32 v{u(2)}, 0x1000000, v{vC+4*i+3}")
                    I(f"v_cmp_ne_u32 {sp(mk(i,3))}, 0, v{u(2)}")
                    I(f"s_bcnt1_i32_b64 s10, {sp(mk(i,3))}")
                    I(f"s_lshl2_add_u32 s{sXT}, s10, s{sXT}")
                xload("a")
                I(f"v_and_b32 v{u(2)}, 0x10000, v{vEM}")
                I(f"v_mov_b32 v{u(3)}, {FLAG}")
                I(f"v_cmpx_ne_u32 vcc, 0, v{u(2)}")
                I(f"ds_write_b32 v{u(3)}, v{one} offset:4")
                I("s_mov_b64 exec, 1")
                I(f"v_mov_b32 v{u(2)}, s{sXT}")
                I(f"ds_add_u32 v{u(3)}, v{u(2)} offset:8")
                I("s_mov_b64 exec, -1")
            xt1()
            L("L_XT1R")
        ro = [rec_ops(c_+j, c_+3, j, vEB+i, vA+4*i+j, vR1+4*i+j) for j in range(3)]
        e_ = vR1 + 4*i + 3
        put(ro[0])
        if JE:
            I(f"v_cndmask_b32 v{u(0)}, v{vFF}, v{vR1+4*i}, {sp(mk(i,0))}")
            I(f"v_max_u32 v{vR1+4*i}, v{vR1+4*i}, v{vET+i}")
        put(ro[1])
        if JE:
            I(f"v_mov_b32_dpp v{u(2)}, v{u(0)} quad_perm:[2,2,3,3] row_mask:0xf bank_mask:0xf")
            I(f"v_mov_b32_dpp v{e_}, v{u(0)} quad_perm:[0,0,1,1] row_mask:0xf bank_mask:0xf")
        if i < 3: put(ro[2])
        else:
            put(ro[2][:3])
            fill = [x.replace(f"v{u(1)}", f"v{vQD+3}") for x in ro[2][3:]]
        if JE: I(f"v_mov_b32_dpp v{e_}, v{u(2)} row_shr:4 row_mask:0xf bank_mask:0xa")
    I(f"v_mov_b32 v{u(9)}, {FLAG}")
    if OLP == 2: own_loads()
    if PFP == 2: x_prefetch()
    I("s_waitcnt lgkmcnt(0)")
    stamp("d0")
    I("s_barrier")
    stamp(7)
    def early(i):
        if not JE: return
        I(f"s_lshl_b32 m0, s{sWP}, 10")
        I(f"v_mov_b32 v{vEI}, v{vR1+4*i+3}")
        I(f"s_add_u32 m0, m0, {EARLY + 8192*i}")
        if JE < 4:
            I(f"s_mov_b32 exec_lo, {((1 << 2*JE) - 1) * 0x01010101:#x}")
            I("s_mov_b32 exec_hi, exec_lo")
        else: I("s_nop 0")
        I(f"buffer_load_dwordx4 {rr(vEI,2)}, {sq(sEP)}, 0 idxen offen{pol(opt('eep', ''))} lds")
        if JE < 4: I("s_mov_b64 exec, -1")
    EPOS = opt("epos", "0134")
    def epoint(k):
        for i in range(4):
            if int(EPOS[i]) == k: early(i)
    c, p, tot, sc = u(0), u(4), u(8), u(9)
    hh = vX
    own, to2, ex, z_, eh, el = u(10), u(11), u(12), u(13), u(14), u(15)
    SD = f"{SDW} src0_sel:WORD_0 src1_sel:WORD_0"
    HL = f"{SDW} src0_sel:WORD_0 src1_sel:WORD_1"
    I(f"ds_read_u16 v{own}, v{owna} offset:{HIST}")
    I(f"ds_read_u16 v{to2}, v{owna} offset:{HIST + 1024}")
    for ph in range(4):
        I(f"ds_read_b128 {rr(hh+4*ph,4)}, v{l16} offset:{HIST + 1024*ph}")
    I(f"ds_read_b32 v{vQD}, v{sc} offset:8")
    if OLP == 4: own_loads()
    epoint(0)
    I("s_cmp_lg_u32 s2, 0")
    I("s_cbranch_scc1 L_NOK")
    I(f"v_mov_b32 v{vQD+1}, s{sK}")
    I(f"v_mov_b32 v{vQD+2}, 0")
    I(f"buffer_store_dword v{vQD+1}, v{vQD+2}, {sq(sWS)}, 0 offen sc1")
    L("L_NOK")
    I("s_waitcnt lgkmcnt(5)")
    I(f"v_lshl_or_b32 v{own}, v{to2}, 16, v{own}")
    I(f"v_mov_b32 v{to2}, v{own}")
    I("s_waitcnt lgkmcnt(0)")
    stamp("d1")
    f2 = []
    for i in range(4):
        f2 += [f"v_add_u32_sdwa v{c+i}, v{hh+i}, v{hh+4+i} {SD}", f"v_add_u32_sdwa v{p+i}, v{hh+8+i}, v{hh+12+i} {SD}"]
    f2 += [f"v_add_u32 v{c+i}, v{c+i}, v{p+i}" for i in range(4)]
    wave_scan(to2, f2, half=True)
    put(f2)
    I(f"v_mul_u32_u24 v{tot}, v{c}, v{vMU}")
    for i in range(1, 4): I(f"v_mad_u32_u24 v{tot}, v{c+i}, v{vMU+i}, v{tot}")
    f2 = [f"v_sub_u32 v{ex}, v{to2}, v{own}", f"v_add_u32_sdwa v{eh}, v{to2}, v{to2} {HL}",
          f"v_add_u32_sdwa v{z_}, v{ex}, v{ex} {HL}", f"v_add_u32_sdwa v{el}, v{own}, v{own} {HL}",
          fill.pop(0), f"v_readfirstlane_b32 s{sMORE}, v{vQD}",
          f"v_permlane32_swap_b32 v{z_}, v{eh}", f"v_cndmask_b32 v{el}, 0, v{el}, {sp(sJ3)}",
          f"v_add_u32 v{z_}, v{z_}, v{eh}", fill.pop(0),
          f"v_add_u32 v{eh}, v{z_}, v{el}", fill.pop(0)]
    I(f"s_mov_b32 s{sJ3}, -1")
    I(f"s_mov_b32 s{sJ3+1}, 0")
    wave_scan(tot, f2)
    assert not f2
    stamp("d2")
    I(f"v_sub_u32_sdwa v{el}, v{eh}, v{own} {SDW} src0_sel:DWORD src1_sel:WORD_1")
    I(f"v_readlane_b32 s{sT}, v{tot}, 63")
    epoint(1)
    ASYM = opt("asym", 12)
    I(f"s_bfe_u32 s10, s{sT}, 0xe0002")
    I(f"s_lshr_b32 s{sT}, s{sT}, 16")
    I("s_lshr_b32 s11, s10, 1")
    I(f"s_add_u32 s11, s11, {4*ASYM}")
    I("s_and_b32 s11, s11, -128")
    I(f"s_lshr_b32 s{sF0}, s{sW}, 1")
    I(f"s_mul_i32 s{sF0}, s{sF0}, s10")
    I(f"s_sub_i32 s11, s11, {4*ASYM}")
    I(f"s_sub_i32 s{sF0}, s{sF0}, s{sT}")
    I(f"s_add_i32 s11, s11, s{sF0}")
    I(f"s_add_i32 s10, s10, s{sF0}")
    I(f"s_bitcmp1_b32 s{sW}, 0")
    I(f"s_cselect_b32 s{sEND}, s11, s{sF0}")
    I("s_cselect_b32 s10, s10, s11")
    I(f"v_cmp_gt_i32 vcc, s{sEND}, v{eh}")
    I(f"v_cmp_gt_i32 {sp(sTM)}, s10, v{eh}")
    f0, f1 = sWS0, sWS1
    I(f"s_bcnt1_i32_b32 s{f0}, vcc_lo")
    I(f"s_bcnt1_i32_b32 s10, s{sTM}")
    I(f"s_min_i32 s{f0}, s{f0}, s{hi0}")
    I(f"s_max_i32 s10, s10, s{lo1}")
    I(f"s_min_i32 s{f1}, s10, s{hi1}")
    stamp("d3")
    epoint(2)
    A01, A23, E01, E23, Z1 = sCI, sCUR, sR0, sCNT, sST
    I(f"v_readlane_b32 s{sT}, v{z_}, s{f0}")
    I(f"v_readlane_b32 s{Z1}, v{z_}, s{f1}")
    I(f"s_add_u32 s{sF0}, s{f0}, s{sWIN}")
    I(f"s_add_u32 s{sF1}, s{f1}, s{sWIN}")
    I(f"s_add_u32 s10, s{f0}, 32")
    I(f"s_add_u32 s11, s{f1}, 32")
    I(f"v_readlane_b32 s{A01}, v{ex}, s{f0}")
    I(f"v_readlane_b32 s{E01}, v{ex}, s{f1}")
    I(f"v_readlane_b32 s{A23}, v{ex}, s10")
    I(f"v_readlane_b32 s{E23}, v{ex}, s11")
    I(f"s_sub_u32 s{sEND}, s{Z1}, s{sT}")
    I(f"s_add_u32 s10, s{sEND}, 255")
    if opt("flr", 1):
        I(f"s_sub_i32 s11, s{f1}, 16")
        I(f"s_max_i32 s11, s11, s{f0}")
        I(f"v_readlane_b32 s11, v{z_}, s11")
        I(f"s_add_u32 vcc_lo, s{sEND}, 127")
        I(f"s_and_b32 vcc_hi, vcc_lo, 127")
        I(f"s_add_u32 vcc_hi, vcc_hi, s{sMORE}")
        I(f"s_cmp_lt_u32 vcc_hi, 55")
        I(f"s_cselect_b32 vcc_lo, vcc_lo, s10")
        I(f"s_sub_u32 s11, s11, s{sT}")
        I(f"s_add_u32 s11, s11, s{sMORE}")
        I(f"s_lshl_b32 s11, s11, 1")
        I(f"s_and_b32 vcc_lo, vcc_lo, -256")
        I(f"s_cmp_le_u32 s11, vcc_lo")
        I(f"s_cselect_b32 s10, vcc_lo, s10")
    I("s_lshr_b32 s10, s10, 8")
    I("s_lshl_b32 s10, s10, 7")
    I(f"s_sub_u32 s10, s10, s{sMORE}")
    I("s_max_i32 s10, s10, 0")
    I(f"s_add_u32 s{sT}, s{sT}, s10")
    I(f"s_add_u32 s10, s{f0}, 16")
    I(f"s_min_u32 s10, s10, s{f1}")
    I(f"s_sub_i32 s11, s{f1}, 16")
    inl, inh, mo = sTM, sTM + 2, sMSK
    I(f"v_cmp_ge_u32 {sp(inl)}, s{sT}, v{el}")
    I(f"v_cmp_ge_u32 {sp(inh)}, s{sT}, v{eh}")
    I(f"v_cmp_gt_i32 vcc, s10, v{ownn}")
    I(f"v_cmp_gt_i32 {sp(sA)}, s11, v{ownn}")
    I(f"v_cmp_le_u32 {sp(mo)}, s{f0}, v{ownn}")
    I(f"v_cmp_gt_u32 {sp(sJ3)}, s{f1}, v{ownn}")
    I(f"s_and_b64 {sp(inl)}, {sp(inl)}, vcc")
    I(f"s_and_b64 {sp(inh)}, {sp(inh)}, vcc")
    I(f"s_or_b64 {sp(inl)}, {sp(inl)}, {sp(sA)}")
    I(f"s_or_b64 {sp(inh)}, {sp(inh)}, {sp(sA)}")
    I(f"s_bcnt1_i32_b32 s{sB0E}, s{inl}")
    I(f"s_bcnt1_i32_b32 s10, s{inh}")
    I(f"s_bcnt1_i32_b32 s11, s{inl+1}")
    I(f"s_bcnt1_i32_b32 s{sSH}, s{inh+1}")
    I(f"v_readlane_b32 s{f0}, v{ex}, s{sB0E}")
    I(f"v_readlane_b32 s10, v{ex}, s10")
    I("s_add_u32 s11, s11, 32")
    I(f"s_add_u32 s{sT}, s{sSH}, 32")
    I(f"v_readlane_b32 s{f1}, v{ex}, s11")
    I(f"v_readlane_b32 s11, v{ex}, s{sT}")
    I(f"v_mov_b32 v{c}, s{sN}")
    I(f"v_cndmask_b32 v{c+1}, 0, v{c}, {sp(inl)}")
    I(f"v_cndmask_b32 v{c}, 0, v{c}, {sp(inh)}")
    I(f"s_and_b64 {sp(mo)}, {sp(mo)}, {sp(sJ3)}")
    Q01, Q23 = f0, f1
    I(f"s_pack_lh_b32_b16 s{Q01}, s{f0}, s10")
    I(f"s_pack_lh_b32_b16 s{Q23}, s{f1}, s11")
    I(f"v_lshl_or_b32 v{c}, v{c}, 16, v{c+1}")
    I(f"s_sub_u32 s{sT}, s{sL}, {R0 - BIAS}")
    I(f"s_pack_ll_b32_b16 s{sT}, s{sT}, s{sT}")
    def bases(lo01, lo23, hi01, hi23, d, keep=None):
        I(f"s_sub_u32 s10, s{hi01}, s{lo01}")
        I(f"s_sub_u32 s11, s{hi23}, s{lo23}")
        I(f"s_mul_i32 s10, s10, 0x10001")
        I(f"s_lshl_b32 vcc_lo, s10, 16")
        I(f"s_pack_hh_b32_b16 s10, s10, s10")
        I(f"s_lshl_b32 vcc_hi, s11, 16")
        I(f"s_add_u32 vcc_hi, vcc_hi, s10")
        if keep is not None:
            I(f"s_add_u32 s{keep}, vcc_hi, s11")
            I(f"s_lshr_b32 s{keep}, s{keep}, 16")
            I(f"s_sub_u32 s{sEND}, s{sEND}, s{keep}")
            I(f"s_cmp_gt_u32 s{sEND}, s{keep}")
            I(f"s_cselect_b32 s{SWP}, {LWB * 0x10001:#x}, 0")
            I(f"s_add_u32 s{sT}, s{sT}, s{SWP}")
        I(f"s_sub_u32 s10, s{sT}, s{lo01}")
        I(f"s_sub_u32 s11, s{sT}, s{lo23}")
        I("s_add_u32 s10, s10, vcc_lo")
        I("s_add_u32 s11, s11, vcc_hi")
        I(f"v_mov_b32 v{d}, s10")
        I(f"v_mov_b32 v{d+1}, s11")
    LEN0, SWP = sJ3, sJ3 + 1
    bases(A01, A23, Q01, Q23, p, LEN0)
    I(f"s_add_u32 s{sT}, s{sT}, {LWB * 0x10001:#x}")
    I(f"s_sub_u32 s{sT}, s{sT}, s{SWP}")
    I(f"s_sub_u32 s{sT}, s{sT}, s{SWP}")
    bases(Q01, Q23, E01, E23, p + 2)
    I(f"v_bfi_b32 v{p}, v{c}, v{p}, v{p+2}")
    I(f"v_bfi_b32 v{p+1}, v{c}, v{p+1}, v{p+3}")
    I(f"s_mov_b32 exec_hi, 0")
    I(f"v_mov_b32 v{p+1}, v{p}")
    I(f"s_mov_b64 exec, {sp(mo)}")
    I(f"v_add_u32 v{ex}, v{ex}, v{p+1}")
    assert LWB & 0x80
    I(f"s_bfe_u32 s10, s{SWP}, 0x10007")
    I(f"s_lshl1_add_u32 s10, s{sW}, s10")
    I("s_lshl_b32 s10, s10, 2")
    I(f"v_cndmask_b32 v{c}, 4, 0, {sp(inl)}")
    I(f"ds_write_b16 v{owna}, v{ex} offset:{HIST + 2}")
    I(f"ds_write_b16_d16_hi v{owna}, v{ex} offset:{HIST + 1024 + 2}")
    I("s_mov_b32 exec_hi, 0")
    I(f"v_xor_b32 v{c}, s10, v{c}")
    I(f"ds_write_b32 v{mapa}, v{c}")
    I("s_mov_b64 exec, -1")
    stamp("d5")
    I(f"s_min_u32 s10, s{sEND}, s{LEN0}")
    I(f"s_max_u32 s{LEN0}, s{sEND}, s{LEN0}")
    I(f"s_mov_b32 s{sEND}, s10")
    I(f"s_add_u32 s10, s{LEN0}, s{sMORE}")
    I(f"s_mul_i32 s11, s{Z1}, {LWB * 65536 // BIAS}")
    I("s_lshr_b32 s11, s11, 16")
    I("s_max_u32 s10, s10, s11")
    I(f"s_cmp_lt_u32 s10, {LWB}")
    I("s_cbranch_scc1 L_LFIT")
    I(f"ds_write_b32 v{sc}, v{one}")
    L("L_LFIT")
    I(f"s_cmp_eq_u32 s{sMORE}, 0")
    I("s_cbranch_scc1 L_XCNR")
    I(f"s_sub_u32 s10, s{sL}, {R0 - BIAS}")
    I(f"s_add_u32 s11, s10, s{LEN0}")
    I(f"v_mov_b32 v{u(0)}, s11")
    I(f"s_add_u32 s11, s10, s{sEND}")
    I(f"s_add_u32 s11, s11, {LWB}")
    I(f"v_mov_b32 v{u(1)}, s11")
    I(f"s_lshl_b32 s10, s{sW}, 3")
    I(f"v_mov_b32 v{u(2)}, s10")
    I(f"ds_write_b64 v{u(2)}, {rr(u(0),2)} offset:{CNT}")
    L("L_XCNR")
    epoint(3)
    put(fill)
    PA6 = opt("pa6", 3)
    if PA6: I(f"s_waitcnt vmcnt({sum(c != '4' for c in EPOS) if JE else 0})")
    I("s_waitcnt lgkmcnt(0)")
    stamp(8)
    I("s_barrier")
    stamp(9)
    I(f"ds_read_b64 {rr(u(14),2)}, v{sc}")
    for i in range(4):
        for j in range(3):
            I(f"ds_read_u16 v{vA+4*i+j}, v{vA+4*i+j} offset:{HIST + 2}")
    epoint(4)
    def ntiles(l0, l1):
        I(f"s_add_u32 s10, s{l0}, 127")
        I("s_lshr_b32 s10, s10, 7")
        I("s_lshl1_add_u32 s10, s10, -1")
        I(f"s_add_u32 s11, s{l1}, 127")
        I("s_lshr_b32 s11, s11, 6")
        I("s_and_b32 s11, s11, -2")
        I(f"s_max_i32 s{sN}, s10, s11")
        I(f"s_cselect_b32 s10, s{l0}, s{l1}")
        I("s_sub_u32 s10, s10, 1")
        I(f"s_andn2_b32 s{sHF}, 64, s10")
    I(f"s_add_u32 s{sB0E}, s{sB0E}, s{sWIN}")
    I(f"s_add_u32 s11, s{sSH}, s{sWIN}")
    I(f"s_and_b32 s10, s11, 15")
    I(f"s_cmp_lt_u32 s11, s{sB0E}")
    I(f"s_cselect_b32 s{sSH}, s10, 16")
    I(f"s_cmp_lg_u32 s{SWP}, 0")
    I(f"s_cselect_b32 s{sWS1}, s{sF0}, s11")
    I(f"s_cselect_b32 s{sWIN}, s{sF0}, s{sB0E}")
    I(f"s_cselect_b32 s{sF0}, s11, s{sF0}")
    I(f"s_cselect_b32 s{sB0E}, s{sF1}, s{sB0E}")
    I(f"s_cselect_b32 s{sF1}, s11, s{sF1}")
    I(f"s_min_u32 s{sWS0}, s{sF0}, 192")
    I(f"s_min_u32 s{sWS1}, s{sWS1}, 192")
    I(f"s_mov_b32 s{sST}, s{sMORE}")
    I("s_waitcnt lgkmcnt(12)")
    I(f"v_cmp_ne_u32 vcc, 0, v{u(14)}")
    I(f"v_readfirstlane_b32 s{sMORE}, v{u(15)}")
    I("s_cbranch_vccnz L_OVF")
    for i in range(4):
        for j in range(3):
            s_ = 4*i + j
            if j == 0: I("s_waitcnt lgkmcnt(9)")
            I(f"s_mov_b64 exec, {sp(mk(i,j))}")
            I(f"v_add_u32 v{vA+s_}, v{vA+s_}, v{vRK+s_}")
            I(f"ds_write2st64_b32 v{vA+s_}, v{vC+s_}, v{vR1+s_} {W2}")
    I("s_mov_b64 exec, -1")
    ntiles(LEN0, sEND)
    stamp("d6")
    sO0, sO1, sNT, sOK, sCM = sOUT, sD2, sM + 8, sM + 9, sM + 12
    def epi_prep(t0, t1):
        I(f"s_lshl_b32 s{sNT}, s{sW}, 7")
        I(f"s_add_u32 s{sNT}, s{sNT}, {NT}")
        I(f"v_mov_b32 v{t0}, s{sWS0}")
        I("s_mov_b32 exec_lo, 0xffff0000")
        I(f"v_mov_b32 v{t0}, s{sWS1}")
        I("s_mov_b64 exec, 0xffffffff") if False else None
        I("s_mov_b32 exec_lo, -1")
        I("s_mov_b32 exec_hi, 0")
        I(f"v_sub_u32 v{t1}, v{lane}, v{t0}")
        I(f"v_and_b32 v{t1}, 15, v{t1}")
        I(f"v_add_lshl_u32 v{t1}, v{t1}, v{t0}, 5")
        I(f"v_lshl_add_u32 v{t0}, v{lane}, 2, s{sNT}")
        I(f"ds_write_b32 v{t0}, v{t1}")
        I("s_mov_b32 exec_hi, -1")
        I(f"s_mul_i32 s10, s{sB}, {BN}")
        for d, lo_, hi_, k in ((sO1, sWIN, sF1, 1), (sO0, sF0, sB0E, 0)):
            I(f"s_add_u32 s11, s10, s{lo_}")
            I(f"s_add_u32 s{d+2}, s10, s{hi_}")
            I(f"s_min_u32 s11, s11, {N}")
            I(f"s_min_u32 s{d+2}, s{d+2}, {N}")
            I(f"s_sub_u32 s{d+2}, s{d+2}, s11")
            I("s_lshl_b32 s11, s11, 7")
            I(f"s_lshl_b32 s{d+2}, s{d+2}, 7")
            I(f"s_add_u32 s{d}, s{sOUT}, s11")
            I(f"s_addc_u32 s{d+1}, s{sOUT+1}, 0")
            I(f"s_mul_i32 s{sOK+k}, s{lo_}, -128")
        I(f"s_and_b32 s10, s{sSH}, 12")
        I("s_lshl_b32 s10, s10, 2")
        I(f"s_bfm_b64 {sp(sCM)}, 16, s10")
    L("L_CA")
    for x_ in trw(vWA, 0): I(x_)
    I(f"s_cmp_eq_u32 s{sXT}, 0")
    I("s_cbranch_scc1 L_XT2R")
    I(f"s_waitcnt vmcnt({(4 if JE else 0) + (4 if OLP in (2, 4) else 0)})")
    L("L_XT2")
    I(f"s_mov_b64 {sp(sTM)}, 0")
    for i in range(4):
        I(f"v_cmp_ne_u32 vcc, s{sK}, v{xg+4*i+1}")
        I(f"s_and_b64 vcc, vcc, {sp(mk(i,3))}")
        I(f"s_or_b64 {sp(sTM)}, {sp(sTM)}, vcc")
    I("s_cbranch_scc1 L_XT2B")
    I(f"s_cmp_eq_u32 s{sSKIP}, 0")
    I("s_cbranch_scc1 L_XT2R")
    for i in range(4):
        g_ = xg + 4*i
        I(f"s_mov_b64 exec, {sp(mk(i,3))}")
        I(f"s_cbranch_execz L_XS{i}")
        I(f"v_bfe_u32 v{g_+1}, v{g_}, 18, 8")
        I(f"v_lshlrev_b32 v{g_+1}, 2, v{g_+1}")
        I(f"v_add_u32 v{g_+3}, {MAP}, v{g_+1}")
        I(f"ds_read_b32 v{g_+3}, v{g_+3}")
        put(rec_ops(g_, g_+2, 0, vEB+i, g_+1, g_+2))
        I("s_waitcnt lgkmcnt(0)")
        I(f"ds_add_rtn_u32 v{g_+3}, v{g_+3}, v{one} offset:{CNT}")
        I("s_waitcnt lgkmcnt(0)")
        I(f"ds_write2st64_b32 v{g_+3}, v{g_}, v{g_+2} {W2}")
        L(f"L_XS{i}")
    I("s_mov_b64 exec, -1")
    L("L_XT2R")
    aw, al, ab = vEO, vEO + 1, vEO + 2
    zero16 = lambda d: f"v_mfma_f32_32x32x16_bf16 {rr(d,16)}, {rr(vS,4)}, {rr(vS,4)}, 0"
    def a_pre():
        I(f"s_lshl_b32 s{sTM}, s{sWS0}, 5")
        I(f"s_lshl_b32 s{sTM+1}, s{sWS1}, 5")
        I(f"s_mov_b32 vcc_lo, 0xff00ff00")
        I(f"s_mov_b32 vcc_hi, 0xff00ff00")
        I(f"v_mov_b32 v{aw}, s{sTM+1}")
        I(f"v_mov_b32 v{al}, s{sTM}")
        I(f"v_cndmask_b32 v{aw}, v{aw}, v{al}, vcc")
        I(f"v_and_b32 v{al}, 4, v{lane}")
        I(f"v_lshlrev_b32 v{al}, 6, v{al}")
        I(f"v_lshl_add_u32 v{al}, v{vcS}, 2, v{al}")
        I(f"v_sub_u32 v{al}, v{al}, v{aw}")
        I(f"v_and_b32 v{ab}, 48, v{lane}")
        I(f"s_movk_i32 s{sTM}, {(PL-32)//8}")
        I(f"v_mad_u32_u24 v{ab}, v{vcS}, s{sTM}, v{ab}")
        I(f"s_mov_b32 s{sTM}, {OWN}")
        I(f"v_add3_u32 v{ab}, v{ab}, v{aw}, s{sTM}")
        I(f"v_and_b32 v{aw}, 0x1ff, v{al}")
        I(f"v_add_u32 v{aw}, v{aw}, v{ab}")
        I(f"v_add_u32 v{al}, 0x80, v{al}")
        I(f"v_and_b32 v{al}, 0x1ff, v{al}")
        I(f"v_add_u32 v{al}, v{al}, v{ab}")
        for i in range(2): I(f"v_mov_b64 {rr(vS+2*i,2)}, 0")
        I(f"v_lshrrev_b32 v{u(0)}, 2, v{lane}")
        I(f"v_and_b32 v{u(0)}, 12, v{u(0)}")
        I(f"v_subrev_u32 v{u(0)}, s{sSH}, v{u(0)}")
        I(f"v_mov_b32 v{u(1)}, {f2u(1e-6):#x}")
        I(zero16(NUM(1,0)))
        for i in range(4): I(f"v_cmp_ne_u32 {sp(sM+16+2*i)}, {-i}, v{u(0)}")
        for i in range(4): I(f"v_cndmask_b32 v{DEN(1,0)+i}, 0, v{u(1)}, {sp(sM+16+2*i)}")
        for n in range(1, 4):
            for i in range(2): I(f"v_mov_b64 {rr(DEN(1,n)+2*i,2)}, {rr(DEN(1,0)+2*i,2)}")
    YL = opt("yl", 1) and PA6
    if not YL: a_pre()
    STAG = opt("stag", 4)
    def a_reads():
        for t_ in range(2):
            for s in range(2): I(f"ds_read_b128 {rr(vX+8*t_+4*s,4)}, v{(aw, al)[t_]} offset:{64*s}")
    def a_setup(part=3):
        k0 = len(out)
        I(f"s_mov_b32 s{sTM}, {f2u(-LOG2E):#x}")
        I(f"s_mov_b32 s{sTM+1}, s{sTM}")
        for t_ in range(2):
            for s in range(2):
                I(f"s_waitcnt lgkmcnt({3 - 2*t_ - s})")
                for n in range(4):
                    D = vQ + 8*n + 4*t_
                    I(m16(D, vX+8*t_+4*s, vWA+8*n+4*s, D if s else None))
        if STAG == 3:
            I(f"s_cmp_lt_u32 s{sWP}, 4")
            I("s_cbranch_scc1 L_HAD1")
            put(dma_tile())
            L("L_HAD1")
        I(f"s_mov_b32 s10, {f2u(1e-6):#x}")
        I("s_mov_b32 s11, s10")
        for i in range(8): I(f"v_mov_b64 {rr(DEN(0,0)+2*i,2)}, {sp(10)}")
        for i in range(16): I(f"v_pk_mul_f32 {rr(vQ+2*i,2)}, {rr(vQ+2*i,2)}, {sp(sTM)}")
        I(zero16(NUM(0,0)))
        for i in range(16): I(f"v_cvt_pk_bf16_f32 v{vCA+i}, v{vQ+2*i}, v{vQ+2*i+1}")
        for i in range(16): I(f"v_permlane32_swap_b32 v{vCA+16+i}, v{vCA+i}")
        cut_ = {1: None, 2: "v_mfma_f32_32x32x16", 3: "v_pk_mul"}[PA6] if PA6 else None
        if part != 3:
            k1 = next(i for i in range(k0, len(out)) if cut_ in out[i]) if cut_ else len(out)
            if part == 1: del out[k1:]
            else: del out[k0+2:k1]
    I(f"s_cmp_ge_u32 s{sWP}, 4")
    I("s_cbranch_scc1 L_EP0")
    if PA6:
        if YL: a_pre()
        a_reads(); a_setup(1)
    else: epi_prep(u(2), u(3))
    L("L_EP0")
    stamp("d7")
    I("s_waitcnt vmcnt(0) lgkmcnt(0)")
    stamp(10)
    I("s_barrier")
    def lens_from_cnt(t):
        I(f"s_lshl_b32 s10, s{sW}, 3")
        I(f"v_mov_b32 v{t}, s10")
        I(f"ds_read_b64 {rr(t,2)}, v{t} offset:{CNT}")
        I("s_waitcnt lgkmcnt(0)")
        I(f"v_readfirstlane_b32 s{sTM}, v{t}")
        I(f"v_readfirstlane_b32 s{sTM+1}, v{t+1}")
        I(f"s_sub_u32 s10, s{sL}, {R0 - BIAS}")
        I(f"s_sub_u32 s{sTM}, s{sTM}, s10")
        I(f"s_sub_u32 s{sTM+1}, s{sTM+1}, s10")
        I(f"s_sub_u32 s{sTM+1}, s{sTM+1}, {LWB}")
        ntiles(sTM, sTM + 1)
    I(f"ds_read_b128 {rr(vQD,4)}, v{vARX}")
    I(f"ds_read_b32 v{vEI}, v{vARE}")
    stamp(11)
    if PA6:
        I(f"s_cmp_ge_u32 s{sWP}, 4")
        I("s_cbranch_scc1 L_LATE0")
        I("s_waitcnt lgkmcnt(0)")
        put(dma_tile())
        a_setup(2)
        epi_prep(u(2), u(3))
        I("s_branch L_SET")
        L("L_LATE0")
        if YL: a_pre()
        a_reads(); a_setup()
        L("L_SET")
    else:
        for t_ in range(2):
            for s in range(2): I(f"ds_read_b128 {rr(vX+8*t_+4*s,4)}, v{(aw, al)[t_]} offset:{64*s}")
        I("s_waitcnt lgkmcnt(4)")
        if STAG != 2:
            I(f"s_cmp_ge_u32 s{sWP}, 4")
            I("s_cbranch_scc1 L_LATE0")
        put(dma_tile())
        L("L_LATE0")
        a_setup()
    I(f"s_mov_b32 s{sCI}, -1")
    I(f"s_mov_b64 {sp(sMSK)}, 0")
    I(f"s_mov_b32 s{sR0}, 0")
    I(f"s_mov_b32 s{sCNT}, 0")
    if STAG:
        I(f"s_cmp_lt_u32 s{sWP}, 4")
        I("s_cbranch_scc1 L_HAD0")
        if STAG == 1: put(dma_tile())
        epi_prep(u(2), u(3))
        if STAG == 4: put(dma_tile())
        L("L_HAD0")
    I(f"s_cmp_eq_u32 s{sST}, 0")
    I("s_cbranch_scc1 L_GO")
    lens_from_cnt(u(0))
    L("L_GO")
    for m in range(2): I(f"ds_read_u16 v{vEA+m}, v{vARO} offset:{64*m}")
    q1 = [f"ds_read_b128 {rr(vQD,4)}, v{vARX} offset:{LWB}", f"ds_read_b32 v{vEI}, v{vARE} offset:{LWB}"]
    if STAG != 5: put(q1)
    I(f"s_lshr_b32 s10, s{sW}, 1")
    I("s_lshl_b32 s10, s10, 9")
    I(f"s_add_u32 s10, s10, {PRG}")
    assert PRG % 32 == 0
    I(f"v_lshl_add_u32 v{vPA}, v{lane}, 3, s10")
    I(f"s_bitcmp1_b32 s{sW}, 0")
    I(f"s_cselect_b32 s{sSG}, -1, 1")
    I(f"s_mul_i32 s10, s{sSG}, {-(1 << (25 if F2 else 24)) & 0xffffffff:#x}")
    I("s_or_b32 s10, s10, 0xdddd")
    I(f"v_mov_b32 v{vIDX}, s10")
    I(f"s_max_i32 s10, s{sN}, 1")
    I("s_sub_u32 s10, s10, 1")
    I(f"s_mul_i32 s10, s{sSG}, s10")
    I("s_lshl_b32 s10, s10, 24")
    I(f"v_mov_b32 v{u(0)}, s10")
    I(f"ds_add_u32 v{vPA}, v{u(0)}")
    I(f"s_movk_i32 s{sINC}, 128")
    I(f"s_movk_i32 s{sINC+1}, 128")
    I(f"v_mov_b32 v{vC1}, 0")
    I("s_mov_b32 exec_hi, 0")
    I(f"v_add_u32 v{vC1}, 0x200, v{vcEO}")
    I("s_mov_b32 exec_hi, -1")
    I("s_waitcnt lgkmcnt(0)")
    put(eafix())
    if STAG == 5:
        I(f"s_cmp_lt_u32 s{sWP}, 4")
        I("s_cbranch_scc1 L_HAD2")
        I(f"s_cmp_lg_u32 s{sCI}, -1")
        I("s_cbranch_scc1 L_HAD2")
        put(dma_tile())
        L("L_HAD2")
        put(q1)
    stamp(12)
    I("s_waitcnt vmcnt(0)")
    stamp(13)
    cstamp(56)
    for m in range(2): I(f"ds_read_b128 {rr(vEO+4*m,4)}, v{vEA+m}")
    for m, s in ORD: I(xread(m, s))
    I(f"s_cmp_lt_i32 s{sN}, 1")
    I("s_cbranch_scc1 L_DONE")
    g = g_mfmas(vP, 0, 0)
    I("s_waitcnt lgkmcnt(4)")
    for x_ in g[:4]: I(x_)
    I("s_waitcnt lgkmcnt(0)")
    for x_ in g[4:]: I(x_)
    I(f"s_mov_b32 s{sT}, 1")
    I(f"s_cmp_eq_u32 s{sN}, 1")
    I("s_cbranch_scc1 L_LT0")
    put(dma_tile())
    for cp in ((1, 0) if FAIR else (0,)):
        sw = lambda par: [f"s_cmp_ge_i32 s{sRM}, {opt('fth', 1)}", f"s_cbranch_scc{1-cp} L_PB{par}{1-cp}", f"L_PB{par}{cp}:"] if FAIR and (par == 0 or not F2) else []
        body = phase(0, 0, cp) + sw(0) + phase(0, 1, cp) + [f"s_cmp_ge_u32 s{sT}, s{sN}", "s_cbranch_scc1 L_LT1"]
        body += phase(1, 0, cp) + sw(1) + phase(1, 1, cp) + [f"s_cmp_lt_u32 s{sT}, s{sN}", f"s_cbranch_scc1 L_LOOP{cp}"]
        check_body(body)
        DBG = opt("dbg", "")
        if "nodma" in DBG: body = [b for b in body if not b.startswith("buffer_load")]
        if "dropS" in DBG: body = [b for b in body if not b.startswith("v_smfmac")]
        if "halfrcp" in DBG: body = [b for b in body if not (b.startswith("v_rcp") and int(b.split("v")[-1]) & 1)]
        if "droppk" in DBG: body = [b for b in body if not b.startswith("v_pk_mul")]
        if "halfx" in DBG: body = [b for b in body if not (b.startswith("v_mfma") and (f"v[{vX+4}:" in b or f"v[{vX+12}:" in b))]
        if "nolds" in DBG: body = [b for b in body if not (b.startswith("ds_read_b128") and f"v{vAX}" in b)]
        if opt("al", 0): body = align8(body, opt("al", 0))
        emit(".p2align 6")
        if opt("sh4", 0): I("s_nop 0")
        L(f"L_LOOP{cp}")
        put(body)
        I("s_branch L_LT0")
    if opt("cpe", 0):
        I("s_branch L_LT0")
        for cp in ((1, 0) if FAIR else (0,)):
            for par in range(2):
                L(f"L_CE{par}{cp}")
                I(f"s_getpc_b64 {sp(sA)}")
                I(f"v_and_b32 v{vEI}, 0xfc, v{vPA}")
                I(f"v_lshlrev_b32 v{vEI}, 5, v{vEI}")
                I(f"global_load_dword v{vEI}, v{vEI}, {sp(sA)}")
                I(f"s_branch L_ND{par}{cp}")
    assert STAG
    e = lambda i: vCA + i
    xd = vWV
    ZR = [vP, vWV + 16]
    nd = lambda w, i: e(16 + 4*w + i)
    sO = [sO0, sO1]
    wu = [f"ds_read_b64_tr_b16 {rr(vWB+8*n+4*s+2*uu,2)}, v{e(1)} offset:{(32*s + 8*uu)*WR + 32*n}" for s in range(2) for n in range(4) for uu in range(2)]
    lid = [f"v_mbcnt_lo_u32_b32 v{lane}, -1, 0", f"v_mbcnt_hi_u32_b32 v{lane}, -1, v{lane}", f"v_and_b32 v{vcS}, 24, v{vPA}"]
    a1 = [f"v_and_b32 v{e(0)}, 48, v{lane}", f"v_and_b32 v{e(3)}, 15, v{lane}",
          f"v_add_u32 v{e(5)}, s{sNT}, v{e(0)}", f"v_lshl_add_u32 v{e(6)}, v{e(3)}, 2, s{sNT}"]
    a1 += [f"ds_read_b128 {rr(nd(w,0),4)}, v{e(5)} offset:{64*w}" for w in range(2)]
    a1 += [f"ds_read2_b32 {rr(e(8),2)}, v{e(6)} offset0:0 offset1:16",
           f"v_bfe_u32 v{e(1)}, v{lane}, 2, 3", f"v_lshrrev_b32 v{e(2)}, 5, v{lane}", f"v_lshl_add_u32 v{e(1)}, v{e(2)}, 4, v{e(1)}",
           f"v_mul_u32_u24 v{e(1)}, {WR}, v{e(1)}", f"s_mov_b32 s10, {WUI}", f"v_add3_u32 v{e(1)}, v{e(1)}, v{vcS}, s10"]
    a1 += wu[:12]
    a1 += [f"s_movk_i32 s10, {(PL-32)//8}", f"v_mad_u32_u24 v{e(0)}, v{vcS}, s10, v{e(0)}",
           f"s_mov_b32 s10, {OWN}", f"v_lshl_add_u32 v{e(5)}, v{e(3)}, 3, s10"]
    a1 += [f"v_lshl_add_u32 v{e(10+w)}, v{e(3)}, 3, s{sOK+w}" for w in range(2)]
    a1 += ["s_waitcnt lgkmcnt(8)"] + wu[12:]
    a2 = []
    for w in range(2):
        for i in range(4):
            a2 += [f"v_add_u32 v{e(12)}, v{nd(w,i)}, v{e(5)}", f"ds_read_b64 {rr(xd+8*w+2*i,2)}, v{e(12)} offset:{i*(PL-32)}"]
    for w in range(2):
        a2 += [f"v_add3_u32 v{e(8+w)}, v{e(8+w)}, v{e(0)}, s10"]
        a2 += [f"ds_read_b128 {rr(vX+8*w+4*s,4)}, v{e(8+w)} offset:{64*s}" for s in range(2)]
    def unp(w, n): return [(f"v_and_b32 v{ZR[w]+4*n+i}, 0xffff0000, v{xd+8*w+2*i+(n>>1)}" if n & 1 else
                            f"v_lshlrev_b32 v{ZR[w]+4*n+i}, 16, v{xd+8*w+2*i+(n>>1)}") for i in range(4)]
    blk = [(w, n) for w in range(2) for n in range(4)]
    a3 = [["s_waitcnt lgkmcnt(0)"] + unp(0, 0) + unp(0, 1)]
    for k, (w, n) in enumerate(blk):
        a3[-1] += [m16(ZR[w]+4*n, vX+8*w, vWB+8*n, ZR[w]+4*n)]
        a3.append((unp(*blk[k+2]) if k + 2 < 8 else []) + [f"v_lshl_add_u32 v{nd(w,n)}, v{nd(w,n)}, 2, v{e(10+w)}",
                  m16(ZR[w]+4*n, vX+8*w+4, vWB+8*n+4, ZR[w]+4*n)])
        if k < 7: a3.append([])
    ME = opt("me", 0)
    if ME:
        for par in range(2):
            L(f"L_LB{par}")
            put(last_tile(par, 0, only_b=True))
            I("s_branch L_DONE")
    for par in range(2):
        L(f"L_LT{par}")
        I(f"s_cmp_lg_u32 s{sHF}, 0")
        I(f"s_cbranch_scc1 L_LH{par}")
        for half in range(2):
            if half: L(f"L_LH{par}")
            put(last_tile(par, half, (lid + a1, a2, a3) if ME else None))
            I("s_branch L_EPB" if ME else "s_branch L_DONE")
    L("L_DONE")
    put(lid)
    I(f"s_cmp_lg_u32 s{sMORE}, 0")
    I("s_cbranch_scc1 L_SLOW")
    L("L_EPI")
    I("s_waitcnt lgkmcnt(0)")
    put(a1 + a2 + sum(a3, []))
    L("L_EPB")
    stamp(14)
    cstamp(57)
    I(f"s_setprio {opt('epr', 0)}")
    I(f"s_mov_b64 exec, {sp(sCM)}")
    I(f"s_and_b32 s11, s{sSH}, 19")
    I("s_nop 2")
    for i in range(4):
        I(f"s_cmp_eq_u32 s11, {i}")
        I(f"s_cbranch_scc1 L_NS{i}")
    L("L_NSR")
    I("s_mov_b64 exec, -1")
    for w in range(2):
        for k in range(16): I(f"v_rcp_f32 v{DEN(w,0)+k}, v{DEN(w,0)+k}")
        for k in range(0, 16, 2): I(f"v_pk_fma_f32 {rr(NUM(w,0)+k,2)}, {rr(NUM(w,0)+k,2)}, {rr(DEN(w,0)+k,2)}, {rr(ZR[w]+k,2)}")
        for i in range(4):
            for h in range(2): I(f"v_cvt_pk_bf16_f32 v{DEN(w,0)+2*i+h}, v{NUM(w,2*h)+i}, v{NUM(w,2*h+1)+i}")
            for h in range(2):
                I(f"v_pk_max_f16 v{DEN(w,0)+2*i+h}, v{DEN(w,0)+2*i+h}, v{xd+8*w+2*i+h}")
            I(f"buffer_store_dwordx2 {rr(DEN(w,0)+2*i,2)}, v{nd(w,i)}, {sq(sO[w])}, 0 offen{pol(OP)}")
    stamp("e2")
    stamp_out()
    L("L_END")
    I("s_endpgm")
    for i in range(4):
        L(f"L_NS{i}")
        for k in range(8): I(f"v_add_f32 v{vACC+4*k+i}, v{vACC+4*k+i}, v{vACC+32+4*k+i}")
        I("s_branch L_NSR")
    for i in range(4):
        L(f"L_RT{i}")
        I("s_waitcnt vmcnt(0)")
        spin()
        for k in range(i, 4): poll_load(k)
        I("s_waitcnt vmcnt(0)")
        I(f"s_branch L_PW{i}")
    L("L_XT2B")
    spin()
    xload("b")
    I("s_waitcnt vmcnt(0)")
    I("s_branch L_XT2")
    L("L_OVF")
    I(f"s_mov_b32 s{sSKIP}, 0")
    I(f"s_mov_b32 s{sN}, 0")
    I(f"s_mov_b32 s{sST}, 0")
    I(f"s_mov_b32 s{sMORE}, 4")
    I("s_waitcnt lgkmcnt(0)")
    I("s_branch L_CA")
    q = vCA
    L("L_POVF")
    I("s_movk_i32 s11, 1986")
    for i in range(4):
        I(f"v_mul_u32_u24 v{q+i}, s11, v{vHS+i}")
        I(f"v_lshrrev_b32 v{q+i}, 16, v{q+i}")
    I(f"v_add_u32 v{q+5}, v{q}, v{q+1}")
    I(f"v_add_u32 v{q+6}, v{q+5}, v{q+2}")
    I(f"v_add_u32 v{q+7}, v{q+6}, v{q+3}")
    I(f"v_mov_b32 v{q+8}, v{q+7}")
    wave_scan(q + 8)
    I("s_nop 0")
    I(f"v_sub_u32 v{q+4}, v{q+8}, v{q+7}")
    I(f"v_add_u32 v{q+7}, v{q+4}, v{q+6}")
    I(f"v_add_u32 v{q+6}, v{q+4}, v{q+5}")
    I(f"v_add_u32 v{q+5}, v{q+4}, v{q}")
    for i in range(4): I(f"v_lshl_or_b32 v{q+4+i}, v{q+i}, 16, v{q+4+i}")
    I(f"v_add_u32 v{q+8}, {HDR}, v{l16}")
    I(f"ds_write_b128 v{q+8}, {rr(q+4,4)}")
    I("s_lshl_b32 s10, s2, 10")
    I(f"s_add_u32 s10, s10, {WS_HD}")
    I(f"buffer_store_dwordx4 {rr(q+4,4)}, v{l16}, {sq(sWS)}, s10 offen sc1")
    for i in range(8):
        I(f"v_and_b32 v{q+10+i}, 0x3fc, v{vHA+i}")
        I(f"v_add_u32 v{q+10+i}, {HDR}, v{q+10+i}")
        I(f"ds_read_u16 v{q+10+i}, v{q+10+i}")
    I("s_waitcnt lgkmcnt(0)")
    for i in range(4):
        I(f"v_cmpx_lt_u32 vcc, {33*(CAP+8)}, v{vHD+i}")
        I(f"v_or_b32 v{vO+4*i+1}, 0x10000, v{vO+4*i+1}")
        I("s_mov_b64 exec, -1")
    I(f"s_mul_i32 s10, s2, {DCH}")
    I(f"s_mov_b32 s{sTM}, {WS_RECS}")
    I(f"s_mov_b32 s{sTM+1}, {WS_LEID}")
    for i in range(NR):
        I(f"v_mul_u32_u24 v{q}, s11, v{vRK1+i}")
        I(f"v_lshrrev_b32 v{q}, 16, v{q}")
        I(f"v_add3_u32 v{q}, v{q}, v{q+10+i}, s10")
        I(f"v_lshlrev_b32 v{q+1}, 2, v{q}")
        I(f"v_cmpx_le_u32 vcc, {33*(CAP+8)}, v{vRK1+i}")
        I(f"s_cbranch_execz L_PO{i}")
        I(f"buffer_store_byte v{idr(i)}, v{q}, {sq(sWS)}, s{sTM+1} offen sc1")
        I(f"buffer_store_dword v{vSR+i}, v{q+1}, {sq(sWS)}, s{sTM} offen sc1")
        L(f"L_PO{i}")
        I("s_mov_b64 exec, -1")
    I("s_waitcnt vmcnt(0) lgkmcnt(0)")
    I("s_barrier")
    I("s_branch L_POUT")
    SB = 288
    t0, t1, t2, t3 = vP, vP+1, vP+2, vP+3
    L("L_SLOW")
    I("s_setprio 0")
    I(f"s_lshl_b32 s10, s{sWP}, 6")
    I(f"v_add_u32 v{tid}, s10, v{lane}")
    I(f"s_cmp_lg_u32 s{sMORE}, 4")
    I("s_cbranch_scc1 L_SL1")
    I(f"s_mov_b32 s{sMORE}, 1")
    I(f"v_and_b32 v{t0}, 0xff, v{tid}")
    I(f"v_lshlrev_b32 v{t1}, 7, v{t0}")
    I(f"buffer_load_dword v{t2}, v{t1}, {sq(sCEL)}, 0 offen offset:4 sc1")
    I(f"v_lshlrev_b32 v{t1}, 10, v{t0}")
    I(f"s_lshl_b32 s10, s{sB}, 2")
    I(f"s_add_u32 s10, s10, {WS_HD}")
    I(f"buffer_load_dword v{t3}, v{t1}, {sq(sWS)}, s10 offen sc1")
    I(f"v_lshlrev_b32 v{t0}, 2, v{t0}")
    I(f"v_add_u32 v{t0}, {HDR}, v{t0}")
    I("s_waitcnt vmcnt(0)")
    I(f"v_and_b32 v{t2}, 0x10000, v{t2}")
    I(f"v_cmp_ne_u32 vcc, 0, v{t2}")
    I(f"v_mov_b32 v{t2}, {(CAP+8) << 16}")
    I("s_nop 0")
    I(f"v_cndmask_b32 v{t2}, v{t2}, v{t3}, vcc")
    I(f"ds_write_b32 v{t0}, v{t2}")
    I("s_waitcnt lgkmcnt(0)")
    I("s_barrier")
    L("L_SL1")
    I(f"s_add_u32 s{sR0}, s{sR0}, {SB}")
    I(f"s_cmp_lt_u32 s{sR0}, s{sCNT}")
    I("s_cbranch_scc1 L_BATCH")
    L("L_FIND")
    I(f"s_cmp_lg_u64 {sp(sMSK)}, 0")
    I("s_cbranch_scc1 L_GOT")
    I(f"s_add_u32 s{sCI}, s{sCI}, 1")
    I(f"s_cmp_ge_u32 s{sCI}, 4")
    I("s_cbranch_scc1 L_EPI")
    I(f"s_lshl_b32 s10, s{sCI}, 8")
    I(f"s_add_u32 s10, s10, {HDR}")
    I(f"v_lshl_add_u32 v{t0}, v{lane}, 2, s10")
    I(f"ds_read_u16 v{t0}, v{t0} offset:2")
    I("s_waitcnt lgkmcnt(0)")
    I(f"v_cmp_lt_u32 {sp(sMSK)}, s{sSKIP}, v{t0}")
    I("s_nop 3")
    I("s_branch L_FIND")
    L("L_GOT")
    I(f"s_ff1_i32_b64 s10, {sp(sMSK)}")
    I(f"s_bitset0_b64 {sp(sMSK)}, s10")
    I(f"s_lshl_b32 s11, s{sCI}, 6")
    I(f"s_add_u32 s{sCUR}, s10, s11")
    I(f"s_lshl_b32 s10, s{sCUR}, 2")
    I(f"s_add_u32 s10, s10, {HDR}")
    I(f"v_mov_b32 v{t0}, s10")
    I(f"ds_read_b32 v{t0}, v{t0}")
    I("s_waitcnt lgkmcnt(0)")
    I(f"v_readfirstlane_b32 s10, v{t0}")
    I("s_nop 3")
    I(f"s_lshr_b32 s{sCNT}, s10, 16")
    I(f"s_and_b32 s{sST}, s10, 0xffff")
    I(f"s_mov_b32 s{sR0}, s{sSKIP}")
    L("L_BATCH")
    I("s_waitcnt vmcnt(0)")
    I("s_barrier")
    prefill(vP + 4)
    I(f"v_and_b32 v{t0}, 15, v{lane}")
    I(f"v_mul_u32_u24 v{t1}, {LWB}, v{t0}")
    I(f"v_add_u32 v{t1}, {BIAS}, v{t1}")
    I(f"v_lshlrev_b32 v{t0}, 2, v{t0}")
    I(f"ds_write_b32 v{t0}, v{t1} offset:{CNT}")
    t1, t4, t5 = vQ, vQ + 2, vQ + 3
    I(f"v_add_u32 v{t0}, s{sR0}, v{tid}")
    I(f"s_mul_i32 s{sTM+2}, s{sCUR}, {CH}")
    I(f"s_mul_i32 s11, s{sCUR}, {DCH}")
    I(f"s_add_u32 s11, s11, s{sST}")
    I(f"s_lshl_b32 s{sTM}, s11, 2")
    I(f"s_add_u32 s{sTM}, s{sTM}, {WS_RECS}")
    I(f"v_lshl_add_u32 v{t2}, v{t0}, 2, s{sTM}")
    I(f"s_add_u32 s{sTM}, s11, {WS_LEID}")
    I(f"v_add_u32 v{t3}, s{sTM}, v{t0}")
    I(f"s_mul_i32 s10, s{sB}, {RS}")
    I(f"s_lshl_b32 s{sTM}, s{sCUR}, 7")
    I(f"s_add_u32 s10, s10, s{sTM}")
    I(f"s_add_u32 s10, s10, {WS_CELL}")
    I(f"v_and_b32 v{t4}, 7, v{t0}")
    I(f"v_lshl_add_u32 v{t4}, v{t4}, 4, s10")
    I(f"v_lshrrev_b32 v{t5}, 3, v{t0}")
    I(f"v_cmpx_gt_u32 vcc, {CAP+8}, v{t0}")
    I(f"v_add_u32 v{t2}, {XOFF}, v{t4}")
    I(f"v_add_u32 v{t3}, 8, v{t2}")
    I(f"v_cmpx_gt_u32 vcc, {CAP}, v{t0}")
    I(f"v_lshl_add_u32 v{t2}, v{t5}, 2, v{t4}")
    I(f"v_add3_u32 v{t3}, v{t4}, v{t5}, 12")
    I("s_mov_b64 exec, -1")
    I(f"s_add_u32 s10, s{sR0}, {SB}")
    I(f"s_min_u32 s10, s10, s{sCNT}")
    I(f"v_cmp_gt_u32 vcc, s10, v{t0}")
    I(f"v_mov_b32 v{t4}, 0x7ffffff0")
    I("s_nop 0")
    I(f"v_cndmask_b32 v{t2}, v{t4}, v{t2}, vcc")
    I(f"v_cndmask_b32 v{t3}, v{t4}, v{t3}, vcc")
    I(f"buffer_load_dwordx2 {rr(t1,2)}, v{t2}, {sq(sWS)}, 0 offen sc1")
    I(f"buffer_load_ubyte v{t3}, v{t3}, {sq(sWS)}, 0 offen sc1")
    I("s_waitcnt lgkmcnt(0)")
    I("s_barrier")
    I("s_waitcnt vmcnt(0)")
    I(f"v_cmp_ne_u32 vcc, 3, v{t5}")
    I(f"v_cmp_eq_u32 {sp(sA)}, s{sK}, v{t1+1}")
    I(f"v_mov_b32 v{t4}, s{sTM+2}")
    I(f"s_or_b64 exec, vcc, {sp(sA)}")
    I(f"v_cmpx_ne_u32 vcc, 0, v{t1}")
    I(f"v_bfe_u32 v{t2}, v{t1}, 18, 8")
    I(f"v_lshlrev_b32 v{t2}, 2, v{t2}")
    I(f"v_add_u32 v{t0}, {MAP}, v{t2}")
    I(f"ds_read_b32 v{t0}, v{t0}")
    put(rec_ops(t1, t3, 0, t4, t2, t3))
    I(f"v_mov_b32 v{t2}, 4")
    I("s_waitcnt lgkmcnt(0)")
    I(f"ds_add_rtn_u32 v{t0}, v{t0}, v{t2} offset:{CNT}")
    I("s_waitcnt lgkmcnt(0)")
    I(f"ds_write2st64_b32 v{t0}, v{t1}, v{t3} {W2}")
    I("s_mov_b64 exec, -1")
    I("s_waitcnt lgkmcnt(0)")
    I("s_barrier")
    listaddr(t2)
    I(f"ds_read_b128 {rr(vQD,4)}, v{vARX}")
    I(f"ds_read_b32 v{vEI}, v{vARE}")
    lens_from_cnt(t2)
    for r_ in (vQ, vQ + 2, vS, vS + 2): I(f"v_mov_b64 {rr(r_,2)}, 0")
    put(dma_tile())
    L("L_LAST")
    I("s_branch L_GO")

def regs_of(tok):
    tok = tok.strip()
    m = re.fullmatch(r"v\[(\d+):(\d+)\]", tok)
    if m: return list(range(int(m.group(1)), int(m.group(2)) + 1))
    m = re.fullmatch(r"v(\d+)", tok)
    if m: return [int(m.group(1))]
    return []
def parse(ins):
    op, _, rest = ins.partition(" ")
    ops = [o.strip().split(" ")[0] for o in rest.split(",")] if rest else []
    if op.startswith("ds_read") or "rtn" in op: return "ds", regs_of(ops[0]), regs_of(ops[1])
    return "other", [], sum((regs_of(o) for o in ops), [])
def check_body(body):
    s2 = [b for b in body if not b.endswith(":")]
    pend = []
    for i, ins in enumerate(s2 * 3):
        k, d, s = parse(ins)
        m = re.search(r"lgkmcnt\((\d+)\)", ins)
        if m:
            while len(pend) > int(m.group(1)): pend.pop(0)
        pr = set(sum(pend, []))
        for r in d + s:
            assert r not in pr, f"pending LDS reg v{r} used by {ins} @{i}"
        if k == "ds":
            pend.append(d); assert len(pend) <= 15

hdr = open("/code/" + NAME + ".s.ref").read().split("\n")
for l in hdr:
    if l.startswith("; Override"): break
    out.append(l)
if opt("list", 0): out.append(f"; @launch kernel={NAME}_kernel grid=(256,1,1) block=(512,1,1) lds={LDS}")
else: out.append(f"; @launch grid=(256,1,1) block=(512,1,1) lds={LDS}")
LEAK = opt("leak", "")
if LEAK: out.append("; @launch kernel=leak_kernel grid=(1,1,1) block=(256,1,1) lds=64")
emit('.amdgcn_target "amdgcn-amd-amdhsa--gfx950"\n.text')
kernel()
if LEAK:
    kind, nm = LEAK[0], LEAK[1:]
    PT = opt("pt", 0)
    si = STN.index(nm)
    emit(".globl leak_kernel\n.p2align 8\n.type leak_kernel,@function\nleak_kernel:")
    I("s_cmp_lg_u32 s2, 0")
    I("s_cbranch_scc1 LK_END")
    I("s_load_dwordx2 s[4:5], s[0:1], 88")
    I("v_min_u32 v1, 254, v0")
    I("v_lshlrev_b32 v1, 11, v1")
    I("v_mov_b32 v2, 0")
    I("v_mov_b32 v3, 0x7fffffff")
    I("v_mov_b32 v4, 0")
    I("ds_write2_b32 v2, v3, v4 offset0:0 offset1:1")
    I("s_waitcnt lgkmcnt(0)")
    I(f"s_add_u32 s4, s4, {WS_TS}")
    I("s_addc_u32 s5, s5, 0")
    I("global_load_dword v5, v2, s[4:5]")
    for w in range(8):
        I(f"global_load_dword v{8+w}, v1, s[4:5] offset:{256*w}")
        I(f"global_load_dword v{16+w}, v1, s[4:5] offset:{256*w + 4*si}")
    I("s_barrier")
    I("s_waitcnt vmcnt(0)")
    I("v_subrev_u32 v5, 1000, v5")
    for w in range(16): I(f"v_sub_u32 v{8+w}, v{8+w}, v5")
    for w in range(8):
        I(f"ds_min_u32 v2, v{8+w}")
        I(f"ds_{'max' if kind == 'm' else 'add'}_u32 v2, v{16+w} offset:4")
    I("s_waitcnt lgkmcnt(0)")
    I("s_barrier")
    I("ds_read_b64 v[6:7], v2")
    I("s_waitcnt lgkmcnt(0)")
    I("v_lshlrev_b32 v6, 2, v6")
    I("v_lshlrev_b32 v7, 2, v7" if kind == 'm' else "v_lshrrev_b32 v7, 9, v7")
    I("v_sub_u32 v6, v7, v6")
    I("v_min_u32 v6, 20000, v6")
    I("s_nop 0")
    I("v_readfirstlane_b32 s6, v6")
    I("s_memrealtime s[8:9]")
    I("s_waitcnt lgkmcnt(0)")
    if PT:
        I(f"s_cmp_gt_u32 s6, {4*PT}")
        I("s_cselect_b32 s6, 6000, 0")
        I("s_mul_i32 s7, s8, 0x9e3779b1")
        I("s_lshr_b32 s7, s7, 20")
        I("s_add_u32 s6, s6, s7")
    L("LK_L")
    I("s_memrealtime s[10:11]")
    I("s_waitcnt lgkmcnt(0)")
    I("s_sub_u32 s7, s10, s8")
    I("s_cmp_lt_u32 s7, s6")
    I("s_cbranch_scc1 LK_L")
    L("LK_END")
    I("s_endpgm")
emit(f""".section .rodata,"a"
.p2align 6
.amdhsa_kernel {NAME}_kernel
  .amdhsa_next_free_vgpr 256
  .amdhsa_next_free_sgpr 102
  .amdhsa_accum_offset 256
  .amdhsa_group_segment_fixed_size 0
  .amdhsa_kernarg_size 96
  .amdhsa_user_sgpr_count 2
  .amdhsa_user_sgpr_kernarg_segment_ptr 1
  .amdhsa_system_sgpr_workgroup_id_x 1
.end_amdhsa_kernel""")
if LEAK:
    emit(""".p2align 6
.amdhsa_kernel leak_kernel
  .amdhsa_next_free_vgpr 32
  .amdhsa_next_free_sgpr 16
  .amdhsa_accum_offset 32
  .amdhsa_group_segment_fixed_size 0
  .amdhsa_kernarg_size 96
  .amdhsa_user_sgpr_count 2
  .amdhsa_user_sgpr_kernarg_segment_ptr 1
  .amdhsa_system_sgpr_workgroup_id_x 1
.end_amdhsa_kernel""")
if TS: out.insert(0, "; stamps " + " ".join(STN))
path = sys.argv[1] if len(sys.argv) > 1 else "/code/" + NAME + ".s"
open(path, "w").write("\n".join(out) + "\n")
print("wrote", path, len(out), "lines; lds", LDS)
```

```python
import sys, re, struct

NAME = "standalone__edge_featured_mpnn_gatedgcn__graph"
OPT = dict(kv.split("=") for kv in sys.argv[2:])
def opt(k, d):
    v = OPT.get(k)
    if v is None: return d
    return type(d)(v)

N, E = 50000, 800000
CH = 3128
BN = 196
XIL = opt('xil', 0)
RS = (513 if XIL else opt('rs', 257)) * 128
XOFF = 256 * 128 if XIL else 256 * RS
WS_CELL = 0x10000
WS_RECS = 0x1200000
WS_LEID = 0x1680000
WS_HD = 0x17a0000
WS_USED = 0x1800000
WS_TS = 0x3000000
KINC = 0x02020202
CAP = 24
LOG2E = 1.4426950408889634
def f2u(f): return struct.unpack("<I", struct.pack("<f", f))[0]

out = []
def emit(s=""):
    for l in s.strip("\n").split("\n"):
        out.append(l.rstrip())
def I(s): out.append("    " + s)
def L(s): out.append(s + ":")
def C(s): out.append("    ; " + s)
def put(seq):
    for s in seq:
        if s.endswith(":"): L(s[:-1])
        else: I(s)
def rr(a, n): return f"v[{a}:{a+n-1}]"
def sp(a): return f"s[{a}:{a+1}]"
def sq(a): return f"s[{a}:{a+3}]"
def pol(p): return (" " + p.replace("_", " ")) if p else ""

def srd(d, lo, size, add=None, stride=0):
    if add is None:
        I(f"s_mov_b32 s{d}, s{lo}")
        I(f"s_mov_b32 s{d+1}, s{lo+1}" if not stride else f"s_or_b32 s{d+1}, s{lo+1}, {stride << 16:#x}")
    else:
        I(f"s_add_u32 s{d}, s{lo}, {add}")
        I(f"s_addc_u32 s{d+1}, s{lo+1}, 0")
    I(f"s_mov_b32 s{d+2}, {size}")
    I(f"s_mov_b32 s{d+3}, 0x20000")

def wave_scan(v, fill=None, half=False):
    def gap():
        if fill and len(fill) >= 2:
            I(fill.pop(0)); I(fill.pop(0))
        else: I("s_nop 1")
    for sh in (1, 2, 4, 8):
        gap()
        I(f"v_add_u32_dpp v{v}, v{v}, v{v} row_shr:{sh} row_mask:0xf bank_mask:0xf bound_ctrl:0")
    gap()
    I(f"v_add_u32_dpp v{v}, v{v}, v{v} row_bcast:15 row_mask:0xa bank_mask:0xf")
    if half: return
    gap()
    I(f"v_add_u32_dpp v{v}, v{v}, v{v} row_bcast:31 row_mask:0xc bank_mask:0xf")

TAB, ZROW, CNT, FLAG = 0, 512, 576, 640
HIST = 1024
ESTG = HIST + 4096
HIST1 = ESTG
EARLY = ESTG + 8192
LWB = 288 * 4
R0 = EARLY + 32768
R1 = R0 + 16 * LWB
XSTG = R1 + 16 * LWB
XI = 1056
SLOT = 4 * XI
OWN = XSTG + 8 * SLOT
PL = 52 * 128 + 32
WR = 160
WUI = OWN + 4 * PL
MAP = WUI + 64 * WR
HDR = MAP + 1024
PRG = HDR + 1024
NT = PRG + 2048
LDS = NT + 1024
WBI, WVI, WCI = EARLY, EARLY + 64 * WR, EARLY + 128 * WR
WAI = XSTG + 8192
LROW = 160
CIMG = R0
assert CIMG + 256 * LROW <= WAI and LDS <= 163840, LDS
BIAS = 8192
assert R1 < 65536 and R0 % 256 == 0 and R1 % 256 == 0
W2 = f"offset0:{(R0-BIAS)//256} offset1:{(R1-BIAS)//256}"

vWB, vWV, vCA, vACC = 0, 32, 64, 96
vX, vEO, vS = 160, 176, 184
vP, vQ, vR = 188, 204, 220
vQD = 236
vEI, vCH, vONE, vCP, vAX, vcEO, vcS, vARX, vARE, vARO, vARS, vEA = 240, 241, 242, 243, 244, 245, 246, 248, 249, 250, 251, 252
lane, vTS, tid = 247, 254, 255
vC1, vIDX, vPA = lane, tid, vcS
DEN = lambda w, n: vACC + 32 * w + 4 * n
NUM = lambda w, n: vACC + 32 * w + 16 + 4 * n
def m16(d, a, b, c=None):
    return f"v_mfma_f32_16x16x32_bf16 {rr(d,4)}, {rr(a,4)}, {rr(b,4)}, " + ("0" if c is None else rr(c, 4))
def s16(d, b): return f"v_smfmac_f32_16x16x64_bf16 {rr(d,4)}, {rr(vS,4)}, {rr(b,8)}, v{vIDX}"

sWP, sW, sB, sK = 3, 4, 5, 6
sWIN, sF0, sF1, sL = 7, 8, 9, 12
sA, sBt = 10, 11
sSTG, sES, s128 = 13, 14, 15
pX, pE, pSRC, pDST, pWA, pWB, pWC, pWU, pWV, pOUT, pDBG, pWS = 16, 18, 20, 22, 24, 26, 28, 30, 32, 34, 36, 38
sT, sN, sFM, sMORE, sSKIP, sXT, sWS0, sWS1, sB0E, sSH = 16, 17, 18, 19, 20, 21, 22, 23, 24, 25
sCI, sCUR, sR0, sCNT, sST, sEND = 26, 27, 28, 29, 30, 31
sMSK = 32
sTM = 34
sX, sEP, sOUT, sWS, sCEL, sD2 = 40, 44, 48, 52, 56, 60
sM = 64
sJ3, sEM = 96, 98
sSP = 100
sHF = 99
sINC = 94
sSG, sRM = 101, 96

TS = opt("ts", 0)
STN = []
YP = opt("yp", "")
def stamp(i):
    if str(i) in YP.split("_"):
        k = YP.split("_").index(str(i))
        I(f"s_cmp_lt_u32 s{sWP}, 4")
        I(f"s_cbranch_scc1 L_YP{k}")
        I(f"s_setprio {1 - (k & 1)}")
        L(f"L_YP{k}")
    if not TS: return
    if isinstance(i, str) and i[0] not in opt("tsx", ""): return
    STN.append(str(i)); i = len(STN) - 1
    I("s_memrealtime vcc" if TS == 1 else "s_memtime vcc")
    I("s_waitcnt lgkmcnt(0)")
    I(f"v_writelane_b32 v{vTS}, vcc_lo, {i}")
def stamp_out():
    if not TS: return
    I("s_waitcnt vmcnt(0)")
    stamp(15)
    I("s_memtime vcc")
    I("s_waitcnt lgkmcnt(0)")
    I(f"v_writelane_b32 v{vTS}, vcc_lo, 58")
    I(f"v_writelane_b32 v{vTS}, s{sN}, 59")
    I(f"v_writelane_b32 v{vTS}, s{sSP}, 60")
    I("s_getreg_b32 s10, hwreg(HW_REG_XCC_ID)")
    I(f"v_writelane_b32 v{vTS}, s10, 55")
    I("s_lshl_b32 s10, s2, 3")
    I(f"s_add_u32 s10, s10, s{sWP}")
    I("s_lshl_b32 s10, s10, 8")
    I(f"s_add_u32 s10, s10, {WS_TS}")
    I(f"v_lshl_add_u32 v{vP}, v{lane}, 2, s10")
    I(f"global_store_dword v{vP}, v{vTS}, {sp(pWS)}")
def cstamp(i):
    if not TS: return
    I("s_memtime vcc")
    I("s_waitcnt lgkmcnt(0)")
    I(f"v_writelane_b32 v{vTS}, vcc_lo, {i}")

LD_P = opt("ldp", "nt")
XP, EP, OP = opt("xp", ""), opt("ep", ""), opt("op", "sc1")
STP = opt("stp", "sc1")
MG = opt("mg", 1)
JE = opt("je", 4 if MG else 2)
EMASK = ((1 << JE) - 1) * 0x01010101
DCH = CH + 1024
SDW = "dst_sel:DWORD dst_unused:UNUSED_PAD"

def dma_tile():
    mad = lambda i: f"v_mad_u32_u16 v{vQD+i}, v{vQD+i}, s{s128}, v{vCP}"
    r = []
    for i in range(4):
        r += [f"s_add_u32 m0, s{sSTG}, {i*XI}", mad(i), f"buffer_load_dwordx4 v{vQD+i}, {sq(sX)}, 0 offen{pol(XP)} lds"]
    r += [f"s_mov_b32 m0, s{sES}", "s_nop 0", f"buffer_load_dwordx4 {rr(vEI,2)}, {sq(sEP)}, 0 idxen offen{pol(EP)} lds"]
    return r

ORD = [(0, 0), (1, 0), (0, 1), (1, 1)]
def xread(m, s): return f"ds_read_b128 {rr(vX+8*m+4*s,4)}, v{vAX} offset:{512*m + 64*s}"
def g_mfmas(D, ft, w):
    g = [m16(D+8*n+4*m, vEO+4*m, vCA+16*w+8*ft+4*n) for m in range(2) for n in range(2)]
    g += [m16(D+8*n+4*m, vX+8*m+4*s, vWB+16*ft+8*n+4*s, D+8*n+4*m) for m, s in ORD for n in range(2)]
    return g
def h_mfmas(ft):
    return [m16(vQ+8*n+4*m, vX+8*m+4*s, vWV+16*ft+8*n+4*s, None if s == 0 else vQ+8*n+4*m) for m, s in ORD for n in range(2)]
def s_num(w, ft): return [s16(NUM(w, 2*ft+n), vQ+8*n) for n in range(2)]
def s_den(w, ft, G): return [s16(DEN(w, 2*ft+n), G+8*n) for n in range(2)]

def eafix():
    return [f"v_bfi_b32 v{vEA+m}, 31, v{vcEO}, v{vEA+m}" for m in range(2)] + [f"v_max_u32 v{vEA}, v{vEA}, v{vcEO}", f"v_max_u32 v{vEA+1}, v{vEA+1}, v{vC1}"]
LV = [int(c, 16) for c in opt("lv", "015a")]
PAT = opt("pat", "1" * 11 + "5")
FAIR = opt("fair", 1)
F2 = opt("f2", 0)
BST = opt("bst", 10)
LNG = opt("lng", 1)
ASL = [int(x) for x in opt("asl", "12_13_14_18").split("_")]
LLV = [int(x) for x in opt("llv", "0_2_12_26").split("_")]
LLP_ = opt("llp", "0003_1113").split("_")
def add1(q): return f"v_mfma_f32_4x4x4_16b_bf16 {rr(q,4)}, {rr(vONE,2)}, {rr(vONE,2)}, {rr(q,4)}"
def long_sec(mf, G, regs, slots, cp):
    r = []; k = 0
    tr = [f"v_exp_f32 v{G+i}, v{G+i}" for i in regs] + [f"v_rcp_f32 v{G+i}, v{G+i}" for i in regs]
    for i, x in enumerate(tr):
        if i in LLV:
            j = LLV.index(i)
            if j == 0 or LLP_[cp][j] != LLP_[cp][j-1]: r.append(f"s_setprio {LLP_[cp][j]}")
        if i in slots: r.append(add1(G + regs[4*slots.index(i)]))
        elif k < len(mf): r += mf[k]; k += 1
        r.append(x)
    assert k == len(mf)
    return r
def phase(par, ft, cp=0):
    G, Go = (vP, vR) if ft == 0 else (vR, vP)
    nf = 1 - ft
    wn = par if ft == 0 else par ^ 1
    wp = par ^ 1 if ft == 0 else par
    s1 = [[x] for x in s_num(wp, nf) + h_mfmas(ft) + s_den(wp, nf, Go)]
    s2 = [[x] for x in g_mfmas(Go, nf, wn)]
    if ft == 0:
        o = par * LWB
        s1[0] += [f"ds_read_u16 v{vQD+u}, v{vARS} offset:{o + 16*u}" for u in range(2)]
        s1[8] += ["s_waitcnt lgkmcnt(0)"] + [f"v_bfi_b32 v{vQD+u}, 31, v{vcS}, v{vQD+u}" for u in range(2)]
        if FAIR and (par == 0 or not F2):
            s1[0] += [f"ds_add_rtn_u32 v{vQD+2}, v{vPA}, v{vIDX}"]
            s1[8] += [f"v_readfirstlane_b32 s{sRM}, v{vQD+2}"]
            s2[1] += [f"s_ashr_i32 s{sRM}, s{sRM}, 24", f"s_mul_i32 s{sRM}, s{sRM}, s{sSG}"]
        o1 = 128 if par else LWB
        s2[0] += [f"ds_read_b64_tr_b16 {rr(vS+2*u,2)}, v{vQD+u}" for u in range(2)]
        s2[0] += [f"ds_read_u16 v{vEA+m}, v{vARO} offset:{o1 + 64*m}" for m in range(2)]
        s2[6] += ["s_waitcnt lgkmcnt(0)"] + eafix()
        s2[6] += [f"ds_read_b128 {rr(vQD,4)}, v{vARX} offset:{o + 128}", f"ds_read_b32 v{vEI}, v{vARE} offset:{o + 128}",
                  f"s_add_u32 s{sT}, s{sT}, 1"]
        if par: s2[7] += [f"v_lshl_add_u64 {rr(r,2)}, {rr(r,2)}, 0, {sp(sINC)}" for r in (vARX, vARO)]
    elif opt("el", 1):
        g = [m16(Go+8*n+4*m, vX+8*m+4*s, vWB+16*nf+8*n+4*s, None if s == 0 else Go+8*n+4*m) for m, s in ORD for n in range(2)]
        g += [m16(Go+8*n+4*m, vEO+4*m, vCA+16*wn+8*nf+4*n, Go+8*n+4*m) for m in range(2) for n in range(2)]
        s2 = [[x] for x in g]
        s1[2] = ["s_waitcnt vmcnt(1)"] + s1[2]
        for i, (m, s) in enumerate(ORD): s1[3+2*i].append(xread(m, s))
        s2[0] = ["s_waitcnt lgkmcnt(2)"] + s2[0]
        ep = opt("el", 1)
        ex_ = opt("elx", 0)
        if ex_: s2[ex_] += dma_tile()[:12]
        s2[ep] += [f"s_waitcnt vmcnt({4 if ex_ and ep >= ex_ else 0})"] + [f"ds_read_b128 {rr(vEO+4*m,4)}, v{vEA+m}" for m in range(2)]
        xw = min(4, ex_) if ex_ else 4
        s2[xw] = [f"s_waitcnt lgkmcnt({2 if ep < xw else 0})"] + [x for x in s2[xw] if not x.startswith("s_waitcnt lgkm")]
        s2[8] = ["s_waitcnt lgkmcnt(0)"] + s2[8]
        if ex_: s2[opt("eld", 9)] += dma_tile()[12:]
        else: s2[opt("eld", 9)] += [f"s_cmp_lt_u32 s{sT}, s{sN}", f"s_cbranch_scc0 L_ND{par}{cp}"] + dma_tile() + [f"L_ND{par}{cp}:"]
    else:
        s1[2] = ["s_waitcnt vmcnt(0)"] + [f"ds_read_b128 {rr(vEO+4*m,4)}, v{vEA+m}" for m in range(2)] + s1[2]
        for i, (m, s) in enumerate(ORD): s1[3+2*i].append(xread(m, s))
        s2[0] = ["s_waitcnt lgkmcnt(4)"] + s2[0]
        for i in range(4): s2[4+2*i] = [f"s_waitcnt lgkmcnt({3-i})"] + s2[4+2*i]
        DSP = opt("dsp", "")
        if DSP:
            d = dma_tile(); first = min(int(c, 16) for c in DSP)
            for i in range(4): s2[4+2*i] = s2[4+2*i][1:] if 4+2*i > first else s2[4+2*i]
            s2[first] = ["s_waitcnt lgkmcnt(0)"] + [x for x in s2[first] if not x.startswith("s_waitcnt")]
            for k, c in enumerate(DSP): s2[int(c, 16)] += d[3*k:3*k+3]
        tgt = f"L_CE{par}{cp}" if opt("cpe", 0) else f"L_ND{par}{cp}"
        if not DSP: s2[10] += [f"s_cmp_lt_u32 s{sT}, s{sN}", f"s_cbranch_scc0 {tgt}"] + dma_tile() + [f"L_ND{par}{cp}:"]
    def sec(mf, op):
        r = []; k = 0
        for i, m in enumerate(mf):
            if opt("lvp", ""):
                lv = opt("lvp", "").split("_")[cp]
                if i in LV:
                    k_ = LV.index(i)
                    if k_ == 0 or lv[k_] != lv[k_-1]: r.append(f"s_setprio {lv[k_]}")
            elif FAIR:
                if i == 0: r.append(f"s_setprio {cp}")
                if i == BST: r.append("s_setprio 3")
            elif i in LV: r.append(f"s_setprio {LV.index(i)}")
            r += m
            for _ in range(int(PAT[i])):
                r.append(f"{op} v{G+k}, v{G+k}"); k += 1
        assert k == 16
        return r
    r = []
    if opt("tt", 0) and ft == 0:
        r += ["s_memrealtime vcc", "s_memtime s[10:11]", f"s_add_u32 m0, s{sT}, 17", "s_waitcnt lgkmcnt(0)", f"v_writelane_b32 v{vTS}, vcc_lo, m0",
              f"s_add_u32 m0, s{sT}, 35", "s_nop 0", f"v_writelane_b32 v{vTS}, s10, m0"]
    if LNG:
        r += long_sec(s1 + s2, G, list(range(16)), ASL, cp)
        return r + [f"v_pk_mul_f32 {rr(vQ+2*i,2)}, {rr(G+2*i,2)}, {rr(vQ+2*i,2)}" for i in range(8)]
    r += sec(s1, "v_exp_f32")
    r += [f"v_pk_add_f32 {rr(G+2*i,2)}, {rr(G+2*i,2)}, 1.0 op_sel_hi:[1,0]" for i in range(8)]
    r += sec(s2, "v_rcp_f32")
    r += [f"v_pk_mul_f32 {rr(vQ+2*i,2)}, {rr(G+2*i,2)}, {rr(vQ+2*i,2)}" for i in range(8)]
    return r

def last_tile(par, half, epi=None, only_b=False):
    keep = (lambda x: int(re.match(r"\S+ v\[(\d+)", x).group(1)) % 8 == (vP % 8)) if half else (lambda x: True)
    regs = [k for k in range(16) if not (half and k & 4)]
    def sec(mf, op, G):
        r = [f"s_setprio {opt('lpr', 0)}"]; k = 0
        tail = min(len(regs), 4 if half else 5)
        for i, m in enumerate(mf):
            if i == len(mf) - 1: r.append("s_setprio 3")
            r += m
            e_ = (len(regs) - tail) * (i + 1) // (len(mf) - 1) if i < len(mf) - 1 else len(regs)
            while k < e_:
                r.append(f"{op} v{G+regs[k]}, v{G+regs[k]}"); k += 1
        while k < len(regs):
            r.append(f"{op} v{G+regs[k]}, v{G+regs[k]}"); k += 1
        return r
    r = []
    for ft in range(1 if only_b else 0, 2):
        G, Go = (vP, vR) if ft == 0 else (vR, vP)
        wp = par ^ 1 if ft == 0 else par
        s1 = [[x] for x in s_num(wp, 1-ft) + [h for h in h_mfmas(ft) if keep(h)] + s_den(wp, 1-ft, Go)]
        s2 = [[x] for x in g_mfmas(Go, 1, par) if keep(x)] if ft == 0 else []
        if ft == 0:
            s1[0] += [f"ds_read_u16 v{vQD+u}, v{vARS} offset:{par*LWB + 16*u}" for u in range(2)]
            s1[-2] += ["s_waitcnt lgkmcnt(0)"] + [f"v_bfi_b32 v{vQD+u}, 31, v{vcS}, v{vQD+u}" for u in range(2)]
            s2[0] += [f"ds_read_b64_tr_b16 {rr(vS+2*u,2)}, v{vQD+u}" for u in range(2)]
        else:
            s1[0] = ["s_waitcnt lgkmcnt(0)"] + s1[0]
            if epi:
                a1, a2, a3 = epi
                r += [f"s_cmp_lg_u32 s{sMORE}, 0", f"s_cbranch_scc1 L_LB{par}"]
                n_ = len(s1) - 3
                for k in range(n_): s1[k] += a1[len(a1)*k//n_:len(a1)*(k+1)//n_]
                s1[-3] += a2[:len(a2)//2]; s1[-2] += a2[len(a2)//2:]
                s2 = [list(x) for x in a3]
        r += sec(s1, "v_exp_f32", G)
        r += [f"v_pk_add_f32 {rr(G+k,2)}, {rr(G+k,2)}, 1.0 op_sel_hi:[1,0]" for k in regs[::2]]
        r += sec(s2, "v_rcp_f32", G)
        r += [f"v_pk_mul_f32 {rr(vQ+k,2)}, {rr(G+k,2)}, {rr(vQ+k,2)}" for k in regs[::2]]
    return r + s_den(par, 1, vR) + s_num(par, 1)

def isize(x):
    op = x.split()[0]
    if x.endswith(":"): return 0
    if op in ("v_exp_f32", "v_rcp_f32", "v_max_u32", "v_readfirstlane_b32"): return 4
    if op.startswith("s_"):
        m = re.search(r", (0x[0-9a-f]+|\d+)$", x)
        return 8 if (m and op not in ("s_setprio", "s_nop", "s_waitcnt") and int(m.group(1), 0) > 64) else 4
    return 8
def align8(body, mode):
    body = list(body); run = []; r = []
    for x in body:
        z = isize(x)
        if z == 8:
            if sum(isize(r[i]) for i in run) % 8:
                c = [i for i in run if r[i].split()[0] in ("v_exp_f32", "v_rcp_f32", "v_max_u32")]
                if c: r[c[-1]] = r[c[-1]].replace(" ", "_e64 ", 1); run = []
                elif mode == 2: r.append("s_nop 0"); run = []
                else: run = [i for i in run if isize(r[i])][:1]
            else: run = []
            r.append(x)
        else:
            run.append(len(r)); r.append(x)
    return r

def listaddr(t0):
    I(f"v_lshrrev_b32 v{t0}, 3, v{lane}")
    I(f"v_lshl_add_u32 v{vARX}, v{t0}, 4, s{sL}")
    I(f"s_add_u32 s10, s{sL}, {R1-R0}")
    I(f"v_lshrrev_b32 v{t0}, 1, v{lane}")
    I(f"v_lshl_add_u32 v{vARE}, v{t0}, 2, s10")
    I(f"s_add_u32 s10, s10, 2")
    I(f"v_lshrrev_b32 v{t0}, 5, v{lane}")
    I(f"v_mul_i32_i24 v{vARO}, {(R0-R1) & 0xffffffff:#x}, v{t0}")
    I(f"v_and_b32 v{t0}, 15, v{lane}")
    I(f"v_lshl_add_u32 v{vARO}, v{t0}, 2, v{vARO}")
    I(f"v_add_u32 v{vARO}, s10, v{vARO}")
    I(f"s_add_u32 s10, s{sL}, 2")
    I(f"v_and_b32 v{t0}, 48, v{lane}")
    I(f"v_lshl_add_u32 v{vARS}, v{t0}, 1, s10")
    I(f"v_and_b32 v{t0}, 12, v{lane}")
    I(f"v_add_u32 v{vARS}, v{vARS}, v{t0}")

def prefill(t):
    for d in range(4): I(f"v_mov_b32 v{t+d}, {ZROW << 16:#x}")
    for d in range(4): I(f"v_mov_b32 v{t+4+d}, 0xfffff")
    I(f"v_lshl_add_u32 v{t+8}, v{lane}, 4, s{sL}")
    for o in (0, 1024, 2*LWB - 1024):
        I(f"ds_write_b128 v{t+8}, {rr(t,4)} offset:{o}")
        I(f"ds_write_b128 v{t+8}, {rr(t+4,4)} offset:{o + R1 - R0}")

def kernel():
    emit(f"""
.globl {NAME}_kernel
.p2align 8
.type {NAME}_kernel,@function
{NAME}_kernel:""")
    FH = opt("fh", 1)
    vD, vSR, vT16 = vACC + 32, vACC, vR + 12
    if TS and opt("tz", 0): I("s_memrealtime s[96:97]")
    I("s_load_dwordx16 s[16:31], s[0:1], 0")
    I("s_load_dwordx8 s[32:39], s[0:1], 64")
    CPN = opt("cpn", 8)
    if opt("cpf", 1):
        I(f"s_getpc_b64 {sp(sM)}")
        L("L_PC")
        if CPN == 8: I("s_and_b32 s3, s2, -8")
        else:
            I("s_lshr_b32 s3, s2, 3")
            I(f"s_and_b32 s3, s3, {256//CPN - 1}")
            I(f"s_mul_i32 s3, s3, {CPN}")
        I("v_add_lshl_u32 v1, v0, s3, 7")
        I("v_min_u32 v1, L_LAST-L_PC, v1")
        I(f"v_cmpx_gt_u32 vcc, {CPN}, v0")
        I("s_cbranch_execz L_NOCPF")
        I(f"global_load_dword v{vEA}, v1, {sp(sM)}")
        L("L_NOCPF")
        I("s_mov_b64 exec, -1")
    I("s_cmp_ge_u32 s2, 256")
    I("s_cbranch_scc1 L_END")
    if FH:
        I(f"s_mul_i32 s{sA}, s2, {CH*4}")
        I(f"v_lshl_add_u32 v1, v0, 4, s{sA}")
        I(f"s_add_u32 s{sBt}, s{sA}, {CH*4}")
        I(f"s_min_u32 s{sBt}, s{sBt}, {E*4}")
        BAL = opt("bal", 0)
        if BAL:
            I(f"s_add_u32 s{sA}, s{sA}, 0x2000")
            I(f"v_lshl_add_u32 v2, v0, 3, s{sA}")
            I(f"s_add_u32 s{sA}, s{sA}, 0x1000")
            I(f"v_lshl_add_u32 v3, v0, 2, s{sA}")
            I(f"v_cmp_gt_u32 {sp(sM+6)}, s{sBt}, v2")
            I(f"v_min_u32 v2, {E*4 - 8}, v2")
        else: I("v_add_u32 v2, 0x2000, v1")
        I("s_waitcnt lgkmcnt(0)")
        if TS and opt("tz", 0): I("s_memrealtime s[98:99]")
        I(f"global_load_dwordx4 {rr(vD,4)}, v1, {sp(pDST)}{pol(LD_P)}")
        if BAL:
            I(f"global_load_dwordx2 {rr(vD+4,2)}, v2, {sp(pDST)}{pol(LD_P)}")
            I(f"global_load_dwordx4 {rr(vSR,4)}, v1, {sp(pSRC)}{pol(LD_P)}")
            I(f"global_load_dwordx2 {rr(vSR+4,2)}, v2, {sp(pSRC)}{pol(LD_P)}")
            I(f"v_cmpx_gt_u32 {sp(sM+28)}, s{sBt}, v3")
            I("s_cbranch_execz L_NO7")
            I(f"global_load_dword v{vD+6}, v3, {sp(pDST)}{pol(LD_P)}")
            I(f"global_load_dword v{vSR+6}, v3, {sp(pSRC)}{pol(LD_P)}")
        else:
            I(f"global_load_dwordx4 {rr(vSR,4)}, v1, {sp(pSRC)}{pol(LD_P)}")
            def group2():
                I(f"v_cmpx_gt_u32 {sp(sM+6)}, s{sBt}, v2")
                I("s_cbranch_execz L_NO8")
                I(f"global_load_dwordx4 {rr(vD+4,4)}, v2, {sp(pDST)}{pol(LD_P)}")
                I(f"global_load_dwordx4 {rr(vSR+4,4)}, v2, {sp(pSRC)}{pol(LD_P)}")
                L("L_NO8")
                I("s_mov_b64 exec, -1")
            G2 = opt("g2", 0)
            if G2 == 0: group2()
        L("L_NO7")
        I("s_mov_b64 exec, -1")
        KV = opt("kv", 0)
        if KV:
            I("v_mov_b32 v1, 0")
            I(f"global_load_dword v{vEA+1}, v1, {sp(pWS)}")
        else: I(f"s_load_dword s{sK}, {sp(pWS)}, 0")
        if opt("tlb", 0):
            I("v_lshlrev_b32 v1, 20, v0")
            I(f"v_add_u32 v1, {WS_CELL + XOFF - 448*(1 << 20) & 0xffffffff:#x}, v1")
            I("v_subrev_u32 v2, 448, v0")
            I("v_cmpx_gt_u32 vcc, 9, v2")
            I("s_cbranch_execz L_NOTLB")
            I(f"global_load_dword v{vEA+1}, v1, {sp(pWS)}")
            L("L_NOTLB")
            I("s_mov_b64 exec, -1")
    if TS: I(f"v_mov_b32 v{vTS}, 0")
    u = lambda i: vP + i
    if TS and opt("tz", 0):
        I("s_waitcnt lgkmcnt(0)")
        I(f"v_writelane_b32 v{vTS}, s96, 0")
        I(f"v_writelane_b32 v{vTS}, s98, 1")
        STN.extend(["z", "k"])
    stamp(0)
    vBK, vRK1, vID, vHA, vIC = vACC + 8, vACC + 16, vACC + 24, vACC + 40, vACC + 48
    vRW = vX
    one, l16 = vS, vS + 1
    vOA, vT16, sOW = vR + 14, vR + 12, 101
    I(f"v_mov_b32 v{tid}, v0")
    I(f"v_lshrrev_b32 v{u(0)}, 6, v0")
    I(f"v_and_b32 v{lane}, 63, v0")
    I(f"v_readfirstlane_b32 s{sWP}, v{u(0)}")
    I(f"v_lshlrev_b32 v{vT16}, 4, v0")
    I(f"v_lshlrev_b32 v{u(2)}, 3, v0")
    I(f"v_lshlrev_b32 v{u(3)}, 2, v0")
    I(f"v_and_b32 v{u(4)}, 0x3fc, v{u(3)}")
    if not FH:
        I(f"s_mul_i32 s{sA}, s2, {CH*4}")
        I(f"s_sub_u32 s{sBt}, {E*4}, s{sA}")
        I(f"s_min_u32 s{sBt}, s{sBt}, {CH*4}")
    I(f"s_and_b32 s{sB}, s2, 7")
    I(f"s_lshr_b32 s{sW}, s2, 3")
    I(f"s_lshl_b32 s{sB}, s{sB}, 5")
    I(f"s_add_u32 s{sB}, s{sB}, s{sW}")
    I(f"s_mul_i32 s{sF1}, s{sB}, {BN}")
    I(f"s_cmp_eq_u32 s{sWP}, 7")
    I(f"s_cselect_b32 s{sOW}, 0, s{sWP}")
    I(f"s_lshl_b32 s{sL}, s{sOW}, 5")
    I(f"s_add_u32 s{sF1}, s{sF1}, s{sL}")
    I(f"v_lshrrev_b32 v{u(5)}, 3, v{lane}")
    I(f"v_lshl_add_u32 v{u(5)}, v{u(5)}, 2, s{sF1}")
    I(f"v_and_b32 v{vCP}, 7, v{lane}")
    I(f"v_lshlrev_b32 v{vCP}, 4, v{vCP}")
    I(f"v_lshl_add_u32 v{vOA}, v{u(5)}, 7, v{vCP}")
    I(f"s_lshl_b32 s{sOW}, s{sOW}, 10")
    I(f"s_add_u32 s{sOW}, s{sOW}, {OWN}")
    if not FH:
        I(f"s_movk_i32 s{sF0}, 0x2000")
        I("s_waitcnt lgkmcnt(0)")
        I(f"s_load_dword s{sK}, {sp(pWS)}, 0")
        srd(sCEL, pDST, f"s{sBt}", f"s{sA}")
        srd(sD2, pSRC, f"s{sBt}", f"s{sA}")
        I(f"buffer_load_dwordx4 {rr(vD,4)}, v{vT16}, {sq(sCEL)}, 0 offen{pol(LD_P)}")
        I(f"buffer_load_dwordx4 {rr(vSR,4)}, v{vT16}, {sq(sD2)}, 0 offen{pol(LD_P)}")
        I(f"s_cmp_ge_u32 s{sWP}, 5")
        I("s_cbranch_scc1 L_NO7")
        I(f"buffer_load_dwordx4 {rr(vD+4,4)}, v{vT16}, {sq(sCEL)}, s{sF0} offen{pol(LD_P)}")
        I(f"buffer_load_dwordx4 {rr(vSR+4,4)}, v{vT16}, {sq(sD2)}, s{sF0} offen{pol(LD_P)}")
        L("L_NO7")
    for d in range(2): I(f"v_mov_b64 {rr(u(8)+2*d,2)}, 0")
    I(f"v_mov_b32 v{u(6)}, {33*JE if MG else 0}")
    I(f"ds_write2st64_b32 v{u(4)}, v{u(6)}, v{u(8)} offset0:{HIST1//256} offset1:{HIST1//256+4}")
    I(f"v_add_u32 v{u(5)}, {CIMG}, v{vT16}")
    if G2 == 1: group2()
    for k in range(5): I(f"ds_write_b128 v{u(5)}, {rr(u(8),4)} offset:{8192*k}")
    if G2 == 2: group2()
    PF = opt("pf", 0)
    def w_loads():
        I(f"s_cmp_ge_u32 s{sWP}, 2")
        I("s_cbranch_scc1 L_NOC")
        I(f"global_load_dwordx4 {rr(vEO,4)}, v{vT16}, {sp(pWC)}")
        L("L_NOC")
        for k, p in enumerate((pWB, pWV, pWA, pWU)):
            I(f"global_load_dwordx4 {rr(vRW+4*k,4)}, v{vT16}, {sp(p)}")
    def own_loads():
        I(f"s_cmp_eq_u32 s{sWP}, 6")
        I("s_cselect_b32 exec_hi, 0, -1")
        I(f"s_cmp_eq_u32 s{sWP}, 7")
        I("s_cselect_b64 exec, 1, exec")
        for k in range(4):
            I(f"s_add_u32 m0, s{sOW}, {(PL-128)*k}")
            I("s_nop 0")
            I(f"buffer_load_dwordx4 v{vOA}, {sq(sX)}, 0 offen offset:{128*k}{pol(opt('owp', ''))} lds")
        I("s_mov_b64 exec, -1")
    def x_prefetch():
        if not PF: return
        I(f"s_add_u32 s{sTM}, s2, 1")
        I(f"s_and_b32 s{sTM}, s{sTM}, 7")
        I(f"s_mul_i32 s{sTM}, s{sTM}, {32*BN}")
        I(f"s_lshr_b32 s{sTM+1}, s2, 3")
        I(f"s_mul_i32 s{sTM+1}, s{sTM+1}, {PF}")
        I(f"s_add_u32 s{sTM}, s{sTM}, s{sTM+1}")
        I(f"s_mul_i32 s{sTM+1}, s{sWP}, {PF//8}")
        I(f"s_add_u32 s{sTM}, s{sTM}, s{sTM+1}")
        I(f"v_min_u32 v{vEA+1}, {PF//8 - 1}, v{lane}")
        I(f"v_add_lshl_u32 v{vEA+1}, v{vEA+1}, s{sTM}, 7")
        I(f"buffer_load_dword v{vEA+1}, v{vEA+1}, {sq(sX)}, 0 offen")
    PFP = opt("pfp", 0)
    LLP = 2
    OLP = opt("olp", 2)
    NY = 0
    srd(sEP, pE, E, stride=32)
    srd(sOUT, pOUT, N*128)
    srd(sX, pX, N*128)
    OY = 0
    if OLP == 3:
        OW0 = opt("ow0", 5); nw = 8 - OW0; per = -(-28 // nw); OY = per
        I(f"s_cmp_lt_u32 s{sWP}, {OW0}")
        I("s_cbranch_scc1 L_NOOWN")
        I(f"s_mul_i32 s{sF1}, s{sB}, {BN}")
        I(f"v_lshrrev_b32 v{vOA}, 3, v{lane}")
        I(f"v_lshl_add_u32 v{vOA}, v{vOA}, 2, s{sF1}")
        I(f"v_lshl_add_u32 v{vOA}, v{vOA}, 7, v{vCP}")
        I(f"s_sub_u32 s{sF0}, s{sWP}, {OW0}")
        for k in range(per):
            I(f"s_add_u32 s{sF1}, s{sF0}, {nw*k}")
            I(f"s_min_u32 s{sF1}, s{sF1}, 27")
            I(f"s_and_b32 s{sL}, s{sF1}, 3")
            I(f"s_lshr_b32 s{sF1}, s{sF1}, 2")
            I(f"s_mul_i32 s{sOW}, s{sL}, {PL}")
            I(f"s_lshl_b32 s{sL}, s{sL}, 7")
            I(f"s_cmp_eq_u32 s{sF1}, 6")
            I("s_cselect_b32 exec_hi, 0, -1")
            I(f"s_lshl_b32 s{sF1}, s{sF1}, 10")
            I(f"s_add_u32 s{sOW}, s{sOW}, s{sF1}")
            I(f"s_add_u32 m0, s{sOW}, {OWN}")
            I(f"s_lshl2_add_u32 s{sL}, s{sF1}, s{sL}")
            I(f"buffer_load_dwordx4 v{vOA}, {sq(sX)}, s{sL} offen lds")
        I("s_mov_b32 exec_hi, -1")
        L("L_NOOWN")
    srd(sWS, pWS, WS_USED)
    I(f"s_lshl_b32 s{sL}, s2, 7")
    I(f"s_add_u32 s{sL}, s{sL}, {WS_CELL}")
    srd(sCEL, pWS, 255*RS + XOFF + 128, f"s{sL}")
    cM, cN, cP, cPM, cR = sM, sM + 1, sM + 2, sM + 3, sM + 4
    m2 = sM + 6
    I(f"s_mov_b32 s{cM}, 85599")
    I(f"s_mov_b32 s{cN}, {-BN & 0xffffffff}")
    I(f"s_movk_i32 s{cP}, 5368")
    I(f"s_mov_b32 s{cPM}, {opt('phm', 3) << 26:#x}")
    I(f"s_mov_b32 s{cR}, {RS}")
    if opt("rot", 1): I(f"s_mov_b32 s{sSP}, {-(196*5368) & 0xffffffff:#x}")
    for i in range(4): I(f"v_add_u32 v{vID+i}, {i}, v{u(3)}")
    I(f"s_lshl_b32 s{sA}, s{sWP}, 28")
    I(f"s_or_b32 s{sA}, s{sA}, 0x20000")
    I(f"v_mov_b32 v{vIC}, s{sA}")
    if BAL:
        assert MG <= 1 and OLP != 3
        I(f"s_lshr_b32 s{sA}, s{sWP}, 1")
        I(f"s_lshl_b32 s{sA}, s{sA}, 28")
        I(f"s_or_b32 s{sA}, s{sA}, 0x80020000")
        I(f"v_mov_b32 v{vIC+1}, s{sA}")
        I(f"v_mov_b32 v{vIC+3}, 0xc0020000")
        I(f"v_lshlrev_b32 v{vID+4}, 1, v{tid}")
        I(f"v_add_u32 v{vID+5}, 1, v{vID+4}")
        I(f"v_mov_b32 v{vID+6}, v{tid}")
    else: I(f"v_or_b32 v{vIC+1}, 0x80000000, v{vIC}")
    idr = (lambda i: vID + i) if BAL else (lambda i: vID + (i & 3))
    icr = (lambda i: vIC + (3 if i == 6 else i >> 2)) if BAL else (lambda i: vIC + (i >> 2))
    NR = 7 if BAL else 8
    I(f"v_mov_b32 v{one}, 33")
    vK1 = vIC + 2
    I(f"v_mov_b32 v{vK1}, 0x400")
    if opt("ro", 0): I(f"v_mov_b32 v{vIC+4}, {opt('ro', 0) << 24:#x}")
    if not FH:
        I(f"s_sub_u32 s{sBt}, s{sBt}, 0x2000")
        I(f"v_cmp_gt_u32 {sp(m2)}, s{sBt}, v{vT16}")
    I(f"s_and_b32 s{sA}, s{sWP}, 3")
    I(f"s_lshr_b32 s{sW}, s{sWP}, 2")
    I(f"s_lshl1_add_u32 s{sW}, s{sA}, s{sW}")
    if opt("swp", 1): I(f"s_xor_b32 s{sW}, s{sW}, 1")
    I(f"s_mul_i32 s{sA}, s{sW}, 49")
    I(f"s_sub_i32 s{sA}, s{sA}, 6")
    I(f"s_ashr_i32 s{sA}, s{sA}, 1")
    I(f"s_max_i32 s{sWIN}, s{sA}, 0")
    I(f"s_mul_i32 s{sSTG}, s{sW}, {SLOT}")
    I(f"s_add_u32 s{sSTG}, s{sSTG}, {XSTG}")
    I(f"s_lshl_b32 s{sES}, s{sW}, 10")
    I(f"s_add_u32 s{sES}, s{sES}, {ESTG}")
    I(f"s_mul_i32 s{sL}, s{sW}, {2*LWB}")
    I(f"s_add_u32 s{sL}, s{sL}, {R0}")
    I(f"s_movk_i32 s{s128}, 128")
    if G2 == 3: group2()
    I(f"v_bfe_u32 v{u(6)}, v{tid}, 4, 4")
    I(f"v_and_b32 v{u(7)}, 7, v{tid}")
    I(f"v_cmp_eq_u32 vcc, v{u(6)}, v{u(7)}")
    I(f"v_and_b32 v{u(6)}, 8, v{tid}")
    I(f"v_lshlrev_b32 v{u(6)}, 1, v{u(6)}")
    I(f"v_mov_b32 v{u(8)}, 0x3f80")
    I(f"v_lshlrev_b32 v{u(8)}, v{u(6)}, v{u(8)}")
    I(f"v_cndmask_b32 v{u(8)}, 0, v{u(8)}, vcc")
    I(f"ds_write_b32 v{u(4)}, v{u(8)} offset:{TAB}")
    I(f"v_mov_b64 {rr(u(8),2)}, 0")
    I(f"ds_write_b64 v{u(2)}, {rr(u(8),2)} offset:{HIST}")
    I(f"v_add_u32 v{u(6)}, {PRG}, v{u(3)}")
    I(f"ds_write_b32 v{u(6)}, v{u(8)}")
    go, lo, lo2, ha = vR, vR + 1, vR + 2, vR + 3
    wl, wal = vR + 4, vR + 5
    I(f"v_lshrrev_b32 v{ha}, 3, v{tid}")
    TW = opt("tw", "")
    lob, l2b = vR + 6, vR + 7
    sRG = sM + 28
    I(f"v_mul_u32_u24 v{wl}, {LROW}, v{ha}")
    if TW:
        I(f"v_and_b32 v{lo2}, 24, v{ha}")
        I(f"v_and_b32 v{go}, 7, v{ha}")
        I(f"v_lshl_add_u32 v{lo2}, v{lo2}, 1, v{go}")
        I(f"v_mad_u32_u24 v{go}, v{lo2}, s{cR}, v{vCP}")
        I(f"s_lshr_b32 s{sRG}, s{sWP}, 2")
        I(f"s_lshl_b32 s{sRG}, s{sRG}, 7")
        I(f"s_sub_u32 s{sRG}, s{sRG}, s2")
        I(f"s_add_u32 s{sRG}, s{sRG}, 63")
        I(f"s_add_u32 s{sRG+1}, s{sRG}, 64")
        I(f"s_and_b32 s{sRG}, s{sRG}, 0xc0")
        I(f"s_and_b32 s{sRG+1}, s{sRG+1}, 0xc0")
        I(f"v_add_u32 v{l2b}, s{sRG+1}, v{lo2}")
        I(f"v_add_u32 v{lo2}, s{sRG}, v{lo2}")
        I(f"v_add_u32 v{u(6)}, {CIMG}, v{vCP}")
        I(f"s_movk_i32 s{sA}, {LROW}")
        I(f"v_mad_u32_u24 v{lo}, v{lo2}, s{sA}, v{u(6)}")
        I(f"v_mad_u32_u24 v{lob}, v{l2b}, s{sA}, v{u(6)}")
        I(f"v_lshlrev_b32 v{lo2}, 2, v{lo2}")
        I(f"v_lshlrev_b32 v{l2b}, 2, v{l2b}")
    else:
        I(f"v_mad_u32_u24 v{go}, v{ha}, s{cR}, v{vCP}")
        I(f"v_add_u32 v{lo}, v{wl}, v{vCP}")
        I(f"v_add_u32 v{lo}, {CIMG}, v{lo}")
    assert LROW == WR
    I(f"v_bfe_u32 v{u(6)}, v{tid}, 5, 1")
    I(f"v_bfe_u32 v{u(8)}, v{tid}, 6, 1")
    I(f"v_sub_u32 v{u(6)}, v{u(6)}, v{u(8)}")
    I(f"v_mul_i32_i24 v{u(6)}, {4*WR}, v{u(6)}")
    I(f"v_add_u32 v{wl}, v{wl}, v{u(6)}")
    I(f"v_lshl_add_u32 v{wl}, v{u(7)}, 2, v{wl}")
    I(f"v_add_u32 v{wl}, {WBI}, v{wl}")
    I(f"v_lshlrev_b32 v{l16}, 4, v{lane}")
    I(f"v_and_b32 v{u(6)}, 3, v{lane}")
    I(f"v_lshlrev_b32 v{vcS}, 3, v{u(6)}")
    I(f"v_bfe_u32 v{u(9)}, v{lane}, 2, 3")
    I(f"v_lshrrev_b32 v{u(8)}, 5, v{lane}")
    I(f"v_lshl_add_u32 v{u(9)}, v{u(8)}, 4, v{u(9)}")
    I(f"v_mul_u32_u24 v{wal}, {WR}, v{u(9)}")
    I(f"v_add_u32 v{wal}, v{wal}, v{vcS}")
    mm = lambda i: sM + 8 + 2*i
    def rank_a(rs, wsrc=0, plain=False):
        for i in rs: I(f"v_mul_u32_u24 v{vBK+i}, s{cM}, v{vD+i}")
        if rs[0] // 4 < MG and not plain:
            b = rs[0]
            for i in rs: I(f"v_lshrrev_b32 v{vHA+i}, 29, v{vBK+i}")
            if opt("px", 0):
                I(f"s_waitcnt vmcnt({wsrc})")
                for i in rs:
                    I(f"v_cmp_gt_u32 vcc, {opt('px', 0)}, v{vSR+i}")
                    I("s_nop 1")
                    I(f"v_cndmask_b32 v{vHA+i}, v{vHA+i}, v{vID+(i&3)}, vcc") if False else I(f"v_cndmask_b32_e64 v{vHA+i}, v{vHA+i}, {8+(i&3)}, vcc")
            t0, t1 = sM + 24, sM + 26
            I(f"v_cmp_eq_u32 {sp(mm(b))}, v{vHA+b}, v{vHA+b+1}")
            I(f"v_cmp_eq_u32 {sp(mm(b+2))}, v{vHA+b+2}, v{vHA+b+3}")
            I(f"v_cmp_eq_u32 vcc, v{vHA+b}, v{vHA+b+2}")
            I(f"v_cmp_eq_u32 {sp(t0)}, v{vHA+b+1}, v{vHA+b+3}")
            I(f"v_cmp_eq_u32 {sp(t1)}, v{vHA+b}, v{vHA+b+3}")
            I(f"v_cmp_eq_u32 {sp(sA)}, v{vHA+b+1}, v{vHA+b+2}")
            for i in rs: I(f"v_lshrrev_b32 v{vBK+i}, 24, v{vBK+i}")
            I(f"s_or_b64 {sp(mm(b+1))}, {sp(mm(b))}, {sp(t0)}")
            I(f"s_or_b64 {sp(mm(b+3))}, {sp(mm(b+2))}, {sp(t0)}")
            I(f"s_or_b64 {sp(mm(b))}, {sp(mm(b))}, vcc")
            I(f"s_or_b64 {sp(mm(b+2))}, {sp(mm(b+2))}, vcc")
            I(f"s_or_b64 {sp(mm(b))}, {sp(mm(b))}, {sp(t1)}")
            I(f"s_or_b64 {sp(mm(b+1))}, {sp(mm(b+1))}, {sp(sA)}")
            I(f"s_or_b64 {sp(mm(b+2))}, {sp(mm(b+2))}, {sp(sA)}")
            I(f"s_or_b64 {sp(mm(b+3))}, {sp(mm(b+3))}, {sp(t1)}")
            for i in rs:
                I(f"v_cndmask_b32 v{vHA+i}, 0, v{vK1}, {sp(mm(i))}")
                I(f"v_lshl_add_u32 v{vHA+i}, v{vBK+i}, 2, v{vHA+i}")
                I(f"ds_add_rtn_u32 v{vRK1+i}, v{vHA+i}, v{one} offset:{HIST1}")
            return
        for i in rs: I(f"v_lshrrev_b32 v{vBK+i}, 24, v{vBK+i}")
        for i in rs:
            I(f"v_lshlrev_b32 v{vHA+i}, 2, v{vBK+i}")
            I(f"ds_add_rtn_u32 v{vRK1+i}, v{vHA+i}, v{one} offset:{HIST1}")
    def again(rs, wait, em):
        for i in rs:
            I(f"s_waitcnt lgkmcnt({wait})")
            I(f"s_mov_b64 exec, {sp(mm(i))}")
            I(f"v_cmpx_le_u32 vcc, {33*JE}, v{vRK1+i}")
            I(f"ds_add_rtn_u32 v{vRK1+i}, v{vHA+i}, v{one} offset:{HIST1 - 1024}")
        I(f"s_mov_b64 exec, {em}")
    def rank_b(rs):
        for i in rs:
            I(f"v_mad_i32_i24 v{vD+i}, v{vBK+i}, s{cN}, v{vD+i}")
            if opt("ro", 0): I(f"v_mad_u32_u24 v{u(6)}, s{cP}, v{vSR+i}, v{vIC+4}")
            else: I(f"v_mul_u32_u24 v{u(6)}, s{cP}, v{vSR+i}")
            I(f"v_lshl_or_b32 v{vSR+i}, v{vD+i}, 18, v{vSR+i}")
            if opt("rot", 1):
                I(f"v_and_b32 v{vD+i}, 0xe0, v{vBK+i}")
                I(f"v_mad_i32_i24 v{u(6)}, v{vD+i}, s{sSP}, v{u(6)}")
            I(f"v_and_or_b32 v{u(6)}, v{u(6)}, s{cPM}, v{icr(i)}")
            I(f"v_mad_u32_u24 v{vD+i}, v{vBK+i}, {LROW//4}, s{cN+4}")
            I(f"v_or_b32 v{vSR+i}, v{vSR+i}, v{u(6)}")
    def place(i, wait, em):
        I(f"s_waitcnt lgkmcnt({wait})")
        I(f"v_bfe_u32 v{u(6)}, v{vRK1+i}, 3, 5")
        I(f"v_add_lshl_u32 v{vD+i}, v{u(6)}, v{vD+i}, 2")
        I(f"v_and_b32 v{u(6)}, 3, v{u(6)}")
        I(f"v_mad_i32_i24 v{u(6)}, v{u(6)}, -3, v{vD+i}")
        I(f"v_cmpx_gt_u32 vcc, {33*CAP}, v{vRK1+i}")
        I(f"ds_write_b32 v{vD+i}, v{vSR+i}")
        I(f"ds_write_b8 v{u(6)}, v{idr(i)} offset:12")
        I(f"s_mov_b64 exec, {em}")
    I(f"s_movk_i32 s{cN+4}, {CIMG//4}")
    for d in range(2): I(f"v_mov_b64 {rr(vRK1+4+2*d,2)}, 0")
    I("s_waitcnt lgkmcnt(0)")
    I("s_barrier")
    if BAL:
        m3 = sM + 28
        I("s_waitcnt vmcnt(3)")
        stamp(1)
        if TS: STN.pop()
        rank_a(range(4))
        I("s_waitcnt vmcnt(2)")
        I(f"s_mov_b64 exec, {sp(m2)}")
        rank_a(range(4, 6))
        if MG: again(range(4), 5, "-1")
        else: I("s_mov_b64 exec, -1")
        I("s_waitcnt vmcnt(0)")
        rank_b(range(6))
        I(f"s_mov_b64 exec, {sp(m2)}")
        for i in range(4, 6): place(i, (1 if MG else -3) + i, sp(m2) if i < 5 else "-1")
        for i in range(4): place(i, 7 + i, "-1")
        I(f"s_mov_b64 exec, {sp(m3)}")
        I("s_cbranch_execz L_B1")
        rank_a([6]); rank_b([6]); place(6, 0, "-1")
        I("s_branch L_B1")
    I(f"s_cmp_eq_u64 {sp(m2)}, 0" if FH else f"s_cmp_ge_u32 s{sWP}, 5")
    I("s_cbranch_scc1 L_R4")
    I(f"s_waitcnt vmcnt({3+KV})")
    stamp(1)
    rank_a(range(4), 2)
    I(f"s_waitcnt vmcnt({1+KV})")
    I(f"s_mov_b64 exec, {sp(m2)}")
    rank_a(range(4, 8))
    if MG == 0:
        I("s_mov_b64 exec, -1")
        rank_b(range(4))
        for i in range(4): place(i, 7 + i, "-1" if i < 3 else sp(m2))
        I(f"s_waitcnt vmcnt({KV})")
        rank_b(range(4, 8))
        for i in range(4, 8): place(i, 7 + i, sp(m2) if i < 7 else "-1")
    elif MG == 1:
        again(range(4), 7, sp(m2))
        I(f"s_waitcnt vmcnt({KV})")
        rank_b(range(4, 8))
        for i in range(4, 8): place(i, 3 + i, sp(m2) if i < 7 else "-1")
        rank_b(range(4))
        for i in range(4): place(i, 11 + i, "-1")
    else:
        again(range(8), 7, "-1")
        rank_b(range(4))
        for i in range(4): place(i, 7 + i, "-1" if i < 3 else sp(m2))
        I(f"s_waitcnt vmcnt({KV})")
        rank_b(range(4, 8))
        for i in range(4, 8): place(i, 7 + i, sp(m2) if i < 7 else "-1")
    I("s_branch L_B1")
    L("L_R4")
    TL = opt("tl", 0)
    if TL:
        TM = opt("tm", "xeo")
        OY = len(TM)
        if opt("tl2", 0):
            I("s_lshr_b32 s10, s2, 3")
            I(f"s_lshl_b32 s10, s10, {TL-5}")
        else: I(f"s_lshl_b32 s10, s2, 7")
        I(f"v_lshl_add_u32 v{vEA}, v{lane}, {TL}, s10")
        I(f"v_lshrrev_b32 v{vEI}, 5, v{vEA}")
        I(f"s_cmp_eq_u32 s{sWP}, 7")
        I("s_cselect_b64 exec, -1, 1")
        if "w" in TM:
            I("s_and_b32 s10, s2, -8")
            I(f"v_and_b32 v{vQD}, 7, v{lane}")
            I(f"v_add_u32 v{vQD}, s10, v{vQD}")
            I(f"v_mul_u32_u24 v{vQD}, {RS}, v{vQD}")
            I(f"s_mov_b32 s10, {WS_CELL + 256*128}")
            I(f"buffer_load_dword v{vEA+1}, v{vQD}, {sq(sWS)}, s10 offen")
        if "x" in TM: I(f"buffer_load_dword v{vEA+1}, v{vEA}, {sq(sX)}, 0 offen")
        if "e" in TM: I(f"buffer_load_dword v{vEA+1}, v{vEI}, {sq(sEP)}, 0 idxen")
        if "o" in TM: I(f"buffer_load_dword v{vEA+1}, v{vEA}, {sq(sOUT)}, 0 offen")
        I("s_mov_b64 exec, -1")
    elif OY:
        I(f"s_cmp_ge_u32 s{sWP}, {OW0}")
        I("s_cbranch_scc1 L_R4A")
        I(f"s_waitcnt vmcnt({KV})")
        L("L_R4A")
    I(f"s_waitcnt vmcnt({1 + OY + KV})")
    if TS: STN.pop()
    stamp(1)
    YM = opt("ym", 1)
    rank_a(range(4), plain=not YM)
    I(f"s_waitcnt vmcnt({OY + KV})")
    if MG and YM:
        rank_b(range(2))
        again(range(4), 3, "-1")
        rank_b(range(2, 4))
    else: rank_b(range(4))
    for i in range(4): place(i, 3 + i, "-1")
    L("L_B1")
    if BAL:
        k_ = max(i for i, l in enumerate(out) if l.strip() == "s_cbranch_execz L_B1")
        e_ = next(i for i in range(k_, len(out)) if out[i].strip() == "s_branch L_B1")
        del out[e_:len(out)-1]
        I("s_mov_b64 exec, -1")
    WL = opt("wl", 0)
    if not WL: w_loads()
    vTG = vS + 2
    def tagcalc():
        I(f"s_add_u32 s{sK}, s{sK}, {KINC:#x}")
        I(f"v_lshlrev_b32 v{vTG}, v{vcS}, s{sK}")
        I(f"v_and_b32 v{u(1)}, 4, v{lane}")
        I(f"v_mul_u32_u24 v{u(1)}, {37 << 15}, v{u(1)}")
        I(f"v_lshl_add_u32 v{vTG}, v{u(1)}, 8, v{vTG}")
        I(f"v_and_b32 v{vTG}, 0xfe000000, v{vTG}")
    if not KV: tagcalc()
    vTH = vS + 3
    I(f"v_and_b32 v{vTH}, 7, v{lane}")
    I(f"v_mul_u32_u24 v{vTH}, 33, v{vTH}")
    I(f"v_add_u32 v{vTH}, {33*CAP}, v{vTH}")
    if not TW: I(f"v_lshlrev_b32 v{lo2}, 2, v{ha}")
    I(f"s_mov_b32 s{cM}, 0x1000000")
    I("s_waitcnt lgkmcnt(0)")
    I("s_barrier")
    stamp(2)
    vO, vHS = vQ, u(4)
    I(f"ds_read_b128 {rr(vHS,4)}, v{l16} offset:{HIST1}")
    vHD = vR + 8
    for i in range(4):
        if TW:
            I(f"ds_read_b32 v{vHD+i}, v{(lo2, l2b)[i>>1]} offset:{HIST1 + 32*(i&1)}")
            I(f"ds_read_b128 {rr(vO+4*i,4)}, v{(lo, lob)[i>>1]} offset:{8*LROW*(i&1)}")
            continue
        I(f"ds_read_b32 v{vHD+i}, v{lo2} offset:{HIST1 + 256*i}")
        I(f"ds_read_b128 {rr(vO+4*i,4)}, v{lo} offset:{64*LROW*i}")
    if KV:
        I("s_waitcnt vmcnt(4)")
        I(f"v_readfirstlane_b32 s{sK}, v{vEA+1}")
    if TW:
        for h in range(2):
            I(f"s_mul_i32 s{sM+15+2*h}, s{sRG+h}, {RS}")
            I(f"s_add_u32 s{sM+16+2*h}, s{sM+15+2*h}, {8*RS}")
    else:
        for i in range(1, 4): I(f"s_mov_b32 s{sM+15+i}, {64*RS*i}")
    if KV: tagcalc()
    I("s_waitcnt lgkmcnt(8)")
    I(f"v_max3_u32 v{u(0)}, v{vHS}, v{vHS+1}, v{vHS+2}")
    I(f"v_max_u32 v{u(0)}, v{u(0)}, v{vHS+3}")
    I(f"v_cmp_lt_u32 vcc, {33*(CAP+8)}, v{u(0)}")
    I("s_cbranch_vccnz L_POVF")
    L("L_POUT")
    for i in range(4):
        I(f"s_waitcnt lgkmcnt({7 - 2*i})")
        I(f"v_sub_u32 v{vHD+i}, v{vTH}, v{vHD+i}")
        I(f"v_and_or_b32 v{vHD+i}, v{vHD+i}, s{cM}, v{vTG}")
        I(f"s_waitcnt lgkmcnt({6 - 2*i})")
        I(f"v_or_b32 v{vO+4*i+3}, v{vO+4*i+3}, v{vHD+i}")
        I(f"buffer_store_dwordx4 {rr(vO+4*i,4)}, v{go}, {sq(sCEL)}, {f's{sM+15+i}' if i or TW else '0'} offen{pol(STP)}")
    stamp(3)
    if WL: w_loads()
    if "c" in opt("tsx", ""): I("s_waitcnt vmcnt(0)")
    stamp("c0")
    t = vACC + 32
    I(f"s_mov_b32 s{sA}, {f2u(-LOG2E):#x}")
    I(f"s_mov_b32 s{sBt}, s{sA}")
    I(f"s_mov_b32 s{cM}, 0x05040100")
    I(f"s_mov_b32 s{cP}, 0x07060302")
    def wscaled(src, off):
        for d in range(4):
            I(f"v_lshlrev_b32 v{t+2*d}, 16, v{src+d}")
            I(f"v_and_b32 v{t+2*d+1}, 0xffff0000, v{src+d}")
        for d in range(4): I(f"v_pk_mul_f32 {rr(t+2*d,2)}, {rr(t+2*d,2)}, {sp(sA)}")
        for n in range(4): I(f"v_cvt_pk_bf16_f32 v{t+8+n}, v{t+n}, v{t+4+n}")
        wput(t + 8, off)
    def wplain(src, off, tt):
        for n in range(4): I(f"v_perm_b32 v{tt+n}, v{src+2+(n>>1)}, v{src+(n>>1)}, s{cP if n & 1 else cM}")
        wput(tt, off)
    def wput(r, off):
        a = wl
        if off:
            a = r + 4
            I(f"v_add_u32 v{a}, {off}, v{wl}")
        I(f"ds_write2_b32 v{a}, v{r}, v{r+1} offset0:0 offset1:8")
        I(f"ds_write2_b32 v{a}, v{r+2}, v{r+3} offset0:16 offset1:24")
    I(f"s_waitcnt vmcnt({0 if WL else 4})")
    if PFP == 0: x_prefetch()
    stamp("b4")
    wplain(vRW + 8, WAI - WBI, t + 16)
    wscaled(vRW, 0)
    wplain(vRW + 4, WVI - WBI, t + 24)
    wplain(vRW + 12, WUI - WBI, t + 16)
    I(f"s_cmp_ge_u32 s{sWP}, 2")
    I("s_cbranch_scc1 L_NOWC")
    wscaled(vEO, WCI - WBI)
    L("L_NOWC")
    I(f"s_mul_i32 s{sTM}, s{sB}, {RS}")
    I(f"s_add_u32 s{sTM}, s{sTM}, {WS_CELL}")
    srd(sCEL, pWS, 256*128, f"s{sTM}")
    I(f"s_add_u32 s{sTM}, s{sTM}, {XOFF}")
    srd(sD2, pWS, 256*128, f"s{sTM}")
    vC, vEB = vACC + 32, vACC + 60
    pa = vT16
    def goff(d, k):
        if not TW: return I(f"s_movk_i32 s{d}, {8192*k}")
        I(f"s_sub_u32 s{d}, {64*k + 63}, s{sB}")
        I(f"s_and_b32 s{d}, s{d}, 0xc0")
        I(f"s_lshl_b32 s{d}, s{d}, 7")
    for k in range(4): goff(sCI + k, k)
    def poll_load(i):
        so = f"s{sCI+i}"
        I(f"buffer_load_dwordx4 {rr(vC+4*i,4)}, v{pa}, {sq(sCEL)}, {so} offen sc1")
    I("s_waitcnt lgkmcnt(0)")
    I("s_barrier")
    stamp(4)
    def ppoint(k):
        for i in range(4):
            if TW and int(TW[i]) == k: poll_load(i)
    ppoint(0)
    if WL == 1:
        for i in range(4): poll_load(i)
    if PFP == 1: x_prefetch()
    if OLP == 0: own_loads()
    vWA = vACC
    I(f"v_add_u32 v{wal}, {WBI}, v{wal}")
    def trw(reg, img):
        return [f"ds_read_b64_tr_b16 {rr(reg+8*n+4*s+2*uu,2)}, v{wal} offset:{img + (32*s + 8*uu)*WR + 32*n}"
                for n in range(4) for s in range(2) for uu in range(2)]
    tw = trw(vWB, 0) + trw(vWV, WVI - WBI)
    for x_ in tw[:14]: I(x_)
    prefill(vCA)
    ppoint(1)
    if WL == 2:
        for i in range(4): poll_load(i)
    for x_ in tw[14:24]: I(x_)
    nxt = 24
    I(f"v_mov_b32 v{u(4)}, v{wal}")
    I("s_mov_b32 exec_lo, 0")
    I(f"v_subrev_u32 v{u(4)}, {16*WR}, v{wal}")
    I("s_mov_b32 exec_lo, -1")
    tw += [f"ds_read_b64_tr_b16 {rr(vCA+16+4*n+2*uu,2)}, v{u(4)} offset:{WCI - WBI + 8*uu*WR + 32*n}" for n in range(4) for uu in range(2)]
    vEM, vET = vEO, vACC + 56
    ownn, owna, mapa = vEO + 1, vEO + 2, vEO + 3
    I("s_waitcnt lgkmcnt(4)")
    for x_ in tw[nxt:]: I(x_)
    I(f"v_add_u32 v{wal}, {WAI - WBI}, v{wal}")
    ppoint(2)
    vFF = vEO + 4
    vMU = vR + 8
    lo0, hi0, lo1, hi1 = sWS0, sWS1, sB0E, sSH
    def late_setup():
        I(f"v_and_b32 v{vCH}, 1, v{lane}")
        I(f"v_lshlrev_b32 v{vCH}, 4, v{vCH}")
        I(f"v_mov_b32 v{vONE}, 0x3f80")
        I(f"v_and_b32 v{vcEO}, 16, v{lane}")
        I(f"v_and_b32 v{u(6)}, 15, v{lane}")
        I(f"v_lshl_add_u32 v{u(6)}, v{u(6)}, 5, s{sES}")
        I("s_mov_b32 exec_hi, 0")
        I(f"v_add_u32 v{vcEO}, v{vcEO}, v{u(6)}")
        I("s_mov_b32 exec_hi, -1")
        I(f"v_and_b32 v{u(6)}, 3, v{lane}")
        I(f"v_bfe_u32 v{u(8)}, v{lane}, 2, 2")
        I(f"v_and_b32 v{u(9)}, 48, v{lane}")
        I(f"v_lshl_add_u32 v{u(10)}, v{u(8)}, 7, v{u(9)}")
        I(f"v_mul_u32_u24 v{vAX}, {XI}, v{u(6)}")
        I(f"v_add3_u32 v{vAX}, v{vAX}, v{u(10)}, s{sSTG}")
        listaddr(u(6))
        I(f"v_mul_u32_u24 v{vEB+3}, {CH}, v{ha}")
        for i in range(4):
            if not TW:
                I(f"v_add_u32 v{vEB+i}, {64*i*CH}, v{vEB+3}"); continue
            I(f"s_lshr_b32 s10, s{sCI+i}, 7")
            I(f"s_mul_i32 s10, s10, {CH}")
            I(f"v_add_u32 v{vEB+i}, s10, v{vEB+3}")
        I(f"s_mov_b32 s{sEM}, {EMASK:#x}")
        I(f"s_mov_b32 s{sEM+1}, {EMASK:#x}")
        vFF = vEO + 4
        I(f"v_mov_b32 v{vFF}, 0xfffff")
        I(f"v_mov_b32 v{vEM}, 0")
        I(f"v_add_lshl_u32 v{u(3)}, v{pa}, v{vCP}, 16")
        for i in range(4):
            I(f"v_add_u32 v{vET+i}, {(EARLY + 8192*i) << 16:#x}, v{u(3)}")
            I(f"v_cndmask_b32 v{vET+i}, 0, v{vET+i}, {sp(sEM)}")
        I(f"v_mov_b32 v{one}, 4")
        I(f"v_and_b32 v{ownn}, 31, v{lane}")
        I(f"v_add_lshl_u32 v{mapa}, v{ownn}, s{sWIN}, 2")
        I(f"v_lshrrev_b32 v{u(3)}, 5, v{lane}")
        I(f"v_lshl_add_u32 v{owna}, v{u(3)}, 11, v{mapa}")
        I(f"v_add_u32 v{mapa}, {MAP}, v{mapa}")
        I(f"v_lshlrev_b32 v{u(3)}, 2, v{lane}")
        I(f"v_subrev_u32 v{u(3)}, s{sWIN}, v{u(3)}")
        I("s_mov_b32 s10, 0x10000")
        for i in range(4):
            I(f"v_add_u32 v{vMU+i}, {i}, v{u(3)}")
            I(f"v_and_or_b32 v{vMU+i}, v{vMU+i}, s10, 1")
        I(f"s_movk_i32 s{sFM}, 0xffc")
        I(f"s_movk_i32 s{sSKIP}, {CAP+8}")
        I(f"s_mov_b32 s{sXT}, 0")
        I(f"s_mov_b32 s{sSP}, 0")
        I(f"s_mov_b32 s{sT}, 0x1ffffff")
        I(f"s_mov_b32 s{sN}, 0xffff")
        lo0, hi0, lo1, hi1 = sWS0, sWS1, sB0E, sSH
        I(f"s_mul_i32 s10, s{sW}, 49")
        I(f"s_sub_i32 s{lo0}, s10, 6")
        I(f"s_ashr_i32 s{lo0}, s{lo0}, 1")
        I(f"s_add_i32 s{hi0}, s10, 7")
        I(f"s_ashr_i32 s{hi0}, s{hi0}, 1")
        I(f"s_add_i32 s{lo1}, s10, 43")
        I(f"s_ashr_i32 s{lo1}, s{lo1}, 1")
        I(f"s_add_i32 s{hi1}, s{lo0}, 31")
        I(f"s_cmp_eq_u32 s{sW}, 7")
        I(f"s_cselect_b32 s{lo1}, {BN}, s{lo1}")
        I(f"s_cselect_b32 s{hi1}, {BN}, s{hi1}")
        for r_ in (hi0, lo1, hi1): I(f"s_sub_i32 s{r_}, s{r_}, s{sWIN}")
    LS = opt("ls", 0)
    if LS == 0: late_setup()
    stamp("b0")
    if opt("pw", 1) and not WL: I(f"s_waitcnt vmcnt({sum(c != '3' for c in TW)})")
    stamp("b1")
    if opt("pbar", 0): I("s_barrier")
    if TW: ppoint(3)
    elif WL in (0, 3):
        for i in range(4): poll_load(i)
    if OLP == 1: own_loads()
    if LS == 1: late_setup()
    PY = 4 if OLP == 1 else 0
    I(f"v_max3_u32 v{u(0)}, v{vRK1}, v{vRK1+1}, v{vRK1+2}")
    I(f"v_max3_u32 v{u(1)}, v{vRK1+3}, v{vRK1+4}, v{vRK1+5}")
    I(f"v_max3_u32 v{u(0)}, v{u(0)}, v{vRK1+6}, v{vRK1+7}")
    I(f"v_max_u32 v{u(0)}, v{u(0)}, v{u(1)}")
    I(f"v_cmp_le_u32 vcc, {33*CAP}, v{u(0)}")
    I("s_cbranch_vccz L_PEXTR")
    q = vCA
    if TS: I(f"v_writelane_b32 v{vTS}, 1, 61")
    I(f"v_mov_b32 v{q+1}, s{sK}")
    I(f"s_lshl_b32 s{sTM}, s2, 7")
    I(f"s_add_u32 s{sTM}, s{sTM}, {WS_CELL + XOFF}")
    for i in range(NR):
        I(f"v_subrev_u32 v{q+4}, {33*CAP}, v{vRK1+i}")
        I(f"v_cmpx_gt_u32 vcc, {33*8}, v{q+4}")
        I(f"s_cbranch_execz L_PE{i}")
        I(f"v_mov_b32 v{q}, v{vSR+i}")
        I(f"v_mov_b32 v{q+2}, v{idr(i)}")
        I(f"v_bfe_u32 v{q+4}, v{vRK1+i}, 5, 3")
        I(f"v_lshlrev_b32 v{q+4}, 4, v{q+4}")
        I(f"v_mad_u32_u24 v{q+4}, v{vBK+i}, s{cR}, v{q+4}")
        I(f"buffer_store_dwordx4 {rr(q,4)}, v{q+4}, {sq(sWS)}, s{sTM} offen sc1")
        L(f"L_PE{i}")
        I("s_mov_b64 exec, -1")
    L("L_PEXTR")
    stamp(5)
    vA, vRK, vR1 = vACC, vACC + 16, vQ
    mk = lambda i, j: sM + 2*(4*i + j)
    def rec_ops(d, x, byte, eb, a, r1):
        return [f"v_add_u32_sdwa v{r1}, v{x}, v{eb} {SDW} src0_sel:BYTE_{byte} src1_sel:DWORD",
                f"v_lshrrev_b32 v{u(1)}, 28, v{d}",
                f"v_lshl_add_u32 v{r1}, v{u(1)}, 8, v{r1}",
                f"v_and_b32 v{u(1)}, 60, v{a}",
                f"v_and_b32 v{d}, 0xffff, v{d}",
                f"v_lshl_or_b32 v{d}, v{u(1)}, 19, v{d}"]
    def spin():
        I(f"s_add_u32 s{sSP}, s{sSP}, 1")
        I(f"s_cmp_gt_u32 s{sSP}, {opt('spin', 200000)}")
        I("s_cbranch_scc1 L_END")
        if opt("slp", 1): I(f"s_sleep {opt('slp', 1)}")
    xg = vCA
    def xload(tag):
        for i in range(4):
            I(f"s_mov_b64 exec, {sp(mk(i,3))}")
            I(f"s_cbranch_execz L_XL{tag}{i}")
            goff(10, i)
            I(f"buffer_load_dwordx4 {rr(xg+4*i,4)}, v{pa}, {sq(sD2)}, s10 offen sc1")
            L(f"L_XL{tag}{i}")
        I("s_mov_b64 exec, -1")
    for i in range(4):
        c_ = vC + 4*i
        L(f"L_PW{i}")
        I(f"s_waitcnt vmcnt({3 - i + PY})")
        I(f"v_xor_b32 v{u(0)}, v{c_+3}, v{vTG}")
        for j in range(3): I(f"v_and_b32_sdwa v{vA+4*i+j}, v{c_+j}, s{sFM} {SDW} src0_sel:WORD_1 src1_sel:DWORD")
        I(f"v_cmp_lt_u32 vcc, s{sT}, v{u(0)}")
        for j in range(3): I(f"v_cmp_ne_u32 {sp(mk(i,j))}, 0, v{c_+j}")
        I(f"s_cbranch_vccnz L_RT{i}")
        if i == 3: stamp(6)
        for j in range(3):
            I(f"s_mov_b64 exec, {sp(mk(i,j))}")
            I(f"ds_add_rtn_u32 v{vRK+4*i+j}, v{vA+4*i+j}, v{one} offset:{HIST}")
        I("s_mov_b64 exec, -1")
        I(f"v_or_b32 v{vEM}, v{vEM}, v{c_+1}")
        if i == 3:
            I(f"v_or3_b32 v{u(2)}, v{vC+3}, v{vC+7}, v{vC+11}")
            I(f"v_or_b32 v{u(2)}, v{u(2)}, v{vC+15}")
            I(f"v_and_b32 v{u(2)}, 0x1000000, v{u(2)}")
            I(f"v_cmp_ne_u32 vcc, 0, v{u(2)}")
            I("s_cbranch_vccz L_XT1R")
            def xt1():
                if TS: I(f"v_writelane_b32 v{vTS}, 1, 62")
                for i in range(4):
                    I(f"v_and_b32 v{u(2)}, 0x1000000, v{vC+4*i+3}")
                    I(f"v_cmp_ne_u32 {sp(mk(i,3))}, 0, v{u(2)}")
                    I(f"s_bcnt1_i32_b64 s10, {sp(mk(i,3))}")
                    I(f"s_lshl2_add_u32 s{sXT}, s10, s{sXT}")
                xload("a")
                I(f"v_and_b32 v{u(2)}, 0x10000, v{vEM}")
                I(f"v_mov_b32 v{u(3)}, {FLAG}")
                I(f"v_cmpx_ne_u32 vcc, 0, v{u(2)}")
                I(f"ds_write_b32 v{u(3)}, v{one} offset:4")
                I("s_mov_b64 exec, 1")
                I(f"v_mov_b32 v{u(2)}, s{sXT}")
                I(f"ds_add_u32 v{u(3)}, v{u(2)} offset:8")
                I("s_mov_b64 exec, -1")
            xt1()
            L("L_XT1R")
        ro = [rec_ops(c_+j, c_+3, j, vEB+i, vA+4*i+j, vR1+4*i+j) for j in range(3)]
        e_ = vR1 + 4*i + 3
        put(ro[0])
        if JE:
            I(f"v_cndmask_b32 v{u(0)}, v{vFF}, v{vR1+4*i}, {sp(mk(i,0))}")
            I(f"v_max_u32 v{vR1+4*i}, v{vR1+4*i}, v{vET+i}")
        put(ro[1])
        if JE:
            I(f"v_mov_b32_dpp v{u(2)}, v{u(0)} quad_perm:[2,2,3,3] row_mask:0xf bank_mask:0xf")
            I(f"v_mov_b32_dpp v{e_}, v{u(0)} quad_perm:[0,0,1,1] row_mask:0xf bank_mask:0xf")
        if i < 3: put(ro[2])
        else:
            put(ro[2][:3])
            fill = [x.replace(f"v{u(1)}", f"v{vQD+3}") for x in ro[2][3:]]
        if JE: I(f"v_mov_b32_dpp v{e_}, v{u(2)} row_shr:4 row_mask:0xf bank_mask:0xa")
    I(f"v_mov_b32 v{u(9)}, {FLAG}")
    if OLP == 2: own_loads()
    if PFP == 2: x_prefetch()
    I("s_waitcnt lgkmcnt(0)")
    stamp("d0")
    I("s_barrier")
    stamp(7)
    def early(i):
        if not JE: return
        I(f"s_lshl_b32 m0, s{sWP}, 10")
        I(f"v_mov_b32 v{vEI}, v{vR1+4*i+3}")
        I(f"s_add_u32 m0, m0, {EARLY + 8192*i}")
        if JE < 4:
            I(f"s_mov_b32 exec_lo, {((1 << 2*JE) - 1) * 0x01010101:#x}")
            I("s_mov_b32 exec_hi, exec_lo")
        else: I("s_nop 0")
        I(f"buffer_load_dwordx4 {rr(vEI,2)}, {sq(sEP)}, 0 idxen offen{pol(opt('eep', ''))} lds")
        if JE < 4: I("s_mov_b64 exec, -1")
    EPOS = opt("epos", "0134")
    def epoint(k):
        for i in range(4):
            if int(EPOS[i]) == k: early(i)
    c, p, tot, sc = u(0), u(4), u(8), u(9)
    hh = vX
    own, to2, ex, z_, eh, el = u(10), u(11), u(12), u(13), u(14), u(15)
    SD = f"{SDW} src0_sel:WORD_0 src1_sel:WORD_0"
    HL = f"{SDW} src0_sel:WORD_0 src1_sel:WORD_1"
    I(f"ds_read_u16 v{own}, v{owna} offset:{HIST}")
    I(f"ds_read_u16 v{to2}, v{owna} offset:{HIST + 1024}")
    for ph in range(4):
        I(f"ds_read_b128 {rr(hh+4*ph,4)}, v{l16} offset:{HIST + 1024*ph}")
    I(f"ds_read_b32 v{vQD}, v{sc} offset:8")
    if OLP == 4: own_loads()
    epoint(0)
    I("s_cmp_lg_u32 s2, 0")
    I("s_cbranch_scc1 L_NOK")
    I(f"v_mov_b32 v{vQD+1}, s{sK}")
    I(f"v_mov_b32 v{vQD+2}, 0")
    I(f"buffer_store_dword v{vQD+1}, v{vQD+2}, {sq(sWS)}, 0 offen sc1")
    L("L_NOK")
    I("s_waitcnt lgkmcnt(5)")
    I(f"v_lshl_or_b32 v{own}, v{to2}, 16, v{own}")
    I(f"v_mov_b32 v{to2}, v{own}")
    I("s_waitcnt lgkmcnt(0)")
    stamp("d1")
    f2 = []
    for i in range(4):
        f2 += [f"v_add_u32_sdwa v{c+i}, v{hh+i}, v{hh+4+i} {SD}", f"v_add_u32_sdwa v{p+i}, v{hh+8+i}, v{hh+12+i} {SD}"]
    f2 += [f"v_add_u32 v{c+i}, v{c+i}, v{p+i}" for i in range(4)]
    wave_scan(to2, f2, half=True)
    put(f2)
    I(f"v_mul_u32_u24 v{tot}, v{c}, v{vMU}")
    for i in range(1, 4): I(f"v_mad_u32_u24 v{tot}, v{c+i}, v{vMU+i}, v{tot}")
    f2 = [f"v_sub_u32 v{ex}, v{to2}, v{own}", f"v_add_u32_sdwa v{eh}, v{to2}, v{to2} {HL}",
          f"v_add_u32_sdwa v{z_}, v{ex}, v{ex} {HL}", f"v_add_u32_sdwa v{el}, v{own}, v{own} {HL}",
          fill.pop(0), f"v_readfirstlane_b32 s{sMORE}, v{vQD}",
          f"v_permlane32_swap_b32 v{z_}, v{eh}", f"v_cndmask_b32 v{el}, 0, v{el}, {sp(sJ3)}",
          f"v_add_u32 v{z_}, v{z_}, v{eh}", fill.pop(0),
          f"v_add_u32 v{eh}, v{z_}, v{el}", fill.pop(0)]
    I(f"s_mov_b32 s{sJ3}, -1")
    I(f"s_mov_b32 s{sJ3+1}, 0")
    wave_scan(tot, f2)
    assert not f2
    stamp("d2")
    I(f"v_sub_u32_sdwa v{el}, v{eh}, v{own} {SDW} src0_sel:DWORD src1_sel:WORD_1")
    I(f"v_readlane_b32 s{sT}, v{tot}, 63")
    epoint(1)
    ASYM = opt("asym", 12)
    I(f"s_bfe_u32 s10, s{sT}, 0xe0002")
    I(f"s_lshr_b32 s{sT}, s{sT}, 16")
    I("s_lshr_b32 s11, s10, 1")
    I(f"s_add_u32 s11, s11, {4*ASYM}")
    I("s_and_b32 s11, s11, -128")
    I(f"s_lshr_b32 s{sF0}, s{sW}, 1")
    I(f"s_mul_i32 s{sF0}, s{sF0}, s10")
    I(f"s_sub_i32 s11, s11, {4*ASYM}")
    I(f"s_sub_i32 s{sF0}, s{sF0}, s{sT}")
    I(f"s_add_i32 s11, s11, s{sF0}")
    I(f"s_add_i32 s10, s10, s{sF0}")
    I(f"s_bitcmp1_b32 s{sW}, 0")
    I(f"s_cselect_b32 s{sEND}, s11, s{sF0}")
    I("s_cselect_b32 s10, s10, s11")
    I(f"v_cmp_gt_i32 vcc, s{sEND}, v{eh}")
    I(f"v_cmp_gt_i32 {sp(sTM)}, s10, v{eh}")
    f0, f1 = sWS0, sWS1
    I(f"s_bcnt1_i32_b32 s{f0}, vcc_lo")
    I(f"s_bcnt1_i32_b32 s10, s{sTM}")
    I(f"s_min_i32 s{f0}, s{f0}, s{hi0}")
    I(f"s_max_i32 s10, s10, s{lo1}")
    I(f"s_min_i32 s{f1}, s10, s{hi1}")
    stamp("d3")
    epoint(2)
    A01, A23, E01, E23, Z1 = sCI, sCUR, sR0, sCNT, sST
    I(f"v_readlane_b32 s{sT}, v{z_}, s{f0}")
    I(f"v_readlane_b32 s{Z1}, v{z_}, s{f1}")
    I(f"s_add_u32 s{sF0}, s{f0}, s{sWIN}")
    I(f"s_add_u32 s{sF1}, s{f1}, s{sWIN}")
    I(f"s_add_u32 s10, s{f0}, 32")
    I(f"s_add_u32 s11, s{f1}, 32")
    I(f"v_readlane_b32 s{A01}, v{ex}, s{f0}")
    I(f"v_readlane_b32 s{E01}, v{ex}, s{f1}")
    I(f"v_readlane_b32 s{A23}, v{ex}, s10")
    I(f"v_readlane_b32 s{E23}, v{ex}, s11")
    I(f"s_sub_u32 s{sEND}, s{Z1}, s{sT}")
    I(f"s_add_u32 s10, s{sEND}, 255")
    if opt("flr", 1):
        I(f"s_sub_i32 s11, s{f1}, 16")
        I(f"s_max_i32 s11, s11, s{f0}")
        I(f"v_readlane_b32 s11, v{z_}, s11")
        I(f"s_add_u32 vcc_lo, s{sEND}, 127")
        I(f"s_and_b32 vcc_hi, vcc_lo, 127")
        I(f"s_add_u32 vcc_hi, vcc_hi, s{sMORE}")
        I(f"s_cmp_lt_u32 vcc_hi, 55")
        I(f"s_cselect_b32 vcc_lo, vcc_lo, s10")
        I(f"s_sub_u32 s11, s11, s{sT}")
        I(f"s_add_u32 s11, s11, s{sMORE}")
        I(f"s_lshl_b32 s11, s11, 1")
        I(f"s_and_b32 vcc_lo, vcc_lo, -256")
        I(f"s_cmp_le_u32 s11, vcc_lo")
        I(f"s_cselect_b32 s10, vcc_lo, s10")
    I("s_lshr_b32 s10, s10, 8")
    I("s_lshl_b32 s10, s10, 7")
    I(f"s_sub_u32 s10, s10, s{sMORE}")
    I("s_max_i32 s10, s10, 0")
    I(f"s_add_u32 s{sT}, s{sT}, s10")
    I(f"s_add_u32 s10, s{f0}, 16")
    I(f"s_min_u32 s10, s10, s{f1}")
    I(f"s_sub_i32 s11, s{f1}, 16")
    inl, inh, mo = sTM, sTM + 2, sMSK
    I(f"v_cmp_ge_u32 {sp(inl)}, s{sT}, v{el}")
    I(f"v_cmp_ge_u32 {sp(inh)}, s{sT}, v{eh}")
    I(f"v_cmp_gt_i32 vcc, s10, v{ownn}")
    I(f"v_cmp_gt_i32 {sp(sA)}, s11, v{ownn}")
    I(f"v_cmp_le_u32 {sp(mo)}, s{f0}, v{ownn}")
    I(f"v_cmp_gt_u32 {sp(sJ3)}, s{f1}, v{ownn}")
    I(f"s_and_b64 {sp(inl)}, {sp(inl)}, vcc")
    I(f"s_and_b64 {sp(inh)}, {sp(inh)}, vcc")
    I(f"s_or_b64 {sp(inl)}, {sp(inl)}, {sp(sA)}")
    I(f"s_or_b64 {sp(inh)}, {sp(inh)}, {sp(sA)}")
    I(f"s_bcnt1_i32_b32 s{sB0E}, s{inl}")
    I(f"s_bcnt1_i32_b32 s10, s{inh}")
    I(f"s_bcnt1_i32_b32 s11, s{inl+1}")
    I(f"s_bcnt1_i32_b32 s{sSH}, s{inh+1}")
    I(f"v_readlane_b32 s{f0}, v{ex}, s{sB0E}")
    I(f"v_readlane_b32 s10, v{ex}, s10")
    I("s_add_u32 s11, s11, 32")
    I(f"s_add_u32 s{sT}, s{sSH}, 32")
    I(f"v_readlane_b32 s{f1}, v{ex}, s11")
    I(f"v_readlane_b32 s11, v{ex}, s{sT}")
    I(f"v_mov_b32 v{c}, s{sN}")
    I(f"v_cndmask_b32 v{c+1}, 0, v{c}, {sp(inl)}")
    I(f"v_cndmask_b32 v{c}, 0, v{c}, {sp(inh)}")
    I(f"s_and_b64 {sp(mo)}, {sp(mo)}, {sp(sJ3)}")
    Q01, Q23 = f0, f1
    I(f"s_pack_lh_b32_b16 s{Q01}, s{f0}, s10")
    I(f"s_pack_lh_b32_b16 s{Q23}, s{f1}, s11")
    I(f"v_lshl_or_b32 v{c}, v{c}, 16, v{c+1}")
    I(f"s_sub_u32 s{sT}, s{sL}, {R0 - BIAS}")
    I(f"s_pack_ll_b32_b16 s{sT}, s{sT}, s{sT}")
    def bases(lo01, lo23, hi01, hi23, d, keep=None):
        I(f"s_sub_u32 s10, s{hi01}, s{lo01}")
        I(f"s_sub_u32 s11, s{hi23}, s{lo23}")
        I(f"s_mul_i32 s10, s10, 0x10001")
        I(f"s_lshl_b32 vcc_lo, s10, 16")
        I(f"s_pack_hh_b32_b16 s10, s10, s10")
        I(f"s_lshl_b32 vcc_hi, s11, 16")
        I(f"s_add_u32 vcc_hi, vcc_hi, s10")
        if keep is not None:
            I(f"s_add_u32 s{keep}, vcc_hi, s11")
            I(f"s_lshr_b32 s{keep}, s{keep}, 16")
            I(f"s_sub_u32 s{sEND}, s{sEND}, s{keep}")
            I(f"s_cmp_gt_u32 s{sEND}, s{keep}")
            I(f"s_cselect_b32 s{SWP}, {LWB * 0x10001:#x}, 0")
            I(f"s_add_u32 s{sT}, s{sT}, s{SWP}")
        I(f"s_sub_u32 s10, s{sT}, s{lo01}")
        I(f"s_sub_u32 s11, s{sT}, s{lo23}")
        I("s_add_u32 s10, s10, vcc_lo")
        I("s_add_u32 s11, s11, vcc_hi")
        I(f"v_mov_b32 v{d}, s10")
        I(f"v_mov_b32 v{d+1}, s11")
    LEN0, SWP = sJ3, sJ3 + 1
    bases(A01, A23, Q01, Q23, p, LEN0)
    I(f"s_add_u32 s{sT}, s{sT}, {LWB * 0x10001:#x}")
    I(f"s_sub_u32 s{sT}, s{sT}, s{SWP}")
    I(f"s_sub_u32 s{sT}, s{sT}, s{SWP}")
    bases(Q01, Q23, E01, E23, p + 2)
    I(f"v_bfi_b32 v{p}, v{c}, v{p}, v{p+2}")
    I(f"v_bfi_b32 v{p+1}, v{c}, v{p+1}, v{p+3}")
    I(f"s_mov_b32 exec_hi, 0")
    I(f"v_mov_b32 v{p+1}, v{p}")
    I(f"s_mov_b64 exec, {sp(mo)}")
    I(f"v_add_u32 v{ex}, v{ex}, v{p+1}")
    assert LWB & 0x80
    I(f"s_bfe_u32 s10, s{SWP}, 0x10007")
    I(f"s_lshl1_add_u32 s10, s{sW}, s10")
    I("s_lshl_b32 s10, s10, 2")
    I(f"v_cndmask_b32 v{c}, 4, 0, {sp(inl)}")
    I(f"ds_write_b16 v{owna}, v{ex} offset:{HIST + 2}")
    I(f"ds_write_b16_d16_hi v{owna}, v{ex} offset:{HIST + 1024 + 2}")
    I("s_mov_b32 exec_hi, 0")
    I(f"v_xor_b32 v{c}, s10, v{c}")
    I(f"ds_write_b32 v{mapa}, v{c}")
    I("s_mov_b64 exec, -1")
    stamp("d5")
    I(f"s_min_u32 s10, s{sEND}, s{LEN0}")
    I(f"s_max_u32 s{LEN0}, s{sEND}, s{LEN0}")
    I(f"s_mov_b32 s{sEND}, s10")
    I(f"s_add_u32 s10, s{LEN0}, s{sMORE}")
    I(f"s_mul_i32 s11, s{Z1}, {LWB * 65536 // BIAS}")
    I("s_lshr_b32 s11, s11, 16")
    I("s_max_u32 s10, s10, s11")
    I(f"s_cmp_lt_u32 s10, {LWB}")
    I("s_cbranch_scc1 L_LFIT")
    I(f"ds_write_b32 v{sc}, v{one}")
    L("L_LFIT")
    I(f"s_cmp_eq_u32 s{sMORE}, 0")
    I("s_cbranch_scc1 L_XCNR")
    I(f"s_sub_u32 s10, s{sL}, {R0 - BIAS}")
    I(f"s_add_u32 s11, s10, s{LEN0}")
    I(f"v_mov_b32 v{u(0)}, s11")
    I(f"s_add_u32 s11, s10, s{sEND}")
    I(f"s_add_u32 s11, s11, {LWB}")
    I(f"v_mov_b32 v{u(1)}, s11")
    I(f"s_lshl_b32 s10, s{sW}, 3")
    I(f"v_mov_b32 v{u(2)}, s10")
    I(f"ds_write_b64 v{u(2)}, {rr(u(0),2)} offset:{CNT}")
    L("L_XCNR")
    epoint(3)
    put(fill)
    PA6 = opt("pa6", 3)
    if PA6: I(f"s_waitcnt vmcnt({sum(c != '4' for c in EPOS) if JE else 0})")
    I("s_waitcnt lgkmcnt(0)")
    stamp(8)
    I("s_barrier")
    stamp(9)
    I(f"ds_read_b64 {rr(u(14),2)}, v{sc}")
    for i in range(4):
        for j in range(3):
            I(f"ds_read_u16 v{vA+4*i+j}, v{vA+4*i+j} offset:{HIST + 2}")
    epoint(4)
    def ntiles(l0, l1):
        I(f"s_add_u32 s10, s{l0}, 127")
        I("s_lshr_b32 s10, s10, 7")
        I("s_lshl1_add_u32 s10, s10, -1")
        I(f"s_add_u32 s11, s{l1}, 127")
        I("s_lshr_b32 s11, s11, 6")
        I("s_and_b32 s11, s11, -2")
        I(f"s_max_i32 s{sN}, s10, s11")
        I(f"s_cselect_b32 s10, s{l0}, s{l1}")
        I("s_sub_u32 s10, s10, 1")
        I(f"s_andn2_b32 s{sHF}, 64, s10")
    I(f"s_add_u32 s{sB0E}, s{sB0E}, s{sWIN}")
    I(f"s_add_u32 s11, s{sSH}, s{sWIN}")
    I(f"s_and_b32 s10, s11, 15")
    I(f"s_cmp_lt_u32 s11, s{sB0E}")
    I(f"s_cselect_b32 s{sSH}, s10, 16")
    I(f"s_cmp_lg_u32 s{SWP}, 0")
    I(f"s_cselect_b32 s{sWS1}, s{sF0}, s11")
    I(f"s_cselect_b32 s{sWIN}, s{sF0}, s{sB0E}")
    I(f"s_cselect_b32 s{sF0}, s11, s{sF0}")
    I(f"s_cselect_b32 s{sB0E}, s{sF1}, s{sB0E}")
    I(f"s_cselect_b32 s{sF1}, s11, s{sF1}")
    I(f"s_min_u32 s{sWS0}, s{sF0}, 192")
    I(f"s_min_u32 s{sWS1}, s{sWS1}, 192")
    I(f"s_mov_b32 s{sST}, s{sMORE}")
    I("s_waitcnt lgkmcnt(12)")
    I(f"v_cmp_ne_u32 vcc, 0, v{u(14)}")
    I(f"v_readfirstlane_b32 s{sMORE}, v{u(15)}")
    I("s_cbranch_vccnz L_OVF")
    for i in range(4):
        for j in range(3):
            s_ = 4*i + j
            if j == 0: I("s_waitcnt lgkmcnt(9)")
            I(f"s_mov_b64 exec, {sp(mk(i,j))}")
            I(f"v_add_u32 v{vA+s_}, v{vA+s_}, v{vRK+s_}")
            I(f"ds_write2st64_b32 v{vA+s_}, v{vC+s_}, v{vR1+s_} {W2}")
    I("s_mov_b64 exec, -1")
    ntiles(LEN0, sEND)
    stamp("d6")
    sO0, sO1, sNT, sOK, sCM = sOUT, sD2, sM + 8, sM + 9, sM + 12
    def epi_prep(t0, t1):
        I(f"s_lshl_b32 s{sNT}, s{sW}, 7")
        I(f"s_add_u32 s{sNT}, s{sNT}, {NT}")
        I(f"v_mov_b32 v{t0}, s{sWS0}")
        I("s_mov_b32 exec_lo, 0xffff0000")
        I(f"v_mov_b32 v{t0}, s{sWS1}")
        I("s_mov_b64 exec, 0xffffffff") if False else None
        I("s_mov_b32 exec_lo, -1")
        I("s_mov_b32 exec_hi, 0")
        I(f"v_sub_u32 v{t1}, v{lane}, v{t0}")
        I(f"v_and_b32 v{t1}, 15, v{t1}")
        I(f"v_add_lshl_u32 v{t1}, v{t1}, v{t0}, 5")
        I(f"v_lshl_add_u32 v{t0}, v{lane}, 2, s{sNT}")
        I(f"ds_write_b32 v{t0}, v{t1}")
        I("s_mov_b32 exec_hi, -1")
        I(f"s_mul_i32 s10, s{sB}, {BN}")
        for d, lo_, hi_, k in ((sO1, sWIN, sF1, 1), (sO0, sF0, sB0E, 0)):
            I(f"s_add_u32 s11, s10, s{lo_}")
            I(f"s_add_u32 s{d+2}, s10, s{hi_}")
            I(f"s_min_u32 s11, s11, {N}")
            I(f"s_min_u32 s{d+2}, s{d+2}, {N}")
            I(f"s_sub_u32 s{d+2}, s{d+2}, s11")
            I("s_lshl_b32 s11, s11, 7")
            I(f"s_lshl_b32 s{d+2}, s{d+2}, 7")
            I(f"s_add_u32 s{d}, s{sOUT}, s11")
            I(f"s_addc_u32 s{d+1}, s{sOUT+1}, 0")
            I(f"s_mul_i32 s{sOK+k}, s{lo_}, -128")
        I(f"s_and_b32 s10, s{sSH}, 12")
        I("s_lshl_b32 s10, s10, 2")
        I(f"s_bfm_b64 {sp(sCM)}, 16, s10")
    L("L_CA")
    for x_ in trw(vWA, 0): I(x_)
    I(f"s_cmp_eq_u32 s{sXT}, 0")
    I("s_cbranch_scc1 L_XT2R")
    I(f"s_waitcnt vmcnt({(4 if JE else 0) + (4 if OLP in (2, 4) else 0)})")
    L("L_XT2")
    I(f"s_mov_b64 {sp(sTM)}, 0")
    for i in range(4):
        I(f"v_cmp_ne_u32 vcc, s{sK}, v{xg+4*i+1}")
        I(f"s_and_b64 vcc, vcc, {sp(mk(i,3))}")
        I(f"s_or_b64 {sp(sTM)}, {sp(sTM)}, vcc")
    I("s_cbranch_scc1 L_XT2B")
    I(f"s_cmp_eq_u32 s{sSKIP}, 0")
    I("s_cbranch_scc1 L_XT2R")
    for i in range(4):
        g_ = xg + 4*i
        I(f"s_mov_b64 exec, {sp(mk(i,3))}")
        I(f"s_cbranch_execz L_XS{i}")
        I(f"v_bfe_u32 v{g_+1}, v{g_}, 18, 8")
        I(f"v_lshlrev_b32 v{g_+1}, 2, v{g_+1}")
        I(f"v_add_u32 v{g_+3}, {MAP}, v{g_+1}")
        I(f"ds_read_b32 v{g_+3}, v{g_+3}")
        put(rec_ops(g_, g_+2, 0, vEB+i, g_+1, g_+2))
        I("s_waitcnt lgkmcnt(0)")
        I(f"ds_add_rtn_u32 v{g_+3}, v{g_+3}, v{one} offset:{CNT}")
        I("s_waitcnt lgkmcnt(0)")
        I(f"ds_write2st64_b32 v{g_+3}, v{g_}, v{g_+2} {W2}")
        L(f"L_XS{i}")
    I("s_mov_b64 exec, -1")
    L("L_XT2R")
    aw, al, ab = vEO, vEO + 1, vEO + 2
    zero16 = lambda d: f"v_mfma_f32_32x32x16_bf16 {rr(d,16)}, {rr(vS,4)}, {rr(vS,4)}, 0"
    def a_pre():
        I(f"s_lshl_b32 s{sTM}, s{sWS0}, 5")
        I(f"s_lshl_b32 s{sTM+1}, s{sWS1}, 5")
        I(f"s_mov_b32 vcc_lo, 0xff00ff00")
        I(f"s_mov_b32 vcc_hi, 0xff00ff00")
        I(f"v_mov_b32 v{aw}, s{sTM+1}")
        I(f"v_mov_b32 v{al}, s{sTM}")
        I(f"v_cndmask_b32 v{aw}, v{aw}, v{al}, vcc")
        I(f"v_and_b32 v{al}, 4, v{lane}")
        I(f"v_lshlrev_b32 v{al}, 6, v{al}")
        I(f"v_lshl_add_u32 v{al}, v{vcS}, 2, v{al}")
        I(f"v_sub_u32 v{al}, v{al}, v{aw}")
        I(f"v_and_b32 v{ab}, 48, v{lane}")
        I(f"s_movk_i32 s{sTM}, {(PL-32)//8}")
        I(f"v_mad_u32_u24 v{ab}, v{vcS}, s{sTM}, v{ab}")
        I(f"s_mov_b32 s{sTM}, {OWN}")
        I(f"v_add3_u32 v{ab}, v{ab}, v{aw}, s{sTM}")
        I(f"v_and_b32 v{aw}, 0x1ff, v{al}")
        I(f"v_add_u32 v{aw}, v{aw}, v{ab}")
        I(f"v_add_u32 v{al}, 0x80, v{al}")
        I(f"v_and_b32 v{al}, 0x1ff, v{al}")
        I(f"v_add_u32 v{al}, v{al}, v{ab}")
        for i in range(2): I(f"v_mov_b64 {rr(vS+2*i,2)}, 0")
        I(f"v_lshrrev_b32 v{u(0)}, 2, v{lane}")
        I(f"v_and_b32 v{u(0)}, 12, v{u(0)}")
        I(f"v_subrev_u32 v{u(0)}, s{sSH}, v{u(0)}")
        I(f"v_mov_b32 v{u(1)}, {f2u(1e-6):#x}")
        I(zero16(NUM(1,0)))
        for i in range(4): I(f"v_cmp_ne_u32 {sp(sM+16+2*i)}, {-i}, v{u(0)}")
        for i in range(4): I(f"v_cndmask_b32 v{DEN(1,0)+i}, 0, v{u(1)}, {sp(sM+16+2*i)}")
        for n in range(1, 4):
            for i in range(2): I(f"v_mov_b64 {rr(DEN(1,n)+2*i,2)}, {rr(DEN(1,0)+2*i,2)}")
    YL = opt("yl", 1) and PA6
    if not YL: a_pre()
    STAG = opt("stag", 4)
    def a_reads():
        for t_ in range(2):
            for s in range(2): I(f"ds_read_b128 {rr(vX+8*t_+4*s,4)}, v{(aw, al)[t_]} offset:{64*s}")
    def a_setup(part=3):
        k0 = len(out)
        I(f"s_mov_b32 s{sTM}, {f2u(-LOG2E):#x}")
        I(f"s_mov_b32 s{sTM+1}, s{sTM}")
        for t_ in range(2):
            for s in range(2):
                I(f"s_waitcnt lgkmcnt({3 - 2*t_ - s})")
                for n in range(4):
                    D = vQ + 8*n + 4*t_
                    I(m16(D, vX+8*t_+4*s, vWA+8*n+4*s, D if s else None))
        if STAG == 3:
            I(f"s_cmp_lt_u32 s{sWP}, 4")
            I("s_cbranch_scc1 L_HAD1")
            put(dma_tile())
            L("L_HAD1")
        I(f"s_mov_b32 s10, {f2u(1e-6):#x}")
        I("s_mov_b32 s11, s10")
        for i in range(8): I(f"v_mov_b64 {rr(DEN(0,0)+2*i,2)}, {sp(10)}")
        for i in range(16): I(f"v_pk_mul_f32 {rr(vQ+2*i,2)}, {rr(vQ+2*i,2)}, {sp(sTM)}")
        I(zero16(NUM(0,0)))
        for i in range(16): I(f"v_cvt_pk_bf16_f32 v{vCA+i}, v{vQ+2*i}, v{vQ+2*i+1}")
        for i in range(16): I(f"v_permlane32_swap_b32 v{vCA+16+i}, v{vCA+i}")
        cut_ = {1: None, 2: "v_mfma_f32_32x32x16", 3: "v_pk_mul"}[PA6] if PA6 else None
        if part != 3:
            k1 = next(i for i in range(k0, len(out)) if cut_ in out[i]) if cut_ else len(out)
            if part == 1: del out[k1:]
            else: del out[k0+2:k1]
    I(f"s_cmp_ge_u32 s{sWP}, 4")
    I("s_cbranch_scc1 L_EP0")
    if PA6:
        if YL: a_pre()
        a_reads(); a_setup(1)
    else: epi_prep(u(2), u(3))
    L("L_EP0")
    stamp("d7")
    I("s_waitcnt vmcnt(0) lgkmcnt(0)")
    stamp(10)
    I("s_barrier")
    def lens_from_cnt(t):
        I(f"s_lshl_b32 s10, s{sW}, 3")
        I(f"v_mov_b32 v{t}, s10")
        I(f"ds_read_b64 {rr(t,2)}, v{t} offset:{CNT}")
        I("s_waitcnt lgkmcnt(0)")
        I(f"v_readfirstlane_b32 s{sTM}, v{t}")
        I(f"v_readfirstlane_b32 s{sTM+1}, v{t+1}")
        I(f"s_sub_u32 s10, s{sL}, {R0 - BIAS}")
        I(f"s_sub_u32 s{sTM}, s{sTM}, s10")
        I(f"s_sub_u32 s{sTM+1}, s{sTM+1}, s10")
        I(f"s_sub_u32 s{sTM+1}, s{sTM+1}, {LWB}")
        ntiles(sTM, sTM + 1)
    I(f"ds_read_b128 {rr(vQD,4)}, v{vARX}")
    I(f"ds_read_b32 v{vEI}, v{vARE}")
    stamp(11)
    if PA6:
        I(f"s_cmp_ge_u32 s{sWP}, 4")
        I("s_cbranch_scc1 L_LATE0")
        I("s_waitcnt lgkmcnt(0)")
        put(dma_tile())
        a_setup(2)
        epi_prep(u(2), u(3))
        I("s_branch L_SET")
        L("L_LATE0")
        if YL: a_pre()
        a_reads(); a_setup()
        L("L_SET")
    else:
        for t_ in range(2):
            for s in range(2): I(f"ds_read_b128 {rr(vX+8*t_+4*s,4)}, v{(aw, al)[t_]} offset:{64*s}")
        I("s_waitcnt lgkmcnt(4)")
        if STAG != 2:
            I(f"s_cmp_ge_u32 s{sWP}, 4")
            I("s_cbranch_scc1 L_LATE0")
        put(dma_tile())
        L("L_LATE0")
        a_setup()
    I(f"s_mov_b32 s{sCI}, -1")
    I(f"s_mov_b64 {sp(sMSK)}, 0")
    I(f"s_mov_b32 s{sR0}, 0")
    I(f"s_mov_b32 s{sCNT}, 0")
    if STAG:
        I(f"s_cmp_lt_u32 s{sWP}, 4")
        I("s_cbranch_scc1 L_HAD0")
        if STAG == 1: put(dma_tile())
        epi_prep(u(2), u(3))
        if STAG == 4: put(dma_tile())
        L("L_HAD0")
    I(f"s_cmp_eq_u32 s{sST}, 0")
    I("s_cbranch_scc1 L_GO")
    lens_from_cnt(u(0))
    L("L_GO")
    for m in range(2): I(f"ds_read_u16 v{vEA+m}, v{vARO} offset:{64*m}")
    q1 = [f"ds_read_b128 {rr(vQD,4)}, v{vARX} offset:{LWB}", f"ds_read_b32 v{vEI}, v{vARE} offset:{LWB}"]
    if STAG != 5: put(q1)
    I(f"s_lshr_b32 s10, s{sW}, 1")
    I("s_lshl_b32 s10, s10, 9")
    I(f"s_add_u32 s10, s10, {PRG}")
    assert PRG % 32 == 0
    I(f"v_lshl_add_u32 v{vPA}, v{lane}, 3, s10")
    I(f"s_bitcmp1_b32 s{sW}, 0")
    I(f"s_cselect_b32 s{sSG}, -1, 1")
    I(f"s_mul_i32 s10, s{sSG}, {-(1 << (25 if F2 else 24)) & 0xffffffff:#x}")
    I("s_or_b32 s10, s10, 0xdddd")
    I(f"v_mov_b32 v{vIDX}, s10")
    I(f"s_max_i32 s10, s{sN}, 1")
    I("s_sub_u32 s10, s10, 1")
    I(f"s_mul_i32 s10, s{sSG}, s10")
    I("s_lshl_b32 s10, s10, 24")
    I(f"v_mov_b32 v{u(0)}, s10")
    I(f"ds_add_u32 v{vPA}, v{u(0)}")
    I(f"s_movk_i32 s{sINC}, 128")
    I(f"s_movk_i32 s{sINC+1}, 128")
    I(f"v_mov_b32 v{vC1}, 0")
    I("s_mov_b32 exec_hi, 0")
    I(f"v_add_u32 v{vC1}, 0x200, v{vcEO}")
    I("s_mov_b32 exec_hi, -1")
    I("s_waitcnt lgkmcnt(0)")
    put(eafix())
    if STAG == 5:
        I(f"s_cmp_lt_u32 s{sWP}, 4")
        I("s_cbranch_scc1 L_HAD2")
        I(f"s_cmp_lg_u32 s{sCI}, -1")
        I("s_cbranch_scc1 L_HAD2")
        put(dma_tile())
        L("L_HAD2")
        put(q1)
    stamp(12)
    I("s_waitcnt vmcnt(0)")
    stamp(13)
    cstamp(56)
    for m in range(2): I(f"ds_read_b128 {rr(vEO+4*m,4)}, v{vEA+m}")
    for m, s in ORD: I(xread(m, s))
    I(f"s_cmp_lt_i32 s{sN}, 1")
    I("s_cbranch_scc1 L_DONE")
    g = g_mfmas(vP, 0, 0)
    I("s_waitcnt lgkmcnt(4)")
    for x_ in g[:4]: I(x_)
    I("s_waitcnt lgkmcnt(0)")
    for x_ in g[4:]: I(x_)
    I(f"s_mov_b32 s{sT}, 1")
    I(f"s_cmp_eq_u32 s{sN}, 1")
    I("s_cbranch_scc1 L_LT0")
    put(dma_tile())
    for cp in ((1, 0) if FAIR else (0,)):
        sw = lambda par: [f"s_cmp_ge_i32 s{sRM}, {opt('fth', 1)}", f"s_cbranch_scc{1-cp} L_PB{par}{1-cp}", f"L_PB{par}{cp}:"] if FAIR and (par == 0 or not F2) else []
        body = phase(0, 0, cp) + sw(0) + phase(0, 1, cp) + [f"s_cmp_ge_u32 s{sT}, s{sN}", "s_cbranch_scc1 L_LT1"]
        body += phase(1, 0, cp) + sw(1) + phase(1, 1, cp) + [f"s_cmp_lt_u32 s{sT}, s{sN}", f"s_cbranch_scc1 L_LOOP{cp}"]
        check_body(body)
        DBG = opt("dbg", "")
        if "nodma" in DBG: body = [b for b in body if not b.startswith("buffer_load")]
        if "dropS" in DBG: body = [b for b in body if not b.startswith("v_smfmac")]
        if "halfrcp" in DBG: body = [b for b in body if not (b.startswith("v_rcp") and int(b.split("v")[-1]) & 1)]
        if "droppk" in DBG: body = [b for b in body if not b.startswith("v_pk_mul")]
        if "halfx" in DBG: body = [b for b in body if not (b.startswith("v_mfma") and (f"v[{vX+4}:" in b or f"v[{vX+12}:" in b))]
        if "nolds" in DBG: body = [b for b in body if not (b.startswith("ds_read_b128") and f"v{vAX}" in b)]
        if opt("al", 0): body = align8(body, opt("al", 0))
        emit(".p2align 6")
        if opt("sh4", 0): I("s_nop 0")
        L(f"L_LOOP{cp}")
        put(body)
        I("s_branch L_LT0")
    if opt("cpe", 0):
        I("s_branch L_LT0")
        for cp in ((1, 0) if FAIR else (0,)):
            for par in range(2):
                L(f"L_CE{par}{cp}")
                I(f"s_getpc_b64 {sp(sA)}")
                I(f"v_and_b32 v{vEI}, 0xfc, v{vPA}")
                I(f"v_lshlrev_b32 v{vEI}, 5, v{vEI}")
                I(f"global_load_dword v{vEI}, v{vEI}, {sp(sA)}")
                I(f"s_branch L_ND{par}{cp}")
    assert STAG
    e = lambda i: vCA + i
    xd = vWV
    ZR = [vP, vWV + 16]
    nd = lambda w, i: e(16 + 4*w + i)
    sO = [sO0, sO1]
    wu = [f"ds_read_b64_tr_b16 {rr(vWB+8*n+4*s+2*uu,2)}, v{e(1)} offset:{(32*s + 8*uu)*WR + 32*n}" for s in range(2) for n in range(4) for uu in range(2)]
    lid = [f"v_mbcnt_lo_u32_b32 v{lane}, -1, 0", f"v_mbcnt_hi_u32_b32 v{lane}, -1, v{lane}", f"v_and_b32 v{vcS}, 24, v{vPA}"]
    a1 = [f"v_and_b32 v{e(0)}, 48, v{lane}", f"v_and_b32 v{e(3)}, 15, v{lane}",
          f"v_add_u32 v{e(5)}, s{sNT}, v{e(0)}", f"v_lshl_add_u32 v{e(6)}, v{e(3)}, 2, s{sNT}"]
    a1 += [f"ds_read_b128 {rr(nd(w,0),4)}, v{e(5)} offset:{64*w}" for w in range(2)]
    a1 += [f"ds_read2_b32 {rr(e(8),2)}, v{e(6)} offset0:0 offset1:16",
           f"v_bfe_u32 v{e(1)}, v{lane}, 2, 3", f"v_lshrrev_b32 v{e(2)}, 5, v{lane}", f"v_lshl_add_u32 v{e(1)}, v{e(2)}, 4, v{e(1)}",
           f"v_mul_u32_u24 v{e(1)}, {WR}, v{e(1)}", f"s_mov_b32 s10, {WUI}", f"v_add3_u32 v{e(1)}, v{e(1)}, v{vcS}, s10"]
    a1 += wu[:12]
    a1 += [f"s_movk_i32 s10, {(PL-32)//8}", f"v_mad_u32_u24 v{e(0)}, v{vcS}, s10, v{e(0)}",
           f"s_mov_b32 s10, {OWN}", f"v_lshl_add_u32 v{e(5)}, v{e(3)}, 3, s10"]
    a1 += [f"v_lshl_add_u32 v{e(10+w)}, v{e(3)}, 3, s{sOK+w}" for w in range(2)]
    a1 += ["s_waitcnt lgkmcnt(8)"] + wu[12:]
    a2 = []
    for w in range(2):
        for i in range(4):
            a2 += [f"v_add_u32 v{e(12)}, v{nd(w,i)}, v{e(5)}", f"ds_read_b64 {rr(xd+8*w+2*i,2)}, v{e(12)} offset:{i*(PL-32)}"]
    for w in range(2):
        a2 += [f"v_add3_u32 v{e(8+w)}, v{e(8+w)}, v{e(0)}, s10"]
        a2 += [f"ds_read_b128 {rr(vX+8*w+4*s,4)}, v{e(8+w)} offset:{64*s}" for s in range(2)]
    def unp(w, n): return [(f"v_and_b32 v{ZR[w]+4*n+i}, 0xffff0000, v{xd+8*w+2*i+(n>>1)}" if n & 1 else
                            f"v_lshlrev_b32 v{ZR[w]+4*n+i}, 16, v{xd+8*w+2*i+(n>>1)}") for i in range(4)]
    blk = [(w, n) for w in range(2) for n in range(4)]
    a3 = [["s_waitcnt lgkmcnt(0)"] + unp(0, 0) + unp(0, 1)]
    for k, (w, n) in enumerate(blk):
        a3[-1] += [m16(ZR[w]+4*n, vX+8*w, vWB+8*n, ZR[w]+4*n)]
        a3.append((unp(*blk[k+2]) if k + 2 < 8 else []) + [f"v_lshl_add_u32 v{nd(w,n)}, v{nd(w,n)}, 2, v{e(10+w)}",
                  m16(ZR[w]+4*n, vX+8*w+4, vWB+8*n+4, ZR[w]+4*n)])
        if k < 7: a3.append([])
    ME = opt("me", 0)
    if ME:
        for par in range(2):
            L(f"L_LB{par}")
            put(last_tile(par, 0, only_b=True))
            I("s_branch L_DONE")
    for par in range(2):
        L(f"L_LT{par}")
        I(f"s_cmp_lg_u32 s{sHF}, 0")
        I(f"s_cbranch_scc1 L_LH{par}")
        for half in range(2):
            if half: L(f"L_LH{par}")
            put(last_tile(par, half, (lid + a1, a2, a3) if ME else None))
            I("s_branch L_EPB" if ME else "s_branch L_DONE")
    L("L_DONE")
    put(lid)
    I(f"s_cmp_lg_u32 s{sMORE}, 0")
    I("s_cbranch_scc1 L_SLOW")
    L("L_EPI")
    I("s_waitcnt lgkmcnt(0)")
    put(a1 + a2 + sum(a3, []))
    L("L_EPB")
    stamp(14)
    cstamp(57)
    I(f"s_setprio {opt('epr', 0)}")
    I(f"s_mov_b64 exec, {sp(sCM)}")
    I(f"s_and_b32 s11, s{sSH}, 19")
    I("s_nop 2")
    for i in range(4):
        I(f"s_cmp_eq_u32 s11, {i}")
        I(f"s_cbranch_scc1 L_NS{i}")
    L("L_NSR")
    I("s_mov_b64 exec, -1")
    for w in range(2):
        for k in range(16): I(f"v_rcp_f32 v{DEN(w,0)+k}, v{DEN(w,0)+k}")
        for k in range(0, 16, 2): I(f"v_pk_fma_f32 {rr(NUM(w,0)+k,2)}, {rr(NUM(w,0)+k,2)}, {rr(DEN(w,0)+k,2)}, {rr(ZR[w]+k,2)}")
        for i in range(4):
            for h in range(2): I(f"v_cvt_pk_bf16_f32 v{DEN(w,0)+2*i+h}, v{NUM(w,2*h)+i}, v{NUM(w,2*h+1)+i}")
            for h in range(2):
                I(f"v_pk_max_f16 v{DEN(w,0)+2*i+h}, v{DEN(w,0)+2*i+h}, v{xd+8*w+2*i+h}")
            I(f"buffer_store_dwordx2 {rr(DEN(w,0)+2*i,2)}, v{nd(w,i)}, {sq(sO[w])}, 0 offen{pol(OP)}")
    stamp("e2")
    stamp_out()
    L("L_END")
    I("s_endpgm")
    for i in range(4):
        L(f"L_NS{i}")
        for k in range(8): I(f"v_add_f32 v{vACC+4*k+i}, v{vACC+4*k+i}, v{vACC+32+4*k+i}")
        I("s_branch L_NSR")
    for i in range(4):
        L(f"L_RT{i}")
        I("s_waitcnt vmcnt(0)")
        spin()
        for k in range(i, 4): poll_load(k)
        I("s_waitcnt vmcnt(0)")
        I(f"s_branch L_PW{i}")
    L("L_XT2B")
    spin()
    xload("b")
    I("s_waitcnt vmcnt(0)")
    I("s_branch L_XT2")
    L("L_OVF")
    I(f"s_mov_b32 s{sSKIP}, 0")
    I(f"s_mov_b32 s{sN}, 0")
    I(f"s_mov_b32 s{sST}, 0")
    I(f"s_mov_b32 s{sMORE}, 4")
    I("s_waitcnt lgkmcnt(0)")
    I("s_branch L_CA")
    q = vCA
    L("L_POVF")
    I("s_movk_i32 s11, 1986")
    for i in range(4):
        I(f"v_mul_u32_u24 v{q+i}, s11, v{vHS+i}")
        I(f"v_lshrrev_b32 v{q+i}, 16, v{q+i}")
    I(f"v_add_u32 v{q+5}, v{q}, v{q+1}")
    I(f"v_add_u32 v{q+6}, v{q+5}, v{q+2}")
    I(f"v_add_u32 v{q+7}, v{q+6}, v{q+3}")
    I(f"v_mov_b32 v{q+8}, v{q+7}")
    wave_scan(q + 8)
    I("s_nop 0")
    I(f"v_sub_u32 v{q+4}, v{q+8}, v{q+7}")
    I(f"v_add_u32 v{q+7}, v{q+4}, v{q+6}")
    I(f"v_add_u32 v{q+6}, v{q+4}, v{q+5}")
    I(f"v_add_u32 v{q+5}, v{q+4}, v{q}")
    for i in range(4): I(f"v_lshl_or_b32 v{q+4+i}, v{q+i}, 16, v{q+4+i}")
    I(f"v_add_u32 v{q+8}, {HDR}, v{l16}")
    I(f"ds_write_b128 v{q+8}, {rr(q+4,4)}")
    I("s_lshl_b32 s10, s2, 10")
    I(f"s_add_u32 s10, s10, {WS_HD}")
    I(f"buffer_store_dwordx4 {rr(q+4,4)}, v{l16}, {sq(sWS)}, s10 offen sc1")
    for i in range(8):
        I(f"v_and_b32 v{q+10+i}, 0x3fc, v{vHA+i}")
        I(f"v_add_u32 v{q+10+i}, {HDR}, v{q+10+i}")
        I(f"ds_read_u16 v{q+10+i}, v{q+10+i}")
    I("s_waitcnt lgkmcnt(0)")
    for i in range(4):
        I(f"v_cmpx_lt_u32 vcc, {33*(CAP+8)}, v{vHD+i}")
        I(f"v_or_b32 v{vO+4*i+1}, 0x10000, v{vO+4*i+1}")
        I("s_mov_b64 exec, -1")
    I(f"s_mul_i32 s10, s2, {DCH}")
    I(f"s_mov_b32 s{sTM}, {WS_RECS}")
    I(f"s_mov_b32 s{sTM+1}, {WS_LEID}")
    for i in range(NR):
        I(f"v_mul_u32_u24 v{q}, s11, v{vRK1+i}")
        I(f"v_lshrrev_b32 v{q}, 16, v{q}")
        I(f"v_add3_u32 v{q}, v{q}, v{q+10+i}, s10")
        I(f"v_lshlrev_b32 v{q+1}, 2, v{q}")
        I(f"v_cmpx_le_u32 vcc, {33*(CAP+8)}, v{vRK1+i}")
        I(f"s_cbranch_execz L_PO{i}")
        I(f"buffer_store_byte v{idr(i)}, v{q}, {sq(sWS)}, s{sTM+1} offen sc1")
        I(f"buffer_store_dword v{vSR+i}, v{q+1}, {sq(sWS)}, s{sTM} offen sc1")
        L(f"L_PO{i}")
        I("s_mov_b64 exec, -1")
    I("s_waitcnt vmcnt(0) lgkmcnt(0)")
    I("s_barrier")
    I("s_branch L_POUT")
    SB = 288
    t0, t1, t2, t3 = vP, vP+1, vP+2, vP+3
    L("L_SLOW")
    I("s_setprio 0")
    I(f"s_lshl_b32 s10, s{sWP}, 6")
    I(f"v_add_u32 v{tid}, s10, v{lane}")
    I(f"s_cmp_lg_u32 s{sMORE}, 4")
    I("s_cbranch_scc1 L_SL1")
    I(f"s_mov_b32 s{sMORE}, 1")
    I(f"v_and_b32 v{t0}, 0xff, v{tid}")
    I(f"v_lshlrev_b32 v{t1}, 7, v{t0}")
    I(f"buffer_load_dword v{t2}, v{t1}, {sq(sCEL)}, 0 offen offset:4 sc1")
    I(f"v_lshlrev_b32 v{t1}, 10, v{t0}")
    I(f"s_lshl_b32 s10, s{sB}, 2")
    I(f"s_add_u32 s10, s10, {WS_HD}")
    I(f"buffer_load_dword v{t3}, v{t1}, {sq(sWS)}, s10 offen sc1")
    I(f"v_lshlrev_b32 v{t0}, 2, v{t0}")
    I(f"v_add_u32 v{t0}, {HDR}, v{t0}")
    I("s_waitcnt vmcnt(0)")
    I(f"v_and_b32 v{t2}, 0x10000, v{t2}")
    I(f"v_cmp_ne_u32 vcc, 0, v{t2}")
    I(f"v_mov_b32 v{t2}, {(CAP+8) << 16}")
    I("s_nop 0")
    I(f"v_cndmask_b32 v{t2}, v{t2}, v{t3}, vcc")
    I(f"ds_write_b32 v{t0}, v{t2}")
    I("s_waitcnt lgkmcnt(0)")
    I("s_barrier")
    L("L_SL1")
    I(f"s_add_u32 s{sR0}, s{sR0}, {SB}")
    I(f"s_cmp_lt_u32 s{sR0}, s{sCNT}")
    I("s_cbranch_scc1 L_BATCH")
    L("L_FIND")
    I(f"s_cmp_lg_u64 {sp(sMSK)}, 0")
    I("s_cbranch_scc1 L_GOT")
    I(f"s_add_u32 s{sCI}, s{sCI}, 1")
    I(f"s_cmp_ge_u32 s{sCI}, 4")
    I("s_cbranch_scc1 L_EPI")
    I(f"s_lshl_b32 s10, s{sCI}, 8")
    I(f"s_add_u32 s10, s10, {HDR}")
    I(f"v_lshl_add_u32 v{t0}, v{lane}, 2, s10")
    I(f"ds_read_u16 v{t0}, v{t0} offset:2")
    I("s_waitcnt lgkmcnt(0)")
    I(f"v_cmp_lt_u32 {sp(sMSK)}, s{sSKIP}, v{t0}")
    I("s_nop 3")
    I("s_branch L_FIND")
    L("L_GOT")
    I(f"s_ff1_i32_b64 s10, {sp(sMSK)}")
    I(f"s_bitset0_b64 {sp(sMSK)}, s10")
    I(f"s_lshl_b32 s11, s{sCI}, 6")
    I(f"s_add_u32 s{sCUR}, s10, s11")
    I(f"s_lshl_b32 s10, s{sCUR}, 2")
    I(f"s_add_u32 s10, s10, {HDR}")
    I(f"v_mov_b32 v{t0}, s10")
    I(f"ds_read_b32 v{t0}, v{t0}")
    I("s_waitcnt lgkmcnt(0)")
    I(f"v_readfirstlane_b32 s10, v{t0}")
    I("s_nop 3")
    I(f"s_lshr_b32 s{sCNT}, s10, 16")
    I(f"s_and_b32 s{sST}, s10, 0xffff")
    I(f"s_mov_b32 s{sR0}, s{sSKIP}")
    L("L_BATCH")
    I("s_waitcnt vmcnt(0)")
    I("s_barrier")
    prefill(vP + 4)
    I(f"v_and_b32 v{t0}, 15, v{lane}")
    I(f"v_mul_u32_u24 v{t1}, {LWB}, v{t0}")
    I(f"v_add_u32 v{t1}, {BIAS}, v{t1}")
    I(f"v_lshlrev_b32 v{t0}, 2, v{t0}")
    I(f"ds_write_b32 v{t0}, v{t1} offset:{CNT}")
    t1, t4, t5 = vQ, vQ + 2, vQ + 3
    I(f"v_add_u32 v{t0}, s{sR0}, v{tid}")
    I(f"s_mul_i32 s{sTM+2}, s{sCUR}, {CH}")
    I(f"s_mul_i32 s11, s{sCUR}, {DCH}")
    I(f"s_add_u32 s11, s11, s{sST}")
    I(f"s_lshl_b32 s{sTM}, s11, 2")
    I(f"s_add_u32 s{sTM}, s{sTM}, {WS_RECS}")
    I(f"v_lshl_add_u32 v{t2}, v{t0}, 2, s{sTM}")
    I(f"s_add_u32 s{sTM}, s11, {WS_LEID}")
    I(f"v_add_u32 v{t3}, s{sTM}, v{t0}")
    I(f"s_mul_i32 s10, s{sB}, {RS}")
    I(f"s_lshl_b32 s{sTM}, s{sCUR}, 7")
    I(f"s_add_u32 s10, s10, s{sTM}")
    I(f"s_add_u32 s10, s10, {WS_CELL}")
    I(f"v_and_b32 v{t4}, 7, v{t0}")
    I(f"v_lshl_add_u32 v{t4}, v{t4}, 4, s10")
    I(f"v_lshrrev_b32 v{t5}, 3, v{t0}")
    I(f"v_cmpx_gt_u32 vcc, {CAP+8}, v{t0}")
    I(f"v_add_u32 v{t2}, {XOFF}, v{t4}")
    I(f"v_add_u32 v{t3}, 8, v{t2}")
    I(f"v_cmpx_gt_u32 vcc, {CAP}, v{t0}")
    I(f"v_lshl_add_u32 v{t2}, v{t5}, 2, v{t4}")
    I(f"v_add3_u32 v{t3}, v{t4}, v{t5}, 12")
    I("s_mov_b64 exec, -1")
    I(f"s_add_u32 s10, s{sR0}, {SB}")
    I(f"s_min_u32 s10, s10, s{sCNT}")
    I(f"v_cmp_gt_u32 vcc, s10, v{t0}")
    I(f"v_mov_b32 v{t4}, 0x7ffffff0")
    I("s_nop 0")
    I(f"v_cndmask_b32 v{t2}, v{t4}, v{t2}, vcc")
    I(f"v_cndmask_b32 v{t3}, v{t4}, v{t3}, vcc")
    I(f"buffer_load_dwordx2 {rr(t1,2)}, v{t2}, {sq(sWS)}, 0 offen sc1")
    I(f"buffer_load_ubyte v{t3}, v{t3}, {sq(sWS)}, 0 offen sc1")
    I("s_waitcnt lgkmcnt(0)")
    I("s_barrier")
    I("s_waitcnt vmcnt(0)")
    I(f"v_cmp_ne_u32 vcc, 3, v{t5}")
    I(f"v_cmp_eq_u32 {sp(sA)}, s{sK}, v{t1+1}")
    I(f"v_mov_b32 v{t4}, s{sTM+2}")
    I(f"s_or_b64 exec, vcc, {sp(sA)}")
    I(f"v_cmpx_ne_u32 vcc, 0, v{t1}")
    I(f"v_bfe_u32 v{t2}, v{t1}, 18, 8")
    I(f"v_lshlrev_b32 v{t2}, 2, v{t2}")
    I(f"v_add_u32 v{t0}, {MAP}, v{t2}")
    I(f"ds_read_b32 v{t0}, v{t0}")
    put(rec_ops(t1, t3, 0, t4, t2, t3))
    I(f"v_mov_b32 v{t2}, 4")
    I("s_waitcnt lgkmcnt(0)")
    I(f"ds_add_rtn_u32 v{t0}, v{t0}, v{t2} offset:{CNT}")
    I("s_waitcnt lgkmcnt(0)")
    I(f"ds_write2st64_b32 v{t0}, v{t1}, v{t3} {W2}")
    I("s_mov_b64 exec, -1")
    I("s_waitcnt lgkmcnt(0)")
    I("s_barrier")
    listaddr(t2)
    I(f"ds_read_b128 {rr(vQD,4)}, v{vARX}")
    I(f"ds_read_b32 v{vEI}, v{vARE}")
    lens_from_cnt(t2)
    for r_ in (vQ, vQ + 2, vS, vS + 2): I(f"v_mov_b64 {rr(r_,2)}, 0")
    put(dma_tile())
    L("L_LAST")
    I("s_branch L_GO")

def regs_of(tok):
    tok = tok.strip()
    m = re.fullmatch(r"v\[(\d+):(\d+)\]", tok)
    if m: return list(range(int(m.group(1)), int(m.group(2)) + 1))
    m = re.fullmatch(r"v(\d+)", tok)
    if m: return [int(m.group(1))]
    return []
def parse(ins):
    op, _, rest = ins.partition(" ")
    ops = [o.strip().split(" ")[0] for o in rest.split(",")] if rest else []
    if op.startswith("ds_read") or "rtn" in op: return "ds", regs_of(ops[0]), regs_of(ops[1])
    return "other", [], sum((regs_of(o) for o in ops), [])
def check_body(body):
    s2 = [b for b in body if not b.endswith(":")]
    pend = []
    for i, ins in enumerate(s2 * 3):
        k, d, s = parse(ins)
        m = re.search(r"lgkmcnt\((\d+)\)", ins)
        if m:
            while len(pend) > int(m.group(1)): pend.pop(0)
        pr = set(sum(pend, []))
        for r in d + s:
            assert r not in pr, f"pending LDS reg v{r} used by {ins} @{i}"
        if k == "ds":
            pend.append(d); assert len(pend) <= 15

hdr = open("/code/" + NAME + ".s.ref").read().split("\n")
for l in hdr:
    if l.startswith("; Override"): break
    out.append(l)
if opt("list", 0): out.append(f"; @launch kernel={NAME}_kernel grid=(256,1,1) block=(512,1,1) lds={LDS}")
else: out.append(f"; @launch grid=(256,1,1) block=(512,1,1) lds={LDS}")
LEAK = opt("leak", "")
if LEAK: out.append("; @launch kernel=leak_kernel grid=(1,1,1) block=(256,1,1) lds=64")
emit('.amdgcn_target "amdgcn-amd-amdhsa--gfx950"\n.text')
emit("""; Generated by tools/gen6.py.  One workgroup per CU (256), each in two roles:
;  consumer: reads the 256 cells of its bucket.  Every 16-byte granule carries a tag derived from the epoch word d_ws[0]
;  Then per wave two windows of <= 16 nodes; per tile of 32 edges: G = x[src] Wb + [e | onehot] [Wc ; x[dst] Wa], H = x[src] Wv
;  Cells that overflow use extension granules / dense lists and extra rounds (L_SLOW), so any dst distribution is handled.""")
kernel()
if LEAK:
    kind, nm = LEAK[0], LEAK[1:]
    PT = opt("pt", 0)
    si = STN.index(nm)
    emit(".globl leak_kernel\n.p2align 8\n.type leak_kernel,@function\nleak_kernel:")
    I("s_cmp_lg_u32 s2, 0")
    I("s_cbranch_scc1 LK_END")
    I("s_load_dwordx2 s[4:5], s[0:1], 88")
    I("v_min_u32 v1, 254, v0")
    I("v_lshlrev_b32 v1, 11, v1")
    I("v_mov_b32 v2, 0")
    I("v_mov_b32 v3, 0x7fffffff")
    I("v_mov_b32 v4, 0")
    I("ds_write2_b32 v2, v3, v4 offset0:0 offset1:1")
    I("s_waitcnt lgkmcnt(0)")
    I(f"s_add_u32 s4, s4, {WS_TS}")
    I("s_addc_u32 s5, s5, 0")
    I("global_load_dword v5, v2, s[4:5]")
    for w in range(8):
        I(f"global_load_dword v{8+w}, v1, s[4:5] offset:{256*w}")
        I(f"global_load_dword v{16+w}, v1, s[4:5] offset:{256*w + 4*si}")
    I("s_barrier")
    I("s_waitcnt vmcnt(0)")
    I("v_subrev_u32 v5, 1000, v5")
    for w in range(16): I(f"v_sub_u32 v{8+w}, v{8+w}, v5")
    for w in range(8):
        I(f"ds_min_u32 v2, v{8+w}")
        I(f"ds_{'max' if kind == 'm' else 'add'}_u32 v2, v{16+w} offset:4")
    I("s_waitcnt lgkmcnt(0)")
    I("s_barrier")
    I("ds_read_b64 v[6:7], v2")
    I("s_waitcnt lgkmcnt(0)")
    I("v_lshlrev_b32 v6, 2, v6")
    I("v_lshlrev_b32 v7, 2, v7" if kind == 'm' else "v_lshrrev_b32 v7, 9, v7")
    I("v_sub_u32 v6, v7, v6")
    I("v_min_u32 v6, 20000, v6")
    I("s_nop 0")
    I("v_readfirstlane_b32 s6, v6")
    I("s_memrealtime s[8:9]")
    I("s_waitcnt lgkmcnt(0)")
    if PT:
        I(f"s_cmp_gt_u32 s6, {4*PT}")
        I("s_cselect_b32 s6, 6000, 0")
        I("s_mul_i32 s7, s8, 0x9e3779b1")
        I("s_lshr_b32 s7, s7, 20")
        I("s_add_u32 s6, s6, s7")
    L("LK_L")
    I("s_memrealtime s[10:11]")
    I("s_waitcnt lgkmcnt(0)")
    I("s_sub_u32 s7, s10, s8")
    I("s_cmp_lt_u32 s7, s6")
    I("s_cbranch_scc1 LK_L")
    L("LK_END")
    I("s_endpgm")
emit(f""".section .rodata,"a"
.p2align 6
.amdhsa_kernel {NAME}_kernel
  .amdhsa_next_free_vgpr 256
  .amdhsa_next_free_sgpr 102
  .amdhsa_accum_offset 256
  .amdhsa_group_segment_fixed_size 0
  .amdhsa_kernarg_size 96
  .amdhsa_user_sgpr_count 2
  .amdhsa_user_sgpr_kernarg_segment_ptr 1
  .amdhsa_system_sgpr_workgroup_id_x 1
.end_amdhsa_kernel""")
if LEAK:
    emit(""".p2align 6
.amdhsa_kernel leak_kernel
  .amdhsa_next_free_vgpr 32
  .amdhsa_next_free_sgpr 16
  .amdhsa_accum_offset 32
  .amdhsa_group_segment_fixed_size 0
  .amdhsa_kernarg_size 96
  .amdhsa_user_sgpr_count 2
  .amdhsa_user_sgpr_kernarg_segment_ptr 1
  .amdhsa_system_sgpr_workgroup_id_x 1
.end_amdhsa_kernel""")
if TS: out.insert(0, "; stamps " + " ".join(STN))
path = sys.argv[1] if len(sys.argv) > 1 else "/code/" + NAME + ".s"
open(path, "w").write("\n".join(out) + "\n")
print("wrote", path, len(out), "lines; lds", LDS)
```
